```python
import torch

def _softmax(x, axis=-1):
    return torch.softmax(x, dim=axis)
def _gelu(x):
    return torch.nn.functional.gelu(x, approximate="tanh")
def _silu(x):
    return torch.nn.functional.silu(x)
def _sigmoid(x):
    return torch.sigmoid(x)
def _layernorm(x, axis=-1, eps=1e-5):
    m = x.mean(dim=axis, keepdim=True)
    v = x.var(dim=axis, keepdim=True, unbiased=False)
    return (x - m) / torch.sqrt(v + eps)
def _scatter_add(tgt, idx, src, axis=0):
    return tgt.clone().index_add_(axis, idx, src)
def _segment_sum(src, seg, n):
    out = torch.zeros((n,) + src.shape[1:], dtype=src.dtype)
    return out.index_add_(0, seg, src)
def _pad(x, pw):
    flat = tuple(v for pair in reversed(pw) for v in pair)
    return torch.nn.functional.pad(x, flat)

kernel_name = 'sequential_preLN__sliding_local_dilated__moe_arch_mod__prompt'

def setup_inputs():

    _w = (lambda a: (lambda t: t.to(torch.bfloat16) if t.is_floating_point() else t)(torch.as_tensor(a)))
    def _A_setup():
        B, S, D = 1, 2048, 640
        return {
            "x": _w((lambda *s: torch.randn(*s, dtype=torch.bfloat16) * 0.05)(B, S, D)),
            "wqkv": _w((lambda *s: torch.randn(*s, dtype=torch.bfloat16) * 0.05)(D, 3 * D)),
            "wo": _w((lambda *s: torch.randn(*s, dtype=torch.bfloat16) * 0.05)(D, D)),
        }
    _A_in = _A_setup()

    def _B_setup():
        B, S, D, F, C = 1, 2048, 640, 1536, 1
        return {
            "x": _w((lambda *s: torch.randn(*s, dtype=torch.bfloat16) * 0.05)(B, S, D)),
            "w_r": _w((lambda *s: torch.randn(*s, dtype=torch.bfloat16) * 0.05)(D)),
            "w_gate": _w((lambda *s: torch.randn(*s, dtype=torch.bfloat16) * 0.05)(D, F)),
            "w_up": _w((lambda *s: torch.randn(*s, dtype=torch.bfloat16) * 0.05)(D, F)),
            "w_down": _w((lambda *s: torch.randn(*s, dtype=torch.bfloat16) * 0.05)(F, D)),
        }
    _B_in = _B_setup()

    return {
        "A_x": _A_in["x"],
        "A_wqkv": _A_in["wqkv"],
        "A_wo": _A_in["wo"],
        "B_x": _B_in["x"],
        "B_w_r": _B_in["w_r"],
        "B_w_gate": _B_in["w_gate"],
        "B_w_up": _B_in["w_up"],
        "B_w_down": _B_in["w_down"],
    }

def reference(A_x, A_wqkv, A_wo, B_x, B_w_r, B_w_gate, B_w_up, B_w_down):
    def _A_ref(x, wqkv, wo):
        B, S, D = x.shape
        H = 32; Dh = D // H
        W, dil = 8, 2
        qkv = (lambda x, *d: x.permute(*d))((x @ wqkv).reshape(B, S, 3, H, Dh), 2, 0, 3, 1, 4)
        q, k, v = qkv[0], qkv[1], qkv[2]
        scale = Dh ** -0.5
        pos = torch.arange(S)
        off = torch.arange(W) * dil
        idx = pos[:, None] - off[None, :]
        mask = idx >= 0
        idx_c = torch.where(mask, idx, 0).reshape(-1)
        kg = k[:, :, idx_c, :].reshape(B, H, S, W, Dh)
        vg = v[:, :, idx_c, :].reshape(B, H, S, W, Dh)
        logits = torch.einsum("bhsd,bhswd->bhsw", q, kg) * scale
        logits = torch.where(mask[None, None, :, :], logits, -1e9)
        attn = _softmax(logits, axis=-1)
        o = torch.einsum("bhsw,bhswd->bhsd", attn, vg)
        return (lambda x, *d: x.permute(*d))(o, 0, 2, 1, 3).reshape(B, S, D) @ wo

    def _B_ref(x, w_r, w_gate, w_up, w_down):
        B, S, D = x.shape
        C = 1
        r = x @ w_r
        idx = torch.argsort(-r, axis=-1)[:, :C]
        idx_e = (lambda x, n, axis: torch.repeat_interleave(x, n, dim=axis))(idx.reshape(B, C, 1), D, axis=2)
        x_sel = (lambda x, i, axis: torch.take_along_dim(x, i, dim=axis))(x, idx_e, axis=1)
        g = _silu(x_sel @ w_gate)
        u = x_sel @ w_up
        y = (g * u) @ w_down
        r_sel = _sigmoid((lambda x, i, axis: torch.take_along_dim(x, i, dim=axis))(r, idx, axis=1))
        y = y * r_sel.reshape(B, C, 1)
        b_off = (torch.arange(B) * S).reshape(B, 1)
        flat_idx = (idx + b_off).reshape(B * C)
        zero = (x * 0.0).reshape(B * S, D)
        upd = _scatter_add(zero, flat_idx, y.reshape(B * C, D), axis=0)
        return x + upd.reshape(B, S, D)

    x = A_x
    h = x + _A_ref(_layernorm(x, axis=-1), A_wqkv, A_wo)
    h2 = h + _B_ref(_layernorm(h, axis=-1), B_w_r, B_w_gate, B_w_up, B_w_down)
    return h2
```

```python
NAME = "sequential_preLN__sliding_local_dilated__moe_arch_mod__prompt"

HEADER = """; Kernarg layout (88 bytes, ptrs only, base s[0:1]):
"""

class Asm:
    def __init__(self):
        self.lines = []
        self.uid = 0
    def __call__(self, s=""):
        for l in s.split("\n"):
            self.lines.append(l)
    def label(self, base):
        self.uid += 1
        return f"L_{base}_{self.uid}"
    def text(self):
        return "\n".join(self.lines) + "\n"

def kernel_begin(a, name, page=False):
    a(".text")
    if page: a(".p2align 12")
    a(f".globl {name}")
    a(".p2align 8")
    a(f".type {name},@function")
    a(f"{name}:")

def kernel_desc(a, name, vgpr, sgpr=102, accum=None):
    if accum is None:
        accum = min(256, (vgpr + 3) // 4 * 4)
    a('.section .rodata,"a"')
    a(".p2align 6")
    a(f".amdhsa_kernel {name}")
    a(f"  .amdhsa_next_free_vgpr {vgpr}")
    a(f"  .amdhsa_next_free_sgpr {sgpr}")
    a(f"  .amdhsa_accum_offset {accum}")
    a("  .amdhsa_group_segment_fixed_size 0")
    a("  .amdhsa_kernarg_size 88")
    a("  .amdhsa_user_sgpr_count 2")
    a("  .amdhsa_user_sgpr_kernarg_segment_ptr 1")
    a("  .amdhsa_system_sgpr_workgroup_id_x 1")
    a("  .amdhsa_float_denorm_mode_32 3")
    a(".end_amdhsa_kernel")

def srd(a, d, base, nbytes):
    a(f"s_mov_b32 s{d}, s{base}")
    a(f"s_and_b32 s{d+1}, s{base+1}, 0xffff")
    a(f"s_mov_b32 s{d+2}, {nbytes:#x}")
    a(f"s_mov_b32 s{d+3}, 0x20000")
```

```python
import re

TRANS = ("v_exp_f32", "v_log_f32", "v_rcp_f32", "v_rsq_f32", "v_sqrt_f32", "v_sin_f32", "v_cos_f32")

def regs(tok):
    tok = tok.strip()
    tok = tok.lstrip("-")
    if tok.startswith("abs(") or tok.startswith("|"):
        tok = tok.replace("abs(", "").replace(")", "").replace("|", "")
    m = re.fullmatch(r"([vsa])(\d+)", tok)
    if m: return {(m.group(1), int(m.group(2)))}
    m = re.fullmatch(r"([vsa])\[(\d+):(\d+)\]", tok)
    if m: return {(m.group(1), i) for i in range(int(m.group(2)), int(m.group(3)) + 1)}
    if tok in ("vcc", "vcc_lo", "vcc_hi"): return {("x", "vcc")}
    if tok in ("exec", "exec_lo", "exec_hi"): return {("x", "exec")}
    if tok == "m0": return {("x", "m0")}
    return set()

class I:
    def __init__(self, text):
        self.text = text
        t = text.split(";")[0].strip()
        self.label = None
        self.op = None
        self.kind = "none"
        self.w = set(); self.r = set()
        self.states = 1
        self.target = None
        if not t or t.startswith("."):
            self.states = 0; return
        if t.endswith(":"):
            self.label = t[:-1]; self.states = 0; return
        parts = t.split(None, 1)
        op = self.op = parts[0]
        rest = parts[1] if len(parts) > 1 else ""
        ops = []; cur = ""; depth = 0
        for ch in rest:
            if ch == "[": depth += 1
            if ch == "]": depth -= 1
            if ch == "," and depth == 0:
                ops.append(cur.strip()); cur = ""
            else: cur += ch
        if cur.strip(): ops.append(cur.strip())
        mods = ""
        if ops:
            last = ops[-1].split(None, 1)
            if len(last) > 1:
                ops[-1] = last[0]; mods = last[1]
        self.ops = ops; self.mods = mods
        self.dpp = any(k in mods for k in ("quad_perm", "row_", "wave_", "bank_mask")) or op.endswith("_dpp")
        self.opsel = ("op_sel" in mods and not op.startswith("v_pk_")) or "sdwa" in op or "dst_sel" in mods
        R = lambda i: regs(ops[i]) if i < len(ops) else set()
        if op.startswith("v_mfma"):
            self.kind = "mfma"
            self.sgemm = op.endswith("_f32") and ("x4_f32" in op or "x2_f32" in op)
            self.D, self.A, self.B, self.C = R(0), R(1), R(2), R(3)
            self.w = set(self.D); self.r = self.A | self.B | self.C
        elif op.startswith("v_"):
            self.kind = "valu"
            base = op.replace("_e32", "").replace("_e64", "").replace("_dpp", "").replace("_sdwa", "")
            self.base = base
            self.w = R(0)
            for i in range(1, len(ops)): self.r |= R(i)
            if base.startswith(("v_fmac", "v_dot2c", "v_writelane", "v_pk_fmac", "v_mac")) or self.dpp or self.opsel:
                self.r |= R(0)
            if base.startswith("v_permlane"):
                self.w |= R(1); self.r |= R(0)
            if base == "v_cndmask_b32" and len(ops) == 3: self.r |= {("x", "vcc")}
            if base in ("v_add_co_u32", "v_sub_co_u32", "v_addc_co_u32"):
                self.w |= R(1)
            if base.startswith("v_cmpx"): self.w |= {("x", "exec")}
            if base == "v_swap_b32":
                self.w |= R(1); self.r |= R(0)
            self.trans = base in TRANS
            self.dot = base.startswith("v_dot")
        elif op.startswith("ds_"):
            self.kind = "ds"
            if op.startswith(("ds_read", "ds_bpermute", "ds_permute", "ds_swizzle")):
                self.w = R(0)
                for i in range(1, len(ops)): self.r |= R(i)
            else:
                for i in range(len(ops)): self.r |= R(i)
        elif op.startswith(("buffer_", "global_")):
            self.kind = "vmem"
            self.lds = bool(re.search(r"\blds\b", mods))
            self.wide = None
            if op.startswith("buffer_load") and not self.lds:
                self.w = R(0)
                for i in range(1, len(ops)): self.r |= R(i)
            elif op.startswith("buffer_load"):
                for i in range(len(ops)): self.r |= R(i)
                self.r |= {("x", "m0")}
            elif op.startswith("buffer_store"):
                for i in range(len(ops)): self.r |= R(i)
                if op.endswith(("x3", "x4")): self.wide = R(0)
            elif op.startswith("global_load"):
                self.w = R(0)
                for i in range(1, len(ops)): self.r |= R(i)
            elif op.startswith("global_store"):
                for i in range(len(ops)): self.r |= R(i)
                if op.endswith(("x3", "x4")): self.wide = R(1)
            else:
                for i in range(len(ops)): self.r |= R(i)
        elif op.startswith("s_"):
            self.kind = "salu"
            if op == "s_nop":
                self.states = int(ops[0], 0) + 1
            elif op in ("s_branch",) or op.startswith("s_cbranch"):
                self.target = ops[0]
            elif op.startswith(("s_cmp", "s_waitcnt", "s_barrier", "s_endpgm", "s_setprio", "s_sleep", "s_bitcmp")):
                for i in range(len(ops)): self.r |= R(i)
            else:
                self.w = R(0)
                for i in range(1, len(ops)): self.r |= R(i)
                if "saveexec" in op: self.w |= {("x", "exec")}
        else:
            raise ValueError("unknown instr: " + text)

def need(p, c):
    n = 0
    vw = {x for x in p.w if x[0] in "va"}
    if p.kind == "valu":
        sw = {x for x in p.w if x[0] in "sx"}
        if c.kind == "mfma":
            if vw & c.r: n = max(n, 3 if p.dot else 2)
            if ("x", "exec") in sw: n = max(n, 4)
            if p.op.startswith("v_pk_") and "op_sel:" in p.mods: n = max(n, 2)
        if c.kind == "valu":
            if vw & c.r:
                if c.dpp: n = max(n, 2)
                if c.base.startswith("v_permlane"): n = max(n, 2)
                if c.base.startswith(("v_readlane", "v_readfirstlane")): n = max(n, 1)
                if p.trans and not c.trans: n = max(n, 1)
                if p.opsel: n = max(n, 1)
            if p.dot and (vw & (c.r | c.w)):
                if c.base == p.base:
                    ab = set()
                    for i in (1, 2): ab |= regs(c.ops[i])
                    if vw & ab: n = max(n, 3)
                else: n = max(n, 3)
            if sw & c.r:
                n = max(n, 2)
                if c.base.startswith(("v_readlane", "v_writelane")): n = max(n, 4)
            if ("x", "exec") in sw:
                if c.dpp: n = max(n, 5)
                if c.base.startswith(("v_readlane", "v_readfirstlane", "v_writelane", "v_permlane")): n = max(n, 4)
        if c.kind == "vmem" and (sw & c.r): n = max(n, 5)
        if c.kind in ("vmem", "ds") and p.dot and (vw & c.r): n = max(n, 3)
        if c.kind in ("vmem", "ds") and p.trans and (vw & c.r): n = max(n, 1)
    elif p.kind == "mfma":
        if c.kind == "mfma":
            if p.D & (c.A | c.B): n = max(n, 10 if p.sgemm else 8)
            if p.D & c.C:
                if p.sgemm:
                    if c.sgemm and p.D != c.C: n = max(n, 8)
                else:
                    if c.sgemm or p.D != c.C: n = max(n, 6)
            if (p.D & c.D) and not (p.D & c.C): n = max(n, 10 if p.sgemm else 8)
        elif c.kind == "valu":
            if p.D & (c.r | c.w): n = max(n, 10 if p.sgemm else 8)
            if (not p.sgemm) and (p.C & c.w): n = max(n, 3)
        elif c.kind in ("vmem", "ds"):
            if p.D & (c.r | c.w): n = max(n, 10 if p.sgemm else 8)
    elif p.kind == "salu":
        if ("x", "m0") in p.w and c.kind == "vmem" and c.lds: n = max(n, 1)
    elif p.kind == "vmem":
        if p.wide and (p.wide & c.w):
            n = max(n, 2 if c.kind in ("valu", "mfma") else 1)
    return n

MAXD = 10

def fix(lines, verbose=False):
    ins = [I(l) for l in lines]
    total = 0
    start = 0
    while True:
        labels = {x.label: i for i, x in enumerate(ins) if x.label}
        jumps = {}
        for i, x in enumerate(ins):
            if x.target: jumps.setdefault(labels[x.target], []).append(i)
        def preds(i):
            out = []
            if i > 0 and ins[i - 1].op not in ("s_branch", "s_endpgm"): out.append(i - 1)
            out += jumps.get(i, [])
            return out
        changed = False
        for i in range(start, len(ins)):
            c = ins[i]
            if c.op is None or c.kind == "salu": continue
            worst = 0; why = None
            stack = [(p, 0) for p in preds(i)]
            seen = {}
            while stack:
                k, d = stack.pop()
                if d >= MAXD or seen.get(k, 99) <= d: continue
                seen[k] = d
                p = ins[k]
                if p.op is not None:
                    nn = need(p, c) - d
                    if nn > worst: worst, why = nn, p.text
                for q in preds(k): stack.append((q, d + p.states))
            if worst > 0:
                if verbose: print(f"nop {worst}: [{why.strip()}] -> [{c.text.strip()}]")
                ins.insert(i, I(f"s_nop {worst-1}"))
                total += worst
                changed = True
                start = i + 1
                break
        if not changed:
            if start == 0: break
            start = 0
    return [x.text for x in ins], total
```

```python
import sys
sys.path.insert(0, "gen")
from common import *
import hazard

OPT = dict(stage="F", stamps=0, verbose=0, pf=1, fixpk=1, grp=2, oearly=0, pf2=0, pfa=1, lcl=1, cw=3, noclr=0, pfl=0, pfk=0, pfo=1, tpf=0, gord=0, pdn=0, uni=1, ipf=4, ipn=8, kf=3, pfe=0, wb=0, lfl=1, b13=1, gw=0, slp2=1, slpk=2, slpf=2, e1="sc1", e2="sc1", pfs=15, woa1=9, osc="", gua=2, kstr=128, slp2a=8, slpka=10, slpfa=28, xre=1, e3="sc1", e4="sc1", mid=1, hoist=2, oup=8, opos=0, ol="sc1", gdm=3, kpre=0, clr=1, ev1=2, ev2=4, wdp=2, rsp=3, csp=1, pfi=5, xf=4, pfw=0, nowt=0, wrot=1, loc=3, gtr=1, nogu=0, noout=0, rot=1, pfg=0, dense=0, slpg=6, ring=4, lead=2)
for kv in sys.argv[2:]:
    k, v = kv.split("=")
    OPT[k] = int(v) if v.lstrip("-").isdigit() else v
STAGE = OPT["stage"]

GS, E1, E2, E3R, E4 = 131072, 0, 81920, 90112, 100352
FL, E3K, WOD, STAMP, GUW, DUMP = 0x400000, 0x408000, 0x430000, 0x500000, 0x600000, 0x1000000
KSTR = OPT["kstr"]; KREP = 128 * KSTR
SLOT = 40960
SB = 122880
QB = SB - 2816; TSTR = 12672; PITCH = 176
KB = QB + TSTR; VB = QB + 2 * TSTR
STATS = 30848; ZR = 31488
WOB = 40960
GU = SB; UPOFF = 10304
MODE = 31560
RDF = 31568
WIN = SB + 20736
EX = 20480
X, W, WO, WS, OUT, DBG, GATE, UP, DOWN, WR = 4, 8, 12, 16, 20, 24, 28, 32, 36, 40
sWV, sRB, sHG, sROW0, sJ, sU, sT, sGRP, sH160, sBUD = 44, 45, 46, 47, 48, 49, 50, 51, 52, 53
SRDSZ = {X: 2048 * 1280, W: 640 * 3840, WO: 640 * 1280, WS: 1 << 28, OUT: 2048 * 1280, DBG: 256,
         GATE: 640 * 3072, UP: 640 * 3072, DOWN: 1536 * 1280, WR: 1280}
BUDGET = 4000
DPPM = "row_mask:0xf bank_mask:0xf"
ONES = 0x3F803F80

a = Asm()
def S(d): return f"s[{d}:{d+3}]"
def V(d, n=1): return f"v{d}" if n == 1 else f"v[{d}:{d+n-1}]"
def srdc(*ds):
    for d in ds:
        a(f"s_mov_b32 s{d+2}, {SRDSZ[d]:#x}\ns_mov_b32 s{d+3}, 0x20000")
def execset(m):
    if m == -1: a("s_mov_b64 exec, -1")
    elif m < (1 << 31) : a(f"s_mov_b64 exec, {m:#x}")
    else: a(f"s_mov_b32 exec_lo, {m & 0xffffffff:#x}\ns_mov_b32 exec_hi, {m >> 32:#x}")
def mfma(d, A, B, C=None):
    c = V(d, 4) if C is None else (C if isinstance(C, str) else V(C, 4))
    a(f"v_mfma_f32_16x16x32_bf16 {V(d,4)}, {V(A,4)}, {V(B,4)}, {c}")

sMODE = 63
DEFER = []
def lst(text, on=1):
    if not on: a(text.replace("{F}", " sc1")); return
    l = a.label("gl")
    a(f"s_cmp_eq_u32 s{sMODE}, 1\ns_cbranch_scc0 {l}g")
    a(text.replace("{F}", "")); a(f"{l}b:")
    DEFER.append(f"{l}g:\n" + text.replace("{F}", " sc1") + f"\ns_branch {l}b")
def deferred():
    for t in DEFER: a(t)
    DEFER.clear()

class Cnt:
    def __init__(s, name, mx): s.n = 0; s.name = name; s.mx = mx; s.done = 0
    def __call__(s, text): a(text); s.n += 1; return s.n
    def wait(s, i):
        if i <= s.done: return
        k = min(s.mx, s.n - i); a(f"s_waitcnt {s.name}({k})"); s.done = s.n - k
    def reset(s): s.n = 0; s.done = 0

NST = 16
def stamp(i):
    if OPT["stamps"] == 1 or (OPT["stamps"] and i == 0): a(f"s_memtime s[{66+2*i}:{67+2*i}]")
def stamp2(i, reg, val):
    if OPT["stamps"] == 2:
        l = a.label("st")
        a(f"s_cmp_eq_u32 s{reg}, {val}\ns_cbranch_scc0 {l}\ns_memtime s[{66+2*i}:{67+2*i}]\n{l}:")
def stamp3(reg, n):
    if OPT["stamps"] == 3:
        e = a.label("s3e")
        for i in range(n):
            l = a.label("st")
            a(f"s_cmp_eq_u32 s{reg}, {i}\ns_cbranch_scc0 {l}\ns_memtime s[{68+2*i}:{69+2*i}]\ns_branch {e}\n{l}:")
        a(e + ":")
def stampx(i):
    if OPT["stamps"] == 3: a(f"s_memtime s[{66+2*i}:{67+2*i}]")
def dump_stamps(role):
    if not OPT["stamps"]: return
    execset(-1)
    a("s_memrealtime s[62:63]\ns_waitcnt lgkmcnt(0)\nv_mov_b32 v2, 0")
    a("v_writelane_b32 v2, s98, 0\nv_writelane_b32 v2, s62, 1")
    for i in range(1, NST):
        a(f"s_sub_u32 s3, s{66+2*i}, s66\nv_writelane_b32 v2, s3, {1+i}")
    a(f"s_lshl_b32 s3, s2, 9\ns_add_u32 s3, s3, {STAMP + 256*role}\nv_lshlrev_b32 v3, 2, v0")
    execset(-1)
    a(f"buffer_store_dword v2, v3, {S(WS)}, s3 offen")
    if OPT.get("diag") and OPT["drole"] == role:
        l = a.label("dg")
        if OPT["dwg"] >= 0: a(f"s_cmp_eq_u32 s2, {OPT['dwg']}\ns_cbranch_scc0 {l}e")
        a(f"s_sub_u32 s3, s{66+2*OPT['diag']}, s66\ns_lshr_b32 s3, s3, 2\ns_add_u32 s3, s3, s62")
        a(f"{l}:\ns_memrealtime s[62:63]\ns_waitcnt lgkmcnt(0)\ns_sub_u32 s0, s62, s3\ns_cmp_lt_i32 s0, 0\ns_cbranch_scc1 {l}\n{l}e:")

a(HEADER.rstrip())
a("; @launch grid=(256,1,1) block=(512,1,1) lds=163840")
a('.amdgcn_target "amdgcn-amd-amdhsa--gfx950"')
K = NAME + "_kernel"
kernel_begin(a, K, OPT.get("page", 1))
body0 = len(a.lines)
if OPT["ipf"] == 5:
    a("s_lshr_b32 s3, s2, 8\ns_cbranch_scc1 L_end\ns_load_dwordx4 s[92:95], s[0:1], 0\ns_load_dwordx2 s[96:97], s[0:1], 80\ns_getpc_b64 s[100:101]\nL_pc:")
    a("s_lshr_b32 s3, s2, 3\ns_mul_i32 s3, s3, 6\nv_min_u32 v2, 5, v0\nv_add_lshl_u32 v2, v2, s3, 7\nv_min_u32 v2, L_end-L_pc, v2\nv_mov_b32 v3, s101")
    a("v_add_co_u32 v2, vcc, s100, v2\ns_mul_i32 s3, s2, 10240\nv_min_u32 v4, 79, v0\nv_addc_co_u32 v3, vcc, 0, v3, vcc\nglobal_load_dword v253, v[2:3], off")
    a("v_lshl_add_u32 v3, v4, 7, s3\ns_waitcnt lgkmcnt(0)")
    if OPT["pfe"] != 2: a("global_load_dword v253, v3, s[92:93]")
    a(f"v_min_u32 v3, {640*3840 - 128}, v3\nglobal_load_dword v253, v3, s[94:95]\nv_lshrrev_b32 v1, 6, v0")
else: a("s_cmp_ge_u32 s2, 256\ns_cbranch_scc1 L_end")
def ipf():
    a("s_getpc_b64 s[100:101]\nL_pc:")
    if OPT["ipf"] == 3:
        n = OPT["ipn"]
        a(f"s_lshr_b32 s3, s2, 1\ns_and_b32 s3, s3, 0x7c\nv_and_or_b32 v2, v0, 3, s3\nv_add_u32 v2, {n}, v2\nv_cmp_gt_u32 vcc, {n}, v0\nv_cndmask_b32 v2, v2, v0, vcc\nv_lshlrev_b32 v2, 7, v2")
    elif OPT["ipf"] == 4:
        n = OPT["ipn"]
        a(f"s_lshr_b32 s3, s2, 3\ns_mul_i32 s3, s3, 5\ns_add_u32 s3, s3, {n}\nv_and_b32 v2, 7, v0\nv_min_u32 v2, 4, v2\nv_add_u32 v2, s3, v2\nv_cmp_gt_u32 vcc, {n}, v0\nv_cndmask_b32 v2, v2, v0, vcc\nv_lshlrev_b32 v2, 7, v2")
    else: a("v_lshlrev_b32 v2, 7, v0")
    a("v_min_u32 v2, L_end-L_pc, v2\nv_mov_b32 v3, s101")
    a("v_add_co_u32 v2, vcc, s100, v2\nv_lshrrev_b32 v1, 6, v0\nv_addc_co_u32 v3, vcc, 0, v3, vcc\nglobal_load_dword v253, v[2:3], off")
for i, (d, off) in enumerate(((X, 0), (WS, 80), (W, 8), (WO, 16), (OUT, 64), (DBG, 72), (GATE, 40), (UP, 48), (DOWN, 56), (WR, 32))):
    if i == OPT["kf"] and OPT["ipf"] in (2, 3, 4): ipf()
    a(f"s_load_dwordx2 s[{d}:{d+1}], s[0:1], {off}")
if OPT["stamps"]:
    a("s_memrealtime s[98:99]")
    for i in range(NST): a(f"s_memtime s[{66+2*i}:{67+2*i}]")
if OPT["ipf"] < 2: a("v_lshrrev_b32 v1, 6, v0")
a(f"s_and_b32 s{sJ}, s2, 7\ns_lshr_b32 s{sU}, s2, 3")
a(f"v_readfirstlane_b32 s{sWV}, v1")
if OPT["ipf"] == 1:
    a(f"s_cmp_ge_u32 s{sWV}, 4\ns_cbranch_scc1 L_ipf")
    ipf(); a("L_ipf:")
a("v_and_b32 v0, 63, v0")
a(f"s_lshr_b32 s{sRB}, s{sU}, 3\ns_lshl_b32 s3, s{sJ}, 2\ns_add_u32 s{sRB}, s{sRB}, s3\ns_and_b32 s{sHG}, s{sU}, 7")
a(f"s_lshr_b32 s{sROW0}, s{sRB}, 1\ns_lshl_b32 s{sROW0}, s{sROW0}, 7\ns_and_b32 s3, s{sRB}, 1\ns_add_u32 s{sROW0}, s{sROW0}, s3")
a(f"s_mul_i32 s{sH160}, s{sHG}, 160\ns_and_b32 s{sT}, s{sWV}, 3")
a(f"s_lshl_b32 s{sGRP}, s{sRB}, 17\ns_mov_b32 s{sBUD}, {BUDGET}")
srdc(X, W)
a(f"s_cmp_ge_u32 s{sWV}, 4\ns_cbranch_scc0 L_cons")

aQl0, aQl1, aQh0, aQh1, aK0, aK1, aV, aBIAS, aL16 = 200, 201, 202, 203, 204, 205, 206, 208, 238
sE1T, sE1S = 54, 55
def att_setup():
    a("v_and_b32 v1, 15, v0\nv_lshrrev_b32 v2, 4, v0")
    a(f"s_add_u32 s3, s{sT}, 1\ns_mul_i32 s3, s3, {16*PITCH}\ns_lshr_b32 s100, s{sWV}, 2\ns_mul_i32 s1, s100, 80\ns_add_u32 s3, s3, s1")
    a(f"s_mov_b32 s0, {PITCH}\ns_add_u32 s1, s3, {QB}\nv_mov_b32 v3, s1\nv_mad_u32_u24 v3, v1, s0, v3")
    a(f"v_lshl_add_u32 v4, v2, 3, v3\nv_add_u32 v5, 32, v3\nv_mov_b32 v6, {ZR}")
    a("s_mov_b32 vcc_lo, 0x00ff00ff\ns_mov_b32 vcc_hi, 0x00ff00ff")
    a(f"v_cndmask_b32 v{aQl0}, v6, v4, vcc\nv_cndmask_b32 v{aQh0}, v4, v6, vcc")
    a("s_mov_b64 vcc, 0xff")
    a(f"v_cndmask_b32 v{aQl1}, v6, v5, vcc")
    a("s_mov_b64 vcc, 0xff00")
    a(f"v_cndmask_b32 v{aQh1}, v6, v5, vcc")
    a("v_bfe_u32 v3, v0, 2, 1\nv_and_b32 v4, 3, v0\nv_lshlrev_b32 v4, 1, v4\nv_lshl_add_u32 v3, v3, 3, v4\nv_bfe_u32 v4, v0, 3, 1\nv_add_u32 v3, v3, v4")
    a(f"s_add_u32 s1, s3, {KB - 8*PITCH}\nv_mov_b32 v4, s1\nv_mad_u32_u24 v3, v3, s0, v4")
    a(f"v_lshl_add_u32 v{aK0}, v2, 3, v3\nv_add_u32 v{aK1}, 32, v3")
    a("v_bfe_u32 v3, v0, 4, 1\nv_lshlrev_b32 v3, 3, v3\nv_lshrrev_b32 v7, 5, v0\nv_add_u32 v7, v7, v3")
    a("v_bfe_u32 v4, v0, 2, 2\nv_lshl_add_u32 v3, v4, 1, v7")
    a(f"s_add_u32 s1, s3, {VB - 8*PITCH}\nv_mov_b32 v4, s1\nv_mad_u32_u24 v3, v3, s0, v4\nv_and_b32 v4, 3, v0\nv_lshl_add_u32 v{aV}, v4, 3, v3")
    a("v_and_b32 v3, 7, v0\nv_sub_u32 v7, v7, v3\nv_subrev_u32 v7, 1, v7")
    a(f"s_lshr_b32 s1, s{sRB}, 1\ns_or_b32 s1, s1, s{sT}\ns_cmp_eq_u32 s1, 0\ns_cselect_b32 vcc_lo, 0x000000ff, 0\ns_cselect_b32 vcc_hi, 0x000000ff, 0")
    a("v_mov_b32 v3, 64\nv_cndmask_b32 v7, v7, v3, vcc\nv_mov_b32 v4, 0\nv_mov_b32 v5, 0xf149f2ca")
    for r in range(4):
        a(f"v_add_u32 v3, {2*r}, v7\nv_cmp_gt_u32 vcc, 8, v3\nv_cndmask_b32 v{aBIAS+r}, v5, v4, vcc")
    a(f"v_lshlrev_b32 v{aL16}, 4, v0")
    a(f"s_mul_i32 s{sE1T}, s{sT}, 20480\ns_add_u32 s{sE1T}, s{sE1T}, s{sGRP}\ns_mul_i32 s3, s{sHG}, 2560\ns_add_u32 s{sE1S}, s{sE1T}, s3\ns_mul_i32 s3, s100, 1280\ns_add_u32 s{sE1S}, s{sE1S}, s3")

vW, vX, vXL, vSUM, vXD, vSTW = 16, 20, 23, 24, 32, 44
vWS, vWD, WT = 45, 46, 48
sSLOT, sCW, sCX, sLW, sLX, sW, sW2, sX, sRD, sI = 56, 57, 58, 59, 60, 61, 62, 63, 64, 65
vGL, vGS, vK8, vFL, vFLA = 117, 118, 242, 250, 251
GUT, RAW = 176, 128
sSL, sGL, sGS, sEVL = 42, 41, 40, 101
KPRE = OPT["kpre"]
a("s_setprio 2")
a(f"s_lshl_b32 s54, s{sT}, 3\ns_add_u32 s54, s54, 8\ns_sub_u32 s55, s{sROW0}, 32")
a("v_lshrrev_b32 v1, 3, v0\nv_add_u32 v1, s54, v1\nv_lshrrev_b32 v2, 1, v1\nv_xor_b32 v2, v2, v0\nv_and_b32 v2, 7, v2")
a(f"v_lshlrev_b32 v{vSTW}, 3, v1\nv_lshl_add_u32 v1, v1, 1, s55\nv_mul_i32_i24 v1, 1280, v1")
a(f"v_lshl_add_u32 v{vX}, v2, 4, v1\nv_add_u32 v{vX+1}, 81920, v{vX}\nv_add_u32 v{vX+2}, 163840, v{vX}")
a(f"s_add_u32 s{sCW}, s{sT}, 3\ns_and_b32 s{sCW}, s{sCW}, 3\ns_lshl_b32 s54, s{sCW}, 6\ns_lshl_b32 s{sCW}, s{sCW}, 10")
a(f"s_lshl_b32 s{sCX}, s{sT}, 10\ns_add_u32 s{sCX}, s{sCX}, 31744")
a(f"s_lshr_b32 s3, s{sHG}, {2 if OPT['rot'] else 3}\ns_lshl_b32 s{sX}, s3, 7\ns_mul_i32 s3, s3, 245760\ns_add_u32 s{sW}, s{sH160}, s3\ns_add_u32 s{sW2}, s{sW}, 122880")
a(f"s_mov_b32 s{sSLOT}, {3*SLOT}\ns_add_u32 s{sLW}, s{sCW}, {3*SLOT}\ns_add_u32 s{sLX}, s{sCX}, {3*SLOT}")
a("s_mov_b32 s55, -30\ns_mov_b32 s43, 1120")
def udma(m0, voff, srd, soff): a(f"{m0}\nbuffer_load_dwordx4 v{voff}, {S(srd)}, {soff} offen lds")
if OPT["uni"]:
    a("s_waitcnt lgkmcnt(0)")
    stamp(13)
    udma(f"s_mov_b32 m0, s{sLX}", vX, X, f"s{sX}"); udma(f"s_add_u32 m0, s{sLX}, 4096", vX + 1, X, f"s{sX}")
for j in range(4):
    a(f"s_add_u32 s3, s54, {256*j}\nv_add_u32 v1, s3, v0\nv_mul_u32_u24 v2, 34953, v1\nv_lshrrev_b32 v2, 20, v2")
    a("v_mad_i32_i24 v1, v2, s55, v1\nv_mul_u32_u24 v3, 26, v1\nv_lshrrev_b32 v3, 8, v3")
    a("v_and_b32 v4, 4, v2\nv_add_u32 v4, v4, v2\nv_bfe_u32 v2, v2, 3, 1\nv_mad_i32_i24 v2, v2, -4, v4")
    a(f"v_mul_u32_u24 v2, 3840, v2\nv_mad_u32_u24 v2, v3, s43, v2\nv_lshl_add_u32 v{vW+j}, v1, 4, v2")
    if OPT["uni"] and j < 3:
        udma(f"s_add_u32 m0, s{sLW}, {4096*j}", vW + j, W, f"s{sW}"); udma(f"s_add_u32 m0, s{sLW}, {4096*j+15360}", vW + j, W, f"s{sW2}")
WSTEP = 245760
def dma(m0, voff, srd, soff, extra=""):
    if m0: a(m0)
    a(f"buffer_load_dwordx4 v{voff}, {S(srd)}, {soff} offen {extra}lds")
def pieces(role):
    P = []
    if role: P += [(f"s_add_u32 m0, s{sLW}, 12288", vW + 3, W, f"s{sW}"), (f"s_add_u32 m0, s{sLW}, {12288+15360}", vW + 3, W, f"s{sW2}")]
    else: P += [(f"s_add_u32 m0, s{sLX}, 8192", vX + 2, X, f"s{sX}")]
    P += [(f"s_mov_b32 m0, s{sLX}", vX, X, f"s{sX}"), (f"s_add_u32 m0, s{sLX}, 4096", vX + 1, X, f"s{sX}")]
    P += [(f"s_add_u32 m0, s{sLW}, {4096*j}", vW + j, W, f"s{sW}") for j in range(3)]
    P += [(f"s_add_u32 m0, s{sLW}, {4096*j+15360}", vW + j, W, f"s{sW2}") for j in range(3)]
    return P
def weave(P, xs, first=0):
    xs = list(xs); n = max(len(P) - first, 1)
    per = (len(xs) + n - 1) // n
    for k, pc in enumerate(P):
        if k >= first:
            for _ in range(per):
                if xs: a(xs.pop(0))
        dma(*pc)
    for o in xs: a(o)
def advance():
    a(f"s_add_u32 s{sSLOT}, s{sSLOT}, {SLOT}\ns_cmp_eq_u32 s{sSLOT}, {4*SLOT}\ns_cselect_b32 s{sSLOT}, 0, s{sSLOT}")
    a(f"s_add_u32 s{sLW}, s{sSLOT}, s{sCW}\ns_add_u32 s{sLX}, s{sSLOT}, s{sCX}")
    a(f"s_add_u32 s{sX}, s{sX}, 128\ns_cmp_eq_u32 s{sX}, 1280\ns_cselect_b32 s{sX}, 0, s{sX}\ns_cselect_b32 s100, {-10*WSTEP}, 0")
    a(f"s_add_u32 s100, s100, {WSTEP}\ns_add_u32 s{sW}, s{sW}, s100\ns_add_u32 s{sW2}, s{sW2}, s100")
def capture(fn):
    global a
    class C:
        def __init__(s): s.g = []
        def __call__(s, t=""): s.g.append(t)
        def label(s, b): return a0.label(b)
    a0 = a; a = C()
    fn()
    g = a.g; a = a0
    return g
def lsetup():
    srdc(WO, WS)
    a(f"s_and_b32 s3, s{sRB}, 7\ns_mul_i32 s3, s3, 200\ns_mul_i32 s0, s{sT}, 50\ns_add_u32 s3, s3, s0\ns_mov_b32 s1, -10")
    a("v_add_u32 v1, s3, v0\nv_mul_u32_u24 v2, 6554, v1\nv_lshrrev_b32 v2, 16, v2")
    a(f"v_lshlrev_b32 v{vWD}, 4, v1\nv_mad_i32_i24 v1, v2, s1, v1")
    a("v_lshrrev_b32 v3, 4, v2\nv_bfe_u32 v4, v2, 2, 1\nv_lshl_add_u32 v3, v3, 1, v4")
    a("v_mul_u32_u24 v4, 52, v3\nv_lshrrev_b32 v4, 8, v4\nv_bfe_u32 v5, v2, 3, 1\nv_add_u32 v4, v4, v5\nv_mul_u32_u24 v4, 20, v4")
    a("v_lshl_add_u32 v4, v3, 2, v4\nv_and_b32 v5, 3, v2\nv_add_u32 v4, v4, v5\nv_mul_u32_u24 v4, 1280, v4")
    a(f"v_lshl_add_u32 v{vWS}, v1, 4, v4\ns_lshr_b32 s3, s{sRB}, 3\ns_mul_i32 s0, s3, 204800\ns_add_u32 s0, s0, s{sH160}")
    a(f"s_mul_i32 s3, s3, 25600\ns_mul_i32 s1, s{sHG}, 102400\ns_add_u32 s1, s1, s3\ns_add_u32 s1, s1, {WOD}\nv_add_u32 v{vWD}, s1, v{vWD}\nv_add_u32 v{vWS}, s0, v{vWS}")
    srdc(OUT, DBG)
    srdc(GATE, UP, DOWN)
    att_setup()
    a(f"v_lshlrev_b32 v{vK8}, 3, v0")
    a("\n".join(f"v_mov_b32 v{r_}, 0" for r_ in (239, 240, 241, 249)))
    a(f"s_lshr_b32 s3, s{sU}, 3\ns_mul_i32 s0, s{sJ}, 3\ns_add_u32 s0, s0, s3\ns_lshl_b32 s{sSL}, s0, 3\ns_add_u32 s{sSL}, s{sSL}, s{sHG}")
    a(f"s_cmp_lt_u32 s3, 3\ns_cselect_b32 s{sSL}, s{sSL}, 192")
    a(f"s_mul_i32 s1, s{sHG}, 80\ns_lshr_b32 s3, s{sT}, 1\ns_mul_i32 s3, s3, 40\ns_add_u32 s1, s1, s3")
    a(f"s_mul_i32 s{sGL}, s1, 3072\ns_lshl_b32 s0, s0, 7\ns_add_u32 s{sGL}, s{sGL}, s0")
    a(f"s_mul_i32 s{sGS}, s{sRB}, 163840\ns_lshl_b32 s1, s1, 4\ns_add_u32 s{sGS}, s{sGS}, s1\ns_and_b32 s3, s{sT}, 1\ns_mul_i32 s3, s3, 10240")
    a(f"s_add_u32 s{sGS}, s{sGS}, s3\ns_add_u32 s{sGS}, s{sGS}, {GUW}")
    a(f"v_lshrrev_b32 v1, 3, v0\nv_and_b32 v2, 7, v0\nv_mul_u32_u24 v3, 3072, v1\nv_lshl_add_u32 v{vGL}, v2, 4, v3")
    a(f"v_mul_u32_u24 v3, 20480, v{1 if OPT['gtr'] else 2}\nv_lshl_add_u32 v{vGS}, v{2 if OPT['gtr'] else 1}, 4, v3")
    a(f"v_lshl_add_u32 v{vXL}, v0, 4, s{sCX}\nv_add_u32 v{vSTW}, {STATS}, v{vSTW}")
    a("\n".join(f"v_mov_b32 v{vSUM+i}, 0" for i in range(6)))
    a(f"s_lshl_b32 s0, s{sHG}, 7\nv_lshl_add_u32 v1, v0, 10, s0\ns_lshl_b32 s0, s{sRB}, 10\nv_and_b32 v2, 7, v0\nv_lshl_add_u32 v2, v2, 7, s0")
    a(f"v_cmp_gt_u32 vcc, 32, v0\nv_cndmask_b32 v1, v2, v1, vcc\nv_add_u32 v{vFLA}, {FL}, v1")
    a(f"s_mov_b32 s{sRD}, {3*SLOT}\ns_mov_b32 s{sI}, 0\ns_mov_b32 s43, {ONES:#x}\ns_mov_b32 s{sEVL}, 1")
def xs_read(rd, role):
    a(f"v_add_u32 v1, {rd}, v{vXL}")
    a(f"ds_read_b128 {V(vXD,4)}, v1\nds_read_b128 {V(vXD+4,4)}, v1 offset:4096")
    if role == 0: a(f"ds_read_b128 {V(vXD+8,4)}, v1 offset:8192")
def xs_ops(role):
    ops = ["s_waitcnt lgkmcnt(0)"]
    for e in range(4):
        for p in range(2 if role else 3):
            ops.append(f"v_dot2c_f32_bf16 v{vSUM+2*p}, s43, v{vXD+4*p+e}\nv_dot2c_f32_bf16 v{vSUM+2*p+1}, v{vXD+4*p+e}, v{vXD+4*p+e}")
    return ops
sWOS, sWOM = 56, 57
sWOG = 58
def wo_run(g):
    if g == 6:
        return [(f"s_lshr_b32 s3, s{sWOM}, 2\ns_add_u32 m0, s3, 16384\ns_sub_u32 s3, s3, s{sWOM}\ns_add_u32 s3, s{sWOS}, s3\ns_add_u32 s3, s3, 98304", aL16, WS, "s3")]
    if g == 5: m = f"s_mov_b32 m0, s{sWOM}\ns_add_u32 s62, s{sWOS}, 81920"
    else:
        m = f"s_add_u32 s62, s{sWOM}, s{sWOG}\ns_add_u32 m0, s62, {WOB}\ns_add_u32 s62, s{sWOS}, s{sWOG}"
        m += f"\ns_add_u32 s{sWOG}, s{sWOG}, 16384\ns_cmp_eq_u32 s{sWOG}, 81920\ns_cselect_b32 s{sWOG}, 0, s{sWOG}"
    return [(m, aL16, WS, "s62")] + [("", aL16, WS, "s62", f"offset:{1024*i} ") for i in (1, 2, 3)]
def stats_ops(role):
    n = 2 if role else 3
    ops = []
    for q in ("quad_perm:[1,0,3,2]", "quad_perm:[2,3,0,1]", "row_half_mirror"):
        ops.append("\n".join(f"v_add_f32_dpp v{vSUM+i}, v{vSUM+i}, v{vSUM+i} {q} {DPPM}" for i in range(2 * n)))
    t = ["s_mov_b32 s0, 0xbacccccd\ns_mov_b32 s1, 0x3acccccd\nv_mov_b32 v1, 0x3727c5ac"]
    for p in range(n): t.append(f"v_mul_f32 v{vSUM+2*p}, s0, v{vSUM+2*p}\nv_fma_f32 v{vSUM+2*p+1}, v{vSUM+2*p+1}, s1, v1")
    for p in range(n): t.append(f"v_fma_f32 v{vSUM+2*p+1}, -v{vSUM+2*p}, v{vSUM+2*p}, v{vSUM+2*p+1}")
    for p in range(n): t.append(f"v_max_f32 v{vSUM+2*p+1}, v{vSUM+2*p+1}, v1")
    for p in range(n): t.append(f"v_rsq_f32 v{vSUM+2*p+1}, v{vSUM+2*p+1}")
    t.append(f"v_mov_b32 v2, 0\nv_mov_b32 v3, 0\nv_and_b32 v4, 56, v0\nv_add_u32 v4, {ZR}, v4")
    ops.append("\n".join(t))
    return ops
stamp(12)
def ld_down():
    a(f"s_min_u32 s1, s{sSL}, 191\ns_mul_i32 s1, s1, 10240")
    for h in range(3):
        if h == 2: execset(0xffffffff)
        for i in range(8):
            off = 1280 * i + 512 * h
            if off < 4096: a(f"buffer_load_dwordx2 {V(RAW+16*h+2*i,2)}, v{vK8}, {S(DOWN)}, s1 offen offset:{off}")
            else: a(f"s_add_u32 s3, s1, {off & ~4095}\nbuffer_load_dwordx2 {V(RAW+16*h+2*i,2)}, v{vK8}, {S(DOWN)}, s3 offen offset:{off & 4095}")
    execset(-1)
def first_slabs(role):
    P = pieces(role)
    a("s_waitcnt lgkmcnt(0)")
    stamp(13); stampx(11)
    weave(P, []); advance()
    stampx(12)
    su = capture(lsetup)
    weave(P, su, 1); advance()
    execset((1 << 50) - 1)
    a(f"buffer_load_dwordx4 {V(WT,4)}, v{vWS}, {S(WO)}, 0 offen")
    execset(-1)
    stamp(1); stampx(14)
if OPT["uni"]:
    def own(tag):
        a(f"s_cmp_eq_u32 s{sT}, 0\ns_cbranch_scc1 L_u0{tag}")
        weave(pieces(1)[:2], []); a(f"s_branch L_u1{tag}\nL_u0{tag}:"); weave(pieces(0)[:1], []); a(f"L_u1{tag}:")
    PC = pieces(0)[1:]
    own("a"); advance()
    own("b"); weave(PC, capture(lsetup), 0); advance()
    execset((1 << 50) - 1)
    a(f"buffer_load_dwordx4 {V(WT,4)}, v{vWS}, {S(WO)}, 0 offen")
    execset(-1)
    stamp(1)
a(f"s_cmp_eq_u32 s{sT}, 0\ns_cbranch_scc1 L_ld0")
for role in (1, 0):
    P = pieces(role); N = len(P); R = f"r{role}"
    if role == 0: a("L_ld0:")
    if not OPT["uni"]: first_slabs(role)
    if role == 0 and OPT["wdp"] == 1:
        ld_down()
        weave(P[:KPRE], [])
        a(f"s_waitcnt vmcnt({N + KPRE + 25})\ns_branch L_levb{R}")
    a(f"L_ll{R}:")
    weave(P[:KPRE], [])
    a(f"s_waitcnt vmcnt({N + KPRE})\ns_cmp_eq_u32 s{sI}, s{sEVL}\ns_cbranch_scc1 L_lev{R}\nL_levb{R}:")
    a("s_barrier")
    xs_read(f"s{sRD}", role)
    weave(P[KPRE:], xs_ops(role), max(1, OPT["xf"] - KPRE - (1 - role))); advance()
    stamp3(sI, 8)
    a(f"s_add_u32 s{sRD}, s{sRD}, {SLOT}\ns_cmp_eq_u32 s{sRD}, {4*SLOT}\ns_cselect_b32 s{sRD}, 0, s{sRD}")
    a(f"s_add_u32 s{sI}, s{sI}, 1\ns_cmp_lt_u32 s{sI}, 8\ns_cbranch_scc1 L_ll{R}")
    a(f"s_lshl_b32 s{sWOM}, s{sT}, 12\ns_mul_i32 s{sWOS}, s{sHG}, 102400\ns_add_u32 s{sWOS}, s{sWOS}, s{sWOM}\ns_add_u32 s{sWOS}, s{sWOS}, {WOD}")
    a(f"s_and_b32 s{sWOG}, s{sRB}, {3 if OPT['wrot'] else 0}\ns_lshl_b32 s{sWOG}, s{sWOG}, 14")
    a(f"s_waitcnt vmcnt({N})\ns_barrier")
    stamp(2)
    xs_read(3 * SLOT, role)
    if role == 0 and OPT["pfw"]:
        a(f"s_and_b32 s3, s{sRB}, 3\ns_mul_i32 s3, s3, 5120\ns_add_u32 s3, s3, s{sWOS}\ns_add_u32 s3, s3, 81920\nv_lshlrev_b32 v2, 7, v0")
        execset((1 << 40) - 1)
        a(f"buffer_load_dword v{vFL}, v2, {S(WS)}, s3 offen")
        execset(-1)
    PW = wo_run(0) + wo_run(1) + wo_run(2)
    weave(PW[:6], xs_ops(role), 1)
    a("s_waitcnt vmcnt(12)")
    xs_read(0, role)
    weave(PW[6:], xs_ops(role) + stats_ops(role), 1)
    execset(0x0101010101010101)
    a(f"ds_write_b64 v{vSTW}, {V(vSUM,2)}\nds_write_b64 v{vSTW}, {V(vSUM+2,2)} offset:256\nds_write_b64 v4, v[2:3]")
    if role == 0: a(f"ds_write_b64 v{vSTW}, {V(vSUM+4,2)} offset:512")
    if role: a(f"s_cmp_eq_u32 s{sT}, 1\ns_cselect_b64 exec, 1, 0\nv_mov_b32 v2, s{sEVL}\nv_mov_b32 v4, {MODE}\nds_write_b32 v4, v2")
    execset(-1)
    if role: a("s_branch L_lp")
def gu_loads(w=None):
    a(f"s_cmp_lt_u32 s{sSL}, 192\ns_cbranch_scc0 L_gln\ns_bitcmp1_b32 s{sT}, 0\ns_cbranch_scc1 L_geu")
    for m in range(2):
        if m: a("L_geu:")
        for i in range(5):
            a(f"buffer_load_dwordx4 {V(GUT+4*i,4)}, v{vGL}, {S((GATE, UP)[m])}, s{sGL} offen")
            if i < 4: a(f"s_add_u32 s{sGL}, s{sGL}, {8*3072}")
        if w is not None: a(f"s_waitcnt vmcnt({w + 5})")
        if m == 0 and OPT["wdp"] == 2:
            a(f"s_cmp_eq_u32 s{sT}, 0\ns_cbranch_scc0 L_gle")
            ld_down()
        a("s_branch L_gle")
    a("L_gln:")
    if OPT["pdn"]:
        a(f"s_mul_i32 s3, s{sJ}, 245760\ns_mul_i32 s0, s{sHG}, 30720\ns_add_u32 s3, s3, s0\ns_mul_i32 s0, s{sT}, 7680\ns_add_u32 s3, s3, s0\nv_lshlrev_b32 v2, 7, v0")
        execset((1 << 60) - 1)
        a(f"buffer_load_dword v{GUT}, v2, {S(DOWN)}, s3 offen")
        execset(-1)
    if w is not None: a(f"s_waitcnt vmcnt({w + OPT['pdn']})")
    a("L_gle:")
a("L_lp:")
if OPT["gord"] == 2: gu_loads(12); a("s_waitcnt lgkmcnt(0)\ns_barrier")
else: a("s_waitcnt vmcnt(12) lgkmcnt(0)\ns_barrier")
stamp(3)
if OPT["gord"] == 1: gu_loads()
weave(wo_run(3) + wo_run(4), [])
if OPT["gord"] == 0: gu_loads()
if OPT["lfl"]:
    a(f"v_mov_b32 v1, {RDF}\nL_rdf:\nds_read_b128 v[4:7], v1\ns_waitcnt lgkmcnt(0)\nv_or3_b32 v4, v4, v5, v6\nv_or_b32 v4, v4, v7\nv_cmp_ne_u32 vcc, 0, v4")
    a(f"s_cbranch_vccz L_rdg\ns_sleep 1\ns_branch L_rdf\nL_rdg:")
    weave(wo_run(5) + wo_run(6), [])
if OPT["gord"] == 3: gu_loads()
stamp(14)
a("s_barrier")
stamp(4)
a("s_setprio 0\ns_branch L_attl")
for role in (1, 0):
    R = f"r{role}"
    a(f"L_lev{R}:")
    if role: a(f"s_cmp_eq_u32 s{sI}, 1\ns_cbranch_scc0 L_le6")
    execset((1 << 50) - 1)
    if not OPT["nowt"]: a(f"buffer_store_dwordx4 {V(WT,4)}, v{vWD}, {S(WS)}, 0 offen sc1")
    execset(-1)
    if role == 0: a(f"s_branch L_levb{R}")
    else:
        a(f"s_cmp_eq_u32 s{sT}, 1\ns_cselect_b32 s{sEVL}, 6, 0\ns_branch L_levb{R}")
        a(f"L_le6:\ns_cmp_eq_u32 s{sI}, 6\ns_cbranch_scc0 L_le7\ns_mov_b32 s{sEVL}, 7\nbuffer_load_dword v{vFL}, v{vFLA}, {S(WS)}, 0 offen sc1\ns_branch L_levb{R}")
        a(f"L_le7:\ns_waitcnt vmcnt(10)")
        a(f"L_flr:\nv_cmp_eq_u32 vcc, -1, v{vFL}\ns_cbranch_vccz L_flg\ns_sub_u32 s{sBUD}, s{sBUD}, 1\ns_cbranch_scc1 L_flx")
        a(f"s_sleep 2\nbuffer_load_dword v{vFL}, v{vFLA}, {S(WS)}, 0 offen sc1\ns_waitcnt vmcnt(0)\ns_branch L_flr")
        a(f"L_flx:\ns_mov_b32 s{sBUD}, 0\nL_flg:\ns_getreg_b32 s3, hwreg(HW_REG_XCC_ID, 0, 4)\nv_cmp_ne_u32 vcc, s3, v{vFL}")
        a(f"s_cmp_eq_u32 vcc_hi, 0\ns_cselect_b32 s{sEVL}, {OPT.get('fmode', 1)}, 0\ns_branch L_levb{R}")

ACC, XF, WF = 16, 96, 136
XF2 = 212
vAW1, vAW2, vAX0, vAX1 = 168, 169, 170, 171
ST, CS, TMP = 172, 182, 196
XR, WRF = 186, 226
vN16, vROW, vG40, vWOa, vWOb, vWOc, vRK, vSW1, vSW2, vSTR, vL512 = 239, 240, 241, 242, 243, 244, 245, 246, 247, 248, 249
sEV, sDL, sXA, sE2S, sE2L, sE3R, sE3K = 56, 57, 58, 59, 60, 61, 62
vEXR = 250
a("L_cons:")
srdc(WS, WO)
a(f"v_mov_b32 v4, -1\nv_mov_b32 v5, -1\nv_mov_b32 v6, -1\nv_mov_b32 v7, -1\nv_lshlrev_b32 v8, 4, v0")
a(f"s_lshl_b32 s0, s{sHG}, 2\ns_add_u32 s0, s0, s{sT}\ns_lshl_b32 s0, s0, 12\ns_add_u32 s{sDL}, s0, s{sGRP}")
def pf():
    a(f"s_lshl_b32 s3, s{sT}, 6\nv_add_u32 v3, s3, v0")
    a(f"s_cmp_ge_u32 s{sT}, 2\ns_cbranch_scc1 L_pfx")
    a(f"s_lshl_b32 s3, s2, 7\nv_lshl_add_u32 v3, v3, 15, s3")
    if OPT["pfk"]: a(f"v_add_u32 v3, {OPT['pfk'] << 15}, v3")
    if OPT["ipf"] != 5 or OPT["pfe"] == 1: a(f"buffer_load_dword v252, v3, {S(W)}, 0 offen")
    if OPT["pfo"]:
        a(f"s_cmp_eq_u32 s{sT}, 1\ns_cbranch_scc0 L_pfe\ns_mul_i32 s3, s2, 3200\nv_lshlrev_b32 v3, 7, v0\ns_mov_b64 exec, 0x1ffffff")
        a(f"buffer_load_dword v252, v3, {S(WO)}, s3 offen\ns_mov_b64 exec, -1")
    a("s_branch L_pfe")
    a(f"L_pfx:\ns_lshl_b32 s3, s{sJ}, 5\ns_add_u32 s3, s3, s{sU}\ns_mul_i32 s3, s3, 10240\ns_sub_u32 s3, s3, {128*128}")
    a(f"v_lshl_add_u32 v3, v3, 7, s3\ns_cmp_eq_u32 s{sT}, 3\ns_cselect_b64 exec, 0xffff, -1")
    a(f"buffer_load_dword v252, v3, {S(X)}, 0 offen\ns_mov_b64 exec, -1\nL_pfe:")
def pf2(ph):
    SA = OPT["pf2"]; A = SA * 15 // 2; lb = SA.bit_length() - 1; e = f"L_p2e{ph}"
    a(f"s_cmp_eq_u32 s{sT}, {ph}\ns_cbranch_scc0 L_p2x{ph}\ns_lshl_b32 s3, s2, 7")
    if ph: a(f"s_add_u32 s3, s3, {A << 15}")
    else: execset((1 << A) - 1)
    a(f"v_lshl_add_u32 v3, v0, 15, s3\nbuffer_load_dword v252, v3, {S(W)}, 0 offen")
    if ph and OPT["pfo"]:
        a(f"s_mul_i32 s3, s2, 3200\nv_lshlrev_b32 v3, 7, v0\ns_mov_b64 exec, 0x1ffffff\nbuffer_load_dword v252, v3, {S(WO)}, s3 offen")
    a(f"s_branch {e}\nL_p2x{ph}:\ns_cmp_eq_u32 s{sT}, {2 + ph}\ns_cbranch_scc0 {e}")
    a(f"s_lshl_b32 s3, s{sJ}, 5\ns_add_u32 s3, s3, s{sU}\ns_mul_i32 s3, s3, 10240")
    sh = 3 if ph else lb
    a(f"v_lshrrev_b32 v3, {sh}, v0\nv_mul_u32_u24 v3, 1280, v3\nv_and_b32 v9, {(1 << sh) - 1}, v0\nv_lshl_add_u32 v3, v9, 7, v3")
    if ph: a(f"s_add_u32 s3, s3, {128 * SA}"); execset(sum(((1 << min(8, 10 - SA)) - 1) << (8 * i) for i in range(8)))
    else: execset((1 << (8 * SA)) - 1)
    a(f"buffer_load_dword v252, v3, {S(X)}, s3 offen\n{e}:\ns_mov_b64 exec, -1")
if OPT["pf2"]:
    pf = lambda: pf2(1)
a("s_waitcnt lgkmcnt(0)")
if OPT["pf2"] and OPT["pfa"]: pf2(0)
if OPT["pf"] and OPT["pfl"] == 0: pf()
a(f"s_cmp_eq_u32 s{sU}, 0\ns_cselect_b32 s{sEV}, s{sT}, 0\ns_cmp_eq_u32 s{sEV}, 3\ns_cbranch_scc0 L_nrt")
a(f"v_lshlrev_b32 v3, 7, v0\ns_lshl_b32 s3, s{sJ}, 12\ns_add_u32 s3, s3, {FL}\ns_mov_b32 exec_hi, 0")
a(f"buffer_store_dwordx4 v[4:7], v3, {S(WS)}, s3 offen sc1\nbuffer_store_dwordx4 v[4:7], v3, {S(WS)}, s3 offen offset:16 sc1")
if OPT["lcl"]: a(f"buffer_store_dwordx4 v[4:7], v3, {S(WS)}, s3 offen offset:32 sc1\nbuffer_store_dwordx4 v[4:7], v3, {S(WS)}, s3 offen offset:48 sc1")
a("s_mov_b64 exec, -1")
a(f"v_mul_u32_u24 v3, {KSTR}, v0\ns_mul_i32 s3, s{sJ}, {KREP}\ns_add_u32 s3, s3, {E3K}")
a(f"buffer_store_dword v4, v3, {S(WS)}, s3 offen sc1\ns_add_u32 s3, s3, {KREP//2}\nbuffer_store_dword v4, v3, {S(WS)}, s3 offen sc1\nL_nrt:")
def clears():
    if OPT["noclr"] == 1: return
    if OPT["lcl"]:
        a(f"buffer_store_dwordx4 v[4:7], v{aL16}, {S(WS)}, s{sE1S} offen\nbuffer_store_dwordx4 v[4:7], v{aL16}, {S(WS)}, s{sE1S} offen offset:1024")
        a(f"s_lshl_b32 s0, s{sHG}, 2\ns_add_u32 s0, s0, s{sT}\ns_lshl_b32 s3, s0, 10\ns_add_u32 s1, s{sGRP}, {E3R}\ns_add_u32 s3, s3, s1")
        a(f"buffer_store_dwordx4 v[4:7], v{aL16}, {S(WS)}, s3 offen sc1\ns_lshl_b32 s3, s0, 6\ns_add_u32 s3, s3, s1\ns_add_u32 s3, s3, 32768\ns_mov_b32 exec_hi, 0")
        a(f"buffer_store_dwordx4 v[4:7], v{aL16}, {S(WS)}, s{sE1S} offen offset:2048\ns_mov_b64 exec, 0xffff")
        a(f"buffer_store_dwordx4 v[4:7], v{aL16}, {S(WS)}, s{sE2S} offen\ns_mov_b64 exec, 15")
        a(f"buffer_store_dwordx4 v[4:7], v{aL16}, {S(WS)}, s3 offen sc1\ns_mov_b64 exec, -1")
        return
    for i in range(4): a(f"buffer_store_dwordx4 v[4:7], v{aL16 if OPT['clr'] else 8}, {S(WS)}, s{sDL} offen offset:{1024*i} sc1")
if not OPT["clr"]: clears()
srdc(OUT, DBG, WR, GATE, UP, DOWN)
if OPT["tpf"]:
    sh = 20 if OPT["tpf"] == 3 else 16
    a(f"s_cmp_eq_u32 s{sT}, 3\ns_cbranch_scc0 L_tpe\nv_lshlrev_b32 v3, {sh}, v0\ns_mov_b32 s3, {GUW}")
    if OPT["tpf"] == 2: a(f"s_lshl_b64 exec, 1, s{sU}\ns_mov_b32 exec_hi, exec_lo")
    if OPT["tpf"] == 3: a("s_mov_b64 exec, 15")
    for d in (GATE, UP, DOWN, OUT): a(f"buffer_load_dword v253, v3, {S(d)}, 0 offen")
    a(f"buffer_load_dword v253, v3, {S(WS)}, s3 offen\ns_mov_b64 exec, -1\nL_tpe:")
a("v_and_b32 v1, 15, v0\nv_lshrrev_b32 v2, 4, v0")
a(f"v_mov_b32 v10, {ONES:#x}\nv_mov_b32 v11, v10\nv_mov_b32 v12, v10\nv_mov_b32 v13, v10")
a(f"s_mul_i32 s3, s{sT}, {SLOT}\ns_add_u32 s3, s3, 30720\nv_add_u32 v3, s3, v8")
a("ds_write_b128 v3, v[10:13]")
a(f"s_lshl_b32 s3, s{sT}, 5\ns_add_u32 s3, s3, s{sROW0}\nv_lshl_add_u32 v3, v1, 1, s3")
a(f"v_sub_u32 v{vRK}, 2047, v3\nv_mul_u32_u24 v{vG40}, 40, v2\nv_mul_u32_u24 v3, 1280, v3\nv_add3_u32 v{vROW}, v3, v{vG40}, s{sH160}")
att_setup()
if OPT["pf"] and OPT["pfl"] == 1: pf()
a("v_and_b32 v1, 15, v0\nv_lshrrev_b32 v2, 4, v0")
a(f"s_lshl_b32 s{sE2L}, s{sT}, 11\ns_add_u32 s{sE2L}, s{sE2L}, s{sGRP}\ns_add_u32 s{sE2L}, s{sE2L}, {E2}\ns_lshl_b32 s3, s{sHG}, 8\ns_add_u32 s{sE2S}, s{sE2L}, s3")
a(f"s_mul_i32 s{sE3R}, s{sT}, 2560\ns_add_u32 s{sE3R}, s{sE3R}, s{sH160}\ns_add_u32 s{sE3R}, s{sE3R}, s{sGRP}\ns_add_u32 s{sE3R}, s{sE3R}, {E3R}")
a(f"s_lshl_b32 s{sE3K}, s{sRB}, 2\ns_add_u32 s{sE3K}, s{sE3K}, s{sT}\ns_mul_i32 s{sE3K}, s{sE3K}, {KSTR}\ns_add_u32 s{sE3K}, s{sE3K}, {E3K}")
a(f"v_mul_u32_u24 v{vL512}, {KREP}, v0\nv_lshlrev_b32 v{vN16}, 4, v1")
a("v_lshrrev_b32 v3, 1, v1\nv_xor_b32 v3, v3, v2\nv_and_b32 v3, 7, v3\nv_lshlrev_b32 v3, 4, v3")
a(f"v_lshl_add_u32 v3, v1, 7, v3\nv_add_u32 v{vAX0}, {30720 + 3*SLOT}, v3\nv_xor_b32 v{vAX1}, 64, v{vAX0}")
a("v_lshrrev_b32 v3, 5, v0\nv_lshlrev_b32 v3, 4, v3\nv_bfe_u32 v8, v0, 4, 1\nv_lshl_add_u32 v3, v8, 2, v3\nv_bfe_u32 v8, v0, 2, 2\nv_add_u32 v3, v3, v8")
a("v_and_b32 v8, 3, v0\nv_mul_u32_u24 v8, 40, v8\ns_mov_b32 s63, 480\nv_mad_u32_u24 v9, v3, s63, v8")
a(f"s_lshl_b32 s3, s{sT}, 3\nv_add_u32 v9, {3*SLOT}, v9\nv_add_u32 v{vAW1}, s3, v9\ns_mul_i32 s63, s{sT}, 160\ns_add_u32 s63, s63, 32\nv_add_u32 v{vAW2}, s63, v9")
a(f"s_mov_b32 s63, 160\nv_mad_u32_u24 v3, v3, s63, v8\ns_bitcmp1_b32 s{sT}, 0\ns_cselect_b32 s63, 51200, 0\nv_add_u32 v{vWOa}, {WOB}, v3\nv_add_u32 v{vWOa}, s63, v{vWOa}")
a(f"s_cselect_b32 s63, 0, {WOB+30720}\nv_add_u32 v{vWOb}, s63, v3")
a(f"s_mul_i32 s63, s{sT}, 5120\ns_add_u32 s63, s63, {EX}\nv_add_u32 v{vEXR}, s63, v{aL16}\ns_xor_b32 s63, s{sT}, 1\ns_mul_i32 s63, s63, 5120\ns_add_u32 s63, s63, {EX}\nv_add_u32 v{vWOc}, s63, v{aL16}")
a(f"s_mov_b32 s63, {PITCH}\nv_mad_u32_u24 v3, v1, s63, v{vG40}\ns_add_u32 s3, s3, {QB}\nv_add_u32 v{vSW1}, s3, v3")
a(f"s_mul_i32 s3, s{sT}, {TSTR}\ns_add_u32 s3, s3, {QB+32}\nv_add_u32 v{vSW2}, s3, v3")
a(f"v_lshlrev_b32 v3, 3, v1\nv_add_u32 v{vSTR}, {STATS}, v3")
for i in range(80): a(f"v_mov_b32 v{ACC+i}, 0")
for i in range(20): a(f"v_mov_b32 v{XF+20+i}, 0")
for i in range(16): a(f"v_mov_b32 v{WF+16+i}, 0")
a(f"s_cmp_eq_u32 s{sEV}, 3\ns_cbranch_scc0 L_nr2\ns_waitcnt vmcnt({0 if OPT['clr'] else 4})")
a(f"s_lshl_b32 s3, s{sJ}, 5\nv_mov_b32 v3, s3\nv_mov_b32 v8, 1\ns_mov_b64 exec, 1\nbuffer_store_dword v8, v3, {S(DBG)}, 0 offen sc1\ns_mov_b64 exec, -1\nL_nr2:")
if OPT["pf"] and OPT["pfl"] == 2: pf()
if OPT["clr"]:
    a("v_mov_b32 v4, -1\nv_mov_b32 v5, -1\nv_mov_b32 v6, -1\nv_mov_b32 v7, -1")
    clears()
def pfg():
    a(f"s_lshr_b32 s3, s{sU}, 3\ns_cmp_lt_u32 s3, 3\ns_cbranch_scc0 L_qge\ns_mul_i32 s0, s{sJ}, 3\ns_add_u32 s0, s0, s3\ns_lshl_b32 s100, s0, 3\ns_lshl_b32 s0, s0, 7")
    a(f"s_mul_i32 s1, s{sHG}, {80*3072}\ns_add_u32 s0, s0, s1\ns_lshr_b32 s3, s{sT}, 1\ns_mul_i32 s1, s3, {64*3072}\ns_add_u32 s0, s0, s1")
    a(f"v_mul_u32_u24 v3, 3072, v0\ns_cmp_eq_u32 s3, 0\ns_cselect_b64 exec, -1, 0xffff\ns_bitcmp1_b32 s{sT}, 0\ns_cbranch_scc1 L_qgu")
    a(f"buffer_load_dword v253, v3, {S(GATE)}, s0 offen\ns_branch L_qgf\nL_qgu:\nbuffer_load_dword v253, v3, {S(UP)}, s0 offen\nL_qgf:")
    if OPT["pfg"] & 2:
        a(f"s_cmp_eq_u32 s3, 0\ns_cbranch_scc1 L_qgd\ns_add_u32 s100, s100, s{sHG}\ns_mul_i32 s100, s100, 10240\ns_and_b32 s3, s{sT}, 1\ns_mul_i32 s3, s3, 5120\ns_add_u32 s100, s100, s3")
        execset((1 << 40) - 1)
        a(f"v_lshlrev_b32 v3, 7, v0\nbuffer_load_dword v252, v3, {S(DOWN)}, s100 offen\nL_qgd:")
    a("s_mov_b64 exec, -1\nL_qge:")
if OPT["pfg"] and not OPT["pfi"]: pfg()
PFI = OPT["pfi"] if OPT["pfg"] and OPT["pfi"] else 99
vXB, vXC = 232, 233
a(f"s_lshr_b32 s{sXA}, s{sH160}, 7\ns_lshr_b32 s3, s{sHG}, 2\ns_sub_u32 s{sXA}, s{sXA}, s3\ns_and_b32 s3, s{sH160}, 127\nv_add_u32 v{vXB}, s3, v{vG40}")
a(f"s_lshl_b32 s3, s{sT}, 11\ns_add_u32 s3, s3, {30720 + 2048}\nv_and_b32 v1, 15, v0\nv_lshl_add_u32 v{vXC}, v1, 7, s3")
a(f"s_cmp_eq_u32 s{sT}, 0\ns_cselect_b32 s{sEV}, {OPT['ev1']}, {PFI}\nv_and_b32 v14, 7, v0\nv_lshlrev_b32 v14, 5, v14")
a(f"s_mov_b32 s{sI}, 0\ns_mov_b32 s{sRD}, {3*SLOT}\ns_waitcnt lgkmcnt(0)")
L = Cnt("lgkmcnt", 15)
def rdW(buf, q, ks):
    d = WF + 16 * buf + 4 * q
    reg, off = (vAW1, 160 * q) if q < 3 else (vAW2, 0)
    L(f"ds_read_b64_tr_b16 {V(d,2)}, v{reg} offset:{off + 15360*ks}")
    return L(f"ds_read_b64_tr_b16 {V(d+2,2)}, v{reg} offset:{off + 15360*ks + 3840}")
def rdX(buf, t, dst=None):
    return L(f"ds_read_b128 {V((XF+20*buf if dst is None else dst)+4*t,4)}, v{vAX0+buf} offset:{2048*t}")
def acc(q, t): return ACC + 4 * (5 * q + t)

stamp(1)
a("L_cloop:")
for q in range(3): stamp2(4 + 4 * q, sI, 4 + q)
a("s_barrier")
for q in range(3): stamp2(1 + 4 * q, sI, 3 + q)
stamp3(sI, 9)
L.reset()
ids = {}
order = [("w", 0)] + [("x", t) for t in range(5)] + [("w", q) for q in range(1, 4)]
for ph in range(2):
    buf = 1 - ph
    pend = list(order)
    n = 0
    for q in range(4):
        for t in range(5):
            if ph == 0 and n == 0:
                kd, i = pend.pop(0); ids[kd, 0, i] = rdW(0, i, 0)
            if ph == 1: L.wait(max(ids["w", 0, q], ids["x", 0, t]))
            mfma(acc(q, t), WF + 16 * buf + 4 * q, XF + 20 * buf + 4 * t)
            n += 1
            if pend:
                kd, i = pend.pop(0)
                ids[kd, ph, i] = rdW(ph, i, ph) if kd == "w" else rdX(ph, i)
            if ph == 1 and n == 10:
                a(f"s_add_u32 s3, s{sRD}, {SLOT}\ns_cmp_eq_u32 s3, {4*SLOT}\ns_cselect_b32 s3, 0, s3\ns_sub_u32 s{sDL}, s3, s{sRD}\ns_mov_b32 s{sRD}, s3")
            if ph == 1 and 11 <= n < 15:
                a(f"v_add_u32 v{vAW1+n-11}, s{sDL}, v{vAW1+n-11}")
    if ph == 0:
        for qq in range(3): stamp2(2 + 4 * qq, sI, 3 + qq)
for qq in range(3): stamp2(3 + 4 * qq, sI, 3 + qq)
a(f"s_cmp_eq_u32 s{sI}, {OPT['cw']}\ns_cbranch_scc0 L_c1\ns_waitcnt vmcnt(0)\nL_c1:")
a(f"s_cmp_eq_u32 s{sI}, s{sEV}\ns_cbranch_scc1 L_ev\nL_evb:")
a(f"s_sub_u32 s3, s{sI}, s{sXA}\ns_cmp_lt_u32 s3, 2\ns_cbranch_scc1 L_xr\nL_xrb:")
a(f"s_add_u32 s{sI}, s{sI}, 1\ns_cmp_lt_u32 s{sI}, 9\ns_waitcnt lgkmcnt(0)\ns_cbranch_scc1 L_cloop")

sM0, sM3 = 64, 56
a("s_barrier")
stamp(2); stampx(10)
L.reset()
ids = {}
later = [("w", 0, 0)] + [("x", 0, t) for t in range(5)] + [("x", 1, t) for t in range(5)]
def rd_later():
    kd, ks, i = later.pop(0)
    if kd == "w": ids[kd, ks, i] = rdW(ks, i, ks)
    elif kd == "x": ids[kd, ks, i] = rdX(ks, i, XF2 if ks else None)
    else: ids[kd, ks, i] = L(f"ds_read_b64 {V(ST+2*i,2)}, v{vSTR} offset:{128*i}")
rd_later()
for q in range(4):
    for t in range(5):
        mfma(acc(q, t), WF + 16 + 4 * q, XF + 20 + 4 * t)
        if later: rd_later()
        if q == 0 and t == 0:
            a(f"s_mov_b32 s{sM0}, 0xff00ff00\ns_mov_b32 s{sM0+1}, 0xff00ff00\ns_cmp_eq_u32 s{sT}, 0\ns_cselect_b64 s[{sM3}:{sM3+1}], 0, s[{sM0}:{sM0+1}]")
    if q == 1: later += [("w", 1, 0), ("w", 0, 1), ("w", 1, 1)] + [("s", 0, t) for t in (1, 2, 3, 4, 0)]
later += [("w", 0, 2), ("w", 1, 2), ("w", 0, 3), ("w", 1, 3)]
def fixup(q):
    ops = []
    for r in range(4): ops.append(f"v_mov_b32_dpp v{CS+r}, v{acc(q,0)+r} row_newbcast:0 {DPPM}")
    for t in (1, 2, 3, 4, 0):
        if t == 0 and q == 0: continue
        A = acc(q, t); st = V(ST + 2 * t, 2)
        ops.append(("wait", ("s", 0, t)))
        if OPT["fixpk"] == 2 or (OPT["fixpk"] == 1 and q == 3):
            for h in (0, 2): ops.append(f"v_pk_fma_f32 {V(A+h,2)}, {V(CS+h,2)}, {st}, {V(A+h,2)} op_sel_hi:[1,0,1]")
            for h in (0, 2): ops.append(f"v_pk_mul_f32 {V(A+h,2)}, {V(A+h,2)}, {st} op_sel:[0,1] op_sel_hi:[1,1]")
        else:
            for h in range(4): ops.append(f"v_fmac_f32 v{A+h}, v{CS+h}, v{ST+2*t}")
            for h in range(4): ops.append(f"v_mul_f32 v{A+h}, v{A+h}, v{ST+2*t+1}")
        ops.append(f"v_cvt_pk_bf16_f32 v{A}, v{A}, v{A+1}")
        ops.append(f"v_cvt_pk_bf16_f32 v{A+1}, v{A+2}, v{A+3}")
        reg, off = (vSW1, TSTR * q + 16 * PITCH * t) if q < 3 else (vSW2, 16 * PITCH * t)
        w = f"ds_write_b64 v{reg}, {V(A,2)} offset:{off}"
        if t == 0:
            m = sM0 if q < 3 else sM3
            ops.append(f"s_mov_b64 exec, s[{m}:{m+1}]"); ops.append(("ds", w)); ops.append("s_mov_b64 exec, -1")
        else: ops.append(("ds", w))
    return ops
def emit_op(o):
    if isinstance(o, tuple):
        if o[0] == "wait": L.wait(ids[o[1]])
        else: L(o[1])
    else: a(o)
for q in range(4):
    F = fixup(q - 1) if q > 0 else []
    per = (len(F) + 8) // 9
    for ks in range(2):
        for t in range(5):
            L.wait(max(ids["w", ks, q], ids["x", ks, t]))
            mfma(acc(q, t), WF + 16 * ks + 4 * q, (XF2 if ks else XF) + 4 * t)
            if q == 0:
                if later:
                    rd_later()
                    if not later and OPT["lfl"]:
                        a(f"s_lshl_b32 s3, s{sT}, 2\ns_add_u32 s3, s3, {RDF}\nv_mov_b32 v1, s3\nv_mov_b32 v2, 0"); L("ds_write_b32 v1, v2")
            elif (ks, t) != (0, 0):
                k = 0
                while F and (k < per or (isinstance(F[0], str) and F[0] == "s_mov_b64 exec, -1") or (k and F[0][0] == "ds")):
                    o = F.pop(0); emit_op(o)
                    if not (isinstance(o, tuple) and o[0] == "wait"): k += 1
                    if isinstance(o, str) and o.startswith("s_mov_b64 exec, s"):
                        emit_op(F.pop(0)); emit_op(F.pop(0))
    while F: emit_op(F.pop(0))
a(f"s_cmp_eq_u32 s{sT}, 3\ns_cbranch_scc1 L_nf3")
for o in fixup(3): emit_op(o)
def ldXR():
    a(f"buffer_load_dwordx4 {V(WRF,4)}, v{vG40}, {S(WR)}, s{sH160} offen\nbuffer_load_dwordx4 {V(WRF+4,4)}, v{vG40}, {S(WR)}, s{sH160} offen offset:16\nbuffer_load_dwordx2 {V(WRF+8,2)}, v{vG40}, {S(WR)}, s{sH160} offen offset:32")
a("L_nf3:\ns_waitcnt lgkmcnt(0)\ns_barrier")
stamp(3)
if OPT["xre"]: ldXR()

a("L_att:")
if STAGE == "A":
    a(f"s_lshl_b32 s3, s{sWV}, 10\nv_add_u32 v1, s3, v{aL16}\ns_mul_i32 s3, s2, 40960\ns_add_u32 s3, s3, {DUMP}")
    for i in range(5):
        a(f"ds_read_b128 v[16:19], v1 offset:{SB + 8192*i if SB + 8192*i < 65536 else 0}" if SB + 8192 * i < 65536 else f"v_add_u32 v2, {SB + 8192*i}, v1\nds_read_b128 v[16:19], v2")
        a(f"s_waitcnt lgkmcnt(0)\nbuffer_store_dwordx4 v[16:19], v1, {S(WS)}, s3 offen\ns_waitcnt vmcnt(0)\ns_add_u32 s3, s3, 8192")
    a("s_branch L_end")
QL, QH, K1, K2, VV, SS, MX, PP, OO, SM, ON, OT = 16, 24, 32, 40, 48, 64, 72, 76, 84, 100, 108, 8
CEXP = 0x3EA5281A
import struct, math
CEXP = struct.unpack("<I", struct.pack("<f", 20 ** -0.5 * math.log2(math.e)))[0]
def e1st(p):
    if p == 0: lst(f"buffer_store_dwordx4 {V(OT,4)}, v{aL16}, {S(WS)}, s{sE1S} offen{{F}}", OPT["loc"] & 1)
    else:
        execset(0xffff)
        lst(f"buffer_store_dwordx4 {V(OT+4,4)}, v{aL16}, {S(WS)}, s{sE1S} offen offset:1024{{F}}", OPT["loc"] & 1)
        execset(-1)
def gsync(cons):
    l = a.label("gs")
    a(f"s_cmp_eq_u32 s{sMODE}, 1\ns_cbranch_scc0 {l}g\n{l}b:")
    t = f"{l}g:\nv_mov_b32 v4, -1\nv_mov_b32 v5, -1\nv_mov_b32 v6, -1\nv_mov_b32 v7, -1\n"
    t += f"buffer_store_dwordx4 v[4:7], v{aL16}, {S(WS)}, s{sE1S} offen sc1\ns_mov_b64 exec, 0xffff\n"
    t += f"buffer_store_dwordx4 v[4:7], v{aL16}, {S(WS)}, s{sE1S} offen offset:1024 sc1\n"
    if cons: t += f"buffer_store_dwordx4 v[4:7], v{aL16}, {S(WS)}, s{sE2S} offen sc1\n"
    t += f"s_mov_b64 exec, -1\ns_lshl_b32 s0, s{sRB}, 10\ns_add_u32 s0, s0, {FL + 32}\ns_lshl_b32 s3, s{sHG}, 5\ns_add_u32 s3, s3, s{sWV}\ns_lshl_b32 s3, s3, 2\n"
    t += f"v_mov_b32 v2, s3\nv_mov_b32 v3, 1\nv_lshrrev_b32 v4, 3, v0\nv_and_b32 v5, 7, v0\nv_lshlrev_b32 v5, 2, v5\nv_lshl_add_u32 v4, v4, 7, v5\n"
    t += f"s_waitcnt vmcnt(0)\ns_mov_b64 exec, 1\nbuffer_store_dword v3, v2, {S(WS)}, s0 offen sc1\ns_mov_b64 exec, -1\n"
    t += f"{l}p:\nbuffer_load_dword v5, v4, {S(WS)}, s0 offen sc1\ns_waitcnt vmcnt(0)\nv_cmp_ne_u32 vcc, 1, v5\ns_cbranch_vccz {l}b\n"
    t += f"s_sub_u32 s{sBUD}, s{sBUD}, 1\ns_cbranch_scc1 {l}x\ns_sleep 2\ns_branch {l}p\n{l}x:\ns_mov_b32 s{sBUD}, 0\ns_branch {l}b"
    DEFER.append(t)
def attention(h0=lambda: None, h1=lambda: None, cons=1):
    L.reset()
    rid = {}
    for h in range(2):
        o = 40 * h
        L(f"ds_read_b64 {V(K1+4*h,2)}, v{aK0} offset:{o}"); L(f"ds_read_b64 {V(K1+4*h+2,2)}, v{aK1} offset:{o}")
        L(f"ds_read_b64 {V(QL+4*h,2)}, v{aQl0} offset:{o}"); rid[h, 0] = L(f"ds_read_b64 {V(QL+4*h+2,2)}, v{aQl1} offset:{o}")
    for h in range(2):
        o = 40 * h
        L(f"ds_read_b64 {V(K2+4*h,2)}, v{aK0} offset:{o + 8*PITCH}"); L(f"ds_read_b64 {V(K2+4*h+2,2)}, v{aK1} offset:{o + 8*PITCH}")
        L(f"ds_read_b64 {V(QH+4*h,2)}, v{aQh0} offset:{o}"); rid[h, 1] = L(f"ds_read_b64 {V(QH+4*h+2,2)}, v{aQh1} offset:{o}")
    a(f"v_mov_b32 v1, {MODE}"); L("ds_read_b32 v1, v1")
    h0()
    for i in range(8): a(f"v_mov_b32 v{PP+i}, 0")
    a(f"s_mov_b32 s0, {CEXP:#x}\ns_mov_b32 s100, 0x00ff00ff\ns_mov_b32 s101, 0x00ff00ff")
    for h in range(2):
        L.wait(rid[h, 0]); mfma(SS + 4 * h, K1 + 4 * h, QL + 4 * h, aBIAS)
    vid = {}
    for h in range(2):
        for p in range(2):
            d = VV + 8 * h + 4 * p; o = 40 * h + 32 * p
            L(f"ds_read_b64_tr_b16 {V(d,2)}, v{aV} offset:{o}")
            vid[h, p] = L(f"ds_read_b64_tr_b16 {V(d+2,2)}, v{aV} offset:{o + 8*PITCH}")
        if h == 0:
            for hh in range(2):
                L.wait(rid[hh, 1]); mfma(SS + 4 * hh, K2 + 4 * hh, QH + 4 * hh)
    for i in range(4): a(f"v_mov_b32 v{ON+i}, {ONES:#x}")
    for h in range(2): a(f"v_max3_f32 v{MX+h}, v{SS+4*h}, v{SS+4*h+1}, v{SS+4*h+2}")
    for h in range(2): a(f"v_max_f32 v{MX+h}, v{MX+h}, v{SS+4*h+3}")
    a(f"v_permlane32_swap_b32 v{MX}, v{MX+1}\nv_max_f32 v{MX}, v{MX}, v{MX+1}\nv_mov_b32 v{MX+1}, v{MX}")
    a(f"v_permlane16_swap_b32 v{MX}, v{MX+1}\nv_max_f32 v{MX}, v{MX}, v{MX+1}\nv_mul_f32 v{MX}, {CEXP | 0x80000000:#x}, v{MX}\nv_mov_b32 v{MX+1}, v{MX}")
    a(f"v_permlane32_swap_b32 v{MX}, v{MX+1}")
    for h in range(2):
        for r in range(4): a(f"v_fma_f32 v{SS+4*h+r}, v{SS+4*h+r}, s0, v{MX+h}")
    for i in range(8): a(f"v_exp_f32 v{SS+i}, v{SS+i}")
    a("s_mov_b64 exec, s[100:101]")
    for h in range(2):
        for e in range(2): a(f"v_cvt_pk_bf16_f32 v{PP+4*h+e}, v{SS+4*h+2*e}, v{SS+4*h+2*e+1}")
    a("s_not_b64 exec, exec")
    for h in range(2):
        for e in range(2): a(f"v_cvt_pk_bf16_f32 v{PP+4*h+2+e}, v{SS+4*h+2*e}, v{SS+4*h+2*e+1}")
    a("s_mov_b64 exec, -1")
    for h in range(2): mfma(SM + 4 * h, ON, PP + 4 * h, "0")
    h1()
    L.wait(vid[1, 1])
    a(f"v_readfirstlane_b32 s{sMODE}, v1")
    if OPT["lcl"]: gsync(cons)
    for p in range(2):
        for h in range(2): mfma(OO + 8 * h + 4 * p, VV + 8 * h + 4 * p, PP + 4 * h, "0")
    for h in range(2): a(f"v_rcp_f32 v{SM+4*h}, v{SM+4*h}")
    for p in range(2):
        for h in range(2):
            A = OO + 8 * h + 4 * p
            for e in (0, 2): a(f"v_pk_mul_f32 {V(A+e,2)}, {V(A+e,2)}, {V(SM+4*h,2)} op_sel_hi:[1,0]")
        for h in range(2):
            A = OO + 8 * h + 4 * p
            for e in range(2): a(f"v_cvt_pk_bf16_f32 v{OT+4*p+2*h+e}, v{A+2*e}, v{A+2*e+1}")
        e1st(p)
attention()
stamp(5)
if STAGE == "B":
    a("s_waitcnt vmcnt(0)\ns_branch L_end")

H, OW, OS, WOF, SND, RCV = 16, 36, 76, 116, 196, 76
RING, LEAD = OPT["ring"], OPT["lead"]
NSLOT = 10 + LEAD
sRET, sQ0, sKEY, sCM = 56, 100, 57, 64
WSP = 4
if not OPT["xre"]: ldXR()
sOW, sOS = (sE1T, 0, 1), (sE1S, 100, 101)
a(f"s_xor_b32 s3, s{sT}, 1\ns_mul_i32 s3, s3, 20480\ns_add_u32 s{sE1S}, s3, s{sGRP}\ns_and_b32 s3, s{sT}, 1\ns_mul_i32 s3, s3, 10240")
a(f"s_add_u32 s{sE1T}, s{sE1T}, s3\ns_add_u32 s{sE1S}, s{sE1S}, s3")
a(f"s_add_u32 s0, s{sE1T}, 4096\ns_add_u32 s1, s{sE1T}, 8192\ns_add_u32 s100, s{sE1S}, 4096\ns_add_u32 s101, s{sE1S}, 8192")
L.reset()
wid = {}
def rdWOf(s, f):
    reg, off = (vWOa, 5120 * s) if s < 6 else (vWOb, 5120 * (s - 6))
    d = WOF + 20 * (s % RING) + 4 * f
    L(f"ds_read_b64_tr_b16 {V(d,2)}, v{reg} offset:{off + 8*f}")
    wid[s, f] = L(f"ds_read_b64_tr_b16 {V(d+2,2)}, v{reg} offset:{off + 8*f + 1280}")
def oreg(k): return (OW if k[0] == "w" else OS) + 4 * k[1]
def ldO(k, fl="sc1"):
    so = (sOW if k[0] == "w" else sOS)[k[1] // 4]
    a(f"buffer_load_dwordx4 {V(oreg(k),4)}, v{aL16}, {S(WS)}, s{so} offen offset:{1024*(k[1]%4)} {fl}")
slot_o = [[("s", t)] * (t < 10) + [("w", t - LEAD)] * (t >= LEAD) for t in range(NSLOT)]
oord = [k for sl in slot_o for k in sl]
nE1 = 2
def xr_prep(n0):
    for i in range(10): a(f"v_lshlrev_b32 v{H+2*i}, 16, v{XR+i}\nv_and_b32 v{H+2*i+1}, 0xffff0000, v{XR+i}")
    a(f"s_mov_b32 s3, {ONES:#x}\ns_waitcnt vmcnt({n0})")
    a(f"v_mov_b32 v{WRF+10}, 0\nv_mov_b32 v{WRF+11}, 0")
    for i in range(4): a(f"v_mov_b32 v{XR+2+i}, s3")
    execset(0x1111111111111111)
    for i in range(10): a(f"v_mov_b32 v{WRF+i}, s3")
    execset(-1)
    for k in range(3): mfma(WSP, WRF + 4 * k, XR + 2, "0" if k == 0 else None)
OUP = OPT["oup"]
nO = [0]
def ldOn():
    if nO[0] < 20: ldO(oord[nO[0]], OPT["ol"].replace("plain", "")); nO[0] += 1
OE = OUP if OPT["oearly"] == 1 else OPT["oearly"]
for s_ in range(OE): ldOn()
if OPT["xre"]: xr_prep(nE1 + OE)
a("s_barrier")
stamp(6)
fr = [(s_, f) for s_ in range(RING) for f in range(5)]
perO = (len(fr) + OUP - 1) // OUP
for s_ in range(OUP - OE):
    ldOn()
    for _ in range(perO):
        if fr: rdWOf(*fr.pop(0))
for s_, f in fr: rdWOf(s_, f)
stamp(7)
if not OPT["xre"]: xr_prep(OUP)
issued = {}
def chk_cmp(t):
    r = [oreg(k) for k in slot_o[t]]
    if len(r) == 2: a(f"v_max_u32 v1, v{r[0]}, v{r[1]}\nv_cmp_eq_u32 vcc, -1, v1")
    else: a(f"v_cmp_eq_u32 vcc, -1, v{r[0]}")
def chk_a(t):
    last = max(oord.index(k) for k in slot_o[t]) + 1
    assert nO[0] >= last
    a(f"s_waitcnt vmcnt({nO[0] - last})")
    chk_cmp(t)
def chk_b(t):
    issued[t] = nO[0]
    a(f"s_cbranch_vccnz L_stub{t}\nL_go{t}:")
chk_a(0); chk_b(0)
for t in range(NSLOT):
    for f in range(5):
        if f == 5 - OPT["hoist"] and t + 1 < NSLOT:
            chk_a(t + 1)
            if not OPT["csp"]: chk_b(t + 1)
        if OPT["csp"] and f == 6 - OPT["hoist"] and t + 1 < NSLOT: chk_b(t + 1)
        if t < 10:
            L.wait(wid[t, f]); mfma(SND + 4 * f, WOF + 20 * (t % RING) + 4 * f, OS + 4 * t, "0" if t == 0 else None)
        if f in (0, 2): ldOn()
        if t >= LEAD:
            u = t - LEAD
            L.wait(wid[u, f]); mfma(H + 4 * f, WOF + 20 * (u % RING) + 4 * f, OW + 4 * u)
            if u + RING < 10: rdWOf(u + RING, f)
        if t == 10: L(f"ds_write_b128 v{vWOc}, {V(SND+4*f,4)} offset:{1024*f}")
    if t == 10:
        a("s_waitcnt lgkmcnt(0)\ns_barrier")
        L.done = L.n
        rcv = [L(f"ds_read_b128 {V(RCV+4*f,4)}, v{vEXR} offset:{1024*f}") for f in range(5)]
    if t == 0: stamp(8)
for f in range(5):
    L.wait(rcv[f])
    for e in (0, 2): a(f"v_pk_add_f32 {V(H+4*f+e,2)}, {V(H+4*f+e,2)}, {V(RCV+4*f+e,2)}")
stamp(9)
HB, D1, D2, E2D = 36, 48, 52, 56
for i in range(10): a(f"v_cvt_pk_bf16_f32 v{HB+i}, v{H+2*i}, v{H+2*i+1}")
a(f"v_mov_b32 v{HB+10}, 0\nv_mov_b32 v{HB+11}, 0")
for k in range(3):
    mfma(D2, HB + 4 * k, HB + 4 * k, "0" if k == 0 else None)
    mfma(D1, WRF + 4 * k, HB + 4 * k, "0" if k == 0 else None)
a("s_mov_b32 s0, 0x22222222\ns_mov_b32 s1, s0\ns_mov_b32 s100, 0x44444444\ns_mov_b32 s101, s100\ns_mov_b32 vcc_lo, 0x88888888\ns_mov_b32 vcc_hi, 0x88888888")
a(f"v_cndmask_b32 v{D2}, v{D2}, v{D2+1}, s[0:1]\nv_cndmask_b32 v{D2+2}, v{D2+2}, v{D2+3}, vcc\ns_or_b64 vcc, vcc, s[100:101]")
a(f"v_cndmask_b32 v{D1+2}, v{D2}, v{D2+2}, vcc\nv_mov_b32 v{D1+3}, v{WSP+1}")
execset(0xF0000F0000F0000F)
lst(f"buffer_store_dwordx4 {V(D1,4)}, v{vN16}, {S(WS)}, s{sE2S} offen{{F}}", OPT["loc"] & 2)
execset(-1)
stamp(10)
a(f"v_mov_b32 v4, 1.0\ns_mov_b32 s0, 0xbacccccd\ns_mov_b32 s1, 0x3acccccd\nv_mov_b32 v5, 0x3727c5ac\ns_mov_b32 s100, 0xfffff800")
T0, RS = 64, 2
if OPT["slp2a"]: a(f"s_sleep {OPT['slp2a']}")
a("L_e2:")
a(f"buffer_load_dwordx4 {V(E2D,4)}, v{aL16}, {S(WS)}, s{sE2L} offen sc1\nbuffer_load_dwordx4 {V(E2D+4,4)}, v{aL16}, {S(WS)}, s{sE2L} offen offset:1024 sc1")
a("s_waitcnt vmcnt(0)")
a(f"v_add_f32 v{E2D}, v{E2D}, v{E2D+4}\nv_add_f32 v{E2D+2}, v{E2D+2}, v{E2D+6}\nv_add_f32 v{E2D+3}, v{E2D+3}, v{E2D+7}\nv_add_f32 v{E2D+1}, v{E2D+1}, v{E2D+5}")
a(f"v_cmp_u_f32 vcc, v{E2D}, v{E2D}\ns_cbranch_vccnz L_e2r\nL_e2go:")
for i in (0, 2, 3, 1): a(f"v_mfma_f32_16x16x4_f32 {V(T0+4*i,4)}, v4, v{E2D+i}, 0")
a(f"v_mul_f32 v6, s0, v{T0}\nv_fma_f32 v7, v{T0+8}, s1, v5\nv_fma_f32 v7, -v6, v6, v7\nv_max_f32 v7, v7, v5\nv_rsq_f32 v{RS}, v7")
a(f"v_fma_f32 v8, v6, v{T0+12}, v{T0+4}\nv_mul_f32 v8, v8, v{RS}\nv_mul_f32 v{RS+1}, v6, v{RS}")
a(f"v_ashrrev_i32 v9, 31, v8\nv_or_b32 v9, 0x80000000, v9\nv_xor_b32 v8, v8, v9\nv_and_or_b32 v8, v8, s100, v{vRK}")
a(f"v_max_u32_dpp v9, v8, v8 row_ror:8 {DPPM}")
for k in (4, 2, 1): a(f"v_max_u32_dpp v9, v9, v9 row_ror:{k} {DPPM}")
a(f"s_cmp_eq_u32 s{sHG}, 0\ns_cselect_b64 exec, 0xff, 0")
a(f"buffer_store_dword v9, v{vL512}, {S(WS)}, s{sE3K} offen sc1")
execset(-1)
stamp(11)
a(f"v_cmp_eq_u32 s[{sCM}:{sCM+1}], v8, v9\nv_readfirstlane_b32 s{sKEY}, v9")
LN, LNB, OB = 80, 100, 112
for i in range(10): a(f"v_pk_fma_f32 {V(LN+2*i,2)}, {V(H+2*i,2)}, {V(RS,2)}, {V(RS,2)} op_sel:[0,0,1] op_sel_hi:[1,0,1]")
for i in range(10): a(f"v_cvt_pk_bf16_f32 v{LNB+i}, v{LN+2*i}, v{LN+2*i+1}")
def st40(d, va, srd, so, off, extra=""):
    a(f"buffer_store_dwordx4 {V(d,4)}, v{va}, {S(srd)}, {so} offen offset:{off}{extra}")
    a(f"buffer_store_dwordx4 {V(d+4,4)}, v{va}, {S(srd)}, {so} offen offset:{off+16}{extra}")
    a(f"buffer_store_dwordx2 {V(d+8,2)}, v{va}, {S(srd)}, {so} offen offset:{off+32}{extra}")
a(f"s_mov_b64 exec, s[{sCM}:{sCM+1}]")
st40(LNB, vG40, WS, f"s{sE3R}", 0, " sc1")
st40(HB, vG40, WS, f"s{sE3R}", 1280, " sc1")
execset(-1)
a("s_barrier")
for i in range(10): a(f"v_pk_add_f32 {V(LN+2*i,2)}, {V(LN+2*i,2)}, {V(H+2*i,2)}")
for i in range(10): a(f"v_cvt_pk_bf16_f32 v{OB+i}, v{LN+2*i}, v{LN+2*i+1}")
a(f"s_not_b64 exec, s[{sCM}:{sCM+1}]")
if not OPT["noout"]: st40(OB, vROW, OUT, "0", 0, OPT["osc"].replace("_"," "))
execset(-1)
stamp(12)
a(f"v_mov_b32 v1, {WIN}\ns_barrier\nds_read_b32 v1, v1\ns_waitcnt lgkmcnt(0)")
stamp(13)
a(f"v_readfirstlane_b32 s3, v1\ns_cmp_eq_u32 s3, s{sKEY}\ns_cbranch_scc1 L_cfin\ns_mov_b64 exec, s[{sCM}:{sCM+1}]")
st40(OB, vROW, OUT, "0", 0, OPT["osc"].replace("_"," "))
a("L_cfin:")
if OPT["stamps"]:
    a(f"s_cmp_eq_u32 s{sWV}, 0\ns_cbranch_scc0 L_end")
    dump_stamps(0)
a("s_endpgm")
a(f"L_xr:\ns_lshl_b32 s3, s3, 7\ns_sub_u32 s0, s{sRD}, s{sDL}\ns_movk_i32 s1, 0x80\nv_subrev_u32 v1, s3, v{vXB}\nv_add_u32 v2, s0, v{vXC}")
a("v_lshlrev_b32 v3, 3, v0\nv_and_b32 v3, 0x70, v3")
for i in range(5):
    a(f"v_add_u32 v4, {8*i}, v1\nv_cmp_gt_u32 vcc, s1, v4\nv_xor_b32 v4, v4, v3\nv_add_u32 v{5+i}, v4, v2\ns_mov_b64 exec, vcc")
    a(f"ds_read_b64 {V(XR+2*i,2)}, v{5+i}\ns_mov_b64 exec, -1")
a("s_branch L_xrb")
a("L_ev:")
if PFI < 99:
    a(f"s_cmp_eq_u32 s{sI}, {PFI}\ns_cbranch_scc0 L_ev1")
    pfg()
    a("s_branch L_evb\nL_ev1:")
a(f"s_cmp_eq_u32 s{sI}, {OPT['ev1']}\ns_cbranch_scc0 L_ev2\ns_mov_b32 s{sEV}, {OPT['ev2']}")
a(f"buffer_load_dword v15, v14, {S(DBG)}, 0 offen sc1\ns_branch L_evb")
a(f"L_ev2:\ns_waitcnt vmcnt(0)\nv_cmp_ne_u32 vcc, 1, v15\ns_cbranch_vccz L_ev3\ns_sub_u32 s{sBUD}, s{sBUD}, 1\ns_cbranch_scc1 L_ev3")
a(f"s_sleep 4\nbuffer_load_dword v15, v14, {S(DBG)}, 0 offen sc1\ns_branch L_ev2")
a(f"L_ev3:\ns_mov_b32 s{sEV}, {PFI}\ns_lshl_b32 s3, s{sRB}, 3\ns_add_u32 s3, s3, s{sHG}\ns_lshl_b32 s3, s3, 7\ns_add_u32 s3, s3, {FL}\ns_getreg_b32 s0, hwreg(HW_REG_XCC_ID, 0, 4)\nv_mov_b32 v15, s0\nv_mov_b32 v14, 0")
a(f"s_mov_b64 exec, 1\nbuffer_store_dword v15, v14, {S(WS)}, s3 offen sc1\ns_mov_b64 exec, -1\ns_branch L_evb")
deferred()
a("L_e2r:")
a(f"s_sub_u32 s{sBUD}, s{sBUD}, 1\ns_cbranch_scc1 L_e2x\ns_sleep {OPT['slp2']}\ns_branch L_e2\nL_e2x:\ns_mov_b32 s{sBUD}, 0\ns_branch L_e2go")
for G in range(NSLOT):
    a(f"L_stub{G}:\ns_sub_u32 s{sBUD}, s{sBUD}, 1\ns_cbranch_scc1 L_stx{G}")
    for G2 in range(G, min(G + OPT["rsp"], NSLOT)):
        for k in slot_o[G2]:
            if oord.index(k) < issued[G]: ldO(k)
    a("s_waitcnt vmcnt(0)")
    chk_cmp(G)
    a(f"s_cbranch_vccnz L_stub{G}\ns_branch L_go{G}\nL_stx{G}:\ns_mov_b32 s{sBUD}, 0\ns_branch L_go{G}")

a("L_attl:")
def hk0():
    if not OPT["lfl"]: weave(wo_run(5) + wo_run(6), [])
    if OPT["wdp"] == 3:
        a(f"s_cmp_lt_u32 s{sSL}, 192\ns_cselect_b32 s3, s{sT}, 1\ns_cmp_eq_u32 s3, 0\ns_cbranch_scc0 L_hkd")
        ld_down(); a("L_hkd:")
attention(hk0, cons=0)
stamp(5)
nst = 2
sWIN, sXS, sA = 57, 58, 60
GF, XS, WP, AC = 16, 96, 176, 224
vGU, vE4, vXS, vKP = 240, 241, 243, 244
a(f"s_cmp_lt_u32 s{sSL}, 192\ns_cbranch_scc1 L_m12\ns_waitcnt vmcnt({nst + (OPT['pdn'] if OPT['gord'] == 3 else 0)})\ns_barrier")
stamp(6)
a(f"s_cmp_eq_u32 s{sT}, 0\ns_cbranch_scc1 L_fin0")
if OPT["wb"] & 3:
    a(f"s_lshl_b32 s3, s{sHG}, 2\ns_add_u32 s3, s3, s{sT}\ns_cmp_eq_u32 s3, 29\ns_cbranch_scc0 L_end\ns_barrier")
    if OPT["wb"] & 1: a("buffer_wbl2 sc1")
    if OPT["wb"] & 2: a("s_barrier\nbuffer_wbl2 sc1")
a("s_endpgm")
a(f"L_m12:\ns_waitcnt vmcnt({nst + (5 if OPT['gord'] == 3 and OPT['wdp'] != 3 else 0)})\ns_barrier")
stamp(6)
a(f"s_waitcnt vmcnt({0 if OPT['gw'] else nst})")
if OPT["gtr"]:
    a("v_and_b32 v1, 7, v0\nv_lshrrev_b32 v2, 3, v0\nv_lshl_add_u32 v1, v1, 3, v2\nv_lshlrev_b32 v1, 2, v1")
    for i in range(20): a(f"ds_bpermute_b32 v{GUT+i}, v1, v{GUT+i}")
    t = [f"s_waitcnt lgkmcnt({min(15, 16 - 4*i)})\n" for i in range(5)]
else: t = [""] * 5
if not OPT["nogu"]: lst("\n".join(t[i] + f"buffer_store_dwordx4 {V(GUT+4*i,4)}, v{vGS}, {S(WS)}, s{sGS} offen offset:{128*i}{{F}}" for i in range(5)), OPT["loc"] & 4)
def perms():
    a("s_mov_b32 s0, 0x05040100\ns_mov_b32 s1, 0x07060302")
    for h in range(3):
        if not OPT["wdp"]: a(f"s_waitcnt vmcnt({16 - 8*h})")
        for pr in range(4):
            for c in range(4):
                a(f"v_perm_b32 v{WP+16*h+4*pr+c}, v{RAW+16*h+4*pr+2+(c>>1)}, v{RAW+16*h+4*pr+(c>>1)}, s{c&1}")
a(f"s_lshl_b32 s0, s{sRB}, 10\ns_add_u32 s0, s0, {FL + 16}\ns_lshl_b32 s3, s{sHG}, 7\ns_add_u32 s3, s3, s0\nv_mov_b32 v2, 1\nv_mov_b32 v3, s{sT}\nv_lshlrev_b32 v3, 2, v3")
a(f"s_mov_b64 exec, 1\ns_waitcnt vmcnt(0)")
lst(f"buffer_store_dword v2, v3, {S(WS)}, s3 offen{{F}}", OPT["loc"] & 4)
a("s_mov_b64 exec, -1")
a(f"s_cmp_eq_u32 s{sT}, 0\ns_cbranch_scc1 L_w4\ns_endpgm\nL_w4:")
a(f"v_mul_u32_u24 v{vKP}, {KSTR}, v0\ns_mul_i32 s59, s{sJ}, {KREP}\ns_add_u32 s59, s59, {E3K}\ns_add_u32 s43, s59, {KREP//2}")
for i in range(12): a(f"v_mov_b32 v{AC+i}, 0")
a("v_lshrrev_b32 v1, 4, v0\nv_bfe_u32 v2, v0, 2, 2\nv_lshl_add_u32 v2, v1, 3, v2\nv_and_b32 v3, 1, v0\nv_lshlrev_b32 v3, 3, v3\nv_lshl_add_u32 v2, v2, 4, v3")
a(f"v_bfe_u32 v3, v0, 1, 1\nv_mul_u32_u24 v3, {UPOFF}, v3\nv_add_u32 v3, {GU}, v3\nv_add_u32 v{vGU}, v2, v3\nv_lshlrev_b32 v{vXS}, 4, v1")
a(f"v_lshrrev_b32 v1, 3, v0\nv_lshlrev_b32 v1, 17, v1\nv_bfe_u32 v2, v0, 2, 1\nv_mul_u32_u24 v2, 12288, v2\nv_add_u32 v1, v1, v2\nv_and_b32 v2, 3, v0\nv_lshl_add_u32 v{vE4}, v2, 4, v1")
a("v_bfe_u32 v1, v0, 2, 3\nv_and_b32 v2, 3, v0\nv_lshlrev_b32 v2, 2, v2\nv_lshl_add_u32 v4, v1, 7, v2")
if OPT["wdp"]:
    a("s_mov_b32 s58, s0"); perms(); a("s_mov_b32 s0, s58")
if OPT["gdm"] == 3: a("s_barrier")
a(f"L_f2:\ns_sleep {OPT['slpg']}\nbuffer_load_dword v2, v4, {S(WS)}, s0 offen sc1\ns_waitcnt vmcnt(0)\nv_cmp_ne_u32 vcc, 1, v2\ns_cbranch_vccz L_f2g")
a(f"s_sub_u32 s{sBUD}, s{sBUD}, 1\ns_cbranch_scc0 L_f2\ns_mov_b32 s{sBUD}, 0\nL_f2g:")
a(f"s_mul_i32 s0, s{sRB}, 163840\ns_mul_i32 s1, s{sHG}, 20480\ns_add_u32 s0, s0, s1\ns_add_u32 s0, s0, {GUW}")
if OPT["gdm"] == 0: a("s_barrier")
stamp(7)
for n in range(20):
    if n and n % 4 == 0: a("s_add_u32 s0, s0, 4096")
    dma(f"s_mov_b32 m0, {GU + UPOFF*(n//10) + 1024*(n%10) - 1024*(n%4)}", aL16, WS, "s0", f"offset:{1024*(n%4)} sc1 ")
if OPT["gdm"] == 1: a("s_barrier")
if not OPT["wdp"]: ld_down()
a(f"s_lshl_b32 s{sSL}, s{sSL}, 6\ns_add_u32 s{sSL}, s{sSL}, {E4}")
if OPT["gdm"] == 2: a("s_barrier")
for s_ in range(20):
    if s_ % 2 == 0: a(f"s_waitcnt vmcnt({(0 if OPT['wdp'] else 24) + 9 - s_//2})")
    a(f"ds_read_b64_tr_b16 {V(GF+4*s_,2)}, v{vGU} offset:{512*s_}\nds_read_b64_tr_b16 {V(GF+4*s_+2,2)}, v{vGU} offset:{512*s_+64}")
if not OPT["wdp"]: perms()
a("s_waitcnt lgkmcnt(0)")
stamp(8)
a("s_barrier")
def poll(tag):
    if OPT["slpka"]: a(f"s_sleep {OPT['slpka']}")
    a(f"L_pk{tag}:\nbuffer_load_dword v2, v{vKP}, {S(WS)}, s59 offen sc1\nbuffer_load_dword v3, v{vKP}, {S(WS)}, s43 offen sc1\ns_waitcnt vmcnt(0)")
    a(f"v_max_u32 v2, v2, v3\nv_cmp_eq_u32 vcc, -1, v2\ns_cbranch_vccz L_pg{tag}\ns_sub_u32 s{sBUD}, s{sBUD}, 1\ns_cbranch_scc1 L_px{tag}")
    a(f"s_sleep {OPT['slpk']}\ns_branch L_pk{tag}\nL_px{tag}:\ns_mov_b32 s{sBUD}, 0\nL_pg{tag}:")
    for k in (8, 4, 2, 1): a(f"v_max_u32_dpp v2, v2, v2 row_ror:{k} {DPPM}")
    a("v_readlane_b32 s0, v2, 0\nv_readlane_b32 s1, v2, 16\nv_readlane_b32 s100, v2, 32\nv_readlane_b32 s101, v2, 48")
    a(f"s_max_u32 s0, s0, s1\ns_max_u32 s100, s100, s101\ns_max_u32 s{sWIN}, s0, s100")
    a(f"s_andn2_b32 s0, 2047, s{sWIN}\ns_lshr_b32 s1, s0, 7\ns_lshl_b32 s1, s1, 18\ns_and_b32 s3, s0, 1\ns_lshl_b32 s3, s3, 17\ns_add_u32 s1, s1, s3")
    a(f"s_bfe_u32 s3, s0, 0x20005\ns_mul_i32 s3, s3, 2560\ns_add_u32 s1, s1, s3\ns_add_u32 s{sXS}, s1, {E3R}")
def pubwin():
    a(f"v_mov_b32 v2, s{sWIN}\nv_mov_b32 v3, {WIN}\nds_write_b32 v3, v2\ns_waitcnt lgkmcnt(0)\ns_barrier")
poll("m")
stamp(9)
for s in range(20): a(f"buffer_load_dwordx4 {V(XS+4*s,4)}, v{vXS}, {S(WS)}, s{sXS} offen offset:{64*s} sc1")
pubwin()
GA = 4
a("L_xs:")
for s in range(20):
    if s % 4 == 0: a(f"s_waitcnt vmcnt({16 - s})")
    mfma(GA + 4 * (s % 3), XS + 4 * s, GF + 4 * s, "0" if s < 3 else None)
a(f"v_add_f32 v{GA}, v{GA}, v{GA+4}\nv_add_f32 v{GA}, v{GA}, v{GA+8}")
a(f"v_cmp_u_f32 vcc, v{GA}, v{GA}\ns_cbranch_vccnz L_xsr\nL_xsgo:")
stamp(10)
a(f"v_mul_f32 v1, 0xbfb8aa3b, v{GA}\nv_exp_f32 v1, v1\nv_mul_f32_dpp v2, v{GA}, v{GA} row_ror:8 {DPPM}\nv_add_f32 v1, 1.0, v1\nv_rcp_f32 v1, v1")
a(f"v_mul_f32 v1, v1, v2\nv_mov_b32_dpp v2, v1 quad_perm:[1,0,3,2] {DPPM}\nv_cvt_pk_bf16_f32 v1, v1, v2")
for pr in range(4): a(f"v_readlane_b32 s{sA+pr}, v1, {2*pr}")
for h in range(3):
    for pr in range(4):
        for c in range(4): a(f"v_dot2c_f32_bf16 v{AC+4*h+c}, s{sA+pr}, v{WP+16*h+4*pr+c}")
    if h == 2: execset(0xffffffff)
    if h: a(f"s_add_u32 s{sSL}, s{sSL}, {8*GS}")
    a(f"buffer_store_dwordx4 {V(AC+4*h,4)}, v{vE4}, {S(WS)}, s{sSL} offen sc1")
stamp(11)
a("L_mfin:")
if OPT["stamps"]: dump_stamps(1)
a("s_endpgm")
a(f"L_xsr:\ns_sub_u32 s{sBUD}, s{sBUD}, 1\ns_cbranch_scc1 L_xsgo")
for s in range(20): a(f"buffer_load_dwordx4 {V(XS+4*s,4)}, v{vXS}, {S(WS)}, s{sXS} offen offset:{64*s} sc1")
a("s_branch L_xs")
deferred()
a("L_fin0:")
a(f"v_mul_u32_u24 v{vKP}, {KSTR}, v0\ns_mul_i32 s59, s{sJ}, {KREP}\ns_add_u32 s59, s59, {E3K}\ns_add_u32 s43, s59, {KREP//2}")
a("s_barrier")
sCG = 56
a(f"s_lshl_b32 s{sCG}, s{sHG}, 3\ns_add_u32 s{sCG}, s{sCG}, s{sJ}")
a("v_and_b32 v1, 3, v0\nv_bfe_u32 v4, v0, 4, 1\nv_lshlrev_b32 v4, 1, v4\nv_lshl_add_u32 v4, v1, 2, v4\nv_lshrrev_b32 v1, 5, v0\nv_add_u32 v4, v4, v1")
a(f"s_lshl_b32 s3, s{sCG}, 5\nv_lshl_add_u32 v4, v4, 1, s3")
a(f"s_lshr_b32 s60, s{sCG}, 1\ns_lshl_b32 s60, s60, 17\ns_and_b32 s3, s{sCG}, 1\ns_mul_i32 s3, s3, 12288\ns_add_u32 s60, s60, s3\ns_add_u32 s60, s60, {E4}\ns_add_u32 s61, s60, 4096\ns_add_u32 s62, s60, 8192")
a("s_barrier")
poll("f")
stamp(9)
a(f"s_cmp_lt_u32 s{sCG}, 40\ns_cbranch_scc1 L_fin1")
pubwin()
if OPT["wb"] & 4: a(f"s_cmp_eq_u32 s{sHG}, 6\ns_cbranch_scc0 L_mfin\nbuffer_wbl2 sc1")
a("s_branch L_mfin\nL_fin1:")
a(f"buffer_load_ushort v5, v4, {S(WS)}, s{sXS} offen sc1\nbuffer_load_ushort v6, v4, {S(WS)}, s{sXS} offen offset:1280 sc1")
pubwin()
a(f"s_and_b32 s1, s{sWIN}, 0xfffff800\ns_ashr_i32 s3, s1, 31\ns_not_b32 s3, s3\ns_or_b32 s3, s3, 0x80000000\ns_xor_b32 s1, s1, s3\ns_mul_i32 s63, s0, 1280")
a("v_mov_b32 v7, s1\nv_mul_f32 v7, 0xbfb8aa3b, v7\nv_exp_f32 v7, v7\nv_add_f32 v7, 1.0, v7\nv_rcp_f32 v7, v7")
a("s_waitcnt vmcnt(0)")
FD = 16
if OPT["slpfa"]: a(f"s_sleep {OPT['slpfa']}")
a("L_fd:")
for i in range(12): a(f"buffer_load_dwordx4 {V(FD+4*i,4)}, v{aL16}, {S(WS)}, s{60 + i//4} offen offset:{1024*(i%4)} sc1")
a("v_lshlrev_b32 v8, 16, v5\nv_lshlrev_b32 v9, 16, v6\nv_add_f32 v8, v8, v9")
for i in range(0, 12, 2):
    a(f"s_waitcnt vmcnt({10 - i})")
    for e in (0, 2): a(f"v_pk_add_f32 {V(FD+4*i+e,2)}, {V(FD+4*i+e,2)}, {V(FD+4*i+4+e,2)}")
    if i:
        for e in (0, 2): a(f"v_pk_add_f32 {V(FD+e,2)}, {V(FD+e,2)}, {V(FD+4*i+e,2)}")
a(f"v_permlane32_swap_b32 v{FD}, v{FD+1}\nv_permlane32_swap_b32 v{FD+2}, v{FD+3}\nv_add_f32 v{FD}, v{FD}, v{FD+1}\nv_add_f32 v{FD+2}, v{FD+2}, v{FD+3}")
a(f"v_permlane16_swap_b32 v{FD}, v{FD+2}\nv_add_f32 v{FD}, v{FD}, v{FD+2}")
for k in (4, 8): a(f"v_add_f32_dpp v{FD}, v{FD}, v{FD} row_ror:{k} {DPPM}")
a(f"v_fma_f32 v8, v{FD}, v7, v8\nv_cmp_u_f32 vcc, v8, v8\ns_cbranch_vccnz L_fdr\nL_fdgo:")
a("v_cvt_pk_bf16_f32 v8, v8, v8")
execset(0x000F000F000F000F)
a(f"buffer_store_short v8, v4, {S(OUT)}, s63 offen")
stamp(11)
a("s_branch L_mfin")
a(f"L_fdr:\ns_sub_u32 s{sBUD}, s{sBUD}, 1\ns_cbranch_scc1 L_fdgo\ns_sleep {OPT['slpf']}")
a(f"buffer_load_ushort v5, v4, {S(WS)}, s{sXS} offen sc1\nbuffer_load_ushort v6, v4, {S(WS)}, s{sXS} offen offset:1280 sc1\ns_waitcnt vmcnt(0)\ns_branch L_fd")
a("L_end:\ns_endpgm")
body, nn = hazard.fix(a.lines[body0:], OPT["verbose"])
a.lines[body0:] = body
kernel_desc(a, K, 256)
open(sys.argv[1], "w").write(a.text())
print("nops inserted:", nn, "lines:", len(a.lines))
```

```python
import re

TRANS = ("v_exp_f32", "v_log_f32", "v_rcp_f32", "v_rsq_f32", "v_sqrt_f32", "v_sin_f32", "v_cos_f32")

def regs(tok):
    tok = tok.strip()
    tok = tok.lstrip("-")
    if tok.startswith("abs(") or tok.startswith("|"):
        tok = tok.replace("abs(", "").replace(")", "").replace("|", "")
    m = re.fullmatch(r"([vsa])(\d+)", tok)
    if m: return {(m.group(1), int(m.group(2)))}
    m = re.fullmatch(r"([vsa])\[(\d+):(\d+)\]", tok)
    if m: return {(m.group(1), i) for i in range(int(m.group(2)), int(m.group(3)) + 1)}
    if tok in ("vcc", "vcc_lo", "vcc_hi"): return {("x", "vcc")}
    if tok in ("exec", "exec_lo", "exec_hi"): return {("x", "exec")}
    if tok == "m0": return {("x", "m0")}
    return set()

class I:
    def __init__(self, text):
        self.text = text
        t = text.split(";")[0].strip()
        self.label = None
        self.op = None
        self.kind = "none"
        self.w = set(); self.r = set()
        self.states = 1
        self.target = None
        if not t or t.startswith("."):
            self.states = 0; return
        if t.endswith(":"):
            self.label = t[:-1]; self.states = 0; return
        parts = t.split(None, 1)
        op = self.op = parts[0]
        rest = parts[1] if len(parts) > 1 else ""
        ops = []; cur = ""; depth = 0
        for ch in rest:
            if ch == "[": depth += 1
            if ch == "]": depth -= 1
            if ch == "," and depth == 0:
                ops.append(cur.strip()); cur = ""
            else: cur += ch
        if cur.strip(): ops.append(cur.strip())
        mods = ""
        if ops:
            last = ops[-1].split(None, 1)
            if len(last) > 1:
                ops[-1] = last[0]; mods = last[1]
        self.ops = ops; self.mods = mods
        self.dpp = any(k in mods for k in ("quad_perm", "row_", "wave_", "bank_mask")) or op.endswith("_dpp")
        self.opsel = ("op_sel" in mods and not op.startswith("v_pk_")) or "sdwa" in op or "dst_sel" in mods
        R = lambda i: regs(ops[i]) if i < len(ops) else set()
        if op.startswith("v_mfma"):
            self.kind = "mfma"
            self.sgemm = op.endswith("_f32") and ("x4_f32" in op or "x2_f32" in op)
            self.D, self.A, self.B, self.C = R(0), R(1), R(2), R(3)
            self.w = set(self.D); self.r = self.A | self.B | self.C
        elif op.startswith("v_smfmac"):
            self.kind = "mfma"; self.sgemm = False
            self.D, self.A, self.B, self.C = R(0), R(1), R(2) | R(3), R(0)
            self.w = set(self.D); self.r = self.A | self.B | self.C
        elif op.startswith("v_"):
            self.kind = "valu"
            base = op.replace("_e32", "").replace("_e64", "").replace("_dpp", "").replace("_sdwa", "")
            self.base = base
            self.w = R(0)
            for i in range(1, len(ops)): self.r |= R(i)
            if base.startswith(("v_fmac", "v_dot2c", "v_writelane", "v_pk_fmac", "v_mac")) or self.dpp or self.opsel:
                self.r |= R(0)
            if base.startswith("v_permlane"):
                self.w |= R(1); self.r |= R(0)
            if base == "v_cndmask_b32" and len(ops) == 3: self.r |= {("x", "vcc")}
            if base in ("v_add_co_u32", "v_sub_co_u32", "v_addc_co_u32"):
                self.w |= R(1)
            if base.startswith("v_cmpx"): self.w |= {("x", "exec")}
            if base == "v_swap_b32":
                self.w |= R(1); self.r |= R(0)
            self.trans = base in TRANS
            self.dot = base.startswith("v_dot")
        elif op.startswith("ds_"):
            self.kind = "ds"
            if op.startswith(("ds_read", "ds_bpermute", "ds_permute", "ds_swizzle")) or "_rtn" in op:
                self.w = R(0)
                for i in range(1, len(ops)): self.r |= R(i)
            else:
                for i in range(len(ops)): self.r |= R(i)
        elif op.startswith(("buffer_", "global_")):
            self.kind = "vmem"
            self.lds = bool(re.search(r"\blds\b", mods))
            self.wide = None
            if op.startswith("buffer_load") and not self.lds:
                self.w = R(0)
                for i in range(1, len(ops)): self.r |= R(i)
            elif op.startswith("buffer_load"):
                for i in range(len(ops)): self.r |= R(i)
                self.r |= {("x", "m0")}
            elif op.startswith("buffer_store"):
                for i in range(len(ops)): self.r |= R(i)
                if op.endswith(("x3", "x4")): self.wide = R(0)
            elif op.startswith("global_load_lds"):
                self.lds = True
                for i in range(len(ops)): self.r |= R(i)
                self.r |= {("x", "m0")}
            elif op.startswith("global_load"):
                self.w = R(0)
                for i in range(1, len(ops)): self.r |= R(i)
            elif op.startswith("global_store"):
                for i in range(len(ops)): self.r |= R(i)
                if op.endswith(("x3", "x4")): self.wide = R(1)
            else:
                for i in range(len(ops)): self.r |= R(i)
                if "atomic" in op and "sc0" in mods: self.w = R(0)
        elif op.startswith("s_"):
            self.kind = "salu"
            if op == "s_nop":
                self.states = int(ops[0], 0) + 1
            elif op in ("s_branch",) or op.startswith("s_cbranch"):
                self.target = ops[0]
            elif op.startswith(("s_cmp", "s_waitcnt", "s_barrier", "s_endpgm", "s_setprio", "s_sleep", "s_bitcmp")):
                for i in range(len(ops)): self.r |= R(i)
            else:
                self.w = R(0)
                for i in range(1, len(ops)): self.r |= R(i)
                if "saveexec" in op: self.w |= {("x", "exec")}
                if op.startswith(("s_addk", "s_mulk")): self.r |= R(0)
        else:
            raise ValueError("unknown instr: " + text)

def need(p, c):
    n = 0
    vw = {x for x in p.w if x[0] in "va"}
    if p.kind == "valu":
        sw = {x for x in p.w if x[0] in "sx"}
        if c.kind == "mfma":
            if vw & c.r: n = max(n, 3 if p.dot else 2)
            if ("x", "exec") in sw: n = max(n, 4)
            if p.op.startswith("v_pk_") and "op_sel" in p.mods: n = max(n, 2)
        if c.kind == "valu":
            if vw & c.r:
                if c.dpp: n = max(n, 2)
                if c.base.startswith("v_permlane"): n = max(n, 2)
                if c.base.startswith(("v_readlane", "v_readfirstlane")): n = max(n, 1)
                if p.trans and not c.trans: n = max(n, 1)
                if p.opsel: n = max(n, 1)
            if p.dot and (vw & (c.r | c.w)):
                if c.base == p.base:
                    ab = set()
                    for i in (1, 2): ab |= regs(c.ops[i])
                    if vw & ab: n = max(n, 3)
                else: n = max(n, 3)
            if sw & c.r:
                n = max(n, 2)
                if c.base.startswith(("v_readlane", "v_writelane")): n = max(n, 4)
            if ("x", "exec") in sw:
                if c.dpp: n = max(n, 5)
                if c.base.startswith(("v_readlane", "v_readfirstlane", "v_writelane", "v_permlane")): n = max(n, 4)
        if c.kind == "vmem" and (sw & c.r): n = max(n, 5)
        if c.kind in ("vmem", "ds") and p.dot and (vw & c.r): n = max(n, 3)
        if c.kind in ("vmem", "ds") and p.trans and (vw & c.r): n = max(n, 1)
    elif p.kind == "mfma":
        if c.kind == "mfma":
            if p.D & (c.A | c.B): n = max(n, 10 if p.sgemm else 8)
            if p.D & c.C:
                if p.sgemm:
                    if c.sgemm and p.D != c.C: n = max(n, 8)
                else:
                    if c.sgemm or p.D != c.C or p.op != c.op: n = max(n, 6)
            if (p.D & c.D) and not (p.D & c.C): n = max(n, 10 if p.sgemm else 8)
        elif c.kind == "valu":
            if p.D & (c.r | c.w): n = max(n, 10 if p.sgemm else 8)
            if (not p.sgemm) and (p.C & c.w): n = max(n, 3)
        elif c.kind in ("vmem", "ds"):
            if p.D & (c.r | c.w): n = max(n, 10 if p.sgemm else 8)
    elif p.kind == "salu":
        if ("x", "m0") in p.w and c.kind == "vmem" and c.lds: n = max(n, 1)
    elif p.kind == "vmem":
        if p.wide and (p.wide & c.w):
            n = max(n, 2 if c.kind in ("valu", "mfma") else 1)
    return n

MAXD = 10

def fix(lines, verbose=False):
    ins = [I(l) for l in lines]
    total = 0
    start = 0
    while True:
        labels = {x.label: i for i, x in enumerate(ins) if x.label}
        jumps = {}
        for i, x in enumerate(ins):
            if x.target: jumps.setdefault(labels[x.target], []).append(i)
        def preds(i):
            out = []
            if i > 0 and ins[i - 1].op not in ("s_branch", "s_endpgm", "s_setpc_b64"): out.append(i - 1)
            out += jumps.get(i, [])
            return out
        changed = False
        for i in range(start, len(ins)):
            c = ins[i]
            if c.op is None or c.kind == "salu": continue
            worst = 0; why = None
            stack = [(p, 0) for p in preds(i)]
            seen = {}
            while stack:
                k, d = stack.pop()
                if d >= MAXD or seen.get(k, 99) <= d: continue
                seen[k] = d
                p = ins[k]
                if p.op is not None:
                    nn = need(p, c) - d
                    if nn > worst: worst, why = nn, p.text
                for q in preds(k): stack.append((q, d + p.states))
            if worst > 0:
                if verbose: print(f"nop {worst}: [{why.strip()}] -> [{c.text.strip()}]")
                ins.insert(i, I(f"s_nop {worst-1}"))
                total += worst
                changed = True
                start = i + 1
                break
        if not changed:
            if start == 0: break
            start = 0
    return [x.text for x in ins], total
```

```python
import sys
sys.path.insert(0, "gen")
from common import *
import hazard

OPT = dict(stage="F", stamps=0, verbose=0, pf=1, fixpk=1, grp=2, oearly=0, pf2=0, pfa=1, lcl=1, cw=3, noclr=0, pfl=0, pfk=0, pfo=1, tpf=0, gord=0, pdn=0, uni=1, ipf=4, ipn=8, kf=3, pfe=0, wb=0, lfl=1, b13=1, gw=0, slp2=1, slpk=2, slpf=2, e1="sc1", e2="sc1", pfs=15, woa1=9, osc="", gua=2, kstr=128, slp2a=8, slpka=10, slpfa=28, xre=1, e3="sc1", e4="sc1", mid=1, hoist=2, oup=8, opos=0, ol="sc1", gdm=3, kpre=0, clr=1, ev1=2, ev2=4, wdp=2, rsp=3, csp=1, pfi=5, xf=4, pfw=0, nowt=0, wrot=1, loc=3, gtr=1, nogu=0, noout=0, rot=1, pfg=0, dense=0, slpg=6, ring=4, lead=2)
for kv in sys.argv[2:]:
    k, v = kv.split("=")
    OPT[k] = int(v) if v.lstrip("-").isdigit() else v
STAGE = OPT["stage"]

GS, E1, E2, E3R, E4 = 131072, 0, 81920, 90112, 100352
FL, E3K, WOD, STAMP, GUW, DUMP = 0x400000, 0x408000, 0x430000, 0x500000, 0x600000, 0x1000000
KSTR = OPT["kstr"]; KREP = 128 * KSTR
SLOT = 40960
SB = 122880
QB = SB - 2816; TSTR = 12672; PITCH = 176
KB = QB + TSTR; VB = QB + 2 * TSTR
STATS = 30848; ZR = 31488
WOB = 40960
GU = SB; UPOFF = 10304
MODE = 31560
RDF = 31568
WIN = SB + 20736
EX = 20480
X, W, WO, WS, OUT, DBG, GATE, UP, DOWN, WR = 4, 8, 12, 16, 20, 24, 28, 32, 36, 40
sWV, sRB, sHG, sROW0, sJ, sU, sT, sGRP, sH160, sBUD = 44, 45, 46, 47, 48, 49, 50, 51, 52, 53
SRDSZ = {X: 2048 * 1280, W: 640 * 3840, WO: 640 * 1280, WS: 1 << 28, OUT: 2048 * 1280, DBG: 256,
         GATE: 640 * 3072, UP: 640 * 3072, DOWN: 1536 * 1280, WR: 1280}
BUDGET = 4000
DPPM = "row_mask:0xf bank_mask:0xf"
ONES = 0x3F803F80

a = Asm()
def S(d): return f"s[{d}:{d+3}]"
def V(d, n=1): return f"v{d}" if n == 1 else f"v[{d}:{d+n-1}]"
def srdc(*ds):
    for d in ds:
        a(f"s_mov_b32 s{d+2}, {SRDSZ[d]:#x}\ns_mov_b32 s{d+3}, 0x20000")
def execset(m):
    if m == -1: a("s_mov_b64 exec, -1")
    elif m < (1 << 31) : a(f"s_mov_b64 exec, {m:#x}")
    else: a(f"s_mov_b32 exec_lo, {m & 0xffffffff:#x}\ns_mov_b32 exec_hi, {m >> 32:#x}")
def mfma(d, A, B, C=None):
    c = V(d, 4) if C is None else (C if isinstance(C, str) else V(C, 4))
    a(f"v_mfma_f32_16x16x32_bf16 {V(d,4)}, {V(A,4)}, {V(B,4)}, {c}")

sMODE = 63
DEFER = []
def lst(text, on=1):
    if not on: a(text.replace("{F}", " sc1")); return
    l = a.label("gl")
    a(f"s_cmp_eq_u32 s{sMODE}, 1\ns_cbranch_scc0 {l}g")
    a(text.replace("{F}", "")); a(f"{l}b:")
    DEFER.append(f"{l}g:\n" + text.replace("{F}", " sc1") + f"\ns_branch {l}b")
def deferred():
    for t in DEFER: a(t)
    DEFER.clear()

class Cnt:
    def __init__(s, name, mx): s.n = 0; s.name = name; s.mx = mx; s.done = 0
    def __call__(s, text): a(text); s.n += 1; return s.n
    def wait(s, i):
        if i <= s.done: return
        k = min(s.mx, s.n - i); a(f"s_waitcnt {s.name}({k})"); s.done = s.n - k
    def reset(s): s.n = 0; s.done = 0

NST = 16
def stamp(i):
    if OPT["stamps"] == 1 or (OPT["stamps"] and i == 0): a(f"s_memtime s[{66+2*i}:{67+2*i}]")
def stamp2(i, reg, val):
    if OPT["stamps"] == 2:
        l = a.label("st")
        a(f"s_cmp_eq_u32 s{reg}, {val}\ns_cbranch_scc0 {l}\ns_memtime s[{66+2*i}:{67+2*i}]\n{l}:")
def stamp3(reg, n):
    if OPT["stamps"] == 3:
        e = a.label("s3e")
        for i in range(n):
            l = a.label("st")
            a(f"s_cmp_eq_u32 s{reg}, {i}\ns_cbranch_scc0 {l}\ns_memtime s[{68+2*i}:{69+2*i}]\ns_branch {e}\n{l}:")
        a(e + ":")
def stampx(i):
    if OPT["stamps"] == 3: a(f"s_memtime s[{66+2*i}:{67+2*i}]")
def dump_stamps(role):
    if not OPT["stamps"]: return
    execset(-1)
    a("s_memrealtime s[62:63]\ns_waitcnt lgkmcnt(0)\nv_mov_b32 v2, 0")
    a("v_writelane_b32 v2, s98, 0\nv_writelane_b32 v2, s62, 1")
    for i in range(1, NST):
        a(f"s_sub_u32 s3, s{66+2*i}, s66\nv_writelane_b32 v2, s3, {1+i}")
    a(f"s_lshl_b32 s3, s2, 9\ns_add_u32 s3, s3, {STAMP + 256*role}\nv_lshlrev_b32 v3, 2, v0")
    execset(-1)
    a(f"buffer_store_dword v2, v3, {S(WS)}, s3 offen")

a(HEADER.rstrip())
a("; @launch grid=(256,1,1) block=(512,1,1) lds=163840")
a('.amdgcn_target "amdgcn-amd-amdhsa--gfx950"')
K = NAME + "_kernel"
kernel_begin(a, K)
body0 = len(a.lines)
if OPT["ipf"] == 5:
    a("s_lshr_b32 s3, s2, 8\ns_cbranch_scc1 L_end\ns_load_dwordx4 s[92:95], s[0:1], 0\ns_load_dwordx2 s[96:97], s[0:1], 80\ns_getpc_b64 s[100:101]\nL_pc:")
    a("s_lshr_b32 s3, s2, 3\ns_mul_i32 s3, s3, 6\nv_min_u32 v2, 5, v0\nv_add_lshl_u32 v2, v2, s3, 7\nv_min_u32 v2, L_end-L_pc, v2\nv_mov_b32 v3, s101")
    a("v_add_co_u32 v2, vcc, s100, v2\ns_mul_i32 s3, s2, 10240\nv_min_u32 v4, 79, v0\nv_addc_co_u32 v3, vcc, 0, v3, vcc\nglobal_load_dword v253, v[2:3], off")
    a("v_lshl_add_u32 v3, v4, 7, s3\ns_waitcnt lgkmcnt(0)")
    if OPT["pfe"] != 2: a("global_load_dword v253, v3, s[92:93]")
    a(f"v_min_u32 v3, {640*3840 - 128}, v3\nglobal_load_dword v253, v3, s[94:95]\nv_lshrrev_b32 v1, 6, v0")
else: a("s_cmp_ge_u32 s2, 256\ns_cbranch_scc1 L_end")
def ipf():
    a("s_getpc_b64 s[100:101]\nL_pc:")
    if OPT["ipf"] == 3:
        n = OPT["ipn"]
        a(f"s_lshr_b32 s3, s2, 1\ns_and_b32 s3, s3, 0x7c\nv_and_or_b32 v2, v0, 3, s3\nv_add_u32 v2, {n}, v2\nv_cmp_gt_u32 vcc, {n}, v0\nv_cndmask_b32 v2, v2, v0, vcc\nv_lshlrev_b32 v2, 7, v2")
    elif OPT["ipf"] == 4:
        n = OPT["ipn"]
        a(f"s_lshr_b32 s3, s2, 3\ns_mul_i32 s3, s3, 5\ns_add_u32 s3, s3, {n}\nv_and_b32 v2, 7, v0\nv_min_u32 v2, 4, v2\nv_add_u32 v2, s3, v2\nv_cmp_gt_u32 vcc, {n}, v0\nv_cndmask_b32 v2, v2, v0, vcc\nv_lshlrev_b32 v2, 7, v2")
    else: a("v_lshlrev_b32 v2, 7, v0")
    a("v_min_u32 v2, L_end-L_pc, v2\nv_mov_b32 v3, s101")
    a("v_add_co_u32 v2, vcc, s100, v2\nv_lshrrev_b32 v1, 6, v0\nv_addc_co_u32 v3, vcc, 0, v3, vcc\nglobal_load_dword v253, v[2:3], off")
for i, (d, off) in enumerate(((X, 0), (WS, 80), (W, 8), (WO, 16), (OUT, 64), (DBG, 72), (GATE, 40), (UP, 48), (DOWN, 56), (WR, 32))):
    if i == OPT["kf"] and OPT["ipf"] in (2, 3, 4): ipf()
    a(f"s_load_dwordx2 s[{d}:{d+1}], s[0:1], {off}")
if OPT["stamps"]:
    a("s_memrealtime s[98:99]")
    for i in range(NST): a(f"s_memtime s[{66+2*i}:{67+2*i}]")
if OPT["ipf"] < 2: a("v_lshrrev_b32 v1, 6, v0")
a(f"s_and_b32 s{sJ}, s2, 7\ns_lshr_b32 s{sU}, s2, 3")
a(f"v_readfirstlane_b32 s{sWV}, v1")
if OPT["ipf"] == 1:
    a(f"s_cmp_ge_u32 s{sWV}, 4\ns_cbranch_scc1 L_ipf")
    ipf(); a("L_ipf:")
a("v_and_b32 v0, 63, v0")
a(f"s_lshr_b32 s{sRB}, s{sU}, 3\ns_lshl_b32 s3, s{sJ}, 2\ns_add_u32 s{sRB}, s{sRB}, s3\ns_and_b32 s{sHG}, s{sU}, 7")
a(f"s_lshr_b32 s{sROW0}, s{sRB}, 1\ns_lshl_b32 s{sROW0}, s{sROW0}, 7\ns_and_b32 s3, s{sRB}, 1\ns_add_u32 s{sROW0}, s{sROW0}, s3")
a(f"s_mul_i32 s{sH160}, s{sHG}, 160\ns_and_b32 s{sT}, s{sWV}, 3")
a(f"s_lshl_b32 s{sGRP}, s{sRB}, 17\ns_mov_b32 s{sBUD}, {BUDGET}")
srdc(X, W)
a(f"s_cmp_ge_u32 s{sWV}, 4\ns_cbranch_scc0 L_cons")

aQl0, aQl1, aQh0, aQh1, aK0, aK1, aV, aBIAS, aL16 = 200, 201, 202, 203, 204, 205, 206, 208, 238
sE1T, sE1S = 54, 55
def att_setup():
    a("v_and_b32 v1, 15, v0\nv_lshrrev_b32 v2, 4, v0")
    a(f"s_add_u32 s3, s{sT}, 1\ns_mul_i32 s3, s3, {16*PITCH}\ns_lshr_b32 s100, s{sWV}, 2\ns_mul_i32 s1, s100, 80\ns_add_u32 s3, s3, s1")
    a(f"s_mov_b32 s0, {PITCH}\ns_add_u32 s1, s3, {QB}\nv_mov_b32 v3, s1\nv_mad_u32_u24 v3, v1, s0, v3")
    a(f"v_lshl_add_u32 v4, v2, 3, v3\nv_add_u32 v5, 32, v3\nv_mov_b32 v6, {ZR}")
    a("s_mov_b32 vcc_lo, 0x00ff00ff\ns_mov_b32 vcc_hi, 0x00ff00ff")
    a(f"v_cndmask_b32 v{aQl0}, v6, v4, vcc\nv_cndmask_b32 v{aQh0}, v4, v6, vcc")
    a("s_mov_b64 vcc, 0xff")
    a(f"v_cndmask_b32 v{aQl1}, v6, v5, vcc")
    a("s_mov_b64 vcc, 0xff00")
    a(f"v_cndmask_b32 v{aQh1}, v6, v5, vcc")
    a("v_bfe_u32 v3, v0, 2, 1\nv_and_b32 v4, 3, v0\nv_lshlrev_b32 v4, 1, v4\nv_lshl_add_u32 v3, v3, 3, v4\nv_bfe_u32 v4, v0, 3, 1\nv_add_u32 v3, v3, v4")
    a(f"s_add_u32 s1, s3, {KB - 8*PITCH}\nv_mov_b32 v4, s1\nv_mad_u32_u24 v3, v3, s0, v4")
    a(f"v_lshl_add_u32 v{aK0}, v2, 3, v3\nv_add_u32 v{aK1}, 32, v3")
    a("v_bfe_u32 v3, v0, 4, 1\nv_lshlrev_b32 v3, 3, v3\nv_lshrrev_b32 v7, 5, v0\nv_add_u32 v7, v7, v3")
    a("v_bfe_u32 v4, v0, 2, 2\nv_lshl_add_u32 v3, v4, 1, v7")
    a(f"s_add_u32 s1, s3, {VB - 8*PITCH}\nv_mov_b32 v4, s1\nv_mad_u32_u24 v3, v3, s0, v4\nv_and_b32 v4, 3, v0\nv_lshl_add_u32 v{aV}, v4, 3, v3")
    a("v_and_b32 v3, 7, v0\nv_sub_u32 v7, v7, v3\nv_subrev_u32 v7, 1, v7")
    a(f"s_lshr_b32 s1, s{sRB}, 1\ns_or_b32 s1, s1, s{sT}\ns_cmp_eq_u32 s1, 0\ns_cselect_b32 vcc_lo, 0x000000ff, 0\ns_cselect_b32 vcc_hi, 0x000000ff, 0")
    a("v_mov_b32 v3, 64\nv_cndmask_b32 v7, v7, v3, vcc\nv_mov_b32 v4, 0\nv_mov_b32 v5, 0xf149f2ca")
    for r in range(4):
        a(f"v_add_u32 v3, {2*r}, v7\nv_cmp_gt_u32 vcc, 8, v3\nv_cndmask_b32 v{aBIAS+r}, v5, v4, vcc")
    a(f"v_lshlrev_b32 v{aL16}, 4, v0")
    a(f"s_mul_i32 s{sE1T}, s{sT}, 20480\ns_add_u32 s{sE1T}, s{sE1T}, s{sGRP}\ns_mul_i32 s3, s{sHG}, 2560\ns_add_u32 s{sE1S}, s{sE1T}, s3\ns_mul_i32 s3, s100, 1280\ns_add_u32 s{sE1S}, s{sE1S}, s3")

vW, vX, vXL, vSUM, vXD, vSTW = 16, 20, 23, 24, 32, 44
vWS, vWD, WT = 45, 46, 48
sSLOT, sCW, sCX, sLW, sLX, sW, sW2, sX, sRD, sI = 56, 57, 58, 59, 60, 61, 62, 63, 64, 65
vGL, vGS, vK8, vFL, vFLA = 117, 118, 242, 250, 251
GUT, RAW = 176, 128
sSL, sGL, sGS, sEVL = 42, 41, 40, 101
KPRE = OPT["kpre"]
a("s_setprio 2")
a(f"s_lshl_b32 s54, s{sT}, 3\ns_add_u32 s54, s54, 8\ns_sub_u32 s55, s{sROW0}, 32")
a("v_lshrrev_b32 v1, 3, v0\nv_add_u32 v1, s54, v1\nv_lshrrev_b32 v2, 1, v1\nv_xor_b32 v2, v2, v0\nv_and_b32 v2, 7, v2")
a(f"v_lshlrev_b32 v{vSTW}, 3, v1\nv_lshl_add_u32 v1, v1, 1, s55\nv_mul_i32_i24 v1, 1280, v1")
a(f"v_lshl_add_u32 v{vX}, v2, 4, v1\nv_add_u32 v{vX+1}, 81920, v{vX}\nv_add_u32 v{vX+2}, 163840, v{vX}")
a(f"s_add_u32 s{sCW}, s{sT}, 3\ns_and_b32 s{sCW}, s{sCW}, 3\ns_lshl_b32 s54, s{sCW}, 6\ns_lshl_b32 s{sCW}, s{sCW}, 10")
a(f"s_lshl_b32 s{sCX}, s{sT}, 10\ns_add_u32 s{sCX}, s{sCX}, 31744")
a(f"s_lshr_b32 s3, s{sHG}, {2 if OPT['rot'] else 3}\ns_lshl_b32 s{sX}, s3, 7\ns_mul_i32 s3, s3, 245760\ns_add_u32 s{sW}, s{sH160}, s3\ns_add_u32 s{sW2}, s{sW}, 122880")
a(f"s_mov_b32 s{sSLOT}, {3*SLOT}\ns_add_u32 s{sLW}, s{sCW}, {3*SLOT}\ns_add_u32 s{sLX}, s{sCX}, {3*SLOT}")
a("s_mov_b32 s55, -30\ns_mov_b32 s43, 1120")
def udma(m0, voff, srd, soff): a(f"{m0}\nbuffer_load_dwordx4 v{voff}, {S(srd)}, {soff} offen lds")
if OPT["uni"]:
    a("s_waitcnt lgkmcnt(0)")
    stamp(13)
    udma(f"s_mov_b32 m0, s{sLX}", vX, X, f"s{sX}"); udma(f"s_add_u32 m0, s{sLX}, 4096", vX + 1, X, f"s{sX}")
for j in range(4):
    a(f"s_add_u32 s3, s54, {256*j}\nv_add_u32 v1, s3, v0\nv_mul_u32_u24 v2, 34953, v1\nv_lshrrev_b32 v2, 20, v2")
    a("v_mad_i32_i24 v1, v2, s55, v1\nv_mul_u32_u24 v3, 26, v1\nv_lshrrev_b32 v3, 8, v3")
    a("v_and_b32 v4, 4, v2\nv_add_u32 v4, v4, v2\nv_bfe_u32 v2, v2, 3, 1\nv_mad_i32_i24 v2, v2, -4, v4")
    a(f"v_mul_u32_u24 v2, 3840, v2\nv_mad_u32_u24 v2, v3, s43, v2\nv_lshl_add_u32 v{vW+j}, v1, 4, v2")
    if OPT["uni"] and j < 3:
        udma(f"s_add_u32 m0, s{sLW}, {4096*j}", vW + j, W, f"s{sW}"); udma(f"s_add_u32 m0, s{sLW}, {4096*j+15360}", vW + j, W, f"s{sW2}")
WSTEP = 245760
def dma(m0, voff, srd, soff, extra=""):
    if m0: a(m0)
    a(f"buffer_load_dwordx4 v{voff}, {S(srd)}, {soff} offen {extra}lds")
def pieces(role):
    P = []
    if role: P += [(f"s_add_u32 m0, s{sLW}, 12288", vW + 3, W, f"s{sW}"), (f"s_add_u32 m0, s{sLW}, {12288+15360}", vW + 3, W, f"s{sW2}")]
    else: P += [(f"s_add_u32 m0, s{sLX}, 8192", vX + 2, X, f"s{sX}")]
    P += [(f"s_mov_b32 m0, s{sLX}", vX, X, f"s{sX}"), (f"s_add_u32 m0, s{sLX}, 4096", vX + 1, X, f"s{sX}")]
    P += [(f"s_add_u32 m0, s{sLW}, {4096*j}", vW + j, W, f"s{sW}") for j in range(3)]
    P += [(f"s_add_u32 m0, s{sLW}, {4096*j+15360}", vW + j, W, f"s{sW2}") for j in range(3)]
    return P
def weave(P, xs, first=0):
    xs = list(xs); n = max(len(P) - first, 1)
    per = (len(xs) + n - 1) // n
    for k, pc in enumerate(P):
        if k >= first:
            for _ in range(per):
                if xs: a(xs.pop(0))
        dma(*pc)
    for o in xs: a(o)
def advance():
    a(f"s_add_u32 s{sSLOT}, s{sSLOT}, {SLOT}\ns_cmp_eq_u32 s{sSLOT}, {4*SLOT}\ns_cselect_b32 s{sSLOT}, 0, s{sSLOT}")
    a(f"s_add_u32 s{sLW}, s{sSLOT}, s{sCW}\ns_add_u32 s{sLX}, s{sSLOT}, s{sCX}")
    a(f"s_add_u32 s{sX}, s{sX}, 128\ns_cmp_eq_u32 s{sX}, 1280\ns_cselect_b32 s{sX}, 0, s{sX}\ns_cselect_b32 s100, {-10*WSTEP}, 0")
    a(f"s_add_u32 s100, s100, {WSTEP}\ns_add_u32 s{sW}, s{sW}, s100\ns_add_u32 s{sW2}, s{sW2}, s100")
def capture(fn):
    global a
    class C:
        def __init__(s): s.g = []
        def __call__(s, t=""): s.g.append(t)
        def label(s, b): return a0.label(b)
    a0 = a; a = C()
    fn()
    g = a.g; a = a0
    return g
def lsetup():
    srdc(WO, WS)
    a(f"s_and_b32 s3, s{sRB}, 7\ns_mul_i32 s3, s3, 200\ns_mul_i32 s0, s{sT}, 50\ns_add_u32 s3, s3, s0\ns_mov_b32 s1, -10")
    a("v_add_u32 v1, s3, v0\nv_mul_u32_u24 v2, 6554, v1\nv_lshrrev_b32 v2, 16, v2")
    a(f"v_lshlrev_b32 v{vWD}, 4, v1\nv_mad_i32_i24 v1, v2, s1, v1")
    a("v_lshrrev_b32 v3, 4, v2\nv_bfe_u32 v4, v2, 2, 1\nv_lshl_add_u32 v3, v3, 1, v4")
    a("v_mul_u32_u24 v4, 52, v3\nv_lshrrev_b32 v4, 8, v4\nv_bfe_u32 v5, v2, 3, 1\nv_add_u32 v4, v4, v5\nv_mul_u32_u24 v4, 20, v4")
    a("v_lshl_add_u32 v4, v3, 2, v4\nv_and_b32 v5, 3, v2\nv_add_u32 v4, v4, v5\nv_mul_u32_u24 v4, 1280, v4")
    a(f"v_lshl_add_u32 v{vWS}, v1, 4, v4\ns_lshr_b32 s3, s{sRB}, 3\ns_mul_i32 s0, s3, 204800\ns_add_u32 s0, s0, s{sH160}")
    a(f"s_mul_i32 s3, s3, 25600\ns_mul_i32 s1, s{sHG}, 102400\ns_add_u32 s1, s1, s3\ns_add_u32 s1, s1, {WOD}\nv_add_u32 v{vWD}, s1, v{vWD}\nv_add_u32 v{vWS}, s0, v{vWS}")
    srdc(OUT, DBG)
    srdc(GATE, UP, DOWN)
    att_setup()
    a(f"v_lshlrev_b32 v{vK8}, 3, v0")
    a("\n".join(f"v_mov_b32 v{r_}, 0" for r_ in (239, 240, 241, 249)))
    a(f"s_lshr_b32 s3, s{sU}, 3\ns_mul_i32 s0, s{sJ}, 3\ns_add_u32 s0, s0, s3\ns_lshl_b32 s{sSL}, s0, 3\ns_add_u32 s{sSL}, s{sSL}, s{sHG}")
    a(f"s_cmp_lt_u32 s3, 3\ns_cselect_b32 s{sSL}, s{sSL}, 192")
    a(f"s_mul_i32 s1, s{sHG}, 80\ns_lshr_b32 s3, s{sT}, 1\ns_mul_i32 s3, s3, 40\ns_add_u32 s1, s1, s3")
    a(f"s_mul_i32 s{sGL}, s1, 3072\ns_lshl_b32 s0, s0, 7\ns_add_u32 s{sGL}, s{sGL}, s0")
    a(f"s_mul_i32 s{sGS}, s{sRB}, 163840\ns_lshl_b32 s1, s1, 4\ns_add_u32 s{sGS}, s{sGS}, s1\ns_and_b32 s3, s{sT}, 1\ns_mul_i32 s3, s3, 10240")
    a(f"s_add_u32 s{sGS}, s{sGS}, s3\ns_add_u32 s{sGS}, s{sGS}, {GUW}")
    a(f"v_lshrrev_b32 v1, 3, v0\nv_and_b32 v2, 7, v0\nv_mul_u32_u24 v3, 3072, v1\nv_lshl_add_u32 v{vGL}, v2, 4, v3")
    a(f"v_mul_u32_u24 v3, 20480, v{1 if OPT['gtr'] else 2}\nv_lshl_add_u32 v{vGS}, v{2 if OPT['gtr'] else 1}, 4, v3")
    a(f"v_lshl_add_u32 v{vXL}, v0, 4, s{sCX}\nv_add_u32 v{vSTW}, {STATS}, v{vSTW}")
    a("\n".join(f"v_mov_b32 v{vSUM+i}, 0" for i in range(6)))
    a(f"s_lshl_b32 s0, s{sHG}, 7\nv_lshl_add_u32 v1, v0, 10, s0\ns_lshl_b32 s0, s{sRB}, 10\nv_and_b32 v2, 7, v0\nv_lshl_add_u32 v2, v2, 7, s0")
    a(f"v_cmp_gt_u32 vcc, 32, v0\nv_cndmask_b32 v1, v2, v1, vcc\nv_add_u32 v{vFLA}, {FL}, v1")
    a(f"s_mov_b32 s{sRD}, {3*SLOT}\ns_mov_b32 s{sI}, 0\ns_mov_b32 s43, {ONES:#x}\ns_mov_b32 s{sEVL}, 1")
def xs_read(rd, role):
    a(f"v_add_u32 v1, {rd}, v{vXL}")
    a(f"ds_read_b128 {V(vXD,4)}, v1\nds_read_b128 {V(vXD+4,4)}, v1 offset:4096")
    if role == 0: a(f"ds_read_b128 {V(vXD+8,4)}, v1 offset:8192")
def xs_ops(role):
    ops = ["s_waitcnt lgkmcnt(0)"]
    for e in range(4):
        for p in range(2 if role else 3):
            ops.append(f"v_dot2c_f32_bf16 v{vSUM+2*p}, s43, v{vXD+4*p+e}\nv_dot2c_f32_bf16 v{vSUM+2*p+1}, v{vXD+4*p+e}, v{vXD+4*p+e}")
    return ops
sWOS, sWOM = 56, 57
sWOG = 58
def wo_run(g):
    if g == 6:
        return [(f"s_lshr_b32 s3, s{sWOM}, 2\ns_add_u32 m0, s3, 16384\ns_sub_u32 s3, s3, s{sWOM}\ns_add_u32 s3, s{sWOS}, s3\ns_add_u32 s3, s3, 98304", aL16, WS, "s3")]
    if g == 5: m = f"s_mov_b32 m0, s{sWOM}\ns_add_u32 s62, s{sWOS}, 81920"
    else:
        m = f"s_add_u32 s62, s{sWOM}, s{sWOG}\ns_add_u32 m0, s62, {WOB}\ns_add_u32 s62, s{sWOS}, s{sWOG}"
        m += f"\ns_add_u32 s{sWOG}, s{sWOG}, 16384\ns_cmp_eq_u32 s{sWOG}, 81920\ns_cselect_b32 s{sWOG}, 0, s{sWOG}"
    return [(m, aL16, WS, "s62")] + [("", aL16, WS, "s62", f"offset:{1024*i} ") for i in (1, 2, 3)]
def stats_ops(role):
    n = 2 if role else 3
    ops = []
    for q in ("quad_perm:[1,0,3,2]", "quad_perm:[2,3,0,1]", "row_half_mirror"):
        ops.append("\n".join(f"v_add_f32_dpp v{vSUM+i}, v{vSUM+i}, v{vSUM+i} {q} {DPPM}" for i in range(2 * n)))
    t = ["s_mov_b32 s0, 0xbacccccd\ns_mov_b32 s1, 0x3acccccd\nv_mov_b32 v1, 0x3727c5ac"]
    for p in range(n): t.append(f"v_mul_f32 v{vSUM+2*p}, s0, v{vSUM+2*p}\nv_fma_f32 v{vSUM+2*p+1}, v{vSUM+2*p+1}, s1, v1")
    for p in range(n): t.append(f"v_fma_f32 v{vSUM+2*p+1}, -v{vSUM+2*p}, v{vSUM+2*p}, v{vSUM+2*p+1}")
    for p in range(n): t.append(f"v_max_f32 v{vSUM+2*p+1}, v{vSUM+2*p+1}, v1")
    for p in range(n): t.append(f"v_rsq_f32 v{vSUM+2*p+1}, v{vSUM+2*p+1}")
    t.append(f"v_mov_b32 v2, 0\nv_mov_b32 v3, 0\nv_and_b32 v4, 56, v0\nv_add_u32 v4, {ZR}, v4")
    ops.append("\n".join(t))
    return ops
stamp(12)
def ld_down():
    a(f"s_min_u32 s1, s{sSL}, 191\ns_mul_i32 s1, s1, 10240")
    for h in range(3):
        if h == 2: execset(0xffffffff)
        for i in range(8):
            off = 1280 * i + 512 * h
            if off < 4096: a(f"buffer_load_dwordx2 {V(RAW+16*h+2*i,2)}, v{vK8}, {S(DOWN)}, s1 offen offset:{off}")
            else: a(f"s_add_u32 s3, s1, {off & ~4095}\nbuffer_load_dwordx2 {V(RAW+16*h+2*i,2)}, v{vK8}, {S(DOWN)}, s3 offen offset:{off & 4095}")
    execset(-1)
def first_slabs(role):
    P = pieces(role)
    a("s_waitcnt lgkmcnt(0)")
    stamp(13); stampx(11)
    weave(P, []); advance()
    stampx(12)
    su = capture(lsetup)
    weave(P, su, 1); advance()
    execset((1 << 50) - 1)
    a(f"buffer_load_dwordx4 {V(WT,4)}, v{vWS}, {S(WO)}, 0 offen")
    execset(-1)
    stamp(1); stampx(14)
if OPT["uni"]:
    def own(tag):
        a(f"s_cmp_eq_u32 s{sT}, 0\ns_cbranch_scc1 L_u0{tag}")
        weave(pieces(1)[:2], []); a(f"s_branch L_u1{tag}\nL_u0{tag}:"); weave(pieces(0)[:1], []); a(f"L_u1{tag}:")
    PC = pieces(0)[1:]
    own("a"); advance()
    own("b"); weave(PC, capture(lsetup), 0); advance()
    execset((1 << 50) - 1)
    a(f"buffer_load_dwordx4 {V(WT,4)}, v{vWS}, {S(WO)}, 0 offen")
    execset(-1)
    stamp(1)
a(f"s_cmp_eq_u32 s{sT}, 0\ns_cbranch_scc1 L_ld0")
for role in (1, 0):
    P = pieces(role); N = len(P); R = f"r{role}"
    if role == 0: a("L_ld0:")
    if not OPT["uni"]: first_slabs(role)
    if role == 0 and OPT["wdp"] == 1:
        ld_down()
        weave(P[:KPRE], [])
        a(f"s_waitcnt vmcnt({N + KPRE + 25})\ns_branch L_levb{R}")
    a(f"L_ll{R}:")
    weave(P[:KPRE], [])
    a(f"s_waitcnt vmcnt({N + KPRE})\ns_cmp_eq_u32 s{sI}, s{sEVL}\ns_cbranch_scc1 L_lev{R}\nL_levb{R}:")
    a("s_barrier")
    xs_read(f"s{sRD}", role)
    weave(P[KPRE:], xs_ops(role), max(1, OPT["xf"] - KPRE - (1 - role))); advance()
    stamp3(sI, 8)
    a(f"s_add_u32 s{sRD}, s{sRD}, {SLOT}\ns_cmp_eq_u32 s{sRD}, {4*SLOT}\ns_cselect_b32 s{sRD}, 0, s{sRD}")
    a(f"s_add_u32 s{sI}, s{sI}, 1\ns_cmp_lt_u32 s{sI}, 8\ns_cbranch_scc1 L_ll{R}")
    a(f"s_lshl_b32 s{sWOM}, s{sT}, 12\ns_mul_i32 s{sWOS}, s{sHG}, 102400\ns_add_u32 s{sWOS}, s{sWOS}, s{sWOM}\ns_add_u32 s{sWOS}, s{sWOS}, {WOD}")
    a(f"s_and_b32 s{sWOG}, s{sRB}, {3 if OPT['wrot'] else 0}\ns_lshl_b32 s{sWOG}, s{sWOG}, 14")
    a(f"s_waitcnt vmcnt({N})\ns_barrier")
    stamp(2)
    xs_read(3 * SLOT, role)
    if role == 0 and OPT["pfw"]:
        a(f"s_and_b32 s3, s{sRB}, 3\ns_mul_i32 s3, s3, 5120\ns_add_u32 s3, s3, s{sWOS}\ns_add_u32 s3, s3, 81920\nv_lshlrev_b32 v2, 7, v0")
        execset((1 << 40) - 1)
        a(f"buffer_load_dword v{vFL}, v2, {S(WS)}, s3 offen")
        execset(-1)
    PW = wo_run(0) + wo_run(1) + wo_run(2)
    weave(PW[:6], xs_ops(role), 1)
    a("s_waitcnt vmcnt(12)")
    xs_read(0, role)
    weave(PW[6:], xs_ops(role) + stats_ops(role), 1)
    execset(0x0101010101010101)
    a(f"ds_write_b64 v{vSTW}, {V(vSUM,2)}\nds_write_b64 v{vSTW}, {V(vSUM+2,2)} offset:256\nds_write_b64 v4, v[2:3]")
    if role == 0: a(f"ds_write_b64 v{vSTW}, {V(vSUM+4,2)} offset:512")
    if role: a(f"s_cmp_eq_u32 s{sT}, 1\ns_cselect_b64 exec, 1, 0\nv_mov_b32 v2, s{sEVL}\nv_mov_b32 v4, {MODE}\nds_write_b32 v4, v2")
    execset(-1)
    if role: a("s_branch L_lp")
def gu_loads(w=None):
    a(f"s_cmp_lt_u32 s{sSL}, 192\ns_cbranch_scc0 L_gln\ns_bitcmp1_b32 s{sT}, 0\ns_cbranch_scc1 L_geu")
    for m in range(2):
        if m: a("L_geu:")
        for i in range(5):
            a(f"buffer_load_dwordx4 {V(GUT+4*i,4)}, v{vGL}, {S((GATE, UP)[m])}, s{sGL} offen")
            if i < 4: a(f"s_add_u32 s{sGL}, s{sGL}, {8*3072}")
        if w is not None: a(f"s_waitcnt vmcnt({w + 5})")
        if m == 0 and OPT["wdp"] == 2:
            a(f"s_cmp_eq_u32 s{sT}, 0\ns_cbranch_scc0 L_gle")
            ld_down()
        a("s_branch L_gle")
    a("L_gln:")
    if OPT["pdn"]:
        a(f"s_mul_i32 s3, s{sJ}, 245760\ns_mul_i32 s0, s{sHG}, 30720\ns_add_u32 s3, s3, s0\ns_mul_i32 s0, s{sT}, 7680\ns_add_u32 s3, s3, s0\nv_lshlrev_b32 v2, 7, v0")
        execset((1 << 60) - 1)
        a(f"buffer_load_dword v{GUT}, v2, {S(DOWN)}, s3 offen")
        execset(-1)
    if w is not None: a(f"s_waitcnt vmcnt({w + OPT['pdn']})")
    a("L_gle:")
a("L_lp:")
if OPT["gord"] == 2: gu_loads(12); a("s_waitcnt lgkmcnt(0)\ns_barrier")
else: a("s_waitcnt vmcnt(12) lgkmcnt(0)\ns_barrier")
stamp(3)
if OPT["gord"] == 1: gu_loads()
weave(wo_run(3) + wo_run(4), [])
if OPT["gord"] == 0: gu_loads()
if OPT["lfl"]:
    a(f"v_mov_b32 v1, {RDF}\nL_rdf:\nds_read_b128 v[4:7], v1\ns_waitcnt lgkmcnt(0)\nv_or3_b32 v4, v4, v5, v6\nv_or_b32 v4, v4, v7\nv_cmp_ne_u32 vcc, 0, v4")
    a(f"s_cbranch_vccz L_rdg\ns_sleep 1\ns_branch L_rdf\nL_rdg:")
    weave(wo_run(5) + wo_run(6), [])
if OPT["gord"] == 3: gu_loads()
stamp(14)
a("s_barrier")
stamp(4)
a("s_setprio 0\ns_branch L_attl")
for role in (1, 0):
    R = f"r{role}"
    a(f"L_lev{R}:")
    if role: a(f"s_cmp_eq_u32 s{sI}, 1\ns_cbranch_scc0 L_le6")
    execset((1 << 50) - 1)
    if not OPT["nowt"]: a(f"buffer_store_dwordx4 {V(WT,4)}, v{vWD}, {S(WS)}, 0 offen sc1")
    execset(-1)
    if role == 0: a(f"s_branch L_levb{R}")
    else:
        a(f"s_cmp_eq_u32 s{sT}, 1\ns_cselect_b32 s{sEVL}, 6, 0\ns_branch L_levb{R}")
        a(f"L_le6:\ns_cmp_eq_u32 s{sI}, 6\ns_cbranch_scc0 L_le7\ns_mov_b32 s{sEVL}, 7\nbuffer_load_dword v{vFL}, v{vFLA}, {S(WS)}, 0 offen sc1\ns_branch L_levb{R}")
        a(f"L_le7:\ns_waitcnt vmcnt(10)")
        a(f"L_flr:\nv_cmp_eq_u32 vcc, -1, v{vFL}\ns_cbranch_vccz L_flg\ns_sub_u32 s{sBUD}, s{sBUD}, 1\ns_cbranch_scc1 L_flx")
        a(f"s_sleep 2\nbuffer_load_dword v{vFL}, v{vFLA}, {S(WS)}, 0 offen sc1\ns_waitcnt vmcnt(0)\ns_branch L_flr")
        a(f"L_flx:\ns_mov_b32 s{sBUD}, 0\nL_flg:\ns_getreg_b32 s3, hwreg(HW_REG_XCC_ID, 0, 4)\nv_cmp_ne_u32 vcc, s3, v{vFL}")
        a(f"s_cmp_eq_u32 vcc_hi, 0\ns_cselect_b32 s{sEVL}, {OPT.get('fmode', 1)}, 0\ns_branch L_levb{R}")

ACC, XF, WF = 16, 96, 136
XF2 = 212
vAW1, vAW2, vAX0, vAX1 = 168, 169, 170, 171
ST, CS, TMP = 172, 182, 196
XR, WRF = 186, 226
vN16, vROW, vG40, vWOa, vWOb, vWOc, vRK, vSW1, vSW2, vSTR, vL512 = 239, 240, 241, 242, 243, 244, 245, 246, 247, 248, 249
sEV, sDL, sXA, sE2S, sE2L, sE3R, sE3K = 56, 57, 58, 59, 60, 61, 62
vEXR = 250
a("L_cons:")
srdc(WS, WO)
a(f"v_mov_b32 v4, -1\nv_mov_b32 v5, -1\nv_mov_b32 v6, -1\nv_mov_b32 v7, -1\nv_lshlrev_b32 v8, 4, v0")
a(f"s_lshl_b32 s0, s{sHG}, 2\ns_add_u32 s0, s0, s{sT}\ns_lshl_b32 s0, s0, 12\ns_add_u32 s{sDL}, s0, s{sGRP}")
def pf():
    a(f"s_lshl_b32 s3, s{sT}, 6\nv_add_u32 v3, s3, v0")
    a(f"s_cmp_ge_u32 s{sT}, 2\ns_cbranch_scc1 L_pfx")
    a(f"s_lshl_b32 s3, s2, 7\nv_lshl_add_u32 v3, v3, 15, s3")
    if OPT["pfk"]: a(f"v_add_u32 v3, {OPT['pfk'] << 15}, v3")
    if OPT["ipf"] != 5 or OPT["pfe"] == 1: a(f"buffer_load_dword v252, v3, {S(W)}, 0 offen")
    if OPT["pfo"]:
        a(f"s_cmp_eq_u32 s{sT}, 1\ns_cbranch_scc0 L_pfe\ns_mul_i32 s3, s2, 3200\nv_lshlrev_b32 v3, 7, v0\ns_mov_b64 exec, 0x1ffffff")
        a(f"buffer_load_dword v252, v3, {S(WO)}, s3 offen\ns_mov_b64 exec, -1")
    a("s_branch L_pfe")
    a(f"L_pfx:\ns_lshl_b32 s3, s{sJ}, 5\ns_add_u32 s3, s3, s{sU}\ns_mul_i32 s3, s3, 10240\ns_sub_u32 s3, s3, {128*128}")
    a(f"v_lshl_add_u32 v3, v3, 7, s3\ns_cmp_eq_u32 s{sT}, 3\ns_cselect_b64 exec, 0xffff, -1")
    a(f"buffer_load_dword v252, v3, {S(X)}, 0 offen\ns_mov_b64 exec, -1\nL_pfe:")
def pf2(ph):
    SA = OPT["pf2"]; A = SA * 15 // 2; lb = SA.bit_length() - 1; e = f"L_p2e{ph}"
    a(f"s_cmp_eq_u32 s{sT}, {ph}\ns_cbranch_scc0 L_p2x{ph}\ns_lshl_b32 s3, s2, 7")
    if ph: a(f"s_add_u32 s3, s3, {A << 15}")
    else: execset((1 << A) - 1)
    a(f"v_lshl_add_u32 v3, v0, 15, s3\nbuffer_load_dword v252, v3, {S(W)}, 0 offen")
    if ph and OPT["pfo"]:
        a(f"s_mul_i32 s3, s2, 3200\nv_lshlrev_b32 v3, 7, v0\ns_mov_b64 exec, 0x1ffffff\nbuffer_load_dword v252, v3, {S(WO)}, s3 offen")
    a(f"s_branch {e}\nL_p2x{ph}:\ns_cmp_eq_u32 s{sT}, {2 + ph}\ns_cbranch_scc0 {e}")
    a(f"s_lshl_b32 s3, s{sJ}, 5\ns_add_u32 s3, s3, s{sU}\ns_mul_i32 s3, s3, 10240")
    sh = 3 if ph else lb
    a(f"v_lshrrev_b32 v3, {sh}, v0\nv_mul_u32_u24 v3, 1280, v3\nv_and_b32 v9, {(1 << sh) - 1}, v0\nv_lshl_add_u32 v3, v9, 7, v3")
    if ph: a(f"s_add_u32 s3, s3, {128 * SA}"); execset(sum(((1 << min(8, 10 - SA)) - 1) << (8 * i) for i in range(8)))
    else: execset((1 << (8 * SA)) - 1)
    a(f"buffer_load_dword v252, v3, {S(X)}, s3 offen\n{e}:\ns_mov_b64 exec, -1")
if OPT["pf2"]:
    pf = lambda: pf2(1)
a("s_waitcnt lgkmcnt(0)")
if OPT["pf2"] and OPT["pfa"]: pf2(0)
if OPT["pf"] and OPT["pfl"] == 0: pf()
a(f"s_cmp_eq_u32 s{sU}, 0\ns_cselect_b32 s{sEV}, s{sT}, 0\ns_cmp_eq_u32 s{sEV}, 3\ns_cbranch_scc0 L_nrt")
a(f"v_lshlrev_b32 v3, 7, v0\ns_lshl_b32 s3, s{sJ}, 12\ns_add_u32 s3, s3, {FL}\ns_mov_b32 exec_hi, 0")
a(f"buffer_store_dwordx4 v[4:7], v3, {S(WS)}, s3 offen sc1\nbuffer_store_dwordx4 v[4:7], v3, {S(WS)}, s3 offen offset:16 sc1")
if OPT["lcl"]: a(f"buffer_store_dwordx4 v[4:7], v3, {S(WS)}, s3 offen offset:32 sc1\nbuffer_store_dwordx4 v[4:7], v3, {S(WS)}, s3 offen offset:48 sc1")
a("s_mov_b64 exec, -1")
a(f"v_mul_u32_u24 v3, {KSTR}, v0\ns_mul_i32 s3, s{sJ}, {KREP}\ns_add_u32 s3, s3, {E3K}")
a(f"buffer_store_dword v4, v3, {S(WS)}, s3 offen sc1\ns_add_u32 s3, s3, {KREP//2}\nbuffer_store_dword v4, v3, {S(WS)}, s3 offen sc1\nL_nrt:")
def clears():
    if OPT["noclr"] == 1: return
    if OPT["lcl"]:
        a(f"buffer_store_dwordx4 v[4:7], v{aL16}, {S(WS)}, s{sE1S} offen\nbuffer_store_dwordx4 v[4:7], v{aL16}, {S(WS)}, s{sE1S} offen offset:1024")
        a(f"s_lshl_b32 s0, s{sHG}, 2\ns_add_u32 s0, s0, s{sT}\ns_lshl_b32 s3, s0, 10\ns_add_u32 s1, s{sGRP}, {E3R}\ns_add_u32 s3, s3, s1")
        a(f"buffer_store_dwordx4 v[4:7], v{aL16}, {S(WS)}, s3 offen sc1\ns_lshl_b32 s3, s0, 6\ns_add_u32 s3, s3, s1\ns_add_u32 s3, s3, 32768\ns_mov_b32 exec_hi, 0")
        a(f"buffer_store_dwordx4 v[4:7], v{aL16}, {S(WS)}, s{sE1S} offen offset:2048\ns_mov_b64 exec, 0xffff")
        a(f"buffer_store_dwordx4 v[4:7], v{aL16}, {S(WS)}, s{sE2S} offen\ns_mov_b64 exec, 15")
        a(f"buffer_store_dwordx4 v[4:7], v{aL16}, {S(WS)}, s3 offen sc1\ns_mov_b64 exec, -1")
        return
    for i in range(4): a(f"buffer_store_dwordx4 v[4:7], v{aL16 if OPT['clr'] else 8}, {S(WS)}, s{sDL} offen offset:{1024*i} sc1")
if not OPT["clr"]: clears()
srdc(OUT, DBG, WR, GATE, UP, DOWN)
if OPT["tpf"]:
    sh = 20 if OPT["tpf"] == 3 else 16
    a(f"s_cmp_eq_u32 s{sT}, 3\ns_cbranch_scc0 L_tpe\nv_lshlrev_b32 v3, {sh}, v0\ns_mov_b32 s3, {GUW}")
    if OPT["tpf"] == 2: a(f"s_lshl_b64 exec, 1, s{sU}\ns_mov_b32 exec_hi, exec_lo")
    if OPT["tpf"] == 3: a("s_mov_b64 exec, 15")
    for d in (GATE, UP, DOWN, OUT): a(f"buffer_load_dword v253, v3, {S(d)}, 0 offen")
    a(f"buffer_load_dword v253, v3, {S(WS)}, s3 offen\ns_mov_b64 exec, -1\nL_tpe:")
a("v_and_b32 v1, 15, v0\nv_lshrrev_b32 v2, 4, v0")
a(f"v_mov_b32 v10, {ONES:#x}\nv_mov_b32 v11, v10\nv_mov_b32 v12, v10\nv_mov_b32 v13, v10")
a(f"s_mul_i32 s3, s{sT}, {SLOT}\ns_add_u32 s3, s3, 30720\nv_add_u32 v3, s3, v8")
a("ds_write_b128 v3, v[10:13]")
a(f"s_lshl_b32 s3, s{sT}, 5\ns_add_u32 s3, s3, s{sROW0}\nv_lshl_add_u32 v3, v1, 1, s3")
a(f"v_sub_u32 v{vRK}, 2047, v3\nv_mul_u32_u24 v{vG40}, 40, v2\nv_mul_u32_u24 v3, 1280, v3\nv_add3_u32 v{vROW}, v3, v{vG40}, s{sH160}")
att_setup()
if OPT["pf"] and OPT["pfl"] == 1: pf()
a("v_and_b32 v1, 15, v0\nv_lshrrev_b32 v2, 4, v0")
a(f"s_lshl_b32 s{sE2L}, s{sT}, 11\ns_add_u32 s{sE2L}, s{sE2L}, s{sGRP}\ns_add_u32 s{sE2L}, s{sE2L}, {E2}\ns_lshl_b32 s3, s{sHG}, 8\ns_add_u32 s{sE2S}, s{sE2L}, s3")
a(f"s_mul_i32 s{sE3R}, s{sT}, 2560\ns_add_u32 s{sE3R}, s{sE3R}, s{sH160}\ns_add_u32 s{sE3R}, s{sE3R}, s{sGRP}\ns_add_u32 s{sE3R}, s{sE3R}, {E3R}")
a(f"s_lshl_b32 s{sE3K}, s{sRB}, 2\ns_add_u32 s{sE3K}, s{sE3K}, s{sT}\ns_mul_i32 s{sE3K}, s{sE3K}, {KSTR}\ns_add_u32 s{sE3K}, s{sE3K}, {E3K}")
a(f"v_mul_u32_u24 v{vL512}, {KREP}, v0\nv_lshlrev_b32 v{vN16}, 4, v1")
a("v_lshrrev_b32 v3, 1, v1\nv_xor_b32 v3, v3, v2\nv_and_b32 v3, 7, v3\nv_lshlrev_b32 v3, 4, v3")
a(f"v_lshl_add_u32 v3, v1, 7, v3\nv_add_u32 v{vAX0}, {30720 + 3*SLOT}, v3\nv_xor_b32 v{vAX1}, 64, v{vAX0}")
a("v_lshrrev_b32 v3, 5, v0\nv_lshlrev_b32 v3, 4, v3\nv_bfe_u32 v8, v0, 4, 1\nv_lshl_add_u32 v3, v8, 2, v3\nv_bfe_u32 v8, v0, 2, 2\nv_add_u32 v3, v3, v8")
a("v_and_b32 v8, 3, v0\nv_mul_u32_u24 v8, 40, v8\ns_mov_b32 s63, 480\nv_mad_u32_u24 v9, v3, s63, v8")
a(f"s_lshl_b32 s3, s{sT}, 3\nv_add_u32 v9, {3*SLOT}, v9\nv_add_u32 v{vAW1}, s3, v9\ns_mul_i32 s63, s{sT}, 160\ns_add_u32 s63, s63, 32\nv_add_u32 v{vAW2}, s63, v9")
a(f"s_mov_b32 s63, 160\nv_mad_u32_u24 v3, v3, s63, v8\ns_bitcmp1_b32 s{sT}, 0\ns_cselect_b32 s63, 51200, 0\nv_add_u32 v{vWOa}, {WOB}, v3\nv_add_u32 v{vWOa}, s63, v{vWOa}")
a(f"s_cselect_b32 s63, 0, {WOB+30720}\nv_add_u32 v{vWOb}, s63, v3")
a(f"s_mul_i32 s63, s{sT}, 5120\ns_add_u32 s63, s63, {EX}\nv_add_u32 v{vEXR}, s63, v{aL16}\ns_xor_b32 s63, s{sT}, 1\ns_mul_i32 s63, s63, 5120\ns_add_u32 s63, s63, {EX}\nv_add_u32 v{vWOc}, s63, v{aL16}")
a(f"s_mov_b32 s63, {PITCH}\nv_mad_u32_u24 v3, v1, s63, v{vG40}\ns_add_u32 s3, s3, {QB}\nv_add_u32 v{vSW1}, s3, v3")
a(f"s_mul_i32 s3, s{sT}, {TSTR}\ns_add_u32 s3, s3, {QB+32}\nv_add_u32 v{vSW2}, s3, v3")
a(f"v_lshlrev_b32 v3, 3, v1\nv_add_u32 v{vSTR}, {STATS}, v3")
for i in range(80): a(f"v_mov_b32 v{ACC+i}, 0")
for i in range(20): a(f"v_mov_b32 v{XF+20+i}, 0")
for i in range(16): a(f"v_mov_b32 v{WF+16+i}, 0")
a(f"s_cmp_eq_u32 s{sEV}, 3\ns_cbranch_scc0 L_nr2\ns_waitcnt vmcnt({0 if OPT['clr'] else 4})")
a(f"s_lshl_b32 s3, s{sJ}, 5\nv_mov_b32 v3, s3\nv_mov_b32 v8, 1\ns_mov_b64 exec, 1\nbuffer_store_dword v8, v3, {S(DBG)}, 0 offen sc1\ns_mov_b64 exec, -1\nL_nr2:")
if OPT["pf"] and OPT["pfl"] == 2: pf()
if OPT["clr"]:
    a("v_mov_b32 v4, -1\nv_mov_b32 v5, -1\nv_mov_b32 v6, -1\nv_mov_b32 v7, -1")
    clears()
def pfg():
    a(f"s_lshr_b32 s3, s{sU}, 3\ns_cmp_lt_u32 s3, 3\ns_cbranch_scc0 L_qge\ns_mul_i32 s0, s{sJ}, 3\ns_add_u32 s0, s0, s3\ns_lshl_b32 s100, s0, 3\ns_lshl_b32 s0, s0, 7")
    a(f"s_mul_i32 s1, s{sHG}, {80*3072}\ns_add_u32 s0, s0, s1\ns_lshr_b32 s3, s{sT}, 1\ns_mul_i32 s1, s3, {64*3072}\ns_add_u32 s0, s0, s1")
    a(f"v_mul_u32_u24 v3, 3072, v0\ns_cmp_eq_u32 s3, 0\ns_cselect_b64 exec, -1, 0xffff\ns_bitcmp1_b32 s{sT}, 0\ns_cbranch_scc1 L_qgu")
    a(f"buffer_load_dword v253, v3, {S(GATE)}, s0 offen\ns_branch L_qgf\nL_qgu:\nbuffer_load_dword v253, v3, {S(UP)}, s0 offen\nL_qgf:")
    if OPT["pfg"] & 2:
        a(f"s_cmp_eq_u32 s3, 0\ns_cbranch_scc1 L_qgd\ns_add_u32 s100, s100, s{sHG}\ns_mul_i32 s100, s100, 10240\ns_and_b32 s3, s{sT}, 1\ns_mul_i32 s3, s3, 5120\ns_add_u32 s100, s100, s3")
        execset((1 << 40) - 1)
        a(f"v_lshlrev_b32 v3, 7, v0\nbuffer_load_dword v252, v3, {S(DOWN)}, s100 offen\nL_qgd:")
    a("s_mov_b64 exec, -1\nL_qge:")
if OPT["pfg"] and not OPT["pfi"]: pfg()
PFI = OPT["pfi"] if OPT["pfg"] and OPT["pfi"] else 99
vXB, vXC = 232, 233
a(f"s_lshr_b32 s{sXA}, s{sH160}, 7\ns_lshr_b32 s3, s{sHG}, 2\ns_sub_u32 s{sXA}, s{sXA}, s3\ns_and_b32 s3, s{sH160}, 127\nv_add_u32 v{vXB}, s3, v{vG40}")
a(f"s_lshl_b32 s3, s{sT}, 11\ns_add_u32 s3, s3, {30720 + 2048}\nv_and_b32 v1, 15, v0\nv_lshl_add_u32 v{vXC}, v1, 7, s3")
a(f"s_cmp_eq_u32 s{sT}, 0\ns_cselect_b32 s{sEV}, {OPT['ev1']}, {PFI}\nv_and_b32 v14, 7, v0\nv_lshlrev_b32 v14, 5, v14")
a(f"s_mov_b32 s{sI}, 0\ns_mov_b32 s{sRD}, {3*SLOT}\ns_waitcnt lgkmcnt(0)")
L = Cnt("lgkmcnt", 15)
def rdW(buf, q, ks):
    d = WF + 16 * buf + 4 * q
    reg, off = (vAW1, 160 * q) if q < 3 else (vAW2, 0)
    L(f"ds_read_b64_tr_b16 {V(d,2)}, v{reg} offset:{off + 15360*ks}")
    return L(f"ds_read_b64_tr_b16 {V(d+2,2)}, v{reg} offset:{off + 15360*ks + 3840}")
def rdX(buf, t, dst=None):
    return L(f"ds_read_b128 {V((XF+20*buf if dst is None else dst)+4*t,4)}, v{vAX0+buf} offset:{2048*t}")
def acc(q, t): return ACC + 4 * (5 * q + t)

stamp(1)
a("L_cloop:")
for q in range(3): stamp2(4 + 4 * q, sI, 4 + q)
a("s_barrier")
for q in range(3): stamp2(1 + 4 * q, sI, 3 + q)
stamp3(sI, 9)
L.reset()
ids = {}
order = [("w", 0)] + [("x", t) for t in range(5)] + [("w", q) for q in range(1, 4)]
for ph in range(2):
    buf = 1 - ph
    pend = list(order)
    n = 0
    for q in range(4):
        for t in range(5):
            if ph == 0 and n == 0:
                kd, i = pend.pop(0); ids[kd, 0, i] = rdW(0, i, 0)
            if ph == 1: L.wait(max(ids["w", 0, q], ids["x", 0, t]))
            mfma(acc(q, t), WF + 16 * buf + 4 * q, XF + 20 * buf + 4 * t)
            n += 1
            if pend:
                kd, i = pend.pop(0)
                ids[kd, ph, i] = rdW(ph, i, ph) if kd == "w" else rdX(ph, i)
            if ph == 1 and n == 10:
                a(f"s_add_u32 s3, s{sRD}, {SLOT}\ns_cmp_eq_u32 s3, {4*SLOT}\ns_cselect_b32 s3, 0, s3\ns_sub_u32 s{sDL}, s3, s{sRD}\ns_mov_b32 s{sRD}, s3")
            if ph == 1 and 11 <= n < 15:
                a(f"v_add_u32 v{vAW1+n-11}, s{sDL}, v{vAW1+n-11}")
    if ph == 0:
        for qq in range(3): stamp2(2 + 4 * qq, sI, 3 + qq)
for qq in range(3): stamp2(3 + 4 * qq, sI, 3 + qq)
a(f"s_cmp_eq_u32 s{sI}, {OPT['cw']}\ns_cbranch_scc0 L_c1\ns_waitcnt vmcnt(0)\nL_c1:")
a(f"s_cmp_eq_u32 s{sI}, s{sEV}\ns_cbranch_scc1 L_ev\nL_evb:")
a(f"s_sub_u32 s3, s{sI}, s{sXA}\ns_cmp_lt_u32 s3, 2\ns_cbranch_scc1 L_xr\nL_xrb:")
a(f"s_add_u32 s{sI}, s{sI}, 1\ns_cmp_lt_u32 s{sI}, 9\ns_waitcnt lgkmcnt(0)\ns_cbranch_scc1 L_cloop")

sM0, sM3 = 64, 56
a("s_barrier")
stamp(2); stampx(10)
L.reset()
ids = {}
later = [("w", 0, 0)] + [("x", 0, t) for t in range(5)] + [("x", 1, t) for t in range(5)]
def rd_later():
    kd, ks, i = later.pop(0)
    if kd == "w": ids[kd, ks, i] = rdW(ks, i, ks)
    elif kd == "x": ids[kd, ks, i] = rdX(ks, i, XF2 if ks else None)
    else: ids[kd, ks, i] = L(f"ds_read_b64 {V(ST+2*i,2)}, v{vSTR} offset:{128*i}")
rd_later()
for q in range(4):
    for t in range(5):
        mfma(acc(q, t), WF + 16 + 4 * q, XF + 20 + 4 * t)
        if later: rd_later()
        if q == 0 and t == 0:
            a(f"s_mov_b32 s{sM0}, 0xff00ff00\ns_mov_b32 s{sM0+1}, 0xff00ff00\ns_cmp_eq_u32 s{sT}, 0\ns_cselect_b64 s[{sM3}:{sM3+1}], 0, s[{sM0}:{sM0+1}]")
    if q == 1: later += [("w", 1, 0), ("w", 0, 1), ("w", 1, 1)] + [("s", 0, t) for t in (1, 2, 3, 4, 0)]
later += [("w", 0, 2), ("w", 1, 2), ("w", 0, 3), ("w", 1, 3)]
def fixup(q):
    ops = []
    for r in range(4): ops.append(f"v_mov_b32_dpp v{CS+r}, v{acc(q,0)+r} row_newbcast:0 {DPPM}")
    for t in (1, 2, 3, 4, 0):
        if t == 0 and q == 0: continue
        A = acc(q, t); st = V(ST + 2 * t, 2)
        ops.append(("wait", ("s", 0, t)))
        if OPT["fixpk"] == 2 or (OPT["fixpk"] == 1 and q == 3):
            for h in (0, 2): ops.append(f"v_pk_fma_f32 {V(A+h,2)}, {V(CS+h,2)}, {st}, {V(A+h,2)} op_sel_hi:[1,0,1]")
            for h in (0, 2): ops.append(f"v_pk_mul_f32 {V(A+h,2)}, {V(A+h,2)}, {st} op_sel:[0,1] op_sel_hi:[1,1]")
        else:
            for h in range(4): ops.append(f"v_fmac_f32 v{A+h}, v{CS+h}, v{ST+2*t}")
            for h in range(4): ops.append(f"v_mul_f32 v{A+h}, v{A+h}, v{ST+2*t+1}")
        ops.append(f"v_cvt_pk_bf16_f32 v{A}, v{A}, v{A+1}")
        ops.append(f"v_cvt_pk_bf16_f32 v{A+1}, v{A+2}, v{A+3}")
        reg, off = (vSW1, TSTR * q + 16 * PITCH * t) if q < 3 else (vSW2, 16 * PITCH * t)
        w = f"ds_write_b64 v{reg}, {V(A,2)} offset:{off}"
        if t == 0:
            m = sM0 if q < 3 else sM3
            ops.append(f"s_mov_b64 exec, s[{m}:{m+1}]"); ops.append(("ds", w)); ops.append("s_mov_b64 exec, -1")
        else: ops.append(("ds", w))
    return ops
def emit_op(o):
    if isinstance(o, tuple):
        if o[0] == "wait": L.wait(ids[o[1]])
        else: L(o[1])
    else: a(o)
for q in range(4):
    F = fixup(q - 1) if q > 0 else []
    per = (len(F) + 8) // 9
    for ks in range(2):
        for t in range(5):
            L.wait(max(ids["w", ks, q], ids["x", ks, t]))
            mfma(acc(q, t), WF + 16 * ks + 4 * q, (XF2 if ks else XF) + 4 * t)
            if q == 0:
                if later:
                    rd_later()
                    if not later and OPT["lfl"]:
                        a(f"s_lshl_b32 s3, s{sT}, 2\ns_add_u32 s3, s3, {RDF}\nv_mov_b32 v1, s3\nv_mov_b32 v2, 0"); L("ds_write_b32 v1, v2")
            elif (ks, t) != (0, 0):
                k = 0
                while F and (k < per or (isinstance(F[0], str) and F[0] == "s_mov_b64 exec, -1") or (k and F[0][0] == "ds")):
                    o = F.pop(0); emit_op(o)
                    if not (isinstance(o, tuple) and o[0] == "wait"): k += 1
                    if isinstance(o, str) and o.startswith("s_mov_b64 exec, s"):
                        emit_op(F.pop(0)); emit_op(F.pop(0))
    while F: emit_op(F.pop(0))
a(f"s_cmp_eq_u32 s{sT}, 3\ns_cbranch_scc1 L_nf3")
for o in fixup(3): emit_op(o)
def ldXR():
    a(f"buffer_load_dwordx4 {V(WRF,4)}, v{vG40}, {S(WR)}, s{sH160} offen\nbuffer_load_dwordx4 {V(WRF+4,4)}, v{vG40}, {S(WR)}, s{sH160} offen offset:16\nbuffer_load_dwordx2 {V(WRF+8,2)}, v{vG40}, {S(WR)}, s{sH160} offen offset:32")
a("L_nf3:\ns_waitcnt lgkmcnt(0)\ns_barrier")
stamp(3)
if OPT["xre"]: ldXR()

a("L_att:")
if STAGE == "A":
    a(f"s_lshl_b32 s3, s{sWV}, 10\nv_add_u32 v1, s3, v{aL16}\ns_mul_i32 s3, s2, 40960\ns_add_u32 s3, s3, {DUMP}")
    for i in range(5):
        a(f"ds_read_b128 v[16:19], v1 offset:{SB + 8192*i if SB + 8192*i < 65536 else 0}" if SB + 8192 * i < 65536 else f"v_add_u32 v2, {SB + 8192*i}, v1\nds_read_b128 v[16:19], v2")
        a(f"s_waitcnt lgkmcnt(0)\nbuffer_store_dwordx4 v[16:19], v1, {S(WS)}, s3 offen\ns_waitcnt vmcnt(0)\ns_add_u32 s3, s3, 8192")
    a("s_branch L_end")
QL, QH, K1, K2, VV, SS, MX, PP, OO, SM, ON, OT = 16, 24, 32, 40, 48, 64, 72, 76, 84, 100, 108, 8
CEXP = 0x3EA5281A
import struct, math
CEXP = struct.unpack("<I", struct.pack("<f", 20 ** -0.5 * math.log2(math.e)))[0]
def e1st(p):
    if p == 0: lst(f"buffer_store_dwordx4 {V(OT,4)}, v{aL16}, {S(WS)}, s{sE1S} offen{{F}}", OPT["loc"] & 1)
    else:
        execset(0xffff)
        lst(f"buffer_store_dwordx4 {V(OT+4,4)}, v{aL16}, {S(WS)}, s{sE1S} offen offset:1024{{F}}", OPT["loc"] & 1)
        execset(-1)
def gsync(cons):
    l = a.label("gs")
    a(f"s_cmp_eq_u32 s{sMODE}, 1\ns_cbranch_scc0 {l}g\n{l}b:")
    t = f"{l}g:\nv_mov_b32 v4, -1\nv_mov_b32 v5, -1\nv_mov_b32 v6, -1\nv_mov_b32 v7, -1\n"
    t += f"buffer_store_dwordx4 v[4:7], v{aL16}, {S(WS)}, s{sE1S} offen sc1\ns_mov_b64 exec, 0xffff\n"
    t += f"buffer_store_dwordx4 v[4:7], v{aL16}, {S(WS)}, s{sE1S} offen offset:1024 sc1\n"
    if cons: t += f"buffer_store_dwordx4 v[4:7], v{aL16}, {S(WS)}, s{sE2S} offen sc1\n"
    t += f"s_mov_b64 exec, -1\ns_lshl_b32 s0, s{sRB}, 10\ns_add_u32 s0, s0, {FL + 32}\ns_lshl_b32 s3, s{sHG}, 5\ns_add_u32 s3, s3, s{sWV}\ns_lshl_b32 s3, s3, 2\n"
    t += f"v_mov_b32 v2, s3\nv_mov_b32 v3, 1\nv_lshrrev_b32 v4, 3, v0\nv_and_b32 v5, 7, v0\nv_lshlrev_b32 v5, 2, v5\nv_lshl_add_u32 v4, v4, 7, v5\n"
    t += f"s_waitcnt vmcnt(0)\ns_mov_b64 exec, 1\nbuffer_store_dword v3, v2, {S(WS)}, s0 offen sc1\ns_mov_b64 exec, -1\n"
    t += f"{l}p:\nbuffer_load_dword v5, v4, {S(WS)}, s0 offen sc1\ns_waitcnt vmcnt(0)\nv_cmp_ne_u32 vcc, 1, v5\ns_cbranch_vccz {l}b\n"
    t += f"s_sub_u32 s{sBUD}, s{sBUD}, 1\ns_cbranch_scc1 {l}x\ns_sleep 2\ns_branch {l}p\n{l}x:\ns_mov_b32 s{sBUD}, 0\ns_branch {l}b"
    DEFER.append(t)
def attention(h0=lambda: None, h1=lambda: None, cons=1):
    L.reset()
    rid = {}
    for h in range(2):
        o = 40 * h
        L(f"ds_read_b64 {V(K1+4*h,2)}, v{aK0} offset:{o}"); L(f"ds_read_b64 {V(K1+4*h+2,2)}, v{aK1} offset:{o}")
        L(f"ds_read_b64 {V(QL+4*h,2)}, v{aQl0} offset:{o}"); rid[h, 0] = L(f"ds_read_b64 {V(QL+4*h+2,2)}, v{aQl1} offset:{o}")
    for h in range(2):
        o = 40 * h
        L(f"ds_read_b64 {V(K2+4*h,2)}, v{aK0} offset:{o + 8*PITCH}"); L(f"ds_read_b64 {V(K2+4*h+2,2)}, v{aK1} offset:{o + 8*PITCH}")
        L(f"ds_read_b64 {V(QH+4*h,2)}, v{aQh0} offset:{o}"); rid[h, 1] = L(f"ds_read_b64 {V(QH+4*h+2,2)}, v{aQh1} offset:{o}")
    a(f"v_mov_b32 v1, {MODE}"); L("ds_read_b32 v1, v1")
    h0()
    for i in range(8): a(f"v_mov_b32 v{PP+i}, 0")
    a(f"s_mov_b32 s0, {CEXP:#x}\ns_mov_b32 s100, 0x00ff00ff\ns_mov_b32 s101, 0x00ff00ff")
    for h in range(2):
        L.wait(rid[h, 0]); mfma(SS + 4 * h, K1 + 4 * h, QL + 4 * h, aBIAS)
    vid = {}
    for h in range(2):
        for p in range(2):
            d = VV + 8 * h + 4 * p; o = 40 * h + 32 * p
            L(f"ds_read_b64_tr_b16 {V(d,2)}, v{aV} offset:{o}")
            vid[h, p] = L(f"ds_read_b64_tr_b16 {V(d+2,2)}, v{aV} offset:{o + 8*PITCH}")
        if h == 0:
            for hh in range(2):
                L.wait(rid[hh, 1]); mfma(SS + 4 * hh, K2 + 4 * hh, QH + 4 * hh)
    for i in range(4): a(f"v_mov_b32 v{ON+i}, {ONES:#x}")
    for h in range(2): a(f"v_max3_f32 v{MX+h}, v{SS+4*h}, v{SS+4*h+1}, v{SS+4*h+2}")
    for h in range(2): a(f"v_max_f32 v{MX+h}, v{MX+h}, v{SS+4*h+3}")
    a(f"v_permlane32_swap_b32 v{MX}, v{MX+1}\nv_max_f32 v{MX}, v{MX}, v{MX+1}\nv_mov_b32 v{MX+1}, v{MX}")
    a(f"v_permlane16_swap_b32 v{MX}, v{MX+1}\nv_max_f32 v{MX}, v{MX}, v{MX+1}\nv_mul_f32 v{MX}, {CEXP | 0x80000000:#x}, v{MX}\nv_mov_b32 v{MX+1}, v{MX}")
    a(f"v_permlane32_swap_b32 v{MX}, v{MX+1}")
    for h in range(2):
        for r in range(4): a(f"v_fma_f32 v{SS+4*h+r}, v{SS+4*h+r}, s0, v{MX+h}")
    for i in range(8): a(f"v_exp_f32 v{SS+i}, v{SS+i}")
    a("s_mov_b64 exec, s[100:101]")
    for h in range(2):
        for e in range(2): a(f"v_cvt_pk_bf16_f32 v{PP+4*h+e}, v{SS+4*h+2*e}, v{SS+4*h+2*e+1}")
    a("s_not_b64 exec, exec")
    for h in range(2):
        for e in range(2): a(f"v_cvt_pk_bf16_f32 v{PP+4*h+2+e}, v{SS+4*h+2*e}, v{SS+4*h+2*e+1}")
    a("s_mov_b64 exec, -1")
    for h in range(2): mfma(SM + 4 * h, ON, PP + 4 * h, "0")
    h1()
    L.wait(vid[1, 1])
    a(f"v_readfirstlane_b32 s{sMODE}, v1")
    if OPT["lcl"]: gsync(cons)
    for p in range(2):
        for h in range(2): mfma(OO + 8 * h + 4 * p, VV + 8 * h + 4 * p, PP + 4 * h, "0")
    for h in range(2): a(f"v_rcp_f32 v{SM+4*h}, v{SM+4*h}")
    for p in range(2):
        for h in range(2):
            A = OO + 8 * h + 4 * p
            for e in (0, 2): a(f"v_pk_mul_f32 {V(A+e,2)}, {V(A+e,2)}, {V(SM+4*h,2)} op_sel_hi:[1,0]")
        for h in range(2):
            A = OO + 8 * h + 4 * p
            for e in range(2): a(f"v_cvt_pk_bf16_f32 v{OT+4*p+2*h+e}, v{A+2*e}, v{A+2*e+1}")
        e1st(p)
attention()
stamp(5)
if STAGE == "B":
    a("s_waitcnt vmcnt(0)\ns_branch L_end")

H, OW, OS, WOF, SND, RCV = 16, 36, 76, 116, 196, 76
RING, LEAD = OPT["ring"], OPT["lead"]
NSLOT = 10 + LEAD
sRET, sQ0, sKEY, sCM = 56, 100, 57, 64
WSP = 4
if not OPT["xre"]: ldXR()
sOW, sOS = (sE1T, 0, 1), (sE1S, 100, 101)
a(f"s_xor_b32 s3, s{sT}, 1\ns_mul_i32 s3, s3, 20480\ns_add_u32 s{sE1S}, s3, s{sGRP}\ns_and_b32 s3, s{sT}, 1\ns_mul_i32 s3, s3, 10240")
a(f"s_add_u32 s{sE1T}, s{sE1T}, s3\ns_add_u32 s{sE1S}, s{sE1S}, s3")
a(f"s_add_u32 s0, s{sE1T}, 4096\ns_add_u32 s1, s{sE1T}, 8192\ns_add_u32 s100, s{sE1S}, 4096\ns_add_u32 s101, s{sE1S}, 8192")
L.reset()
wid = {}
def rdWOf(s, f):
    reg, off = (vWOa, 5120 * s) if s < 6 else (vWOb, 5120 * (s - 6))
    d = WOF + 20 * (s % RING) + 4 * f
    L(f"ds_read_b64_tr_b16 {V(d,2)}, v{reg} offset:{off + 8*f}")
    wid[s, f] = L(f"ds_read_b64_tr_b16 {V(d+2,2)}, v{reg} offset:{off + 8*f + 1280}")
def oreg(k): return (OW if k[0] == "w" else OS) + 4 * k[1]
def ldO(k, fl="sc1"):
    so = (sOW if k[0] == "w" else sOS)[k[1] // 4]
    a(f"buffer_load_dwordx4 {V(oreg(k),4)}, v{aL16}, {S(WS)}, s{so} offen offset:{1024*(k[1]%4)} {fl}")
slot_o = [[("s", t)] * (t < 10) + [("w", t - LEAD)] * (t >= LEAD) for t in range(NSLOT)]
oord = [k for sl in slot_o for k in sl]
nE1 = 2
def xr_prep(n0):
    for i in range(10): a(f"v_lshlrev_b32 v{H+2*i}, 16, v{XR+i}\nv_and_b32 v{H+2*i+1}, 0xffff0000, v{XR+i}")
    a(f"s_mov_b32 s3, {ONES:#x}\ns_waitcnt vmcnt({n0})")
    a(f"v_mov_b32 v{WRF+10}, 0\nv_mov_b32 v{WRF+11}, 0")
    for i in range(4): a(f"v_mov_b32 v{XR+2+i}, s3")
    execset(0x1111111111111111)
    for i in range(10): a(f"v_mov_b32 v{WRF+i}, s3")
    execset(-1)
    for k in range(3): mfma(WSP, WRF + 4 * k, XR + 2, "0" if k == 0 else None)
OUP = OPT["oup"]
nO = [0]
def ldOn():
    if nO[0] < 20: ldO(oord[nO[0]], OPT["ol"].replace("plain", "")); nO[0] += 1
OE = OUP if OPT["oearly"] == 1 else OPT["oearly"]
for s_ in range(OE): ldOn()
if OPT["xre"]: xr_prep(nE1 + OE)
a("s_barrier")
stamp(6)
fr = [(s_, f) for s_ in range(RING) for f in range(5)]
perO = (len(fr) + OUP - 1) // OUP
for s_ in range(OUP - OE):
    ldOn()
    for _ in range(perO):
        if fr: rdWOf(*fr.pop(0))
for s_, f in fr: rdWOf(s_, f)
stamp(7)
if not OPT["xre"]: xr_prep(OUP)
issued = {}
def chk_cmp(t):
    r = [oreg(k) for k in slot_o[t]]
    if len(r) == 2: a(f"v_max_u32 v1, v{r[0]}, v{r[1]}\nv_cmp_eq_u32 vcc, -1, v1")
    else: a(f"v_cmp_eq_u32 vcc, -1, v{r[0]}")
def chk_a(t):
    last = max(oord.index(k) for k in slot_o[t]) + 1
    assert nO[0] >= last
    a(f"s_waitcnt vmcnt({nO[0] - last})")
    chk_cmp(t)
def chk_b(t):
    issued[t] = nO[0]
    a(f"s_cbranch_vccnz L_stub{t}\nL_go{t}:")
chk_a(0); chk_b(0)
for t in range(NSLOT):
    for f in range(5):
        if f == 5 - OPT["hoist"] and t + 1 < NSLOT:
            chk_a(t + 1)
            if not OPT["csp"]: chk_b(t + 1)
        if OPT["csp"] and f == 6 - OPT["hoist"] and t + 1 < NSLOT: chk_b(t + 1)
        if t < 10:
            L.wait(wid[t, f]); mfma(SND + 4 * f, WOF + 20 * (t % RING) + 4 * f, OS + 4 * t, "0" if t == 0 else None)
        if f in (0, 2): ldOn()
        if t >= LEAD:
            u = t - LEAD
            L.wait(wid[u, f]); mfma(H + 4 * f, WOF + 20 * (u % RING) + 4 * f, OW + 4 * u)
            if u + RING < 10: rdWOf(u + RING, f)
        if t == 10: L(f"ds_write_b128 v{vWOc}, {V(SND+4*f,4)} offset:{1024*f}")
    if t == 10:
        a("s_waitcnt lgkmcnt(0)\ns_barrier")
        L.done = L.n
        rcv = [L(f"ds_read_b128 {V(RCV+4*f,4)}, v{vEXR} offset:{1024*f}") for f in range(5)]
    if t == 0: stamp(8)
for f in range(5):
    L.wait(rcv[f])
    for e in (0, 2): a(f"v_pk_add_f32 {V(H+4*f+e,2)}, {V(H+4*f+e,2)}, {V(RCV+4*f+e,2)}")
stamp(9)
HB, D1, D2, E2D = 36, 48, 52, 56
for i in range(10): a(f"v_cvt_pk_bf16_f32 v{HB+i}, v{H+2*i}, v{H+2*i+1}")
a(f"v_mov_b32 v{HB+10}, 0\nv_mov_b32 v{HB+11}, 0")
for k in range(3):
    mfma(D2, HB + 4 * k, HB + 4 * k, "0" if k == 0 else None)
    mfma(D1, WRF + 4 * k, HB + 4 * k, "0" if k == 0 else None)
a("s_mov_b32 s0, 0x22222222\ns_mov_b32 s1, s0\ns_mov_b32 s100, 0x44444444\ns_mov_b32 s101, s100\ns_mov_b32 vcc_lo, 0x88888888\ns_mov_b32 vcc_hi, 0x88888888")
a(f"v_cndmask_b32 v{D2}, v{D2}, v{D2+1}, s[0:1]\nv_cndmask_b32 v{D2+2}, v{D2+2}, v{D2+3}, vcc\ns_or_b64 vcc, vcc, s[100:101]")
a(f"v_cndmask_b32 v{D1+2}, v{D2}, v{D2+2}, vcc\nv_mov_b32 v{D1+3}, v{WSP+1}")
execset(0xF0000F0000F0000F)
lst(f"buffer_store_dwordx4 {V(D1,4)}, v{vN16}, {S(WS)}, s{sE2S} offen{{F}}", OPT["loc"] & 2)
execset(-1)
stamp(10)
a(f"v_mov_b32 v4, 1.0\ns_mov_b32 s0, 0xbacccccd\ns_mov_b32 s1, 0x3acccccd\nv_mov_b32 v5, 0x3727c5ac\ns_mov_b32 s100, 0xfffff800")
T0, RS = 64, 2
if OPT["slp2a"]: a(f"s_sleep {OPT['slp2a']}")
a("L_e2:")
a(f"buffer_load_dwordx4 {V(E2D,4)}, v{aL16}, {S(WS)}, s{sE2L} offen sc1\nbuffer_load_dwordx4 {V(E2D+4,4)}, v{aL16}, {S(WS)}, s{sE2L} offen offset:1024 sc1")
a("s_waitcnt vmcnt(0)")
a(f"v_add_f32 v{E2D}, v{E2D}, v{E2D+4}\nv_add_f32 v{E2D+2}, v{E2D+2}, v{E2D+6}\nv_add_f32 v{E2D+3}, v{E2D+3}, v{E2D+7}\nv_add_f32 v{E2D+1}, v{E2D+1}, v{E2D+5}")
a(f"v_cmp_u_f32 vcc, v{E2D}, v{E2D}\ns_cbranch_vccnz L_e2r\nL_e2go:")
for i in (0, 2, 3, 1): a(f"v_mfma_f32_16x16x4_f32 {V(T0+4*i,4)}, v4, v{E2D+i}, 0")
a(f"v_mul_f32 v6, s0, v{T0}\nv_fma_f32 v7, v{T0+8}, s1, v5\nv_fma_f32 v7, -v6, v6, v7\nv_max_f32 v7, v7, v5\nv_rsq_f32 v{RS}, v7")
a(f"v_fma_f32 v8, v6, v{T0+12}, v{T0+4}\nv_mul_f32 v8, v8, v{RS}\nv_mul_f32 v{RS+1}, v6, v{RS}")
a(f"v_ashrrev_i32 v9, 31, v8\nv_or_b32 v9, 0x80000000, v9\nv_xor_b32 v8, v8, v9\nv_and_or_b32 v8, v8, s100, v{vRK}")
a(f"v_max_u32_dpp v9, v8, v8 row_ror:8 {DPPM}")
for k in (4, 2, 1): a(f"v_max_u32_dpp v9, v9, v9 row_ror:{k} {DPPM}")
a(f"s_cmp_eq_u32 s{sHG}, 0\ns_cselect_b64 exec, 0xff, 0")
a(f"buffer_store_dword v9, v{vL512}, {S(WS)}, s{sE3K} offen sc1")
execset(-1)
stamp(11)
a(f"v_cmp_eq_u32 s[{sCM}:{sCM+1}], v8, v9\nv_readfirstlane_b32 s{sKEY}, v9")
LN, LNB, OB = 80, 100, 112
for i in range(10): a(f"v_pk_fma_f32 {V(LN+2*i,2)}, {V(H+2*i,2)}, {V(RS,2)}, {V(RS,2)} op_sel:[0,0,1] op_sel_hi:[1,0,1]")
for i in range(10): a(f"v_cvt_pk_bf16_f32 v{LNB+i}, v{LN+2*i}, v{LN+2*i+1}")
def st40(d, va, srd, so, off, extra=""):
    a(f"buffer_store_dwordx4 {V(d,4)}, v{va}, {S(srd)}, {so} offen offset:{off}{extra}")
    a(f"buffer_store_dwordx4 {V(d+4,4)}, v{va}, {S(srd)}, {so} offen offset:{off+16}{extra}")
    a(f"buffer_store_dwordx2 {V(d+8,2)}, v{va}, {S(srd)}, {so} offen offset:{off+32}{extra}")
a(f"s_mov_b64 exec, s[{sCM}:{sCM+1}]")
st40(LNB, vG40, WS, f"s{sE3R}", 0, " sc1")
st40(HB, vG40, WS, f"s{sE3R}", 1280, " sc1")
execset(-1)
a("s_barrier")
for i in range(10): a(f"v_pk_add_f32 {V(LN+2*i,2)}, {V(LN+2*i,2)}, {V(H+2*i,2)}")
for i in range(10): a(f"v_cvt_pk_bf16_f32 v{OB+i}, v{LN+2*i}, v{LN+2*i+1}")
a(f"s_not_b64 exec, s[{sCM}:{sCM+1}]")
if not OPT["noout"]: st40(OB, vROW, OUT, "0", 0, OPT["osc"].replace("_"," "))
execset(-1)
stamp(12)
a(f"v_mov_b32 v1, {WIN}\ns_barrier\nds_read_b32 v1, v1\ns_waitcnt lgkmcnt(0)")
stamp(13)
a(f"v_readfirstlane_b32 s3, v1\ns_cmp_eq_u32 s3, s{sKEY}\ns_cbranch_scc1 L_cfin\ns_mov_b64 exec, s[{sCM}:{sCM+1}]")
st40(OB, vROW, OUT, "0", 0, OPT["osc"].replace("_"," "))
a("L_cfin:")
if OPT["stamps"]:
    a(f"s_cmp_eq_u32 s{sWV}, 0\ns_cbranch_scc0 L_end")
    dump_stamps(0)
a("s_endpgm")
a(f"L_xr:\ns_lshl_b32 s3, s3, 7\ns_sub_u32 s0, s{sRD}, s{sDL}\ns_movk_i32 s1, 0x80\nv_subrev_u32 v1, s3, v{vXB}\nv_add_u32 v2, s0, v{vXC}")
a("v_lshlrev_b32 v3, 3, v0\nv_and_b32 v3, 0x70, v3")
for i in range(5):
    a(f"v_add_u32 v4, {8*i}, v1\nv_cmp_gt_u32 vcc, s1, v4\nv_xor_b32 v4, v4, v3\nv_add_u32 v{5+i}, v4, v2\ns_mov_b64 exec, vcc")
    a(f"ds_read_b64 {V(XR+2*i,2)}, v{5+i}\ns_mov_b64 exec, -1")
a("s_branch L_xrb")
a("L_ev:")
if PFI < 99:
    a(f"s_cmp_eq_u32 s{sI}, {PFI}\ns_cbranch_scc0 L_ev1")
    pfg()
    a("s_branch L_evb\nL_ev1:")
a(f"s_cmp_eq_u32 s{sI}, {OPT['ev1']}\ns_cbranch_scc0 L_ev2\ns_mov_b32 s{sEV}, {OPT['ev2']}")
a(f"buffer_load_dword v15, v14, {S(DBG)}, 0 offen sc1\ns_branch L_evb")
a(f"L_ev2:\ns_waitcnt vmcnt(0)\nv_cmp_ne_u32 vcc, 1, v15\ns_cbranch_vccz L_ev3\ns_sub_u32 s{sBUD}, s{sBUD}, 1\ns_cbranch_scc1 L_ev3")
a(f"s_sleep 4\nbuffer_load_dword v15, v14, {S(DBG)}, 0 offen sc1\ns_branch L_ev2")
a(f"L_ev3:\ns_mov_b32 s{sEV}, {PFI}\ns_lshl_b32 s3, s{sRB}, 3\ns_add_u32 s3, s3, s{sHG}\ns_lshl_b32 s3, s3, 7\ns_add_u32 s3, s3, {FL}\ns_getreg_b32 s0, hwreg(HW_REG_XCC_ID, 0, 4)\nv_mov_b32 v15, s0\nv_mov_b32 v14, 0")
a(f"s_mov_b64 exec, 1\nbuffer_store_dword v15, v14, {S(WS)}, s3 offen sc1\ns_mov_b64 exec, -1\ns_branch L_evb")
deferred()
a("L_e2r:")
a(f"s_sub_u32 s{sBUD}, s{sBUD}, 1\ns_cbranch_scc1 L_e2x\ns_sleep {OPT['slp2']}\ns_branch L_e2\nL_e2x:\ns_mov_b32 s{sBUD}, 0\ns_branch L_e2go")
for G in range(NSLOT):
    a(f"L_stub{G}:\ns_sub_u32 s{sBUD}, s{sBUD}, 1\ns_cbranch_scc1 L_stx{G}")
    for G2 in range(G, min(G + OPT["rsp"], NSLOT)):
        for k in slot_o[G2]:
            if oord.index(k) < issued[G]: ldO(k)
    a("s_waitcnt vmcnt(0)")
    chk_cmp(G)
    a(f"s_cbranch_vccnz L_stub{G}\ns_branch L_go{G}\nL_stx{G}:\ns_mov_b32 s{sBUD}, 0\ns_branch L_go{G}")

a("L_attl:")
def hk0():
    if not OPT["lfl"]: weave(wo_run(5) + wo_run(6), [])
    if OPT["wdp"] == 3:
        a(f"s_cmp_lt_u32 s{sSL}, 192\ns_cselect_b32 s3, s{sT}, 1\ns_cmp_eq_u32 s3, 0\ns_cbranch_scc0 L_hkd")
        ld_down(); a("L_hkd:")
attention(hk0, cons=0)
stamp(5)
nst = 2
sWIN, sXS, sA = 57, 58, 60
GF, XS, WP, AC = 16, 96, 176, 224
vGU, vE4, vXS, vKP = 240, 241, 243, 244
a(f"s_cmp_lt_u32 s{sSL}, 192\ns_cbranch_scc1 L_m12\ns_waitcnt vmcnt({nst + (OPT['pdn'] if OPT['gord'] == 3 else 0)})\ns_barrier")
stamp(6)
a(f"s_cmp_eq_u32 s{sT}, 0\ns_cbranch_scc1 L_fin0")
if OPT["wb"] & 3:
    a(f"s_lshl_b32 s3, s{sHG}, 2\ns_add_u32 s3, s3, s{sT}\ns_cmp_eq_u32 s3, 29\ns_cbranch_scc0 L_end\ns_barrier")
    if OPT["wb"] & 1: a("buffer_wbl2 sc1")
    if OPT["wb"] & 2: a("s_barrier\nbuffer_wbl2 sc1")
a("s_endpgm")
a(f"L_m12:\ns_waitcnt vmcnt({nst + (5 if OPT['gord'] == 3 and OPT['wdp'] != 3 else 0)})\ns_barrier")
stamp(6)
a(f"s_waitcnt vmcnt({0 if OPT['gw'] else nst})")
if OPT["gtr"]:
    a("v_and_b32 v1, 7, v0\nv_lshrrev_b32 v2, 3, v0\nv_lshl_add_u32 v1, v1, 3, v2\nv_lshlrev_b32 v1, 2, v1")
    for i in range(20): a(f"ds_bpermute_b32 v{GUT+i}, v1, v{GUT+i}")
    t = [f"s_waitcnt lgkmcnt({min(15, 16 - 4*i)})\n" for i in range(5)]
else: t = [""] * 5
if not OPT["nogu"]: lst("\n".join(t[i] + f"buffer_store_dwordx4 {V(GUT+4*i,4)}, v{vGS}, {S(WS)}, s{sGS} offen offset:{128*i}{{F}}" for i in range(5)), OPT["loc"] & 4)
def perms():
    a("s_mov_b32 s0, 0x05040100\ns_mov_b32 s1, 0x07060302")
    for h in range(3):
        if not OPT["wdp"]: a(f"s_waitcnt vmcnt({16 - 8*h})")
        for pr in range(4):
            for c in range(4):
                a(f"v_perm_b32 v{WP+16*h+4*pr+c}, v{RAW+16*h+4*pr+2+(c>>1)}, v{RAW+16*h+4*pr+(c>>1)}, s{c&1}")
a(f"s_lshl_b32 s0, s{sRB}, 10\ns_add_u32 s0, s0, {FL + 16}\ns_lshl_b32 s3, s{sHG}, 7\ns_add_u32 s3, s3, s0\nv_mov_b32 v2, 1\nv_mov_b32 v3, s{sT}\nv_lshlrev_b32 v3, 2, v3")
a(f"s_mov_b64 exec, 1\ns_waitcnt vmcnt(0)")
lst(f"buffer_store_dword v2, v3, {S(WS)}, s3 offen{{F}}", OPT["loc"] & 4)
a("s_mov_b64 exec, -1")
a(f"s_cmp_eq_u32 s{sT}, 0\ns_cbranch_scc1 L_w4\ns_endpgm\nL_w4:")
a(f"v_mul_u32_u24 v{vKP}, {KSTR}, v0\ns_mul_i32 s59, s{sJ}, {KREP}\ns_add_u32 s59, s59, {E3K}\ns_add_u32 s43, s59, {KREP//2}")
for i in range(12): a(f"v_mov_b32 v{AC+i}, 0")
a("v_lshrrev_b32 v1, 4, v0\nv_bfe_u32 v2, v0, 2, 2\nv_lshl_add_u32 v2, v1, 3, v2\nv_and_b32 v3, 1, v0\nv_lshlrev_b32 v3, 3, v3\nv_lshl_add_u32 v2, v2, 4, v3")
a(f"v_bfe_u32 v3, v0, 1, 1\nv_mul_u32_u24 v3, {UPOFF}, v3\nv_add_u32 v3, {GU}, v3\nv_add_u32 v{vGU}, v2, v3\nv_lshlrev_b32 v{vXS}, 4, v1")
a(f"v_lshrrev_b32 v1, 3, v0\nv_lshlrev_b32 v1, 17, v1\nv_bfe_u32 v2, v0, 2, 1\nv_mul_u32_u24 v2, 12288, v2\nv_add_u32 v1, v1, v2\nv_and_b32 v2, 3, v0\nv_lshl_add_u32 v{vE4}, v2, 4, v1")
a("v_bfe_u32 v1, v0, 2, 3\nv_and_b32 v2, 3, v0\nv_lshlrev_b32 v2, 2, v2\nv_lshl_add_u32 v4, v1, 7, v2")
if OPT["wdp"]:
    a("s_mov_b32 s58, s0"); perms(); a("s_mov_b32 s0, s58")
if OPT["gdm"] == 3: a("s_barrier")
a(f"L_f2:\ns_sleep {OPT['slpg']}\nbuffer_load_dword v2, v4, {S(WS)}, s0 offen sc1\ns_waitcnt vmcnt(0)\nv_cmp_ne_u32 vcc, 1, v2\ns_cbranch_vccz L_f2g")
a(f"s_sub_u32 s{sBUD}, s{sBUD}, 1\ns_cbranch_scc0 L_f2\ns_mov_b32 s{sBUD}, 0\nL_f2g:")
a(f"s_mul_i32 s0, s{sRB}, 163840\ns_mul_i32 s1, s{sHG}, 20480\ns_add_u32 s0, s0, s1\ns_add_u32 s0, s0, {GUW}")
if OPT["gdm"] == 0: a("s_barrier")
stamp(7)
for n in range(20):
    if n and n % 4 == 0: a("s_add_u32 s0, s0, 4096")
    dma(f"s_mov_b32 m0, {GU + UPOFF*(n//10) + 1024*(n%10) - 1024*(n%4)}", aL16, WS, "s0", f"offset:{1024*(n%4)} sc1 ")
if OPT["gdm"] == 1: a("s_barrier")
if not OPT["wdp"]: ld_down()
a(f"s_lshl_b32 s{sSL}, s{sSL}, 6\ns_add_u32 s{sSL}, s{sSL}, {E4}")
if OPT["gdm"] == 2: a("s_barrier")
for s_ in range(20):
    if s_ % 2 == 0: a(f"s_waitcnt vmcnt({(0 if OPT['wdp'] else 24) + 9 - s_//2})")
    a(f"ds_read_b64_tr_b16 {V(GF+4*s_,2)}, v{vGU} offset:{512*s_}\nds_read_b64_tr_b16 {V(GF+4*s_+2,2)}, v{vGU} offset:{512*s_+64}")
if not OPT["wdp"]: perms()
a("s_waitcnt lgkmcnt(0)")
stamp(8)
a("s_barrier")
def poll(tag):
    if OPT["slpka"]: a(f"s_sleep {OPT['slpka']}")
    a(f"L_pk{tag}:\nbuffer_load_dword v2, v{vKP}, {S(WS)}, s59 offen sc1\nbuffer_load_dword v3, v{vKP}, {S(WS)}, s43 offen sc1\ns_waitcnt vmcnt(0)")
    a(f"v_max_u32 v2, v2, v3\nv_cmp_eq_u32 vcc, -1, v2\ns_cbranch_vccz L_pg{tag}\ns_sub_u32 s{sBUD}, s{sBUD}, 1\ns_cbranch_scc1 L_px{tag}")
    a(f"s_sleep {OPT['slpk']}\ns_branch L_pk{tag}\nL_px{tag}:\ns_mov_b32 s{sBUD}, 0\nL_pg{tag}:")
    for k in (8, 4, 2, 1): a(f"v_max_u32_dpp v2, v2, v2 row_ror:{k} {DPPM}")
    a("v_readlane_b32 s0, v2, 0\nv_readlane_b32 s1, v2, 16\nv_readlane_b32 s100, v2, 32\nv_readlane_b32 s101, v2, 48")
    a(f"s_max_u32 s0, s0, s1\ns_max_u32 s100, s100, s101\ns_max_u32 s{sWIN}, s0, s100")
    a(f"s_andn2_b32 s0, 2047, s{sWIN}\ns_lshr_b32 s1, s0, 7\ns_lshl_b32 s1, s1, 18\ns_and_b32 s3, s0, 1\ns_lshl_b32 s3, s3, 17\ns_add_u32 s1, s1, s3")
    a(f"s_bfe_u32 s3, s0, 0x20005\ns_mul_i32 s3, s3, 2560\ns_add_u32 s1, s1, s3\ns_add_u32 s{sXS}, s1, {E3R}")
def pubwin():
    a(f"v_mov_b32 v2, s{sWIN}\nv_mov_b32 v3, {WIN}\nds_write_b32 v3, v2\ns_waitcnt lgkmcnt(0)\ns_barrier")
poll("m")
stamp(9)
for s in range(20): a(f"buffer_load_dwordx4 {V(XS+4*s,4)}, v{vXS}, {S(WS)}, s{sXS} offen offset:{64*s} sc1")
pubwin()
GA = 4
a("L_xs:")
for s in range(20):
    if s % 4 == 0: a(f"s_waitcnt vmcnt({16 - s})")
    mfma(GA + 4 * (s % 3), XS + 4 * s, GF + 4 * s, "0" if s < 3 else None)
a(f"v_add_f32 v{GA}, v{GA}, v{GA+4}\nv_add_f32 v{GA}, v{GA}, v{GA+8}")
a(f"v_cmp_u_f32 vcc, v{GA}, v{GA}\ns_cbranch_vccnz L_xsr\nL_xsgo:")
stamp(10)
a(f"v_mul_f32 v1, 0xbfb8aa3b, v{GA}\nv_exp_f32 v1, v1\nv_mul_f32_dpp v2, v{GA}, v{GA} row_ror:8 {DPPM}\nv_add_f32 v1, 1.0, v1\nv_rcp_f32 v1, v1")
a(f"v_mul_f32 v1, v1, v2\nv_mov_b32_dpp v2, v1 quad_perm:[1,0,3,2] {DPPM}\nv_cvt_pk_bf16_f32 v1, v1, v2")
for pr in range(4): a(f"v_readlane_b32 s{sA+pr}, v1, {2*pr}")
for h in range(3):
    for pr in range(4):
        for c in range(4): a(f"v_dot2c_f32_bf16 v{AC+4*h+c}, s{sA+pr}, v{WP+16*h+4*pr+c}")
    if h == 2: execset(0xffffffff)
    if h: a(f"s_add_u32 s{sSL}, s{sSL}, {8*GS}")
    a(f"buffer_store_dwordx4 {V(AC+4*h,4)}, v{vE4}, {S(WS)}, s{sSL} offen sc1")
stamp(11)
a("L_mfin:")
if OPT["stamps"]: dump_stamps(1)
a("s_endpgm")
a(f"L_xsr:\ns_sub_u32 s{sBUD}, s{sBUD}, 1\ns_cbranch_scc1 L_xsgo")
for s in range(20): a(f"buffer_load_dwordx4 {V(XS+4*s,4)}, v{vXS}, {S(WS)}, s{sXS} offen offset:{64*s} sc1")
a("s_branch L_xs")
deferred()
a("L_fin0:")
a(f"v_mul_u32_u24 v{vKP}, {KSTR}, v0\ns_mul_i32 s59, s{sJ}, {KREP}\ns_add_u32 s59, s59, {E3K}\ns_add_u32 s43, s59, {KREP//2}")
a("s_barrier")
sCG = 56
a(f"s_lshl_b32 s{sCG}, s{sHG}, 3\ns_add_u32 s{sCG}, s{sCG}, s{sJ}")
a("v_and_b32 v1, 3, v0\nv_bfe_u32 v4, v0, 4, 1\nv_lshlrev_b32 v4, 1, v4\nv_lshl_add_u32 v4, v1, 2, v4\nv_lshrrev_b32 v1, 5, v0\nv_add_u32 v4, v4, v1")
a(f"s_lshl_b32 s3, s{sCG}, 5\nv_lshl_add_u32 v4, v4, 1, s3")
a(f"s_lshr_b32 s60, s{sCG}, 1\ns_lshl_b32 s60, s60, 17\ns_and_b32 s3, s{sCG}, 1\ns_mul_i32 s3, s3, 12288\ns_add_u32 s60, s60, s3\ns_add_u32 s60, s60, {E4}\ns_add_u32 s61, s60, 4096\ns_add_u32 s62, s60, 8192")
a("s_barrier")
poll("f")
stamp(9)
a(f"s_cmp_lt_u32 s{sCG}, 40\ns_cbranch_scc1 L_fin1")
pubwin()
if OPT["wb"] & 4: a(f"s_cmp_eq_u32 s{sHG}, 6\ns_cbranch_scc0 L_mfin\nbuffer_wbl2 sc1")
a("s_branch L_mfin\nL_fin1:")
a(f"buffer_load_ushort v5, v4, {S(WS)}, s{sXS} offen sc1\nbuffer_load_ushort v6, v4, {S(WS)}, s{sXS} offen offset:1280 sc1")
pubwin()
a(f"s_and_b32 s1, s{sWIN}, 0xfffff800\ns_ashr_i32 s3, s1, 31\ns_not_b32 s3, s3\ns_or_b32 s3, s3, 0x80000000\ns_xor_b32 s1, s1, s3\ns_mul_i32 s63, s0, 1280")
a("v_mov_b32 v7, s1\nv_mul_f32 v7, 0xbfb8aa3b, v7\nv_exp_f32 v7, v7\nv_add_f32 v7, 1.0, v7\nv_rcp_f32 v7, v7")
a("s_waitcnt vmcnt(0)")
FD = 16
if OPT["slpfa"]: a(f"s_sleep {OPT['slpfa']}")
a("L_fd:")
for i in range(12): a(f"buffer_load_dwordx4 {V(FD+4*i,4)}, v{aL16}, {S(WS)}, s{60 + i//4} offen offset:{1024*(i%4)} sc1")
a("v_lshlrev_b32 v8, 16, v5\nv_lshlrev_b32 v9, 16, v6\nv_add_f32 v8, v8, v9")
for i in range(0, 12, 2):
    a(f"s_waitcnt vmcnt({10 - i})")
    for e in (0, 2): a(f"v_pk_add_f32 {V(FD+4*i+e,2)}, {V(FD+4*i+e,2)}, {V(FD+4*i+4+e,2)}")
    if i:
        for e in (0, 2): a(f"v_pk_add_f32 {V(FD+e,2)}, {V(FD+e,2)}, {V(FD+4*i+e,2)}")
a(f"v_permlane32_swap_b32 v{FD}, v{FD+1}\nv_permlane32_swap_b32 v{FD+2}, v{FD+3}\nv_add_f32 v{FD}, v{FD}, v{FD+1}\nv_add_f32 v{FD+2}, v{FD+2}, v{FD+3}")
a(f"v_permlane16_swap_b32 v{FD}, v{FD+2}\nv_add_f32 v{FD}, v{FD}, v{FD+2}")
for k in (4, 8): a(f"v_add_f32_dpp v{FD}, v{FD}, v{FD} row_ror:{k} {DPPM}")
a(f"v_fma_f32 v8, v{FD}, v7, v8\nv_cmp_u_f32 vcc, v8, v8\ns_cbranch_vccnz L_fdr\nL_fdgo:")
a("v_cvt_pk_bf16_f32 v8, v8, v8")
execset(0x000F000F000F000F)
a(f"buffer_store_short v8, v4, {S(OUT)}, s63 offen")
stamp(11)
a("s_branch L_mfin")
a(f"L_fdr:\ns_sub_u32 s{sBUD}, s{sBUD}, 1\ns_cbranch_scc1 L_fdgo\ns_sleep {OPT['slpf']}")
a(f"buffer_load_ushort v5, v4, {S(WS)}, s{sXS} offen sc1\nbuffer_load_ushort v6, v4, {S(WS)}, s{sXS} offen offset:1280 sc1\ns_waitcnt vmcnt(0)\ns_branch L_fd")
a("L_end:\ns_endpgm")
body, nn = hazard.fix(a.lines[body0:], OPT["verbose"])
a.lines[body0:] = body
kernel_desc(a, K, 256)
open(sys.argv[1], "w").write(a.text())
print("nops inserted:", nn, "lines:", len(a.lines))
```

```python
import sys, struct, math
sys.path.insert(0, "gen")
from common import *
import hazard

OPT = dict(stage="F", stamps=0, verbose=0, nl=9, fmode=1, n0=8, na=2, nb=10, n1=0, bk=0, bv=-1, wc=1, tch=5, bud=1 << 19, kw=1, kp=3, kr=3, ks=2, ka=1, fp=2, fs=0, fa=0, f0=0, hlp=1, r2=5, e1=1, e2=4, dep=3, dep2=6, opos=1, vq=3, spf=0, pk=1, rsp=1, osc="plain",
           diag=-1, dwg=77, dwv=0, slpk=0, prio=0, ou=6, grp=0, rt=1, dbg=0, wri=5, pre=12, aprio=1, lprio=1, vprio=2, oul=5, xprio=1, cpos=1)
for kv in sys.argv[2:]:
    k, v = kv.split("=")
    assert k in OPT, k
    OPT[k] = int(v) if v.lstrip("-").isdigit() else v
STAGE = OPT["stage"]

E2, SP, RJ, STAMP, DUMP = 0x200000, 0x280000, 0x300000, 0x500000, 0x1000000
RJS = 32768
R_BASE, R_FL, R_E4, R_KEY = 4096, 12288, 16384, 21504
SLOT, S0 = 36864, 8192
PITCH = 144; TSTR = 96 * PITCH
VB = S0 + SLOT - TSTR; KB = VB - TSTR; QB = KB - TSTR
STATS, ZR = 0, 1792
MODE, KMAX, WFL, VCN, HRD, XFL = 1728, 1732, 1744, 1748, 1752, 1760
WOB = S0 + 2 * SLOT
EX = S0 + SLOT + 12288
assert ZR + 8 * PITCH + 64 <= QB
X, W, WO, WS, OUT, DBG, WR = 4, 8, 12, 16, 20, 24, 28
sWV, sJ, sU, sG, sC, sC5, sT, sB0, sBUD, sMODE, sI, sGID = range(32, 44)
KA = dict(x=44, w=46, wo=48, wr=52, gate=54, up=56, down=60, out=62, dbg=64, ws=66)
BUDGET = OPT['bud']
DPPM = "row_mask:0xf bank_mask:0xf"
ONES = 0x3F803F80
OOB = 0x80000000
def f32(x): return struct.unpack("<I", struct.pack("<f", x))[0]
CEXP = f32(20 ** -0.5 * math.log2(math.e))

a = Asm()
def S(d): return f"s[{d}:{d+3}]"
def V(d, n=1): return f"v{d}" if n == 1 else f"v[{d}:{d+n-1}]"
def mksrd(d, name, size): a(f"s_mov_b64 s[{d}:{d+1}], s[{KA[name]}:{KA[name]+1}]\ns_mov_b32 s{d+2}, {size:#x}\ns_mov_b32 s{d+3}, 0x20000")
def execset(m):
    if m == -1: a("s_mov_b64 exec, -1")
    elif m < (1 << 31): a(f"s_mov_b64 exec, {m:#x}")
    else: a(f"s_mov_b32 exec_lo, {m & 0xffffffff:#x}\ns_mov_b32 exec_hi, {m >> 32:#x}")
def smask(d, m): a(f"s_mov_b32 s{d}, {m & 0xffffffff:#x}\ns_mov_b32 s{d+1}, {m >> 32:#x}")
def lanes(f): return sum(1 << l for l in range(64) if f(l))
def mfma(d, A, B, C=None):
    c = V(d, 4) if C is None else (C if isinstance(C, str) else V(C, 4))
    a(f"v_mfma_f32_16x16x32_bf16 {V(d,4)}, {V(A,4)}, {V(B,4)}, {c}")
DEFER = []
def lst(text):
    l = a.label("gl")
    a(f"s_cmp_eq_u32 s{sMODE}, 1\ns_cbranch_scc0 {l}g")
    a(text.replace("{F}", "")); a(f"{l}b:")
    DEFER.append(f"{l}g:\n" + text.replace("{F}", " sc1") + f"\ns_branch {l}b")
def deferred():
    for t in DEFER: a(t)
    DEFER.clear()
def capture(fn):
    global a
    class C:
        def __init__(s): s.g = []
        def __call__(s, t=""): s.g.append(t)
        def label(s, b): return a0.label(b)
    a0 = a; a = C(); fn(); g = a.g; a = a0
    return g
class Cnt:
    def __init__(s, name, mx): s.n = 0; s.name = name; s.mx = mx; s.done = 0
    def __call__(s, text): a(text); s.n += 1; return s.n
    def wait(s, i):
        if i <= s.done: return
        k = min(s.mx, s.n - i); a(f"s_waitcnt {s.name}({k})"); s.done = s.n - k
    def reset(s): s.n = 0; s.done = 0
L = Cnt("lgkmcnt", 15)

NST = 13
CLK = "s_memrealtime" if OPT["rt"] else "s_memtime"
def stamp(i, lvl=1):
    if OPT["stamps"] == lvl: a(f"{CLK} s[{70+2*i}:{71+2*i}]")
def stampi(ph):
    if OPT["stamps"] == 2:
        if ph == 0: a(f"{CLK} s[94:95]")
        else: a(f"s_lshl_b32 m0, s{sI}, 1\ns_waitcnt lgkmcnt(0)\ns_movreld_b32 s70, s94")
def finish():
    a("s_branch L_dump" if OPT["stamps"] else "s_endpgm")

a(HEADER.rstrip())
a("; @launch grid=(256,1,1) block=(512,1,1) lds=163840")
if OPT["stamps"] and OPT["grp"]: a("; @groups g0:0-79:2-2 g1:80-159:2-2 g2:160-239:2-2 m7:240-255:7-7")
if OPT["stamps"] and OPT["rt"]: a("; @rt")
if OPT["stamps"] and not OPT["grp"]: a("; @groups c0:0-239:0-0 c2:0-239:2-2 h0:0-239:4-4 h1:0-239:5-5 h3:0-239:7-7 m0:240-255:0-0 m4:240-255:4-4 m7:240-255:7-7")
a('.amdgcn_target "amdgcn-amd-amdhsa--gfx950"')
K = NAME + "_kernel"
kernel_begin(a, K, OPT.get("page", 1))
body0 = len(a.lines)
NL = OPT["nl"]
a("s_load_dwordx16 s[44:59], s[0:1], 0\ns_load_dwordx8 s[60:67], s[0:1], 56")
if OPT["stamps"]: a("s_memrealtime s[98:99]\ns_memtime s[96:97]")
a(f"s_lshr_b32 s{sU}, s2, 3\ns_and_b32 s{sJ}, s2, 7\nv_readfirstlane_b32 s{sWV}, v0\ns_getpc_b64 s[100:101]")
a(f"s_mul_i32 s3, s{sU}, {NL}\nv_min_u32 v2, {NL-1}, v0\nv_add_lshl_u32 v2, v2, s3, 7")
a(f"s_cmp_ge_u32 s{sU}, 30\ns_cbranch_scc1 L_moe")
a("global_load_dword v255, v2, s[100:101]")
a(f"s_mul_i32 s{sG}, s{sU}, 26\ns_lshr_b32 s{sG}, s{sG}, 8\ns_mul_i32 s3, s{sG}, 10\ns_sub_u32 s{sC}, s{sU}, s3\ns_lshr_b32 s{sWV}, s{sWV}, 6")
a(f"s_add_u32 s3, s{sC}, s{sJ}\ns_add_u32 s3, s3, 2\ns_sub_u32 s68, s3, 10\ns_cselect_b32 s69, s3, s68")
a(f"s_mul_i32 s3, s69, 245760\ns_lshl_b32 s68, s{sC}, 7\ns_add_u32 s3, s3, s68")
a("v_lshrrev_b32 v1, 3, v0\nv_lshrrev_b32 v3, 4, v0\nv_and_b32 v2, 2, v1\nv_and_or_b32 v2, v3, 4, v2\nv_xor_b32 v2, v2, v0\nv_and_b32 v2, 7, v2")
a("v_mul_u32_u24 v4, 3840, v1\nv_lshl_add_u32 v4, v2, 4, v4\nv_add_u32 v4, s3, v4")
vX, vSUM, vXD, vSTW, vBIA, vEV, vEA = 24, 28, 36, 52, 53, 54, 55
sM, sLO, sLT, sP1, sP2 = 44, 52, 54, 55, 56
sXT, sE2L, sRJ, sNO, sSL, sXM, sXO, sLX, sRD, sPF, sSPL, sFO, sSB = range(57, 70)
sEV, sDL, sWO_ = sXM, sXO, sFO
a(f"s_mul_i32 s3, s{sWV}, 3072\ns_add_u32 m0, s3, {S0 + 12288}\nv_and_b32 v0, 63, v0\ns_and_b32 s{sT}, s{sWV}, 3")
a(f"s_lshr_b32 s3, s{sJ}, 1\ns_lshl_b32 s3, s3, 9\ns_mul_i32 s68, s{sG}, 176\ns_add_u32 s3, s3, s68\ns_and_b32 s68, s{sJ}, 1\ns_add_u32 s3, s3, s68\ns_mul_i32 s{sB0}, s3, 1280")
a(f"s_sub_u32 s{sI}, s{sWV}, 5\ns_mul_i32 s3, s{sI}, {32*2560}\ns_add_u32 s3, s3, s{sB0}\ns_sub_u32 s3, s3, {8*2560}")
a(f"v_lshrrev_b32 v1, 3, v0\nv_lshrrev_b32 v3, 4, v0\nv_xor_b32 v3, v3, v0\nv_and_b32 v3, 7, v3\nv_mul_u32_u24 v1, 2560, v1\nv_lshl_add_u32 v1, v3, 4, v1\nv_add_u32 v{vX}, s3, v1")
a(f"s_add_u32 s3, s{sI}, s{sG}\ns_cmp_eq_u32 s3, 4\ns_cselect_b32 s3, {OOB:#x}, 0")
a(f"v_xor_b32 v{vX+1}, 64, v{vX}\nv_add_u32 v{vX+1}, 20480, v{vX+1}\nv_add_u32 v{vX+2}, 40960, v{vX}\nv_add_u32 v{vX+3}, 40960, v{vX+1}\nv_or_b32 v{vX+3}, s3, v{vX+3}")
for d, sz in ((X, 2048 * 1280), (W, 640 * 3840), (WO, 640 * 1280), (WS, 1 << 28), (OUT, 2048 * 1280), (DBG, 256), (WR, 1280)): a(f"s_mov_b32 s{d+2}, {sz:#x}\ns_mov_b32 s{d+3}, 0x20000")
a("s_waitcnt lgkmcnt(0)")
stamp(0)
def mv(d, n): return f"s_mov_b64 s[{d}:{d+1}], s[{KA[n]}:{KA[n]+1}]"
a(f"global_load_lds_dwordx4 v4, s[46:47]\ns_addk_i32 m0, -256\n{mv(X, 'x')}")
a(f"global_load_lds_dwordx4 v4, s[46:47] offset:1280\ns_addk_i32 m0, -256\n{mv(OUT, 'out')}")
a(f"global_load_lds_dwordx4 v4, s[46:47] offset:2560")
for d, n in ((DBG, "dbg"), (WS, "ws"), (W, "w"), (WO, "wo"), (WR, "wr")): a(mv(d, n))
def nextslab(): a(f"s_add_u32 s{sSB}, s{sSB}, 1\ns_cmp_eq_u32 s{sSB}, 10\ns_cselect_b32 s{sSB}, 0, s{sSB}")
def advslot(d): a(f"s_add_u32 s{d}, s{d}, {SLOT}\ns_cmp_eq_u32 s{d}, {S0 + 4*SLOT}\ns_cselect_b32 s{d}, {S0}, s{d}")
def xissue():
    a(f"s_add_u32 m0, s{sSL}, s{sLX}\ns_mov_b32 exec_lo, s{sXM}")
    for i in range(4):
        a(f"buffer_load_dwordx4 v{vX+i}, {S(X)}, s{sXO} offen lds")
        if i < 3: a("s_addk_i32 m0, 1024")
        if i == 0: a("s_mov_b32 exec_lo, -1")
a(f"s_cmp_lt_u32 s{sWV}, 5\ns_cbranch_scc1 L_nx")
a(f"s_lshl_b32 s{sLX}, s{sI}, 12\ns_cselect_b32 s{sXM}, -1, 0xffffff00\ns_lshl_b32 s{sXO}, s69, 7\ns_mov_b32 s{sSL}, {S0}")
xissue()
a("L_nx:")
stamp(1)
aKe, aK4, aKx, aKy = range(200, 204)
aQe, aQx, aQy, aQ4 = 204, 206, 208, 210
aVe, aV1, aV2 = range(216, 219)
vM, aRK, aCQ, aH0s, aH0l, aOs, aOl, aWO, aOUT, aL16, vRK, aXC, XR = 220, 222, 223, 224, 225, 226, 227, 228, 232, 233, 234, 235, 236
vAW, vAX0, vAX1, vSW, vSTR = 244, 245, 246, 247, 248
WRF, WSP = 244, 252
MASK = [lanes(lambda l: 2 * r + (l >> 5) > (l & 7)) for r in range(4)]
LO = lanes(lambda l: (l & 15) < 8)
sTA, sTP, sTS = 44, 44, 45
aOl2 = XR
def suA():
    a(f"s_mov_b32 s{sBUD}, {BUDGET}\ns_mul_i32 s{sGID}, s{sJ}, 3\ns_add_u32 s{sGID}, s{sGID}, s{sG}\ns_sub_u32 s3, s{sC}, 5\ns_cselect_b32 s{sC5}, s{sC}, s3")
    a(f"s_lshl_b32 s3, s{sWV}, 2\ns_lshr_b32 s{sTA}, 0x32105454, s3\ns_and_b32 s{sTA}, s{sTA}, 7\ns_lshr_b32 s45, s{sT}, 1\ns_add_u32 s45, s45, 4")
    a(f"s_cmp_eq_u32 s{sG}, 2\ns_cselect_b32 s{sNO}, 10, 11")
    a(f"s_sub_u32 s{sXT}, 8, s{sJ}\nv_lshlrev_b32 v{aL16}, 4, v0")
    a(f"s_mul_i32 s{sE2L}, s{sGID}, 6\ns_add_u32 s{sE2L}, s{sE2L}, s{sTP}\ns_mul_i32 s{sE2L}, s{sE2L}, 2560\ns_add_u32 s{sE2L}, s{sE2L}, {E2}")
    a(f"s_lshl_b32 s{sRJ}, s{sJ}, 15\ns_add_u32 s{sRJ}, s{sRJ}, {RJ}")
    a(f"s_sub_u32 s51, 5, s{sC5}\ns_add_u32 s1, s{sC5}, 1\ns_sub_u32 s3, 15, s{sC5}\ns_cmp_le_u32 s{sC5}, 2\n"
      "s_cselect_b32 s46, 0, s3\ns_cselect_b32 s47, s51, s1\ns_cselect_b32 s48, s3, 0\ns_cselect_b32 s49, s1, s51\ns_cselect_b32 s50, 1, 0")
    a("v_and_b32 v3, 15, v0\nv_add_u32 v3, 8, v3\nv_lshrrev_b32 v4, 1, v3\nv_lshrrev_b32 v5, 5, v0\nv_xor_b32 v4, v4, v5\nv_and_b32 v4, 7, v4")
    a(f"v_lshlrev_b32 v4, 4, v4\nv_lshl_add_u32 v4, v3, 7, v4\nv_bfe_u32 v5, v0, 4, 1\nv_lshl_add_u32 v4, v5, 3, v4\ns_lshl_b32 s3, s{sTP}, 11\nv_add_u32 v{aXC}, s3, v4")
def suB():
    a(f"v_and_b32 v1, 15, v0\nv_lshrrev_b32 v2, 4, v0\nv_mov_b32 v7, {ZR}\ns_mul_i32 s0, s{sTA}, {16*PITCH}\ns_movk_i32 s1, {PITCH}")
    a("v_bfe_u32 v3, v0, 2, 1\nv_and_b32 v4, 3, v0\nv_lshlrev_b32 v4, 1, v4"); a("v_lshl_add_u32 v3, v3, 3, v4\nv_bfe_u32 v4, v0, 3, 1\nv_add_u32 v3, v3, v4")
    a(f"s_add_u32 s3, s0, {KB}\nv_mov_b32 v4, s3\nv_mad_u32_u24 v3, v3, s1, v4")
    a(f"s_add_u32 s3, s0, {QB + 8*PITCH}\nv_mov_b32 v4, s3\nv_mad_u32_u24 v4, v1, s1, v4")
    smask(52, LO)
    def kq(dK, dQ, quad, cond):
        a(quad); a(f"v_lshl_add_u32 v{dK}, v5, 3, v3\nv_lshl_add_u32 v5, v5, 3, v4")
        if cond: a(cond); a("v_cndmask_b32 v5, v7, v5, vcc")
        a(f"v_cndmask_b32 v{dQ}, v7, v5, s[52:53]\nv_cndmask_b32 v{dQ+1}, v5, v7, s[52:53]")
    kq(aKe, aQe, "v_add_u32 v5, s51, v2", None)
    kq(aKx, aQx, "v_add_u32 v5, s46, v2", "v_cmp_gt_u32 vcc, s47, v2")
    kq(aKy, aQy, "v_add_u32 v5, s48, v2\nv_min_u32 v5, 15, v5", "v_cmp_gt_u32 vcc, s49, v2")
    a("s_sub_u32 s3, s51, 1\nv_mad_u32_u24 v5, v2, 5, s3\ns_add_u32 s3, s46, 4\nv_mov_b32 v6, s3\ns_mov_b64 vcc, 0xffff\nv_cndmask_b32 v5, v5, v6, vcc")
    a(f"v_min_u32 v5, 15, v5\nv_lshl_add_u32 v{aK4}, v5, 3, v3\nv_lshl_add_u32 v5, v5, 3, v4")
    a(f"s_cmp_eq_u32 s47, 5\ns_cselect_b64 vcc, 0xff, 0\nv_cndmask_b32 v{aQ4}, v7, v5, vcc\ns_lshl_b64 vcc, vcc, 8\nv_cndmask_b32 v{aQ4+1}, v7, v5, vcc")
    for i in range(2, 6): a(f"s_bfm_b64 vcc, 8, {8*i}\nv_cndmask_b32 v{aQ4+i}, v7, v5, vcc")
def suC():
    a(f"s_mul_i32 s0, s{sTA}, {16*PITCH}\ns_movk_i32 s1, {PITCH}")
    a("v_bfe_u32 v3, v0, 2, 3\nv_lshrrev_b32 v4, 5, v0\nv_lshl_add_u32 v3, v3, 1, v4")
    a(f"s_add_u32 s3, s0, {VB}\nv_mov_b32 v4, s3\nv_mad_u32_u24 v3, v3, s1, v4\nv_and_b32 v4, 3, v0")
    smask(54, lanes(lambda l: l & 3 == 0))
    a(f"v_add_u32 v5, s51, v4\nv_lshl_add_u32 v{aVe}, v5, 3, v3\nv_add_u32 v7, 32, v{aVe}")
    a(f"s_cmp_eq_u32 s50, 1\ns_cselect_b32 s3, -1, 12\ns_cselect_b32 s56, 2, -1")
    a(f"v_add_u32 v5, s3, v4\nv_lshl_add_u32 v5, v5, 3, v3\nv_cndmask_b32 v{aV1}, v5, v7, s[54:55]\nv_add_u32 v7, 40, v7")
    a(f"v_add_u32 v5, s56, v4\nv_add_u32 v6, 10, v5\nv_cmp_gt_i32 vcc, s51, v5"); a(f"v_cndmask_b32 v5, v6, v5, vcc\nv_lshl_add_u32 v5, v5, 3, v3\nv_cndmask_b32 v{aV2}, v5, v7, s[54:55]")
    a(f"s_lshl_b32 s0, s{sTA}, 8\nv_lshrrev_b32 v4, 5, v0\nv_and_or_b32 v3, v0, 8, v4\ns_add_u32 s3, s0, {STATS + 8}\nv_lshl_add_u32 v{aRK}, v3, 4, s3")
    a(f"v_and_b32 v1, 15, v0\ns_add_u32 s3, s0, {STATS + 128 + 4}\nv_lshl_add_u32 v{aCQ}, v1, 4, s3")
    a(f"s_lshr_b32 s3, s{sB0}, 8\ns_mul_i32 s3, s3, 52429\ns_lshr_b32 s3, s3, 18\ns_lshl_b32 s0, s{sTP}, 5\ns_add_u32 s3, s3, s0\ns_sub_u32 s3, 2047, s3\nv_mad_i32_i24 v{vRK}, v1, -2, s3")
def octaddr(d, tile, rowq, extra):
    a(f"s_lshl_b32 s3, s{tile}, 4\nv_add_u32 v5, s3, v{rowq}\ns_lshl_b32 s3, s{sNO}, 3\nv_cmp_gt_u32 vcc, s3, v5")
    a(f"v_mul_u32_u24 v5, 2560, v5\nv_add3_u32 v5, v5, v{extra}, s{sB0}\nv_cndmask_b32 v{d}, v6, v5, vcc")
def suD(helper=1):
    a(f"v_lshrrev_b32 v2, 4, v0\nv_and_or_b32 v3, v0, 8, v2\nv_and_b32 v4, 0x70, v{aL16}\nv_bfrev_b32 v6, 1")
    if helper: octaddr(aOl2, sTS, 3, 4)
    octaddr(aOl, sTA, 3, 4)
    a(f"s_lshl_b32 s3, s{sC}, 7\nv_add_u32 v{aOs}, s3, v{aOl}")
    a(f"v_bfe_u32 v3, v0, 4, 1\nv_cmp_eq_u32 s[54:55], s50, v3\ns_cmp_lg_u32 s{sC5}, 0\ns_cselect_b64 s[0:1], -1, s[54:55]\ns_and_b64 vcc, vcc, s[0:1]")
    a(f"s_cmp_lg_u32 s{sC5}, 4\ns_cselect_b64 s[0:1], 0, s[54:55]\ns_andn2_b64 vcc, vcc, s[0:1]")
    a(f"v_cndmask_b32 v{aH0l}, v6, v{aOs}, vcc")
    a(f"s_cmp_le_u32 s{sC5}, 3\ns_cselect_b32 s3, 2560, 0\ns_sub_u32 s3, s3, 128\nv_mov_b32 v4, s3"); a(f"s_cmp_ge_u32 s{sC5}, 2\ns_cselect_b32 s3, 2560, 0\ns_add_u32 s3, s3, 128\nv_mov_b32 v5, s3")
    a(f"v_cndmask_b32 v4, v4, v5, s[54:55]\nv_mul_u32_u24 v3, 2560, v3\nv_sub_u32 v4, v4, v3"); a(f"v_add_u32 v4, v4, v{aOs}\nv_cndmask_b32 v{aH0s}, v6, v4, vcc")
def wlane():
    a("v_bfe_u32 v3, v0, 3, 2\nv_lshlrev_b32 v3, 2, v3\nv_and_or_b32 v3, v0, 3, v3"); a("v_lshlrev_b32 v3, 3, v3\nv_bfe_u32 v4, v0, 2, 2\nv_lshl_add_u32 v3, v4, 7, v3")
def suE(helper=1):
    a("v_and_b32 v1, 15, v0\nv_bfrev_b32 v6, 1\nv_bfe_u32 v3, v0, 4, 1\nv_lshrrev_b32 v4, 5, v0"); a(f"v_lshl_add_u32 v3, v3, 1, v4\ns_lshl_b32 s3, s{sC}, 7\nv_lshl_add_u32 v4, v3, 4, s3")
    octaddr(aOUT, sTP, 1, 4)
    wlane()
    a("v_lshrrev_b32 v2, 4, v0")
    if helper:
        a(f"s_and_b32 s3, s{sWV}, 1\ns_lshl_b32 s3, s3, 12\ns_add_u32 s3, s3, {WOB}\nv_lshl_add_u32 v4, v2, 10, v3\nv_add_u32 v{aWO}, s3, v4")
        for ct in range(1, 4): a(f"v_xor_b32 v{aWO+ct}, {32*ct}, v{aWO}")
    for r in range(4): smask(sM + 2 * r, MASK[r])
    a(f"s_movk_i32 s{sLT}, 10240\ns_mov_b32 s{sP1}, 0x07060501\ns_mov_b32 s{sP2}, 0x0706000c")
    a("v_mov_b32 v5, 0xffff\nv_mov_b32 v6, 0xffff0000")
    for d in range(2): a(f"v_cndmask_b32 v1, 0, v5, s[{sM+4*d}:{sM+4*d+1}]\nv_cndmask_b32 v4, 0, v6, s[{sM+4*d+2}:{sM+4*d+3}]\nv_or_b32 v{vM+d}, v1, v4")
KQ, SS, KS, PX, FL_, FE, VF, HL, CQ, TM, F01 = 96, 152, 168, 176, 192, 196, 64, 92, 5, 6, 2
DM, LT, QF = SS, 80, KQ + 20
H, OF, WOF, RING = 8, 24, 104, 6
DEP = OPT["dep"]
def capt(slot, d=XR):
    a(f"v_add_u32 v1, {slot}, v{aXC}")
    for ct in range(4):
        if ct: a(f"v_xor_b32 v{1+ct}, {32*ct}, v1")
        a(f"ds_read_b64 {V(d+2*ct,2)}, v{1+ct}")
def hinit(d=XR):
    for i in range(8): a(f"v_lshlrev_b32 v{H+2*i}, 16, v{d+i}\nv_and_b32 v{H+2*i+1}, 0xffff0000, v{d+i}")
def ldWR():
    a(f"v_lshrrev_b32 v1, 4, v0\nv_lshlrev_b32 v1, 3, v1\ns_lshl_b32 s3, s{sC}, 7")
    for ct in range(4): a(f"buffer_load_dwordx2 {V(WRF+2*ct,2)}, v1, {S(WR)}, s3 offen offset:{32*ct}")
def wrprep(t):
    a(f"s_mov_b32 s3, {ONES:#x}")
    for i in range(4): a(f"v_mov_b32 v{t+i}, s3")
    execset(0x1111111111111111)
    for i in range(8): a(f"v_mov_b32 v{WRF+i}, s3")
    execset(-1)
    for k in range(2): mfma(WSP, WRF + 4 * k, t, "0" if k == 0 else None)
def pzero(lo=0, hi=16):
    for i in range(lo, hi): a(f"v_mov_b32 v{PX+i}, 0")
def ksread(e=None):
    e = e or a
    a(f"v_add_u32 v1, 128, v{aRK}")
    for r in range(4):
        e(f"v_cndmask_b32 v2, v1, v{aRK}, s[{sM+2*r}:{sM+2*r+1}]\nds_read_b64 {V(KS+2*r,2)}, v2 offset:{32*r}")
    e(f"ds_read_b32 v{CQ}, v{aCQ}")
def rdmode(): a(f"v_mov_b32 v1, {MODE}\nds_read_b32 v1, v1\ns_waitcnt lgkmcnt(0)\nv_readfirstlane_b32 s{sMODE}, v1")
def gsync_h(poll):
    l = a.label("gh")
    a(f"s_cmp_eq_u32 s{sMODE}, 1\ns_cbranch_scc0 {l}g\n{l}b:")
    t = f"{l}g:\ns_barrier\n"
    if poll:
        t += f"s_cmp_eq_u32 s{sWV}, 5\ns_cbranch_scc0 {l}e\nv_mov_b32 v1, 1\ns_mov_b64 exec, 1\nbuffer_store_dword v1, off, {S(WS)}, s{sFO} offset:64 sc1\ns_mov_b64 exec, -1\n"
        t += f"{l}p:\nbuffer_load_dword v1, v{vEA}, {S(WS)}, 0 offen offset:64 sc1\ns_waitcnt vmcnt(0)\nv_cmp_ne_u32 vcc, 1, v1\ns_cbranch_vccz {l}e\ns_sub_u32 s{sBUD}, s{sBUD}, 1\ns_cbranch_scc0 {l}p\ns_mov_b32 s{sBUD}, 0\n{l}e:\n"
    DEFER.append(t + f"s_barrier\ns_branch {l}b")
def weave(P, xs):
    xs = list(xs); per = -(-len(xs) // len(P))
    for p in P:
        a(p)
        for _ in range(per):
            if xs: a(xs.pop(0))
a(f"s_cmp_eq_u32 s{sWV}, 4\ns_cbranch_scc1 L_h0")
suA()
a(f"s_cmp_lt_u32 s{sWV}, 4\ns_cbranch_scc1 L_cons")
vW, vT = 24, 56
STR = {5: 0, 3: 1, 13: 2, -3: 3, -13: 4}
def wo_setup():
    a(f"v_lshrrev_b32 v1, 3, v0\nv_and_b32 v2, 2, v1\nv_xor_b32 v2, v2, v0\ns_lshl_b32 s3, s{sWV}, 2\nv_xor_b32 v2, s3, v2")
    a(f"v_and_b32 v2, 7, v2\ns_lshl_b32 s3, s{sC}, 7\nv_lshl_add_u32 v2, v2, 4, s3")
    a(f"v_and_b32 v3, 3, v1\nv_mul_u32_u24 v3, 1280, v3\nv_add_u32 v2, v3, v2")
    a(f"v_lshrrev_b32 v3, 5, v0\nv_mul_u32_u24 v3, 5120, v3\nv_sub_u32 v4, 5120, v3")
    for d, i in STR.items(): a(f"v_mad_u32_u24 v{vT+i}, v{3 + (d < 0)}, {abs(d)}, v2")
def wo_quads(cp, h, g):
    c5 = cp % 5
    if h == 0: return 5 - c5 + g, 10 - c5 + g
    if g == 0: return 9 - c5, 14 - c5
    i = g - 1
    p = 3 + i if c5 <= 2 else i
    return (i if c5 <= 2 else 13 + i), (p if p < 5 - c5 else 10 + p)
def wo_piece(st, g):
    h, cp = st // 10, st % 10
    q0, q1 = wo_quads(cp, h, g or 0)
    t = f"s_lshl_b32 s3, s{sT}, 10\ns_add_u32 m0, s3, {WOB}" if st == 0 else "s_addk_i32 m0, 4096"
    o = (64*cp + 4*min(q0, q1)) * 1280
    t += f"\ns_add_u32 s3, s{sPF}, {o}" if g is None else f"\ns_mov_b32 s3, {o}"
    return t + f"\nbuffer_load_dwordx4 v{vT + STR[q1 - q0]}, {S(WO)}, s3 offen lds"
def wo_run(lo, hi, tag):
    for st in range(lo, min(hi, 10)): a(wo_piece(st, None))
    lo = max(lo, 10)
    if lo >= hi: return
    for g in range(1, 4):
        a(f"s_cmp_eq_u32 s{sT}, {g}\ns_cbranch_scc1 L_wo{tag}{g}")
        DEFER.append(f"L_wo{tag}{g}:\n" + "\n".join(wo_piece(st, g) for st in range(lo, hi)) + f"\ns_branch L_wo{tag}")
    for st in range(lo, hi): a(wo_piece(st, 0))
    a(f"L_wo{tag}:")
N0 = OPT["n0"]; NA = N0 + OPT["na"]; NB = NA + OPT["nb"]; N1 = NB + OPT["n1"]
assert 2 * DEP <= N0 <= N1 <= 20
vTC = 61
def touch_setup():
    a(f"s_mul_i32 s3, s{sT}, 24\nv_add_u32 v1, s3, v0\ns_add_u32 s3, s3, 24\ns_lshl_b32 s0, s{sNO}, 3\ns_min_u32 s3, s3, s0\nv_cmp_gt_u32 vcc, s3, v1")
    a(f"v_mul_u32_u24 v1, 2560, v1\ns_lshl_b32 s0, s{sC}, 7\ns_add_u32 s3, s0, s{sB0}\nv_add_u32 v1, s3, v1\nv_bfrev_b32 v2, 1\nv_cndmask_b32 v{vTC}, v2, v1, vcc")
    a(f"s_lshl_b32 s3, s{sG}, 2\ns_add_u32 s3, s3, s{sT}\ns_mul_i32 s3, s3, 1280\ns_add_u32 s3, s3, s0\nv_mul_u32_u24 v1, {12*1280}, v0\nv_add_u32 v{vTC+1}, s3, v1")
    a(f"s_mul_i32 s3, s{sT}, 3\nv_min_u32 v1, 2, v0\nv_add_u32 v1, s3, v1\nv_lshrrev_b32 v2, 1, v1\nv_mul_u32_u24 v2, {2560 - 256}, v2\nv_lshl_add_u32 v1, v1, 7, v2")
    a(f"s_mul_i32 s3, s{sGID}, 15360\ns_lshl_b32 s0, s{sC}, 8\ns_add_u32 s3, s3, s0\ns_add_u32 s3, s3, {E2}\nv_add_u32 v{vTC+2}, s3, v1")
NT = bin(OPT["tch"]).count("1")
E1_, E2_ = OPT["e1"], OPT["e2"]
assert 1 <= E1_ and E1_ + 2 <= E2_ <= 4
if OPT["prio"]: a("s_setprio 3")
a(f"v_mov_b32 v4, {ONES:#x}\nv_mov_b32 v5, v4\nv_lshrrev_b32 v1, 4, v0\nv_mul_u32_u24 v1, {SLOT - 128}, v1\nv_lshl_add_u32 v1, v0, 3, v1\nds_write_b64 v1, v[4:5] offset:{S0}")
def xstart(i): nextslab(); a(f"s_lshl_b32 s{sXO}, s{sSB}, 7\ns_mov_b32 s{sSL}, {S0 + SLOT*(i % 4)}")
for i in range(8): a(f"v_mov_b32 v{vSUM+i}, 0")
a(f"s_sub_u32 s0, s{sWV}, 5\ns_mul_i32 s3, s0, {32*2560}\ns_add_u32 s{sPF}, s3, s{sB0}\ns_lshl_b32 s3, s{sC}, 7\ns_add_u32 s{sPF}, s{sPF}, s3")
a(f"s_mul_i32 s3, s{sGID}, 3\ns_add_u32 s3, s3, s0\ns_mul_i32 s3, s3, 2560\ns_add_u32 s{sSPL}, s3, {SP}")
a(f"s_mul_i32 s3, s{sG}, 1280\ns_add_u32 s3, s3, s{sRJ}\ns_add_u32 s3, s3, {R_FL}\nv_min_u32 v1, 9, v0\nv_lshl_add_u32 v{vEA}, v1, 7, s3\ns_lshl_b32 s{sFO}, s{sC}, 7\ns_add_u32 s{sFO}, s{sFO}, s3")
a(f"v_and_b32 v1, 1, v0\nv_lshrrev_b32 v2, 5, v0\nv_lshl_add_u32 v1, v1, 1, v2\nv_bfe_u32 v2, v0, 1, 3\nv_lshl_add_u32 v1, v1, 3, v2\ns_lshl_b32 s0, s0, 5\nv_add_lshl_u32 v{vSTW}, v1, s0, 4")
a(f"s_cmp_lt_u32 s{sB0}, 2560\ns_cselect_b32 s3, 128, 0\nv_mov_b32 v1, 0xf149f2ca\nv_cmp_gt_u32 vcc, s3, v{vSTW}\nv_cndmask_b32 v{vBIA}, 0, v1, vcc")
stamp(0, 5)
if OPT["xprio"]: a(f"s_setprio {OPT['xprio']}")
xstart(1); xissue()
stamp(1, 5)
a("s_waitcnt vmcnt(4) lgkmcnt(0)")
stamp(2, 5)
def part_stats():
    a(f"v_add_u32 v1, s{sLX}, v{aL16}\ns_mov_b32 s0, {ONES:#x}")
    for i in range(4): a(f"ds_read_b128 {V(vXD+4*i,4)}, v1 offset:{S0 + 1024*i}")
    a(f"v_lshrrev_b32 v2, 3, v0\nv_lshlrev_b32 v2, 5, v2\ns_lshl_b32 s3, s{sC}, 8\ns_add_u32 s3, s3, s{sSPL}\ns_waitcnt lgkmcnt(0)")
    for e in range(4):
        for i in range(4): a(f"v_dot2c_f32_bf16 v{vSUM+2*i}, s0, v{vXD+4*i+e}\nv_dot2c_f32_bf16 v{vSUM+2*i+1}, v{vXD+4*i+e}, v{vXD+4*i+e}")
    for q in ("quad_perm:[1,0,3,2]", "quad_perm:[2,3,0,1]", "row_half_mirror"):
        for i in range(8): a(f"v_add_f32_dpp v{vSUM+i}, v{vSUM+i}, v{vSUM+i} {q} {DPPM}")
    execset(0x0101010101010101)
    for i in range(2): a(f"buffer_store_dwordx4 {V(vSUM+4*i,4)}, v2, {S(WS)}, s3 offen offset:{16*i} sc1")
    execset(-1)
    for i in range(4): a(f"v_mov_b32 v{vXD+8+i}, 0")
def only5(tag, fn):
    a(f"s_cmp_eq_u32 s{sWV}, 5\ns_cbranch_scc0 L_o5{tag}"); fn(); a(f"L_o5{tag}:")
def evchk(tag, cmp_, ld):
    a(f"{cmp_}\ns_cbranch_vccnz L_er{tag}\nL_eg{tag}:")
    DEFER.append(f"L_er{tag}:\ns_sub_u32 s{sBUD}, s{sBUD}, 1\ns_cbranch_scc1 L_ex{tag}\n{ld}\ns_waitcnt vmcnt(0)\n{cmp_}\ns_cbranch_vccnz L_er{tag}\ns_branch L_eg{tag}\nL_ex{tag}:\ns_mov_b32 s{sBUD}, 0\ns_branch L_eg{tag}")
ldroot = f"s_lshl_b32 s0, s{sJ}, 5\nbuffer_load_dword v{vEV}, off, {S(DBG)}, s0 sc1"
ldflag = f"buffer_load_dword v{vEV}, v{vEA}, {S(WS)}, 0 offen sc1"
WRI = OPT["wri"]
for i in range(9):
    a("s_barrier")
    stamp(3 + i, 5)
    ex5 = 0; ex = 0
    if i == E1_: only5("a", lambda: a(ldroot)); ex5 += 1
    if i == E2_: only5("b", lambda: a(ldflag)); ex5 += 1
    if i == WRI: ldWR(); ex += 4
    if i == E2_ + 2:
        for k in range(3):
            if k == 2: a("s_mov_b32 exec_hi, 0")
            a(f"buffer_load_dwordx4 {V(vXD+4*k,4)}, v{aL16}, {S(WS)}, s{sSPL} offen offset:{1024*k} sc1")
        a("s_mov_b32 exec_hi, -1"); ex += 3
    if i < 8: xstart(i + 2); xissue()
    if i:
        a(f"s_cmp_eq_u32 s{sXT}, {i}\ns_cbranch_scc0 L_xc{i}\ns_mov_b32 s0, {S0 + SLOT * (i % 4)}\ns_call_b64 s[100:101], L_xcap\nL_xc{i}:")
    if i == 0: part_stats(); ex += 2
    if 1 <= i <= 4: (suB, suC, suD, suE)[i - 1]()
    if i == 5: wo_setup(); touch_setup()
    if i == 6: pzero()
    if i == E2_ + 3:
        a(f"s_waitcnt vmcnt({8 + ex})")
        for k in (4, 8):
            for e in range(4): a(f"v_add_f32 v{vXD+e}, v{vXD+e}, v{vXD+k+e}")
        a(f"v_permlane32_swap_b32 v{vXD}, v{vXD+2}\nv_permlane32_swap_b32 v{vXD+1}, v{vXD+3}\nv_add_f32 v{vXD}, v{vXD}, v{vXD+2}\nv_add_f32 v{vXD+1}, v{vXD+1}, v{vXD+3}")
        a(f"v_mov_b32 v{vXD+2}, v{vXD}\nv_mov_b32 v{vXD+3}, v{vXD+1}\ns_mov_b32 s1, 0x3acccccd\nv_mov_b32 v1, 0x3727c5ac")
        a(f"v_permlane16_swap_b32 v{vXD}, v{vXD+2}\nv_permlane16_swap_b32 v{vXD+1}, v{vXD+3}\nv_add_f32 v{vXD}, v{vXD}, v{vXD+2}\nv_add_f32 v{vXD+1}, v{vXD+1}, v{vXD+3}")
        a(f"v_mul_f32 v{vXD}, 0xbacccccd, v{vXD}\nv_fma_f32 v2, v{vXD+1}, s1, v1\nv_fma_f32 v2, -v{vXD}, v{vXD}, v2\nv_max_f32 v2, v2, v1\nv_rsq_f32 v{vXD+1}, v2\nv_mov_b32 v{vXD+3}, v{vBIA}\nv_mov_b32 v{vXD+2}, v{vXD+1}")
        a(f"ds_write_b128 v{vSTW}, {V(vXD,4)} offset:{STATS}\ns_waitcnt lgkmcnt(0)")
    if i == 8: break
    if ex5: a(f"s_cmp_eq_u32 s{sWV}, 5\ns_cbranch_scc1 L_w5{i}\ns_waitcnt vmcnt({4 + ex})\nL_w5{i}:")
    a(f"s_waitcnt vmcnt({4 + ex + ex5})")
    if i == WRI + 1: wrprep(64)
    if i == E1_ + 1:
        def f():
            evchk("a", f"v_cmp_ne_u32 vcc, 1, v{vEV}", ldroot)
            a(f"s_getreg_b32 s0, hwreg(HW_REG_XCC_ID, 0, 4)\nv_mov_b32 v1, s0\ns_mov_b64 exec, 1\nbuffer_store_dword v1, off, {S(WS)}, s{sFO} sc1\ns_mov_b64 exec, -1")
        only5("c", f)
    if i == E2_ + 1:
        def f():
            evchk("b", f"v_cmp_eq_u32 vcc, -1, v{vEV}", ldflag)
            a(f"s_getreg_b32 s0, hwreg(HW_REG_XCC_ID, 0, 4)\nv_cmp_ne_u32 vcc, s0, v{vEV}\ns_cmp_eq_u64 vcc, 0\ns_cselect_b32 s0, {OPT['fmode']}, 0")
            a(f"v_mov_b32 v1, {MODE}\nv_mov_b32 v2, s0\nds_write_b32 v1, v2")
        only5("d", f)
    if OPT["spf"] & 1 and i < 8:
        for k in range(4):
            for o in (0, 64): a(f"s_buffer_load_dword s{sU}, {S(OUT)}, s{sPF} offset:{2560*(4*i + k) + o}")
    if OPT["spf"] & 2 and i == 3:
        a(f"s_sub_u32 s3, s{sSPL}, {SP}\ns_lshl_b32 s3, s3, 1\ns_lshl_b32 s0, s{sC}, 8\ns_add_u32 s3, s3, s0\ns_add_u32 s3, s3, {E2}")
        for k in range(8): a(f"s_buffer_load_dword s{sU}, {S(WS)}, s3 offset:{2560*(k>>2) + 64*(k&3)}")
a(f"L_h8:\ns_mul_i32 s{sPF}, s{sT}, 5120")
wo_run(0, N0, "a")
ksread(); rdmode()
a(f"s_waitcnt vmcnt({N0})")
stamp(2)
a("s_barrier")
stamp(3); stamp(9, 2); stamp(0, 3)
gsync_h(1)
for k, d in ((1, WO), (0, OUT), (2, WS)):
    if OPT["tch"] >> k & 1: a(f"buffer_load_dword v{vTC+k}, v{vTC+k}, {S(d)}, 0 offen")
wo_run(N0, NA, "d")
sO, sDW = 61, 65
a(f"s_and_b32 s3, s{sWV}, 1\ns_lshl_b32 s{sO}, s3, 7\ns_xor_b32 s{sO+1}, s{sO}, 128\ns_add_u32 s{sO+2}, s{sO+1}, s{sLT}\ns_add_u32 s{sO+3}, s{sO}, s{sLT}\ns_lshl_b32 s3, s3, 13\ns_sub_u32 s{sDW}, 4096, s3")
DEFER.append("L_xcap:\n" + "\n".join(capture(lambda: (capt("s0", 72), a("s_waitcnt lgkmcnt(0)"), hinit(72)))) + "\ns_setpc_b64 s[100:101]")

def rdWO1(s, ct, e):
    t = ""
    if e == 0 and s in (5, 10, 15): t = {5: f"v_add_u32 v{aWO+ct}, s{sDW}, v{aWO+ct}", 10: f"v_add_u32 v{aWO+ct}, 40960, v{aWO+ct}", 15: f"v_subrev_u32 v{aWO+ct}, s{sDW}, v{aWO+ct}"}[s] + "\n"
    return t + f"ds_read_b64_tr_b16 {V(WOF + 16*(s % RING) + 4*ct + 2*e, 2)}, v{aWO+ct} offset:{8192*(s % 5) + 512*e}"
OL = [(s, w) for s in range(20) for w in range(2 if 5 <= s < 15 else 1)]
def oreg(k): return OF + 4 * (k % 20)
def ldO(k):
    s, w = OL[k]
    a(f"buffer_load_dwordx4 {V(oreg(k),4)}, v{aOl2 if w else aOl}, {S(OUT)}, s{sO + s // 5} offen offset:{256*(s % 5)} sc1")
def spin(tag, addr, cmp_, slp=0):
    a(f"{cmp_}\ns_cbranch_vccnz L_sp{tag}\nL_sb{tag}:")
    DEFER.append(f"L_sp{tag}:\n" + (f"s_sleep {slp}\n" if slp else "") + f"v_mov_b32 v1, {addr}\nds_read_b32 v1, v1\ns_waitcnt lgkmcnt(0)\n{cmp_}\ns_cbranch_vccnz L_sp{tag}\ns_branch L_sb{tag}")
def fold(A, B, F):
    for r in range(4): a(f"v_permlane16_swap_b32 v{A+r}, v{B+r}")
    for r in range(4): a(f"v_cndmask_b32 v{F[r]}, v{B+r}, v{A+r}, s[{sM+2*r}:{sM+2*r+1}]")
def softmax(F, P, mid=None):
    m, t = TM, TM + 1
    for r in range(4): a(f"v_fma_f32 v{F+r}, v{F+r}, v{KS+2*r}, v{KS+2*r+1}")
    a(f"v_max3_f32 v{m}, v{F}, v{F+1}, v{F+2}\nv_max_f32 v{m}, v{m}, v{F+3}\nv_mov_b32 v{t}, v{m}\nv_permlane32_swap_b32 v{m}, v{t}\nv_max_f32 v{m}, v{m}, v{t}\nv_mul_f32 v{m}, v{m}, v{CQ}")
    for r in range(4): a(f"v_fma_f32 v{F+r}, v{F+r}, v{CQ}, -v{m}")
    for r in range(4): a(f"v_exp_f32 v{F+r}, v{F+r}")
    if mid: mid()
    a(f"v_add_f32 v{m}, v{F}, v{F+1}\nv_add_f32 v{t}, v{F+2}, v{F+3}\nv_add_f32 v{m}, v{m}, v{t}\nv_mov_b32 v{t}, v{m}\nv_mul_f32 v{F}, v{F}, v{KS}\nv_mul_f32 v{F+1}, v{F+1}, v{KS+2}")
    a(f"v_permlane32_swap_b32 v{m}, v{t}\nv_mul_f32 v{F+2}, v{F+2}, v{KS+4}\nv_add_f32 v{m}, v{m}, v{t}\nv_rcp_f32 v{m}, v{m}\nv_mul_f32 v{F+3}, v{F+3}, v{KS+6}")
    for r in range(4): a(f"v_mul_f32 v{F+r}, v{F+r}, v{m}")
    a(f"v_cvt_pk_bf16_f32 v{F}, v{F}, v{F+1}\nv_cvt_pk_bf16_f32 v{F+1}, v{F+2}, v{F+3}")
    for hh in range(2):
        a(f"s_mov_b64 exec, s[{sLO}:{sLO+1}]" if hh == 0 else "s_not_b64 exec, exec")
        for d in range(2): a(f"v_and_b32 v{P+2*hh+d}, v{vM+d}, v{F+d}\nv_bfi_b32 v{P+4+2*hh+d}, v{vM+d}, 0, v{F+d}")
    a("s_mov_b64 exec, -1")
    for d in range(4): a(f"v_permlane16_swap_b32 v{P+d}, v{P+4+d}")
def ymask():
    a(f"s_add_u32 s0, s{sC5}, 1\ns_sub_u32 s1, 5, s{sC5}\ns_min_u32 s0, s0, s1\ns_lshl_b32 s0, s0, 4\ns_sub_u32 s1, 64, s0\ns_cmp_le_u32 s{sC5}, 2\ns_cselect_b32 s1, s1, 16\ns_bfm_b64 s[100:101], s0, s1")
def attention(T):
    helper = T == "h"; doL = T != "e"; doE = T != "l"
    L.reset()
    rid = {}
    KR = ((aKx, 0), (aKy, 0), (aK4, 0), (aKe, 0), (aKe, 40))
    QR = ((aQx, 0, 0), (aQy, 0, 1), (aQ4, 0, 2), (aQe, 0, 3), (aQe, 40, 4), (aQ4 + 2, 0, 2), (aQ4 + 4, 0, 2))
    def rk(i):
        k, o = KR[i]; d = KQ + 4 * i
        L(f"ds_read_b64 {V(d,2)}, v{k} offset:{o}"); L(f"ds_read_b64 {V(d+2,2)}, v{k} offset:{o + 8*PITCH}")
    def rq(i):
        q, o, _ = QR[i]; d = QF + 4 * i
        L(f"ds_read_b64 {V(d,2)}, v{q} offset:{o}"); rid[i] = L(f"ds_read_b64 {V(d+2,2)}, v{q+1} offset:{o}")
    def lg(i):
        L.wait(rid[i]); mfma(SS + (0, 4, 0, 8, 12, 8, 12)[i], KQ + 4 * QR[i][2], QF + 4 * i, "0" if i in (0, 1, 3, 4) else None)
    vid = {}
    def vreads():
        for i, (r_, o) in enumerate(((aVe, 0), (aVe, 40), (aV1, 0), (aV2, 0))):
            if doE or i >= 2:
                L(f"ds_read_b64_tr_b16 {V(VF+4*i,2)}, v{r_} offset:{o}")
                vid[i] = L(f"ds_read_b64_tr_b16 {V(VF+4*i+2,2)}, v{r_} offset:{o + 8*PITCH}")
    def lfold(): fold(SS, SS + 4, [F01, F01 + 1, FL_ + 2, FL_ + 3])
    def lpack(): a(f"v_or_b32 v{FL_}, 0xffff, v{F01}\nv_perm_b32 v{FL_+1}, v{F01+1}, v{F01}, s{sP1}")
    cq = f"v_mul_f32 v{CQ}, {CEXP:#x}, v{CQ}"
    if helper:
        ymask(); a(cq)
        a("s_barrier")
        for i in range(5): rk(i)
        wo_run(NA, NB, "e")
        if OPT["bv"] >= 0: a("s_barrier"); vreads()
        wo_run(NB, N1, "b")
        a(f"s_setprio {OPT['aprio']}\ns_waitcnt vmcnt({NT + N1 - N0})")
        stamp(1, 3)
        a("s_barrier")
        stamp(4); stamp(2, 3)
        if STAGE == "A": a("s_branch L_dumpA")
        rq(0); rq(1); rq(2); rq(3); rq(4); lg(0); rq(5); lg(1); rq(6); lg(2); lg(3); lg(4); lg(5); lg(6); lfold(); lpack()
    elif doL: rk(0); rq(0); rk(1); rq(1); rk(2); rq(2); ymask(); lg(0); lg(1); lg(2); ksread(L); lfold(); lpack()
    else: rk(3); rq(3); rk(4); rq(4); rk(2); rq(5); rq(6); pzero(0, 8); lg(3); lg(4); ksread(L); lg(5); lg(6)
    if doL: lst(f"buffer_store_dwordx4 {V(FL_,4)}, v{aH0s}, {S(OUT)}, s{sLT} offen{{F}}")
    stamp(5); stamp(3, 3)
    if helper and OPT["wc"] == 0: wo_run(N1, 20, "c")
    hl = f"buffer_load_dwordx4 {V(HL,4)}, v{aH0l}, {S(OUT)}, s{sLT} offen sc1"
    prefill = lambda: [a(rdWO1(s_, ct, e)) for s_ in range(DEP) for ct in range(4) for e in range(2)] if helper else None
    early = lambda: [ldO(k) for k in range(OPT["ou"])] if helper else None
    late = f"buffer_store_dwordx4 {V(LT,4)}, v{aOs}, {S(OUT)}, s{sLT} offen{{F}}"
    if doE:
        fold(SS + 8, SS + 12, [FE + r for r in range(4)])
        if not helper: L.wait(L.n); a(cq)
        def mid():
            if not helper or OPT["bv"] < 0: vreads()
            if helper and OPT["wc"] == 1: wo_run(N1, 20, "c")
            if helper and OPT["hlp"] == 0: a(hl)
        softmax(FE, PX, mid)
        stamp(5, 3)
        if helper and OPT["hlp"] == 1: a(hl)
        L.wait(vid[3])
        for i in range(4): mfma(DM + 4 * i, VF + 4 * i, PX + 4 * (i & 1), "0")
        for i in range(4): a(f"v_cvt_pk_bf16_f32 v{FE+i}, v{DM+2*i}, v{DM+2*i+1}")
        lst(f"buffer_store_dwordx4 {V(FE,4)}, v{aOs}, {S(OUT)}, 0 offen{{F}}")
        stamp(6); stamp(6, 3)
        if T == "e": a(f"s_lshl_b32 s0, s{sWV}, 2\ns_add_u32 s0, s0, {HRD}\nv_mov_b32 v1, s0\nds_read_b32 v1, v1")
        for i in range(4): a(f"v_cvt_pk_bf16_f32 v{LT+i}, v{DM+8+2*i}, v{DM+8+2*i+1}")
        prefill()
    else:
        vreads(); pzero(8, 16); L.wait(L.n); a(cq); a(hl)
    if T == "e":
        a("s_waitcnt lgkmcnt(0)"); spin("r", "s0", "v_cmp_eq_u32 vcc, 0, v1", 1)
        execset(0xffff); lst(late); execset(-1)
        stamp(7); stamp(10, 3)
        return
    stamp(7, 3)
    a(f"s_waitcnt vmcnt({1 if doE else 0})\nv_cmp_eq_u32 vcc, -1, v{HL+2}\ns_cbranch_vccnz L_h0r{T}\nL_h0g{T}:")
    stamp(8, 3)
    DEFER.append(f"L_h0r{T}:\ns_sub_u32 s{sBUD}, s{sBUD}, 1\ns_cbranch_scc1 L_h0x{T}\n{hl}\ns_waitcnt vmcnt(0)\n"
                 f"v_cmp_eq_u32 vcc, -1, v{HL+2}\ns_cbranch_vccnz L_h0r{T}\ns_branch L_h0g{T}\nL_h0x{T}:\ns_mov_b32 s{sBUD}, 0\ns_branch L_h0g{T}")
    if helper: a(f"v_mov_b32 v1, {WFL}\nv_mov_b32 v4, 1\ns_mov_b64 exec, 1\nds_add_u32 v1, v4\ns_mov_b64 exec, -1")
    else: a(f"s_lshl_b32 s0, s{sWV}, 2\ns_add_u32 s0, s0, {HRD - 8}\nv_mov_b32 v1, s0\nds_write_b32 v1, v1")
    a(f"v_perm_b32 v{HL}, v{HL}, v{HL+1}, s{sP2}")
    for r in (1, 2, 3, 0): a(f"v_add_f32 v{FL_+r}, v{F01+r if r < 2 else FL_+r}, v{HL+r}")
    if OPT["opos"] == 0: early()
    softmax(FL_, PX + 8, early if OPT["opos"] == 1 else None)
    if OPT["opos"] == 2: early()
    stamp(9, 3)
    mfma(DM, VF + 8, PX + 8, "0"); mfma(DM + 4, VF + 12, PX + 8, "0"); mfma(DM + 8, VF + 12, PX + 12, "0")
    if helper: a("ds_read_b32 v1, v1")
    a("s_mov_b32 exec_lo, 0xffff0000")
    for i in range(4): a(f"v_cvt_pk_bf16_f32 v{LT+i}, v{DM+2*i}, v{DM+2*i+1}")
    a("s_mov_b64 exec, s[100:101]")
    for i in range(2): a(f"v_cvt_pk_bf16_f32 v{LT+2+i}, v{DM+8+2*i}, v{DM+8+2*i+1}")
    execset(-1 if doE else 0xffffffffffff0000)
    lst(late)
    stamp(7); stamp(10, 3)
attention("h")
if STAGE == "B": a("s_waitcnt vmcnt(0)"); finish()
SH = 200
U = OPT["ou"]; nO = [U]
def ldOn():
    if nO[0] < len(OL): ldO(nO[0]); nO[0] += 1
L.reset()
stamp(8); stamp(0, 4)
idx = {o: k for k, o in enumerate(OL)}
GR = [[(0, 0), (1, 0)], [(2, 0), (3, 0)], [(4, 0)]] + [[(s, 0), (s, 1)] for s in range(5, 15)] + [[(15, 0), (16, 0)], [(17, 0), (18, 0)], [(19, 0)]]
GR = [[idx[o] for o in g] for g in GR]
first = {OL[g[0]][0]: i for i, g in enumerate(GR)}
issued = {}
def cmp_(G):
    r = [oreg(k) for k in GR[G]]
    if len(r) == 2: a(f"v_max_u16 v2, v{r[0]}, v{r[1]}\nv_cmp_eq_u16 vcc, -1, v2")
    else: a(f"v_cmp_eq_u16 vcc, -1, v{r[0]}")
def chk_a(G):
    last = GR[G][-1] + 1
    assert nO[0] >= last
    a(f"s_waitcnt vmcnt({nO[0] - last + (last <= U)})"); cmp_(G)
def chk_b(G):
    issued[G] = nO[0]
    a(f"s_cbranch_vccnz L_st{G}\nL_go{G}:")
a(f"s_lshl_b32 s0, s{sT}, 12\ns_add_u32 s0, s0, {EX}\nv_add_u32 v4, s0, v{aL16}\ns_and_b32 s0, s{sT}, 2\ns_lshl_b32 s0, s0, 1\ns_add_u32 s0, s0, {XFL}\nv_mov_b32 v3, s0\nv_mov_b32 v5, 1\ns_waitcnt lgkmcnt(0)")
spin("w", WFL, "v_cmp_ne_u32 vcc, 4, v1")
RQ = [(s, ct, e) for s in range(DEP, 20) for ct in range(4) for e in range(2)]
wid = {(s, ct): 0 for s in range(DEP) for ct in range(4)}
freed = set()
fid = [None]
def rdn(n):
    for _ in range(n):
        if not RQ: return
        s, ct, e = RQ[0]
        if s >= RING and (s - RING, ct) not in freed: return
        RQ.pop(0); wid[s, ct] = L(rdWO1(s, ct, e))
busy = [0]
chk_a(0); chk_b(0)
m = 0
for s in range(20):
    ms = [(ct, w) for ct in range(4) for w in range(2 if 5 <= s < 15 else 1)]
    for i, (ct, w) in enumerate(ms):
        if s + 1 in first and i == len(ms) - 2: chk_a(first[s + 1]); busy[0] = 1
        if s + 1 in first and i == len(ms) - 1: chk_b(first[s + 1]); busy[0] = 0
        while RQ and RQ[0][:2] <= (s, ct): rdn(1)
        if i == 0 and (not RQ or RQ[0][0] > s) and L.n - wid[s, 3] >= 6: L.wait(wid[s, 3])
        L.wait(wid[s, ct])
        mfma((SH if w else H) + 4 * ct, WOF + 16 * (s % RING) + 4 * ct, oreg(idx[s, w]), "0" if w and s == 5 else None)
        if w == len(ms) // 4 - 1: freed.add((s, ct))
        m += 1
        if (i == 0 or (i == 4) or (s in (3, 4) and i == 1)) and nO[0] < len(OL): ldOn(); rdn(1)
        elif s == 15 and i or s == 16 and i == 1: L(f"ds_write_b128 v4, {V(SH + 4*(i - 1 if s == 15 else 3), 4)} offset:{1024*(i - 1 if s == 15 else 3)}")
        elif s == 16 and i == 2: a("s_mov_b64 exec, 1"); L("ds_add_u32 v3, v5"); a("s_mov_b64 exec, -1")
        else: rdn(1 if 5 <= s < 15 and i >= OPT["r2"] else 2)
    if s == 0: stamp(9); stamp(11, 3)
    if s == 9: stamp(12, 3)
    if s & 1: stamp(1 + s // 2, 4)
assert nO[0] == len(OL)
for G in range(len(GR)):
    t = f"L_st{G}:\ns_sub_u32 s{sBUD}, s{sBUD}, 1\ns_cbranch_scc1 L_sx{G}\n"
    def re():
        for G2 in range(G, min(G + OPT["rsp"], len(GR))):
            for k in GR[G2]:
                if k < issued[G]: ldO(k)
        a("s_waitcnt vmcnt(0)"); cmp_(G)
    t += "\n".join(capture(re))
    t += f"\ns_cbranch_vccnz L_st{G}\ns_branch L_go{G}\nL_sx{G}:\ns_mov_b32 s{sBUD}, 0\ns_branch L_go{G}"
    DEFER.append(t)
a("L_tail:")
stamp(10)
HB, E1_, E2_, E2D, T0, RS = 24, 32, 36, 40, 52, 2
EV1 = OPT['e1']
for i in range(8): a(f"v_cvt_pk_bf16_f32 v{HB+i}, v{H+2*i}, v{H+2*i+1}")
for k in range(2):
    mfma(E2_, HB + 4 * k, HB + 4 * k, "0" if k == 0 else None)
    mfma(E1_, WRF + 4 * k, HB + 4 * k, "0" if k == 0 else None)
a("s_mov_b32 s0, 0x22222222\ns_mov_b32 s1, s0\ns_mov_b32 s44, 0x44444444\ns_mov_b32 s45, s44\ns_mov_b32 vcc_lo, 0x88888888\ns_mov_b32 vcc_hi, 0x88888888")
a(f"s_lshl_b32 s3, s{sC}, 8\ns_add_u32 s3, s3, s{sE2L}\nv_and_b32 v1, 0xf0, v{aL16}")
a(f"v_cndmask_b32 v{E2_}, v{E2_}, v{E2_+1}, s[0:1]\nv_cndmask_b32 v{E2_+2}, v{E2_+2}, v{E2_+3}, vcc\ns_or_b64 vcc, vcc, s[44:45]")
a(f"v_cndmask_b32 v{E1_+2}, v{E2_}, v{E2_+2}, vcc\nv_mov_b32 v{E1_+3}, v{WSP+1}")
execset(0xF0000F0000F0000F)
lst(f"buffer_store_dwordx4 {V(E1_,4)}, v1, {S(WS)}, s3 offen{{F}}")
execset(-1)
for i in range(4): a(f"v_mov_b32 v{E2D+8+i}, 0")
a(f"v_mov_b32 v4, 1.0\ns_mov_b32 s0, 0xbacccccd\ns_mov_b32 s1, 0x3acccccd\nv_mov_b32 v5, 0x3727c5ac\ns_mov_b32 s44, 0xfffff800\nv_mov_b32 v1, {KMAX}")
a(f"v_cmp_le_i32 s[46:47], 0, v{aOUT}")
a("L_e2:")
a(f"buffer_load_dwordx4 {V(E2D,4)}, v{aL16}, {S(WS)}, s{sE2L} offen sc1\nbuffer_load_dwordx4 {V(E2D+4,4)}, v{aL16}, {S(WS)}, s{sE2L} offen offset:1024 sc1")
a(f"s_mov_b32 exec_hi, 0\nbuffer_load_dwordx4 {V(E2D+8,4)}, v{aL16}, {S(WS)}, s{sE2L} offen offset:2048 sc1\ns_mov_b32 exec_hi, -1")
a("s_waitcnt vmcnt(1)")
for e in (0, 2): a(f"v_pk_add_f32 {V(E2D+e,2)}, {V(E2D+e,2)}, {V(E2D+4+e,2)}")
a("s_waitcnt vmcnt(0)")
for e in (0, 2): a(f"v_pk_add_f32 {V(E2D+e,2)}, {V(E2D+e,2)}, {V(E2D+8+e,2)}")
a(f"v_cmp_u_f32 vcc, v{E2D}, v{E2D}\ns_cbranch_vccnz L_e2r\nL_e2go:")
DEFER.append(f"L_e2r:\ns_sub_u32 s{sBUD}, s{sBUD}, 1\ns_cbranch_scc0 L_e2\ns_mov_b32 s{sBUD}, 0\ns_branch L_e2go")
stamp(11); stamp(11, 4)
for i in (0, 2, 3, 1): a(f"v_mfma_f32_16x16x4_f32 {V(T0+4*i,4)}, v4, v{E2D+i}, 0")
a(f"v_mul_f32 v6, s0, v{T0}\nv_fma_f32 v7, v{T0+8}, s1, v5\nv_fma_f32 v7, -v6, v6, v7\nv_max_f32 v7, v7, v5\nv_rsq_f32 v{RS}, v7")
a(f"v_fma_f32 v7, v6, v{T0+12}, v{T0+4}\nv_mul_f32 v7, v7, v{RS}\nv_mul_f32 v{RS+1}, v6, v{RS}")
a(f"v_ashrrev_i32 v6, 31, v7\nv_or_b32 v6, 0x80000000, v6\nv_xor_b32 v7, v7, v6\nv_and_or_b32 v7, v7, s44, v{vRK}\nv_cndmask_b32 v7, 0, v7, s[46:47]")
LN, LNB, OB = 72, 88, 96
lnops = [f"v_pk_fma_f32 {V(LN+2*i,2)}, {V(H+2*i,2)}, {V(RS,2)}, {V(RS,2)} op_sel:[0,0,1] op_sel_hi:[1,0,1]" for i in range(8)]
for k in (8, 4, 2, 1):
    a(lnops.pop(0)); a(lnops.pop(0))
    a(f"v_max_u32_dpp v6, v{7 if k == 8 else 6}, v{7 if k == 8 else 6} row_ror:{k} {DPPM}")
a("s_mov_b64 exec, 1\nds_max_u32 v1, v6\ns_mov_b64 exec, -1")
for i in range(8): a(f"v_cvt_pk_bf16_f32 v{LNB+i}, v{LN+2*i}, v{LN+2*i+1}")
a(f"s_mul_i32 s0, s{sG}, 1280\ns_lshl_b32 s3, s{sC}, 7\ns_add_u32 s0, s0, s3\ns_lshl_b32 s1, s0, 1\ns_add_u32 s0, s0, s{sRJ}\ns_add_u32 s1, s1, s{sRJ}\ns_add_u32 s1, s1, {R_BASE}")
a(f"s_lshl_b32 s3, s{sG}, 7\ns_add_u32 s3, s3, s{sRJ}\ns_add_u32 s3, s3, {R_KEY}\ns_lshl_b32 s44, s{sC}, 3\ns_add_u32 s44, s44, s{sWV}\nv_mul_u32_u24 v6, 384, v0")
a("v_and_b32 v5, 48, v0\nv_lshlrev_b32 v4, 1, v5")
a("s_waitcnt lgkmcnt(0)\ns_barrier\nds_read_b32 v1, v1")
for i in range(8): a(f"v_pk_add_f32 {V(LN+2*i,2)}, {V(LN+2*i,2)}, {V(H+2*i,2)}")
a(f"s_cmp_eq_u32 s44, 4\ns_waitcnt lgkmcnt(0)\nv_cmp_eq_u32 s[46:47], v1, v7\ns_cbranch_scc0 L_nk\ns_mov_b64 exec, 0xffff\nbuffer_store_dword v1, v6, {S(WS)}, s3 offen sc1\nL_nk:")
a("s_and_b64 exec, s[46:47], -1\ns_cbranch_scc0 L_nc")
a(f"buffer_store_dwordx4 {V(LNB,4)}, v4, {S(WS)}, s0 offen sc1\nbuffer_store_dwordx4 {V(LNB+4,4)}, v4, {S(WS)}, s0 offen offset:16 sc1")
a("L_nc:\ns_mov_b64 exec, -1")
stamp(12); stamp(12, 4)
for i in range(8): a(f"v_cvt_pk_bf16_f32 v{OB+i}, v{LN+2*i}, v{LN+2*i+1}")
for hh in range(2):
    for d in range(2): a(f"v_permlane16_swap_b32 v{OB+4*hh+d}, v{OB+4*hh+2+d}")
osc = " " + OPT["osc"].replace("_", " ").replace("plain", "")
a("s_not_b64 exec, s[46:47]")
for hh in range(2): a(f"buffer_store_dwordx4 {V(OB+4*hh,4)}, v{aOUT}, {S(OUT)}, 0 offen offset:{64*hh}{osc}")
a("s_and_b64 exec, s[46:47], -1\ns_cbranch_scc0 L_fin")
for hh in range(2): a(f"buffer_store_dwordx4 {V(OB+4*hh,4)}, v{aOUT}, {S(OUT)}, 0 offen offset:{64*hh} sc1")
a("s_waitcnt vmcnt(0)")
for ct in range(4): a(f"buffer_store_dwordx4 {V(LN+4*ct,4)}, v5, {S(WS)}, s1 offen offset:{64*ct} sc1")
a("L_fin:")
finish()
deferred()

a("L_h0:")
if OPT["prio"]: a("s_setprio 2")
a(f"v_lshrrev_b32 v1, 3, v0\nv_and_b32 v2, 2, v1\nv_xor_b32 v2, v2, v0\nv_and_b32 v2, 7, v2\ns_lshl_b32 s3, s{sC}, 7\nv_lshl_add_u32 v2, v2, 4, s3")
a(f"v_mul_u32_u24 v3, 3840, v1\nv_add_u32 v{vW}, v3, v2\nv_xor_b32 v{vW+3}, 64, v{vW}\nv_add_u32 v{vW+3}, {8*3840}, v{vW+3}\nv_mov_b32 v{vEA}, 0")
for p in range(2):
    for s_ in (1, 2): a(f"v_add_u32 v{vW+3*p+s_}, {256*s_}, v{vW+3*p}")
def wpieces():
    P = []
    for pp in range(8):
        for s_ in range(3):
            t = f"buffer_load_dwordx4 v{vW+3*(pp&1)+s_}, {S(W)}, s{sXO} offen offset:{1024*s_} lds"
            if s_ == 2 and pp < 7: t += "\ns_addk_i32 m0, 3072"
            if s_ == 2 and pp & 1 and pp < 7: t += f"\ns_add_u32 s{sXO}, s{sXO}, 61440"
            P.append(t)
    return P
for i in range(9):
    nextslab(); a(f"s_mul_i32 s{sXO}, s{sSB}, 245760\ns_mov_b32 m0, {S0 + SLOT*((i+1) % 4) + 12288}")
    if i == 1: ldWR()
    job = {0: suA, 1: suB, 2: suC, 3: suD, 4: suE, 5: wo_setup, 6: touch_setup, 8: pzero}.get(i)
    ops = capture(job) if job else []
    if i == 7: ops = ["\n".join(capture(lambda: wrprep(64)))]
    weave(wpieces(), ops)
    if i == 0: stamp(1, 5)
    a(f"s_waitcnt vmcnt(24)")
    if i == 0: stamp(2, 5)
    a("s_barrier")
    stamp(3 + i, 5)
    if i: a(f"s_cmp_eq_u32 s{sXT}, {i}\ns_cbranch_scc0 L_wc{i}\ns_mov_b32 s0, {S0 + SLOT * (i % 4)}\ns_call_b64 s[100:101], L_xcap\nL_wc{i}:")
a("s_branch L_h8")

ACC, XF, WF, ST, CS = 8, 80, 152, 180, 192
a("L_cons:")
def clears(fl):
    a("v_mov_b32 v4, -1\nv_mov_b32 v5, -1\nv_mov_b32 v6, -1\nv_mov_b32 v7, -1")
    a(f"v_lshrrev_b32 v1, 3, v0\nv_mul_u32_u24 v1, 2560, v1\nv_and_b32 v2, 0x70, v{aL16}\ns_lshl_b32 s3, s{sC}, 7\ns_add_u32 s3, s3, s{sB0}\nv_add3_u32 v1, v1, v2, s3")
    a(f"s_mul_i32 s0, s{sT}, 20480\ns_add_u32 s1, s0, 81920\ns_add_u32 s3, s{sT}, 8\ns_cmp_lt_u32 s3, s{sNO}\ns_cselect_b32 s3, s1, {OOB:#x}\ns_add_u32 s3, s3, 81920")
    for r in (0, 1, 3): a(f"buffer_store_dwordx4 v[4:7], v1, {S(OUT)}, s{r} offen{fl}")
    a(f"v_lshrrev_b32 v1, 4, v0\nv_mul_u32_u24 v1, {2560 - 256}, v1\nv_add_u32 v1, v1, v{aL16}")
    a(f"s_mul_i32 s1, s{sGID}, 15360\ns_lshl_b32 s3, s{sC}, 8\ns_add_u32 s1, s1, s3\ns_and_b32 s3, s{sT}, 1\ns_mul_i32 s3, s3, 7680\ns_add_u32 s1, s1, s3\ns_add_u32 s1, s1, {E2}")
    a(f"s_cmp_lt_u32 s{sT}, 2\ns_cselect_b32 s1, s1, {OOB:#x}\ns_mov_b32 exec_hi, 0xffff\nbuffer_store_dwordx4 v[4:7], v1, {S(WS)}, s1 offen{fl}\ns_mov_b64 exec, -1")
    return 4
if OPT["cpos"] == 2: ncl = clears("")
suB(); suC(); suD(0); suE(0)
a(f"s_lshl_b32 s3, s{sT}, 5\nv_xor_b32 v3, s3, v3\nv_mul_u32_u24 v4, 3072, v2\nv_add_u32 v3, v3, v4\nv_add_u32 v{vAW}, {S0 + 12288}, v3\ns_mov_b32 s{sI}, 0")
stamp(0, 5)
if OPT["cpos"] == 0: ncl = clears("")
stamp(1, 5)
a(f"v_mov_b32 v3, 0\nv_lshlrev_b32 v2, 2, v0\ns_mov_b32 exec_hi, 0")
a(f"ds_write_b32 v2, v3 offset:{MODE}\nds_write_b32 v2, v3 offset:{MODE + 8*PITCH}\ns_mov_b64 exec, -1")
a("v_and_b32 v1, 15, v0\nv_lshrrev_b32 v2, 4, v0")
a(f"v_lshrrev_b32 v3, 1, v1\nv_xor_b32 v3, v3, v2\nv_lshlrev_b32 v3, 4, v3\nv_lshl_add_u32 v3, v1, 7, v3\nv_add_u32 v{vAX0}, {S0}, v3\nv_xor_b32 v{vAX1}, 64, v{vAX0}")
a(f"v_mul_u32_u24 v3, {PITCH}, v1\nv_lshl_add_u32 v3, v2, 3, v3\ns_lshl_b32 s3, s{sT}, 5\ns_add_u32 s3, s3, {QB}\nv_add_u32 v{vSW}, s3, v3")
a(f"v_lshlrev_b32 v{vSTR}, 4, v1")
assert STATS == 0
if OPT["cpos"] == 1: ncl = clears("")
a(f"s_cmp_lt_u32 s{sWV}, 2\ns_cselect_b32 s{sXT}, s{sXT}, 99")
a(f"s_mov_b32 s{sRD}, {S0}\ns_min_u32 s{sEV}, s{sXT}, {E1_}\ns_waitcnt vmcnt({ncl}) lgkmcnt(0)")
def rdW(d, s_, ks):
    L(f"ds_read_b64_tr_b16 {V(d,2)}, v{vAW} offset:{12288*ks + 1024*s_}")
    return L(f"ds_read_b64_tr_b16 {V(d+2,2)}, v{vAW} offset:{12288*ks + 1024*s_ + 512}")
def rdX(d, t, ks): return L(f"ds_read_b128 {V(d+4*t,4)}, v{vAX0+ks} offset:{2048*t}")
def acc(s_, t): return ACC + 4 * (6 * s_ + t)
stamp(2); stamp(2, 5)
SEG = (1, 2, 0)
PRE = OPT["pre"]
def rdlist(ph):
    o = []
    def w(s_):
        d = WV2 if (ph, s_) == (1, 1) else WF + 12 * ph + 4 * s_
        for e in range(2): o.append((("w", ph, s_), f"ds_read_b64_tr_b16 {V(WF+12*ph+4*s_+2*e,2)}, v{vAW} offset:{12288*ph + 1024*s_ + 512*e}"))
    w(SEG[0])
    for t in range(6): o.append((("x", ph, t), f"ds_read_b128 {V(XF+24*ph+4*t,4)}, v{vAX0+ph} offset:{2048*t}"))
    w(SEG[1]); w(SEG[2])
    return o
WV2 = WF + 24
def step(first):
    a("s_barrier")
    stampi(0)
    L.reset(); ids = {}
    M = [(s_, t) for s_ in SEG for t in range(6)]
    seq = ([] if first else [(1, "o") + m for m in M[PRE:]]) + [(0, "n") + m for m in M] + [(1, "n") + m for m in M[:PRE]]
    no = 0 if first else 18 - PRE
    pend = rdlist(0); p1 = rdlist(1)
    def rd(n=1):
        for _ in range(n):
            if pend: k, tx = pend.pop(0); ids[k] = L(tx)
    rd(12 if first else 2)
    fill = [f"s_add_u32 s3, s{sRD}, {SLOT}\ns_cmp_eq_u32 s3, {S0 + 4*SLOT}", f"s_cselect_b32 s3, {S0}, s3\ns_sub_u32 s{sDL}, s3, s{sRD}",
            f"s_mov_b32 s{sRD}, s3\nv_add_u32 v{vAX0}, s{sDL}, v{vAX0}", f"v_add_u32 v{vAW}, s{sDL}, v{vAW}\nv_add_u32 v{vAX1}, s{sDL}, v{vAX1}"]
    if not first: fill.append(f"s_cmp_eq_u32 s{sI}, s{sEV}\ns_cbranch_scc1 L_ev\nL_evb:")
    fill.append("STAMP"); fill.append(f"s_add_u32 s{sI}, s{sI}, 1\ns_cmp_lt_u32 s{sI}, 9"); fill.append("s_waitcnt lgkmcnt(0)")
    for n, (ph, kd, s_, t) in enumerate(seq):
        if n == no: pend += p1
        if kd == "n":
            need = max(ids["x", ph, t], ids["w", ph, s_])
            if s_ == SEG[0] and t == 0 and L.n - ids.get(("x", ph, 5), L.n) >= 4: need = ids["x", ph, 5]
            L.wait(need)
        mfma(acc(s_, t), WF + 12 * ph + 4 * s_, XF + 24 * ph + 4 * t, "0" if first and ph == 0 else None)
        if pend: rd()
        elif n >= no and fill and (len(fill) > 1 or n >= len(seq) - 2):
            f = fill.pop(0)
            if f == "STAMP": stampi(1)
            else: a(f)
    for f in fill: stampi(1) if f == "STAMP" else a(f)
step(1)
a("L_cloop:")
step(0)
a("s_cbranch_scc1 L_cloop")
L.reset(); ids = {}
def wreg(ks, s_): return WV2 if (ks, s_) == (1, 1) else WF + 12 * ks + 4 * s_
later = []
def lw(ks, s_):
    for e in range(2): later.append((("w", ks, s_), f"ds_read_b64_tr_b16 {V(wreg(ks,s_)+2*e,2)}, v{vAW} offset:{12288*ks + 1024*s_ + 512*e}"))
def lx(ks):
    for t in range(6): later.append((("x", ks, t), f"ds_read_b128 {V(XF+48*ks+4*t,4)}, v{vAX0+ks} offset:{2048*t}"))
lw(0, 1); lx(0); lw(1, 1); lx(1); lw(0, 2); lw(0, 0)
def rd_later(n=1):
    for _ in range(n):
        if later: k, tx = later.pop(0); ids[k] = L(tx)
def old(s_, t): mfma(acc(s_, t), WF + 12 + 4 * s_, XF + 24 + 4 * t)
def new(s_, ks, t):
    L.wait(max(ids["w", ks, s_], ids["x", ks, t])); mfma(acc(s_, t), wreg(ks, s_), XF + 48 * ks + 4 * t)
def mlist(s_): return [(s_, "o", t) for t in range(6)] + [(s_, ks, t) for ks in range(2) for t in range(6)]
def mm(q):
    s_, k, t = q.pop(0)
    if k != "o" and ("w", k, s_) not in ids: rd_later(9)
    old(s_, t) if k == "o" else new(s_, k, t)
    if k == "o" and t == 5 and s_ != 1: lw(1, s_)
def fixup(s_, q, per):
    for r in range(4):
        a(f"v_mov_b32_dpp v{CS+r}, v{acc(s_,0)+r} row_newbcast:0 {DPPM}")
    wr = None
    for t in range(6):
        A = acc(s_, t); st = V(ST + 2 * t, 2)
        if per or not OPT["pk"]:
            ops = [f"v_fmac_f32 v{A+h}, v{CS+h}, v{ST+2*t}" for h in range(4)]
        else:
            ops = [f"v_pk_fma_f32 {V(A+h,2)}, {V(CS+h,2)}, {st}, {V(A+h,2)} op_sel_hi:[1,0,1]" for h in (0, 2)]
        ops += [f"v_cvt_pk_bf16_f32 v{A}, v{A}, v{A+1}", f"v_cvt_pk_bf16_f32 v{A+1}, v{A+2}, v{A+3}"]
        for i, o in enumerate(ops):
            if q and ((per >= 2 and i == 3) or (per >= 3 and i == 0)): mm(q)
            a(o)
        if q and per >= 1: mm(q)
        if (s_, t) in ((2, OPT["bk"]), (0, OPT["bv"])): L.wait(L.n - t); a("s_barrier")
        L(f"ds_write_b64 v{vSW}, {V(A,2)} offset:{TSTR*s_ + 16*PITCH*t}")
km, qm, vm = mlist(1), mlist(2), mlist(0)
a(f"v_mov_b32 v1, {MODE}")
sr = ["ds_read_b32 v1, v1"] + [f"ds_read2_b64 {V(ST+2*t,4)}, v{vSTR} offset0:{32*t} offset1:{32*t + 32}" for t in range(0, 6, 2)]
for i in range(PRE):
    s_, _, t = (km if i < 6 else qm if i < 12 else vm).pop(0)
    if t == 5 and s_ != 1: lw(1, s_)
for o in sr: a(o)
a(f"s_waitcnt lgkmcnt(0)\nv_readfirstlane_b32 s{sMODE}, v1\ns_barrier")
stamp(3); stamp(9, 2); stamp(0, 3)
a(f"s_cmp_eq_u32 s{sMODE}, 1\ns_cbranch_scc0 L_gs\nL_gsb:")
rd_later(2)
n = 0
for q in (km, qm, vm):
    while q[0][1] == "o" and (n < 6 or q is km): mm(q); rd_later(); n += 1
rd_later(2)
while km: mm(km); rd_later()
mm(qm); rd_later(9)
assert not later
fixup(1, qm, -(-len(qm) // 6))
while qm: mm(qm)
mm(vm)
fixup(2, vm, -(-len(vm) // 6))
while vm: mm(vm)
fixup(0, [], 0)
stamp(1, 3)
a("s_waitcnt lgkmcnt(0)\ns_barrier")
stamp(4); stamp(2, 3)
if STAGE == "A":
    a("L_dumpA:")
    a(f"s_lshl_b32 s3, s{sWV}, 10\nv_add_u32 v1, s3, v{aL16}\ns_mul_i32 s3, s2, 49152\ns_add_u32 s3, s3, {DUMP}")
    for i in range(6):
        a(f"ds_read_b128 v[16:19], v1 offset:{8192*i}\ns_waitcnt lgkmcnt(0)\nbuffer_store_dwordx4 v[16:19], v1, {S(WS)}, s3 offen\ns_waitcnt vmcnt(0)\ns_add_u32 s3, s3, 8192")
    finish()
a(f"s_cmp_lt_u32 s{sWV}, 2\ns_cbranch_scc0 L_c23")
attention("e")
if STAGE == "B": a("s_waitcnt vmcnt(0)"); finish()

ldWR(); hinit()
a(f"s_lshl_b32 s0, s{sWV}, 13\ns_add_u32 s0, s0, {EX}\nv_add_u32 v4, s0, v{aL16}\ns_lshl_b32 s0, s{sWV}, 2\ns_add_u32 s0, s0, {XFL}\ns_waitcnt vmcnt(0)")
wrprep(XR)
a("L_fx:\ns_sleep 1\nv_mov_b32 v1, s0\nds_read_b32 v1, v1\ns_waitcnt lgkmcnt(0)\nv_cmp_ne_u32 vcc, 2, v1\ns_cbranch_vccnz L_fx")
stamp(9); stamp(9, 4)
if OPT["lprio"]: a(f"s_setprio {OPT['lprio']}")
for q in range(8): a(f"ds_read_b128 {V(OF+4*q,4)}, v4 offset:{1024*q}")
for q in range(8):
    a(f"s_waitcnt lgkmcnt({7-q})")
    for e in range(4): a(f"v_add_f32 v{H+4*(q&3)+e}, v{H+4*(q&3)+e}, v{OF+4*q+e}")
stamp(10, 4)
a("s_branch L_tail")
deferred()
a("L_c23:")
attention("l")
if STAGE == "B": a("s_waitcnt vmcnt(0)")
finish()
deferred()
a(f"L_ev:\ns_cmp_eq_u32 s{sI}, {EV1}\ns_cbranch_scc0 L_ev1\ns_waitcnt vmcnt(0)\nL_ev1:\ns_max_u32 s{sEV}, s{sXT}, {EV1}")
a(f"s_cmp_eq_u32 s{sI}, s{sXT}\ns_cbranch_scc0 L_evb\ns_sub_u32 s0, s{sRD}, s{sDL}"); capt("s0"); a("s_branch L_evb")
a("L_gs:")
clears(" sc1")
a("s_waitcnt vmcnt(0)\ns_barrier\ns_barrier\ns_branch L_gsb")

GATE, UP, DOWN = 4, 8, 12
sMm = 36
GSL = 24832; UPO = 12416; NGS = 3
DA = NGS * GSL; DB = 0; MISC = DA + 81920
ACTB, MZ, WINB, LNL = MISC, MISC + 192, MISC + 256, MISC + 512
GF, DF, GA, XS, IDX = 8, 168, 228, 236, 7
a("L_moe:")
a(f"s_cmp_ge_u32 s{sU}, 32\ns_cbranch_scc1 L_end")
a(f"s_lshr_b32 s{sWV}, s{sWV}, 6\nv_and_b32 v0, 63, v0\ns_lshl_b32 s{sMm}, s{sJ}, 1\ns_add_u32 s{sMm}, s{sMm}, s{sU}\ns_sub_u32 s{sMm}, s{sMm}, 30\ns_mov_b32 s{sBUD}, {BUDGET}")
a("v_lshlrev_b32 v6, 4, v0\nv_mov_b32 v128, 0\nv_mov_b32 v129, 0\ns_waitcnt lgkmcnt(0)")
mksrd(WS, "ws", 1 << 28); mksrd(DBG, "dbg", 256); mksrd(GATE, "gate", 640 * 3072); mksrd(UP, "up", 640 * 3072); mksrd(DOWN, "down", 1536 * 1280); mksrd(OUT, "out", 2048 * 1280)
stamp(0)
a(f"s_cmp_eq_u32 s{sU}, 30\ns_cbranch_scc0 L_nroot")
a("v_mov_b32 v8, -1\nv_mov_b32 v9, -1\nv_mov_b32 v10, -1\nv_mov_b32 v11, -1")
a(f"s_lshl_b32 s0, s{sJ}, 15\ns_lshl_b32 s3, s{sWV}, 12\ns_add_u32 s0, s0, s3\ns_add_u32 s0, s0, {RJ}")
for i in range(4): a(f"buffer_store_dwordx4 v[8:11], v6, {S(WS)}, s0 offen offset:{1024*i} sc1")
a(f"s_waitcnt vmcnt(0)\ns_barrier\ns_cmp_eq_u32 s{sWV}, 0\ns_cbranch_scc0 L_nroot")
a(f"s_lshl_b32 s0, s{sJ}, 5\nv_mov_b32 v8, 1\ns_mov_b64 exec, 1\nbuffer_store_dword v8, off, {S(DBG)}, s0 sc1\ns_mov_b64 exec, -1\ns_waitcnt vmcnt(0)")
a("L_nroot:")
if STAGE != "F": finish()
vG, vGR = 4, 5
sGO, sGL = 44, 45
a("v_mul_u32_u24 v1, 43, v0\nv_lshrrev_b32 v1, 9, v1\nv_mul_u32_u24 v1, 2880, v1")
a(f"s_mul_i32 s0, s{sMm}, 192\ns_mul_i32 s3, s{sWV}, {8*3072}\ns_add_u32 s0, s0, s3\nv_add3_u32 v{vG}, v1, v6, s0")
a(f"s_mul_i32 s{sGL}, s{sWV}, 1536\ns_lshr_b32 s3, s{sWV}, 1\ns_lshl_b32 s3, s3, 4\ns_add_u32 s{sGL}, s{sGL}, s3")
def gissue(s):
    sl = (s % NGS) * GSL
    a(f"s_mov_b32 s{sGO}, {s*64*3072}\ns_mov_b32 s3, {s*64*3072 + 4*3072}\ns_mov_b32 exec_hi, 0xffff")
    for m_, srd_ in ((0, GATE), (1, UP)):
        for e in range(2):
            a(f"s_add_u32 m0, s{sGL}, {sl + UPO*m_ + 768*e}\nbuffer_load_dwordx4 v{vG}, {S(srd_)}, s{3 if e else sGO} offen lds")
    a("s_mov_b32 exec_hi, -1")
gissue(0); gissue(1)
a("v_lshrrev_b32 v1, 5, v0\nv_lshlrev_b32 v1, 2, v1\nv_bfe_u32 v2, v0, 2, 1\nv_add_u32 v1, v1, v2\nv_mul_u32_u24 v1, 192, v1")
a(f"v_bfe_u32 v2, v0, 4, 1\nv_bfe_u32 v3, v0, 3, 1\nv_lshl_add_u32 v2, v3, 1, v2\nv_mul_u32_u24 v2, {3072 + 16}, v2\nv_add_u32 v1, v1, v2")
a(f"v_and_b32 v2, 1, v0\nv_lshl_add_u32 v1, v2, 3, v1\nv_bfe_u32 v2, v0, 1, 1\nv_mul_u32_u24 v2, {UPO}, v2\ns_lshl_b32 s3, s{sWV}, 4\nv_add3_u32 v{vGR}, v1, v2, s3")
def dissue(i):
    a(f"s_lshl_b32 s3, s{sWV}, 6\ns_addk_i32 s3, {512*i}\nv_add_u32 v1, s3, v0\nv_mul_u32_u24 v2, 52429, v1\nv_lshrrev_b32 v2, 22, v2")
    a(f"v_and_b32 v3, 3, v2\nv_lshlrev_b32 v3, 1, v3\nv_and_or_b32 v3, v2, 8, v3\nv_xor_b32 v1, v1, v3\nv_lshlrev_b32 v1, 4, v1")
    a(f"s_lshl_b32 s3, s{sWV}, 10\ns_add_u32 m0, s3, {DA + 8192*i if i < 10 else DB + 8192*(i-10)}\nbuffer_load_dwordx4 v1, {S(DOWN)}, s46 offen lds")
a(f"s_mul_i32 s46, s{sMm}, {96*1280}")
for s in range(10):
    a(f"s_waitcnt vmcnt({4 if s < 9 else 5}) lgkmcnt(0)\ns_barrier")
    if s + 2 < 10: gissue(s + 2)
    else:
        for i in range(5 * (s - 8), 5 * (s - 7)): dissue(i)
    sl = (s % NGS) * GSL
    for tl in range(2):
        if tl: a(f"s_cmp_lt_u32 s{sWV}, 4\ns_cbranch_scc0 L_g{s}")
        for hh in range(2):
            for e in range(2): a(f"ds_read_b64_tr_b16 {V(GF+80*tl+8*s+4*hh+2*e,2)}, v{vGR} offset:{sl + 1536*hh + 384*e + (0 if tl else 64)}")
    a(f"L_g{s}:")
stamp(1)
a("s_waitcnt lgkmcnt(0)\ns_barrier")
for i in range(10, 15): dissue(i)
a("v_lshrrev_b32 v1, 4, v0\nv_bfe_u32 v2, v0, 2, 2\nv_lshl_add_u32 v1, v1, 3, v2\nv_mul_u32_u24 v1, 1280, v1\nv_and_b32 v3, 1, v0\nv_lshl_add_u32 v1, v3, 3, v1")
a(f"v_bfe_u32 v2, v0, 2, 3\nv_lshlrev_b32 v2, 1, v2\nv_bfe_u32 v3, v0, 1, 1\ns_mul_i32 s0, s{sWV}, 10")
for i in range(5): a(f"s_add_u32 s3, s0, {2*i}\nv_add_u32 v{XS+i}, s3, v3\nv_xor_b32 v{XS+i}, v{XS+i}, v2\nv_lshl_add_u32 v{XS+i}, v{XS+i}, 4, v1\nv_add_u32 v{XS+5+i}, {DA}, v{XS+i}")
a("s_waitcnt vmcnt(5)\ns_barrier")
for i in range(5):
    for hh in range(2):
        for e in range(2): a(f"ds_read_b64_tr_b16 {V(DF+12*i+4*hh+2*e,2)}, v{XS+5+i} offset:{1280*(32*hh + 4*e)}")
a("s_waitcnt vmcnt(0)\ns_barrier")
for i in range(5):
    for e in range(2): a(f"ds_read_b64_tr_b16 {V(DF+12*i+8+2*e,2)}, v{XS+i} offset:{DB + 1280*4*e}")
stamp(2)
vXS, vACT, vA1, vA2, vE4 = 252, 253, 254, 255, 5
for i in range(8): a(f"v_mov_b32 v{GA+i}, 0")
a(f"v_mov_b32 v1, 0x4444\nv_mov_b32 v2, 0xeeee\ns_mov_b32 vcc_lo, 0xaaaaaaaa\ns_mov_b32 vcc_hi, 0xaaaaaaaa\nv_cndmask_b32 v{IDX}, v1, v2, vcc")
a(f"v_and_b32 v1, 48, v0\nv_and_b32 v2, 1, v0\nv_lshlrev_b32 v2, 4, v2\nv_lshl_add_u32 v{vXS}, v1, 1, v2\nv_add_u32 v{vA1}, {ACTB}, v{vXS}\nv_add_u32 v{vXS}, {LNL}, v{vXS}")
a(f"v_add_u32 v1, {ACTB + 128}, v1\nv_mov_b32 v2, {MZ}\nv_cndmask_b32 v{vA2}, v1, v2, vcc\nv_mov_b32 v3, 0\nv_lshl_add_u32 v2, v0, 2, v2\ns_mov_b64 exec, 15\nds_write_b32 v2, v3\ns_mov_b64 exec, -1")
a(f"v_bfe_u32 v1, v0, 4, 1\nv_lshlrev_b32 v1, 2, v1\ns_add_u32 s3, s{sWV}, 4\nv_sub_u32 v1, s3, v1")
a("v_lshrrev_b32 v2, 1, v1\nv_lshlrev_b32 v2, 2, v2\nv_and_or_b32 v2, v1, 1, v2\nv_and_or_b32 v2, v0, 2, v2\nv_bfe_u32 v3, v0, 2, 1\nv_lshl_add_u32 v2, v2, 1, v3")
a(f"v_and_b32 v3, 1, v0\nv_lshl_add_u32 v2, v2, 1, v3\nv_and_b32 v3, 7, v0\nv_lshl_add_u32 v3, v1, 3, v3\nv_cmp_gt_u32 vcc, 8, v1\nv_cndmask_b32 v2, v3, v2, vcc\nv_lshlrev_b32 v2, 1, v2\nv_add_u32 v{vACT}, {ACTB}, v2")
a(f"s_lshl_b32 s47, s{sWV}, 15\ns_lshl_b32 s3, s{sMm}, 6\ns_add_u32 s47, s47, s3\ns_add_u32 s47, s47, {RJ + R_E4}")
a(f"v_lshrrev_b32 v1, 2, v0\nv_and_b32 v2, 3, v0\nv_lshlrev_b32 v2, 4, v2\nv_lshl_add_u32 v2, v1, 10, v2\nv_lshlrev_b32 v1, 4, v1\nv_add_u32 v1, {4096 - 64}, v1\ns_mov_b64 vcc, 0xffff\nv_cndmask_b32 v{vE4}, v1, v2, vcc")
a(f"s_cmp_lt_u32 s{sWV}, 4\ns_cselect_b32 s50, 0x00ff0000, 0\ns_or_b32 s50, s50, 0xff\ns_mov_b32 s51, 0")
sFT, sFE, sWIN, sXS = 52, 53, 54, 55
a(f"s_sub_u32 s3, s{sWV}, 4\ns_lshl_b32 s3, s3, 4\ns_add_u32 s{sFT}, s3, s{sMm}\ns_mul_i32 s3, s{sFT}, 52\ns_lshr_b32 s3, s3, 8\ns_mul_i32 s3, s3, {RJS - 5120}\ns_lshl_b32 s{sFE}, s{sFT}, 10\ns_add_u32 s{sFE}, s{sFE}, s3\ns_add_u32 s{sFE}, s{sFE}, {RJ + R_E4}")
vFC, vFB, vSG, FD = 128, 129, 130, 40
a(f"s_mov_b32 s49, {BUDGET >> 2}\nv_mov_b32 v4, {WINB}\ns_cmp_lt_u32 s{sWV}, 4\ns_cbranch_scc1 L_np")
a(f"s_mul_i32 s3, s{sFT}, 52\ns_lshr_b32 s3, s3, 8\ns_mul_i32 s0, s3, 5\ns_sub_u32 s0, s{sFT}, s0\ns_mul_i32 s3, s3, 80\ns_lshl_b32 s1, s0, 2\ns_cmp_eq_u32 s0, 4\ns_cselect_b32 s1, 64, s1\ns_cselect_b32 s0, 0, 4\ns_cselect_b32 s48, 2, 0\ns_add_u32 s3, s3, s1")
a(f"v_bfe_u32 v1, v0, 4, 1\nv_lshrrev_b32 v2, 5, v0\nv_lshl_add_u32 v1, v1, 1, v2\nv_lshlrev_b32 v1, s0, v1\nv_and_b32 v2, 3, v0\nv_lshlrev_b32 v2, s48, v2\nv_add3_u32 v1, v1, v2, s3\nv_lshlrev_b32 v{vFC}, 1, v1\nv_lshlrev_b32 v{vFB}, 2, v1")
a(f"s_cmp_eq_u32 s{sWV}, 7\ns_cbranch_scc0 L_np")
a("v_and_b32 v1, 7, v0\nv_lshlrev_b32 v1, 5, v1")
a(f"L_rt:\nbuffer_load_dword v2, v1, {S(DBG)}, 0 offen sc1\ns_waitcnt vmcnt(0)\nv_cmp_ne_u32 vcc, 1, v2\ns_cbranch_vccz L_rtg\ns_sub_u32 s{sBUD}, s{sBUD}, 1\ns_cbranch_scc0 L_rt\ns_mov_b32 s{sBUD}, 0\nL_rtg:")
a(f"v_bfe_u32 v1, v0, 2, 3\nv_lshlrev_b32 v1, 15, v1\nv_and_b32 v2, 3, v0\nv_min_u32 v2, 2, v2\nv_mul_u32_u24 v3, 1280, v2\ns_mov_b32 s0, {RJ}\nv_add3_u32 v3, v3, v1, s0\nv_lshl_add_u32 v1, v2, 7, v1\ns_mul_i32 s0, s{sMm}, 384\ns_add_u32 s0, s0, {RJ + R_KEY}")
stamp(3)
row = f"s_mov_b64 exec, -1\nbuffer_load_dwordx4 v6, {S(WS)}, s{sXS} offen sc1 lds\ns_mov_b64 exec, 0xffff\nbuffer_load_dwordx4 v6, {S(WS)}, s{sXS} offen offset:1024 sc1 lds"
a(f"s_mov_b32 s{sWIN}, 0\ns_mov_b32 s{sXS}, {OOB:#x}\ns_mov_b32 m0, {LNL}")
KP, KR, KV = OPT["kp"], OPT["kr"], 140
assert KP % KR == 0
KM = 0x77777777
def look(k):
    if k % KR == 0: a(row); execset(KM)
    if OPT["ka"]: a(f"buffer_atomic_umin v{KV+k}, v1, {S(WS)}, s0 offen sc0 sc1")
    else: a(f"buffer_load_dword v{KV+k}, v1, {S(WS)}, s0 offen sc1")
for k in range(KP): a(f"v_mov_b32 v{KV+k}, -1")
def kchk(k):
    a(f"v_cmp_lt_u32 vcc, s{sWIN}, v{KV+k}\ns_cbranch_vccz L_pg")
    a(f"v_cndmask_b32 v2, -1, v{KV+k}, vcc\nv_cmp_ne_u32 vcc, -1, v2\ns_cbranch_vccnz L_pn")
a("L_pk:")
if OPT["kw"]: look(0); a("s_waitcnt vmcnt(0)"); kchk(0)
for k in range(KP - 1):
    look(k)
    if OPT["ks"]: a(f"s_sleep {OPT['ks']}")
a("L_pl:")
for k in range(KP):
    look((k + KP - 1) % KP)
    a(f"s_waitcnt vmcnt({KP - 1 + 2 * (KP // KR - (k % KR == 0))})"); kchk(k)
    if OPT["ks"]: a(f"s_sleep {OPT['ks']}")
a(f"s_sub_u32 s{sBUD}, s{sBUD}, 1\ns_cbranch_scc0 L_pl\ns_branch L_px")
a("L_pn:\ns_mov_b64 exec, -1\nv_cndmask_b32 v2, 0, v2, vcc")
a(f"v_max_u32_dpp v{XS}, v2, v2 row_ror:8 {DPPM}")
for k in (4, 2, 1): a(f"v_max_u32_dpp v{XS}, v{XS}, v{XS} row_ror:{k} {DPPM}")
a(f"v_mov_b32 v{XS+1}, v{XS}\nv_permlane16_swap_b32 v{XS}, v{XS+1}\nv_max_u32 v{XS}, v{XS}, v{XS+1}\ns_mov_b32 exec_hi, 0\nv_cmpx_eq_u32 vcc, v{XS}, v2")
a(f"ds_write_b64 v4, v[2:3]\nv_readfirstlane_b32 s{sXS}, v3\nv_readfirstlane_b32 s{sWIN}, v2\ns_mov_b64 exec, -1")
a("s_branch L_pk")
a(f"L_xf:\n{row}\ns_waitcnt vmcnt(0)\ns_branch L_pg\nL_px:\ns_mov_b32 s{sBUD}, 0\nL_pg:\ns_mov_b64 exec, -1")
stamp(4)
a("L_np:\ns_waitcnt lgkmcnt(0)\ns_barrier")
stamp(5)
def smf(d, A, B): a(f"v_smfmac_f32_16x16x64_bf16 {V(d,4)}, {V(A,4)}, {V(B,8)}, v{IDX}")
a(f"s_cmp_lt_u32 s{sWV}, 4\ns_cbranch_scc1 L_xh")
XL = 88
a(f"ds_read_b64 v[2:3], v4")
for s in range(10): a(f"ds_read_b128 {V(XL+4*s,4)}, v{vXS} offset:{128*s}")
a(f"s_waitcnt lgkmcnt(10)\nv_readfirstlane_b32 s56, v2\nv_readfirstlane_b32 s57, v3")
fo = [f"s_and_b32 s0, s57, 0x7fff\ns_add_u32 s57, s57, s0\ns_add_u32 s57, s57, {R_BASE}\ns_and_b32 s1, s56, 0xfffff800",
      f"s_ashr_i32 s3, s1, 31\ns_not_b32 s3, s3\ns_or_b32 s3, s3, 0x80000000\ns_xor_b32 s1, s1, s3", f"s_andn2_b32 s56, 2047, s56\ns_mul_i32 s56, s56, 1280\nv_mov_b32 v{vSG}, s1",
      f"v_mul_f32 v{vSG}, 0xbfb8aa3b, v{vSG}", f"v_exp_f32 v{vSG}, v{vSG}", f"v_add_f32 v{vSG}, 1.0, v{vSG}", f"v_rcp_f32 v{vSG}, v{vSG}"]
for s in range(10):
    a(f"s_waitcnt lgkmcnt({9-s})"); smf(GA, XL + 4 * s, GF + 8 * s)
    if fo: a(fo.pop(0))
a("s_branch L_xj\nL_xh:")
for s in range(4): a(f"ds_read_b128 {V(XS+4*s,4)}, v{vXS} offset:{128*s}")
for s in range(10):
    a(f"s_waitcnt lgkmcnt({min(3, 9-s)})")
    smf(GA, XS + 4 * (s % 4), GF + 8 * s); smf(GA + 4, XS + 4 * (s % 4), GF + 80 + 8 * s)
    if s + 4 < 10: a(f"ds_read_b128 {V(XS+4*(s%4),4)}, v{vXS} offset:{128*(s+4)}")
a("L_xj:\ns_mov_b64 vcc, 0xffff")
a(f"v_add_f32 v1, v{GA}, v{GA+1}\nv_add_f32 v2, v{GA+4}, v{GA+5}\nv_cndmask_b32 v1, v2, v1, vcc")
a("v_cmp_u_f32 vcc, v1, v1\ns_cbranch_vccnz L_xsr\nL_xsgo:")
t = f"L_xsr:\ns_sub_u32 s49, s49, 1\ns_cbranch_scc1 L_xsgo\n" + "\n".join(f"v_mov_b32 v{GA+i}, 0" for i in range(8)) + f"\ns_barrier\ns_cmp_eq_u32 s{sWV}, 7\ns_cbranch_scc1 L_xf\ns_branch L_np"
DEFER.append(t)
stamp(6)
a(f"v_mul_f32 v2, 0xbfb8aa3b, v1\nv_exp_f32 v2, v2\nv_mul_f32_dpp v3, v1, v1 row_ror:8 {DPPM}\nv_add_f32 v2, 1.0, v2\nv_rcp_f32 v2, v2")
a(f"v_mul_f32 v1, v2, v3\nv_cvt_pk_bf16_f32 v1, v1, v1\ns_mov_b64 exec, s[50:51]\nds_write_b16 v{vACT}, v1\ns_mov_b64 exec, -1\ns_waitcnt lgkmcnt(0)\ns_barrier")
DD = 8
a(f"ds_read_b128 {V(XS,4)}, v{vA2}\nds_read_b128 {V(XS+4,4)}, v{vA1}")
a("s_waitcnt lgkmcnt(1)")
for i in (4, 0, 1, 2, 3): mfma(DD + 4 * i, XS, DF + 12 * i + 8, "0")
a("s_waitcnt lgkmcnt(0)")
for i in (4, 0, 1, 2, 3): smf(DD + 4 * i, XS + 4, DF + 12 * i)
PS = 32
a(f"v_add_f32 v1, v{DD+16}, v{DD+17}")
for i in range(4):
    a(f"v_add_f32 v{PS+i}, v{DD+4*i}, v{DD+4*i+1}")
for i in range(4): a(f"v_mov_b32_dpp v{PS+i}, v1 quad_perm:[{i},{i},{i},{i}] row_mask:0x2 bank_mask:0xf")
a(f"s_mov_b64 exec, 0x1111ffff\nbuffer_store_dwordx4 {V(PS,4)}, v{vE4}, {S(WS)}, s47 offen sc1\ns_mov_b64 exec, -1")
stamp(7)
a(f"s_cmp_lt_u32 s{sFT}, 40\ns_cbranch_scc0 L_mfin")
FP = OPT["fp"]
FA = OPT["fa"]; NF = 3 if FA else 2
def fld(k):
    d = FD + 8 * k
    a(f"buffer_load_dword v{d+4}, v{vFB}, {S(WS)}, s57 offen sc1")
    if FA:
        for e in (0, 2): a(f"v_mov_b64 {V(d+e,2)}, 0\nbuffer_atomic_or_x2 {V(d+e,2)}, v6, {S(WS)}, s{sFE} offen offset:{4*e} sc0 sc1")
    else: a(f"buffer_load_dwordx4 {V(d,4)}, v6, {S(WS)}, s{sFE} offen sc1")
if OPT["f0"]: a(f"s_sleep {OPT['f0']}")
for k in range(FP - 1):
    fld(k)
    if OPT["fs"]: a(f"s_sleep {OPT['fs']}")
a("L_fd:")
for k in range(FP):
    fld((k + FP - 1) % FP)
    d = FD + 8 * k
    a(f"s_waitcnt vmcnt({NF*(FP-1)})\nv_max3_u32 v1, v{d}, v{d+2}, v{d+4}\nv_cmp_eq_u32 vcc, -1, v1\ns_cbranch_vccz L_fg{k}")
    if OPT["fs"]: a(f"s_sleep {OPT['fs']}")
a(f"s_sub_u32 s{sBUD}, s{sBUD}, 1\ns_cbranch_scc0 L_fd")
for k in reversed(range(FP)):
    d = FD + 8 * k
    a(f"L_fg{k}:\nv_permlane32_swap_b32 v{d}, v{d+1}\nv_permlane32_swap_b32 v{d+2}, v{d+3}\nv_add_f32 v{d}, v{d}, v{d+1}\nv_add_f32 v{d+2}, v{d+2}, v{d+3}")
    a(f"v_permlane16_swap_b32 v{d}, v{d+2}\nv_add_f32 v{d}, v{d}, v{d+2}")
    for r in (4, 8): a(f"v_add_f32_dpp v{d}, v{d}, v{d} row_ror:{r} {DPPM}")
    a(f"v_fma_f32 v8, v{d}, v{vSG}, v{d+4}\nv_cvt_pk_bf16_f32 v8, v8, v8")
    execset(0x000F000F000F000F)
    a(f"buffer_store_short v8, v{vFC}, {S(OUT)}, s56 offen")
    if k: stamp(8); finish()
stamp(8)
a("L_mfin:")
finish()
deferred()
if OPT["stamps"]:
    a("L_dump:\ns_mov_b64 exec, -1\ns_memtime s[0:1]\ns_memrealtime s[62:63]\ns_waitcnt lgkmcnt(0)\nv_mov_b32 v2, 0")
    a("v_writelane_b32 v2, s98, 0\nv_writelane_b32 v2, s62, 1\ns_sub_u32 s3, s0, s96\nv_writelane_b32 v2, s3, 2")
    for i in range(NST): a(f"s_sub_u32 s3, s{70+2*i}, s{98 if OPT['rt'] else 96}\ns_cmp_lt_u32 s3, {5000 if OPT['rt'] else 0x100000}\ns_cselect_b32 s3, s3, 0\nv_writelane_b32 v2, s3, {3+i}")
    a(f"s_lshl_b32 s3, s2, 4\ns_add_u32 s3, s3, s{sWV}\ns_lshl_b32 s3, s3, 7\ns_add_u32 s3, s3, {STAMP}\nv_lshlrev_b32 v3, 2, v0\ns_mov_b32 exec_hi, 0")
    a(f"buffer_store_dword v2, v3, {S(WS)}, s3 offen")
    if OPT["diag"] >= 0:
        a(f"s_cmp_eq_u32 s2, {OPT['dwg']}\ns_cbranch_scc0 L_end\ns_cmp_eq_u32 s{sWV}, {OPT['dwv']}\ns_cbranch_scc0 L_end")
        a(f"s_sub_u32 s3, s{70+2*OPT['diag']}, s98\ns_lshl_b32 s3, s3, 2\ns_add_u32 s3, s3, s62")
        a("L_dg:\ns_memrealtime s[62:63]\ns_waitcnt lgkmcnt(0)\ns_sub_u32 s0, s62, s3\ns_cmp_lt_i32 s0, 0\ns_cbranch_scc1 L_dg")
a("L_end:\ns_endpgm")
body, nn = hazard.fix(a.lines[body0:], OPT["verbose"])
a.lines[body0:] = body
a(f".if L_end - {K} < {30*NL*128 + 256}\n.fill ({30*NL*128 + 256} - (L_end - {K})) / 4, 4, 0xbf810000\n.endif")
a(f".if L_end - {K} > {30*NL*128 + 128}\n.error \"program prefetch does not cover the code\"\n.endif")
kernel_desc(a, K, 256)
open(sys.argv[1], "w").write(a.text())
print("nops inserted:", nn, "lines:", len(a.lines))
```

```python
import sys, struct, math
sys.path.insert(0, "gen")
from common import *
import hazard

OPT = dict(stage="F", stamps=0, verbose=0, nl=8, pg=1, kw=0, kr=3, fmode=1, n0=8, na=2, nb=10, n1=0, bk=0, bv=-1, wc=1, tch=5, bud=1 << 19, rw=5, clr=0, pf0=3, uord=0, mt=2, mx=6, x1=2, w1=1, ppr=0, kold=1, rf=1, kp=3, ks=2, ka=1, fp=2, fs=0, fa=0, f0=0, hlp=1, r2=5, e1=1, e2=4, dep=3, dep2=6, opos=1, vq=3, spf=0, pk=1, rsp=1, osc="plain",
           diag=-1, dwg=77, dn=1, dwv=0, slpk=0, prio=1, ou=6, grp=0, rt=1, dbg=0, wri=5, pre=12, aprio=1, lprio=1, vprio=2, oul=5, xprio=1, cpos=1)
for kv in sys.argv[2:]:
    k, v = kv.split("=")
    assert k in OPT, k
    OPT[k] = int(v) if v.lstrip("-").isdigit() else v
STAGE = OPT["stage"]

E2, SP, RJ, STAMP, DUMP = 0x200000, 0x280000, 0x300000, 0x500000, 0x1000000
RJS = 32768
R_BASE, R_FL, R_E4, R_KEY = 4096, 12288, 16384, 21504
SLOT, S0 = 36864, 8192
PITCH = 144; TSTR = 96 * PITCH
VB = S0 + SLOT - TSTR; KB = VB - TSTR; QB = KB - TSTR
STATS, ZR = 0, 1792
MODE, KMAX, WFL, VCN, HRD, XFL = 1728, 1732, 1744, 1748, 1752, 1760
WOB = S0 + 2 * SLOT
EX = S0 + SLOT + 12288
assert ZR + 8 * PITCH + 64 <= QB
X, W, WO, WS, OUT, DBG, WR = 4, 8, 12, 16, 20, 24, 28
sWV, sJ, sU, sG, sC, sC5, sT, sB0, sBUD, sMODE, sI, sGID = range(32, 44)
KA = dict(x=44, w=46, wo=48, wr=52, gate=54, up=56, down=60, out=62, dbg=64, ws=66)
BUDGET = OPT['bud']
DPPM = "row_mask:0xf bank_mask:0xf"
ONES = 0x3F803F80
OOB = 0x80000000
def f32(x): return struct.unpack("<I", struct.pack("<f", x))[0]
CEXP = f32(20 ** -0.5 * math.log2(math.e))

a = Asm()
def S(d): return f"s[{d}:{d+3}]"
def V(d, n=1): return f"v{d}" if n == 1 else f"v[{d}:{d+n-1}]"
def mksrd(d, name, size): a(f"s_mov_b64 s[{d}:{d+1}], s[{KA[name]}:{KA[name]+1}]\ns_mov_b32 s{d+2}, {size:#x}\ns_mov_b32 s{d+3}, 0x20000")
def execset(m):
    if m == -1: a("s_mov_b64 exec, -1")
    elif m < (1 << 31): a(f"s_mov_b64 exec, {m:#x}")
    else: a(f"s_mov_b32 exec_lo, {m & 0xffffffff:#x}\ns_mov_b32 exec_hi, {m >> 32:#x}")
def smask(d, m): a(f"s_mov_b32 s{d}, {m & 0xffffffff:#x}\ns_mov_b32 s{d+1}, {m >> 32:#x}")
def lanes(f): return sum(1 << l for l in range(64) if f(l))
def mfma(d, A, B, C=None):
    c = V(d, 4) if C is None else (C if isinstance(C, str) else V(C, 4))
    a(f"v_mfma_f32_16x16x32_bf16 {V(d,4)}, {V(A,4)}, {V(B,4)}, {c}")
DEFER = []
def lst(text):
    l = a.label("gl")
    a(f"s_cmp_eq_u32 s{sMODE}, 1\ns_cbranch_scc0 {l}g")
    a(text.replace("{F}", "")); a(f"{l}b:")
    DEFER.append(f"{l}g:\n" + text.replace("{F}", " sc1") + f"\ns_branch {l}b")
PADS = {}
def pad(cat):
    if not OPT["pg"]: return
    l = a.label("pad"); PADS.setdefault(cat, []).append(l); a(f"{l}:\ns_setpc_b64 s[100:101]")
def pagebreak(cat=None, live=True):
    if not OPT["pg"]: return
    l = a.label("pb")
    if live: a(f"s_branch {l}")
    a(".p2align 12")
    if cat: pad(cat)
    a(f"{l}:")
def warm(cat, k, n): a(f";WARM {cat} {k} {n}")
def deferred(cat=None):
    n = 999
    for t in DEFER:
        if cat and n > 110: pad(cat); n = 0
        a(t); n += t.count("\n") + 1
    DEFER.clear()
def capture(fn):
    global a
    class C:
        def __init__(s): s.g = []
        def __call__(s, t=""): s.g.append(t)
        def label(s, b): return a0.label(b)
    a0 = a; a = C(); fn(); g = a.g; a = a0
    return g
class Cnt:
    def __init__(s, name, mx): s.n = 0; s.name = name; s.mx = mx; s.done = 0
    def __call__(s, text): a(text); s.n += 1; return s.n
    def wait(s, i):
        if i <= s.done: return
        k = min(s.mx, s.n - i); a(f"s_waitcnt {s.name}({k})"); s.done = s.n - k
    def reset(s): s.n = 0; s.done = 0
L = Cnt("lgkmcnt", 15)

NST = 13
CLK = "s_memrealtime" if OPT["rt"] else "s_memtime"
def stamp(i, lvl=1):
    if OPT["stamps"] == lvl: a(f"{CLK} s[{70+2*i}:{71+2*i}]")
def stampi(ph):
    if OPT["stamps"] == 2:
        if ph == 0: a(f"{CLK} s[94:95]")
        else: a(f"s_lshl_b32 m0, s{sI}, 1\ns_waitcnt lgkmcnt(0)\ns_movreld_b32 s70, s94")
def finish():
    a("s_branch L_dump" if OPT["stamps"] else "s_endpgm")

a(HEADER.rstrip())
a("; @launch grid=(256,1,1) block=(512,1,1) lds=163840")
if OPT["stamps"] and OPT["grp"]: a("; @groups g0:0-79:2-2 g1:80-159:2-2 g2:160-239:2-2 m7:240-255:7-7")
if OPT["stamps"] and OPT["rt"]: a("; @rt")
if OPT["stamps"] and not OPT["grp"]: a("; @groups c0:0-239:0-0 c2:0-239:2-2 h0:0-239:4-4 h1:0-239:5-5 h3:0-239:7-7 m0:240-255:0-0 m4:240-255:4-4 ma:240-247:7-7 mb:248-255:7-7")
a('.amdgcn_target "amdgcn-amd-amdhsa--gfx950"')
K = NAME + "_kernel"
kernel_begin(a, K, OPT.get("page", 1))
body0 = len(a.lines)
NL = OPT["nl"]
a("s_load_dwordx16 s[44:59], s[0:1], 0\ns_load_dwordx8 s[60:67], s[0:1], 56")
if OPT["stamps"]: a("s_memrealtime s[98:99]\ns_memtime s[96:97]")
a(f"s_lshr_b32 s{sU}, s2, 3\ns_and_b32 s{sJ}, s2, 7\nv_readfirstlane_b32 s{sWV}, v0\ns_getpc_b64 s[100:101]\nL_pc:")
a(f"s_mul_i32 s3, s{sU}, {NL}\nv_min_u32 v2, {NL-1}, v0\nv_add_lshl_u32 v2, v2, s3, 7\nv_min_u32 v2, L_end-L_pc, v2")
a(f"s_cmp_ge_u32 s{sU}, 30\ns_cbranch_scc1 L_moe")
a("global_load_dword v255, v2, s[100:101]")
a(f"s_mul_i32 s{sG}, s{sU}, 26\ns_lshr_b32 s{sG}, s{sG}, 8\ns_mul_i32 s3, s{sG}, 10\ns_sub_u32 s{sC}, s{sU}, s3\ns_lshr_b32 s{sWV}, s{sWV}, 6")
a(f"s_add_u32 s3, s{sC}, s{sJ}\ns_add_u32 s3, s3, 2\ns_sub_u32 s68, s3, 10\ns_cselect_b32 s69, s3, s68")
a(f"s_mul_i32 s3, s69, 245760\ns_lshl_b32 s68, s{sC}, 7\ns_add_u32 s3, s3, s68")
a("v_lshrrev_b32 v1, 3, v0\nv_lshrrev_b32 v3, 4, v0\nv_and_b32 v2, 2, v1\nv_and_or_b32 v2, v3, 4, v2\nv_xor_b32 v2, v2, v0\nv_and_b32 v2, 7, v2")
a("v_mul_u32_u24 v4, 3840, v1\nv_lshl_add_u32 v4, v2, 4, v4\nv_add_u32 v4, s3, v4")
vX, vSUM, vXD, vSTW, vBIA, vEV, vEA = 24, 28, 36, 52, 53, 54, 55
sM, sLO, sLT, sP1, sP2 = 44, 52, 54, 55, 56
sXT, sE2L, sRJ, sNO, sSL, sXM, sXO, sLX, sRD, sPF, sSPL, sFO, sSB = range(57, 70)
sEV, sDL, sWO_ = sXM, sXO, sFO
a(f"s_mul_i32 s3, s{sWV}, 3072\ns_add_u32 m0, s3, {S0 + 12288}\nv_and_b32 v0, 63, v0\ns_and_b32 s{sT}, s{sWV}, 3")
a(f"s_lshr_b32 s3, s{sJ}, 1\ns_lshl_b32 s3, s3, 9\ns_mul_i32 s68, s{sG}, 176\ns_add_u32 s3, s3, s68\ns_and_b32 s68, s{sJ}, 1\ns_add_u32 s3, s3, s68\ns_mul_i32 s{sB0}, s3, 1280")
a(f"s_sub_u32 s{sI}, s{sWV}, 5\ns_mul_i32 s3, s{sI}, {32*2560}\ns_add_u32 s3, s3, s{sB0}\ns_sub_u32 s3, s3, {8*2560}")
a(f"v_lshrrev_b32 v1, 3, v0\nv_lshrrev_b32 v3, 4, v0\nv_xor_b32 v3, v3, v0\nv_and_b32 v3, 7, v3\nv_mul_u32_u24 v1, 2560, v1\nv_lshl_add_u32 v1, v3, 4, v1\nv_add_u32 v{vX}, s3, v1")
a(f"s_add_u32 s3, s{sI}, s{sG}\ns_cmp_eq_u32 s3, 4\ns_cselect_b32 s3, {OOB:#x}, 0")
a(f"v_xor_b32 v{vX+1}, 64, v{vX}\nv_add_u32 v{vX+1}, 20480, v{vX+1}\nv_add_u32 v{vX+2}, 40960, v{vX}\nv_add_u32 v{vX+3}, 40960, v{vX+1}\nv_or_b32 v{vX+3}, s3, v{vX+3}")
for d, sz in ((X, 2048 * 1280), (W, 640 * 3840), (WO, 640 * 1280), (WS, 1 << 28), (OUT, 2048 * 1280), (DBG, 256), (WR, 1280)): a(f"s_mov_b32 s{d+2}, {sz:#x}\ns_mov_b32 s{d+3}, 0x20000")
a("s_waitcnt lgkmcnt(0)")
stamp(0)
def mv(d, n): return f"s_mov_b64 s[{d}:{d+1}], s[{KA[n]}:{KA[n]+1}]"
a(f"global_load_lds_dwordx4 v4, s[46:47]\ns_addk_i32 m0, -256\n{mv(X, 'x')}")
a(f"global_load_lds_dwordx4 v4, s[46:47] offset:1280\ns_addk_i32 m0, -256\n{mv(OUT, 'out')}")
a(f"global_load_lds_dwordx4 v4, s[46:47] offset:2560")
for d, n in ((DBG, "dbg"), (WS, "ws"), (W, "w"), (WO, "wo"), (WR, "wr")): a(mv(d, n))
sMT = 96
if OPT["mt"]: a(f"s_cmp_eq_u32 s{sWV}, 4\ns_cselect_b64 s[{sMT}:{sMT+1}], s[54:55], s[{sMT if OPT['stamps'] else 58}:{sMT+1 if OPT['stamps'] else 59}]\ns_cmp_eq_u32 s{sWV}, 5\ns_cselect_b64 s[{sMT}:{sMT+1}], s[56:57], s[{sMT}:{sMT+1}]")
if OPT["mt"] and OPT["stamps"]: a(f"s_cmp_ge_u32 s{sWV}, 6\ns_cselect_b64 s[{sMT}:{sMT+1}], s[58:59], s[{sMT}:{sMT+1}]")
def nextslab(): a(f"s_add_u32 s{sSB}, s{sSB}, 1\ns_cmp_eq_u32 s{sSB}, 10\ns_cselect_b32 s{sSB}, 0, s{sSB}")
def advslot(d): a(f"s_add_u32 s{d}, s{d}, {SLOT}\ns_cmp_eq_u32 s{d}, {S0 + 4*SLOT}\ns_cselect_b32 s{d}, {S0}, s{d}")
def xissue():
    a(f"s_add_u32 m0, s{sSL}, s{sLX}\ns_mov_b32 exec_lo, s{sXM}")
    for i in range(4):
        a(f"buffer_load_dwordx4 v{vX+i}, {S(X)}, s{sXO} offen lds")
        if i < 3: a("s_addk_i32 m0, 1024")
        if i == 0: a("s_mov_b32 exec_lo, -1")
a(f"s_cmp_lt_u32 s{sWV}, 5\ns_cbranch_scc1 L_nx")
a(f"s_lshl_b32 s{sLX}, s{sI}, 12\ns_cselect_b32 s{sXM}, -1, 0xffffff00\ns_lshl_b32 s{sXO}, s69, 7\ns_mov_b32 s{sSL}, {S0}")
xissue()
a("L_nx:")
stamp(1)
aKe, aK4, aKx, aKy = range(200, 204)
aQe, aQx, aQy, aQ4 = 204, 206, 208, 210
aVe, aV1, aV2 = range(216, 219)
vM, aRK, aCQ, aH0s, aH0l, aOs, aOl, aWO, aOUT, aL16, vRK, aXC, XR = 220, 222, 223, 224, 225, 226, 227, 228, 232, 233, 234, 235, 236
vAW, vAX0, vAX1, vSW, vSTR = 244, 245, 246, 247, 248
WRF, WSP = 244, 252
MASK = [lanes(lambda l: 2 * r + (l >> 5) > (l & 7)) for r in range(4)]
LO = lanes(lambda l: (l & 15) < 8)
sTA, sTP, sTS = 44, 44, 45
aOl2 = XR
def suA():
    a(f"s_mov_b32 s{sBUD}, {BUDGET}\ns_mul_i32 s{sGID}, s{sJ}, 3\ns_add_u32 s{sGID}, s{sGID}, s{sG}\ns_sub_u32 s3, s{sC}, 5\ns_cselect_b32 s{sC5}, s{sC}, s3")
    a(f"s_lshl_b32 s3, s{sWV}, 2\ns_lshr_b32 s{sTA}, 0x32105454, s3\ns_and_b32 s{sTA}, s{sTA}, 7\ns_lshr_b32 s45, s{sT}, 1\ns_add_u32 s45, s45, 4")
    a(f"s_cmp_eq_u32 s{sG}, 2\ns_cselect_b32 s{sNO}, 10, 11")
    a(f"s_sub_u32 s{sXT}, 8, s{sJ}\nv_lshlrev_b32 v{aL16}, 4, v0")
    a(f"s_mul_i32 s{sE2L}, s{sGID}, 6\ns_add_u32 s{sE2L}, s{sE2L}, s{sTP}\ns_mul_i32 s{sE2L}, s{sE2L}, 2560\ns_add_u32 s{sE2L}, s{sE2L}, {E2}")
    a(f"s_lshl_b32 s{sRJ}, s{sJ}, 15\ns_add_u32 s{sRJ}, s{sRJ}, {RJ}")
    a(f"s_sub_u32 s51, 5, s{sC5}\ns_add_u32 s1, s{sC5}, 1\ns_sub_u32 s3, 15, s{sC5}\ns_cmp_le_u32 s{sC5}, 2\n"
      "s_cselect_b32 s46, 0, s3\ns_cselect_b32 s47, s51, s1\ns_cselect_b32 s48, s3, 0\ns_cselect_b32 s49, s1, s51\ns_cselect_b32 s50, 1, 0")
    a("v_and_b32 v3, 15, v0\nv_add_u32 v3, 8, v3\nv_lshrrev_b32 v4, 1, v3\nv_lshrrev_b32 v5, 5, v0\nv_xor_b32 v4, v4, v5\nv_and_b32 v4, 7, v4")
    a(f"v_lshlrev_b32 v4, 4, v4\nv_lshl_add_u32 v4, v3, 7, v4\nv_bfe_u32 v5, v0, 4, 1\nv_lshl_add_u32 v4, v5, 3, v4\ns_lshl_b32 s3, s{sTP}, 11\nv_add_u32 v{aXC}, s3, v4")
def suB():
    a(f"v_and_b32 v1, 15, v0\nv_lshrrev_b32 v2, 4, v0\nv_mov_b32 v7, {ZR}\ns_mul_i32 s0, s{sTA}, {16*PITCH}\ns_movk_i32 s1, {PITCH}")
    a("v_bfe_u32 v3, v0, 2, 1\nv_and_b32 v4, 3, v0\nv_lshlrev_b32 v4, 1, v4"); a("v_lshl_add_u32 v3, v3, 3, v4\nv_bfe_u32 v4, v0, 3, 1\nv_add_u32 v3, v3, v4")
    a(f"s_add_u32 s3, s0, {KB}\nv_mov_b32 v4, s3\nv_mad_u32_u24 v3, v3, s1, v4")
    a(f"s_add_u32 s3, s0, {QB + 8*PITCH}\nv_mov_b32 v4, s3\nv_mad_u32_u24 v4, v1, s1, v4")
    smask(52, LO)
    def kq(dK, dQ, quad, cond):
        a(quad); a(f"v_lshl_add_u32 v{dK}, v5, 3, v3\nv_lshl_add_u32 v5, v5, 3, v4")
        if cond: a(cond); a("v_cndmask_b32 v5, v7, v5, vcc")
        a(f"v_cndmask_b32 v{dQ}, v7, v5, s[52:53]\nv_cndmask_b32 v{dQ+1}, v5, v7, s[52:53]")
    kq(aKe, aQe, "v_add_u32 v5, s51, v2", None)
    kq(aKx, aQx, "v_add_u32 v5, s46, v2", "v_cmp_gt_u32 vcc, s47, v2")
    kq(aKy, aQy, "v_add_u32 v5, s48, v2\nv_min_u32 v5, 15, v5", "v_cmp_gt_u32 vcc, s49, v2")
    a("s_sub_u32 s3, s51, 1\nv_mad_u32_u24 v5, v2, 5, s3\ns_add_u32 s3, s46, 4\nv_mov_b32 v6, s3\ns_mov_b64 vcc, 0xffff\nv_cndmask_b32 v5, v5, v6, vcc")
    a(f"v_min_u32 v5, 15, v5\nv_lshl_add_u32 v{aK4}, v5, 3, v3\nv_lshl_add_u32 v5, v5, 3, v4")
    a(f"s_cmp_eq_u32 s47, 5\ns_cselect_b64 vcc, 0xff, 0\nv_cndmask_b32 v{aQ4}, v7, v5, vcc\ns_lshl_b64 vcc, vcc, 8\nv_cndmask_b32 v{aQ4+1}, v7, v5, vcc")
    for i in range(2, 6): a(f"s_bfm_b64 vcc, 8, {8*i}\nv_cndmask_b32 v{aQ4+i}, v7, v5, vcc")
def suC():
    a(f"s_mul_i32 s0, s{sTA}, {16*PITCH}\ns_movk_i32 s1, {PITCH}")
    a("v_bfe_u32 v3, v0, 2, 3\nv_lshrrev_b32 v4, 5, v0\nv_lshl_add_u32 v3, v3, 1, v4")
    a(f"s_add_u32 s3, s0, {VB}\nv_mov_b32 v4, s3\nv_mad_u32_u24 v3, v3, s1, v4\nv_and_b32 v4, 3, v0")
    smask(54, lanes(lambda l: l & 3 == 0))
    a(f"v_add_u32 v5, s51, v4\nv_lshl_add_u32 v{aVe}, v5, 3, v3\nv_add_u32 v7, 32, v{aVe}")
    a(f"s_cmp_eq_u32 s50, 1\ns_cselect_b32 s3, -1, 12\ns_cselect_b32 s56, 2, -1")
    a(f"v_add_u32 v5, s3, v4\nv_lshl_add_u32 v5, v5, 3, v3\nv_cndmask_b32 v{aV1}, v5, v7, s[54:55]\nv_add_u32 v7, 40, v7")
    a(f"v_add_u32 v5, s56, v4\nv_add_u32 v6, 10, v5\nv_cmp_gt_i32 vcc, s51, v5"); a(f"v_cndmask_b32 v5, v6, v5, vcc\nv_lshl_add_u32 v5, v5, 3, v3\nv_cndmask_b32 v{aV2}, v5, v7, s[54:55]")
    a(f"s_lshl_b32 s0, s{sTA}, 8\nv_lshrrev_b32 v4, 5, v0\nv_and_or_b32 v3, v0, 8, v4\ns_add_u32 s3, s0, {STATS + 8}\nv_lshl_add_u32 v{aRK}, v3, 4, s3")
    a(f"v_and_b32 v1, 15, v0\ns_add_u32 s3, s0, {STATS + 128 + 4}\nv_lshl_add_u32 v{aCQ}, v1, 4, s3")
    a(f"s_lshr_b32 s3, s{sB0}, 8\ns_mul_i32 s3, s3, 52429\ns_lshr_b32 s3, s3, 18\ns_lshl_b32 s0, s{sTP}, 5\ns_add_u32 s3, s3, s0\ns_sub_u32 s3, 2047, s3\nv_mad_i32_i24 v{vRK}, v1, -2, s3")
def octaddr(d, tile, rowq, extra):
    a(f"s_lshl_b32 s3, s{tile}, 4\nv_add_u32 v5, s3, v{rowq}\ns_lshl_b32 s3, s{sNO}, 3\nv_cmp_gt_u32 vcc, s3, v5")
    a(f"v_mul_u32_u24 v5, 2560, v5\nv_add3_u32 v5, v5, v{extra}, s{sB0}\nv_cndmask_b32 v{d}, v6, v5, vcc")
def suD(helper=1):
    a(f"v_lshrrev_b32 v2, 4, v0\nv_and_or_b32 v3, v0, 8, v2\nv_and_b32 v4, 0x70, v{aL16}\nv_bfrev_b32 v6, 1")
    if helper: octaddr(aOl2, sTS, 3, 4)
    octaddr(aOl, sTA, 3, 4)
    a(f"s_lshl_b32 s3, s{sC}, 7\nv_add_u32 v{aOs}, s3, v{aOl}")
    a(f"v_bfe_u32 v3, v0, 4, 1\nv_cmp_eq_u32 s[54:55], s50, v3\ns_cmp_lg_u32 s{sC5}, 0\ns_cselect_b64 s[0:1], -1, s[54:55]\ns_and_b64 vcc, vcc, s[0:1]")
    a(f"s_cmp_lg_u32 s{sC5}, 4\ns_cselect_b64 s[0:1], 0, s[54:55]\ns_andn2_b64 vcc, vcc, s[0:1]")
    a(f"v_cndmask_b32 v{aH0l}, v6, v{aOs}, vcc")
    a(f"s_cmp_le_u32 s{sC5}, 3\ns_cselect_b32 s3, 2560, 0\ns_sub_u32 s3, s3, 128\nv_mov_b32 v4, s3"); a(f"s_cmp_ge_u32 s{sC5}, 2\ns_cselect_b32 s3, 2560, 0\ns_add_u32 s3, s3, 128\nv_mov_b32 v5, s3")
    a(f"v_cndmask_b32 v4, v4, v5, s[54:55]\nv_mul_u32_u24 v3, 2560, v3\nv_sub_u32 v4, v4, v3"); a(f"v_add_u32 v4, v4, v{aOs}\nv_cndmask_b32 v{aH0s}, v6, v4, vcc")
def wlane():
    a("v_bfe_u32 v3, v0, 3, 2\nv_lshlrev_b32 v3, 2, v3\nv_and_or_b32 v3, v0, 3, v3"); a("v_lshlrev_b32 v3, 3, v3\nv_bfe_u32 v4, v0, 2, 2\nv_lshl_add_u32 v3, v4, 7, v3")
def suE(helper=1):
    a("v_and_b32 v1, 15, v0\nv_bfrev_b32 v6, 1\nv_bfe_u32 v3, v0, 4, 1\nv_lshrrev_b32 v4, 5, v0"); a(f"v_lshl_add_u32 v3, v3, 1, v4\ns_lshl_b32 s3, s{sC}, 7\nv_lshl_add_u32 v4, v3, 4, s3")
    octaddr(aOUT, sTP, 1, 4)
    wlane()
    a("v_lshrrev_b32 v2, 4, v0")
    if helper:
        a(f"s_and_b32 s3, s{sWV}, 1\ns_lshl_b32 s3, s3, 12\ns_add_u32 s3, s3, {WOB}\nv_lshl_add_u32 v4, v2, 10, v3\nv_add_u32 v{aWO}, s3, v4")
        for ct in range(1, 4): a(f"v_xor_b32 v{aWO+ct}, {32*ct}, v{aWO}")
    for r in range(4): smask(sM + 2 * r, MASK[r])
    a(f"s_movk_i32 s{sLT}, 10240\ns_mov_b32 s{sP1}, 0x07060501\ns_mov_b32 s{sP2}, 0x0706000c")
    a("v_mov_b32 v5, 0xffff\nv_mov_b32 v6, 0xffff0000")
    for d in range(2): a(f"v_cndmask_b32 v1, 0, v5, s[{sM+4*d}:{sM+4*d+1}]\nv_cndmask_b32 v4, 0, v6, s[{sM+4*d+2}:{sM+4*d+3}]\nv_or_b32 v{vM+d}, v1, v4")
KQ, SS, KS, PX, FL_, FE, VF, HL, CQ, TM, F01 = 96, 152, 168, 176, 192, 196, 64, 92, 5, 6, 2
DM, LT, QF = SS, 80, KQ + 20
H, OF, WOF, RING = 8, 24, 104, 6
DEP = OPT["dep"]
def capt(slot, d=XR):
    a(f"v_add_u32 v1, {slot}, v{aXC}")
    for ct in range(4):
        if ct: a(f"v_xor_b32 v{1+ct}, {32*ct}, v1")
        a(f"ds_read_b64 {V(d+2*ct,2)}, v{1+ct}")
def hinit(d=XR):
    for i in range(8): a(f"v_lshlrev_b32 v{H+2*i}, 16, v{d+i}\nv_and_b32 v{H+2*i+1}, 0xffff0000, v{d+i}")
def ldWR():
    a(f"v_lshrrev_b32 v1, 4, v0\nv_lshlrev_b32 v1, 3, v1\ns_lshl_b32 s3, s{sC}, 7")
    for ct in range(4): a(f"buffer_load_dwordx2 {V(WRF+2*ct,2)}, v1, {S(WR)}, s3 offen offset:{32*ct}")
def wrprep(t):
    a(f"s_mov_b32 s3, {ONES:#x}")
    for i in range(4): a(f"v_mov_b32 v{t+i}, s3")
    execset(0x1111111111111111)
    for i in range(8): a(f"v_mov_b32 v{WRF+i}, s3")
    execset(-1)
    for k in range(2): mfma(WSP, WRF + 4 * k, t, "0" if k == 0 else None)
def pzero(lo=0, hi=16):
    for i in range(lo, hi): a(f"v_mov_b32 v{PX+i}, 0")
def ksread(e=None):
    e = e or a
    a(f"v_add_u32 v1, 128, v{aRK}")
    for r in range(4):
        e(f"v_cndmask_b32 v2, v1, v{aRK}, s[{sM+2*r}:{sM+2*r+1}]\nds_read_b64 {V(KS+2*r,2)}, v2 offset:{32*r}")
    e(f"ds_read_b32 v{CQ}, v{aCQ}")
def rdmode(): a(f"v_mov_b32 v1, {MODE}\nds_read_b32 v1, v1\ns_waitcnt lgkmcnt(0)\nv_readfirstlane_b32 s{sMODE}, v1")
def gsync_h(poll):
    l = a.label("gh")
    a(f"s_cmp_eq_u32 s{sMODE}, 1\ns_cbranch_scc0 {l}g\n{l}b:")
    t = f"{l}g:\ns_barrier\n"
    if poll:
        t += f"s_cmp_eq_u32 s{sWV}, 5\ns_cbranch_scc0 {l}e\nv_mov_b32 v1, 1\ns_mov_b64 exec, 1\nbuffer_store_dword v1, off, {S(WS)}, s{sFO} offset:64 sc1\ns_mov_b64 exec, -1\n"
        t += f"{l}p:\nbuffer_load_dword v1, v{vEA}, {S(WS)}, 0 offen offset:64 sc1\ns_waitcnt vmcnt(0)\nv_cmp_ne_u32 vcc, 1, v1\ns_cbranch_vccz {l}e\ns_sub_u32 s{sBUD}, s{sBUD}, 1\ns_cbranch_scc0 {l}p\ns_mov_b32 s{sBUD}, 0\n{l}e:\n"
    DEFER.append(t + f"s_barrier\ns_branch {l}b")
def weave(P, xs):
    xs = list(xs); per = -(-len(xs) // len(P))
    for p in P:
        a(p)
        for _ in range(per):
            if xs: a(xs.pop(0))
a("v_mov_b32 v254, v4")
suA()
a(f"s_cmp_lt_u32 s{sWV}, 4\ns_cbranch_scc1 L_cons")
vW, vT = 24, 56
STR = {5: 0, 3: 1, 13: 2, -3: 3, -13: 4}
def wo_setup():
    a(f"v_lshrrev_b32 v1, 3, v0\nv_and_b32 v2, 2, v1\nv_xor_b32 v2, v2, v0\ns_lshl_b32 s3, s{sWV}, 2\nv_xor_b32 v2, s3, v2")
    a(f"v_and_b32 v2, 7, v2\ns_lshl_b32 s3, s{sC}, 7\nv_lshl_add_u32 v2, v2, 4, s3")
    a(f"v_and_b32 v3, 3, v1\nv_mul_u32_u24 v3, 1280, v3\nv_add_u32 v2, v3, v2")
    a(f"v_lshrrev_b32 v3, 5, v0\nv_mul_u32_u24 v3, 5120, v3\nv_sub_u32 v4, 5120, v3")
    for d, i in STR.items(): a(f"v_mad_u32_u24 v{vT+i}, v{3 + (d < 0)}, {abs(d)}, v2")
def wo_quads(cp, h, g):
    c5 = cp % 5
    if h == 0: return 5 - c5 + g, 10 - c5 + g
    if g == 0: return 9 - c5, 14 - c5
    i = g - 1
    p = 3 + i if c5 <= 2 else i
    return (i if c5 <= 2 else 13 + i), (p if p < 5 - c5 else 10 + p)
def wo_piece(st, g):
    h, cp = st // 10, st % 10
    q0, q1 = wo_quads(cp, h, g or 0)
    t = f"s_lshl_b32 s3, s{sT}, 10\ns_add_u32 m0, s3, {WOB}" if st == 0 else "s_addk_i32 m0, 4096"
    o = (64*cp + 4*min(q0, q1)) * 1280
    t += f"\ns_add_u32 s3, s{sPF}, {o}" if g is None else f"\ns_mov_b32 s3, {o}"
    return t + f"\nbuffer_load_dwordx4 v{vT + STR[q1 - q0]}, {S(WO)}, s3 offen lds"
def wo_run(lo, hi, tag):
    for st in range(lo, min(hi, 10)): a(wo_piece(st, None))
    lo = max(lo, 10)
    if lo >= hi: return
    for g in range(1, 4):
        a(f"s_cmp_eq_u32 s{sT}, {g}\ns_cbranch_scc1 L_wo{tag}{g}")
        DEFER.append(f"L_wo{tag}{g}:\n" + "\n".join(wo_piece(st, g) for st in range(lo, hi)) + f"\ns_branch L_wo{tag}")
    for st in range(lo, hi): a(wo_piece(st, 0))
    a(f"L_wo{tag}:")
N0 = OPT["n0"]; NA = N0 + OPT["na"]; NB = NA + OPT["nb"]; N1 = NB + OPT["n1"]
assert 2 * DEP <= N0 <= N1 <= 20
vTC = 61
def touch_setup():
    a(f"s_mul_i32 s3, s{sT}, 24\nv_add_u32 v1, s3, v0\ns_add_u32 s3, s3, 24\ns_lshl_b32 s0, s{sNO}, 3\ns_min_u32 s3, s3, s0\nv_cmp_gt_u32 vcc, s3, v1")
    a(f"v_mul_u32_u24 v1, 2560, v1\ns_lshl_b32 s0, s{sC}, 7\ns_add_u32 s3, s0, s{sB0}\nv_add_u32 v1, s3, v1\nv_bfrev_b32 v2, 1\nv_cndmask_b32 v{vTC}, v2, v1, vcc")
    a(f"s_lshl_b32 s3, s{sG}, 2\ns_add_u32 s3, s3, s{sT}\ns_mul_i32 s3, s3, 1280\ns_add_u32 s3, s3, s0\nv_mul_u32_u24 v1, {12*1280}, v0\nv_add_u32 v{vTC+1}, s3, v1")
    a(f"s_mul_i32 s3, s{sT}, 3\nv_min_u32 v1, 2, v0\nv_add_u32 v1, s3, v1\nv_lshrrev_b32 v2, 1, v1\nv_mul_u32_u24 v2, {2560 - 256}, v2\nv_lshl_add_u32 v1, v1, 7, v2")
    a(f"s_mul_i32 s3, s{sGID}, 15360\ns_lshl_b32 s0, s{sC}, 8\ns_add_u32 s3, s3, s0\ns_add_u32 s3, s3, {E2}\nv_add_u32 v{vTC+2}, s3, v1")
    if OPT["mt"]:
        R = 64 * (10 - OPT["mx"]); per = -(-2 * R // 30)
        a(f"s_mul_i32 s3, s{sU}, {per}\nv_min_u32 v1, {per-1}, v0\nv_add_u32 v1, s3, v1\nv_min_u32 v1, {2*R-1}, v1\nv_cmp_le_u32 vcc, {R}, v1\nv_mul_u32_u24 v1, 3072, v1")
        a(f"s_mul_i32 s3, s{sJ}, 384\ns_add_u32 s3, s3, {64*OPT['mx']*3072}\nv_add_u32 v1, s3, v1\nv_subrev_u32 v2, {(R + 320)*3072 - 256}, v1\nv_cndmask_b32 v1, v1, v2, vcc")
        a(f"s_mul_i32 s3, s{sJ}, 60\ns_lshl_b32 s0, s{sU}, 1\ns_add_u32 s3, s3, s0\ns_and_b32 s0, s{sWV}, 1\ns_add_u32 s3, s3, s0\ns_lshl_b32 s3, s3, 12\nv_min_u32 v2, 31, v0\nv_lshl_add_u32 v2, v2, 7, s3")
        a(f"s_cmp_ge_u32 s{sWV}, 6\ns_cselect_b64 vcc, -1, 0\nv_cndmask_b32 v{vMT}, v1, v2, vcc")
vMT = 84
def mtouch(p):
    if OPT["mt"] == p: a(f"global_load_dword v{vMT}, v{vMT}, s[{sMT}:{sMT+1}]")
NT = bin(OPT["tch"]).count("1") + (OPT["mt"] > 0)
def xstart(i): nextslab(); a(f"s_lshl_b32 s{sXO}, s{sSB}, 7\ns_mov_b32 s{sSL}, {S0 + SLOT*(i % 4)}")
xstart(1)
if OPT["x1"] == 0: a(f"s_cmp_eq_u32 s{sWV}, 4\ns_cbranch_scc1 L_n1"); xissue(); a("L_n1:")
suB(); suC()
stamp(0, 5)
suD(); suE(); wo_setup(); touch_setup(); pzero()
a(f"s_cmp_eq_u32 s{sWV}, 4\ns_cbranch_scc1 L_h0")
E1_, E2_ = OPT["e1"], OPT["e2"]
assert 1 <= E1_ and E1_ + 2 <= E2_ <= 4
vXA = vEV
a(f"v_mov_b32 v4, {ONES:#x}\nv_mov_b32 v5, v4\nv_lshrrev_b32 v1, 4, v0\nv_mul_u32_u24 v1, {SLOT - 128}, v1\nv_lshl_add_u32 v1, v0, 3, v1\nds_write_b64 v1, v[4:5] offset:{S0}")
a(f"s_sub_u32 s0, s{sWV}, 5\ns_mul_i32 s3, s{sGID}, 3\ns_add_u32 s3, s3, s0\ns_mul_i32 s3, s3, 2560\ns_add_u32 s{sSPL}, s3, {SP}")
a(f"s_mul_i32 s3, s{sG}, 1280\ns_add_u32 s3, s3, s{sRJ}\ns_add_u32 s{sPF}, s3, {R_FL}\nv_min_u32 v1, 9, v0\nv_lshl_add_u32 v{vEA}, v1, 7, s{sPF}\ns_lshl_b32 s{sFO}, s{sC}, 7\ns_add_u32 s{sFO}, s{sFO}, s{sPF}")
a(f"v_and_b32 v1, 15, v0\nv_lshrrev_b32 v2, 5, v0\nv_lshl_add_u32 v2, v2, 4, v1\ns_lshl_b32 s0, s0, 5\nv_add_lshl_u32 v{vSTW}, v2, s0, 4")
a(f"v_lshrrev_b32 v2, 4, v0\nv_lshrrev_b32 v3, 1, v1\nv_xor_b32 v3, v3, v2\nv_lshlrev_b32 v3, 4, v3\nv_lshl_add_u32 v3, v1, 7, v3\nv_add_u32 v{vXA}, s{sLX}, v3")
a(f"s_cmp_lt_u32 s{sB0}, 2560\ns_cselect_b32 s3, 128, 0\nv_mov_b32 v1, 0xf149f2ca\nv_cmp_gt_u32 vcc, s3, v{vSTW}\nv_cndmask_b32 v{vBIA}, 0, v1, vcc")
stamp(1, 5)
if OPT["xprio"]: a(f"s_setprio {OPT['xprio']}")
if OPT["x1"] == 2: xissue()
ldWR()
for k in range(4): a(f"v_mov_b32 v{64+k}, {ONES:#x}")
a("s_waitcnt vmcnt(8) lgkmcnt(0)")
stamp(2, 5)
def part_stats():
    PD = 96
    a(f"v_xor_b32 v1, 64, v{vXA}")
    for t in range(2):
        for ks in range(2): a(f"ds_read_b128 {V(vXD+8*t+4*ks,4)}, v{1 if ks else vXA} offset:{S0 + 2048*t}")
    a(f"s_lshl_b32 s3, s{sC}, 8\ns_add_u32 s3, s3, s{sSPL}\nv_and_b32 v2, 0xf0, v{aL16}\ns_mov_b32 s0, 0xaaaaaaaa\ns_mov_b32 s1, s0\ns_mov_b32 vcc_lo, 0xcccccccc\ns_mov_b32 vcc_hi, 0xcccccccc")
    for t in range(2):
        for ks in range(2):
            a(f"s_waitcnt lgkmcnt({3 - 2*t - ks})")
            mfma(PD + 8 * t, vXD + 8 * t + 4 * ks, vXD + 8 * t + 4 * ks, None if ks else "0")
            mfma(PD + 8 * t + 4, 64, vXD + 8 * t + 4 * ks, None if ks else "0")
    for t in range(2):
        d = PD + 8 * t
        a(f"v_cndmask_b32 v{d}, v{d}, v{d+1}, s[0:1]\nv_cndmask_b32 v{d+2}, v{d+2}, v{d+3}, s[0:1]\nv_cndmask_b32 v{vSUM+2*t+1}, v{d}, v{d+2}, vcc\nv_mov_b32 v{vSUM+2*t}, v{d+4}")
    execset(0xF0000F0000F0000F)
    a(f"buffer_store_dwordx4 {V(vSUM,4)}, v2, {S(WS)}, s3 offen sc1")
    execset(-1)
    for i in range(4): a(f"v_mov_b32 v{vXD+8+i}, 0")
def only5(tag, fn):
    a(f"s_cmp_eq_u32 s{sWV}, 5\ns_cbranch_scc0 L_o5{tag}"); fn(); a(f"L_o5{tag}:")
def evchk(tag, cmp_, ld):
    a(f"s_waitcnt lgkmcnt(0)\n{cmp_}\ns_cbranch_scc0 L_er{tag}\nL_eg{tag}:")
    DEFER.append(f"L_er{tag}:\ns_sub_u32 s{sBUD}, s{sBUD}, 1\ns_cbranch_scc1 L_ex{tag}\n{ld}\ns_waitcnt lgkmcnt(0)\n{cmp_}\ns_cbranch_scc0 L_er{tag}\ns_branch L_eg{tag}\nL_ex{tag}:\ns_mov_b32 s{sBUD}, 0\ns_branch L_eg{tag}")
FR = [71, 73, 75, 77, 83, 85, 89, 91, 93, 95]
ldroot = f"s_lshl_b32 s0, s{sJ}, 5\nv_and_b32 v1, 16, v0\nbuffer_load_dword v{vSUM+4}, v1, {S(DBG)}, s0 offen sc1"
ldflag = "\n".join(f"s_buffer_load_dword s{r}, {S(WS)}, s{sPF} offset:{128*k} glc" for k, r in enumerate(FR))
for i in range(9):
    a("s_barrier")
    stamp(3 + i, 5)
    ex = 0
    if i == E1_ + 1:
        def f():
            evchk("a", f"v_cmp_ne_u32 vcc, 1, v{vSUM+4}\ns_cmp_eq_u64 vcc, 0", ldroot + "\ns_waitcnt vmcnt(0)")
            a(f"s_getreg_b32 s0, hwreg(HW_REG_XCC_ID, 0, 4)\nv_mov_b32 v1, s0\ns_mov_b64 exec, 1\nbuffer_store_dword v1, off, {S(WS)}, s{sFO} sc1\ns_mov_b64 exec, -1")
        only5("c", f)
    if i == E2_ + 2:
        for k in range(3):
            if k == 2: a("s_mov_b32 exec_hi, 0")
            a(f"buffer_load_dwordx4 {V(vXD+4*k,4)}, v{aL16}, {S(WS)}, s{sSPL} offen offset:{1024*k} sc1")
        a("s_mov_b32 exec_hi, -1"); ex += 3
    if i == 0: part_stats(); ex += 1
    if i < 8: xstart(i + 2); xissue()
    if i:
        a(f"s_cmp_eq_u32 s{sXT}, {i}\ns_cbranch_scc0 L_xc{i}\ns_mov_b32 s0, {S0 + SLOT * (i % 4)}\ns_call_b64 s[100:101], L_xcap\nL_xc{i}:")
    if i == E2_ + 1:
        def f():
            evchk("b", f"s_max_u32 s0, s{FR[0]}, s{FR[1]}\n" + "\n".join(f"s_max_u32 s0, s0, s{r}" for r in FR[2:]) + "\ns_cmp_lg_u32 s0, -1", ldflag)
            a(f"s_min_u32 s1, s{FR[0]}, s{FR[1]}\n" + "\n".join(f"s_min_u32 s1, s1, s{r}" for r in FR[2:]) + f"\ns_cmp_eq_u32 s0, s1\ns_cselect_b32 s0, {OPT['fmode']}, 0")
            a(f"v_mov_b32 v1, {MODE}\nv_mov_b32 v2, s0\nds_write_b32 v1, v2")
        only5("d", f)
    if i == E2_ + 3:
        a(f"s_waitcnt vmcnt({8 + ex})")
        for k in (4, 8):
            for e in range(4): a(f"v_add_f32 v{vXD+e}, v{vXD+e}, v{vXD+k+e}")
        a(f"v_permlane32_swap_b32 v{vXD}, v{vXD+2}\nv_permlane32_swap_b32 v{vXD+1}, v{vXD+3}\nv_add_f32 v{vXD}, v{vXD}, v{vXD+2}\nv_add_f32 v{vXD+1}, v{vXD+1}, v{vXD+3}")
        a(f"v_mov_b32 v{vXD+2}, v{vXD}\nv_mov_b32 v{vXD+3}, v{vXD+1}\ns_mov_b32 s1, 0x3acccccd\nv_mov_b32 v1, 0x3727c5ac")
        a(f"v_permlane16_swap_b32 v{vXD}, v{vXD+2}\nv_permlane16_swap_b32 v{vXD+1}, v{vXD+3}\nv_add_f32 v{vXD}, v{vXD}, v{vXD+2}\nv_add_f32 v{vXD+1}, v{vXD+1}, v{vXD+3}")
        a(f"v_mul_f32 v{vXD}, 0xbacccccd, v{vXD}\nv_fma_f32 v2, v{vXD+1}, s1, v1\nv_fma_f32 v2, -v{vXD}, v{vXD}, v2\nv_max_f32 v2, v2, v1\nv_rsq_f32 v{vXD+1}, v2\nv_mov_b32 v{vXD+3}, v{vBIA}\nv_mov_b32 v{vXD+2}, v{vXD+1}")
        a(f"ds_write_b128 v{vSTW}, {V(vXD,4)} offset:{STATS}")
    if 1 <= i <= 6 and OPT["pg"]:
        a(f"s_cmp_eq_u32 s{sWV}, 7\ns_cbranch_scc0 L_wm{i}"); warm("h", i - 1, 6); a(f"L_wm{i}:")
    if i == 0: pagebreak("c0")
    if i == 8: break
    if i == E1_ + 1: a(f"s_cmp_eq_u32 s{sWV}, 5\ns_cbranch_scc1 L_w5{i}\ns_waitcnt vmcnt({4 + ex})\nL_w5{i}:"); ex += 1
    a(f"s_waitcnt vmcnt({4 + ex}) lgkmcnt(0)")
    if i == E1_ - 1: only5("a", lambda: a(ldroot))
    if i == 3: wrprep(64)
    if i == E2_: only5("b", lambda: a(ldflag))
    if i == 2 and OPT["ppr"]:
        a(f"s_lshl_b32 s3, s{sC}, 8\ns_add_u32 s3, s3, s{sSPL}")
        for k in range(4): a(f"s_buffer_load_dword s75, {S(WS)}, s3 offset:{64*k}")
a(f"L_h8:\ns_mul_i32 s{sPF}, s{sT}, 5120")
wo_run(0, N0, "a")
ksread(); rdmode(); hinit(72)
a(f"s_waitcnt vmcnt({N0})")
stamp(2)
a("s_barrier")
stamp(3); stamp(9, 2); stamp(0, 3)
if not OPT['clr']: gsync_h(1)
for k, d in ((1, WO), (0, OUT), (2, WS)):
    if OPT["tch"] >> k & 1: a(f"buffer_load_dword v{vTC+k}, v{vTC+k}, {S(d)}, 0 offen")
mtouch(1)
wo_run(N0, NA, "d")
sO, sDW = 61, 65
a(f"s_and_b32 s3, s{sWV}, 1\ns_lshl_b32 s{sO}, s3, 7\ns_xor_b32 s{sO+1}, s{sO}, 128\ns_add_u32 s{sO+2}, s{sO+1}, s{sLT}\ns_add_u32 s{sO+3}, s{sO}, s{sLT}\ns_lshl_b32 s3, s3, 13\ns_sub_u32 s{sDW}, 4096, s3")
DEFER.append("L_xcap:\n" + "\n".join(capture(lambda: capt("s0", 72))) + "\ns_setpc_b64 s[100:101]")

def rdWO1(s, ct, e):
    t = ""
    if e == 0 and s in (5, 10, 15): t = {5: f"v_add_u32 v{aWO+ct}, s{sDW}, v{aWO+ct}", 10: f"v_add_u32 v{aWO+ct}, 40960, v{aWO+ct}", 15: f"v_subrev_u32 v{aWO+ct}, s{sDW}, v{aWO+ct}"}[s] + "\n"
    return t + f"ds_read_b64_tr_b16 {V(WOF + 16*(s % RING) + 4*ct + 2*e, 2)}, v{aWO+ct} offset:{8192*(s % 5) + 512*e}"
OL = [(s, w) for s in range(20) for w in range(2 if 5 <= s < 15 else 1)]
def oreg(k): return OF + 4 * (k % 20)
def ldO(k):
    s, w = OL[k]
    a(f"buffer_load_dwordx4 {V(oreg(k),4)}, v{aOl2 if w else aOl}, {S(OUT)}, s{sO + s // 5} offen offset:{256*(s % 5)} sc1")
def spin(tag, addr, cmp_, slp=0):
    a(f"{cmp_}\ns_cbranch_vccnz L_sp{tag}\nL_sb{tag}:")
    DEFER.append(f"L_sp{tag}:\n" + (f"s_sleep {slp}\n" if slp else "") + f"v_mov_b32 v1, {addr}\nds_read_b32 v1, v1\ns_waitcnt lgkmcnt(0)\n{cmp_}\ns_cbranch_vccnz L_sp{tag}\ns_branch L_sb{tag}")
def fold(A, B, F):
    for r in range(4): a(f"v_permlane16_swap_b32 v{A+r}, v{B+r}")
    for r in range(4): a(f"v_cndmask_b32 v{F[r]}, v{B+r}, v{A+r}, s[{sM+2*r}:{sM+2*r+1}]")
def softmax(F, P, mid=None):
    m, t = TM, TM + 1
    for r in range(4): a(f"v_fma_f32 v{F+r}, v{F+r}, v{KS+2*r}, v{KS+2*r+1}")
    a(f"v_max3_f32 v{m}, v{F}, v{F+1}, v{F+2}\nv_max_f32 v{m}, v{m}, v{F+3}\nv_mov_b32 v{t}, v{m}\nv_permlane32_swap_b32 v{m}, v{t}\nv_max_f32 v{m}, v{m}, v{t}\nv_mul_f32 v{m}, v{m}, v{CQ}")
    for r in range(4): a(f"v_fma_f32 v{F+r}, v{F+r}, v{CQ}, -v{m}")
    for r in range(4): a(f"v_exp_f32 v{F+r}, v{F+r}")
    if mid: mid()
    a(f"v_add_f32 v{m}, v{F}, v{F+1}\nv_add_f32 v{t}, v{F+2}, v{F+3}\nv_add_f32 v{m}, v{m}, v{t}\nv_mov_b32 v{t}, v{m}\nv_mul_f32 v{F}, v{F}, v{KS}\nv_mul_f32 v{F+1}, v{F+1}, v{KS+2}")
    a(f"v_permlane32_swap_b32 v{m}, v{t}\nv_mul_f32 v{F+2}, v{F+2}, v{KS+4}\nv_add_f32 v{m}, v{m}, v{t}\nv_rcp_f32 v{m}, v{m}\nv_mul_f32 v{F+3}, v{F+3}, v{KS+6}")
    for r in range(4): a(f"v_mul_f32 v{F+r}, v{F+r}, v{m}")
    a(f"v_cvt_pk_bf16_f32 v{F}, v{F}, v{F+1}\nv_cvt_pk_bf16_f32 v{F+1}, v{F+2}, v{F+3}")
    for hh in range(2):
        a(f"s_mov_b64 exec, s[{sLO}:{sLO+1}]" if hh == 0 else "s_not_b64 exec, exec")
        for d in range(2): a(f"v_and_b32 v{P+2*hh+d}, v{vM+d}, v{F+d}\nv_bfi_b32 v{P+4+2*hh+d}, v{vM+d}, 0, v{F+d}")
    a("s_mov_b64 exec, -1")
    for d in range(4): a(f"v_permlane16_swap_b32 v{P+d}, v{P+4+d}")
def ymask():
    a(f"s_add_u32 s0, s{sC5}, 1\ns_sub_u32 s1, 5, s{sC5}\ns_min_u32 s0, s0, s1\ns_lshl_b32 s0, s0, 4\ns_sub_u32 s1, 64, s0\ns_cmp_le_u32 s{sC5}, 2\ns_cselect_b32 s1, s1, 16\ns_bfm_b64 s[100:101], s0, s1")
def attention(T):
    helper = T == "h"; doL = T != "e"; doE = T != "l"
    L.reset()
    rid = {}
    KR = ((aKx, 0), (aKy, 0), (aK4, 0), (aKe, 0), (aKe, 40))
    QR = ((aQx, 0, 0), (aQy, 0, 1), (aQ4, 0, 2), (aQe, 0, 3), (aQe, 40, 4), (aQ4 + 2, 0, 2), (aQ4 + 4, 0, 2))
    def rk(i):
        k, o = KR[i]; d = KQ + 4 * i
        L(f"ds_read_b64 {V(d,2)}, v{k} offset:{o}"); L(f"ds_read_b64 {V(d+2,2)}, v{k} offset:{o + 8*PITCH}")
    def rq(i):
        q, o, _ = QR[i]; d = QF + 4 * i
        L(f"ds_read_b64 {V(d,2)}, v{q} offset:{o}"); rid[i] = L(f"ds_read_b64 {V(d+2,2)}, v{q+1} offset:{o}")
    def lg(i):
        L.wait(rid[i]); mfma(SS + (0, 4, 0, 8, 12, 8, 12)[i], KQ + 4 * QR[i][2], QF + 4 * i, "0" if i in (0, 1, 3, 4) else None)
    vid = {}
    def vreads():
        for i, (r_, o) in enumerate(((aVe, 0), (aVe, 40), (aV1, 0), (aV2, 0))):
            if doE or i >= 2:
                L(f"ds_read_b64_tr_b16 {V(VF+4*i,2)}, v{r_} offset:{o}")
                vid[i] = L(f"ds_read_b64_tr_b16 {V(VF+4*i+2,2)}, v{r_} offset:{o + 8*PITCH}")
    def lfold(): fold(SS, SS + 4, [F01, F01 + 1, FL_ + 2, FL_ + 3])
    def lpack(): a(f"v_or_b32 v{FL_}, 0xffff, v{F01}\nv_perm_b32 v{FL_+1}, v{F01+1}, v{F01}, s{sP1}")
    cq = f"v_mul_f32 v{CQ}, {CEXP:#x}, v{CQ}"
    if helper:
        ymask(); a(cq)
        a("s_barrier")
        for i in range(5): rk(i)
        wo_run(NA, NB, "e")
        if OPT["bv"] >= 0: a("s_barrier"); vreads()
        wo_run(NB, N1, "b")
        mtouch(2)
        a(f"s_setprio {OPT['aprio']}\ns_waitcnt vmcnt({NT + N1 - N0})")
        stamp(1, 3)
        a("s_barrier")
        stamp(4); stamp(2, 3)
        if STAGE == "A": a("s_branch L_dumpA")
        rq(0); rq(1); rq(2); rq(3); rq(4); lg(0); rq(5); lg(1); rq(6); lg(2); lg(3); lg(4); lg(5); lg(6); lfold(); lpack()
    elif doL: rk(0); rq(0); rk(1); rq(1); rk(2); rq(2); ymask(); lg(0); lg(1); lg(2); ksread(L); lfold(); lpack()
    else: rk(3); rq(3); rk(4); rq(4); rk(2); rq(5); rq(6); pzero(0, 8); lg(3); lg(4); ksread(L); lg(5); lg(6)
    if doL: lst(f"buffer_store_dwordx4 {V(FL_,4)}, v{aH0s}, {S(OUT)}, s{sLT} offen{{F}}")
    stamp(5); stamp(3, 3)
    if helper and OPT["wc"] == 0: wo_run(N1, 20, "c")
    hl = f"buffer_load_dwordx4 {V(HL,4)}, v{aH0l}, {S(OUT)}, s{sLT} offen sc1"
    prefill = lambda: [a(rdWO1(s_, ct, e)) for s_ in range(DEP) for ct in range(4) for e in range(2)] if helper else None
    early = lambda: [ldO(k) for k in range(OPT["ou"])] if helper else None
    late = f"buffer_store_dwordx4 {V(LT,4)}, v{aOs}, {S(OUT)}, s{sLT} offen{{F}}"
    if doE:
        fold(SS + 8, SS + 12, [FE + r for r in range(4)])
        if not helper: L.wait(L.n); a(cq)
        def mid():
            if not helper or OPT["bv"] < 0: vreads()
            if helper and OPT["wc"] == 1: wo_run(N1, 20, "c")
            if helper and OPT["hlp"] == 0: a(hl)
        softmax(FE, PX, mid)
        stamp(5, 3)
        if helper and OPT["hlp"] == 1: a(hl)
        L.wait(vid[3])
        for i in range(4): mfma(DM + 4 * i, VF + 4 * i, PX + 4 * (i & 1), "0")
        for i in range(4): a(f"v_cvt_pk_bf16_f32 v{FE+i}, v{DM+2*i}, v{DM+2*i+1}")
        lst(f"buffer_store_dwordx4 {V(FE,4)}, v{aOs}, {S(OUT)}, 0 offen{{F}}")
        stamp(6); stamp(6, 3)
        if T == "e": a(f"s_lshl_b32 s0, s{sWV}, 2\ns_add_u32 s0, s0, {HRD}\nv_mov_b32 v1, s0\nds_read_b32 v1, v1")
        for i in range(4): a(f"v_cvt_pk_bf16_f32 v{LT+i}, v{DM+8+2*i}, v{DM+8+2*i+1}")
        prefill()
    else:
        vreads(); pzero(8, 16); L.wait(L.n); a(cq); a(hl)
    if T == "e":
        a("s_waitcnt lgkmcnt(0)"); spin("r", "s0", "v_cmp_eq_u32 vcc, 0, v1", 1)
        execset(0xffff); lst(late); execset(-1)
        stamp(7); stamp(10, 3)
        return
    stamp(7, 3)
    a(f"s_waitcnt vmcnt({1 if doE else 0})\nv_cmp_eq_u32 vcc, -1, v{HL+2}\ns_cbranch_vccnz L_h0r{T}\nL_h0g{T}:")
    stamp(8, 3)
    DEFER.append(f"L_h0r{T}:\ns_sub_u32 s{sBUD}, s{sBUD}, 1\ns_cbranch_scc1 L_h0x{T}\n{hl}\ns_waitcnt vmcnt(0)\n"
                 f"v_cmp_eq_u32 vcc, -1, v{HL+2}\ns_cbranch_vccnz L_h0r{T}\ns_branch L_h0g{T}\nL_h0x{T}:\ns_mov_b32 s{sBUD}, 0\ns_branch L_h0g{T}")
    if helper: a(f"v_mov_b32 v1, {WFL}\nv_mov_b32 v4, 1\ns_mov_b64 exec, 1\nds_add_u32 v1, v4\ns_mov_b64 exec, -1")
    else: a(f"s_lshl_b32 s0, s{sWV}, 2\ns_add_u32 s0, s0, {HRD - 8}\nv_mov_b32 v1, s0\nds_write_b32 v1, v1")
    a(f"v_perm_b32 v{HL}, v{HL}, v{HL+1}, s{sP2}")
    for r in (1, 2, 3, 0): a(f"v_add_f32 v{FL_+r}, v{F01+r if r < 2 else FL_+r}, v{HL+r}")
    if OPT["opos"] == 0: early()
    softmax(FL_, PX + 8, early if OPT["opos"] == 1 else None)
    if OPT["opos"] == 2: early()
    stamp(9, 3)
    mfma(DM, VF + 8, PX + 8, "0"); mfma(DM + 4, VF + 12, PX + 8, "0"); mfma(DM + 8, VF + 12, PX + 12, "0")
    if helper: a("ds_read_b32 v1, v1")
    a("s_mov_b32 exec_lo, 0xffff0000")
    for i in range(4): a(f"v_cvt_pk_bf16_f32 v{LT+i}, v{DM+2*i}, v{DM+2*i+1}")
    a("s_mov_b64 exec, s[100:101]")
    for i in range(2): a(f"v_cvt_pk_bf16_f32 v{LT+2+i}, v{DM+8+2*i}, v{DM+8+2*i+1}")
    execset(-1 if doE else 0xffffffffffff0000)
    lst(late)
    stamp(7); stamp(10, 3)
attention("h")
if STAGE == "B": a("s_waitcnt vmcnt(0)"); finish()
pagebreak("h")
SH = 200
U = OPT["ou"]; nO = [U]
def ldOn():
    if nO[0] < len(OL): ldO(nO[0]); nO[0] += 1
L.reset()
stamp(8); stamp(0, 4)
idx = {o: k for k, o in enumerate(OL)}
GR = [[(0, 0), (1, 0)], [(2, 0), (3, 0)], [(4, 0)]] + [[(s, 0), (s, 1)] for s in range(5, 15)] + [[(15, 0), (16, 0)], [(17, 0), (18, 0)], [(19, 0)]]
GR = [[idx[o] for o in g] for g in GR]
first = {OL[g[0]][0]: i for i, g in enumerate(GR)}
issued = {}
def cmp_(G):
    r = [oreg(k) for k in GR[G]]
    if len(r) == 2: a(f"v_max_u16 v2, v{r[0]}, v{r[1]}\nv_cmp_eq_u16 vcc, -1, v2")
    else: a(f"v_cmp_eq_u16 vcc, -1, v{r[0]}")
def chk_a(G):
    last = GR[G][-1] + 1
    assert nO[0] >= last
    a(f"s_waitcnt vmcnt({nO[0] - last + (last <= U)})"); cmp_(G)
def chk_b(G):
    issued[G] = nO[0]
    a(f"s_cbranch_vccnz L_st{G}\nL_go{G}:")
a(f"s_lshl_b32 s0, s{sT}, 12\ns_add_u32 s0, s0, {EX}\nv_add_u32 v4, s0, v{aL16}\ns_and_b32 s0, s{sT}, 2\ns_lshl_b32 s0, s0, 1\ns_add_u32 s0, s0, {XFL}\nv_mov_b32 v3, s0\nv_mov_b32 v5, 1\ns_waitcnt lgkmcnt(0)")
spin("w", WFL, "v_cmp_ne_u32 vcc, 4, v1")
RQ = [(s, ct, e) for s in range(DEP, 20) for ct in range(4) for e in range(2)]
wid = {(s, ct): 0 for s in range(DEP) for ct in range(4)}
freed = set()
fid = [None]
def rdn(n):
    for _ in range(n):
        if not RQ: return
        s, ct, e = RQ[0]
        if s >= RING and (s - RING, ct) not in freed: return
        RQ.pop(0); wid[s, ct] = L(rdWO1(s, ct, e))
busy = [0]
chk_a(0); chk_b(0)
m = 0
for s in range(20):
    ms = [(ct, w) for ct in range(4) for w in range(2 if 5 <= s < 15 else 1)]
    for i, (ct, w) in enumerate(ms):
        if s + 1 in first and i == len(ms) - 2: chk_a(first[s + 1]); busy[0] = 1
        if s + 1 in first and i == len(ms) - 1: chk_b(first[s + 1]); busy[0] = 0
        while RQ and RQ[0][:2] <= (s, ct): rdn(1)
        if i == 0 and (not RQ or RQ[0][0] > s) and L.n - wid[s, 3] >= 6: L.wait(wid[s, 3])
        L.wait(wid[s, ct])
        mfma((SH if w else H) + 4 * ct, WOF + 16 * (s % RING) + 4 * ct, oreg(idx[s, w]), "0" if w and s == 5 else None)
        if w == len(ms) // 4 - 1: freed.add((s, ct))
        m += 1
        if (i == 0 or (i == 4) or (s in (3, 4) and i == 1)) and nO[0] < len(OL): ldOn(); rdn(1)
        elif s == 15 and i or s == 16 and i == 1: L(f"ds_write_b128 v4, {V(SH + 4*(i - 1 if s == 15 else 3), 4)} offset:{1024*(i - 1 if s == 15 else 3)}")
        elif s == 16 and i == 2: a("s_mov_b64 exec, 1"); L("ds_add_u32 v3, v5"); a("s_mov_b64 exec, -1")
        else: rdn(1 if 5 <= s < 15 and i >= OPT["r2"] else 2)
    if s == 0: stamp(9); stamp(11, 3)
    if s == 9: stamp(12, 3)
    if s & 1: stamp(1 + s // 2, 4)
assert nO[0] == len(OL)
for G in range(len(GR)):
    t = f"L_st{G}:\ns_sub_u32 s{sBUD}, s{sBUD}, 1\ns_cbranch_scc1 L_sx{G}\n"
    def re():
        for G2 in range(G, min(G + OPT["rsp"], len(GR))):
            for k in GR[G2]:
                if k < issued[G]: ldO(k)
        a("s_waitcnt vmcnt(0)"); cmp_(G)
    t += "\n".join(capture(re))
    t += f"\ns_cbranch_vccnz L_st{G}\ns_branch L_go{G}\nL_sx{G}:\ns_mov_b32 s{sBUD}, 0\ns_branch L_go{G}"
    DEFER.append(t)
a("L_tail:")
stamp(10)
HB, E1_, E2_, E2D, T0, RS = 24, 32, 36, 40, 52, 2
EV1 = OPT['e1']
for i in range(8): a(f"v_cvt_pk_bf16_f32 v{HB+i}, v{H+2*i}, v{H+2*i+1}")
for k in range(2):
    mfma(E2_, HB + 4 * k, HB + 4 * k, "0" if k == 0 else None)
    mfma(E1_, WRF + 4 * k, HB + 4 * k, "0" if k == 0 else None)
a("s_mov_b32 s0, 0x22222222\ns_mov_b32 s1, s0\ns_mov_b32 s44, 0x44444444\ns_mov_b32 s45, s44\ns_mov_b32 vcc_lo, 0x88888888\ns_mov_b32 vcc_hi, 0x88888888")
a(f"s_lshl_b32 s3, s{sC}, 8\ns_add_u32 s3, s3, s{sE2L}\nv_and_b32 v1, 0xf0, v{aL16}")
a(f"v_cndmask_b32 v{E2_}, v{E2_}, v{E2_+1}, s[0:1]\nv_cndmask_b32 v{E2_+2}, v{E2_+2}, v{E2_+3}, vcc\ns_or_b64 vcc, vcc, s[44:45]")
a(f"v_cndmask_b32 v{E1_+2}, v{E2_}, v{E2_+2}, vcc\nv_mov_b32 v{E1_+3}, v{WSP+1}")
execset(0xF0000F0000F0000F)
lst(f"buffer_store_dwordx4 {V(E1_,4)}, v1, {S(WS)}, s3 offen{{F}}")
execset(-1)
for i in range(4): a(f"v_mov_b32 v{E2D+8+i}, 0")
a(f"v_mov_b32 v4, 1.0\ns_mov_b32 s0, 0xbacccccd\ns_mov_b32 s1, 0x3acccccd\nv_mov_b32 v5, 0x3727c5ac\ns_mov_b32 s44, 0xfffff800\nv_mov_b32 v1, {KMAX}")
a(f"v_cmp_le_i32 s[46:47], 0, v{aOUT}")
a("L_e2:")
a(f"buffer_load_dwordx4 {V(E2D,4)}, v{aL16}, {S(WS)}, s{sE2L} offen sc1\nbuffer_load_dwordx4 {V(E2D+4,4)}, v{aL16}, {S(WS)}, s{sE2L} offen offset:1024 sc1")
a(f"s_mov_b32 exec_hi, 0\nbuffer_load_dwordx4 {V(E2D+8,4)}, v{aL16}, {S(WS)}, s{sE2L} offen offset:2048 sc1\ns_mov_b32 exec_hi, -1")
a("s_waitcnt vmcnt(1)")
for e in (0, 2): a(f"v_pk_add_f32 {V(E2D+e,2)}, {V(E2D+e,2)}, {V(E2D+4+e,2)}")
a("s_waitcnt vmcnt(0)")
for e in (0, 2): a(f"v_pk_add_f32 {V(E2D+e,2)}, {V(E2D+e,2)}, {V(E2D+8+e,2)}")
a(f"v_cmp_u_f32 vcc, v{E2D}, v{E2D}\ns_cbranch_vccnz L_e2r\nL_e2go:")
DEFER.append(f"L_e2r:\ns_sub_u32 s{sBUD}, s{sBUD}, 1\ns_cbranch_scc0 L_e2\ns_mov_b32 s{sBUD}, 0\ns_branch L_e2go")
stamp(11); stamp(11, 4)
for i in (0, 2, 3, 1): a(f"v_mfma_f32_16x16x4_f32 {V(T0+4*i,4)}, v4, v{E2D+i}, 0")
a(f"v_mul_f32 v6, s0, v{T0}\nv_fma_f32 v7, v{T0+8}, s1, v5\nv_fma_f32 v7, -v6, v6, v7\nv_max_f32 v7, v7, v5\nv_rsq_f32 v{RS}, v7")
a(f"v_fma_f32 v7, v6, v{T0+12}, v{T0+4}\nv_mul_f32 v7, v7, v{RS}\nv_mul_f32 v{RS+1}, v6, v{RS}")
a(f"v_ashrrev_i32 v6, 31, v7\nv_or_b32 v6, 0x80000000, v6\nv_xor_b32 v7, v7, v6\nv_and_or_b32 v7, v7, s44, v{vRK}\nv_cndmask_b32 v7, 0, v7, s[46:47]")
LN, LNB, OB = 72, 88, 96
lnops = [f"v_pk_fma_f32 {V(LN+2*i,2)}, {V(H+2*i,2)}, {V(RS,2)}, {V(RS,2)} op_sel:[0,0,1] op_sel_hi:[1,0,1]" for i in range(8)]
for k in (8, 4, 2, 1):
    a(lnops.pop(0)); a(lnops.pop(0))
    a(f"v_max_u32_dpp v6, v{7 if k == 8 else 6}, v{7 if k == 8 else 6} row_ror:{k} {DPPM}")
a("s_mov_b64 exec, 1\nds_max_u32 v1, v6\ns_mov_b64 exec, -1")
for i in range(8): a(f"v_cvt_pk_bf16_f32 v{LNB+i}, v{LN+2*i}, v{LN+2*i+1}")
a(f"s_mul_i32 s0, s{sG}, 1280\ns_lshl_b32 s3, s{sC}, 7\ns_add_u32 s0, s0, s3\ns_lshl_b32 s1, s0, 1\ns_add_u32 s0, s0, s{sRJ}\ns_add_u32 s1, s1, s{sRJ}\ns_add_u32 s1, s1, {R_BASE}")
a(f"s_lshl_b32 s3, s{sG}, 7\ns_add_u32 s3, s3, s{sRJ}\ns_add_u32 s3, s3, {R_KEY}\ns_lshl_b32 s44, s{sC}, 3\ns_add_u32 s44, s44, s{sWV}\nv_mul_u32_u24 v6, 384, v0")
a("v_and_b32 v5, 48, v0\nv_lshlrev_b32 v4, 1, v5")
a("s_waitcnt lgkmcnt(0)\ns_barrier\nds_read_b32 v1, v1")
for i in range(8): a(f"v_pk_add_f32 {V(LN+2*i,2)}, {V(LN+2*i,2)}, {V(H+2*i,2)}")
a(f"s_cmp_eq_u32 s44, 4\ns_waitcnt lgkmcnt(0)\nv_cmp_eq_u32 s[46:47], v1, v7\ns_cbranch_scc0 L_nk\ns_mov_b64 exec, 0xffff\nbuffer_store_dword v1, v6, {S(WS)}, s3 offen sc1\nL_nk:")
a("s_and_b64 exec, s[46:47], -1\ns_cbranch_scc0 L_nc")
a(f"buffer_store_dwordx4 {V(LNB,4)}, v4, {S(WS)}, s0 offen sc1\nbuffer_store_dwordx4 {V(LNB+4,4)}, v4, {S(WS)}, s0 offen offset:16 sc1")
a("L_nc:\ns_mov_b64 exec, -1")
stamp(12); stamp(12, 4)
for i in range(8): a(f"v_cvt_pk_bf16_f32 v{OB+i}, v{LN+2*i}, v{LN+2*i+1}")
for hh in range(2):
    for d in range(2): a(f"v_permlane16_swap_b32 v{OB+4*hh+d}, v{OB+4*hh+2+d}")
osc = " " + OPT["osc"].replace("_", " ").replace("plain", "")
a("s_not_b64 exec, s[46:47]")
for hh in range(2): a(f"buffer_store_dwordx4 {V(OB+4*hh,4)}, v{aOUT}, {S(OUT)}, 0 offen offset:{64*hh}{osc}")
a("s_and_b64 exec, s[46:47], -1\ns_cbranch_scc0 L_fin")
for hh in range(2): a(f"buffer_store_dwordx4 {V(OB+4*hh,4)}, v{aOUT}, {S(OUT)}, 0 offen offset:{64*hh} sc1")
a("s_waitcnt vmcnt(0)")
for ct in range(4): a(f"buffer_store_dwordx4 {V(LN+4*ct,4)}, v5, {S(WS)}, s1 offen offset:{64*ct} sc1")
a("L_fin:")
finish()
pagebreak(None, False)
deferred("h")

pad("c0")
a("L_h0:")
if OPT["prio"]: a("s_setprio 2")
a(f"v_lshrrev_b32 v1, 3, v0\nv_and_b32 v2, 2, v1\nv_xor_b32 v2, v2, v0\nv_and_b32 v2, 7, v2\ns_lshl_b32 s3, s{sC}, 7\nv_lshl_add_u32 v2, v2, 4, s3")
a(f"v_mul_u32_u24 v3, 3840, v1\nv_add_u32 v{vW}, v3, v2\nv_xor_b32 v{vW+3}, 64, v{vW}\nv_add_u32 v{vW+3}, {8*3840}, v{vW+3}\nv_mov_b32 v{vEA}, 0")
for p in range(2):
    for s_ in (1, 2): a(f"v_add_u32 v{vW+3*p+s_}, {256*s_}, v{vW+3*p}")
def wpieces():
    P = []
    for pp in range(8):
        for s_ in range(3):
            t = f"buffer_load_dwordx4 v{vW+3*(pp&1)+s_}, {S(W)}, s{sXO} offen offset:{1024*s_} lds"
            if s_ == 2 and pp < 7: t += "\ns_addk_i32 m0, 3072"
            if s_ == 2 and pp & 1 and pp < 7: t += f"\ns_add_u32 s{sXO}, s{sXO}, 61440"
            P.append(t)
    return P
stamp(1, 5)
ldWR()
a("s_waitcnt vmcnt(0)")
wrprep(64)
stamp(2, 5)
a("s_barrier")
a(f"s_mov_b32 s{sI}, 1\ns_mov_b32 s{sRD}, {S0 + SLOT}\nL_wl:")
nextslab(); advslot(sSL); a(f"s_mul_i32 s{sXO}, s{sSB}, 245760\ns_add_u32 m0, s{sSL}, 12288")
for p in wpieces(): a(p)
a(f"s_mov_b32 s0, s{sRD}\ns_mov_b32 s{sRD}, s{sSL}\ns_cmp_eq_u32 s{sXT}, s{sI}\ns_waitcnt vmcnt(24) lgkmcnt(0)\ns_barrier\ns_cbranch_scc0 L_wc\ns_call_b64 s[100:101], L_xcap\nL_wc:")
a(f"s_add_u32 s{sI}, s{sI}, 1\ns_cmp_lt_u32 s{sI}, 9\ns_cbranch_scc1 L_wl")
a("s_branch L_h8")

ACC, XF, WF, ST, CS = 8, 80, 152, 180, 192
pagebreak(None, False)
a("L_cons:")
def clears(fl):
    a("v_mov_b32 v4, -1\nv_mov_b32 v5, -1\nv_mov_b32 v6, -1\nv_mov_b32 v7, -1")
    a(f"v_lshrrev_b32 v1, 3, v0\nv_mul_u32_u24 v1, 2560, v1\nv_and_b32 v2, 0x70, v{aL16}\ns_lshl_b32 s3, s{sC}, 7\ns_add_u32 s3, s3, s{sB0}\nv_add3_u32 v1, v1, v2, s3")
    a(f"s_mul_i32 s0, s{sT}, 20480\ns_add_u32 s1, s0, 81920\ns_add_u32 s3, s{sT}, 8\ns_cmp_lt_u32 s3, s{sNO}\ns_cselect_b32 s3, s1, {OOB:#x}\ns_add_u32 s3, s3, 81920")
    for r in (0, 1, 3): a(f"buffer_store_dwordx4 v[4:7], v1, {S(OUT)}, s{r} offen{fl}")
    a(f"v_lshrrev_b32 v1, 4, v0\nv_mul_u32_u24 v1, {2560 - 256}, v1\nv_add_u32 v1, v1, v{aL16}")
    a(f"s_mul_i32 s1, s{sGID}, 15360\ns_lshl_b32 s3, s{sC}, 8\ns_add_u32 s1, s1, s3\ns_and_b32 s3, s{sT}, 1\ns_mul_i32 s3, s3, 7680\ns_add_u32 s1, s1, s3\ns_add_u32 s1, s1, {E2}")
    a(f"s_cmp_lt_u32 s{sT}, 2\ns_cselect_b32 s1, s1, {OOB:#x}\ns_mov_b32 exec_hi, 0xffff\nbuffer_store_dwordx4 v[4:7], v1, {S(WS)}, s1 offen{fl}\ns_mov_b64 exec, -1")
    return 4
if OPT["pf0"] & 1:
    a(f"s_cmp_eq_u32 s{sWV}, 0\ns_cbranch_scc0 L_pa\ns_mul_i32 s3, s2, {27*128}\nv_lshlrev_b32 v1, 7, v0\ns_mov_b64 exec, {(1 << 27) - 1:#x}\nbuffer_load_dword v255, v1, {S(WO)}, s3 offen\ns_mov_b64 exec, -1\nL_pa:")
if OPT["pf0"] & 2:
    a(f"s_cmp_eq_u32 s{sWV}, 1\ns_cbranch_scc0 L_pb\ns_lshl_b32 s3, s{sC}, 2\ns_add_u32 s3, s3, s{sJ}\ns_sub_u32 s0, s3, 40\ns_cselect_b32 s3, s3, s0\ns_mul_i32 s3, s3, {16*3840}")
    a(f"s_mul_i32 s0, s{sG}, 1280\ns_add_u32 s3, s3, s0\ns_lshl_b32 s0, s{sC}, 7\ns_add_u32 s3, s3, s0\nv_mul_u32_u24 v1, 3840, v0\ns_mov_b64 exec, 0xffff\nbuffer_load_dword v255, v1, {S(W)}, s3 offen\ns_mov_b64 exec, -1\nL_pb:")
if OPT["cpos"] == 2: ncl = clears(" sc1" if OPT["clr"] else "")
def w1():
    a(f"s_cmp_eq_u32 s{sSB}, 9\ns_cselect_b32 s3, {-10*245760}, 0\ns_add_u32 s3, s3, 245760\nv_add_u32 v254, s3, v254\ns_mul_i32 s3, s{sT}, 3072\ns_add_u32 m0, s3, {S0 + SLOT + 12288}\ns_mov_b32 s0, {32*3840}")
    for h in range(2):
        for k in range(3):
            a(f"buffer_load_dwordx4 v254, {S(W)}, {'s0' if h else 0} offen offset:{1280*k} lds")
            if (h, k) != (1, 2): a(f"s_addk_i32 m0, {-256 if k < 2 else 12288 + 512}")
suB(); suC()
if OPT["w1"] == 0: w1()
suD(0); suE(0)
a(f"s_lshl_b32 s3, s{sT}, 5\nv_xor_b32 v3, s3, v3\nv_mul_u32_u24 v4, 3072, v2\nv_add_u32 v3, v3, v4\nv_add_u32 v{vAW}, {S0 + 12288}, v3\ns_mov_b32 s{sI}, 0")
stamp(0, 5)
if OPT["cpos"] == 0: ncl = clears(" sc1" if OPT["clr"] else "")
stamp(1, 5)
a(f"v_mov_b32 v3, 0\nv_lshlrev_b32 v2, 2, v0\ns_mov_b32 exec_hi, 0")
a(f"ds_write_b32 v2, v3 offset:{MODE}\nds_write_b32 v2, v3 offset:{MODE + 8*PITCH}\ns_mov_b64 exec, -1")
a("v_and_b32 v1, 15, v0\nv_lshrrev_b32 v2, 4, v0")
a(f"v_lshrrev_b32 v3, 1, v1\nv_xor_b32 v3, v3, v2\nv_lshlrev_b32 v3, 4, v3\nv_lshl_add_u32 v3, v1, 7, v3\nv_add_u32 v{vAX0}, {S0}, v3\nv_xor_b32 v{vAX1}, 64, v{vAX0}")
a(f"v_mul_u32_u24 v3, {PITCH}, v1\nv_lshl_add_u32 v3, v2, 3, v3\ns_lshl_b32 s3, s{sT}, 5\ns_add_u32 s3, s3, {QB}\nv_add_u32 v{vSW}, s3, v3")
a(f"v_lshlrev_b32 v{vSTR}, 4, v1")
assert STATS == 0
if OPT["pg"]:
    for k in range(4): a(f"s_cmp_eq_u32 s{sWV}, {k}\ns_cbranch_scc0 L_cw{k}"); warm("c0", k, 4); a(f"L_cw{k}:")
if OPT["w1"] == 1: w1()
if OPT["cpos"] == 1: ncl = clears(" sc1" if OPT["clr"] else "")
assert OPT["cpos"] == 1
a(f"s_cmp_lt_u32 s{sWV}, 2\ns_cselect_b32 s{sXT}, s{sXT}, 99")
a(f"s_mov_b32 s{sRD}, {S0}\ns_min_u32 s{sEV}, s{sXT}, {E1_}\ns_waitcnt vmcnt({ncl + 6}) lgkmcnt(0)")
def rdW(d, s_, ks):
    L(f"ds_read_b64_tr_b16 {V(d,2)}, v{vAW} offset:{12288*ks + 1024*s_}")
    return L(f"ds_read_b64_tr_b16 {V(d+2,2)}, v{vAW} offset:{12288*ks + 1024*s_ + 512}")
def rdX(d, t, ks): return L(f"ds_read_b128 {V(d+4*t,4)}, v{vAX0+ks} offset:{2048*t}")
def acc(s_, t): return ACC + 4 * (6 * s_ + t)
stamp(2); stamp(2, 5)
SEG = (1, 2, 0)
PRE = OPT["pre"]
def rdlist(ph):
    o = []
    def w(s_):
        d = WV2 if (ph, s_) == (1, 1) else WF + 12 * ph + 4 * s_
        for e in range(2): o.append((("w", ph, s_), f"ds_read_b64_tr_b16 {V(WF+12*ph+4*s_+2*e,2)}, v{vAW} offset:{12288*ph + 1024*s_ + 512*e}"))
    w(SEG[0])
    for t in range(6): o.append((("x", ph, t), f"ds_read_b128 {V(XF+24*ph+4*t,4)}, v{vAX0+ph} offset:{2048*t}"))
    w(SEG[1]); w(SEG[2])
    return o
WV2 = WF + 24
def step(first):
    a("s_barrier")
    stampi(0)
    L.reset(); ids = {}
    M = [(s_, t) for s_ in SEG for t in range(6)]
    seq = ([] if first else [(1, "o") + m for m in M[PRE:]]) + [(0, "n") + m for m in M] + [(1, "n") + m for m in M[:PRE]]
    no = 0 if first else 18 - PRE
    pend = rdlist(0); p1 = rdlist(1)
    def rd(n=1):
        for _ in range(n):
            if pend: k, tx = pend.pop(0); ids[k] = L(tx)
    rd(12 if first else 2)
    fill = [f"s_add_u32 s3, s{sRD}, {SLOT}\ns_cmp_eq_u32 s3, {S0 + 4*SLOT}", f"s_cselect_b32 s3, {S0}, s3\ns_sub_u32 s{sDL}, s3, s{sRD}",
            f"s_mov_b32 s{sRD}, s3\nv_add_u32 v{vAX0}, s{sDL}, v{vAX0}", f"v_add_u32 v{vAW}, s{sDL}, v{vAW}\nv_add_u32 v{vAX1}, s{sDL}, v{vAX1}"]
    if not first: fill.append(f"s_cmp_eq_u32 s{sI}, s{sEV}\ns_cbranch_scc1 L_ev\nL_evb:")
    fill.append("STAMP"); fill.append(f"s_add_u32 s{sI}, s{sI}, 1\ns_cmp_lt_u32 s{sI}, 9"); fill.append(f"s_waitcnt vmcnt({ncl}) lgkmcnt(0)" if first else "s_waitcnt lgkmcnt(0)")
    for n, (ph, kd, s_, t) in enumerate(seq):
        if n == no: pend += p1
        if kd == "n":
            need = max(ids["x", ph, t], ids["w", ph, s_])
            if s_ == SEG[0] and t == 0 and L.n - ids.get(("x", ph, 5), L.n) >= 4: need = ids["x", ph, 5]
            L.wait(need)
        mfma(acc(s_, t), WF + 12 * ph + 4 * s_, XF + 24 * ph + 4 * t, "0" if first and ph == 0 else None)
        if pend: rd()
        elif n >= no and fill and (len(fill) > 1 or n >= len(seq) - 2):
            f = fill.pop(0)
            if f == "STAMP": stampi(1)
            else: a(f)
    for f in fill: stampi(1) if f == "STAMP" else a(f)
step(1)
CL0 = len(a.lines)
pagebreak("c0")
a("L_cloop:")
step(0)
a("s_cbranch_scc1 L_cloop")
L.reset(); ids = {}
def wreg(ks, s_): return WV2 if (ks, s_) == (1, 1) else WF + 12 * ks + 4 * s_
later = []
def lw(ks, s_):
    for e in range(2): later.append((("w", ks, s_), f"ds_read_b64_tr_b16 {V(wreg(ks,s_)+2*e,2)}, v{vAW} offset:{12288*ks + 1024*s_ + 512*e}"))
def lx(ks):
    for t in range(6): later.append((("x", ks, t), f"ds_read_b128 {V(XF+48*ks+4*t,4)}, v{vAX0+ks} offset:{2048*t}"))
lw(0, 1); lx(0); lw(1, 1); lx(1); lw(0, 2); lw(0, 0)
def rd_later(n=1):
    for _ in range(n):
        if later: k, tx = later.pop(0); ids[k] = L(tx)
def old(s_, t): mfma(acc(s_, t), WF + 12 + 4 * s_, XF + 24 + 4 * t)
def new(s_, ks, t):
    L.wait(max(ids["w", ks, s_], ids["x", ks, t])); mfma(acc(s_, t), wreg(ks, s_), XF + 48 * ks + 4 * t)
def mlist(s_): return [(s_, "o", t) for t in range(6)] + [(s_, ks, t) for ks in range(2) for t in range(6)]
def mm(q):
    s_, k, t = q.pop(0)
    if k != "o" and ("w", k, s_) not in ids: rd_later(9)
    old(s_, t) if k == "o" else new(s_, k, t)
    if k == "o" and t == 5 and s_ != 1: lw(1, s_)
def fixup(s_, q, per):
    for r in range(4):
        a(f"v_mov_b32_dpp v{CS+r}, v{acc(s_,0)+r} row_newbcast:0 {DPPM}")
    wr = None
    for t in range(6):
        A = acc(s_, t); st = V(ST + 2 * t, 2)
        if per or not OPT["pk"]:
            ops = [f"v_fmac_f32 v{A+h}, v{CS+h}, v{ST+2*t}" for h in range(4)]
        else:
            ops = [f"v_pk_fma_f32 {V(A+h,2)}, {V(CS+h,2)}, {st}, {V(A+h,2)} op_sel_hi:[1,0,1]" for h in (0, 2)]
        ops += [f"v_cvt_pk_bf16_f32 v{A}, v{A}, v{A+1}", f"v_cvt_pk_bf16_f32 v{A+1}, v{A+2}, v{A+3}"]
        for i, o in enumerate(ops):
            if q and ((per >= 2 and i == 3) or (per >= 3 and i == 0)): mm(q)
            a(o)
        if q and per >= 1: mm(q)
        if (s_, t) in ((2, OPT["bk"]), (0, OPT["bv"])): L.wait(L.n - t); a("s_barrier")
        L(f"ds_write_b64 v{vSW}, {V(A,2)} offset:{TSTR*s_ + 16*PITCH*t}")
km, qm, vm = mlist(1), mlist(2), mlist(0)
a(f"v_mov_b32 v1, {MODE}")
sr = ["ds_read_b32 v1, v1"] + [f"ds_read2_b64 {V(ST+2*t,4)}, v{vSTR} offset0:{32*t} offset1:{32*t + 32}" for t in range(0, 6, 2)]
for i in range(PRE):
    s_, _, t = (km if i < 6 else qm if i < 12 else vm).pop(0)
    if t == 5 and s_ != 1: lw(1, s_)
for o in sr: a(o)
a(f"s_waitcnt lgkmcnt(0)\nv_readfirstlane_b32 s{sMODE}, v1\ns_barrier")
stamp(3); stamp(9, 2); stamp(0, 3)
if not OPT["clr"]: a(f"s_cmp_eq_u32 s{sMODE}, 1\ns_cbranch_scc0 L_gs\nL_gsb:")
rd_later(2)
n = 0
for q in (km, qm, vm):
    while q[0][1] == "o" and (n < 6 or q is km): mm(q); rd_later(); n += 1
rd_later(2)
while km: mm(km); rd_later()
mm(qm); rd_later(9)
assert not later
fixup(1, qm, -(-len(qm) // 6))
while qm: mm(qm)
mm(vm)
fixup(2, vm, -(-len(vm) // 6))
while vm: mm(vm)
fixup(0, [], 0)
stamp(1, 3)
a("s_waitcnt lgkmcnt(0)\ns_barrier")
stamp(4); stamp(2, 3)
if STAGE == "A":
    a("L_dumpA:")
    a(f"s_lshl_b32 s3, s{sWV}, 10\nv_add_u32 v1, s3, v{aL16}\ns_mul_i32 s3, s2, 49152\ns_add_u32 s3, s3, {DUMP}")
    for i in range(6):
        a(f"ds_read_b128 v[16:19], v1 offset:{8192*i}\ns_waitcnt lgkmcnt(0)\nbuffer_store_dwordx4 v[16:19], v1, {S(WS)}, s3 offen\ns_waitcnt vmcnt(0)\ns_add_u32 s3, s3, 8192")
    finish()
a(f"s_cmp_lt_u32 s{sWV}, 2\ns_cbranch_scc0 L_c23")
attention("e")
if STAGE == "B": a("s_waitcnt vmcnt(0)"); finish()

ldWR(); hinit()
a(f"s_lshl_b32 s0, s{sWV}, 13\ns_add_u32 s0, s0, {EX}\nv_add_u32 v4, s0, v{aL16}\ns_lshl_b32 s0, s{sWV}, 2\ns_add_u32 s0, s0, {XFL}\ns_waitcnt vmcnt(0)")
wrprep(XR)
a("L_fx:\ns_sleep 1\nv_mov_b32 v1, s0\nds_read_b32 v1, v1\ns_waitcnt lgkmcnt(0)\nv_cmp_ne_u32 vcc, 2, v1\ns_cbranch_vccnz L_fx")
stamp(9); stamp(9, 4)
if OPT["lprio"]: a(f"s_setprio {OPT['lprio']}")
for q in range(8): a(f"ds_read_b128 {V(OF+4*q,4)}, v4 offset:{1024*q}")
for q in range(8):
    a(f"s_waitcnt lgkmcnt({7-q})")
    for e in range(4): a(f"v_add_f32 v{H+4*(q&3)+e}, v{H+4*(q&3)+e}, v{OF+4*q+e}")
stamp(10, 4)
a("s_branch L_tail")
deferred()
CL1 = len(a.lines)
pad("h")
a("L_c23:")
attention("l")
if STAGE == "B": a("s_waitcnt vmcnt(0)")
finish()
deferred()
a(f"L_ev:\ns_cmp_eq_u32 s{sI}, {EV1}\ns_cbranch_scc0 L_ev1\ns_waitcnt vmcnt(0)\nL_ev1:\ns_max_u32 s{sEV}, s{sXT}, {EV1}")
a(f"s_cmp_eq_u32 s{sI}, s{sXT}\ns_cbranch_scc0 L_evb\ns_sub_u32 s0, s{sRD}, s{sDL}"); capt("s0"); a("s_branch L_evb")
if not OPT["clr"]:
    a("L_gs:")
    clears(" sc1")
    a("s_waitcnt vmcnt(0)\ns_barrier\ns_barrier\ns_branch L_gsb")

if OPT["pg"]:
    mv_ = a.lines[CL1:]; del a.lines[CL1:]; a.lines[CL0+1:CL0+1] = mv_

GATE, UP, DOWN, SM = 4, 8, 12, 28
sMm = 36
GSL = 42240; NGS = 3; MISC = NGS * GSL
SSZ = 8448
ACTB, MZ, WINB, LNL = MISC, MISC + 192, MISC + 256, MISC + 512
GF, DF, GA, XS, IDX = 8, 168, 228, 236, 7
a("L_moe:")
a(f"s_cmp_ge_u32 s{sU}, 32\ns_cbranch_scc1 L_end")
a(f"s_lshr_b32 s{sWV}, s{sWV}, 6\nv_and_b32 v0, 63, v0\ns_lshl_b32 s{sMm}, s{sJ}, 1\ns_add_u32 s{sMm}, s{sMm}, s{sU}\ns_sub_u32 s{sMm}, s{sMm}, 30\ns_mov_b32 s{sBUD}, {BUDGET}")
a("v_lshlrev_b32 v6, 4, v0\nv_mov_b32 v132, 0\nv_mov_b32 v133, 0\ns_waitcnt lgkmcnt(0)")
mksrd(WS, "ws", 1 << 28); mksrd(DBG, "dbg", 256); mksrd(GATE, "gate", 640 * 3072); mksrd(UP, "up", 640 * 3072); mksrd(DOWN, "down", 1536 * 1280); mksrd(OUT, "out", 2048 * 1280)
stamp(0)
a("v_mov_b32 v8, -1\nv_mov_b32 v9, -1\nv_mov_b32 v10, -1\nv_mov_b32 v11, -1")
a(f"s_lshl_b32 s0, s{sMm}, 14\ns_lshl_b32 s3, s{sWV}, 11\ns_add_u32 s0, s0, s3\ns_add_u32 s0, s0, {RJ}")
for i in range(2): a(f"buffer_store_dwordx4 v[8:11], v6, {S(WS)}, s0 offen offset:{1024*i} sc1")
def rootup(n):
    a(f"s_waitcnt vmcnt({n})\ns_barrier\ns_cmp_eq_u32 s{sWV}, 0\ns_cbranch_scc0 L_nroot")
    a(f"s_lshl_b32 s0, s{sMm}, 4\nv_mov_b32 v8, 1\ns_mov_b64 exec, 1\nbuffer_store_dword v8, off, {S(DBG)}, s0 sc1\ns_mov_b64 exec, -1\nL_nroot:")
if STAGE != "F": rootup(0); finish()
vGX, vGS, vRX, vRS = 4, XS + 13, XS + 14, XS + 15
sB5, sKO = 44, 45
a(f"s_and_b32 s{sB5}, s{sMm}, 1\ns_mul_i32 s0, s{sJ}, 384\ns_lshl_b32 s1, s{sB5}, 8\ns_add_u32 s1, s1, s0\ns_mul_i32 s3, s{sWV}, {8*3072}\ns_add_u32 s1, s1, s3")
a(f"v_lshrrev_b32 v1, 3, v0\nv_mul_u32_u24 v1, 3072, v1\ns_lshr_b32 s3, s{sWV}, 1\nv_xor_b32 v2, s3, v0\nv_and_b32 v2, 7, v2\nv_lshl_add_u32 v1, v2, 4, v1\nv_add_u32 v{vGX}, s1, v1\nv_xor_b32 v{vGX+1}, 64, v{vGX}")
a(f"s_lshl_b32 s1, s{sB5}, 6\ns_add_u32 s0, s0, s1\ns_and_b32 s3, s{sWV}, 3\ns_mul_i32 s1, s3, {16*3072}\ns_add_u32 s0, s0, s1\ns_add_u32 s0, s0, 128")
a(f"v_lshrrev_b32 v1, 2, v0\nv_mul_u32_u24 v1, 3072, v1\nv_xor_b32 v2, s3, v0\nv_and_b32 v2, 3, v2\nv_lshl_add_u32 v1, v2, 4, v1\nv_add_u32 v{vGS}, s0, v1")
a(f"s_cmp_lt_u32 s{sWV}, 4\ns_cselect_b64 s[{SM}:{SM+1}], s[{GATE}:{GATE+1}], s[{UP}:{UP+1}]\ns_cselect_b32 s62, 0, 128\ns_mov_b32 s{SM+2}, {640*3072:#x}\ns_mov_b32 s{SM+3}, 0x20000")
a(f"s_lshl_b32 s61, s{sWV}, 10\ns_add_u32 s62, s62, s61\ns_mul_i32 s{sB5}, s{sB5}, {5*64*3072}\ns_mul_i32 s46, s{sMm}, {96*1280}")
def koff(i): a(f"s_add_u32 s{sKO}, s{sB5}, {i*64*3072}" if i < 5 else f"s_sub_u32 s{sKO}, {i*64*3072}, s{sB5}")
def dissue(hh, i, sl):
    a(f"s_lshl_b32 s3, s{sWV}, 6\ns_addk_i32 s3, {512*i}\nv_add_u32 v1, s3, v0\nv_mul_u32_u24 v2, 52429, v1\nv_lshrrev_b32 v2, 22, v2")
    a(f"v_and_b32 v3, 3, v2\nv_lshlrev_b32 v3, 1, v3\nv_and_or_b32 v3, v2, 8, v3\nv_xor_b32 v1, v1, v3\nv_lshlrev_b32 v1, 4, v1")
    a(f"s_add_u32 m0, s61, {sl + 8192*i}\ns_add_u32 s3, s46, {40960*hh}\nbuffer_load_dwordx4 v1, {S(DOWN)}, s3 offen lds")
UN = [[("x", i), ("s", i)] for i in range(5)] + [[("x", 5), ("x", 6)], [("x", 7), ("x", 8)], [("x", 9)]]
SU, DU = [[("s", i) for i in range(5, 10)]], [[("d", h)] for h in range(3)]
UN = {0: UN + DU + SU, 1: UN + SU + DU, 2: UN[:6] + SU + UN[6:] + DU}[OPT["uord"]]
def place(u):
    o = (u % NGS) * GSL; r = []
    for kd, i in UN[u]: r.append((kd, i, o)); o += {"x": 16384, "s": SSZ, "d": 40960}[kd]
    return r
def uissue(u):
    n = 0
    for kd, i, o in place(u):
        if kd == "d":
            for k in range(5): dissue(i, k, o)
            n += 5; continue
        koff(i)
        if kd == "x":
            for m_, srd_ in ((0, GATE), (1, UP)): a(f"s_add_u32 m0, s61, {o + 8192*m_}\nbuffer_load_dwordx4 v{vGX+m_}, {S(srd_)}, s{sKO} offen lds")
            n += 2
        else: a(f"s_add_u32 m0, s62, {o}\nbuffer_load_dwordx4 v{vGS}, {S(SM)}, s{sKO} offen lds"); n += 1
    return n
a(f"s_cmp_lt_u32 s{sWV}, {OPT['rw']}\ns_cbranch_scc1 L_r0")
n0 = uissue(0)
a(f"s_waitcnt vmcnt({n0})\ns_barrier\ns_branch L_r1\nL_r0:")
rootup(0)
uissue(0)
a("L_r1:")
nI = {1: uissue(1)}
a("v_lshrrev_b32 v1, 5, v0\nv_bfe_u32 v2, v0, 2, 1\nv_lshl_add_u32 v1, v1, 2, v2\nv_bfe_u32 v2, v0, 4, 1\nv_bfe_u32 v3, v0, 3, 1\nv_lshl_add_u32 v3, v3, 1, v2\nv_lshl_add_u32 v1, v3, 4, v1")
a(f"v_xor_b32 v3, s{sWV}, v3\nv_and_b32 v2, 1, v0\nv_lshlrev_b32 v2, 3, v2\nv_lshl_add_u32 v2, v3, 4, v2\nv_bfe_u32 v3, v0, 1, 1")
a(f"v_lshl_add_u32 v{vRS}, v1, 6, v2\nv_mul_u32_u24 v8, 4224, v3\nv_add_u32 v{vRS}, v{vRS}, v8")
a(f"v_lshl_add_u32 v{vRX}, v1, 7, v2\nv_mul_u32_u24 v8, {8192 + 64}, v3\nv_xor_b32 v{vRX}, v{vRX}, v8")
vXS, vACT, vA1, vA2, vE4 = 252, 253, 254, 255, 5
for i in range(8): a(f"v_mov_b32 v{GA+i}, 0")
a(f"v_mov_b32 v1, 0x4444\nv_mov_b32 v2, 0xeeee\ns_mov_b32 vcc_lo, 0xaaaaaaaa\ns_mov_b32 vcc_hi, 0xaaaaaaaa\nv_cndmask_b32 v{IDX}, v1, v2, vcc")
a(f"v_and_b32 v1, 48, v0\nv_and_b32 v2, 1, v0\nv_lshlrev_b32 v2, 4, v2\nv_lshl_add_u32 v{vXS}, v1, 1, v2\nv_add_u32 v{vA1}, {ACTB}, v{vXS}\nv_add_u32 v{vXS}, {LNL}, v{vXS}")
a(f"v_add_u32 v1, {ACTB + 128}, v1\nv_mov_b32 v2, {MZ}\nv_cndmask_b32 v{vA2}, v1, v2, vcc\nv_mov_b32 v3, 0\nv_lshl_add_u32 v2, v0, 2, v2\ns_mov_b32 exec_hi, 0\nds_write_b32 v2, v3\ns_mov_b64 exec, -1")
a(f"s_and_b32 s3, s{sMm}, 1\ns_cselect_b32 s0, 4, 0\ns_cselect_b32 s1, -4, 8\ns_add_u32 s0, s0, s{sWV}\nv_bfe_u32 v1, v0, 4, 1\nv_mul_i32_i24 v1, s1, v1\nv_add_u32 v1, s0, v1")
a("v_lshrrev_b32 v2, 1, v1\nv_lshlrev_b32 v2, 2, v2\nv_and_or_b32 v2, v1, 1, v2\nv_and_or_b32 v2, v0, 2, v2\nv_bfe_u32 v3, v0, 2, 1\nv_lshl_add_u32 v2, v2, 1, v3")
a(f"v_and_b32 v3, 1, v0\nv_lshl_add_u32 v2, v2, 1, v3\nv_and_b32 v3, 7, v0\nv_lshl_add_u32 v3, v1, 3, v3\nv_cmp_gt_u32 vcc, 8, v1\nv_cndmask_b32 v2, v3, v2, vcc\nv_lshlrev_b32 v2, 1, v2\nv_add_u32 v{vACT}, {ACTB}, v2")
a(f"s_lshl_b32 s47, s{sWV}, 15\ns_lshl_b32 s3, s{sMm}, 6\ns_add_u32 s47, s47, s3\ns_add_u32 s47, s47, {RJ + R_E4}")
a(f"v_lshrrev_b32 v1, 2, v0\nv_and_b32 v2, 3, v0\nv_lshlrev_b32 v2, 4, v2\nv_lshl_add_u32 v2, v1, 10, v2\nv_lshlrev_b32 v1, 4, v1\nv_add_u32 v1, {4096 - 64}, v1\ns_mov_b64 vcc, 0xffff\nv_cndmask_b32 v{XS+10}, v1, v2, vcc")
a(f"s_cmp_lt_u32 s{sWV}, 4\ns_cselect_b32 s50, 0x00ff0000, 0\ns_or_b32 s50, s50, 0xff\ns_mov_b32 s51, 0")
sFT, sFE, sWIN, sXS = 52, 53, 54, 55
a(f"s_sub_u32 s3, s{sWV}, 4\ns_lshl_b32 s3, s3, 4\ns_add_u32 s{sFT}, s3, s{sMm}\ns_mul_i32 s3, s{sFT}, 52\ns_lshr_b32 s3, s3, 8\ns_mul_i32 s3, s3, {RJS - 5120}\ns_lshl_b32 s{sFE}, s{sFT}, 10\ns_add_u32 s{sFE}, s{sFE}, s3\ns_add_u32 s{sFE}, s{sFE}, {RJ + R_E4}")
vFC, vFB, vSG, FD = 128, 129, 130, 40
a(f"s_mov_b32 s49, {BUDGET >> 2}")
a(f"s_mul_i32 s3, s{sFT}, 52\ns_lshr_b32 s3, s3, 8\ns_mul_i32 s0, s3, 5\ns_sub_u32 s0, s{sFT}, s0\ns_mul_i32 s3, s3, 80\ns_lshl_b32 s1, s0, 2\ns_cmp_eq_u32 s0, 4\ns_cselect_b32 s1, 64, s1\ns_cselect_b32 s0, 0, 4\ns_cselect_b32 s48, 2, 0\ns_add_u32 s3, s3, s1")
a(f"v_bfe_u32 v1, v0, 4, 1\nv_lshrrev_b32 v2, 5, v0\nv_lshl_add_u32 v1, v1, 1, v2\nv_lshlrev_b32 v1, s0, v1\nv_and_b32 v2, 3, v0\nv_lshlrev_b32 v2, s48, v2\nv_add3_u32 v1, v1, v2, s3\nv_lshlrev_b32 v{vFC}, 1, v1\nv_lshlrev_b32 v{vFB}, 2, v1")
a("v_lshrrev_b32 v1, 4, v0\nv_bfe_u32 v2, v0, 2, 2\nv_lshl_add_u32 v1, v1, 3, v2\nv_mul_u32_u24 v1, 1280, v1\nv_and_b32 v3, 1, v0\nv_lshl_add_u32 v1, v3, 3, v1")
a(f"v_bfe_u32 v2, v0, 2, 3\nv_lshlrev_b32 v2, 1, v2\nv_bfe_u32 v3, v0, 1, 1\ns_mul_i32 s0, s{sWV}, 10")
for i in range(5): a(f"s_add_u32 s3, s0, {2*i}\nv_add_u32 v{XS+i}, s3, v3\nv_xor_b32 v{XS+i}, v{XS+i}, v2\nv_lshl_add_u32 v{XS+i}, v{XS+i}, 4, v1")
for u in range(len(UN)):
    a(f"s_waitcnt vmcnt({nI.get(u + 1, 0) + (u == 6)}) lgkmcnt(0)\ns_barrier")
    if u + 2 < len(UN): nI[u + 2] = uissue(u + 2)
    sk = False
    for kd, i, o in place(u):
        if kd == "d":
            for k in range(5):
                a(f"v_add_u32 v1, {o}, v{XS+k}")
                for e in range(2): a(f"ds_read_b64_tr_b16 {V(DF+12*k+4*i+2*e,2)}, v1 offset:{1280*4*e}")
            continue
        if kd == "s" and not sk: a(f"s_cmp_lt_u32 s{sWV}, 4\ns_cbranch_scc0 L_g{u}"); sk = True
        a(f"v_add_u32 v1, {o}, v{vRX if kd == 'x' else vRS}")
        p = 128 if kd == "x" else 64
        for hh in range(2):
            for e in range(2): a(f"ds_read_b64_tr_b16 {V(GF+80*(kd == 's')+8*i+4*hh+2*e,2)}, v1 offset:{p*(8*hh + 2*e)}")
    if sk: a(f"L_g{u}:")
    if u == 5: a(f"v_and_b32 v{XS+12}, 0xf0, v6\nbuffer_load_dword v{XS+11}, v{XS+12}, {S(DBG)}, 0 offen sc1")
    if u == 7: stamp(1)
stamp(2)
pagebreak()
warm("m", 0, 1)
a(f"v_mov_b32 v{vE4}, v{XS+10}\nv_mov_b32 v4, {WINB}\ns_cmp_lt_u32 s{sWV}, {6 + OPT['kold']}\ns_cbranch_scc1 L_np")
if not OPT["kold"]: a(f"s_cmp_eq_u32 s{sWV}, 6\ns_cbranch_scc1 L_ft")
a(f"L_rt:\nv_cmp_ne_u32 vcc, 1, v{XS+11}\ns_cbranch_vccz L_rtg\nbuffer_load_dword v{XS+11}, v{XS+12}, {S(DBG)}, 0 offen sc1\ns_waitcnt vmcnt(0)\ns_sub_u32 s{sBUD}, s{sBUD}, 1\ns_cbranch_scc0 L_rt\ns_mov_b32 s{sBUD}, 0\nL_rtg:")
a(f"v_bfe_u32 v1, v0, 2, 3\nv_lshlrev_b32 v1, 15, v1\nv_and_b32 v2, 3, v0\nv_min_u32 v2, 2, v2\nv_mul_u32_u24 v3, 1280, v2\ns_mov_b32 s0, {RJ}\nv_add3_u32 v3, v3, v1, s0\nv_lshl_add_u32 v1, v2, 7, v1\ns_mul_i32 s0, s{sMm}, 384\ns_add_u32 s0, s0, {RJ + R_KEY}")
stamp(3)
if OPT["kold"]:
    vRW = 132
    a(f"s_and_b32 s3, s{sMm}, 1\ns_mul_i32 s3, s3, 640\nv_add_u32 v{vRW}, s3, v6\nv_subrev_u32 v2, 1280, v{vRW}\nv_min_u32 v{vRW}, v{vRW}, v2\ns_sub_u32 s3, 1024, s3\nv_add_u32 v{vRW+1}, s3, v6")
    row = f"s_mov_b32 m0, {LNL}\ns_mov_b64 exec, -1\nbuffer_load_dwordx4 v{vRW}, {S(WS)}, s{sXS} offen sc1 lds\ns_mov_b32 m0, {LNL + 1024}\ns_mov_b64 exec, 0xffff\nbuffer_load_dwordx4 v{vRW+1}, {S(WS)}, s{sXS} offen sc1 lds"
    a(f"s_mov_b32 s{sWIN}, 0\ns_mov_b32 s{sXS}, {OOB:#x}")
    KP, KR, KV = OPT["kp"], OPT["kr"], 140
    assert KP % KR == 0
    KM = 0x77777777
    def look(k):
        if k % KR == 0: a(row); execset(KM)
        if OPT["ka"]: a(f"buffer_atomic_umin v{KV+k}, v1, {S(WS)}, s0 offen sc0 sc1")
        else: a(f"buffer_load_dword v{KV+k}, v1, {S(WS)}, s0 offen sc1")
    for k in range(KP): a(f"v_mov_b32 v{KV+k}, -1")
    def kchk(k):
        a(f"v_cmp_lt_u32 vcc, s{sWIN}, v{KV+k}\ns_cbranch_vccz L_pg")
        a(f"v_cndmask_b32 v2, -1, v{KV+k}, vcc\nv_cmp_ne_u32 vcc, -1, v2\nv_mov_b32 v{XS+2}, v{KV+k}\ns_cbranch_vccnz L_pn")
    a("L_pk:")
    if OPT["kw"]: look(0); a("s_waitcnt vmcnt(0)"); kchk(0)
    for k in range(KP - 1):
        look(k)
        if OPT["ks"]: a(f"s_sleep {OPT['ks']}")
    a("L_pl:")
    for k in range(KP):
        look((k + KP - 1) % KP)
        a(f"s_waitcnt vmcnt({KP - 1 + 2 * (KP // KR - (k % KR == 0))})"); kchk(k)
        if OPT["ks"]: a(f"s_sleep {OPT['ks']}")
    a(f"s_sub_u32 s{sBUD}, s{sBUD}, 1\ns_cbranch_scc0 L_pl\ns_mov_b32 s{sBUD}, 0\ns_branch L_pg")
    a(f"L_pn:\nv_cmp_eq_u32 s[58:59], -1, v{XS+2}\ns_mov_b64 exec, -1\nv_cndmask_b32 v2, 0, v2, vcc")
    a(f"v_max_u32_dpp v{XS}, v2, v2 row_ror:8 {DPPM}")
    for k in (4, 2, 1): a(f"v_max_u32_dpp v{XS}, v{XS}, v{XS} row_ror:{k} {DPPM}")
    a(f"v_mov_b32 v{XS+1}, v{XS}\nv_permlane16_swap_b32 v{XS}, v{XS+1}\nv_max_u32 v{XS}, v{XS}, v{XS+1}\ns_mov_b32 exec_hi, 0\nv_cmpx_eq_u32 vcc, v{XS}, v2")
    a(f"ds_write_b64 v4, v[2:3]\ns_cmp_eq_u64 s[58:59], 0\nv_readfirstlane_b32 s{sXS}, v3\nv_readfirstlane_b32 s{sWIN}, v2")
    a("s_cbranch_scc0 L_pk")
    a(f"L_xf:\n{row}\ns_waitcnt vmcnt(0)\nL_pg:\ns_mov_b64 exec, -1")
    stamp(4)
else:
    KP, KV = OPT["kp"], 140
    KM = 0x77777777
    def look(k):
        if OPT["ka"]: a(f"buffer_atomic_umin v{KV+k}, v1, {S(WS)}, s0 offen sc0 sc1")
        else: a(f"buffer_load_dword v{KV+k}, v1, {S(WS)}, s0 offen sc1")
    for k in range(KP): a(f"v_mov_b32 v{KV+k}, -1")
    a(f"s_mov_b32 s{sWIN}, 0"); execset(KM)
    for k in range(KP - 1):
        look(k)
        if OPT["ks"]: a(f"s_sleep {OPT['ks']}")
    a("L_pl:")
    for k in range(KP):
        look((k + KP - 1) % KP)
        a(f"s_waitcnt vmcnt({KP - 1})\nL_pc{k}:\nv_cmp_lt_u32 vcc, s{sWIN}, v{KV+k}\ns_cbranch_vccz L_pg")
        a(f"v_cndmask_b32 v2, -1, v{KV+k}, vcc\nv_cmp_ne_u32 vcc, -1, v2\ns_cbranch_vccnz L_pn{k}")
        if OPT["ks"]: a(f"s_sleep {OPT['ks']}")
        def upd():
            a(f"L_pn{k}:\ns_mov_b64 exec, -1\nv_cndmask_b32 v2, 0, v2, vcc")
            a(f"v_max_u32_dpp v{XS}, v2, v2 row_ror:8 {DPPM}")
            for r in (4, 2, 1): a(f"v_max_u32_dpp v{XS}, v{XS}, v{XS} row_ror:{r} {DPPM}")
            a(f"v_mov_b32 v{XS+1}, v{XS}\nv_permlane16_swap_b32 v{XS}, v{XS+1}\nv_max_u32 v{XS}, v{XS}, v{XS+1}\ns_mov_b32 exec_hi, 0\nv_cmpx_eq_u32 vcc, v{XS}, v2")
            a(f"ds_write_b64 v4, v[2:3]\nv_readfirstlane_b32 s{sWIN}, v2"); execset(KM); a(f"s_branch L_pc{k}")
        DEFER.append("\n".join(capture(upd)))
    a(f"s_sub_u32 s{sBUD}, s{sBUD}, 1\ns_cbranch_scc0 L_pl\ns_mov_b32 s{sBUD}, 0")
    a("L_pg:\nds_write_b32 v4, v4 offset:8\ns_mov_b64 exec, -1")
    stamp(4)
    vRW = 132
    row = f"s_mov_b32 m0, {LNL}\nbuffer_load_dwordx4 v{vRW}, {S(WS)}, s{sXS} offen sc1 lds\ns_mov_b32 m0, {LNL + 1024}\ns_mov_b64 exec, 0xffff\nbuffer_load_dwordx4 v{vRW+1}, {S(WS)}, s{sXS} offen sc1 lds\ns_mov_b64 exec, -1"
    t = f"L_ft:\ns_and_b32 s3, s{sMm}, 1\ns_mul_i32 s3, s3, 640\nv_add_u32 v{vRW}, s3, v6\nv_subrev_u32 v2, 1280, v{vRW}\nv_min_u32 v{vRW}, v{vRW}, v2\ns_sub_u32 s3, 1024, s3\nv_add_u32 v{vRW+1}, s3, v6\ns_mov_b32 s{sXS}, 0\n"
    t += f"L_fl:\nds_read_b128 v[136:139], v4\ns_waitcnt lgkmcnt(0)\nv_readfirstlane_b32 s0, v137\nv_readfirstlane_b32 s1, v138\ns_cmp_eq_u32 s0, s{sXS}\ns_cbranch_scc0 L_fn\ns_cmp_eq_u32 s1, 0\ns_cbranch_scc1 L_fl\ns_branch L_np\n"
    t += f"L_fn:\ns_mov_b32 s{sXS}, s0\n{row}\ns_cmp_eq_u32 s1, 0\ns_waitcnt vmcnt(0)\ns_cbranch_scc0 L_np\n"
    if OPT["rf"]: t += row + "\n"
    t += f"s_branch L_fl\nL_xf:\n{row}\ns_waitcnt vmcnt(0)\ns_branch L_np"
    DEFER.append(t)
a("L_np:\ns_waitcnt lgkmcnt(0)\ns_barrier")
stamp(5)
def smf(d, A, B): a(f"v_smfmac_f32_16x16x64_bf16 {V(d,4)}, {V(A,4)}, {V(B,8)}, v{IDX}")
a(f"s_cmp_lt_u32 s{sWV}, 4\ns_cbranch_scc1 L_xh")
XL = 88
a(f"ds_read_b64 v[2:3], v4")
for s in range(10): a(f"ds_read_b128 {V(XL+4*s,4)}, v{vXS} offset:{128*s}")
a(f"s_waitcnt lgkmcnt(10)\nv_readfirstlane_b32 s56, v2\nv_readfirstlane_b32 s57, v3")
fo = [f"s_and_b32 s0, s57, 0x7fff\ns_add_u32 s57, s57, s0\ns_add_u32 s57, s57, {R_BASE}\ns_and_b32 s1, s56, 0xfffff800",
      f"s_ashr_i32 s3, s1, 31\ns_not_b32 s3, s3\ns_or_b32 s3, s3, 0x80000000\ns_xor_b32 s1, s1, s3", f"s_andn2_b32 s56, 2047, s56\ns_mul_i32 s56, s56, 1280\nv_mov_b32 v{vSG}, s1",
      f"v_mul_f32 v{vSG}, 0xbfb8aa3b, v{vSG}", f"v_exp_f32 v{vSG}, v{vSG}", f"v_add_f32 v{vSG}, 1.0, v{vSG}", f"v_rcp_f32 v{vSG}, v{vSG}"]
for s in range(10):
    a(f"s_waitcnt lgkmcnt({9-s})"); smf(GA, XL + 4 * s, GF + 8 * s)
    if fo: a(fo.pop(0))
a("s_branch L_xj"); pad("m"); a("L_xh:")
for s in range(4): a(f"ds_read_b128 {V(XS+4*s,4)}, v{vXS} offset:{128*s}")
for s in range(10):
    a(f"s_waitcnt lgkmcnt({min(3, 9-s)})")
    smf(GA, XS + 4 * (s % 4), GF + 8 * s); smf(GA + 4, XS + 4 * (s % 4), GF + 80 + 8 * s)
    if s + 4 < 10: a(f"ds_read_b128 {V(XS+4*(s%4),4)}, v{vXS} offset:{128*(s+4)}")
a("L_xj:\ns_mov_b64 vcc, 0xffff")
a(f"v_add_f32 v1, v{GA}, v{GA+1}\nv_add_f32 v2, v{GA+4}, v{GA+5}\nv_cndmask_b32 v1, v2, v1, vcc")
NFL = MZ + 16
a("v_cmp_u_f32 vcc, v1, v1\ns_cbranch_vccnz L_xn\nL_xnb:")
DEFER.append(f"L_xn:\nv_mov_b32 v2, {NFL}\nds_write_b32 v2, v2\ns_branch L_xnb")
DEFER.append(f"L_xsr:\ns_sub_u32 s49, s49, 1\ns_cbranch_scc1 L_xsgo\n" + "\n".join(f"v_mov_b32 v{GA+i}, 0" for i in range(8))
             + f"\ns_waitcnt lgkmcnt(0)\ns_barrier\ns_cmp_eq_u32 s{sWV}, {6 + OPT['kold']}\ns_cbranch_scc0 L_np\nds_write_b32 v2, v{GA}\ns_branch L_xf")
stamp(6)
a(f"v_mul_f32 v2, 0xbfb8aa3b, v1\nv_exp_f32 v2, v2\nv_mul_f32_dpp v3, v1, v1 row_ror:8 {DPPM}\nv_add_f32 v2, 1.0, v2\nv_rcp_f32 v2, v2")
a(f"v_mul_f32 v1, v2, v3\nv_cvt_pk_bf16_f32 v1, v1, v1\ns_mov_b64 exec, s[50:51]\nds_write_b16 v{vACT}, v1\ns_mov_b64 exec, -1\nv_mov_b32 v2, {NFL}\ns_waitcnt lgkmcnt(0)\ns_barrier")
DD = 8
a(f"ds_read_b32 v1, v2\nds_read_b128 {V(XS,4)}, v{vA2}\nds_read_b128 {V(XS+4,4)}, v{vA1}\ns_waitcnt lgkmcnt(2)\nv_cmp_ne_u32 vcc, 0, v1\ns_cbranch_vccnz L_xsr\nL_xsgo:")
a("s_waitcnt lgkmcnt(1)")
for i in (4, 0, 1, 2, 3): mfma(DD + 4 * i, XS, DF + 12 * i + 8, "0")
a("s_waitcnt lgkmcnt(0)")
for i in (4, 0, 1, 2, 3): smf(DD + 4 * i, XS + 4, DF + 12 * i)
PS = 32
a(f"v_add_f32 v1, v{DD+16}, v{DD+17}")
for i in range(4):
    a(f"v_add_f32 v{PS+i}, v{DD+4*i}, v{DD+4*i+1}")
for i in range(4): a(f"v_mov_b32_dpp v{PS+i}, v1 quad_perm:[{i},{i},{i},{i}] row_mask:0x2 bank_mask:0xf")
a(f"s_mov_b64 exec, 0x1111ffff\nbuffer_store_dwordx4 {V(PS,4)}, v{vE4}, {S(WS)}, s47 offen sc1\ns_mov_b64 exec, -1")
stamp(7)
a(f"s_cmp_lt_u32 s{sFT}, 40\ns_cbranch_scc0 L_mfin")
FP = OPT["fp"]
FA = OPT["fa"]; NF = 3 if FA else 2
def fld(k):
    d = FD + 8 * k
    a(f"buffer_load_dword v{d+4}, v{vFB}, {S(WS)}, s57 offen sc1")
    if FA:
        for e in (0, 2): a(f"v_mov_b64 {V(d+e,2)}, 0\nbuffer_atomic_or_x2 {V(d+e,2)}, v6, {S(WS)}, s{sFE} offen offset:{4*e} sc0 sc1")
    else: a(f"buffer_load_dwordx4 {V(d,4)}, v6, {S(WS)}, s{sFE} offen sc1")
if OPT["f0"]: a(f"s_sleep {OPT['f0']}")
for k in range(FP - 1):
    fld(k)
    if OPT["fs"]: a(f"s_sleep {OPT['fs']}")
a("L_fd:")
for k in range(FP):
    fld((k + FP - 1) % FP)
    d = FD + 8 * k
    a(f"s_waitcnt vmcnt({NF*(FP-1)})\nv_max3_u32 v1, v{d}, v{d+2}, v{d+4}\nv_cmp_eq_u32 vcc, -1, v1\ns_cbranch_vccz L_fg{k}")
    if OPT["fs"]: a(f"s_sleep {OPT['fs']}")
a(f"s_sub_u32 s{sBUD}, s{sBUD}, 1\ns_cbranch_scc0 L_fd")
for k in reversed(range(FP)):
    d = FD + 8 * k
    a(f"L_fg{k}:\nv_permlane32_swap_b32 v{d}, v{d+1}\nv_permlane32_swap_b32 v{d+2}, v{d+3}\nv_add_f32 v{d}, v{d}, v{d+1}\nv_add_f32 v{d+2}, v{d+2}, v{d+3}")
    a(f"v_permlane16_swap_b32 v{d}, v{d+2}\nv_add_f32 v{d}, v{d}, v{d+2}")
    for r in (4, 8): a(f"v_add_f32_dpp v{d}, v{d}, v{d} row_ror:{r} {DPPM}")
    a(f"v_fma_f32 v8, v{d}, v{vSG}, v{d+4}\nv_cvt_pk_bf16_f32 v8, v8, v8")
    execset(0x000F000F000F000F)
    a(f"buffer_store_short v8, v{vFC}, {S(OUT)}, s56 offen")
    if k: stamp(8); finish(); pad("m")
stamp(8)
a("L_mfin:")
finish()
deferred("m")
if OPT["stamps"]:
    a("L_dump:\ns_mov_b64 exec, -1\ns_memtime s[0:1]\ns_memrealtime s[62:63]\ns_waitcnt lgkmcnt(0)\nv_mov_b32 v2, 0")
    a("v_writelane_b32 v2, s98, 0\nv_writelane_b32 v2, s62, 1\ns_sub_u32 s3, s0, s96\nv_writelane_b32 v2, s3, 2")
    for i in range(NST): a(f"s_sub_u32 s3, s{70+2*i}, s{98 if OPT['rt'] else 96}\ns_cmp_lt_u32 s3, {5000 if OPT['rt'] else 0x100000}\ns_cselect_b32 s3, s3, 0\nv_writelane_b32 v2, s3, {3+i}")
    a(f"s_lshl_b32 s3, s2, 4\ns_add_u32 s3, s3, s{sWV}\ns_lshl_b32 s3, s3, 7\ns_add_u32 s3, s3, {STAMP}\nv_lshlrev_b32 v3, 2, v0\ns_mov_b32 exec_hi, 0")
    a(f"buffer_store_dword v2, v3, {S(WS)}, s3 offen")
    if OPT["diag"] >= 0:
        a(f"s_sub_u32 s3, s2, {OPT['dwg']}\ns_cmp_lt_u32 s3, {OPT['dn']}\ns_cbranch_scc0 L_end\ns_cmp_eq_u32 s{sWV}, {OPT['dwv']}\ns_cbranch_scc0 L_end")
        a(f"s_sub_u32 s3, s{70+2*OPT['diag']}, s98\ns_lshl_b32 s3, s3, 2\ns_add_u32 s3, s3, s62")
        a("L_dg:\ns_memrealtime s[62:63]\ns_waitcnt lgkmcnt(0)\ns_sub_u32 s0, s62, s3\ns_cmp_lt_i32 s0, 0\ns_cbranch_scc1 L_dg")
a("L_end:\ns_endpgm")
for i, l in reversed(list(enumerate(a.lines))):
    if l.startswith(";WARM"):
        _, cat, k, n = l.split()
        a.lines[i:i+1] = [f"s_call_b64 s[100:101], {p}" for p in PADS.get(cat, [])[int(k)::int(n)]]
print({k: len(v) for k, v in PADS.items()})
body, nn = hazard.fix(a.lines[body0:], OPT["verbose"])
a.lines[body0:] = body
kernel_desc(a, K, 256)
open(sys.argv[1], "w").write(a.text())
print("nops inserted:", nn, "lines:", len(a.lines))
```

```python
import sys, struct, math
sys.path.insert(0, "gen")
from common import *
import hazard

OPT = dict(stage="F", stamps=0, verbose=0, nl=8, pg=1, kw=0, kr=3, fmode=1, n0=8, na=2, nb=10, n1=0, o2=0, hp=1, cdw=0, sf=2, dpn=2, fsl=1, bk=0, bv=-1, wc=1, tch=5, bud=1 << 19, rw=5, clr=0, pf0=3, uord=0, mt=1, mx=6, x1=2, w1=1, ppr=0, kold=1, wb=1, pfp=0, tpos=1, mlate=0, rf=1, kp=3, ks=2, ka=1, fp=2, fs=0, fa=0, f0=0, hlp=1, r2=5, e1=1, e2=4, dep=3, dep2=6, opos=1, vq=3, spf=0, pk=1, rsp=1, osc="plain",
           diag=-1, dwg=77, dn=1, dwv=0, slpk=0, prio=1, ou=6, grp=0, rt=1, dbg=0, wri=5, pre=12, aprio=1, lprio=2, vprio=2, oul=5, xprio=1, cpos=1)
for kv in sys.argv[2:]:
    k, v = kv.split("=")
    assert k in OPT, k
    OPT[k] = int(v) if v.lstrip("-").isdigit() else v
STAGE = OPT["stage"]

E2, SP, RJ, STAMP, DUMP = 0x200000, 0x280000, 0x300000, 0x500000, 0x1000000
RJS = 32768
R_BASE, R_FL, R_E4, R_KEY = 4096, 12288, 16384, 21504
SLOT, S0 = 36864, 8192
PITCH = 144; TSTR = 96 * PITCH
VB = S0 + SLOT - TSTR; KB = VB - TSTR; QB = KB - TSTR
STATS, ZR = 0, 1792
MODE, KMAX, WFL, VCN, HRD, XFL = 1728, 1732, 1744, 1748, 1752, 1760
WOB = S0 + 2 * SLOT
EX = S0 + SLOT + 12288
assert ZR + 8 * PITCH + 64 <= QB
X, W, WO, WS, OUT, DBG, WR = 4, 8, 12, 16, 20, 24, 28
sWV, sJ, sU, sG, sC, sC5, sT, sB0, sBUD, sMODE, sI, sGID = range(32, 44)
KA = dict(x=44, w=46, wo=48, wr=52, gate=54, up=56, down=60, out=62, dbg=64, ws=66)
BUDGET = OPT['bud']
DPPM = "row_mask:0xf bank_mask:0xf"
ONES = 0x3F803F80
OOB = 0x80000000
def f32(x): return struct.unpack("<I", struct.pack("<f", x))[0]
CEXP = f32(20 ** -0.5 * math.log2(math.e))

a = Asm()
def S(d): return f"s[{d}:{d+3}]"
def V(d, n=1): return f"v{d}" if n == 1 else f"v[{d}:{d+n-1}]"
def mksrd(d, name, size): a(f"s_mov_b64 s[{d}:{d+1}], s[{KA[name]}:{KA[name]+1}]\ns_mov_b32 s{d+2}, {size:#x}\ns_mov_b32 s{d+3}, 0x20000")
def execset(m):
    if m == -1: a("s_mov_b64 exec, -1")
    elif m < (1 << 31): a(f"s_mov_b64 exec, {m:#x}")
    else: a(f"s_mov_b32 exec_lo, {m & 0xffffffff:#x}\ns_mov_b32 exec_hi, {m >> 32:#x}")
def smask(d, m): a(f"s_mov_b32 s{d}, {m & 0xffffffff:#x}\ns_mov_b32 s{d+1}, {m >> 32:#x}")
def lanes(f): return sum(1 << l for l in range(64) if f(l))
def mfma(d, A, B, C=None):
    c = V(d, 4) if C is None else (C if isinstance(C, str) else V(C, 4))
    a(f"v_mfma_f32_16x16x32_bf16 {V(d,4)}, {V(A,4)}, {V(B,4)}, {c}")
DEFER = []
def lst(text):
    l = a.label("gl")
    a(f"s_cmp_eq_u32 s{sMODE}, 1\ns_cbranch_scc0 {l}g")
    a(text.replace("{F}", "")); a(f"{l}b:")
    DEFER.append(f"{l}g:\n" + text.replace("{F}", " sc1") + f"\ns_branch {l}b")
PADS = {}
def pad(cat):
    if not OPT["pg"]: return
    l = a.label("pad"); PADS.setdefault(cat, []).append(l); a(f"{l}:\ns_setpc_b64 s[100:101]")
def pagebreak(cat=None, live=True):
    if not OPT["pg"]: return
    l = a.label("pb")
    if live: a(f"s_branch {l}")
    a(".p2align 12")
    if cat: pad(cat)
    a(f"{l}:")
def warm(cat, k, n): a(f";WARM {cat} {k} {n}")
def deferred(cat=None):
    n = 999
    for t in DEFER:
        if cat and n > 110: pad(cat); n = 0
        a(t); n += t.count("\n") + 1
    DEFER.clear()
def capture(fn):
    global a
    class C:
        def __init__(s): s.g = []
        def __call__(s, t=""): s.g.append(t)
        def label(s, b): return a0.label(b)
    a0 = a; a = C(); fn(); g = a.g; a = a0
    return g
class Cnt:
    def __init__(s, name, mx): s.n = 0; s.name = name; s.mx = mx; s.done = 0
    def __call__(s, text): a(text); s.n += 1; return s.n
    def wait(s, i):
        if i <= s.done: return
        k = min(s.mx, s.n - i); a(f"s_waitcnt {s.name}({k})"); s.done = s.n - k
    def reset(s): s.n = 0; s.done = 0
L = Cnt("lgkmcnt", 15)

NST = 13
CLK = "s_memrealtime" if OPT["rt"] else "s_memtime"
def stamp(i, lvl=1):
    if OPT["stamps"] == lvl: a(f"{CLK} s[{70+2*i}:{71+2*i}]")
def stampi(ph):
    if OPT["stamps"] == 2:
        if ph == 0: a(f"{CLK} s[94:95]")
        else: a(f"s_lshl_b32 m0, s{sI}, 1\ns_waitcnt lgkmcnt(0)\ns_movreld_b32 s70, s94")
def finish():
    a("s_branch L_dump" if OPT["stamps"] else "s_endpgm")

a(HEADER.rstrip())
a("; @launch grid=(256,1,1) block=(512,1,1) lds=163840")
if OPT["stamps"] and OPT["grp"]: a("; @groups g0:0-79:2-2 g1:80-159:2-2 g2:160-239:2-2 m7:240-255:7-7")
if OPT["stamps"] and OPT["rt"]: a("; @rt")
if OPT["stamps"] and not OPT["grp"]: a("; @groups c0:0-239:0-0 c2:0-239:2-2 h0:0-239:4-4 h1:0-239:5-5 h3:0-239:7-7 m0:240-255:0-0 m4:240-255:4-4 ma:240-247:7-7 mb:248-255:7-7")
a('.amdgcn_target "amdgcn-amd-amdhsa--gfx950"')
K = NAME + "_kernel"
kernel_begin(a, K, OPT.get("page", 1))
body0 = len(a.lines)
NL = OPT["nl"]
a("s_load_dwordx16 s[44:59], s[0:1], 0\ns_load_dwordx8 s[60:67], s[0:1], 56")
if OPT["stamps"]: a("s_memrealtime s[98:99]\ns_memtime s[96:97]")
a(f"s_lshr_b32 s{sU}, s2, 3\ns_and_b32 s{sJ}, s2, 7\nv_readfirstlane_b32 s{sWV}, v0\ns_getpc_b64 s[100:101]\nL_pc:")
a(f"s_mul_i32 s3, s{sU}, {NL}\nv_min_u32 v2, {NL-1}, v0\nv_add_lshl_u32 v2, v2, s3, 7\nv_min_u32 v2, L_end-L_pc, v2")
a(f"s_cmp_ge_u32 s{sU}, 30\ns_cbranch_scc1 L_moe")
a("global_load_dword v255, v2, s[100:101]")
a(f"s_mul_i32 s{sG}, s{sU}, 26\ns_lshr_b32 s{sG}, s{sG}, 8\ns_mul_i32 s3, s{sG}, 10\ns_sub_u32 s{sC}, s{sU}, s3\ns_lshr_b32 s{sWV}, s{sWV}, 6")
a(f"s_add_u32 s3, s{sC}, s{sJ}\ns_add_u32 s3, s3, 2\ns_sub_u32 s68, s3, 10\ns_cselect_b32 s69, s3, s68")
a(f"s_mul_i32 s3, s69, 245760\ns_lshl_b32 s68, s{sC}, 7\ns_add_u32 s3, s3, s68")
a("v_lshrrev_b32 v1, 3, v0\nv_lshrrev_b32 v3, 4, v0\nv_and_b32 v2, 2, v1\nv_and_or_b32 v2, v3, 4, v2\nv_xor_b32 v2, v2, v0\nv_and_b32 v2, 7, v2")
a("v_mul_u32_u24 v4, 3840, v1\nv_lshl_add_u32 v4, v2, 4, v4\nv_add_u32 v4, s3, v4")
vX, vSUM, vXD, vSTW, vBIA, vEV, vEA = 24, 28, 36, 52, 53, 54, 55
sM, sLO, sLT, sP1, sP2 = 44, 52, 54, 55, 56
sXT, sE2L, sRJ, sNO, sSL, sXM, sXO, sLX, sRD, sPF, sSPL, sFO, sSB = range(57, 70)
sEV, sDL, sWO_ = sXM, sXO, sFO
a(f"s_mul_i32 s3, s{sWV}, 3072\ns_add_u32 m0, s3, {S0 + 12288}\nv_and_b32 v0, 63, v0\ns_and_b32 s{sT}, s{sWV}, 3")
a(f"s_lshr_b32 s3, s{sJ}, 1\ns_lshl_b32 s3, s3, 9\ns_mul_i32 s68, s{sG}, 176\ns_add_u32 s3, s3, s68\ns_and_b32 s68, s{sJ}, 1\ns_add_u32 s3, s3, s68\ns_mul_i32 s{sB0}, s3, 1280")
a(f"s_sub_u32 s{sI}, s{sWV}, 5\ns_mul_i32 s3, s{sI}, {32*2560}\ns_add_u32 s3, s3, s{sB0}\ns_sub_u32 s3, s3, {8*2560}")
a(f"v_lshrrev_b32 v1, 3, v0\nv_lshrrev_b32 v3, 4, v0\nv_xor_b32 v3, v3, v0\nv_and_b32 v3, 7, v3\nv_mul_u32_u24 v1, 2560, v1\nv_lshl_add_u32 v1, v3, 4, v1\nv_add_u32 v{vX}, s3, v1")
a(f"s_add_u32 s3, s{sI}, s{sG}\ns_cmp_eq_u32 s3, 4\ns_cselect_b32 s3, {OOB:#x}, 0")
a(f"v_xor_b32 v{vX+1}, 64, v{vX}\nv_add_u32 v{vX+1}, 20480, v{vX+1}\nv_add_u32 v{vX+2}, 40960, v{vX}\nv_add_u32 v{vX+3}, 40960, v{vX+1}\nv_or_b32 v{vX+3}, s3, v{vX+3}")
for d, sz in ((X, 2048 * 1280), (W, 640 * 3840), (WO, 640 * 1280), (WS, 1 << 28), (OUT, 2048 * 1280), (DBG, 256), (WR, 1280)): a(f"s_mov_b32 s{d+2}, {sz:#x}\ns_mov_b32 s{d+3}, 0x20000")
a("s_waitcnt lgkmcnt(0)")
stamp(0)
def mv(d, n): return f"s_mov_b64 s[{d}:{d+1}], s[{KA[n]}:{KA[n]+1}]"
a(f"global_load_lds_dwordx4 v4, s[46:47]\ns_addk_i32 m0, -256\n{mv(X, 'x')}")
a(f"global_load_lds_dwordx4 v4, s[46:47] offset:1280\ns_addk_i32 m0, -256\n{mv(OUT, 'out')}")
a(f"global_load_lds_dwordx4 v4, s[46:47] offset:2560")
for d, n in ((DBG, "dbg"), (WS, "ws"), (W, "w"), (WO, "wo"), (WR, "wr")): a(mv(d, n))
sMT = 96
if OPT["mt"]: a(f"s_cmp_eq_u32 s{sWV}, 4\ns_cselect_b64 s[{sMT}:{sMT+1}], s[54:55], s[{sMT if OPT['stamps'] else 58}:{sMT+1 if OPT['stamps'] else 59}]\ns_cmp_eq_u32 s{sWV}, 5\ns_cselect_b64 s[{sMT}:{sMT+1}], s[56:57], s[{sMT}:{sMT+1}]")
if OPT["mt"] and OPT["stamps"]: a(f"s_cmp_ge_u32 s{sWV}, 6\ns_cselect_b64 s[{sMT}:{sMT+1}], s[58:59], s[{sMT}:{sMT+1}]")
def nextslab(): a(f"s_add_u32 s{sSB}, s{sSB}, 1\ns_cmp_eq_u32 s{sSB}, 10\ns_cselect_b32 s{sSB}, 0, s{sSB}")
def advslot(d): a(f"s_add_u32 s{d}, s{d}, {SLOT}\ns_cmp_eq_u32 s{d}, {S0 + 4*SLOT}\ns_cselect_b32 s{d}, {S0}, s{d}")
def xissue():
    a(f"s_add_u32 m0, s{sSL}, s{sLX}\ns_mov_b32 exec_lo, s{sXM}")
    for i in range(4):
        a(f"buffer_load_dwordx4 v{vX+i}, {S(X)}, s{sXO} offen lds")
        if i < 3: a("s_addk_i32 m0, 1024")
        if i == 0: a("s_mov_b32 exec_lo, -1")
a(f"s_cmp_lt_u32 s{sWV}, 5\ns_cbranch_scc1 L_nx")
a(f"s_lshl_b32 s{sLX}, s{sI}, 12\ns_cselect_b32 s{sXM}, -1, 0xffffff00\ns_lshl_b32 s{sXO}, s69, 7\ns_mov_b32 s{sSL}, {S0}")
xissue()
a("L_nx:")
stamp(1)
aKe, aK4, aKx, aKy = range(200, 204)
aQe, aQx, aQy, aQ4 = 204, 206, 208, 210
aVe, aV1, aV2 = range(216, 219)
vM, aRK, aCQ, aH0s, aH0l, aOs, aOl, aWO, aOUT, aL16, vRK, aXC, XR = 220, 222, 223, 224, 225, 226, 227, 228, 232, 233, 234, 235, 236
vAW, vAX0, vAX1, vSW, vSTR = 244, 245, 246, 247, 248
WRF, WSP = 244, 252
MASK = [lanes(lambda l: 2 * r + (l >> 5) > (l & 7)) for r in range(4)]
LO = lanes(lambda l: (l & 15) < 8)
sTA, sTP, sTS = 44, 44, 45
aOl2 = XR
def suA():
    a(f"s_mov_b32 s{sBUD}, {BUDGET}\ns_mul_i32 s{sGID}, s{sJ}, 3\ns_add_u32 s{sGID}, s{sGID}, s{sG}\ns_sub_u32 s3, s{sC}, 5\ns_cselect_b32 s{sC5}, s{sC}, s3")
    a(f"s_lshl_b32 s3, s{sWV}, 2\ns_lshr_b32 s{sTA}, 0x32105454, s3\ns_and_b32 s{sTA}, s{sTA}, 7\ns_lshr_b32 s45, s{sT}, 1\ns_add_u32 s45, s45, 4")
    a(f"s_cmp_eq_u32 s{sG}, 2\ns_cselect_b32 s{sNO}, 10, 11")
    a(f"s_sub_u32 s{sXT}, 8, s{sJ}\nv_lshlrev_b32 v{aL16}, 4, v0")
    a(f"s_mul_i32 s{sE2L}, s{sGID}, 6\ns_add_u32 s{sE2L}, s{sE2L}, s{sTP}\ns_mul_i32 s{sE2L}, s{sE2L}, 2560\ns_add_u32 s{sE2L}, s{sE2L}, {E2}")
    a(f"s_lshl_b32 s{sRJ}, s{sJ}, 15\ns_add_u32 s{sRJ}, s{sRJ}, {RJ}")
    a(f"s_sub_u32 s51, 5, s{sC5}\ns_add_u32 s1, s{sC5}, 1\ns_sub_u32 s3, 15, s{sC5}\ns_cmp_le_u32 s{sC5}, 2\n"
      "s_cselect_b32 s46, 0, s3\ns_cselect_b32 s47, s51, s1\ns_cselect_b32 s48, s3, 0\ns_cselect_b32 s49, s1, s51\ns_cselect_b32 s50, 1, 0")
    a("v_and_b32 v3, 15, v0\nv_add_u32 v3, 8, v3\nv_lshrrev_b32 v4, 1, v3\nv_lshrrev_b32 v5, 5, v0\nv_xor_b32 v4, v4, v5\nv_and_b32 v4, 7, v4")
    a(f"v_lshlrev_b32 v4, 4, v4\nv_lshl_add_u32 v4, v3, 7, v4\nv_bfe_u32 v5, v0, 4, 1\nv_lshl_add_u32 v4, v5, 3, v4\ns_lshl_b32 s3, s{sTP}, 11\nv_add_u32 v{aXC}, s3, v4")
def suB():
    a(f"v_and_b32 v1, 15, v0\nv_lshrrev_b32 v2, 4, v0\nv_mov_b32 v7, {ZR}\ns_mul_i32 s0, s{sTA}, {16*PITCH}\ns_movk_i32 s1, {PITCH}")
    a("v_bfe_u32 v3, v0, 2, 1\nv_and_b32 v4, 3, v0\nv_lshlrev_b32 v4, 1, v4"); a("v_lshl_add_u32 v3, v3, 3, v4\nv_bfe_u32 v4, v0, 3, 1\nv_add_u32 v3, v3, v4")
    a(f"s_add_u32 s3, s0, {KB}\nv_mov_b32 v4, s3\nv_mad_u32_u24 v3, v3, s1, v4")
    a(f"s_add_u32 s3, s0, {QB + 8*PITCH}\nv_mov_b32 v4, s3\nv_mad_u32_u24 v4, v1, s1, v4")
    smask(52, LO)
    def kq(dK, dQ, quad, cond):
        a(quad); a(f"v_lshl_add_u32 v{dK}, v5, 3, v3\nv_lshl_add_u32 v5, v5, 3, v4")
        if cond: a(cond); a("v_cndmask_b32 v5, v7, v5, vcc")
        a(f"v_cndmask_b32 v{dQ}, v7, v5, s[52:53]\nv_cndmask_b32 v{dQ+1}, v5, v7, s[52:53]")
    kq(aKe, aQe, "v_add_u32 v5, s51, v2", None)
    kq(aKx, aQx, "v_add_u32 v5, s46, v2", "v_cmp_gt_u32 vcc, s47, v2")
    kq(aKy, aQy, "v_add_u32 v5, s48, v2\nv_min_u32 v5, 15, v5", "v_cmp_gt_u32 vcc, s49, v2")
    a("s_sub_u32 s3, s51, 1\nv_mad_u32_u24 v5, v2, 5, s3\ns_add_u32 s3, s46, 4\nv_mov_b32 v6, s3\ns_mov_b64 vcc, 0xffff\nv_cndmask_b32 v5, v5, v6, vcc")
    a(f"v_min_u32 v5, 15, v5\nv_lshl_add_u32 v{aK4}, v5, 3, v3\nv_lshl_add_u32 v5, v5, 3, v4")
    a(f"s_cmp_eq_u32 s47, 5\ns_cselect_b64 vcc, 0xff, 0\nv_cndmask_b32 v{aQ4}, v7, v5, vcc\ns_lshl_b64 vcc, vcc, 8\nv_cndmask_b32 v{aQ4+1}, v7, v5, vcc")
    for i in range(2, 6): a(f"s_bfm_b64 vcc, 8, {8*i}\nv_cndmask_b32 v{aQ4+i}, v7, v5, vcc")
def suC():
    a(f"s_mul_i32 s0, s{sTA}, {16*PITCH}\ns_movk_i32 s1, {PITCH}")
    a("v_bfe_u32 v3, v0, 2, 3\nv_lshrrev_b32 v4, 5, v0\nv_lshl_add_u32 v3, v3, 1, v4")
    a(f"s_add_u32 s3, s0, {VB}\nv_mov_b32 v4, s3\nv_mad_u32_u24 v3, v3, s1, v4\nv_and_b32 v4, 3, v0")
    smask(54, lanes(lambda l: l & 3 == 0))
    a(f"v_add_u32 v5, s51, v4\nv_lshl_add_u32 v{aVe}, v5, 3, v3\nv_add_u32 v7, 32, v{aVe}")
    a(f"s_cmp_eq_u32 s50, 1\ns_cselect_b32 s3, -1, 12\ns_cselect_b32 s56, 2, -1")
    a(f"v_add_u32 v5, s3, v4\nv_lshl_add_u32 v5, v5, 3, v3\nv_cndmask_b32 v{aV1}, v5, v7, s[54:55]\nv_add_u32 v7, 40, v7")
    a(f"v_add_u32 v5, s56, v4\nv_add_u32 v6, 10, v5\nv_cmp_gt_i32 vcc, s51, v5"); a(f"v_cndmask_b32 v5, v6, v5, vcc\nv_lshl_add_u32 v5, v5, 3, v3\nv_cndmask_b32 v{aV2}, v5, v7, s[54:55]")
    a(f"s_lshl_b32 s0, s{sTA}, 8\nv_lshrrev_b32 v4, 5, v0\nv_and_or_b32 v3, v0, 8, v4\ns_add_u32 s3, s0, {STATS + 8}\nv_lshl_add_u32 v{aRK}, v3, 4, s3")
    a(f"v_and_b32 v1, 15, v0\ns_add_u32 s3, s0, {STATS + 128 + 4}\nv_lshl_add_u32 v{aCQ}, v1, 4, s3")
    a(f"s_lshr_b32 s3, s{sB0}, 8\ns_mul_i32 s3, s3, 52429\ns_lshr_b32 s3, s3, 18\ns_lshl_b32 s0, s{sTP}, 5\ns_add_u32 s3, s3, s0\ns_sub_u32 s3, 2047, s3\nv_mad_i32_i24 v{vRK}, v1, -2, s3")
def octaddr(d, tile, rowq, extra):
    a(f"s_lshl_b32 s3, s{tile}, 4\nv_add_u32 v5, s3, v{rowq}\ns_lshl_b32 s3, s{sNO}, 3\nv_cmp_gt_u32 vcc, s3, v5")
    a(f"v_mul_u32_u24 v5, 2560, v5\nv_add3_u32 v5, v5, v{extra}, s{sB0}\nv_cndmask_b32 v{d}, v6, v5, vcc")
def suD(helper=1):
    a(f"v_lshrrev_b32 v2, 4, v0\nv_and_or_b32 v3, v0, 8, v2\nv_and_b32 v4, 0x70, v{aL16}\nv_bfrev_b32 v6, 1")
    if helper: octaddr(aOl2, sTS, 3, 4)
    octaddr(aOl, sTA, 3, 4)
    a(f"s_lshl_b32 s3, s{sC}, 7\nv_add_u32 v{aOs}, s3, v{aOl}")
    a(f"v_bfe_u32 v3, v0, 4, 1\nv_cmp_eq_u32 s[54:55], s50, v3\ns_cmp_lg_u32 s{sC5}, 0\ns_cselect_b64 s[0:1], -1, s[54:55]\ns_and_b64 vcc, vcc, s[0:1]")
    a(f"s_cmp_lg_u32 s{sC5}, 4\ns_cselect_b64 s[0:1], 0, s[54:55]\ns_andn2_b64 vcc, vcc, s[0:1]")
    a(f"v_cndmask_b32 v{aH0l}, v6, v{aOs}, vcc")
    a(f"s_cmp_le_u32 s{sC5}, 3\ns_cselect_b32 s3, 2560, 0\ns_sub_u32 s3, s3, 128\nv_mov_b32 v4, s3"); a(f"s_cmp_ge_u32 s{sC5}, 2\ns_cselect_b32 s3, 2560, 0\ns_add_u32 s3, s3, 128\nv_mov_b32 v5, s3")
    a(f"v_cndmask_b32 v4, v4, v5, s[54:55]\nv_mul_u32_u24 v3, 2560, v3\nv_sub_u32 v4, v4, v3"); a(f"v_add_u32 v4, v4, v{aOs}\nv_cndmask_b32 v{aH0s}, v6, v4, vcc")
def wlane():
    a("v_bfe_u32 v3, v0, 3, 2\nv_lshlrev_b32 v3, 2, v3\nv_and_or_b32 v3, v0, 3, v3"); a("v_lshlrev_b32 v3, 3, v3\nv_bfe_u32 v4, v0, 2, 2\nv_lshl_add_u32 v3, v4, 7, v3")
def suE(helper=1):
    a("v_and_b32 v1, 15, v0\nv_bfrev_b32 v6, 1\nv_bfe_u32 v3, v0, 4, 1\nv_lshrrev_b32 v4, 5, v0"); a(f"v_lshl_add_u32 v3, v3, 1, v4\ns_lshl_b32 s3, s{sC}, 7\nv_lshl_add_u32 v4, v3, 4, s3")
    octaddr(aOUT, sTP, 1, 4)
    wlane()
    a("v_lshrrev_b32 v2, 4, v0")
    if helper:
        a(f"s_and_b32 s3, s{sWV}, 1\ns_lshl_b32 s3, s3, 12\ns_add_u32 s3, s3, {WOB}\nv_lshl_add_u32 v4, v2, 10, v3\nv_add_u32 v{aWO}, s3, v4")
        for ct in range(1, 4): a(f"v_xor_b32 v{aWO+ct}, {32*ct}, v{aWO}")
    for r in range(4): smask(sM + 2 * r, MASK[r])
    a(f"s_movk_i32 s{sLT}, 10240\ns_mov_b32 s{sP1}, 0x07060501\ns_mov_b32 s{sP2}, 0x0706000c")
    a("v_mov_b32 v5, 0xffff\nv_mov_b32 v6, 0xffff0000")
    for d in range(2): a(f"v_cndmask_b32 v1, 0, v5, s[{sM+4*d}:{sM+4*d+1}]\nv_cndmask_b32 v4, 0, v6, s[{sM+4*d+2}:{sM+4*d+3}]\nv_or_b32 v{vM+d}, v1, v4")
KQ, SS, KS, PX, FL_, FE, VF, HL, CQ, TM, F01 = 96, 152, 168, 176, 192, 196, 64, 92, 5, 6, 2
DM, LT, QF = SS, 80, KQ + 20
H, OF, WOF, RING = 8, 24, 104, 6
DEP = OPT["dep"]
def capt(slot, d=XR):
    a(f"v_add_u32 v1, {slot}, v{aXC}")
    for ct in range(4):
        if ct: a(f"v_xor_b32 v{1+ct}, {32*ct}, v1")
        a(f"ds_read_b64 {V(d+2*ct,2)}, v{1+ct}")
def hinit(d=XR):
    for i in range(8): a(f"v_lshlrev_b32 v{H+2*i}, 16, v{d+i}\nv_and_b32 v{H+2*i+1}, 0xffff0000, v{d+i}")
def ldWR():
    a(f"v_lshrrev_b32 v1, 4, v0\nv_lshlrev_b32 v1, 3, v1\ns_lshl_b32 s3, s{sC}, 7")
    for ct in range(4): a(f"buffer_load_dwordx2 {V(WRF+2*ct,2)}, v1, {S(WR)}, s3 offen offset:{32*ct}")
def wrprep(t):
    a(f"s_mov_b32 s3, {ONES:#x}")
    for i in range(4): a(f"v_mov_b32 v{t+i}, s3")
    execset(0x1111111111111111)
    for i in range(8): a(f"v_mov_b32 v{WRF+i}, s3")
    execset(-1)
    for k in range(2): mfma(WSP, WRF + 4 * k, t, "0" if k == 0 else None)
def pzero(lo=0, hi=16):
    for i in range(lo, hi): a(f"v_mov_b32 v{PX+i}, 0")
def ksread(e=None):
    e = e or a
    a(f"v_add_u32 v1, 128, v{aRK}")
    for r in range(4):
        e(f"v_cndmask_b32 v2, v1, v{aRK}, s[{sM+2*r}:{sM+2*r+1}]\nds_read_b64 {V(KS+2*r,2)}, v2 offset:{32*r}")
    e(f"ds_read_b32 v{CQ}, v{aCQ}")
def rdmode(): a(f"v_mov_b32 v1, {MODE}\nds_read_b32 v1, v1\ns_waitcnt lgkmcnt(0)\nv_readfirstlane_b32 s{sMODE}, v1")
def gsync_h(poll):
    l = a.label("gh")
    a(f"s_cmp_eq_u32 s{sMODE}, 1\ns_cbranch_scc0 {l}g\n{l}b:")
    t = f"{l}g:\ns_barrier\n"
    if poll:
        t += f"s_cmp_eq_u32 s{sWV}, 5\ns_cbranch_scc0 {l}e\nv_mov_b32 v1, 1\ns_mov_b64 exec, 1\nbuffer_store_dword v1, off, {S(WS)}, s{sFO} offset:64 sc1\ns_mov_b64 exec, -1\n"
        t += f"{l}p:\nbuffer_load_dword v1, v{vEA}, {S(WS)}, 0 offen offset:64 sc1\ns_waitcnt vmcnt(0)\nv_cmp_ne_u32 vcc, 1, v1\ns_cbranch_vccz {l}e\ns_sub_u32 s{sBUD}, s{sBUD}, 1\ns_cbranch_scc0 {l}p\ns_mov_b32 s{sBUD}, 0\n{l}e:\n"
    DEFER.append(t + f"s_barrier\ns_branch {l}b")
def weave(P, xs):
    xs = list(xs); per = -(-len(xs) // len(P))
    for p in P:
        a(p)
        for _ in range(per):
            if xs: a(xs.pop(0))
a("v_mov_b32 v254, v4")
suA()
a(f"s_cmp_lt_u32 s{sWV}, 4\ns_cbranch_scc1 L_cons")
vW, vT = 24, 56
STR = {5: 0, 3: 1, 13: 2, -3: 3, -13: 4}
def wo_setup(vT=vT):
    a(f"v_lshrrev_b32 v1, 3, v0\nv_and_b32 v2, 2, v1\nv_xor_b32 v2, v2, v0\ns_lshl_b32 s3, s{sWV}, 2\nv_xor_b32 v2, s3, v2")
    a(f"v_and_b32 v2, 7, v2\ns_lshl_b32 s3, s{sC}, 7\nv_lshl_add_u32 v2, v2, 4, s3")
    a(f"v_and_b32 v3, 3, v1\nv_mul_u32_u24 v3, 1280, v3\nv_add_u32 v2, v3, v2")
    a(f"v_lshrrev_b32 v3, 5, v0\nv_mul_u32_u24 v3, 5120, v3\nv_sub_u32 v4, 5120, v3")
    for d, i in STR.items(): a(f"v_mad_u32_u24 v{vT+i}, v{3 + (d < 0)}, {abs(d)}, v2")
def wo_quads(cp, h, g):
    c5 = cp % 5
    if h == 0: return 5 - c5 + g, 10 - c5 + g
    if g == 0: return 9 - c5, 14 - c5
    i = g - 1
    p = 3 + i if c5 <= 2 else i
    return (i if c5 <= 2 else 13 + i), (p if p < 5 - c5 else 10 + p)
def wo_piece(st, g):
    h, cp = st // 10, st % 10
    q0, q1 = wo_quads(cp, h, g or 0)
    t = f"s_lshl_b32 s3, s{sT}, 10\ns_add_u32 m0, s3, {WOB}" if st == 0 else "s_addk_i32 m0, 4096"
    o = (64*cp + 4*min(q0, q1)) * 1280
    t += f"\ns_add_u32 s3, s{sPF}, {o}" if g is None else f"\ns_mov_b32 s3, {o}"
    return t + f"\nbuffer_load_dwordx4 v{vT + STR[q1 - q0]}, {S(WO)}, s3 offen lds"
def wo_late(lo, w, vT):
    for st in range(lo, 20):
        for g in (w, w + 2):
            q0, q1 = wo_quads(st % 10, st // 10, g)
            a(f"s_mov_b32 m0, {WOB + 4096*st + 1024*g}" if (st, g) == (lo, w) else "s_addk_i32 m0, 2048")
            a(f"s_mov_b32 s3, {(64*(st % 10) + 4*min(q0, q1)) * 1280}\nbuffer_load_dwordx4 v{vT + STR[q1 - q0]}, {S(WO)}, s3 offen lds")
def wo_run(lo, hi, tag):
    for st in range(lo, min(hi, 10)): a(wo_piece(st, None))
    lo = max(lo, 10)
    if lo >= hi: return
    for g in range(1, 4):
        a(f"s_cmp_eq_u32 s{sT}, {g}\ns_cbranch_scc1 L_wo{tag}{g}")
        DEFER.append(f"L_wo{tag}{g}:\n" + "\n".join(wo_piece(st, g) for st in range(lo, hi)) + f"\ns_branch L_wo{tag}")
    for st in range(lo, hi): a(wo_piece(st, 0))
    a(f"L_wo{tag}:")
N0 = OPT["n0"]; NA = N0 + OPT["na"]; NB = NA + OPT["nb"]; N1 = NB + OPT["n1"]
assert 2 * DEP <= N0 <= N1 <= 20
vTC = 61
def touch_setup():
    a(f"s_mul_i32 s3, s{sT}, 24\nv_add_u32 v1, s3, v0\ns_add_u32 s3, s3, 24\ns_lshl_b32 s0, s{sNO}, 3\ns_min_u32 s3, s3, s0\nv_cmp_gt_u32 vcc, s3, v1")
    a(f"v_mul_u32_u24 v1, 2560, v1\ns_lshl_b32 s0, s{sC}, 7\ns_add_u32 s3, s0, s{sB0}\nv_add_u32 v1, s3, v1\nv_bfrev_b32 v2, 1\nv_cndmask_b32 v{vTC}, v2, v1, vcc")
    a(f"s_lshl_b32 s3, s{sG}, 2\ns_add_u32 s3, s3, s{sT}\ns_mul_i32 s3, s3, 1280\ns_add_u32 s3, s3, s0\nv_mul_u32_u24 v1, {12*1280}, v0\nv_add_u32 v{vTC+1}, s3, v1")
    a(f"s_mul_i32 s3, s{sT}, 3\nv_min_u32 v1, 2, v0\nv_add_u32 v1, s3, v1\nv_lshrrev_b32 v2, 1, v1\nv_mul_u32_u24 v2, {2560 - 256}, v2\nv_lshl_add_u32 v1, v1, 7, v2")
    a(f"s_mul_i32 s3, s{sGID}, 15360\ns_lshl_b32 s0, s{sC}, 8\ns_add_u32 s3, s3, s0\ns_add_u32 s3, s3, {E2}\nv_add_u32 v{vTC+2}, s3, v1")
    if OPT["mt"]:
        R = 64 * (10 - OPT["mx"]); per = -(-2 * R // 30)
        a(f"s_mul_i32 s3, s{sU}, {per}\nv_min_u32 v1, {per-1}, v0\nv_add_u32 v1, s3, v1\nv_min_u32 v1, {2*R-1}, v1\nv_cmp_le_u32 vcc, {R}, v1\nv_mul_u32_u24 v1, 3072, v1")
        a(f"s_mul_i32 s3, s{sJ}, 384\ns_add_u32 s3, s3, {64*OPT['mx']*3072}\nv_add_u32 v1, s3, v1\nv_subrev_u32 v2, {(R + 320)*3072 - 256}, v1\nv_cndmask_b32 v1, v1, v2, vcc")
        a(f"s_mul_i32 s3, s{sJ}, 60\ns_lshl_b32 s0, s{sU}, 1\ns_add_u32 s3, s3, s0\ns_and_b32 s0, s{sWV}, 1\ns_add_u32 s3, s3, s0\ns_lshl_b32 s3, s3, 12\nv_min_u32 v2, 31, v0\nv_lshl_add_u32 v2, v2, 7, s3")
        a(f"s_cmp_ge_u32 s{sWV}, 6\ns_cselect_b64 vcc, -1, 0\nv_cndmask_b32 v{vMT}, v1, v2, vcc")
vMT = 84
def mtouch(p):
    if OPT["mt"] == p: a(f"global_load_dword v{vMT}, v{vMT}, s[{sMT}:{sMT+1}]")
NT = bin(OPT["tch"]).count("1") + (OPT["mt"] in (1, 2))
def xstart(i): nextslab(); a(f"s_lshl_b32 s{sXO}, s{sSB}, 7\ns_mov_b32 s{sSL}, {S0 + SLOT*(i % 4)}")
xstart(1)
if OPT["x1"] == 0: a(f"s_cmp_eq_u32 s{sWV}, 4\ns_cbranch_scc1 L_n1"); xissue(); a("L_n1:")
suB(); suC()
stamp(0, 5)
suD(); suE(); wo_setup(); touch_setup(); pzero()
a(f"s_cmp_eq_u32 s{sWV}, 4\ns_cbranch_scc1 L_h0")
E1_, E2_ = OPT["e1"], OPT["e2"]
assert 1 <= E1_ and E1_ + 2 <= E2_ <= 4
vXA = vEV
a(f"v_mov_b32 v4, {ONES:#x}\nv_mov_b32 v5, v4\nv_lshrrev_b32 v1, 4, v0\nv_mul_u32_u24 v1, {SLOT - 128}, v1\nv_lshl_add_u32 v1, v0, 3, v1\nds_write_b64 v1, v[4:5] offset:{S0}")
a(f"s_sub_u32 s0, s{sWV}, 5\ns_mul_i32 s3, s{sGID}, 3\ns_add_u32 s3, s3, s0\ns_mul_i32 s3, s3, 2560\ns_add_u32 s{sSPL}, s3, {SP}")
a(f"s_mul_i32 s3, s{sG}, 1280\ns_add_u32 s3, s3, s{sRJ}\ns_add_u32 s{sPF}, s3, {R_FL}\nv_min_u32 v1, 9, v0\nv_lshl_add_u32 v{vEA}, v1, 7, s{sPF}\ns_lshl_b32 s{sFO}, s{sC}, 7\ns_add_u32 s{sFO}, s{sFO}, s{sPF}")
a(f"v_and_b32 v1, 15, v0\nv_lshrrev_b32 v2, 5, v0\nv_lshl_add_u32 v2, v2, 4, v1\ns_lshl_b32 s0, s0, 5\nv_add_lshl_u32 v{vSTW}, v2, s0, 4")
a(f"v_lshrrev_b32 v2, 4, v0\nv_lshrrev_b32 v3, 1, v1\nv_xor_b32 v3, v3, v2\nv_lshlrev_b32 v3, 4, v3\nv_lshl_add_u32 v3, v1, 7, v3\nv_add_u32 v{vXA}, s{sLX}, v3")
a(f"s_cmp_lt_u32 s{sB0}, 2560\ns_cselect_b32 s3, 128, 0\nv_mov_b32 v1, 0xf149f2ca\nv_cmp_gt_u32 vcc, s3, v{vSTW}\nv_cndmask_b32 v{vBIA}, 0, v1, vcc")
stamp(1, 5)
if OPT["xprio"]: a(f"s_setprio {OPT['xprio']}")
if OPT["x1"] == 2: xissue()
ldWR()
for k in range(4): a(f"v_mov_b32 v{64+k}, {ONES:#x}")
a("s_waitcnt vmcnt(8) lgkmcnt(0)")
stamp(2, 5)
def part_stats():
    PD = 96
    a(f"v_xor_b32 v1, 64, v{vXA}")
    for t in range(2):
        for ks in range(2): a(f"ds_read_b128 {V(vXD+8*t+4*ks,4)}, v{1 if ks else vXA} offset:{S0 + 2048*t}")
    a(f"s_lshl_b32 s3, s{sC}, 8\ns_add_u32 s3, s3, s{sSPL}\nv_and_b32 v2, 0xf0, v{aL16}\ns_mov_b32 s0, 0xaaaaaaaa\ns_mov_b32 s1, s0\ns_mov_b32 vcc_lo, 0xcccccccc\ns_mov_b32 vcc_hi, 0xcccccccc")
    for t in range(2):
        for ks in range(2):
            a(f"s_waitcnt lgkmcnt({3 - 2*t - ks})")
            mfma(PD + 8 * t, vXD + 8 * t + 4 * ks, vXD + 8 * t + 4 * ks, None if ks else "0")
            mfma(PD + 8 * t + 4, 64, vXD + 8 * t + 4 * ks, None if ks else "0")
    for t in range(2):
        d = PD + 8 * t
        a(f"v_cndmask_b32 v{d}, v{d}, v{d+1}, s[0:1]\nv_cndmask_b32 v{d+2}, v{d+2}, v{d+3}, s[0:1]\nv_cndmask_b32 v{vSUM+2*t+1}, v{d}, v{d+2}, vcc\nv_mov_b32 v{vSUM+2*t}, v{d+4}")
    execset(0xF0000F0000F0000F)
    a(f"buffer_store_dwordx4 {V(vSUM,4)}, v2, {S(WS)}, s3 offen sc1")
    execset(-1)
    for i in range(4): a(f"v_mov_b32 v{vXD+8+i}, 0")
def only5(tag, fn):
    a(f"s_cmp_eq_u32 s{sWV}, 5\ns_cbranch_scc0 L_o5{tag}"); fn(); a(f"L_o5{tag}:")
def evchk(tag, cmp_, ld):
    a(f"s_waitcnt lgkmcnt(0)\n{cmp_}\ns_cbranch_scc0 L_er{tag}\nL_eg{tag}:")
    DEFER.append(f"L_er{tag}:\ns_sub_u32 s{sBUD}, s{sBUD}, 1\ns_cbranch_scc1 L_ex{tag}\n{ld}\ns_waitcnt lgkmcnt(0)\n{cmp_}\ns_cbranch_scc0 L_er{tag}\ns_branch L_eg{tag}\nL_ex{tag}:\ns_mov_b32 s{sBUD}, 0\ns_branch L_eg{tag}")
FR = [71, 73, 75, 77, 83, 85, 89, 91, 93, 95]
ldroot = f"s_lshl_b32 s0, s{sJ}, 5\nv_and_b32 v1, 16, v0\nbuffer_load_dword v{vSUM+4}, v1, {S(DBG)}, s0 offen sc1"
ldflag = "\n".join(f"s_buffer_load_dword s{r}, {S(WS)}, s{sPF} offset:{128*k} glc" for k, r in enumerate(FR))
for i in range(9):
    a("s_barrier")
    stamp(3 + i, 5)
    ex = 0
    if i == E1_ + 1:
        def f():
            evchk("a", f"v_cmp_ne_u32 vcc, 1, v{vSUM+4}\ns_cmp_eq_u64 vcc, 0", ldroot + "\ns_waitcnt vmcnt(0)")
            a(f"s_getreg_b32 s0, hwreg(HW_REG_XCC_ID, 0, 4)\nv_mov_b32 v1, s0\ns_mov_b64 exec, 1\nbuffer_store_dword v1, off, {S(WS)}, s{sFO} sc1\ns_mov_b64 exec, -1")
        only5("c", f)
    if i == E2_ + 2:
        for k in range(3):
            if k == 2: a("s_mov_b32 exec_hi, 0")
            a(f"buffer_load_dwordx4 {V(vXD+4*k,4)}, v{aL16}, {S(WS)}, s{sSPL} offen offset:{1024*k} sc1")
        a("s_mov_b32 exec_hi, -1"); ex += 3
    if i == 0: part_stats(); ex += 1
    if OPT["pf0"] & 1 and OPT["pfp"] % 10 == i + 2:
        a(f"s_mul_i32 s3, s2, 3\ns_add_u32 s3, s3, s{sWV}\ns_sub_u32 s3, s3, 5\ns_mul_i32 s3, s3, {9*128}\nv_lshlrev_b32 v1, 7, v0\ns_mov_b64 exec, 0x1ff\nbuffer_load_dword v255, v1, {S(WO)}, s3 offen\ns_mov_b64 exec, -1"); ex += 1
    if i < 8: xstart(i + 2); xissue()
    if i:
        a(f"s_cmp_eq_u32 s{sXT}, {i}\ns_cbranch_scc0 L_xc{i}\ns_mov_b32 s0, {S0 + SLOT * (i % 4)}\ns_call_b64 s[100:101], L_xcap\nL_xc{i}:")
    if i == E2_ + 1:
        def f():
            evchk("b", f"s_max_u32 s0, s{FR[0]}, s{FR[1]}\n" + "\n".join(f"s_max_u32 s0, s0, s{r}" for r in FR[2:]) + "\ns_cmp_lg_u32 s0, -1", ldflag)
            a(f"s_min_u32 s1, s{FR[0]}, s{FR[1]}\n" + "\n".join(f"s_min_u32 s1, s1, s{r}" for r in FR[2:]) + f"\ns_cmp_eq_u32 s0, s1\ns_cselect_b32 s0, {OPT['fmode']}, 0")
            a(f"v_mov_b32 v1, {MODE}\nv_mov_b32 v2, s0\nds_write_b32 v1, v2")
        only5("d", f)
    if i == E2_ + 3:
        a(f"s_waitcnt vmcnt({8 + ex})")
        for k in (4, 8):
            for e in range(4): a(f"v_add_f32 v{vXD+e}, v{vXD+e}, v{vXD+k+e}")
        a(f"v_permlane32_swap_b32 v{vXD}, v{vXD+2}\nv_permlane32_swap_b32 v{vXD+1}, v{vXD+3}\nv_add_f32 v{vXD}, v{vXD}, v{vXD+2}\nv_add_f32 v{vXD+1}, v{vXD+1}, v{vXD+3}")
        a(f"v_mov_b32 v{vXD+2}, v{vXD}\nv_mov_b32 v{vXD+3}, v{vXD+1}\ns_mov_b32 s1, 0x3acccccd\nv_mov_b32 v1, 0x3727c5ac")
        a(f"v_permlane16_swap_b32 v{vXD}, v{vXD+2}\nv_permlane16_swap_b32 v{vXD+1}, v{vXD+3}\nv_add_f32 v{vXD}, v{vXD}, v{vXD+2}\nv_add_f32 v{vXD+1}, v{vXD+1}, v{vXD+3}")
        a(f"v_mul_f32 v{vXD}, 0xbacccccd, v{vXD}\nv_fma_f32 v2, v{vXD+1}, s1, v1\nv_fma_f32 v2, -v{vXD}, v{vXD}, v2\nv_max_f32 v2, v2, v1\nv_rsq_f32 v{vXD+1}, v2\nv_mov_b32 v{vXD+3}, v{vBIA}\nv_mov_b32 v{vXD+2}, v{vXD+1}")
        a(f"ds_write_b128 v{vSTW}, {V(vXD,4)} offset:{STATS}")
    if 1 <= i <= 6 and OPT["pg"]:
        a(f"s_cmp_eq_u32 s{sWV}, 7\ns_cbranch_scc0 L_wm{i}"); warm("h", i - 1, 6); a(f"L_wm{i}:")
    if i == 0: pagebreak("c0")
    if i == 8: break
    if i == E1_ + 1: a(f"s_cmp_eq_u32 s{sWV}, 5\ns_cbranch_scc1 L_w5{i}\ns_waitcnt vmcnt({4 + ex})\nL_w5{i}:"); ex += 1
    a(f"s_waitcnt vmcnt({4 + ex}) lgkmcnt(0)")
    if i == E1_ - 1: only5("a", lambda: a(ldroot))
    if i == E2_: only5("b", lambda: a(ldflag))
    if i == 2 and OPT["ppr"]:
        a(f"s_lshl_b32 s3, s{sC}, 8\ns_add_u32 s3, s3, s{sSPL}")
        for k in range(4): a(f"s_buffer_load_dword s75, {S(WS)}, s3 offset:{64*k}")
a(f"L_h8:\ns_mul_i32 s{sPF}, s{sT}, 5120")
wo_run(0, N0, "a")
ksread(); rdmode()
if OPT['hp'] == 0: hinit(72); wrprep(64)
a(f"s_waitcnt vmcnt({N0})")
stamp(2)
a("s_barrier")
stamp(3); stamp(9, 2); stamp(0, 3)
if not OPT['clr']: gsync_h(1)
def touch(p):
    if p == OPT["tpos"]:
        for k, d in ((1, WO), (0, OUT), (2, WS)):
            if OPT["tch"] >> k & 1: a(f"buffer_load_dword v{vTC+k}, v{vTC+k}, {S(d)}, 0 offen")
wo_run(N0, NA, "d")
touch(0)
mtouch(1)
if OPT['hp'] == 1: hinit(72); wrprep(64)
sO, sDW = 61, 65
a(f"s_and_b32 s3, s{sWV}, 1\ns_lshl_b32 s{sO}, s3, 7\ns_xor_b32 s{sO+1}, s{sO}, 128\ns_add_u32 s{sO+2}, s{sO+1}, s{sLT}\ns_add_u32 s{sO+3}, s{sO}, s{sLT}\ns_lshl_b32 s3, s3, 13\ns_sub_u32 s{sDW}, 4096, s3")
DEFER.append("L_xcap:\n" + "\n".join(capture(lambda: capt("s0", 72))) + "\ns_setpc_b64 s[100:101]")

def rdWO1(s, ct, e):
    t = ""
    if e == 0 and s in (5, 10, 15): t = {5: f"v_add_u32 v{aWO+ct}, s{sDW}, v{aWO+ct}", 10: f"v_add_u32 v{aWO+ct}, 40960, v{aWO+ct}", 15: f"v_subrev_u32 v{aWO+ct}, s{sDW}, v{aWO+ct}"}[s] + "\n"
    return t + f"ds_read_b64_tr_b16 {V(WOF + 16*(s % RING) + 4*ct + 2*e, 2)}, v{aWO+ct} offset:{8192*(s % 5) + 512*e}"
SF = 15 - OPT["sf"]
OL = [(s, w) for s in range(SF) for w in range(2 if s >= 5 else 1)] + [(s, 1) for s in range(SF, 15)] + [(s, 0) for s in range(SF, 20)]
def oreg(k): return OF + 4 * (k % (20 if not OPT["dbg"] & 2 else OPT["ou"]))
def ldO(k):
    s, w = OL[k]
    a(f"buffer_load_dwordx4 {V(oreg(k),4)}, v{aOl2 if w else aOl}, {S(OUT)}, s{sO + s // 5} offen offset:{256*(s % 5)} sc1")
def spin(tag, addr, cmp_, slp=0):
    a(f"{cmp_}\ns_cbranch_vccnz L_sp{tag}\nL_sb{tag}:")
    DEFER.append(f"L_sp{tag}:\n" + (f"s_sleep {slp}\n" if slp else "") + f"v_mov_b32 v1, {addr}\nds_read_b32 v1, v1\ns_waitcnt lgkmcnt(0)\n{cmp_}\ns_cbranch_vccnz L_sp{tag}\ns_branch L_sb{tag}")
def fold(A, B, F):
    for r in range(4): a(f"v_permlane16_swap_b32 v{A+r}, v{B+r}")
    for r in range(4): a(f"v_cndmask_b32 v{F[r]}, v{B+r}, v{A+r}, s[{sM+2*r}:{sM+2*r+1}]")
def softmax(F, P, mid=None):
    m, t = TM, TM + 1
    for r in range(4): a(f"v_fma_f32 v{F+r}, v{F+r}, v{KS+2*r}, v{KS+2*r+1}")
    a(f"v_max3_f32 v{m}, v{F}, v{F+1}, v{F+2}\nv_max_f32 v{m}, v{m}, v{F+3}\nv_mov_b32 v{t}, v{m}\nv_permlane32_swap_b32 v{m}, v{t}\nv_max_f32 v{m}, v{m}, v{t}\nv_mul_f32 v{m}, v{m}, v{CQ}")
    for r in range(4): a(f"v_fma_f32 v{F+r}, v{F+r}, v{CQ}, -v{m}")
    for r in range(4): a(f"v_exp_f32 v{F+r}, v{F+r}")
    if mid: mid()
    a(f"v_add_f32 v{m}, v{F}, v{F+1}\nv_add_f32 v{t}, v{F+2}, v{F+3}\nv_add_f32 v{m}, v{m}, v{t}\nv_mov_b32 v{t}, v{m}\nv_mul_f32 v{F}, v{F}, v{KS}\nv_mul_f32 v{F+1}, v{F+1}, v{KS+2}")
    a(f"v_permlane32_swap_b32 v{m}, v{t}\nv_mul_f32 v{F+2}, v{F+2}, v{KS+4}\nv_add_f32 v{m}, v{m}, v{t}\nv_rcp_f32 v{m}, v{m}\nv_mul_f32 v{F+3}, v{F+3}, v{KS+6}")
    for r in range(4): a(f"v_mul_f32 v{F+r}, v{F+r}, v{m}")
    a(f"v_cvt_pk_bf16_f32 v{F}, v{F}, v{F+1}\nv_cvt_pk_bf16_f32 v{F+1}, v{F+2}, v{F+3}")
    for hh in range(2):
        a(f"s_mov_b64 exec, s[{sLO}:{sLO+1}]" if hh == 0 else "s_not_b64 exec, exec")
        for d in range(2): a(f"v_and_b32 v{P+2*hh+d}, v{vM+d}, v{F+d}\nv_bfi_b32 v{P+4+2*hh+d}, v{vM+d}, 0, v{F+d}")
    a("s_mov_b64 exec, -1")
    for d in range(4): a(f"v_permlane16_swap_b32 v{P+d}, v{P+4+d}")
def ymask():
    a(f"s_add_u32 s0, s{sC5}, 1\ns_sub_u32 s1, 5, s{sC5}\ns_min_u32 s0, s0, s1\ns_lshl_b32 s0, s0, 4\ns_sub_u32 s1, 64, s0\ns_cmp_le_u32 s{sC5}, 2\ns_cselect_b32 s1, s1, 16\ns_bfm_b64 s[100:101], s0, s1")
def attention(T):
    helper = T == "h"; doL = T != "e"; doE = T != "l"
    L.reset()
    rid = {}
    KR = ((aKx, 0), (aKy, 0), (aK4, 0), (aKe, 0), (aKe, 40))
    QR = ((aQx, 0, 0), (aQy, 0, 1), (aQ4, 0, 2), (aQe, 0, 3), (aQe, 40, 4), (aQ4 + 2, 0, 2), (aQ4 + 4, 0, 2))
    def rk(i):
        k, o = KR[i]; d = KQ + 4 * i
        L(f"ds_read_b64 {V(d,2)}, v{k} offset:{o}"); L(f"ds_read_b64 {V(d+2,2)}, v{k} offset:{o + 8*PITCH}")
    def rq(i):
        q, o, _ = QR[i]; d = QF + 4 * i
        L(f"ds_read_b64 {V(d,2)}, v{q} offset:{o}"); rid[i] = L(f"ds_read_b64 {V(d+2,2)}, v{q+1} offset:{o}")
    def lg(i):
        L.wait(rid[i]); mfma(SS + (0, 4, 0, 8, 12, 8, 12)[i], KQ + 4 * QR[i][2], QF + 4 * i, "0" if i in (0, 1, 3, 4) else None)
    vid = {}
    def vreads():
        for i, (r_, o) in enumerate(((aVe, 0), (aVe, 40), (aV1, 0), (aV2, 0))):
            if doE or i >= 2:
                L(f"ds_read_b64_tr_b16 {V(VF+4*i,2)}, v{r_} offset:{o}")
                vid[i] = L(f"ds_read_b64_tr_b16 {V(VF+4*i+2,2)}, v{r_} offset:{o + 8*PITCH}")
    def lfold(): fold(SS, SS + 4, [F01, F01 + 1, FL_ + 2, FL_ + 3])
    def lpack(): a(f"v_or_b32 v{FL_}, 0xffff, v{F01}\nv_perm_b32 v{FL_+1}, v{F01+1}, v{F01}, s{sP1}")
    cq = f"v_mul_f32 v{CQ}, {CEXP:#x}, v{CQ}"
    if helper:
        ymask(); a(cq)
        a("s_barrier")
        for i in range(5): rk(i)
        wo_run(NA, NB, "e")
        if OPT["bv"] >= 0: a("s_barrier"); vreads()
        wo_run(NB, N1, "b")
        touch(1)
        mtouch(2)
        a(f"s_setprio {OPT['aprio']}\ns_waitcnt vmcnt({NT + N1 - N0 if OPT['wc'] < 2 else NT})")
        stamp(1, 3)
        a("s_barrier")
        stamp(4); stamp(2, 3)
        if STAGE == "A": a("s_branch L_dumpA")
        rq(0); rq(1); rq(2); rq(3); rq(4); lg(0); rq(5); lg(1); rq(6); lg(2); lg(3); lg(4); lg(5); lg(6); lfold(); lpack()
    elif doL: rk(0); rq(0); rk(1); rq(1); rk(2); rq(2); ymask(); lg(0); lg(1); lg(2); ksread(L); lfold(); lpack()
    else: rk(3); rq(3); rk(4); rq(4); rk(2); rq(5); rq(6); pzero(0, 8); lg(3); lg(4); ksread(L); lg(5); lg(6)
    if doL: lst(f"buffer_store_dwordx4 {V(FL_,4)}, v{aH0s}, {S(OUT)}, s{sLT} offen{{F}}")
    stamp(5); stamp(3, 3)
    if helper and OPT["wc"] == 0: wo_run(N1, 20, "c")
    hl = f"buffer_load_dwordx4 {V(HL,4)}, v{aH0l}, {S(OUT)}, s{sLT} offen sc1"
    prefill = lambda: [a(rdWO1(s_, ct, e)) for s_ in range(DEP) for ct in range(4) for e in range(2)] if helper else None
    early = lambda: [ldO(k) for k in range(OPT["ou"])] if helper else None
    late = f"buffer_store_dwordx4 {V(LT,4)}, v{aOs}, {S(OUT)}, s{sLT} offen{{F}}"
    if doE:
        fold(SS + 8, SS + 12, [FE + r for r in range(4)])
        if not helper: L.wait(L.n); a(cq)
        def mid():
            if not helper or OPT["bv"] < 0: vreads()
            if helper and OPT["wc"] == 1: wo_run(N1, 20, "c")
            if helper and OPT["hlp"] == 0: a(hl)
        softmax(FE, PX, mid)
        stamp(5, 3)
        if helper and OPT["hlp"] == 1: a(hl)
        L.wait(vid[3])
        for i in range(4): mfma(DM + 4 * i, VF + 4 * i, PX + 4 * (i & 1), "0")
        for i in range(4): a(f"v_cvt_pk_bf16_f32 v{FE+i}, v{DM+2*i}, v{DM+2*i+1}")
        lst(f"buffer_store_dwordx4 {V(FE,4)}, v{aOs}, {S(OUT)}, 0 offen{{F}}")
        stamp(6); stamp(6, 3)
        if T == "e": a(f"s_lshl_b32 s0, s{sWV}, 2\ns_add_u32 s0, s0, {HRD}\nv_mov_b32 v1, s0\nds_read_b32 v1, v1")
        for i in range(4): a(f"v_cvt_pk_bf16_f32 v{LT+i}, v{DM+8+2*i}, v{DM+8+2*i+1}")
        if helper: mtouch(3)
        prefill()
    else:
        vreads(); pzero(8, 16); L.wait(L.n); a(cq); a(hl)
        if OPT["wc"] == 2:
            a(f"s_cmp_eq_u32 s{sWV}, 3\ns_cbranch_scc1 L_wl3"); wo_late(N1, 0, 249); a("L_wlb:")
            DEFER.append("L_wl3:\n" + "\n".join(capture(lambda: wo_late(N1, 1, 249))) + "\ns_branch L_wlb")
    if T == "e":
        a("s_waitcnt lgkmcnt(0)"); spin("r", "s0", "v_cmp_eq_u32 vcc, 0, v1", 1)
        execset(0xffff); lst(late); execset(-1)
        stamp(7); stamp(10, 3)
        return
    stamp(7, 3)
    a(f"s_waitcnt vmcnt({1 + (OPT['mt'] == 3) if doE else 2 * (20 - N1) if OPT['wc'] == 2 else 0})\nv_cmp_eq_u32 vcc, -1, v{HL}\ns_cbranch_vccnz L_h0r{T}\nL_h0g{T}:")
    stamp(8, 3)
    DEFER.append(f"L_h0r{T}:\ns_sub_u32 s{sBUD}, s{sBUD}, 1\ns_cbranch_scc1 L_h0x{T}\n{hl}\ns_waitcnt vmcnt(0)\n"
                 f"v_cmp_eq_u32 vcc, -1, v{HL}\ns_cbranch_vccnz L_h0r{T}\ns_branch L_h0g{T}\nL_h0x{T}:\ns_mov_b32 s{sBUD}, 0\ns_branch L_h0g{T}")
    wfl = f"v_mov_b32 v1, {WFL}\nv_mov_b32 v4, 1\ns_mov_b64 exec, 1\nds_add_u32 v1, v4\ns_mov_b64 exec, -1"
    if helper:
        if OPT["wc"] < 2: a(wfl)
    else: a(f"s_lshl_b32 s0, s{sWV}, 2\ns_add_u32 s0, s0, {HRD - 8}\nv_mov_b32 v1, s0\nds_write_b32 v1, v1")
    a(f"v_perm_b32 v{HL}, v{HL}, v{HL+1}, s{sP2}")
    for r in (1, 2, 3, 0): a(f"v_add_f32 v{FL_+r}, v{F01+r if r < 2 else FL_+r}, v{HL+r}")
    if OPT["opos"] == 0: early()
    softmax(FL_, PX + 8, early if OPT["opos"] == 1 else None)
    if OPT["opos"] == 2: early()
    stamp(9, 3)
    mfma(DM, VF + 8, PX + 8, "0"); mfma(DM + 4, VF + 12, PX + 8, "0"); mfma(DM + 8, VF + 12, PX + 12, "0")
    if helper and OPT["wc"] < 2: a("ds_read_b32 v1, v1")
    a("s_mov_b32 exec_lo, 0xffff0000")
    for i in range(4): a(f"v_cvt_pk_bf16_f32 v{LT+i}, v{DM+2*i}, v{DM+2*i+1}")
    a("s_mov_b64 exec, s[100:101]")
    for i in range(2): a(f"v_cvt_pk_bf16_f32 v{LT+2+i}, v{DM+8+2*i}, v{DM+8+2*i+1}")
    execset(-1 if doE else 0xffffffffffff0000)
    lst(late)
    stamp(7); stamp(10, 3)
    if not helper and OPT["wc"] == 2: a("s_mov_b64 exec, -1\ns_waitcnt vmcnt(1)\n" + wfl + "\ns_waitcnt lgkmcnt(0)")
attention("h")
if STAGE == "B": a("s_waitcnt vmcnt(0)"); finish()
pagebreak("h")
SH = 200
U = OPT["ou"]; nO = [U]
def ldOn():
    if nO[0] < len(OL):
        if not OPT["dbg"] & 2: ldO(nO[0])
        nO[0] += 1
L.reset()
stamp(8); stamp(0, 4)
idx = {o: k for k, o in enumerate(OL)}
GR = [[0, 1], [2, 3], [4]] + [[k, k + 1] for k in range(5, 29, 2)] + [[29]]
gof = {k: G for G, g in enumerate(GR) for k in g}
issued = {}
def cmp_(G):
    r = [oreg(k) for k in GR[G]]
    if len(r) == 2: a(f"v_max_u16 v2, v{r[0]}, v{r[1]}\nv_cmp_eq_u16 vcc, -1, v2")
    else: a(f"v_cmp_eq_u16 vcc, -1, v{r[0]}")
def chk_a(G):
    last = GR[G][-1] + 1
    assert nO[0] >= last
    a(f"s_waitcnt vmcnt({nO[0] - last + (last <= U)})"); cmp_(G)
def chk_b(G):
    issued[G] = nO[0]
    a(f"s_cbranch_vccnz L_st{G}\nL_go{G}:")
a(f"s_lshl_b32 s0, s{sT}, 12\ns_add_u32 s0, s0, {EX}\nv_add_u32 v4, s0, v{aL16}\ns_and_b32 s0, s{sT}, 2\ns_lshl_b32 s0, s0, 1\ns_add_u32 s0, s0, {XFL}\nv_mov_b32 v3, s0\nv_mov_b32 v5, 1\ns_waitcnt lgkmcnt(0)")
spin("w", WFL, "v_cmp_ne_u32 vcc, 4, v1")
RQ = [(s, ct, e) for s in range(DEP, 20) for ct in range(4) for e in range(2)]
wid = {(s, ct): 0 for s in range(DEP) for ct in range(4)}
left = {(s, ct): 2 if 5 <= s < 15 else 1 for s in range(20) for ct in range(4)}
def rdn(n):
    for _ in range(n):
        if not RQ: return
        s, ct, e = RQ[0]
        if s >= RING and left[s - RING, ct]: return
        RQ.pop(0); wid[s, ct] = L(rdWO1(s, ct, e))
MS = []
k = 0
while k < 30:
    if k + 1 < 30 and OL[k][0] == OL[k+1][0]: MS += [(kk, ct) for ct in range(4) for kk in (k, k + 1)]; k += 2
    else: MS += [(k, ct) for ct in range(4)]; k += 1
firstm = {}
for m, (k, ct) in enumerate(MS): firstm.setdefault(gof[k], m)
ca = {m - 2: G for G, m in firstm.items() if G}; cb = {m - 1: G for G, m in firstm.items() if G}
lasts = max(m for m, (k, ct) in enumerate(MS) if OL[k][1])
wr = {lasts + 2 + q + (q == 3) * 2: q for q in range(4)}
chk_a(0); chk_b(0)
for m, (k, ct) in enumerate(MS):
    s, w = OL[k]
    if m in ca: chk_a(ca[m])
    if m in cb: chk_b(cb[m])
    while RQ and RQ[0][:2] <= (s, ct): n = len(RQ); rdn(1); assert len(RQ) < n
    if ct == 0 and (not RQ or RQ[0][0] > s) and L.n - wid[s, 3] >= 6: L.wait(wid[s, 3])
    L.wait(wid[s, ct])
    mfma((SH if w else H) + 4 * ct, WOF + 16 * (s % RING) + 4 * ct, oreg(k), "0" if w and s == 5 else None)
    left[s, ct] -= 1
    if (m % 4 == 0 or (m < 20 and m % 4 == 1 and m // 4 >= (3, 0)[OPT["o2"]])) and nO[0] < len(OL): ldOn(); rdn(1)
    elif m in wr: L(f"ds_write_b128 v4, {V(SH + 4*wr[m], 4)} offset:{1024*wr[m]}")
    elif m == lasts + 8: a("s_mov_b64 exec, 1"); L("ds_add_u32 v3, v5"); a("s_mov_b64 exec, -1")
    else: rdn(1 if m + 1 in ca or m + 1 in cb or m in cb else 2)
    if m == 3: stamp(9); stamp(11, 3)
    if m == 59: stamp(12, 3)
    if m % 12 == 11: stamp(1 + m // 12, 4)
assert nO[0] == len(OL)
for G in range(len(GR)):
    t = f"L_st{G}:\ns_sub_u32 s{sBUD}, s{sBUD}, 1\ns_cbranch_scc1 L_sx{G}\n"
    def re():
        for G2 in range(G, min(G + OPT["rsp"], len(GR))):
            for k in GR[G2]:
                if k < issued[G]: ldO(k)
        a("s_waitcnt vmcnt(0)"); cmp_(G)
    t += "\n".join(capture(re))
    t += f"\ns_cbranch_vccnz L_st{G}\ns_branch L_go{G}\nL_sx{G}:\ns_mov_b32 s{sBUD}, 0\ns_branch L_go{G}"
    DEFER.append(t)
a("L_tail:")
stamp(10)
HB, DS1, DS2, E2D, T0, RS = 24, 32, 36, 40, 52, 2
EV1 = OPT['e1']
for i in range(8): a(f"v_cvt_pk_bf16_f32 v{HB+i}, v{H+2*i}, v{H+2*i+1}")
for k in range(2):
    mfma(DS2, HB + 4 * k, HB + 4 * k, "0" if k == 0 else None)
    mfma(DS1, WRF + 4 * k, HB + 4 * k, "0" if k == 0 else None)
a("s_mov_b32 s0, 0x22222222\ns_mov_b32 s1, s0\ns_mov_b32 s44, 0x44444444\ns_mov_b32 s45, s44\ns_mov_b32 vcc_lo, 0x88888888\ns_mov_b32 vcc_hi, 0x88888888")
a(f"s_lshl_b32 s3, s{sC}, 8\ns_add_u32 s3, s3, s{sE2L}\nv_and_b32 v1, 0xf0, v{aL16}")
a(f"v_cndmask_b32 v{DS2}, v{DS2}, v{DS2+1}, s[0:1]\nv_cndmask_b32 v{DS2+2}, v{DS2+2}, v{DS2+3}, vcc\ns_or_b64 vcc, vcc, s[44:45]")
a(f"v_cndmask_b32 v{DS1+2}, v{DS2}, v{DS2+2}, vcc\nv_mov_b32 v{DS1+3}, v{WSP+1}")
execset(0xF0000F0000F0000F)
lst(f"buffer_store_dwordx4 {V(DS1,4)}, v1, {S(WS)}, s3 offen{{F}}")
execset(-1)
for i in range(4): a(f"v_mov_b32 v{E2D+8+i}, 0")
a(f"v_mov_b32 v4, 1.0\ns_mov_b32 s0, 0xbacccccd\ns_mov_b32 s1, 0x3acccccd\nv_mov_b32 v5, 0x3727c5ac\ns_mov_b32 s44, 0xfffff800\nv_mov_b32 v1, {KMAX}")
a(f"v_cmp_le_i32 s[46:47], 0, v{aOUT}")
vL, vB, vK = 68, 69, 70
a(f"s_mul_i32 s48, s{sG}, 1280\ns_lshl_b32 s3, s{sC}, 7\ns_add_u32 s48, s48, s3\ns_lshl_b32 s49, s48, 1\ns_add_u32 s48, s48, s{sRJ}\ns_add_u32 s49, s49, s{sRJ}\ns_add_u32 s49, s49, {R_BASE}")
a(f"s_lshl_b32 s3, s{sG}, 7\ns_add_u32 s3, s3, s{sRJ}\ns_add_u32 s3, s3, {R_KEY}\ns_lshl_b32 s45, s{sC}, 3\ns_add_u32 s45, s45, s{sWV}\nv_mul_u32_u24 v{vK}, 384, v0")
a(f"v_and_b32 v{vB}, 48, v0\nv_lshlrev_b32 v{vL}, 1, v{vB}")
a("L_e2:")
a(f"buffer_load_dwordx4 {V(E2D,4)}, v{aL16}, {S(WS)}, s{sE2L} offen sc1\nbuffer_load_dwordx4 {V(E2D+4,4)}, v{aL16}, {S(WS)}, s{sE2L} offen offset:1024 sc1")
a(f"s_mov_b32 exec_hi, 0\nbuffer_load_dwordx4 {V(E2D+8,4)}, v{aL16}, {S(WS)}, s{sE2L} offen offset:2048 sc1\ns_mov_b32 exec_hi, -1\ns_sub_u32 s{sBUD}, s{sBUD}, 1")
a("s_waitcnt vmcnt(1)")
for e in (0, 2): a(f"v_pk_add_f32 {V(E2D+e,2)}, {V(E2D+e,2)}, {V(E2D+4+e,2)}")
a("s_waitcnt vmcnt(0)")
for e in (0, 2): a(f"v_pk_add_f32 {V(E2D+e,2)}, {V(E2D+e,2)}, {V(E2D+8+e,2)}")
a(f"v_cmp_u_f32 vcc, v{E2D}, v{E2D}\ns_cbranch_scc1 L_e2go\ns_cbranch_vccnz L_e2\nL_e2go:")
stamp(11); stamp(11, 4)
for i in (0, 2, 3, 1): a(f"v_mfma_f32_16x16x4_f32 {V(T0+4*i,4)}, v4, v{E2D+i}, 0")
a(f"v_mul_f32 v6, s0, v{T0}\nv_fma_f32 v7, v{T0+8}, s1, v5\nv_fma_f32 v7, -v6, v6, v7\nv_max_f32 v7, v7, v5\nv_rsq_f32 v{RS}, v7")
a(f"v_fma_f32 v7, v6, v{T0+12}, v{T0+4}\nv_mul_f32 v7, v7, v{RS}\nv_mul_f32 v{RS+1}, v6, v{RS}")
a(f"v_ashrrev_i32 v6, 31, v7\nv_or_b32 v6, 0x80000000, v6\nv_xor_b32 v7, v7, v6\nv_and_or_b32 v7, v7, s44, v{vRK}\nv_cndmask_b32 v7, 0, v7, s[46:47]")
LN, LNB, OB = 72, 88, 96
lnops = [f"v_pk_fma_f32 {V(LN+2*i,2)}, {V(H+2*i,2)}, {V(RS,2)}, {V(RS,2)} op_sel:[0,0,1] op_sel_hi:[1,0,1]" for i in range(8)]
for k in (8, 4, 2, 1)[:OPT["dpn"]]:
    a(lnops.pop(0)); a(lnops.pop(0))
    a(f"v_max_u32_dpp v6, v{7 if k == 8 else 6}, v{7 if k == 8 else 6} row_ror:{k} {DPPM}")
a(f"s_mov_b64 exec, {(1 << (16 >> OPT['dpn'])) - 1}\nds_max_u32 v1, v{6 if OPT['dpn'] else 7}\ns_mov_b64 exec, -1")
for o in lnops: a(o)
for i in range(4): a(f"v_cvt_pk_bf16_f32 v{LNB+i}, v{LN+2*i}, v{LN+2*i+1}")
a("s_waitcnt lgkmcnt(0)\ns_barrier\nds_read_b32 v1, v1")
for i in range(4, 8): a(f"v_cvt_pk_bf16_f32 v{LNB+i}, v{LN+2*i}, v{LN+2*i+1}")
for i in range(8): a(f"v_pk_add_f32 {V(LN+2*i,2)}, {V(LN+2*i,2)}, {V(H+2*i,2)}")
a(f"s_cmp_eq_u32 s45, 4\ns_waitcnt lgkmcnt(0)\nv_cmp_eq_u32 s[46:47], v1, v7\ns_cbranch_scc0 L_nk\ns_mov_b64 exec, 0xffff\nbuffer_store_dword v1, v{vK}, {S(WS)}, s3 offen sc1\nL_nk:")
a("s_and_b64 exec, s[46:47], -1\ns_cbranch_scc0 L_nc")
a(f"buffer_store_dwordx4 {V(LNB,4)}, v{vL}, {S(WS)}, s48 offen sc1\nbuffer_store_dwordx4 {V(LNB+4,4)}, v{vL}, {S(WS)}, s48 offen offset:16 sc1")
a("L_nc:\ns_mov_b64 exec, -1")
stamp(12); stamp(12, 4)
for i in range(8): a(f"v_cvt_pk_bf16_f32 v{OB+i}, v{LN+2*i}, v{LN+2*i+1}")
for hh in range(2):
    for d in range(2): a(f"v_permlane16_swap_b32 v{OB+4*hh+d}, v{OB+4*hh+2+d}")
osc = " " + OPT["osc"].replace("_", " ").replace("plain", "")
a("s_not_b64 exec, s[46:47]")
for hh in range(2): a(f"buffer_store_dwordx4 {V(OB+4*hh,4)}, v{aOUT}, {S(OUT)}, 0 offen offset:{64*hh}{osc}")
a("s_and_b64 exec, s[46:47], -1\ns_cbranch_scc0 L_fin")
for hh in range(2): a(f"buffer_store_dwordx4 {V(OB+4*hh,4)}, v{aOUT}, {S(OUT)}, 0 offen offset:{64*hh} sc1")
a("s_waitcnt vmcnt(0)")
for ct in range(4): a(f"buffer_store_dwordx4 {V(LN+4*ct,4)}, v{vB}, {S(WS)}, s49 offen offset:{64*ct} sc1")
a("L_fin:")
finish()
pagebreak(None, False)
deferred("h")

pad("c0")
a("L_h0:")
if OPT["prio"]: a("s_setprio 2")
a(f"v_lshrrev_b32 v1, 3, v0\nv_and_b32 v2, 2, v1\nv_xor_b32 v2, v2, v0\nv_and_b32 v2, 7, v2\ns_lshl_b32 s3, s{sC}, 7\nv_lshl_add_u32 v2, v2, 4, s3")
a(f"v_mul_u32_u24 v3, 3840, v1\nv_add_u32 v{vW}, v3, v2\nv_xor_b32 v{vW+3}, 64, v{vW}\nv_add_u32 v{vW+3}, {8*3840}, v{vW+3}\nv_mov_b32 v{vEA}, 0")
for p in range(2):
    for s_ in (1, 2): a(f"v_add_u32 v{vW+3*p+s_}, {256*s_}, v{vW+3*p}")
def wpieces():
    P = []
    for pp in range(8):
        for s_ in range(3):
            t = f"buffer_load_dwordx4 v{vW+3*(pp&1)+s_}, {S(W)}, s{sXO} offen offset:{1024*s_} lds"
            if s_ == 2 and pp < 7: t += "\ns_addk_i32 m0, 3072"
            if s_ == 2 and pp & 1 and pp < 7: t += f"\ns_add_u32 s{sXO}, s{sXO}, 61440"
            P.append(t)
    return P
stamp(1, 5)
ldWR()
a("s_waitcnt vmcnt(4)")
stamp(2, 5)
a("s_barrier")
a(f"s_mov_b32 s{sI}, 1\ns_mov_b32 s{sRD}, {S0 + SLOT}\nL_wl:")
nextslab(); advslot(sSL); a(f"s_mul_i32 s{sXO}, s{sSB}, 245760\ns_add_u32 m0, s{sSL}, 12288")
for p in wpieces(): a(p)
a(f"s_mov_b32 s0, s{sRD}\ns_mov_b32 s{sRD}, s{sSL}\ns_cmp_eq_u32 s{sXT}, s{sI}\ns_waitcnt vmcnt(24) lgkmcnt(0)\ns_barrier\ns_cbranch_scc0 L_wc\ns_call_b64 s[100:101], L_xcap\nL_wc:")
a(f"s_add_u32 s{sI}, s{sI}, 1\ns_cmp_lt_u32 s{sI}, 9\ns_cbranch_scc1 L_wl")
a("s_branch L_h8")

ACC, XF, WF, ST, CS = 8, 80, 152, 180, 192
CLX = len(a.lines)
pagebreak(None, False)
a("L_cons:")
def clears(fl):
    a("v_mov_b32 v4, -1\nv_mov_b32 v5, -1\nv_mov_b32 v6, -1\nv_mov_b32 v7, -1")
    a(f"v_lshrrev_b32 v1, 3, v0\nv_mul_u32_u24 v1, 2560, v1\nv_and_b32 v2, 0x70, v{aL16}\ns_lshl_b32 s3, s{sC}, 7\ns_add_u32 s3, s3, s{sB0}\nv_add3_u32 v1, v1, v2, s3")
    a(f"s_mul_i32 s0, s{sT}, 20480\ns_add_u32 s1, s0, 81920\ns_add_u32 s3, s{sT}, 8\ns_cmp_lt_u32 s3, s{sNO}\ns_cselect_b32 s3, s1, {OOB:#x}\ns_add_u32 s3, s3, 81920")
    st = "buffer_store_dword v4" if OPT["cdw"] else "buffer_store_dwordx4 v[4:7]"
    for r in (0, 1, 3): a(f"{st}, v1, {S(OUT)}, s{r} offen{fl}")
    a(f"v_lshrrev_b32 v1, 4, v0\nv_mul_u32_u24 v1, {2560 - 256}, v1\nv_add_u32 v1, v1, v{aL16}")
    a(f"s_mul_i32 s1, s{sGID}, 15360\ns_lshl_b32 s3, s{sC}, 8\ns_add_u32 s1, s1, s3\ns_and_b32 s3, s{sT}, 1\ns_mul_i32 s3, s3, 7680\ns_add_u32 s1, s1, s3\ns_add_u32 s1, s1, {E2}")
    a(f"s_cmp_lt_u32 s{sT}, 2\ns_cselect_b32 s1, s1, {OOB:#x}\ns_mov_b32 exec_hi, 0xffff\n{st}, v1, {S(WS)}, s1 offen{fl}\ns_mov_b64 exec, -1")
    return 4
def pf0(p):
    if OPT["pf0"] & 1 and p == OPT["pfp"] % 10:
        a(f"s_cmp_eq_u32 s{sWV}, 0\ns_cbranch_scc0 L_pa\ns_mul_i32 s3, s2, {27*128}\nv_lshlrev_b32 v1, 7, v0\ns_mov_b64 exec, {(1 << 27) - 1:#x}\nbuffer_load_dword v255, v1, {S(WO)}, s3 offen\ns_mov_b64 exec, -1\nL_pa:")
    if OPT["pf0"] & 2 and p == OPT["pfp"] // 10:
        a(f"s_cmp_eq_u32 s{sWV}, 1\ns_cbranch_scc0 L_pb\ns_lshl_b32 s3, s{sC}, 2\ns_add_u32 s3, s3, s{sJ}\ns_sub_u32 s0, s3, 40\ns_cselect_b32 s3, s3, s0\ns_mul_i32 s3, s3, {16*3840}")
        a(f"s_mul_i32 s0, s{sG}, 1280\ns_add_u32 s3, s3, s0\ns_lshl_b32 s0, s{sC}, 7\ns_add_u32 s3, s3, s0\nv_mul_u32_u24 v1, 3840, v0\ns_mov_b64 exec, 0xffff\nbuffer_load_dword v255, v1, {S(W)}, s3 offen\ns_mov_b64 exec, -1\nL_pb:")
pf0(0)
if OPT["cpos"] == 2: ncl = clears(" sc1" if OPT["clr"] else "")
def w1():
    a(f"s_cmp_eq_u32 s{sSB}, 9\ns_cselect_b32 s3, {-10*245760}, 0\ns_add_u32 s3, s3, 245760\nv_add_u32 v254, s3, v254\ns_mul_i32 s3, s{sT}, 3072\ns_add_u32 m0, s3, {S0 + SLOT + 12288}\ns_mov_b32 s0, {32*3840}")
    for h in range(2):
        for k in range(3):
            a(f"buffer_load_dwordx4 v254, {S(W)}, {'s0' if h else 0} offen offset:{1280*k} lds")
            if (h, k) != (1, 2): a(f"s_addk_i32 m0, {-256 if k < 2 else 12288 + 512}")
suB(); suC()
if OPT["w1"] == 0: w1()
if OPT["wc"] == 2: wo_setup(249)
suD(0); suE(0)
a(f"s_lshl_b32 s3, s{sT}, 5\nv_xor_b32 v3, s3, v3\nv_mul_u32_u24 v4, 3072, v2\nv_add_u32 v3, v3, v4\nv_add_u32 v{vAW}, {S0 + 12288}, v3\ns_mov_b32 s{sI}, 0")
stamp(0, 5)
if OPT["cpos"] == 0: ncl = clears(" sc1" if OPT["clr"] else "")
stamp(1, 5)
a(f"v_mov_b32 v3, 0\nv_lshlrev_b32 v2, 2, v0\ns_mov_b32 exec_hi, 0")
a(f"ds_write_b32 v2, v3 offset:{MODE}\nds_write_b32 v2, v3 offset:{MODE + 8*PITCH}\ns_mov_b64 exec, -1")
a("v_and_b32 v1, 15, v0\nv_lshrrev_b32 v2, 4, v0")
a(f"v_lshrrev_b32 v3, 1, v1\nv_xor_b32 v3, v3, v2\nv_lshlrev_b32 v3, 4, v3\nv_lshl_add_u32 v3, v1, 7, v3\nv_add_u32 v{vAX0}, {S0}, v3\nv_xor_b32 v{vAX1}, 64, v{vAX0}")
a(f"v_mul_u32_u24 v3, {PITCH}, v1\nv_lshl_add_u32 v3, v2, 3, v3\ns_lshl_b32 s3, s{sT}, 5\ns_add_u32 s3, s3, {QB}\nv_add_u32 v{vSW}, s3, v3")
a(f"v_lshlrev_b32 v{vSTR}, 4, v1")
assert STATS == 0
if OPT["pg"]:
    for k in range(4): a(f"s_cmp_eq_u32 s{sWV}, {k}\ns_cbranch_scc0 L_cw{k}"); warm("c0", k, 4); a(f"L_cw{k}:")
pf0(1)
if OPT["w1"] == 1: w1()
if OPT["cpos"] == 1: ncl = clears(" sc1" if OPT["clr"] else "")
assert OPT["cpos"] == 1
a(f"s_cmp_lt_u32 s{sWV}, 2\ns_cselect_b32 s{sXT}, s{sXT}, 99")
a(f"s_mov_b32 s{sRD}, {S0}\ns_min_u32 s{sEV}, s{sXT}, {E1_}\ns_waitcnt vmcnt({ncl + 6}) lgkmcnt(0)")
def rdW(d, s_, ks):
    L(f"ds_read_b64_tr_b16 {V(d,2)}, v{vAW} offset:{12288*ks + 1024*s_}")
    return L(f"ds_read_b64_tr_b16 {V(d+2,2)}, v{vAW} offset:{12288*ks + 1024*s_ + 512}")
def rdX(d, t, ks): return L(f"ds_read_b128 {V(d+4*t,4)}, v{vAX0+ks} offset:{2048*t}")
def acc(s_, t): return ACC + 4 * (6 * s_ + t)
stamp(2); stamp(2, 5)
SEG = (1, 2, 0)
PRE = OPT["pre"]
def rdlist(ph):
    o = []
    def w(s_):
        d = WV2 if (ph, s_) == (1, 1) else WF + 12 * ph + 4 * s_
        for e in range(2): o.append((("w", ph, s_), f"ds_read_b64_tr_b16 {V(WF+12*ph+4*s_+2*e,2)}, v{vAW} offset:{12288*ph + 1024*s_ + 512*e}"))
    w(SEG[0])
    for t in range(6): o.append((("x", ph, t), f"ds_read_b128 {V(XF+24*ph+4*t,4)}, v{vAX0+ph} offset:{2048*t}"))
    w(SEG[1]); w(SEG[2])
    return o
WV2 = WF + 24
def step(first):
    a("s_barrier")
    stampi(0)
    L.reset(); ids = {}
    M = [(s_, t) for s_ in SEG for t in range(6)]
    seq = ([] if first else [(1, "o") + m for m in M[PRE:]]) + [(0, "n") + m for m in M] + [(1, "n") + m for m in M[:PRE]]
    no = 0 if first else 18 - PRE
    pend = rdlist(0); p1 = rdlist(1)
    def rd(n=1):
        for _ in range(n):
            if pend: k, tx = pend.pop(0); ids[k] = L(tx)
    rd(12 if first else 2)
    fill = [f"s_add_u32 s3, s{sRD}, {SLOT}\ns_cmp_eq_u32 s3, {S0 + 4*SLOT}", f"s_cselect_b32 s3, {S0}, s3\ns_sub_u32 s{sDL}, s3, s{sRD}",
            f"s_mov_b32 s{sRD}, s3\nv_add_u32 v{vAX0}, s{sDL}, v{vAX0}", f"v_add_u32 v{vAW}, s{sDL}, v{vAW}\nv_add_u32 v{vAX1}, s{sDL}, v{vAX1}"]
    if not first: fill.append(f"s_cmp_eq_u32 s{sI}, s{sEV}\ns_cbranch_scc1 L_ev\nL_evb:")
    fill.append("STAMP"); fill.append(f"s_add_u32 s{sI}, s{sI}, 1\ns_cmp_lt_u32 s{sI}, 9"); fill.append(f"s_waitcnt vmcnt({ncl}) lgkmcnt(0)" if first else "s_waitcnt lgkmcnt(0)")
    for n, (ph, kd, s_, t) in enumerate(seq):
        if n == no: pend += p1
        if kd == "n":
            need = max(ids["x", ph, t], ids["w", ph, s_])
            if s_ == SEG[0] and t == 0 and L.n - ids.get(("x", ph, 5), L.n) >= 4: need = ids["x", ph, 5]
            L.wait(need)
        mfma(acc(s_, t), WF + 12 * ph + 4 * s_, XF + 24 * ph + 4 * t, "0" if first and ph == 0 else None)
        if pend: rd()
        elif n >= no and fill and (len(fill) > 1 or n >= len(seq) - 2):
            f = fill.pop(0)
            if f == "STAMP": stampi(1)
            else: a(f)
    for f in fill: stampi(1) if f == "STAMP" else a(f)
step(1)
CL0 = len(a.lines)
pagebreak("c0")
a("L_cloop:")
step(0)
a("s_cbranch_scc1 L_cloop")
L.reset(); ids = {}
def wreg(ks, s_): return WV2 if (ks, s_) == (1, 1) else WF + 12 * ks + 4 * s_
later = []
def lw(ks, s_):
    for e in range(2): later.append((("w", ks, s_), f"ds_read_b64_tr_b16 {V(wreg(ks,s_)+2*e,2)}, v{vAW} offset:{12288*ks + 1024*s_ + 512*e}"))
def lx(ks):
    for t in range(6): later.append((("x", ks, t), f"ds_read_b128 {V(XF+48*ks+4*t,4)}, v{vAX0+ks} offset:{2048*t}"))
lw(0, 1); lx(0); lw(1, 1); lx(1); lw(0, 2); lw(0, 0)
def rd_later(n=1):
    for _ in range(n):
        if later: k, tx = later.pop(0); ids[k] = L(tx)
def old(s_, t): mfma(acc(s_, t), WF + 12 + 4 * s_, XF + 24 + 4 * t)
def new(s_, ks, t):
    L.wait(max(ids["w", ks, s_], ids["x", ks, t])); mfma(acc(s_, t), wreg(ks, s_), XF + 48 * ks + 4 * t)
def mlist(s_): return [(s_, "o", t) for t in range(6)] + [(s_, ks, t) for ks in range(2) for t in range(6)]
def mm(q):
    s_, k, t = q.pop(0)
    if k != "o" and ("w", k, s_) not in ids: rd_later(9)
    old(s_, t) if k == "o" else new(s_, k, t)
    if k == "o" and t == 5 and s_ != 1: lw(1, s_)
def fixup(s_, q, per):
    for r in range(4):
        a(f"v_mov_b32_dpp v{CS+r}, v{acc(s_,0)+r} row_newbcast:0 {DPPM}")
    wr = None
    for t in range(6):
        A = acc(s_, t); st = V(ST + 2 * t, 2)
        if per or not OPT["pk"]:
            ops = [f"v_fmac_f32 v{A+h}, v{CS+h}, v{ST+2*t}" for h in range(4)]
        else:
            ops = [f"v_pk_fma_f32 {V(A+h,2)}, {V(CS+h,2)}, {st}, {V(A+h,2)} op_sel_hi:[1,0,1]" for h in (0, 2)]
        ops += [f"v_cvt_pk_bf16_f32 v{A}, v{A}, v{A+1}", f"v_cvt_pk_bf16_f32 v{A+1}, v{A+2}, v{A+3}"]
        for i, o in enumerate(ops):
            if q and ((per >= 2 and i == 3) or (per >= 3 and i == 0)): mm(q)
            a(o)
        if q and per >= 1: mm(q)
        if (s_, t) in ((2, OPT["bk"]), (0, OPT["bv"])): L.wait(L.n - t); a("s_barrier")
        L(f"ds_write_b64 v{vSW}, {V(A,2)} offset:{TSTR*s_ + 16*PITCH*t}")
km, qm, vm = mlist(1), mlist(2), mlist(0)
a(f"v_mov_b32 v1, {MODE}")
sr = ["ds_read_b32 v1, v1"] + [f"ds_read2_b64 {V(ST+2*t,4)}, v{vSTR} offset0:{32*t} offset1:{32*t + 32}" for t in range(0, 6, 2)]
for i in range(PRE):
    s_, _, t = (km if i < 6 else qm if i < 12 else vm).pop(0)
    if t == 5 and s_ != 1: lw(1, s_)
for o in sr: a(o)
a(f"s_waitcnt lgkmcnt(0)\nv_readfirstlane_b32 s{sMODE}, v1\ns_barrier")
stamp(3); stamp(9, 2); stamp(0, 3)
if not OPT["clr"]: a(f"s_cmp_eq_u32 s{sMODE}, 1\ns_cbranch_scc0 L_gs\nL_gsb:")
rd_later(2)
n = 0
for q in (km, qm, vm):
    while q[0][1] == "o" and (n < 6 or q is km): mm(q); rd_later(); n += 1
rd_later(2)
while km: mm(km); rd_later()
mm(qm); rd_later(9)
assert not later
fixup(1, qm, -(-len(qm) // 6))
while qm: mm(qm)
mm(vm)
fixup(2, vm, -(-len(vm) // 6))
while vm: mm(vm)
fixup(0, [], 0)
stamp(1, 3)
a("s_waitcnt lgkmcnt(0)\ns_barrier")
stamp(4); stamp(2, 3)
if STAGE == "A":
    a("L_dumpA:")
    a(f"s_lshl_b32 s3, s{sWV}, 10\nv_add_u32 v1, s3, v{aL16}\ns_mul_i32 s3, s2, 49152\ns_add_u32 s3, s3, {DUMP}")
    for i in range(6):
        a(f"ds_read_b128 v[16:19], v1 offset:{8192*i}\ns_waitcnt lgkmcnt(0)\nbuffer_store_dwordx4 v[16:19], v1, {S(WS)}, s3 offen\ns_waitcnt vmcnt(0)\ns_add_u32 s3, s3, 8192")
    finish()
a(f"s_cmp_lt_u32 s{sWV}, 2\ns_cbranch_scc0 L_c23")
attention("e")
if STAGE == "B": a("s_waitcnt vmcnt(0)"); finish()

ldWR(); hinit()
a(f"s_lshl_b32 s0, s{sWV}, 13\ns_add_u32 s0, s0, {EX}\nv_add_u32 v4, s0, v{aL16}\ns_lshl_b32 s0, s{sWV}, 2\ns_add_u32 s0, s0, {XFL}\ns_waitcnt vmcnt(0)")
wrprep(XR)
a("v_mov_b32 v2, s0\nL_fx:")
if OPT["fsl"]: a(f"s_sleep {OPT['fsl']}")
a("ds_read_b32 v1, v2\ns_waitcnt lgkmcnt(0)\nv_cmp_ne_u32 vcc, 2, v1\ns_cbranch_vccnz L_fx")
stamp(9); stamp(9, 4)
if OPT["lprio"]: a(f"s_setprio {OPT['lprio']}")
for q in range(8): a(f"ds_read_b128 {V(OF+4*q,4)}, v4 offset:{1024*q}")
for q in range(8):
    a(f"s_waitcnt lgkmcnt({7-q})")
    for e in range(4): a(f"v_add_f32 v{H+4*(q&3)+e}, v{H+4*(q&3)+e}, v{OF+4*q+e}")
stamp(10, 4)
a("s_branch L_tail")
deferred()
CL1 = len(a.lines)
pad("h")
a("L_c23:")
attention("l")
if STAGE == "B": a("s_waitcnt vmcnt(0)")
finish()
deferred("h")
CL2 = len(a.lines)
pad("h")
a(f"L_ev:\ns_cmp_eq_u32 s{sI}, {EV1}\ns_cbranch_scc0 L_ev1\ns_waitcnt vmcnt(0)\nL_ev1:\ns_max_u32 s{sEV}, s{sXT}, {EV1}")
a(f"s_cmp_eq_u32 s{sI}, s{sXT}\ns_cbranch_scc0 L_evb\ns_sub_u32 s0, s{sRD}, s{sDL}"); capt("s0"); a("s_branch L_evb")
if not OPT["clr"]:
    a("L_gs:")
    clears(" sc1")
    a("s_waitcnt vmcnt(0)\ns_barrier\ns_barrier\ns_branch L_gsb")

if OPT["pg"]:
    mv_ = a.lines[CL2:]; mw_ = a.lines[CL1:CL2]; del a.lines[CL1:]; a.lines[CL0+1:CL0+1] = mv_; a.lines[CLX:CLX] = mw_

GATE, UP, DOWN, SM = 4, 8, 12, 28
sMm = 36
GSL = 42240; NGS = 3; MISC = NGS * GSL
SSZ = 8448
ACTB, MZ, WINB, LNL = MISC, MISC + 192, MISC + 256, MISC + 512
GF, DF, GA, XS, IDX = 8, 168, 228, 236, 7
a("L_moe:")
a(f"s_cmp_ge_u32 s{sU}, 32\ns_cbranch_scc1 L_end")
a(f"s_lshr_b32 s{sWV}, s{sWV}, 6\nv_and_b32 v0, 63, v0\ns_lshl_b32 s{sMm}, s{sJ}, 1\ns_add_u32 s{sMm}, s{sMm}, s{sU}\ns_sub_u32 s{sMm}, s{sMm}, 30\ns_mov_b32 s{sBUD}, {BUDGET}")
a("v_lshlrev_b32 v6, 4, v0\nv_mov_b32 v132, 0\nv_mov_b32 v133, 0\ns_waitcnt lgkmcnt(0)")
mksrd(WS, "ws", 1 << 28); mksrd(DBG, "dbg", 256); mksrd(GATE, "gate", 640 * 3072); mksrd(UP, "up", 640 * 3072); mksrd(DOWN, "down", 1536 * 1280); mksrd(OUT, "out", 2048 * 1280)
stamp(0)
a("v_mov_b32 v8, -1\nv_mov_b32 v9, -1\nv_mov_b32 v10, -1\nv_mov_b32 v11, -1")
a(f"s_lshl_b32 s0, s{sMm}, 14\ns_lshl_b32 s3, s{sWV}, 11\ns_add_u32 s0, s0, s3\ns_add_u32 s0, s0, {RJ}")
for i in range(2): a(f"buffer_store_dwordx4 v[8:11], v6, {S(WS)}, s0 offen offset:{1024*i} sc1")
def rootup(n):
    a(f"s_waitcnt vmcnt({n})\ns_barrier\ns_cmp_eq_u32 s{sWV}, 0\ns_cbranch_scc0 L_nroot")
    a(f"s_lshl_b32 s0, s{sMm}, 4\nv_mov_b32 v8, 1\ns_mov_b64 exec, 1\nbuffer_store_dword v8, off, {S(DBG)}, s0 sc1\ns_mov_b64 exec, -1\nL_nroot:")
if STAGE != "F": rootup(0); finish()
vGX, vGS, vRX, vRS = 4, XS + 13, XS + 14, XS + 15
sB5, sKO = 44, 45
a(f"s_and_b32 s{sB5}, s{sMm}, 1\ns_mul_i32 s0, s{sJ}, 384\ns_lshl_b32 s1, s{sB5}, 8\ns_add_u32 s1, s1, s0\ns_mul_i32 s3, s{sWV}, {8*3072}\ns_add_u32 s1, s1, s3")
a(f"v_lshrrev_b32 v1, 3, v0\nv_mul_u32_u24 v1, 3072, v1\ns_lshr_b32 s3, s{sWV}, 1\nv_xor_b32 v2, s3, v0\nv_and_b32 v2, 7, v2\nv_lshl_add_u32 v1, v2, 4, v1\nv_add_u32 v{vGX}, s1, v1\nv_xor_b32 v{vGX+1}, 64, v{vGX}")
a(f"s_lshl_b32 s1, s{sB5}, 6\ns_add_u32 s0, s0, s1\ns_and_b32 s3, s{sWV}, 3\ns_mul_i32 s1, s3, {16*3072}\ns_add_u32 s0, s0, s1\ns_add_u32 s0, s0, 128")
a(f"v_lshrrev_b32 v1, 2, v0\nv_mul_u32_u24 v1, 3072, v1\nv_xor_b32 v2, s3, v0\nv_and_b32 v2, 3, v2\nv_lshl_add_u32 v1, v2, 4, v1\nv_add_u32 v{vGS}, s0, v1")
a(f"s_cmp_lt_u32 s{sWV}, 4\ns_cselect_b64 s[{SM}:{SM+1}], s[{GATE}:{GATE+1}], s[{UP}:{UP+1}]\ns_cselect_b32 s62, 0, 128\ns_mov_b32 s{SM+2}, {640*3072:#x}\ns_mov_b32 s{SM+3}, 0x20000")
a(f"s_lshl_b32 s61, s{sWV}, 10\ns_add_u32 s62, s62, s61\ns_mul_i32 s{sB5}, s{sB5}, {5*64*3072}\ns_mul_i32 s46, s{sMm}, {96*1280}")
def koff(i): a(f"s_add_u32 s{sKO}, s{sB5}, {i*64*3072}" if i < 5 else f"s_sub_u32 s{sKO}, {i*64*3072}, s{sB5}")
def dissue(hh, i, sl):
    a(f"s_lshl_b32 s3, s{sWV}, 6\ns_addk_i32 s3, {512*i}\nv_add_u32 v1, s3, v0\nv_mul_u32_u24 v2, 52429, v1\nv_lshrrev_b32 v2, 22, v2")
    a(f"v_and_b32 v3, 3, v2\nv_lshlrev_b32 v3, 1, v3\nv_and_or_b32 v3, v2, 8, v3\nv_xor_b32 v1, v1, v3\nv_lshlrev_b32 v1, 4, v1")
    a(f"s_add_u32 m0, s61, {sl + 8192*i}\ns_add_u32 s3, s46, {40960*hh}\nbuffer_load_dwordx4 v1, {S(DOWN)}, s3 offen lds")
UN = [[("x", i), ("s", i)] for i in range(5)] + [[("x", 5), ("x", 6)], [("x", 7), ("x", 8)], [("x", 9)]]
SU, DU = [[("s", i) for i in range(5, 10)]], [[("d", h)] for h in range(3)]
UN = {0: UN + DU + SU, 1: UN + SU + DU, 2: UN[:6] + SU + UN[6:] + DU}[OPT["uord"]]
def place(u):
    o = (u % NGS) * GSL; r = []
    for kd, i in UN[u]: r.append((kd, i, o)); o += {"x": 16384, "s": SSZ, "d": 40960}[kd]
    return r
def uissue(u):
    n = 0
    for kd, i, o in place(u):
        if kd == "d":
            for k in range(5): dissue(i, k, o)
            n += 5; continue
        koff(i)
        if kd == "x":
            for m_, srd_ in ((0, GATE), (1, UP)): a(f"s_add_u32 m0, s61, {o + 8192*m_}\nbuffer_load_dwordx4 v{vGX+m_}, {S(srd_)}, s{sKO} offen lds")
            n += 2
        else: a(f"s_add_u32 m0, s62, {o}\nbuffer_load_dwordx4 v{vGS}, {S(SM)}, s{sKO} offen lds"); n += 1
    return n
a(f"s_cmp_lt_u32 s{sWV}, {OPT['rw']}\ns_cbranch_scc1 L_r0")
n0 = uissue(0)
a(f"s_waitcnt vmcnt({n0})\ns_barrier\ns_branch L_r1\nL_r0:")
rootup(0)
uissue(0)
a("L_r1:")
nI = {1: uissue(1)}
a("v_lshrrev_b32 v1, 5, v0\nv_bfe_u32 v2, v0, 2, 1\nv_lshl_add_u32 v1, v1, 2, v2\nv_bfe_u32 v2, v0, 4, 1\nv_bfe_u32 v3, v0, 3, 1\nv_lshl_add_u32 v3, v3, 1, v2\nv_lshl_add_u32 v1, v3, 4, v1")
a(f"v_xor_b32 v3, s{sWV}, v3\nv_and_b32 v2, 1, v0\nv_lshlrev_b32 v2, 3, v2\nv_lshl_add_u32 v2, v3, 4, v2\nv_bfe_u32 v3, v0, 1, 1")
a(f"v_lshl_add_u32 v{vRS}, v1, 6, v2\nv_mul_u32_u24 v8, 4224, v3\nv_add_u32 v{vRS}, v{vRS}, v8")
a(f"v_lshl_add_u32 v{vRX}, v1, 7, v2\nv_mul_u32_u24 v8, {8192 + 64}, v3\nv_xor_b32 v{vRX}, v{vRX}, v8")
vXS, vACT, vA1, vA2, vE4 = 252, 253, 254, 255, 5
for i in range(8): a(f"v_mov_b32 v{GA+i}, 0")
a(f"v_mov_b32 v1, 0x4444\nv_mov_b32 v2, 0xeeee\ns_mov_b32 vcc_lo, 0xaaaaaaaa\ns_mov_b32 vcc_hi, 0xaaaaaaaa\nv_cndmask_b32 v{IDX}, v1, v2, vcc")
a(f"v_and_b32 v1, 48, v0\nv_and_b32 v2, 1, v0\nv_lshlrev_b32 v2, 4, v2\nv_lshl_add_u32 v{vXS}, v1, 1, v2\nv_add_u32 v{vA1}, {ACTB}, v{vXS}\nv_add_u32 v{vXS}, {LNL}, v{vXS}")
a(f"v_add_u32 v1, {ACTB + 128}, v1\nv_mov_b32 v2, {MZ}\nv_cndmask_b32 v{vA2}, v1, v2, vcc\nv_mov_b32 v3, 0\nv_lshl_add_u32 v2, v0, 2, v2\ns_mov_b32 exec_hi, 0\nds_write_b32 v2, v3\ns_mov_b64 exec, -1")
a(f"s_and_b32 s3, s{sMm}, 1\ns_cselect_b32 s0, 4, 0\ns_cselect_b32 s1, -4, 8\ns_add_u32 s0, s0, s{sWV}\nv_bfe_u32 v1, v0, 4, 1\nv_mul_i32_i24 v1, s1, v1\nv_add_u32 v1, s0, v1")
a("v_lshrrev_b32 v2, 1, v1\nv_lshlrev_b32 v2, 2, v2\nv_and_or_b32 v2, v1, 1, v2\nv_and_or_b32 v2, v0, 2, v2\nv_bfe_u32 v3, v0, 2, 1\nv_lshl_add_u32 v2, v2, 1, v3")
a(f"v_and_b32 v3, 1, v0\nv_lshl_add_u32 v2, v2, 1, v3\nv_and_b32 v3, 7, v0\nv_lshl_add_u32 v3, v1, 3, v3\nv_cmp_gt_u32 vcc, 8, v1\nv_cndmask_b32 v2, v3, v2, vcc\nv_lshlrev_b32 v2, 1, v2\nv_add_u32 v{vACT}, {ACTB}, v2")
a(f"s_lshl_b32 s47, s{sWV}, 15\ns_lshl_b32 s3, s{sMm}, 6\ns_add_u32 s47, s47, s3\ns_add_u32 s47, s47, {RJ + R_E4}")
a(f"v_lshrrev_b32 v1, 2, v0\nv_and_b32 v2, 3, v0\nv_lshlrev_b32 v2, 4, v2\nv_lshl_add_u32 v2, v1, 10, v2\nv_lshlrev_b32 v1, 4, v1\nv_add_u32 v1, {4096 - 64}, v1\ns_mov_b64 vcc, 0xffff\nv_cndmask_b32 v{XS+10}, v1, v2, vcc")
a(f"s_cmp_lt_u32 s{sWV}, 4\ns_cselect_b32 s50, 0x00ff0000, 0\ns_or_b32 s50, s50, 0xff\ns_mov_b32 s51, 0")
sFT, sFE, sWIN, sXS = 52, 53, 54, 55
a(f"s_sub_u32 s3, s{sWV}, 4\ns_lshl_b32 s3, s3, 4\ns_add_u32 s{sFT}, s3, s{sMm}\ns_mul_i32 s3, s{sFT}, 52\ns_lshr_b32 s3, s3, 8\ns_mul_i32 s3, s3, {RJS - 5120}\ns_lshl_b32 s{sFE}, s{sFT}, 10\ns_add_u32 s{sFE}, s{sFE}, s3\ns_add_u32 s{sFE}, s{sFE}, {RJ + R_E4}")
vFC, vFB, vSG, FD = 128, 129, 130, 40
a(f"s_mov_b32 s49, {BUDGET >> 2}")
a(f"s_mul_i32 s3, s{sFT}, 52\ns_lshr_b32 s3, s3, 8\ns_mul_i32 s0, s3, 5\ns_sub_u32 s0, s{sFT}, s0\ns_mul_i32 s3, s3, 80\ns_lshl_b32 s1, s0, 2\ns_cmp_eq_u32 s0, 4\ns_cselect_b32 s1, 64, s1\ns_cselect_b32 s0, 0, 4\ns_cselect_b32 s48, 2, 0\ns_add_u32 s3, s3, s1")
a(f"v_bfe_u32 v1, v0, 4, 1\nv_lshrrev_b32 v2, 5, v0\nv_lshl_add_u32 v1, v1, 1, v2\nv_lshlrev_b32 v1, s0, v1\nv_and_b32 v2, 3, v0\nv_lshlrev_b32 v2, s48, v2\nv_add3_u32 v1, v1, v2, s3\nv_lshlrev_b32 v{vFC}, 1, v1\nv_lshlrev_b32 v{vFB}, 2, v1")
a("v_lshrrev_b32 v1, 4, v0\nv_bfe_u32 v2, v0, 2, 2\nv_lshl_add_u32 v1, v1, 3, v2\nv_mul_u32_u24 v1, 1280, v1\nv_and_b32 v3, 1, v0\nv_lshl_add_u32 v1, v3, 3, v1")
a(f"v_bfe_u32 v2, v0, 2, 3\nv_lshlrev_b32 v2, 1, v2\nv_bfe_u32 v3, v0, 1, 1\ns_mul_i32 s0, s{sWV}, 10")
for i in range(5): a(f"s_add_u32 s3, s0, {2*i}\nv_add_u32 v{XS+i}, s3, v3\nv_xor_b32 v{XS+i}, v{XS+i}, v2\nv_lshl_add_u32 v{XS+i}, v{XS+i}, 4, v1")
for u in range(len(UN)):
    a(f"s_waitcnt vmcnt({nI.get(u + 1, 0) + (u == 6)}) lgkmcnt(0)\ns_barrier")
    if u + 2 < len(UN): nI[u + 2] = uissue(u + 2)
    sk = False
    for kd, i, o in place(u):
        if kd == "d":
            for k in range(5):
                a(f"v_add_u32 v1, {o}, v{XS+k}")
                for e in range(2): a(f"ds_read_b64_tr_b16 {V(DF+12*k+4*i+2*e,2)}, v1 offset:{1280*4*e}")
            continue
        if kd == "s" and not sk: a(f"s_cmp_lt_u32 s{sWV}, 4\ns_cbranch_scc0 L_g{u}"); sk = True
        a(f"v_add_u32 v1, {o}, v{vRX if kd == 'x' else vRS}")
        p = 128 if kd == "x" else 64
        for hh in range(2):
            for e in range(2): a(f"ds_read_b64_tr_b16 {V(GF+80*(kd == 's')+8*i+4*hh+2*e,2)}, v1 offset:{p*(8*hh + 2*e)}")
    if sk: a(f"L_g{u}:")
    if u == 5: a(f"v_and_b32 v{XS+12}, 0xf0, v6\nbuffer_load_dword v{XS+11}, v{XS+12}, {S(DBG)}, 0 offen sc1")
    if u == 7: stamp(1)
stamp(2)
pagebreak()
warm("m", 0, 1)
a(f"v_mov_b32 v{vE4}, v{XS+10}\nv_mov_b32 v4, {WINB}\ns_cmp_lt_u32 s{sWV}, {6 + OPT['kold']}\ns_cbranch_scc1 L_np")
if not OPT["kold"]: a(f"s_cmp_eq_u32 s{sWV}, 6\ns_cbranch_scc1 L_ft")
a(f"L_rt:\nv_cmp_ne_u32 vcc, 1, v{XS+11}\ns_cbranch_vccz L_rtg\nbuffer_load_dword v{XS+11}, v{XS+12}, {S(DBG)}, 0 offen sc1\ns_waitcnt vmcnt(0)\ns_sub_u32 s{sBUD}, s{sBUD}, 1\ns_cbranch_scc0 L_rt\ns_mov_b32 s{sBUD}, 0\nL_rtg:")
a(f"v_bfe_u32 v1, v0, 2, 3\nv_lshlrev_b32 v1, 15, v1\nv_and_b32 v2, 3, v0\nv_min_u32 v2, 2, v2\nv_mul_u32_u24 v3, 1280, v2\ns_mov_b32 s0, {RJ}\nv_add3_u32 v3, v3, v1, s0\nv_lshl_add_u32 v1, v2, 7, v1\ns_mul_i32 s0, s{sMm}, 384\ns_add_u32 s0, s0, {RJ + R_KEY}")
stamp(3)
if OPT["wb"] & 4: a("buffer_wbl2 sc1")
if OPT["kold"]:
    vRW = 132
    a(f"s_and_b32 s3, s{sMm}, 1\ns_mul_i32 s3, s3, 640\nv_add_u32 v{vRW}, s3, v6\nv_subrev_u32 v2, 1280, v{vRW}\nv_min_u32 v{vRW}, v{vRW}, v2\ns_sub_u32 s3, 1024, s3\nv_add_u32 v{vRW+1}, s3, v6")
    row = f"s_mov_b32 m0, {LNL}\ns_mov_b64 exec, -1\nbuffer_load_dwordx4 v{vRW}, {S(WS)}, s{sXS} offen sc1 lds\ns_mov_b32 m0, {LNL + 1024}\ns_mov_b64 exec, 0xffff\nbuffer_load_dwordx4 v{vRW+1}, {S(WS)}, s{sXS} offen sc1 lds"
    a(f"s_mov_b32 s{sWIN}, 0\ns_mov_b32 s{sXS}, {OOB:#x}")
    KP, KR, KV = OPT["kp"], OPT["kr"], 140
    assert KP % KR == 0
    KM = 0x77777777
    def look(k):
        if k % KR == 0: a(row); execset(KM)
        if OPT["ka"]: a(f"buffer_atomic_umin v{KV+k}, v1, {S(WS)}, s0 offen sc0 sc1")
        else: a(f"buffer_load_dword v{KV+k}, v1, {S(WS)}, s0 offen sc1")
    for k in range(KP): a(f"v_mov_b32 v{KV+k}, -1")
    def kchk(k):
        a(f"v_cmp_lt_u32 vcc, s{sWIN}, v{KV+k}\ns_cbranch_vccz L_pg")
        a(f"v_cndmask_b32 v2, -1, v{KV+k}, vcc\nv_cmp_ne_u32 vcc, -1, v2\nv_mov_b32 v{XS+2}, v{KV+k}\ns_cbranch_vccnz L_pn")
    a("L_pk:")
    if OPT["kw"]: look(0); a("s_waitcnt vmcnt(0)"); kchk(0)
    for k in range(KP - 1):
        look(k)
        if OPT["ks"]: a(f"s_sleep {OPT['ks']}")
    a("L_pl:")
    for k in range(KP):
        look((k + KP - 1) % KP)
        a(f"s_waitcnt vmcnt({KP - 1 + 2 * (KP // KR - (k % KR == 0))})"); kchk(k)
        if OPT["ks"]: a(f"s_sleep {OPT['ks']}")
    a(f"s_sub_u32 s{sBUD}, s{sBUD}, 1\ns_cbranch_scc0 L_pl\ns_mov_b32 s{sBUD}, 0\ns_branch L_pg")
    a(f"L_pn:\nv_cmp_eq_u32 s[58:59], -1, v{XS+2}\ns_mov_b64 exec, -1\nv_cndmask_b32 v2, 0, v2, vcc")
    a(f"v_max_u32_dpp v{XS}, v2, v2 row_ror:8 {DPPM}")
    for k in (4, 2, 1): a(f"v_max_u32_dpp v{XS}, v{XS}, v{XS} row_ror:{k} {DPPM}")
    a(f"v_mov_b32 v{XS+1}, v{XS}\nv_permlane16_swap_b32 v{XS}, v{XS+1}\nv_max_u32 v{XS}, v{XS}, v{XS+1}\ns_mov_b32 exec_hi, 0\nv_cmpx_eq_u32 vcc, v{XS}, v2")
    a(f"ds_write_b64 v4, v[2:3]\ns_cmp_eq_u64 s[58:59], 0\nv_readfirstlane_b32 s{sXS}, v3\nv_readfirstlane_b32 s{sWIN}, v2")
    a("s_cbranch_scc0 L_pk")
    a(f"L_xf:\n{row}\ns_waitcnt vmcnt(0)\nL_pg:\ns_mov_b64 exec, -1")
    stamp(4)
else:
    KP, KV = OPT["kp"], 140
    KM = 0x77777777
    def look(k):
        if OPT["ka"]: a(f"buffer_atomic_umin v{KV+k}, v1, {S(WS)}, s0 offen sc0 sc1")
        else: a(f"buffer_load_dword v{KV+k}, v1, {S(WS)}, s0 offen sc1")
    for k in range(KP): a(f"v_mov_b32 v{KV+k}, -1")
    a(f"s_mov_b32 s{sWIN}, 0"); execset(KM)
    for k in range(KP - 1):
        look(k)
        if OPT["ks"]: a(f"s_sleep {OPT['ks']}")
    a("L_pl:")
    for k in range(KP):
        look((k + KP - 1) % KP)
        a(f"s_waitcnt vmcnt({KP - 1})\nL_pc{k}:\nv_cmp_lt_u32 vcc, s{sWIN}, v{KV+k}\ns_cbranch_vccz L_pg")
        a(f"v_cndmask_b32 v2, -1, v{KV+k}, vcc\nv_cmp_ne_u32 vcc, -1, v2\ns_cbranch_vccnz L_pn{k}")
        if OPT["ks"]: a(f"s_sleep {OPT['ks']}")
        def upd():
            a(f"L_pn{k}:\ns_mov_b64 exec, -1\nv_cndmask_b32 v2, 0, v2, vcc")
            a(f"v_max_u32_dpp v{XS}, v2, v2 row_ror:8 {DPPM}")
            for r in (4, 2, 1): a(f"v_max_u32_dpp v{XS}, v{XS}, v{XS} row_ror:{r} {DPPM}")
            a(f"v_mov_b32 v{XS+1}, v{XS}\nv_permlane16_swap_b32 v{XS}, v{XS+1}\nv_max_u32 v{XS}, v{XS}, v{XS+1}\ns_mov_b32 exec_hi, 0\nv_cmpx_eq_u32 vcc, v{XS}, v2")
            a(f"ds_write_b64 v4, v[2:3]\nv_readfirstlane_b32 s{sWIN}, v2"); execset(KM); a(f"s_branch L_pc{k}")
        DEFER.append("\n".join(capture(upd)))
    a(f"s_sub_u32 s{sBUD}, s{sBUD}, 1\ns_cbranch_scc0 L_pl\ns_mov_b32 s{sBUD}, 0")
    a("L_pg:\nds_write_b32 v4, v4 offset:8\ns_mov_b64 exec, -1")
    stamp(4)
    vRW = 132
    row = f"s_mov_b32 m0, {LNL}\nbuffer_load_dwordx4 v{vRW}, {S(WS)}, s{sXS} offen sc1 lds\ns_mov_b32 m0, {LNL + 1024}\ns_mov_b64 exec, 0xffff\nbuffer_load_dwordx4 v{vRW+1}, {S(WS)}, s{sXS} offen sc1 lds\ns_mov_b64 exec, -1"
    t = f"L_ft:\ns_and_b32 s3, s{sMm}, 1\ns_mul_i32 s3, s3, 640\nv_add_u32 v{vRW}, s3, v6\nv_subrev_u32 v2, 1280, v{vRW}\nv_min_u32 v{vRW}, v{vRW}, v2\ns_sub_u32 s3, 1024, s3\nv_add_u32 v{vRW+1}, s3, v6\ns_mov_b32 s{sXS}, 0\n"
    t += f"L_fl:\nds_read_b128 v[136:139], v4\ns_waitcnt lgkmcnt(0)\nv_readfirstlane_b32 s0, v137\nv_readfirstlane_b32 s1, v138\ns_cmp_eq_u32 s0, s{sXS}\ns_cbranch_scc0 L_fn\ns_cmp_eq_u32 s1, 0\ns_cbranch_scc1 L_fl\ns_branch L_np\n"
    t += f"L_fn:\ns_mov_b32 s{sXS}, s0\n{row}\ns_cmp_eq_u32 s1, 0\ns_waitcnt vmcnt(0)\ns_cbranch_scc0 L_np\n"
    if OPT["rf"]: t += row + "\n"
    t += f"s_branch L_fl\nL_xf:\n{row}\ns_waitcnt vmcnt(0)\ns_branch L_np"
    DEFER.append(t)
def wback(p):
    if OPT["wb"] & p: a(f"s_and_b32 s3, s{sMm}, 1\ns_add_u32 s3, s3, s{sWV}\ns_cmp_eq_u32 s3, 8\ns_cbranch_scc0 L_wb{p}\nbuffer_wbl2 sc1\nL_wb{p}:")
a("L_np:\ns_waitcnt lgkmcnt(0)\ns_barrier")
stamp(5)
def smf(d, A, B): a(f"v_smfmac_f32_16x16x64_bf16 {V(d,4)}, {V(A,4)}, {V(B,8)}, v{IDX}")
a(f"s_cmp_lt_u32 s{sWV}, 4\ns_cbranch_scc1 L_xh")
XL = 88
wback(1)
a(f"ds_read_b64 v[2:3], v4")
for s in range(10): a(f"ds_read_b128 {V(XL+4*s,4)}, v{vXS} offset:{128*s}")
a(f"s_waitcnt lgkmcnt(10)\nv_readfirstlane_b32 s56, v2\nv_readfirstlane_b32 s57, v3")
fo = [f"s_and_b32 s0, s57, 0x7fff\ns_add_u32 s57, s57, s0\ns_add_u32 s57, s57, {R_BASE}\ns_and_b32 s1, s56, 0xfffff800",
      f"s_ashr_i32 s3, s1, 31\ns_not_b32 s3, s3\ns_or_b32 s3, s3, 0x80000000\ns_xor_b32 s1, s1, s3", f"s_andn2_b32 s56, 2047, s56\ns_mul_i32 s56, s56, 1280\nv_mov_b32 v{vSG}, s1",
      f"v_mul_f32 v{vSG}, 0xbfb8aa3b, v{vSG}", f"v_exp_f32 v{vSG}, v{vSG}", f"v_add_f32 v{vSG}, 1.0, v{vSG}", f"v_rcp_f32 v{vSG}, v{vSG}"]
for s in range(10):
    a(f"s_waitcnt lgkmcnt({9-s})"); smf(GA, XL + 4 * s, GF + 8 * s)
    if fo: a(fo.pop(0))
a("s_branch L_xj"); pad("m"); a("L_xh:")
for s in range(4): a(f"ds_read_b128 {V(XS+4*s,4)}, v{vXS} offset:{128*s}")
for s in range(10):
    a(f"s_waitcnt lgkmcnt({min(3, 9-s)})")
    smf(GA, XS + 4 * (s % 4), GF + 8 * s); smf(GA + 4, XS + 4 * (s % 4), GF + 80 + 8 * s)
    if s + 4 < 10: a(f"ds_read_b128 {V(XS+4*(s%4),4)}, v{vXS} offset:{128*(s+4)}")
a("L_xj:\ns_mov_b64 vcc, 0xffff")
a(f"v_add_f32 v1, v{GA}, v{GA+1}\nv_add_f32 v2, v{GA+4}, v{GA+5}\nv_cndmask_b32 v1, v2, v1, vcc")
NFL = MZ + 16
a("v_cmp_u_f32 vcc, v1, v1\ns_cbranch_vccnz L_xn\nL_xnb:")
DEFER.append(f"L_xn:\nv_mov_b32 v2, {NFL}\nds_write_b32 v2, v2\ns_branch L_xnb")
DEFER.append(f"L_xsr:\ns_sub_u32 s49, s49, 1\ns_cbranch_scc1 L_xsgo\n" + "\n".join(f"v_mov_b32 v{GA+i}, 0" for i in range(8))
             + f"\ns_waitcnt lgkmcnt(0)\ns_barrier\ns_cmp_eq_u32 s{sWV}, {6 + OPT['kold']}\ns_cbranch_scc0 L_np\nds_write_b32 v2, v{GA}\ns_branch L_xf")
stamp(6)
a(f"v_mul_f32 v2, 0xbfb8aa3b, v1\nv_exp_f32 v2, v2\nv_mul_f32_dpp v3, v1, v1 row_ror:8 {DPPM}\nv_add_f32 v2, 1.0, v2\nv_rcp_f32 v2, v2")
a(f"v_mul_f32 v1, v2, v3\nv_cvt_pk_bf16_f32 v1, v1, v1\ns_mov_b64 exec, s[50:51]\nds_write_b16 v{vACT}, v1\ns_mov_b64 exec, -1\nv_mov_b32 v2, {NFL}\ns_waitcnt lgkmcnt(0)\ns_barrier")
DD = 8
a(f"ds_read_b32 v1, v2\nds_read_b128 {V(XS,4)}, v{vA2}\nds_read_b128 {V(XS+4,4)}, v{vA1}\ns_waitcnt lgkmcnt(2)\nv_cmp_ne_u32 vcc, 0, v1\ns_cbranch_vccnz L_xsr\nL_xsgo:")
a("s_waitcnt lgkmcnt(1)")
for i in (4, 0, 1, 2, 3): mfma(DD + 4 * i, XS, DF + 12 * i + 8, "0")
a("s_waitcnt lgkmcnt(0)")
for i in (4, 0, 1, 2, 3): smf(DD + 4 * i, XS + 4, DF + 12 * i)
PS = 32
a(f"v_add_f32 v1, v{DD+16}, v{DD+17}")
for i in range(4):
    a(f"v_add_f32 v{PS+i}, v{DD+4*i}, v{DD+4*i+1}")
for i in range(4): a(f"v_mov_b32_dpp v{PS+i}, v1 quad_perm:[{i},{i},{i},{i}] row_mask:0x2 bank_mask:0xf")
a(f"s_mov_b64 exec, 0x1111ffff\nbuffer_store_dwordx4 {V(PS,4)}, v{vE4}, {S(WS)}, s47 offen sc1\ns_mov_b64 exec, -1")
stamp(7)
wback(2)
a(f"s_cmp_lt_u32 s{sFT}, 40\ns_cbranch_scc0 L_mfin")
FP = OPT["fp"]
FA = OPT["fa"]; NF = 3 if FA else 2
def fld(k):
    d = FD + 8 * k
    a(f"buffer_load_dword v{d+4}, v{vFB}, {S(WS)}, s57 offen sc1")
    if FA:
        for e in (0, 2): a(f"v_mov_b64 {V(d+e,2)}, 0\nbuffer_atomic_or_x2 {V(d+e,2)}, v6, {S(WS)}, s{sFE} offen offset:{4*e} sc0 sc1")
    else: a(f"buffer_load_dwordx4 {V(d,4)}, v6, {S(WS)}, s{sFE} offen sc1")
if OPT["f0"]: a(f"s_sleep {OPT['f0']}")
for k in range(FP - 1):
    fld(k)
    if OPT["fs"]: a(f"s_sleep {OPT['fs']}")
a("L_fd:")
for k in range(FP):
    fld((k + FP - 1) % FP)
    d = FD + 8 * k
    a(f"s_waitcnt vmcnt({NF*(FP-1)})\nv_max3_u32 v1, v{d}, v{d+2}, v{d+4}\nv_cmp_eq_u32 vcc, -1, v1\ns_cbranch_vccz L_fg{k}")
    if OPT["fs"]: a(f"s_sleep {OPT['fs']}")
a(f"s_sub_u32 s{sBUD}, s{sBUD}, 1\ns_cbranch_scc0 L_fd")
for k in reversed(range(FP)):
    d = FD + 8 * k
    a(f"L_fg{k}:\nv_permlane32_swap_b32 v{d}, v{d+1}\nv_permlane32_swap_b32 v{d+2}, v{d+3}\nv_add_f32 v{d}, v{d}, v{d+1}\nv_add_f32 v{d+2}, v{d+2}, v{d+3}")
    a(f"v_permlane16_swap_b32 v{d}, v{d+2}\nv_add_f32 v{d}, v{d}, v{d+2}")
    for r in (4, 8): a(f"v_add_f32_dpp v{d}, v{d}, v{d} row_ror:{r} {DPPM}")
    a(f"v_fma_f32 v8, v{d}, v{vSG}, v{d+4}\nv_cvt_pk_bf16_f32 v8, v8, v8")
    execset(0x000F000F000F000F)
    a(f"buffer_store_short v8, v{vFC}, {S(OUT)}, s56 offen")
    if k: stamp(8); finish(); pad("m")
stamp(8)
a("L_mfin:")
finish()
deferred("m")
if OPT["stamps"]:
    a("L_dump:\ns_mov_b64 exec, -1\ns_memtime s[0:1]\ns_memrealtime s[62:63]\ns_waitcnt lgkmcnt(0)\nv_mov_b32 v2, 0")
    a("v_writelane_b32 v2, s98, 0\nv_writelane_b32 v2, s62, 1\ns_sub_u32 s3, s0, s96\nv_writelane_b32 v2, s3, 2")
    for i in range(NST): a(f"s_sub_u32 s3, s{70+2*i}, s{98 if OPT['rt'] else 96}\ns_cmp_lt_u32 s3, {5000 if OPT['rt'] else 0x100000}\ns_cselect_b32 s3, s3, 0\nv_writelane_b32 v2, s3, {3+i}")
    a(f"s_lshl_b32 s3, s2, 4\ns_add_u32 s3, s3, s{sWV}\ns_lshl_b32 s3, s3, 7\ns_add_u32 s3, s3, {STAMP}\nv_lshlrev_b32 v3, 2, v0\ns_mov_b32 exec_hi, 0")
    a(f"buffer_store_dword v2, v3, {S(WS)}, s3 offen")
    if OPT["diag"] >= 0:
        a(f"s_sub_u32 s3, s2, {OPT['dwg']}\ns_cmp_lt_u32 s3, {OPT['dn']}\ns_cbranch_scc0 L_end\ns_cmp_eq_u32 s{sWV}, {OPT['dwv']}\ns_cbranch_scc0 L_end")
        a(f"s_sub_u32 s3, s{70+2*OPT['diag']}, s98\ns_lshl_b32 s3, s3, 2\ns_add_u32 s3, s3, s62")
        a("L_dg:\ns_memrealtime s[62:63]\ns_waitcnt lgkmcnt(0)\ns_sub_u32 s0, s62, s3\ns_cmp_lt_i32 s0, 0\ns_cbranch_scc1 L_dg")
a("L_end:\ns_endpgm")
for i, l in reversed(list(enumerate(a.lines))):
    if l.startswith(";WARM"):
        _, cat, k, n = l.split()
        a.lines[i:i+1] = [f"s_call_b64 s[100:101], {p}" for p in PADS.get(cat, [])[int(k)::int(n)]]
print({k: len(v) for k, v in PADS.items()})
body, nn = hazard.fix(a.lines[body0:], OPT["verbose"])
a.lines[body0:] = body
kernel_desc(a, K, 256)
open(sys.argv[1], "w").write(a.text())
print("nops inserted:", nn, "lines:", len(a.lines))
```

```python
import sys, struct, math
sys.path.insert(0, "gen")
from common import *
import hazard

OPT = dict(stage="F", stamps=0, verbose=0, nl=8, pg=1, kw=0, kr=3, kn=1, kc=15, e2p=0, fmode=1, n0=8, na=2, nb=10, n1=0, o2=0, hp=1, cdw=0, sf=2, dpn=2, fsl=1, bk=0, bv=-1, wc=1, tch=5, bud=1 << 19, rw=5, clr=0, pf0=1, uord=0, mt=1, mx=8, x1=2, w1=1, ppr=0, kold=1, wb=1, pfp=3, te=1, tl=0, t2=0, wsp=0, ws0=2, ord=0, vpos=1, off="98672345", ftop=0, mlate=0, rf=1, kp=3, ks=2, ka=1, fp=2, fs=0, fa=0, f0=0, hlp=1, r2=5, e1=1, e2=4, dep=3, dep2=6, opos=1, vq=2, spf=0, pk=1, rsp=1, osc="plain",
           diag=-1, dwg=77, dn=1, dib=-1, dwv=0, slpk=0, prio=1, ou=6, grp=0, rt=1, dbg=0, wri=5, pre=12, aprio=1, lprio=2, vprio=2, oul=5, xprio=1, cpos=1)
for kv in sys.argv[2:]:
    k, v = kv.split("=")
    assert k in OPT, k
    OPT[k] = int(v) if v.lstrip("-").isdigit() else v
STAGE = OPT["stage"]

E2, SP, RJ, STAMP, DUMP = 0x200000, 0x280000, 0x300000, 0x500000, 0x1000000
RJS = 32768
R_BASE, R_FL, R_E4, R_KEY = 4096, 12288, 16384, 21504
SLOT, S0 = 36864, 8192
PITCH = 144; TSTR = 96 * PITCH
VB = S0 + SLOT - TSTR; KB = VB - TSTR; QB = KB - TSTR
STATS, ZR = 0, 1792
MODE, KMAX, WFL, VCN, HRD, XFL = 1728, 1732, 1744, 1748, 1752, 1760
WOB = S0 + 2 * SLOT
EX = S0 + SLOT + 12288
assert ZR + 8 * PITCH + 64 <= QB
X, W, WO, WS, OUT, DBG, WR = 4, 8, 12, 16, 20, 24, 28
sWV, sJ, sU, sG, sC, sC5, sT, sB0, sBUD, sMODE, sI, sGID = range(32, 44)
KA = dict(x=44, w=46, wo=48, wr=52, gate=54, up=56, down=60, out=62, dbg=64, ws=66)
BUDGET = OPT['bud']
DPPM = "row_mask:0xf bank_mask:0xf"
ONES = 0x3F803F80
OOB = 0x80000000
def f32(x): return struct.unpack("<I", struct.pack("<f", x))[0]
CEXP = f32(20 ** -0.5 * math.log2(math.e))

a = Asm()
def S(d): return f"s[{d}:{d+3}]"
def V(d, n=1): return f"v{d}" if n == 1 else f"v[{d}:{d+n-1}]"
def mksrd(d, name, size): a(f"s_mov_b64 s[{d}:{d+1}], s[{KA[name]}:{KA[name]+1}]\ns_mov_b32 s{d+2}, {size:#x}\ns_mov_b32 s{d+3}, 0x20000")
def execset(m):
    if m == -1: a("s_mov_b64 exec, -1")
    elif m < (1 << 31): a(f"s_mov_b64 exec, {m:#x}")
    else: a(f"s_mov_b32 exec_lo, {m & 0xffffffff:#x}\ns_mov_b32 exec_hi, {m >> 32:#x}")
def smask(d, m): a(f"s_mov_b32 s{d}, {m & 0xffffffff:#x}\ns_mov_b32 s{d+1}, {m >> 32:#x}")
def lanes(f): return sum(1 << l for l in range(64) if f(l))
def mfma(d, A, B, C=None):
    c = V(d, 4) if C is None else (C if isinstance(C, str) else V(C, 4))
    a(f"v_mfma_f32_16x16x32_bf16 {V(d,4)}, {V(A,4)}, {V(B,4)}, {c}")
DEFER = []
def lst(text):
    l = a.label("gl")
    a(f"s_cmp_eq_u32 s{sMODE}, 1\ns_cbranch_scc0 {l}g")
    a(text.replace("{F}", "")); a(f"{l}b:")
    DEFER.append(f"{l}g:\n" + text.replace("{F}", " sc1") + f"\ns_branch {l}b")
PADS = {}
def pad(cat):
    if not OPT["pg"]: return
    l = a.label("pad"); PADS.setdefault(cat, []).append(l); a(f"{l}:\ns_setpc_b64 s[100:101]")
def pagebreak(cat=None, live=True):
    if not OPT["pg"]: return
    l = a.label("pb")
    if live: a(f"s_branch {l}")
    a(".p2align 12")
    if cat: pad(cat)
    a(f"{l}:")
def warm(cat, k, n): a(f";WARM {cat} {k} {n}")
def deferred(cat=None):
    n = 999
    for t in DEFER:
        if cat and n > 110: pad(cat); n = 0
        a(t); n += t.count("\n") + 1
    DEFER.clear()
def capture(fn):
    global a
    class C:
        def __init__(s): s.g = []
        def __call__(s, t=""): s.g.append(t)
        def label(s, b): return a0.label(b)
    a0 = a; a = C(); fn(); g = a.g; a = a0
    return g
class Cnt:
    def __init__(s, name, mx): s.n = 0; s.name = name; s.mx = mx; s.done = 0
    def __call__(s, text): a(text); s.n += 1; return s.n
    def wait(s, i):
        if i <= s.done: return
        k = min(s.mx, s.n - i); a(f"s_waitcnt {s.name}({k})"); s.done = s.n - k
    def reset(s): s.n = 0; s.done = 0
L = Cnt("lgkmcnt", 15)

NST = 13
CLK = "s_memrealtime" if OPT["rt"] else "s_memtime"
def stamp(i, lvl=1):
    if OPT["stamps"] == lvl: a(f"{CLK} s[{70+2*i}:{71+2*i}]")
def stampi(ph):
    if OPT["stamps"] == 2:
        if ph == 0: a(f"{CLK} s[94:95]")
        else: a(f"s_lshl_b32 m0, s{sI}, 1\ns_waitcnt lgkmcnt(0)\ns_movreld_b32 s70, s94")
def finish():
    a("s_branch L_dump" if OPT["stamps"] else "s_endpgm")

a(HEADER.rstrip())
a("; @launch grid=(256,1,1) block=(512,1,1) lds=163840")
if OPT["stamps"] and OPT["grp"]: a("; @groups g0:0-79:2-2 g1:80-159:2-2 g2:160-239:2-2 m7:240-255:7-7")
if OPT["stamps"] and OPT["rt"]: a("; @rt")
if OPT["stamps"] and not OPT["grp"]: a("; @groups c0:0-239:0-0 c2:0-239:2-2 h0:0-239:4-4 h1:0-239:5-5 h3:0-239:7-7 m0:240-255:0-0 m4:240-255:4-4 ma:240-247:7-7 mb:248-255:7-7")
a('.amdgcn_target "amdgcn-amd-amdhsa--gfx950"')
K = NAME + "_kernel"
kernel_begin(a, K, OPT.get("page", 1))
body0 = len(a.lines)
NL = OPT["nl"]
a("s_load_dwordx16 s[44:59], s[0:1], 0\ns_load_dwordx8 s[60:67], s[0:1], 56")
if OPT["stamps"]: a("s_memrealtime s[98:99]\ns_memtime s[96:97]")
a(f"s_lshr_b32 s{sU}, s2, 3\ns_and_b32 s{sJ}, s2, 7\nv_readfirstlane_b32 s{sWV}, v0\ns_getpc_b64 s[100:101]\nL_pc:")
if OPT['dbg'] & 32: a('s_load_dword s79, s[100:101], 0x7000')
a(f"s_mul_i32 s3, s{sU}, {NL}\nv_min_u32 v2, {NL-1}, v0\nv_add_lshl_u32 v2, v2, s3, 7\nv_min_u32 v2, L_end-L_pc, v2")
a(f"s_cmp_ge_u32 s{sU}, 30\ns_cbranch_scc1 L_moe")
a("global_load_dword v255, v2, s[100:101]")
a(f"s_mul_i32 s{sG}, s{sU}, 26\ns_lshr_b32 s{sG}, s{sG}, 8\ns_mul_i32 s3, s{sG}, 10\ns_sub_u32 s{sC}, s{sU}, s3\ns_lshr_b32 s{sWV}, s{sWV}, 6")
OFT = sum(int(ch) << (4 * i) for i, ch in enumerate(str(OPT["off"])))
a(f"s_lshl_b32 s3, s{sJ}, 2\ns_lshr_b32 s3, {OFT:#x}, s3\ns_and_b32 s{sMODE}, s3, 15\ns_add_u32 s3, s{sC}, s{sMODE}\ns_sub_u32 s68, s3, 10\ns_cselect_b32 s69, s3, s68")
a(f"s_mul_i32 s3, s69, 245760\ns_lshl_b32 s68, s{sC}, 7\ns_add_u32 s3, s3, s68")
a("v_lshrrev_b32 v1, 3, v0\nv_lshrrev_b32 v3, 4, v0\nv_and_b32 v2, 2, v1\nv_and_or_b32 v2, v3, 4, v2\nv_xor_b32 v2, v2, v0\nv_and_b32 v2, 7, v2")
a("v_mul_u32_u24 v4, 3840, v1\nv_lshl_add_u32 v4, v2, 4, v4\nv_add_u32 v4, s3, v4")
vX, vSUM, vXD, vSTW, vBIA, vEV, vEA = 24, 28, 36, 52, 53, 54, 55
sM, sLO, sLT, sP1, sP2 = 44, 52, 54, 55, 56
sXT, sE2L, sRJ, sNO, sSL, sXM, sXO, sLX, sRD, sPF, sSPL, sFO, sSB = range(57, 70)
sEV, sDL, sWO_ = sXM, sXO, sFO
a(f"s_mul_i32 s3, s{sWV}, 3072\ns_add_u32 m0, s3, {S0 + 12288}\nv_and_b32 v0, 63, v0\ns_and_b32 s{sT}, s{sWV}, 3")
a(f"s_lshr_b32 s3, s{sJ}, 1\ns_lshl_b32 s3, s3, 9\ns_mul_i32 s68, s{sG}, 176\ns_add_u32 s3, s3, s68\ns_and_b32 s68, s{sJ}, 1\ns_add_u32 s3, s3, s68\ns_mul_i32 s{sB0}, s3, 1280")
a(f"s_sub_u32 s{sI}, s{sWV}, 5\ns_mul_i32 s3, s{sI}, {32*2560}\ns_add_u32 s3, s3, s{sB0}\ns_sub_u32 s3, s3, {8*2560}")
a(f"v_lshrrev_b32 v1, 3, v0\nv_lshrrev_b32 v3, 4, v0\nv_xor_b32 v3, v3, v0\nv_and_b32 v3, 7, v3\nv_mul_u32_u24 v1, 2560, v1\nv_lshl_add_u32 v1, v3, 4, v1\nv_add_u32 v{vX}, s3, v1")
a(f"s_add_u32 s3, s{sI}, s{sG}\ns_cmp_eq_u32 s3, 4\ns_cselect_b32 s3, {OOB:#x}, 0")
a(f"v_xor_b32 v{vX+1}, 64, v{vX}\nv_add_u32 v{vX+1}, 20480, v{vX+1}\nv_add_u32 v{vX+2}, 40960, v{vX}\nv_add_u32 v{vX+3}, 40960, v{vX+1}\nv_or_b32 v{vX+3}, s3, v{vX+3}")
for d, sz in ((X, 2048 * 1280), (W, 640 * 3840), (WO, 640 * 1280), (WS, 1 << 28), (OUT, 2048 * 1280), (DBG, 256), (WR, 1280)): a(f"s_mov_b32 s{d+2}, {sz:#x}\ns_mov_b32 s{d+3}, 0x20000")
a("s_waitcnt lgkmcnt(0)")
stamp(0)
def mv(d, n): return f"s_mov_b64 s[{d}:{d+1}], s[{KA[n]}:{KA[n]+1}]"
a(f"global_load_lds_dwordx4 v4, s[46:47]\ns_addk_i32 m0, -256\n{mv(X, 'x')}")
a(f"global_load_lds_dwordx4 v4, s[46:47] offset:1280\ns_addk_i32 m0, -256\n{mv(OUT, 'out')}")
a(f"global_load_lds_dwordx4 v4, s[46:47] offset:2560")
for d, n in ((DBG, "dbg"), (WS, "ws"), (W, "w"), (WO, "wo"), (WR, "wr")): a(mv(d, n))
sMT = 96
if OPT["mt"]: a(f"s_cmp_eq_u32 s{sWV}, 4\ns_cselect_b64 s[{sMT}:{sMT+1}], s[54:55], s[{sMT if OPT['stamps'] else 58}:{sMT+1 if OPT['stamps'] else 59}]\ns_cmp_eq_u32 s{sWV}, 5\ns_cselect_b64 s[{sMT}:{sMT+1}], s[56:57], s[{sMT}:{sMT+1}]")
if OPT["mt"] and OPT["stamps"]: a(f"s_cmp_ge_u32 s{sWV}, 6\ns_cselect_b64 s[{sMT}:{sMT+1}], s[58:59], s[{sMT}:{sMT+1}]")
def nextslab(): a(f"s_add_u32 s{sSB}, s{sSB}, 1\ns_cmp_eq_u32 s{sSB}, 10\ns_cselect_b32 s{sSB}, 0, s{sSB}")
def advslot(d): a(f"s_add_u32 s{d}, s{d}, {SLOT}\ns_cmp_eq_u32 s{d}, {S0 + 4*SLOT}\ns_cselect_b32 s{d}, {S0}, s{d}")
def xissue():
    a(f"s_add_u32 m0, s{sSL}, s{sLX}\ns_mov_b32 exec_lo, s{sXM}")
    for i in range(4):
        a(f"buffer_load_dwordx4 v{vX+i}, {S(X)}, s{sXO} offen lds")
        if i < 3: a("s_addk_i32 m0, 1024")
        if i == 0: a("s_mov_b32 exec_lo, -1")
a(f"s_cmp_lt_u32 s{sWV}, 5\ns_cbranch_scc1 L_nx")
a(f"s_lshl_b32 s{sLX}, s{sI}, 12\ns_cselect_b32 s{sXM}, -1, 0xffffff00\ns_lshl_b32 s{sXO}, s69, 7\ns_mov_b32 s{sSL}, {S0}")
xissue()
a("L_nx:")
stamp(1)
aKe, aK4, aKx, aKy = range(200, 204)
aQe, aQx, aQy, aQ4 = 204, 206, 208, 210
aVe, aV1, aV2 = range(216, 219)
vM, aRK, aCQ, aH0s, aH0l, aOs, aOl, aWO, aOUT, aL16, vRK, aXC, XR = 220, 222, 223, 224, 225, 226, 227, 228, 232, 233, 234, 235, 236
vAW, vAX0, vAX1, vSW, vSTR = 244, 245, 246, 247, 248
WRF, WSP = 244, 252
MASK = [lanes(lambda l: 2 * r + (l >> 5) > (l & 7)) for r in range(4)]
LO = lanes(lambda l: (l & 15) < 8)
sTA, sTP, sTS = 44, 44, 45
aOl2 = XR
def suA():
    a(f"s_mov_b32 s{sBUD}, {BUDGET}\ns_mul_i32 s{sGID}, s{sJ}, 3\ns_add_u32 s{sGID}, s{sGID}, s{sG}\ns_sub_u32 s3, s{sC}, 5\ns_cselect_b32 s{sC5}, s{sC}, s3")
    a(f"s_lshl_b32 s3, s{sWV}, 2\ns_lshr_b32 s{sTA}, 0x32105454, s3\ns_and_b32 s{sTA}, s{sTA}, 7\ns_lshr_b32 s45, s{sT}, 1\ns_add_u32 s45, s45, 4")
    a(f"s_cmp_eq_u32 s{sG}, 2\ns_cselect_b32 s{sNO}, 10, 11")
    a(f"s_sub_u32 s{sXT}, 10, s{sMODE}\nv_lshlrev_b32 v{aL16}, 4, v0")
    a(f"s_mul_i32 s{sE2L}, s{sGID}, 6\ns_add_u32 s{sE2L}, s{sE2L}, s{sTP}\ns_mul_i32 s{sE2L}, s{sE2L}, 2560\ns_add_u32 s{sE2L}, s{sE2L}, {E2}")
    a(f"s_lshl_b32 s{sRJ}, s{sJ}, 15\ns_add_u32 s{sRJ}, s{sRJ}, {RJ}")
    a(f"s_sub_u32 s51, 5, s{sC5}\ns_add_u32 s1, s{sC5}, 1\ns_sub_u32 s3, 15, s{sC5}\ns_cmp_le_u32 s{sC5}, 2\n"
      "s_cselect_b32 s46, 0, s3\ns_cselect_b32 s47, s51, s1\ns_cselect_b32 s48, s3, 0\ns_cselect_b32 s49, s1, s51\ns_cselect_b32 s50, 1, 0")
    a("v_and_b32 v3, 15, v0\nv_add_u32 v3, 8, v3\nv_lshrrev_b32 v4, 1, v3\nv_lshrrev_b32 v5, 5, v0\nv_xor_b32 v4, v4, v5\nv_and_b32 v4, 7, v4")
    a(f"v_lshlrev_b32 v4, 4, v4\nv_lshl_add_u32 v4, v3, 7, v4\nv_bfe_u32 v5, v0, 4, 1\nv_lshl_add_u32 v4, v5, 3, v4\ns_lshl_b32 s3, s{sTP}, 11\nv_add_u32 v{aXC}, s3, v4")
def suB():
    a(f"v_and_b32 v1, 15, v0\nv_lshrrev_b32 v2, 4, v0\nv_mov_b32 v7, {ZR}\ns_mul_i32 s0, s{sTA}, {16*PITCH}\ns_movk_i32 s1, {PITCH}")
    a("v_bfe_u32 v3, v0, 2, 1\nv_and_b32 v4, 3, v0\nv_lshlrev_b32 v4, 1, v4"); a("v_lshl_add_u32 v3, v3, 3, v4\nv_bfe_u32 v4, v0, 3, 1\nv_add_u32 v3, v3, v4")
    a(f"s_add_u32 s3, s0, {KB}\nv_mov_b32 v4, s3\nv_mad_u32_u24 v3, v3, s1, v4")
    a(f"s_add_u32 s3, s0, {QB + 8*PITCH}\nv_mov_b32 v4, s3\nv_mad_u32_u24 v4, v1, s1, v4")
    smask(52, LO)
    def kq(dK, dQ, quad, cond):
        a(quad); a(f"v_lshl_add_u32 v{dK}, v5, 3, v3\nv_lshl_add_u32 v5, v5, 3, v4")
        if cond: a(cond); a("v_cndmask_b32 v5, v7, v5, vcc")
        a(f"v_cndmask_b32 v{dQ}, v7, v5, s[52:53]\nv_cndmask_b32 v{dQ+1}, v5, v7, s[52:53]")
    kq(aKe, aQe, "v_add_u32 v5, s51, v2", None)
    kq(aKx, aQx, "v_add_u32 v5, s46, v2", "v_cmp_gt_u32 vcc, s47, v2")
    kq(aKy, aQy, "v_add_u32 v5, s48, v2\nv_min_u32 v5, 15, v5", "v_cmp_gt_u32 vcc, s49, v2")
    a("s_sub_u32 s3, s51, 1\nv_mad_u32_u24 v5, v2, 5, s3\ns_add_u32 s3, s46, 4\nv_mov_b32 v6, s3\ns_mov_b64 vcc, 0xffff\nv_cndmask_b32 v5, v5, v6, vcc")
    a(f"v_min_u32 v5, 15, v5\nv_lshl_add_u32 v{aK4}, v5, 3, v3\nv_lshl_add_u32 v5, v5, 3, v4")
    a(f"s_cmp_eq_u32 s47, 5\ns_cselect_b64 vcc, 0xff, 0\nv_cndmask_b32 v{aQ4}, v7, v5, vcc\ns_lshl_b64 vcc, vcc, 8\nv_cndmask_b32 v{aQ4+1}, v7, v5, vcc")
    for i in range(2, 6): a(f"s_bfm_b64 vcc, 8, {8*i}\nv_cndmask_b32 v{aQ4+i}, v7, v5, vcc")
def suC():
    a(f"s_mul_i32 s0, s{sTA}, {16*PITCH}\ns_movk_i32 s1, {PITCH}")
    a("v_bfe_u32 v3, v0, 2, 3\nv_lshrrev_b32 v4, 5, v0\nv_lshl_add_u32 v3, v3, 1, v4")
    a(f"s_add_u32 s3, s0, {VB}\nv_mov_b32 v4, s3\nv_mad_u32_u24 v3, v3, s1, v4\nv_and_b32 v4, 3, v0")
    smask(54, lanes(lambda l: l & 3 == 0))
    a(f"v_add_u32 v5, s51, v4\nv_lshl_add_u32 v{aVe}, v5, 3, v3\nv_add_u32 v7, 32, v{aVe}")
    a(f"s_cmp_eq_u32 s50, 1\ns_cselect_b32 s3, -1, 12\ns_cselect_b32 s56, 2, -1")
    a(f"v_add_u32 v5, s3, v4\nv_lshl_add_u32 v5, v5, 3, v3\nv_cndmask_b32 v{aV1}, v5, v7, s[54:55]\nv_add_u32 v7, 40, v7")
    a(f"v_add_u32 v5, s56, v4\nv_add_u32 v6, 10, v5\nv_cmp_gt_i32 vcc, s51, v5"); a(f"v_cndmask_b32 v5, v6, v5, vcc\nv_lshl_add_u32 v5, v5, 3, v3\nv_cndmask_b32 v{aV2}, v5, v7, s[54:55]")
    a(f"s_lshl_b32 s0, s{sTA}, 8\nv_lshrrev_b32 v4, 5, v0\nv_and_or_b32 v3, v0, 8, v4\ns_add_u32 s3, s0, {STATS + 8}\nv_lshl_add_u32 v{aRK}, v3, 4, s3")
    a(f"v_and_b32 v1, 15, v0\ns_add_u32 s3, s0, {STATS + 128 + 4}\nv_lshl_add_u32 v{aCQ}, v1, 4, s3")
    a(f"s_lshr_b32 s3, s{sB0}, 8\ns_mul_i32 s3, s3, 52429\ns_lshr_b32 s3, s3, 18\ns_lshl_b32 s0, s{sTP}, 5\ns_add_u32 s3, s3, s0\ns_sub_u32 s3, 2047, s3\nv_mad_i32_i24 v{vRK}, v1, -2, s3")
def octaddr(d, tile, rowq, extra):
    a(f"s_lshl_b32 s3, s{tile}, 4\nv_add_u32 v5, s3, v{rowq}\ns_lshl_b32 s3, s{sNO}, 3\nv_cmp_gt_u32 vcc, s3, v5")
    a(f"v_mul_u32_u24 v5, 2560, v5\nv_add3_u32 v5, v5, v{extra}, s{sB0}\nv_cndmask_b32 v{d}, v6, v5, vcc")
def suD(helper=1):
    a(f"v_lshrrev_b32 v2, 4, v0\nv_and_or_b32 v3, v0, 8, v2\nv_and_b32 v4, 0x70, v{aL16}\nv_bfrev_b32 v6, 1")
    if helper: octaddr(aOl2, sTS, 3, 4)
    octaddr(aOl, sTA, 3, 4)
    a(f"s_lshl_b32 s3, s{sC}, 7\nv_add_u32 v{aOs}, s3, v{aOl}")
    a(f"v_bfe_u32 v3, v0, 4, 1\nv_cmp_eq_u32 s[54:55], s50, v3\ns_cmp_lg_u32 s{sC5}, 0\ns_cselect_b64 s[0:1], -1, s[54:55]\ns_and_b64 vcc, vcc, s[0:1]")
    a(f"s_cmp_lg_u32 s{sC5}, 4\ns_cselect_b64 s[0:1], 0, s[54:55]\ns_andn2_b64 vcc, vcc, s[0:1]")
    a(f"v_cndmask_b32 v{aH0l}, v6, v{aOs}, vcc")
    a(f"s_cmp_le_u32 s{sC5}, 3\ns_cselect_b32 s3, 2560, 0\ns_sub_u32 s3, s3, 128\nv_mov_b32 v4, s3"); a(f"s_cmp_ge_u32 s{sC5}, 2\ns_cselect_b32 s3, 2560, 0\ns_add_u32 s3, s3, 128\nv_mov_b32 v5, s3")
    a(f"v_cndmask_b32 v4, v4, v5, s[54:55]\nv_mul_u32_u24 v3, 2560, v3\nv_sub_u32 v4, v4, v3"); a(f"v_add_u32 v4, v4, v{aOs}\nv_cndmask_b32 v{aH0s}, v6, v4, vcc")
def wlane():
    a("v_bfe_u32 v3, v0, 3, 2\nv_lshlrev_b32 v3, 2, v3\nv_and_or_b32 v3, v0, 3, v3"); a("v_lshlrev_b32 v3, 3, v3\nv_bfe_u32 v4, v0, 2, 2\nv_lshl_add_u32 v3, v4, 7, v3")
def suE(helper=1):
    a("v_and_b32 v1, 15, v0\nv_bfrev_b32 v6, 1\nv_bfe_u32 v3, v0, 4, 1\nv_lshrrev_b32 v4, 5, v0"); a(f"v_lshl_add_u32 v3, v3, 1, v4\ns_lshl_b32 s3, s{sC}, 7\nv_lshl_add_u32 v4, v3, 4, s3")
    octaddr(aOUT, sTP, 1, 4)
    wlane()
    a("v_lshrrev_b32 v2, 4, v0")
    if helper:
        a(f"s_and_b32 s3, s{sWV}, 1\ns_lshl_b32 s3, s3, 12\ns_add_u32 s3, s3, {WOB}\nv_lshl_add_u32 v4, v2, 10, v3\nv_add_u32 v{aWO}, s3, v4")
        for ct in range(1, 4): a(f"v_xor_b32 v{aWO+ct}, {32*ct}, v{aWO}")
    for r in range(4): smask(sM + 2 * r, MASK[r])
    a(f"s_movk_i32 s{sLT}, 10240\ns_mov_b32 s{sP1}, 0x07060501\ns_mov_b32 s{sP2}, 0x0706000c")
    a("v_mov_b32 v5, 0xffff\nv_mov_b32 v6, 0xffff0000")
    for d in range(2): a(f"v_cndmask_b32 v1, 0, v5, s[{sM+4*d}:{sM+4*d+1}]\nv_cndmask_b32 v4, 0, v6, s[{sM+4*d+2}:{sM+4*d+3}]\nv_or_b32 v{vM+d}, v1, v4")
KQ, SS, KS, PX, FL_, FE, VF, HL, CQ, TM, F01 = 96, 152, 168, 176, 192, 196, 64, 92, 5, 6, 2
DM, LT, QF = SS, 80, KQ + 20
H, OF, WOF, RING = 8, 24, 104, 6
DEP = OPT["dep"]
def capt(slot, d=XR):
    a(f"v_add_u32 v1, {slot}, v{aXC}")
    for ct in range(4):
        if ct: a(f"v_xor_b32 v{1+ct}, {32*ct}, v1")
        a(f"ds_read_b64 {V(d+2*ct,2)}, v{1+ct}")
def hinit(d=XR):
    for i in range(8): a(f"v_lshlrev_b32 v{H+2*i}, 16, v{d+i}\nv_and_b32 v{H+2*i+1}, 0xffff0000, v{d+i}")
def ldWR():
    a(f"v_lshrrev_b32 v1, 4, v0\nv_lshlrev_b32 v1, 3, v1\ns_lshl_b32 s3, s{sC}, 7")
    for ct in range(4): a(f"buffer_load_dwordx2 {V(WRF+2*ct,2)}, v1, {S(WR)}, s3 offen offset:{32*ct}")
def wrprep(t):
    a(f"s_mov_b32 s3, {ONES:#x}")
    for i in range(4): a(f"v_mov_b32 v{t+i}, s3")
    execset(0x1111111111111111)
    for i in range(8): a(f"v_mov_b32 v{WRF+i}, s3")
    execset(-1)
    for k in range(2): mfma(WSP, WRF + 4 * k, t, "0" if k == 0 else None)
def pzero(lo=0, hi=16):
    for i in range(lo, hi): a(f"v_mov_b32 v{PX+i}, 0")
def ksread(e=None):
    e = e or a
    a(f"v_add_u32 v1, 128, v{aRK}")
    for r in range(4):
        e(f"v_cndmask_b32 v2, v1, v{aRK}, s[{sM+2*r}:{sM+2*r+1}]\nds_read_b64 {V(KS+2*r,2)}, v2 offset:{32*r}")
    e(f"ds_read_b32 v{CQ}, v{aCQ}")
def rdmode(): a(f"v_mov_b32 v1, {MODE}\nds_read_b32 v1, v1\ns_waitcnt lgkmcnt(0)\nv_readfirstlane_b32 s{sMODE}, v1")
def gsync_h(poll):
    l = a.label("gh")
    a(f"s_cmp_eq_u32 s{sMODE}, 1\ns_cbranch_scc0 {l}g\n{l}b:")
    t = f"{l}g:\ns_barrier\n"
    if poll:
        t += f"s_cmp_eq_u32 s{sWV}, 5\ns_cbranch_scc0 {l}e\nv_mov_b32 v1, 1\ns_mov_b64 exec, 1\nbuffer_store_dword v1, off, {S(WS)}, s{sFO} offset:64 sc1\ns_mov_b64 exec, -1\n"
        t += f"{l}p:\nbuffer_load_dword v1, v{vEA}, {S(WS)}, 0 offen offset:64 sc1\ns_waitcnt vmcnt(0)\nv_cmp_ne_u32 vcc, 1, v1\ns_cbranch_vccz {l}e\ns_sub_u32 s{sBUD}, s{sBUD}, 1\ns_cbranch_scc0 {l}p\ns_mov_b32 s{sBUD}, 0\n{l}e:\n"
    DEFER.append(t + f"s_barrier\ns_branch {l}b")
def weave(P, xs):
    xs = list(xs); per = -(-len(xs) // len(P))
    for p in P:
        a(p)
        for _ in range(per):
            if xs: a(xs.pop(0))
a("v_mov_b32 v254, v4")
suA()
a(f"s_cmp_lt_u32 s{sWV}, 4\ns_cbranch_scc1 L_cons")
vW, vT = 24, 56
STR = {5: 0, 3: 1, 13: 2, -3: 3, -13: 4}
def wo_setup(vT=vT):
    a(f"v_lshrrev_b32 v1, 3, v0\nv_and_b32 v2, 2, v1\nv_xor_b32 v2, v2, v0\ns_lshl_b32 s3, s{sWV}, 2\nv_xor_b32 v2, s3, v2")
    a(f"v_and_b32 v2, 7, v2\ns_lshl_b32 s3, s{sC}, 7\nv_lshl_add_u32 v2, v2, 4, s3")
    a(f"v_and_b32 v3, 3, v1\nv_mul_u32_u24 v3, 1280, v3\nv_add_u32 v2, v3, v2")
    a(f"v_lshrrev_b32 v3, 5, v0\nv_mul_u32_u24 v3, 5120, v3\nv_sub_u32 v4, 5120, v3")
    for d, i in STR.items(): a(f"v_mad_u32_u24 v{vT+i}, v{3 + (d < 0)}, {abs(d)}, v2")
def wo_quads(cp, h, g):
    c5 = cp % 5
    if h == 0: return 5 - c5 + g, 10 - c5 + g
    if g == 0: return 9 - c5, 14 - c5
    i = g - 1
    p = 3 + i if c5 <= 2 else i
    return (i if c5 <= 2 else 13 + i), (p if p < 5 - c5 else 10 + p)
def wo_piece(st, g):
    h, cp = st // 10, st % 10
    q0, q1 = wo_quads(cp, h, g or 0)
    t = f"s_lshl_b32 s3, s{sT}, 10\ns_add_u32 m0, s3, {WOB}" if st == 0 else "s_addk_i32 m0, 4096"
    o = (64*cp + 4*min(q0, q1)) * 1280
    t += f"\ns_add_u32 s3, s{sPF}, {o}" if g is None else f"\ns_mov_b32 s3, {o}"
    return t + f"\nbuffer_load_dwordx4 v{vT + STR[q1 - q0]}, {S(WO)}, s3 offen lds"
def wo_late(lo, w, vT):
    for st in range(lo, 20):
        for g in (w, w + 2):
            q0, q1 = wo_quads(st % 10, st // 10, g)
            a(f"s_mov_b32 m0, {WOB + 4096*st + 1024*g}" if (st, g) == (lo, w) else "s_addk_i32 m0, 2048")
            a(f"s_mov_b32 s3, {(64*(st % 10) + 4*min(q0, q1)) * 1280}\nbuffer_load_dwordx4 v{vT + STR[q1 - q0]}, {S(WO)}, s3 offen lds")
def wo_run(lo, hi, tag):
    for st in range(lo, min(hi, 10)): a(wo_piece(st, None))
    lo = max(lo, 10)
    if lo >= hi: return
    for g in range(1, 4):
        a(f"s_cmp_eq_u32 s{sT}, {g}\ns_cbranch_scc1 L_wo{tag}{g}")
        DEFER.append(f"L_wo{tag}{g}:\n" + "\n".join(wo_piece(st, g) for st in range(lo, hi)) + f"\ns_branch L_wo{tag}")
    for st in range(lo, hi): a(wo_piece(st, 0))
    a(f"L_wo{tag}:")
N0 = OPT["n0"]; NA = N0 + OPT["na"]; NB = NA + OPT["nb"]; N1 = NB + OPT["n1"]
assert 2 * DEP <= N0 <= N1 <= 20
vTC = 61
def touch_setup():
    a(f"s_mul_i32 s3, s{sT}, 3\nv_lshrrev_b32 v1, 2, v0\nv_add_u32 v1, s3, v1\ns_add_u32 s3, s3, 3\ns_min_u32 s3, s3, s{sNO}\nv_cmp_gt_u32 vcc, s3, v1\nv_and_b32 v2, 3, v0\nv_lshl_add_u32 v1, v1, 3, v2")
    a(f"v_mul_u32_u24 v1, 2560, v1\ns_lshl_b32 s0, s{sC}, 7\ns_add_u32 s3, s0, s{sB0}\nv_add_u32 v1, s3, v1\nv_bfrev_b32 v2, 1\nv_cndmask_b32 v{vTC}, v2, v1, vcc")
    a(f"s_mul_i32 s3, s{sT}, 3\nv_min_u32 v1, 2, v0\nv_add_u32 v1, s3, v1\nv_lshrrev_b32 v2, 1, v1\nv_mul_u32_u24 v2, {2560 - 256}, v2\nv_lshl_add_u32 v1, v1, 7, v2")
    a(f"s_mul_i32 s3, s{sGID}, 15360\ns_lshl_b32 s0, s{sC}, 8\ns_add_u32 s3, s3, s0\ns_add_u32 s3, s3, {E2}\nv_add_u32 v{vTC+2}, s3, v1")
    if OPT["mt"]:
        R = 64 * (10 - OPT["mx"]); per = -(-2 * R // 30)
        a(f"s_mul_i32 s3, s{sU}, {per}\nv_min_u32 v1, {per-1}, v0\nv_add_u32 v1, s3, v1\nv_min_u32 v1, {2*R-1}, v1\nv_cmp_le_u32 vcc, {R}, v1\nv_mul_u32_u24 v1, 3072, v1")
        a(f"s_mul_i32 s3, s{sJ}, 384\ns_add_u32 s3, s3, {64*OPT['mx']*3072}\nv_add_u32 v1, s3, v1\nv_subrev_u32 v2, {(R + 320)*3072 - 256}, v1\nv_cndmask_b32 v1, v1, v2, vcc")
        a(f"s_mul_i32 s3, s{sJ}, 60\ns_lshl_b32 s0, s{sU}, 1\ns_add_u32 s3, s3, s0\ns_and_b32 s0, s{sWV}, 1\ns_add_u32 s3, s3, s0\ns_lshl_b32 s3, s3, 12\nv_min_u32 v2, 31, v0\nv_lshl_add_u32 v2, v2, 7, s3")
        a(f"s_cmp_ge_u32 s{sWV}, 6\ns_cselect_b64 vcc, -1, 0\nv_cndmask_b32 v{vMT}, v1, v2, vcc")
vMT = 84
def mtouch(p):
    if OPT["mt"] == p: a(f"global_load_dword v{vMT}, v{vMT}, s[{sMT}:{sMT+1}]")
NT = sum(OPT[k] in (0, 1) for k in ("te", "tl", "t2")) + (OPT["mt"] in (1, 2, 5))
NT2 = sum(OPT[k] == 2 for k in ("te", "tl", "t2")) + (OPT["mt"] == 3)
def xstart(i): nextslab(); a(f"s_lshl_b32 s{sXO}, s{sSB}, 7\ns_mov_b32 s{sSL}, {S0 + SLOT*(i % 4)}")
xstart(1)
if OPT["x1"] == 0: a(f"s_cmp_eq_u32 s{sWV}, 4\ns_cbranch_scc1 L_n1"); xissue(); a("L_n1:")
suB(); suC()
stamp(0, 5)
suD(); suE(); wo_setup(); touch_setup(); pzero()
a(f"s_cmp_eq_u32 s{sWV}, 4\ns_cbranch_scc1 L_h0")
E1_, E2_ = OPT["e1"], OPT["e2"]
assert 1 <= E1_ and E1_ + 2 <= E2_ <= 4
vXA = vEV
a(f"v_mov_b32 v4, {ONES:#x}\nv_mov_b32 v5, v4\nv_lshrrev_b32 v1, 4, v0\nv_mul_u32_u24 v1, {SLOT - 128}, v1\nv_lshl_add_u32 v1, v0, 3, v1\nds_write_b64 v1, v[4:5] offset:{S0}")
a(f"s_sub_u32 s0, s{sWV}, 5\ns_mul_i32 s3, s{sGID}, 3\ns_add_u32 s3, s3, s0\ns_mul_i32 s3, s3, 2560\ns_add_u32 s{sSPL}, s3, {SP}")
a(f"s_mul_i32 s3, s{sG}, 1280\ns_add_u32 s3, s3, s{sRJ}\ns_add_u32 s{sPF}, s3, {R_FL}\nv_min_u32 v1, 9, v0\nv_lshl_add_u32 v{vEA}, v1, 7, s{sPF}\ns_lshl_b32 s{sFO}, s{sC}, 7\ns_add_u32 s{sFO}, s{sFO}, s{sPF}")
a(f"v_and_b32 v1, 15, v0\nv_lshrrev_b32 v2, 5, v0\nv_lshl_add_u32 v2, v2, 4, v1\ns_lshl_b32 s0, s0, 5\nv_add_lshl_u32 v{vSTW}, v2, s0, 4")
a(f"v_lshrrev_b32 v2, 4, v0\nv_lshrrev_b32 v3, 1, v1\nv_xor_b32 v3, v3, v2\nv_lshlrev_b32 v3, 4, v3\nv_lshl_add_u32 v3, v1, 7, v3\nv_add_u32 v{vXA}, s{sLX}, v3")
a(f"s_cmp_lt_u32 s{sB0}, 2560\ns_cselect_b32 s3, 128, 0\nv_mov_b32 v1, 0xf149f2ca\nv_cmp_gt_u32 vcc, s3, v{vSTW}\nv_cndmask_b32 v{vBIA}, 0, v1, vcc")
stamp(1, 5)
if OPT["xprio"]: a(f"s_setprio {OPT['xprio']}")
if OPT["x1"] == 2: xissue()
ldWR()
for k in range(4): a(f"v_mov_b32 v{64+k}, {ONES:#x}")
if OPT["dbg"] & 64: a(f"s_lshl_b32 s3, s{sC}, 8\ns_add_u32 s3, s3, s{sSPL}\ns_mov_b64 exec, 0xffff\nbuffer_store_dwordx4 v[64:67], v{aL16}, {S(WS)}, s3 offen sc1\ns_mov_b64 exec, -1")
a(f"s_waitcnt vmcnt({9 if OPT['dbg'] & 64 else 8}) lgkmcnt(0)")
stamp(2, 5)
def part_stats():
    PD = 96
    a(f"v_xor_b32 v1, 64, v{vXA}")
    for t in range(2):
        for ks in range(2): a(f"ds_read_b128 {V(vXD+8*t+4*ks,4)}, v{1 if ks else vXA} offset:{S0 + 2048*t}")
    a(f"s_lshl_b32 s3, s{sC}, 8\ns_add_u32 s3, s3, s{sSPL}\nv_and_b32 v2, 0xf0, v{aL16}\ns_mov_b32 s0, 0xaaaaaaaa\ns_mov_b32 s1, s0\ns_mov_b32 vcc_lo, 0xcccccccc\ns_mov_b32 vcc_hi, 0xcccccccc")
    for t in range(2):
        for ks in range(2):
            a(f"s_waitcnt lgkmcnt({3 - 2*t - ks})")
            mfma(PD + 8 * t, vXD + 8 * t + 4 * ks, vXD + 8 * t + 4 * ks, None if ks else "0")
            mfma(PD + 8 * t + 4, 64, vXD + 8 * t + 4 * ks, None if ks else "0")
    for t in range(2):
        d = PD + 8 * t
        a(f"v_cndmask_b32 v{d}, v{d}, v{d+1}, s[0:1]\nv_cndmask_b32 v{d+2}, v{d+2}, v{d+3}, s[0:1]\nv_cndmask_b32 v{vSUM+2*t+1}, v{d}, v{d+2}, vcc\nv_mov_b32 v{vSUM+2*t}, v{d+4}")
    execset(0xF0000F0000F0000F)
    a(f"buffer_store_dwordx4 {V(vSUM,4)}, v2, {S(WS)}, s3 offen sc1")
    execset(-1)
    for i in range(4): a(f"v_mov_b32 v{vXD+8+i}, 0")
def only5(tag, fn):
    a(f"s_cmp_eq_u32 s{sWV}, 5\ns_cbranch_scc0 L_o5{tag}"); fn(); a(f"L_o5{tag}:")
def evchk(tag, cmp_, ld):
    a(f"s_waitcnt lgkmcnt(0)\n{cmp_}\ns_cbranch_scc0 L_er{tag}\nL_eg{tag}:")
    DEFER.append(f"L_er{tag}:\ns_sub_u32 s{sBUD}, s{sBUD}, 1\ns_cbranch_scc1 L_ex{tag}\n{ld}\ns_waitcnt lgkmcnt(0)\n{cmp_}\ns_cbranch_scc0 L_er{tag}\ns_branch L_eg{tag}\nL_ex{tag}:\ns_mov_b32 s{sBUD}, 0\ns_branch L_eg{tag}")
FR = [71, 73, 75, 77, 83, 85, 89, 91, 93, 95]
ldroot = f"s_lshl_b32 s0, s{sJ}, 5\nv_and_b32 v1, 16, v0\nbuffer_load_dword v{vSUM+4}, v1, {S(DBG)}, s0 offen sc1"
ldflag = "\n".join(f"s_buffer_load_dword s{r}, {S(WS)}, s{sPF} offset:{128*k} glc" for k, r in enumerate(FR))
for i in range(9):
    a("s_barrier")
    stamp(3 + i, 5)
    ex = 0
    if i == E1_ + 1:
        def f():
            evchk("a", f"v_cmp_ne_u32 vcc, 1, v{vSUM+4}\ns_cmp_eq_u64 vcc, 0", ldroot + "\ns_waitcnt vmcnt(0)")
            a(f"s_getreg_b32 s0, hwreg(HW_REG_XCC_ID, 0, 4)\nv_mov_b32 v1, s0\ns_mov_b64 exec, 1\nbuffer_store_dword v1, off, {S(WS)}, s{sFO} sc1\ns_mov_b64 exec, -1")
        only5("c", f)
    if i == E2_ + 2:
        for k in range(3):
            if k == 2: a("s_mov_b32 exec_hi, 0")
            if OPT["dbg"] & 16: a(f"s_mov_b32 s{sSPL}, {OOB:#x}")
            a(f"buffer_load_dwordx4 {V(vXD+4*k,4)}, v{aL16}, {S(WS)}, s{sSPL} offen offset:{1024*k} sc1")
        a("s_mov_b32 exec_hi, -1"); ex += 3
    if i == 0: part_stats(); ex += 1
    if OPT["pf0"] & 1 and OPT["pfp"] % 10 == i + 2:
        a(f"s_mul_i32 s3, s2, 3\ns_add_u32 s3, s3, s{sWV}\ns_sub_u32 s3, s3, 5\ns_mul_i32 s3, s3, {9*128}\nv_lshlrev_b32 v1, 7, v0\ns_mov_b64 exec, 0x1ff\nbuffer_load_dword v255, v1, {S(WO)}, s3 offen\ns_mov_b64 exec, -1"); ex += 1
    if i < 8: xstart(i + 2); xissue()
    if i:
        a(f"s_cmp_eq_u32 s{sXT}, {i}\ns_cbranch_scc0 L_xc{i}\ns_mov_b32 s0, {S0 + SLOT * (i % 4)}\ns_call_b64 s[100:101], L_xcap\nL_xc{i}:")
    if i == E2_ + 1:
        def f():
            evchk("b", f"s_max_u32 s0, s{FR[0]}, s{FR[1]}\n" + "\n".join(f"s_max_u32 s0, s0, s{r}" for r in FR[2:]) + "\ns_cmp_lg_u32 s0, -1", ldflag)
            a(f"s_min_u32 s1, s{FR[0]}, s{FR[1]}\n" + "\n".join(f"s_min_u32 s1, s1, s{r}" for r in FR[2:]) + f"\ns_cmp_eq_u32 s0, s1\ns_cselect_b32 s0, {OPT['fmode']}, 0")
            a(f"v_mov_b32 v1, {MODE}\nv_mov_b32 v2, s0\nds_write_b32 v1, v2")
        only5("d", f)
    if i == E2_ + 3:
        a(f"s_waitcnt vmcnt({8 + ex})")
        for k in (4, 8):
            for e in range(4): a(f"v_add_f32 v{vXD+e}, v{vXD+e}, v{vXD+k+e}")
        a(f"v_permlane32_swap_b32 v{vXD}, v{vXD+2}\nv_permlane32_swap_b32 v{vXD+1}, v{vXD+3}\nv_add_f32 v{vXD}, v{vXD}, v{vXD+2}\nv_add_f32 v{vXD+1}, v{vXD+1}, v{vXD+3}")
        a(f"v_mov_b32 v{vXD+2}, v{vXD}\nv_mov_b32 v{vXD+3}, v{vXD+1}\ns_mov_b32 s1, 0x3acccccd\nv_mov_b32 v1, 0x3727c5ac")
        a(f"v_permlane16_swap_b32 v{vXD}, v{vXD+2}\nv_permlane16_swap_b32 v{vXD+1}, v{vXD+3}\nv_add_f32 v{vXD}, v{vXD}, v{vXD+2}\nv_add_f32 v{vXD+1}, v{vXD+1}, v{vXD+3}")
        a(f"v_mul_f32 v{vXD}, 0xbacccccd, v{vXD}\nv_fma_f32 v2, v{vXD+1}, s1, v1\nv_fma_f32 v2, -v{vXD}, v{vXD}, v2\nv_max_f32 v2, v2, v1\nv_rsq_f32 v{vXD+1}, v2\nv_mov_b32 v{vXD+3}, v{vBIA}\nv_mov_b32 v{vXD+2}, v{vXD+1}")
        a(f"ds_write_b128 v{vSTW}, {V(vXD,4)} offset:{STATS}")
    if 1 <= i <= 6 and OPT["pg"]:
        a(f"s_cmp_eq_u32 s{sWV}, 7\ns_cbranch_scc0 L_wm{i}"); warm("h", i - 1, 6); a(f"L_wm{i}:")
    if i == 0: pagebreak("c0")
    if i == 7 and OPT["wsp"]: pagebreak("h")
    if i == 8: break
    if i == E1_ + 1: a(f"s_cmp_eq_u32 s{sWV}, 5\ns_cbranch_scc1 L_w5{i}\ns_waitcnt vmcnt({4 + ex})\nL_w5{i}:"); ex += 1
    a(f"s_waitcnt vmcnt({4 + ex}) lgkmcnt(0)")
    if i == E1_ - 1: only5("a", lambda: a(ldroot))
    if i == E2_: only5("b", lambda: a(ldflag))
    if OPT["wsp"] and i >= OPT["ws0"]:
        LQ = [(cp, q) for cp in range(5) for g in range(4) for q in wo_quads(cp, 1, g)]
        part = LQ[OPT["wsp"] * (i - OPT["ws0"]):OPT["wsp"] * (i - OPT["ws0"] + 1)]
        if part:
            if i == OPT["ws0"]: a(f"s_mul_i32 s3, s{sG}, 3\ns_add_u32 s3, s3, s{sWV}\ns_sub_u32 s3, s3, 5\ns_lshr_b32 s0, s3, 2\ns_mul_i32 s0, s0, 316\ns_add_u32 s3, s3, s0\ns_mul_i32 s3, s3, 1280\ns_lshl_b32 s0, s{sC}, 7\ns_add_u32 s{sRD}, s3, s0")
            for cp, q in part:
                for o in (0, 64): a(f"s_buffer_load_dword s79, {S(WO)}, s{sRD} offset:{(64*cp + 4*q)*1280 + o}")
    if i == 2 and OPT["ppr"]:
        a(f"s_lshl_b32 s3, s{sC}, 8\ns_add_u32 s3, s3, s{sSPL}")
        for k in range(4): a(f"s_buffer_load_dword s75, {S(WS)}, s3 offset:{64*k}")
a(f"L_h8:\ns_mul_i32 s{sPF}, s{sT}, 5120")
mtouch(4)
wo_run(0, N0, "a")
mtouch(5)
ksread(); rdmode()
if OPT['hp'] == 0: hinit(72); wrprep(64)
a(f"s_waitcnt vmcnt({N0 + (OPT['mt'] >= 4)})")
stamp(2)
a("s_barrier")
stamp(3); stamp(9, 2); stamp(0, 3)
if not OPT['clr']: gsync_h(1)
def touch(p):
    if p == OPT["tl"]: a(f"buffer_load_dword v{vTC+1}, v{vTC}, {S(OUT)}, s{sLT} offen")
    if p == OPT["te"]: a(f"buffer_load_dword v{vTC+1}, v{vTC}, {S(OUT)}, 0 offen")
    if p == OPT["t2"]: a(f"buffer_load_dword v{vTC+2}, v{vTC+2}, {S(WS)}, 0 offen")
wo_run(N0, NA, "d")
touch(0)
mtouch(1)
if OPT['hp'] == 1: hinit(72); wrprep(64)
sO, sDW = 61, 65
a(f"s_and_b32 s3, s{sWV}, 1\ns_lshl_b32 s{sO}, s3, 7\ns_xor_b32 s{sO+1}, s{sO}, 128\ns_add_u32 s{sO+2}, s{sO+1}, s{sLT}\ns_add_u32 s{sO+3}, s{sO}, s{sLT}\ns_lshl_b32 s3, s3, 13\ns_sub_u32 s{sDW}, 4096, s3")
DEFER.append("L_xcap:\n" + "\n".join(capture(lambda: capt("s0", 72))) + "\ns_setpc_b64 s[100:101]")

def rdWO1(s, ct, e):
    t = ""
    if e == 0 and s in (5, 10, 15): t = {5: f"v_add_u32 v{aWO+ct}, s{sDW}, v{aWO+ct}", 10: f"v_add_u32 v{aWO+ct}, 40960, v{aWO+ct}", 15: f"v_subrev_u32 v{aWO+ct}, s{sDW}, v{aWO+ct}"}[s] + "\n"
    return t + f"ds_read_b64_tr_b16 {V(WOF + 16*(s % RING) + 4*ct + 2*e, 2)}, v{aWO+ct} offset:{8192*(s % 5) + 512*e}"
SF = 15 - OPT["sf"]
OL = [(s, w) for s in range(SF) for w in range(2 if s >= 5 else 1)] + [(s, 1) for s in range(SF, 15)] + [(s, 0) for s in range(SF, 20)]
def oreg(k): return OF + 4 * (k % (20 if not OPT["dbg"] & 2 else OPT["ou"]))
def ldO(k):
    s, w = OL[k]
    a(f"buffer_load_dwordx4 {V(oreg(k),4)}, v{aOl2 if w else aOl}, {S(OUT)}, s{sO + s // 5} offen offset:{256*(s % 5)} sc1")
def spin(tag, addr, cmp_, slp=0):
    a(f"{cmp_}\ns_cbranch_vccnz L_sp{tag}\nL_sb{tag}:")
    DEFER.append(f"L_sp{tag}:\n" + (f"s_sleep {slp}\n" if slp else "") + f"v_mov_b32 v1, {addr}\nds_read_b32 v1, v1\ns_waitcnt lgkmcnt(0)\n{cmp_}\ns_cbranch_vccnz L_sp{tag}\ns_branch L_sb{tag}")
def fold(A, B, F):
    for r in range(4): a(f"v_permlane16_swap_b32 v{A+r}, v{B+r}")
    for r in range(4): a(f"v_cndmask_b32 v{F[r]}, v{B+r}, v{A+r}, s[{sM+2*r}:{sM+2*r+1}]")
def softmax(F, P, mid=None, mid2=None):
    m, t = TM, TM + 1
    for r in range(4): a(f"v_fma_f32 v{F+r}, v{F+r}, v{KS+2*r}, v{KS+2*r+1}")
    a(f"v_max3_f32 v{m}, v{F}, v{F+1}, v{F+2}\nv_max_f32 v{m}, v{m}, v{F+3}\nv_mov_b32 v{t}, v{m}\nv_permlane32_swap_b32 v{m}, v{t}\nv_max_f32 v{m}, v{m}, v{t}\nv_mul_f32 v{m}, v{m}, v{CQ}")
    for r in range(4): a(f"v_fma_f32 v{F+r}, v{F+r}, v{CQ}, -v{m}")
    for r in range(4): a(f"v_exp_f32 v{F+r}, v{F+r}")
    if mid: mid()
    a(f"v_add_f32 v{m}, v{F}, v{F+1}\nv_add_f32 v{t}, v{F+2}, v{F+3}\nv_add_f32 v{m}, v{m}, v{t}\nv_mov_b32 v{t}, v{m}\nv_mul_f32 v{F}, v{F}, v{KS}\nv_mul_f32 v{F+1}, v{F+1}, v{KS+2}")
    a(f"v_permlane32_swap_b32 v{m}, v{t}\nv_mul_f32 v{F+2}, v{F+2}, v{KS+4}\nv_add_f32 v{m}, v{m}, v{t}\nv_rcp_f32 v{m}, v{m}\nv_mul_f32 v{F+3}, v{F+3}, v{KS+6}")
    for r in range(4): a(f"v_mul_f32 v{F+r}, v{F+r}, v{m}")
    a(f"v_cvt_pk_bf16_f32 v{F}, v{F}, v{F+1}\nv_cvt_pk_bf16_f32 v{F+1}, v{F+2}, v{F+3}")
    if mid2: mid2()
    for hh in range(2):
        a(f"s_mov_b64 exec, s[{sLO}:{sLO+1}]" if hh == 0 else "s_not_b64 exec, exec")
        for d in range(2): a(f"v_and_b32 v{P+2*hh+d}, v{vM+d}, v{F+d}\nv_bfi_b32 v{P+4+2*hh+d}, v{vM+d}, 0, v{F+d}")
    a("s_mov_b64 exec, -1")
    for d in range(4): a(f"v_permlane16_swap_b32 v{P+d}, v{P+4+d}")
def ymask():
    a(f"s_add_u32 s0, s{sC5}, 1\ns_sub_u32 s1, 5, s{sC5}\ns_min_u32 s0, s0, s1\ns_lshl_b32 s0, s0, 4\ns_sub_u32 s1, 64, s0\ns_cmp_le_u32 s{sC5}, 2\ns_cselect_b32 s1, s1, 16\ns_bfm_b64 s[100:101], s0, s1")
def attention(T):
    helper = T == "h"; doL = T != "e"; doE = T != "l"
    L.reset()
    rid = {}
    KR = ((aKx, 0), (aKy, 0), (aK4, 0), (aKe, 0), (aKe, 40))
    QR = ((aQx, 0, 0), (aQy, 0, 1), (aQ4, 0, 2), (aQe, 0, 3), (aQe, 40, 4), (aQ4 + 2, 0, 2), (aQ4 + 4, 0, 2))
    def rk(i):
        k, o = KR[i]; d = KQ + 4 * i
        L(f"ds_read_b64 {V(d,2)}, v{k} offset:{o}"); L(f"ds_read_b64 {V(d+2,2)}, v{k} offset:{o + 8*PITCH}")
    def rq(i):
        q, o, _ = QR[i]; d = QF + 4 * i
        L(f"ds_read_b64 {V(d,2)}, v{q} offset:{o}"); rid[i] = L(f"ds_read_b64 {V(d+2,2)}, v{q+1} offset:{o}")
    def lg(i):
        L.wait(rid[i]); mfma(SS + (0, 4, 0, 8, 12, 8, 12)[i], KQ + 4 * QR[i][2], QF + 4 * i, "0" if i in (0, 1, 3, 4) else None)
    vid = {}
    vc = [None]
    def vlook():
        if OPT["ord"]: a(f"v_mov_b32 v1, {VCN}"); vc[0] = L("ds_read_b32 v1, v1")
    def vreads():
        if OPT["ord"]: L.wait(vc[0]); spin("v" + T, VCN, "v_cmp_ne_u32 vcc, 4, v1")
        if helper: stamp(4, 3)
        for i, (r_, o) in enumerate(((aVe, 0), (aVe, 40), (aV1, 0), (aV2, 0))):
            if doE or i >= 2:
                L(f"ds_read_b64_tr_b16 {V(VF+4*i,2)}, v{r_} offset:{o}")
                vid[i] = L(f"ds_read_b64_tr_b16 {V(VF+4*i+2,2)}, v{r_} offset:{o + 8*PITCH}")
    def lfold(): fold(SS, SS + 4, [F01, F01 + 1, FL_ + 2, FL_ + 3])
    def lpack(): a(f"v_or_b32 v{FL_}, 0xffff, v{F01}\nv_perm_b32 v{FL_+1}, v{F01+1}, v{F01}, s{sP1}")
    cq = f"v_mul_f32 v{CQ}, {CEXP:#x}, v{CQ}"
    if helper:
        ymask(); a(cq)
        a("s_barrier")
        for i in range(5): rk(i)
        wo_run(NA, NB, "e")
        if OPT["bv"] >= 0: a("s_barrier"); vreads()
        wo_run(NB, N1, "b")
        touch(1)
        mtouch(2)
        a(f"s_setprio {OPT['aprio']}\ns_waitcnt vmcnt({NT + N1 - N0 if OPT['wc'] < 2 else NT})")
        stamp(1, 3)
        a("s_barrier")
        stamp(4); stamp(2, 3)
        if STAGE == "A": a("s_branch L_dumpA")
        rq(0); rq(1); rq(2); rq(3); rq(4); lg(0); rq(5); lg(1); rq(6); lg(2); lg(3); lg(4); lg(5); lg(6); lfold(); lpack()
    elif doL: rk(0); rq(0); rk(1); rq(1); rk(2); rq(2); ymask(); lg(0); lg(1); lg(2); ksread(L); lfold(); lpack()
    else: rk(3); rq(3); rk(4); rq(4); rk(2); rq(5); rq(6); pzero(0, 8); lg(3); lg(4); ksread(L); lg(5); lg(6)
    if doL: lst(f"buffer_store_dwordx4 {V(FL_,4)}, v{aH0s}, {S(OUT)}, s{sLT} offen{{F}}")
    stamp(5); stamp(3, 3)
    if helper: touch(3)
    if helper and OPT["wc"] == 0: wo_run(N1, 20, "c")
    hl = f"buffer_load_dwordx4 {V(HL,4)}, v{aH0l}, {S(OUT)}, s{sLT} offen sc1"
    prefill = lambda: [a(rdWO1(s_, ct, e)) for s_ in range(DEP) for ct in range(4) for e in range(2)] if helper else None
    early = lambda: [ldO(k) for k in range(OPT["ou"])] if helper else None
    late = f"buffer_store_dwordx4 {V(LT,4)}, v{aOs}, {S(OUT)}, s{sLT} offen{{F}}"
    if doE:
        fold(SS + 8, SS + 12, [FE + r for r in range(4)])
        if not helper: L.wait(L.n); a(cq)
        if OPT["vpos"] == 1 or not helper: vlook()
        def mid():
            if helper and OPT["vpos"] == 2: vlook()
            elif not helper or OPT["bv"] < 0: vreads()
            if helper and OPT["wc"] == 1: wo_run(N1, 20, "c")
            if helper and OPT["hlp"] == 0: a(hl)
        softmax(FE, PX, mid, vreads if helper and OPT["vpos"] == 2 else None)
        stamp(5, 3)
        if helper and OPT["hlp"] == 1: a(hl)
        if helper: touch(2)
        L.wait(vid[3])
        for i in range(4): mfma(DM + 4 * i, VF + 4 * i, PX + 4 * (i & 1), "0")
        for i in range(4): a(f"v_cvt_pk_bf16_f32 v{FE+i}, v{DM+2*i}, v{DM+2*i+1}")
        lst(f"buffer_store_dwordx4 {V(FE,4)}, v{aOs}, {S(OUT)}, 0 offen{{F}}")
        stamp(6); stamp(6, 3)
        if T == "e": a(f"s_lshl_b32 s0, s{sWV}, 2\ns_add_u32 s0, s0, {HRD}\nv_mov_b32 v1, s0\nds_read_b32 v1, v1")
        for i in range(4): a(f"v_cvt_pk_bf16_f32 v{LT+i}, v{DM+8+2*i}, v{DM+8+2*i+1}")
        if helper: mtouch(3)
        prefill()
    else:
        vlook(); pzero(8, 16); vreads(); L.wait(L.n); a(cq); a(hl)
        if OPT["wc"] == 2:
            a(f"s_cmp_eq_u32 s{sWV}, 3\ns_cbranch_scc1 L_wl3"); wo_late(N1, 0, 249); a("L_wlb:")
            DEFER.append("L_wl3:\n" + "\n".join(capture(lambda: wo_late(N1, 1, 249))) + "\ns_branch L_wlb")
    if T == "e":
        a("s_waitcnt lgkmcnt(0)"); spin("r", "s0", "v_cmp_eq_u32 vcc, 0, v1", 1)
        execset(0xffff); lst(late); execset(-1)
        stamp(7); stamp(10, 3)
        return
    stamp(7, 3)
    a(f"s_waitcnt vmcnt({1 + NT2 if doE else 2 * (20 - N1) if OPT['wc'] == 2 else 0})\nv_cmp_eq_u32 vcc, -1, v{HL}\ns_cbranch_vccnz L_h0r{T}\nL_h0g{T}:")
    stamp(8, 3)
    DEFER.append(f"L_h0r{T}:\ns_sub_u32 s{sBUD}, s{sBUD}, 1\ns_cbranch_scc1 L_h0x{T}\n{hl}\ns_waitcnt vmcnt(0)\n"
                 f"v_cmp_eq_u32 vcc, -1, v{HL}\ns_cbranch_vccnz L_h0r{T}\ns_branch L_h0g{T}\nL_h0x{T}:\ns_mov_b32 s{sBUD}, 0\ns_branch L_h0g{T}")
    wfl = f"v_mov_b32 v1, {WFL}\nv_mov_b32 v4, 1\ns_mov_b64 exec, 1\nds_add_u32 v1, v4\ns_mov_b64 exec, -1"
    if helper:
        if OPT["wc"] < 2: a(wfl)
    else: a(f"s_lshl_b32 s0, s{sWV}, 2\ns_add_u32 s0, s0, {HRD - 8}\nv_mov_b32 v1, s0\nds_write_b32 v1, v1")
    a(f"v_perm_b32 v{HL}, v{HL}, v{HL+1}, s{sP2}")
    for r in (1, 2, 3, 0): a(f"v_add_f32 v{FL_+r}, v{F01+r if r < 2 else FL_+r}, v{HL+r}")
    if OPT["opos"] == 0: early()
    softmax(FL_, PX + 8, early if OPT["opos"] == 1 else None)
    if OPT["opos"] == 2: early()
    stamp(9, 3)
    mfma(DM, VF + 8, PX + 8, "0"); mfma(DM + 4, VF + 12, PX + 8, "0"); mfma(DM + 8, VF + 12, PX + 12, "0")
    if helper and OPT["wc"] < 2: a("ds_read_b32 v1, v1")
    a("s_mov_b32 exec_lo, 0xffff0000")
    for i in range(4): a(f"v_cvt_pk_bf16_f32 v{LT+i}, v{DM+2*i}, v{DM+2*i+1}")
    a("s_mov_b64 exec, s[100:101]")
    for i in range(2): a(f"v_cvt_pk_bf16_f32 v{LT+2+i}, v{DM+8+2*i}, v{DM+8+2*i+1}")
    execset(-1 if doE else 0xffffffffffff0000)
    lst(late)
    stamp(7); stamp(10, 3)
    if not helper and OPT["wc"] == 2: a("s_mov_b64 exec, -1\ns_waitcnt vmcnt(1)\n" + wfl + "\ns_waitcnt lgkmcnt(0)")
attention("h")
if STAGE == "B": a("s_waitcnt vmcnt(0)"); finish()
pagebreak("h")
SH = 200
U = OPT["ou"]; nO = [U]
def ldOn():
    if nO[0] < len(OL):
        if not OPT["dbg"] & 2: ldO(nO[0])
        nO[0] += 1
L.reset()
stamp(8); stamp(0, 4)
idx = {o: k for k, o in enumerate(OL)}
GR = [[0, 1], [2, 3], [4]] + [[k, k + 1] for k in range(5, 29, 2)] + [[29]]
gof = {k: G for G, g in enumerate(GR) for k in g}
issued = {}
def cmp_(G):
    r = [oreg(k) for k in GR[G]]
    if len(r) == 2: a(f"v_max_u16 v2, v{r[0]}, v{r[1]}\nv_cmp_eq_u16 vcc, -1, v2")
    else: a(f"v_cmp_eq_u16 vcc, -1, v{r[0]}")
def chk_a(G):
    last = GR[G][-1] + 1
    assert nO[0] >= last
    a(f"s_waitcnt vmcnt({nO[0] - last + (last <= U)})"); cmp_(G)
def chk_b(G):
    issued[G] = nO[0]
    a(f"s_cbranch_vccnz L_st{G}\nL_go{G}:")
a(f"s_lshl_b32 s0, s{sT}, 12\ns_add_u32 s0, s0, {EX}\nv_add_u32 v4, s0, v{aL16}\ns_and_b32 s0, s{sT}, 2\ns_lshl_b32 s0, s0, 1\ns_add_u32 s0, s0, {XFL}\nv_mov_b32 v3, s0\nv_mov_b32 v5, 1\ns_waitcnt lgkmcnt(0)")
spin("w", WFL, "v_cmp_ne_u32 vcc, 4, v1")
RQ = [(s, ct, e) for s in range(DEP, 20) for ct in range(4) for e in range(2)]
wid = {(s, ct): 0 for s in range(DEP) for ct in range(4)}
left = {(s, ct): 2 if 5 <= s < 15 else 1 for s in range(20) for ct in range(4)}
def rdn(n):
    for _ in range(n):
        if not RQ: return
        s, ct, e = RQ[0]
        if s >= RING and left[s - RING, ct]: return
        RQ.pop(0); wid[s, ct] = L(rdWO1(s, ct, e))
MS = []
k = 0
while k < 30:
    if k + 1 < 30 and OL[k][0] == OL[k+1][0]: MS += [(kk, ct) for ct in range(4) for kk in (k, k + 1)]; k += 2
    else: MS += [(k, ct) for ct in range(4)]; k += 1
firstm = {}
for m, (k, ct) in enumerate(MS): firstm.setdefault(gof[k], m)
ca = {m - 2: G for G, m in firstm.items() if G}; cb = {m - 1: G for G, m in firstm.items() if G}
lasts = max(m for m, (k, ct) in enumerate(MS) if OL[k][1])
wr = {lasts + 2 + q + (q == 3) * 2: q for q in range(4)}
chk_a(0); chk_b(0)
for m, (k, ct) in enumerate(MS):
    s, w = OL[k]
    if m in ca: chk_a(ca[m])
    if m in cb: chk_b(cb[m])
    while RQ and RQ[0][:2] <= (s, ct): n = len(RQ); rdn(1); assert len(RQ) < n
    if ct == 0 and (not RQ or RQ[0][0] > s) and L.n - wid[s, 3] >= 6: L.wait(wid[s, 3])
    L.wait(wid[s, ct])
    mfma((SH if w else H) + 4 * ct, WOF + 16 * (s % RING) + 4 * ct, oreg(k), "0" if w and s == 5 else None)
    left[s, ct] -= 1
    if (m % 4 == 0 or (m < 20 and m % 4 == 1 and m // 4 >= (3, 0)[OPT["o2"]])) and nO[0] < len(OL): ldOn(); rdn(1)
    elif m in wr: L(f"ds_write_b128 v4, {V(SH + 4*wr[m], 4)} offset:{1024*wr[m]}")
    elif m == lasts + 8: a("s_mov_b64 exec, 1"); L("ds_add_u32 v3, v5"); a("s_mov_b64 exec, -1")
    else: rdn(1 if m + 1 in ca or m + 1 in cb or m in cb else 2)
    if m == 3: stamp(9); stamp(11, 3)
    if m == 59: stamp(12, 3)
    if m % 12 == 11: stamp(1 + m // 12, 4)
assert nO[0] == len(OL)
for G in range(len(GR)):
    t = f"L_st{G}:\ns_sub_u32 s{sBUD}, s{sBUD}, 1\ns_cbranch_scc1 L_sx{G}\n"
    def re():
        for G2 in range(G, min(G + OPT["rsp"], len(GR))):
            for k in GR[G2]:
                if k < issued[G]: ldO(k)
        a("s_waitcnt vmcnt(0)"); cmp_(G)
    t += "\n".join(capture(re))
    t += f"\ns_cbranch_vccnz L_st{G}\ns_branch L_go{G}\nL_sx{G}:\ns_mov_b32 s{sBUD}, 0\ns_branch L_go{G}"
    DEFER.append(t)
a("L_tail:")
stamp(10)
HB, DS1, DS2, E2D, T0, RS = 24, 32, 36, 40, 52, 2
EV1 = OPT['e1']
for i in range(8): a(f"v_cvt_pk_bf16_f32 v{HB+i}, v{H+2*i}, v{H+2*i+1}")
for k in range(2):
    mfma(DS2, HB + 4 * k, HB + 4 * k, "0" if k == 0 else None)
    mfma(DS1, WRF + 4 * k, HB + 4 * k, "0" if k == 0 else None)
a("s_mov_b32 s0, 0x22222222\ns_mov_b32 s1, s0\ns_mov_b32 s44, 0x44444444\ns_mov_b32 s45, s44\ns_mov_b32 vcc_lo, 0x88888888\ns_mov_b32 vcc_hi, 0x88888888")
a(f"s_lshl_b32 s3, s{sC}, 8\ns_add_u32 s3, s3, s{sE2L}\nv_and_b32 v1, 0xf0, v{aL16}")
a(f"v_cndmask_b32 v{DS2}, v{DS2}, v{DS2+1}, s[0:1]\nv_cndmask_b32 v{DS2+2}, v{DS2+2}, v{DS2+3}, vcc\ns_or_b64 vcc, vcc, s[44:45]")
a(f"v_cndmask_b32 v{DS1+2}, v{DS2}, v{DS2+2}, vcc\nv_mov_b32 v{DS1+3}, v{WSP+1}")
execset(0xF0000F0000F0000F)
lst(f"buffer_store_dwordx4 {V(DS1,4)}, v1, {S(WS)}, s3 offen{{F}}")
execset(-1)
for i in range(4): a(f"v_mov_b32 v{E2D+8+i}, 0")
a(f"v_mov_b32 v4, 1.0\ns_mov_b32 s0, 0xbacccccd\ns_mov_b32 s1, 0x3acccccd\nv_mov_b32 v5, 0x3727c5ac\ns_mov_b32 s44, 0xfffff800\nv_mov_b32 v1, {KMAX}")
a(f"v_cmp_le_i32 s[46:47], 0, v{aOUT}")
vL, vB, vK = 68, 69, 70
a(f"s_mul_i32 s48, s{sG}, 1280\ns_lshl_b32 s3, s{sC}, 7\ns_add_u32 s48, s48, s3\ns_lshl_b32 s49, s48, 1\ns_add_u32 s48, s48, s{sRJ}\ns_add_u32 s49, s49, s{sRJ}\ns_add_u32 s49, s49, {R_BASE}")
a(f"s_lshl_b32 s3, s{sG}, 7\ns_add_u32 s3, s3, s{sRJ}\ns_add_u32 s3, s3, {R_KEY}\ns_and_b32 s45, s{sC}, {OPT['kc']}\ns_lshl_b32 s45, s45, 3\ns_add_u32 s45, s45, s{sWV}\nv_mul_u32_u24 v{vK}, 384, v0")
a(f"v_and_b32 v{vB}, 48, v0\nv_lshlrev_b32 v{vL}, 1, v{vB}")
a("L_e2:")
a(f"buffer_load_dwordx4 {V(E2D,4)}, v{aL16}, {S(WS)}, s{sE2L} offen sc1\nbuffer_load_dwordx4 {V(E2D+4,4)}, v{aL16}, {S(WS)}, s{sE2L} offen offset:1024 sc1")
a(f"s_mov_b32 exec_hi, 0\nbuffer_load_dwordx4 {V(E2D+8,4)}, v{aL16}, {S(WS)}, s{sE2L} offen offset:2048 sc1\ns_mov_b32 exec_hi, -1\ns_sub_u32 s{sBUD}, s{sBUD}, 1")
a("s_waitcnt vmcnt(1)")
for e in (0, 2): a(f"v_pk_add_f32 {V(E2D+e,2)}, {V(E2D+e,2)}, {V(E2D+4+e,2)}")
a("s_waitcnt vmcnt(0)")
for e in (0, 2): a(f"v_pk_add_f32 {V(E2D+e,2)}, {V(E2D+e,2)}, {V(E2D+8+e,2)}")
a(f"v_cmp_u_f32 vcc, v{E2D}, v{E2D}\ns_cbranch_scc1 L_e2go\ns_cbranch_vccnz L_e2\nL_e2go:")
stamp(11); stamp(11, 4)
for i in (0, 2, 3, 1): a(f"v_mfma_f32_16x16x4_f32 {V(T0+4*i,4)}, v4, v{E2D+i}, 0")
a(f"v_mul_f32 v6, s0, v{T0}\nv_fma_f32 v7, v{T0+8}, s1, v5\nv_fma_f32 v7, -v6, v6, v7\nv_max_f32 v7, v7, v5\nv_rsq_f32 v{RS}, v7")
a(f"v_fma_f32 v7, v6, v{T0+12}, v{T0+4}\nv_mul_f32 v7, v7, v{RS}\nv_mul_f32 v{RS+1}, v6, v{RS}")
a(f"v_ashrrev_i32 v6, 31, v7\nv_or_b32 v6, 0x80000000, v6\nv_xor_b32 v7, v7, v6\nv_and_or_b32 v7, v7, s44, v{vRK}\nv_cndmask_b32 v7, 0, v7, s[46:47]")
LN, LNB, OB = 72, 88, 96
lnops = [f"v_pk_fma_f32 {V(LN+2*i,2)}, {V(H+2*i,2)}, {V(RS,2)}, {V(RS,2)} op_sel:[0,0,1] op_sel_hi:[1,0,1]" for i in range(8)]
for k in (8, 4, 2, 1)[:OPT["dpn"]]:
    a(lnops.pop(0)); a(lnops.pop(0))
    a(f"v_max_u32_dpp v6, v{7 if k == 8 else 6}, v{7 if k == 8 else 6} row_ror:{k} {DPPM}")
a(f"s_mov_b64 exec, {(1 << (16 >> OPT['dpn'])) - 1}\nds_max_u32 v1, v{6 if OPT['dpn'] else 7}\ns_mov_b64 exec, -1")
for o in lnops: a(o)
for i in range(4): a(f"v_cvt_pk_bf16_f32 v{LNB+i}, v{LN+2*i}, v{LN+2*i+1}")
a("s_waitcnt lgkmcnt(0)\ns_barrier\nds_read_b32 v1, v1")
for i in range(4, 8): a(f"v_cvt_pk_bf16_f32 v{LNB+i}, v{LN+2*i}, v{LN+2*i+1}")
for i in range(8): a(f"v_pk_add_f32 {V(LN+2*i,2)}, {V(LN+2*i,2)}, {V(H+2*i,2)}")
a(f"s_cmp_eq_u32 s45, 4\ns_waitcnt lgkmcnt(0)\nv_cmp_eq_u32 s[46:47], v1, v7\ns_cbranch_scc0 L_nk\ns_mov_b64 exec, 0xffff\nbuffer_store_dword v1, v{vK}, {S(WS)}, s3 offen sc1\nL_nk:")
a("s_and_b64 exec, s[46:47], -1\ns_cbranch_scc0 L_nc")
a(f"buffer_store_dwordx4 {V(LNB,4)}, v{vL}, {S(WS)}, s48 offen sc1\nbuffer_store_dwordx4 {V(LNB+4,4)}, v{vL}, {S(WS)}, s48 offen offset:16 sc1")
a("L_nc:\ns_mov_b64 exec, -1")
stamp(12); stamp(12, 4)
for i in range(8): a(f"v_cvt_pk_bf16_f32 v{OB+i}, v{LN+2*i}, v{LN+2*i+1}")
for hh in range(2):
    for d in range(2): a(f"v_permlane16_swap_b32 v{OB+4*hh+d}, v{OB+4*hh+2+d}")
osc = " " + OPT["osc"].replace("_", " ").replace("plain", "")
a("s_not_b64 exec, s[46:47]")
for hh in range(2): a(f"buffer_store_dwordx4 {V(OB+4*hh,4)}, v{aOUT}, {S(OUT)}, 0 offen offset:{64*hh}{osc}")
a("s_and_b64 exec, s[46:47], -1\ns_cbranch_scc0 L_fin")
for hh in range(2): a(f"buffer_store_dwordx4 {V(OB+4*hh,4)}, v{aOUT}, {S(OUT)}, 0 offen offset:{64*hh} sc1")
a("s_waitcnt vmcnt(0)")
for ct in range(4): a(f"buffer_store_dwordx4 {V(LN+4*ct,4)}, v{vB}, {S(WS)}, s49 offen offset:{64*ct} sc1")
a("L_fin:")
finish()
pagebreak(None, False)
deferred("h")

pad("c0")
a("L_h0:")
if OPT["prio"]: a("s_setprio 2")
a(f"v_lshrrev_b32 v1, 3, v0\nv_and_b32 v2, 2, v1\nv_xor_b32 v2, v2, v0\nv_and_b32 v2, 7, v2\ns_lshl_b32 s3, s{sC}, 7\nv_lshl_add_u32 v2, v2, 4, s3")
a(f"v_mul_u32_u24 v3, 3840, v1\nv_add_u32 v{vW}, v3, v2\nv_xor_b32 v{vW+3}, 64, v{vW}\nv_add_u32 v{vW+3}, {8*3840}, v{vW+3}\nv_mov_b32 v{vEA}, 0")
for p in range(2):
    for s_ in (1, 2): a(f"v_add_u32 v{vW+3*p+s_}, {256*s_}, v{vW+3*p}")
def wpieces():
    P = []
    for pp in range(8):
        for s_ in range(3):
            t = f"buffer_load_dwordx4 v{vW+3*(pp&1)+s_}, {S(W)}, s{sXO} offen offset:{1024*s_} lds"
            if s_ == 2 and pp < 7: t += "\ns_addk_i32 m0, 3072"
            if s_ == 2 and pp & 1 and pp < 7: t += f"\ns_add_u32 s{sXO}, s{sXO}, 61440"
            P.append(t)
    return P
stamp(1, 5)
ldWR()
a("s_waitcnt vmcnt(4)")
stamp(2, 5)
a("s_barrier")
a(f"s_mov_b32 s{sI}, 1\ns_mov_b32 s{sRD}, {S0 + SLOT}\nL_wl:")
nextslab(); advslot(sSL); a(f"s_mul_i32 s{sXO}, s{sSB}, 245760\ns_add_u32 m0, s{sSL}, 12288")
for p in wpieces(): a(p)
a(f"s_mov_b32 s0, s{sRD}\ns_mov_b32 s{sRD}, s{sSL}\ns_cmp_eq_u32 s{sXT}, s{sI}\ns_waitcnt vmcnt(24) lgkmcnt(0)\ns_barrier\ns_cbranch_scc0 L_wc\ns_call_b64 s[100:101], L_xcap\nL_wc:")
a(f"s_add_u32 s{sI}, s{sI}, 1\ns_cmp_lt_u32 s{sI}, 9\ns_cbranch_scc1 L_wl")
a("s_branch L_h8")

ACC, XF, WF, ST, CS = 8, 80, 152, 180, 192
CLX = len(a.lines)
pagebreak(None, False)
a("L_cons:")
def clears(fl):
    a("v_mov_b32 v4, -1\nv_mov_b32 v5, -1\nv_mov_b32 v6, -1\nv_mov_b32 v7, -1")
    a(f"v_lshrrev_b32 v1, 3, v0\nv_mul_u32_u24 v1, 2560, v1\nv_and_b32 v2, 0x70, v{aL16}\ns_lshl_b32 s3, s{sC}, 7\ns_add_u32 s3, s3, s{sB0}\nv_add3_u32 v1, v1, v2, s3")
    a(f"s_mul_i32 s0, s{sT}, 20480\ns_add_u32 s1, s0, 81920\ns_add_u32 s3, s{sT}, 8\ns_cmp_lt_u32 s3, s{sNO}\ns_cselect_b32 s3, s1, {OOB:#x}\ns_add_u32 s3, s3, 81920")
    st = "buffer_store_dword v4" if OPT["cdw"] else "buffer_store_dwordx4 v[4:7]"
    if OPT["dbg"] & 8: a("v_bfrev_b32 v1, 1")
    for r in (0, 1, 3): a(f"{st}, v1, {S(OUT)}, s{r} offen{fl}")
    a(f"v_lshrrev_b32 v1, 4, v0\nv_mul_u32_u24 v1, {2560 - 256}, v1\nv_add_u32 v1, v1, v{aL16}")
    a(f"s_mul_i32 s1, s{sGID}, 15360\ns_lshl_b32 s3, s{sC}, 8\ns_add_u32 s1, s1, s3\ns_and_b32 s3, s{sT}, 1\ns_mul_i32 s3, s3, 7680\ns_add_u32 s1, s1, s3\ns_add_u32 s1, s1, {E2}")
    a(f"s_cmp_lt_u32 s{sT}, 2\ns_cselect_b32 s1, s1, {OOB:#x}\ns_mov_b32 exec_hi, 0xffff\n{st}, v1, {S(WS)}, s1 offen{fl}\ns_mov_b64 exec, -1")
    return 4
def pf0(p):
    if OPT["pf0"] & 1 and p == OPT["pfp"] % 10:
        a(f"s_cmp_eq_u32 s{sWV}, 0\ns_cbranch_scc0 L_pa\ns_mul_i32 s3, s2, {27*128}\nv_lshlrev_b32 v1, 7, v0\ns_mov_b64 exec, {(1 << 27) - 1:#x}\nbuffer_load_dword v255, v1, {S(WO)}, s3 offen\ns_mov_b64 exec, -1\nL_pa:")
    if OPT["pf0"] & 2 and p == OPT["pfp"] // 10:
        a(f"s_cmp_eq_u32 s{sWV}, 1\ns_cbranch_scc0 L_pb\ns_lshl_b32 s3, s{sC}, 2\ns_add_u32 s3, s3, s{sJ}\ns_sub_u32 s0, s3, 40\ns_cselect_b32 s3, s3, s0\ns_mul_i32 s3, s3, {16*3840}")
        a(f"s_mul_i32 s0, s{sG}, 1280\ns_add_u32 s3, s3, s0\ns_lshl_b32 s0, s{sC}, 7\ns_add_u32 s3, s3, s0\nv_mul_u32_u24 v1, 3840, v0\ns_mov_b64 exec, 0xffff\nbuffer_load_dword v255, v1, {S(W)}, s3 offen\ns_mov_b64 exec, -1\nL_pb:")
pf0(0)
if OPT["cpos"] == 2: ncl = clears(" sc1" if OPT["clr"] else "")
def w1():
    a(f"s_cmp_eq_u32 s{sSB}, 9\ns_cselect_b32 s3, {-10*245760}, 0\ns_add_u32 s3, s3, 245760\nv_add_u32 v254, s3, v254\ns_mul_i32 s3, s{sT}, 3072\ns_add_u32 m0, s3, {S0 + SLOT + 12288}\ns_mov_b32 s0, {32*3840}")
    for h in range(2):
        for k in range(3):
            a(f"buffer_load_dwordx4 v254, {S(W)}, {'s0' if h else 0} offen offset:{1280*k} lds")
            if (h, k) != (1, 2): a(f"s_addk_i32 m0, {-256 if k < 2 else 12288 + 512}")
suB(); suC()
if OPT["w1"] == 0: w1()
if OPT["wc"] == 2: wo_setup(249)
suD(0); suE(0)
a(f"s_lshl_b32 s3, s{sT}, 5\nv_xor_b32 v3, s3, v3\nv_mul_u32_u24 v4, 3072, v2\nv_add_u32 v3, v3, v4\nv_add_u32 v{vAW}, {S0 + 12288}, v3\ns_mov_b32 s{sI}, 0")
stamp(0, 5)
if OPT["cpos"] == 0: ncl = clears(" sc1" if OPT["clr"] else "")
stamp(1, 5)
a(f"v_mov_b32 v3, 0\nv_lshlrev_b32 v2, 2, v0\ns_mov_b32 exec_hi, 0")
a(f"ds_write_b32 v2, v3 offset:{MODE}\nds_write_b32 v2, v3 offset:{MODE + 8*PITCH}\ns_mov_b64 exec, -1")
a("v_and_b32 v1, 15, v0\nv_lshrrev_b32 v2, 4, v0")
a(f"v_lshrrev_b32 v3, 1, v1\nv_xor_b32 v3, v3, v2\nv_lshlrev_b32 v3, 4, v3\nv_lshl_add_u32 v3, v1, 7, v3\nv_add_u32 v{vAX0}, {S0}, v3\nv_xor_b32 v{vAX1}, 64, v{vAX0}")
a(f"v_mul_u32_u24 v3, {PITCH}, v1\nv_lshl_add_u32 v3, v2, 3, v3\ns_lshl_b32 s3, s{sT}, 5\ns_add_u32 s3, s3, {QB}\nv_add_u32 v{vSW}, s3, v3")
a(f"v_lshlrev_b32 v{vSTR}, 4, v1")
assert STATS == 0
if OPT["pg"]:
    for k in range(4): a(f"s_cmp_eq_u32 s{sWV}, {k}\ns_cbranch_scc0 L_cw{k}"); warm("c0", k, 4); a(f"L_cw{k}:")
pf0(1)
if OPT["w1"] == 1: w1()
if OPT["cpos"] == 1: ncl = clears(" sc1" if OPT["clr"] else "")
assert OPT["cpos"] == 1
a(f"s_cmp_lt_u32 s{sWV}, 2\ns_cselect_b32 s{sXT}, s{sXT}, 99")
a(f"s_mov_b32 s{sRD}, {S0}\ns_min_u32 s{sEV}, s{sXT}, {E1_}\ns_waitcnt vmcnt({ncl + 6}) lgkmcnt(0)")
def rdW(d, s_, ks):
    L(f"ds_read_b64_tr_b16 {V(d,2)}, v{vAW} offset:{12288*ks + 1024*s_}")
    return L(f"ds_read_b64_tr_b16 {V(d+2,2)}, v{vAW} offset:{12288*ks + 1024*s_ + 512}")
def rdX(d, t, ks): return L(f"ds_read_b128 {V(d+4*t,4)}, v{vAX0+ks} offset:{2048*t}")
def acc(s_, t): return ACC + 4 * (6 * s_ + t)
stamp(2); stamp(2, 5)
SEG = (1, 0, 2) if OPT['ord'] else (1, 2, 0)
PRE = OPT["pre"]
def rdlist(ph):
    o = []
    def w(s_):
        d = WV2 if (ph, s_) == (1, 1) else WF + 12 * ph + 4 * s_
        for e in range(2): o.append((("w", ph, s_), f"ds_read_b64_tr_b16 {V(WF+12*ph+4*s_+2*e,2)}, v{vAW} offset:{12288*ph + 1024*s_ + 512*e}"))
    w(SEG[0])
    for t in range(6): o.append((("x", ph, t), f"ds_read_b128 {V(XF+24*ph+4*t,4)}, v{vAX0+ph} offset:{2048*t}"))
    w(SEG[1]); w(SEG[2])
    return o
WV2 = WF + 24
def step(first):
    a("s_barrier")
    stampi(0)
    L.reset(); ids = {}
    M = [(s_, t) for s_ in SEG for t in range(6)]
    seq = ([] if first else [(1, "o") + m for m in M[PRE:]]) + [(0, "n") + m for m in M] + [(1, "n") + m for m in M[:PRE]]
    no = 0 if first else 18 - PRE
    pend = rdlist(0); p1 = rdlist(1)
    def rd(n=1):
        for _ in range(n):
            if pend: k, tx = pend.pop(0); ids[k] = L(tx)
    rd(12 if first else 2)
    fill = [f"s_add_u32 s3, s{sRD}, {SLOT}\ns_cmp_eq_u32 s3, {S0 + 4*SLOT}", f"s_cselect_b32 s3, {S0}, s3\ns_sub_u32 s{sDL}, s3, s{sRD}",
            f"s_mov_b32 s{sRD}, s3\nv_add_u32 v{vAX0}, s{sDL}, v{vAX0}", f"v_add_u32 v{vAW}, s{sDL}, v{vAW}\nv_add_u32 v{vAX1}, s{sDL}, v{vAX1}"]
    if not first: fill.append(f"s_cmp_eq_u32 s{sI}, s{sEV}\ns_cbranch_scc1 L_ev\nL_evb:")
    fill.append("STAMP"); fill.append(f"s_add_u32 s{sI}, s{sI}, 1\ns_cmp_lt_u32 s{sI}, 9"); fill.append(f"s_waitcnt vmcnt({ncl}) lgkmcnt(0)" if first else "s_waitcnt lgkmcnt(0)")
    for n, (ph, kd, s_, t) in enumerate(seq):
        if n == no: pend += p1
        if kd == "n":
            need = max(ids["x", ph, t], ids["w", ph, s_])
            if s_ == SEG[0] and t == 0 and L.n - ids.get(("x", ph, 5), L.n) >= 4: need = ids["x", ph, 5]
            L.wait(need)
        mfma(acc(s_, t), WF + 12 * ph + 4 * s_, XF + 24 * ph + 4 * t, "0" if first and ph == 0 else None)
        if pend: rd()
        elif n >= no and fill and (len(fill) > 1 or n >= len(seq) - 2):
            f = fill.pop(0)
            if f == "STAMP": stampi(1)
            else: a(f)
    for f in fill: stampi(1) if f == "STAMP" else a(f)
step(1)
CL0 = len(a.lines)
pagebreak("c0")
a("L_cloop:")
step(0)
a("s_cbranch_scc1 L_cloop")
L.reset(); ids = {}
def wreg(ks, s_): return WV2 if (ks, s_) == (1, 1) else WF + 12 * ks + 4 * s_
later = []
def lw(ks, s_):
    for e in range(2): later.append((("w", ks, s_), f"ds_read_b64_tr_b16 {V(wreg(ks,s_)+2*e,2)}, v{vAW} offset:{12288*ks + 1024*s_ + 512*e}"))
def lx(ks):
    for t in range(6): later.append((("x", ks, t), f"ds_read_b128 {V(XF+48*ks+4*t,4)}, v{vAX0+ks} offset:{2048*t}"))
lw(0, 1); lx(0); lw(1, 1); lx(1); lw(0, SEG[1]); lw(0, SEG[2])
def rd_later(n=1):
    for _ in range(n):
        if later: k, tx = later.pop(0); ids[k] = L(tx)
def old(s_, t): mfma(acc(s_, t), WF + 12 + 4 * s_, XF + 24 + 4 * t)
def new(s_, ks, t):
    L.wait(max(ids["w", ks, s_], ids["x", ks, t])); mfma(acc(s_, t), wreg(ks, s_), XF + 48 * ks + 4 * t)
def mlist(s_): return [(s_, "o", t) for t in range(6)] + [(s_, ks, t) for ks in range(2) for t in range(6)]
def mm(q):
    s_, k, t = q.pop(0)
    if k != "o" and ("w", k, s_) not in ids: rd_later(9)
    old(s_, t) if k == "o" else new(s_, k, t)
    if k == "o" and t == 5 and s_ != 1: lw(1, s_)
def fixup(s_, q, per):
    for r in range(4):
        a(f"v_mov_b32_dpp v{CS+r}, v{acc(s_,0)+r} row_newbcast:0 {DPPM}")
    wr = None
    for t in range(6):
        A = acc(s_, t); st = V(ST + 2 * t, 2)
        if per or not OPT["pk"]:
            ops = [f"v_fmac_f32 v{A+h}, v{CS+h}, v{ST+2*t}" for h in range(4)]
        else:
            ops = [f"v_pk_fma_f32 {V(A+h,2)}, {V(CS+h,2)}, {st}, {V(A+h,2)} op_sel_hi:[1,0,1]" for h in (0, 2)]
        ops += [f"v_cvt_pk_bf16_f32 v{A}, v{A}, v{A+1}", f"v_cvt_pk_bf16_f32 v{A+1}, v{A+2}, v{A+3}"]
        for i, o in enumerate(ops):
            if q and ((per >= 2 and i == 3) or (per >= 3 and i == 0)): mm(q)
            a(o)
        if q and per >= 1: mm(q)
        if (s_, t) in ((SEG[1], OPT["bk"]), (SEG[2], OPT["bv"])): L.wait(L.n - t); a("s_barrier")
        L(f"ds_write_b64 v{vSW}, {V(A,2)} offset:{TSTR*s_ + 16*PITCH*t}")
km, qm, vm = mlist(1), mlist(SEG[1]), mlist(SEG[2])
a(f"v_mov_b32 v1, {MODE}")
sr = ["ds_read_b32 v1, v1"] + [f"ds_read2_b64 {V(ST+2*t,4)}, v{vSTR} offset0:{32*t} offset1:{32*t + 32}" for t in range(0, 6, 2)]
for i in range(PRE):
    s_, _, t = (km if i < 6 else qm if i < 12 else vm).pop(0)
    if t == 5 and s_ != 1: lw(1, s_)
for o in sr: a(o)
a(f"s_waitcnt lgkmcnt(0)\nv_readfirstlane_b32 s{sMODE}, v1\ns_barrier")
stamp(3); stamp(9, 2); stamp(0, 3)
if not OPT["clr"]: a(f"s_cmp_eq_u32 s{sMODE}, 1\ns_cbranch_scc0 L_gs\nL_gsb:")
rd_later(2)
n = 0
for q in (km, qm, vm):
    while q[0][1] == "o" and (n < 6 or q is km): mm(q); rd_later(); n += 1
rd_later(2)
while km: mm(km); rd_later()
mm(qm); rd_later(9)
assert not later
fixup(1, qm, -(-len(qm) // 6))
while qm: mm(qm)
mm(vm)
fixup(SEG[1], vm, -(-len(vm) // 6) if not OPT["ord"] else OPT["vq"])
if not OPT["ord"]:
    while vm: mm(vm)
    fixup(0, [], 0)
else:
    for _ in range(2):
        if vm: mm(vm)
    a(f"s_setprio {OPT['vprio']}")
stamp(1, 3)
a("s_waitcnt lgkmcnt(0)\ns_barrier")
stamp(4); stamp(2, 3)
if OPT["ord"]:
    L.done = L.n
    a(f"v_mov_b32 v1, {VCN}\nv_mov_b32 v2, 1")
    while vm: mm(vm)
    fixup(2, [], 0)
    a("s_mov_b64 exec, 1\nds_add_u32 v1, v2\ns_mov_b64 exec, -1\ns_setprio 0")
    stamp(4, 3)
if STAGE == "A":
    a("L_dumpA:")
    a(f"s_lshl_b32 s3, s{sWV}, 10\nv_add_u32 v1, s3, v{aL16}\ns_mul_i32 s3, s2, 49152\ns_add_u32 s3, s3, {DUMP}")
    for i in range(6):
        a(f"ds_read_b128 v[16:19], v1 offset:{8192*i}\ns_waitcnt lgkmcnt(0)\nbuffer_store_dwordx4 v[16:19], v1, {S(WS)}, s3 offen\ns_waitcnt vmcnt(0)\ns_add_u32 s3, s3, 8192")
    finish()
a(f"s_cmp_lt_u32 s{sWV}, 2\ns_cbranch_scc0 L_c23")
attention("e")
if STAGE == "B": a("s_waitcnt vmcnt(0)"); finish()

ldWR(); hinit()
a(f"s_lshl_b32 s0, s{sWV}, 13\ns_add_u32 s0, s0, {EX}\nv_add_u32 v4, s0, v{aL16}\ns_lshl_b32 s0, s{sWV}, 2\ns_add_u32 s0, s0, {XFL}\ns_waitcnt vmcnt(0)")
wrprep(XR)
a("v_mov_b32 v2, s0\nL_fx:")
if OPT["fsl"]: a(f"s_sleep {OPT['fsl']}")
a("ds_read_b32 v1, v2\ns_waitcnt lgkmcnt(0)\nv_cmp_ne_u32 vcc, 2, v1\ns_cbranch_vccnz L_fx")
stamp(9); stamp(9, 4)
if OPT["lprio"]: a(f"s_setprio {OPT['lprio']}")
for q in range(8): a(f"ds_read_b128 {V(OF+4*q,4)}, v4 offset:{1024*q}")
for q in range(8):
    a(f"s_waitcnt lgkmcnt({7-q})")
    for e in range(4): a(f"v_add_f32 v{H+4*(q&3)+e}, v{H+4*(q&3)+e}, v{OF+4*q+e}")
stamp(10, 4)
a("s_branch L_tail")
deferred()
CL1 = len(a.lines)
pad("h")
a("L_c23:")
attention("l")
if STAGE == "B": a("s_waitcnt vmcnt(0)")
finish()
deferred("h")
CL2 = len(a.lines)
pad("h")
a(f"L_ev:\ns_cmp_eq_u32 s{sI}, {EV1}\ns_cbranch_scc0 L_ev1\ns_waitcnt vmcnt(0)\nL_ev1:\ns_max_u32 s{sEV}, s{sXT}, {EV1}")
a(f"s_cmp_eq_u32 s{sI}, s{sXT}\ns_cbranch_scc0 L_evb\ns_sub_u32 s0, s{sRD}, s{sDL}"); capt("s0"); a("s_branch L_evb")
if not OPT["clr"]:
    a("L_gs:")
    clears(" sc1")
    a("s_waitcnt vmcnt(0)\ns_barrier\ns_barrier\ns_branch L_gsb")

if OPT["pg"]:
    mv_ = a.lines[CL2:]; mw_ = a.lines[CL1:CL2]; del a.lines[CL1:]; a.lines[CL0+1:CL0+1] = mv_; a.lines[CLX:CLX] = mw_

GATE, UP, DOWN, SM = 4, 8, 12, 28
sMm = 36
GSL = 42240; NGS = 3; MISC = NGS * GSL
SSZ = 8448
ACTB, MZ, WINB, LNL = MISC, MISC + 192, MISC + 256, MISC + 512
GF, DF, GA, XS, IDX = 8, 168, 228, 236, 7
a("L_moe:")
a(f"s_cmp_ge_u32 s{sU}, 32\ns_cbranch_scc1 L_end")
a(f"s_lshr_b32 s{sWV}, s{sWV}, 6\nv_and_b32 v0, 63, v0\ns_lshl_b32 s{sMm}, s{sJ}, 1\ns_add_u32 s{sMm}, s{sMm}, s{sU}\ns_sub_u32 s{sMm}, s{sMm}, 30\ns_mov_b32 s{sBUD}, {BUDGET}")
a("v_lshlrev_b32 v6, 4, v0\nv_mov_b32 v132, 0\nv_mov_b32 v133, 0\ns_waitcnt lgkmcnt(0)")
mksrd(WS, "ws", 1 << 28); mksrd(DBG, "dbg", 256); mksrd(GATE, "gate", 640 * 3072); mksrd(UP, "up", 640 * 3072); mksrd(DOWN, "down", 1536 * 1280); mksrd(OUT, "out", 2048 * 1280)
stamp(0)
a("v_mov_b32 v8, -1\nv_mov_b32 v9, -1\nv_mov_b32 v10, -1\nv_mov_b32 v11, -1")
a(f"s_lshl_b32 s0, s{sMm}, 14\ns_lshl_b32 s3, s{sWV}, 11\ns_add_u32 s0, s0, s3\ns_add_u32 s0, s0, {RJ}")
for i in range(2): a(f"buffer_store_dwordx4 v[8:11], v6, {S(WS)}, s0 offen offset:{1024*i} sc1")
def rootup(n):
    a(f"s_waitcnt vmcnt({n})\ns_barrier\ns_cmp_eq_u32 s{sWV}, 0\ns_cbranch_scc0 L_nroot")
    a(f"s_lshl_b32 s0, s{sMm}, 4\nv_mov_b32 v8, 1\ns_mov_b64 exec, 1\nbuffer_store_dword v8, off, {S(DBG)}, s0 sc1\ns_mov_b64 exec, -1\nL_nroot:")
if STAGE != "F": rootup(0); finish()
vGX, vGS, vRX, vRS = 4, XS + 13, XS + 14, XS + 15
sB5, sKO = 44, 45
a(f"s_and_b32 s{sB5}, s{sMm}, 1\ns_mul_i32 s0, s{sJ}, 384\ns_lshl_b32 s1, s{sB5}, 8\ns_add_u32 s1, s1, s0\ns_mul_i32 s3, s{sWV}, {8*3072}\ns_add_u32 s1, s1, s3")
a(f"v_lshrrev_b32 v1, 3, v0\nv_mul_u32_u24 v1, 3072, v1\ns_lshr_b32 s3, s{sWV}, 1\nv_xor_b32 v2, s3, v0\nv_and_b32 v2, 7, v2\nv_lshl_add_u32 v1, v2, 4, v1\nv_add_u32 v{vGX}, s1, v1\nv_xor_b32 v{vGX+1}, 64, v{vGX}")
a(f"s_lshl_b32 s1, s{sB5}, 6\ns_add_u32 s0, s0, s1\ns_and_b32 s3, s{sWV}, 3\ns_mul_i32 s1, s3, {16*3072}\ns_add_u32 s0, s0, s1\ns_add_u32 s0, s0, 128")
a(f"v_lshrrev_b32 v1, 2, v0\nv_mul_u32_u24 v1, 3072, v1\nv_xor_b32 v2, s3, v0\nv_and_b32 v2, 3, v2\nv_lshl_add_u32 v1, v2, 4, v1\nv_add_u32 v{vGS}, s0, v1")
a(f"s_cmp_lt_u32 s{sWV}, 4\ns_cselect_b64 s[{SM}:{SM+1}], s[{GATE}:{GATE+1}], s[{UP}:{UP+1}]\ns_cselect_b32 s62, 0, 128\ns_mov_b32 s{SM+2}, {640*3072:#x}\ns_mov_b32 s{SM+3}, 0x20000")
a(f"s_lshl_b32 s61, s{sWV}, 10\ns_add_u32 s62, s62, s61\ns_mul_i32 s{sB5}, s{sB5}, {5*64*3072}\ns_mul_i32 s46, s{sMm}, {96*1280}")
def koff(i): a(f"s_add_u32 s{sKO}, s{sB5}, {i*64*3072}" if i < 5 else f"s_sub_u32 s{sKO}, {i*64*3072}, s{sB5}")
def dissue(hh, i, sl):
    a(f"s_lshl_b32 s3, s{sWV}, 6\ns_addk_i32 s3, {512*i}\nv_add_u32 v1, s3, v0\nv_mul_u32_u24 v2, 52429, v1\nv_lshrrev_b32 v2, 22, v2")
    a(f"v_and_b32 v3, 3, v2\nv_lshlrev_b32 v3, 1, v3\nv_and_or_b32 v3, v2, 8, v3\nv_xor_b32 v1, v1, v3\nv_lshlrev_b32 v1, 4, v1")
    a(f"s_add_u32 m0, s61, {sl + 8192*i}\ns_add_u32 s3, s46, {40960*hh}\nbuffer_load_dwordx4 v1, {S(DOWN)}, s3 offen lds")
UN = [[("x", i), ("s", i)] for i in range(5)] + [[("x", 5), ("x", 6)], [("x", 7), ("x", 8)], [("x", 9)]]
SU, DU = [[("s", i) for i in range(5, 10)]], [[("d", h)] for h in range(3)]
UN = {0: UN + DU + SU, 1: UN + SU + DU, 2: UN[:6] + SU + UN[6:] + DU}[OPT["uord"]]
def place(u):
    o = (u % NGS) * GSL; r = []
    for kd, i in UN[u]: r.append((kd, i, o)); o += {"x": 16384, "s": SSZ, "d": 40960}[kd]
    return r
def uissue(u):
    n = 0
    for kd, i, o in place(u):
        if kd == "d":
            for k in range(5): dissue(i, k, o)
            n += 5; continue
        koff(i)
        if kd == "x":
            for m_, srd_ in ((0, GATE), (1, UP)): a(f"s_add_u32 m0, s61, {o + 8192*m_}\nbuffer_load_dwordx4 v{vGX+m_}, {S(srd_)}, s{sKO} offen lds")
            n += 2
        else: a(f"s_add_u32 m0, s62, {o}\nbuffer_load_dwordx4 v{vGS}, {S(SM)}, s{sKO} offen lds"); n += 1
    return n
a(f"s_cmp_lt_u32 s{sWV}, {OPT['rw']}\ns_cbranch_scc1 L_r0")
n0 = uissue(0)
a(f"s_waitcnt vmcnt({n0})\ns_barrier\ns_branch L_r1\nL_r0:")
rootup(0)
uissue(0)
a("L_r1:")
nI = {1: uissue(1)}
a("v_lshrrev_b32 v1, 5, v0\nv_bfe_u32 v2, v0, 2, 1\nv_lshl_add_u32 v1, v1, 2, v2\nv_bfe_u32 v2, v0, 4, 1\nv_bfe_u32 v3, v0, 3, 1\nv_lshl_add_u32 v3, v3, 1, v2\nv_lshl_add_u32 v1, v3, 4, v1")
a(f"v_xor_b32 v3, s{sWV}, v3\nv_and_b32 v2, 1, v0\nv_lshlrev_b32 v2, 3, v2\nv_lshl_add_u32 v2, v3, 4, v2\nv_bfe_u32 v3, v0, 1, 1")
a(f"v_lshl_add_u32 v{vRS}, v1, 6, v2\nv_mul_u32_u24 v8, 4224, v3\nv_add_u32 v{vRS}, v{vRS}, v8")
a(f"v_lshl_add_u32 v{vRX}, v1, 7, v2\nv_mul_u32_u24 v8, {8192 + 64}, v3\nv_xor_b32 v{vRX}, v{vRX}, v8")
vXS, vACT, vA1, vA2, vE4 = 252, 253, 254, 255, 5
for i in range(8): a(f"v_mov_b32 v{GA+i}, 0")
a(f"v_mov_b32 v1, 0x4444\nv_mov_b32 v2, 0xeeee\ns_mov_b32 vcc_lo, 0xaaaaaaaa\ns_mov_b32 vcc_hi, 0xaaaaaaaa\nv_cndmask_b32 v{IDX}, v1, v2, vcc")
a(f"v_and_b32 v1, 48, v0\nv_and_b32 v2, 1, v0\nv_lshlrev_b32 v2, 4, v2\nv_lshl_add_u32 v{vXS}, v1, 1, v2\nv_add_u32 v{vA1}, {ACTB}, v{vXS}\nv_add_u32 v{vXS}, {LNL}, v{vXS}")
a(f"v_add_u32 v1, {ACTB + 128}, v1\nv_mov_b32 v2, {MZ}\nv_cndmask_b32 v{vA2}, v1, v2, vcc\nv_mov_b32 v3, 0\nv_lshl_add_u32 v2, v0, 2, v2\ns_mov_b32 exec_hi, 0\nds_write_b32 v2, v3\ns_mov_b64 exec, -1")
a(f"s_and_b32 s3, s{sMm}, 1\ns_cselect_b32 s0, 4, 0\ns_cselect_b32 s1, -4, 8\ns_add_u32 s0, s0, s{sWV}\nv_bfe_u32 v1, v0, 4, 1\nv_mul_i32_i24 v1, s1, v1\nv_add_u32 v1, s0, v1")
a("v_lshrrev_b32 v2, 1, v1\nv_lshlrev_b32 v2, 2, v2\nv_and_or_b32 v2, v1, 1, v2\nv_and_or_b32 v2, v0, 2, v2\nv_bfe_u32 v3, v0, 2, 1\nv_lshl_add_u32 v2, v2, 1, v3")
a(f"v_and_b32 v3, 1, v0\nv_lshl_add_u32 v2, v2, 1, v3\nv_and_b32 v3, 7, v0\nv_lshl_add_u32 v3, v1, 3, v3\nv_cmp_gt_u32 vcc, 8, v1\nv_cndmask_b32 v2, v3, v2, vcc\nv_lshlrev_b32 v2, 1, v2\nv_add_u32 v{vACT}, {ACTB}, v2")
a(f"s_lshl_b32 s47, s{sWV}, 15\ns_lshl_b32 s3, s{sMm}, 6\ns_add_u32 s47, s47, s3\ns_add_u32 s47, s47, {RJ + R_E4}")
a(f"v_lshrrev_b32 v1, 2, v0\nv_and_b32 v2, 3, v0\nv_lshlrev_b32 v2, 4, v2\nv_lshl_add_u32 v2, v1, 10, v2\nv_lshlrev_b32 v1, 4, v1\nv_add_u32 v1, {4096 - 64}, v1\ns_mov_b64 vcc, 0xffff\nv_cndmask_b32 v{XS+10}, v1, v2, vcc")
a(f"s_cmp_lt_u32 s{sWV}, 4\ns_cselect_b32 s50, 0x00ff0000, 0\ns_or_b32 s50, s50, 0xff\ns_mov_b32 s51, 0")
sFT, sFE, sWIN, sXS = 52, 53, 54, 55
a(f"s_sub_u32 s3, s{sWV}, 4\ns_lshl_b32 s3, s3, 4\ns_add_u32 s{sFT}, s3, s{sMm}\ns_mul_i32 s3, s{sFT}, 52\ns_lshr_b32 s3, s3, 8\ns_mul_i32 s3, s3, {RJS - 5120}\ns_lshl_b32 s{sFE}, s{sFT}, 10\ns_add_u32 s{sFE}, s{sFE}, s3\ns_add_u32 s{sFE}, s{sFE}, {RJ + R_E4}")
vFC, vFB, vSG, FD = 128, 129, 130, 40
a(f"s_mov_b32 s49, {BUDGET >> 2}\ns_mov_b32 s63, 0")
a(f"s_mul_i32 s3, s{sFT}, 52\ns_lshr_b32 s3, s3, 8\ns_mul_i32 s0, s3, 5\ns_sub_u32 s0, s{sFT}, s0\ns_mul_i32 s3, s3, 80\ns_lshl_b32 s1, s0, 2\ns_cmp_eq_u32 s0, 4\ns_cselect_b32 s1, 64, s1\ns_cselect_b32 s0, 0, 4\ns_cselect_b32 s48, 2, 0\ns_add_u32 s3, s3, s1")
a(f"v_bfe_u32 v1, v0, 4, 1\nv_lshrrev_b32 v2, 5, v0\nv_lshl_add_u32 v1, v1, 1, v2\nv_lshlrev_b32 v1, s0, v1\nv_and_b32 v2, 3, v0\nv_lshlrev_b32 v2, s48, v2\nv_add3_u32 v1, v1, v2, s3\nv_lshlrev_b32 v{vFC}, 1, v1\nv_lshlrev_b32 v{vFB}, 2, v1")
a("v_lshrrev_b32 v1, 4, v0\nv_bfe_u32 v2, v0, 2, 2\nv_lshl_add_u32 v1, v1, 3, v2\nv_mul_u32_u24 v1, 1280, v1\nv_and_b32 v3, 1, v0\nv_lshl_add_u32 v1, v3, 3, v1")
a(f"v_bfe_u32 v2, v0, 2, 3\nv_lshlrev_b32 v2, 1, v2\nv_bfe_u32 v3, v0, 1, 1\ns_mul_i32 s0, s{sWV}, 10")
for i in range(5): a(f"s_add_u32 s3, s0, {2*i}\nv_add_u32 v{XS+i}, s3, v3\nv_xor_b32 v{XS+i}, v{XS+i}, v2\nv_lshl_add_u32 v{XS+i}, v{XS+i}, 4, v1")
for u in range(len(UN)):
    a(f"s_waitcnt vmcnt({nI.get(u + 1, 0) + (u == 6)}) lgkmcnt(0)\ns_barrier")
    if u + 2 < len(UN): nI[u + 2] = uissue(u + 2)
    sk = False
    for kd, i, o in place(u):
        if kd == "d":
            for k in range(5):
                a(f"v_add_u32 v1, {o}, v{XS+k}")
                for e in range(2): a(f"ds_read_b64_tr_b16 {V(DF+12*k+4*i+2*e,2)}, v1 offset:{1280*4*e}")
            continue
        if kd == "s" and not sk: a(f"s_cmp_lt_u32 s{sWV}, 4\ns_cbranch_scc0 L_g{u}"); sk = True
        a(f"v_add_u32 v1, {o}, v{vRX if kd == 'x' else vRS}")
        p = 128 if kd == "x" else 64
        for hh in range(2):
            for e in range(2): a(f"ds_read_b64_tr_b16 {V(GF+80*(kd == 's')+8*i+4*hh+2*e,2)}, v1 offset:{p*(8*hh + 2*e)}")
    if sk: a(f"L_g{u}:")
    if u == 5: a(f"v_and_b32 v{XS+12}, 0xf0, v6\nbuffer_load_dword v{XS+11}, v{XS+12}, {S(DBG)}, 0 offen sc1")
    if u == 7: stamp(1)
stamp(2)
pagebreak()
warm("m", 0, 1)
a(f"v_mov_b32 v{vE4}, v{XS+10}\nv_mov_b32 v4, {WINB}\ns_cmp_lt_u32 s{sWV}, {6 + OPT['kold']}\ns_cbranch_scc1 L_np")
if not OPT["kold"]: a(f"s_cmp_eq_u32 s{sWV}, 6\ns_cbranch_scc1 L_ft")
a(f"L_rt:\nv_cmp_ne_u32 vcc, 1, v{XS+11}\ns_cbranch_vccz L_rtg\nbuffer_load_dword v{XS+11}, v{XS+12}, {S(DBG)}, 0 offen sc1\ns_waitcnt vmcnt(0)\ns_sub_u32 s{sBUD}, s{sBUD}, 1\ns_cbranch_scc0 L_rt\ns_mov_b32 s{sBUD}, 0\nL_rtg:")
a(f"v_bfe_u32 v1, v0, 2, 3\nv_lshlrev_b32 v1, 15, v1\nv_and_b32 v2, 3, v0\nv_min_u32 v2, 2, v2\nv_mul_u32_u24 v3, 1280, v2\ns_mov_b32 s0, {RJ}\nv_add3_u32 v3, v3, v1, s0\nv_lshl_add_u32 v1, v2, 7, v1\ns_mul_i32 s0, s{sMm}, 384\ns_add_u32 s0, s0, {RJ + R_KEY}")
stamp(3)
if OPT["wb"] & 4: a("buffer_wbl2 sc1")
if OPT["kold"]:
    vRW = 132
    a(f"s_and_b32 s3, s{sMm}, 1\ns_mul_i32 s3, s3, 640\nv_add_u32 v{vRW}, s3, v6\nv_subrev_u32 v2, 1280, v{vRW}\nv_min_u32 v{vRW}, v{vRW}, v2\ns_sub_u32 s3, 1024, s3\nv_add_u32 v{vRW+1}, s3, v6")
    row = f"s_mov_b32 m0, {LNL}\ns_mov_b64 exec, -1\nbuffer_load_dwordx4 v{vRW}, {S(WS)}, s{sXS} offen sc1 lds\ns_mov_b32 m0, {LNL + 1024}\ns_mov_b64 exec, 0xffff\nbuffer_load_dwordx4 v{vRW+1}, {S(WS)}, s{sXS} offen sc1 lds"
    a(f"s_mov_b32 s{sWIN}, 0\ns_mov_b32 s{sXS}, {OOB:#x}")
    KP, KR, KV = OPT["kp"], OPT["kr"], 140
    assert KP % KR == 0
    KM = 0x77777777
    def look(k):
        if k % KR == 0: a(row); execset(KM)
        if OPT["ka"]: a(f"buffer_atomic_umin v{KV+k}, v1, {S(WS)}, s0 offen sc0 sc1")
        else: a(f"buffer_load_dword v{KV+k}, v1, {S(WS)}, s0 offen sc1")
    for k in range(KP): a(f"v_mov_b32 v{KV+k}, -1")
    def kchk(k):
        a(f"v_cmp_lt_u32 vcc, s{sWIN}, v{KV+k}\ns_cbranch_vccz L_pg")
        a(f"v_cndmask_b32 v2, -1, v{KV+k}, vcc\nv_cmp_ne_u32 vcc, -1, v2\nv_mov_b32 v{XS+2}, v{KV+k}\ns_cbranch_vccnz L_pn")
    def upd():
        if OPT["stamps"] == 1: l = a.label("fu"); a(f"s_cmp_eq_u32 s63, 0\ns_cbranch_scc0 {l}"); stamp(12); a(f"{l}:\ns_add_u32 s63, s63, 1")
        stamp(11)
        a(f"s_mov_b64 exec, -1\nv_cndmask_b32 v2, 0, v2, vcc")
        a(f"v_max_u32_dpp v{XS}, v2, v2 row_ror:8 {DPPM}")
        for k in (4, 2, 1): a(f"v_max_u32_dpp v{XS}, v{XS}, v{XS} row_ror:{k} {DPPM}")
        a(f"v_mov_b32 v{XS+1}, v{XS}\ns_mov_b32 s60, {KP - 1}\nv_permlane16_swap_b32 v{XS}, v{XS+1}\nv_max_u32 v{XS}, v{XS}, v{XS+1}\ns_mov_b32 exec_hi, 0\nv_cmpx_eq_u32 vcc, v{XS}, v2")
        a(f"ds_write_b64 v4, v[2:3]\ns_cmp_eq_u64 s[58:59], 0\nv_readfirstlane_b32 s{sXS}, v3\nv_readfirstlane_b32 s{sWIN}, v2")
    if OPT["kn"]:
        KR = 1
        a("s_mov_b32 s60, 0")
        for k in range(KP - 1):
            look(k)
            if OPT["ks"]: a(f"s_sleep {OPT['ks']}")
        for k in range(KP):
            a(f"L_pl{k}:")
            look((k + KP - 1) % KP)
            a(f"s_waitcnt vmcnt({3 * (KP - 1)})\nv_cmp_lt_u32 vcc, s{sWIN}, v{KV+k}\ns_sub_u32 s60, s60, 1\ns_cbranch_vccnz L_pm{k}\ns_cbranch_scc1 L_pg\ns_branch L_pw\nL_pm{k}:\ns_max_i32 s60, s60, 0")
            a(f"v_cmp_eq_u32 s[58:59], -1, v{KV+k}\nv_mov_b32 v2, v{KV+k}\ns_andn2_b64 vcc, vcc, s[58:59]\ns_cbranch_scc0 L_pq{k}")
            upd()
            a(f"s_cbranch_scc1 L_xf\ns_branch L_pl{(k + 1) % KP}\nL_pq{k}:")
            if OPT["ks"]: a(f"s_sleep {OPT['ks']}")
        a(f"s_sub_u32 s{sBUD}, s{sBUD}, 1\ns_cbranch_scc0 L_pl0\ns_mov_b32 s{sBUD}, 0\ns_branch L_xf")
        a("L_pw:")
        for v in range(KP - 1):
            a(f"s_cmp_eq_u32 s60, {v}\ns_waitcnt vmcnt({1 + 3 * (KP - 2 - v)})\n" + ("s_cbranch_scc1 L_pg" if v < KP - 2 else "s_branch L_pg"))
    else:
        a("L_pk:")
        if OPT["kw"]: look(0); a("s_waitcnt vmcnt(0)"); kchk(0)
        for k in range(KP - 1):
            look(k)
            if OPT["ks"]: a(f"s_sleep {OPT['ks']}")
        a("L_pl:")
        for k in range(KP):
            look((k + KP - 1) % KP)
            a(f"s_waitcnt vmcnt({KP - 1 + 2 * (KP // KR - (k % KR == 0))})"); kchk(k)
            if OPT["ks"]: a(f"s_sleep {OPT['ks']}")
        a(f"s_sub_u32 s{sBUD}, s{sBUD}, 1\ns_cbranch_scc0 L_pl\ns_mov_b32 s{sBUD}, 0\ns_branch L_pg")
        a("L_pn:")
        if OPT["stamps"] == 1: a("s_add_u32 s63, s63, 1")
        stamp(11)
        a(f"v_cmp_eq_u32 s[58:59], -1, v{XS+2}\ns_mov_b64 exec, -1\nv_cndmask_b32 v2, 0, v2, vcc")
        a(f"v_max_u32_dpp v{XS}, v2, v2 row_ror:8 {DPPM}")
        for k in (4, 2, 1): a(f"v_max_u32_dpp v{XS}, v{XS}, v{XS} row_ror:{k} {DPPM}")
        a(f"v_mov_b32 v{XS+1}, v{XS}\nv_permlane16_swap_b32 v{XS}, v{XS+1}\nv_max_u32 v{XS}, v{XS}, v{XS+1}\ns_mov_b32 exec_hi, 0\nv_cmpx_eq_u32 vcc, v{XS}, v2")
        a(f"ds_write_b64 v4, v[2:3]\ns_cmp_eq_u64 s[58:59], 0\nv_readfirstlane_b32 s{sXS}, v3\nv_readfirstlane_b32 s{sWIN}, v2")
        a("s_cbranch_scc0 L_pk")
    a(f"L_xf:\n{row}\ns_waitcnt vmcnt(0)\nL_pg:\ns_mov_b64 exec, -1")
    stamp(4)
else:
    KP, KV = OPT["kp"], 140
    KM = 0x77777777
    def look(k):
        if OPT["ka"]: a(f"buffer_atomic_umin v{KV+k}, v1, {S(WS)}, s0 offen sc0 sc1")
        else: a(f"buffer_load_dword v{KV+k}, v1, {S(WS)}, s0 offen sc1")
    for k in range(KP): a(f"v_mov_b32 v{KV+k}, -1")
    a(f"s_mov_b32 s{sWIN}, 0"); execset(KM)
    for k in range(KP - 1):
        look(k)
        if OPT["ks"]: a(f"s_sleep {OPT['ks']}")
    a("L_pl:")
    for k in range(KP):
        look((k + KP - 1) % KP)
        a(f"s_waitcnt vmcnt({KP - 1})\nL_pc{k}:\nv_cmp_lt_u32 vcc, s{sWIN}, v{KV+k}\ns_cbranch_vccz L_pg")
        a(f"v_cndmask_b32 v2, -1, v{KV+k}, vcc\nv_cmp_ne_u32 vcc, -1, v2\ns_cbranch_vccnz L_pn{k}")
        if OPT["ks"]: a(f"s_sleep {OPT['ks']}")
        def upd():
            a(f"L_pn{k}:\ns_mov_b64 exec, -1\nv_cndmask_b32 v2, 0, v2, vcc")
            a(f"v_max_u32_dpp v{XS}, v2, v2 row_ror:8 {DPPM}")
            for r in (4, 2, 1): a(f"v_max_u32_dpp v{XS}, v{XS}, v{XS} row_ror:{r} {DPPM}")
            a(f"v_mov_b32 v{XS+1}, v{XS}\nv_permlane16_swap_b32 v{XS}, v{XS+1}\nv_max_u32 v{XS}, v{XS}, v{XS+1}\ns_mov_b32 exec_hi, 0\nv_cmpx_eq_u32 vcc, v{XS}, v2")
            a(f"ds_write_b64 v4, v[2:3]\nv_readfirstlane_b32 s{sWIN}, v2"); execset(KM); a(f"s_branch L_pc{k}")
        DEFER.append("\n".join(capture(upd)))
    a(f"s_sub_u32 s{sBUD}, s{sBUD}, 1\ns_cbranch_scc0 L_pl\ns_mov_b32 s{sBUD}, 0")
    a("L_pg:\nds_write_b32 v4, v4 offset:8\ns_mov_b64 exec, -1")
    stamp(4)
    vRW = 132
    row = f"s_mov_b32 m0, {LNL}\nbuffer_load_dwordx4 v{vRW}, {S(WS)}, s{sXS} offen sc1 lds\ns_mov_b32 m0, {LNL + 1024}\ns_mov_b64 exec, 0xffff\nbuffer_load_dwordx4 v{vRW+1}, {S(WS)}, s{sXS} offen sc1 lds\ns_mov_b64 exec, -1"
    t = f"L_ft:\ns_and_b32 s3, s{sMm}, 1\ns_mul_i32 s3, s3, 640\nv_add_u32 v{vRW}, s3, v6\nv_subrev_u32 v2, 1280, v{vRW}\nv_min_u32 v{vRW}, v{vRW}, v2\ns_sub_u32 s3, 1024, s3\nv_add_u32 v{vRW+1}, s3, v6\ns_mov_b32 s{sXS}, 0\n"
    t += f"L_fl:\nds_read_b128 v[136:139], v4\ns_waitcnt lgkmcnt(0)\nv_readfirstlane_b32 s0, v137\nv_readfirstlane_b32 s1, v138\ns_cmp_eq_u32 s0, s{sXS}\ns_cbranch_scc0 L_fn\ns_cmp_eq_u32 s1, 0\ns_cbranch_scc1 L_fl\ns_branch L_np\n"
    t += f"L_fn:\ns_mov_b32 s{sXS}, s0\n{row}\ns_cmp_eq_u32 s1, 0\ns_waitcnt vmcnt(0)\ns_cbranch_scc0 L_np\n"
    if OPT["rf"]: t += row + "\n"
    t += f"s_branch L_fl\nL_xf:\n{row}\ns_waitcnt vmcnt(0)\ns_branch L_np"
    DEFER.append(t)
def wback(p):
    if OPT["wb"] & p: a(f"s_and_b32 s3, s{sMm}, 1\ns_add_u32 s3, s3, s{sWV}\ns_cmp_eq_u32 s3, 8\ns_cbranch_scc0 L_wb{p}\nbuffer_wbl2 sc1\nL_wb{p}:")
a("L_np:\ns_waitcnt lgkmcnt(0)\ns_barrier")
stamp(5)
def smf(d, A, B): a(f"v_smfmac_f32_16x16x64_bf16 {V(d,4)}, {V(A,4)}, {V(B,8)}, v{IDX}")
a(f"s_cmp_lt_u32 s{sWV}, 4\ns_cbranch_scc1 L_xh")
XL = 88
wback(1)
a(f"ds_read_b64 v[2:3], v4")
for s in range(10): a(f"ds_read_b128 {V(XL+4*s,4)}, v{vXS} offset:{128*s}")
a(f"s_waitcnt lgkmcnt(10)\nv_readfirstlane_b32 s56, v2\nv_readfirstlane_b32 s57, v3")
fo = [f"s_and_b32 s0, s57, 0x7fff\ns_add_u32 s57, s57, s0\ns_add_u32 s57, s57, {R_BASE}\ns_and_b32 s1, s56, 0xfffff800",
      f"s_ashr_i32 s3, s1, 31\ns_not_b32 s3, s3\ns_or_b32 s3, s3, 0x80000000\ns_xor_b32 s1, s1, s3", f"s_andn2_b32 s56, 2047, s56\ns_mul_i32 s56, s56, 1280\nv_mov_b32 v{vSG}, s1",
      f"v_mul_f32 v{vSG}, 0xbfb8aa3b, v{vSG}", f"v_exp_f32 v{vSG}, v{vSG}", f"v_add_f32 v{vSG}, 1.0, v{vSG}", f"v_rcp_f32 v{vSG}, v{vSG}"]
for s in range(10):
    a(f"s_waitcnt lgkmcnt({9-s})"); smf(GA, XL + 4 * s, GF + 8 * s)
    if fo: a(fo.pop(0))
a("s_branch L_xj"); pad("m"); a("L_xh:")
for s in range(4): a(f"ds_read_b128 {V(XS+4*s,4)}, v{vXS} offset:{128*s}")
for s in range(10):
    a(f"s_waitcnt lgkmcnt({min(3, 9-s)})")
    smf(GA, XS + 4 * (s % 4), GF + 8 * s); smf(GA + 4, XS + 4 * (s % 4), GF + 80 + 8 * s)
    if s + 4 < 10: a(f"ds_read_b128 {V(XS+4*(s%4),4)}, v{vXS} offset:{128*(s+4)}")
a("L_xj:\ns_mov_b64 vcc, 0xffff")
a(f"v_add_f32 v1, v{GA}, v{GA+1}\nv_add_f32 v2, v{GA+4}, v{GA+5}\nv_cndmask_b32 v1, v2, v1, vcc")
NFL = MZ + 16
a("v_cmp_u_f32 vcc, v1, v1\ns_cbranch_vccnz L_xn\nL_xnb:")
DEFER.append(f"L_xn:\nv_mov_b32 v2, {NFL}\nds_write_b32 v2, v2\ns_branch L_xnb")
DEFER.append(f"L_xsr:\ns_sub_u32 s49, s49, 1\ns_cbranch_scc1 L_xsgo\n" + "\n".join(f"v_mov_b32 v{GA+i}, 0" for i in range(8))
             + f"\ns_waitcnt lgkmcnt(0)\ns_barrier\ns_cmp_eq_u32 s{sWV}, {6 + OPT['kold']}\ns_cbranch_scc0 L_np\nds_write_b32 v2, v{GA}\ns_branch L_xf")
stamp(6)
a(f"v_mul_f32 v2, 0xbfb8aa3b, v1\nv_exp_f32 v2, v2\nv_mul_f32_dpp v3, v1, v1 row_ror:8 {DPPM}\nv_add_f32 v2, 1.0, v2\nv_rcp_f32 v2, v2")
a(f"v_mul_f32 v1, v2, v3\nv_cvt_pk_bf16_f32 v1, v1, v1\ns_mov_b64 exec, s[50:51]\nds_write_b16 v{vACT}, v1\ns_mov_b64 exec, -1\nv_mov_b32 v2, {NFL}\ns_waitcnt lgkmcnt(0)\ns_barrier")
DD = 8
a(f"ds_read_b32 v1, v2\nds_read_b128 {V(XS,4)}, v{vA2}\nds_read_b128 {V(XS+4,4)}, v{vA1}\ns_waitcnt lgkmcnt(2)\nv_cmp_ne_u32 vcc, 0, v1\ns_cbranch_vccnz L_xsr\nL_xsgo:")
a("s_waitcnt lgkmcnt(1)")
for i in (4, 0, 1, 2, 3): mfma(DD + 4 * i, XS, DF + 12 * i + 8, "0")
a("s_waitcnt lgkmcnt(0)")
for i in (4, 0, 1, 2, 3): smf(DD + 4 * i, XS + 4, DF + 12 * i)
PS = 32
a(f"v_add_f32 v1, v{DD+16}, v{DD+17}")
for i in range(4):
    a(f"v_add_f32 v{PS+i}, v{DD+4*i}, v{DD+4*i+1}")
for i in range(4): a(f"v_mov_b32_dpp v{PS+i}, v1 quad_perm:[{i},{i},{i},{i}] row_mask:0x2 bank_mask:0xf")
a(f"s_mov_b64 exec, 0x1111ffff\nbuffer_store_dwordx4 {V(PS,4)}, v{vE4}, {S(WS)}, s47 offen sc1\ns_mov_b64 exec, -1")
stamp(7)
if OPT["stamps"] == 1: a(f"s_sub_u32 s3, {(BUDGET >> 2) + 1}, s49\ns_add_u32 s88, s98, s3\ns_add_u32 s90, s98, s63")
wback(2)
a(f"s_cmp_lt_u32 s{sFT}, 40\ns_cbranch_scc0 L_mfin")
FP = OPT["fp"]
FA = OPT["fa"]; NF = 3 if FA else 2
def fld(k):
    d = FD + 8 * k
    a(f"buffer_load_dword v{d+4}, v{vFB}, {S(WS)}, s57 offen sc1")
    if FA:
        for e in (0, 2): a(f"v_mov_b64 {V(d+e,2)}, 0\nbuffer_atomic_or_x2 {V(d+e,2)}, v6, {S(WS)}, s{sFE} offen offset:{4*e} sc0 sc1")
    else: a(f"buffer_load_dwordx4 {V(d,4)}, v6, {S(WS)}, s{sFE} offen sc1")
if OPT["f0"] > 0: a(f"s_sleep {OPT['f0']}")
if OPT["f0"] < 0: a("s_waitcnt vmcnt(0)")
if OPT["f0"] < -1: a(f"s_sleep {-OPT['f0'] - 1}")
for k in range(FP - 1):
    fld(k)
    if OPT["fs"]: a(f"s_sleep {OPT['fs']}")
a("L_fd:")
if OPT["ftop"]: a(f"s_sleep {OPT['ftop']}")
for k in range(FP):
    fld((k + FP - 1) % FP)
    d = FD + 8 * k
    a(f"s_waitcnt vmcnt({NF*(FP-1)})\nv_max3_u32 v1, v{d}, v{d+2}, v{d+4}\nv_cmp_eq_u32 vcc, -1, v1\ns_cbranch_vccz L_fg{k}")
    if OPT["fs"]: a(f"s_sleep {OPT['fs']}")
a(f"s_sub_u32 s{sBUD}, s{sBUD}, 1\ns_cbranch_scc0 L_fd")
for k in reversed(range(FP)):
    d = FD + 8 * k
    a(f"L_fg{k}:\nv_permlane32_swap_b32 v{d}, v{d+1}\nv_permlane32_swap_b32 v{d+2}, v{d+3}\nv_add_f32 v{d}, v{d}, v{d+1}\nv_add_f32 v{d+2}, v{d+2}, v{d+3}")
    a(f"v_permlane16_swap_b32 v{d}, v{d+2}\nv_add_f32 v{d}, v{d}, v{d+2}")
    for r in (4, 8): a(f"v_add_f32_dpp v{d}, v{d}, v{d} row_ror:{r} {DPPM}")
    a(f"v_fma_f32 v8, v{d}, v{vSG}, v{d+4}\nv_cvt_pk_bf16_f32 v8, v8, v8")
    execset(0x000F000F000F000F)
    a(f"buffer_store_short v8, v{vFC}, {S(OUT)}, s56 offen")
    if k: stamp(8); finish(); pad("m")
stamp(8)
a("L_mfin:")
finish()
deferred("m")
if OPT["stamps"]:
    a("L_dump:\ns_mov_b64 exec, -1\ns_memtime s[0:1]\ns_memrealtime s[62:63]\ns_waitcnt lgkmcnt(0)\nv_mov_b32 v2, 0")
    a("v_writelane_b32 v2, s98, 0\nv_writelane_b32 v2, s62, 1\ns_sub_u32 s3, s0, s96\nv_writelane_b32 v2, s3, 2")
    for i in range(NST): a(f"s_sub_u32 s3, s{70+2*i}, s{98 if OPT['rt'] else 96}\ns_cmp_lt_u32 s3, {5000 if OPT['rt'] else 0x100000}\ns_cselect_b32 s3, s3, 0\nv_writelane_b32 v2, s3, {3+i}")
    a(f"s_lshl_b32 s3, s2, 4\ns_add_u32 s3, s3, s{sWV}\ns_lshl_b32 s3, s3, 7\ns_add_u32 s3, s3, {STAMP}\nv_lshlrev_b32 v3, 2, v0\ns_mov_b32 exec_hi, 0")
    a(f"buffer_store_dword v2, v3, {S(WS)}, s3 offen")
    if OPT["diag"] >= 0:
        a(f"s_sub_u32 s3, s2, {OPT['dwg']}\ns_cmp_lt_u32 s3, {OPT['dn']}\ns_cbranch_scc0 L_end\ns_cmp_eq_u32 s{sWV}, {OPT['dwv']}\ns_cbranch_scc0 L_end")
        a(f"s_sub_u32 s3, s{70+2*OPT['diag']}, s{98 if OPT['dib'] < 0 else 70+2*OPT['dib']}\ns_lshl_b32 s3, s3, {2 if OPT['dib'] < 0 else 4}\ns_add_u32 s3, s3, s62")
        a("L_dg:\ns_memrealtime s[62:63]\ns_waitcnt lgkmcnt(0)\ns_sub_u32 s0, s62, s3\ns_cmp_lt_i32 s0, 0\ns_cbranch_scc1 L_dg")
a("L_end:\ns_endpgm")
for i, l in reversed(list(enumerate(a.lines))):
    if l.startswith(";WARM"):
        _, cat, k, n = l.split()
        a.lines[i:i+1] = [f"s_call_b64 s[100:101], {p}" for p in PADS.get(cat, [])[int(k)::int(n)]]
print({k: len(v) for k, v in PADS.items()})
body, nn = hazard.fix(a.lines[body0:], OPT["verbose"])
a.lines[body0:] = body
kernel_desc(a, K, 256)
open(sys.argv[1], "w").write(a.text())
print("nops inserted:", nn, "lines:", len(a.lines))
```

```python
import sys, struct, math
sys.path.insert(0, "gen")
from common import *
import hazard

OPT = dict(stage="F", stamps=0, verbose=0, nl=8, pg=1, kw=0, kr=3, kn=1, kc=15, e2p=0, fmode=1, n0=8, na=2, nb=10, n1=0, o2=0, hp=1, cdw=0, sf=2, dpn=2, fsl=1, bk=0, bv=-1, wc=1, tch=5, bud=1 << 19, rw=5, clr=0, pf0=1, uord=0, mt=1, mx=8, x1=2, w1=1, ppr=0, kold=1, wb=1, pfp=3, te=1, tl=0, t2=0, wsp=0, ws0=2, ord=0, vpos=1, off="98672345", ftop=0, mlate=0, rf=1, kp=3, ks=2, ka=1, fp=2, fs=0, fa=0, f0=0, hlp=1, r2=5, e1=1, e2=4, dep=3, dep2=6, opos=1, vq=2, spf=0, pk=1, rsp=1, osc="plain",
           diag=-1, dwg=77, dn=1, dib=-1, dfix=0, dwv=0, slpk=0, prio=1, ou=6, grp=0, rt=1, dbg=0, wri=5, pre=12, aprio=1, lprio=2, vprio=2, oul=5, xprio=1, cpos=1)
for kv in sys.argv[2:]:
    k, v = kv.split("=")
    assert k in OPT, k
    OPT[k] = int(v) if v.lstrip("-").isdigit() else v
STAGE = OPT["stage"]

E2, SP, RJ, STAMP, DUMP = 0x200000, 0x280000, 0x300000, 0x500000, 0x1000000
RJS = 32768
R_BASE, R_FL, R_E4, R_KEY = 4096, 12288, 16384, 21504
SLOT, S0 = 36864, 8192
PITCH = 144; TSTR = 96 * PITCH
VB = S0 + SLOT - TSTR; KB = VB - TSTR; QB = KB - TSTR
STATS, ZR = 0, 1792
MODE, KMAX, WFL, VCN, HRD, XFL = 1728, 1732, 1744, 1748, 1752, 1760
WOB = S0 + 2 * SLOT
EX = S0 + SLOT + 12288
assert ZR + 8 * PITCH + 64 <= QB
X, W, WO, WS, OUT, DBG, WR = 4, 8, 12, 16, 20, 24, 28
sWV, sJ, sU, sG, sC, sC5, sT, sB0, sBUD, sMODE, sI, sGID = range(32, 44)
KA = dict(x=44, w=46, wo=48, wr=52, gate=54, up=56, down=60, out=62, dbg=64, ws=66)
BUDGET = OPT['bud']
DPPM = "row_mask:0xf bank_mask:0xf"
ONES = 0x3F803F80
OOB = 0x80000000
def f32(x): return struct.unpack("<I", struct.pack("<f", x))[0]
CEXP = f32(20 ** -0.5 * math.log2(math.e))

a = Asm()
def S(d): return f"s[{d}:{d+3}]"
def V(d, n=1): return f"v{d}" if n == 1 else f"v[{d}:{d+n-1}]"
def mksrd(d, name, size): a(f"s_mov_b64 s[{d}:{d+1}], s[{KA[name]}:{KA[name]+1}]\ns_mov_b32 s{d+2}, {size:#x}\ns_mov_b32 s{d+3}, 0x20000")
def execset(m):
    if m == -1: a("s_mov_b64 exec, -1")
    elif m < (1 << 31): a(f"s_mov_b64 exec, {m:#x}")
    else: a(f"s_mov_b32 exec_lo, {m & 0xffffffff:#x}\ns_mov_b32 exec_hi, {m >> 32:#x}")
def smask(d, m): a(f"s_mov_b32 s{d}, {m & 0xffffffff:#x}\ns_mov_b32 s{d+1}, {m >> 32:#x}")
def lanes(f): return sum(1 << l for l in range(64) if f(l))
def mfma(d, A, B, C=None):
    c = V(d, 4) if C is None else (C if isinstance(C, str) else V(C, 4))
    a(f"v_mfma_f32_16x16x32_bf16 {V(d,4)}, {V(A,4)}, {V(B,4)}, {c}")
DEFER = []
def lst(text):
    l = a.label("gl")
    a(f"s_cmp_eq_u32 s{sMODE}, 1\ns_cbranch_scc0 {l}g")
    a(text.replace("{F}", "")); a(f"{l}b:")
    DEFER.append(f"{l}g:\n" + text.replace("{F}", " sc1") + f"\ns_branch {l}b")
PADS = {}
def pad(cat):
    if not OPT["pg"]: return
    l = a.label("pad"); PADS.setdefault(cat, []).append(l); a(f"{l}:\ns_setpc_b64 s[100:101]")
def pagebreak(cat=None, live=True):
    if not OPT["pg"]: return
    l = a.label("pb")
    if live: a(f"s_branch {l}")
    a(".p2align 12")
    if cat: pad(cat)
    a(f"{l}:")
def warm(cat, k, n): a(f";WARM {cat} {k} {n}")
def deferred(cat=None):
    n = 999
    for t in DEFER:
        if cat and n > 110: pad(cat); n = 0
        a(t); n += t.count("\n") + 1
    DEFER.clear()
def capture(fn):
    global a
    class C:
        def __init__(s): s.g = []
        def __call__(s, t=""): s.g.append(t)
        def label(s, b): return a0.label(b)
    a0 = a; a = C(); fn(); g = a.g; a = a0
    return g
class Cnt:
    def __init__(s, name, mx): s.n = 0; s.name = name; s.mx = mx; s.done = 0
    def __call__(s, text): a(text); s.n += 1; return s.n
    def wait(s, i):
        if i <= s.done: return
        k = min(s.mx, s.n - i); a(f"s_waitcnt {s.name}({k})"); s.done = s.n - k
    def reset(s): s.n = 0; s.done = 0
L = Cnt("lgkmcnt", 15)

NST = 13
CLK = "s_memrealtime" if OPT["rt"] else "s_memtime"
def stamp(i, lvl=1):
    if OPT["stamps"] == lvl: a(f"{CLK} s[{70+2*i}:{71+2*i}]")
def stampi(ph):
    if OPT["stamps"] == 2:
        if ph == 0: a(f"{CLK} s[94:95]")
        else: a(f"s_lshl_b32 m0, s{sI}, 1\ns_waitcnt lgkmcnt(0)\ns_movreld_b32 s70, s94")
def finish():
    a("s_branch L_dump" if OPT["stamps"] else "s_endpgm")

a(HEADER.rstrip())
a("; @launch grid=(256,1,1) block=(512,1,1) lds=163840")
if OPT["stamps"] and OPT["grp"]: a("; @groups g0:0-79:2-2 g1:80-159:2-2 g2:160-239:2-2 m7:240-255:7-7")
if OPT["stamps"] and OPT["rt"]: a("; @rt")
if OPT["stamps"] and not OPT["grp"]: a("; @groups c0:0-239:0-0 c2:0-239:2-2 h0:0-239:4-4 h1:0-239:5-5 h3:0-239:7-7 m0:240-255:0-0 m4:240-255:4-4 ma:240-247:7-7 mb:248-255:7-7")
a('.amdgcn_target "amdgcn-amd-amdhsa--gfx950"')
K = NAME + "_kernel"
kernel_begin(a, K, OPT.get("page", 1))
body0 = len(a.lines)
NL = OPT["nl"]
a("s_load_dwordx16 s[44:59], s[0:1], 0\ns_load_dwordx8 s[60:67], s[0:1], 56")
if OPT["stamps"]: a("s_memrealtime s[98:99]\ns_memtime s[96:97]")
a(f"s_lshr_b32 s{sU}, s2, 3\ns_and_b32 s{sJ}, s2, 7\nv_readfirstlane_b32 s{sWV}, v0\ns_getpc_b64 s[100:101]\nL_pc:")
if OPT['dbg'] & 32: a('s_load_dword s79, s[100:101], 0x7000')
a(f"s_mul_i32 s3, s{sU}, {NL}\nv_min_u32 v2, {NL-1}, v0\nv_add_lshl_u32 v2, v2, s3, 7\nv_min_u32 v2, L_end-L_pc, v2")
a(f"s_cmp_ge_u32 s{sU}, 30\ns_cbranch_scc1 L_moe")
a("global_load_dword v255, v2, s[100:101]")
a(f"s_mul_i32 s{sG}, s{sU}, 26\ns_lshr_b32 s{sG}, s{sG}, 8\ns_mul_i32 s3, s{sG}, 10\ns_sub_u32 s{sC}, s{sU}, s3\ns_lshr_b32 s{sWV}, s{sWV}, 6")
OFT = sum(int(ch) << (4 * i) for i, ch in enumerate(str(OPT["off"])))
a(f"s_lshl_b32 s3, s{sJ}, 2\ns_lshr_b32 s3, {OFT:#x}, s3\ns_and_b32 s{sMODE}, s3, 15\ns_add_u32 s3, s{sC}, s{sMODE}\ns_sub_u32 s68, s3, 10\ns_cselect_b32 s69, s3, s68")
a(f"s_mul_i32 s3, s69, 245760\ns_lshl_b32 s68, s{sC}, 7\ns_add_u32 s3, s3, s68")
a("v_lshrrev_b32 v1, 3, v0\nv_lshrrev_b32 v3, 4, v0\nv_and_b32 v2, 2, v1\nv_and_or_b32 v2, v3, 4, v2\nv_xor_b32 v2, v2, v0\nv_and_b32 v2, 7, v2")
a("v_mul_u32_u24 v4, 3840, v1\nv_lshl_add_u32 v4, v2, 4, v4\nv_add_u32 v4, s3, v4")
vX, vSUM, vXD, vSTW, vBIA, vEV, vEA = 24, 28, 36, 52, 53, 54, 55
sM, sLO, sLT, sP1, sP2 = 44, 52, 54, 55, 56
sXT, sE2L, sRJ, sNO, sSL, sXM, sXO, sLX, sRD, sPF, sSPL, sFO, sSB = range(57, 70)
sEV, sDL, sWO_ = sXM, sXO, sFO
a(f"s_mul_i32 s3, s{sWV}, 3072\ns_add_u32 m0, s3, {S0 + 12288}\nv_and_b32 v0, 63, v0\ns_and_b32 s{sT}, s{sWV}, 3")
a(f"s_lshr_b32 s3, s{sJ}, 1\ns_lshl_b32 s3, s3, 9\ns_mul_i32 s68, s{sG}, 176\ns_add_u32 s3, s3, s68\ns_and_b32 s68, s{sJ}, 1\ns_add_u32 s3, s3, s68\ns_mul_i32 s{sB0}, s3, 1280")
a(f"s_sub_u32 s{sI}, s{sWV}, 5\ns_mul_i32 s3, s{sI}, {32*2560}\ns_add_u32 s3, s3, s{sB0}\ns_sub_u32 s3, s3, {8*2560}")
a(f"v_lshrrev_b32 v1, 3, v0\nv_lshrrev_b32 v3, 4, v0\nv_xor_b32 v3, v3, v0\nv_and_b32 v3, 7, v3\nv_mul_u32_u24 v1, 2560, v1\nv_lshl_add_u32 v1, v3, 4, v1\nv_add_u32 v{vX}, s3, v1")
a(f"s_add_u32 s3, s{sI}, s{sG}\ns_cmp_eq_u32 s3, 4\ns_cselect_b32 s3, {OOB:#x}, 0")
a(f"v_xor_b32 v{vX+1}, 64, v{vX}\nv_add_u32 v{vX+1}, 20480, v{vX+1}\nv_add_u32 v{vX+2}, 40960, v{vX}\nv_add_u32 v{vX+3}, 40960, v{vX+1}\nv_or_b32 v{vX+3}, s3, v{vX+3}")
for d, sz in ((X, 2048 * 1280), (W, 640 * 3840), (WO, 640 * 1280), (WS, 1 << 28), (OUT, 2048 * 1280), (DBG, 256), (WR, 1280)): a(f"s_mov_b32 s{d+2}, {sz:#x}\ns_mov_b32 s{d+3}, 0x20000")
a("s_waitcnt lgkmcnt(0)")
stamp(0)
def mv(d, n): return f"s_mov_b64 s[{d}:{d+1}], s[{KA[n]}:{KA[n]+1}]"
a(f"global_load_lds_dwordx4 v4, s[46:47]\ns_addk_i32 m0, -256\n{mv(X, 'x')}")
a(f"global_load_lds_dwordx4 v4, s[46:47] offset:1280\ns_addk_i32 m0, -256\n{mv(OUT, 'out')}")
a(f"global_load_lds_dwordx4 v4, s[46:47] offset:2560")
for d, n in ((DBG, "dbg"), (WS, "ws"), (W, "w"), (WO, "wo"), (WR, "wr")): a(mv(d, n))
sMT = 96
if OPT["mt"]: a(f"s_cmp_eq_u32 s{sWV}, 4\ns_cselect_b64 s[{sMT}:{sMT+1}], s[54:55], s[{sMT if OPT['stamps'] else 58}:{sMT+1 if OPT['stamps'] else 59}]\ns_cmp_eq_u32 s{sWV}, 5\ns_cselect_b64 s[{sMT}:{sMT+1}], s[56:57], s[{sMT}:{sMT+1}]")
if OPT["mt"] and OPT["stamps"]: a(f"s_cmp_ge_u32 s{sWV}, 6\ns_cselect_b64 s[{sMT}:{sMT+1}], s[58:59], s[{sMT}:{sMT+1}]")
def nextslab(): a(f"s_add_u32 s{sSB}, s{sSB}, 1\ns_cmp_eq_u32 s{sSB}, 10\ns_cselect_b32 s{sSB}, 0, s{sSB}")
def advslot(d): a(f"s_add_u32 s{d}, s{d}, {SLOT}\ns_cmp_eq_u32 s{d}, {S0 + 4*SLOT}\ns_cselect_b32 s{d}, {S0}, s{d}")
def xissue():
    a(f"s_add_u32 m0, s{sSL}, s{sLX}\ns_mov_b32 exec_lo, s{sXM}")
    for i in range(4):
        a(f"buffer_load_dwordx4 v{vX+i}, {S(X)}, s{sXO} offen lds")
        if i < 3: a("s_addk_i32 m0, 1024")
        if i == 0: a("s_mov_b32 exec_lo, -1")
a(f"s_cmp_lt_u32 s{sWV}, 5\ns_cbranch_scc1 L_nx")
a(f"s_lshl_b32 s{sLX}, s{sI}, 12\ns_cselect_b32 s{sXM}, -1, 0xffffff00\ns_lshl_b32 s{sXO}, s69, 7\ns_mov_b32 s{sSL}, {S0}")
xissue()
a("L_nx:")
stamp(1)
aKe, aK4, aKx, aKy = range(200, 204)
aQe, aQx, aQy, aQ4 = 204, 206, 208, 210
aVe, aV1, aV2 = range(216, 219)
vM, aRK, aCQ, aH0s, aH0l, aOs, aOl, aWO, aOUT, aL16, vRK, aXC, XR = 220, 222, 223, 224, 225, 226, 227, 228, 232, 233, 234, 235, 236
vAW, vAX0, vAX1, vSW, vSTR = 244, 245, 246, 247, 248
WRF, WSP = 244, 252
MASK = [lanes(lambda l: 2 * r + (l >> 5) > (l & 7)) for r in range(4)]
LO = lanes(lambda l: (l & 15) < 8)
sTA, sTP, sTS = 44, 44, 45
aOl2 = XR
def suA():
    a(f"s_mov_b32 s{sBUD}, {BUDGET}\ns_mul_i32 s{sGID}, s{sJ}, 3\ns_add_u32 s{sGID}, s{sGID}, s{sG}\ns_sub_u32 s3, s{sC}, 5\ns_cselect_b32 s{sC5}, s{sC}, s3")
    a(f"s_lshl_b32 s3, s{sWV}, 2\ns_lshr_b32 s{sTA}, 0x32105454, s3\ns_and_b32 s{sTA}, s{sTA}, 7\ns_lshr_b32 s45, s{sT}, 1\ns_add_u32 s45, s45, 4")
    a(f"s_cmp_eq_u32 s{sG}, 2\ns_cselect_b32 s{sNO}, 10, 11")
    a(f"s_sub_u32 s{sXT}, 10, s{sMODE}\nv_lshlrev_b32 v{aL16}, 4, v0")
    a(f"s_mul_i32 s{sE2L}, s{sGID}, 6\ns_add_u32 s{sE2L}, s{sE2L}, s{sTP}\ns_mul_i32 s{sE2L}, s{sE2L}, 2560\ns_add_u32 s{sE2L}, s{sE2L}, {E2}")
    a(f"s_lshl_b32 s{sRJ}, s{sJ}, 15\ns_add_u32 s{sRJ}, s{sRJ}, {RJ}")
    a(f"s_sub_u32 s51, 5, s{sC5}\ns_add_u32 s1, s{sC5}, 1\ns_sub_u32 s3, 15, s{sC5}\ns_cmp_le_u32 s{sC5}, 2\n"
      "s_cselect_b32 s46, 0, s3\ns_cselect_b32 s47, s51, s1\ns_cselect_b32 s48, s3, 0\ns_cselect_b32 s49, s1, s51\ns_cselect_b32 s50, 1, 0")
    a("v_and_b32 v3, 15, v0\nv_add_u32 v3, 8, v3\nv_lshrrev_b32 v4, 1, v3\nv_lshrrev_b32 v5, 5, v0\nv_xor_b32 v4, v4, v5\nv_and_b32 v4, 7, v4")
    a(f"v_lshlrev_b32 v4, 4, v4\nv_lshl_add_u32 v4, v3, 7, v4\nv_bfe_u32 v5, v0, 4, 1\nv_lshl_add_u32 v4, v5, 3, v4\ns_lshl_b32 s3, s{sTP}, 11\nv_add_u32 v{aXC}, s3, v4")
def suB():
    a(f"v_and_b32 v1, 15, v0\nv_lshrrev_b32 v2, 4, v0\nv_mov_b32 v7, {ZR}\ns_mul_i32 s0, s{sTA}, {16*PITCH}\ns_movk_i32 s1, {PITCH}")
    a("v_bfe_u32 v3, v0, 2, 1\nv_and_b32 v4, 3, v0\nv_lshlrev_b32 v4, 1, v4"); a("v_lshl_add_u32 v3, v3, 3, v4\nv_bfe_u32 v4, v0, 3, 1\nv_add_u32 v3, v3, v4")
    a(f"s_add_u32 s3, s0, {KB}\nv_mov_b32 v4, s3\nv_mad_u32_u24 v3, v3, s1, v4")
    a(f"s_add_u32 s3, s0, {QB + 8*PITCH}\nv_mov_b32 v4, s3\nv_mad_u32_u24 v4, v1, s1, v4")
    smask(52, LO)
    def kq(dK, dQ, quad, cond):
        a(quad); a(f"v_lshl_add_u32 v{dK}, v5, 3, v3\nv_lshl_add_u32 v5, v5, 3, v4")
        if cond: a(cond); a("v_cndmask_b32 v5, v7, v5, vcc")
        a(f"v_cndmask_b32 v{dQ}, v7, v5, s[52:53]\nv_cndmask_b32 v{dQ+1}, v5, v7, s[52:53]")
    kq(aKe, aQe, "v_add_u32 v5, s51, v2", None)
    kq(aKx, aQx, "v_add_u32 v5, s46, v2", "v_cmp_gt_u32 vcc, s47, v2")
    kq(aKy, aQy, "v_add_u32 v5, s48, v2\nv_min_u32 v5, 15, v5", "v_cmp_gt_u32 vcc, s49, v2")
    a("s_sub_u32 s3, s51, 1\nv_mad_u32_u24 v5, v2, 5, s3\ns_add_u32 s3, s46, 4\nv_mov_b32 v6, s3\ns_mov_b64 vcc, 0xffff\nv_cndmask_b32 v5, v5, v6, vcc")
    a(f"v_min_u32 v5, 15, v5\nv_lshl_add_u32 v{aK4}, v5, 3, v3\nv_lshl_add_u32 v5, v5, 3, v4")
    a(f"s_cmp_eq_u32 s47, 5\ns_cselect_b64 vcc, 0xff, 0\nv_cndmask_b32 v{aQ4}, v7, v5, vcc\ns_lshl_b64 vcc, vcc, 8\nv_cndmask_b32 v{aQ4+1}, v7, v5, vcc")
    for i in range(2, 6): a(f"s_bfm_b64 vcc, 8, {8*i}\nv_cndmask_b32 v{aQ4+i}, v7, v5, vcc")
def suC():
    a(f"s_mul_i32 s0, s{sTA}, {16*PITCH}\ns_movk_i32 s1, {PITCH}")
    a("v_bfe_u32 v3, v0, 2, 3\nv_lshrrev_b32 v4, 5, v0\nv_lshl_add_u32 v3, v3, 1, v4")
    a(f"s_add_u32 s3, s0, {VB}\nv_mov_b32 v4, s3\nv_mad_u32_u24 v3, v3, s1, v4\nv_and_b32 v4, 3, v0")
    smask(54, lanes(lambda l: l & 3 == 0))
    a(f"v_add_u32 v5, s51, v4\nv_lshl_add_u32 v{aVe}, v5, 3, v3\nv_add_u32 v7, 32, v{aVe}")
    a(f"s_cmp_eq_u32 s50, 1\ns_cselect_b32 s3, -1, 12\ns_cselect_b32 s56, 2, -1")
    a(f"v_add_u32 v5, s3, v4\nv_lshl_add_u32 v5, v5, 3, v3\nv_cndmask_b32 v{aV1}, v5, v7, s[54:55]\nv_add_u32 v7, 40, v7")
    a(f"v_add_u32 v5, s56, v4\nv_add_u32 v6, 10, v5\nv_cmp_gt_i32 vcc, s51, v5"); a(f"v_cndmask_b32 v5, v6, v5, vcc\nv_lshl_add_u32 v5, v5, 3, v3\nv_cndmask_b32 v{aV2}, v5, v7, s[54:55]")
    a(f"s_lshl_b32 s0, s{sTA}, 8\nv_lshrrev_b32 v4, 5, v0\nv_and_or_b32 v3, v0, 8, v4\ns_add_u32 s3, s0, {STATS + 8}\nv_lshl_add_u32 v{aRK}, v3, 4, s3")
    a(f"v_and_b32 v1, 15, v0\ns_add_u32 s3, s0, {STATS + 128 + 4}\nv_lshl_add_u32 v{aCQ}, v1, 4, s3")
    a(f"s_lshr_b32 s3, s{sB0}, 8\ns_mul_i32 s3, s3, 52429\ns_lshr_b32 s3, s3, 18\ns_lshl_b32 s0, s{sTP}, 5\ns_add_u32 s3, s3, s0\ns_sub_u32 s3, 2047, s3\nv_mad_i32_i24 v{vRK}, v1, -2, s3")
def octaddr(d, tile, rowq, extra):
    a(f"s_lshl_b32 s3, s{tile}, 4\nv_add_u32 v5, s3, v{rowq}\ns_lshl_b32 s3, s{sNO}, 3\nv_cmp_gt_u32 vcc, s3, v5")
    a(f"v_mul_u32_u24 v5, 2560, v5\nv_add3_u32 v5, v5, v{extra}, s{sB0}\nv_cndmask_b32 v{d}, v6, v5, vcc")
def suD(helper=1):
    a(f"v_lshrrev_b32 v2, 4, v0\nv_and_or_b32 v3, v0, 8, v2\nv_and_b32 v4, 0x70, v{aL16}\nv_bfrev_b32 v6, 1")
    if helper: octaddr(aOl2, sTS, 3, 4)
    octaddr(aOl, sTA, 3, 4)
    a(f"s_lshl_b32 s3, s{sC}, 7\nv_add_u32 v{aOs}, s3, v{aOl}")
    a(f"v_bfe_u32 v3, v0, 4, 1\nv_cmp_eq_u32 s[54:55], s50, v3\ns_cmp_lg_u32 s{sC5}, 0\ns_cselect_b64 s[0:1], -1, s[54:55]\ns_and_b64 vcc, vcc, s[0:1]")
    a(f"s_cmp_lg_u32 s{sC5}, 4\ns_cselect_b64 s[0:1], 0, s[54:55]\ns_andn2_b64 vcc, vcc, s[0:1]")
    a(f"v_cndmask_b32 v{aH0l}, v6, v{aOs}, vcc")
    a(f"s_cmp_le_u32 s{sC5}, 3\ns_cselect_b32 s3, 2560, 0\ns_sub_u32 s3, s3, 128\nv_mov_b32 v4, s3"); a(f"s_cmp_ge_u32 s{sC5}, 2\ns_cselect_b32 s3, 2560, 0\ns_add_u32 s3, s3, 128\nv_mov_b32 v5, s3")
    a(f"v_cndmask_b32 v4, v4, v5, s[54:55]\nv_mul_u32_u24 v3, 2560, v3\nv_sub_u32 v4, v4, v3"); a(f"v_add_u32 v4, v4, v{aOs}\nv_cndmask_b32 v{aH0s}, v6, v4, vcc")
def wlane():
    a("v_bfe_u32 v3, v0, 3, 2\nv_lshlrev_b32 v3, 2, v3\nv_and_or_b32 v3, v0, 3, v3"); a("v_lshlrev_b32 v3, 3, v3\nv_bfe_u32 v4, v0, 2, 2\nv_lshl_add_u32 v3, v4, 7, v3")
def suE(helper=1):
    a("v_and_b32 v1, 15, v0\nv_bfrev_b32 v6, 1\nv_bfe_u32 v3, v0, 4, 1\nv_lshrrev_b32 v4, 5, v0"); a(f"v_lshl_add_u32 v3, v3, 1, v4\ns_lshl_b32 s3, s{sC}, 7\nv_lshl_add_u32 v4, v3, 4, s3")
    octaddr(aOUT, sTP, 1, 4)
    wlane()
    a("v_lshrrev_b32 v2, 4, v0")
    if helper:
        a(f"s_and_b32 s3, s{sWV}, 1\ns_lshl_b32 s3, s3, 12\ns_add_u32 s3, s3, {WOB}\nv_lshl_add_u32 v4, v2, 10, v3\nv_add_u32 v{aWO}, s3, v4")
        for ct in range(1, 4): a(f"v_xor_b32 v{aWO+ct}, {32*ct}, v{aWO}")
    for r in range(4): smask(sM + 2 * r, MASK[r])
    a(f"s_movk_i32 s{sLT}, 10240\ns_mov_b32 s{sP1}, 0x07060501\ns_mov_b32 s{sP2}, 0x0706000c")
    a("v_mov_b32 v5, 0xffff\nv_mov_b32 v6, 0xffff0000")
    for d in range(2): a(f"v_cndmask_b32 v1, 0, v5, s[{sM+4*d}:{sM+4*d+1}]\nv_cndmask_b32 v4, 0, v6, s[{sM+4*d+2}:{sM+4*d+3}]\nv_or_b32 v{vM+d}, v1, v4")
KQ, SS, KS, PX, FL_, FE, VF, HL, CQ, TM, F01 = 96, 152, 168, 176, 192, 196, 64, 92, 5, 6, 2
DM, LT, QF = SS, 80, KQ + 20
H, OF, WOF, RING = 8, 24, 104, 6
DEP = OPT["dep"]
def capt(slot, d=XR):
    a(f"v_add_u32 v1, {slot}, v{aXC}")
    for ct in range(4):
        if ct: a(f"v_xor_b32 v{1+ct}, {32*ct}, v1")
        a(f"ds_read_b64 {V(d+2*ct,2)}, v{1+ct}")
def hinit(d=XR):
    for i in range(8): a(f"v_lshlrev_b32 v{H+2*i}, 16, v{d+i}\nv_and_b32 v{H+2*i+1}, 0xffff0000, v{d+i}")
def ldWR():
    a(f"v_lshrrev_b32 v1, 4, v0\nv_lshlrev_b32 v1, 3, v1\ns_lshl_b32 s3, s{sC}, 7")
    for ct in range(4): a(f"buffer_load_dwordx2 {V(WRF+2*ct,2)}, v1, {S(WR)}, s3 offen offset:{32*ct}")
def wrprep(t):
    a(f"s_mov_b32 s3, {ONES:#x}")
    for i in range(4): a(f"v_mov_b32 v{t+i}, s3")
    execset(0x1111111111111111)
    for i in range(8): a(f"v_mov_b32 v{WRF+i}, s3")
    execset(-1)
    for k in range(2): mfma(WSP, WRF + 4 * k, t, "0" if k == 0 else None)
def pzero(lo=0, hi=16):
    for i in range(lo, hi): a(f"v_mov_b32 v{PX+i}, 0")
def ksread(e=None):
    e = e or a
    a(f"v_add_u32 v1, 128, v{aRK}")
    for r in range(4):
        e(f"v_cndmask_b32 v2, v1, v{aRK}, s[{sM+2*r}:{sM+2*r+1}]\nds_read_b64 {V(KS+2*r,2)}, v2 offset:{32*r}")
    e(f"ds_read_b32 v{CQ}, v{aCQ}")
def rdmode(): a(f"v_mov_b32 v1, {MODE}\nds_read_b32 v1, v1\ns_waitcnt lgkmcnt(0)\nv_readfirstlane_b32 s{sMODE}, v1")
def gsync_h(poll):
    l = a.label("gh")
    a(f"s_cmp_eq_u32 s{sMODE}, 1\ns_cbranch_scc0 {l}g\n{l}b:")
    t = f"{l}g:\ns_barrier\n"
    if poll:
        t += f"s_cmp_eq_u32 s{sWV}, 5\ns_cbranch_scc0 {l}e\nv_mov_b32 v1, 1\ns_mov_b64 exec, 1\nbuffer_store_dword v1, off, {S(WS)}, s{sFO} offset:64 sc1\ns_mov_b64 exec, -1\n"
        t += f"{l}p:\nbuffer_load_dword v1, v{vEA}, {S(WS)}, 0 offen offset:64 sc1\ns_waitcnt vmcnt(0)\nv_cmp_ne_u32 vcc, 1, v1\ns_cbranch_vccz {l}e\ns_sub_u32 s{sBUD}, s{sBUD}, 1\ns_cbranch_scc0 {l}p\ns_mov_b32 s{sBUD}, 0\n{l}e:\n"
    DEFER.append(t + f"s_barrier\ns_branch {l}b")
def weave(P, xs):
    xs = list(xs); per = -(-len(xs) // len(P))
    for p in P:
        a(p)
        for _ in range(per):
            if xs: a(xs.pop(0))
a("v_mov_b32 v254, v4")
suA()
a(f"s_cmp_lt_u32 s{sWV}, 4\ns_cbranch_scc1 L_cons")
vW, vT = 24, 56
STR = {5: 0, 3: 1, 13: 2, -3: 3, -13: 4}
def wo_setup(vT=vT):
    a(f"v_lshrrev_b32 v1, 3, v0\nv_and_b32 v2, 2, v1\nv_xor_b32 v2, v2, v0\ns_lshl_b32 s3, s{sWV}, 2\nv_xor_b32 v2, s3, v2")
    a(f"v_and_b32 v2, 7, v2\ns_lshl_b32 s3, s{sC}, 7\nv_lshl_add_u32 v2, v2, 4, s3")
    a(f"v_and_b32 v3, 3, v1\nv_mul_u32_u24 v3, 1280, v3\nv_add_u32 v2, v3, v2")
    a(f"v_lshrrev_b32 v3, 5, v0\nv_mul_u32_u24 v3, 5120, v3\nv_sub_u32 v4, 5120, v3")
    for d, i in STR.items(): a(f"v_mad_u32_u24 v{vT+i}, v{3 + (d < 0)}, {abs(d)}, v2")
def wo_quads(cp, h, g):
    c5 = cp % 5
    if h == 0: return 5 - c5 + g, 10 - c5 + g
    if g == 0: return 9 - c5, 14 - c5
    i = g - 1
    p = 3 + i if c5 <= 2 else i
    return (i if c5 <= 2 else 13 + i), (p if p < 5 - c5 else 10 + p)
def wo_piece(st, g):
    h, cp = st // 10, st % 10
    q0, q1 = wo_quads(cp, h, g or 0)
    t = f"s_lshl_b32 s3, s{sT}, 10\ns_add_u32 m0, s3, {WOB}" if st == 0 else "s_addk_i32 m0, 4096"
    o = (64*cp + 4*min(q0, q1)) * 1280
    t += f"\ns_add_u32 s3, s{sPF}, {o}" if g is None else f"\ns_mov_b32 s3, {o}"
    return t + f"\nbuffer_load_dwordx4 v{vT + STR[q1 - q0]}, {S(WO)}, s3 offen lds"
def wo_late(lo, w, vT):
    for st in range(lo, 20):
        for g in (w, w + 2):
            q0, q1 = wo_quads(st % 10, st // 10, g)
            a(f"s_mov_b32 m0, {WOB + 4096*st + 1024*g}" if (st, g) == (lo, w) else "s_addk_i32 m0, 2048")
            a(f"s_mov_b32 s3, {(64*(st % 10) + 4*min(q0, q1)) * 1280}\nbuffer_load_dwordx4 v{vT + STR[q1 - q0]}, {S(WO)}, s3 offen lds")
def wo_run(lo, hi, tag):
    for st in range(lo, min(hi, 10)): a(wo_piece(st, None))
    lo = max(lo, 10)
    if lo >= hi: return
    for g in range(1, 4):
        a(f"s_cmp_eq_u32 s{sT}, {g}\ns_cbranch_scc1 L_wo{tag}{g}")
        DEFER.append(f"L_wo{tag}{g}:\n" + "\n".join(wo_piece(st, g) for st in range(lo, hi)) + f"\ns_branch L_wo{tag}")
    for st in range(lo, hi): a(wo_piece(st, 0))
    a(f"L_wo{tag}:")
N0 = OPT["n0"]; NA = N0 + OPT["na"]; NB = NA + OPT["nb"]; N1 = NB + OPT["n1"]
assert 2 * DEP <= N0 <= N1 <= 20
vTC = 61
def touch_setup():
    a(f"s_mul_i32 s3, s{sT}, 3\nv_lshrrev_b32 v1, 2, v0\nv_add_u32 v1, s3, v1\ns_add_u32 s3, s3, 3\ns_min_u32 s3, s3, s{sNO}\nv_cmp_gt_u32 vcc, s3, v1\nv_and_b32 v2, 3, v0\nv_lshl_add_u32 v1, v1, 3, v2")
    a(f"v_mul_u32_u24 v1, 2560, v1\ns_lshl_b32 s0, s{sC}, 7\ns_add_u32 s3, s0, s{sB0}\nv_add_u32 v1, s3, v1\nv_bfrev_b32 v2, 1\nv_cndmask_b32 v{vTC}, v2, v1, vcc")
    a(f"s_mul_i32 s3, s{sT}, 3\nv_min_u32 v1, 2, v0\nv_add_u32 v1, s3, v1\nv_lshrrev_b32 v2, 1, v1\nv_mul_u32_u24 v2, {2560 - 256}, v2\nv_lshl_add_u32 v1, v1, 7, v2")
    a(f"s_mul_i32 s3, s{sGID}, 15360\ns_lshl_b32 s0, s{sC}, 8\ns_add_u32 s3, s3, s0\ns_add_u32 s3, s3, {E2}\nv_add_u32 v{vTC+2}, s3, v1")
    if OPT["mt"]:
        R = 64 * (10 - OPT["mx"]); per = -(-2 * R // 30)
        a(f"s_mul_i32 s3, s{sU}, {per}\nv_min_u32 v1, {per-1}, v0\nv_add_u32 v1, s3, v1\nv_min_u32 v1, {2*R-1}, v1\nv_cmp_le_u32 vcc, {R}, v1\nv_mul_u32_u24 v1, 3072, v1")
        a(f"s_mul_i32 s3, s{sJ}, 384\ns_add_u32 s3, s3, {64*OPT['mx']*3072}\nv_add_u32 v1, s3, v1\nv_subrev_u32 v2, {(R + 320)*3072 - 256}, v1\nv_cndmask_b32 v1, v1, v2, vcc")
        a(f"s_mul_i32 s3, s{sJ}, 60\ns_lshl_b32 s0, s{sU}, 1\ns_add_u32 s3, s3, s0\ns_and_b32 s0, s{sWV}, 1\ns_add_u32 s3, s3, s0\ns_lshl_b32 s3, s3, 12\nv_min_u32 v2, 31, v0\nv_lshl_add_u32 v2, v2, 7, s3")
        a(f"s_cmp_ge_u32 s{sWV}, 6\ns_cselect_b64 vcc, -1, 0\nv_cndmask_b32 v{vMT}, v1, v2, vcc")
vMT = 84
def mtouch(p):
    if OPT["mt"] == p: a(f"global_load_dword v{vMT}, v{vMT}, s[{sMT}:{sMT+1}]")
NT = sum(OPT[k] in (0, 1) for k in ("te", "tl", "t2")) + (OPT["mt"] in (1, 2, 5))
NT2 = sum(OPT[k] == 2 for k in ("te", "tl", "t2")) + (OPT["mt"] == 3)
def xstart(i): nextslab(); a(f"s_lshl_b32 s{sXO}, s{sSB}, 7\ns_mov_b32 s{sSL}, {S0 + SLOT*(i % 4)}")
xstart(1)
if OPT["x1"] == 0: a(f"s_cmp_eq_u32 s{sWV}, 4\ns_cbranch_scc1 L_n1"); xissue(); a("L_n1:")
suB(); suC()
stamp(0, 5)
suD(); suE(); wo_setup(); touch_setup(); pzero()
a(f"s_cmp_eq_u32 s{sWV}, 4\ns_cbranch_scc1 L_h0")
E1_, E2_ = OPT["e1"], OPT["e2"]
assert 1 <= E1_ and E1_ + 2 <= E2_ <= 4
vXA = vEV
a(f"v_mov_b32 v4, {ONES:#x}\nv_mov_b32 v5, v4\nv_lshrrev_b32 v1, 4, v0\nv_mul_u32_u24 v1, {SLOT - 128}, v1\nv_lshl_add_u32 v1, v0, 3, v1\nds_write_b64 v1, v[4:5] offset:{S0}")
a(f"s_sub_u32 s0, s{sWV}, 5\ns_mul_i32 s3, s{sGID}, 3\ns_add_u32 s3, s3, s0\ns_mul_i32 s3, s3, 2560\ns_add_u32 s{sSPL}, s3, {SP}")
a(f"s_mul_i32 s3, s{sG}, 1280\ns_add_u32 s3, s3, s{sRJ}\ns_add_u32 s{sPF}, s3, {R_FL}\nv_min_u32 v1, 9, v0\nv_lshl_add_u32 v{vEA}, v1, 7, s{sPF}\ns_lshl_b32 s{sFO}, s{sC}, 7\ns_add_u32 s{sFO}, s{sFO}, s{sPF}")
a(f"v_and_b32 v1, 15, v0\nv_lshrrev_b32 v2, 5, v0\nv_lshl_add_u32 v2, v2, 4, v1\ns_lshl_b32 s0, s0, 5\nv_add_lshl_u32 v{vSTW}, v2, s0, 4")
a(f"v_lshrrev_b32 v2, 4, v0\nv_lshrrev_b32 v3, 1, v1\nv_xor_b32 v3, v3, v2\nv_lshlrev_b32 v3, 4, v3\nv_lshl_add_u32 v3, v1, 7, v3\nv_add_u32 v{vXA}, s{sLX}, v3")
a(f"s_cmp_lt_u32 s{sB0}, 2560\ns_cselect_b32 s3, 128, 0\nv_mov_b32 v1, 0xf149f2ca\nv_cmp_gt_u32 vcc, s3, v{vSTW}\nv_cndmask_b32 v{vBIA}, 0, v1, vcc")
stamp(1, 5)
if OPT["xprio"]: a(f"s_setprio {OPT['xprio']}")
if OPT["x1"] == 2: xissue()
ldWR()
for k in range(4): a(f"v_mov_b32 v{64+k}, {ONES:#x}")
if OPT["dbg"] & 64: a(f"s_lshl_b32 s3, s{sC}, 8\ns_add_u32 s3, s3, s{sSPL}\ns_mov_b64 exec, 0xffff\nbuffer_store_dwordx4 v[64:67], v{aL16}, {S(WS)}, s3 offen sc1\ns_mov_b64 exec, -1")
a(f"s_waitcnt vmcnt({9 if OPT['dbg'] & 64 else 8}) lgkmcnt(0)")
stamp(2, 5)
def part_stats():
    PD = 96
    a(f"v_xor_b32 v1, 64, v{vXA}")
    for t in range(2):
        for ks in range(2): a(f"ds_read_b128 {V(vXD+8*t+4*ks,4)}, v{1 if ks else vXA} offset:{S0 + 2048*t}")
    a(f"s_lshl_b32 s3, s{sC}, 8\ns_add_u32 s3, s3, s{sSPL}\nv_and_b32 v2, 0xf0, v{aL16}\ns_mov_b32 s0, 0xaaaaaaaa\ns_mov_b32 s1, s0\ns_mov_b32 vcc_lo, 0xcccccccc\ns_mov_b32 vcc_hi, 0xcccccccc")
    for t in range(2):
        for ks in range(2):
            a(f"s_waitcnt lgkmcnt({3 - 2*t - ks})")
            mfma(PD + 8 * t, vXD + 8 * t + 4 * ks, vXD + 8 * t + 4 * ks, None if ks else "0")
            mfma(PD + 8 * t + 4, 64, vXD + 8 * t + 4 * ks, None if ks else "0")
    for t in range(2):
        d = PD + 8 * t
        a(f"v_cndmask_b32 v{d}, v{d}, v{d+1}, s[0:1]\nv_cndmask_b32 v{d+2}, v{d+2}, v{d+3}, s[0:1]\nv_cndmask_b32 v{vSUM+2*t+1}, v{d}, v{d+2}, vcc\nv_mov_b32 v{vSUM+2*t}, v{d+4}")
    execset(0xF0000F0000F0000F)
    a(f"buffer_store_dwordx4 {V(vSUM,4)}, v2, {S(WS)}, s3 offen sc1")
    execset(-1)
    for i in range(4): a(f"v_mov_b32 v{vXD+8+i}, 0")
def only5(tag, fn):
    a(f"s_cmp_eq_u32 s{sWV}, 5\ns_cbranch_scc0 L_o5{tag}"); fn(); a(f"L_o5{tag}:")
def evchk(tag, cmp_, ld):
    a(f"s_waitcnt lgkmcnt(0)\n{cmp_}\ns_cbranch_scc0 L_er{tag}\nL_eg{tag}:")
    DEFER.append(f"L_er{tag}:\ns_sub_u32 s{sBUD}, s{sBUD}, 1\ns_cbranch_scc1 L_ex{tag}\n{ld}\ns_waitcnt lgkmcnt(0)\n{cmp_}\ns_cbranch_scc0 L_er{tag}\ns_branch L_eg{tag}\nL_ex{tag}:\ns_mov_b32 s{sBUD}, 0\ns_branch L_eg{tag}")
FR = [71, 73, 75, 77, 83, 85, 89, 91, 93, 95]
ldroot = f"s_lshl_b32 s0, s{sJ}, 5\nv_and_b32 v1, 16, v0\nbuffer_load_dword v{vSUM+4}, v1, {S(DBG)}, s0 offen sc1"
ldflag = "\n".join(f"s_buffer_load_dword s{r}, {S(WS)}, s{sPF} offset:{128*k} glc" for k, r in enumerate(FR))
for i in range(9):
    a("s_barrier")
    stamp(3 + i, 5)
    ex = 0
    if i == E1_ + 1:
        def f():
            evchk("a", f"v_cmp_ne_u32 vcc, 1, v{vSUM+4}\ns_cmp_eq_u64 vcc, 0", ldroot + "\ns_waitcnt vmcnt(0)")
            a(f"s_getreg_b32 s0, hwreg(HW_REG_XCC_ID, 0, 4)\nv_mov_b32 v1, s0\ns_mov_b64 exec, 1\nbuffer_store_dword v1, off, {S(WS)}, s{sFO} sc1\ns_mov_b64 exec, -1")
        only5("c", f)
    if i == E2_ + 2:
        for k in range(3):
            if k == 2: a("s_mov_b32 exec_hi, 0")
            if OPT["dbg"] & 16: a(f"s_mov_b32 s{sSPL}, {OOB:#x}")
            a(f"buffer_load_dwordx4 {V(vXD+4*k,4)}, v{aL16}, {S(WS)}, s{sSPL} offen offset:{1024*k} sc1")
        a("s_mov_b32 exec_hi, -1"); ex += 3
    if i == 0: part_stats(); ex += 1
    if OPT["pf0"] & 1 and OPT["pfp"] % 10 == i + 2:
        a(f"s_mul_i32 s3, s2, 3\ns_add_u32 s3, s3, s{sWV}\ns_sub_u32 s3, s3, 5\ns_mul_i32 s3, s3, {9*128}\nv_lshlrev_b32 v1, 7, v0\ns_mov_b64 exec, 0x1ff\nbuffer_load_dword v255, v1, {S(WO)}, s3 offen\ns_mov_b64 exec, -1"); ex += 1
    if i < 8: xstart(i + 2); xissue()
    if i:
        a(f"s_cmp_eq_u32 s{sXT}, {i}\ns_cbranch_scc0 L_xc{i}\ns_mov_b32 s0, {S0 + SLOT * (i % 4)}\ns_call_b64 s[100:101], L_xcap\nL_xc{i}:")
    if i == E2_ + 1:
        def f():
            evchk("b", f"s_max_u32 s0, s{FR[0]}, s{FR[1]}\n" + "\n".join(f"s_max_u32 s0, s0, s{r}" for r in FR[2:]) + "\ns_cmp_lg_u32 s0, -1", ldflag)
            a(f"s_min_u32 s1, s{FR[0]}, s{FR[1]}\n" + "\n".join(f"s_min_u32 s1, s1, s{r}" for r in FR[2:]) + f"\ns_cmp_eq_u32 s0, s1\ns_cselect_b32 s0, {OPT['fmode']}, 0")
            a(f"v_mov_b32 v1, {MODE}\nv_mov_b32 v2, s0\nds_write_b32 v1, v2")
        only5("d", f)
    if i == E2_ + 3:
        a(f"s_waitcnt vmcnt({8 + ex})")
        for k in (4, 8):
            for e in range(4): a(f"v_add_f32 v{vXD+e}, v{vXD+e}, v{vXD+k+e}")
        a(f"v_permlane32_swap_b32 v{vXD}, v{vXD+2}\nv_permlane32_swap_b32 v{vXD+1}, v{vXD+3}\nv_add_f32 v{vXD}, v{vXD}, v{vXD+2}\nv_add_f32 v{vXD+1}, v{vXD+1}, v{vXD+3}")
        a(f"v_mov_b32 v{vXD+2}, v{vXD}\nv_mov_b32 v{vXD+3}, v{vXD+1}\ns_mov_b32 s1, 0x3acccccd\nv_mov_b32 v1, 0x3727c5ac")
        a(f"v_permlane16_swap_b32 v{vXD}, v{vXD+2}\nv_permlane16_swap_b32 v{vXD+1}, v{vXD+3}\nv_add_f32 v{vXD}, v{vXD}, v{vXD+2}\nv_add_f32 v{vXD+1}, v{vXD+1}, v{vXD+3}")
        a(f"v_mul_f32 v{vXD}, 0xbacccccd, v{vXD}\nv_fma_f32 v2, v{vXD+1}, s1, v1\nv_fma_f32 v2, -v{vXD}, v{vXD}, v2\nv_max_f32 v2, v2, v1\nv_rsq_f32 v{vXD+1}, v2\nv_mov_b32 v{vXD+3}, v{vBIA}\nv_mov_b32 v{vXD+2}, v{vXD+1}")
        a(f"ds_write_b128 v{vSTW}, {V(vXD,4)} offset:{STATS}")
    if 1 <= i <= 6 and OPT["pg"]:
        a(f"s_cmp_eq_u32 s{sWV}, 7\ns_cbranch_scc0 L_wm{i}"); warm("h", i - 1, 6); a(f"L_wm{i}:")
    if i == 0: pagebreak("c0")
    if i == 7 and OPT["wsp"]: pagebreak("h")
    if i == 8: break
    if i == E1_ + 1: a(f"s_cmp_eq_u32 s{sWV}, 5\ns_cbranch_scc1 L_w5{i}\ns_waitcnt vmcnt({4 + ex})\nL_w5{i}:"); ex += 1
    a(f"s_waitcnt vmcnt({4 + ex}) lgkmcnt(0)")
    if i == E1_ - 1: only5("a", lambda: a(ldroot))
    if i == E2_: only5("b", lambda: a(ldflag))
    if OPT["wsp"] and i >= OPT["ws0"]:
        LQ = [(cp, q) for cp in range(5) for g in range(4) for q in wo_quads(cp, 1, g)]
        part = LQ[OPT["wsp"] * (i - OPT["ws0"]):OPT["wsp"] * (i - OPT["ws0"] + 1)]
        if part:
            if i == OPT["ws0"]: a(f"s_mul_i32 s3, s{sG}, 3\ns_add_u32 s3, s3, s{sWV}\ns_sub_u32 s3, s3, 5\ns_lshr_b32 s0, s3, 2\ns_mul_i32 s0, s0, 316\ns_add_u32 s3, s3, s0\ns_mul_i32 s3, s3, 1280\ns_lshl_b32 s0, s{sC}, 7\ns_add_u32 s{sRD}, s3, s0")
            for cp, q in part:
                for o in (0, 64): a(f"s_buffer_load_dword s79, {S(WO)}, s{sRD} offset:{(64*cp + 4*q)*1280 + o}")
    if i == 2 and OPT["ppr"]:
        a(f"s_lshl_b32 s3, s{sC}, 8\ns_add_u32 s3, s3, s{sSPL}")
        for k in range(4): a(f"s_buffer_load_dword s75, {S(WS)}, s3 offset:{64*k}")
a(f"L_h8:\ns_mul_i32 s{sPF}, s{sT}, 5120")
mtouch(4)
wo_run(0, N0, "a")
mtouch(5)
ksread(); rdmode()
if OPT['hp'] == 0: hinit(72); wrprep(64)
a(f"s_waitcnt vmcnt({N0 + (OPT['mt'] >= 4)})")
stamp(2)
a("s_barrier")
stamp(3); stamp(9, 2); stamp(0, 3)
if not OPT['clr']: gsync_h(1)
def touch(p):
    if p == OPT["tl"]: a(f"buffer_load_dword v{vTC+1}, v{vTC}, {S(OUT)}, s{sLT} offen")
    if p == OPT["te"]: a(f"buffer_load_dword v{vTC+1}, v{vTC}, {S(OUT)}, 0 offen")
    if p == OPT["t2"]: a(f"buffer_load_dword v{vTC+2}, v{vTC+2}, {S(WS)}, 0 offen")
wo_run(N0, NA, "d")
touch(0)
mtouch(1)
if OPT['hp'] == 1: hinit(72); wrprep(64)
sO, sDW = 61, 65
a(f"s_and_b32 s3, s{sWV}, 1\ns_lshl_b32 s{sO}, s3, 7\ns_xor_b32 s{sO+1}, s{sO}, 128\ns_add_u32 s{sO+2}, s{sO+1}, s{sLT}\ns_add_u32 s{sO+3}, s{sO}, s{sLT}\ns_lshl_b32 s3, s3, 13\ns_sub_u32 s{sDW}, 4096, s3")
DEFER.append("L_xcap:\n" + "\n".join(capture(lambda: capt("s0", 72))) + "\ns_setpc_b64 s[100:101]")

def rdWO1(s, ct, e):
    t = ""
    if e == 0 and s in (5, 10, 15): t = {5: f"v_add_u32 v{aWO+ct}, s{sDW}, v{aWO+ct}", 10: f"v_add_u32 v{aWO+ct}, 40960, v{aWO+ct}", 15: f"v_subrev_u32 v{aWO+ct}, s{sDW}, v{aWO+ct}"}[s] + "\n"
    return t + f"ds_read_b64_tr_b16 {V(WOF + 16*(s % RING) + 4*ct + 2*e, 2)}, v{aWO+ct} offset:{8192*(s % 5) + 512*e}"
SF = 15 - OPT["sf"]
OL = [(s, w) for s in range(SF) for w in range(2 if s >= 5 else 1)] + [(s, 1) for s in range(SF, 15)] + [(s, 0) for s in range(SF, 20)]
def oreg(k): return OF + 4 * (k % (20 if not OPT["dbg"] & 2 else OPT["ou"]))
def ldO(k):
    s, w = OL[k]
    a(f"buffer_load_dwordx4 {V(oreg(k),4)}, v{aOl2 if w else aOl}, {S(OUT)}, s{sO + s // 5} offen offset:{256*(s % 5)} sc1")
def spin(tag, addr, cmp_, slp=0):
    a(f"{cmp_}\ns_cbranch_vccnz L_sp{tag}\nL_sb{tag}:")
    DEFER.append(f"L_sp{tag}:\n" + (f"s_sleep {slp}\n" if slp else "") + f"v_mov_b32 v1, {addr}\nds_read_b32 v1, v1\ns_waitcnt lgkmcnt(0)\n{cmp_}\ns_cbranch_vccnz L_sp{tag}\ns_branch L_sb{tag}")
def fold(A, B, F):
    for r in range(4): a(f"v_permlane16_swap_b32 v{A+r}, v{B+r}")
    for r in range(4): a(f"v_cndmask_b32 v{F[r]}, v{B+r}, v{A+r}, s[{sM+2*r}:{sM+2*r+1}]")
def softmax(F, P, mid=None, mid2=None):
    m, t = TM, TM + 1
    for r in range(4): a(f"v_fma_f32 v{F+r}, v{F+r}, v{KS+2*r}, v{KS+2*r+1}")
    a(f"v_max3_f32 v{m}, v{F}, v{F+1}, v{F+2}\nv_max_f32 v{m}, v{m}, v{F+3}\nv_mov_b32 v{t}, v{m}\nv_permlane32_swap_b32 v{m}, v{t}\nv_max_f32 v{m}, v{m}, v{t}\nv_mul_f32 v{m}, v{m}, v{CQ}")
    for r in range(4): a(f"v_fma_f32 v{F+r}, v{F+r}, v{CQ}, -v{m}")
    for r in range(4): a(f"v_exp_f32 v{F+r}, v{F+r}")
    if mid: mid()
    a(f"v_add_f32 v{m}, v{F}, v{F+1}\nv_add_f32 v{t}, v{F+2}, v{F+3}\nv_add_f32 v{m}, v{m}, v{t}\nv_mov_b32 v{t}, v{m}\nv_mul_f32 v{F}, v{F}, v{KS}\nv_mul_f32 v{F+1}, v{F+1}, v{KS+2}")
    a(f"v_permlane32_swap_b32 v{m}, v{t}\nv_mul_f32 v{F+2}, v{F+2}, v{KS+4}\nv_add_f32 v{m}, v{m}, v{t}\nv_rcp_f32 v{m}, v{m}\nv_mul_f32 v{F+3}, v{F+3}, v{KS+6}")
    for r in range(4): a(f"v_mul_f32 v{F+r}, v{F+r}, v{m}")
    a(f"v_cvt_pk_bf16_f32 v{F}, v{F}, v{F+1}\nv_cvt_pk_bf16_f32 v{F+1}, v{F+2}, v{F+3}")
    if mid2: mid2()
    for hh in range(2):
        a(f"s_mov_b64 exec, s[{sLO}:{sLO+1}]" if hh == 0 else "s_not_b64 exec, exec")
        for d in range(2): a(f"v_and_b32 v{P+2*hh+d}, v{vM+d}, v{F+d}\nv_bfi_b32 v{P+4+2*hh+d}, v{vM+d}, 0, v{F+d}")
    a("s_mov_b64 exec, -1")
    for d in range(4): a(f"v_permlane16_swap_b32 v{P+d}, v{P+4+d}")
def ymask():
    a(f"s_add_u32 s0, s{sC5}, 1\ns_sub_u32 s1, 5, s{sC5}\ns_min_u32 s0, s0, s1\ns_lshl_b32 s0, s0, 4\ns_sub_u32 s1, 64, s0\ns_cmp_le_u32 s{sC5}, 2\ns_cselect_b32 s1, s1, 16\ns_bfm_b64 s[100:101], s0, s1")
def attention(T):
    helper = T == "h"; doL = T != "e"; doE = T != "l"
    L.reset()
    rid = {}
    KR = ((aKx, 0), (aKy, 0), (aK4, 0), (aKe, 0), (aKe, 40))
    QR = ((aQx, 0, 0), (aQy, 0, 1), (aQ4, 0, 2), (aQe, 0, 3), (aQe, 40, 4), (aQ4 + 2, 0, 2), (aQ4 + 4, 0, 2))
    def rk(i):
        k, o = KR[i]; d = KQ + 4 * i
        L(f"ds_read_b64 {V(d,2)}, v{k} offset:{o}"); L(f"ds_read_b64 {V(d+2,2)}, v{k} offset:{o + 8*PITCH}")
    def rq(i):
        q, o, _ = QR[i]; d = QF + 4 * i
        L(f"ds_read_b64 {V(d,2)}, v{q} offset:{o}"); rid[i] = L(f"ds_read_b64 {V(d+2,2)}, v{q+1} offset:{o}")
    def lg(i):
        L.wait(rid[i]); mfma(SS + (0, 4, 0, 8, 12, 8, 12)[i], KQ + 4 * QR[i][2], QF + 4 * i, "0" if i in (0, 1, 3, 4) else None)
    vid = {}
    vc = [None]
    def vlook():
        if OPT["ord"]: a(f"v_mov_b32 v1, {VCN}"); vc[0] = L("ds_read_b32 v1, v1")
    def vreads():
        if OPT["ord"]: L.wait(vc[0]); spin("v" + T, VCN, "v_cmp_ne_u32 vcc, 4, v1")
        if helper: stamp(4, 3)
        for i, (r_, o) in enumerate(((aVe, 0), (aVe, 40), (aV1, 0), (aV2, 0))):
            if doE or i >= 2:
                L(f"ds_read_b64_tr_b16 {V(VF+4*i,2)}, v{r_} offset:{o}")
                vid[i] = L(f"ds_read_b64_tr_b16 {V(VF+4*i+2,2)}, v{r_} offset:{o + 8*PITCH}")
    def lfold(): fold(SS, SS + 4, [F01, F01 + 1, FL_ + 2, FL_ + 3])
    def lpack(): a(f"v_or_b32 v{FL_}, 0xffff, v{F01}\nv_perm_b32 v{FL_+1}, v{F01+1}, v{F01}, s{sP1}")
    cq = f"v_mul_f32 v{CQ}, {CEXP:#x}, v{CQ}"
    if helper:
        ymask(); a(cq)
        a("s_barrier")
        for i in range(5): rk(i)
        wo_run(NA, NB, "e")
        if OPT["bv"] >= 0: a("s_barrier"); vreads()
        wo_run(NB, N1, "b")
        touch(1)
        mtouch(2)
        a(f"s_setprio {OPT['aprio']}\ns_waitcnt vmcnt({NT + N1 - N0 if OPT['wc'] < 2 else NT})")
        stamp(1, 3)
        a("s_barrier")
        stamp(4); stamp(2, 3)
        if STAGE == "A": a("s_branch L_dumpA")
        rq(0); rq(1); rq(2); rq(3); rq(4); lg(0); rq(5); lg(1); rq(6); lg(2); lg(3); lg(4); lg(5); lg(6); lfold(); lpack()
    elif doL: rk(0); rq(0); rk(1); rq(1); rk(2); rq(2); ymask(); lg(0); lg(1); lg(2); ksread(L); lfold(); lpack()
    else: rk(3); rq(3); rk(4); rq(4); rk(2); rq(5); rq(6); pzero(0, 8); lg(3); lg(4); ksread(L); lg(5); lg(6)
    if doL: lst(f"buffer_store_dwordx4 {V(FL_,4)}, v{aH0s}, {S(OUT)}, s{sLT} offen{{F}}")
    stamp(5); stamp(3, 3)
    if helper: touch(3)
    if helper and OPT["wc"] == 0: wo_run(N1, 20, "c")
    hl = f"buffer_load_dwordx4 {V(HL,4)}, v{aH0l}, {S(OUT)}, s{sLT} offen sc1"
    prefill = lambda: [a(rdWO1(s_, ct, e)) for s_ in range(DEP) for ct in range(4) for e in range(2)] if helper else None
    early = lambda: [ldO(k) for k in range(OPT["ou"])] if helper else None
    late = f"buffer_store_dwordx4 {V(LT,4)}, v{aOs}, {S(OUT)}, s{sLT} offen{{F}}"
    if doE:
        fold(SS + 8, SS + 12, [FE + r for r in range(4)])
        if not helper: L.wait(L.n); a(cq)
        if OPT["vpos"] == 1 or not helper: vlook()
        def mid():
            if helper and OPT["vpos"] == 2: vlook()
            elif not helper or OPT["bv"] < 0: vreads()
            if helper and OPT["wc"] == 1: wo_run(N1, 20, "c")
            if helper and OPT["hlp"] == 0: a(hl)
        softmax(FE, PX, mid, vreads if helper and OPT["vpos"] == 2 else None)
        stamp(5, 3)
        if helper and OPT["hlp"] == 1: a(hl)
        if helper: touch(2)
        L.wait(vid[3])
        for i in range(4): mfma(DM + 4 * i, VF + 4 * i, PX + 4 * (i & 1), "0")
        for i in range(4): a(f"v_cvt_pk_bf16_f32 v{FE+i}, v{DM+2*i}, v{DM+2*i+1}")
        lst(f"buffer_store_dwordx4 {V(FE,4)}, v{aOs}, {S(OUT)}, 0 offen{{F}}")
        stamp(6); stamp(6, 3)
        if T == "e": a(f"s_lshl_b32 s0, s{sWV}, 2\ns_add_u32 s0, s0, {HRD}\nv_mov_b32 v1, s0\nds_read_b32 v1, v1")
        for i in range(4): a(f"v_cvt_pk_bf16_f32 v{LT+i}, v{DM+8+2*i}, v{DM+8+2*i+1}")
        if helper: mtouch(3)
        prefill()
    else:
        vlook(); pzero(8, 16); vreads(); L.wait(L.n); a(cq); a(hl)
        if OPT["wc"] == 2:
            a(f"s_cmp_eq_u32 s{sWV}, 3\ns_cbranch_scc1 L_wl3"); wo_late(N1, 0, 249); a("L_wlb:")
            DEFER.append("L_wl3:\n" + "\n".join(capture(lambda: wo_late(N1, 1, 249))) + "\ns_branch L_wlb")
    if T == "e":
        a("s_waitcnt lgkmcnt(0)"); spin("r", "s0", "v_cmp_eq_u32 vcc, 0, v1", 1)
        execset(0xffff); lst(late); execset(-1)
        stamp(7); stamp(10, 3)
        return
    stamp(7, 3)
    a(f"s_waitcnt vmcnt({1 + NT2 if doE else 2 * (20 - N1) if OPT['wc'] == 2 else 0})\nv_cmp_eq_u32 vcc, -1, v{HL}\ns_cbranch_vccnz L_h0r{T}\nL_h0g{T}:")
    stamp(8, 3)
    DEFER.append(f"L_h0r{T}:\ns_sub_u32 s{sBUD}, s{sBUD}, 1\ns_cbranch_scc1 L_h0x{T}\n{hl}\ns_waitcnt vmcnt(0)\n"
                 f"v_cmp_eq_u32 vcc, -1, v{HL}\ns_cbranch_vccnz L_h0r{T}\ns_branch L_h0g{T}\nL_h0x{T}:\ns_mov_b32 s{sBUD}, 0\ns_branch L_h0g{T}")
    wfl = f"v_mov_b32 v1, {WFL}\nv_mov_b32 v4, 1\ns_mov_b64 exec, 1\nds_add_u32 v1, v4\ns_mov_b64 exec, -1"
    if helper:
        if OPT["wc"] < 2: a(wfl)
    else: a(f"s_lshl_b32 s0, s{sWV}, 2\ns_add_u32 s0, s0, {HRD - 8}\nv_mov_b32 v1, s0\nds_write_b32 v1, v1")
    a(f"v_perm_b32 v{HL}, v{HL}, v{HL+1}, s{sP2}")
    for r in (1, 2, 3, 0): a(f"v_add_f32 v{FL_+r}, v{F01+r if r < 2 else FL_+r}, v{HL+r}")
    if OPT["opos"] == 0: early()
    softmax(FL_, PX + 8, early if OPT["opos"] == 1 else None)
    if OPT["opos"] == 2: early()
    stamp(9, 3)
    mfma(DM, VF + 8, PX + 8, "0"); mfma(DM + 4, VF + 12, PX + 8, "0"); mfma(DM + 8, VF + 12, PX + 12, "0")
    if helper and OPT["wc"] < 2: a("ds_read_b32 v1, v1")
    a("s_mov_b32 exec_lo, 0xffff0000")
    for i in range(4): a(f"v_cvt_pk_bf16_f32 v{LT+i}, v{DM+2*i}, v{DM+2*i+1}")
    a("s_mov_b64 exec, s[100:101]")
    for i in range(2): a(f"v_cvt_pk_bf16_f32 v{LT+2+i}, v{DM+8+2*i}, v{DM+8+2*i+1}")
    execset(-1 if doE else 0xffffffffffff0000)
    lst(late)
    stamp(7); stamp(10, 3)
    if not helper and OPT["wc"] == 2: a("s_mov_b64 exec, -1\ns_waitcnt vmcnt(1)\n" + wfl + "\ns_waitcnt lgkmcnt(0)")
attention("h")
if STAGE == "B": a("s_waitcnt vmcnt(0)"); finish()
pagebreak("h")
SH = 200
U = OPT["ou"]; nO = [U]
def ldOn():
    if nO[0] < len(OL):
        if not OPT["dbg"] & 2: ldO(nO[0])
        nO[0] += 1
L.reset()
stamp(8); stamp(0, 4)
idx = {o: k for k, o in enumerate(OL)}
GR = [[0, 1], [2, 3], [4]] + [[k, k + 1] for k in range(5, 29, 2)] + [[29]]
gof = {k: G for G, g in enumerate(GR) for k in g}
issued = {}
def cmp_(G):
    r = [oreg(k) for k in GR[G]]
    if len(r) == 2: a(f"v_max_u16 v2, v{r[0]}, v{r[1]}\nv_cmp_eq_u16 vcc, -1, v2")
    else: a(f"v_cmp_eq_u16 vcc, -1, v{r[0]}")
def chk_a(G):
    last = GR[G][-1] + 1
    assert nO[0] >= last
    a(f"s_waitcnt vmcnt({nO[0] - last + (last <= U)})"); cmp_(G)
def chk_b(G):
    issued[G] = nO[0]
    a(f"s_cbranch_vccnz L_st{G}\nL_go{G}:")
a(f"s_lshl_b32 s0, s{sT}, 12\ns_add_u32 s0, s0, {EX}\nv_add_u32 v4, s0, v{aL16}\ns_and_b32 s0, s{sT}, 2\ns_lshl_b32 s0, s0, 1\ns_add_u32 s0, s0, {XFL}\nv_mov_b32 v3, s0\nv_mov_b32 v5, 1\ns_waitcnt lgkmcnt(0)")
spin("w", WFL, "v_cmp_ne_u32 vcc, 4, v1")
RQ = [(s, ct, e) for s in range(DEP, 20) for ct in range(4) for e in range(2)]
wid = {(s, ct): 0 for s in range(DEP) for ct in range(4)}
left = {(s, ct): 2 if 5 <= s < 15 else 1 for s in range(20) for ct in range(4)}
def rdn(n):
    for _ in range(n):
        if not RQ: return
        s, ct, e = RQ[0]
        if s >= RING and left[s - RING, ct]: return
        RQ.pop(0); wid[s, ct] = L(rdWO1(s, ct, e))
MS = []
k = 0
while k < 30:
    if k + 1 < 30 and OL[k][0] == OL[k+1][0]: MS += [(kk, ct) for ct in range(4) for kk in (k, k + 1)]; k += 2
    else: MS += [(k, ct) for ct in range(4)]; k += 1
firstm = {}
for m, (k, ct) in enumerate(MS): firstm.setdefault(gof[k], m)
ca = {m - 2: G for G, m in firstm.items() if G}; cb = {m - 1: G for G, m in firstm.items() if G}
lasts = max(m for m, (k, ct) in enumerate(MS) if OL[k][1])
wr = {lasts + 2 + q + (q == 3) * 2: q for q in range(4)}
chk_a(0); chk_b(0)
for m, (k, ct) in enumerate(MS):
    s, w = OL[k]
    if m in ca: chk_a(ca[m])
    if m in cb: chk_b(cb[m])
    while RQ and RQ[0][:2] <= (s, ct): n = len(RQ); rdn(1); assert len(RQ) < n
    if ct == 0 and (not RQ or RQ[0][0] > s) and L.n - wid[s, 3] >= 6: L.wait(wid[s, 3])
    L.wait(wid[s, ct])
    mfma((SH if w else H) + 4 * ct, WOF + 16 * (s % RING) + 4 * ct, oreg(k), "0" if w and s == 5 else None)
    left[s, ct] -= 1
    if (m % 4 == 0 or (m < 20 and m % 4 == 1 and m // 4 >= (3, 0)[OPT["o2"]])) and nO[0] < len(OL): ldOn(); rdn(1)
    elif m in wr: L(f"ds_write_b128 v4, {V(SH + 4*wr[m], 4)} offset:{1024*wr[m]}")
    elif m == lasts + 8: a("s_mov_b64 exec, 1"); L("ds_add_u32 v3, v5"); a("s_mov_b64 exec, -1")
    else: rdn(1 if m + 1 in ca or m + 1 in cb or m in cb else 2)
    if m == 3: stamp(9); stamp(11, 3)
    if m == 59: stamp(12, 3)
    if m % 12 == 11: stamp(1 + m // 12, 4)
assert nO[0] == len(OL)
for G in range(len(GR)):
    t = f"L_st{G}:\ns_sub_u32 s{sBUD}, s{sBUD}, 1\ns_cbranch_scc1 L_sx{G}\n"
    def re():
        for G2 in range(G, min(G + OPT["rsp"], len(GR))):
            for k in GR[G2]:
                if k < issued[G]: ldO(k)
        a("s_waitcnt vmcnt(0)"); cmp_(G)
    t += "\n".join(capture(re))
    t += f"\ns_cbranch_vccnz L_st{G}\ns_branch L_go{G}\nL_sx{G}:\ns_mov_b32 s{sBUD}, 0\ns_branch L_go{G}"
    DEFER.append(t)
a("L_tail:")
stamp(10)
HB, DS1, DS2, E2D, T0, RS = 24, 32, 36, 40, 52, 2
EV1 = OPT['e1']
for i in range(8): a(f"v_cvt_pk_bf16_f32 v{HB+i}, v{H+2*i}, v{H+2*i+1}")
for k in range(2):
    mfma(DS2, HB + 4 * k, HB + 4 * k, "0" if k == 0 else None)
    mfma(DS1, WRF + 4 * k, HB + 4 * k, "0" if k == 0 else None)
a("s_mov_b32 s0, 0x22222222\ns_mov_b32 s1, s0\ns_mov_b32 s44, 0x44444444\ns_mov_b32 s45, s44\ns_mov_b32 vcc_lo, 0x88888888\ns_mov_b32 vcc_hi, 0x88888888")
a(f"s_lshl_b32 s3, s{sC}, 8\ns_add_u32 s3, s3, s{sE2L}\nv_and_b32 v1, 0xf0, v{aL16}")
a(f"v_cndmask_b32 v{DS2}, v{DS2}, v{DS2+1}, s[0:1]\nv_cndmask_b32 v{DS2+2}, v{DS2+2}, v{DS2+3}, vcc\ns_or_b64 vcc, vcc, s[44:45]")
a(f"v_cndmask_b32 v{DS1+2}, v{DS2}, v{DS2+2}, vcc\nv_mov_b32 v{DS1+3}, v{WSP+1}")
execset(0xF0000F0000F0000F)
lst(f"buffer_store_dwordx4 {V(DS1,4)}, v1, {S(WS)}, s3 offen{{F}}")
execset(-1)
for i in range(4): a(f"v_mov_b32 v{E2D+8+i}, 0")
a(f"v_mov_b32 v4, 1.0\ns_mov_b32 s0, 0xbacccccd\ns_mov_b32 s1, 0x3acccccd\nv_mov_b32 v5, 0x3727c5ac\ns_mov_b32 s44, 0xfffff800\nv_mov_b32 v1, {KMAX}")
a(f"v_cmp_le_i32 s[46:47], 0, v{aOUT}")
vL, vB, vK = 68, 69, 70
a(f"s_mul_i32 s48, s{sG}, 1280\ns_lshl_b32 s3, s{sC}, 7\ns_add_u32 s48, s48, s3\ns_lshl_b32 s49, s48, 1\ns_add_u32 s48, s48, s{sRJ}\ns_add_u32 s49, s49, s{sRJ}\ns_add_u32 s49, s49, {R_BASE}")
a(f"s_lshl_b32 s3, s{sG}, 7\ns_add_u32 s3, s3, s{sRJ}\ns_add_u32 s3, s3, {R_KEY}\ns_and_b32 s45, s{sC}, {OPT['kc']}\ns_lshl_b32 s45, s45, 3\ns_add_u32 s45, s45, s{sWV}\nv_mul_u32_u24 v{vK}, 384, v0")
a(f"v_and_b32 v{vB}, 48, v0\nv_lshlrev_b32 v{vL}, 1, v{vB}")
a("L_e2:")
a(f"buffer_load_dwordx4 {V(E2D,4)}, v{aL16}, {S(WS)}, s{sE2L} offen sc1\nbuffer_load_dwordx4 {V(E2D+4,4)}, v{aL16}, {S(WS)}, s{sE2L} offen offset:1024 sc1")
a(f"s_mov_b32 exec_hi, 0\nbuffer_load_dwordx4 {V(E2D+8,4)}, v{aL16}, {S(WS)}, s{sE2L} offen offset:2048 sc1\ns_mov_b32 exec_hi, -1\ns_sub_u32 s{sBUD}, s{sBUD}, 1")
a("s_waitcnt vmcnt(1)")
for e in (0, 2): a(f"v_pk_add_f32 {V(E2D+e,2)}, {V(E2D+e,2)}, {V(E2D+4+e,2)}")
a("s_waitcnt vmcnt(0)")
for e in (0, 2): a(f"v_pk_add_f32 {V(E2D+e,2)}, {V(E2D+e,2)}, {V(E2D+8+e,2)}")
a(f"v_cmp_u_f32 vcc, v{E2D}, v{E2D}\ns_cbranch_scc1 L_e2go\ns_cbranch_vccnz L_e2\nL_e2go:")
stamp(11); stamp(11, 4)
for i in (0, 2, 3, 1): a(f"v_mfma_f32_16x16x4_f32 {V(T0+4*i,4)}, v4, v{E2D+i}, 0")
a(f"v_mul_f32 v6, s0, v{T0}\nv_fma_f32 v7, v{T0+8}, s1, v5\nv_fma_f32 v7, -v6, v6, v7\nv_max_f32 v7, v7, v5\nv_rsq_f32 v{RS}, v7")
a(f"v_fma_f32 v7, v6, v{T0+12}, v{T0+4}\nv_mul_f32 v7, v7, v{RS}\nv_mul_f32 v{RS+1}, v6, v{RS}")
a(f"v_ashrrev_i32 v6, 31, v7\nv_or_b32 v6, 0x80000000, v6\nv_xor_b32 v7, v7, v6\nv_and_or_b32 v7, v7, s44, v{vRK}\nv_cndmask_b32 v7, 0, v7, s[46:47]")
LN, LNB, OB = 72, 88, 96
lnops = [f"v_pk_fma_f32 {V(LN+2*i,2)}, {V(H+2*i,2)}, {V(RS,2)}, {V(RS,2)} op_sel:[0,0,1] op_sel_hi:[1,0,1]" for i in range(8)]
for k in (8, 4, 2, 1)[:OPT["dpn"]]:
    a(lnops.pop(0)); a(lnops.pop(0))
    a(f"v_max_u32_dpp v6, v{7 if k == 8 else 6}, v{7 if k == 8 else 6} row_ror:{k} {DPPM}")
a(f"s_mov_b64 exec, {(1 << (16 >> OPT['dpn'])) - 1}\nds_max_u32 v1, v{6 if OPT['dpn'] else 7}\ns_mov_b64 exec, -1")
for o in lnops: a(o)
for i in range(4): a(f"v_cvt_pk_bf16_f32 v{LNB+i}, v{LN+2*i}, v{LN+2*i+1}")
a("s_waitcnt lgkmcnt(0)\ns_barrier\nds_read_b32 v1, v1")
for i in range(4, 8): a(f"v_cvt_pk_bf16_f32 v{LNB+i}, v{LN+2*i}, v{LN+2*i+1}")
for i in range(8): a(f"v_pk_add_f32 {V(LN+2*i,2)}, {V(LN+2*i,2)}, {V(H+2*i,2)}")
a(f"s_cmp_eq_u32 s45, 4\ns_waitcnt lgkmcnt(0)\nv_cmp_eq_u32 s[46:47], v1, v7\ns_cbranch_scc0 L_nk\ns_mov_b64 exec, 0xffff\nbuffer_store_dword v1, v{vK}, {S(WS)}, s3 offen sc1\nL_nk:")
a("s_and_b64 exec, s[46:47], -1\ns_cbranch_scc0 L_nc")
a(f"buffer_store_dwordx4 {V(LNB,4)}, v{vL}, {S(WS)}, s48 offen sc1\nbuffer_store_dwordx4 {V(LNB+4,4)}, v{vL}, {S(WS)}, s48 offen offset:16 sc1")
a("L_nc:\ns_mov_b64 exec, -1")
stamp(12); stamp(12, 4)
for i in range(8): a(f"v_cvt_pk_bf16_f32 v{OB+i}, v{LN+2*i}, v{LN+2*i+1}")
for hh in range(2):
    for d in range(2): a(f"v_permlane16_swap_b32 v{OB+4*hh+d}, v{OB+4*hh+2+d}")
osc = " " + OPT["osc"].replace("_", " ").replace("plain", "")
a("s_not_b64 exec, s[46:47]")
for hh in range(2): a(f"buffer_store_dwordx4 {V(OB+4*hh,4)}, v{aOUT}, {S(OUT)}, 0 offen offset:{64*hh}{osc}")
a("s_and_b64 exec, s[46:47], -1\ns_cbranch_scc0 L_fin")
for hh in range(2): a(f"buffer_store_dwordx4 {V(OB+4*hh,4)}, v{aOUT}, {S(OUT)}, 0 offen offset:{64*hh} sc1")
a("s_waitcnt vmcnt(0)")
for ct in range(4): a(f"buffer_store_dwordx4 {V(LN+4*ct,4)}, v{vB}, {S(WS)}, s49 offen offset:{64*ct} sc1")
a("L_fin:")
if OPT["dbg"] & 128:
    a(f"s_mov_b64 exec, -1\ns_lshl_b32 s3, s2, 3\ns_add_u32 s3, s3, s{sWV}\ns_lshl_b32 s3, s3, 13\ns_add_u32 s3, s3, {DUMP}")
    for i in range(8): a(f"buffer_store_dwordx4 {V(OB,4)}, v{aL16}, {S(WS)}, s3 offen\ns_add_u32 s3, s3, 1024")
finish()
pagebreak(None, False)
deferred("h")

pad("c0")
a("L_h0:")
if OPT["prio"]: a("s_setprio 2")
a(f"v_lshrrev_b32 v1, 3, v0\nv_and_b32 v2, 2, v1\nv_xor_b32 v2, v2, v0\nv_and_b32 v2, 7, v2\ns_lshl_b32 s3, s{sC}, 7\nv_lshl_add_u32 v2, v2, 4, s3")
a(f"v_mul_u32_u24 v3, 3840, v1\nv_add_u32 v{vW}, v3, v2\nv_xor_b32 v{vW+3}, 64, v{vW}\nv_add_u32 v{vW+3}, {8*3840}, v{vW+3}\nv_mov_b32 v{vEA}, 0")
for p in range(2):
    for s_ in (1, 2): a(f"v_add_u32 v{vW+3*p+s_}, {256*s_}, v{vW+3*p}")
def wpieces():
    P = []
    for pp in range(8):
        for s_ in range(3):
            t = f"buffer_load_dwordx4 v{vW+3*(pp&1)+s_}, {S(W)}, s{sXO} offen offset:{1024*s_} lds"
            if s_ == 2 and pp < 7: t += "\ns_addk_i32 m0, 3072"
            if s_ == 2 and pp & 1 and pp < 7: t += f"\ns_add_u32 s{sXO}, s{sXO}, 61440"
            P.append(t)
    return P
stamp(1, 5)
ldWR()
a("s_waitcnt vmcnt(4)")
stamp(2, 5)
a("s_barrier")
a(f"s_mov_b32 s{sI}, 1\ns_mov_b32 s{sRD}, {S0 + SLOT}\nL_wl:")
nextslab(); advslot(sSL); a(f"s_mul_i32 s{sXO}, s{sSB}, 245760\ns_add_u32 m0, s{sSL}, 12288")
for p in wpieces(): a(p)
a(f"s_mov_b32 s0, s{sRD}\ns_mov_b32 s{sRD}, s{sSL}\ns_cmp_eq_u32 s{sXT}, s{sI}\ns_waitcnt vmcnt(24) lgkmcnt(0)\ns_barrier\ns_cbranch_scc0 L_wc\ns_call_b64 s[100:101], L_xcap\nL_wc:")
a(f"s_add_u32 s{sI}, s{sI}, 1\ns_cmp_lt_u32 s{sI}, 9\ns_cbranch_scc1 L_wl")
a("s_branch L_h8")

ACC, XF, WF, ST, CS = 8, 80, 152, 180, 192
CLX = len(a.lines)
pagebreak(None, False)
a("L_cons:")
def clears(fl):
    a("v_mov_b32 v4, -1\nv_mov_b32 v5, -1\nv_mov_b32 v6, -1\nv_mov_b32 v7, -1")
    a(f"v_lshrrev_b32 v1, 3, v0\nv_mul_u32_u24 v1, 2560, v1\nv_and_b32 v2, 0x70, v{aL16}\ns_lshl_b32 s3, s{sC}, 7\ns_add_u32 s3, s3, s{sB0}\nv_add3_u32 v1, v1, v2, s3")
    a(f"s_mul_i32 s0, s{sT}, 20480\ns_add_u32 s1, s0, 81920\ns_add_u32 s3, s{sT}, 8\ns_cmp_lt_u32 s3, s{sNO}\ns_cselect_b32 s3, s1, {OOB:#x}\ns_add_u32 s3, s3, 81920")
    st = "buffer_store_dword v4" if OPT["cdw"] else "buffer_store_dwordx4 v[4:7]"
    if OPT["dbg"] & 8: a("v_bfrev_b32 v1, 1")
    for r in (0, 1, 3): a(f"{st}, v1, {S(OUT)}, s{r} offen{fl}")
    a(f"v_lshrrev_b32 v1, 4, v0\nv_mul_u32_u24 v1, {2560 - 256}, v1\nv_add_u32 v1, v1, v{aL16}")
    a(f"s_mul_i32 s1, s{sGID}, 15360\ns_lshl_b32 s3, s{sC}, 8\ns_add_u32 s1, s1, s3\ns_and_b32 s3, s{sT}, 1\ns_mul_i32 s3, s3, 7680\ns_add_u32 s1, s1, s3\ns_add_u32 s1, s1, {E2}")
    a(f"s_cmp_lt_u32 s{sT}, 2\ns_cselect_b32 s1, s1, {OOB:#x}\ns_mov_b32 exec_hi, 0xffff\n{st}, v1, {S(WS)}, s1 offen{fl}\ns_mov_b64 exec, -1")
    return 4
def pf0(p):
    if OPT["pf0"] & 1 and p == OPT["pfp"] % 10:
        a(f"s_cmp_eq_u32 s{sWV}, 0\ns_cbranch_scc0 L_pa\ns_mul_i32 s3, s2, {27*128}\nv_lshlrev_b32 v1, 7, v0\ns_mov_b64 exec, {(1 << 27) - 1:#x}\nbuffer_load_dword v255, v1, {S(WO)}, s3 offen\ns_mov_b64 exec, -1\nL_pa:")
    if OPT["pf0"] & 2 and p == OPT["pfp"] // 10:
        a(f"s_cmp_eq_u32 s{sWV}, 1\ns_cbranch_scc0 L_pb\ns_lshl_b32 s3, s{sC}, 2\ns_add_u32 s3, s3, s{sJ}\ns_sub_u32 s0, s3, 40\ns_cselect_b32 s3, s3, s0\ns_mul_i32 s3, s3, {16*3840}")
        a(f"s_mul_i32 s0, s{sG}, 1280\ns_add_u32 s3, s3, s0\ns_lshl_b32 s0, s{sC}, 7\ns_add_u32 s3, s3, s0\nv_mul_u32_u24 v1, 3840, v0\ns_mov_b64 exec, 0xffff\nbuffer_load_dword v255, v1, {S(W)}, s3 offen\ns_mov_b64 exec, -1\nL_pb:")
pf0(0)
if OPT["cpos"] == 2: ncl = clears(" sc1" if OPT["clr"] else "")
def w1():
    a(f"s_cmp_eq_u32 s{sSB}, 9\ns_cselect_b32 s3, {-10*245760}, 0\ns_add_u32 s3, s3, 245760\nv_add_u32 v254, s3, v254\ns_mul_i32 s3, s{sT}, 3072\ns_add_u32 m0, s3, {S0 + SLOT + 12288}\ns_mov_b32 s0, {32*3840}")
    for h in range(2):
        for k in range(3):
            a(f"buffer_load_dwordx4 v254, {S(W)}, {'s0' if h else 0} offen offset:{1280*k} lds")
            if (h, k) != (1, 2): a(f"s_addk_i32 m0, {-256 if k < 2 else 12288 + 512}")
suB(); suC()
if OPT["w1"] == 0: w1()
if OPT["wc"] == 2: wo_setup(249)
suD(0); suE(0)
a(f"s_lshl_b32 s3, s{sT}, 5\nv_xor_b32 v3, s3, v3\nv_mul_u32_u24 v4, 3072, v2\nv_add_u32 v3, v3, v4\nv_add_u32 v{vAW}, {S0 + 12288}, v3\ns_mov_b32 s{sI}, 0")
stamp(0, 5)
if OPT["cpos"] == 0: ncl = clears(" sc1" if OPT["clr"] else "")
stamp(1, 5)
a(f"v_mov_b32 v3, 0\nv_lshlrev_b32 v2, 2, v0\ns_mov_b32 exec_hi, 0")
a(f"ds_write_b32 v2, v3 offset:{MODE}\nds_write_b32 v2, v3 offset:{MODE + 8*PITCH}\ns_mov_b64 exec, -1")
a("v_and_b32 v1, 15, v0\nv_lshrrev_b32 v2, 4, v0")
a(f"v_lshrrev_b32 v3, 1, v1\nv_xor_b32 v3, v3, v2\nv_lshlrev_b32 v3, 4, v3\nv_lshl_add_u32 v3, v1, 7, v3\nv_add_u32 v{vAX0}, {S0}, v3\nv_xor_b32 v{vAX1}, 64, v{vAX0}")
a(f"v_mul_u32_u24 v3, {PITCH}, v1\nv_lshl_add_u32 v3, v2, 3, v3\ns_lshl_b32 s3, s{sT}, 5\ns_add_u32 s3, s3, {QB}\nv_add_u32 v{vSW}, s3, v3")
a(f"v_lshlrev_b32 v{vSTR}, 4, v1")
assert STATS == 0
if OPT["pg"]:
    for k in range(4): a(f"s_cmp_eq_u32 s{sWV}, {k}\ns_cbranch_scc0 L_cw{k}"); warm("c0", k, 4); a(f"L_cw{k}:")
pf0(1)
if OPT["w1"] == 1: w1()
if OPT["cpos"] == 1: ncl = clears(" sc1" if OPT["clr"] else "")
assert OPT["cpos"] == 1
a(f"s_cmp_lt_u32 s{sWV}, 2\ns_cselect_b32 s{sXT}, s{sXT}, 99")
a(f"s_mov_b32 s{sRD}, {S0}\ns_min_u32 s{sEV}, s{sXT}, {E1_}\ns_waitcnt vmcnt({ncl + 6}) lgkmcnt(0)")
def rdW(d, s_, ks):
    L(f"ds_read_b64_tr_b16 {V(d,2)}, v{vAW} offset:{12288*ks + 1024*s_}")
    return L(f"ds_read_b64_tr_b16 {V(d+2,2)}, v{vAW} offset:{12288*ks + 1024*s_ + 512}")
def rdX(d, t, ks): return L(f"ds_read_b128 {V(d+4*t,4)}, v{vAX0+ks} offset:{2048*t}")
def acc(s_, t): return ACC + 4 * (6 * s_ + t)
stamp(2); stamp(2, 5)
SEG = (1, 0, 2) if OPT['ord'] else (1, 2, 0)
PRE = OPT["pre"]
def rdlist(ph):
    o = []
    def w(s_):
        d = WV2 if (ph, s_) == (1, 1) else WF + 12 * ph + 4 * s_
        for e in range(2): o.append((("w", ph, s_), f"ds_read_b64_tr_b16 {V(WF+12*ph+4*s_+2*e,2)}, v{vAW} offset:{12288*ph + 1024*s_ + 512*e}"))
    w(SEG[0])
    for t in range(6): o.append((("x", ph, t), f"ds_read_b128 {V(XF+24*ph+4*t,4)}, v{vAX0+ph} offset:{2048*t}"))
    w(SEG[1]); w(SEG[2])
    return o
WV2 = WF + 24
def step(first):
    a("s_barrier")
    stampi(0)
    L.reset(); ids = {}
    M = [(s_, t) for s_ in SEG for t in range(6)]
    seq = ([] if first else [(1, "o") + m for m in M[PRE:]]) + [(0, "n") + m for m in M] + [(1, "n") + m for m in M[:PRE]]
    no = 0 if first else 18 - PRE
    pend = rdlist(0); p1 = rdlist(1)
    def rd(n=1):
        for _ in range(n):
            if pend: k, tx = pend.pop(0); ids[k] = L(tx)
    rd(12 if first else 2)
    fill = [f"s_add_u32 s3, s{sRD}, {SLOT}\ns_cmp_eq_u32 s3, {S0 + 4*SLOT}", f"s_cselect_b32 s3, {S0}, s3\ns_sub_u32 s{sDL}, s3, s{sRD}",
            f"s_mov_b32 s{sRD}, s3\nv_add_u32 v{vAX0}, s{sDL}, v{vAX0}", f"v_add_u32 v{vAW}, s{sDL}, v{vAW}\nv_add_u32 v{vAX1}, s{sDL}, v{vAX1}"]
    if not first: fill.append(f"s_cmp_eq_u32 s{sI}, s{sEV}\ns_cbranch_scc1 L_ev\nL_evb:")
    fill.append("STAMP"); fill.append(f"s_add_u32 s{sI}, s{sI}, 1\ns_cmp_lt_u32 s{sI}, 9"); fill.append(f"s_waitcnt vmcnt({ncl}) lgkmcnt(0)" if first else "s_waitcnt lgkmcnt(0)")
    for n, (ph, kd, s_, t) in enumerate(seq):
        if n == no: pend += p1
        if kd == "n":
            need = max(ids["x", ph, t], ids["w", ph, s_])
            if s_ == SEG[0] and t == 0 and L.n - ids.get(("x", ph, 5), L.n) >= 4: need = ids["x", ph, 5]
            L.wait(need)
        mfma(acc(s_, t), WF + 12 * ph + 4 * s_, XF + 24 * ph + 4 * t, "0" if first and ph == 0 else None)
        if pend: rd()
        elif n >= no and fill and (len(fill) > 1 or n >= len(seq) - 2):
            f = fill.pop(0)
            if f == "STAMP": stampi(1)
            else: a(f)
    for f in fill: stampi(1) if f == "STAMP" else a(f)
step(1)
CL0 = len(a.lines)
pagebreak("c0")
a("L_cloop:")
step(0)
a("s_cbranch_scc1 L_cloop")
L.reset(); ids = {}
def wreg(ks, s_): return WV2 if (ks, s_) == (1, 1) else WF + 12 * ks + 4 * s_
later = []
def lw(ks, s_):
    for e in range(2): later.append((("w", ks, s_), f"ds_read_b64_tr_b16 {V(wreg(ks,s_)+2*e,2)}, v{vAW} offset:{12288*ks + 1024*s_ + 512*e}"))
def lx(ks):
    for t in range(6): later.append((("x", ks, t), f"ds_read_b128 {V(XF+48*ks+4*t,4)}, v{vAX0+ks} offset:{2048*t}"))
lw(0, 1); lx(0); lw(1, 1); lx(1); lw(0, SEG[1]); lw(0, SEG[2])
def rd_later(n=1):
    for _ in range(n):
        if later: k, tx = later.pop(0); ids[k] = L(tx)
def old(s_, t): mfma(acc(s_, t), WF + 12 + 4 * s_, XF + 24 + 4 * t)
def new(s_, ks, t):
    L.wait(max(ids["w", ks, s_], ids["x", ks, t])); mfma(acc(s_, t), wreg(ks, s_), XF + 48 * ks + 4 * t)
def mlist(s_): return [(s_, "o", t) for t in range(6)] + [(s_, ks, t) for ks in range(2) for t in range(6)]
def mm(q):
    s_, k, t = q.pop(0)
    if k != "o" and ("w", k, s_) not in ids: rd_later(9)
    old(s_, t) if k == "o" else new(s_, k, t)
    if k == "o" and t == 5 and s_ != 1: lw(1, s_)
def fixup(s_, q, per):
    for r in range(4):
        a(f"v_mov_b32_dpp v{CS+r}, v{acc(s_,0)+r} row_newbcast:0 {DPPM}")
    wr = None
    for t in range(6):
        A = acc(s_, t); st = V(ST + 2 * t, 2)
        if per or not OPT["pk"]:
            ops = [f"v_fmac_f32 v{A+h}, v{CS+h}, v{ST+2*t}" for h in range(4)]
        else:
            ops = [f"v_pk_fma_f32 {V(A+h,2)}, {V(CS+h,2)}, {st}, {V(A+h,2)} op_sel_hi:[1,0,1]" for h in (0, 2)]
        ops += [f"v_cvt_pk_bf16_f32 v{A}, v{A}, v{A+1}", f"v_cvt_pk_bf16_f32 v{A+1}, v{A+2}, v{A+3}"]
        for i, o in enumerate(ops):
            if q and ((per >= 2 and i == 3) or (per >= 3 and i == 0)): mm(q)
            a(o)
        if q and per >= 1: mm(q)
        if (s_, t) in ((SEG[1], OPT["bk"]), (SEG[2], OPT["bv"])): L.wait(L.n - t); a("s_barrier")
        L(f"ds_write_b64 v{vSW}, {V(A,2)} offset:{TSTR*s_ + 16*PITCH*t}")
km, qm, vm = mlist(1), mlist(SEG[1]), mlist(SEG[2])
a(f"v_mov_b32 v1, {MODE}")
sr = ["ds_read_b32 v1, v1"] + [f"ds_read2_b64 {V(ST+2*t,4)}, v{vSTR} offset0:{32*t} offset1:{32*t + 32}" for t in range(0, 6, 2)]
for i in range(PRE):
    s_, _, t = (km if i < 6 else qm if i < 12 else vm).pop(0)
    if t == 5 and s_ != 1: lw(1, s_)
for o in sr: a(o)
a(f"s_waitcnt lgkmcnt(0)\nv_readfirstlane_b32 s{sMODE}, v1\ns_barrier")
stamp(3); stamp(9, 2); stamp(0, 3)
if not OPT["clr"]: a(f"s_cmp_eq_u32 s{sMODE}, 1\ns_cbranch_scc0 L_gs\nL_gsb:")
rd_later(2)
n = 0
for q in (km, qm, vm):
    while q[0][1] == "o" and (n < 6 or q is km): mm(q); rd_later(); n += 1
rd_later(2)
while km: mm(km); rd_later()
mm(qm); rd_later(9)
assert not later
fixup(1, qm, -(-len(qm) // 6))
while qm: mm(qm)
mm(vm)
fixup(SEG[1], vm, -(-len(vm) // 6) if not OPT["ord"] else OPT["vq"])
if not OPT["ord"]:
    while vm: mm(vm)
    fixup(0, [], 0)
else:
    for _ in range(2):
        if vm: mm(vm)
    a(f"s_setprio {OPT['vprio']}")
stamp(1, 3)
a("s_waitcnt lgkmcnt(0)\ns_barrier")
stamp(4); stamp(2, 3)
if OPT["ord"]:
    L.done = L.n
    a(f"v_mov_b32 v1, {VCN}\nv_mov_b32 v2, 1")
    while vm: mm(vm)
    fixup(2, [], 0)
    a("s_mov_b64 exec, 1\nds_add_u32 v1, v2\ns_mov_b64 exec, -1\ns_setprio 0")
    stamp(4, 3)
if STAGE == "A":
    a("L_dumpA:")
    a(f"s_lshl_b32 s3, s{sWV}, 10\nv_add_u32 v1, s3, v{aL16}\ns_mul_i32 s3, s2, 49152\ns_add_u32 s3, s3, {DUMP}")
    for i in range(6):
        a(f"ds_read_b128 v[16:19], v1 offset:{8192*i}\ns_waitcnt lgkmcnt(0)\nbuffer_store_dwordx4 v[16:19], v1, {S(WS)}, s3 offen\ns_waitcnt vmcnt(0)\ns_add_u32 s3, s3, 8192")
    finish()
a(f"s_cmp_lt_u32 s{sWV}, 2\ns_cbranch_scc0 L_c23")
attention("e")
if STAGE == "B": a("s_waitcnt vmcnt(0)"); finish()

ldWR(); hinit()
a(f"s_lshl_b32 s0, s{sWV}, 13\ns_add_u32 s0, s0, {EX}\nv_add_u32 v4, s0, v{aL16}\ns_lshl_b32 s0, s{sWV}, 2\ns_add_u32 s0, s0, {XFL}\ns_waitcnt vmcnt(0)")
wrprep(XR)
a("v_mov_b32 v2, s0\nL_fx:")
if OPT["fsl"]: a(f"s_sleep {OPT['fsl']}")
a("ds_read_b32 v1, v2\ns_waitcnt lgkmcnt(0)\nv_cmp_ne_u32 vcc, 2, v1\ns_cbranch_vccnz L_fx")
stamp(9); stamp(9, 4)
if OPT["lprio"]: a(f"s_setprio {OPT['lprio']}")
for q in range(8): a(f"ds_read_b128 {V(OF+4*q,4)}, v4 offset:{1024*q}")
for q in range(8):
    a(f"s_waitcnt lgkmcnt({7-q})")
    for e in range(4): a(f"v_add_f32 v{H+4*(q&3)+e}, v{H+4*(q&3)+e}, v{OF+4*q+e}")
stamp(10, 4)
a("s_branch L_tail")
deferred()
CL1 = len(a.lines)
pad("h")
a("L_c23:")
attention("l")
if STAGE == "B": a("s_waitcnt vmcnt(0)")
finish()
deferred("h")
CL2 = len(a.lines)
pad("h")
a(f"L_ev:\ns_cmp_eq_u32 s{sI}, {EV1}\ns_cbranch_scc0 L_ev1\ns_waitcnt vmcnt(0)\nL_ev1:\ns_max_u32 s{sEV}, s{sXT}, {EV1}")
a(f"s_cmp_eq_u32 s{sI}, s{sXT}\ns_cbranch_scc0 L_evb\ns_sub_u32 s0, s{sRD}, s{sDL}"); capt("s0"); a("s_branch L_evb")
if not OPT["clr"]:
    a("L_gs:")
    clears(" sc1")
    a("s_waitcnt vmcnt(0)\ns_barrier\ns_barrier\ns_branch L_gsb")

if OPT["pg"]:
    mv_ = a.lines[CL2:]; mw_ = a.lines[CL1:CL2]; del a.lines[CL1:]; a.lines[CL0+1:CL0+1] = mv_; a.lines[CLX:CLX] = mw_

GATE, UP, DOWN, SM = 4, 8, 12, 28
sMm = 36
GSL = 42240; NGS = 3; MISC = NGS * GSL
SSZ = 8448
ACTB, MZ, WINB, LNL = MISC, MISC + 192, MISC + 256, MISC + 512
GF, DF, GA, XS, IDX = 8, 168, 228, 236, 7
a("L_moe:")
a(f"s_cmp_ge_u32 s{sU}, 32\ns_cbranch_scc1 L_end")
a(f"s_lshr_b32 s{sWV}, s{sWV}, 6\nv_and_b32 v0, 63, v0\ns_lshl_b32 s{sMm}, s{sJ}, 1\ns_add_u32 s{sMm}, s{sMm}, s{sU}\ns_sub_u32 s{sMm}, s{sMm}, 30\ns_mov_b32 s{sBUD}, {BUDGET}")
a("v_lshlrev_b32 v6, 4, v0\nv_mov_b32 v132, 0\nv_mov_b32 v133, 0\ns_waitcnt lgkmcnt(0)")
mksrd(WS, "ws", 1 << 28); mksrd(DBG, "dbg", 256); mksrd(GATE, "gate", 640 * 3072); mksrd(UP, "up", 640 * 3072); mksrd(DOWN, "down", 1536 * 1280); mksrd(OUT, "out", 2048 * 1280)
stamp(0)
a("v_mov_b32 v8, -1\nv_mov_b32 v9, -1\nv_mov_b32 v10, -1\nv_mov_b32 v11, -1")
a(f"s_lshl_b32 s0, s{sMm}, 14\ns_lshl_b32 s3, s{sWV}, 11\ns_add_u32 s0, s0, s3\ns_add_u32 s0, s0, {RJ}")
for i in range(2): a(f"buffer_store_dwordx4 v[8:11], v6, {S(WS)}, s0 offen offset:{1024*i} sc1")
def rootup(n):
    a(f"s_waitcnt vmcnt({n})\ns_barrier\ns_cmp_eq_u32 s{sWV}, 0\ns_cbranch_scc0 L_nroot")
    a(f"s_lshl_b32 s0, s{sMm}, 4\nv_mov_b32 v8, 1\ns_mov_b64 exec, 1\nbuffer_store_dword v8, off, {S(DBG)}, s0 sc1\ns_mov_b64 exec, -1\nL_nroot:")
if STAGE != "F": rootup(0); finish()
vGX, vGS, vRX, vRS = 4, XS + 13, XS + 14, XS + 15
sB5, sKO = 44, 45
a(f"s_and_b32 s{sB5}, s{sMm}, 1\ns_mul_i32 s0, s{sJ}, 384\ns_lshl_b32 s1, s{sB5}, 8\ns_add_u32 s1, s1, s0\ns_mul_i32 s3, s{sWV}, {8*3072}\ns_add_u32 s1, s1, s3")
a(f"v_lshrrev_b32 v1, 3, v0\nv_mul_u32_u24 v1, 3072, v1\ns_lshr_b32 s3, s{sWV}, 1\nv_xor_b32 v2, s3, v0\nv_and_b32 v2, 7, v2\nv_lshl_add_u32 v1, v2, 4, v1\nv_add_u32 v{vGX}, s1, v1\nv_xor_b32 v{vGX+1}, 64, v{vGX}")
a(f"s_lshl_b32 s1, s{sB5}, 6\ns_add_u32 s0, s0, s1\ns_and_b32 s3, s{sWV}, 3\ns_mul_i32 s1, s3, {16*3072}\ns_add_u32 s0, s0, s1\ns_add_u32 s0, s0, 128")
a(f"v_lshrrev_b32 v1, 2, v0\nv_mul_u32_u24 v1, 3072, v1\nv_xor_b32 v2, s3, v0\nv_and_b32 v2, 3, v2\nv_lshl_add_u32 v1, v2, 4, v1\nv_add_u32 v{vGS}, s0, v1")
a(f"s_cmp_lt_u32 s{sWV}, 4\ns_cselect_b64 s[{SM}:{SM+1}], s[{GATE}:{GATE+1}], s[{UP}:{UP+1}]\ns_cselect_b32 s62, 0, 128\ns_mov_b32 s{SM+2}, {640*3072:#x}\ns_mov_b32 s{SM+3}, 0x20000")
a(f"s_lshl_b32 s61, s{sWV}, 10\ns_add_u32 s62, s62, s61\ns_mul_i32 s{sB5}, s{sB5}, {5*64*3072}\ns_mul_i32 s46, s{sMm}, {96*1280}")
def koff(i): a(f"s_add_u32 s{sKO}, s{sB5}, {i*64*3072}" if i < 5 else f"s_sub_u32 s{sKO}, {i*64*3072}, s{sB5}")
def dissue(hh, i, sl):
    a(f"s_lshl_b32 s3, s{sWV}, 6\ns_addk_i32 s3, {512*i}\nv_add_u32 v1, s3, v0\nv_mul_u32_u24 v2, 52429, v1\nv_lshrrev_b32 v2, 22, v2")
    a(f"v_and_b32 v3, 3, v2\nv_lshlrev_b32 v3, 1, v3\nv_and_or_b32 v3, v2, 8, v3\nv_xor_b32 v1, v1, v3\nv_lshlrev_b32 v1, 4, v1")
    a(f"s_add_u32 m0, s61, {sl + 8192*i}\ns_add_u32 s3, s46, {40960*hh}\nbuffer_load_dwordx4 v1, {S(DOWN)}, s3 offen lds")
UN = [[("x", i), ("s", i)] for i in range(5)] + [[("x", 5), ("x", 6)], [("x", 7), ("x", 8)], [("x", 9)]]
SU, DU = [[("s", i) for i in range(5, 10)]], [[("d", h)] for h in range(3)]
UN = {0: UN + DU + SU, 1: UN + SU + DU, 2: UN[:6] + SU + UN[6:] + DU}[OPT["uord"]]
def place(u):
    o = (u % NGS) * GSL; r = []
    for kd, i in UN[u]: r.append((kd, i, o)); o += {"x": 16384, "s": SSZ, "d": 40960}[kd]
    return r
def uissue(u):
    n = 0
    for kd, i, o in place(u):
        if kd == "d":
            for k in range(5): dissue(i, k, o)
            n += 5; continue
        koff(i)
        if kd == "x":
            for m_, srd_ in ((0, GATE), (1, UP)): a(f"s_add_u32 m0, s61, {o + 8192*m_}\nbuffer_load_dwordx4 v{vGX+m_}, {S(srd_)}, s{sKO} offen lds")
            n += 2
        else: a(f"s_add_u32 m0, s62, {o}\nbuffer_load_dwordx4 v{vGS}, {S(SM)}, s{sKO} offen lds"); n += 1
    return n
a(f"s_cmp_lt_u32 s{sWV}, {OPT['rw']}\ns_cbranch_scc1 L_r0")
n0 = uissue(0)
a(f"s_waitcnt vmcnt({n0})\ns_barrier\ns_branch L_r1\nL_r0:")
rootup(0)
uissue(0)
a("L_r1:")
nI = {1: uissue(1)}
a("v_lshrrev_b32 v1, 5, v0\nv_bfe_u32 v2, v0, 2, 1\nv_lshl_add_u32 v1, v1, 2, v2\nv_bfe_u32 v2, v0, 4, 1\nv_bfe_u32 v3, v0, 3, 1\nv_lshl_add_u32 v3, v3, 1, v2\nv_lshl_add_u32 v1, v3, 4, v1")
a(f"v_xor_b32 v3, s{sWV}, v3\nv_and_b32 v2, 1, v0\nv_lshlrev_b32 v2, 3, v2\nv_lshl_add_u32 v2, v3, 4, v2\nv_bfe_u32 v3, v0, 1, 1")
a(f"v_lshl_add_u32 v{vRS}, v1, 6, v2\nv_mul_u32_u24 v8, 4224, v3\nv_add_u32 v{vRS}, v{vRS}, v8")
a(f"v_lshl_add_u32 v{vRX}, v1, 7, v2\nv_mul_u32_u24 v8, {8192 + 64}, v3\nv_xor_b32 v{vRX}, v{vRX}, v8")
vXS, vACT, vA1, vA2, vE4 = 252, 253, 254, 255, 5
for i in range(8): a(f"v_mov_b32 v{GA+i}, 0")
a(f"v_mov_b32 v1, 0x4444\nv_mov_b32 v2, 0xeeee\ns_mov_b32 vcc_lo, 0xaaaaaaaa\ns_mov_b32 vcc_hi, 0xaaaaaaaa\nv_cndmask_b32 v{IDX}, v1, v2, vcc")
a(f"v_and_b32 v1, 48, v0\nv_and_b32 v2, 1, v0\nv_lshlrev_b32 v2, 4, v2\nv_lshl_add_u32 v{vXS}, v1, 1, v2\nv_add_u32 v{vA1}, {ACTB}, v{vXS}\nv_add_u32 v{vXS}, {LNL}, v{vXS}")
a(f"v_add_u32 v1, {ACTB + 128}, v1\nv_mov_b32 v2, {MZ}\nv_cndmask_b32 v{vA2}, v1, v2, vcc\nv_mov_b32 v3, 0\nv_lshl_add_u32 v2, v0, 2, v2\ns_mov_b32 exec_hi, 0\nds_write_b32 v2, v3\ns_mov_b64 exec, -1")
a(f"s_and_b32 s3, s{sMm}, 1\ns_cselect_b32 s0, 4, 0\ns_cselect_b32 s1, -4, 8\ns_add_u32 s0, s0, s{sWV}\nv_bfe_u32 v1, v0, 4, 1\nv_mul_i32_i24 v1, s1, v1\nv_add_u32 v1, s0, v1")
a("v_lshrrev_b32 v2, 1, v1\nv_lshlrev_b32 v2, 2, v2\nv_and_or_b32 v2, v1, 1, v2\nv_and_or_b32 v2, v0, 2, v2\nv_bfe_u32 v3, v0, 2, 1\nv_lshl_add_u32 v2, v2, 1, v3")
a(f"v_and_b32 v3, 1, v0\nv_lshl_add_u32 v2, v2, 1, v3\nv_and_b32 v3, 7, v0\nv_lshl_add_u32 v3, v1, 3, v3\nv_cmp_gt_u32 vcc, 8, v1\nv_cndmask_b32 v2, v3, v2, vcc\nv_lshlrev_b32 v2, 1, v2\nv_add_u32 v{vACT}, {ACTB}, v2")
a(f"s_lshl_b32 s47, s{sWV}, 15\ns_lshl_b32 s3, s{sMm}, 6\ns_add_u32 s47, s47, s3\ns_add_u32 s47, s47, {RJ + R_E4}")
a(f"v_lshrrev_b32 v1, 2, v0\nv_and_b32 v2, 3, v0\nv_lshlrev_b32 v2, 4, v2\nv_lshl_add_u32 v2, v1, 10, v2\nv_lshlrev_b32 v1, 4, v1\nv_add_u32 v1, {4096 - 64}, v1\ns_mov_b64 vcc, 0xffff\nv_cndmask_b32 v{XS+10}, v1, v2, vcc")
a(f"s_cmp_lt_u32 s{sWV}, 4\ns_cselect_b32 s50, 0x00ff0000, 0\ns_or_b32 s50, s50, 0xff\ns_mov_b32 s51, 0")
sFT, sFE, sWIN, sXS = 52, 53, 54, 55
a(f"s_sub_u32 s3, s{sWV}, 4\ns_lshl_b32 s3, s3, 4\ns_add_u32 s{sFT}, s3, s{sMm}\ns_mul_i32 s3, s{sFT}, 52\ns_lshr_b32 s3, s3, 8\ns_mul_i32 s3, s3, {RJS - 5120}\ns_lshl_b32 s{sFE}, s{sFT}, 10\ns_add_u32 s{sFE}, s{sFE}, s3\ns_add_u32 s{sFE}, s{sFE}, {RJ + R_E4}")
vFC, vFB, vSG, FD = 128, 129, 130, 40
a(f"s_mov_b32 s49, {BUDGET >> 2}\ns_mov_b32 s63, 0")
a(f"s_mul_i32 s3, s{sFT}, 52\ns_lshr_b32 s3, s3, 8\ns_mul_i32 s0, s3, 5\ns_sub_u32 s0, s{sFT}, s0\ns_mul_i32 s3, s3, 80\ns_lshl_b32 s1, s0, 2\ns_cmp_eq_u32 s0, 4\ns_cselect_b32 s1, 64, s1\ns_cselect_b32 s0, 0, 4\ns_cselect_b32 s48, 2, 0\ns_add_u32 s3, s3, s1")
a(f"v_bfe_u32 v1, v0, 4, 1\nv_lshrrev_b32 v2, 5, v0\nv_lshl_add_u32 v1, v1, 1, v2\nv_lshlrev_b32 v1, s0, v1\nv_and_b32 v2, 3, v0\nv_lshlrev_b32 v2, s48, v2\nv_add3_u32 v1, v1, v2, s3\nv_lshlrev_b32 v{vFC}, 1, v1\nv_lshlrev_b32 v{vFB}, 2, v1")
a("v_lshrrev_b32 v1, 4, v0\nv_bfe_u32 v2, v0, 2, 2\nv_lshl_add_u32 v1, v1, 3, v2\nv_mul_u32_u24 v1, 1280, v1\nv_and_b32 v3, 1, v0\nv_lshl_add_u32 v1, v3, 3, v1")
a(f"v_bfe_u32 v2, v0, 2, 3\nv_lshlrev_b32 v2, 1, v2\nv_bfe_u32 v3, v0, 1, 1\ns_mul_i32 s0, s{sWV}, 10")
for i in range(5): a(f"s_add_u32 s3, s0, {2*i}\nv_add_u32 v{XS+i}, s3, v3\nv_xor_b32 v{XS+i}, v{XS+i}, v2\nv_lshl_add_u32 v{XS+i}, v{XS+i}, 4, v1")
for u in range(len(UN)):
    a(f"s_waitcnt vmcnt({nI.get(u + 1, 0) + (u == 6)}) lgkmcnt(0)\ns_barrier")
    if u + 2 < len(UN): nI[u + 2] = uissue(u + 2)
    sk = False
    for kd, i, o in place(u):
        if kd == "d":
            for k in range(5):
                a(f"v_add_u32 v1, {o}, v{XS+k}")
                for e in range(2): a(f"ds_read_b64_tr_b16 {V(DF+12*k+4*i+2*e,2)}, v1 offset:{1280*4*e}")
            continue
        if kd == "s" and not sk: a(f"s_cmp_lt_u32 s{sWV}, 4\ns_cbranch_scc0 L_g{u}"); sk = True
        a(f"v_add_u32 v1, {o}, v{vRX if kd == 'x' else vRS}")
        p = 128 if kd == "x" else 64
        for hh in range(2):
            for e in range(2): a(f"ds_read_b64_tr_b16 {V(GF+80*(kd == 's')+8*i+4*hh+2*e,2)}, v1 offset:{p*(8*hh + 2*e)}")
    if sk: a(f"L_g{u}:")
    if u == 5: a(f"v_and_b32 v{XS+12}, 0xf0, v6\nbuffer_load_dword v{XS+11}, v{XS+12}, {S(DBG)}, 0 offen sc1")
    if u == 7: stamp(1)
stamp(2)
pagebreak()
warm("m", 0, 1)
a(f"v_mov_b32 v{vE4}, v{XS+10}\nv_mov_b32 v4, {WINB}\ns_cmp_lt_u32 s{sWV}, {6 + OPT['kold']}\ns_cbranch_scc1 L_np")
if not OPT["kold"]: a(f"s_cmp_eq_u32 s{sWV}, 6\ns_cbranch_scc1 L_ft")
a(f"L_rt:\nv_cmp_ne_u32 vcc, 1, v{XS+11}\ns_cbranch_vccz L_rtg\nbuffer_load_dword v{XS+11}, v{XS+12}, {S(DBG)}, 0 offen sc1\ns_waitcnt vmcnt(0)\ns_sub_u32 s{sBUD}, s{sBUD}, 1\ns_cbranch_scc0 L_rt\ns_mov_b32 s{sBUD}, 0\nL_rtg:")
a(f"v_bfe_u32 v1, v0, 2, 3\nv_lshlrev_b32 v1, 15, v1\nv_and_b32 v2, 3, v0\nv_min_u32 v2, 2, v2\nv_mul_u32_u24 v3, 1280, v2\ns_mov_b32 s0, {RJ}\nv_add3_u32 v3, v3, v1, s0\nv_lshl_add_u32 v1, v2, 7, v1\ns_mul_i32 s0, s{sMm}, 384\ns_add_u32 s0, s0, {RJ + R_KEY}")
stamp(3)
if OPT["wb"] & 4: a("buffer_wbl2 sc1")
if OPT["kold"]:
    vRW = 132
    a(f"s_and_b32 s3, s{sMm}, 1\ns_mul_i32 s3, s3, 640\nv_add_u32 v{vRW}, s3, v6\nv_subrev_u32 v2, 1280, v{vRW}\nv_min_u32 v{vRW}, v{vRW}, v2\ns_sub_u32 s3, 1024, s3\nv_add_u32 v{vRW+1}, s3, v6")
    row = f"s_mov_b32 m0, {LNL}\ns_mov_b64 exec, -1\nbuffer_load_dwordx4 v{vRW}, {S(WS)}, s{sXS} offen sc1 lds\ns_mov_b32 m0, {LNL + 1024}\ns_mov_b64 exec, 0xffff\nbuffer_load_dwordx4 v{vRW+1}, {S(WS)}, s{sXS} offen sc1 lds"
    a(f"s_mov_b32 s{sWIN}, 0\ns_mov_b32 s{sXS}, {OOB:#x}")
    KP, KR, KV = OPT["kp"], OPT["kr"], 140
    assert KP % KR == 0
    KM = 0x77777777
    def look(k):
        if k % KR == 0: a(row); execset(KM)
        if OPT["ka"]: a(f"buffer_atomic_umin v{KV+k}, v1, {S(WS)}, s0 offen sc0 sc1")
        else: a(f"buffer_load_dword v{KV+k}, v1, {S(WS)}, s0 offen sc1")
    for k in range(KP): a(f"v_mov_b32 v{KV+k}, -1")
    def kchk(k):
        a(f"v_cmp_lt_u32 vcc, s{sWIN}, v{KV+k}\ns_cbranch_vccz L_pg")
        a(f"v_cndmask_b32 v2, -1, v{KV+k}, vcc\nv_cmp_ne_u32 vcc, -1, v2\nv_mov_b32 v{XS+2}, v{KV+k}\ns_cbranch_vccnz L_pn")
    def upd():
        if OPT["stamps"] == 1: l = a.label("fu"); a(f"s_cmp_eq_u32 s63, 0\ns_cbranch_scc0 {l}"); stamp(12); a(f"{l}:\ns_add_u32 s63, s63, 1")
        stamp(11)
        a(f"s_mov_b64 exec, -1\nv_cndmask_b32 v2, 0, v2, vcc")
        a(f"v_max_u32_dpp v{XS}, v2, v2 row_ror:8 {DPPM}")
        for k in (4, 2, 1): a(f"v_max_u32_dpp v{XS}, v{XS}, v{XS} row_ror:{k} {DPPM}")
        a(f"v_mov_b32 v{XS+1}, v{XS}\ns_mov_b32 s60, {KP - 1}\nv_permlane16_swap_b32 v{XS}, v{XS+1}\nv_max_u32 v{XS}, v{XS}, v{XS+1}\ns_mov_b32 exec_hi, 0\nv_cmpx_eq_u32 vcc, v{XS}, v2")
        a(f"ds_write_b64 v4, v[2:3]\ns_cmp_eq_u64 s[58:59], 0\nv_readfirstlane_b32 s{sXS}, v3\nv_readfirstlane_b32 s{sWIN}, v2")
    if OPT["kn"]:
        KR = 1
        a("s_mov_b32 s60, 0")
        for k in range(KP - 1):
            look(k)
            if OPT["ks"]: a(f"s_sleep {OPT['ks']}")
        for k in range(KP):
            a(f"L_pl{k}:")
            look((k + KP - 1) % KP)
            a(f"s_waitcnt vmcnt({3 * (KP - 1)})\nv_cmp_lt_u32 vcc, s{sWIN}, v{KV+k}\ns_sub_u32 s60, s60, 1\ns_cbranch_vccnz L_pm{k}\ns_cbranch_scc1 L_pg\ns_branch L_pw\nL_pm{k}:\ns_max_i32 s60, s60, 0")
            a(f"v_cmp_eq_u32 s[58:59], -1, v{KV+k}\nv_mov_b32 v2, v{KV+k}\ns_andn2_b64 vcc, vcc, s[58:59]\ns_cbranch_scc0 L_pq{k}")
            upd()
            a(f"s_cbranch_scc1 L_xf\ns_branch L_pl{(k + 1) % KP}\nL_pq{k}:")
            if OPT["ks"]: a(f"s_sleep {OPT['ks']}")
        a(f"s_sub_u32 s{sBUD}, s{sBUD}, 1\ns_cbranch_scc0 L_pl0\ns_mov_b32 s{sBUD}, 0\ns_branch L_xf")
        a("L_pw:")
        for v in range(KP - 1):
            a(f"s_cmp_eq_u32 s60, {v}\ns_waitcnt vmcnt({1 + 3 * (KP - 2 - v)})\n" + ("s_cbranch_scc1 L_pg" if v < KP - 2 else "s_branch L_pg"))
    else:
        a("L_pk:")
        if OPT["kw"]: look(0); a("s_waitcnt vmcnt(0)"); kchk(0)
        for k in range(KP - 1):
            look(k)
            if OPT["ks"]: a(f"s_sleep {OPT['ks']}")
        a("L_pl:")
        for k in range(KP):
            look((k + KP - 1) % KP)
            a(f"s_waitcnt vmcnt({KP - 1 + 2 * (KP // KR - (k % KR == 0))})"); kchk(k)
            if OPT["ks"]: a(f"s_sleep {OPT['ks']}")
        a(f"s_sub_u32 s{sBUD}, s{sBUD}, 1\ns_cbranch_scc0 L_pl\ns_mov_b32 s{sBUD}, 0\ns_branch L_pg")
        a("L_pn:")
        if OPT["stamps"] == 1: a("s_add_u32 s63, s63, 1")
        stamp(11)
        a(f"v_cmp_eq_u32 s[58:59], -1, v{XS+2}\ns_mov_b64 exec, -1\nv_cndmask_b32 v2, 0, v2, vcc")
        a(f"v_max_u32_dpp v{XS}, v2, v2 row_ror:8 {DPPM}")
        for k in (4, 2, 1): a(f"v_max_u32_dpp v{XS}, v{XS}, v{XS} row_ror:{k} {DPPM}")
        a(f"v_mov_b32 v{XS+1}, v{XS}\nv_permlane16_swap_b32 v{XS}, v{XS+1}\nv_max_u32 v{XS}, v{XS}, v{XS+1}\ns_mov_b32 exec_hi, 0\nv_cmpx_eq_u32 vcc, v{XS}, v2")
        a(f"ds_write_b64 v4, v[2:3]\ns_cmp_eq_u64 s[58:59], 0\nv_readfirstlane_b32 s{sXS}, v3\nv_readfirstlane_b32 s{sWIN}, v2")
        a("s_cbranch_scc0 L_pk")
    a(f"L_xf:\n{row}\ns_waitcnt vmcnt(0)\nL_pg:\ns_mov_b64 exec, -1")
    stamp(4)
else:
    KP, KV = OPT["kp"], 140
    KM = 0x77777777
    def look(k):
        if OPT["ka"]: a(f"buffer_atomic_umin v{KV+k}, v1, {S(WS)}, s0 offen sc0 sc1")
        else: a(f"buffer_load_dword v{KV+k}, v1, {S(WS)}, s0 offen sc1")
    for k in range(KP): a(f"v_mov_b32 v{KV+k}, -1")
    a(f"s_mov_b32 s{sWIN}, 0"); execset(KM)
    for k in range(KP - 1):
        look(k)
        if OPT["ks"]: a(f"s_sleep {OPT['ks']}")
    a("L_pl:")
    for k in range(KP):
        look((k + KP - 1) % KP)
        a(f"s_waitcnt vmcnt({KP - 1})\nL_pc{k}:\nv_cmp_lt_u32 vcc, s{sWIN}, v{KV+k}\ns_cbranch_vccz L_pg")
        a(f"v_cndmask_b32 v2, -1, v{KV+k}, vcc\nv_cmp_ne_u32 vcc, -1, v2\ns_cbranch_vccnz L_pn{k}")
        if OPT["ks"]: a(f"s_sleep {OPT['ks']}")
        def upd():
            a(f"L_pn{k}:\ns_mov_b64 exec, -1\nv_cndmask_b32 v2, 0, v2, vcc")
            a(f"v_max_u32_dpp v{XS}, v2, v2 row_ror:8 {DPPM}")
            for r in (4, 2, 1): a(f"v_max_u32_dpp v{XS}, v{XS}, v{XS} row_ror:{r} {DPPM}")
            a(f"v_mov_b32 v{XS+1}, v{XS}\nv_permlane16_swap_b32 v{XS}, v{XS+1}\nv_max_u32 v{XS}, v{XS}, v{XS+1}\ns_mov_b32 exec_hi, 0\nv_cmpx_eq_u32 vcc, v{XS}, v2")
            a(f"ds_write_b64 v4, v[2:3]\nv_readfirstlane_b32 s{sWIN}, v2"); execset(KM); a(f"s_branch L_pc{k}")
        DEFER.append("\n".join(capture(upd)))
    a(f"s_sub_u32 s{sBUD}, s{sBUD}, 1\ns_cbranch_scc0 L_pl\ns_mov_b32 s{sBUD}, 0")
    a("L_pg:\nds_write_b32 v4, v4 offset:8\ns_mov_b64 exec, -1")
    stamp(4)
    vRW = 132
    row = f"s_mov_b32 m0, {LNL}\nbuffer_load_dwordx4 v{vRW}, {S(WS)}, s{sXS} offen sc1 lds\ns_mov_b32 m0, {LNL + 1024}\ns_mov_b64 exec, 0xffff\nbuffer_load_dwordx4 v{vRW+1}, {S(WS)}, s{sXS} offen sc1 lds\ns_mov_b64 exec, -1"
    t = f"L_ft:\ns_and_b32 s3, s{sMm}, 1\ns_mul_i32 s3, s3, 640\nv_add_u32 v{vRW}, s3, v6\nv_subrev_u32 v2, 1280, v{vRW}\nv_min_u32 v{vRW}, v{vRW}, v2\ns_sub_u32 s3, 1024, s3\nv_add_u32 v{vRW+1}, s3, v6\ns_mov_b32 s{sXS}, 0\n"
    t += f"L_fl:\nds_read_b128 v[136:139], v4\ns_waitcnt lgkmcnt(0)\nv_readfirstlane_b32 s0, v137\nv_readfirstlane_b32 s1, v138\ns_cmp_eq_u32 s0, s{sXS}\ns_cbranch_scc0 L_fn\ns_cmp_eq_u32 s1, 0\ns_cbranch_scc1 L_fl\ns_branch L_np\n"
    t += f"L_fn:\ns_mov_b32 s{sXS}, s0\n{row}\ns_cmp_eq_u32 s1, 0\ns_waitcnt vmcnt(0)\ns_cbranch_scc0 L_np\n"
    if OPT["rf"]: t += row + "\n"
    t += f"s_branch L_fl\nL_xf:\n{row}\ns_waitcnt vmcnt(0)\ns_branch L_np"
    DEFER.append(t)
def wback(p):
    if OPT["wb"] & p: a(f"s_and_b32 s3, s{sMm}, 1\ns_add_u32 s3, s3, s{sWV}\ns_cmp_eq_u32 s3, 8\ns_cbranch_scc0 L_wb{p}\nbuffer_wbl2 sc1\nL_wb{p}:")
a("L_np:\ns_waitcnt lgkmcnt(0)\ns_barrier")
stamp(5)
def smf(d, A, B): a(f"v_smfmac_f32_16x16x64_bf16 {V(d,4)}, {V(A,4)}, {V(B,8)}, v{IDX}")
a(f"s_cmp_lt_u32 s{sWV}, 4\ns_cbranch_scc1 L_xh")
XL = 88
wback(1)
a(f"ds_read_b64 v[2:3], v4")
for s in range(10): a(f"ds_read_b128 {V(XL+4*s,4)}, v{vXS} offset:{128*s}")
a(f"s_waitcnt lgkmcnt(10)\nv_readfirstlane_b32 s56, v2\nv_readfirstlane_b32 s57, v3")
fo = [f"s_and_b32 s0, s57, 0x7fff\ns_add_u32 s57, s57, s0\ns_add_u32 s57, s57, {R_BASE}\ns_and_b32 s1, s56, 0xfffff800",
      f"s_ashr_i32 s3, s1, 31\ns_not_b32 s3, s3\ns_or_b32 s3, s3, 0x80000000\ns_xor_b32 s1, s1, s3", f"s_andn2_b32 s56, 2047, s56\ns_mul_i32 s56, s56, 1280\nv_mov_b32 v{vSG}, s1",
      f"v_mul_f32 v{vSG}, 0xbfb8aa3b, v{vSG}", f"v_exp_f32 v{vSG}, v{vSG}", f"v_add_f32 v{vSG}, 1.0, v{vSG}", f"v_rcp_f32 v{vSG}, v{vSG}"]
for s in range(10):
    a(f"s_waitcnt lgkmcnt({9-s})"); smf(GA, XL + 4 * s, GF + 8 * s)
    if fo: a(fo.pop(0))
a("s_branch L_xj"); pad("m"); a("L_xh:")
for s in range(4): a(f"ds_read_b128 {V(XS+4*s,4)}, v{vXS} offset:{128*s}")
for s in range(10):
    a(f"s_waitcnt lgkmcnt({min(3, 9-s)})")
    smf(GA, XS + 4 * (s % 4), GF + 8 * s); smf(GA + 4, XS + 4 * (s % 4), GF + 80 + 8 * s)
    if s + 4 < 10: a(f"ds_read_b128 {V(XS+4*(s%4),4)}, v{vXS} offset:{128*(s+4)}")
a("L_xj:\ns_mov_b64 vcc, 0xffff")
a(f"v_add_f32 v1, v{GA}, v{GA+1}\nv_add_f32 v2, v{GA+4}, v{GA+5}\nv_cndmask_b32 v1, v2, v1, vcc")
NFL = MZ + 16
a("v_cmp_u_f32 vcc, v1, v1\ns_cbranch_vccnz L_xn\nL_xnb:")
DEFER.append(f"L_xn:\nv_mov_b32 v2, {NFL}\nds_write_b32 v2, v2\ns_branch L_xnb")
DEFER.append(f"L_xsr:\ns_sub_u32 s49, s49, 1\ns_cbranch_scc1 L_xsgo\n" + "\n".join(f"v_mov_b32 v{GA+i}, 0" for i in range(8))
             + f"\ns_waitcnt lgkmcnt(0)\ns_barrier\ns_cmp_eq_u32 s{sWV}, {6 + OPT['kold']}\ns_cbranch_scc0 L_np\nds_write_b32 v2, v{GA}\ns_branch L_xf")
stamp(6)
a(f"v_mul_f32 v2, 0xbfb8aa3b, v1\nv_exp_f32 v2, v2\nv_mul_f32_dpp v3, v1, v1 row_ror:8 {DPPM}\nv_add_f32 v2, 1.0, v2\nv_rcp_f32 v2, v2")
a(f"v_mul_f32 v1, v2, v3\nv_cvt_pk_bf16_f32 v1, v1, v1\ns_mov_b64 exec, s[50:51]\nds_write_b16 v{vACT}, v1\ns_mov_b64 exec, -1\nv_mov_b32 v2, {NFL}\ns_waitcnt lgkmcnt(0)\ns_barrier")
DD = 8
a(f"ds_read_b32 v1, v2\nds_read_b128 {V(XS,4)}, v{vA2}\nds_read_b128 {V(XS+4,4)}, v{vA1}\ns_waitcnt lgkmcnt(2)\nv_cmp_ne_u32 vcc, 0, v1\ns_cbranch_vccnz L_xsr\nL_xsgo:")
a("s_waitcnt lgkmcnt(1)")
for i in (4, 0, 1, 2, 3): mfma(DD + 4 * i, XS, DF + 12 * i + 8, "0")
a("s_waitcnt lgkmcnt(0)")
for i in (4, 0, 1, 2, 3): smf(DD + 4 * i, XS + 4, DF + 12 * i)
PS = 32
a(f"v_add_f32 v1, v{DD+16}, v{DD+17}")
for i in range(4):
    a(f"v_add_f32 v{PS+i}, v{DD+4*i}, v{DD+4*i+1}")
for i in range(4): a(f"v_mov_b32_dpp v{PS+i}, v1 quad_perm:[{i},{i},{i},{i}] row_mask:0x2 bank_mask:0xf")
a(f"s_mov_b64 exec, 0x1111ffff\nbuffer_store_dwordx4 {V(PS,4)}, v{vE4}, {S(WS)}, s47 offen sc1\ns_mov_b64 exec, -1")
stamp(7)
if OPT["stamps"] == 1: a(f"s_sub_u32 s3, {(BUDGET >> 2) + 1}, s49\ns_add_u32 s88, s98, s3\ns_add_u32 s90, s98, s63")
wback(2)
a(f"s_cmp_lt_u32 s{sFT}, 40\ns_cbranch_scc0 L_mfin")
FP = OPT["fp"]
FA = OPT["fa"]; NF = 3 if FA else 2
def fld(k):
    d = FD + 8 * k
    a(f"buffer_load_dword v{d+4}, v{vFB}, {S(WS)}, s57 offen sc1")
    if FA:
        for e in (0, 2): a(f"v_mov_b64 {V(d+e,2)}, 0\nbuffer_atomic_or_x2 {V(d+e,2)}, v6, {S(WS)}, s{sFE} offen offset:{4*e} sc0 sc1")
    else: a(f"buffer_load_dwordx4 {V(d,4)}, v6, {S(WS)}, s{sFE} offen sc1")
if OPT["f0"] > 0: a(f"s_sleep {OPT['f0']}")
if OPT["f0"] < 0: a("s_waitcnt vmcnt(0)")
if OPT["f0"] < -1: a(f"s_sleep {-OPT['f0'] - 1}")
for k in range(FP - 1):
    fld(k)
    if OPT["fs"]: a(f"s_sleep {OPT['fs']}")
a("L_fd:")
if OPT["ftop"]: a(f"s_sleep {OPT['ftop']}")
for k in range(FP):
    fld((k + FP - 1) % FP)
    d = FD + 8 * k
    a(f"s_waitcnt vmcnt({NF*(FP-1)})\nv_max3_u32 v1, v{d}, v{d+2}, v{d+4}\nv_cmp_eq_u32 vcc, -1, v1\ns_cbranch_vccz L_fg{k}")
    if OPT["fs"]: a(f"s_sleep {OPT['fs']}")
a(f"s_sub_u32 s{sBUD}, s{sBUD}, 1\ns_cbranch_scc0 L_fd")
for k in reversed(range(FP)):
    d = FD + 8 * k
    a(f"L_fg{k}:\nv_permlane32_swap_b32 v{d}, v{d+1}\nv_permlane32_swap_b32 v{d+2}, v{d+3}\nv_add_f32 v{d}, v{d}, v{d+1}\nv_add_f32 v{d+2}, v{d+2}, v{d+3}")
    a(f"v_permlane16_swap_b32 v{d}, v{d+2}\nv_add_f32 v{d}, v{d}, v{d+2}")
    for r in (4, 8): a(f"v_add_f32_dpp v{d}, v{d}, v{d} row_ror:{r} {DPPM}")
    a(f"v_fma_f32 v8, v{d}, v{vSG}, v{d+4}\nv_cvt_pk_bf16_f32 v8, v8, v8")
    execset(0x000F000F000F000F)
    a(f"buffer_store_short v8, v{vFC}, {S(OUT)}, s56 offen")
    if k: stamp(8); finish(); pad("m")
stamp(8)
a("L_mfin:")
finish()
deferred("m")
if OPT["stamps"]:
    a("L_dump:\ns_mov_b64 exec, -1\ns_memtime s[0:1]\ns_memrealtime s[62:63]\ns_waitcnt lgkmcnt(0)\nv_mov_b32 v2, 0")
    a("v_writelane_b32 v2, s98, 0\nv_writelane_b32 v2, s62, 1\ns_sub_u32 s3, s0, s96\nv_writelane_b32 v2, s3, 2")
    for i in range(NST): a(f"s_sub_u32 s3, s{70+2*i}, s{98 if OPT['rt'] else 96}\ns_cmp_lt_u32 s3, {5000 if OPT['rt'] else 0x100000}\ns_cselect_b32 s3, s3, 0\nv_writelane_b32 v2, s3, {3+i}")
    a(f"s_lshl_b32 s3, s2, 4\ns_add_u32 s3, s3, s{sWV}\ns_lshl_b32 s3, s3, 7\ns_add_u32 s3, s3, {STAMP}\nv_lshlrev_b32 v3, 2, v0\ns_mov_b32 exec_hi, 0")
    if not OPT["dfix"]: a(f"buffer_store_dword v2, v3, {S(WS)}, s3 offen")
    if OPT["diag"] >= 0:
        a(f"s_sub_u32 s3, s2, {OPT['dwg']}\ns_cmp_lt_u32 s3, {OPT['dn']}\ns_cbranch_scc0 L_end\ns_cmp_eq_u32 s{sWV}, {OPT['dwv']}\ns_cbranch_scc0 L_end")
        a(f"s_sub_u32 s3, s{70+2*OPT['diag']}, s{98 if OPT['dib'] < 0 else 70+2*OPT['dib']}\ns_lshl_b32 s3, s3, {2 if OPT['dib'] < 0 else 4}\ns_add_u32 s3, s3, s62")
        if OPT["dfix"]: a(f"s_add_u32 s3, s98, {OPT['dfix']}")
        a("L_dg:\ns_memrealtime s[62:63]\ns_waitcnt lgkmcnt(0)\ns_sub_u32 s0, s62, s3\ns_cmp_lt_i32 s0, 0\ns_cbranch_scc1 L_dg")
a("L_end:\ns_endpgm")
for i, l in reversed(list(enumerate(a.lines))):
    if l.startswith(";WARM"):
        _, cat, k, n = l.split()
        a.lines[i:i+1] = [f"s_call_b64 s[100:101], {p}" for p in PADS.get(cat, [])[int(k)::int(n)]]
print({k: len(v) for k, v in PADS.items()})
body, nn = hazard.fix(a.lines[body0:], OPT["verbose"])
a.lines[body0:] = body
kernel_desc(a, K, 256)
open(sys.argv[1], "w").write(a.text())
print("nops inserted:", nn, "lines:", len(a.lines))
```

```python
import sys, struct, math
sys.path.insert(0, "gen")
from common import *
import hazard

OPT = dict(stage="F", stamps=0, verbose=0, nl=9, pg=1, kw=0, kr=3, kn=1, kc=15, e2p=0, fmode=1, n0=8, na=2, nb=10, n1=0, o2=0, hp=1, cdw=0, sf=2, dpn=2, fsl=1, bk=0, bv=-1, wc=1, tch=5, bud=1 << 19, rw=5, clr=0, pf0=1, uord=0, mt=1, mx=8, x1=2, w1=1, ppr=0, sp=1, wb=0, pfp=3, te=1, tl=0, t2=0, wsp=0, ws0=2, ord=0, vpos=1, off="98672345", ftop=0, mlate=0, rf=1, kp=3, ks=2, ka=1, fp=2, fs=0, fa=0, f0=0, hlp=1, r2=5, e1=1, e2=4, dep=3, dep2=6, opos=1, vq=2, spf=0, pk=1, rsp=1, osc="plain",
           diag=-1, dwg=77, dn=1, dib=-1, dfix=0, dwv=0, slpk=0, prio=1, ou=6, grp=0, rt=1, dbg=0, wri=5, pre=12, aprio=1, lprio=2, vprio=2, oul=5, xprio=1, cpos=1)
for kv in sys.argv[2:]:
    k, v = kv.split("=")
    assert k in OPT, k
    OPT[k] = int(v) if v.lstrip("-").isdigit() else v
STAGE = OPT["stage"]

E2, SP, RJ, STAMP, DUMP = 0x200000, 0x280000, 0x300000, 0x500000, 0x1000000
RJS = 32768
R_BASE, R_FL, R_E4, R_KEY = 4096, 12288, 16384, 21504
SLOT, S0 = 36864, 8192
PITCH = 144; TSTR = 96 * PITCH
VB = S0 + SLOT - TSTR; KB = VB - TSTR; QB = KB - TSTR
STATS, ZR = 0, 1792
MODE, KMAX, WFL, VCN, HRD, XFL = 1728, 1732, 1744, 1748, 1752, 1760
WOB = S0 + 2 * SLOT
EX = S0 + SLOT + 12288
assert ZR + 8 * PITCH + 64 <= QB
X, W, WO, WS, OUT, DBG, WR = 4, 8, 12, 16, 20, 24, 28
sWV, sJ, sU, sG, sC, sC5, sT, sB0, sBUD, sMODE, sI, sGID = range(32, 44)
KA = dict(x=44, w=46, wo=48, wr=52, gate=54, up=56, down=60, out=62, dbg=64, ws=66)
BUDGET = OPT['bud']
DPPM = "row_mask:0xf bank_mask:0xf"
ONES = 0x3F803F80
OOB = 0x80000000
def f32(x): return struct.unpack("<I", struct.pack("<f", x))[0]
CEXP = f32(20 ** -0.5 * math.log2(math.e))

a = Asm()
def S(d): return f"s[{d}:{d+3}]"
def V(d, n=1): return f"v{d}" if n == 1 else f"v[{d}:{d+n-1}]"
def mksrd(d, name, size): a(f"s_mov_b64 s[{d}:{d+1}], s[{KA[name]}:{KA[name]+1}]\ns_mov_b32 s{d+2}, {size:#x}\ns_mov_b32 s{d+3}, 0x20000")
def execset(m):
    if m == -1: a("s_mov_b64 exec, -1")
    elif m < (1 << 31): a(f"s_mov_b64 exec, {m:#x}")
    else: a(f"s_mov_b32 exec_lo, {m & 0xffffffff:#x}\ns_mov_b32 exec_hi, {m >> 32:#x}")
def smask(d, m): a(f"s_mov_b32 s{d}, {m & 0xffffffff:#x}\ns_mov_b32 s{d+1}, {m >> 32:#x}")
def lanes(f): return sum(1 << l for l in range(64) if f(l))
def mfma(d, A, B, C=None):
    c = V(d, 4) if C is None else (C if isinstance(C, str) else V(C, 4))
    a(f"v_mfma_f32_16x16x32_bf16 {V(d,4)}, {V(A,4)}, {V(B,4)}, {c}")
DEFER = []
def lst(text):
    l = a.label("gl")
    a(f"s_cmp_eq_u32 s{sMODE}, 1\ns_cbranch_scc0 {l}g")
    a(text.replace("{F}", "")); a(f"{l}b:")
    DEFER.append(f"{l}g:\n" + text.replace("{F}", " sc1") + f"\ns_branch {l}b")
PADS = {}
def pad(cat):
    if not OPT["pg"]: return
    l = a.label("pad"); PADS.setdefault(cat, []).append(l); a(f"{l}:\ns_setpc_b64 s[100:101]")
def pagebreak(cat=None, live=True):
    if not OPT["pg"]: return
    l = a.label("pb")
    if live: a(f"s_branch {l}")
    a(".p2align 12")
    if cat: pad(cat)
    a(f"{l}:")
def warm(cat, k, n): a(f";WARM {cat} {k} {n}")
def deferred(cat=None):
    n = 999
    for t in DEFER:
        if cat and n > 110: pad(cat); n = 0
        a(t); n += t.count("\n") + 1
    DEFER.clear()
def capture(fn):
    global a
    class C:
        def __init__(s): s.g = []
        def __call__(s, t=""): s.g.append(t)
        def label(s, b): return a0.label(b)
    a0 = a; a = C(); fn(); g = a.g; a = a0
    return g
class Cnt:
    def __init__(s, name, mx): s.n = 0; s.name = name; s.mx = mx; s.done = 0
    def __call__(s, text): a(text); s.n += 1; return s.n
    def wait(s, i):
        if i <= s.done: return
        k = min(s.mx, s.n - i); a(f"s_waitcnt {s.name}({k})"); s.done = s.n - k
    def reset(s): s.n = 0; s.done = 0
L = Cnt("lgkmcnt", 15)

NST = 13
CLK = "s_memrealtime" if OPT["rt"] else "s_memtime"
def stamp(i, lvl=1):
    if OPT["stamps"] == lvl: a(f"{CLK} s[{70+2*i}:{71+2*i}]")
def stampi(ph):
    if OPT["stamps"] == 2:
        if ph == 0: a(f"{CLK} s[94:95]")
        else: a(f"s_lshl_b32 m0, s{sI}, 1\ns_waitcnt lgkmcnt(0)\ns_movreld_b32 s70, s94")
def finish():
    a("s_branch L_dump" if OPT["stamps"] else "s_endpgm")

a(HEADER.rstrip())
a("; @launch grid=(256,1,1) block=(512,1,1) lds=163840")
if OPT["stamps"] and OPT["grp"]: a("; @groups g0:0-79:2-2 g1:80-159:2-2 g2:160-239:2-2 m7:240-255:7-7")
if OPT["stamps"] and OPT["rt"]: a("; @rt")
if OPT["stamps"] and not OPT["grp"]: a("; @groups c0:0-239:0-0 c2:0-239:2-2 h0:0-239:4-4 h1:0-239:5-5 h3:0-239:7-7 m0:240-255:0-0 m4:240-255:4-4 ma:240-247:7-7 mb:248-255:7-7")
a('.amdgcn_target "amdgcn-amd-amdhsa--gfx950"')
K = NAME + "_kernel"
kernel_begin(a, K, OPT.get("page", 1))
body0 = len(a.lines)
NL = OPT["nl"]
a("s_load_dwordx16 s[44:59], s[0:1], 0\ns_load_dwordx8 s[60:67], s[0:1], 56")
if OPT["stamps"]: a("s_memrealtime s[98:99]\ns_memtime s[96:97]")
a(f"s_lshr_b32 s{sU}, s2, 3\ns_and_b32 s{sJ}, s2, 7\nv_readfirstlane_b32 s{sWV}, v0\ns_getpc_b64 s[100:101]\nL_pc:")
if OPT['dbg'] & 32: a('s_load_dword s79, s[100:101], 0x7000')
a(f"s_mul_i32 s3, s{sU}, {NL}\nv_min_u32 v2, {NL-1}, v0\nv_add_lshl_u32 v2, v2, s3, 7\nv_min_u32 v2, L_end-L_pc, v2")
a(f"s_cmp_ge_u32 s{sU}, 30\ns_cbranch_scc1 L_moe")
a("global_load_dword v255, v2, s[100:101]")
a(f"s_mul_i32 s{sG}, s{sU}, 26\ns_lshr_b32 s{sG}, s{sG}, 8\ns_mul_i32 s3, s{sG}, 10\ns_sub_u32 s{sC}, s{sU}, s3\ns_lshr_b32 s{sWV}, s{sWV}, 6")
OFT = sum(int(ch) << (4 * i) for i, ch in enumerate(str(OPT["off"])))
a(f"s_lshl_b32 s3, s{sJ}, 2\ns_lshr_b32 s3, {OFT:#x}, s3\ns_and_b32 s{sMODE}, s3, 15\ns_add_u32 s3, s{sC}, s{sMODE}\ns_sub_u32 s68, s3, 10\ns_cselect_b32 s69, s3, s68")
a(f"s_mul_i32 s3, s69, 245760\ns_lshl_b32 s68, s{sC}, 7\ns_add_u32 s3, s3, s68")
a("v_lshrrev_b32 v1, 3, v0\nv_lshrrev_b32 v3, 4, v0\nv_and_b32 v2, 2, v1\nv_and_or_b32 v2, v3, 4, v2\nv_xor_b32 v2, v2, v0\nv_and_b32 v2, 7, v2")
a("v_mul_u32_u24 v4, 3840, v1\nv_lshl_add_u32 v4, v2, 4, v4\nv_add_u32 v4, s3, v4")
vX, vSUM, vXD, vSTW, vBIA, vEV, vEA = 24, 28, 36, 52, 53, 54, 55
sM, sLO, sLT, sP1, sP2 = 44, 52, 54, 55, 56
sXT, sE2L, sRJ, sNO, sSL, sXM, sXO, sLX, sRD, sPF, sSPL, sFO, sSB = range(57, 70)
sEV, sDL, sWO_ = sXM, sXO, sFO
a(f"s_mul_i32 s3, s{sWV}, 3072\ns_add_u32 m0, s3, {S0 + 12288}\nv_and_b32 v0, 63, v0\ns_and_b32 s{sT}, s{sWV}, 3")
a(f"s_lshr_b32 s3, s{sJ}, 1\ns_lshl_b32 s3, s3, 9\ns_mul_i32 s68, s{sG}, 176\ns_add_u32 s3, s3, s68\ns_and_b32 s68, s{sJ}, 1\ns_add_u32 s3, s3, s68\ns_mul_i32 s{sB0}, s3, 1280")
a(f"s_sub_u32 s{sI}, s{sWV}, 5\ns_mul_i32 s3, s{sI}, {32*2560}\ns_add_u32 s3, s3, s{sB0}\ns_sub_u32 s3, s3, {8*2560}")
a(f"v_lshrrev_b32 v1, 3, v0\nv_lshrrev_b32 v3, 4, v0\nv_xor_b32 v3, v3, v0\nv_and_b32 v3, 7, v3\nv_mul_u32_u24 v1, 2560, v1\nv_lshl_add_u32 v1, v3, 4, v1\nv_add_u32 v{vX}, s3, v1")
a(f"s_add_u32 s3, s{sI}, s{sG}\ns_cmp_eq_u32 s3, 4\ns_cselect_b32 s3, {OOB:#x}, 0")
a(f"v_xor_b32 v{vX+1}, 64, v{vX}\nv_add_u32 v{vX+1}, 20480, v{vX+1}\nv_add_u32 v{vX+2}, 40960, v{vX}\nv_add_u32 v{vX+3}, 40960, v{vX+1}\nv_or_b32 v{vX+3}, s3, v{vX+3}")
for d, sz in ((X, 2048 * 1280), (W, 640 * 3840), (WO, 640 * 1280), (WS, 1 << 28), (OUT, 2048 * 1280), (DBG, 256), (WR, 1280)): a(f"s_mov_b32 s{d+2}, {sz:#x}\ns_mov_b32 s{d+3}, 0x20000")
a("s_waitcnt lgkmcnt(0)")
stamp(0)
def mv(d, n): return f"s_mov_b64 s[{d}:{d+1}], s[{KA[n]}:{KA[n]+1}]"
a(f"global_load_lds_dwordx4 v4, s[46:47]\ns_addk_i32 m0, -256\n{mv(X, 'x')}")
a(f"global_load_lds_dwordx4 v4, s[46:47] offset:1280\ns_addk_i32 m0, -256\n{mv(OUT, 'out')}")
a(f"global_load_lds_dwordx4 v4, s[46:47] offset:2560")
for d, n in ((DBG, "dbg"), (WS, "ws"), (W, "w"), (WO, "wo"), (WR, "wr")): a(mv(d, n))
sMT = 96
if OPT["mt"]: a(f"s_cmp_eq_u32 s{sWV}, 4\ns_cselect_b64 s[{sMT}:{sMT+1}], s[54:55], s[{sMT if OPT['stamps'] else 58}:{sMT+1 if OPT['stamps'] else 59}]\ns_cmp_eq_u32 s{sWV}, 5\ns_cselect_b64 s[{sMT}:{sMT+1}], s[56:57], s[{sMT}:{sMT+1}]")
if OPT["mt"] and OPT["stamps"]: a(f"s_cmp_ge_u32 s{sWV}, 6\ns_cselect_b64 s[{sMT}:{sMT+1}], s[58:59], s[{sMT}:{sMT+1}]")
def nextslab(): a(f"s_add_u32 s{sSB}, s{sSB}, 1\ns_cmp_eq_u32 s{sSB}, 10\ns_cselect_b32 s{sSB}, 0, s{sSB}")
def advslot(d): a(f"s_add_u32 s{d}, s{d}, {SLOT}\ns_cmp_eq_u32 s{d}, {S0 + 4*SLOT}\ns_cselect_b32 s{d}, {S0}, s{d}")
def xissue():
    a(f"s_add_u32 m0, s{sSL}, s{sLX}\ns_mov_b32 exec_lo, s{sXM}")
    for i in range(4):
        a(f"buffer_load_dwordx4 v{vX+i}, {S(X)}, s{sXO} offen lds")
        if i < 3: a("s_addk_i32 m0, 1024")
        if i == 0: a("s_mov_b32 exec_lo, -1")
a(f"s_cmp_lt_u32 s{sWV}, 5\ns_cbranch_scc1 L_nx")
a(f"s_lshl_b32 s{sLX}, s{sI}, 12\ns_cselect_b32 s{sXM}, -1, 0xffffff00\ns_lshl_b32 s{sXO}, s69, 7\ns_mov_b32 s{sSL}, {S0}")
xissue()
a("L_nx:")
stamp(1)
aKe, aK4, aKx, aKy = range(200, 204)
aQe, aQx, aQy, aQ4 = 204, 206, 208, 210
aVe, aV1, aV2 = range(216, 219)
vM, aRK, aCQ, aH0s, aH0l, aOs, aOl, aWO, aOUT, aL16, vRK, aXC, XR = 220, 222, 223, 224, 225, 226, 227, 228, 232, 233, 234, 235, 236
vAW, vAX0, vAX1, vSW, vSTR = 244, 245, 246, 247, 248
WRF, WSP = 244, 252
MASK = [lanes(lambda l: 2 * r + (l >> 5) > (l & 7)) for r in range(4)]
LO = lanes(lambda l: (l & 15) < 8)
sTA, sTP, sTS = 44, 44, 45
aOl2 = XR
def suA():
    a(f"s_mov_b32 s{sBUD}, {BUDGET}\ns_mul_i32 s{sGID}, s{sJ}, 3\ns_add_u32 s{sGID}, s{sGID}, s{sG}\ns_sub_u32 s3, s{sC}, 5\ns_cselect_b32 s{sC5}, s{sC}, s3")
    a(f"s_lshl_b32 s3, s{sWV}, 2\ns_lshr_b32 s{sTA}, 0x32105454, s3\ns_and_b32 s{sTA}, s{sTA}, 7\ns_lshr_b32 s45, s{sT}, 1\ns_add_u32 s45, s45, 4")
    a(f"s_cmp_eq_u32 s{sG}, 2\ns_cselect_b32 s{sNO}, 10, 11")
    a(f"s_sub_u32 s{sXT}, 10, s{sMODE}\nv_lshlrev_b32 v{aL16}, 4, v0")
    a(f"s_mul_i32 s{sE2L}, s{sGID}, 6\ns_add_u32 s{sE2L}, s{sE2L}, s{sTP}\ns_mul_i32 s{sE2L}, s{sE2L}, 2560\ns_add_u32 s{sE2L}, s{sE2L}, {E2}")
    a(f"s_lshl_b32 s{sRJ}, s{sJ}, 15\ns_add_u32 s{sRJ}, s{sRJ}, {RJ}")
    a(f"s_sub_u32 s51, 5, s{sC5}\ns_add_u32 s1, s{sC5}, 1\ns_sub_u32 s3, 15, s{sC5}\ns_cmp_le_u32 s{sC5}, 2\n"
      "s_cselect_b32 s46, 0, s3\ns_cselect_b32 s47, s51, s1\ns_cselect_b32 s48, s3, 0\ns_cselect_b32 s49, s1, s51\ns_cselect_b32 s50, 1, 0")
    a("v_and_b32 v3, 15, v0\nv_add_u32 v3, 8, v3\nv_lshrrev_b32 v4, 1, v3\nv_lshrrev_b32 v5, 5, v0\nv_xor_b32 v4, v4, v5\nv_and_b32 v4, 7, v4")
    a(f"v_lshlrev_b32 v4, 4, v4\nv_lshl_add_u32 v4, v3, 7, v4\nv_bfe_u32 v5, v0, 4, 1\nv_lshl_add_u32 v4, v5, 3, v4\ns_lshl_b32 s3, s{sTP}, 11\nv_add_u32 v{aXC}, s3, v4")
def suB():
    a(f"v_and_b32 v1, 15, v0\nv_lshrrev_b32 v2, 4, v0\nv_mov_b32 v7, {ZR}\ns_mul_i32 s0, s{sTA}, {16*PITCH}\ns_movk_i32 s1, {PITCH}")
    a("v_bfe_u32 v3, v0, 2, 1\nv_and_b32 v4, 3, v0\nv_lshlrev_b32 v4, 1, v4"); a("v_lshl_add_u32 v3, v3, 3, v4\nv_bfe_u32 v4, v0, 3, 1\nv_add_u32 v3, v3, v4")
    a(f"s_add_u32 s3, s0, {KB}\nv_mov_b32 v4, s3\nv_mad_u32_u24 v3, v3, s1, v4")
    a(f"s_add_u32 s3, s0, {QB + 8*PITCH}\nv_mov_b32 v4, s3\nv_mad_u32_u24 v4, v1, s1, v4")
    smask(52, LO)
    def kq(dK, dQ, quad, cond):
        a(quad); a(f"v_lshl_add_u32 v{dK}, v5, 3, v3\nv_lshl_add_u32 v5, v5, 3, v4")
        if cond: a(cond); a("v_cndmask_b32 v5, v7, v5, vcc")
        a(f"v_cndmask_b32 v{dQ}, v7, v5, s[52:53]\nv_cndmask_b32 v{dQ+1}, v5, v7, s[52:53]")
    kq(aKe, aQe, "v_add_u32 v5, s51, v2", None)
    kq(aKx, aQx, "v_add_u32 v5, s46, v2", "v_cmp_gt_u32 vcc, s47, v2")
    kq(aKy, aQy, "v_add_u32 v5, s48, v2\nv_min_u32 v5, 15, v5", "v_cmp_gt_u32 vcc, s49, v2")
    a("s_sub_u32 s3, s51, 1\nv_mad_u32_u24 v5, v2, 5, s3\ns_add_u32 s3, s46, 4\nv_mov_b32 v6, s3\ns_mov_b64 vcc, 0xffff\nv_cndmask_b32 v5, v5, v6, vcc")
    a(f"v_min_u32 v5, 15, v5\nv_lshl_add_u32 v{aK4}, v5, 3, v3\nv_lshl_add_u32 v5, v5, 3, v4")
    a(f"s_cmp_eq_u32 s47, 5\ns_cselect_b64 vcc, 0xff, 0\nv_cndmask_b32 v{aQ4}, v7, v5, vcc\ns_lshl_b64 vcc, vcc, 8\nv_cndmask_b32 v{aQ4+1}, v7, v5, vcc")
    for i in range(2, 6): a(f"s_bfm_b64 vcc, 8, {8*i}\nv_cndmask_b32 v{aQ4+i}, v7, v5, vcc")
def suC():
    a(f"s_mul_i32 s0, s{sTA}, {16*PITCH}\ns_movk_i32 s1, {PITCH}")
    a("v_bfe_u32 v3, v0, 2, 3\nv_lshrrev_b32 v4, 5, v0\nv_lshl_add_u32 v3, v3, 1, v4")
    a(f"s_add_u32 s3, s0, {VB}\nv_mov_b32 v4, s3\nv_mad_u32_u24 v3, v3, s1, v4\nv_and_b32 v4, 3, v0")
    smask(54, lanes(lambda l: l & 3 == 0))
    a(f"v_add_u32 v5, s51, v4\nv_lshl_add_u32 v{aVe}, v5, 3, v3\nv_add_u32 v7, 32, v{aVe}")
    a(f"s_cmp_eq_u32 s50, 1\ns_cselect_b32 s3, -1, 12\ns_cselect_b32 s56, 2, -1")
    a(f"v_add_u32 v5, s3, v4\nv_lshl_add_u32 v5, v5, 3, v3\nv_cndmask_b32 v{aV1}, v5, v7, s[54:55]\nv_add_u32 v7, 40, v7")
    a(f"v_add_u32 v5, s56, v4\nv_add_u32 v6, 10, v5\nv_cmp_gt_i32 vcc, s51, v5"); a(f"v_cndmask_b32 v5, v6, v5, vcc\nv_lshl_add_u32 v5, v5, 3, v3\nv_cndmask_b32 v{aV2}, v5, v7, s[54:55]")
    a(f"s_lshl_b32 s0, s{sTA}, 8\nv_lshrrev_b32 v4, 5, v0\nv_and_or_b32 v3, v0, 8, v4\ns_add_u32 s3, s0, {STATS + 8}\nv_lshl_add_u32 v{aRK}, v3, 4, s3")
    a(f"v_and_b32 v1, 15, v0\ns_add_u32 s3, s0, {STATS + 128 + 4}\nv_lshl_add_u32 v{aCQ}, v1, 4, s3")
    a(f"s_lshr_b32 s3, s{sB0}, 8\ns_mul_i32 s3, s3, 52429\ns_lshr_b32 s3, s3, 18\ns_lshl_b32 s0, s{sTP}, 5\ns_add_u32 s3, s3, s0\ns_sub_u32 s3, 2047, s3\nv_mad_i32_i24 v{vRK}, v1, -2, s3")
def octaddr(d, tile, rowq, extra):
    a(f"s_lshl_b32 s3, s{tile}, 4\nv_add_u32 v5, s3, v{rowq}\ns_lshl_b32 s3, s{sNO}, 3\nv_cmp_gt_u32 vcc, s3, v5")
    a(f"v_mul_u32_u24 v5, 2560, v5\nv_add3_u32 v5, v5, v{extra}, s{sB0}\nv_cndmask_b32 v{d}, v6, v5, vcc")
def suD(helper=1):
    a(f"v_lshrrev_b32 v2, 4, v0\nv_and_or_b32 v3, v0, 8, v2\nv_and_b32 v4, 0x70, v{aL16}\nv_bfrev_b32 v6, 1")
    if helper: octaddr(aOl2, sTS, 3, 4)
    octaddr(aOl, sTA, 3, 4)
    a(f"s_lshl_b32 s3, s{sC}, 7\nv_add_u32 v{aOs}, s3, v{aOl}")
    a(f"v_bfe_u32 v3, v0, 4, 1\nv_cmp_eq_u32 s[54:55], s50, v3\ns_cmp_lg_u32 s{sC5}, 0\ns_cselect_b64 s[0:1], -1, s[54:55]\ns_and_b64 vcc, vcc, s[0:1]")
    a(f"s_cmp_lg_u32 s{sC5}, 4\ns_cselect_b64 s[0:1], 0, s[54:55]\ns_andn2_b64 vcc, vcc, s[0:1]")
    a(f"v_cndmask_b32 v{aH0l}, v6, v{aOs}, vcc")
    a(f"s_cmp_le_u32 s{sC5}, 3\ns_cselect_b32 s3, 2560, 0\ns_sub_u32 s3, s3, 128\nv_mov_b32 v4, s3"); a(f"s_cmp_ge_u32 s{sC5}, 2\ns_cselect_b32 s3, 2560, 0\ns_add_u32 s3, s3, 128\nv_mov_b32 v5, s3")
    a(f"v_cndmask_b32 v4, v4, v5, s[54:55]\nv_mul_u32_u24 v3, 2560, v3\nv_sub_u32 v4, v4, v3"); a(f"v_add_u32 v4, v4, v{aOs}\nv_cndmask_b32 v{aH0s}, v6, v4, vcc")
def wlane():
    a("v_bfe_u32 v3, v0, 3, 2\nv_lshlrev_b32 v3, 2, v3\nv_and_or_b32 v3, v0, 3, v3"); a("v_lshlrev_b32 v3, 3, v3\nv_bfe_u32 v4, v0, 2, 2\nv_lshl_add_u32 v3, v4, 7, v3")
def suE(helper=1):
    a("v_and_b32 v1, 15, v0\nv_bfrev_b32 v6, 1\nv_bfe_u32 v3, v0, 4, 1\nv_lshrrev_b32 v4, 5, v0"); a(f"v_lshl_add_u32 v3, v3, 1, v4\ns_lshl_b32 s3, s{sC}, 7\nv_lshl_add_u32 v4, v3, 4, s3")
    octaddr(aOUT, sTP, 1, 4)
    wlane()
    a("v_lshrrev_b32 v2, 4, v0")
    if helper:
        a(f"s_and_b32 s3, s{sWV}, 1\ns_lshl_b32 s3, s3, 12\ns_add_u32 s3, s3, {WOB}\nv_lshl_add_u32 v4, v2, 10, v3\nv_add_u32 v{aWO}, s3, v4")
        for ct in range(1, 4): a(f"v_xor_b32 v{aWO+ct}, {32*ct}, v{aWO}")
    for r in range(4): smask(sM + 2 * r, MASK[r])
    a(f"s_movk_i32 s{sLT}, 10240\ns_mov_b32 s{sP1}, 0x07060501\ns_mov_b32 s{sP2}, 0x0706000c")
    a("v_mov_b32 v5, 0xffff\nv_mov_b32 v6, 0xffff0000")
    for d in range(2): a(f"v_cndmask_b32 v1, 0, v5, s[{sM+4*d}:{sM+4*d+1}]\nv_cndmask_b32 v4, 0, v6, s[{sM+4*d+2}:{sM+4*d+3}]\nv_or_b32 v{vM+d}, v1, v4")
KQ, SS, KS, PX, FL_, FE, VF, HL, CQ, TM, F01 = 96, 152, 168, 176, 192, 196, 64, 92, 5, 6, 2
DM, LT, QF = SS, 80, KQ + 20
H, OF, WOF, RING = 8, 24, 104, 6
DEP = OPT["dep"]
def capt(slot, d=XR):
    a(f"v_add_u32 v1, {slot}, v{aXC}")
    for ct in range(4):
        if ct: a(f"v_xor_b32 v{1+ct}, {32*ct}, v1")
        a(f"ds_read_b64 {V(d+2*ct,2)}, v{1+ct}")
def hinit(d=XR):
    for i in range(8): a(f"v_lshlrev_b32 v{H+2*i}, 16, v{d+i}\nv_and_b32 v{H+2*i+1}, 0xffff0000, v{d+i}")
def ldWR():
    a(f"v_lshrrev_b32 v1, 4, v0\nv_lshlrev_b32 v1, 3, v1\ns_lshl_b32 s3, s{sC}, 7")
    for ct in range(4): a(f"buffer_load_dwordx2 {V(WRF+2*ct,2)}, v1, {S(WR)}, s3 offen offset:{32*ct}")
def wrprep(t):
    a(f"s_mov_b32 s3, {ONES:#x}")
    for i in range(4): a(f"v_mov_b32 v{t+i}, s3")
    execset(0x1111111111111111)
    for i in range(8): a(f"v_mov_b32 v{WRF+i}, s3")
    execset(-1)
    for k in range(2): mfma(WSP, WRF + 4 * k, t, "0" if k == 0 else None)
def pzero(lo=0, hi=16):
    for i in range(lo, hi): a(f"v_mov_b32 v{PX+i}, 0")
def ksread(e=None):
    e = e or a
    a(f"v_add_u32 v1, 128, v{aRK}")
    for r in range(4):
        e(f"v_cndmask_b32 v2, v1, v{aRK}, s[{sM+2*r}:{sM+2*r+1}]\nds_read_b64 {V(KS+2*r,2)}, v2 offset:{32*r}")
    e(f"ds_read_b32 v{CQ}, v{aCQ}")
def rdmode(): a(f"v_mov_b32 v1, {MODE}\nds_read_b32 v1, v1\ns_waitcnt lgkmcnt(0)\nv_readfirstlane_b32 s{sMODE}, v1")
def gsync_h(poll):
    l = a.label("gh")
    a(f"s_cmp_eq_u32 s{sMODE}, 1\ns_cbranch_scc0 {l}g\n{l}b:")
    t = f"{l}g:\ns_barrier\n"
    if poll:
        t += f"s_cmp_eq_u32 s{sWV}, 5\ns_cbranch_scc0 {l}e\nv_mov_b32 v1, 1\ns_mov_b64 exec, 1\nbuffer_store_dword v1, off, {S(WS)}, s{sFO} offset:64 sc1\ns_mov_b64 exec, -1\n"
        t += f"{l}p:\nbuffer_load_dword v1, v{vEA}, {S(WS)}, 0 offen offset:64 sc1\ns_waitcnt vmcnt(0)\nv_cmp_ne_u32 vcc, 1, v1\ns_cbranch_vccz {l}e\ns_sub_u32 s{sBUD}, s{sBUD}, 1\ns_cbranch_scc0 {l}p\ns_mov_b32 s{sBUD}, 0\n{l}e:\n"
    DEFER.append(t + f"s_barrier\ns_branch {l}b")
def weave(P, xs):
    xs = list(xs); per = -(-len(xs) // len(P))
    for p in P:
        a(p)
        for _ in range(per):
            if xs: a(xs.pop(0))
a("v_mov_b32 v254, v4")
suA()
a(f"s_cmp_lt_u32 s{sWV}, 4\ns_cbranch_scc1 L_cons")
vW, vT = 24, 56
STR = {5: 0, 3: 1, 13: 2, -3: 3, -13: 4}
def wo_setup(vT=vT):
    a(f"v_lshrrev_b32 v1, 3, v0\nv_and_b32 v2, 2, v1\nv_xor_b32 v2, v2, v0\ns_lshl_b32 s3, s{sWV}, 2\nv_xor_b32 v2, s3, v2")
    a(f"v_and_b32 v2, 7, v2\ns_lshl_b32 s3, s{sC}, 7\nv_lshl_add_u32 v2, v2, 4, s3")
    a(f"v_and_b32 v3, 3, v1\nv_mul_u32_u24 v3, 1280, v3\nv_add_u32 v2, v3, v2")
    a(f"v_lshrrev_b32 v3, 5, v0\nv_mul_u32_u24 v3, 5120, v3\nv_sub_u32 v4, 5120, v3")
    for d, i in STR.items(): a(f"v_mad_u32_u24 v{vT+i}, v{3 + (d < 0)}, {abs(d)}, v2")
def wo_quads(cp, h, g):
    c5 = cp % 5
    if h == 0: return 5 - c5 + g, 10 - c5 + g
    if g == 0: return 9 - c5, 14 - c5
    i = g - 1
    p = 3 + i if c5 <= 2 else i
    return (i if c5 <= 2 else 13 + i), (p if p < 5 - c5 else 10 + p)
def wo_piece(st, g):
    h, cp = st // 10, st % 10
    q0, q1 = wo_quads(cp, h, g or 0)
    t = f"s_lshl_b32 s3, s{sT}, 10\ns_add_u32 m0, s3, {WOB}" if st == 0 else "s_addk_i32 m0, 4096"
    o = (64*cp + 4*min(q0, q1)) * 1280
    t += f"\ns_add_u32 s3, s{sPF}, {o}" if g is None else f"\ns_mov_b32 s3, {o}"
    return t + f"\nbuffer_load_dwordx4 v{vT + STR[q1 - q0]}, {S(WO)}, s3 offen lds"
def wo_late(lo, w, vT):
    for st in range(lo, 20):
        for g in (w, w + 2):
            q0, q1 = wo_quads(st % 10, st // 10, g)
            a(f"s_mov_b32 m0, {WOB + 4096*st + 1024*g}" if (st, g) == (lo, w) else "s_addk_i32 m0, 2048")
            a(f"s_mov_b32 s3, {(64*(st % 10) + 4*min(q0, q1)) * 1280}\nbuffer_load_dwordx4 v{vT + STR[q1 - q0]}, {S(WO)}, s3 offen lds")
def wo_run(lo, hi, tag):
    for st in range(lo, min(hi, 10)): a(wo_piece(st, None))
    lo = max(lo, 10)
    if lo >= hi: return
    for g in range(1, 4):
        a(f"s_cmp_eq_u32 s{sT}, {g}\ns_cbranch_scc1 L_wo{tag}{g}")
        DEFER.append(f"L_wo{tag}{g}:\n" + "\n".join(wo_piece(st, g) for st in range(lo, hi)) + f"\ns_branch L_wo{tag}")
    for st in range(lo, hi): a(wo_piece(st, 0))
    a(f"L_wo{tag}:")
N0 = OPT["n0"]; NA = N0 + OPT["na"]; NB = NA + OPT["nb"]; N1 = NB + OPT["n1"]
assert 2 * DEP <= N0 <= N1 <= 20
vTC = 61
def touch_setup():
    a(f"s_mul_i32 s3, s{sT}, 3\nv_lshrrev_b32 v1, 2, v0\nv_add_u32 v1, s3, v1\ns_add_u32 s3, s3, 3\ns_min_u32 s3, s3, s{sNO}\nv_cmp_gt_u32 vcc, s3, v1\nv_and_b32 v2, 3, v0\nv_lshl_add_u32 v1, v1, 3, v2")
    a(f"v_mul_u32_u24 v1, 2560, v1\ns_lshl_b32 s0, s{sC}, 7\ns_add_u32 s3, s0, s{sB0}\nv_add_u32 v1, s3, v1\nv_bfrev_b32 v2, 1\nv_cndmask_b32 v{vTC}, v2, v1, vcc")
    a(f"s_mul_i32 s3, s{sT}, 3\nv_min_u32 v1, 2, v0\nv_add_u32 v1, s3, v1\nv_lshrrev_b32 v2, 1, v1\nv_mul_u32_u24 v2, {2560 - 256}, v2\nv_lshl_add_u32 v1, v1, 7, v2")
    a(f"s_mul_i32 s3, s{sGID}, 15360\ns_lshl_b32 s0, s{sC}, 8\ns_add_u32 s3, s3, s0\ns_add_u32 s3, s3, {E2}\nv_add_u32 v{vTC+2}, s3, v1")
    if OPT["mt"]:
        R = 64 * (10 - OPT["mx"]); per = -(-2 * R // 30)
        a(f"s_mul_i32 s3, s{sU}, {per}\nv_min_u32 v1, {per-1}, v0\nv_add_u32 v1, s3, v1\nv_min_u32 v1, {2*R-1}, v1\nv_cmp_le_u32 vcc, {R}, v1\nv_mul_u32_u24 v1, 3072, v1")
        a(f"s_mul_i32 s3, s{sJ}, 384\ns_add_u32 s3, s3, {64*OPT['mx']*3072}\nv_add_u32 v1, s3, v1\nv_subrev_u32 v2, {(R + 320)*3072 - 256}, v1\nv_cndmask_b32 v1, v1, v2, vcc")
        a(f"s_mul_i32 s3, s{sJ}, 60\ns_lshl_b32 s0, s{sU}, 1\ns_add_u32 s3, s3, s0\ns_and_b32 s0, s{sWV}, 1\ns_add_u32 s3, s3, s0\ns_lshl_b32 s3, s3, 12\nv_min_u32 v2, 31, v0\nv_lshl_add_u32 v2, v2, 7, s3")
        a(f"s_cmp_ge_u32 s{sWV}, 6\ns_cselect_b64 vcc, -1, 0\nv_cndmask_b32 v{vMT}, v1, v2, vcc")
vMT = 84
def mtouch(p):
    if OPT["mt"] == p: a(f"global_load_dword v{vMT}, v{vMT}, s[{sMT}:{sMT+1}]")
NT = sum(OPT[k] in (0, 1) for k in ("te", "tl", "t2")) + (OPT["mt"] in (1, 2, 5))
NT2 = sum(OPT[k] == 2 for k in ("te", "tl", "t2")) + (OPT["mt"] == 3)
def xstart(i): nextslab(); a(f"s_lshl_b32 s{sXO}, s{sSB}, 7\ns_mov_b32 s{sSL}, {S0 + SLOT*(i % 4)}")
xstart(1)
if OPT["x1"] == 0: a(f"s_cmp_eq_u32 s{sWV}, 4\ns_cbranch_scc1 L_n1"); xissue(); a("L_n1:")
suB(); suC()
stamp(0, 5)
suD(); suE(); wo_setup(); touch_setup(); pzero()
a(f"s_cmp_eq_u32 s{sWV}, 4\ns_cbranch_scc1 L_h0")
E1_, E2_ = OPT["e1"], OPT["e2"]
assert 1 <= E1_ and E1_ + 2 <= E2_ <= 4
vXA = vEV
a(f"v_mov_b32 v4, {ONES:#x}\nv_mov_b32 v5, v4\nv_lshrrev_b32 v1, 4, v0\nv_mul_u32_u24 v1, {SLOT - 128}, v1\nv_lshl_add_u32 v1, v0, 3, v1\nds_write_b64 v1, v[4:5] offset:{S0}")
a(f"s_sub_u32 s0, s{sWV}, 5\ns_mul_i32 s3, s{sGID}, 3\ns_add_u32 s3, s3, s0\ns_mul_i32 s3, s3, 2560\ns_add_u32 s{sSPL}, s3, {SP}")
a(f"s_mul_i32 s3, s{sG}, 1280\ns_add_u32 s3, s3, s{sRJ}\ns_add_u32 s{sPF}, s3, {R_FL}\nv_min_u32 v1, 9, v0\nv_lshl_add_u32 v{vEA}, v1, 7, s{sPF}\ns_lshl_b32 s{sFO}, s{sC}, 7\ns_add_u32 s{sFO}, s{sFO}, s{sPF}")
a(f"v_and_b32 v1, 15, v0\nv_lshrrev_b32 v2, 5, v0\nv_lshl_add_u32 v2, v2, 4, v1\ns_lshl_b32 s0, s0, 5\nv_add_lshl_u32 v{vSTW}, v2, s0, 4")
a(f"v_lshrrev_b32 v2, 4, v0\nv_lshrrev_b32 v3, 1, v1\nv_xor_b32 v3, v3, v2\nv_lshlrev_b32 v3, 4, v3\nv_lshl_add_u32 v3, v1, 7, v3\nv_add_u32 v{vXA}, s{sLX}, v3")
a(f"s_cmp_lt_u32 s{sB0}, 2560\ns_cselect_b32 s3, 128, 0\nv_mov_b32 v1, 0xf149f2ca\nv_cmp_gt_u32 vcc, s3, v{vSTW}\nv_cndmask_b32 v{vBIA}, 0, v1, vcc")
stamp(1, 5)
if OPT["xprio"]: a(f"s_setprio {OPT['xprio']}")
if OPT["x1"] == 2: xissue()
ldWR()
for k in range(4): a(f"v_mov_b32 v{64+k}, {ONES:#x}")
if OPT["dbg"] & 64: a(f"s_lshl_b32 s3, s{sC}, 8\ns_add_u32 s3, s3, s{sSPL}\ns_mov_b64 exec, 0xffff\nbuffer_store_dwordx4 v[64:67], v{aL16}, {S(WS)}, s3 offen sc1\ns_mov_b64 exec, -1")
a(f"s_waitcnt vmcnt({9 if OPT['dbg'] & 64 else 8}) lgkmcnt(0)")
stamp(2, 5)
def part_stats():
    PD = 96
    a(f"v_xor_b32 v1, 64, v{vXA}")
    for t in range(2):
        for ks in range(2): a(f"ds_read_b128 {V(vXD+8*t+4*ks,4)}, v{1 if ks else vXA} offset:{S0 + 2048*t}")
    a(f"s_lshl_b32 s3, s{sC}, 8\ns_add_u32 s3, s3, s{sSPL}\nv_and_b32 v2, 0xf0, v{aL16}\ns_mov_b32 s0, 0xaaaaaaaa\ns_mov_b32 s1, s0\ns_mov_b32 vcc_lo, 0xcccccccc\ns_mov_b32 vcc_hi, 0xcccccccc")
    for t in range(2):
        for ks in range(2):
            a(f"s_waitcnt lgkmcnt({3 - 2*t - ks})")
            mfma(PD + 8 * t, vXD + 8 * t + 4 * ks, vXD + 8 * t + 4 * ks, None if ks else "0")
            mfma(PD + 8 * t + 4, 64, vXD + 8 * t + 4 * ks, None if ks else "0")
    for t in range(2):
        d = PD + 8 * t
        a(f"v_cndmask_b32 v{d}, v{d}, v{d+1}, s[0:1]\nv_cndmask_b32 v{d+2}, v{d+2}, v{d+3}, s[0:1]\nv_cndmask_b32 v{vSUM+2*t+1}, v{d}, v{d+2}, vcc\nv_mov_b32 v{vSUM+2*t}, v{d+4}")
    execset(0xF0000F0000F0000F)
    a(f"buffer_store_dwordx4 {V(vSUM,4)}, v2, {S(WS)}, s3 offen sc1")
    execset(-1)
    for i in range(4): a(f"v_mov_b32 v{vXD+8+i}, 0")
def only5(tag, fn):
    a(f"s_cmp_eq_u32 s{sWV}, 5\ns_cbranch_scc0 L_o5{tag}"); fn(); a(f"L_o5{tag}:")
def evchk(tag, cmp_, ld):
    a(f"s_waitcnt lgkmcnt(0)\n{cmp_}\ns_cbranch_scc0 L_er{tag}\nL_eg{tag}:")
    DEFER.append(f"L_er{tag}:\ns_sub_u32 s{sBUD}, s{sBUD}, 1\ns_cbranch_scc1 L_ex{tag}\n{ld}\ns_waitcnt lgkmcnt(0)\n{cmp_}\ns_cbranch_scc0 L_er{tag}\ns_branch L_eg{tag}\nL_ex{tag}:\ns_mov_b32 s{sBUD}, 0\ns_branch L_eg{tag}")
FR = [71, 73, 75, 77, 83, 85, 89, 91, 93, 95]
ldroot = f"s_lshl_b32 s0, s{sJ}, 5\nv_and_b32 v1, 16, v0\nbuffer_load_dword v{vSUM+4}, v1, {S(DBG)}, s0 offen sc1"
ldflag = "\n".join(f"s_buffer_load_dword s{r}, {S(WS)}, s{sPF} offset:{128*k} glc" for k, r in enumerate(FR))
for i in range(9):
    a("s_barrier")
    stamp(3 + i, 5)
    ex = 0
    if i == E1_ + 1:
        def f():
            evchk("a", f"v_cmp_ne_u32 vcc, 1, v{vSUM+4}\ns_cmp_eq_u64 vcc, 0", ldroot + "\ns_waitcnt vmcnt(0)")
            a(f"s_getreg_b32 s0, hwreg(HW_REG_XCC_ID, 0, 4)\nv_mov_b32 v1, s0\ns_mov_b64 exec, 1\nbuffer_store_dword v1, off, {S(WS)}, s{sFO} sc1\ns_mov_b64 exec, -1")
        only5("c", f)
    if i == E2_ + 2:
        for k in range(3):
            if k == 2: a("s_mov_b32 exec_hi, 0")
            if OPT["dbg"] & 16: a(f"s_mov_b32 s{sSPL}, {OOB:#x}")
            a(f"buffer_load_dwordx4 {V(vXD+4*k,4)}, v{aL16}, {S(WS)}, s{sSPL} offen offset:{1024*k} sc1")
        a("s_mov_b32 exec_hi, -1"); ex += 3
    if i == 0: part_stats(); ex += 1
    if OPT["pf0"] & 1 and OPT["pfp"] % 10 == i + 2:
        a(f"s_mul_i32 s3, s2, 3\ns_add_u32 s3, s3, s{sWV}\ns_sub_u32 s3, s3, 5\ns_mul_i32 s3, s3, {9*128}\nv_lshlrev_b32 v1, 7, v0\ns_mov_b64 exec, 0x1ff\nbuffer_load_dword v255, v1, {S(WO)}, s3 offen\ns_mov_b64 exec, -1"); ex += 1
    if i < 8: xstart(i + 2); xissue()
    if i:
        a(f"s_cmp_eq_u32 s{sXT}, {i}\ns_cbranch_scc0 L_xc{i}\ns_mov_b32 s0, {S0 + SLOT * (i % 4)}\ns_call_b64 s[100:101], L_xcap\nL_xc{i}:")
    if i == E2_ + 1:
        def f():
            evchk("b", f"s_max_u32 s0, s{FR[0]}, s{FR[1]}\n" + "\n".join(f"s_max_u32 s0, s0, s{r}" for r in FR[2:]) + "\ns_cmp_lg_u32 s0, -1", ldflag)
            a(f"s_min_u32 s1, s{FR[0]}, s{FR[1]}\n" + "\n".join(f"s_min_u32 s1, s1, s{r}" for r in FR[2:]) + f"\ns_cmp_eq_u32 s0, s1\ns_cselect_b32 s0, {OPT['fmode']}, 0")
            a(f"v_mov_b32 v1, {MODE}\nv_mov_b32 v2, s0\nds_write_b32 v1, v2")
        only5("d", f)
    if i == E2_ + 3:
        a(f"s_waitcnt vmcnt({8 + ex})")
        for k in (4, 8):
            for e in range(4): a(f"v_add_f32 v{vXD+e}, v{vXD+e}, v{vXD+k+e}")
        a(f"v_permlane32_swap_b32 v{vXD}, v{vXD+2}\nv_permlane32_swap_b32 v{vXD+1}, v{vXD+3}\nv_add_f32 v{vXD}, v{vXD}, v{vXD+2}\nv_add_f32 v{vXD+1}, v{vXD+1}, v{vXD+3}")
        a(f"v_mov_b32 v{vXD+2}, v{vXD}\nv_mov_b32 v{vXD+3}, v{vXD+1}\ns_mov_b32 s1, 0x3acccccd\nv_mov_b32 v1, 0x3727c5ac")
        a(f"v_permlane16_swap_b32 v{vXD}, v{vXD+2}\nv_permlane16_swap_b32 v{vXD+1}, v{vXD+3}\nv_add_f32 v{vXD}, v{vXD}, v{vXD+2}\nv_add_f32 v{vXD+1}, v{vXD+1}, v{vXD+3}")
        a(f"v_mul_f32 v{vXD}, 0xbacccccd, v{vXD}\nv_fma_f32 v2, v{vXD+1}, s1, v1\nv_fma_f32 v2, -v{vXD}, v{vXD}, v2\nv_max_f32 v2, v2, v1\nv_rsq_f32 v{vXD+1}, v2\nv_mov_b32 v{vXD+3}, v{vBIA}\nv_mov_b32 v{vXD+2}, v{vXD+1}")
        a(f"ds_write_b128 v{vSTW}, {V(vXD,4)} offset:{STATS}")
    if 1 <= i <= 6 and OPT["pg"]:
        a(f"s_cmp_eq_u32 s{sWV}, 7\ns_cbranch_scc0 L_wm{i}"); warm("h", i - 1, 6); a(f"L_wm{i}:")
    if i == 0: pagebreak("c0")
    if i == 7 and OPT["wsp"]: pagebreak("h")
    if i == 8: break
    if i == E1_ + 1: a(f"s_cmp_eq_u32 s{sWV}, 5\ns_cbranch_scc1 L_w5{i}\ns_waitcnt vmcnt({4 + ex})\nL_w5{i}:"); ex += 1
    a(f"s_waitcnt vmcnt({4 + ex}) lgkmcnt(0)")
    if i == E1_ - 1: only5("a", lambda: a(ldroot))
    if i == E2_: only5("b", lambda: a(ldflag))
    if OPT["wsp"] and i >= OPT["ws0"]:
        LQ = [(cp, q) for cp in range(5) for g in range(4) for q in wo_quads(cp, 1, g)]
        part = LQ[OPT["wsp"] * (i - OPT["ws0"]):OPT["wsp"] * (i - OPT["ws0"] + 1)]
        if part:
            if i == OPT["ws0"]: a(f"s_mul_i32 s3, s{sG}, 3\ns_add_u32 s3, s3, s{sWV}\ns_sub_u32 s3, s3, 5\ns_lshr_b32 s0, s3, 2\ns_mul_i32 s0, s0, 316\ns_add_u32 s3, s3, s0\ns_mul_i32 s3, s3, 1280\ns_lshl_b32 s0, s{sC}, 7\ns_add_u32 s{sRD}, s3, s0")
            for cp, q in part:
                for o in (0, 64): a(f"s_buffer_load_dword s79, {S(WO)}, s{sRD} offset:{(64*cp + 4*q)*1280 + o}")
    if i == 2 and OPT["ppr"]:
        a(f"s_lshl_b32 s3, s{sC}, 8\ns_add_u32 s3, s3, s{sSPL}")
        for k in range(4): a(f"s_buffer_load_dword s75, {S(WS)}, s3 offset:{64*k}")
a(f"L_h8:\ns_mul_i32 s{sPF}, s{sT}, 5120")
mtouch(4)
wo_run(0, N0, "a")
mtouch(5)
ksread(); rdmode()
if OPT['hp'] == 0: hinit(72); wrprep(64)
a(f"s_waitcnt vmcnt({N0 + (OPT['mt'] >= 4)})")
stamp(2)
a("s_barrier")
stamp(3); stamp(9, 2); stamp(0, 3)
if not OPT['clr']: gsync_h(1)
def touch(p):
    if p == OPT["tl"]: a(f"buffer_load_dword v{vTC+1}, v{vTC}, {S(OUT)}, s{sLT} offen")
    if p == OPT["te"]: a(f"buffer_load_dword v{vTC+1}, v{vTC}, {S(OUT)}, 0 offen")
    if p == OPT["t2"]: a(f"buffer_load_dword v{vTC+2}, v{vTC+2}, {S(WS)}, 0 offen")
wo_run(N0, NA, "d")
touch(0)
mtouch(1)
if OPT['hp'] == 1: hinit(72); wrprep(64)
sO, sDW = 61, 65
a(f"s_and_b32 s3, s{sWV}, 1\ns_lshl_b32 s{sO}, s3, 7\ns_xor_b32 s{sO+1}, s{sO}, 128\ns_add_u32 s{sO+2}, s{sO+1}, s{sLT}\ns_add_u32 s{sO+3}, s{sO}, s{sLT}\ns_lshl_b32 s3, s3, 13\ns_sub_u32 s{sDW}, 4096, s3")
DEFER.append("L_xcap:\n" + "\n".join(capture(lambda: capt("s0", 72))) + "\ns_setpc_b64 s[100:101]")

def rdWO1(s, ct, e):
    t = ""
    if e == 0 and s in (5, 10, 15): t = {5: f"v_add_u32 v{aWO+ct}, s{sDW}, v{aWO+ct}", 10: f"v_add_u32 v{aWO+ct}, 40960, v{aWO+ct}", 15: f"v_subrev_u32 v{aWO+ct}, s{sDW}, v{aWO+ct}"}[s] + "\n"
    return t + f"ds_read_b64_tr_b16 {V(WOF + 16*(s % RING) + 4*ct + 2*e, 2)}, v{aWO+ct} offset:{8192*(s % 5) + 512*e}"
SF = 15 - OPT["sf"]
OL = [(s, w) for s in range(SF) for w in range(2 if s >= 5 else 1)] + [(s, 1) for s in range(SF, 15)] + [(s, 0) for s in range(SF, 20)]
def oreg(k): return OF + 4 * (k % (20 if not OPT["dbg"] & 2 else OPT["ou"]))
def ldO(k):
    s, w = OL[k]
    a(f"buffer_load_dwordx4 {V(oreg(k),4)}, v{aOl2 if w else aOl}, {S(OUT)}, s{sO + s // 5} offen offset:{256*(s % 5)} sc1")
def spin(tag, addr, cmp_, slp=0):
    a(f"{cmp_}\ns_cbranch_vccnz L_sp{tag}\nL_sb{tag}:")
    DEFER.append(f"L_sp{tag}:\n" + (f"s_sleep {slp}\n" if slp else "") + f"v_mov_b32 v1, {addr}\nds_read_b32 v1, v1\ns_waitcnt lgkmcnt(0)\n{cmp_}\ns_cbranch_vccnz L_sp{tag}\ns_branch L_sb{tag}")
def fold(A, B, F):
    for r in range(4): a(f"v_permlane16_swap_b32 v{A+r}, v{B+r}")
    for r in range(4): a(f"v_cndmask_b32 v{F[r]}, v{B+r}, v{A+r}, s[{sM+2*r}:{sM+2*r+1}]")
def softmax(F, P, mid=None, mid2=None):
    m, t = TM, TM + 1
    for r in range(4): a(f"v_fma_f32 v{F+r}, v{F+r}, v{KS+2*r}, v{KS+2*r+1}")
    a(f"v_max3_f32 v{m}, v{F}, v{F+1}, v{F+2}\nv_max_f32 v{m}, v{m}, v{F+3}\nv_mov_b32 v{t}, v{m}\nv_permlane32_swap_b32 v{m}, v{t}\nv_max_f32 v{m}, v{m}, v{t}\nv_mul_f32 v{m}, v{m}, v{CQ}")
    for r in range(4): a(f"v_fma_f32 v{F+r}, v{F+r}, v{CQ}, -v{m}")
    for r in range(4): a(f"v_exp_f32 v{F+r}, v{F+r}")
    if mid: mid()
    a(f"v_add_f32 v{m}, v{F}, v{F+1}\nv_add_f32 v{t}, v{F+2}, v{F+3}\nv_add_f32 v{m}, v{m}, v{t}\nv_mov_b32 v{t}, v{m}\nv_mul_f32 v{F}, v{F}, v{KS}\nv_mul_f32 v{F+1}, v{F+1}, v{KS+2}")
    a(f"v_permlane32_swap_b32 v{m}, v{t}\nv_mul_f32 v{F+2}, v{F+2}, v{KS+4}\nv_add_f32 v{m}, v{m}, v{t}\nv_rcp_f32 v{m}, v{m}\nv_mul_f32 v{F+3}, v{F+3}, v{KS+6}")
    for r in range(4): a(f"v_mul_f32 v{F+r}, v{F+r}, v{m}")
    a(f"v_cvt_pk_bf16_f32 v{F}, v{F}, v{F+1}\nv_cvt_pk_bf16_f32 v{F+1}, v{F+2}, v{F+3}")
    if mid2: mid2()
    for hh in range(2):
        a(f"s_mov_b64 exec, s[{sLO}:{sLO+1}]" if hh == 0 else "s_not_b64 exec, exec")
        for d in range(2): a(f"v_and_b32 v{P+2*hh+d}, v{vM+d}, v{F+d}\nv_bfi_b32 v{P+4+2*hh+d}, v{vM+d}, 0, v{F+d}")
    a("s_mov_b64 exec, -1")
    for d in range(4): a(f"v_permlane16_swap_b32 v{P+d}, v{P+4+d}")
def ymask():
    a(f"s_add_u32 s0, s{sC5}, 1\ns_sub_u32 s1, 5, s{sC5}\ns_min_u32 s0, s0, s1\ns_lshl_b32 s0, s0, 4\ns_sub_u32 s1, 64, s0\ns_cmp_le_u32 s{sC5}, 2\ns_cselect_b32 s1, s1, 16\ns_bfm_b64 s[100:101], s0, s1")
def attention(T):
    helper = T == "h"; doL = T != "e"; doE = T != "l"
    L.reset()
    rid = {}
    KR = ((aKx, 0), (aKy, 0), (aK4, 0), (aKe, 0), (aKe, 40))
    QR = ((aQx, 0, 0), (aQy, 0, 1), (aQ4, 0, 2), (aQe, 0, 3), (aQe, 40, 4), (aQ4 + 2, 0, 2), (aQ4 + 4, 0, 2))
    def rk(i):
        k, o = KR[i]; d = KQ + 4 * i
        L(f"ds_read_b64 {V(d,2)}, v{k} offset:{o}"); L(f"ds_read_b64 {V(d+2,2)}, v{k} offset:{o + 8*PITCH}")
    def rq(i):
        q, o, _ = QR[i]; d = QF + 4 * i
        L(f"ds_read_b64 {V(d,2)}, v{q} offset:{o}"); rid[i] = L(f"ds_read_b64 {V(d+2,2)}, v{q+1} offset:{o}")
    def lg(i):
        L.wait(rid[i]); mfma(SS + (0, 4, 0, 8, 12, 8, 12)[i], KQ + 4 * QR[i][2], QF + 4 * i, "0" if i in (0, 1, 3, 4) else None)
    vid = {}
    vc = [None]
    def vlook():
        if OPT["ord"]: a(f"v_mov_b32 v1, {VCN}"); vc[0] = L("ds_read_b32 v1, v1")
    def vreads():
        if OPT["ord"]: L.wait(vc[0]); spin("v" + T, VCN, "v_cmp_ne_u32 vcc, 4, v1")
        if helper: stamp(4, 3)
        for i, (r_, o) in enumerate(((aVe, 0), (aVe, 40), (aV1, 0), (aV2, 0))):
            if doE or i >= 2:
                L(f"ds_read_b64_tr_b16 {V(VF+4*i,2)}, v{r_} offset:{o}")
                vid[i] = L(f"ds_read_b64_tr_b16 {V(VF+4*i+2,2)}, v{r_} offset:{o + 8*PITCH}")
    def lfold(): fold(SS, SS + 4, [F01, F01 + 1, FL_ + 2, FL_ + 3])
    def lpack(): a(f"v_or_b32 v{FL_}, 0xffff, v{F01}\nv_perm_b32 v{FL_+1}, v{F01+1}, v{F01}, s{sP1}")
    cq = f"v_mul_f32 v{CQ}, {CEXP:#x}, v{CQ}"
    if helper:
        ymask(); a(cq)
        a("s_barrier")
        for i in range(5): rk(i)
        wo_run(NA, NB, "e")
        if OPT["bv"] >= 0: a("s_barrier"); vreads()
        wo_run(NB, N1, "b")
        touch(1)
        mtouch(2)
        a(f"s_setprio {OPT['aprio']}\ns_waitcnt vmcnt({NT + N1 - N0 if OPT['wc'] < 2 else NT})")
        stamp(1, 3)
        a("s_barrier")
        stamp(4); stamp(2, 3)
        if STAGE == "A": a("s_branch L_dumpA")
        rq(0); rq(1); rq(2); rq(3); rq(4); lg(0); rq(5); lg(1); rq(6); lg(2); lg(3); lg(4); lg(5); lg(6); lfold(); lpack()
    elif doL: rk(0); rq(0); rk(1); rq(1); rk(2); rq(2); ymask(); lg(0); lg(1); lg(2); ksread(L); lfold(); lpack()
    else: rk(3); rq(3); rk(4); rq(4); rk(2); rq(5); rq(6); pzero(0, 8); lg(3); lg(4); ksread(L); lg(5); lg(6)
    if doL: lst(f"buffer_store_dwordx4 {V(FL_,4)}, v{aH0s}, {S(OUT)}, s{sLT} offen{{F}}")
    stamp(5); stamp(3, 3)
    if helper: touch(3)
    if helper and OPT["wc"] == 0: wo_run(N1, 20, "c")
    hl = f"buffer_load_dwordx4 {V(HL,4)}, v{aH0l}, {S(OUT)}, s{sLT} offen sc1"
    prefill = lambda: [a(rdWO1(s_, ct, e)) for s_ in range(DEP) for ct in range(4) for e in range(2)] if helper else None
    early = lambda: [ldO(k) for k in range(OPT["ou"])] if helper else None
    late = f"buffer_store_dwordx4 {V(LT,4)}, v{aOs}, {S(OUT)}, s{sLT} offen{{F}}"
    if doE:
        fold(SS + 8, SS + 12, [FE + r for r in range(4)])
        if not helper: L.wait(L.n); a(cq)
        if OPT["vpos"] == 1 or not helper: vlook()
        def mid():
            if helper and OPT["vpos"] == 2: vlook()
            elif not helper or OPT["bv"] < 0: vreads()
            if helper and OPT["wc"] == 1: wo_run(N1, 20, "c")
            if helper and OPT["hlp"] == 0: a(hl)
        softmax(FE, PX, mid, vreads if helper and OPT["vpos"] == 2 else None)
        stamp(5, 3)
        if helper and OPT["hlp"] == 1: a(hl)
        if helper: touch(2)
        L.wait(vid[3])
        for i in range(4): mfma(DM + 4 * i, VF + 4 * i, PX + 4 * (i & 1), "0")
        for i in range(4): a(f"v_cvt_pk_bf16_f32 v{FE+i}, v{DM+2*i}, v{DM+2*i+1}")
        lst(f"buffer_store_dwordx4 {V(FE,4)}, v{aOs}, {S(OUT)}, 0 offen{{F}}")
        stamp(6); stamp(6, 3)
        if T == "e": a(f"s_lshl_b32 s0, s{sWV}, 2\ns_add_u32 s0, s0, {HRD}\nv_mov_b32 v1, s0\nds_read_b32 v1, v1")
        for i in range(4): a(f"v_cvt_pk_bf16_f32 v{LT+i}, v{DM+8+2*i}, v{DM+8+2*i+1}")
        if helper: mtouch(3)
        prefill()
    else:
        vlook(); pzero(8, 16); vreads(); L.wait(L.n); a(cq); a(hl)
        if OPT["wc"] == 2:
            a(f"s_cmp_eq_u32 s{sWV}, 3\ns_cbranch_scc1 L_wl3"); wo_late(N1, 0, 249); a("L_wlb:")
            DEFER.append("L_wl3:\n" + "\n".join(capture(lambda: wo_late(N1, 1, 249))) + "\ns_branch L_wlb")
    if T == "e":
        a("s_waitcnt lgkmcnt(0)"); spin("r", "s0", "v_cmp_eq_u32 vcc, 0, v1", 1)
        execset(0xffff); lst(late); execset(-1)
        stamp(7); stamp(10, 3)
        return
    stamp(7, 3)
    a(f"s_waitcnt vmcnt({1 + NT2 if doE else 2 * (20 - N1) if OPT['wc'] == 2 else 0})\nv_cmp_eq_u32 vcc, -1, v{HL}\ns_cbranch_vccnz L_h0r{T}\nL_h0g{T}:")
    stamp(8, 3)
    DEFER.append(f"L_h0r{T}:\ns_sub_u32 s{sBUD}, s{sBUD}, 1\ns_cbranch_scc1 L_h0x{T}\n{hl}\ns_waitcnt vmcnt(0)\n"
                 f"v_cmp_eq_u32 vcc, -1, v{HL}\ns_cbranch_vccnz L_h0r{T}\ns_branch L_h0g{T}\nL_h0x{T}:\ns_mov_b32 s{sBUD}, 0\ns_branch L_h0g{T}")
    wfl = f"v_mov_b32 v1, {WFL}\nv_mov_b32 v4, 1\ns_mov_b64 exec, 1\nds_add_u32 v1, v4\ns_mov_b64 exec, -1"
    if helper:
        if OPT["wc"] < 2: a(wfl)
    else: a(f"s_lshl_b32 s0, s{sWV}, 2\ns_add_u32 s0, s0, {HRD - 8}\nv_mov_b32 v1, s0\nds_write_b32 v1, v1")
    a(f"v_perm_b32 v{HL}, v{HL}, v{HL+1}, s{sP2}")
    for r in (1, 2, 3, 0): a(f"v_add_f32 v{FL_+r}, v{F01+r if r < 2 else FL_+r}, v{HL+r}")
    if OPT["opos"] == 0: early()
    softmax(FL_, PX + 8, early if OPT["opos"] == 1 else None)
    if OPT["opos"] == 2: early()
    stamp(9, 3)
    mfma(DM, VF + 8, PX + 8, "0"); mfma(DM + 4, VF + 12, PX + 8, "0"); mfma(DM + 8, VF + 12, PX + 12, "0")
    if helper and OPT["wc"] < 2: a("ds_read_b32 v1, v1")
    a("s_mov_b32 exec_lo, 0xffff0000")
    for i in range(4): a(f"v_cvt_pk_bf16_f32 v{LT+i}, v{DM+2*i}, v{DM+2*i+1}")
    a("s_mov_b64 exec, s[100:101]")
    for i in range(2): a(f"v_cvt_pk_bf16_f32 v{LT+2+i}, v{DM+8+2*i}, v{DM+8+2*i+1}")
    execset(-1 if doE else 0xffffffffffff0000)
    lst(late)
    stamp(7); stamp(10, 3)
    if not helper and OPT["wc"] == 2: a("s_mov_b64 exec, -1\ns_waitcnt vmcnt(1)\n" + wfl + "\ns_waitcnt lgkmcnt(0)")
attention("h")
if STAGE == "B": a("s_waitcnt vmcnt(0)"); finish()
pagebreak("h")
SH = 200
U = OPT["ou"]; nO = [U]
def ldOn():
    if nO[0] < len(OL):
        if not OPT["dbg"] & 2: ldO(nO[0])
        nO[0] += 1
L.reset()
stamp(8); stamp(0, 4)
idx = {o: k for k, o in enumerate(OL)}
GR = [[0, 1], [2, 3], [4]] + [[k, k + 1] for k in range(5, 29, 2)] + [[29]]
gof = {k: G for G, g in enumerate(GR) for k in g}
issued = {}
def cmp_(G):
    r = [oreg(k) for k in GR[G]]
    if len(r) == 2: a(f"v_max_u16 v2, v{r[0]}, v{r[1]}\nv_cmp_eq_u16 vcc, -1, v2")
    else: a(f"v_cmp_eq_u16 vcc, -1, v{r[0]}")
def chk_a(G):
    last = GR[G][-1] + 1
    assert nO[0] >= last
    a(f"s_waitcnt vmcnt({nO[0] - last + (last <= U)})"); cmp_(G)
def chk_b(G):
    issued[G] = nO[0]
    a(f"s_cbranch_vccnz L_st{G}\nL_go{G}:")
a(f"s_lshl_b32 s0, s{sT}, 12\ns_add_u32 s0, s0, {EX}\nv_add_u32 v4, s0, v{aL16}\ns_and_b32 s0, s{sT}, 2\ns_lshl_b32 s0, s0, 1\ns_add_u32 s0, s0, {XFL}\nv_mov_b32 v3, s0\nv_mov_b32 v5, 1\ns_waitcnt lgkmcnt(0)")
spin("w", WFL, "v_cmp_ne_u32 vcc, 4, v1")
RQ = [(s, ct, e) for s in range(DEP, 20) for ct in range(4) for e in range(2)]
wid = {(s, ct): 0 for s in range(DEP) for ct in range(4)}
left = {(s, ct): 2 if 5 <= s < 15 else 1 for s in range(20) for ct in range(4)}
def rdn(n):
    for _ in range(n):
        if not RQ: return
        s, ct, e = RQ[0]
        if s >= RING and left[s - RING, ct]: return
        RQ.pop(0); wid[s, ct] = L(rdWO1(s, ct, e))
MS = []
k = 0
while k < 30:
    if k + 1 < 30 and OL[k][0] == OL[k+1][0]: MS += [(kk, ct) for ct in range(4) for kk in (k, k + 1)]; k += 2
    else: MS += [(k, ct) for ct in range(4)]; k += 1
firstm = {}
for m, (k, ct) in enumerate(MS): firstm.setdefault(gof[k], m)
ca = {m - 2: G for G, m in firstm.items() if G}; cb = {m - 1: G for G, m in firstm.items() if G}
lasts = max(m for m, (k, ct) in enumerate(MS) if OL[k][1])
wr = {lasts + 2 + q + (q == 3) * 2: q for q in range(4)}
chk_a(0); chk_b(0)
for m, (k, ct) in enumerate(MS):
    s, w = OL[k]
    if m in ca: chk_a(ca[m])
    if m in cb: chk_b(cb[m])
    while RQ and RQ[0][:2] <= (s, ct): n = len(RQ); rdn(1); assert len(RQ) < n
    if ct == 0 and (not RQ or RQ[0][0] > s) and L.n - wid[s, 3] >= 6: L.wait(wid[s, 3])
    L.wait(wid[s, ct])
    mfma((SH if w else H) + 4 * ct, WOF + 16 * (s % RING) + 4 * ct, oreg(k), "0" if w and s == 5 else None)
    left[s, ct] -= 1
    if (m % 4 == 0 or (m < 20 and m % 4 == 1 and m // 4 >= (3, 0)[OPT["o2"]])) and nO[0] < len(OL): ldOn(); rdn(1)
    elif m in wr: L(f"ds_write_b128 v4, {V(SH + 4*wr[m], 4)} offset:{1024*wr[m]}")
    elif m == lasts + 8: a("s_mov_b64 exec, 1"); L("ds_add_u32 v3, v5"); a("s_mov_b64 exec, -1")
    else: rdn(1 if m + 1 in ca or m + 1 in cb or m in cb else 2)
    if m == 3: stamp(9); stamp(11, 3)
    if m == 59: stamp(12, 3)
    if m % 12 == 11: stamp(1 + m // 12, 4)
assert nO[0] == len(OL)
for G in range(len(GR)):
    t = f"L_st{G}:\ns_sub_u32 s{sBUD}, s{sBUD}, 1\ns_cbranch_scc1 L_sx{G}\n"
    def re():
        for G2 in range(G, min(G + OPT["rsp"], len(GR))):
            for k in GR[G2]:
                if k < issued[G]: ldO(k)
        a("s_waitcnt vmcnt(0)"); cmp_(G)
    t += "\n".join(capture(re))
    t += f"\ns_cbranch_vccnz L_st{G}\ns_branch L_go{G}\nL_sx{G}:\ns_mov_b32 s{sBUD}, 0\ns_branch L_go{G}"
    DEFER.append(t)
a("L_tail:")
stamp(10)
HB, DS1, DS2, E2D, T0, RS = 24, 32, 36, 40, 52, 2
EV1 = OPT['e1']
for i in range(8): a(f"v_cvt_pk_bf16_f32 v{HB+i}, v{H+2*i}, v{H+2*i+1}")
for k in range(2):
    mfma(DS2, HB + 4 * k, HB + 4 * k, "0" if k == 0 else None)
    mfma(DS1, WRF + 4 * k, HB + 4 * k, "0" if k == 0 else None)
a("s_mov_b32 s0, 0x22222222\ns_mov_b32 s1, s0\ns_mov_b32 s44, 0x44444444\ns_mov_b32 s45, s44\ns_mov_b32 vcc_lo, 0x88888888\ns_mov_b32 vcc_hi, 0x88888888")
a(f"s_lshl_b32 s3, s{sC}, 8\ns_add_u32 s3, s3, s{sE2L}\nv_and_b32 v1, 0xf0, v{aL16}")
a(f"v_cndmask_b32 v{DS2}, v{DS2}, v{DS2+1}, s[0:1]\nv_cndmask_b32 v{DS2+2}, v{DS2+2}, v{DS2+3}, vcc\ns_or_b64 vcc, vcc, s[44:45]")
a(f"v_cndmask_b32 v{DS1+2}, v{DS2}, v{DS2+2}, vcc\nv_mov_b32 v{DS1+3}, v{WSP+1}")
execset(0xF0000F0000F0000F)
lst(f"buffer_store_dwordx4 {V(DS1,4)}, v1, {S(WS)}, s3 offen{{F}}")
execset(-1)
for i in range(4): a(f"v_mov_b32 v{E2D+8+i}, 0")
a(f"v_mov_b32 v4, 1.0\ns_mov_b32 s0, 0xbacccccd\ns_mov_b32 s1, 0x3acccccd\nv_mov_b32 v5, 0x3727c5ac\ns_mov_b32 s44, 0xfffff800\nv_mov_b32 v1, {KMAX}")
a(f"v_cmp_le_i32 s[46:47], 0, v{aOUT}")
vL, vB, vK = 68, 69, 70
a(f"s_mul_i32 s48, s{sG}, 1280\ns_lshl_b32 s3, s{sC}, 7\ns_add_u32 s48, s48, s3\ns_lshl_b32 s49, s48, 1\ns_add_u32 s48, s48, s{sRJ}\ns_add_u32 s49, s49, s{sRJ}\ns_add_u32 s49, s49, {R_BASE}")
a(f"s_lshl_b32 s3, s{sG}, 7\ns_add_u32 s3, s3, s{sRJ}\ns_add_u32 s3, s3, {R_KEY}\ns_and_b32 s45, s{sC}, {OPT['kc']}\ns_lshl_b32 s45, s45, 3\ns_add_u32 s45, s45, s{sWV}\nv_mul_u32_u24 v{vK}, 384, v0")
a(f"v_and_b32 v{vB}, 48, v0\nv_lshlrev_b32 v{vL}, 1, v{vB}")
a("L_e2:")
a(f"buffer_load_dwordx4 {V(E2D,4)}, v{aL16}, {S(WS)}, s{sE2L} offen sc1\nbuffer_load_dwordx4 {V(E2D+4,4)}, v{aL16}, {S(WS)}, s{sE2L} offen offset:1024 sc1")
a(f"s_mov_b32 exec_hi, 0\nbuffer_load_dwordx4 {V(E2D+8,4)}, v{aL16}, {S(WS)}, s{sE2L} offen offset:2048 sc1\ns_mov_b32 exec_hi, -1\ns_sub_u32 s{sBUD}, s{sBUD}, 1")
a("s_waitcnt vmcnt(1)")
for e in (0, 2): a(f"v_pk_add_f32 {V(E2D+e,2)}, {V(E2D+e,2)}, {V(E2D+4+e,2)}")
a("s_waitcnt vmcnt(0)")
for e in (0, 2): a(f"v_pk_add_f32 {V(E2D+e,2)}, {V(E2D+e,2)}, {V(E2D+8+e,2)}")
a(f"v_cmp_u_f32 vcc, v{E2D}, v{E2D}\ns_cbranch_scc1 L_e2go\ns_cbranch_vccnz L_e2\nL_e2go:")
stamp(11); stamp(11, 4)
for i in (0, 2, 3, 1): a(f"v_mfma_f32_16x16x4_f32 {V(T0+4*i,4)}, v4, v{E2D+i}, 0")
a(f"v_mul_f32 v6, s0, v{T0}\nv_fma_f32 v7, v{T0+8}, s1, v5\nv_fma_f32 v7, -v6, v6, v7\nv_max_f32 v7, v7, v5\nv_rsq_f32 v{RS}, v7")
a(f"v_fma_f32 v7, v6, v{T0+12}, v{T0+4}\nv_mul_f32 v7, v7, v{RS}\nv_mul_f32 v{RS+1}, v6, v{RS}")
a(f"v_ashrrev_i32 v6, 31, v7\nv_or_b32 v6, 0x80000000, v6\nv_xor_b32 v7, v7, v6\nv_and_or_b32 v7, v7, s44, v{vRK}\nv_cndmask_b32 v7, 0, v7, s[46:47]")
LN, LNB, OB = 72, 88, 96
lnops = [f"v_pk_fma_f32 {V(LN+2*i,2)}, {V(H+2*i,2)}, {V(RS,2)}, {V(RS,2)} op_sel:[0,0,1] op_sel_hi:[1,0,1]" for i in range(8)]
for k in (8, 4, 2, 1)[:OPT["dpn"]]:
    a(lnops.pop(0)); a(lnops.pop(0))
    a(f"v_max_u32_dpp v6, v{7 if k == 8 else 6}, v{7 if k == 8 else 6} row_ror:{k} {DPPM}")
a(f"s_mov_b64 exec, {(1 << (16 >> OPT['dpn'])) - 1}\nds_max_u32 v1, v{6 if OPT['dpn'] else 7}\ns_mov_b64 exec, -1")
for o in lnops: a(o)
for i in range(4): a(f"v_cvt_pk_bf16_f32 v{LNB+i}, v{LN+2*i}, v{LN+2*i+1}")
a("s_waitcnt lgkmcnt(0)\ns_barrier\nds_read_b32 v1, v1")
for i in range(4, 8): a(f"v_cvt_pk_bf16_f32 v{LNB+i}, v{LN+2*i}, v{LN+2*i+1}")
for i in range(8): a(f"v_pk_add_f32 {V(LN+2*i,2)}, {V(LN+2*i,2)}, {V(H+2*i,2)}")
a(f"s_cmp_eq_u32 s45, 4\ns_waitcnt lgkmcnt(0)\nv_cmp_eq_u32 s[46:47], v1, v7\ns_cbranch_scc0 L_nk\ns_mov_b64 exec, 0xffff\nbuffer_store_dword v1, v{vK}, {S(WS)}, s3 offen sc1\nL_nk:")
a("s_and_b64 exec, s[46:47], -1\ns_cbranch_scc0 L_nc")
a(f"buffer_store_dwordx4 {V(LNB,4)}, v{vL}, {S(WS)}, s48 offen sc1\nbuffer_store_dwordx4 {V(LNB+4,4)}, v{vL}, {S(WS)}, s48 offen offset:16 sc1")
a("L_nc:\ns_mov_b64 exec, -1")
stamp(12); stamp(12, 4)
for i in range(8): a(f"v_cvt_pk_bf16_f32 v{OB+i}, v{LN+2*i}, v{LN+2*i+1}")
for hh in range(2):
    for d in range(2): a(f"v_permlane16_swap_b32 v{OB+4*hh+d}, v{OB+4*hh+2+d}")
osc = " " + OPT["osc"].replace("_", " ").replace("plain", "")
a("s_not_b64 exec, s[46:47]")
for hh in range(2): a(f"buffer_store_dwordx4 {V(OB+4*hh,4)}, v{aOUT}, {S(OUT)}, 0 offen offset:{64*hh}{osc}")
a("s_and_b64 exec, s[46:47], -1\ns_cbranch_scc0 L_fin")
for hh in range(2): a(f"buffer_store_dwordx4 {V(OB+4*hh,4)}, v{aOUT}, {S(OUT)}, 0 offen offset:{64*hh} sc1")
a("s_waitcnt vmcnt(0)")
for ct in range(4): a(f"buffer_store_dwordx4 {V(LN+4*ct,4)}, v{vB}, {S(WS)}, s49 offen offset:{64*ct} sc1")
a("L_fin:")
if OPT["dbg"] & 128:
    a(f"s_mov_b64 exec, -1\ns_lshl_b32 s3, s2, 3\ns_add_u32 s3, s3, s{sWV}\ns_lshl_b32 s3, s3, 13\ns_add_u32 s3, s3, {DUMP}")
    for i in range(8): a(f"buffer_store_dwordx4 {V(OB,4)}, v{aL16}, {S(WS)}, s3 offen\ns_add_u32 s3, s3, 1024")
finish()
pagebreak(None, False)
deferred("h")

pad("c0")
a("L_h0:")
if OPT["prio"]: a("s_setprio 2")
a(f"v_lshrrev_b32 v1, 3, v0\nv_and_b32 v2, 2, v1\nv_xor_b32 v2, v2, v0\nv_and_b32 v2, 7, v2\ns_lshl_b32 s3, s{sC}, 7\nv_lshl_add_u32 v2, v2, 4, s3")
a(f"v_mul_u32_u24 v3, 3840, v1\nv_add_u32 v{vW}, v3, v2\nv_xor_b32 v{vW+3}, 64, v{vW}\nv_add_u32 v{vW+3}, {8*3840}, v{vW+3}\nv_mov_b32 v{vEA}, 0")
for p in range(2):
    for s_ in (1, 2): a(f"v_add_u32 v{vW+3*p+s_}, {256*s_}, v{vW+3*p}")
def wpieces():
    P = []
    for pp in range(8):
        for s_ in range(3):
            t = f"buffer_load_dwordx4 v{vW+3*(pp&1)+s_}, {S(W)}, s{sXO} offen offset:{1024*s_} lds"
            if s_ == 2 and pp < 7: t += "\ns_addk_i32 m0, 3072"
            if s_ == 2 and pp & 1 and pp < 7: t += f"\ns_add_u32 s{sXO}, s{sXO}, 61440"
            P.append(t)
    return P
stamp(1, 5)
ldWR()
a("s_waitcnt vmcnt(4)")
stamp(2, 5)
a("s_barrier")
a(f"s_mov_b32 s{sI}, 1\ns_mov_b32 s{sRD}, {S0 + SLOT}\nL_wl:")
nextslab(); advslot(sSL); a(f"s_mul_i32 s{sXO}, s{sSB}, 245760\ns_add_u32 m0, s{sSL}, 12288")
for p in wpieces(): a(p)
a(f"s_mov_b32 s0, s{sRD}\ns_mov_b32 s{sRD}, s{sSL}\ns_cmp_eq_u32 s{sXT}, s{sI}\ns_waitcnt vmcnt(24) lgkmcnt(0)\ns_barrier\ns_cbranch_scc0 L_wc\ns_call_b64 s[100:101], L_xcap\nL_wc:")
a(f"s_add_u32 s{sI}, s{sI}, 1\ns_cmp_lt_u32 s{sI}, 9\ns_cbranch_scc1 L_wl")
a("s_branch L_h8")

ACC, XF, WF, ST, CS = 8, 80, 152, 180, 192
CLX = len(a.lines)
pagebreak(None, False)
a("L_cons:")
def clears(fl):
    a("v_mov_b32 v4, -1\nv_mov_b32 v5, -1\nv_mov_b32 v6, -1\nv_mov_b32 v7, -1")
    a(f"v_lshrrev_b32 v1, 3, v0\nv_mul_u32_u24 v1, 2560, v1\nv_and_b32 v2, 0x70, v{aL16}\ns_lshl_b32 s3, s{sC}, 7\ns_add_u32 s3, s3, s{sB0}\nv_add3_u32 v1, v1, v2, s3")
    a(f"s_mul_i32 s0, s{sT}, 20480\ns_add_u32 s1, s0, 81920\ns_add_u32 s3, s{sT}, 8\ns_cmp_lt_u32 s3, s{sNO}\ns_cselect_b32 s3, s1, {OOB:#x}\ns_add_u32 s3, s3, 81920")
    st = "buffer_store_dword v4" if OPT["cdw"] else "buffer_store_dwordx4 v[4:7]"
    if OPT["dbg"] & 8: a("v_bfrev_b32 v1, 1")
    for r in (0, 1, 3): a(f"{st}, v1, {S(OUT)}, s{r} offen{fl}")
    a(f"v_lshrrev_b32 v1, 4, v0\nv_mul_u32_u24 v1, {2560 - 256}, v1\nv_add_u32 v1, v1, v{aL16}")
    a(f"s_mul_i32 s1, s{sGID}, 15360\ns_lshl_b32 s3, s{sC}, 8\ns_add_u32 s1, s1, s3\ns_and_b32 s3, s{sT}, 1\ns_mul_i32 s3, s3, 7680\ns_add_u32 s1, s1, s3\ns_add_u32 s1, s1, {E2}")
    a(f"s_cmp_lt_u32 s{sT}, 2\ns_cselect_b32 s1, s1, {OOB:#x}\ns_mov_b32 exec_hi, 0xffff\n{st}, v1, {S(WS)}, s1 offen{fl}\ns_mov_b64 exec, -1")
    return 4
def pf0(p):
    if OPT["pf0"] & 1 and p == OPT["pfp"] % 10:
        a(f"s_cmp_eq_u32 s{sWV}, 0\ns_cbranch_scc0 L_pa\ns_mul_i32 s3, s2, {27*128}\nv_lshlrev_b32 v1, 7, v0\ns_mov_b64 exec, {(1 << 27) - 1:#x}\nbuffer_load_dword v255, v1, {S(WO)}, s3 offen\ns_mov_b64 exec, -1\nL_pa:")
    if OPT["pf0"] & 2 and p == OPT["pfp"] // 10:
        a(f"s_cmp_eq_u32 s{sWV}, 1\ns_cbranch_scc0 L_pb\ns_lshl_b32 s3, s{sC}, 2\ns_add_u32 s3, s3, s{sJ}\ns_sub_u32 s0, s3, 40\ns_cselect_b32 s3, s3, s0\ns_mul_i32 s3, s3, {16*3840}")
        a(f"s_mul_i32 s0, s{sG}, 1280\ns_add_u32 s3, s3, s0\ns_lshl_b32 s0, s{sC}, 7\ns_add_u32 s3, s3, s0\nv_mul_u32_u24 v1, 3840, v0\ns_mov_b64 exec, 0xffff\nbuffer_load_dword v255, v1, {S(W)}, s3 offen\ns_mov_b64 exec, -1\nL_pb:")
pf0(0)
if OPT["cpos"] == 2: ncl = clears(" sc1" if OPT["clr"] else "")
def w1():
    a(f"s_cmp_eq_u32 s{sSB}, 9\ns_cselect_b32 s3, {-10*245760}, 0\ns_add_u32 s3, s3, 245760\nv_add_u32 v254, s3, v254\ns_mul_i32 s3, s{sT}, 3072\ns_add_u32 m0, s3, {S0 + SLOT + 12288}\ns_mov_b32 s0, {32*3840}")
    for h in range(2):
        for k in range(3):
            a(f"buffer_load_dwordx4 v254, {S(W)}, {'s0' if h else 0} offen offset:{1280*k} lds")
            if (h, k) != (1, 2): a(f"s_addk_i32 m0, {-256 if k < 2 else 12288 + 512}")
suB(); suC()
if OPT["w1"] == 0: w1()
if OPT["wc"] == 2: wo_setup(249)
suD(0); suE(0)
a(f"s_lshl_b32 s3, s{sT}, 5\nv_xor_b32 v3, s3, v3\nv_mul_u32_u24 v4, 3072, v2\nv_add_u32 v3, v3, v4\nv_add_u32 v{vAW}, {S0 + 12288}, v3\ns_mov_b32 s{sI}, 0")
stamp(0, 5)
if OPT["cpos"] == 0: ncl = clears(" sc1" if OPT["clr"] else "")
stamp(1, 5)
a(f"v_mov_b32 v3, 0\nv_lshlrev_b32 v2, 2, v0\ns_mov_b32 exec_hi, 0")
a(f"ds_write_b32 v2, v3 offset:{MODE}\nds_write_b32 v2, v3 offset:{MODE + 8*PITCH}\ns_mov_b64 exec, -1")
a("v_and_b32 v1, 15, v0\nv_lshrrev_b32 v2, 4, v0")
a(f"v_lshrrev_b32 v3, 1, v1\nv_xor_b32 v3, v3, v2\nv_lshlrev_b32 v3, 4, v3\nv_lshl_add_u32 v3, v1, 7, v3\nv_add_u32 v{vAX0}, {S0}, v3\nv_xor_b32 v{vAX1}, 64, v{vAX0}")
a(f"v_mul_u32_u24 v3, {PITCH}, v1\nv_lshl_add_u32 v3, v2, 3, v3\ns_lshl_b32 s3, s{sT}, 5\ns_add_u32 s3, s3, {QB}\nv_add_u32 v{vSW}, s3, v3")
a(f"v_lshlrev_b32 v{vSTR}, 4, v1")
assert STATS == 0
if OPT["pg"]:
    for k in range(4): a(f"s_cmp_eq_u32 s{sWV}, {k}\ns_cbranch_scc0 L_cw{k}"); warm("c0", k, 4); a(f"L_cw{k}:")
pf0(1)
if OPT["w1"] == 1: w1()
if OPT["cpos"] == 1: ncl = clears(" sc1" if OPT["clr"] else "")
assert OPT["cpos"] == 1
a(f"s_cmp_lt_u32 s{sWV}, 2\ns_cselect_b32 s{sXT}, s{sXT}, 99")
a(f"s_mov_b32 s{sRD}, {S0}\ns_min_u32 s{sEV}, s{sXT}, {E1_}\ns_waitcnt vmcnt({ncl + 6}) lgkmcnt(0)")
def rdW(d, s_, ks):
    L(f"ds_read_b64_tr_b16 {V(d,2)}, v{vAW} offset:{12288*ks + 1024*s_}")
    return L(f"ds_read_b64_tr_b16 {V(d+2,2)}, v{vAW} offset:{12288*ks + 1024*s_ + 512}")
def rdX(d, t, ks): return L(f"ds_read_b128 {V(d+4*t,4)}, v{vAX0+ks} offset:{2048*t}")
def acc(s_, t): return ACC + 4 * (6 * s_ + t)
stamp(2); stamp(2, 5)
SEG = (1, 0, 2) if OPT['ord'] else (1, 2, 0)
PRE = OPT["pre"]
def rdlist(ph):
    o = []
    def w(s_):
        d = WV2 if (ph, s_) == (1, 1) else WF + 12 * ph + 4 * s_
        for e in range(2): o.append((("w", ph, s_), f"ds_read_b64_tr_b16 {V(WF+12*ph+4*s_+2*e,2)}, v{vAW} offset:{12288*ph + 1024*s_ + 512*e}"))
    w(SEG[0])
    for t in range(6): o.append((("x", ph, t), f"ds_read_b128 {V(XF+24*ph+4*t,4)}, v{vAX0+ph} offset:{2048*t}"))
    w(SEG[1]); w(SEG[2])
    return o
WV2 = WF + 24
def step(first):
    a("s_barrier")
    stampi(0)
    L.reset(); ids = {}
    M = [(s_, t) for s_ in SEG for t in range(6)]
    seq = ([] if first else [(1, "o") + m for m in M[PRE:]]) + [(0, "n") + m for m in M] + [(1, "n") + m for m in M[:PRE]]
    no = 0 if first else 18 - PRE
    pend = rdlist(0); p1 = rdlist(1)
    def rd(n=1):
        for _ in range(n):
            if pend: k, tx = pend.pop(0); ids[k] = L(tx)
    rd(12 if first else 2)
    fill = [f"s_add_u32 s3, s{sRD}, {SLOT}\ns_cmp_eq_u32 s3, {S0 + 4*SLOT}", f"s_cselect_b32 s3, {S0}, s3\ns_sub_u32 s{sDL}, s3, s{sRD}",
            f"s_mov_b32 s{sRD}, s3\nv_add_u32 v{vAX0}, s{sDL}, v{vAX0}", f"v_add_u32 v{vAW}, s{sDL}, v{vAW}\nv_add_u32 v{vAX1}, s{sDL}, v{vAX1}"]
    if not first: fill.append(f"s_cmp_eq_u32 s{sI}, s{sEV}\ns_cbranch_scc1 L_ev\nL_evb:")
    fill.append("STAMP"); fill.append(f"s_add_u32 s{sI}, s{sI}, 1\ns_cmp_lt_u32 s{sI}, 9"); fill.append(f"s_waitcnt vmcnt({ncl}) lgkmcnt(0)" if first else "s_waitcnt lgkmcnt(0)")
    for n, (ph, kd, s_, t) in enumerate(seq):
        if n == no: pend += p1
        if kd == "n":
            need = max(ids["x", ph, t], ids["w", ph, s_])
            if s_ == SEG[0] and t == 0 and L.n - ids.get(("x", ph, 5), L.n) >= 4: need = ids["x", ph, 5]
            L.wait(need)
        mfma(acc(s_, t), WF + 12 * ph + 4 * s_, XF + 24 * ph + 4 * t, "0" if first and ph == 0 else None)
        if pend: rd()
        elif n >= no and fill and (len(fill) > 1 or n >= len(seq) - 2):
            f = fill.pop(0)
            if f == "STAMP": stampi(1)
            else: a(f)
    for f in fill: stampi(1) if f == "STAMP" else a(f)
step(1)
CL0 = len(a.lines)
pagebreak("c0")
a("L_cloop:")
step(0)
a("s_cbranch_scc1 L_cloop")
L.reset(); ids = {}
def wreg(ks, s_): return WV2 if (ks, s_) == (1, 1) else WF + 12 * ks + 4 * s_
later = []
def lw(ks, s_):
    for e in range(2): later.append((("w", ks, s_), f"ds_read_b64_tr_b16 {V(wreg(ks,s_)+2*e,2)}, v{vAW} offset:{12288*ks + 1024*s_ + 512*e}"))
def lx(ks):
    for t in range(6): later.append((("x", ks, t), f"ds_read_b128 {V(XF+48*ks+4*t,4)}, v{vAX0+ks} offset:{2048*t}"))
lw(0, 1); lx(0); lw(1, 1); lx(1); lw(0, SEG[1]); lw(0, SEG[2])
def rd_later(n=1):
    for _ in range(n):
        if later: k, tx = later.pop(0); ids[k] = L(tx)
def old(s_, t): mfma(acc(s_, t), WF + 12 + 4 * s_, XF + 24 + 4 * t)
def new(s_, ks, t):
    L.wait(max(ids["w", ks, s_], ids["x", ks, t])); mfma(acc(s_, t), wreg(ks, s_), XF + 48 * ks + 4 * t)
def mlist(s_): return [(s_, "o", t) for t in range(6)] + [(s_, ks, t) for ks in range(2) for t in range(6)]
def mm(q):
    s_, k, t = q.pop(0)
    if k != "o" and ("w", k, s_) not in ids: rd_later(9)
    old(s_, t) if k == "o" else new(s_, k, t)
    if k == "o" and t == 5 and s_ != 1: lw(1, s_)
def fixup(s_, q, per):
    for r in range(4):
        a(f"v_mov_b32_dpp v{CS+r}, v{acc(s_,0)+r} row_newbcast:0 {DPPM}")
    wr = None
    for t in range(6):
        A = acc(s_, t); st = V(ST + 2 * t, 2)
        if per or not OPT["pk"]:
            ops = [f"v_fmac_f32 v{A+h}, v{CS+h}, v{ST+2*t}" for h in range(4)]
        else:
            ops = [f"v_pk_fma_f32 {V(A+h,2)}, {V(CS+h,2)}, {st}, {V(A+h,2)} op_sel_hi:[1,0,1]" for h in (0, 2)]
        ops += [f"v_cvt_pk_bf16_f32 v{A}, v{A}, v{A+1}", f"v_cvt_pk_bf16_f32 v{A+1}, v{A+2}, v{A+3}"]
        for i, o in enumerate(ops):
            if q and ((per >= 2 and i == 3) or (per >= 3 and i == 0)): mm(q)
            a(o)
        if q and per >= 1: mm(q)
        if (s_, t) in ((SEG[1], OPT["bk"]), (SEG[2], OPT["bv"])): L.wait(L.n - t); a("s_barrier")
        L(f"ds_write_b64 v{vSW}, {V(A,2)} offset:{TSTR*s_ + 16*PITCH*t}")
km, qm, vm = mlist(1), mlist(SEG[1]), mlist(SEG[2])
a(f"v_mov_b32 v1, {MODE}")
sr = ["ds_read_b32 v1, v1"] + [f"ds_read2_b64 {V(ST+2*t,4)}, v{vSTR} offset0:{32*t} offset1:{32*t + 32}" for t in range(0, 6, 2)]
for i in range(PRE):
    s_, _, t = (km if i < 6 else qm if i < 12 else vm).pop(0)
    if t == 5 and s_ != 1: lw(1, s_)
for o in sr: a(o)
a(f"s_waitcnt lgkmcnt(0)\nv_readfirstlane_b32 s{sMODE}, v1\ns_barrier")
stamp(3); stamp(9, 2); stamp(0, 3)
if not OPT["clr"]: a(f"s_cmp_eq_u32 s{sMODE}, 1\ns_cbranch_scc0 L_gs\nL_gsb:")
rd_later(2)
n = 0
for q in (km, qm, vm):
    while q[0][1] == "o" and (n < 6 or q is km): mm(q); rd_later(); n += 1
rd_later(2)
while km: mm(km); rd_later()
mm(qm); rd_later(9)
assert not later
fixup(1, qm, -(-len(qm) // 6))
while qm: mm(qm)
mm(vm)
fixup(SEG[1], vm, -(-len(vm) // 6) if not OPT["ord"] else OPT["vq"])
if not OPT["ord"]:
    while vm: mm(vm)
    fixup(0, [], 0)
else:
    for _ in range(2):
        if vm: mm(vm)
    a(f"s_setprio {OPT['vprio']}")
stamp(1, 3)
a("s_waitcnt lgkmcnt(0)\ns_barrier")
stamp(4); stamp(2, 3)
if OPT["ord"]:
    L.done = L.n
    a(f"v_mov_b32 v1, {VCN}\nv_mov_b32 v2, 1")
    while vm: mm(vm)
    fixup(2, [], 0)
    a("s_mov_b64 exec, 1\nds_add_u32 v1, v2\ns_mov_b64 exec, -1\ns_setprio 0")
    stamp(4, 3)
if STAGE == "A":
    a("L_dumpA:")
    a(f"s_lshl_b32 s3, s{sWV}, 10\nv_add_u32 v1, s3, v{aL16}\ns_mul_i32 s3, s2, 49152\ns_add_u32 s3, s3, {DUMP}")
    for i in range(6):
        a(f"ds_read_b128 v[16:19], v1 offset:{8192*i}\ns_waitcnt lgkmcnt(0)\nbuffer_store_dwordx4 v[16:19], v1, {S(WS)}, s3 offen\ns_waitcnt vmcnt(0)\ns_add_u32 s3, s3, 8192")
    finish()
a(f"s_cmp_lt_u32 s{sWV}, 2\ns_cbranch_scc0 L_c23")
attention("e")
if STAGE == "B": a("s_waitcnt vmcnt(0)"); finish()

ldWR(); hinit()
a(f"s_lshl_b32 s0, s{sWV}, 13\ns_add_u32 s0, s0, {EX}\nv_add_u32 v4, s0, v{aL16}\ns_lshl_b32 s0, s{sWV}, 2\ns_add_u32 s0, s0, {XFL}\ns_waitcnt vmcnt(0)")
wrprep(XR)
a("v_mov_b32 v2, s0\nL_fx:")
if OPT["fsl"]: a(f"s_sleep {OPT['fsl']}")
a("ds_read_b32 v1, v2\ns_waitcnt lgkmcnt(0)\nv_cmp_ne_u32 vcc, 2, v1\ns_cbranch_vccnz L_fx")
stamp(9); stamp(9, 4)
if OPT["lprio"]: a(f"s_setprio {OPT['lprio']}")
for q in range(8): a(f"ds_read_b128 {V(OF+4*q,4)}, v4 offset:{1024*q}")
for q in range(8):
    a(f"s_waitcnt lgkmcnt({7-q})")
    for e in range(4): a(f"v_add_f32 v{H+4*(q&3)+e}, v{H+4*(q&3)+e}, v{OF+4*q+e}")
stamp(10, 4)
a("s_branch L_tail")
deferred()
CL1 = len(a.lines)
pad("h")
a("L_c23:")
attention("l")
if STAGE == "B": a("s_waitcnt vmcnt(0)")
finish()
deferred("h")
CL2 = len(a.lines)
pad("h")
a(f"L_ev:\ns_cmp_eq_u32 s{sI}, {EV1}\ns_cbranch_scc0 L_ev1\ns_waitcnt vmcnt(0)\nL_ev1:\ns_max_u32 s{sEV}, s{sXT}, {EV1}")
a(f"s_cmp_eq_u32 s{sI}, s{sXT}\ns_cbranch_scc0 L_evb\ns_sub_u32 s0, s{sRD}, s{sDL}"); capt("s0"); a("s_branch L_evb")
if not OPT["clr"]:
    a("L_gs:")
    clears(" sc1")
    a("s_waitcnt vmcnt(0)\ns_barrier\ns_barrier\ns_branch L_gsb")

if OPT["pg"]:
    mv_ = a.lines[CL2:]; mw_ = a.lines[CL1:CL2]; del a.lines[CL1:]; a.lines[CL0+1:CL0+1] = mv_; a.lines[CLX:CLX] = mw_

GATE, UP, DOWN, SM = 4, 8, 12, 28
sMm = 36
GSL = 42240; NGS = 3; MISC = NGS * GSL
SSZ = 8448
ACTB, MZ, WINB, LNL = MISC, MISC + 192, MISC + 256, MISC + 512
GF, DF, GA, XS, IDX = 8, 168, 228, 236, 7
a("L_moe:")
a(f"s_cmp_ge_u32 s{sU}, 32\ns_cbranch_scc1 L_end")
a(f"s_lshr_b32 s{sWV}, s{sWV}, 6\nv_and_b32 v0, 63, v0\ns_lshl_b32 s{sMm}, s{sJ}, 1\ns_add_u32 s{sMm}, s{sMm}, s{sU}\ns_sub_u32 s{sMm}, s{sMm}, 30\ns_mov_b32 s{sBUD}, {BUDGET}")
a("v_lshlrev_b32 v6, 4, v0\nv_mov_b32 v132, 0\nv_mov_b32 v133, 0\nv_mov_b32 v144, 0\ns_waitcnt lgkmcnt(0)")
mksrd(WS, "ws", 1 << 28); mksrd(DBG, "dbg", 256); mksrd(GATE, "gate", 640 * 3072); mksrd(UP, "up", 640 * 3072); mksrd(DOWN, "down", 1536 * 1280); mksrd(OUT, "out", 2048 * 1280)
stamp(0)
a("v_mov_b32 v8, -1\nv_mov_b32 v9, -1\nv_mov_b32 v10, -1\nv_mov_b32 v11, -1")
a(f"s_lshl_b32 s0, s{sMm}, 14\ns_lshl_b32 s3, s{sWV}, 11\ns_add_u32 s0, s0, s3\ns_add_u32 s0, s0, {RJ}")
for i in range(2): a(f"buffer_store_dwordx4 v[8:11], v6, {S(WS)}, s0 offen offset:{1024*i} sc1")
def rootup(n):
    a(f"s_waitcnt vmcnt({n})\ns_barrier\ns_cmp_eq_u32 s{sWV}, 0\ns_cbranch_scc0 L_nroot")
    a(f"s_lshl_b32 s0, s{sMm}, 4\nv_mov_b32 v8, 1\ns_mov_b64 exec, 1\nbuffer_store_dword v8, off, {S(DBG)}, s0 sc1\ns_mov_b64 exec, -1\nL_nroot:")
if STAGE != "F": rootup(0); finish()
vGX, vGS, vRX, vRS = 4, XS + 13, XS + 14, XS + 15
sB5, sKO = 44, 45
a(f"s_and_b32 s{sB5}, s{sMm}, 1\ns_mul_i32 s0, s{sJ}, 384\ns_lshl_b32 s1, s{sB5}, 8\ns_add_u32 s1, s1, s0\ns_mul_i32 s3, s{sWV}, {8*3072}\ns_add_u32 s1, s1, s3")
a(f"v_lshrrev_b32 v1, 3, v0\nv_mul_u32_u24 v1, 3072, v1\ns_lshr_b32 s3, s{sWV}, 1\nv_xor_b32 v2, s3, v0\nv_and_b32 v2, 7, v2\nv_lshl_add_u32 v1, v2, 4, v1\nv_add_u32 v{vGX}, s1, v1\nv_xor_b32 v{vGX+1}, 64, v{vGX}")
a(f"s_lshl_b32 s1, s{sB5}, 6\ns_add_u32 s0, s0, s1\ns_and_b32 s3, s{sWV}, 3\ns_mul_i32 s1, s3, {16*3072}\ns_add_u32 s0, s0, s1\ns_add_u32 s0, s0, 128")
a(f"v_lshrrev_b32 v1, 2, v0\nv_mul_u32_u24 v1, 3072, v1\nv_xor_b32 v2, s3, v0\nv_and_b32 v2, 3, v2\nv_lshl_add_u32 v1, v2, 4, v1\nv_add_u32 v{vGS}, s0, v1")
a(f"s_cmp_lt_u32 s{sWV}, 4\ns_cselect_b64 s[{SM}:{SM+1}], s[{GATE}:{GATE+1}], s[{UP}:{UP+1}]\ns_cselect_b32 s62, 0, 128\ns_mov_b32 s{SM+2}, {640*3072:#x}\ns_mov_b32 s{SM+3}, 0x20000")
a(f"s_lshl_b32 s61, s{sWV}, 10\ns_add_u32 s62, s62, s61\ns_mul_i32 s{sB5}, s{sB5}, {5*64*3072}\ns_mul_i32 s46, s{sMm}, {96*1280}")
def koff(i): a(f"s_add_u32 s{sKO}, s{sB5}, {i*64*3072}" if i < 5 else f"s_sub_u32 s{sKO}, {i*64*3072}, s{sB5}")
def dissue(hh, i, sl):
    a(f"s_lshl_b32 s3, s{sWV}, 6\ns_addk_i32 s3, {512*i}\nv_add_u32 v1, s3, v0\nv_mul_u32_u24 v2, 52429, v1\nv_lshrrev_b32 v2, 22, v2")
    a(f"v_and_b32 v3, 3, v2\nv_lshlrev_b32 v3, 1, v3\nv_and_or_b32 v3, v2, 8, v3\nv_xor_b32 v1, v1, v3\nv_lshlrev_b32 v1, 4, v1")
    a(f"s_add_u32 m0, s61, {sl + 8192*i}\ns_add_u32 s3, s46, {40960*hh}\nbuffer_load_dwordx4 v1, {S(DOWN)}, s3 offen lds")
UN = [[("x", i), ("s", i)] for i in range(5)] + [[("x", 5), ("x", 6)], [("x", 7), ("x", 8)], [("x", 9)]]
SU, DU = [[("s", i) for i in range(5, 10)]], [[("d", h)] for h in range(3)]
UN = {0: UN + DU + SU, 1: UN + SU + DU, 2: UN[:6] + SU + UN[6:] + DU}[OPT["uord"]]
def place(u):
    o = (u % NGS) * GSL; r = []
    for kd, i in UN[u]: r.append((kd, i, o)); o += {"x": 16384, "s": SSZ, "d": 40960}[kd]
    return r
def uissue(u):
    n = 0
    for kd, i, o in place(u):
        if kd == "d":
            for k in range(5): dissue(i, k, o)
            n += 5; continue
        koff(i)
        if kd == "x":
            for m_, srd_ in ((0, GATE), (1, UP)): a(f"s_add_u32 m0, s61, {o + 8192*m_}\nbuffer_load_dwordx4 v{vGX+m_}, {S(srd_)}, s{sKO} offen lds")
            n += 2
        else: a(f"s_add_u32 m0, s62, {o}\nbuffer_load_dwordx4 v{vGS}, {S(SM)}, s{sKO} offen lds"); n += 1
    return n
a(f"s_cmp_lt_u32 s{sWV}, {OPT['rw']}\ns_cbranch_scc1 L_r0")
n0 = uissue(0)
a(f"s_waitcnt vmcnt({n0})\ns_barrier\ns_branch L_r1\nL_r0:")
rootup(0)
uissue(0)
a("L_r1:")
nI = {1: uissue(1)}
a("v_lshrrev_b32 v1, 5, v0\nv_bfe_u32 v2, v0, 2, 1\nv_lshl_add_u32 v1, v1, 2, v2\nv_bfe_u32 v2, v0, 4, 1\nv_bfe_u32 v3, v0, 3, 1\nv_lshl_add_u32 v3, v3, 1, v2\nv_lshl_add_u32 v1, v3, 4, v1")
a(f"v_xor_b32 v3, s{sWV}, v3\nv_and_b32 v2, 1, v0\nv_lshlrev_b32 v2, 3, v2\nv_lshl_add_u32 v2, v3, 4, v2\nv_bfe_u32 v3, v0, 1, 1")
a(f"v_lshl_add_u32 v{vRS}, v1, 6, v2\nv_mul_u32_u24 v8, 4224, v3\nv_add_u32 v{vRS}, v{vRS}, v8")
a(f"v_lshl_add_u32 v{vRX}, v1, 7, v2\nv_mul_u32_u24 v8, {8192 + 64}, v3\nv_xor_b32 v{vRX}, v{vRX}, v8")
vXS, vACT, vA1, vA2, vE4 = 252, 253, 254, 255, 5
for i in range(8): a(f"v_mov_b32 v{GA+i}, 0")
a(f"v_mov_b32 v1, 0x4444\nv_mov_b32 v2, 0xeeee\ns_mov_b32 vcc_lo, 0xaaaaaaaa\ns_mov_b32 vcc_hi, 0xaaaaaaaa\nv_cndmask_b32 v{IDX}, v1, v2, vcc")
a(f"v_and_b32 v1, 48, v0\nv_and_b32 v2, 1, v0\nv_lshlrev_b32 v2, 4, v2\nv_lshl_add_u32 v{vXS}, v1, 1, v2\nv_add_u32 v{vA1}, {ACTB}, v{vXS}\nv_add_u32 v{vXS}, {LNL}, v{vXS}")
a(f"v_add_u32 v1, {ACTB + 128}, v1\nv_mov_b32 v2, {MZ}\nv_cndmask_b32 v{vA2}, v1, v2, vcc\nv_mov_b32 v3, 0\nv_lshl_add_u32 v2, v0, 2, v2\ns_mov_b32 exec_hi, 0\nds_write_b32 v2, v3\ns_mov_b64 exec, -1")
a(f"s_and_b32 s3, s{sMm}, 1\ns_cselect_b32 s0, 4, 0\ns_cselect_b32 s1, -4, 8\ns_add_u32 s0, s0, s{sWV}\nv_bfe_u32 v1, v0, 4, 1\nv_mul_i32_i24 v1, s1, v1\nv_add_u32 v1, s0, v1")
a("v_lshrrev_b32 v2, 1, v1\nv_lshlrev_b32 v2, 2, v2\nv_and_or_b32 v2, v1, 1, v2\nv_and_or_b32 v2, v0, 2, v2\nv_bfe_u32 v3, v0, 2, 1\nv_lshl_add_u32 v2, v2, 1, v3")
a(f"v_and_b32 v3, 1, v0\nv_lshl_add_u32 v2, v2, 1, v3\nv_and_b32 v3, 7, v0\nv_lshl_add_u32 v3, v1, 3, v3\nv_cmp_gt_u32 vcc, 8, v1\nv_cndmask_b32 v2, v3, v2, vcc\nv_lshlrev_b32 v2, 1, v2\nv_add_u32 v{vACT}, {ACTB}, v2")
a(f"s_lshl_b32 s47, s{sWV}, 15\ns_lshl_b32 s3, s{sMm}, 6\ns_add_u32 s47, s47, s3\ns_add_u32 s47, s47, {RJ + R_E4}")
a(f"v_lshrrev_b32 v1, 2, v0\nv_and_b32 v2, 3, v0\nv_lshlrev_b32 v2, 4, v2\nv_lshl_add_u32 v2, v1, 10, v2\nv_lshlrev_b32 v1, 4, v1\nv_add_u32 v1, {4096 - 64}, v1\ns_mov_b64 vcc, 0xffff\nv_cndmask_b32 v{XS+10}, v1, v2, vcc")
a(f"s_cmp_lt_u32 s{sWV}, 4\ns_cselect_b32 s50, 0x00ff0000, 0\ns_or_b32 s50, s50, 0xff\ns_mov_b32 s51, 0")
sFT, sFE, sWIN, sXS = 52, 53, 54, 55
a(f"s_sub_u32 s3, s{sWV}, 4\ns_lshl_b32 s3, s3, 4\ns_add_u32 s{sFT}, s3, s{sMm}\ns_mul_i32 s3, s{sFT}, 52\ns_lshr_b32 s3, s3, 8\ns_mul_i32 s3, s3, {RJS - 5120}\ns_lshl_b32 s{sFE}, s{sFT}, 10\ns_add_u32 s{sFE}, s{sFE}, s3\ns_add_u32 s{sFE}, s{sFE}, {RJ + R_E4}")
vFC, vFB, vSG, FD = 128, 129, 130, 40
a(f"s_mov_b32 s49, {BUDGET >> 2}\ns_mov_b32 s63, 0")
a(f"s_mul_i32 s3, s{sFT}, 52\ns_lshr_b32 s3, s3, 8\ns_mul_i32 s0, s3, 5\ns_sub_u32 s0, s{sFT}, s0\ns_mul_i32 s3, s3, 80\ns_lshl_b32 s1, s0, 2\ns_cmp_eq_u32 s0, 4\ns_cselect_b32 s1, 64, s1\ns_cselect_b32 s0, 0, 4\ns_cselect_b32 s48, 2, 0\ns_add_u32 s3, s3, s1")
a(f"v_bfe_u32 v1, v0, 4, 1\nv_lshrrev_b32 v2, 5, v0\nv_lshl_add_u32 v1, v1, 1, v2\nv_lshlrev_b32 v1, s0, v1\nv_and_b32 v2, 3, v0\nv_lshlrev_b32 v2, s48, v2\nv_add3_u32 v1, v1, v2, s3\nv_lshlrev_b32 v{vFC}, 1, v1\nv_lshlrev_b32 v{vFB}, 2, v1")
a("v_lshrrev_b32 v1, 4, v0\nv_bfe_u32 v2, v0, 2, 2\nv_lshl_add_u32 v1, v1, 3, v2\nv_mul_u32_u24 v1, 1280, v1\nv_and_b32 v3, 1, v0\nv_lshl_add_u32 v1, v3, 3, v1")
a(f"v_bfe_u32 v2, v0, 2, 3\nv_lshlrev_b32 v2, 1, v2\nv_bfe_u32 v3, v0, 1, 1\ns_mul_i32 s0, s{sWV}, 10")
for i in range(5): a(f"s_add_u32 s3, s0, {2*i}\nv_add_u32 v{XS+i}, s3, v3\nv_xor_b32 v{XS+i}, v{XS+i}, v2\nv_lshl_add_u32 v{XS+i}, v{XS+i}, 4, v1")
for u in range(len(UN)):
    a(f"s_waitcnt vmcnt({nI.get(u + 1, 0) + (u == 6)}) lgkmcnt(0)\ns_barrier")
    if u + 2 < len(UN): nI[u + 2] = uissue(u + 2)
    sk = False
    for kd, i, o in place(u):
        if kd == "d":
            for k in range(5):
                a(f"v_add_u32 v1, {o}, v{XS+k}")
                for e in range(2): a(f"ds_read_b64_tr_b16 {V(DF+12*k+4*i+2*e,2)}, v1 offset:{1280*4*e}")
            continue
        if kd == "s" and not sk: a(f"s_cmp_lt_u32 s{sWV}, 4\ns_cbranch_scc0 L_g{u}"); sk = True
        a(f"v_add_u32 v1, {o}, v{vRX if kd == 'x' else vRS}")
        p = 128 if kd == "x" else 64
        for hh in range(2):
            for e in range(2): a(f"ds_read_b64_tr_b16 {V(GF+80*(kd == 's')+8*i+4*hh+2*e,2)}, v1 offset:{p*(8*hh + 2*e)}")
    if sk: a(f"L_g{u}:")
    if u == 5: a(f"v_and_b32 v{XS+12}, 0xf0, v6\nbuffer_load_dword v{XS+11}, v{XS+12}, {S(DBG)}, 0 offen sc1")
    if u == 7: stamp(1)
stamp(2)
pagebreak()
warm("m", 0, 1)
a(f"v_mov_b32 v{vE4}, v{XS+10}\nv_mov_b32 v4, {WINB}\ns_mov_b32 s61, 0\ns_cmp_lt_u32 s{sWV}, 7\ns_cbranch_scc1 L_np")
a(f"L_rt:\nv_cmp_ne_u32 vcc, 1, v{XS+11}\ns_cbranch_vccz L_rtg\nbuffer_load_dword v{XS+11}, v{XS+12}, {S(DBG)}, 0 offen sc1\ns_waitcnt vmcnt(0)\ns_sub_u32 s{sBUD}, s{sBUD}, 1\ns_cbranch_scc0 L_rt\ns_mov_b32 s{sBUD}, 0\nL_rtg:")
vKA, vKB, sKO_, sAG, sSP = 144, 146, 64, 60, 61
NFL = MZ + 16
a(f"v_bfe_u32 v1, v0, 2, 3\nv_lshlrev_b32 v1, 15, v1\nv_and_b32 v2, 3, v0\nv_min_u32 v2, 2, v2\nv_mul_u32_u24 v3, 1280, v2\ns_mov_b32 s0, {RJ}\nv_add3_u32 v{vKB+1}, v3, v1, s0\nv_lshl_add_u32 v{vKA}, v2, 7, v1\ns_mul_i32 s0, s{sMm}, 384\ns_add_u32 s{sKO_}, s0, {RJ + R_KEY}")
stamp(3)
vRW = 132
a(f"s_and_b32 s3, s{sMm}, 1\ns_mul_i32 s3, s3, 640\nv_add_u32 v{vRW}, s3, v6\nv_subrev_u32 v2, 1280, v{vRW}\nv_min_u32 v{vRW}, v{vRW}, v2\ns_sub_u32 s3, 1024, s3\nv_add_u32 v{vRW+1}, s3, v6")
row = f"s_mov_b32 m0, {LNL}\ns_mov_b64 exec, -1\nbuffer_load_dwordx4 v{vRW}, {S(WS)}, s{sXS} offen sc1 lds\ns_mov_b32 m0, {LNL + 1024}\ns_mov_b64 exec, 0xffff\nbuffer_load_dwordx4 v{vRW+1}, {S(WS)}, s{sXS} offen sc1 lds"
KP, KV = OPT["kp"], 140
KM = 0x77777777
a(f"s_mov_b32 s{sWIN}, 0\ns_mov_b32 s{sXS}, {OOB:#x}\ns_mov_b32 s{sAG}, {1 << 30}\ns_setprio 3")
def look(k):
    a(row); execset(KM)
    a(f"buffer_atomic_umin v{KV+k}, v{vKA}, {S(WS)}, s{sKO_} offen sc0 sc1")
for k in range(KP): a(f"v_mov_b32 v{KV+k}, -1")
for k in range(KP - 1):
    look(k)
    if OPT["ks"]: a(f"s_sleep {OPT['ks']}")
for k in range(KP):
    a(f"L_pl{k}:")
    look((k + KP - 1) % KP)
    if OPT["sp"]: a(f"s_mov_b32 s62, {k}\ns_cmp_eq_u32 s{sSP}, 2\ns_cbranch_scc1 L_ab\nL_pi{k}:")
    a(f"s_waitcnt vmcnt({3 * (KP - 1)})\nv_cmp_lt_u32 vcc, s{sWIN}, v{KV+k}\ns_sub_u32 s{sAG}, s{sAG}, 1\ns_cbranch_vccz L_pw")
    a(f"s_cselect_b32 s0, s{sSP}, 1\ns_max_i32 s{sAG}, s{sAG}, 0")
    a(f"v_cmp_eq_u32 s[58:59], -1, v{KV+k}\nv_mov_b32 v{vKB}, v{KV+k}\ns_andn2_b64 vcc, vcc, s[58:59]\ns_cbranch_scc0 L_pq{k}")
    if OPT["stamps"] == 1: l = a.label("fu"); a(f"s_cmp_eq_u32 s63, 0\ns_cbranch_scc0 {l}"); stamp(12); a(f"{l}:\ns_add_u32 s63, s63, 1")
    stamp(11)
    a(f"s_mov_b64 exec, -1\nv_cndmask_b32 v{vKB}, 0, v{vKB}, vcc\ns_lshl_b32 s{sSP}, s{sSP}, 1")
    a(f"v_max_u32_dpp v{XS}, v{vKB}, v{vKB} row_ror:8 {DPPM}")
    for r in (4, 2, 1): a(f"v_max_u32_dpp v{XS}, v{XS}, v{XS} row_ror:{r} {DPPM}")
    a(f"v_mov_b32 v{XS+1}, v{XS}\ns_mov_b32 s{sAG}, {KP - 1}\nv_permlane16_swap_b32 v{XS}, v{XS+1}\nv_max_u32 v{XS}, v{XS}, v{XS+1}\ns_mov_b32 exec_hi, 0\nv_cmpx_eq_u32 vcc, v{XS}, v{vKB}")
    a(f"ds_write_b64 v4, {V(vKB,2)}\nv_readfirstlane_b32 s{sXS}, v{vKB+1}\nv_readfirstlane_b32 s{sWIN}, v{vKB}\ns_branch L_pl{(k + 1) % KP}\nL_pq{k}:")
    if OPT["sp"]: a(f"s_cmp_eq_u32 s0, 0\ns_cselect_b32 s{sSP}, 1, s{sSP}\ns_cbranch_scc1 L_pg")
    if OPT["ks"]: a(f"s_sleep {OPT['ks']}")
a(f"s_sub_u32 s{sBUD}, s{sBUD}, 1\ns_cbranch_scc0 L_pl0\ns_mov_b32 s{sBUD}, 0\ns_waitcnt vmcnt(0)\ns_cmp_eq_u32 s0, s0")
a("L_pw:")
stamp(4)
a("s_cbranch_scc0 L_pv")
if OPT["sp"]: a(f"s_cmp_eq_u32 s{sSP}, 1\ns_mov_b32 s{sSP}, 0\ns_mov_b64 exec, -1\ns_cbranch_scc1 L_bb")
a("s_branch L_pg\nL_pv:")
for v in range(KP - 1):
    a(f"s_cmp_eq_u32 s{sAG}, {v}\ns_waitcnt vmcnt({1 + 3 * (KP - 2 - v)})\n" + ("s_cbranch_scc1 L_pg" if v < KP - 2 else "s_branch L_pg"))
if OPT["sp"]: a(f"L_ab:\ns_mov_b64 exec, -1\nv_mov_b32 v2, {NFL}\nds_write_b32 v2, v2\ns_branch L_bb")
a(f"L_xf:\n{row}\ns_waitcnt vmcnt(0)\nL_pg:\ns_mov_b64 exec, -1")
def back(l, d):
    if not OPT["sp"]: return "s_branch L_xf"
    return "\n".join(f"s_cmp_eq_u32 s62, {k}\ns_cbranch_scc1 {l}{(k + d) % KP}" for k in range(KP - 1)) + f"\ns_branch {l}{(KP - 1 + d) % KP}"
def wback(p):
    if OPT["wb"] & p: a(f"s_and_b32 s3, s{sMm}, 1\ns_add_u32 s3, s3, s{sWV}\ns_cmp_eq_u32 s3, 8\ns_cbranch_scc0 L_wb{p}\nbuffer_wbl2 sc1\nL_wb{p}:")
a("L_np:\ns_waitcnt lgkmcnt(0)\ns_barrier")
stamp(5)
def smf(d, A, B): a(f"v_smfmac_f32_16x16x64_bf16 {V(d,4)}, {V(A,4)}, {V(B,8)}, v{IDX}")
a(f"s_cmp_lt_u32 s{sWV}, 4\ns_cbranch_scc1 L_xh")
XL = 88
wback(1)
a(f"ds_read_b64 v[2:3], v4")
for s in range(10): a(f"ds_read_b128 {V(XL+4*s,4)}, v{vXS} offset:{128*s}")
def slook(k):
    if OPT["sp"]: a(f"s_cmp_eq_u32 s{sSP}, 0\ns_cbranch_scc1 L_sl{k}"); look(k); a(f"s_mov_b64 exec, -1\nL_sl{k}:")
slook(0)
a(f"s_waitcnt lgkmcnt(10)\nv_readfirstlane_b32 s56, v2\nv_readfirstlane_b32 s57, v3")
fo = [f"s_and_b32 s0, s57, 0x7fff\ns_add_u32 s57, s57, s0\ns_add_u32 s57, s57, {R_BASE}\ns_and_b32 s1, s56, 0xfffff800",
      f"s_ashr_i32 s3, s1, 31\ns_not_b32 s3, s3\ns_or_b32 s3, s3, 0x80000000\ns_xor_b32 s1, s1, s3", f"s_andn2_b32 s56, 2047, s56\ns_mul_i32 s56, s56, 1280\nv_mov_b32 v{vSG}, s1",
      f"v_mul_f32 v{vSG}, 0xbfb8aa3b, v{vSG}", f"v_exp_f32 v{vSG}, v{vSG}", f"v_add_f32 v{vSG}, 1.0, v{vSG}", f"v_rcp_f32 v{vSG}, v{vSG}"]
for s in range(10):
    a(f"s_waitcnt lgkmcnt({9-s})"); smf(GA, XL + 4 * s, GF + 8 * s)
    if fo: a(fo.pop(0))
assert KP == 3
slook(1)
a("s_branch L_xj"); pad("m"); a("L_xh:")
for s in range(4): a(f"ds_read_b128 {V(XS+4*s,4)}, v{vXS} offset:{128*s}")
for s in range(10):
    a(f"s_waitcnt lgkmcnt({min(3, 9-s)})")
    smf(GA, XS + 4 * (s % 4), GF + 8 * s); smf(GA + 4, XS + 4 * (s % 4), GF + 80 + 8 * s)
    if s + 4 < 10: a(f"ds_read_b128 {V(XS+4*(s%4),4)}, v{vXS} offset:{128*(s+4)}")
a("L_xj:\ns_mov_b64 vcc, 0xffff")
a(f"v_add_f32 v1, v{GA}, v{GA+1}\nv_add_f32 v2, v{GA+4}, v{GA+5}\nv_cndmask_b32 v1, v2, v1, vcc")
a("v_cmp_u_f32 vcc, v1, v1\ns_cbranch_vccnz L_xn\nL_xnb:")
DEFER.append(f"L_xn:\nv_mov_b32 v2, {NFL}\nds_write_b32 v2, v2\ns_branch L_xnb")
DEFER.append(f"L_xsr:\ns_sub_u32 s49, s49, 1\ns_cbranch_scc1 L_xsgo\n" + "\n".join(f"v_mov_b32 v{GA+i}, 0" for i in range(8))
             + f"\ns_waitcnt lgkmcnt(0)\ns_barrier\ns_cmp_eq_u32 s{sWV}, 7\ns_cbranch_scc0 L_np\nds_write_b32 v2, v{GA}\ns_cmp_eq_u32 s{sSP}, 2\ns_cbranch_scc0 L_xf\ns_mov_b32 s{sSP}, 0\ns_mov_b64 exec, {KM:#x}\n" + back("L_pi", 0))
stamp(6)
a(f"v_mul_f32 v2, 0xbfb8aa3b, v1\nv_exp_f32 v2, v2\nv_mul_f32_dpp v3, v1, v1 row_ror:8 {DPPM}\nv_add_f32 v2, 1.0, v2\nv_rcp_f32 v2, v2")
a(f"v_mul_f32 v1, v2, v3\nv_cvt_pk_bf16_f32 v1, v1, v1\ns_mov_b64 exec, s[50:51]\nds_write_b16 v{vACT}, v1\ns_mov_b64 exec, -1")
if OPT["sp"]: a(f"s_cmp_eq_u32 s{sSP}, 0\ns_cbranch_scc0 L_pl0")
a(f"L_bb:\nv_mov_b32 v2, {NFL}\ns_waitcnt lgkmcnt(0)\ns_barrier")
DD = 8
a(f"ds_read_b32 v1, v2\nds_read_b128 {V(XS,4)}, v{vA2}\nds_read_b128 {V(XS+4,4)}, v{vA1}\ns_waitcnt lgkmcnt(2)\nv_cmp_ne_u32 vcc, 0, v1\ns_cbranch_vccnz L_xsr\nL_xsgo:")
a("s_waitcnt lgkmcnt(1)")
for i in (4, 0, 1, 2, 3): mfma(DD + 4 * i, XS, DF + 12 * i + 8, "0")
a("s_waitcnt lgkmcnt(0)")
for i in (4, 0, 1, 2, 3): smf(DD + 4 * i, XS + 4, DF + 12 * i)
PS = 32
a(f"v_add_f32 v1, v{DD+16}, v{DD+17}")
for i in range(4):
    a(f"v_add_f32 v{PS+i}, v{DD+4*i}, v{DD+4*i+1}")
for i in range(4): a(f"v_mov_b32_dpp v{PS+i}, v1 quad_perm:[{i},{i},{i},{i}] row_mask:0x2 bank_mask:0xf")
a(f"s_mov_b64 exec, 0x1111ffff\nbuffer_store_dwordx4 {V(PS,4)}, v{vE4}, {S(WS)}, s47 offen sc1\ns_mov_b64 exec, -1")
stamp(7)
if OPT["stamps"] == 1: a(f"s_sub_u32 s3, {(BUDGET >> 2) + 1}, s49\ns_add_u32 s88, s98, s3\ns_add_u32 s90, s98, s63")
wback(2)
a(f"s_cmp_lt_u32 s{sFT}, 40\ns_cbranch_scc0 L_mfin")
FP = OPT["fp"]
FA = OPT["fa"]; NF = 3 if FA else 2
def fld(k):
    d = FD + 8 * k
    a(f"buffer_load_dword v{d+4}, v{vFB}, {S(WS)}, s57 offen sc1")
    if FA:
        for e in (0, 2): a(f"v_mov_b64 {V(d+e,2)}, 0\nbuffer_atomic_or_x2 {V(d+e,2)}, v6, {S(WS)}, s{sFE} offen offset:{4*e} sc0 sc1")
    else: a(f"buffer_load_dwordx4 {V(d,4)}, v6, {S(WS)}, s{sFE} offen sc1")
if OPT["f0"] > 0: a(f"s_sleep {OPT['f0']}")
if OPT["f0"] < 0: a("s_waitcnt vmcnt(0)")
if OPT["f0"] < -1: a(f"s_sleep {-OPT['f0'] - 1}")
for k in range(FP - 1):
    fld(k)
    if OPT["fs"]: a(f"s_sleep {OPT['fs']}")
a("L_fd:")
if OPT["ftop"]: a(f"s_sleep {OPT['ftop']}")
for k in range(FP):
    fld((k + FP - 1) % FP)
    d = FD + 8 * k
    a(f"s_waitcnt vmcnt({NF*(FP-1)})\nv_max3_u32 v1, v{d}, v{d+2}, v{d+4}\nv_cmp_eq_u32 vcc, -1, v1\ns_cbranch_vccz L_fg{k}")
    if OPT["fs"]: a(f"s_sleep {OPT['fs']}")
a(f"s_sub_u32 s{sBUD}, s{sBUD}, 1\ns_cbranch_scc0 L_fd")
for k in reversed(range(FP)):
    d = FD + 8 * k
    a(f"L_fg{k}:\nv_permlane32_swap_b32 v{d}, v{d+1}\nv_permlane32_swap_b32 v{d+2}, v{d+3}\nv_add_f32 v{d}, v{d}, v{d+1}\nv_add_f32 v{d+2}, v{d+2}, v{d+3}")
    a(f"v_permlane16_swap_b32 v{d}, v{d+2}\nv_add_f32 v{d}, v{d}, v{d+2}")
    for r in (4, 8): a(f"v_add_f32_dpp v{d}, v{d}, v{d} row_ror:{r} {DPPM}")
    a(f"v_fma_f32 v8, v{d}, v{vSG}, v{d+4}\nv_cvt_pk_bf16_f32 v8, v8, v8")
    execset(0x000F000F000F000F)
    a(f"buffer_store_short v8, v{vFC}, {S(OUT)}, s56 offen")
    if k: stamp(8); finish(); pad("m")
stamp(8)
a("L_mfin:")
finish()
deferred("m")
if OPT["stamps"]:
    a("L_dump:\ns_mov_b64 exec, -1\ns_memtime s[0:1]\ns_memrealtime s[62:63]\ns_waitcnt lgkmcnt(0)\nv_mov_b32 v2, 0")
    a("v_writelane_b32 v2, s98, 0\nv_writelane_b32 v2, s62, 1\ns_sub_u32 s3, s0, s96\nv_writelane_b32 v2, s3, 2")
    for i in range(NST): a(f"s_sub_u32 s3, s{70+2*i}, s{98 if OPT['rt'] else 96}\ns_cmp_lt_u32 s3, {5000 if OPT['rt'] else 0x100000}\ns_cselect_b32 s3, s3, 0\nv_writelane_b32 v2, s3, {3+i}")
    a(f"s_lshl_b32 s3, s2, 4\ns_add_u32 s3, s3, s{sWV}\ns_lshl_b32 s3, s3, 7\ns_add_u32 s3, s3, {STAMP}\nv_lshlrev_b32 v3, 2, v0\ns_mov_b32 exec_hi, 0")
    if not OPT["dfix"]: a(f"buffer_store_dword v2, v3, {S(WS)}, s3 offen")
    if OPT["diag"] >= 0:
        a(f"s_sub_u32 s3, s2, {OPT['dwg']}\ns_cmp_lt_u32 s3, {OPT['dn']}\ns_cbranch_scc0 L_end\ns_cmp_eq_u32 s{sWV}, {OPT['dwv']}\ns_cbranch_scc0 L_end")
        a(f"s_sub_u32 s3, s{70+2*OPT['diag']}, s{98 if OPT['dib'] < 0 else 70+2*OPT['dib']}\ns_lshl_b32 s3, s3, {2 if OPT['dib'] < 0 else 4}\ns_add_u32 s3, s3, s62")
        if OPT["dfix"]: a(f"s_add_u32 s3, s98, {OPT['dfix']}")
        a("L_dg:\ns_memrealtime s[62:63]\ns_waitcnt lgkmcnt(0)\ns_sub_u32 s0, s62, s3\ns_cmp_lt_i32 s0, 0\ns_cbranch_scc1 L_dg")
a("L_end:\ns_endpgm")
for i, l in reversed(list(enumerate(a.lines))):
    if l.startswith(";WARM"):
        _, cat, k, n = l.split()
        a.lines[i:i+1] = [f"s_call_b64 s[100:101], {p}" for p in PADS.get(cat, [])[int(k)::int(n)]]
print({k: len(v) for k, v in PADS.items()})
body, nn = hazard.fix(a.lines[body0:], OPT["verbose"])
a.lines[body0:] = body
kernel_desc(a, K, 256)
open(sys.argv[1], "w").write(a.text())
print("nops inserted:", nn, "lines:", len(a.lines))
```

```python
import sys, struct, math
sys.path.insert(0, "gen")
from common import *
import hazard

OPT = dict(stage="F", stamps=0, verbose=0, nl=9, pg=1, kw=0, kr=3, kn=1, kc=15, e2p=0, fmode=1, n0=8, na=2, nb=10, n1=0, o2=0, hp=1, cdw=0, sf=2, dpn=2, fsl=1, bk=0, bv=-1, wc=1, tch=5, bud=1 << 19, rw=5, clr=0, pf0=1, uord=0, mt=1, mx=8, x1=2, w1=1, ppr=0, sp=1, wb=0, pfp=3, te=1, tl=0, t2=0, wsp=0, ws0=2, ord=0, vpos=1, off="98672345", ftop=0, mlate=0, rf=1, kp=3, ks=2, ka=1, fp=2, fs=0, fa=0, f0=0, hlp=1, r2=5, e1=1, e2=4, dep=3, dep2=6, opos=1, vq=2, spf=0, pk=1, rsp=1, osc="plain",
           diag=-1, dwg=77, dn=1, dib=-1, dfix=0, ddie=-1, dwv=0, slpk=0, prio=1, ou=6, grp=0, rt=1, dbg=0, wri=5, pre=12, aprio=1, lprio=2, vprio=2, oul=5, xprio=1, cpos=1)
for kv in sys.argv[2:]:
    k, v = kv.split("=")
    assert k in OPT, k
    OPT[k] = int(v) if v.lstrip("-").isdigit() else v
STAGE = OPT["stage"]

E2, SP, RJ, STAMP, DUMP = 0x200000, 0x280000, 0x300000, 0x500000, 0x1000000
RJS = 32768
R_BASE, R_FL, R_E4, R_KEY = 4096, 12288, 16384, 21504
SLOT, S0 = 36864, 8192
PITCH = 144; TSTR = 96 * PITCH
VB = S0 + SLOT - TSTR; KB = VB - TSTR; QB = KB - TSTR
STATS, ZR = 0, 1792
MODE, KMAX, WFL, VCN, HRD, XFL = 1728, 1732, 1744, 1748, 1752, 1760
WOB = S0 + 2 * SLOT
EX = S0 + SLOT + 12288
assert ZR + 8 * PITCH + 64 <= QB
X, W, WO, WS, OUT, DBG, WR = 4, 8, 12, 16, 20, 24, 28
sWV, sJ, sU, sG, sC, sC5, sT, sB0, sBUD, sMODE, sI, sGID = range(32, 44)
KA = dict(x=44, w=46, wo=48, wr=52, gate=54, up=56, down=60, out=62, dbg=64, ws=66)
BUDGET = OPT['bud']
DPPM = "row_mask:0xf bank_mask:0xf"
ONES = 0x3F803F80
OOB = 0x80000000
def f32(x): return struct.unpack("<I", struct.pack("<f", x))[0]
CEXP = f32(20 ** -0.5 * math.log2(math.e))

a = Asm()
def S(d): return f"s[{d}:{d+3}]"
def V(d, n=1): return f"v{d}" if n == 1 else f"v[{d}:{d+n-1}]"
def mksrd(d, name, size): a(f"s_mov_b64 s[{d}:{d+1}], s[{KA[name]}:{KA[name]+1}]\ns_mov_b32 s{d+2}, {size:#x}\ns_mov_b32 s{d+3}, 0x20000")
def execset(m):
    if m == -1: a("s_mov_b64 exec, -1")
    elif m < (1 << 31): a(f"s_mov_b64 exec, {m:#x}")
    else: a(f"s_mov_b32 exec_lo, {m & 0xffffffff:#x}\ns_mov_b32 exec_hi, {m >> 32:#x}")
def smask(d, m): a(f"s_mov_b32 s{d}, {m & 0xffffffff:#x}\ns_mov_b32 s{d+1}, {m >> 32:#x}")
def lanes(f): return sum(1 << l for l in range(64) if f(l))
def mfma(d, A, B, C=None):
    c = V(d, 4) if C is None else (C if isinstance(C, str) else V(C, 4))
    a(f"v_mfma_f32_16x16x32_bf16 {V(d,4)}, {V(A,4)}, {V(B,4)}, {c}")
DEFER = []
def lst(text):
    l = a.label("gl")
    a(f"s_cmp_eq_u32 s{sMODE}, 1\ns_cbranch_scc0 {l}g")
    a(text.replace("{F}", "")); a(f"{l}b:")
    DEFER.append(f"{l}g:\n" + text.replace("{F}", " sc1") + f"\ns_branch {l}b")
PADS = {}
def pad(cat):
    if not OPT["pg"]: return
    l = a.label("pad"); PADS.setdefault(cat, []).append(l); a(f"{l}:\ns_setpc_b64 s[100:101]")
def pagebreak(cat=None, live=True):
    if not OPT["pg"]: return
    l = a.label("pb")
    if live: a(f"s_branch {l}")
    a(".p2align 12")
    if cat: pad(cat)
    a(f"{l}:")
def warm(cat, k, n): a(f";WARM {cat} {k} {n}")
def deferred(cat=None):
    n = 999
    for t in DEFER:
        if cat and n > 110: pad(cat); n = 0
        a(t); n += t.count("\n") + 1
    DEFER.clear()
def capture(fn):
    global a
    class C:
        def __init__(s): s.g = []
        def __call__(s, t=""): s.g.append(t)
        def label(s, b): return a0.label(b)
    a0 = a; a = C(); fn(); g = a.g; a = a0
    return g
class Cnt:
    def __init__(s, name, mx): s.n = 0; s.name = name; s.mx = mx; s.done = 0
    def __call__(s, text): a(text); s.n += 1; return s.n
    def wait(s, i):
        if i <= s.done: return
        k = min(s.mx, s.n - i); a(f"s_waitcnt {s.name}({k})"); s.done = s.n - k
    def reset(s): s.n = 0; s.done = 0
L = Cnt("lgkmcnt", 15)

NST = 13
CLK = "s_memrealtime" if OPT["rt"] else "s_memtime"
def stamp(i, lvl=1):
    if OPT["stamps"] == lvl: a(f"{CLK} s[{70+2*i}:{71+2*i}]")
def stampi(ph):
    if OPT["stamps"] == 2:
        if ph == 0: a(f"{CLK} s[94:95]")
        else: a(f"s_lshl_b32 m0, s{sI}, 1\ns_waitcnt lgkmcnt(0)\ns_movreld_b32 s70, s94")
def finish():
    a("s_branch L_dump" if OPT["stamps"] else "s_endpgm")

a(HEADER.rstrip())
a("; @launch grid=(256,1,1) block=(512,1,1) lds=163840")
if OPT["stamps"] and OPT["grp"]: a("; @groups g0:0-79:2-2 g1:80-159:2-2 g2:160-239:2-2 m7:240-255:7-7")
if OPT["stamps"] and OPT["rt"]: a("; @rt")
if OPT["stamps"] and not OPT["grp"]: a("; @groups c0:0-239:0-0 c2:0-239:2-2 h0:0-239:4-4 h1:0-239:5-5 h3:0-239:7-7 m0:240-255:0-0 m4:240-255:4-4 ma:240-247:7-7 mb:248-255:7-7")
a('.amdgcn_target "amdgcn-amd-amdhsa--gfx950"')
K = NAME + "_kernel"
kernel_begin(a, K, OPT.get("page", 1))
body0 = len(a.lines)
NL = OPT["nl"]
a("s_load_dwordx16 s[44:59], s[0:1], 0\ns_load_dwordx8 s[60:67], s[0:1], 56")
if OPT["stamps"]: a("s_memrealtime s[98:99]\ns_memtime s[96:97]")
a(f"s_lshr_b32 s{sU}, s2, 3\ns_and_b32 s{sJ}, s2, 7\nv_readfirstlane_b32 s{sWV}, v0\ns_getpc_b64 s[100:101]\nL_pc:")
if OPT['dbg'] & 32: a('s_load_dword s79, s[100:101], 0x7000')
a(f"s_mul_i32 s3, s{sU}, {NL}\nv_min_u32 v2, {NL-1}, v0\nv_add_lshl_u32 v2, v2, s3, 7\nv_min_u32 v2, L_end-L_pc, v2")
a(f"s_cmp_ge_u32 s{sU}, 30\ns_cbranch_scc1 L_moe")
a("global_load_dword v255, v2, s[100:101]")
a(f"s_mul_i32 s{sG}, s{sU}, 26\ns_lshr_b32 s{sG}, s{sG}, 8\ns_mul_i32 s3, s{sG}, 10\ns_sub_u32 s{sC}, s{sU}, s3\ns_lshr_b32 s{sWV}, s{sWV}, 6")
OFT = sum(int(ch) << (4 * i) for i, ch in enumerate(str(OPT["off"])))
a(f"s_lshl_b32 s3, s{sJ}, 2\ns_lshr_b32 s3, {OFT:#x}, s3\ns_and_b32 s{sMODE}, s3, 15\ns_add_u32 s3, s{sC}, s{sMODE}\ns_sub_u32 s68, s3, 10\ns_cselect_b32 s69, s3, s68")
a(f"s_mul_i32 s3, s69, 245760\ns_lshl_b32 s68, s{sC}, 7\ns_add_u32 s3, s3, s68")
a("v_lshrrev_b32 v1, 3, v0\nv_lshrrev_b32 v3, 4, v0\nv_and_b32 v2, 2, v1\nv_and_or_b32 v2, v3, 4, v2\nv_xor_b32 v2, v2, v0\nv_and_b32 v2, 7, v2")
a("v_mul_u32_u24 v4, 3840, v1\nv_lshl_add_u32 v4, v2, 4, v4\nv_add_u32 v4, s3, v4")
vX, vSUM, vXD, vSTW, vBIA, vEV, vEA = 24, 28, 36, 52, 53, 54, 55
sM, sLO, sLT, sP1, sP2 = 44, 52, 54, 55, 56
sXT, sE2L, sRJ, sNO, sSL, sXM, sXO, sLX, sRD, sPF, sSPL, sFO, sSB = range(57, 70)
sEV, sDL, sWO_ = sXM, sXO, sFO
a(f"s_mul_i32 s3, s{sWV}, 3072\ns_add_u32 m0, s3, {S0 + 12288}\nv_and_b32 v0, 63, v0\ns_and_b32 s{sT}, s{sWV}, 3")
a(f"s_lshr_b32 s3, s{sJ}, 1\ns_lshl_b32 s3, s3, 9\ns_mul_i32 s68, s{sG}, 176\ns_add_u32 s3, s3, s68\ns_and_b32 s68, s{sJ}, 1\ns_add_u32 s3, s3, s68\ns_mul_i32 s{sB0}, s3, 1280")
a(f"s_sub_u32 s{sI}, s{sWV}, 5\ns_mul_i32 s3, s{sI}, {32*2560}\ns_add_u32 s3, s3, s{sB0}\ns_sub_u32 s3, s3, {8*2560}")
a(f"v_lshrrev_b32 v1, 3, v0\nv_lshrrev_b32 v3, 4, v0\nv_xor_b32 v3, v3, v0\nv_and_b32 v3, 7, v3\nv_mul_u32_u24 v1, 2560, v1\nv_lshl_add_u32 v1, v3, 4, v1\nv_add_u32 v{vX}, s3, v1")
a(f"s_add_u32 s3, s{sI}, s{sG}\ns_cmp_eq_u32 s3, 4\ns_cselect_b32 s3, {OOB:#x}, 0")
a(f"v_xor_b32 v{vX+1}, 64, v{vX}\nv_add_u32 v{vX+1}, 20480, v{vX+1}\nv_add_u32 v{vX+2}, 40960, v{vX}\nv_add_u32 v{vX+3}, 40960, v{vX+1}\nv_or_b32 v{vX+3}, s3, v{vX+3}")
for d, sz in ((X, 2048 * 1280), (W, 640 * 3840), (WO, 640 * 1280), (WS, 1 << 28), (OUT, 2048 * 1280), (DBG, 256), (WR, 1280)): a(f"s_mov_b32 s{d+2}, {sz:#x}\ns_mov_b32 s{d+3}, 0x20000")
a("s_waitcnt lgkmcnt(0)")
stamp(0)
def mv(d, n): return f"s_mov_b64 s[{d}:{d+1}], s[{KA[n]}:{KA[n]+1}]"
a(f"global_load_lds_dwordx4 v4, s[46:47]\ns_addk_i32 m0, -256\n{mv(X, 'x')}")
a(f"global_load_lds_dwordx4 v4, s[46:47] offset:1280\ns_addk_i32 m0, -256\n{mv(OUT, 'out')}")
a(f"global_load_lds_dwordx4 v4, s[46:47] offset:2560")
for d, n in ((DBG, "dbg"), (WS, "ws"), (W, "w"), (WO, "wo"), (WR, "wr")): a(mv(d, n))
sMT = 96
if OPT["mt"]: a(f"s_cmp_eq_u32 s{sWV}, 4\ns_cselect_b64 s[{sMT}:{sMT+1}], s[54:55], s[{sMT if OPT['stamps'] else 58}:{sMT+1 if OPT['stamps'] else 59}]\ns_cmp_eq_u32 s{sWV}, 5\ns_cselect_b64 s[{sMT}:{sMT+1}], s[56:57], s[{sMT}:{sMT+1}]")
if OPT["mt"] and OPT["stamps"]: a(f"s_cmp_ge_u32 s{sWV}, 6\ns_cselect_b64 s[{sMT}:{sMT+1}], s[58:59], s[{sMT}:{sMT+1}]")
def nextslab(): a(f"s_add_u32 s{sSB}, s{sSB}, 1\ns_cmp_eq_u32 s{sSB}, 10\ns_cselect_b32 s{sSB}, 0, s{sSB}")
def advslot(d): a(f"s_add_u32 s{d}, s{d}, {SLOT}\ns_cmp_eq_u32 s{d}, {S0 + 4*SLOT}\ns_cselect_b32 s{d}, {S0}, s{d}")
def xissue():
    a(f"s_add_u32 m0, s{sSL}, s{sLX}\ns_mov_b32 exec_lo, s{sXM}")
    for i in range(4):
        a(f"buffer_load_dwordx4 v{vX+i}, {S(X)}, s{sXO} offen lds")
        if i < 3: a("s_addk_i32 m0, 1024")
        if i == 0: a("s_mov_b32 exec_lo, -1")
a(f"s_cmp_lt_u32 s{sWV}, 5\ns_cbranch_scc1 L_nx")
a(f"s_lshl_b32 s{sLX}, s{sI}, 12\ns_cselect_b32 s{sXM}, -1, 0xffffff00\ns_lshl_b32 s{sXO}, s69, 7\ns_mov_b32 s{sSL}, {S0}")
xissue()
a("L_nx:")
stamp(1)
aKe, aK4, aKx, aKy = range(200, 204)
aQe, aQx, aQy, aQ4 = 204, 206, 208, 210
aVe, aV1, aV2 = range(216, 219)
vM, aRK, aCQ, aH0s, aH0l, aOs, aOl, aWO, aOUT, aL16, vRK, aXC, XR = 220, 222, 223, 224, 225, 226, 227, 228, 232, 233, 234, 235, 236
vAW, vAX0, vAX1, vSW, vSTR = 244, 245, 246, 247, 248
WRF, WSP = 244, 252
MASK = [lanes(lambda l: 2 * r + (l >> 5) > (l & 7)) for r in range(4)]
LO = lanes(lambda l: (l & 15) < 8)
sTA, sTP, sTS = 44, 44, 45
aOl2 = XR
def suA():
    a(f"s_mov_b32 s{sBUD}, {BUDGET}\ns_mul_i32 s{sGID}, s{sJ}, 3\ns_add_u32 s{sGID}, s{sGID}, s{sG}\ns_sub_u32 s3, s{sC}, 5\ns_cselect_b32 s{sC5}, s{sC}, s3")
    a(f"s_lshl_b32 s3, s{sWV}, 2\ns_lshr_b32 s{sTA}, 0x32105454, s3\ns_and_b32 s{sTA}, s{sTA}, 7\ns_lshr_b32 s45, s{sT}, 1\ns_add_u32 s45, s45, 4")
    a(f"s_cmp_eq_u32 s{sG}, 2\ns_cselect_b32 s{sNO}, 10, 11")
    a(f"s_sub_u32 s{sXT}, 10, s{sMODE}\nv_lshlrev_b32 v{aL16}, 4, v0")
    a(f"s_mul_i32 s{sE2L}, s{sGID}, 6\ns_add_u32 s{sE2L}, s{sE2L}, s{sTP}\ns_mul_i32 s{sE2L}, s{sE2L}, 2560\ns_add_u32 s{sE2L}, s{sE2L}, {E2}")
    a(f"s_lshl_b32 s{sRJ}, s{sJ}, 15\ns_add_u32 s{sRJ}, s{sRJ}, {RJ}")
    a(f"s_sub_u32 s51, 5, s{sC5}\ns_add_u32 s1, s{sC5}, 1\ns_sub_u32 s3, 15, s{sC5}\ns_cmp_le_u32 s{sC5}, 2\n"
      "s_cselect_b32 s46, 0, s3\ns_cselect_b32 s47, s51, s1\ns_cselect_b32 s48, s3, 0\ns_cselect_b32 s49, s1, s51\ns_cselect_b32 s50, 1, 0")
    a("v_and_b32 v3, 15, v0\nv_add_u32 v3, 8, v3\nv_lshrrev_b32 v4, 1, v3\nv_lshrrev_b32 v5, 5, v0\nv_xor_b32 v4, v4, v5\nv_and_b32 v4, 7, v4")
    a(f"v_lshlrev_b32 v4, 4, v4\nv_lshl_add_u32 v4, v3, 7, v4\nv_bfe_u32 v5, v0, 4, 1\nv_lshl_add_u32 v4, v5, 3, v4\ns_lshl_b32 s3, s{sTP}, 11\nv_add_u32 v{aXC}, s3, v4")
def suB():
    a(f"v_and_b32 v1, 15, v0\nv_lshrrev_b32 v2, 4, v0\nv_mov_b32 v7, {ZR}\ns_mul_i32 s0, s{sTA}, {16*PITCH}\ns_movk_i32 s1, {PITCH}")
    a("v_bfe_u32 v3, v0, 2, 1\nv_and_b32 v4, 3, v0\nv_lshlrev_b32 v4, 1, v4"); a("v_lshl_add_u32 v3, v3, 3, v4\nv_bfe_u32 v4, v0, 3, 1\nv_add_u32 v3, v3, v4")
    a(f"s_add_u32 s3, s0, {KB}\nv_mov_b32 v4, s3\nv_mad_u32_u24 v3, v3, s1, v4")
    a(f"s_add_u32 s3, s0, {QB + 8*PITCH}\nv_mov_b32 v4, s3\nv_mad_u32_u24 v4, v1, s1, v4")
    smask(52, LO)
    def kq(dK, dQ, quad, cond):
        a(quad); a(f"v_lshl_add_u32 v{dK}, v5, 3, v3\nv_lshl_add_u32 v5, v5, 3, v4")
        if cond: a(cond); a("v_cndmask_b32 v5, v7, v5, vcc")
        a(f"v_cndmask_b32 v{dQ}, v7, v5, s[52:53]\nv_cndmask_b32 v{dQ+1}, v5, v7, s[52:53]")
    kq(aKe, aQe, "v_add_u32 v5, s51, v2", None)
    kq(aKx, aQx, "v_add_u32 v5, s46, v2", "v_cmp_gt_u32 vcc, s47, v2")
    kq(aKy, aQy, "v_add_u32 v5, s48, v2\nv_min_u32 v5, 15, v5", "v_cmp_gt_u32 vcc, s49, v2")
    a("s_sub_u32 s3, s51, 1\nv_mad_u32_u24 v5, v2, 5, s3\ns_add_u32 s3, s46, 4\nv_mov_b32 v6, s3\ns_mov_b64 vcc, 0xffff\nv_cndmask_b32 v5, v5, v6, vcc")
    a(f"v_min_u32 v5, 15, v5\nv_lshl_add_u32 v{aK4}, v5, 3, v3\nv_lshl_add_u32 v5, v5, 3, v4")
    a(f"s_cmp_eq_u32 s47, 5\ns_cselect_b64 vcc, 0xff, 0\nv_cndmask_b32 v{aQ4}, v7, v5, vcc\ns_lshl_b64 vcc, vcc, 8\nv_cndmask_b32 v{aQ4+1}, v7, v5, vcc")
    for i in range(2, 6): a(f"s_bfm_b64 vcc, 8, {8*i}\nv_cndmask_b32 v{aQ4+i}, v7, v5, vcc")
def suC():
    a(f"s_mul_i32 s0, s{sTA}, {16*PITCH}\ns_movk_i32 s1, {PITCH}")
    a("v_bfe_u32 v3, v0, 2, 3\nv_lshrrev_b32 v4, 5, v0\nv_lshl_add_u32 v3, v3, 1, v4")
    a(f"s_add_u32 s3, s0, {VB}\nv_mov_b32 v4, s3\nv_mad_u32_u24 v3, v3, s1, v4\nv_and_b32 v4, 3, v0")
    smask(54, lanes(lambda l: l & 3 == 0))
    a(f"v_add_u32 v5, s51, v4\nv_lshl_add_u32 v{aVe}, v5, 3, v3\nv_add_u32 v7, 32, v{aVe}")
    a(f"s_cmp_eq_u32 s50, 1\ns_cselect_b32 s3, -1, 12\ns_cselect_b32 s56, 2, -1")
    a(f"v_add_u32 v5, s3, v4\nv_lshl_add_u32 v5, v5, 3, v3\nv_cndmask_b32 v{aV1}, v5, v7, s[54:55]\nv_add_u32 v7, 40, v7")
    a(f"v_add_u32 v5, s56, v4\nv_add_u32 v6, 10, v5\nv_cmp_gt_i32 vcc, s51, v5"); a(f"v_cndmask_b32 v5, v6, v5, vcc\nv_lshl_add_u32 v5, v5, 3, v3\nv_cndmask_b32 v{aV2}, v5, v7, s[54:55]")
    a(f"s_lshl_b32 s0, s{sTA}, 8\nv_lshrrev_b32 v4, 5, v0\nv_and_or_b32 v3, v0, 8, v4\ns_add_u32 s3, s0, {STATS + 8}\nv_lshl_add_u32 v{aRK}, v3, 4, s3")
    a(f"v_and_b32 v1, 15, v0\ns_add_u32 s3, s0, {STATS + 128 + 4}\nv_lshl_add_u32 v{aCQ}, v1, 4, s3")
    a(f"s_lshr_b32 s3, s{sB0}, 8\ns_mul_i32 s3, s3, 52429\ns_lshr_b32 s3, s3, 18\ns_lshl_b32 s0, s{sTP}, 5\ns_add_u32 s3, s3, s0\ns_sub_u32 s3, 2047, s3\nv_mad_i32_i24 v{vRK}, v1, -2, s3")
def octaddr(d, tile, rowq, extra):
    a(f"s_lshl_b32 s3, s{tile}, 4\nv_add_u32 v5, s3, v{rowq}\ns_lshl_b32 s3, s{sNO}, 3\nv_cmp_gt_u32 vcc, s3, v5")
    a(f"v_mul_u32_u24 v5, 2560, v5\nv_add3_u32 v5, v5, v{extra}, s{sB0}\nv_cndmask_b32 v{d}, v6, v5, vcc")
def suD(helper=1):
    a(f"v_lshrrev_b32 v2, 4, v0\nv_and_or_b32 v3, v0, 8, v2\nv_and_b32 v4, 0x70, v{aL16}\nv_bfrev_b32 v6, 1")
    if helper: octaddr(aOl2, sTS, 3, 4)
    octaddr(aOl, sTA, 3, 4)
    a(f"s_lshl_b32 s3, s{sC}, 7\nv_add_u32 v{aOs}, s3, v{aOl}")
    a(f"v_bfe_u32 v3, v0, 4, 1\nv_cmp_eq_u32 s[54:55], s50, v3\ns_cmp_lg_u32 s{sC5}, 0\ns_cselect_b64 s[0:1], -1, s[54:55]\ns_and_b64 vcc, vcc, s[0:1]")
    a(f"s_cmp_lg_u32 s{sC5}, 4\ns_cselect_b64 s[0:1], 0, s[54:55]\ns_andn2_b64 vcc, vcc, s[0:1]")
    a(f"v_cndmask_b32 v{aH0l}, v6, v{aOs}, vcc")
    a(f"s_cmp_le_u32 s{sC5}, 3\ns_cselect_b32 s3, 2560, 0\ns_sub_u32 s3, s3, 128\nv_mov_b32 v4, s3"); a(f"s_cmp_ge_u32 s{sC5}, 2\ns_cselect_b32 s3, 2560, 0\ns_add_u32 s3, s3, 128\nv_mov_b32 v5, s3")
    a(f"v_cndmask_b32 v4, v4, v5, s[54:55]\nv_mul_u32_u24 v3, 2560, v3\nv_sub_u32 v4, v4, v3"); a(f"v_add_u32 v4, v4, v{aOs}\nv_cndmask_b32 v{aH0s}, v6, v4, vcc")
def wlane():
    a("v_bfe_u32 v3, v0, 3, 2\nv_lshlrev_b32 v3, 2, v3\nv_and_or_b32 v3, v0, 3, v3"); a("v_lshlrev_b32 v3, 3, v3\nv_bfe_u32 v4, v0, 2, 2\nv_lshl_add_u32 v3, v4, 7, v3")
def suE(helper=1):
    a("v_and_b32 v1, 15, v0\nv_bfrev_b32 v6, 1\nv_bfe_u32 v3, v0, 4, 1\nv_lshrrev_b32 v4, 5, v0"); a(f"v_lshl_add_u32 v3, v3, 1, v4\ns_lshl_b32 s3, s{sC}, 7\nv_lshl_add_u32 v4, v3, 4, s3")
    octaddr(aOUT, sTP, 1, 4)
    wlane()
    a("v_lshrrev_b32 v2, 4, v0")
    if helper:
        a(f"s_and_b32 s3, s{sWV}, 1\ns_lshl_b32 s3, s3, 12\ns_add_u32 s3, s3, {WOB}\nv_lshl_add_u32 v4, v2, 10, v3\nv_add_u32 v{aWO}, s3, v4")
        for ct in range(1, 4): a(f"v_xor_b32 v{aWO+ct}, {32*ct}, v{aWO}")
    for r in range(4): smask(sM + 2 * r, MASK[r])
    a(f"s_movk_i32 s{sLT}, 10240\ns_mov_b32 s{sP1}, 0x07060501\ns_mov_b32 s{sP2}, 0x0706000c")
    a("v_mov_b32 v5, 0xffff\nv_mov_b32 v6, 0xffff0000")
    for d in range(2): a(f"v_cndmask_b32 v1, 0, v5, s[{sM+4*d}:{sM+4*d+1}]\nv_cndmask_b32 v4, 0, v6, s[{sM+4*d+2}:{sM+4*d+3}]\nv_or_b32 v{vM+d}, v1, v4")
KQ, SS, KS, PX, FL_, FE, VF, HL, CQ, TM, F01 = 96, 152, 168, 176, 192, 196, 64, 92, 5, 6, 2
DM, LT, QF = SS, 80, KQ + 20
H, OF, WOF, RING = 8, 24, 104, 6
DEP = OPT["dep"]
def capt(slot, d=XR):
    a(f"v_add_u32 v1, {slot}, v{aXC}")
    for ct in range(4):
        if ct: a(f"v_xor_b32 v{1+ct}, {32*ct}, v1")
        a(f"ds_read_b64 {V(d+2*ct,2)}, v{1+ct}")
def hinit(d=XR):
    for i in range(8): a(f"v_lshlrev_b32 v{H+2*i}, 16, v{d+i}\nv_and_b32 v{H+2*i+1}, 0xffff0000, v{d+i}")
def ldWR():
    a(f"v_lshrrev_b32 v1, 4, v0\nv_lshlrev_b32 v1, 3, v1\ns_lshl_b32 s3, s{sC}, 7")
    for ct in range(4): a(f"buffer_load_dwordx2 {V(WRF+2*ct,2)}, v1, {S(WR)}, s3 offen offset:{32*ct}")
def wrprep(t):
    a(f"s_mov_b32 s3, {ONES:#x}")
    for i in range(4): a(f"v_mov_b32 v{t+i}, s3")
    execset(0x1111111111111111)
    for i in range(8): a(f"v_mov_b32 v{WRF+i}, s3")
    execset(-1)
    for k in range(2): mfma(WSP, WRF + 4 * k, t, "0" if k == 0 else None)
def pzero(lo=0, hi=16):
    for i in range(lo, hi): a(f"v_mov_b32 v{PX+i}, 0")
def ksread(e=None):
    e = e or a
    a(f"v_add_u32 v1, 128, v{aRK}")
    for r in range(4):
        e(f"v_cndmask_b32 v2, v1, v{aRK}, s[{sM+2*r}:{sM+2*r+1}]\nds_read_b64 {V(KS+2*r,2)}, v2 offset:{32*r}")
    e(f"ds_read_b32 v{CQ}, v{aCQ}")
def rdmode(): a(f"v_mov_b32 v1, {MODE}\nds_read_b32 v1, v1\ns_waitcnt lgkmcnt(0)\nv_readfirstlane_b32 s{sMODE}, v1")
def gsync_h(poll):
    l = a.label("gh")
    a(f"s_cmp_eq_u32 s{sMODE}, 1\ns_cbranch_scc0 {l}g\n{l}b:")
    t = f"{l}g:\ns_barrier\n"
    if poll:
        t += f"s_cmp_eq_u32 s{sWV}, 5\ns_cbranch_scc0 {l}e\nv_mov_b32 v1, 1\ns_mov_b64 exec, 1\nbuffer_store_dword v1, off, {S(WS)}, s{sFO} offset:64 sc1\ns_mov_b64 exec, -1\n"
        t += f"{l}p:\nbuffer_load_dword v1, v{vEA}, {S(WS)}, 0 offen offset:64 sc1\ns_waitcnt vmcnt(0)\nv_cmp_ne_u32 vcc, 1, v1\ns_cbranch_vccz {l}e\ns_sub_u32 s{sBUD}, s{sBUD}, 1\ns_cbranch_scc0 {l}p\ns_mov_b32 s{sBUD}, 0\n{l}e:\n"
    DEFER.append(t + f"s_barrier\ns_branch {l}b")
def weave(P, xs):
    xs = list(xs); per = -(-len(xs) // len(P))
    for p in P:
        a(p)
        for _ in range(per):
            if xs: a(xs.pop(0))
a("v_mov_b32 v254, v4")
suA()
a(f"s_cmp_lt_u32 s{sWV}, 4\ns_cbranch_scc1 L_cons")
vW, vT = 24, 56
STR = {5: 0, 3: 1, 13: 2, -3: 3, -13: 4}
def wo_setup(vT=vT):
    a(f"v_lshrrev_b32 v1, 3, v0\nv_and_b32 v2, 2, v1\nv_xor_b32 v2, v2, v0\ns_lshl_b32 s3, s{sWV}, 2\nv_xor_b32 v2, s3, v2")
    a(f"v_and_b32 v2, 7, v2\ns_lshl_b32 s3, s{sC}, 7\nv_lshl_add_u32 v2, v2, 4, s3")
    a(f"v_and_b32 v3, 3, v1\nv_mul_u32_u24 v3, 1280, v3\nv_add_u32 v2, v3, v2")
    a(f"v_lshrrev_b32 v3, 5, v0\nv_mul_u32_u24 v3, 5120, v3\nv_sub_u32 v4, 5120, v3")
    for d, i in STR.items(): a(f"v_mad_u32_u24 v{vT+i}, v{3 + (d < 0)}, {abs(d)}, v2")
def wo_quads(cp, h, g):
    c5 = cp % 5
    if h == 0: return 5 - c5 + g, 10 - c5 + g
    if g == 0: return 9 - c5, 14 - c5
    i = g - 1
    p = 3 + i if c5 <= 2 else i
    return (i if c5 <= 2 else 13 + i), (p if p < 5 - c5 else 10 + p)
def wo_piece(st, g):
    h, cp = st // 10, st % 10
    q0, q1 = wo_quads(cp, h, g or 0)
    t = f"s_lshl_b32 s3, s{sT}, 10\ns_add_u32 m0, s3, {WOB}" if st == 0 else "s_addk_i32 m0, 4096"
    o = (64*cp + 4*min(q0, q1)) * 1280
    t += f"\ns_add_u32 s3, s{sPF}, {o}" if g is None else f"\ns_mov_b32 s3, {o}"
    return t + f"\nbuffer_load_dwordx4 v{vT + STR[q1 - q0]}, {S(WO)}, s3 offen lds"
def wo_late(lo, w, vT):
    for st in range(lo, 20):
        for g in (w, w + 2):
            q0, q1 = wo_quads(st % 10, st // 10, g)
            a(f"s_mov_b32 m0, {WOB + 4096*st + 1024*g}" if (st, g) == (lo, w) else "s_addk_i32 m0, 2048")
            a(f"s_mov_b32 s3, {(64*(st % 10) + 4*min(q0, q1)) * 1280}\nbuffer_load_dwordx4 v{vT + STR[q1 - q0]}, {S(WO)}, s3 offen lds")
def wo_run(lo, hi, tag):
    for st in range(lo, min(hi, 10)): a(wo_piece(st, None))
    lo = max(lo, 10)
    if lo >= hi: return
    for g in range(1, 4):
        a(f"s_cmp_eq_u32 s{sT}, {g}\ns_cbranch_scc1 L_wo{tag}{g}")
        DEFER.append(f"L_wo{tag}{g}:\n" + "\n".join(wo_piece(st, g) for st in range(lo, hi)) + f"\ns_branch L_wo{tag}")
    for st in range(lo, hi): a(wo_piece(st, 0))
    a(f"L_wo{tag}:")
N0 = OPT["n0"]; NA = N0 + OPT["na"]; NB = NA + OPT["nb"]; N1 = NB + OPT["n1"]
assert 2 * DEP <= N0 <= N1 <= 20
vTC = 61
def touch_setup():
    a(f"s_mul_i32 s3, s{sT}, 3\nv_lshrrev_b32 v1, 2, v0\nv_add_u32 v1, s3, v1\ns_add_u32 s3, s3, 3\ns_min_u32 s3, s3, s{sNO}\nv_cmp_gt_u32 vcc, s3, v1\nv_and_b32 v2, 3, v0\nv_lshl_add_u32 v1, v1, 3, v2")
    a(f"v_mul_u32_u24 v1, 2560, v1\ns_lshl_b32 s0, s{sC}, 7\ns_add_u32 s3, s0, s{sB0}\nv_add_u32 v1, s3, v1\nv_bfrev_b32 v2, 1\nv_cndmask_b32 v{vTC}, v2, v1, vcc")
    a(f"s_mul_i32 s3, s{sT}, 3\nv_min_u32 v1, 2, v0\nv_add_u32 v1, s3, v1\nv_lshrrev_b32 v2, 1, v1\nv_mul_u32_u24 v2, {2560 - 256}, v2\nv_lshl_add_u32 v1, v1, 7, v2")
    a(f"s_mul_i32 s3, s{sGID}, 15360\ns_lshl_b32 s0, s{sC}, 8\ns_add_u32 s3, s3, s0\ns_add_u32 s3, s3, {E2}\nv_add_u32 v{vTC+2}, s3, v1")
    if OPT["mt"]:
        R = 64 * (10 - OPT["mx"]); per = -(-2 * R // 30)
        a(f"s_mul_i32 s3, s{sU}, {per}\nv_min_u32 v1, {per-1}, v0\nv_add_u32 v1, s3, v1\nv_min_u32 v1, {2*R-1}, v1\nv_cmp_le_u32 vcc, {R}, v1\nv_mul_u32_u24 v1, 3072, v1")
        a(f"s_mul_i32 s3, s{sJ}, 384\ns_add_u32 s3, s3, {64*OPT['mx']*3072}\nv_add_u32 v1, s3, v1\nv_subrev_u32 v2, {(R + 320)*3072 - 256}, v1\nv_cndmask_b32 v1, v1, v2, vcc")
        a(f"s_mul_i32 s3, s{sJ}, 60\ns_lshl_b32 s0, s{sU}, 1\ns_add_u32 s3, s3, s0\ns_and_b32 s0, s{sWV}, 1\ns_add_u32 s3, s3, s0\ns_lshl_b32 s3, s3, 12\nv_min_u32 v2, 31, v0\nv_lshl_add_u32 v2, v2, 7, s3")
        a(f"s_cmp_ge_u32 s{sWV}, 6\ns_cselect_b64 vcc, -1, 0\nv_cndmask_b32 v{vMT}, v1, v2, vcc")
vMT = 84
def mtouch(p):
    if OPT["mt"] == p: a(f"global_load_dword v{vMT}, v{vMT}, s[{sMT}:{sMT+1}]")
NT = sum(OPT[k] in (0, 1) for k in ("te", "tl", "t2")) + (OPT["mt"] in (1, 2, 5))
NT2 = sum(OPT[k] == 2 for k in ("te", "tl", "t2")) + (OPT["mt"] == 3)
def xstart(i): nextslab(); a(f"s_lshl_b32 s{sXO}, s{sSB}, 7\ns_mov_b32 s{sSL}, {S0 + SLOT*(i % 4)}")
xstart(1)
if OPT["x1"] == 0: a(f"s_cmp_eq_u32 s{sWV}, 4\ns_cbranch_scc1 L_n1"); xissue(); a("L_n1:")
suB(); suC()
stamp(0, 5)
suD(); suE(); wo_setup(); touch_setup(); pzero()
a(f"s_cmp_eq_u32 s{sWV}, 4\ns_cbranch_scc1 L_h0")
E1_, E2_ = OPT["e1"], OPT["e2"]
assert 1 <= E1_ and E1_ + 2 <= E2_ <= 4
vXA = vEV
a(f"v_mov_b32 v4, {ONES:#x}\nv_mov_b32 v5, v4\nv_lshrrev_b32 v1, 4, v0\nv_mul_u32_u24 v1, {SLOT - 128}, v1\nv_lshl_add_u32 v1, v0, 3, v1\nds_write_b64 v1, v[4:5] offset:{S0}")
a(f"s_sub_u32 s0, s{sWV}, 5\ns_mul_i32 s3, s{sGID}, 3\ns_add_u32 s3, s3, s0\ns_mul_i32 s3, s3, 2560\ns_add_u32 s{sSPL}, s3, {SP}")
a(f"s_mul_i32 s3, s{sG}, 1280\ns_add_u32 s3, s3, s{sRJ}\ns_add_u32 s{sPF}, s3, {R_FL}\nv_min_u32 v1, 9, v0\nv_lshl_add_u32 v{vEA}, v1, 7, s{sPF}\ns_lshl_b32 s{sFO}, s{sC}, 7\ns_add_u32 s{sFO}, s{sFO}, s{sPF}")
a(f"v_and_b32 v1, 15, v0\nv_lshrrev_b32 v2, 5, v0\nv_lshl_add_u32 v2, v2, 4, v1\ns_lshl_b32 s0, s0, 5\nv_add_lshl_u32 v{vSTW}, v2, s0, 4")
a(f"v_lshrrev_b32 v2, 4, v0\nv_lshrrev_b32 v3, 1, v1\nv_xor_b32 v3, v3, v2\nv_lshlrev_b32 v3, 4, v3\nv_lshl_add_u32 v3, v1, 7, v3\nv_add_u32 v{vXA}, s{sLX}, v3")
a(f"s_cmp_lt_u32 s{sB0}, 2560\ns_cselect_b32 s3, 128, 0\nv_mov_b32 v1, 0xf149f2ca\nv_cmp_gt_u32 vcc, s3, v{vSTW}\nv_cndmask_b32 v{vBIA}, 0, v1, vcc")
stamp(1, 5)
if OPT["xprio"]: a(f"s_setprio {OPT['xprio']}")
if OPT["x1"] == 2: xissue()
ldWR()
for k in range(4): a(f"v_mov_b32 v{64+k}, {ONES:#x}")
if OPT["dbg"] & 64: a(f"s_lshl_b32 s3, s{sC}, 8\ns_add_u32 s3, s3, s{sSPL}\ns_mov_b64 exec, 0xffff\nbuffer_store_dwordx4 v[64:67], v{aL16}, {S(WS)}, s3 offen sc1\ns_mov_b64 exec, -1")
a(f"s_waitcnt vmcnt({9 if OPT['dbg'] & 64 else 8}) lgkmcnt(0)")
stamp(2, 5)
def part_stats():
    PD = 96
    a(f"v_xor_b32 v1, 64, v{vXA}")
    for t in range(2):
        for ks in range(2): a(f"ds_read_b128 {V(vXD+8*t+4*ks,4)}, v{1 if ks else vXA} offset:{S0 + 2048*t}")
    a(f"s_lshl_b32 s3, s{sC}, 8\ns_add_u32 s3, s3, s{sSPL}\nv_and_b32 v2, 0xf0, v{aL16}\ns_mov_b32 s0, 0xaaaaaaaa\ns_mov_b32 s1, s0\ns_mov_b32 vcc_lo, 0xcccccccc\ns_mov_b32 vcc_hi, 0xcccccccc")
    for t in range(2):
        for ks in range(2):
            a(f"s_waitcnt lgkmcnt({3 - 2*t - ks})")
            mfma(PD + 8 * t, vXD + 8 * t + 4 * ks, vXD + 8 * t + 4 * ks, None if ks else "0")
            mfma(PD + 8 * t + 4, 64, vXD + 8 * t + 4 * ks, None if ks else "0")
    for t in range(2):
        d = PD + 8 * t
        a(f"v_cndmask_b32 v{d}, v{d}, v{d+1}, s[0:1]\nv_cndmask_b32 v{d+2}, v{d+2}, v{d+3}, s[0:1]\nv_cndmask_b32 v{vSUM+2*t+1}, v{d}, v{d+2}, vcc\nv_mov_b32 v{vSUM+2*t}, v{d+4}")
    execset(0xF0000F0000F0000F)
    a(f"buffer_store_dwordx4 {V(vSUM,4)}, v2, {S(WS)}, s3 offen sc1")
    execset(-1)
    for i in range(4): a(f"v_mov_b32 v{vXD+8+i}, 0")
def only5(tag, fn):
    a(f"s_cmp_eq_u32 s{sWV}, 5\ns_cbranch_scc0 L_o5{tag}"); fn(); a(f"L_o5{tag}:")
def evchk(tag, cmp_, ld):
    a(f"s_waitcnt lgkmcnt(0)\n{cmp_}\ns_cbranch_scc0 L_er{tag}\nL_eg{tag}:")
    DEFER.append(f"L_er{tag}:\ns_sub_u32 s{sBUD}, s{sBUD}, 1\ns_cbranch_scc1 L_ex{tag}\n{ld}\ns_waitcnt lgkmcnt(0)\n{cmp_}\ns_cbranch_scc0 L_er{tag}\ns_branch L_eg{tag}\nL_ex{tag}:\ns_mov_b32 s{sBUD}, 0\ns_branch L_eg{tag}")
FR = [71, 73, 75, 77, 83, 85, 89, 91, 93, 95]
ldroot = f"s_lshl_b32 s0, s{sJ}, 5\nv_and_b32 v1, 16, v0\nbuffer_load_dword v{vSUM+4}, v1, {S(DBG)}, s0 offen sc1"
ldflag = "\n".join(f"s_buffer_load_dword s{r}, {S(WS)}, s{sPF} offset:{128*k} glc" for k, r in enumerate(FR))
for i in range(9):
    a("s_barrier")
    stamp(3 + i, 5)
    ex = 0
    if i == E1_ + 1:
        def f():
            evchk("a", f"v_cmp_ne_u32 vcc, 1, v{vSUM+4}\ns_cmp_eq_u64 vcc, 0", ldroot + "\ns_waitcnt vmcnt(0)")
            a(f"s_getreg_b32 s0, hwreg(HW_REG_XCC_ID, 0, 4)\nv_mov_b32 v1, s0\ns_mov_b64 exec, 1\nbuffer_store_dword v1, off, {S(WS)}, s{sFO} sc1\ns_mov_b64 exec, -1")
        only5("c", f)
    if i == E2_ + 2:
        for k in range(3):
            if k == 2: a("s_mov_b32 exec_hi, 0")
            if OPT["dbg"] & 16: a(f"s_mov_b32 s{sSPL}, {OOB:#x}")
            a(f"buffer_load_dwordx4 {V(vXD+4*k,4)}, v{aL16}, {S(WS)}, s{sSPL} offen offset:{1024*k} sc1")
        a("s_mov_b32 exec_hi, -1"); ex += 3
    if i == 0: part_stats(); ex += 1
    if OPT["pf0"] & 1 and OPT["pfp"] % 10 == i + 2:
        a(f"s_mul_i32 s3, s2, 3\ns_add_u32 s3, s3, s{sWV}\ns_sub_u32 s3, s3, 5\ns_mul_i32 s3, s3, {9*128}\nv_lshlrev_b32 v1, 7, v0\ns_mov_b64 exec, 0x1ff\nbuffer_load_dword v255, v1, {S(WO)}, s3 offen\ns_mov_b64 exec, -1"); ex += 1
    if i < 8: xstart(i + 2); xissue()
    if i:
        a(f"s_cmp_eq_u32 s{sXT}, {i}\ns_cbranch_scc0 L_xc{i}\ns_mov_b32 s0, {S0 + SLOT * (i % 4)}\ns_call_b64 s[100:101], L_xcap\nL_xc{i}:")
    if i == E2_ + 1:
        def f():
            evchk("b", f"s_max_u32 s0, s{FR[0]}, s{FR[1]}\n" + "\n".join(f"s_max_u32 s0, s0, s{r}" for r in FR[2:]) + "\ns_cmp_lg_u32 s0, -1", ldflag)
            a(f"s_min_u32 s1, s{FR[0]}, s{FR[1]}\n" + "\n".join(f"s_min_u32 s1, s1, s{r}" for r in FR[2:]) + f"\ns_cmp_eq_u32 s0, s1\ns_cselect_b32 s0, {OPT['fmode']}, 0")
            a(f"v_mov_b32 v1, {MODE}\nv_mov_b32 v2, s0\nds_write_b32 v1, v2")
        only5("d", f)
    if i == E2_ + 3:
        a(f"s_waitcnt vmcnt({8 + ex})")
        for k in (4, 8):
            for e in range(4): a(f"v_add_f32 v{vXD+e}, v{vXD+e}, v{vXD+k+e}")
        a(f"v_permlane32_swap_b32 v{vXD}, v{vXD+2}\nv_permlane32_swap_b32 v{vXD+1}, v{vXD+3}\nv_add_f32 v{vXD}, v{vXD}, v{vXD+2}\nv_add_f32 v{vXD+1}, v{vXD+1}, v{vXD+3}")
        a(f"v_mov_b32 v{vXD+2}, v{vXD}\nv_mov_b32 v{vXD+3}, v{vXD+1}\ns_mov_b32 s1, 0x3acccccd\nv_mov_b32 v1, 0x3727c5ac")
        a(f"v_permlane16_swap_b32 v{vXD}, v{vXD+2}\nv_permlane16_swap_b32 v{vXD+1}, v{vXD+3}\nv_add_f32 v{vXD}, v{vXD}, v{vXD+2}\nv_add_f32 v{vXD+1}, v{vXD+1}, v{vXD+3}")
        a(f"v_mul_f32 v{vXD}, 0xbacccccd, v{vXD}\nv_fma_f32 v2, v{vXD+1}, s1, v1\nv_fma_f32 v2, -v{vXD}, v{vXD}, v2\nv_max_f32 v2, v2, v1\nv_rsq_f32 v{vXD+1}, v2\nv_mov_b32 v{vXD+3}, v{vBIA}\nv_mov_b32 v{vXD+2}, v{vXD+1}")
        a(f"ds_write_b128 v{vSTW}, {V(vXD,4)} offset:{STATS}")
    if 1 <= i <= 6 and OPT["pg"]:
        a(f"s_cmp_eq_u32 s{sWV}, 7\ns_cbranch_scc0 L_wm{i}"); warm("h", i - 1, 6); a(f"L_wm{i}:")
    if i == 0: pagebreak("c0")
    if i == 7 and OPT["wsp"]: pagebreak("h")
    if i == 8: break
    if i == E1_ + 1: a(f"s_cmp_eq_u32 s{sWV}, 5\ns_cbranch_scc1 L_w5{i}\ns_waitcnt vmcnt({4 + ex})\nL_w5{i}:"); ex += 1
    a(f"s_waitcnt vmcnt({4 + ex}) lgkmcnt(0)")
    if i == E1_ - 1: only5("a", lambda: a(ldroot))
    if i == E2_: only5("b", lambda: a(ldflag))
    if OPT["wsp"] and i >= OPT["ws0"]:
        LQ = [(cp, q) for cp in range(5) for g in range(4) for q in wo_quads(cp, 1, g)]
        part = LQ[OPT["wsp"] * (i - OPT["ws0"]):OPT["wsp"] * (i - OPT["ws0"] + 1)]
        if part:
            if i == OPT["ws0"]: a(f"s_mul_i32 s3, s{sG}, 3\ns_add_u32 s3, s3, s{sWV}\ns_sub_u32 s3, s3, 5\ns_lshr_b32 s0, s3, 2\ns_mul_i32 s0, s0, 316\ns_add_u32 s3, s3, s0\ns_mul_i32 s3, s3, 1280\ns_lshl_b32 s0, s{sC}, 7\ns_add_u32 s{sRD}, s3, s0")
            for cp, q in part:
                for o in (0, 64): a(f"s_buffer_load_dword s79, {S(WO)}, s{sRD} offset:{(64*cp + 4*q)*1280 + o}")
    if i == 2 and OPT["ppr"]:
        a(f"s_lshl_b32 s3, s{sC}, 8\ns_add_u32 s3, s3, s{sSPL}")
        for k in range(4): a(f"s_buffer_load_dword s75, {S(WS)}, s3 offset:{64*k}")
a(f"L_h8:\ns_mul_i32 s{sPF}, s{sT}, 5120")
mtouch(4)
wo_run(0, N0, "a")
mtouch(5)
ksread(); rdmode()
if OPT['hp'] == 0: hinit(72); wrprep(64)
a(f"s_waitcnt vmcnt({N0 + (OPT['mt'] >= 4)})")
stamp(2)
a("s_barrier")
stamp(3); stamp(9, 2); stamp(0, 3)
if not OPT['clr']: gsync_h(1)
def touch(p):
    if p == OPT["tl"]: a(f"buffer_load_dword v{vTC+1}, v{vTC}, {S(OUT)}, s{sLT} offen")
    if p == OPT["te"]: a(f"buffer_load_dword v{vTC+1}, v{vTC}, {S(OUT)}, 0 offen")
    if p == OPT["t2"]: a(f"buffer_load_dword v{vTC+2}, v{vTC+2}, {S(WS)}, 0 offen")
wo_run(N0, NA, "d")
touch(0)
mtouch(1)
if OPT['hp'] == 1: hinit(72); wrprep(64)
sO, sDW = 61, 65
a(f"s_and_b32 s3, s{sWV}, 1\ns_lshl_b32 s{sO}, s3, 7\ns_xor_b32 s{sO+1}, s{sO}, 128\ns_add_u32 s{sO+2}, s{sO+1}, s{sLT}\ns_add_u32 s{sO+3}, s{sO}, s{sLT}\ns_lshl_b32 s3, s3, 13\ns_sub_u32 s{sDW}, 4096, s3")
DEFER.append("L_xcap:\n" + "\n".join(capture(lambda: capt("s0", 72))) + "\ns_setpc_b64 s[100:101]")

def rdWO1(s, ct, e):
    t = ""
    if e == 0 and s in (5, 10, 15): t = {5: f"v_add_u32 v{aWO+ct}, s{sDW}, v{aWO+ct}", 10: f"v_add_u32 v{aWO+ct}, 40960, v{aWO+ct}", 15: f"v_subrev_u32 v{aWO+ct}, s{sDW}, v{aWO+ct}"}[s] + "\n"
    return t + f"ds_read_b64_tr_b16 {V(WOF + 16*(s % RING) + 4*ct + 2*e, 2)}, v{aWO+ct} offset:{8192*(s % 5) + 512*e}"
SF = 15 - OPT["sf"]
OL = [(s, w) for s in range(SF) for w in range(2 if s >= 5 else 1)] + [(s, 1) for s in range(SF, 15)] + [(s, 0) for s in range(SF, 20)]
def oreg(k): return OF + 4 * (k % (20 if not OPT["dbg"] & 2 else OPT["ou"]))
def ldO(k):
    s, w = OL[k]
    a(f"buffer_load_dwordx4 {V(oreg(k),4)}, v{aOl2 if w else aOl}, {S(OUT)}, s{sO + s // 5} offen offset:{256*(s % 5)} sc1")
def spin(tag, addr, cmp_, slp=0):
    a(f"{cmp_}\ns_cbranch_vccnz L_sp{tag}\nL_sb{tag}:")
    DEFER.append(f"L_sp{tag}:\n" + (f"s_sleep {slp}\n" if slp else "") + f"v_mov_b32 v1, {addr}\nds_read_b32 v1, v1\ns_waitcnt lgkmcnt(0)\n{cmp_}\ns_cbranch_vccnz L_sp{tag}\ns_branch L_sb{tag}")
def fold(A, B, F):
    for r in range(4): a(f"v_permlane16_swap_b32 v{A+r}, v{B+r}")
    for r in range(4): a(f"v_cndmask_b32 v{F[r]}, v{B+r}, v{A+r}, s[{sM+2*r}:{sM+2*r+1}]")
def softmax(F, P, mid=None, mid2=None):
    m, t = TM, TM + 1
    for r in range(4): a(f"v_fma_f32 v{F+r}, v{F+r}, v{KS+2*r}, v{KS+2*r+1}")
    a(f"v_max3_f32 v{m}, v{F}, v{F+1}, v{F+2}\nv_max_f32 v{m}, v{m}, v{F+3}\nv_mov_b32 v{t}, v{m}\nv_permlane32_swap_b32 v{m}, v{t}\nv_max_f32 v{m}, v{m}, v{t}\nv_mul_f32 v{m}, v{m}, v{CQ}")
    for r in range(4): a(f"v_fma_f32 v{F+r}, v{F+r}, v{CQ}, -v{m}")
    for r in range(4): a(f"v_exp_f32 v{F+r}, v{F+r}")
    if mid: mid()
    a(f"v_add_f32 v{m}, v{F}, v{F+1}\nv_add_f32 v{t}, v{F+2}, v{F+3}\nv_add_f32 v{m}, v{m}, v{t}\nv_mov_b32 v{t}, v{m}\nv_mul_f32 v{F}, v{F}, v{KS}\nv_mul_f32 v{F+1}, v{F+1}, v{KS+2}")
    a(f"v_permlane32_swap_b32 v{m}, v{t}\nv_mul_f32 v{F+2}, v{F+2}, v{KS+4}\nv_add_f32 v{m}, v{m}, v{t}\nv_rcp_f32 v{m}, v{m}\nv_mul_f32 v{F+3}, v{F+3}, v{KS+6}")
    for r in range(4): a(f"v_mul_f32 v{F+r}, v{F+r}, v{m}")
    a(f"v_cvt_pk_bf16_f32 v{F}, v{F}, v{F+1}\nv_cvt_pk_bf16_f32 v{F+1}, v{F+2}, v{F+3}")
    if mid2: mid2()
    for hh in range(2):
        a(f"s_mov_b64 exec, s[{sLO}:{sLO+1}]" if hh == 0 else "s_not_b64 exec, exec")
        for d in range(2): a(f"v_and_b32 v{P+2*hh+d}, v{vM+d}, v{F+d}\nv_bfi_b32 v{P+4+2*hh+d}, v{vM+d}, 0, v{F+d}")
    a("s_mov_b64 exec, -1")
    for d in range(4): a(f"v_permlane16_swap_b32 v{P+d}, v{P+4+d}")
def ymask():
    a(f"s_add_u32 s0, s{sC5}, 1\ns_sub_u32 s1, 5, s{sC5}\ns_min_u32 s0, s0, s1\ns_lshl_b32 s0, s0, 4\ns_sub_u32 s1, 64, s0\ns_cmp_le_u32 s{sC5}, 2\ns_cselect_b32 s1, s1, 16\ns_bfm_b64 s[100:101], s0, s1")
def attention(T):
    helper = T == "h"; doL = T != "e"; doE = T != "l"
    L.reset()
    rid = {}
    KR = ((aKx, 0), (aKy, 0), (aK4, 0), (aKe, 0), (aKe, 40))
    QR = ((aQx, 0, 0), (aQy, 0, 1), (aQ4, 0, 2), (aQe, 0, 3), (aQe, 40, 4), (aQ4 + 2, 0, 2), (aQ4 + 4, 0, 2))
    def rk(i):
        k, o = KR[i]; d = KQ + 4 * i
        L(f"ds_read_b64 {V(d,2)}, v{k} offset:{o}"); L(f"ds_read_b64 {V(d+2,2)}, v{k} offset:{o + 8*PITCH}")
    def rq(i):
        q, o, _ = QR[i]; d = QF + 4 * i
        L(f"ds_read_b64 {V(d,2)}, v{q} offset:{o}"); rid[i] = L(f"ds_read_b64 {V(d+2,2)}, v{q+1} offset:{o}")
    def lg(i):
        L.wait(rid[i]); mfma(SS + (0, 4, 0, 8, 12, 8, 12)[i], KQ + 4 * QR[i][2], QF + 4 * i, "0" if i in (0, 1, 3, 4) else None)
    vid = {}
    vc = [None]
    def vlook():
        if OPT["ord"]: a(f"v_mov_b32 v1, {VCN}"); vc[0] = L("ds_read_b32 v1, v1")
    def vreads():
        if OPT["ord"]: L.wait(vc[0]); spin("v" + T, VCN, "v_cmp_ne_u32 vcc, 4, v1")
        if helper: stamp(4, 3)
        for i, (r_, o) in enumerate(((aVe, 0), (aVe, 40), (aV1, 0), (aV2, 0))):
            if doE or i >= 2:
                L(f"ds_read_b64_tr_b16 {V(VF+4*i,2)}, v{r_} offset:{o}")
                vid[i] = L(f"ds_read_b64_tr_b16 {V(VF+4*i+2,2)}, v{r_} offset:{o + 8*PITCH}")
    def lfold(): fold(SS, SS + 4, [F01, F01 + 1, FL_ + 2, FL_ + 3])
    def lpack(): a(f"v_or_b32 v{FL_}, 0xffff, v{F01}\nv_perm_b32 v{FL_+1}, v{F01+1}, v{F01}, s{sP1}")
    cq = f"v_mul_f32 v{CQ}, {CEXP:#x}, v{CQ}"
    if helper:
        ymask(); a(cq)
        a("s_barrier")
        for i in range(5): rk(i)
        wo_run(NA, NB, "e")
        if OPT["bv"] >= 0: a("s_barrier"); vreads()
        wo_run(NB, N1, "b")
        touch(1)
        mtouch(2)
        a(f"s_setprio {OPT['aprio']}\ns_waitcnt vmcnt({NT + N1 - N0 if OPT['wc'] < 2 else NT})")
        stamp(1, 3)
        a("s_barrier")
        stamp(4); stamp(2, 3)
        if STAGE == "A": a("s_branch L_dumpA")
        rq(0); rq(1); rq(2); rq(3); rq(4); lg(0); rq(5); lg(1); rq(6); lg(2); lg(3); lg(4); lg(5); lg(6); lfold(); lpack()
    elif doL: rk(0); rq(0); rk(1); rq(1); rk(2); rq(2); ymask(); lg(0); lg(1); lg(2); ksread(L); lfold(); lpack()
    else: rk(3); rq(3); rk(4); rq(4); rk(2); rq(5); rq(6); pzero(0, 8); lg(3); lg(4); ksread(L); lg(5); lg(6)
    if doL: lst(f"buffer_store_dwordx4 {V(FL_,4)}, v{aH0s}, {S(OUT)}, s{sLT} offen{{F}}")
    stamp(5); stamp(3, 3)
    if helper: touch(3)
    if helper and OPT["wc"] == 0: wo_run(N1, 20, "c")
    hl = f"buffer_load_dwordx4 {V(HL,4)}, v{aH0l}, {S(OUT)}, s{sLT} offen sc1"
    prefill = lambda: [a(rdWO1(s_, ct, e)) for s_ in range(DEP) for ct in range(4) for e in range(2)] if helper else None
    early = lambda: [ldO(k) for k in range(OPT["ou"])] if helper else None
    late = f"buffer_store_dwordx4 {V(LT,4)}, v{aOs}, {S(OUT)}, s{sLT} offen{{F}}"
    if doE:
        fold(SS + 8, SS + 12, [FE + r for r in range(4)])
        if not helper: L.wait(L.n); a(cq)
        if OPT["vpos"] == 1 or not helper: vlook()
        def mid():
            if helper and OPT["vpos"] == 2: vlook()
            elif not helper or OPT["bv"] < 0: vreads()
            if helper and OPT["wc"] == 1: wo_run(N1, 20, "c")
            if helper and OPT["hlp"] == 0: a(hl)
        softmax(FE, PX, mid, vreads if helper and OPT["vpos"] == 2 else None)
        stamp(5, 3)
        if helper and OPT["hlp"] == 1: a(hl)
        if helper: touch(2)
        L.wait(vid[3])
        for i in range(4): mfma(DM + 4 * i, VF + 4 * i, PX + 4 * (i & 1), "0")
        for i in range(4): a(f"v_cvt_pk_bf16_f32 v{FE+i}, v{DM+2*i}, v{DM+2*i+1}")
        lst(f"buffer_store_dwordx4 {V(FE,4)}, v{aOs}, {S(OUT)}, 0 offen{{F}}")
        stamp(6); stamp(6, 3)
        if T == "e": a(f"s_lshl_b32 s0, s{sWV}, 2\ns_add_u32 s0, s0, {HRD}\nv_mov_b32 v1, s0\nds_read_b32 v1, v1")
        for i in range(4): a(f"v_cvt_pk_bf16_f32 v{LT+i}, v{DM+8+2*i}, v{DM+8+2*i+1}")
        if helper: mtouch(3)
        prefill()
    else:
        vlook(); pzero(8, 16); vreads(); L.wait(L.n); a(cq); a(hl)
        if OPT["wc"] == 2:
            a(f"s_cmp_eq_u32 s{sWV}, 3\ns_cbranch_scc1 L_wl3"); wo_late(N1, 0, 249); a("L_wlb:")
            DEFER.append("L_wl3:\n" + "\n".join(capture(lambda: wo_late(N1, 1, 249))) + "\ns_branch L_wlb")
    if T == "e":
        a("s_waitcnt lgkmcnt(0)"); spin("r", "s0", "v_cmp_eq_u32 vcc, 0, v1", 1)
        execset(0xffff); lst(late); execset(-1)
        stamp(7); stamp(10, 3)
        return
    stamp(7, 3)
    a(f"s_waitcnt vmcnt({1 + NT2 if doE else 2 * (20 - N1) if OPT['wc'] == 2 else 0})\nv_cmp_eq_u32 vcc, -1, v{HL}\ns_cbranch_vccnz L_h0r{T}\nL_h0g{T}:")
    stamp(8, 3)
    DEFER.append(f"L_h0r{T}:\ns_sub_u32 s{sBUD}, s{sBUD}, 1\ns_cbranch_scc1 L_h0x{T}\n{hl}\ns_waitcnt vmcnt(0)\n"
                 f"v_cmp_eq_u32 vcc, -1, v{HL}\ns_cbranch_vccnz L_h0r{T}\ns_branch L_h0g{T}\nL_h0x{T}:\ns_mov_b32 s{sBUD}, 0\ns_branch L_h0g{T}")
    wfl = f"v_mov_b32 v1, {WFL}\nv_mov_b32 v4, 1\ns_mov_b64 exec, 1\nds_add_u32 v1, v4\ns_mov_b64 exec, -1"
    if helper:
        if OPT["wc"] < 2: a(wfl)
    else: a(f"s_lshl_b32 s0, s{sWV}, 2\ns_add_u32 s0, s0, {HRD - 8}\nv_mov_b32 v1, s0\nds_write_b32 v1, v1")
    a(f"v_perm_b32 v{HL}, v{HL}, v{HL+1}, s{sP2}")
    for r in (1, 2, 3, 0): a(f"v_add_f32 v{FL_+r}, v{F01+r if r < 2 else FL_+r}, v{HL+r}")
    if OPT["opos"] == 0: early()
    softmax(FL_, PX + 8, early if OPT["opos"] == 1 else None)
    if OPT["opos"] == 2: early()
    stamp(9, 3)
    mfma(DM, VF + 8, PX + 8, "0"); mfma(DM + 4, VF + 12, PX + 8, "0"); mfma(DM + 8, VF + 12, PX + 12, "0")
    if helper and OPT["wc"] < 2: a("ds_read_b32 v1, v1")
    a("s_mov_b32 exec_lo, 0xffff0000")
    for i in range(4): a(f"v_cvt_pk_bf16_f32 v{LT+i}, v{DM+2*i}, v{DM+2*i+1}")
    a("s_mov_b64 exec, s[100:101]")
    for i in range(2): a(f"v_cvt_pk_bf16_f32 v{LT+2+i}, v{DM+8+2*i}, v{DM+8+2*i+1}")
    execset(-1 if doE else 0xffffffffffff0000)
    lst(late)
    stamp(7); stamp(10, 3)
    if not helper and OPT["wc"] == 2: a("s_mov_b64 exec, -1\ns_waitcnt vmcnt(1)\n" + wfl + "\ns_waitcnt lgkmcnt(0)")
attention("h")
if STAGE == "B": a("s_waitcnt vmcnt(0)"); finish()
pagebreak("h")
SH = 200
U = OPT["ou"]; nO = [U]
def ldOn():
    if nO[0] < len(OL):
        if not OPT["dbg"] & 2: ldO(nO[0])
        nO[0] += 1
L.reset()
stamp(8); stamp(0, 4)
idx = {o: k for k, o in enumerate(OL)}
GR = [[0, 1], [2, 3], [4]] + [[k, k + 1] for k in range(5, 29, 2)] + [[29]]
gof = {k: G for G, g in enumerate(GR) for k in g}
issued = {}
def cmp_(G):
    r = [oreg(k) for k in GR[G]]
    if len(r) == 2: a(f"v_max_u16 v2, v{r[0]}, v{r[1]}\nv_cmp_eq_u16 vcc, -1, v2")
    else: a(f"v_cmp_eq_u16 vcc, -1, v{r[0]}")
def chk_a(G):
    last = GR[G][-1] + 1
    assert nO[0] >= last
    a(f"s_waitcnt vmcnt({nO[0] - last + (last <= U)})"); cmp_(G)
def chk_b(G):
    issued[G] = nO[0]
    a(f"s_cbranch_vccnz L_st{G}\nL_go{G}:")
a(f"s_lshl_b32 s0, s{sT}, 12\ns_add_u32 s0, s0, {EX}\nv_add_u32 v4, s0, v{aL16}\ns_and_b32 s0, s{sT}, 2\ns_lshl_b32 s0, s0, 1\ns_add_u32 s0, s0, {XFL}\nv_mov_b32 v3, s0\nv_mov_b32 v5, 1\ns_waitcnt lgkmcnt(0)")
spin("w", WFL, "v_cmp_ne_u32 vcc, 4, v1")
RQ = [(s, ct, e) for s in range(DEP, 20) for ct in range(4) for e in range(2)]
wid = {(s, ct): 0 for s in range(DEP) for ct in range(4)}
left = {(s, ct): 2 if 5 <= s < 15 else 1 for s in range(20) for ct in range(4)}
def rdn(n):
    for _ in range(n):
        if not RQ: return
        s, ct, e = RQ[0]
        if s >= RING and left[s - RING, ct]: return
        RQ.pop(0); wid[s, ct] = L(rdWO1(s, ct, e))
MS = []
k = 0
while k < 30:
    if k + 1 < 30 and OL[k][0] == OL[k+1][0]: MS += [(kk, ct) for ct in range(4) for kk in (k, k + 1)]; k += 2
    else: MS += [(k, ct) for ct in range(4)]; k += 1
firstm = {}
for m, (k, ct) in enumerate(MS): firstm.setdefault(gof[k], m)
ca = {m - 2: G for G, m in firstm.items() if G}; cb = {m - 1: G for G, m in firstm.items() if G}
lasts = max(m for m, (k, ct) in enumerate(MS) if OL[k][1])
wr = {lasts + 2 + q + (q == 3) * 2: q for q in range(4)}
chk_a(0); chk_b(0)
for m, (k, ct) in enumerate(MS):
    s, w = OL[k]
    if m in ca: chk_a(ca[m])
    if m in cb: chk_b(cb[m])
    while RQ and RQ[0][:2] <= (s, ct): n = len(RQ); rdn(1); assert len(RQ) < n
    if ct == 0 and (not RQ or RQ[0][0] > s) and L.n - wid[s, 3] >= 6: L.wait(wid[s, 3])
    L.wait(wid[s, ct])
    mfma((SH if w else H) + 4 * ct, WOF + 16 * (s % RING) + 4 * ct, oreg(k), "0" if w and s == 5 else None)
    left[s, ct] -= 1
    if (m % 4 == 0 or (m < 20 and m % 4 == 1 and m // 4 >= (3, 0)[OPT["o2"]])) and nO[0] < len(OL): ldOn(); rdn(1)
    elif m in wr: L(f"ds_write_b128 v4, {V(SH + 4*wr[m], 4)} offset:{1024*wr[m]}")
    elif m == lasts + 8: a("s_mov_b64 exec, 1"); L("ds_add_u32 v3, v5"); a("s_mov_b64 exec, -1")
    else: rdn(1 if m + 1 in ca or m + 1 in cb or m in cb else 2)
    if m == 3: stamp(9); stamp(11, 3)
    if m == 59: stamp(12, 3)
    if m % 12 == 11: stamp(1 + m // 12, 4)
assert nO[0] == len(OL)
for G in range(len(GR)):
    t = f"L_st{G}:\ns_sub_u32 s{sBUD}, s{sBUD}, 1\ns_cbranch_scc1 L_sx{G}\n"
    def re():
        for G2 in range(G, min(G + OPT["rsp"], len(GR))):
            for k in GR[G2]:
                if k < issued[G]: ldO(k)
        a("s_waitcnt vmcnt(0)"); cmp_(G)
    t += "\n".join(capture(re))
    t += f"\ns_cbranch_vccnz L_st{G}\ns_branch L_go{G}\nL_sx{G}:\ns_mov_b32 s{sBUD}, 0\ns_branch L_go{G}"
    DEFER.append(t)
a("L_tail:")
stamp(10)
HB, DS1, DS2, E2D, T0, RS = 24, 32, 36, 40, 52, 2
EV1 = OPT['e1']
for i in range(8): a(f"v_cvt_pk_bf16_f32 v{HB+i}, v{H+2*i}, v{H+2*i+1}")
for k in range(2):
    mfma(DS2, HB + 4 * k, HB + 4 * k, "0" if k == 0 else None)
    mfma(DS1, WRF + 4 * k, HB + 4 * k, "0" if k == 0 else None)
a("s_mov_b32 s0, 0x22222222\ns_mov_b32 s1, s0\ns_mov_b32 s44, 0x44444444\ns_mov_b32 s45, s44\ns_mov_b32 vcc_lo, 0x88888888\ns_mov_b32 vcc_hi, 0x88888888")
a(f"s_lshl_b32 s3, s{sC}, 8\ns_add_u32 s3, s3, s{sE2L}\nv_and_b32 v1, 0xf0, v{aL16}")
a(f"v_cndmask_b32 v{DS2}, v{DS2}, v{DS2+1}, s[0:1]\nv_cndmask_b32 v{DS2+2}, v{DS2+2}, v{DS2+3}, vcc\ns_or_b64 vcc, vcc, s[44:45]")
a(f"v_cndmask_b32 v{DS1+2}, v{DS2}, v{DS2+2}, vcc\nv_mov_b32 v{DS1+3}, v{WSP+1}")
execset(0xF0000F0000F0000F)
lst(f"buffer_store_dwordx4 {V(DS1,4)}, v1, {S(WS)}, s3 offen{{F}}")
execset(-1)
for i in range(4): a(f"v_mov_b32 v{E2D+8+i}, 0")
a(f"v_mov_b32 v4, 1.0\ns_mov_b32 s0, 0xbacccccd\ns_mov_b32 s1, 0x3acccccd\nv_mov_b32 v5, 0x3727c5ac\ns_mov_b32 s44, 0xfffff800\nv_mov_b32 v1, {KMAX}")
a(f"v_cmp_le_i32 s[46:47], 0, v{aOUT}")
vL, vB, vK = 68, 69, 70
a(f"s_mul_i32 s48, s{sG}, 1280\ns_lshl_b32 s3, s{sC}, 7\ns_add_u32 s48, s48, s3\ns_lshl_b32 s49, s48, 1\ns_add_u32 s48, s48, s{sRJ}\ns_add_u32 s49, s49, s{sRJ}\ns_add_u32 s49, s49, {R_BASE}")
a(f"s_lshl_b32 s3, s{sG}, 7\ns_add_u32 s3, s3, s{sRJ}\ns_add_u32 s3, s3, {R_KEY}\ns_and_b32 s45, s{sC}, {OPT['kc']}\ns_lshl_b32 s45, s45, 3\ns_add_u32 s45, s45, s{sWV}\nv_mul_u32_u24 v{vK}, 384, v0")
a(f"v_and_b32 v{vB}, 48, v0\nv_lshlrev_b32 v{vL}, 1, v{vB}")
a("L_e2:")
a(f"buffer_load_dwordx4 {V(E2D,4)}, v{aL16}, {S(WS)}, s{sE2L} offen sc1\nbuffer_load_dwordx4 {V(E2D+4,4)}, v{aL16}, {S(WS)}, s{sE2L} offen offset:1024 sc1")
a(f"s_mov_b32 exec_hi, 0\nbuffer_load_dwordx4 {V(E2D+8,4)}, v{aL16}, {S(WS)}, s{sE2L} offen offset:2048 sc1\ns_mov_b32 exec_hi, -1\ns_sub_u32 s{sBUD}, s{sBUD}, 1")
a("s_waitcnt vmcnt(1)")
for e in (0, 2): a(f"v_pk_add_f32 {V(E2D+e,2)}, {V(E2D+e,2)}, {V(E2D+4+e,2)}")
a("s_waitcnt vmcnt(0)")
for e in (0, 2): a(f"v_pk_add_f32 {V(E2D+e,2)}, {V(E2D+e,2)}, {V(E2D+8+e,2)}")
a(f"v_cmp_u_f32 vcc, v{E2D}, v{E2D}\ns_cbranch_scc1 L_e2go\ns_cbranch_vccnz L_e2\nL_e2go:")
stamp(11); stamp(11, 4)
for i in (0, 2, 3, 1): a(f"v_mfma_f32_16x16x4_f32 {V(T0+4*i,4)}, v4, v{E2D+i}, 0")
a(f"v_mul_f32 v6, s0, v{T0}\nv_fma_f32 v7, v{T0+8}, s1, v5\nv_fma_f32 v7, -v6, v6, v7\nv_max_f32 v7, v7, v5\nv_rsq_f32 v{RS}, v7")
a(f"v_fma_f32 v7, v6, v{T0+12}, v{T0+4}\nv_mul_f32 v7, v7, v{RS}\nv_mul_f32 v{RS+1}, v6, v{RS}")
a(f"v_ashrrev_i32 v6, 31, v7\nv_or_b32 v6, 0x80000000, v6\nv_xor_b32 v7, v7, v6\nv_and_or_b32 v7, v7, s44, v{vRK}\nv_cndmask_b32 v7, 0, v7, s[46:47]")
LN, LNB, OB = 72, 88, 96
lnops = [f"v_pk_fma_f32 {V(LN+2*i,2)}, {V(H+2*i,2)}, {V(RS,2)}, {V(RS,2)} op_sel:[0,0,1] op_sel_hi:[1,0,1]" for i in range(8)]
for k in (8, 4, 2, 1)[:OPT["dpn"]]:
    a(lnops.pop(0)); a(lnops.pop(0))
    a(f"v_max_u32_dpp v6, v{7 if k == 8 else 6}, v{7 if k == 8 else 6} row_ror:{k} {DPPM}")
a(f"s_mov_b64 exec, {(1 << (16 >> OPT['dpn'])) - 1}\nds_max_u32 v1, v{6 if OPT['dpn'] else 7}\ns_mov_b64 exec, -1")
for o in lnops: a(o)
for i in range(4): a(f"v_cvt_pk_bf16_f32 v{LNB+i}, v{LN+2*i}, v{LN+2*i+1}")
a("s_waitcnt lgkmcnt(0)\ns_barrier\nds_read_b32 v1, v1")
for i in range(4, 8): a(f"v_cvt_pk_bf16_f32 v{LNB+i}, v{LN+2*i}, v{LN+2*i+1}")
for i in range(8): a(f"v_pk_add_f32 {V(LN+2*i,2)}, {V(LN+2*i,2)}, {V(H+2*i,2)}")
a(f"s_cmp_eq_u32 s45, 4\ns_waitcnt lgkmcnt(0)\nv_cmp_eq_u32 s[46:47], v1, v7\ns_cbranch_scc0 L_nk\ns_mov_b64 exec, 0xffff\nbuffer_store_dword v1, v{vK}, {S(WS)}, s3 offen sc1\nL_nk:")
a("s_and_b64 exec, s[46:47], -1\ns_cbranch_scc0 L_nc")
a(f"buffer_store_dwordx4 {V(LNB,4)}, v{vL}, {S(WS)}, s48 offen sc1\nbuffer_store_dwordx4 {V(LNB+4,4)}, v{vL}, {S(WS)}, s48 offen offset:16 sc1")
a("L_nc:\ns_mov_b64 exec, -1")
stamp(12); stamp(12, 4)
for i in range(8): a(f"v_cvt_pk_bf16_f32 v{OB+i}, v{LN+2*i}, v{LN+2*i+1}")
for hh in range(2):
    for d in range(2): a(f"v_permlane16_swap_b32 v{OB+4*hh+d}, v{OB+4*hh+2+d}")
osc = " " + OPT["osc"].replace("_", " ").replace("plain", "")
a("s_not_b64 exec, s[46:47]")
for hh in range(2): a(f"buffer_store_dwordx4 {V(OB+4*hh,4)}, v{aOUT}, {S(OUT)}, 0 offen offset:{64*hh}{osc}")
a("s_and_b64 exec, s[46:47], -1\ns_cbranch_scc0 L_fin")
for hh in range(2): a(f"buffer_store_dwordx4 {V(OB+4*hh,4)}, v{aOUT}, {S(OUT)}, 0 offen offset:{64*hh} sc1")
a("s_waitcnt vmcnt(0)")
for ct in range(4): a(f"buffer_store_dwordx4 {V(LN+4*ct,4)}, v{vB}, {S(WS)}, s49 offen offset:{64*ct} sc1")
a("L_fin:")
if OPT["dbg"] & 128:
    a(f"s_mov_b64 exec, -1\ns_lshl_b32 s3, s2, 3\ns_add_u32 s3, s3, s{sWV}\ns_lshl_b32 s3, s3, 13\ns_add_u32 s3, s3, {DUMP}")
    for i in range(8): a(f"buffer_store_dwordx4 {V(OB,4)}, v{aL16}, {S(WS)}, s3 offen\ns_add_u32 s3, s3, 1024")
finish()
pagebreak(None, False)
deferred("h")

pad("c0")
a("L_h0:")
if OPT["prio"]: a("s_setprio 2")
a(f"v_lshrrev_b32 v1, 3, v0\nv_and_b32 v2, 2, v1\nv_xor_b32 v2, v2, v0\nv_and_b32 v2, 7, v2\ns_lshl_b32 s3, s{sC}, 7\nv_lshl_add_u32 v2, v2, 4, s3")
a(f"v_mul_u32_u24 v3, 3840, v1\nv_add_u32 v{vW}, v3, v2\nv_xor_b32 v{vW+3}, 64, v{vW}\nv_add_u32 v{vW+3}, {8*3840}, v{vW+3}\nv_mov_b32 v{vEA}, 0")
for p in range(2):
    for s_ in (1, 2): a(f"v_add_u32 v{vW+3*p+s_}, {256*s_}, v{vW+3*p}")
def wpieces():
    P = []
    for pp in range(8):
        for s_ in range(3):
            t = f"buffer_load_dwordx4 v{vW+3*(pp&1)+s_}, {S(W)}, s{sXO} offen offset:{1024*s_} lds"
            if s_ == 2 and pp < 7: t += "\ns_addk_i32 m0, 3072"
            if s_ == 2 and pp & 1 and pp < 7: t += f"\ns_add_u32 s{sXO}, s{sXO}, 61440"
            P.append(t)
    return P
stamp(1, 5)
ldWR()
a("s_waitcnt vmcnt(4)")
stamp(2, 5)
a("s_barrier")
a(f"s_mov_b32 s{sI}, 1\ns_mov_b32 s{sRD}, {S0 + SLOT}\nL_wl:")
nextslab(); advslot(sSL); a(f"s_mul_i32 s{sXO}, s{sSB}, 245760\ns_add_u32 m0, s{sSL}, 12288")
for p in wpieces(): a(p)
a(f"s_mov_b32 s0, s{sRD}\ns_mov_b32 s{sRD}, s{sSL}\ns_cmp_eq_u32 s{sXT}, s{sI}\ns_waitcnt vmcnt(24) lgkmcnt(0)\ns_barrier\ns_cbranch_scc0 L_wc\ns_call_b64 s[100:101], L_xcap\nL_wc:")
a(f"s_add_u32 s{sI}, s{sI}, 1\ns_cmp_lt_u32 s{sI}, 9\ns_cbranch_scc1 L_wl")
a("s_branch L_h8")

ACC, XF, WF, ST, CS = 8, 80, 152, 180, 192
CLX = len(a.lines)
pagebreak(None, False)
a("L_cons:")
def clears(fl):
    a("v_mov_b32 v4, -1\nv_mov_b32 v5, -1\nv_mov_b32 v6, -1\nv_mov_b32 v7, -1")
    a(f"v_lshrrev_b32 v1, 3, v0\nv_mul_u32_u24 v1, 2560, v1\nv_and_b32 v2, 0x70, v{aL16}\ns_lshl_b32 s3, s{sC}, 7\ns_add_u32 s3, s3, s{sB0}\nv_add3_u32 v1, v1, v2, s3")
    a(f"s_mul_i32 s0, s{sT}, 20480\ns_add_u32 s1, s0, 81920\ns_add_u32 s3, s{sT}, 8\ns_cmp_lt_u32 s3, s{sNO}\ns_cselect_b32 s3, s1, {OOB:#x}\ns_add_u32 s3, s3, 81920")
    st = "buffer_store_dword v4" if OPT["cdw"] else "buffer_store_dwordx4 v[4:7]"
    if OPT["dbg"] & 8: a("v_bfrev_b32 v1, 1")
    for r in (0, 1, 3): a(f"{st}, v1, {S(OUT)}, s{r} offen{fl}")
    a(f"v_lshrrev_b32 v1, 4, v0\nv_mul_u32_u24 v1, {2560 - 256}, v1\nv_add_u32 v1, v1, v{aL16}")
    a(f"s_mul_i32 s1, s{sGID}, 15360\ns_lshl_b32 s3, s{sC}, 8\ns_add_u32 s1, s1, s3\ns_and_b32 s3, s{sT}, 1\ns_mul_i32 s3, s3, 7680\ns_add_u32 s1, s1, s3\ns_add_u32 s1, s1, {E2}")
    a(f"s_cmp_lt_u32 s{sT}, 2\ns_cselect_b32 s1, s1, {OOB:#x}\ns_mov_b32 exec_hi, 0xffff\n{st}, v1, {S(WS)}, s1 offen{fl}\ns_mov_b64 exec, -1")
    return 4
def pf0(p):
    if OPT["pf0"] & 1 and p == OPT["pfp"] % 10:
        a(f"s_cmp_eq_u32 s{sWV}, 0\ns_cbranch_scc0 L_pa\ns_mul_i32 s3, s2, {27*128}\nv_lshlrev_b32 v1, 7, v0\ns_mov_b64 exec, {(1 << 27) - 1:#x}\nbuffer_load_dword v255, v1, {S(WO)}, s3 offen\ns_mov_b64 exec, -1\nL_pa:")
    if OPT["pf0"] & 2 and p == OPT["pfp"] // 10:
        a(f"s_cmp_eq_u32 s{sWV}, 1\ns_cbranch_scc0 L_pb\ns_lshl_b32 s3, s{sC}, 2\ns_add_u32 s3, s3, s{sJ}\ns_sub_u32 s0, s3, 40\ns_cselect_b32 s3, s3, s0\ns_mul_i32 s3, s3, {16*3840}")
        a(f"s_mul_i32 s0, s{sG}, 1280\ns_add_u32 s3, s3, s0\ns_lshl_b32 s0, s{sC}, 7\ns_add_u32 s3, s3, s0\nv_mul_u32_u24 v1, 3840, v0\ns_mov_b64 exec, 0xffff\nbuffer_load_dword v255, v1, {S(W)}, s3 offen\ns_mov_b64 exec, -1\nL_pb:")
pf0(0)
if OPT["cpos"] == 2: ncl = clears(" sc1" if OPT["clr"] else "")
def w1():
    a(f"s_cmp_eq_u32 s{sSB}, 9\ns_cselect_b32 s3, {-10*245760}, 0\ns_add_u32 s3, s3, 245760\nv_add_u32 v254, s3, v254\ns_mul_i32 s3, s{sT}, 3072\ns_add_u32 m0, s3, {S0 + SLOT + 12288}\ns_mov_b32 s0, {32*3840}")
    for h in range(2):
        for k in range(3):
            a(f"buffer_load_dwordx4 v254, {S(W)}, {'s0' if h else 0} offen offset:{1280*k} lds")
            if (h, k) != (1, 2): a(f"s_addk_i32 m0, {-256 if k < 2 else 12288 + 512}")
suB(); suC()
if OPT["w1"] == 0: w1()
if OPT["wc"] == 2: wo_setup(249)
suD(0); suE(0)
a(f"s_lshl_b32 s3, s{sT}, 5\nv_xor_b32 v3, s3, v3\nv_mul_u32_u24 v4, 3072, v2\nv_add_u32 v3, v3, v4\nv_add_u32 v{vAW}, {S0 + 12288}, v3\ns_mov_b32 s{sI}, 0")
stamp(0, 5)
if OPT["cpos"] == 0: ncl = clears(" sc1" if OPT["clr"] else "")
stamp(1, 5)
a(f"v_mov_b32 v3, 0\nv_lshlrev_b32 v2, 2, v0\ns_mov_b32 exec_hi, 0")
a(f"ds_write_b32 v2, v3 offset:{MODE}\nds_write_b32 v2, v3 offset:{MODE + 8*PITCH}\ns_mov_b64 exec, -1")
a("v_and_b32 v1, 15, v0\nv_lshrrev_b32 v2, 4, v0")
a(f"v_lshrrev_b32 v3, 1, v1\nv_xor_b32 v3, v3, v2\nv_lshlrev_b32 v3, 4, v3\nv_lshl_add_u32 v3, v1, 7, v3\nv_add_u32 v{vAX0}, {S0}, v3\nv_xor_b32 v{vAX1}, 64, v{vAX0}")
a(f"v_mul_u32_u24 v3, {PITCH}, v1\nv_lshl_add_u32 v3, v2, 3, v3\ns_lshl_b32 s3, s{sT}, 5\ns_add_u32 s3, s3, {QB}\nv_add_u32 v{vSW}, s3, v3")
a(f"v_lshlrev_b32 v{vSTR}, 4, v1")
assert STATS == 0
if OPT["pg"]:
    for k in range(4): a(f"s_cmp_eq_u32 s{sWV}, {k}\ns_cbranch_scc0 L_cw{k}"); warm("c0", k, 4); a(f"L_cw{k}:")
pf0(1)
if OPT["w1"] == 1: w1()
if OPT["cpos"] == 1: ncl = clears(" sc1" if OPT["clr"] else "")
assert OPT["cpos"] == 1
a(f"s_cmp_lt_u32 s{sWV}, 2\ns_cselect_b32 s{sXT}, s{sXT}, 99")
a(f"s_mov_b32 s{sRD}, {S0}\ns_min_u32 s{sEV}, s{sXT}, {E1_}\ns_waitcnt vmcnt({ncl + 6}) lgkmcnt(0)")
def rdW(d, s_, ks):
    L(f"ds_read_b64_tr_b16 {V(d,2)}, v{vAW} offset:{12288*ks + 1024*s_}")
    return L(f"ds_read_b64_tr_b16 {V(d+2,2)}, v{vAW} offset:{12288*ks + 1024*s_ + 512}")
def rdX(d, t, ks): return L(f"ds_read_b128 {V(d+4*t,4)}, v{vAX0+ks} offset:{2048*t}")
def acc(s_, t): return ACC + 4 * (6 * s_ + t)
stamp(2); stamp(2, 5)
SEG = (1, 0, 2) if OPT['ord'] else (1, 2, 0)
PRE = OPT["pre"]
def rdlist(ph):
    o = []
    def w(s_):
        d = WV2 if (ph, s_) == (1, 1) else WF + 12 * ph + 4 * s_
        for e in range(2): o.append((("w", ph, s_), f"ds_read_b64_tr_b16 {V(WF+12*ph+4*s_+2*e,2)}, v{vAW} offset:{12288*ph + 1024*s_ + 512*e}"))
    w(SEG[0])
    for t in range(6): o.append((("x", ph, t), f"ds_read_b128 {V(XF+24*ph+4*t,4)}, v{vAX0+ph} offset:{2048*t}"))
    w(SEG[1]); w(SEG[2])
    return o
WV2 = WF + 24
def step(first):
    a("s_barrier")
    stampi(0)
    L.reset(); ids = {}
    M = [(s_, t) for s_ in SEG for t in range(6)]
    seq = ([] if first else [(1, "o") + m for m in M[PRE:]]) + [(0, "n") + m for m in M] + [(1, "n") + m for m in M[:PRE]]
    no = 0 if first else 18 - PRE
    pend = rdlist(0); p1 = rdlist(1)
    def rd(n=1):
        for _ in range(n):
            if pend: k, tx = pend.pop(0); ids[k] = L(tx)
    rd(12 if first else 2)
    fill = [f"s_add_u32 s3, s{sRD}, {SLOT}\ns_cmp_eq_u32 s3, {S0 + 4*SLOT}", f"s_cselect_b32 s3, {S0}, s3\ns_sub_u32 s{sDL}, s3, s{sRD}",
            f"s_mov_b32 s{sRD}, s3\nv_add_u32 v{vAX0}, s{sDL}, v{vAX0}", f"v_add_u32 v{vAW}, s{sDL}, v{vAW}\nv_add_u32 v{vAX1}, s{sDL}, v{vAX1}"]
    if not first: fill.append(f"s_cmp_eq_u32 s{sI}, s{sEV}\ns_cbranch_scc1 L_ev\nL_evb:")
    fill.append("STAMP"); fill.append(f"s_add_u32 s{sI}, s{sI}, 1\ns_cmp_lt_u32 s{sI}, 9"); fill.append(f"s_waitcnt vmcnt({ncl}) lgkmcnt(0)" if first else "s_waitcnt lgkmcnt(0)")
    for n, (ph, kd, s_, t) in enumerate(seq):
        if n == no: pend += p1
        if kd == "n":
            need = max(ids["x", ph, t], ids["w", ph, s_])
            if s_ == SEG[0] and t == 0 and L.n - ids.get(("x", ph, 5), L.n) >= 4: need = ids["x", ph, 5]
            L.wait(need)
        mfma(acc(s_, t), WF + 12 * ph + 4 * s_, XF + 24 * ph + 4 * t, "0" if first and ph == 0 else None)
        if pend: rd()
        elif n >= no and fill and (len(fill) > 1 or n >= len(seq) - 2):
            f = fill.pop(0)
            if f == "STAMP": stampi(1)
            else: a(f)
    for f in fill: stampi(1) if f == "STAMP" else a(f)
step(1)
CL0 = len(a.lines)
pagebreak("c0")
a("L_cloop:")
step(0)
a("s_cbranch_scc1 L_cloop")
L.reset(); ids = {}
def wreg(ks, s_): return WV2 if (ks, s_) == (1, 1) else WF + 12 * ks + 4 * s_
later = []
def lw(ks, s_):
    for e in range(2): later.append((("w", ks, s_), f"ds_read_b64_tr_b16 {V(wreg(ks,s_)+2*e,2)}, v{vAW} offset:{12288*ks + 1024*s_ + 512*e}"))
def lx(ks):
    for t in range(6): later.append((("x", ks, t), f"ds_read_b128 {V(XF+48*ks+4*t,4)}, v{vAX0+ks} offset:{2048*t}"))
lw(0, 1); lx(0); lw(1, 1); lx(1); lw(0, SEG[1]); lw(0, SEG[2])
def rd_later(n=1):
    for _ in range(n):
        if later: k, tx = later.pop(0); ids[k] = L(tx)
def old(s_, t): mfma(acc(s_, t), WF + 12 + 4 * s_, XF + 24 + 4 * t)
def new(s_, ks, t):
    L.wait(max(ids["w", ks, s_], ids["x", ks, t])); mfma(acc(s_, t), wreg(ks, s_), XF + 48 * ks + 4 * t)
def mlist(s_): return [(s_, "o", t) for t in range(6)] + [(s_, ks, t) for ks in range(2) for t in range(6)]
def mm(q):
    s_, k, t = q.pop(0)
    if k != "o" and ("w", k, s_) not in ids: rd_later(9)
    old(s_, t) if k == "o" else new(s_, k, t)
    if k == "o" and t == 5 and s_ != 1: lw(1, s_)
def fixup(s_, q, per):
    for r in range(4):
        a(f"v_mov_b32_dpp v{CS+r}, v{acc(s_,0)+r} row_newbcast:0 {DPPM}")
    wr = None
    for t in range(6):
        A = acc(s_, t); st = V(ST + 2 * t, 2)
        if per or not OPT["pk"]:
            ops = [f"v_fmac_f32 v{A+h}, v{CS+h}, v{ST+2*t}" for h in range(4)]
        else:
            ops = [f"v_pk_fma_f32 {V(A+h,2)}, {V(CS+h,2)}, {st}, {V(A+h,2)} op_sel_hi:[1,0,1]" for h in (0, 2)]
        ops += [f"v_cvt_pk_bf16_f32 v{A}, v{A}, v{A+1}", f"v_cvt_pk_bf16_f32 v{A+1}, v{A+2}, v{A+3}"]
        for i, o in enumerate(ops):
            if q and ((per >= 2 and i == 3) or (per >= 3 and i == 0)): mm(q)
            a(o)
        if q and per >= 1: mm(q)
        if (s_, t) in ((SEG[1], OPT["bk"]), (SEG[2], OPT["bv"])): L.wait(L.n - t); a("s_barrier")
        L(f"ds_write_b64 v{vSW}, {V(A,2)} offset:{TSTR*s_ + 16*PITCH*t}")
km, qm, vm = mlist(1), mlist(SEG[1]), mlist(SEG[2])
a(f"v_mov_b32 v1, {MODE}")
sr = ["ds_read_b32 v1, v1"] + [f"ds_read2_b64 {V(ST+2*t,4)}, v{vSTR} offset0:{32*t} offset1:{32*t + 32}" for t in range(0, 6, 2)]
for i in range(PRE):
    s_, _, t = (km if i < 6 else qm if i < 12 else vm).pop(0)
    if t == 5 and s_ != 1: lw(1, s_)
for o in sr: a(o)
a(f"s_waitcnt lgkmcnt(0)\nv_readfirstlane_b32 s{sMODE}, v1\ns_barrier")
stamp(3); stamp(9, 2); stamp(0, 3)
if not OPT["clr"]: a(f"s_cmp_eq_u32 s{sMODE}, 1\ns_cbranch_scc0 L_gs\nL_gsb:")
rd_later(2)
n = 0
for q in (km, qm, vm):
    while q[0][1] == "o" and (n < 6 or q is km): mm(q); rd_later(); n += 1
rd_later(2)
while km: mm(km); rd_later()
mm(qm); rd_later(9)
assert not later
fixup(1, qm, -(-len(qm) // 6))
while qm: mm(qm)
mm(vm)
fixup(SEG[1], vm, -(-len(vm) // 6) if not OPT["ord"] else OPT["vq"])
if not OPT["ord"]:
    while vm: mm(vm)
    fixup(0, [], 0)
else:
    for _ in range(2):
        if vm: mm(vm)
    a(f"s_setprio {OPT['vprio']}")
stamp(1, 3)
a("s_waitcnt lgkmcnt(0)\ns_barrier")
stamp(4); stamp(2, 3)
if OPT["ord"]:
    L.done = L.n
    a(f"v_mov_b32 v1, {VCN}\nv_mov_b32 v2, 1")
    while vm: mm(vm)
    fixup(2, [], 0)
    a("s_mov_b64 exec, 1\nds_add_u32 v1, v2\ns_mov_b64 exec, -1\ns_setprio 0")
    stamp(4, 3)
if STAGE == "A":
    a("L_dumpA:")
    a(f"s_lshl_b32 s3, s{sWV}, 10\nv_add_u32 v1, s3, v{aL16}\ns_mul_i32 s3, s2, 49152\ns_add_u32 s3, s3, {DUMP}")
    for i in range(6):
        a(f"ds_read_b128 v[16:19], v1 offset:{8192*i}\ns_waitcnt lgkmcnt(0)\nbuffer_store_dwordx4 v[16:19], v1, {S(WS)}, s3 offen\ns_waitcnt vmcnt(0)\ns_add_u32 s3, s3, 8192")
    finish()
a(f"s_cmp_lt_u32 s{sWV}, 2\ns_cbranch_scc0 L_c23")
attention("e")
if STAGE == "B": a("s_waitcnt vmcnt(0)"); finish()

ldWR(); hinit()
a(f"s_lshl_b32 s0, s{sWV}, 13\ns_add_u32 s0, s0, {EX}\nv_add_u32 v4, s0, v{aL16}\ns_lshl_b32 s0, s{sWV}, 2\ns_add_u32 s0, s0, {XFL}\ns_waitcnt vmcnt(0)")
wrprep(XR)
a("v_mov_b32 v2, s0\nL_fx:")
if OPT["fsl"]: a(f"s_sleep {OPT['fsl']}")
a("ds_read_b32 v1, v2\ns_waitcnt lgkmcnt(0)\nv_cmp_ne_u32 vcc, 2, v1\ns_cbranch_vccnz L_fx")
stamp(9); stamp(9, 4)
if OPT["lprio"]: a(f"s_setprio {OPT['lprio']}")
for q in range(8): a(f"ds_read_b128 {V(OF+4*q,4)}, v4 offset:{1024*q}")
for q in range(8):
    a(f"s_waitcnt lgkmcnt({7-q})")
    for e in range(4): a(f"v_add_f32 v{H+4*(q&3)+e}, v{H+4*(q&3)+e}, v{OF+4*q+e}")
stamp(10, 4)
a("s_branch L_tail")
deferred()
CL1 = len(a.lines)
pad("h")
a("L_c23:")
attention("l")
if STAGE == "B": a("s_waitcnt vmcnt(0)")
finish()
deferred("h")
CL2 = len(a.lines)
pad("h")
a(f"L_ev:\ns_cmp_eq_u32 s{sI}, {EV1}\ns_cbranch_scc0 L_ev1\ns_waitcnt vmcnt(0)\nL_ev1:\ns_max_u32 s{sEV}, s{sXT}, {EV1}")
a(f"s_cmp_eq_u32 s{sI}, s{sXT}\ns_cbranch_scc0 L_evb\ns_sub_u32 s0, s{sRD}, s{sDL}"); capt("s0"); a("s_branch L_evb")
if not OPT["clr"]:
    a("L_gs:")
    clears(" sc1")
    a("s_waitcnt vmcnt(0)\ns_barrier\ns_barrier\ns_branch L_gsb")

if OPT["pg"]:
    mv_ = a.lines[CL2:]; mw_ = a.lines[CL1:CL2]; del a.lines[CL1:]; a.lines[CL0+1:CL0+1] = mv_; a.lines[CLX:CLX] = mw_

GATE, UP, DOWN, SM = 4, 8, 12, 28
sMm = 36
GSL = 42240; NGS = 3; MISC = NGS * GSL
SSZ = 8448
ACTB, MZ, WINB, LNL = MISC, MISC + 192, MISC + 256, MISC + 512
GF, DF, GA, XS, IDX = 8, 168, 228, 236, 7
a("L_moe:")
a(f"s_cmp_ge_u32 s{sU}, 32\ns_cbranch_scc1 L_end")
a(f"s_lshr_b32 s{sWV}, s{sWV}, 6\nv_and_b32 v0, 63, v0\ns_lshl_b32 s{sMm}, s{sJ}, 1\ns_add_u32 s{sMm}, s{sMm}, s{sU}\ns_sub_u32 s{sMm}, s{sMm}, 30\ns_mov_b32 s{sBUD}, {BUDGET}")
a("v_lshlrev_b32 v6, 4, v0\nv_mov_b32 v132, 0\nv_mov_b32 v133, 0\nv_mov_b32 v144, 0\ns_waitcnt lgkmcnt(0)")
mksrd(WS, "ws", 1 << 28); mksrd(DBG, "dbg", 256); mksrd(GATE, "gate", 640 * 3072); mksrd(UP, "up", 640 * 3072); mksrd(DOWN, "down", 1536 * 1280); mksrd(OUT, "out", 2048 * 1280)
stamp(0)
a("v_mov_b32 v8, -1\nv_mov_b32 v9, -1\nv_mov_b32 v10, -1\nv_mov_b32 v11, -1")
a(f"s_lshl_b32 s0, s{sMm}, 14\ns_lshl_b32 s3, s{sWV}, 11\ns_add_u32 s0, s0, s3\ns_add_u32 s0, s0, {RJ}")
for i in range(2): a(f"buffer_store_dwordx4 v[8:11], v6, {S(WS)}, s0 offen offset:{1024*i} sc1")
def rootup(n):
    a(f"s_waitcnt vmcnt({n})\ns_barrier\ns_cmp_eq_u32 s{sWV}, 0\ns_cbranch_scc0 L_nroot")
    a(f"s_lshl_b32 s0, s{sMm}, 4\nv_mov_b32 v8, 1\ns_mov_b64 exec, 1\nbuffer_store_dword v8, off, {S(DBG)}, s0 sc1")
    if OPT["ddie"] >= 0: a(f"v_mov_b32 v9, s98\nbuffer_store_dword v9, off, {S(DBG)}, s0 offset:4 sc1")
    a("s_mov_b64 exec, -1\nL_nroot:")
if STAGE != "F": rootup(0); finish()
vGX, vGS, vRX, vRS = 4, XS + 13, XS + 14, XS + 15
sB5, sKO = 44, 45
a(f"s_and_b32 s{sB5}, s{sMm}, 1\ns_mul_i32 s0, s{sJ}, 384\ns_lshl_b32 s1, s{sB5}, 8\ns_add_u32 s1, s1, s0\ns_mul_i32 s3, s{sWV}, {8*3072}\ns_add_u32 s1, s1, s3")
a(f"v_lshrrev_b32 v1, 3, v0\nv_mul_u32_u24 v1, 3072, v1\ns_lshr_b32 s3, s{sWV}, 1\nv_xor_b32 v2, s3, v0\nv_and_b32 v2, 7, v2\nv_lshl_add_u32 v1, v2, 4, v1\nv_add_u32 v{vGX}, s1, v1\nv_xor_b32 v{vGX+1}, 64, v{vGX}")
a(f"s_lshl_b32 s1, s{sB5}, 6\ns_add_u32 s0, s0, s1\ns_and_b32 s3, s{sWV}, 3\ns_mul_i32 s1, s3, {16*3072}\ns_add_u32 s0, s0, s1\ns_add_u32 s0, s0, 128")
a(f"v_lshrrev_b32 v1, 2, v0\nv_mul_u32_u24 v1, 3072, v1\nv_xor_b32 v2, s3, v0\nv_and_b32 v2, 3, v2\nv_lshl_add_u32 v1, v2, 4, v1\nv_add_u32 v{vGS}, s0, v1")
a(f"s_cmp_lt_u32 s{sWV}, 4\ns_cselect_b64 s[{SM}:{SM+1}], s[{GATE}:{GATE+1}], s[{UP}:{UP+1}]\ns_cselect_b32 s62, 0, 128\ns_mov_b32 s{SM+2}, {640*3072:#x}\ns_mov_b32 s{SM+3}, 0x20000")
a(f"s_lshl_b32 s61, s{sWV}, 10\ns_add_u32 s62, s62, s61\ns_mul_i32 s{sB5}, s{sB5}, {5*64*3072}\ns_mul_i32 s46, s{sMm}, {96*1280}")
def koff(i): a(f"s_add_u32 s{sKO}, s{sB5}, {i*64*3072}" if i < 5 else f"s_sub_u32 s{sKO}, {i*64*3072}, s{sB5}")
def dissue(hh, i, sl):
    a(f"s_lshl_b32 s3, s{sWV}, 6\ns_addk_i32 s3, {512*i}\nv_add_u32 v1, s3, v0\nv_mul_u32_u24 v2, 52429, v1\nv_lshrrev_b32 v2, 22, v2")
    a(f"v_and_b32 v3, 3, v2\nv_lshlrev_b32 v3, 1, v3\nv_and_or_b32 v3, v2, 8, v3\nv_xor_b32 v1, v1, v3\nv_lshlrev_b32 v1, 4, v1")
    a(f"s_add_u32 m0, s61, {sl + 8192*i}\ns_add_u32 s3, s46, {40960*hh}\nbuffer_load_dwordx4 v1, {S(DOWN)}, s3 offen lds")
UN = [[("x", i), ("s", i)] for i in range(5)] + [[("x", 5), ("x", 6)], [("x", 7), ("x", 8)], [("x", 9)]]
SU, DU = [[("s", i) for i in range(5, 10)]], [[("d", h)] for h in range(3)]
UN = {0: UN + DU + SU, 1: UN + SU + DU, 2: UN[:6] + SU + UN[6:] + DU}[OPT["uord"]]
def place(u):
    o = (u % NGS) * GSL; r = []
    for kd, i in UN[u]: r.append((kd, i, o)); o += {"x": 16384, "s": SSZ, "d": 40960}[kd]
    return r
def uissue(u):
    n = 0
    for kd, i, o in place(u):
        if kd == "d":
            for k in range(5): dissue(i, k, o)
            n += 5; continue
        koff(i)
        if kd == "x":
            for m_, srd_ in ((0, GATE), (1, UP)): a(f"s_add_u32 m0, s61, {o + 8192*m_}\nbuffer_load_dwordx4 v{vGX+m_}, {S(srd_)}, s{sKO} offen lds")
            n += 2
        else: a(f"s_add_u32 m0, s62, {o}\nbuffer_load_dwordx4 v{vGS}, {S(SM)}, s{sKO} offen lds"); n += 1
    return n
a(f"s_cmp_lt_u32 s{sWV}, {OPT['rw']}\ns_cbranch_scc1 L_r0")
n0 = uissue(0)
a(f"s_waitcnt vmcnt({n0})\ns_barrier\ns_branch L_r1\nL_r0:")
rootup(0)
uissue(0)
a("L_r1:")
nI = {1: uissue(1)}
a("v_lshrrev_b32 v1, 5, v0\nv_bfe_u32 v2, v0, 2, 1\nv_lshl_add_u32 v1, v1, 2, v2\nv_bfe_u32 v2, v0, 4, 1\nv_bfe_u32 v3, v0, 3, 1\nv_lshl_add_u32 v3, v3, 1, v2\nv_lshl_add_u32 v1, v3, 4, v1")
a(f"v_xor_b32 v3, s{sWV}, v3\nv_and_b32 v2, 1, v0\nv_lshlrev_b32 v2, 3, v2\nv_lshl_add_u32 v2, v3, 4, v2\nv_bfe_u32 v3, v0, 1, 1")
a(f"v_lshl_add_u32 v{vRS}, v1, 6, v2\nv_mul_u32_u24 v8, 4224, v3\nv_add_u32 v{vRS}, v{vRS}, v8")
a(f"v_lshl_add_u32 v{vRX}, v1, 7, v2\nv_mul_u32_u24 v8, {8192 + 64}, v3\nv_xor_b32 v{vRX}, v{vRX}, v8")
vXS, vACT, vA1, vA2, vE4 = 252, 253, 254, 255, 5
for i in range(8): a(f"v_mov_b32 v{GA+i}, 0")
a(f"v_mov_b32 v1, 0x4444\nv_mov_b32 v2, 0xeeee\ns_mov_b32 vcc_lo, 0xaaaaaaaa\ns_mov_b32 vcc_hi, 0xaaaaaaaa\nv_cndmask_b32 v{IDX}, v1, v2, vcc")
a(f"v_and_b32 v1, 48, v0\nv_and_b32 v2, 1, v0\nv_lshlrev_b32 v2, 4, v2\nv_lshl_add_u32 v{vXS}, v1, 1, v2\nv_add_u32 v{vA1}, {ACTB}, v{vXS}\nv_add_u32 v{vXS}, {LNL}, v{vXS}")
a(f"v_add_u32 v1, {ACTB + 128}, v1\nv_mov_b32 v2, {MZ}\nv_cndmask_b32 v{vA2}, v1, v2, vcc\nv_mov_b32 v3, 0\nv_lshl_add_u32 v2, v0, 2, v2\ns_mov_b32 exec_hi, 0\nds_write_b32 v2, v3\ns_mov_b64 exec, -1")
a(f"s_and_b32 s3, s{sMm}, 1\ns_cselect_b32 s0, 4, 0\ns_cselect_b32 s1, -4, 8\ns_add_u32 s0, s0, s{sWV}\nv_bfe_u32 v1, v0, 4, 1\nv_mul_i32_i24 v1, s1, v1\nv_add_u32 v1, s0, v1")
a("v_lshrrev_b32 v2, 1, v1\nv_lshlrev_b32 v2, 2, v2\nv_and_or_b32 v2, v1, 1, v2\nv_and_or_b32 v2, v0, 2, v2\nv_bfe_u32 v3, v0, 2, 1\nv_lshl_add_u32 v2, v2, 1, v3")
a(f"v_and_b32 v3, 1, v0\nv_lshl_add_u32 v2, v2, 1, v3\nv_and_b32 v3, 7, v0\nv_lshl_add_u32 v3, v1, 3, v3\nv_cmp_gt_u32 vcc, 8, v1\nv_cndmask_b32 v2, v3, v2, vcc\nv_lshlrev_b32 v2, 1, v2\nv_add_u32 v{vACT}, {ACTB}, v2")
a(f"s_lshl_b32 s47, s{sWV}, 15\ns_lshl_b32 s3, s{sMm}, 6\ns_add_u32 s47, s47, s3\ns_add_u32 s47, s47, {RJ + R_E4}")
a(f"v_lshrrev_b32 v1, 2, v0\nv_and_b32 v2, 3, v0\nv_lshlrev_b32 v2, 4, v2\nv_lshl_add_u32 v2, v1, 10, v2\nv_lshlrev_b32 v1, 4, v1\nv_add_u32 v1, {4096 - 64}, v1\ns_mov_b64 vcc, 0xffff\nv_cndmask_b32 v{XS+10}, v1, v2, vcc")
a(f"s_cmp_lt_u32 s{sWV}, 4\ns_cselect_b32 s50, 0x00ff0000, 0\ns_or_b32 s50, s50, 0xff\ns_mov_b32 s51, 0")
sFT, sFE, sWIN, sXS = 52, 53, 54, 55
a(f"s_sub_u32 s3, s{sWV}, 4\ns_lshl_b32 s3, s3, 4\ns_add_u32 s{sFT}, s3, s{sMm}\ns_mul_i32 s3, s{sFT}, 52\ns_lshr_b32 s3, s3, 8\ns_mul_i32 s3, s3, {RJS - 5120}\ns_lshl_b32 s{sFE}, s{sFT}, 10\ns_add_u32 s{sFE}, s{sFE}, s3\ns_add_u32 s{sFE}, s{sFE}, {RJ + R_E4}")
vFC, vFB, vSG, FD = 128, 129, 130, 40
a(f"s_mov_b32 s49, {BUDGET >> 2}\ns_mov_b32 s63, 0")
a(f"s_mul_i32 s3, s{sFT}, 52\ns_lshr_b32 s3, s3, 8\ns_mul_i32 s0, s3, 5\ns_sub_u32 s0, s{sFT}, s0\ns_mul_i32 s3, s3, 80\ns_lshl_b32 s1, s0, 2\ns_cmp_eq_u32 s0, 4\ns_cselect_b32 s1, 64, s1\ns_cselect_b32 s0, 0, 4\ns_cselect_b32 s48, 2, 0\ns_add_u32 s3, s3, s1")
a(f"v_bfe_u32 v1, v0, 4, 1\nv_lshrrev_b32 v2, 5, v0\nv_lshl_add_u32 v1, v1, 1, v2\nv_lshlrev_b32 v1, s0, v1\nv_and_b32 v2, 3, v0\nv_lshlrev_b32 v2, s48, v2\nv_add3_u32 v1, v1, v2, s3\nv_lshlrev_b32 v{vFC}, 1, v1\nv_lshlrev_b32 v{vFB}, 2, v1")
a("v_lshrrev_b32 v1, 4, v0\nv_bfe_u32 v2, v0, 2, 2\nv_lshl_add_u32 v1, v1, 3, v2\nv_mul_u32_u24 v1, 1280, v1\nv_and_b32 v3, 1, v0\nv_lshl_add_u32 v1, v3, 3, v1")
a(f"v_bfe_u32 v2, v0, 2, 3\nv_lshlrev_b32 v2, 1, v2\nv_bfe_u32 v3, v0, 1, 1\ns_mul_i32 s0, s{sWV}, 10")
for i in range(5): a(f"s_add_u32 s3, s0, {2*i}\nv_add_u32 v{XS+i}, s3, v3\nv_xor_b32 v{XS+i}, v{XS+i}, v2\nv_lshl_add_u32 v{XS+i}, v{XS+i}, 4, v1")
for u in range(len(UN)):
    a(f"s_waitcnt vmcnt({nI.get(u + 1, 0) + (u == 6)}) lgkmcnt(0)\ns_barrier")
    if u + 2 < len(UN): nI[u + 2] = uissue(u + 2)
    sk = False
    for kd, i, o in place(u):
        if kd == "d":
            for k in range(5):
                a(f"v_add_u32 v1, {o}, v{XS+k}")
                for e in range(2): a(f"ds_read_b64_tr_b16 {V(DF+12*k+4*i+2*e,2)}, v1 offset:{1280*4*e}")
            continue
        if kd == "s" and not sk: a(f"s_cmp_lt_u32 s{sWV}, 4\ns_cbranch_scc0 L_g{u}"); sk = True
        a(f"v_add_u32 v1, {o}, v{vRX if kd == 'x' else vRS}")
        p = 128 if kd == "x" else 64
        for hh in range(2):
            for e in range(2): a(f"ds_read_b64_tr_b16 {V(GF+80*(kd == 's')+8*i+4*hh+2*e,2)}, v1 offset:{p*(8*hh + 2*e)}")
    if sk: a(f"L_g{u}:")
    if u == 5: a(f"v_and_b32 v{XS+12}, 0xf0, v6\nbuffer_load_dword v{XS+11}, v{XS+12}, {S(DBG)}, 0 offen sc1")
    if u == 7: stamp(1)
stamp(2)
pagebreak()
warm("m", 0, 1)
a(f"v_mov_b32 v{vE4}, v{XS+10}\nv_mov_b32 v4, {WINB}\ns_mov_b32 s61, 0\ns_cmp_lt_u32 s{sWV}, 7\ns_cbranch_scc1 L_np")
a(f"L_rt:\nv_cmp_ne_u32 vcc, 1, v{XS+11}\ns_cbranch_vccz L_rtg\nbuffer_load_dword v{XS+11}, v{XS+12}, {S(DBG)}, 0 offen sc1\ns_waitcnt vmcnt(0)\ns_sub_u32 s{sBUD}, s{sBUD}, 1\ns_cbranch_scc0 L_rt\ns_mov_b32 s{sBUD}, 0\nL_rtg:")
vKA, vKB, sKO_, sAG, sSP = 144, 146, 64, 60, 61
NFL = MZ + 16
a(f"v_bfe_u32 v1, v0, 2, 3\nv_lshlrev_b32 v1, 15, v1\nv_and_b32 v2, 3, v0\nv_min_u32 v2, 2, v2\nv_mul_u32_u24 v3, 1280, v2\ns_mov_b32 s0, {RJ}\nv_add3_u32 v{vKB+1}, v3, v1, s0\nv_lshl_add_u32 v{vKA}, v2, 7, v1\ns_mul_i32 s0, s{sMm}, 384\ns_add_u32 s{sKO_}, s0, {RJ + R_KEY}")
stamp(3)
vRW = 132
a(f"s_and_b32 s3, s{sMm}, 1\ns_mul_i32 s3, s3, 640\nv_add_u32 v{vRW}, s3, v6\nv_subrev_u32 v2, 1280, v{vRW}\nv_min_u32 v{vRW}, v{vRW}, v2\ns_sub_u32 s3, 1024, s3\nv_add_u32 v{vRW+1}, s3, v6")
row = f"s_mov_b32 m0, {LNL}\ns_mov_b64 exec, -1\nbuffer_load_dwordx4 v{vRW}, {S(WS)}, s{sXS} offen sc1 lds\ns_mov_b32 m0, {LNL + 1024}\ns_mov_b64 exec, 0xffff\nbuffer_load_dwordx4 v{vRW+1}, {S(WS)}, s{sXS} offen sc1 lds"
KP, KV = OPT["kp"], 140
KM = 0x77777777
a(f"s_mov_b32 s{sWIN}, 0\ns_mov_b32 s{sXS}, {OOB:#x}\ns_mov_b32 s{sAG}, {1 << 30}\ns_setprio 3")
def look(k):
    a(row); execset(KM)
    a(f"buffer_atomic_umin v{KV+k}, v{vKA}, {S(WS)}, s{sKO_} offen sc0 sc1")
for k in range(KP): a(f"v_mov_b32 v{KV+k}, -1")
for k in range(KP - 1):
    look(k)
    if OPT["ks"]: a(f"s_sleep {OPT['ks']}")
for k in range(KP):
    a(f"L_pl{k}:")
    look((k + KP - 1) % KP)
    if OPT["sp"]: a(f"s_mov_b32 s62, {k}\ns_cmp_eq_u32 s{sSP}, 2\ns_cbranch_scc1 L_ab\nL_pi{k}:")
    a(f"s_waitcnt vmcnt({3 * (KP - 1)})\nv_cmp_lt_u32 vcc, s{sWIN}, v{KV+k}\ns_sub_u32 s{sAG}, s{sAG}, 1\ns_cbranch_vccz L_pw")
    a(f"s_cselect_b32 s0, s{sSP}, 1\ns_max_i32 s{sAG}, s{sAG}, 0")
    a(f"v_cmp_eq_u32 s[58:59], -1, v{KV+k}\nv_mov_b32 v{vKB}, v{KV+k}\ns_andn2_b64 vcc, vcc, s[58:59]\ns_cbranch_scc0 L_pq{k}")
    if OPT["stamps"] == 1: l = a.label("fu"); a(f"s_cmp_eq_u32 s63, 0\ns_cbranch_scc0 {l}"); stamp(12); a(f"{l}:\ns_add_u32 s63, s63, 1")
    stamp(11)
    a(f"s_mov_b64 exec, -1\nv_cndmask_b32 v{vKB}, 0, v{vKB}, vcc\ns_lshl_b32 s{sSP}, s{sSP}, 1")
    a(f"v_max_u32_dpp v{XS}, v{vKB}, v{vKB} row_ror:8 {DPPM}")
    for r in (4, 2, 1): a(f"v_max_u32_dpp v{XS}, v{XS}, v{XS} row_ror:{r} {DPPM}")
    a(f"v_mov_b32 v{XS+1}, v{XS}\ns_mov_b32 s{sAG}, {KP - 1}\nv_permlane16_swap_b32 v{XS}, v{XS+1}\nv_max_u32 v{XS}, v{XS}, v{XS+1}\ns_mov_b32 exec_hi, 0\nv_cmpx_eq_u32 vcc, v{XS}, v{vKB}")
    a(f"ds_write_b64 v4, {V(vKB,2)}\nv_readfirstlane_b32 s{sXS}, v{vKB+1}\nv_readfirstlane_b32 s{sWIN}, v{vKB}\ns_branch L_pl{(k + 1) % KP}\nL_pq{k}:")
    if OPT["sp"]: a(f"s_cmp_eq_u32 s0, 0\ns_cselect_b32 s{sSP}, 1, s{sSP}\ns_cbranch_scc1 L_pg")
    if OPT["ks"]: a(f"s_sleep {OPT['ks']}")
a(f"s_sub_u32 s{sBUD}, s{sBUD}, 1\ns_cbranch_scc0 L_pl0\ns_mov_b32 s{sBUD}, 0\ns_waitcnt vmcnt(0)\ns_cmp_eq_u32 s0, s0")
a("L_pw:")
stamp(4)
a("s_cbranch_scc0 L_pv")
if OPT["sp"]: a(f"s_cmp_eq_u32 s{sSP}, 1\ns_mov_b32 s{sSP}, 0\ns_mov_b64 exec, -1\ns_cbranch_scc1 L_bb")
a("s_branch L_pg\nL_pv:")
for v in range(KP - 1):
    a(f"s_cmp_eq_u32 s{sAG}, {v}\ns_waitcnt vmcnt({1 + 3 * (KP - 2 - v)})\n" + ("s_cbranch_scc1 L_pg" if v < KP - 2 else "s_branch L_pg"))
if OPT["sp"]: a(f"L_ab:\ns_mov_b64 exec, -1\nv_mov_b32 v2, {NFL}\nds_write_b32 v2, v2\ns_branch L_bb")
a(f"L_xf:\n{row}\ns_waitcnt vmcnt(0)\nL_pg:\ns_mov_b64 exec, -1")
def back(l, d):
    if not OPT["sp"]: return "s_branch L_xf"
    return "\n".join(f"s_cmp_eq_u32 s62, {k}\ns_cbranch_scc1 {l}{(k + d) % KP}" for k in range(KP - 1)) + f"\ns_branch {l}{(KP - 1 + d) % KP}"
def wback(p):
    if OPT["wb"] & p: a(f"s_and_b32 s3, s{sMm}, 1\ns_add_u32 s3, s3, s{sWV}\ns_cmp_eq_u32 s3, 8\ns_cbranch_scc0 L_wb{p}\nbuffer_wbl2 sc1\nL_wb{p}:")
a("L_np:\ns_waitcnt lgkmcnt(0)\ns_barrier")
stamp(5)
def smf(d, A, B): a(f"v_smfmac_f32_16x16x64_bf16 {V(d,4)}, {V(A,4)}, {V(B,8)}, v{IDX}")
a(f"s_cmp_lt_u32 s{sWV}, 4\ns_cbranch_scc1 L_xh")
XL = 88
wback(1)
a(f"ds_read_b64 v[2:3], v4")
for s in range(10): a(f"ds_read_b128 {V(XL+4*s,4)}, v{vXS} offset:{128*s}")
def slook(k):
    if OPT["sp"]: a(f"s_cmp_eq_u32 s{sSP}, 0\ns_cbranch_scc1 L_sl{k}"); look(k); a(f"s_mov_b64 exec, -1\nL_sl{k}:")
slook(0)
a(f"s_waitcnt lgkmcnt(10)\nv_readfirstlane_b32 s56, v2\nv_readfirstlane_b32 s57, v3")
fo = [f"s_and_b32 s0, s57, 0x7fff\ns_add_u32 s57, s57, s0\ns_add_u32 s57, s57, {R_BASE}\ns_and_b32 s1, s56, 0xfffff800",
      f"s_ashr_i32 s3, s1, 31\ns_not_b32 s3, s3\ns_or_b32 s3, s3, 0x80000000\ns_xor_b32 s1, s1, s3", f"s_andn2_b32 s56, 2047, s56\ns_mul_i32 s56, s56, 1280\nv_mov_b32 v{vSG}, s1",
      f"v_mul_f32 v{vSG}, 0xbfb8aa3b, v{vSG}", f"v_exp_f32 v{vSG}, v{vSG}", f"v_add_f32 v{vSG}, 1.0, v{vSG}", f"v_rcp_f32 v{vSG}, v{vSG}"]
for s in range(10):
    a(f"s_waitcnt lgkmcnt({9-s})"); smf(GA, XL + 4 * s, GF + 8 * s)
    if fo: a(fo.pop(0))
assert KP == 3
slook(1)
a("s_branch L_xj"); pad("m"); a("L_xh:")
for s in range(4): a(f"ds_read_b128 {V(XS+4*s,4)}, v{vXS} offset:{128*s}")
for s in range(10):
    a(f"s_waitcnt lgkmcnt({min(3, 9-s)})")
    smf(GA, XS + 4 * (s % 4), GF + 8 * s); smf(GA + 4, XS + 4 * (s % 4), GF + 80 + 8 * s)
    if s + 4 < 10: a(f"ds_read_b128 {V(XS+4*(s%4),4)}, v{vXS} offset:{128*(s+4)}")
a("L_xj:\ns_mov_b64 vcc, 0xffff")
a(f"v_add_f32 v1, v{GA}, v{GA+1}\nv_add_f32 v2, v{GA+4}, v{GA+5}\nv_cndmask_b32 v1, v2, v1, vcc")
a("v_cmp_u_f32 vcc, v1, v1\ns_cbranch_vccnz L_xn\nL_xnb:")
DEFER.append(f"L_xn:\nv_mov_b32 v2, {NFL}\nds_write_b32 v2, v2\ns_branch L_xnb")
DEFER.append(f"L_xsr:\ns_sub_u32 s49, s49, 1\ns_cbranch_scc1 L_xsgo\n" + "\n".join(f"v_mov_b32 v{GA+i}, 0" for i in range(8))
             + f"\ns_waitcnt lgkmcnt(0)\ns_barrier\ns_cmp_eq_u32 s{sWV}, 7\ns_cbranch_scc0 L_np\nds_write_b32 v2, v{GA}\ns_cmp_eq_u32 s{sSP}, 2\ns_cbranch_scc0 L_xf\ns_mov_b32 s{sSP}, 0\ns_mov_b64 exec, {KM:#x}\n" + back("L_pi", 0))
stamp(6)
a(f"v_mul_f32 v2, 0xbfb8aa3b, v1\nv_exp_f32 v2, v2\nv_mul_f32_dpp v3, v1, v1 row_ror:8 {DPPM}\nv_add_f32 v2, 1.0, v2\nv_rcp_f32 v2, v2")
a(f"v_mul_f32 v1, v2, v3\nv_cvt_pk_bf16_f32 v1, v1, v1\ns_mov_b64 exec, s[50:51]\nds_write_b16 v{vACT}, v1\ns_mov_b64 exec, -1")
if OPT["sp"]: a(f"s_cmp_eq_u32 s{sSP}, 0\ns_cbranch_scc0 L_pl0")
a(f"L_bb:\nv_mov_b32 v2, {NFL}\ns_waitcnt lgkmcnt(0)\ns_barrier")
DD = 8
a(f"ds_read_b32 v1, v2\nds_read_b128 {V(XS,4)}, v{vA2}\nds_read_b128 {V(XS+4,4)}, v{vA1}\ns_waitcnt lgkmcnt(2)\nv_cmp_ne_u32 vcc, 0, v1\ns_cbranch_vccnz L_xsr\nL_xsgo:")
a("s_waitcnt lgkmcnt(1)")
for i in (4, 0, 1, 2, 3): mfma(DD + 4 * i, XS, DF + 12 * i + 8, "0")
a("s_waitcnt lgkmcnt(0)")
for i in (4, 0, 1, 2, 3): smf(DD + 4 * i, XS + 4, DF + 12 * i)
PS = 32
a(f"v_add_f32 v1, v{DD+16}, v{DD+17}")
for i in range(4):
    a(f"v_add_f32 v{PS+i}, v{DD+4*i}, v{DD+4*i+1}")
for i in range(4): a(f"v_mov_b32_dpp v{PS+i}, v1 quad_perm:[{i},{i},{i},{i}] row_mask:0x2 bank_mask:0xf")
a(f"s_mov_b64 exec, 0x1111ffff\nbuffer_store_dwordx4 {V(PS,4)}, v{vE4}, {S(WS)}, s47 offen sc1\ns_mov_b64 exec, -1")
stamp(7)
if OPT["stamps"] == 1: a(f"s_sub_u32 s3, {(BUDGET >> 2) + 1}, s49\ns_add_u32 s88, s98, s3\ns_add_u32 s90, s98, s63")
wback(2)
a(f"s_cmp_lt_u32 s{sFT}, 40\ns_cbranch_scc0 L_mfin")
FP = OPT["fp"]
FA = OPT["fa"]; NF = 3 if FA else 2
def fld(k):
    d = FD + 8 * k
    a(f"buffer_load_dword v{d+4}, v{vFB}, {S(WS)}, s57 offen sc1")
    if FA:
        for e in (0, 2): a(f"v_mov_b64 {V(d+e,2)}, 0\nbuffer_atomic_or_x2 {V(d+e,2)}, v6, {S(WS)}, s{sFE} offen offset:{4*e} sc0 sc1")
    else: a(f"buffer_load_dwordx4 {V(d,4)}, v6, {S(WS)}, s{sFE} offen sc1")
if OPT["f0"] > 0: a(f"s_sleep {OPT['f0']}")
if OPT["f0"] < 0: a("s_waitcnt vmcnt(0)")
if OPT["f0"] < -1: a(f"s_sleep {-OPT['f0'] - 1}")
for k in range(FP - 1):
    fld(k)
    if OPT["fs"]: a(f"s_sleep {OPT['fs']}")
a("L_fd:")
if OPT["ftop"]: a(f"s_sleep {OPT['ftop']}")
for k in range(FP):
    fld((k + FP - 1) % FP)
    d = FD + 8 * k
    a(f"s_waitcnt vmcnt({NF*(FP-1)})\nv_max3_u32 v1, v{d}, v{d+2}, v{d+4}\nv_cmp_eq_u32 vcc, -1, v1\ns_cbranch_vccz L_fg{k}")
    if OPT["fs"]: a(f"s_sleep {OPT['fs']}")
a(f"s_sub_u32 s{sBUD}, s{sBUD}, 1\ns_cbranch_scc0 L_fd")
for k in reversed(range(FP)):
    d = FD + 8 * k
    a(f"L_fg{k}:\nv_permlane32_swap_b32 v{d}, v{d+1}\nv_permlane32_swap_b32 v{d+2}, v{d+3}\nv_add_f32 v{d}, v{d}, v{d+1}\nv_add_f32 v{d+2}, v{d+2}, v{d+3}")
    a(f"v_permlane16_swap_b32 v{d}, v{d+2}\nv_add_f32 v{d}, v{d}, v{d+2}")
    for r in (4, 8): a(f"v_add_f32_dpp v{d}, v{d}, v{d} row_ror:{r} {DPPM}")
    a(f"v_fma_f32 v8, v{d}, v{vSG}, v{d+4}\nv_cvt_pk_bf16_f32 v8, v8, v8")
    execset(0x000F000F000F000F)
    a(f"buffer_store_short v8, v{vFC}, {S(OUT)}, s56 offen")
    if k: stamp(8); finish(); pad("m")
stamp(8)
a("L_mfin:")
finish()
deferred("m")
if OPT["stamps"]:
    a("L_dump:\ns_mov_b64 exec, -1\ns_memtime s[0:1]\ns_memrealtime s[62:63]\ns_waitcnt lgkmcnt(0)\nv_mov_b32 v2, 0")
    a("v_writelane_b32 v2, s98, 0\nv_writelane_b32 v2, s62, 1\ns_sub_u32 s3, s0, s96\nv_writelane_b32 v2, s3, 2")
    for i in range(NST): a(f"s_sub_u32 s3, s{70+2*i}, s{98 if OPT['rt'] else 96}\ns_cmp_lt_u32 s3, {5000 if OPT['rt'] else 0x100000}\ns_cselect_b32 s3, s3, 0\nv_writelane_b32 v2, s3, {3+i}")
    a(f"s_lshl_b32 s3, s2, 4\ns_add_u32 s3, s3, s{sWV}\ns_lshl_b32 s3, s3, 7\ns_add_u32 s3, s3, {STAMP}\nv_lshlrev_b32 v3, 2, v0\ns_mov_b32 exec_hi, 0")
    if not OPT["dfix"]: a(f"buffer_store_dword v2, v3, {S(WS)}, s3 offen")
    if OPT["diag"] >= 0:
        a(f"s_sub_u32 s3, s2, {OPT['dwg']}\ns_cmp_lt_u32 s3, {OPT['dn']}\ns_cbranch_scc0 L_end\ns_cmp_eq_u32 s{sWV}, {OPT['dwv']}\ns_cbranch_scc0 L_end")
        a(f"s_sub_u32 s3, s{70+2*OPT['diag']}, s{98 if OPT['dib'] < 0 else 70+2*OPT['dib']}\ns_lshl_b32 s3, s3, {2 if OPT['dib'] < 0 else 4}\ns_add_u32 s3, s3, s62")
        if OPT["dfix"]: a(f"s_add_u32 s3, s98, {OPT['dfix']}")
        if OPT["ddie"] >= 0:
            a(f"s_mov_b64 exec, -1\nv_and_b32 v1, 7, v0\nv_lshlrev_b32 v1, 5, v1\nbuffer_load_dword v2, v1, {S(DBG)}, 0 offen offset:4 sc1\ns_waitcnt vmcnt(0)\nv_readlane_b32 s0, v2, 0")
            for k in range(1, 8): a(f"v_readlane_b32 s1, v2, {k}\ns_min_u32 s0, s0, s1")
            a(f"v_readlane_b32 s1, v2, {OPT['ddie']}\ns_sub_u32 s1, s1, s0\ns_and_b32 s1, s1, 0x3ff\ns_lshl_b32 s1, s1, 5\ns_add_u32 s3, s0, {OPT['dfix']}\ns_add_u32 s3, s3, s1")
        a("L_dg:\ns_memrealtime s[62:63]\ns_waitcnt lgkmcnt(0)\ns_sub_u32 s0, s62, s3\ns_cmp_lt_i32 s0, 0\ns_cbranch_scc1 L_dg")
a("L_end:\ns_endpgm")
for i, l in reversed(list(enumerate(a.lines))):
    if l.startswith(";WARM"):
        _, cat, k, n = l.split()
        a.lines[i:i+1] = [f"s_call_b64 s[100:101], {p}" for p in PADS.get(cat, [])[int(k)::int(n)]]
print({k: len(v) for k, v in PADS.items()})
body, nn = hazard.fix(a.lines[body0:], OPT["verbose"])
a.lines[body0:] = body
kernel_desc(a, K, 256)
open(sys.argv[1], "w").write(a.text())
print("nops inserted:", nn, "lines:", len(a.lines))
```

```python
import sys, struct, math
sys.path.insert(0, "gen")
from common import *
import hazard

OPT = dict(stage="F", stamps=0, verbose=0, nl=9, pg=1, kw=0, kr=3, kn=1, kc=15, e2p=0, fmode=1, n0=8, na=2, nb=10, n1=0, o2=0, hp=1, cdw=0, sf=2, dpn=1, hpr=1, fsl=1, bk=0, bv=-1, wc=1, tch=5, bud=1 << 19, rw=5, clr=0, pf0=1, uord=0, mt=1, mx=8, x1=2, w1=1, ppr=0, sp=1, wb=0, pfp=3, te=1, tl=0, t2=0, wsp=0, ws0=2, ord=0, vpos=1, off="27945386", kl=1, ftop=0, mlate=0, rf=1, kp=3, ks=2, ka=1, fp=3, fs=1, fa=0, f0=0, hlp=1, r2=5, e1=1, e2=4, dep=3, dep2=6, opos=1, vq=2, spf=0, pk=1, rsp=1, osc="plain",
           diag=-1, dwg=77, dn=1, dib=-1, dfix=0, ddie=-1, dwv=0, slpk=0, prio=1, ou=6, grp=0, rt=1, dbg=0, wri=5, pre=12, aprio=1, lprio=2, vprio=2, oul=5, xprio=1, cpos=1)
for kv in sys.argv[2:]:
    k, v = kv.split("=")
    assert k in OPT, k
    OPT[k] = int(v) if v.lstrip("-").isdigit() else v
STAGE = OPT["stage"]

E2, SP, RJ, STAMP, DUMP = 0x200000, 0x280000, 0x300000, 0x500000, 0x1000000
RJS = 32768
R_BASE, R_FL, R_E4, R_KEY = 4096, 12288, 16384, 21504
SLOT, S0 = 36864, 8192
PITCH = 144; TSTR = 96 * PITCH
VB = S0 + SLOT - TSTR; KB = VB - TSTR; QB = KB - TSTR
STATS, ZR = 0, 1792
MODE, KMAX, WFL, VCN, HRD, XFL = 1728, 1732, 1744, 1748, 1752, 1760
WOB = S0 + 2 * SLOT
EX = S0 + SLOT + 12288
assert ZR + 8 * PITCH + 64 <= QB
X, W, WO, WS, OUT, DBG, WR = 4, 8, 12, 16, 20, 24, 28
sWV, sJ, sU, sG, sC, sC5, sT, sB0, sBUD, sMODE, sI, sGID = range(32, 44)
KA = dict(x=44, w=46, wo=48, wr=52, gate=54, up=56, down=60, out=62, dbg=64, ws=66)
BUDGET = OPT['bud']
DPPM = "row_mask:0xf bank_mask:0xf"
ONES = 0x3F803F80
OOB = 0x80000000
def f32(x): return struct.unpack("<I", struct.pack("<f", x))[0]
CEXP = f32(20 ** -0.5 * math.log2(math.e))

a = Asm()
def S(d): return f"s[{d}:{d+3}]"
def V(d, n=1): return f"v{d}" if n == 1 else f"v[{d}:{d+n-1}]"
def mksrd(d, name, size): a(f"s_mov_b64 s[{d}:{d+1}], s[{KA[name]}:{KA[name]+1}]\ns_mov_b32 s{d+2}, {size:#x}\ns_mov_b32 s{d+3}, 0x20000")
def execset(m):
    if m == -1: a("s_mov_b64 exec, -1")
    elif m < (1 << 31): a(f"s_mov_b64 exec, {m:#x}")
    else: a(f"s_mov_b32 exec_lo, {m & 0xffffffff:#x}\ns_mov_b32 exec_hi, {m >> 32:#x}")
def smask(d, m): a(f"s_mov_b32 s{d}, {m & 0xffffffff:#x}\ns_mov_b32 s{d+1}, {m >> 32:#x}")
def lanes(f): return sum(1 << l for l in range(64) if f(l))
def mfma(d, A, B, C=None):
    c = V(d, 4) if C is None else (C if isinstance(C, str) else V(C, 4))
    a(f"v_mfma_f32_16x16x32_bf16 {V(d,4)}, {V(A,4)}, {V(B,4)}, {c}")
DEFER = []
def lst(text):
    l = a.label("gl")
    a(f"s_cmp_eq_u32 s{sMODE}, 1\ns_cbranch_scc0 {l}g")
    a(text.replace("{F}", "")); a(f"{l}b:")
    DEFER.append(f"{l}g:\n" + text.replace("{F}", " sc1") + f"\ns_branch {l}b")
PADS = {}
def pad(cat):
    if not OPT["pg"]: return
    l = a.label("pad"); PADS.setdefault(cat, []).append(l); a(f"{l}:\ns_setpc_b64 s[100:101]")
def pagebreak(cat=None, live=True):
    if not OPT["pg"]: return
    l = a.label("pb")
    if live: a(f"s_branch {l}")
    a(".p2align 12")
    if cat: pad(cat)
    a(f"{l}:")
def warm(cat, k, n): a(f";WARM {cat} {k} {n}")
def deferred(cat=None):
    n = 999
    for t in DEFER:
        if cat and n > 110: pad(cat); n = 0
        a(t); n += t.count("\n") + 1
    DEFER.clear()
def capture(fn):
    global a
    class C:
        def __init__(s): s.g = []
        def __call__(s, t=""): s.g.append(t)
        def label(s, b): return a0.label(b)
    a0 = a; a = C(); fn(); g = a.g; a = a0
    return g
class Cnt:
    def __init__(s, name, mx): s.n = 0; s.name = name; s.mx = mx; s.done = 0
    def __call__(s, text): a(text); s.n += 1; return s.n
    def wait(s, i):
        if i <= s.done: return
        k = min(s.mx, s.n - i); a(f"s_waitcnt {s.name}({k})"); s.done = s.n - k
    def reset(s): s.n = 0; s.done = 0
L = Cnt("lgkmcnt", 15)

NST = 13
CLK = "s_memrealtime" if OPT["rt"] else "s_memtime"
def stamp(i, lvl=1):
    if OPT["stamps"] == lvl: a(f"{CLK} s[{70+2*i}:{71+2*i}]")
def stampi(ph):
    if OPT["stamps"] == 2:
        if ph == 0: a(f"{CLK} s[94:95]")
        else: a(f"s_lshl_b32 m0, s{sI}, 1\ns_waitcnt lgkmcnt(0)\ns_movreld_b32 s70, s94")
def finish():
    a("s_branch L_dump" if OPT["stamps"] else "s_endpgm")

a(HEADER.rstrip())
a("; @launch grid=(256,1,1) block=(512,1,1) lds=163840")
if OPT["stamps"] and OPT["grp"]: a("; @groups g0:0-79:2-2 g1:80-159:2-2 g2:160-239:2-2 m7:240-255:7-7")
if OPT["stamps"] and OPT["rt"]: a("; @rt")
if OPT["stamps"] and not OPT["grp"]: a("; @groups c0:0-239:0-0 c2:0-239:2-2 h0:0-239:4-4 h1:0-239:5-5 h3:0-239:7-7 m0:240-255:0-0 m4:240-255:4-4 ma:240-247:7-7 mb:248-255:7-7")
a('.amdgcn_target "amdgcn-amd-amdhsa--gfx950"')
K = NAME + "_kernel"
kernel_begin(a, K, OPT.get("page", 1))
body0 = len(a.lines)
NL = OPT["nl"]
a("s_load_dwordx16 s[44:59], s[0:1], 0\ns_load_dwordx8 s[60:67], s[0:1], 56")
if OPT["stamps"]: a("s_memrealtime s[98:99]\ns_memtime s[96:97]")
a(f"s_lshr_b32 s{sU}, s2, 3\ns_and_b32 s{sJ}, s2, 7\nv_readfirstlane_b32 s{sWV}, v0\ns_getpc_b64 s[100:101]\nL_pc:")
if OPT['dbg'] & 32: a('s_load_dword s79, s[100:101], 0x7000')
a(f"s_mul_i32 s3, s{sU}, {NL}\nv_min_u32 v2, {NL-1}, v0\nv_add_lshl_u32 v2, v2, s3, 7\nv_min_u32 v2, L_end-L_pc, v2")
a(f"s_cmp_ge_u32 s{sU}, 30\ns_cbranch_scc1 L_moe")
a("global_load_dword v255, v2, s[100:101]")
a(f"s_mul_i32 s{sG}, s{sU}, 26\ns_lshr_b32 s{sG}, s{sG}, 8\ns_mul_i32 s3, s{sG}, 10\ns_sub_u32 s{sC}, s{sU}, s3\ns_lshr_b32 s{sWV}, s{sWV}, 6")
OFT = sum(int(ch) << (4 * i) for i, ch in enumerate(str(OPT["off"])))
a(f"s_lshl_b32 s3, s{sJ}, 2\ns_lshr_b32 s3, {OFT:#x}, s3\ns_and_b32 s{sMODE}, s3, 15\ns_add_u32 s3, s{sC}, s{sMODE}\ns_sub_u32 s68, s3, 10\ns_cselect_b32 s69, s3, s68")
a(f"s_mul_i32 s3, s69, 245760\ns_lshl_b32 s68, s{sC}, 7\ns_add_u32 s3, s3, s68")
a("v_lshrrev_b32 v1, 3, v0\nv_lshrrev_b32 v3, 4, v0\nv_and_b32 v2, 2, v1\nv_and_or_b32 v2, v3, 4, v2\nv_xor_b32 v2, v2, v0\nv_and_b32 v2, 7, v2")
a("v_mul_u32_u24 v4, 3840, v1\nv_lshl_add_u32 v4, v2, 4, v4\nv_add_u32 v4, s3, v4")
vX, vSUM, vXD, vSTW, vBIA, vEV, vEA = 24, 28, 36, 52, 53, 54, 55
sM, sLO, sLT, sP1, sP2 = 44, 52, 54, 55, 56
sXT, sE2L, sRJ, sNO, sSL, sXM, sXO, sLX, sRD, sPF, sSPL, sFO, sSB = range(57, 70)
sEV, sDL, sWO_ = sXM, sXO, sFO
a(f"s_mul_i32 s3, s{sWV}, 3072\ns_add_u32 m0, s3, {S0 + 12288}\nv_and_b32 v0, 63, v0\ns_and_b32 s{sT}, s{sWV}, 3")
a(f"s_lshr_b32 s3, s{sJ}, 1\ns_lshl_b32 s3, s3, 9\ns_mul_i32 s68, s{sG}, 176\ns_add_u32 s3, s3, s68\ns_and_b32 s68, s{sJ}, 1\ns_add_u32 s3, s3, s68\ns_mul_i32 s{sB0}, s3, 1280")
a(f"s_sub_u32 s{sI}, s{sWV}, 5\ns_mul_i32 s3, s{sI}, {32*2560}\ns_add_u32 s3, s3, s{sB0}\ns_sub_u32 s3, s3, {8*2560}")
a(f"v_lshrrev_b32 v1, 3, v0\nv_lshrrev_b32 v3, 4, v0\nv_xor_b32 v3, v3, v0\nv_and_b32 v3, 7, v3\nv_mul_u32_u24 v1, 2560, v1\nv_lshl_add_u32 v1, v3, 4, v1\nv_add_u32 v{vX}, s3, v1")
a(f"s_add_u32 s3, s{sI}, s{sG}\ns_cmp_eq_u32 s3, 4\ns_cselect_b32 s3, {OOB:#x}, 0")
a(f"v_xor_b32 v{vX+1}, 64, v{vX}\nv_add_u32 v{vX+1}, 20480, v{vX+1}\nv_add_u32 v{vX+2}, 40960, v{vX}\nv_add_u32 v{vX+3}, 40960, v{vX+1}\nv_or_b32 v{vX+3}, s3, v{vX+3}")
for d, sz in ((X, 2048 * 1280), (W, 640 * 3840), (WO, 640 * 1280), (WS, 1 << 28), (OUT, 2048 * 1280), (DBG, 256), (WR, 1280)): a(f"s_mov_b32 s{d+2}, {sz:#x}\ns_mov_b32 s{d+3}, 0x20000")
a("s_waitcnt lgkmcnt(0)")
stamp(0)
def mv(d, n): return f"s_mov_b64 s[{d}:{d+1}], s[{KA[n]}:{KA[n]+1}]"
a(f"global_load_lds_dwordx4 v4, s[46:47]\ns_addk_i32 m0, -256\n{mv(X, 'x')}")
a(f"global_load_lds_dwordx4 v4, s[46:47] offset:1280\ns_addk_i32 m0, -256\n{mv(OUT, 'out')}")
a(f"global_load_lds_dwordx4 v4, s[46:47] offset:2560")
for d, n in ((DBG, "dbg"), (WS, "ws"), (W, "w"), (WO, "wo"), (WR, "wr")): a(mv(d, n))
sMT = 96
if OPT["mt"]: a(f"s_cmp_eq_u32 s{sWV}, 4\ns_cselect_b64 s[{sMT}:{sMT+1}], s[54:55], s[{sMT if OPT['stamps'] else 58}:{sMT+1 if OPT['stamps'] else 59}]\ns_cmp_eq_u32 s{sWV}, 5\ns_cselect_b64 s[{sMT}:{sMT+1}], s[56:57], s[{sMT}:{sMT+1}]")
if OPT["mt"] and OPT["stamps"]: a(f"s_cmp_ge_u32 s{sWV}, 6\ns_cselect_b64 s[{sMT}:{sMT+1}], s[58:59], s[{sMT}:{sMT+1}]")
def nextslab(): a(f"s_add_u32 s{sSB}, s{sSB}, 1\ns_cmp_eq_u32 s{sSB}, 10\ns_cselect_b32 s{sSB}, 0, s{sSB}")
def advslot(d): a(f"s_add_u32 s{d}, s{d}, {SLOT}\ns_cmp_eq_u32 s{d}, {S0 + 4*SLOT}\ns_cselect_b32 s{d}, {S0}, s{d}")
def xissue():
    a(f"s_add_u32 m0, s{sSL}, s{sLX}\ns_mov_b32 exec_lo, s{sXM}")
    for i in range(4):
        a(f"buffer_load_dwordx4 v{vX+i}, {S(X)}, s{sXO} offen lds")
        if i < 3: a("s_addk_i32 m0, 1024")
        if i == 0: a("s_mov_b32 exec_lo, -1")
a(f"s_cmp_lt_u32 s{sWV}, 5\ns_cbranch_scc1 L_nx")
a(f"s_lshl_b32 s{sLX}, s{sI}, 12\ns_cselect_b32 s{sXM}, -1, 0xffffff00\ns_lshl_b32 s{sXO}, s69, 7\ns_mov_b32 s{sSL}, {S0}")
xissue()
a("L_nx:")
stamp(1)
aKe, aK4, aKx, aKy = range(200, 204)
aQe, aQx, aQy, aQ4 = 204, 206, 208, 210
aVe, aV1, aV2 = range(216, 219)
vM, aRK, aCQ, aH0s, aH0l, aOs, aOl, aWO, aOUT, aL16, vRK, aXC, XR = 220, 222, 223, 224, 225, 226, 227, 228, 232, 233, 234, 235, 236
vAW, vAX0, vAX1, vSW, vSTR = 244, 245, 246, 247, 248
WRF, WSP = 244, 252
MASK = [lanes(lambda l: 2 * r + (l >> 5) > (l & 7)) for r in range(4)]
LO = lanes(lambda l: (l & 15) < 8)
sTA, sTP, sTS = 44, 44, 45
aOl2 = XR
def suA():
    a(f"s_mov_b32 s{sBUD}, {BUDGET}\ns_mul_i32 s{sGID}, s{sJ}, 3\ns_add_u32 s{sGID}, s{sGID}, s{sG}\ns_sub_u32 s3, s{sC}, 5\ns_cselect_b32 s{sC5}, s{sC}, s3")
    a(f"s_lshl_b32 s3, s{sWV}, 2\ns_lshr_b32 s{sTA}, 0x32105454, s3\ns_and_b32 s{sTA}, s{sTA}, 7\ns_lshr_b32 s45, s{sT}, 1\ns_add_u32 s45, s45, 4")
    a(f"s_cmp_eq_u32 s{sG}, 2\ns_cselect_b32 s{sNO}, 10, 11")
    a(f"s_sub_u32 s{sXT}, 10, s{sMODE}\nv_lshlrev_b32 v{aL16}, 4, v0")
    a(f"s_mul_i32 s{sE2L}, s{sGID}, 6\ns_add_u32 s{sE2L}, s{sE2L}, s{sTP}\ns_mul_i32 s{sE2L}, s{sE2L}, 2560\ns_add_u32 s{sE2L}, s{sE2L}, {E2}")
    a(f"s_lshl_b32 s{sRJ}, s{sJ}, 15\ns_add_u32 s{sRJ}, s{sRJ}, {RJ}")
    a(f"s_sub_u32 s51, 5, s{sC5}\ns_add_u32 s1, s{sC5}, 1\ns_sub_u32 s3, 15, s{sC5}\ns_cmp_le_u32 s{sC5}, 2\n"
      "s_cselect_b32 s46, 0, s3\ns_cselect_b32 s47, s51, s1\ns_cselect_b32 s48, s3, 0\ns_cselect_b32 s49, s1, s51\ns_cselect_b32 s50, 1, 0")
    a("v_and_b32 v3, 15, v0\nv_add_u32 v3, 8, v3\nv_lshrrev_b32 v4, 1, v3\nv_lshrrev_b32 v5, 5, v0\nv_xor_b32 v4, v4, v5\nv_and_b32 v4, 7, v4")
    a(f"v_lshlrev_b32 v4, 4, v4\nv_lshl_add_u32 v4, v3, 7, v4\nv_bfe_u32 v5, v0, 4, 1\nv_lshl_add_u32 v4, v5, 3, v4\ns_lshl_b32 s3, s{sTP}, 11\nv_add_u32 v{aXC}, s3, v4")
def suB():
    a(f"v_and_b32 v1, 15, v0\nv_lshrrev_b32 v2, 4, v0\nv_mov_b32 v7, {ZR}\ns_mul_i32 s0, s{sTA}, {16*PITCH}\ns_movk_i32 s1, {PITCH}")
    a("v_bfe_u32 v3, v0, 2, 1\nv_and_b32 v4, 3, v0\nv_lshlrev_b32 v4, 1, v4"); a("v_lshl_add_u32 v3, v3, 3, v4\nv_bfe_u32 v4, v0, 3, 1\nv_add_u32 v3, v3, v4")
    a(f"s_add_u32 s3, s0, {KB}\nv_mov_b32 v4, s3\nv_mad_u32_u24 v3, v3, s1, v4")
    a(f"s_add_u32 s3, s0, {QB + 8*PITCH}\nv_mov_b32 v4, s3\nv_mad_u32_u24 v4, v1, s1, v4")
    smask(52, LO)
    def kq(dK, dQ, quad, cond):
        a(quad); a(f"v_lshl_add_u32 v{dK}, v5, 3, v3\nv_lshl_add_u32 v5, v5, 3, v4")
        if cond: a(cond); a("v_cndmask_b32 v5, v7, v5, vcc")
        a(f"v_cndmask_b32 v{dQ}, v7, v5, s[52:53]\nv_cndmask_b32 v{dQ+1}, v5, v7, s[52:53]")
    kq(aKe, aQe, "v_add_u32 v5, s51, v2", None)
    kq(aKx, aQx, "v_add_u32 v5, s46, v2", "v_cmp_gt_u32 vcc, s47, v2")
    kq(aKy, aQy, "v_add_u32 v5, s48, v2\nv_min_u32 v5, 15, v5", "v_cmp_gt_u32 vcc, s49, v2")
    a("s_sub_u32 s3, s51, 1\nv_mad_u32_u24 v5, v2, 5, s3\ns_add_u32 s3, s46, 4\nv_mov_b32 v6, s3\ns_mov_b64 vcc, 0xffff\nv_cndmask_b32 v5, v5, v6, vcc")
    a(f"v_min_u32 v5, 15, v5\nv_lshl_add_u32 v{aK4}, v5, 3, v3\nv_lshl_add_u32 v5, v5, 3, v4")
    a(f"s_cmp_eq_u32 s47, 5\ns_cselect_b64 vcc, 0xff, 0\nv_cndmask_b32 v{aQ4}, v7, v5, vcc\ns_lshl_b64 vcc, vcc, 8\nv_cndmask_b32 v{aQ4+1}, v7, v5, vcc")
    for i in range(2, 6): a(f"s_bfm_b64 vcc, 8, {8*i}\nv_cndmask_b32 v{aQ4+i}, v7, v5, vcc")
def suC():
    a(f"s_mul_i32 s0, s{sTA}, {16*PITCH}\ns_movk_i32 s1, {PITCH}")
    a("v_bfe_u32 v3, v0, 2, 3\nv_lshrrev_b32 v4, 5, v0\nv_lshl_add_u32 v3, v3, 1, v4")
    a(f"s_add_u32 s3, s0, {VB}\nv_mov_b32 v4, s3\nv_mad_u32_u24 v3, v3, s1, v4\nv_and_b32 v4, 3, v0")
    smask(54, lanes(lambda l: l & 3 == 0))
    a(f"v_add_u32 v5, s51, v4\nv_lshl_add_u32 v{aVe}, v5, 3, v3\nv_add_u32 v7, 32, v{aVe}")
    a(f"s_cmp_eq_u32 s50, 1\ns_cselect_b32 s3, -1, 12\ns_cselect_b32 s56, 2, -1")
    a(f"v_add_u32 v5, s3, v4\nv_lshl_add_u32 v5, v5, 3, v3\nv_cndmask_b32 v{aV1}, v5, v7, s[54:55]\nv_add_u32 v7, 40, v7")
    a(f"v_add_u32 v5, s56, v4\nv_add_u32 v6, 10, v5\nv_cmp_gt_i32 vcc, s51, v5"); a(f"v_cndmask_b32 v5, v6, v5, vcc\nv_lshl_add_u32 v5, v5, 3, v3\nv_cndmask_b32 v{aV2}, v5, v7, s[54:55]")
    a(f"s_lshl_b32 s0, s{sTA}, 8\nv_lshrrev_b32 v4, 5, v0\nv_and_or_b32 v3, v0, 8, v4\ns_add_u32 s3, s0, {STATS + 8}\nv_lshl_add_u32 v{aRK}, v3, 4, s3")
    a(f"v_and_b32 v1, 15, v0\ns_add_u32 s3, s0, {STATS + 128 + 4}\nv_lshl_add_u32 v{aCQ}, v1, 4, s3")
    a(f"s_lshr_b32 s3, s{sB0}, 8\ns_mul_i32 s3, s3, 52429\ns_lshr_b32 s3, s3, 18\ns_lshl_b32 s0, s{sTP}, 5\ns_add_u32 s3, s3, s0\ns_sub_u32 s3, 2047, s3\nv_mad_i32_i24 v{vRK}, v1, -2, s3")
def octaddr(d, tile, rowq, extra):
    a(f"s_lshl_b32 s3, s{tile}, 4\nv_add_u32 v5, s3, v{rowq}\ns_lshl_b32 s3, s{sNO}, 3\nv_cmp_gt_u32 vcc, s3, v5")
    a(f"v_mul_u32_u24 v5, 2560, v5\nv_add3_u32 v5, v5, v{extra}, s{sB0}\nv_cndmask_b32 v{d}, v6, v5, vcc")
def suD(helper=1):
    a(f"v_lshrrev_b32 v2, 4, v0\nv_and_or_b32 v3, v0, 8, v2\nv_and_b32 v4, 0x70, v{aL16}\nv_bfrev_b32 v6, 1")
    if helper: octaddr(aOl2, sTS, 3, 4)
    octaddr(aOl, sTA, 3, 4)
    a(f"s_lshl_b32 s3, s{sC}, 7\nv_add_u32 v{aOs}, s3, v{aOl}")
    a(f"v_bfe_u32 v3, v0, 4, 1\nv_cmp_eq_u32 s[54:55], s50, v3\ns_cmp_lg_u32 s{sC5}, 0\ns_cselect_b64 s[0:1], -1, s[54:55]\ns_and_b64 vcc, vcc, s[0:1]")
    a(f"s_cmp_lg_u32 s{sC5}, 4\ns_cselect_b64 s[0:1], 0, s[54:55]\ns_andn2_b64 vcc, vcc, s[0:1]")
    a(f"v_cndmask_b32 v{aH0l}, v6, v{aOs}, vcc")
    a(f"s_cmp_le_u32 s{sC5}, 3\ns_cselect_b32 s3, 2560, 0\ns_sub_u32 s3, s3, 128\nv_mov_b32 v4, s3"); a(f"s_cmp_ge_u32 s{sC5}, 2\ns_cselect_b32 s3, 2560, 0\ns_add_u32 s3, s3, 128\nv_mov_b32 v5, s3")
    a(f"v_cndmask_b32 v4, v4, v5, s[54:55]\nv_mul_u32_u24 v3, 2560, v3\nv_sub_u32 v4, v4, v3"); a(f"v_add_u32 v4, v4, v{aOs}\nv_cndmask_b32 v{aH0s}, v6, v4, vcc")
def wlane():
    a("v_bfe_u32 v3, v0, 3, 2\nv_lshlrev_b32 v3, 2, v3\nv_and_or_b32 v3, v0, 3, v3"); a("v_lshlrev_b32 v3, 3, v3\nv_bfe_u32 v4, v0, 2, 2\nv_lshl_add_u32 v3, v4, 7, v3")
def suE(helper=1):
    a("v_and_b32 v1, 15, v0\nv_bfrev_b32 v6, 1\nv_bfe_u32 v3, v0, 4, 1\nv_lshrrev_b32 v4, 5, v0"); a(f"v_lshl_add_u32 v3, v3, 1, v4\ns_lshl_b32 s3, s{sC}, 7\nv_lshl_add_u32 v4, v3, 4, s3")
    octaddr(aOUT, sTP, 1, 4)
    wlane()
    a("v_lshrrev_b32 v2, 4, v0")
    if helper:
        a(f"s_and_b32 s3, s{sWV}, 1\ns_lshl_b32 s3, s3, 12\ns_add_u32 s3, s3, {WOB}\nv_lshl_add_u32 v4, v2, 10, v3\nv_add_u32 v{aWO}, s3, v4")
        for ct in range(1, 4): a(f"v_xor_b32 v{aWO+ct}, {32*ct}, v{aWO}")
    for r in range(4): smask(sM + 2 * r, MASK[r])
    a(f"s_movk_i32 s{sLT}, 10240\ns_mov_b32 s{sP1}, 0x07060501\ns_mov_b32 s{sP2}, 0x0706000c")
    a("v_mov_b32 v5, 0xffff\nv_mov_b32 v6, 0xffff0000")
    for d in range(2): a(f"v_cndmask_b32 v1, 0, v5, s[{sM+4*d}:{sM+4*d+1}]\nv_cndmask_b32 v4, 0, v6, s[{sM+4*d+2}:{sM+4*d+3}]\nv_or_b32 v{vM+d}, v1, v4")
KQ, SS, KS, PX, FL_, FE, VF, HL, CQ, TM, F01 = 96, 152, 168, 176, 192, 196, 64, 92, 5, 6, 2
DM, LT, QF = SS, 80, KQ + 20
H, OF, WOF, RING = 8, 24, 104, 6
DEP = OPT["dep"]
def capt(slot, d=XR):
    a(f"v_add_u32 v1, {slot}, v{aXC}")
    for ct in range(4):
        if ct: a(f"v_xor_b32 v{1+ct}, {32*ct}, v1")
        a(f"ds_read_b64 {V(d+2*ct,2)}, v{1+ct}")
def hinit(d=XR):
    for i in range(8): a(f"v_lshlrev_b32 v{H+2*i}, 16, v{d+i}\nv_and_b32 v{H+2*i+1}, 0xffff0000, v{d+i}")
def ldWR():
    a(f"v_lshrrev_b32 v1, 4, v0\nv_lshlrev_b32 v1, 3, v1\ns_lshl_b32 s3, s{sC}, 7")
    for ct in range(4): a(f"buffer_load_dwordx2 {V(WRF+2*ct,2)}, v1, {S(WR)}, s3 offen offset:{32*ct}")
def wrprep(t):
    a(f"s_mov_b32 s3, {ONES:#x}")
    for i in range(4): a(f"v_mov_b32 v{t+i}, s3")
    execset(0x1111111111111111)
    for i in range(8): a(f"v_mov_b32 v{WRF+i}, s3")
    execset(-1)
    for k in range(2): mfma(WSP, WRF + 4 * k, t, "0" if k == 0 else None)
def pzero(lo=0, hi=16):
    for i in range(lo, hi): a(f"v_mov_b32 v{PX+i}, 0")
def ksread(e=None):
    e = e or a
    a(f"v_add_u32 v1, 128, v{aRK}")
    for r in range(4):
        e(f"v_cndmask_b32 v2, v1, v{aRK}, s[{sM+2*r}:{sM+2*r+1}]\nds_read_b64 {V(KS+2*r,2)}, v2 offset:{32*r}")
    e(f"ds_read_b32 v{CQ}, v{aCQ}")
def rdmode(): a(f"v_mov_b32 v1, {MODE}\nds_read_b32 v1, v1\ns_waitcnt lgkmcnt(0)\nv_readfirstlane_b32 s{sMODE}, v1")
def gsync_h(poll):
    l = a.label("gh")
    a(f"s_cmp_eq_u32 s{sMODE}, 1\ns_cbranch_scc0 {l}g\n{l}b:")
    t = f"{l}g:\ns_barrier\n"
    if poll:
        t += f"s_cmp_eq_u32 s{sWV}, 5\ns_cbranch_scc0 {l}e\nv_mov_b32 v1, 1\ns_mov_b64 exec, 1\nbuffer_store_dword v1, off, {S(WS)}, s{sFO} offset:64 sc1\ns_mov_b64 exec, -1\n"
        t += f"{l}p:\nbuffer_load_dword v1, v{vEA}, {S(WS)}, 0 offen offset:64 sc1\ns_waitcnt vmcnt(0)\nv_cmp_ne_u32 vcc, 1, v1\ns_cbranch_vccz {l}e\ns_sub_u32 s{sBUD}, s{sBUD}, 1\ns_cbranch_scc0 {l}p\ns_mov_b32 s{sBUD}, 0\n{l}e:\n"
    DEFER.append(t + f"s_barrier\ns_branch {l}b")
def weave(P, xs):
    xs = list(xs); per = -(-len(xs) // len(P))
    for p in P:
        a(p)
        for _ in range(per):
            if xs: a(xs.pop(0))
a("v_mov_b32 v254, v4")
suA()
a(f"s_cmp_lt_u32 s{sWV}, 4\ns_cbranch_scc1 L_cons")
vW, vT = 24, 56
STR = {5: 0, 3: 1, 13: 2, -3: 3, -13: 4}
def wo_setup(vT=vT):
    a(f"v_lshrrev_b32 v1, 3, v0\nv_and_b32 v2, 2, v1\nv_xor_b32 v2, v2, v0\ns_lshl_b32 s3, s{sWV}, 2\nv_xor_b32 v2, s3, v2")
    a(f"v_and_b32 v2, 7, v2\ns_lshl_b32 s3, s{sC}, 7\nv_lshl_add_u32 v2, v2, 4, s3")
    a(f"v_and_b32 v3, 3, v1\nv_mul_u32_u24 v3, 1280, v3\nv_add_u32 v2, v3, v2")
    a(f"v_lshrrev_b32 v3, 5, v0\nv_mul_u32_u24 v3, 5120, v3\nv_sub_u32 v4, 5120, v3")
    for d, i in STR.items(): a(f"v_mad_u32_u24 v{vT+i}, v{3 + (d < 0)}, {abs(d)}, v2")
def wo_quads(cp, h, g):
    c5 = cp % 5
    if h == 0: return 5 - c5 + g, 10 - c5 + g
    if g == 0: return 9 - c5, 14 - c5
    i = g - 1
    p = 3 + i if c5 <= 2 else i
    return (i if c5 <= 2 else 13 + i), (p if p < 5 - c5 else 10 + p)
def wo_piece(st, g):
    h, cp = st // 10, st % 10
    q0, q1 = wo_quads(cp, h, g or 0)
    t = f"s_lshl_b32 s3, s{sT}, 10\ns_add_u32 m0, s3, {WOB}" if st == 0 else "s_addk_i32 m0, 4096"
    o = (64*cp + 4*min(q0, q1)) * 1280
    t += f"\ns_add_u32 s3, s{sPF}, {o}" if g is None else f"\ns_mov_b32 s3, {o}"
    return t + f"\nbuffer_load_dwordx4 v{vT + STR[q1 - q0]}, {S(WO)}, s3 offen lds"
def wo_late(lo, w, vT):
    for st in range(lo, 20):
        for g in (w, w + 2):
            q0, q1 = wo_quads(st % 10, st // 10, g)
            a(f"s_mov_b32 m0, {WOB + 4096*st + 1024*g}" if (st, g) == (lo, w) else "s_addk_i32 m0, 2048")
            a(f"s_mov_b32 s3, {(64*(st % 10) + 4*min(q0, q1)) * 1280}\nbuffer_load_dwordx4 v{vT + STR[q1 - q0]}, {S(WO)}, s3 offen lds")
def wo_run(lo, hi, tag):
    for st in range(lo, min(hi, 10)): a(wo_piece(st, None))
    lo = max(lo, 10)
    if lo >= hi: return
    for g in range(1, 4):
        a(f"s_cmp_eq_u32 s{sT}, {g}\ns_cbranch_scc1 L_wo{tag}{g}")
        DEFER.append(f"L_wo{tag}{g}:\n" + "\n".join(wo_piece(st, g) for st in range(lo, hi)) + f"\ns_branch L_wo{tag}")
    for st in range(lo, hi): a(wo_piece(st, 0))
    a(f"L_wo{tag}:")
N0 = OPT["n0"]; NA = N0 + OPT["na"]; NB = NA + OPT["nb"]; N1 = NB + OPT["n1"]
assert 2 * DEP <= N0 <= N1 <= 20
vTC = 61
def touch_setup():
    a(f"s_mul_i32 s3, s{sT}, 3\nv_lshrrev_b32 v1, 2, v0\nv_add_u32 v1, s3, v1\ns_add_u32 s3, s3, 3\ns_min_u32 s3, s3, s{sNO}\nv_cmp_gt_u32 vcc, s3, v1\nv_and_b32 v2, 3, v0\nv_lshl_add_u32 v1, v1, 3, v2")
    a(f"v_mul_u32_u24 v1, 2560, v1\ns_lshl_b32 s0, s{sC}, 7\ns_add_u32 s3, s0, s{sB0}\nv_add_u32 v1, s3, v1\nv_bfrev_b32 v2, 1\nv_cndmask_b32 v{vTC}, v2, v1, vcc")
    a(f"s_mul_i32 s3, s{sT}, 3\nv_min_u32 v1, 2, v0\nv_add_u32 v1, s3, v1\nv_lshrrev_b32 v2, 1, v1\nv_mul_u32_u24 v2, {2560 - 256}, v2\nv_lshl_add_u32 v1, v1, 7, v2")
    a(f"s_mul_i32 s3, s{sGID}, 15360\ns_lshl_b32 s0, s{sC}, 8\ns_add_u32 s3, s3, s0\ns_add_u32 s3, s3, {E2}\nv_add_u32 v{vTC+2}, s3, v1")
    if OPT["mt"]:
        R = 64 * (10 - OPT["mx"]); per = -(-2 * R // 30)
        a(f"s_mul_i32 s3, s{sU}, {per}\nv_min_u32 v1, {per-1}, v0\nv_add_u32 v1, s3, v1\nv_min_u32 v1, {2*R-1}, v1\nv_cmp_le_u32 vcc, {R}, v1\nv_mul_u32_u24 v1, 3072, v1")
        a(f"s_mul_i32 s3, s{sJ}, 384\ns_add_u32 s3, s3, {64*OPT['mx']*3072}\nv_add_u32 v1, s3, v1\nv_subrev_u32 v2, {(R + 320)*3072 - 256}, v1\nv_cndmask_b32 v1, v1, v2, vcc")
        a(f"s_mul_i32 s3, s{sJ}, 60\ns_lshl_b32 s0, s{sU}, 1\ns_add_u32 s3, s3, s0\ns_and_b32 s0, s{sWV}, 1\ns_add_u32 s3, s3, s0\ns_lshl_b32 s3, s3, 12\nv_min_u32 v2, 31, v0\nv_lshl_add_u32 v2, v2, 7, s3")
        a(f"s_cmp_ge_u32 s{sWV}, 6\ns_cselect_b64 vcc, -1, 0\nv_cndmask_b32 v{vMT}, v1, v2, vcc")
vMT = 84
def mtouch(p):
    if OPT["mt"] == p: a(f"global_load_dword v{vMT}, v{vMT}, s[{sMT}:{sMT+1}]")
NT = sum(OPT[k] in (0, 1) for k in ("te", "tl", "t2")) + (OPT["mt"] in (1, 2, 5))
NT2 = sum(OPT[k] == 2 for k in ("te", "tl", "t2")) + (OPT["mt"] == 3)
def xstart(i): nextslab(); a(f"s_lshl_b32 s{sXO}, s{sSB}, 7\ns_mov_b32 s{sSL}, {S0 + SLOT*(i % 4)}")
xstart(1)
if OPT["x1"] == 0: a(f"s_cmp_eq_u32 s{sWV}, 4\ns_cbranch_scc1 L_n1"); xissue(); a("L_n1:")
suB(); suC()
stamp(0, 5)
suD(); suE(); wo_setup(); touch_setup(); pzero()
vEX, vXF, vWF = XR + 1, XR + 2, XR + 3
a(f"s_lshl_b32 s0, s{sT}, 12\ns_add_u32 s0, s0, {EX}\nv_add_u32 v{vEX}, s0, v{aL16}\ns_and_b32 s0, s{sT}, 2\ns_lshl_b32 s0, s0, 1\ns_add_u32 s0, s0, {XFL}\nv_mov_b32 v{vXF}, s0\nv_mov_b32 v{vWF}, {WFL}\nv_cmp_eq_u32 vcc, 0, v0\nv_cndmask_b32 v{vWF+1}, 0, 1, vcc")
a(f"s_cmp_eq_u32 s{sWV}, 4\ns_cbranch_scc1 L_h0")
E1_, E2_ = OPT["e1"], OPT["e2"]
assert 1 <= E1_ and E1_ + 2 <= E2_ <= 4
vXA = vEV
a(f"v_mov_b32 v4, {ONES:#x}\nv_mov_b32 v5, v4\nv_lshrrev_b32 v1, 4, v0\nv_mul_u32_u24 v1, {SLOT - 128}, v1\nv_lshl_add_u32 v1, v0, 3, v1\nds_write_b64 v1, v[4:5] offset:{S0}")
a(f"s_sub_u32 s0, s{sWV}, 5\ns_mul_i32 s3, s{sGID}, 3\ns_add_u32 s3, s3, s0\ns_mul_i32 s3, s3, 2560\ns_add_u32 s{sSPL}, s3, {SP}")
a(f"s_mul_i32 s3, s{sG}, 1280\ns_add_u32 s3, s3, s{sRJ}\ns_add_u32 s{sPF}, s3, {R_FL}\nv_min_u32 v1, 9, v0\nv_lshl_add_u32 v{vEA}, v1, 7, s{sPF}\ns_lshl_b32 s{sFO}, s{sC}, 7\ns_add_u32 s{sFO}, s{sFO}, s{sPF}")
a(f"v_and_b32 v1, 15, v0\nv_lshrrev_b32 v2, 5, v0\nv_lshl_add_u32 v2, v2, 4, v1\ns_lshl_b32 s0, s0, 5\nv_add_lshl_u32 v{vSTW}, v2, s0, 4")
a(f"v_lshrrev_b32 v2, 4, v0\nv_lshrrev_b32 v3, 1, v1\nv_xor_b32 v3, v3, v2\nv_lshlrev_b32 v3, 4, v3\nv_lshl_add_u32 v3, v1, 7, v3\nv_add_u32 v{vXA}, s{sLX}, v3")
a(f"s_cmp_lt_u32 s{sB0}, 2560\ns_cselect_b32 s3, 128, 0\nv_mov_b32 v1, 0xf149f2ca\nv_cmp_gt_u32 vcc, s3, v{vSTW}\nv_cndmask_b32 v{vBIA}, 0, v1, vcc")
stamp(1, 5)
if OPT["xprio"]: a(f"s_setprio {OPT['xprio']}")
if OPT["x1"] == 2: xissue()
ldWR()
for k in range(4): a(f"v_mov_b32 v{64+k}, {ONES:#x}")
if OPT["dbg"] & 64: a(f"s_lshl_b32 s3, s{sC}, 8\ns_add_u32 s3, s3, s{sSPL}\ns_mov_b64 exec, 0xffff\nbuffer_store_dwordx4 v[64:67], v{aL16}, {S(WS)}, s3 offen sc1\ns_mov_b64 exec, -1")
a(f"s_waitcnt vmcnt({9 if OPT['dbg'] & 64 else 8}) lgkmcnt(0)")
stamp(2, 5)
def part_stats():
    PD = 96
    a(f"v_xor_b32 v1, 64, v{vXA}")
    for t in range(2):
        for ks in range(2): a(f"ds_read_b128 {V(vXD+8*t+4*ks,4)}, v{1 if ks else vXA} offset:{S0 + 2048*t}")
    a(f"s_lshl_b32 s3, s{sC}, 8\ns_add_u32 s3, s3, s{sSPL}\nv_and_b32 v2, 0xf0, v{aL16}\ns_mov_b32 s0, 0xaaaaaaaa\ns_mov_b32 s1, s0\ns_mov_b32 vcc_lo, 0xcccccccc\ns_mov_b32 vcc_hi, 0xcccccccc")
    for t in range(2):
        for ks in range(2):
            a(f"s_waitcnt lgkmcnt({3 - 2*t - ks})")
            mfma(PD + 8 * t, vXD + 8 * t + 4 * ks, vXD + 8 * t + 4 * ks, None if ks else "0")
            mfma(PD + 8 * t + 4, 64, vXD + 8 * t + 4 * ks, None if ks else "0")
    for t in range(2):
        d = PD + 8 * t
        a(f"v_cndmask_b32 v{d}, v{d}, v{d+1}, s[0:1]\nv_cndmask_b32 v{d+2}, v{d+2}, v{d+3}, s[0:1]\nv_cndmask_b32 v{vSUM+2*t+1}, v{d}, v{d+2}, vcc\nv_mov_b32 v{vSUM+2*t}, v{d+4}")
    execset(0xF0000F0000F0000F)
    a(f"buffer_store_dwordx4 {V(vSUM,4)}, v2, {S(WS)}, s3 offen sc1")
    execset(-1)
    for i in range(4): a(f"v_mov_b32 v{vXD+8+i}, 0")
def only5(tag, fn):
    a(f"s_cmp_eq_u32 s{sWV}, 5\ns_cbranch_scc0 L_o5{tag}"); fn(); a(f"L_o5{tag}:")
def evchk(tag, cmp_, ld):
    a(f"s_waitcnt lgkmcnt(0)\n{cmp_}\ns_cbranch_scc0 L_er{tag}\nL_eg{tag}:")
    DEFER.append(f"L_er{tag}:\ns_sub_u32 s{sBUD}, s{sBUD}, 1\ns_cbranch_scc1 L_ex{tag}\n{ld}\ns_waitcnt lgkmcnt(0)\n{cmp_}\ns_cbranch_scc0 L_er{tag}\ns_branch L_eg{tag}\nL_ex{tag}:\ns_mov_b32 s{sBUD}, 0\ns_branch L_eg{tag}")
FR = [71, 73, 75, 77, 83, 85, 89, 91, 93, 95]
ldroot = f"s_lshl_b32 s0, s{sJ}, 5\nv_and_b32 v1, 16, v0\nbuffer_load_dword v{vSUM+4}, v1, {S(DBG)}, s0 offen sc1"
ldflag = "\n".join(f"s_buffer_load_dword s{r}, {S(WS)}, s{sPF} offset:{128*k} glc" for k, r in enumerate(FR))
for i in range(9):
    a("s_barrier")
    stamp(3 + i, 5)
    ex = 0
    if i == E1_ + 1:
        def f():
            evchk("a", f"v_cmp_ne_u32 vcc, 1, v{vSUM+4}\ns_cmp_eq_u64 vcc, 0", ldroot + "\ns_waitcnt vmcnt(0)")
            a(f"s_getreg_b32 s0, hwreg(HW_REG_XCC_ID, 0, 4)\nv_mov_b32 v1, s0\ns_mov_b64 exec, 1\nbuffer_store_dword v1, off, {S(WS)}, s{sFO} sc1\ns_mov_b64 exec, -1")
        only5("c", f)
    if i == E2_ + 2:
        for k in range(3):
            if k == 2: a("s_mov_b32 exec_hi, 0")
            if OPT["dbg"] & 16: a(f"s_mov_b32 s{sSPL}, {OOB:#x}")
            a(f"buffer_load_dwordx4 {V(vXD+4*k,4)}, v{aL16}, {S(WS)}, s{sSPL} offen offset:{1024*k} sc1")
        a("s_mov_b32 exec_hi, -1"); ex += 3
    if i == 0: part_stats(); ex += 1
    if OPT["pf0"] & 1 and OPT["pfp"] % 10 == i + 2:
        a(f"s_mul_i32 s3, s2, 3\ns_add_u32 s3, s3, s{sWV}\ns_sub_u32 s3, s3, 5\ns_mul_i32 s3, s3, {9*128}\nv_lshlrev_b32 v1, 7, v0\ns_mov_b64 exec, 0x1ff\nbuffer_load_dword v255, v1, {S(WO)}, s3 offen\ns_mov_b64 exec, -1"); ex += 1
    if i < 8: xstart(i + 2); xissue()
    if i:
        a(f"s_cmp_eq_u32 s{sXT}, {i}\ns_cbranch_scc0 L_xc{i}\ns_mov_b32 s0, {S0 + SLOT * (i % 4)}\ns_call_b64 s[100:101], L_xcap\nL_xc{i}:")
    if i == E2_ + 1:
        def f():
            evchk("b", f"s_max_u32 s0, s{FR[0]}, s{FR[1]}\n" + "\n".join(f"s_max_u32 s0, s0, s{r}" for r in FR[2:]) + "\ns_cmp_lg_u32 s0, -1", ldflag)
            a(f"s_min_u32 s1, s{FR[0]}, s{FR[1]}\n" + "\n".join(f"s_min_u32 s1, s1, s{r}" for r in FR[2:]) + f"\ns_cmp_eq_u32 s0, s1\ns_cselect_b32 s0, {OPT['fmode']}, 0")
            a(f"v_mov_b32 v1, {MODE}\nv_mov_b32 v2, s0\nds_write_b32 v1, v2")
        only5("d", f)
    if i == E2_ + 3:
        a(f"s_waitcnt vmcnt({8 + ex})")
        for k in (4, 8):
            for e in range(4): a(f"v_add_f32 v{vXD+e}, v{vXD+e}, v{vXD+k+e}")
        a(f"v_permlane32_swap_b32 v{vXD}, v{vXD+2}\nv_permlane32_swap_b32 v{vXD+1}, v{vXD+3}\nv_add_f32 v{vXD}, v{vXD}, v{vXD+2}\nv_add_f32 v{vXD+1}, v{vXD+1}, v{vXD+3}")
        a(f"v_mov_b32 v{vXD+2}, v{vXD}\nv_mov_b32 v{vXD+3}, v{vXD+1}\ns_mov_b32 s1, 0x3acccccd\nv_mov_b32 v1, 0x3727c5ac")
        a(f"v_permlane16_swap_b32 v{vXD}, v{vXD+2}\nv_permlane16_swap_b32 v{vXD+1}, v{vXD+3}\nv_add_f32 v{vXD}, v{vXD}, v{vXD+2}\nv_add_f32 v{vXD+1}, v{vXD+1}, v{vXD+3}")
        a(f"v_mul_f32 v{vXD}, 0xbacccccd, v{vXD}\nv_fma_f32 v2, v{vXD+1}, s1, v1\nv_fma_f32 v2, -v{vXD}, v{vXD}, v2\nv_max_f32 v2, v2, v1\nv_rsq_f32 v{vXD+1}, v2\nv_mov_b32 v{vXD+3}, v{vBIA}\nv_mov_b32 v{vXD+2}, v{vXD+1}")
        a(f"ds_write_b128 v{vSTW}, {V(vXD,4)} offset:{STATS}")
    if 1 <= i <= 6 and OPT["pg"]:
        a(f"s_cmp_eq_u32 s{sWV}, 7\ns_cbranch_scc0 L_wm{i}"); warm("h", i - 1, 6); a(f"L_wm{i}:")
    if i == 0: pagebreak("c0")
    if i == 7 and OPT["wsp"]: pagebreak("h")
    if i == 8: break
    if i == E1_ + 1: a(f"s_cmp_eq_u32 s{sWV}, 5\ns_cbranch_scc1 L_w5{i}\ns_waitcnt vmcnt({4 + ex})\nL_w5{i}:"); ex += 1
    a(f"s_waitcnt vmcnt({4 + ex}) lgkmcnt(0)")
    if i == E1_ - 1: only5("a", lambda: a(ldroot))
    if i == E2_: only5("b", lambda: a(ldflag))
    if OPT["wsp"] and i >= OPT["ws0"]:
        LQ = [(cp, q) for cp in range(5) for g in range(4) for q in wo_quads(cp, 1, g)]
        part = LQ[OPT["wsp"] * (i - OPT["ws0"]):OPT["wsp"] * (i - OPT["ws0"] + 1)]
        if part:
            if i == OPT["ws0"]: a(f"s_mul_i32 s3, s{sG}, 3\ns_add_u32 s3, s3, s{sWV}\ns_sub_u32 s3, s3, 5\ns_lshr_b32 s0, s3, 2\ns_mul_i32 s0, s0, 316\ns_add_u32 s3, s3, s0\ns_mul_i32 s3, s3, 1280\ns_lshl_b32 s0, s{sC}, 7\ns_add_u32 s{sRD}, s3, s0")
            for cp, q in part:
                for o in (0, 64): a(f"s_buffer_load_dword s79, {S(WO)}, s{sRD} offset:{(64*cp + 4*q)*1280 + o}")
    if i == 2 and OPT["ppr"]:
        a(f"s_lshl_b32 s3, s{sC}, 8\ns_add_u32 s3, s3, s{sSPL}")
        for k in range(4): a(f"s_buffer_load_dword s75, {S(WS)}, s3 offset:{64*k}")
a(f"L_h8:\ns_mul_i32 s{sPF}, s{sT}, 5120")
mtouch(4)
wo_run(0, N0, "a")
mtouch(5)
ksread(); rdmode()
if OPT['hp'] == 0: hinit(72); wrprep(64)
a(f"s_waitcnt vmcnt({N0 + (OPT['mt'] >= 4)})")
stamp(2)
a("s_barrier")
stamp(3); stamp(9, 2); stamp(0, 3)
if not OPT['clr']: gsync_h(1)
def touch(p):
    if p == OPT["tl"]: a(f"buffer_load_dword v{vTC+1}, v{vTC}, {S(OUT)}, s{sLT} offen")
    if p == OPT["te"]: a(f"buffer_load_dword v{vTC+1}, v{vTC}, {S(OUT)}, 0 offen")
    if p == OPT["t2"]: a(f"buffer_load_dword v{vTC+2}, v{vTC+2}, {S(WS)}, 0 offen")
wo_run(N0, NA, "d")
touch(0)
mtouch(1)
if OPT['hp'] == 1: hinit(72); wrprep(64)
sO, sDW = 61, 65
a(f"s_and_b32 s3, s{sWV}, 1\ns_lshl_b32 s{sO}, s3, 7\ns_xor_b32 s{sO+1}, s{sO}, 128\ns_add_u32 s{sO+2}, s{sO+1}, s{sLT}\ns_add_u32 s{sO+3}, s{sO}, s{sLT}\ns_lshl_b32 s3, s3, 13\ns_sub_u32 s{sDW}, 4096, s3")
DEFER.append("L_xcap:\n" + "\n".join(capture(lambda: capt("s0", 72))) + "\ns_setpc_b64 s[100:101]")

def rdWO1(s, ct, e):
    t = ""
    if e == 0 and s in (5, 10, 15): t = {5: f"v_add_u32 v{aWO+ct}, s{sDW}, v{aWO+ct}", 10: f"v_add_u32 v{aWO+ct}, 40960, v{aWO+ct}", 15: f"v_subrev_u32 v{aWO+ct}, s{sDW}, v{aWO+ct}"}[s] + "\n"
    return t + f"ds_read_b64_tr_b16 {V(WOF + 16*(s % RING) + 4*ct + 2*e, 2)}, v{aWO+ct} offset:{8192*(s % 5) + 512*e}"
SF = 15 - OPT["sf"]
OL = [(s, w) for s in range(SF) for w in range(2 if s >= 5 else 1)] + [(s, 1) for s in range(SF, 15)] + [(s, 0) for s in range(SF, 20)]
def oreg(k): return OF + 4 * (k % (20 if not OPT["dbg"] & 2 else OPT["ou"]))
def ldO(k):
    s, w = OL[k]
    a(f"buffer_load_dwordx4 {V(oreg(k),4)}, v{aOl2 if w else aOl}, {S(OUT)}, s{sO + s // 5} offen offset:{256*(s % 5)} sc1")
def spin(tag, addr, cmp_, slp=0):
    a(f"{cmp_}\ns_cbranch_vccnz L_sp{tag}\nL_sb{tag}:")
    DEFER.append(f"L_sp{tag}:\n" + (f"s_sleep {slp}\n" if slp else "") + f"v_mov_b32 v1, {addr}\nds_read_b32 v1, v1\ns_waitcnt lgkmcnt(0)\n{cmp_}\ns_cbranch_vccnz L_sp{tag}\ns_branch L_sb{tag}")
def fold(A, B, F):
    for r in range(4): a(f"v_permlane16_swap_b32 v{A+r}, v{B+r}")
    for r in range(4): a(f"v_cndmask_b32 v{F[r]}, v{B+r}, v{A+r}, s[{sM+2*r}:{sM+2*r+1}]")
def softmax(F, P, mid=None, mid2=None):
    m, t = TM, TM + 1
    for r in range(4): a(f"v_fma_f32 v{F+r}, v{F+r}, v{KS+2*r}, v{KS+2*r+1}")
    a(f"v_max3_f32 v{m}, v{F}, v{F+1}, v{F+2}\nv_max_f32 v{m}, v{m}, v{F+3}\nv_mov_b32 v{t}, v{m}\nv_permlane32_swap_b32 v{m}, v{t}\nv_max_f32 v{m}, v{m}, v{t}\nv_mul_f32 v{m}, v{m}, v{CQ}")
    for r in range(4): a(f"v_fma_f32 v{F+r}, v{F+r}, v{CQ}, -v{m}")
    for r in range(4): a(f"v_exp_f32 v{F+r}, v{F+r}")
    if mid: mid()
    a(f"v_add_f32 v{m}, v{F}, v{F+1}\nv_add_f32 v{t}, v{F+2}, v{F+3}\nv_add_f32 v{m}, v{m}, v{t}\nv_mov_b32 v{t}, v{m}\nv_mul_f32 v{F}, v{F}, v{KS}\nv_mul_f32 v{F+1}, v{F+1}, v{KS+2}")
    a(f"v_permlane32_swap_b32 v{m}, v{t}\nv_mul_f32 v{F+2}, v{F+2}, v{KS+4}\nv_add_f32 v{m}, v{m}, v{t}\nv_rcp_f32 v{m}, v{m}\nv_mul_f32 v{F+3}, v{F+3}, v{KS+6}")
    for r in range(4): a(f"v_mul_f32 v{F+r}, v{F+r}, v{m}")
    a(f"v_cvt_pk_bf16_f32 v{F}, v{F}, v{F+1}\nv_cvt_pk_bf16_f32 v{F+1}, v{F+2}, v{F+3}")
    if mid2: mid2()
    for hh in range(2):
        a(f"s_mov_b64 exec, s[{sLO}:{sLO+1}]" if hh == 0 else "s_not_b64 exec, exec")
        for d in range(2): a(f"v_and_b32 v{P+2*hh+d}, v{vM+d}, v{F+d}\nv_bfi_b32 v{P+4+2*hh+d}, v{vM+d}, 0, v{F+d}")
    a("s_mov_b64 exec, -1")
    for d in range(4): a(f"v_permlane16_swap_b32 v{P+d}, v{P+4+d}")
def ymask():
    a(f"s_add_u32 s0, s{sC5}, 1\ns_sub_u32 s1, 5, s{sC5}\ns_min_u32 s0, s0, s1\ns_lshl_b32 s0, s0, 4\ns_sub_u32 s1, 64, s0\ns_cmp_le_u32 s{sC5}, 2\ns_cselect_b32 s1, s1, 16\ns_bfm_b64 s[100:101], s0, s1")
def attention(T):
    helper = T == "h"; doL = T != "e"; doE = T != "l"
    L.reset()
    rid = {}
    KR = ((aKx, 0), (aKy, 0), (aK4, 0), (aKe, 0), (aKe, 40))
    QR = ((aQx, 0, 0), (aQy, 0, 1), (aQ4, 0, 2), (aQe, 0, 3), (aQe, 40, 4), (aQ4 + 2, 0, 2), (aQ4 + 4, 0, 2))
    def rk(i):
        k, o = KR[i]; d = KQ + 4 * i
        L(f"ds_read_b64 {V(d,2)}, v{k} offset:{o}"); L(f"ds_read_b64 {V(d+2,2)}, v{k} offset:{o + 8*PITCH}")
    def rq(i):
        q, o, _ = QR[i]; d = QF + 4 * i
        L(f"ds_read_b64 {V(d,2)}, v{q} offset:{o}"); rid[i] = L(f"ds_read_b64 {V(d+2,2)}, v{q+1} offset:{o}")
    def lg(i):
        L.wait(rid[i]); mfma(SS + (0, 4, 0, 8, 12, 8, 12)[i], KQ + 4 * QR[i][2], QF + 4 * i, "0" if i in (0, 1, 3, 4) else None)
    vid = {}
    vc = [None]
    def vlook():
        if OPT["ord"]: a(f"v_mov_b32 v1, {VCN}"); vc[0] = L("ds_read_b32 v1, v1")
    def vreads():
        if OPT["ord"]: L.wait(vc[0]); spin("v" + T, VCN, "v_cmp_ne_u32 vcc, 4, v1")
        if helper: stamp(4, 3)
        for i, (r_, o) in enumerate(((aVe, 0), (aVe, 40), (aV1, 0), (aV2, 0))):
            if doE or i >= 2:
                L(f"ds_read_b64_tr_b16 {V(VF+4*i,2)}, v{r_} offset:{o}")
                vid[i] = L(f"ds_read_b64_tr_b16 {V(VF+4*i+2,2)}, v{r_} offset:{o + 8*PITCH}")
    def lfold(): fold(SS, SS + 4, [F01, F01 + 1, FL_ + 2, FL_ + 3])
    def lpack(): a(f"v_or_b32 v{FL_}, 0xffff, v{F01}\nv_perm_b32 v{FL_+1}, v{F01+1}, v{F01}, s{sP1}")
    cq = f"v_mul_f32 v{CQ}, {CEXP:#x}, v{CQ}"
    if helper:
        ymask(); a(cq)
        a("s_barrier")
        for i in range(5): rk(i)
        wo_run(NA, NB, "e")
        if OPT["bv"] >= 0: a("s_barrier"); vreads()
        wo_run(NB, N1, "b")
        touch(1)
        mtouch(2)
        a(f"s_setprio {OPT['aprio']}\ns_waitcnt vmcnt({NT + N1 - N0 if OPT['wc'] < 2 else NT})")
        stamp(1, 3)
        a("s_barrier")
        stamp(4); stamp(2, 3)
        if STAGE == "A": a("s_branch L_dumpA")
        rq(0); rq(1); rq(2); rq(3); rq(4); lg(0); rq(5); lg(1); rq(6); lg(2); lg(3); lg(4); lg(5); lg(6); lfold(); lpack()
    elif doL: rk(0); rq(0); rk(1); rq(1); rk(2); rq(2); ymask(); lg(0); lg(1); lg(2); ksread(L); lfold(); lpack()
    else: rk(3); rq(3); rk(4); rq(4); rk(2); rq(5); rq(6); pzero(0, 8); lg(3); lg(4); ksread(L); lg(5); lg(6)
    if doL: lst(f"buffer_store_dwordx4 {V(FL_,4)}, v{aH0s}, {S(OUT)}, s{sLT} offen{{F}}")
    stamp(5); stamp(3, 3)
    if helper: touch(3)
    if helper and OPT["wc"] == 0: wo_run(N1, 20, "c")
    hl = f"buffer_load_dwordx4 {V(HL,4)}, v{aH0l}, {S(OUT)}, s{sLT} offen sc1"
    prefill = lambda: [a(rdWO1(s_, ct, e)) for s_ in range(DEP) for ct in range(4) for e in range(2)] if helper else None
    early = lambda: [ldO(k) for k in range(OPT["ou"])] if helper else None
    late = f"buffer_store_dwordx4 {V(LT,4)}, v{aOs}, {S(OUT)}, s{sLT} offen{{F}}"
    if doE:
        fold(SS + 8, SS + 12, [FE + r for r in range(4)])
        if not helper: L.wait(L.n); a(cq)
        if OPT["vpos"] == 1 or not helper: vlook()
        def mid():
            if helper and OPT["vpos"] == 2: vlook()
            elif not helper or OPT["bv"] < 0: vreads()
            if helper and OPT["wc"] == 1: wo_run(N1, 20, "c")
            if helper and OPT["hlp"] == 0: a(hl)
        softmax(FE, PX, mid, vreads if helper and OPT["vpos"] == 2 else None)
        stamp(5, 3)
        if helper and OPT["hlp"] == 1: a(hl)
        if helper: touch(2)
        L.wait(vid[3])
        for i in range(4): mfma(DM + 4 * i, VF + 4 * i, PX + 4 * (i & 1), "0")
        for i in range(4): a(f"v_cvt_pk_bf16_f32 v{FE+i}, v{DM+2*i}, v{DM+2*i+1}")
        lst(f"buffer_store_dwordx4 {V(FE,4)}, v{aOs}, {S(OUT)}, 0 offen{{F}}")
        stamp(6); stamp(6, 3)
        if T == "e": a(f"s_lshl_b32 s0, s{sWV}, 2\ns_add_u32 s0, s0, {HRD}\nv_mov_b32 v1, s0\nds_read_b32 v1, v1")
        for i in range(4): a(f"v_cvt_pk_bf16_f32 v{LT+i}, v{DM+8+2*i}, v{DM+8+2*i+1}")
        if helper: mtouch(3)
        prefill()
    else:
        vlook(); pzero(8, 16); vreads(); L.wait(L.n); a(cq); a(hl)
        if OPT["wc"] == 2:
            a(f"s_cmp_eq_u32 s{sWV}, 3\ns_cbranch_scc1 L_wl3"); wo_late(N1, 0, 249); a("L_wlb:")
            DEFER.append("L_wl3:\n" + "\n".join(capture(lambda: wo_late(N1, 1, 249))) + "\ns_branch L_wlb")
    if T == "e":
        a("s_waitcnt lgkmcnt(0)"); spin("r", "s0", "v_cmp_eq_u32 vcc, 0, v1", 1)
        execset(0xffff); lst(late); execset(-1)
        stamp(7); stamp(10, 3)
        return
    stamp(7, 3)
    a(f"s_waitcnt vmcnt({1 + NT2 if doE else 2 * (20 - N1) if OPT['wc'] == 2 else 0})\nv_cmp_eq_u32 vcc, -1, v{HL}\ns_cbranch_vccnz L_h0r{T}\nL_h0g{T}:")
    stamp(8, 3)
    DEFER.append(f"L_h0r{T}:\ns_sub_u32 s{sBUD}, s{sBUD}, 1\ns_cbranch_scc1 L_h0x{T}\n{hl}\ns_waitcnt vmcnt(0)\n"
                 f"v_cmp_eq_u32 vcc, -1, v{HL}\ns_cbranch_vccnz L_h0r{T}\ns_branch L_h0g{T}\nL_h0x{T}:\ns_mov_b32 s{sBUD}, 0\ns_branch L_h0g{T}")
    wfl = f"v_mov_b32 v1, {WFL}\nv_mov_b32 v4, 1\ns_mov_b64 exec, 1\nds_add_u32 v1, v4\ns_mov_b64 exec, -1"
    if helper:
        if OPT["wc"] < 2: a(f"s_mov_b64 exec, 1\nds_add_u32 v{vWF}, v{vWF+1}\ns_mov_b64 exec, -1")
    else: a(f"s_lshl_b32 s0, s{sWV}, 2\ns_add_u32 s0, s0, {HRD - 8}\nv_mov_b32 v1, s0\nds_write_b32 v1, v1")
    a(f"v_perm_b32 v{HL}, v{HL}, v{HL+1}, s{sP2}")
    for r in (1, 2, 3, 0): a(f"v_add_f32 v{FL_+r}, v{F01+r if r < 2 else FL_+r}, v{HL+r}")
    if OPT["opos"] == 0: early()
    softmax(FL_, PX + 8, early if OPT["opos"] == 1 else None)
    if OPT["opos"] == 2: early()
    stamp(9, 3)
    mfma(DM, VF + 8, PX + 8, "0"); mfma(DM + 4, VF + 12, PX + 8, "0"); mfma(DM + 8, VF + 12, PX + 12, "0")
    if helper and OPT["wc"] < 2: a(f"ds_read_b32 v1, v{vWF}")
    a("s_mov_b32 exec_lo, 0xffff0000")
    for i in range(4): a(f"v_cvt_pk_bf16_f32 v{LT+i}, v{DM+2*i}, v{DM+2*i+1}")
    a("s_mov_b64 exec, s[100:101]")
    for i in range(2): a(f"v_cvt_pk_bf16_f32 v{LT+2+i}, v{DM+8+2*i}, v{DM+8+2*i+1}")
    execset(-1 if doE else 0xffffffffffff0000)
    lst(late)
    stamp(7); stamp(10, 3)
    if not helper and OPT["wc"] == 2: a("s_mov_b64 exec, -1\ns_waitcnt vmcnt(1)\n" + wfl + "\ns_waitcnt lgkmcnt(0)")
attention("h")
if STAGE == "B": a("s_waitcnt vmcnt(0)"); finish()
pagebreak("h")
SH = 200
U = OPT["ou"]; nO = [U]
def ldOn():
    if nO[0] < len(OL):
        if not OPT["dbg"] & 2: ldO(nO[0])
        nO[0] += 1
L.reset()
stamp(8); stamp(0, 4)
idx = {o: k for k, o in enumerate(OL)}
GR = [[0, 1], [2, 3], [4]] + [[k, k + 1] for k in range(5, 29, 2)] + [[29]]
gof = {k: G for G, g in enumerate(GR) for k in g}
issued = {}
def cmp_(G):
    r = [oreg(k) for k in GR[G]]
    if len(r) == 2: a(f"v_max_u16 v2, v{r[0]}, v{r[1]}\nv_cmp_eq_u16 vcc, -1, v2")
    else: a(f"v_cmp_eq_u16 vcc, -1, v{r[0]}")
def chk_a(G):
    last = GR[G][-1] + 1
    assert nO[0] >= last
    a(f"s_waitcnt vmcnt({nO[0] - last + (last <= U)})"); cmp_(G)
def chk_b(G):
    issued[G] = nO[0]
    a(f"s_cbranch_vccnz L_st{G}\nL_go{G}:")
a("s_waitcnt lgkmcnt(0)")
spin("w", WFL, "v_cmp_ne_u32 vcc, 4, v1")
RQ = [(s, ct, e) for s in range(DEP, 20) for ct in range(4) for e in range(2)]
wid = {(s, ct): 0 for s in range(DEP) for ct in range(4)}
left = {(s, ct): 2 if 5 <= s < 15 else 1 for s in range(20) for ct in range(4)}
def rdn(n):
    for _ in range(n):
        if not RQ: return
        s, ct, e = RQ[0]
        if s >= RING and left[s - RING, ct]: return
        RQ.pop(0); wid[s, ct] = L(rdWO1(s, ct, e))
MS = []
k = 0
while k < 30:
    if k + 1 < 30 and OL[k][0] == OL[k+1][0]: MS += [(kk, ct) for ct in range(4) for kk in (k, k + 1)]; k += 2
    else: MS += [(k, ct) for ct in range(4)]; k += 1
firstm = {}
for m, (k, ct) in enumerate(MS): firstm.setdefault(gof[k], m)
ca = {m - 2: G for G, m in firstm.items() if G}; cb = {m - 1: G for G, m in firstm.items() if G}
lasts = max(m for m, (k, ct) in enumerate(MS) if OL[k][1])
wr = {lasts + 2 + q + (q == 3) * 2: q for q in range(4)}
chk_a(0); chk_b(0)
for m, (k, ct) in enumerate(MS):
    s, w = OL[k]
    if m in ca: chk_a(ca[m])
    if m in cb: chk_b(cb[m])
    while RQ and RQ[0][:2] <= (s, ct): n = len(RQ); rdn(1); assert len(RQ) < n
    if ct == 0 and (not RQ or RQ[0][0] > s) and L.n - wid[s, 3] >= 6: L.wait(wid[s, 3])
    L.wait(wid[s, ct])
    mfma((SH if w else H) + 4 * ct, WOF + 16 * (s % RING) + 4 * ct, oreg(k), "0" if w and s == 5 else None)
    left[s, ct] -= 1
    if (m % 4 == 0 or (m < 20 and m % 4 == 1 and m // 4 >= (3, 0)[OPT["o2"]])) and nO[0] < len(OL): ldOn(); rdn(1)
    elif m in wr: L(f"ds_write_b128 v{vEX}, {V(SH + 4*wr[m], 4)} offset:{1024*wr[m]}")
    elif m == lasts + 8: a("s_mov_b64 exec, 1"); L(f"ds_add_u32 v{vXF}, v{vWF+1}"); a("s_mov_b64 exec, -1")
    else: rdn(1 if m + 1 in ca or m + 1 in cb or m in cb else 2)
    if m == 3: stamp(9); stamp(11, 3)
    if m == 59: stamp(12, 3)
    if m % 12 == 11: stamp(1 + m // 12, 4)
assert nO[0] == len(OL)
for G in range(len(GR)):
    t = f"L_st{G}:\ns_sub_u32 s{sBUD}, s{sBUD}, 1\ns_cbranch_scc1 L_sx{G}\n"
    def re():
        for G2 in range(G, min(G + OPT["rsp"], len(GR))):
            for k in GR[G2]:
                if k < issued[G]: ldO(k)
        a("s_waitcnt vmcnt(0)"); cmp_(G)
    t += "\n".join(capture(re))
    t += f"\ns_cbranch_vccnz L_st{G}\ns_branch L_go{G}\nL_sx{G}:\ns_mov_b32 s{sBUD}, 0\ns_branch L_go{G}"
    DEFER.append(t)
a("L_tail:")
stamp(10)
HB, DS1, DS2, E2D, T0, RS = 24, 32, 36, 40, 52, 2
EV1 = OPT['e1']
for i in range(8): a(f"v_cvt_pk_bf16_f32 v{HB+i}, v{H+2*i}, v{H+2*i+1}")
for k in range(2):
    mfma(DS2, HB + 4 * k, HB + 4 * k, "0" if k == 0 else None)
    mfma(DS1, WRF + 4 * k, HB + 4 * k, "0" if k == 0 else None)
a("s_mov_b32 s0, 0x22222222\ns_mov_b32 s1, s0\ns_mov_b32 s44, 0x44444444\ns_mov_b32 s45, s44\ns_mov_b32 vcc_lo, 0x88888888\ns_mov_b32 vcc_hi, 0x88888888")
a(f"s_lshl_b32 s3, s{sC}, 8\ns_add_u32 s3, s3, s{sE2L}\nv_and_b32 v1, 0xf0, v{aL16}")
a(f"v_cndmask_b32 v{DS2}, v{DS2}, v{DS2+1}, s[0:1]\nv_cndmask_b32 v{DS2+2}, v{DS2+2}, v{DS2+3}, vcc\ns_or_b64 vcc, vcc, s[44:45]")
a(f"v_cndmask_b32 v{DS1+2}, v{DS2}, v{DS2+2}, vcc\nv_mov_b32 v{DS1+3}, v{WSP+1}")
execset(0xF0000F0000F0000F)
lst(f"buffer_store_dwordx4 {V(DS1,4)}, v1, {S(WS)}, s3 offen{{F}}")
execset(-1)
for i in range(4): a(f"v_mov_b32 v{E2D+8+i}, 0")
a(f"v_mov_b32 v4, 1.0\ns_mov_b32 s0, 0xbacccccd\ns_mov_b32 s1, 0x3acccccd\nv_mov_b32 v5, 0x3727c5ac\ns_mov_b32 s44, 0xfffff800\nv_mov_b32 v1, {KMAX}")
a(f"v_cmp_le_i32 s[46:47], 0, v{aOUT}")
vL, vB, vK = 68, 69, 70
a(f"s_mul_i32 s48, s{sG}, 1280\ns_lshl_b32 s3, s{sC}, 7\ns_add_u32 s48, s48, s3\ns_lshl_b32 s49, s48, 1\ns_add_u32 s48, s48, s{sRJ}\ns_add_u32 s49, s49, s{sRJ}\ns_add_u32 s49, s49, {R_BASE}")
a(f"s_lshl_b32 s3, s{sG}, 7\ns_add_u32 s3, s3, s{sRJ}\ns_add_u32 s3, s3, {R_KEY}\ns_and_b32 s45, s{sC}, {OPT['kc']}\ns_lshl_b32 s45, s45, 3\ns_add_u32 s45, s45, s{sWV}\nv_mul_u32_u24 v{vK}, 384, v0")
a(f"v_and_b32 v{vB}, 48, v0\nv_lshlrev_b32 v{vL}, 1, v{vB}")
if OPT["kl"]: a(f"s_add_u32 s45, s{sC}, 5\nv_mov_b32 v71, 1")
a("L_e2:")
a(f"buffer_load_dwordx4 {V(E2D,4)}, v{aL16}, {S(WS)}, s{sE2L} offen sc1\nbuffer_load_dwordx4 {V(E2D+4,4)}, v{aL16}, {S(WS)}, s{sE2L} offen offset:1024 sc1")
a(f"s_mov_b32 exec_hi, 0\nbuffer_load_dwordx4 {V(E2D+8,4)}, v{aL16}, {S(WS)}, s{sE2L} offen offset:2048 sc1\ns_mov_b32 exec_hi, -1\ns_sub_u32 s{sBUD}, s{sBUD}, 1")
a("s_waitcnt vmcnt(1)")
for e in (0, 2): a(f"v_pk_add_f32 {V(E2D+e,2)}, {V(E2D+e,2)}, {V(E2D+4+e,2)}")
a("s_waitcnt vmcnt(0)")
for e in (0, 2): a(f"v_pk_add_f32 {V(E2D+e,2)}, {V(E2D+e,2)}, {V(E2D+8+e,2)}")
a(f"v_cmp_u_f32 vcc, v{E2D}, v{E2D}\ns_cbranch_scc1 L_e2go\ns_cbranch_vccnz L_e2\nL_e2go:")
stamp(11); stamp(11, 4)
for i in (0, 2, 3, 1): a(f"v_mfma_f32_16x16x4_f32 {V(T0+4*i,4)}, v4, v{E2D+i}, 0")
a(f"v_mul_f32 v6, s0, v{T0}\nv_fma_f32 v7, v{T0+8}, s1, v5\nv_fma_f32 v7, -v6, v6, v7\nv_max_f32 v7, v7, v5\nv_rsq_f32 v{RS}, v7")
a(f"v_fma_f32 v7, v6, v{T0+12}, v{T0+4}\nv_mul_f32 v7, v7, v{RS}\nv_mul_f32 v{RS+1}, v6, v{RS}")
a(f"v_ashrrev_i32 v6, 31, v7\nv_or_b32 v6, 0x80000000, v6\nv_xor_b32 v7, v7, v6\nv_and_or_b32 v7, v7, s44, v{vRK}\nv_cndmask_b32 v7, 0, v7, s[46:47]")
LN, LNB, OB = 72, 88, 96
lnops = [f"v_pk_fma_f32 {V(LN+2*i,2)}, {V(H+2*i,2)}, {V(RS,2)}, {V(RS,2)} op_sel:[0,0,1] op_sel_hi:[1,0,1]" for i in range(8)]
for k in (8, 4, 2, 1)[:OPT["dpn"]]:
    a(lnops.pop(0)); a(lnops.pop(0))
    a(f"v_max_u32_dpp v6, v{7 if k == 8 else 6}, v{7 if k == 8 else 6} row_ror:{k} {DPPM}")
a(f"s_mov_b64 exec, {(1 << (16 >> OPT['dpn'])) - 1}\nds_max_u32 v1, v{6 if OPT['dpn'] else 7}")
if OPT["kl"]: a(f"s_mov_b64 exec, 1\nds_add_rtn_u32 v71, v1, v71 offset:4\ns_mov_b64 exec, -1\nds_read_b32 v6, v1")
else: a("s_mov_b64 exec, -1")
for o in lnops: a(o)
for i in range(4): a(f"v_cvt_pk_bf16_f32 v{LNB+i}, v{LN+2*i}, v{LN+2*i+1}")
a("s_waitcnt lgkmcnt(0)")
if OPT["kl"]: a(f"v_readfirstlane_b32 s0, v71\ns_cmp_eq_u32 s0, s45\ns_cbranch_scc0 L_nk\ns_mov_b64 exec, 0xffff\nbuffer_store_dword v6, v{vK}, {S(WS)}, s3 offen sc1\ns_mov_b64 exec, -1\nL_nk:")
a("s_barrier\nds_read_b32 v1, v1")
for i in range(4, 8): a(f"v_cvt_pk_bf16_f32 v{LNB+i}, v{LN+2*i}, v{LN+2*i+1}")
for i in range(8): a(f"v_pk_add_f32 {V(LN+2*i,2)}, {V(LN+2*i,2)}, {V(H+2*i,2)}")
if OPT["kl"]: a("s_waitcnt lgkmcnt(0)\nv_cmp_eq_u32 s[46:47], v1, v7")
else: a(f"s_cmp_eq_u32 s45, 4\ns_waitcnt lgkmcnt(0)\nv_cmp_eq_u32 s[46:47], v1, v7\ns_cbranch_scc0 L_nk\ns_mov_b64 exec, 0xffff\nbuffer_store_dword v1, v{vK}, {S(WS)}, s3 offen sc1\nL_nk:")
a("s_and_b64 exec, s[46:47], -1\ns_cbranch_scc0 L_nc")
a(f"buffer_store_dwordx4 {V(LNB,4)}, v{vL}, {S(WS)}, s48 offen sc1\nbuffer_store_dwordx4 {V(LNB+4,4)}, v{vL}, {S(WS)}, s48 offen offset:16 sc1")
a("L_nc:\ns_mov_b64 exec, -1")
stamp(12); stamp(12, 4)
for i in range(8): a(f"v_cvt_pk_bf16_f32 v{OB+i}, v{LN+2*i}, v{LN+2*i+1}")
for hh in range(2):
    for d in range(2): a(f"v_permlane16_swap_b32 v{OB+4*hh+d}, v{OB+4*hh+2+d}")
osc = " " + OPT["osc"].replace("_", " ").replace("plain", "")
a("s_not_b64 exec, s[46:47]")
for hh in range(2): a(f"buffer_store_dwordx4 {V(OB+4*hh,4)}, v{aOUT}, {S(OUT)}, 0 offen offset:{64*hh}{osc}")
a("s_and_b64 exec, s[46:47], -1\ns_cbranch_scc0 L_fin")
for hh in range(2): a(f"buffer_store_dwordx4 {V(OB+4*hh,4)}, v{aOUT}, {S(OUT)}, 0 offen offset:{64*hh} sc1")
a("s_waitcnt vmcnt(0)")
for ct in range(4): a(f"buffer_store_dwordx4 {V(LN+4*ct,4)}, v{vB}, {S(WS)}, s49 offen offset:{64*ct} sc1")
a("L_fin:")
if OPT["dbg"] & 128:
    a(f"s_mov_b64 exec, -1\ns_lshl_b32 s3, s2, 3\ns_add_u32 s3, s3, s{sWV}\ns_lshl_b32 s3, s3, 13\ns_add_u32 s3, s3, {DUMP}")
    for i in range(8): a(f"buffer_store_dwordx4 {V(OB,4)}, v{aL16}, {S(WS)}, s3 offen\ns_add_u32 s3, s3, 1024")
finish()
pagebreak(None, False)
deferred("h")

pad("c0")
a("L_h0:")
if OPT["prio"]: a("s_setprio 2")
a(f"v_lshrrev_b32 v1, 3, v0\nv_and_b32 v2, 2, v1\nv_xor_b32 v2, v2, v0\nv_and_b32 v2, 7, v2\ns_lshl_b32 s3, s{sC}, 7\nv_lshl_add_u32 v2, v2, 4, s3")
a(f"v_mul_u32_u24 v3, 3840, v1\nv_add_u32 v{vW}, v3, v2\nv_xor_b32 v{vW+3}, 64, v{vW}\nv_add_u32 v{vW+3}, {8*3840}, v{vW+3}\nv_mov_b32 v{vEA}, 0")
for p in range(2):
    for s_ in (1, 2): a(f"v_add_u32 v{vW+3*p+s_}, {256*s_}, v{vW+3*p}")
def wpieces():
    P = []
    for pp in range(8):
        for s_ in range(3):
            t = f"buffer_load_dwordx4 v{vW+3*(pp&1)+s_}, {S(W)}, s{sXO} offen offset:{1024*s_} lds"
            if s_ == 2 and pp < 7: t += "\ns_addk_i32 m0, 3072"
            if s_ == 2 and pp & 1 and pp < 7: t += f"\ns_add_u32 s{sXO}, s{sXO}, 61440"
            P.append(t)
    return P
stamp(1, 5)
ldWR()
a("s_waitcnt vmcnt(4)")
stamp(2, 5)
a("s_barrier")
a(f"s_mov_b32 s{sI}, 1\ns_mov_b32 s{sRD}, {S0 + SLOT}\nL_wl:")
nextslab(); advslot(sSL); a(f"s_mul_i32 s{sXO}, s{sSB}, 245760\ns_add_u32 m0, s{sSL}, 12288")
for p in wpieces(): a(p)
a(f"s_mov_b32 s0, s{sRD}\ns_mov_b32 s{sRD}, s{sSL}\ns_cmp_eq_u32 s{sXT}, s{sI}\ns_waitcnt vmcnt(24) lgkmcnt(0)\ns_barrier\ns_cbranch_scc0 L_wc\ns_call_b64 s[100:101], L_xcap\nL_wc:")
a(f"s_add_u32 s{sI}, s{sI}, 1\ns_cmp_lt_u32 s{sI}, 9\ns_cbranch_scc1 L_wl")
a("s_branch L_h8")

ACC, XF, WF, ST, CS = 8, 80, 152, 180, 192
CLX = len(a.lines)
pagebreak(None, False)
a("L_cons:")
def clears(fl):
    a("v_mov_b32 v4, -1\nv_mov_b32 v5, -1\nv_mov_b32 v6, -1\nv_mov_b32 v7, -1")
    a(f"v_lshrrev_b32 v1, 3, v0\nv_mul_u32_u24 v1, 2560, v1\nv_and_b32 v2, 0x70, v{aL16}\ns_lshl_b32 s3, s{sC}, 7\ns_add_u32 s3, s3, s{sB0}\nv_add3_u32 v1, v1, v2, s3")
    a(f"s_mul_i32 s0, s{sT}, 20480\ns_add_u32 s1, s0, 81920\ns_add_u32 s3, s{sT}, 8\ns_cmp_lt_u32 s3, s{sNO}\ns_cselect_b32 s3, s1, {OOB:#x}\ns_add_u32 s3, s3, 81920")
    st = "buffer_store_dword v4" if OPT["cdw"] else "buffer_store_dwordx4 v[4:7]"
    if OPT["dbg"] & 8: a("v_bfrev_b32 v1, 1")
    for r in (0, 1, 3): a(f"{st}, v1, {S(OUT)}, s{r} offen{fl}")
    a(f"v_lshrrev_b32 v1, 4, v0\nv_mul_u32_u24 v1, {2560 - 256}, v1\nv_add_u32 v1, v1, v{aL16}")
    a(f"s_mul_i32 s1, s{sGID}, 15360\ns_lshl_b32 s3, s{sC}, 8\ns_add_u32 s1, s1, s3\ns_and_b32 s3, s{sT}, 1\ns_mul_i32 s3, s3, 7680\ns_add_u32 s1, s1, s3\ns_add_u32 s1, s1, {E2}")
    a(f"s_cmp_lt_u32 s{sT}, 2\ns_cselect_b32 s1, s1, {OOB:#x}\ns_mov_b32 exec_hi, 0xffff\n{st}, v1, {S(WS)}, s1 offen{fl}\ns_mov_b64 exec, -1")
    return 4
def pf0(p):
    if OPT["pf0"] & 1 and p == OPT["pfp"] % 10:
        a(f"s_cmp_eq_u32 s{sWV}, 0\ns_cbranch_scc0 L_pa\ns_mul_i32 s3, s2, {27*128}\nv_lshlrev_b32 v1, 7, v0\ns_mov_b64 exec, {(1 << 27) - 1:#x}\nbuffer_load_dword v255, v1, {S(WO)}, s3 offen\ns_mov_b64 exec, -1\nL_pa:")
    if OPT["pf0"] & 2 and p == OPT["pfp"] // 10:
        a(f"s_cmp_eq_u32 s{sWV}, 1\ns_cbranch_scc0 L_pb\ns_lshl_b32 s3, s{sC}, 2\ns_add_u32 s3, s3, s{sJ}\ns_sub_u32 s0, s3, 40\ns_cselect_b32 s3, s3, s0\ns_mul_i32 s3, s3, {16*3840}")
        a(f"s_mul_i32 s0, s{sG}, 1280\ns_add_u32 s3, s3, s0\ns_lshl_b32 s0, s{sC}, 7\ns_add_u32 s3, s3, s0\nv_mul_u32_u24 v1, 3840, v0\ns_mov_b64 exec, 0xffff\nbuffer_load_dword v255, v1, {S(W)}, s3 offen\ns_mov_b64 exec, -1\nL_pb:")
pf0(0)
if OPT["cpos"] == 2: ncl = clears(" sc1" if OPT["clr"] else "")
def w1():
    a(f"s_cmp_eq_u32 s{sSB}, 9\ns_cselect_b32 s3, {-10*245760}, 0\ns_add_u32 s3, s3, 245760\nv_add_u32 v254, s3, v254\ns_mul_i32 s3, s{sT}, 3072\ns_add_u32 m0, s3, {S0 + SLOT + 12288}\ns_mov_b32 s0, {32*3840}")
    for h in range(2):
        for k in range(3):
            a(f"buffer_load_dwordx4 v254, {S(W)}, {'s0' if h else 0} offen offset:{1280*k} lds")
            if (h, k) != (1, 2): a(f"s_addk_i32 m0, {-256 if k < 2 else 12288 + 512}")
suB(); suC()
if OPT["w1"] == 0: w1()
if OPT["wc"] == 2: wo_setup(249)
suD(0); suE(0)
a(f"s_lshl_b32 s3, s{sT}, 5\nv_xor_b32 v3, s3, v3\nv_mul_u32_u24 v4, 3072, v2\nv_add_u32 v3, v3, v4\nv_add_u32 v{vAW}, {S0 + 12288}, v3\ns_mov_b32 s{sI}, 0")
stamp(0, 5)
if OPT["cpos"] == 0: ncl = clears(" sc1" if OPT["clr"] else "")
stamp(1, 5)
a(f"v_mov_b32 v3, 0\nv_lshlrev_b32 v2, 2, v0\ns_mov_b32 exec_hi, 0")
a(f"ds_write_b32 v2, v3 offset:{MODE}\nds_write_b32 v2, v3 offset:{MODE + 8*PITCH}\ns_mov_b64 exec, -1")
a("v_and_b32 v1, 15, v0\nv_lshrrev_b32 v2, 4, v0")
a(f"v_lshrrev_b32 v3, 1, v1\nv_xor_b32 v3, v3, v2\nv_lshlrev_b32 v3, 4, v3\nv_lshl_add_u32 v3, v1, 7, v3\nv_add_u32 v{vAX0}, {S0}, v3\nv_xor_b32 v{vAX1}, 64, v{vAX0}")
a(f"v_mul_u32_u24 v3, {PITCH}, v1\nv_lshl_add_u32 v3, v2, 3, v3\ns_lshl_b32 s3, s{sT}, 5\ns_add_u32 s3, s3, {QB}\nv_add_u32 v{vSW}, s3, v3")
a(f"v_lshlrev_b32 v{vSTR}, 4, v1")
assert STATS == 0
if OPT["pg"]:
    for k in range(4): a(f"s_cmp_eq_u32 s{sWV}, {k}\ns_cbranch_scc0 L_cw{k}"); warm("c0", k, 4); a(f"L_cw{k}:")
pf0(1)
if OPT["w1"] == 1: w1()
if OPT["cpos"] == 1: ncl = clears(" sc1" if OPT["clr"] else "")
assert OPT["cpos"] == 1
a(f"s_cmp_lt_u32 s{sWV}, 2\ns_cselect_b32 s{sXT}, s{sXT}, 99")
a(f"s_mov_b32 s{sRD}, {S0}\ns_min_u32 s{sEV}, s{sXT}, {E1_}\ns_waitcnt vmcnt({ncl + 6}) lgkmcnt(0)")
def rdW(d, s_, ks):
    L(f"ds_read_b64_tr_b16 {V(d,2)}, v{vAW} offset:{12288*ks + 1024*s_}")
    return L(f"ds_read_b64_tr_b16 {V(d+2,2)}, v{vAW} offset:{12288*ks + 1024*s_ + 512}")
def rdX(d, t, ks): return L(f"ds_read_b128 {V(d+4*t,4)}, v{vAX0+ks} offset:{2048*t}")
def acc(s_, t): return ACC + 4 * (6 * s_ + t)
stamp(2); stamp(2, 5)
SEG = (1, 0, 2) if OPT['ord'] else (1, 2, 0)
PRE = OPT["pre"]
def rdlist(ph):
    o = []
    def w(s_):
        d = WV2 if (ph, s_) == (1, 1) else WF + 12 * ph + 4 * s_
        for e in range(2): o.append((("w", ph, s_), f"ds_read_b64_tr_b16 {V(WF+12*ph+4*s_+2*e,2)}, v{vAW} offset:{12288*ph + 1024*s_ + 512*e}"))
    w(SEG[0])
    for t in range(6): o.append((("x", ph, t), f"ds_read_b128 {V(XF+24*ph+4*t,4)}, v{vAX0+ph} offset:{2048*t}"))
    w(SEG[1]); w(SEG[2])
    return o
WV2 = WF + 24
def step(first):
    a("s_barrier")
    stampi(0)
    L.reset(); ids = {}
    M = [(s_, t) for s_ in SEG for t in range(6)]
    seq = ([] if first else [(1, "o") + m for m in M[PRE:]]) + [(0, "n") + m for m in M] + [(1, "n") + m for m in M[:PRE]]
    no = 0 if first else 18 - PRE
    pend = rdlist(0); p1 = rdlist(1)
    def rd(n=1):
        for _ in range(n):
            if pend: k, tx = pend.pop(0); ids[k] = L(tx)
    rd(12 if first else 2)
    fill = [f"s_add_u32 s3, s{sRD}, {SLOT}\ns_cmp_eq_u32 s3, {S0 + 4*SLOT}", f"s_cselect_b32 s3, {S0}, s3\ns_sub_u32 s{sDL}, s3, s{sRD}",
            f"s_mov_b32 s{sRD}, s3\nv_add_u32 v{vAX0}, s{sDL}, v{vAX0}", f"v_add_u32 v{vAW}, s{sDL}, v{vAW}\nv_add_u32 v{vAX1}, s{sDL}, v{vAX1}"]
    if not first: fill.append(f"s_cmp_eq_u32 s{sI}, s{sEV}\ns_cbranch_scc1 L_ev\nL_evb:")
    fill.append("STAMP"); fill.append(f"s_add_u32 s{sI}, s{sI}, 1\ns_cmp_lt_u32 s{sI}, 9"); fill.append(f"s_waitcnt vmcnt({ncl}) lgkmcnt(0)" if first else "s_waitcnt lgkmcnt(0)")
    for n, (ph, kd, s_, t) in enumerate(seq):
        if n == no: pend += p1
        if kd == "n":
            need = max(ids["x", ph, t], ids["w", ph, s_])
            if s_ == SEG[0] and t == 0 and L.n - ids.get(("x", ph, 5), L.n) >= 4: need = ids["x", ph, 5]
            L.wait(need)
        mfma(acc(s_, t), WF + 12 * ph + 4 * s_, XF + 24 * ph + 4 * t, "0" if first and ph == 0 else None)
        if pend: rd()
        elif n >= no and fill and (len(fill) > 1 or n >= len(seq) - 2):
            f = fill.pop(0)
            if f == "STAMP": stampi(1)
            else: a(f)
    for f in fill: stampi(1) if f == "STAMP" else a(f)
step(1)
CL0 = len(a.lines)
pagebreak("c0")
a("L_cloop:")
step(0)
a("s_cbranch_scc1 L_cloop")
L.reset(); ids = {}
def wreg(ks, s_): return WV2 if (ks, s_) == (1, 1) else WF + 12 * ks + 4 * s_
later = []
def lw(ks, s_):
    for e in range(2): later.append((("w", ks, s_), f"ds_read_b64_tr_b16 {V(wreg(ks,s_)+2*e,2)}, v{vAW} offset:{12288*ks + 1024*s_ + 512*e}"))
def lx(ks):
    for t in range(6): later.append((("x", ks, t), f"ds_read_b128 {V(XF+48*ks+4*t,4)}, v{vAX0+ks} offset:{2048*t}"))
lw(0, 1); lx(0); lw(1, 1); lx(1); lw(0, SEG[1]); lw(0, SEG[2])
def rd_later(n=1):
    for _ in range(n):
        if later: k, tx = later.pop(0); ids[k] = L(tx)
def old(s_, t): mfma(acc(s_, t), WF + 12 + 4 * s_, XF + 24 + 4 * t)
def new(s_, ks, t):
    L.wait(max(ids["w", ks, s_], ids["x", ks, t])); mfma(acc(s_, t), wreg(ks, s_), XF + 48 * ks + 4 * t)
def mlist(s_): return [(s_, "o", t) for t in range(6)] + [(s_, ks, t) for ks in range(2) for t in range(6)]
def mm(q):
    s_, k, t = q.pop(0)
    if k != "o" and ("w", k, s_) not in ids: rd_later(9)
    old(s_, t) if k == "o" else new(s_, k, t)
    if k == "o" and t == 5 and s_ != 1: lw(1, s_)
def fixup(s_, q, per):
    for r in range(4):
        a(f"v_mov_b32_dpp v{CS+r}, v{acc(s_,0)+r} row_newbcast:0 {DPPM}")
    wr = None
    for t in range(6):
        A = acc(s_, t); st = V(ST + 2 * t, 2)
        if per or not OPT["pk"]:
            ops = [f"v_fmac_f32 v{A+h}, v{CS+h}, v{ST+2*t}" for h in range(4)]
        else:
            ops = [f"v_pk_fma_f32 {V(A+h,2)}, {V(CS+h,2)}, {st}, {V(A+h,2)} op_sel_hi:[1,0,1]" for h in (0, 2)]
        ops += [f"v_cvt_pk_bf16_f32 v{A}, v{A}, v{A+1}", f"v_cvt_pk_bf16_f32 v{A+1}, v{A+2}, v{A+3}"]
        for i, o in enumerate(ops):
            if q and ((per >= 2 and i == 3) or (per >= 3 and i == 0)): mm(q)
            a(o)
        if q and per >= 1: mm(q)
        if (s_, t) in ((SEG[1], OPT["bk"]), (SEG[2], OPT["bv"])): L.wait(L.n - t); a("s_barrier")
        L(f"ds_write_b64 v{vSW}, {V(A,2)} offset:{TSTR*s_ + 16*PITCH*t}")
km, qm, vm = mlist(1), mlist(SEG[1]), mlist(SEG[2])
a(f"v_mov_b32 v1, {MODE}")
sr = ["ds_read_b32 v1, v1"] + [f"ds_read2_b64 {V(ST+2*t,4)}, v{vSTR} offset0:{32*t} offset1:{32*t + 32}" for t in range(0, 6, 2)]
for i in range(PRE):
    s_, _, t = (km if i < 6 else qm if i < 12 else vm).pop(0)
    if t == 5 and s_ != 1: lw(1, s_)
for o in sr: a(o)
a(f"s_waitcnt lgkmcnt(0)\nv_readfirstlane_b32 s{sMODE}, v1\ns_barrier")
stamp(3); stamp(9, 2); stamp(0, 3)
if not OPT["clr"]: a(f"s_cmp_eq_u32 s{sMODE}, 1\ns_cbranch_scc0 L_gs\nL_gsb:")
rd_later(2)
n = 0
for q in (km, qm, vm):
    while q[0][1] == "o" and (n < 6 or q is km): mm(q); rd_later(); n += 1
rd_later(2)
while km: mm(km); rd_later()
mm(qm); rd_later(9)
assert not later
fixup(1, qm, -(-len(qm) // 6))
while qm: mm(qm)
mm(vm)
fixup(SEG[1], vm, -(-len(vm) // 6) if not OPT["ord"] else OPT["vq"])
if not OPT["ord"]:
    while vm: mm(vm)
    fixup(0, [], 0)
else:
    for _ in range(2):
        if vm: mm(vm)
    a(f"s_setprio {OPT['vprio']}")
stamp(1, 3)
a("s_waitcnt lgkmcnt(0)\ns_barrier")
stamp(4); stamp(2, 3)
if OPT["ord"]:
    L.done = L.n
    a(f"v_mov_b32 v1, {VCN}\nv_mov_b32 v2, 1")
    while vm: mm(vm)
    fixup(2, [], 0)
    a("s_mov_b64 exec, 1\nds_add_u32 v1, v2\ns_mov_b64 exec, -1\ns_setprio 0")
    stamp(4, 3)
if STAGE == "A":
    a("L_dumpA:")
    a(f"s_lshl_b32 s3, s{sWV}, 10\nv_add_u32 v1, s3, v{aL16}\ns_mul_i32 s3, s2, 49152\ns_add_u32 s3, s3, {DUMP}")
    for i in range(6):
        a(f"ds_read_b128 v[16:19], v1 offset:{8192*i}\ns_waitcnt lgkmcnt(0)\nbuffer_store_dwordx4 v[16:19], v1, {S(WS)}, s3 offen\ns_waitcnt vmcnt(0)\ns_add_u32 s3, s3, 8192")
    finish()
a(f"s_cmp_lt_u32 s{sWV}, 2\ns_cbranch_scc0 L_c23")
attention("e")
if STAGE == "B": a("s_waitcnt vmcnt(0)"); finish()

ldWR(); hinit()
a(f"s_lshl_b32 s0, s{sWV}, 13\ns_add_u32 s0, s0, {EX}\nv_add_u32 v4, s0, v{aL16}\ns_lshl_b32 s0, s{sWV}, 2\ns_add_u32 s0, s0, {XFL}\ns_waitcnt vmcnt(0)")
wrprep(XR)
a("v_mov_b32 v2, s0\nL_fx:")
if OPT["fsl"]: a(f"s_sleep {OPT['fsl']}")
a("ds_read_b32 v1, v2\ns_waitcnt lgkmcnt(0)\nv_cmp_ne_u32 vcc, 2, v1\ns_cbranch_vccnz L_fx")
stamp(9); stamp(9, 4)
if OPT["lprio"]: a(f"s_setprio {OPT['lprio']}")
for q in range(8): a(f"ds_read_b128 {V(OF+4*q,4)}, v4 offset:{1024*q}")
for q in range(8):
    a(f"s_waitcnt lgkmcnt({7-q})")
    for e in range(4): a(f"v_add_f32 v{H+4*(q&3)+e}, v{H+4*(q&3)+e}, v{OF+4*q+e}")
stamp(10, 4)
a("s_branch L_tail")
deferred()
CL1 = len(a.lines)
pad("h")
a("L_c23:")
attention("l")
if STAGE == "B": a("s_waitcnt vmcnt(0)")
finish()
deferred("h")
CL2 = len(a.lines)
pad("h")
a(f"L_ev:\ns_cmp_eq_u32 s{sI}, {EV1}\ns_cbranch_scc0 L_ev1\ns_waitcnt vmcnt(0)\nL_ev1:\ns_max_u32 s{sEV}, s{sXT}, {EV1}")
a(f"s_cmp_eq_u32 s{sI}, s{sXT}\ns_cbranch_scc0 L_evb\ns_sub_u32 s0, s{sRD}, s{sDL}"); capt("s0"); a("s_branch L_evb")
if not OPT["clr"]:
    a("L_gs:")
    clears(" sc1")
    a("s_waitcnt vmcnt(0)\ns_barrier\ns_barrier\ns_branch L_gsb")

if OPT["pg"]:
    mv_ = a.lines[CL2:]; mw_ = a.lines[CL1:CL2]; del a.lines[CL1:]; a.lines[CL0+1:CL0+1] = mv_; a.lines[CLX:CLX] = mw_

GATE, UP, DOWN, SM = 4, 8, 12, 28
sMm = 36
GSL = 42240; NGS = 3; MISC = NGS * GSL
SSZ = 8448
ACTB, MZ, WINB, LNL = MISC, MISC + 192, MISC + 256, MISC + 512
GF, DF, GA, XS, IDX = 8, 168, 228, 236, 7
a("L_moe:")
a(f"s_cmp_ge_u32 s{sU}, 32\ns_cbranch_scc1 L_end")
a(f"s_lshr_b32 s{sWV}, s{sWV}, 6\nv_and_b32 v0, 63, v0\ns_lshl_b32 s{sMm}, s{sJ}, 1\ns_add_u32 s{sMm}, s{sMm}, s{sU}\ns_sub_u32 s{sMm}, s{sMm}, 30\ns_mov_b32 s{sBUD}, {BUDGET}")
a("v_lshlrev_b32 v6, 4, v0\nv_mov_b32 v132, 0\nv_mov_b32 v133, 0\nv_mov_b32 v144, 0\ns_waitcnt lgkmcnt(0)")
mksrd(WS, "ws", 1 << 28); mksrd(DBG, "dbg", 256); mksrd(GATE, "gate", 640 * 3072); mksrd(UP, "up", 640 * 3072); mksrd(DOWN, "down", 1536 * 1280); mksrd(OUT, "out", 2048 * 1280)
stamp(0)
a("v_mov_b32 v8, -1\nv_mov_b32 v9, -1\nv_mov_b32 v10, -1\nv_mov_b32 v11, -1")
a(f"s_lshl_b32 s0, s{sMm}, 14\ns_lshl_b32 s3, s{sWV}, 11\ns_add_u32 s0, s0, s3\ns_add_u32 s0, s0, {RJ}")
for i in range(2): a(f"buffer_store_dwordx4 v[8:11], v6, {S(WS)}, s0 offen offset:{1024*i} sc1")
def rootup(n):
    a(f"s_waitcnt vmcnt({n})\ns_barrier\ns_cmp_eq_u32 s{sWV}, 0\ns_cbranch_scc0 L_nroot")
    a(f"s_lshl_b32 s0, s{sMm}, 4\nv_mov_b32 v8, 1\ns_mov_b64 exec, 1\nbuffer_store_dword v8, off, {S(DBG)}, s0 sc1")
    if OPT["ddie"] >= 0: a(f"v_mov_b32 v9, s98\nbuffer_store_dword v9, off, {S(DBG)}, s0 offset:4 sc1")
    a("s_mov_b64 exec, -1\nL_nroot:")
if STAGE != "F": rootup(0); finish()
vGX, vGS, vRX, vRS = 4, XS + 13, XS + 14, XS + 15
sB5, sKO = 44, 45
a(f"s_and_b32 s{sB5}, s{sMm}, 1\ns_mul_i32 s0, s{sJ}, 384\ns_lshl_b32 s1, s{sB5}, 8\ns_add_u32 s1, s1, s0\ns_mul_i32 s3, s{sWV}, {8*3072}\ns_add_u32 s1, s1, s3")
a(f"v_lshrrev_b32 v1, 3, v0\nv_mul_u32_u24 v1, 3072, v1\ns_lshr_b32 s3, s{sWV}, 1\nv_xor_b32 v2, s3, v0\nv_and_b32 v2, 7, v2\nv_lshl_add_u32 v1, v2, 4, v1\nv_add_u32 v{vGX}, s1, v1\nv_xor_b32 v{vGX+1}, 64, v{vGX}")
a(f"s_lshl_b32 s1, s{sB5}, 6\ns_add_u32 s0, s0, s1\ns_and_b32 s3, s{sWV}, 3\ns_mul_i32 s1, s3, {16*3072}\ns_add_u32 s0, s0, s1\ns_add_u32 s0, s0, 128")
a(f"v_lshrrev_b32 v1, 2, v0\nv_mul_u32_u24 v1, 3072, v1\nv_xor_b32 v2, s3, v0\nv_and_b32 v2, 3, v2\nv_lshl_add_u32 v1, v2, 4, v1\nv_add_u32 v{vGS}, s0, v1")
a(f"s_cmp_lt_u32 s{sWV}, 4\ns_cselect_b64 s[{SM}:{SM+1}], s[{GATE}:{GATE+1}], s[{UP}:{UP+1}]\ns_cselect_b32 s62, 0, 128\ns_mov_b32 s{SM+2}, {640*3072:#x}\ns_mov_b32 s{SM+3}, 0x20000")
a(f"s_lshl_b32 s61, s{sWV}, 10\ns_add_u32 s62, s62, s61\ns_mul_i32 s{sB5}, s{sB5}, {5*64*3072}\ns_mul_i32 s46, s{sMm}, {96*1280}")
a(f"s_and_b32 s3, s{sMm}, 1\ns_cselect_b32 s65, 40960, 0\ns_cselect_b32 s66, 0, 81920\ns_add_u32 s65, s65, s46\ns_add_u32 s66, s66, s46\ns_add_u32 s67, s65, 40960")
def koff(i): a(f"s_add_u32 s{sKO}, s{sB5}, {i*64*3072}" if i < 5 else f"s_sub_u32 s{sKO}, {i*64*3072}, s{sB5}")
def dissue(hh, i, sl):
    a(f"s_lshl_b32 s3, s{sWV}, 6\ns_addk_i32 s3, {512*i}\nv_add_u32 v1, s3, v0\nv_mul_u32_u24 v2, 52429, v1\nv_lshrrev_b32 v2, 22, v2")
    a(f"v_and_b32 v3, 3, v2\nv_lshlrev_b32 v3, 1, v3\nv_and_or_b32 v3, v2, 8, v3\nv_xor_b32 v1, v1, v3\nv_lshlrev_b32 v1, 4, v1")
    a(f"s_add_u32 m0, s61, {sl + 8192*i}\ns_nop 0\nbuffer_load_dwordx4 v1, {S(DOWN)}, s{65 + hh} offen lds")
UN = [[("x", i), ("s", i)] for i in range(5)] + [[("x", 5), ("x", 6)], [("x", 7), ("x", 8)], [("x", 9)]]
SU, DU = [[("s", i) for i in range(5, 10)]], [[("d", h)] for h in range(3)]
UN = {0: UN + DU + SU, 1: UN + SU + DU, 2: UN[:6] + SU + UN[6:] + DU}[OPT["uord"]]
def place(u):
    o = (u % NGS) * GSL; r = []
    for kd, i in UN[u]: r.append((kd, i, o)); o += {"x": 16384, "s": SSZ, "d": 40960}[kd]
    return r
def uissue(u):
    n = 0
    for kd, i, o in place(u):
        if kd == "d":
            for k in range(5): dissue(i, k, o)
            n += 5; continue
        koff(i)
        if kd == "x":
            for m_, srd_ in ((0, GATE), (1, UP)): a(f"s_add_u32 m0, s61, {o + 8192*m_}\nbuffer_load_dwordx4 v{vGX+m_}, {S(srd_)}, s{sKO} offen lds")
            n += 2
        else: a(f"s_add_u32 m0, s62, {o}\nbuffer_load_dwordx4 v{vGS}, {S(SM)}, s{sKO} offen lds"); n += 1
    return n
a(f"s_cmp_lt_u32 s{sWV}, {OPT['rw']}\ns_cbranch_scc1 L_r0")
n0 = uissue(0)
a(f"s_waitcnt vmcnt({n0})\ns_barrier\ns_branch L_r1\nL_r0:")
rootup(0)
uissue(0)
a("L_r1:")
nI = {1: uissue(1)}
a("v_lshrrev_b32 v1, 5, v0\nv_bfe_u32 v2, v0, 2, 1\nv_lshl_add_u32 v1, v1, 2, v2\nv_bfe_u32 v2, v0, 4, 1\nv_bfe_u32 v3, v0, 3, 1\nv_lshl_add_u32 v3, v3, 1, v2\nv_lshl_add_u32 v1, v3, 4, v1")
a(f"v_xor_b32 v3, s{sWV}, v3\nv_and_b32 v2, 1, v0\nv_lshlrev_b32 v2, 3, v2\nv_lshl_add_u32 v2, v3, 4, v2\nv_bfe_u32 v3, v0, 1, 1")
a(f"v_lshl_add_u32 v{vRS}, v1, 6, v2\nv_mul_u32_u24 v8, 4224, v3\nv_add_u32 v{vRS}, v{vRS}, v8")
a(f"v_lshl_add_u32 v{vRX}, v1, 7, v2\nv_mul_u32_u24 v8, {8192 + 64}, v3\nv_xor_b32 v{vRX}, v{vRX}, v8")
vXS, vACT, vA1, vA2, vE4 = 252, 253, 254, 255, 5
for i in range(8): a(f"v_mov_b32 v{GA+i}, 0")
a(f"v_mov_b32 v1, 0x4444\nv_mov_b32 v2, 0xeeee\ns_mov_b32 vcc_lo, 0xaaaaaaaa\ns_mov_b32 vcc_hi, 0xaaaaaaaa\nv_cndmask_b32 v{IDX}, v1, v2, vcc")
a(f"v_and_b32 v1, 48, v0\nv_and_b32 v2, 1, v0\nv_lshlrev_b32 v2, 4, v2\nv_lshl_add_u32 v{vXS}, v1, 1, v2\nv_add_u32 v{vA1}, {ACTB}, v{vXS}\nv_add_u32 v{vXS}, {LNL}, v{vXS}")
a(f"v_add_u32 v1, {ACTB + 128}, v1\nv_mov_b32 v2, {MZ}\nv_cndmask_b32 v{vA2}, v1, v2, vcc\nv_mov_b32 v3, 0\nv_lshl_add_u32 v2, v0, 2, v2\ns_mov_b32 exec_hi, 0\nds_write_b32 v2, v3\ns_mov_b64 exec, -1")
a(f"s_and_b32 s0, s{sWV}, 4\ns_add_u32 s0, s0, s{sWV}\nv_bfe_u32 v1, v0, 4, 1\nv_lshl_add_u32 v1, v1, 2, s0")
a("v_lshrrev_b32 v2, 1, v1\nv_lshlrev_b32 v2, 2, v2\nv_and_or_b32 v2, v1, 1, v2\nv_and_or_b32 v2, v0, 2, v2\nv_bfe_u32 v3, v0, 2, 1\nv_lshl_add_u32 v2, v2, 1, v3")
a(f"v_and_b32 v3, 1, v0\nv_lshl_add_u32 v2, v2, 1, v3\nv_and_b32 v3, 7, v0\nv_lshl_add_u32 v3, v1, 3, v3\nv_cmp_gt_u32 vcc, 8, v1\nv_cndmask_b32 v2, v3, v2, vcc\nv_lshlrev_b32 v2, 1, v2\nv_add_u32 v{vACT}, {ACTB}, v2")
a(f"s_lshl_b32 s47, s{sWV}, 15\ns_lshl_b32 s3, s{sMm}, 6\ns_add_u32 s47, s47, s3\ns_add_u32 s47, s47, {RJ + R_E4}")
a(f"v_lshrrev_b32 v1, 2, v0\nv_and_b32 v2, 3, v0\nv_lshlrev_b32 v2, 4, v2\nv_lshl_add_u32 v2, v1, 10, v2\nv_lshlrev_b32 v1, 4, v1\nv_add_u32 v1, {4096 - 64}, v1\ns_mov_b64 vcc, 0xffff\nv_cndmask_b32 v{XS+10}, v1, v2, vcc")
a(f"s_cmp_lt_u32 s{sWV}, 4\ns_cselect_b32 s50, 0x00ff0000, 0\ns_or_b32 s50, s50, 0xff\ns_mov_b32 s51, 0")
sFT, sFE, sWIN, sXS = 52, 53, 54, 55
a(f"s_sub_u32 s3, s{sWV}, 4\ns_lshl_b32 s3, s3, 4\ns_add_u32 s{sFT}, s3, s{sMm}\ns_mul_i32 s3, s{sFT}, 52\ns_lshr_b32 s3, s3, 8\ns_mul_i32 s3, s3, {RJS - 5120}\ns_lshl_b32 s{sFE}, s{sFT}, 10\ns_add_u32 s{sFE}, s{sFE}, s3\ns_add_u32 s{sFE}, s{sFE}, {RJ + R_E4}")
vFC, vFB, vSG, FD = 128, 129, 130, 40
a(f"s_mov_b32 s49, {BUDGET >> 2}\ns_mov_b32 s63, 0")
a(f"s_mul_i32 s3, s{sFT}, 52\ns_lshr_b32 s3, s3, 8\ns_mul_i32 s0, s3, 5\ns_sub_u32 s0, s{sFT}, s0\ns_mul_i32 s3, s3, 80\ns_lshl_b32 s1, s0, 2\ns_cmp_eq_u32 s0, 4\ns_cselect_b32 s1, 64, s1\ns_cselect_b32 s0, 0, 4\ns_cselect_b32 s48, 2, 0\ns_add_u32 s3, s3, s1")
a(f"v_bfe_u32 v1, v0, 4, 1\nv_lshrrev_b32 v2, 5, v0\nv_lshl_add_u32 v1, v1, 1, v2\nv_lshlrev_b32 v1, s0, v1\nv_and_b32 v2, 3, v0\nv_lshlrev_b32 v2, s48, v2\nv_add3_u32 v1, v1, v2, s3\nv_lshlrev_b32 v{vFC}, 1, v1\nv_lshlrev_b32 v{vFB}, 2, v1")
a("v_lshrrev_b32 v1, 4, v0\nv_bfe_u32 v2, v0, 2, 2\nv_lshl_add_u32 v1, v1, 3, v2\nv_mul_u32_u24 v1, 1280, v1\nv_and_b32 v3, 1, v0\nv_lshl_add_u32 v1, v3, 3, v1")
a(f"v_bfe_u32 v2, v0, 2, 3\nv_lshlrev_b32 v2, 1, v2\nv_bfe_u32 v3, v0, 1, 1\ns_mul_i32 s0, s{sWV}, 10")
for i in range(5): a(f"s_add_u32 s3, s0, {2*i}\nv_add_u32 v{XS+i}, s3, v3\nv_xor_b32 v{XS+i}, v{XS+i}, v2\nv_lshl_add_u32 v{XS+i}, v{XS+i}, 4, v1")
for u in range(len(UN)):
    a(f"s_waitcnt vmcnt({nI.get(u + 1, 0) + (u == 6)}) lgkmcnt(0)\ns_barrier")
    if u + 2 < len(UN): nI[u + 2] = uissue(u + 2)
    sk = False
    for kd, i, o in place(u):
        if kd == "d":
            for k in range(5):
                a(f"v_add_u32 v1, {o}, v{XS+k}")
                for e in range(2): a(f"ds_read_b64_tr_b16 {V(DF+12*k+4*i+2*e,2)}, v1 offset:{1280*4*e}")
            continue
        if kd == "s" and not sk: a(f"s_cmp_lt_u32 s{sWV}, 4\ns_cbranch_scc0 L_g{u}"); sk = True
        a(f"v_add_u32 v1, {o}, v{vRX if kd == 'x' else vRS}")
        p = 128 if kd == "x" else 64
        for hh in range(2):
            for e in range(2): a(f"ds_read_b64_tr_b16 {V(GF+80*(kd == 's')+8*i+4*hh+2*e,2)}, v1 offset:{p*(8*hh + 2*e)}")
    if sk: a(f"L_g{u}:")
    if u == 5: a(f"v_and_b32 v{XS+12}, 0xf0, v6\nbuffer_load_dword v{XS+11}, v{XS+12}, {S(DBG)}, 0 offen sc1")
    if u == 7: stamp(1)
stamp(2)
pagebreak()
warm("m", 0, 1)
a(f"v_mov_b32 v{vE4}, v{XS+10}\nv_mov_b32 v4, {WINB}\ns_mov_b32 s61, 0\ns_cmp_lt_u32 s{sWV}, 7\ns_cbranch_scc1 L_np")
a(f"L_rt:\nv_cmp_ne_u32 vcc, 1, v{XS+11}\ns_cbranch_vccz L_rtg\nbuffer_load_dword v{XS+11}, v{XS+12}, {S(DBG)}, 0 offen sc1\ns_waitcnt vmcnt(0)\ns_sub_u32 s{sBUD}, s{sBUD}, 1\ns_cbranch_scc0 L_rt\ns_mov_b32 s{sBUD}, 0\nL_rtg:")
vKA, vKB, sKO_, sAG, sSP = 144, 146, 64, 60, 61
NFL = 16
a(f"v_bfe_u32 v1, v0, 2, 3\nv_lshlrev_b32 v1, 15, v1\nv_and_b32 v2, 3, v0\nv_min_u32 v2, 2, v2\nv_mul_u32_u24 v3, 1280, v2\ns_mov_b32 s0, {RJ}\nv_add3_u32 v{vKB+1}, v3, v1, s0\nv_lshl_add_u32 v{vKA}, v2, 7, v1\ns_mul_i32 s0, s{sMm}, 384\ns_add_u32 s{sKO_}, s0, {RJ + R_KEY}")
stamp(3)
vRW = 132
a(f"s_and_b32 s3, s{sMm}, 1\ns_mul_i32 s3, s3, 640\nv_add_u32 v{vRW}, s3, v6\nv_subrev_u32 v2, 1280, v{vRW}\nv_min_u32 v{vRW}, v{vRW}, v2\ns_sub_u32 s3, 1024, s3\nv_add_u32 v{vRW+1}, s3, v6")
row = f"s_mov_b32 m0, {LNL}\ns_mov_b64 exec, -1\nbuffer_load_dwordx4 v{vRW}, {S(WS)}, s{sXS} offen sc1 lds\ns_mov_b32 m0, {LNL + 1024}\ns_mov_b64 exec, 0xffff\nbuffer_load_dwordx4 v{vRW+1}, {S(WS)}, s{sXS} offen sc1 lds"
KP, KV = OPT["kp"], 140
KM = 0x77777777
a(f"s_mov_b32 s{sWIN}, 0\ns_mov_b32 s{sXS}, {OOB:#x}\ns_mov_b32 s{sAG}, {1 << 30}\ns_setprio 3")
def look(k):
    a(row); execset(KM)
    a(f"buffer_atomic_umin v{KV+k}, v{vKA}, {S(WS)}, s{sKO_} offen sc0 sc1")
for k in range(KP): a(f"v_mov_b32 v{KV+k}, -1")
for k in range(KP - 1):
    look(k)
    if OPT["ks"]: a(f"s_sleep {OPT['ks']}")
for k in range(KP):
    a(f"L_pl{k}:")
    look((k + KP - 1) % KP)
    if OPT["sp"]: a(f"s_mov_b32 s62, {k}\ns_cmp_eq_u32 s{sSP}, 2\ns_cbranch_scc1 L_ab\nL_pi{k}:")
    a(f"s_waitcnt vmcnt({3 * (KP - 1)})\nv_cmp_lt_u32 vcc, s{sWIN}, v{KV+k}\ns_sub_u32 s{sAG}, s{sAG}, 1\ns_cbranch_vccz L_pw")
    a(f"s_cselect_b32 s0, s{sSP}, 1\ns_max_i32 s{sAG}, s{sAG}, 0")
    a(f"v_cmp_eq_u32 s[58:59], -1, v{KV+k}\nv_mov_b32 v{vKB}, v{KV+k}\ns_andn2_b64 vcc, vcc, s[58:59]\ns_cbranch_scc0 L_pq{k}")
    if OPT["stamps"] == 1: l = a.label("fu"); a(f"s_cmp_eq_u32 s63, 0\ns_cbranch_scc0 {l}"); stamp(12); a(f"{l}:\ns_add_u32 s63, s63, 1")
    stamp(11)
    a(f"s_mov_b64 exec, -1\nv_cndmask_b32 v{vKB}, 0, v{vKB}, vcc\ns_lshl_b32 s{sSP}, s{sSP}, 1")
    a(f"v_max_u32_dpp v{XS}, v{vKB}, v{vKB} row_ror:8 {DPPM}")
    for r in (4, 2, 1): a(f"v_max_u32_dpp v{XS}, v{XS}, v{XS} row_ror:{r} {DPPM}")
    a(f"v_mov_b32 v{XS+1}, v{XS}\ns_mov_b32 s{sAG}, {KP - 1}\nv_permlane16_swap_b32 v{XS}, v{XS+1}\nv_max_u32 v{XS}, v{XS}, v{XS+1}\ns_mov_b32 exec_hi, 0\nv_cmpx_eq_u32 vcc, v{XS}, v{vKB}")
    a(f"ds_write_b64 v4, {V(vKB,2)}\nv_readfirstlane_b32 s{sXS}, v{vKB+1}\nv_readfirstlane_b32 s{sWIN}, v{vKB}\ns_branch L_pl{(k + 1) % KP}\nL_pq{k}:")
    if OPT["sp"]: a(f"s_cmp_eq_u32 s0, 0\ns_cselect_b32 s{sSP}, 1, s{sSP}\ns_cbranch_scc1 L_pg")
    if OPT["ks"]: a(f"s_sleep {OPT['ks']}")
a(f"s_sub_u32 s{sBUD}, s{sBUD}, 1\ns_cbranch_scc0 L_pl0\ns_mov_b32 s{sBUD}, 0\ns_waitcnt vmcnt(0)\ns_cmp_eq_u32 s0, s0")
a("L_pw:")
stamp(4)
a("s_cbranch_scc0 L_pv")
if OPT["sp"]: a(f"s_cmp_eq_u32 s{sSP}, 1\ns_mov_b32 s{sSP}, 0\ns_mov_b64 exec, -1\ns_cbranch_scc1 L_bb")
a("s_branch L_pg\nL_pv:")
for v in range(KP - 1):
    a(f"s_cmp_eq_u32 s{sAG}, {v}\ns_waitcnt vmcnt({1 + 3 * (KP - 2 - v)})\n" + ("s_cbranch_scc1 L_pg" if v < KP - 2 else "s_branch L_pg"))
if OPT["sp"]: a(f"L_ab:\ns_mov_b64 exec, -1\nds_write_b32 v4, v4 offset:{NFL}\ns_branch L_bb")
a(f"L_xf:\n{row}\ns_waitcnt vmcnt(0)\nL_pg:\ns_mov_b64 exec, -1")
def back(l, d):
    if not OPT["sp"]: return "s_branch L_xf"
    return "\n".join(f"s_cmp_eq_u32 s62, {k}\ns_cbranch_scc1 {l}{(k + d) % KP}" for k in range(KP - 1)) + f"\ns_branch {l}{(KP - 1 + d) % KP}"
def wback(p):
    if OPT["wb"] & p: a(f"s_and_b32 s3, s{sMm}, 1\ns_add_u32 s3, s3, s{sWV}\ns_cmp_eq_u32 s3, 8\ns_cbranch_scc0 L_wb{p}\nbuffer_wbl2 sc1\nL_wb{p}:")
a("L_np:\ns_waitcnt lgkmcnt(0)\ns_barrier")
stamp(5)
def smf(d, A, B): a(f"v_smfmac_f32_16x16x64_bf16 {V(d,4)}, {V(A,4)}, {V(B,8)}, v{IDX}")
a(f"s_cmp_lt_u32 s{sWV}, 4\ns_cbranch_scc1 L_xh")
XL = 88
wback(1)
a(f"ds_read_b64 v[2:3], v4")
for s in range(10): a(f"ds_read_b128 {V(XL+4*s,4)}, v{vXS} offset:{128*s}")
def slook(k):
    if OPT["sp"]: a(f"s_cmp_eq_u32 s{sSP}, 0\ns_cbranch_scc1 L_sl{k}"); look(k); a(f"s_mov_b64 exec, -1\nL_sl{k}:")
slook(0)
a(f"s_waitcnt lgkmcnt(10)\nv_readfirstlane_b32 s56, v2\nv_readfirstlane_b32 s57, v3")
fo = [f"s_and_b32 s0, s57, 0x7fff\ns_add_u32 s57, s57, s0\ns_add_u32 s57, s57, {R_BASE}\ns_and_b32 s1, s56, 0xfffff800",
      f"s_ashr_i32 s3, s1, 31\ns_not_b32 s3, s3\ns_or_b32 s3, s3, 0x80000000\ns_xor_b32 s1, s1, s3", f"s_andn2_b32 s56, 2047, s56\ns_mul_i32 s56, s56, 1280\nv_mov_b32 v{vSG}, s1",
      f"v_mul_f32 v{vSG}, 0xbfb8aa3b, v{vSG}", f"v_exp_f32 v{vSG}, v{vSG}", f"v_add_f32 v{vSG}, 1.0, v{vSG}", f"v_rcp_f32 v{vSG}, v{vSG}"]
for s in range(10):
    a(f"s_waitcnt lgkmcnt({9-s})"); smf(GA, XL + 4 * s, GF + 8 * s)
    if fo: a(fo.pop(0))
assert KP == 3
slook(1)
a("s_branch L_xj"); pad("m"); a("L_xh:")
for s in range(4): a(f"ds_read_b128 {V(XS+4*s,4)}, v{vXS} offset:{128*s}")
for s in range(10):
    a(f"s_waitcnt lgkmcnt({min(3, 9-s)})")
    smf(GA, XS + 4 * (s % 4), GF + 8 * s); smf(GA + 4, XS + 4 * (s % 4), GF + 80 + 8 * s)
    if s + 4 < 10: a(f"ds_read_b128 {V(XS+4*(s%4),4)}, v{vXS} offset:{128*(s+4)}")
a("L_xj:\ns_mov_b64 vcc, 0xffff")
a(f"v_add_f32 v1, v{GA}, v{GA+1}\nv_add_f32 v2, v{GA+4}, v{GA+5}\nv_cndmask_b32 v1, v2, v1, vcc")
a(f"v_mul_f32 v2, 0xbfb8aa3b, v1\nv_cmp_u_f32 vcc, v1, v1\nv_exp_f32 v2, v2\nv_mul_f32_dpp v3, v1, v1 row_ror:8 {DPPM}\nv_add_f32 v2, 1.0, v2\nv_rcp_f32 v2, v2\ns_mov_b64 exec, s[50:51]")
a(f"v_mul_f32 v1, v2, v3\nv_cvt_pk_bf16_f32 v1, v1, v1\nds_write_b16 v{vACT}, v1\ns_mov_b64 exec, -1\ns_cbranch_vccnz L_xn\nL_xnb:")
DEFER.append(f"L_xn:\nds_write_b32 v4, v4 offset:{NFL}\ns_branch L_xnb")
stamp(6)
DEFER.append(f"L_xsr:\ns_sub_u32 s49, s49, 1\ns_cbranch_scc1 L_xsgo\n" + "\n".join(f"v_mov_b32 v{GA+i}, 0" for i in (0, 1, 4, 5))
             + f"\ns_waitcnt lgkmcnt(0)\ns_barrier\ns_cmp_eq_u32 s{sWV}, 7\ns_cbranch_scc0 L_np\nds_write_b32 v4, v{GA} offset:{NFL}\ns_cmp_eq_u32 s{sSP}, 2\ns_cbranch_scc0 L_xf\ns_mov_b32 s{sSP}, 0\ns_mov_b64 exec, {KM:#x}\n" + back("L_pi", 0))
if OPT["sp"]: a(f"s_cmp_eq_u32 s{sSP}, 0\ns_cbranch_scc0 L_pl0")
a(f"L_bb:\ns_waitcnt lgkmcnt(0)\ns_barrier")
DD = 8
a(f"ds_read_b32 v1, v4 offset:{NFL}\nds_read_b128 {V(XS,4)}, v{vA2}\nds_read_b128 {V(XS+4,4)}, v{vA1}\ns_waitcnt lgkmcnt(2)\nv_cmp_ne_u32 vcc, 0, v1\ns_cbranch_vccnz L_xsr\nL_xsgo:")
a("s_waitcnt lgkmcnt(1)")
for i in (4, 0, 1, 2, 3): mfma(DD + 4 * i, XS, DF + 12 * i + 8, "0")
a("s_waitcnt lgkmcnt(0)")
for i in (4, 0, 1, 2, 3): smf(DD + 4 * i, XS + 4, DF + 12 * i)
PS = 32
a(f"v_add_f32 v1, v{DD+16}, v{DD+17}")
for i in range(4): a(f"v_add_f32 v{PS+i}, v{DD+4*i}, v{DD+4*i+1}")
for i in range(4): a(f"v_mov_b32_dpp v{PS+i}, v1 quad_perm:[{i},{i},{i},{i}] row_mask:0x2 bank_mask:0xf")
a(f"s_mov_b64 exec, 0x1111ffff\nbuffer_store_dwordx4 {V(PS,4)}, v{vE4}, {S(WS)}, s47 offen sc1\ns_mov_b64 exec, -1")
stamp(7)
if OPT["stamps"] == 1: a(f"s_sub_u32 s3, {(BUDGET >> 2) + 1}, s49\ns_add_u32 s88, s98, s3\ns_add_u32 s90, s98, s63")
wback(2)
a(f"s_cmp_lt_u32 s{sFT}, 40\ns_cbranch_scc0 L_mfin")
FP = OPT["fp"]
FA = OPT["fa"]; NF = 3 if FA else 2
def fld(k):
    d = FD + 8 * k
    a(f"buffer_load_dword v{d+4}, v{vFB}, {S(WS)}, s57 offen sc1")
    if FA:
        for e in (0, 2): a(f"v_mov_b64 {V(d+e,2)}, 0\nbuffer_atomic_or_x2 {V(d+e,2)}, v6, {S(WS)}, s{sFE} offen offset:{4*e} sc0 sc1")
    else: a(f"buffer_load_dwordx4 {V(d,4)}, v6, {S(WS)}, s{sFE} offen sc1")
if OPT["f0"] > 0: a(f"s_sleep {OPT['f0']}")
if OPT["f0"] < 0: a("s_waitcnt vmcnt(0)")
if OPT["f0"] < -1: a(f"s_sleep {-OPT['f0'] - 1}")
for k in range(FP - 1):
    fld(k)
    if OPT["fs"]: a(f"s_sleep {OPT['fs']}")
a("L_fd:")
if OPT["ftop"]: a(f"s_sleep {OPT['ftop']}")
for k in range(FP):
    fld((k + FP - 1) % FP)
    d = FD + 8 * k
    a(f"s_waitcnt vmcnt({NF*(FP-1)})\nv_max3_u32 v1, v{d}, v{d+2}, v{d+4}\nv_cmp_eq_u32 vcc, -1, v1\ns_cbranch_vccz L_fg{k}")
    if OPT["fs"]: a(f"s_sleep {OPT['fs']}")
a(f"s_sub_u32 s{sBUD}, s{sBUD}, 1\ns_cbranch_scc0 L_fd")
for k in reversed(range(FP)):
    d = FD + 8 * k
    a(f"L_fg{k}:\nv_permlane32_swap_b32 v{d}, v{d+1}\nv_permlane32_swap_b32 v{d+2}, v{d+3}\nv_add_f32 v{d}, v{d}, v{d+1}\nv_add_f32 v{d+2}, v{d+2}, v{d+3}")
    a(f"v_permlane16_swap_b32 v{d}, v{d+2}\nv_add_f32 v{d}, v{d}, v{d+2}")
    for r in (4, 8): a(f"v_add_f32_dpp v{d}, v{d}, v{d} row_ror:{r} {DPPM}")
    a(f"v_fma_f32 v8, v{d}, v{vSG}, v{d+4}\nv_cvt_pk_bf16_f32 v8, v8, v8")
    execset(0x000F000F000F000F)
    a(f"buffer_store_short v8, v{vFC}, {S(OUT)}, s56 offen")
    if k: stamp(8); finish(); pad("m")
stamp(8)
a("L_mfin:")
finish()
deferred("m")
if OPT["stamps"]:
    a("L_dump:\ns_mov_b64 exec, -1\nv_mbcnt_lo_u32_b32 v0, -1, 0\nv_mbcnt_hi_u32_b32 v0, -1, v0\ns_memtime s[0:1]\ns_memrealtime s[62:63]\ns_waitcnt lgkmcnt(0)\nv_mov_b32 v2, 0")
    a("v_writelane_b32 v2, s98, 0\nv_writelane_b32 v2, s62, 1\ns_sub_u32 s3, s0, s96\nv_writelane_b32 v2, s3, 2")
    for i in range(NST): a(f"s_sub_u32 s3, s{70+2*i}, s{98 if OPT['rt'] else 96}\ns_cmp_lt_u32 s3, {5000 if OPT['rt'] else 0x100000}\ns_cselect_b32 s3, s3, 0\nv_writelane_b32 v2, s3, {3+i}")
    a(f"s_lshl_b32 s3, s2, 4\ns_add_u32 s3, s3, s{sWV}\ns_lshl_b32 s3, s3, 7\ns_add_u32 s3, s3, {STAMP}\nv_lshlrev_b32 v3, 2, v0\ns_mov_b32 exec_hi, 0")
    if not OPT["dfix"]: a(f"buffer_store_dword v2, v3, {S(WS)}, s3 offen")
    if OPT["diag"] >= 0:
        a(f"s_sub_u32 s3, s2, {OPT['dwg']}\ns_cmp_lt_u32 s3, {OPT['dn']}\ns_cbranch_scc0 L_end\ns_cmp_eq_u32 s{sWV}, {OPT['dwv']}\ns_cbranch_scc0 L_end")
        a(f"s_sub_u32 s3, s{70+2*OPT['diag']}, s{98 if OPT['dib'] < 0 else 70+2*OPT['dib']}\ns_lshl_b32 s3, s3, {2 if OPT['dib'] < 0 else 4}\ns_add_u32 s3, s3, s62")
        if OPT["dfix"]: a(f"s_add_u32 s3, s98, {OPT['dfix']}")
        if OPT["ddie"] >= 0:
            a(f"s_mov_b64 exec, -1\nv_and_b32 v1, 7, v0\nv_lshlrev_b32 v1, 5, v1\nbuffer_load_dword v2, v1, {S(DBG)}, 0 offen offset:4 sc1\ns_waitcnt vmcnt(0)\nv_readlane_b32 s0, v2, 0")
            for k in range(1, 8): a(f"v_readlane_b32 s1, v2, {k}\ns_min_u32 s0, s0, s1")
            a(f"v_readlane_b32 s1, v2, {OPT['ddie']}\ns_sub_u32 s1, s1, s0\ns_and_b32 s1, s1, 0x3ff\ns_lshl_b32 s1, s1, 5\ns_add_u32 s3, s0, {OPT['dfix']}\ns_add_u32 s3, s3, s1")
        a("L_dg:\ns_memrealtime s[62:63]\ns_waitcnt lgkmcnt(0)\ns_sub_u32 s0, s62, s3\ns_cmp_lt_i32 s0, 0\ns_cbranch_scc1 L_dg")
a("L_end:\ns_endpgm")
for i, l in reversed(list(enumerate(a.lines))):
    if l.startswith(";WARM"):
        _, cat, k, n = l.split()
        a.lines[i:i+1] = [f"s_call_b64 s[100:101], {p}" for p in PADS.get(cat, [])[int(k)::int(n)]]
print({k: len(v) for k, v in PADS.items()})
body, nn = hazard.fix(a.lines[body0:], OPT["verbose"])
a.lines[body0:] = body
kernel_desc(a, K, 256)
open(sys.argv[1], "w").write(a.text())
print("nops inserted:", nn, "lines:", len(a.lines))
```

```python
import sys, struct, math
sys.path.insert(0, "gen")
from common import *
import hazard

OPT = dict(stage="F", stamps=0, verbose=0, nl=9, pg=1, kw=0, kr=3, kn=1, kc=15, e2p=0, fmode=1, n0=8, na=2, nb=10, n1=0, o2=0, hp=1, cdw=0, sf=2, dpn=1, hpr=1, fsl=1, bk=0, bv=-1, wc=1, tch=5, bud=1 << 19, rw=5, clr=0, pf0=1, uord=0, mt=1, mx=8, x1=2, xw=0, w1=1, ppr=0, sp=1, wb=0, pfp=3, te=1, tl=0, t2=0, wsp=0, ws0=2, ord=0, vpos=1, off="27945386", kl=1, ftop=0, mlate=0, rf=1, kp=3, ks=2, ka=1, fp=3, fs=1, fa=0, f0=0, hlp=1, r2=5, e1=1, e2=4, dep=3, dep2=6, opos=1, vq=2, spf=0, pk=1, rsp=1, osc="plain",
           diag=-1, dwg=77, dn=1, dib=-1, dfix=0, ddie=-1, mon=0, ncp=4, wrl=0, dwv=0, slpk=0, prio=1, ou=6, grp=0, rt=1, dbg=0, wri=5, pre=12, aprio=1, lprio=2, vprio=2, oul=5, xprio=1, cpos=1)
for kv in sys.argv[2:]:
    k, v = kv.split("=")
    assert k in OPT, k
    OPT[k] = int(v) if v.lstrip("-").isdigit() else v
STAGE = OPT["stage"]

E2, SP, RJ, STAMP, DUMP = 0x200000, 0x280000, 0x300000, 0x500000, 0x1000000
RJS = 32768
R_BASE, R_FL, R_E4, R_KEY = 4096, 12288, 16384, 21504
SLOT, S0 = 36864, 8192
PITCH = 144; TSTR = 96 * PITCH
VB = S0 + SLOT - TSTR; KB = VB - TSTR; QB = KB - TSTR
STATS, ZR = 0, 1792
MODE, KMAX, WFL, VCN, HRD, XFL = 1728, 1732, 1744, 1748, 1752, 1760
WOB = S0 + 2 * SLOT
EX = S0 + SLOT + 12288
assert ZR + 8 * PITCH + 64 <= QB
X, W, WO, WS, OUT, DBG, WR = 4, 8, 12, 16, 20, 24, 28
sWV, sJ, sU, sG, sC, sC5, sT, sB0, sBUD, sMODE, sI, sGID = range(32, 44)
KA = dict(x=44, w=46, wo=48, wr=52, gate=54, up=56, down=60, out=62, dbg=64, ws=66)
BUDGET = OPT['bud']
DPPM = "row_mask:0xf bank_mask:0xf"
ONES = 0x3F803F80
OOB = 0x80000000
def f32(x): return struct.unpack("<I", struct.pack("<f", x))[0]
CEXP = f32(20 ** -0.5 * math.log2(math.e))

a = Asm()
def S(d): return f"s[{d}:{d+3}]"
def V(d, n=1): return f"v{d}" if n == 1 else f"v[{d}:{d+n-1}]"
def mksrd(d, name, size): a(f"s_mov_b64 s[{d}:{d+1}], s[{KA[name]}:{KA[name]+1}]\ns_mov_b32 s{d+2}, {size:#x}\ns_mov_b32 s{d+3}, 0x20000")
def execset(m):
    if m == -1: a("s_mov_b64 exec, -1")
    elif m < (1 << 31): a(f"s_mov_b64 exec, {m:#x}")
    else: a(f"s_mov_b32 exec_lo, {m & 0xffffffff:#x}\ns_mov_b32 exec_hi, {m >> 32:#x}")
def smask(d, m): a(f"s_mov_b32 s{d}, {m & 0xffffffff:#x}\ns_mov_b32 s{d+1}, {m >> 32:#x}")
def lanes(f): return sum(1 << l for l in range(64) if f(l))
def mfma(d, A, B, C=None):
    c = V(d, 4) if C is None else (C if isinstance(C, str) else V(C, 4))
    a(f"v_mfma_f32_16x16x32_bf16 {V(d,4)}, {V(A,4)}, {V(B,4)}, {c}")
DEFER = []
def lst(text):
    l = a.label("gl")
    a(f"s_cmp_eq_u32 s{sMODE}, 1\ns_cbranch_scc0 {l}g")
    a(text.replace("{F}", "")); a(f"{l}b:")
    DEFER.append(f"{l}g:\n" + text.replace("{F}", " sc1") + f"\ns_branch {l}b")
PADS = {}
def pad(cat):
    if not OPT["pg"]: return
    l = a.label("pad"); PADS.setdefault(cat, []).append(l); a(f"{l}:\ns_setpc_b64 s[100:101]")
def pagebreak(cat=None, live=True):
    if not OPT["pg"]: return
    l = a.label("pb")
    if live: a(f"s_branch {l}")
    a(".p2align 12")
    if cat: pad(cat)
    a(f"{l}:")
def warm(cat, k, n): a(f";WARM {cat} {k} {n}")
def deferred(cat=None):
    n = 999
    for t in DEFER:
        if cat and n > 110: pad(cat); n = 0
        a(t); n += t.count("\n") + 1
    DEFER.clear()
def capture(fn):
    global a
    class C:
        def __init__(s): s.g = []
        def __call__(s, t=""): s.g.append(t)
        def label(s, b): return a0.label(b)
    a0 = a; a = C(); fn(); g = a.g; a = a0
    return g
class Cnt:
    def __init__(s, name, mx): s.n = 0; s.name = name; s.mx = mx; s.done = 0
    def __call__(s, text): a(text); s.n += 1; return s.n
    def wait(s, i):
        if i <= s.done: return
        k = min(s.mx, s.n - i); a(f"s_waitcnt {s.name}({k})"); s.done = s.n - k
    def reset(s): s.n = 0; s.done = 0
L = Cnt("lgkmcnt", 15)

NST = 13
CLK = "s_memrealtime" if OPT["rt"] else "s_memtime"
def stamp(i, lvl=1):
    if OPT["stamps"] == lvl: a(f"{CLK} s[{70+2*i}:{71+2*i}]")
def stampi(ph):
    if OPT["stamps"] == 2:
        if ph == 0: a(f"{CLK} s[94:95]")
        else: a(f"s_lshl_b32 m0, s{sI}, 1\ns_waitcnt lgkmcnt(0)\ns_movreld_b32 s70, s94")
def finish():
    a("s_branch L_dump" if OPT["stamps"] else "s_endpgm")

a(HEADER.rstrip())
a("; @launch grid=(256,1,1) block=(512,1,1) lds=163840")
if OPT["stamps"] and OPT["grp"]: a("; @groups g0:0-79:2-2 g1:80-159:2-2 g2:160-239:2-2 m7:240-255:7-7")
if OPT["stamps"] and OPT["rt"]: a("; @rt")
if OPT["stamps"] and not OPT["grp"]: a("; @groups c0:0-239:0-0 c2:0-239:2-2 h0:0-239:4-4 h1:0-239:5-5 h3:0-239:7-7 m0:240-255:0-0 m4:240-255:4-4 ma:240-247:7-7 mb:248-255:7-7")
a('.amdgcn_target "amdgcn-amd-amdhsa--gfx950"')
K = NAME + "_kernel"
kernel_begin(a, K, OPT.get("page", 1))
body0 = len(a.lines)
NL = OPT["nl"]
a("s_load_dwordx16 s[44:59], s[0:1], 0\ns_load_dwordx8 s[60:67], s[0:1], 56")
if OPT["stamps"]: a("s_memrealtime s[98:99]\ns_memtime s[96:97]")
a(f"s_lshr_b32 s{sU}, s2, 3\ns_and_b32 s{sJ}, s2, 7\nv_readfirstlane_b32 s{sWV}, v0\ns_getpc_b64 s[100:101]\nL_pc:")
if OPT['dbg'] & 32: a('s_load_dword s79, s[100:101], 0x7000')
a(f"s_mul_i32 s3, s{sU}, {NL}\nv_min_u32 v2, {NL-1}, v0\nv_add_lshl_u32 v2, v2, s3, 7\nv_min_u32 v2, L_end-L_pc, v2")
a(f"s_cmp_ge_u32 s{sU}, 30\ns_cbranch_scc1 L_moe")
a("global_load_dword v255, v2, s[100:101]")
a(f"s_mul_i32 s{sG}, s{sU}, 26\ns_lshr_b32 s{sG}, s{sG}, 8\ns_mul_i32 s3, s{sG}, 10\ns_sub_u32 s{sC}, s{sU}, s3\ns_lshr_b32 s{sWV}, s{sWV}, 6")
OFT = sum(int(ch) << (4 * i) for i, ch in enumerate(str(OPT["off"])))
a(f"s_lshl_b32 s3, s{sJ}, 2\ns_lshr_b32 s3, {OFT:#x}, s3\ns_and_b32 s{sMODE}, s3, 15\ns_add_u32 s3, s{sC}, s{sMODE}\ns_sub_u32 s68, s3, 10\ns_cselect_b32 s69, s3, s68")
a(f"s_mul_i32 s3, s69, 245760\ns_lshl_b32 s68, s{sC}, 7\ns_add_u32 s3, s3, s68")
a("v_lshrrev_b32 v1, 3, v0\nv_lshrrev_b32 v3, 4, v0\nv_and_b32 v2, 2, v1\nv_and_or_b32 v2, v3, 4, v2\nv_xor_b32 v2, v2, v0\nv_and_b32 v2, 7, v2")
a("v_mul_u32_u24 v4, 3840, v1\nv_lshl_add_u32 v4, v2, 4, v4\nv_add_u32 v4, s3, v4")
vX, vSUM, vXD, vSTW, vBIA, vEV, vEA = 24, 28, 36, 52, 53, 54, 55
sM, sLO, sLT, sP1, sP2 = 44, 52, 54, 55, 56
sXT, sE2L, sRJ, sNO, sSL, sXM, sXO, sLX, sRD, sPF, sSPL, sFO, sSB = range(57, 70)
sEV, sDL, sWO_ = sXM, sXO, sFO
a(f"s_mul_i32 s3, s{sWV}, 3072\ns_add_u32 m0, s3, {S0 + 12288}\nv_and_b32 v0, 63, v0\ns_and_b32 s{sT}, s{sWV}, 3")
a(f"s_lshr_b32 s3, s{sJ}, 1\ns_lshl_b32 s3, s3, 9\ns_mul_i32 s68, s{sG}, 176\ns_add_u32 s3, s3, s68\ns_and_b32 s68, s{sJ}, 1\ns_add_u32 s3, s3, s68\ns_mul_i32 s{sB0}, s3, 1280")
a(f"s_sub_u32 s{sI}, s{sWV}, 5\ns_mul_i32 s3, s{sI}, {32*2560}\ns_add_u32 s3, s3, s{sB0}\ns_sub_u32 s3, s3, {8*2560}")
a(f"v_lshrrev_b32 v1, 3, v0\nv_lshrrev_b32 v3, 4, v0\nv_xor_b32 v3, v3, v0\nv_and_b32 v3, 7, v3\nv_mul_u32_u24 v1, 2560, v1\nv_lshl_add_u32 v1, v3, 4, v1\nv_add_u32 v{vX}, s3, v1")
a(f"s_add_u32 s3, s{sI}, s{sG}\ns_cmp_eq_u32 s3, 4\ns_cselect_b32 s3, {OOB:#x}, 0")
a(f"v_xor_b32 v{vX+1}, 64, v{vX}\nv_add_u32 v{vX+1}, 20480, v{vX+1}\nv_add_u32 v{vX+2}, 40960, v{vX}\nv_add_u32 v{vX+3}, 40960, v{vX+1}\nv_or_b32 v{vX+3}, s3, v{vX+3}")
for d, sz in ((X, 2048 * 1280), (W, 640 * 3840), (WO, 640 * 1280), (WS, 1 << 28), (OUT, 2048 * 1280), (DBG, 256), (WR, 1280)): a(f"s_mov_b32 s{d+2}, {sz:#x}\ns_mov_b32 s{d+3}, 0x20000")
a("s_waitcnt lgkmcnt(0)")
stamp(0)
def mv(d, n): return f"s_mov_b64 s[{d}:{d+1}], s[{KA[n]}:{KA[n]+1}]"
a(f"global_load_lds_dwordx4 v4, s[46:47]\ns_addk_i32 m0, -256\n{mv(X, 'x')}")
a(f"global_load_lds_dwordx4 v4, s[46:47] offset:1280\ns_addk_i32 m0, -256\n{mv(OUT, 'out')}")
a(f"global_load_lds_dwordx4 v4, s[46:47] offset:2560")
for d, n in ((DBG, "dbg"), (WS, "ws"), (W, "w"), (WO, "wo"), (WR, "wr")): a(mv(d, n))
sMT = 96
if OPT["mt"]: a(f"s_cmp_eq_u32 s{sWV}, 4\ns_cselect_b64 s[{sMT}:{sMT+1}], s[54:55], s[{sMT if OPT['stamps'] else 58}:{sMT+1 if OPT['stamps'] else 59}]\ns_cmp_eq_u32 s{sWV}, 5\ns_cselect_b64 s[{sMT}:{sMT+1}], s[56:57], s[{sMT}:{sMT+1}]")
if OPT["mt"] and OPT["stamps"]: a(f"s_cmp_ge_u32 s{sWV}, 6\ns_cselect_b64 s[{sMT}:{sMT+1}], s[58:59], s[{sMT}:{sMT+1}]")
def nextslab(): a(f"s_add_u32 s{sSB}, s{sSB}, 1\ns_cmp_eq_u32 s{sSB}, 10\ns_cselect_b32 s{sSB}, 0, s{sSB}")
def advslot(d): a(f"s_add_u32 s{d}, s{d}, {SLOT}\ns_cmp_eq_u32 s{d}, {S0 + 4*SLOT}\ns_cselect_b32 s{d}, {S0}, s{d}")
def xissue():
    a(f"s_add_u32 m0, s{sSL}, s{sLX}\ns_mov_b32 exec_lo, s{sXM}")
    for i in range(4):
        a(f"buffer_load_dwordx4 v{vX+i}, {S(X)}, s{sXO} offen lds")
        if i < 3: a("s_addk_i32 m0, 1024")
        if i == 0: a("s_mov_b32 exec_lo, -1")
a(f"s_cmp_lt_u32 s{sWV}, 5\ns_cbranch_scc1 L_nx")
a(f"s_lshl_b32 s{sLX}, s{sI}, 12\ns_cselect_b32 s{sXM}, -1, 0xffffff00\ns_lshl_b32 s{sXO}, s69, 7\ns_mov_b32 s{sSL}, {S0}")
xissue()
a("L_nx:")
stamp(1)
aKe, aK4, aKx, aKy = range(200, 204)
aQe, aQx, aQy, aQ4 = 204, 206, 208, 210
aVe, aV1, aV2 = range(216, 219)
vM, aRK, aCQ, aH0s, aH0l, aOs, aOl, aWO, aOUT, aL16, vRK, aXC, XR = 220, 222, 223, 224, 225, 226, 227, 228, 232, 233, 234, 235, 236
vAW, vAX0, vAX1, vSW, vSTR = 244, 245, 246, 247, 248
WRF, WSP = 244, 252
MASK = [lanes(lambda l: 2 * r + (l >> 5) > (l & 7)) for r in range(4)]
LO = lanes(lambda l: (l & 15) < 8)
sTA, sTP, sTS = 44, 44, 45
aOl2 = XR
def suA():
    a(f"s_mov_b32 s{sBUD}, {BUDGET}\ns_mul_i32 s{sGID}, s{sJ}, 3\ns_add_u32 s{sGID}, s{sGID}, s{sG}\ns_sub_u32 s3, s{sC}, 5\ns_cselect_b32 s{sC5}, s{sC}, s3")
    a(f"s_lshl_b32 s3, s{sWV}, 2\ns_lshr_b32 s{sTA}, 0x32105454, s3\ns_and_b32 s{sTA}, s{sTA}, 7\ns_lshr_b32 s45, s{sT}, 1\ns_add_u32 s45, s45, 4")
    a(f"s_cmp_eq_u32 s{sG}, 2\ns_cselect_b32 s{sNO}, 10, 11")
    a(f"s_sub_u32 s{sXT}, 10, s{sMODE}\nv_lshlrev_b32 v{aL16}, 4, v0")
    a(f"s_mul_i32 s{sE2L}, s{sGID}, 6\ns_add_u32 s{sE2L}, s{sE2L}, s{sTP}\ns_mul_i32 s{sE2L}, s{sE2L}, 2560\ns_add_u32 s{sE2L}, s{sE2L}, {E2}")
    a(f"s_lshl_b32 s{sRJ}, s{sJ}, 15\ns_add_u32 s{sRJ}, s{sRJ}, {RJ}")
    a(f"s_sub_u32 s51, 5, s{sC5}\ns_add_u32 s1, s{sC5}, 1\ns_sub_u32 s3, 15, s{sC5}\ns_cmp_le_u32 s{sC5}, 2\n"
      "s_cselect_b32 s46, 0, s3\ns_cselect_b32 s47, s51, s1\ns_cselect_b32 s48, s3, 0\ns_cselect_b32 s49, s1, s51\ns_cselect_b32 s50, 1, 0")
    a("v_and_b32 v3, 15, v0\nv_add_u32 v3, 8, v3\nv_lshrrev_b32 v4, 1, v3\nv_lshrrev_b32 v5, 5, v0\nv_xor_b32 v4, v4, v5\nv_and_b32 v4, 7, v4")
    a(f"v_lshlrev_b32 v4, 4, v4\nv_lshl_add_u32 v4, v3, 7, v4\nv_bfe_u32 v5, v0, 4, 1\nv_lshl_add_u32 v4, v5, 3, v4\ns_lshl_b32 s3, s{sTP}, 11\nv_add_u32 v{aXC}, s3, v4")
def suB():
    a(f"v_and_b32 v1, 15, v0\nv_lshrrev_b32 v2, 4, v0\nv_mov_b32 v7, {ZR}\ns_mul_i32 s0, s{sTA}, {16*PITCH}\ns_movk_i32 s1, {PITCH}")
    a("v_bfe_u32 v3, v0, 2, 1\nv_and_b32 v4, 3, v0\nv_lshlrev_b32 v4, 1, v4"); a("v_lshl_add_u32 v3, v3, 3, v4\nv_bfe_u32 v4, v0, 3, 1\nv_add_u32 v3, v3, v4")
    a(f"s_add_u32 s3, s0, {KB}\nv_mov_b32 v4, s3\nv_mad_u32_u24 v3, v3, s1, v4")
    a(f"s_add_u32 s3, s0, {QB + 8*PITCH}\nv_mov_b32 v4, s3\nv_mad_u32_u24 v4, v1, s1, v4")
    smask(52, LO)
    def kq(dK, dQ, quad, cond):
        a(quad); a(f"v_lshl_add_u32 v{dK}, v5, 3, v3\nv_lshl_add_u32 v5, v5, 3, v4")
        if cond: a(cond); a("v_cndmask_b32 v5, v7, v5, vcc")
        a(f"v_cndmask_b32 v{dQ}, v7, v5, s[52:53]\nv_cndmask_b32 v{dQ+1}, v5, v7, s[52:53]")
    kq(aKe, aQe, "v_add_u32 v5, s51, v2", None)
    kq(aKx, aQx, "v_add_u32 v5, s46, v2", "v_cmp_gt_u32 vcc, s47, v2")
    kq(aKy, aQy, "v_add_u32 v5, s48, v2\nv_min_u32 v5, 15, v5", "v_cmp_gt_u32 vcc, s49, v2")
    a("s_sub_u32 s3, s51, 1\nv_mad_u32_u24 v5, v2, 5, s3\ns_add_u32 s3, s46, 4\nv_mov_b32 v6, s3\ns_mov_b64 vcc, 0xffff\nv_cndmask_b32 v5, v5, v6, vcc")
    a(f"v_min_u32 v5, 15, v5\nv_lshl_add_u32 v{aK4}, v5, 3, v3\nv_lshl_add_u32 v5, v5, 3, v4")
    a(f"s_cmp_eq_u32 s47, 5\ns_cselect_b64 vcc, 0xff, 0\nv_cndmask_b32 v{aQ4}, v7, v5, vcc\ns_lshl_b64 vcc, vcc, 8\nv_cndmask_b32 v{aQ4+1}, v7, v5, vcc")
    for i in range(2, 6): a(f"s_bfm_b64 vcc, 8, {8*i}\nv_cndmask_b32 v{aQ4+i}, v7, v5, vcc")
def suC():
    a(f"s_mul_i32 s0, s{sTA}, {16*PITCH}\ns_movk_i32 s1, {PITCH}")
    a("v_bfe_u32 v3, v0, 2, 3\nv_lshrrev_b32 v4, 5, v0\nv_lshl_add_u32 v3, v3, 1, v4")
    a(f"s_add_u32 s3, s0, {VB}\nv_mov_b32 v4, s3\nv_mad_u32_u24 v3, v3, s1, v4\nv_and_b32 v4, 3, v0")
    smask(54, lanes(lambda l: l & 3 == 0))
    a(f"v_add_u32 v5, s51, v4\nv_lshl_add_u32 v{aVe}, v5, 3, v3\nv_add_u32 v7, 32, v{aVe}")
    a(f"s_cmp_eq_u32 s50, 1\ns_cselect_b32 s3, -1, 12\ns_cselect_b32 s56, 2, -1")
    a(f"v_add_u32 v5, s3, v4\nv_lshl_add_u32 v5, v5, 3, v3\nv_cndmask_b32 v{aV1}, v5, v7, s[54:55]\nv_add_u32 v7, 40, v7")
    a(f"v_add_u32 v5, s56, v4\nv_add_u32 v6, 10, v5\nv_cmp_gt_i32 vcc, s51, v5"); a(f"v_cndmask_b32 v5, v6, v5, vcc\nv_lshl_add_u32 v5, v5, 3, v3\nv_cndmask_b32 v{aV2}, v5, v7, s[54:55]")
    a(f"s_lshl_b32 s0, s{sTA}, 8\nv_lshrrev_b32 v4, 5, v0\nv_and_or_b32 v3, v0, 8, v4\ns_add_u32 s3, s0, {STATS + 8}\nv_lshl_add_u32 v{aRK}, v3, 4, s3")
    a(f"v_and_b32 v1, 15, v0\ns_add_u32 s3, s0, {STATS + 128 + 4}\nv_lshl_add_u32 v{aCQ}, v1, 4, s3")
    a(f"s_lshr_b32 s3, s{sB0}, 8\ns_mul_i32 s3, s3, 52429\ns_lshr_b32 s3, s3, 18\ns_lshl_b32 s0, s{sTP}, 5\ns_add_u32 s3, s3, s0\ns_sub_u32 s3, 2047, s3\nv_mad_i32_i24 v{vRK}, v1, -2, s3")
def octaddr(d, tile, rowq, extra):
    a(f"s_lshl_b32 s3, s{tile}, 4\nv_add_u32 v5, s3, v{rowq}\ns_lshl_b32 s3, s{sNO}, 3\nv_cmp_gt_u32 vcc, s3, v5")
    a(f"v_mul_u32_u24 v5, 2560, v5\nv_add3_u32 v5, v5, v{extra}, s{sB0}\nv_cndmask_b32 v{d}, v6, v5, vcc")
def suD(helper=1):
    a(f"v_lshrrev_b32 v2, 4, v0\nv_and_or_b32 v3, v0, 8, v2\nv_and_b32 v4, 0x70, v{aL16}\nv_bfrev_b32 v6, 1")
    if helper: octaddr(aOl2, sTS, 3, 4)
    octaddr(aOl, sTA, 3, 4)
    a(f"s_lshl_b32 s3, s{sC}, 7\nv_add_u32 v{aOs}, s3, v{aOl}")
    a(f"v_bfe_u32 v3, v0, 4, 1\nv_cmp_eq_u32 s[54:55], s50, v3\ns_cmp_lg_u32 s{sC5}, 0\ns_cselect_b64 s[0:1], -1, s[54:55]\ns_and_b64 vcc, vcc, s[0:1]")
    a(f"s_cmp_lg_u32 s{sC5}, 4\ns_cselect_b64 s[0:1], 0, s[54:55]\ns_andn2_b64 vcc, vcc, s[0:1]")
    a(f"v_cndmask_b32 v{aH0l}, v6, v{aOs}, vcc")
    a(f"s_cmp_le_u32 s{sC5}, 3\ns_cselect_b32 s3, 2560, 0\ns_sub_u32 s3, s3, 128\nv_mov_b32 v4, s3"); a(f"s_cmp_ge_u32 s{sC5}, 2\ns_cselect_b32 s3, 2560, 0\ns_add_u32 s3, s3, 128\nv_mov_b32 v5, s3")
    a(f"v_cndmask_b32 v4, v4, v5, s[54:55]\nv_mul_u32_u24 v3, 2560, v3\nv_sub_u32 v4, v4, v3"); a(f"v_add_u32 v4, v4, v{aOs}\nv_cndmask_b32 v{aH0s}, v6, v4, vcc")
def wlane():
    a("v_bfe_u32 v3, v0, 3, 2\nv_lshlrev_b32 v3, 2, v3\nv_and_or_b32 v3, v0, 3, v3"); a("v_lshlrev_b32 v3, 3, v3\nv_bfe_u32 v4, v0, 2, 2\nv_lshl_add_u32 v3, v4, 7, v3")
def suE(helper=1):
    a("v_and_b32 v1, 15, v0\nv_bfrev_b32 v6, 1\nv_bfe_u32 v3, v0, 4, 1\nv_lshrrev_b32 v4, 5, v0"); a(f"v_lshl_add_u32 v3, v3, 1, v4\ns_lshl_b32 s3, s{sC}, 7\nv_lshl_add_u32 v4, v3, 4, s3")
    octaddr(aOUT, sTP, 1, 4)
    wlane()
    a("v_lshrrev_b32 v2, 4, v0")
    if helper:
        a(f"s_and_b32 s3, s{sWV}, 1\ns_lshl_b32 s3, s3, 12\ns_add_u32 s3, s3, {WOB}\nv_lshl_add_u32 v4, v2, 10, v3\nv_add_u32 v{aWO}, s3, v4")
        for ct in range(1, 4): a(f"v_xor_b32 v{aWO+ct}, {32*ct}, v{aWO}")
    for r in range(4): smask(sM + 2 * r, MASK[r])
    a(f"s_movk_i32 s{sLT}, 10240\ns_mov_b32 s{sP1}, 0x07060501\ns_mov_b32 s{sP2}, 0x0706000c")
    a("v_mov_b32 v5, 0xffff\nv_mov_b32 v6, 0xffff0000")
    for d in range(2): a(f"v_cndmask_b32 v1, 0, v5, s[{sM+4*d}:{sM+4*d+1}]\nv_cndmask_b32 v4, 0, v6, s[{sM+4*d+2}:{sM+4*d+3}]\nv_or_b32 v{vM+d}, v1, v4")
KQ, SS, KS, PX, FL_, FE, VF, HL, CQ, TM, F01 = 96, 152, 168, 176, 192, 196, 64, 92, 5, 6, 2
DM, LT, QF = SS, 80, KQ + 20
H, OF, WOF, RING = 8, 24, 104, 6
DEP = OPT["dep"]
def capt(slot, d=XR):
    a(f"v_add_u32 v1, {slot}, v{aXC}")
    for ct in range(4):
        if ct: a(f"v_xor_b32 v{1+ct}, {32*ct}, v1")
        a(f"ds_read_b64 {V(d+2*ct,2)}, v{1+ct}")
def hinit(d=XR):
    for i in range(8): a(f"v_lshlrev_b32 v{H+2*i}, 16, v{d+i}\nv_and_b32 v{H+2*i+1}, 0xffff0000, v{d+i}")
def ldWR():
    a(f"v_lshrrev_b32 v1, 4, v0\nv_lshlrev_b32 v1, 3, v1\ns_lshl_b32 s3, s{sC}, 7")
    for ct in range(4): a(f"buffer_load_dwordx2 {V(WRF+2*ct,2)}, v1, {S(WR)}, s3 offen offset:{32*ct}")
def wrprep(t):
    a(f"s_mov_b32 s3, {ONES:#x}")
    for i in range(4): a(f"v_mov_b32 v{t+i}, s3")
    execset(0x1111111111111111)
    for i in range(8): a(f"v_mov_b32 v{WRF+i}, s3")
    execset(-1)
    for k in range(2): mfma(WSP, WRF + 4 * k, t, "0" if k == 0 else None)
def pzero(lo=0, hi=16):
    for i in range(lo, hi): a(f"v_mov_b32 v{PX+i}, 0")
def ksread(e=None):
    e = e or a
    a(f"v_add_u32 v1, 128, v{aRK}")
    for r in range(4):
        e(f"v_cndmask_b32 v2, v1, v{aRK}, s[{sM+2*r}:{sM+2*r+1}]\nds_read_b64 {V(KS+2*r,2)}, v2 offset:{32*r}")
    e(f"ds_read_b32 v{CQ}, v{aCQ}")
def rdmode(): a(f"v_mov_b32 v1, {MODE}\nds_read_b32 v1, v1\ns_waitcnt lgkmcnt(0)\nv_readfirstlane_b32 s{sMODE}, v1")
def gsync_h(poll):
    l = a.label("gh")
    a(f"s_cmp_eq_u32 s{sMODE}, 1\ns_cbranch_scc0 {l}g\n{l}b:")
    t = f"{l}g:\ns_barrier\n"
    if poll:
        t += f"s_cmp_eq_u32 s{sWV}, 5\ns_cbranch_scc0 {l}e\nv_mov_b32 v1, 1\ns_mov_b64 exec, 1\nbuffer_store_dword v1, off, {S(WS)}, s{sFO} offset:64 sc1\ns_mov_b64 exec, -1\n"
        t += f"{l}p:\nbuffer_load_dword v1, v{vEA}, {S(WS)}, 0 offen offset:64 sc1\ns_waitcnt vmcnt(0)\nv_cmp_ne_u32 vcc, 1, v1\ns_cbranch_vccz {l}e\ns_sub_u32 s{sBUD}, s{sBUD}, 1\ns_cbranch_scc0 {l}p\ns_mov_b32 s{sBUD}, 0\n{l}e:\n"
    DEFER.append(t + f"s_barrier\ns_branch {l}b")
def weave(P, xs):
    xs = list(xs); per = -(-len(xs) // len(P))
    for p in P:
        a(p)
        for _ in range(per):
            if xs: a(xs.pop(0))
a("v_mov_b32 v254, v4")
suA()
a(f"s_cmp_lt_u32 s{sWV}, 4\ns_cbranch_scc1 L_cons")
vW, vT = 24, 56
STR = {5: 0, 3: 1, 13: 2, -3: 3, -13: 4}
def wo_setup(vT=vT):
    a(f"v_lshrrev_b32 v1, 3, v0\nv_and_b32 v2, 2, v1\nv_xor_b32 v2, v2, v0\ns_lshl_b32 s3, s{sWV}, 2\nv_xor_b32 v2, s3, v2")
    a(f"v_and_b32 v2, 7, v2\ns_lshl_b32 s3, s{sC}, 7\nv_lshl_add_u32 v2, v2, 4, s3")
    a(f"v_and_b32 v3, 3, v1\nv_mul_u32_u24 v3, 1280, v3\nv_add_u32 v2, v3, v2")
    a(f"v_lshrrev_b32 v3, 5, v0\nv_mul_u32_u24 v3, 5120, v3\nv_sub_u32 v4, 5120, v3")
    for d, i in STR.items(): a(f"v_mad_u32_u24 v{vT+i}, v{3 + (d < 0)}, {abs(d)}, v2")
def wo_quads(cp, h, g):
    c5 = cp % 5
    if h == 0: return 5 - c5 + g, 10 - c5 + g
    if g == 0: return 9 - c5, 14 - c5
    i = g - 1
    p = 3 + i if c5 <= 2 else i
    return (i if c5 <= 2 else 13 + i), (p if p < 5 - c5 else 10 + p)
def wo_piece(st, g):
    h, cp = st // 10, st % 10
    q0, q1 = wo_quads(cp, h, g or 0)
    t = f"s_lshl_b32 s3, s{sT}, 10\ns_add_u32 m0, s3, {WOB}" if st == 0 else "s_addk_i32 m0, 4096"
    o = (64*cp + 4*min(q0, q1)) * 1280
    t += f"\ns_add_u32 s3, s{sPF}, {o}" if g is None else f"\ns_mov_b32 s3, {o}"
    return t + f"\nbuffer_load_dwordx4 v{vT + STR[q1 - q0]}, {S(WO)}, s3 offen lds"
def wo_late(lo, w, vT):
    for st in range(lo, 20):
        for g in (w, w + 2):
            q0, q1 = wo_quads(st % 10, st // 10, g)
            a(f"s_mov_b32 m0, {WOB + 4096*st + 1024*g}" if (st, g) == (lo, w) else "s_addk_i32 m0, 2048")
            a(f"s_mov_b32 s3, {(64*(st % 10) + 4*min(q0, q1)) * 1280}\nbuffer_load_dwordx4 v{vT + STR[q1 - q0]}, {S(WO)}, s3 offen lds")
def wo_run(lo, hi, tag):
    for st in range(lo, min(hi, 10)): a(wo_piece(st, None))
    lo = max(lo, 10)
    if lo >= hi: return
    for g in range(1, 4):
        a(f"s_cmp_eq_u32 s{sT}, {g}\ns_cbranch_scc1 L_wo{tag}{g}")
        DEFER.append(f"L_wo{tag}{g}:\n" + "\n".join(wo_piece(st, g) for st in range(lo, hi)) + f"\ns_branch L_wo{tag}")
    for st in range(lo, hi): a(wo_piece(st, 0))
    a(f"L_wo{tag}:")
N0 = OPT["n0"]; NA = N0 + OPT["na"]; NB = NA + OPT["nb"]; N1 = NB + OPT["n1"]
assert 2 * DEP <= N0 <= N1 <= 20
vTC = 61
def touch_setup():
    a(f"s_mul_i32 s3, s{sT}, 3\nv_lshrrev_b32 v1, 2, v0\nv_add_u32 v1, s3, v1\ns_add_u32 s3, s3, 3\ns_min_u32 s3, s3, s{sNO}\nv_cmp_gt_u32 vcc, s3, v1\nv_and_b32 v2, 3, v0\nv_lshl_add_u32 v1, v1, 3, v2")
    a(f"v_mul_u32_u24 v1, 2560, v1\ns_lshl_b32 s0, s{sC}, 7\ns_add_u32 s3, s0, s{sB0}\nv_add_u32 v1, s3, v1\nv_bfrev_b32 v2, 1\nv_cndmask_b32 v{vTC}, v2, v1, vcc")
    a(f"s_mul_i32 s3, s{sT}, 3\nv_min_u32 v1, 2, v0\nv_add_u32 v1, s3, v1\nv_lshrrev_b32 v2, 1, v1\nv_mul_u32_u24 v2, {2560 - 256}, v2\nv_lshl_add_u32 v1, v1, 7, v2")
    a(f"s_mul_i32 s3, s{sGID}, 15360\ns_lshl_b32 s0, s{sC}, 8\ns_add_u32 s3, s3, s0\ns_add_u32 s3, s3, {E2}\nv_add_u32 v{vTC+2}, s3, v1")
    if OPT["mt"]:
        R = 64 * (10 - OPT["mx"]); per = -(-2 * R // 30)
        a(f"s_mul_i32 s3, s{sU}, {per}\nv_min_u32 v1, {per-1}, v0\nv_add_u32 v1, s3, v1\nv_min_u32 v1, {2*R-1}, v1\nv_cmp_le_u32 vcc, {R}, v1\nv_mul_u32_u24 v1, 3072, v1")
        a(f"s_mul_i32 s3, s{sJ}, 384\ns_add_u32 s3, s3, {64*OPT['mx']*3072}\nv_add_u32 v1, s3, v1\nv_subrev_u32 v2, {(R + 320)*3072 - 256}, v1\nv_cndmask_b32 v1, v1, v2, vcc")
        a(f"s_mul_i32 s3, s{sJ}, 60\ns_lshl_b32 s0, s{sU}, 1\ns_add_u32 s3, s3, s0\ns_and_b32 s0, s{sWV}, 1\ns_add_u32 s3, s3, s0\ns_lshl_b32 s3, s3, 12\nv_min_u32 v2, 31, v0\nv_lshl_add_u32 v2, v2, 7, s3")
        a(f"s_cmp_ge_u32 s{sWV}, 6\ns_cselect_b64 vcc, -1, 0\nv_cndmask_b32 v{vMT}, v1, v2, vcc")
vMT = 84
def mtouch(p):
    if OPT["mt"] == p: a(f"global_load_dword v{vMT}, v{vMT}, s[{sMT}:{sMT+1}]")
def touch(p):
    if p == OPT["tl"]: a(f"buffer_load_dword v{vTC+1}, v{vTC}, {S(OUT)}, s{sLT} offen")
    if p == OPT["te"]: a(f"buffer_load_dword v{vTC+1}, v{vTC}, {S(OUT)}, 0 offen")
    if p == OPT["t2"]: a(f"buffer_load_dword v{vTC+2}, v{vTC+2}, {S(WS)}, 0 offen")
def early_touch(i):
    n = sum(OPT[k] == 10 + i for k in ("te", "tl", "t2", "mt"))
    touch(10 + i); mtouch(10 + i)
    return n
NT = sum(OPT[k] in (0, 1) for k in ("te", "tl", "t2")) + (OPT["mt"] in (1, 2, 5))
NT2 = sum(OPT[k] == 2 for k in ("te", "tl", "t2")) + (OPT["mt"] == 3)
def xstart(i): nextslab(); a(f"s_lshl_b32 s{sXO}, s{sSB}, 7\ns_mov_b32 s{sSL}, {S0 + SLOT*(i % 4)}")
xstart(1)
if OPT["x1"] == 0: a(f"s_cmp_eq_u32 s{sWV}, 4\ns_cbranch_scc1 L_n1"); xissue(); a("L_n1:")
suB(); suC()
stamp(0, 5)
suD(); suE(); wo_setup(); touch_setup(); pzero()
vEX, vXF, vWF = XR + 1, XR + 2, XR + 3
a(f"s_lshl_b32 s0, s{sT}, 12\ns_add_u32 s0, s0, {EX}\nv_add_u32 v{vEX}, s0, v{aL16}\ns_and_b32 s0, s{sT}, 2\ns_lshl_b32 s0, s0, 1\ns_add_u32 s0, s0, {XFL}\nv_mov_b32 v{vXF}, s0\nv_mov_b32 v{vWF}, {WFL}\nv_cmp_eq_u32 vcc, 0, v0\nv_cndmask_b32 v{vWF+1}, 0, 1, vcc")
a(f"s_cmp_eq_u32 s{sWV}, 4\ns_cbranch_scc1 L_h0")
E1_, E2_ = OPT["e1"], OPT["e2"]
assert 1 <= E1_ and E1_ + 2 <= E2_ <= 4
vXA = vEV
a(f"v_mov_b32 v4, {ONES:#x}\nv_mov_b32 v5, v4\nv_lshrrev_b32 v1, 4, v0\nv_mul_u32_u24 v1, {SLOT - 128}, v1\nv_lshl_add_u32 v1, v0, 3, v1\nds_write_b64 v1, v[4:5] offset:{S0}")
a(f"s_sub_u32 s0, s{sWV}, 5\ns_mul_i32 s3, s{sGID}, 3\ns_add_u32 s3, s3, s0\ns_mul_i32 s3, s3, 2560\ns_add_u32 s{sSPL}, s3, {SP}")
a(f"s_mul_i32 s3, s{sG}, 1280\ns_add_u32 s3, s3, s{sRJ}\ns_add_u32 s{sPF}, s3, {R_FL}\nv_min_u32 v1, 9, v0\nv_lshl_add_u32 v{vEA}, v1, 7, s{sPF}\ns_lshl_b32 s{sFO}, s{sC}, 7\ns_add_u32 s{sFO}, s{sFO}, s{sPF}")
a(f"v_and_b32 v1, 15, v0\nv_lshrrev_b32 v2, 5, v0\nv_lshl_add_u32 v2, v2, 4, v1\ns_lshl_b32 s0, s0, 5\nv_add_lshl_u32 v{vSTW}, v2, s0, 4")
a(f"v_lshrrev_b32 v2, 4, v0\nv_lshrrev_b32 v3, 1, v1\nv_xor_b32 v3, v3, v2\nv_lshlrev_b32 v3, 4, v3\nv_lshl_add_u32 v3, v1, 7, v3\nv_add_u32 v{vXA}, s{sLX}, v3")
a(f"s_cmp_lt_u32 s{sB0}, 2560\ns_cselect_b32 s3, 128, 0\nv_mov_b32 v1, 0xf149f2ca\nv_cmp_gt_u32 vcc, s3, v{vSTW}\nv_cndmask_b32 v{vBIA}, 0, v1, vcc")
stamp(1, 5)
if OPT["xprio"]: a(f"s_setprio {OPT['xprio']}")
if OPT["x1"] == 2: xissue()
if not OPT["wrl"]: ldWR()
for k in range(4): a(f"v_mov_b32 v{64+k}, {ONES:#x}")
if OPT["dbg"] & 64: a(f"s_lshl_b32 s3, s{sC}, 8\ns_add_u32 s3, s3, s{sSPL}\ns_mov_b64 exec, 0xffff\nbuffer_store_dwordx4 v[64:67], v{aL16}, {S(WS)}, s3 offen sc1\ns_mov_b64 exec, -1")
a(f"s_waitcnt vmcnt({(0 if OPT['wrl'] else 4) + (0 if OPT['x1'] == 3 else 4)}) lgkmcnt(0)")
stamp(2, 5)
def part_stats():
    PD = 96
    a(f"v_xor_b32 v1, 64, v{vXA}")
    for t in range(2):
        for ks in range(2): a(f"ds_read_b128 {V(vXD+8*t+4*ks,4)}, v{1 if ks else vXA} offset:{S0 + 2048*t}")
    a(f"s_lshl_b32 s3, s{sC}, 8\ns_add_u32 s3, s3, s{sSPL}\nv_and_b32 v2, 0xf0, v{aL16}\ns_mov_b32 s0, 0xaaaaaaaa\ns_mov_b32 s1, s0\ns_mov_b32 vcc_lo, 0xcccccccc\ns_mov_b32 vcc_hi, 0xcccccccc")
    for t in range(2):
        for ks in range(2):
            a(f"s_waitcnt lgkmcnt({3 - 2*t - ks})")
            mfma(PD + 8 * t, vXD + 8 * t + 4 * ks, vXD + 8 * t + 4 * ks, None if ks else "0")
            mfma(PD + 8 * t + 4, 64, vXD + 8 * t + 4 * ks, None if ks else "0")
    for t in range(2):
        d = PD + 8 * t
        a(f"v_cndmask_b32 v{d}, v{d}, v{d+1}, s[0:1]\nv_cndmask_b32 v{d+2}, v{d+2}, v{d+3}, s[0:1]\nv_cndmask_b32 v{vSUM+2*t+1}, v{d}, v{d+2}, vcc\nv_mov_b32 v{vSUM+2*t}, v{d+4}")
    execset(0xF0000F0000F0000F)
    a(f"buffer_store_dwordx4 {V(vSUM,4)}, v2, {S(WS)}, s3 offen sc1")
    execset(-1)
    for i in range(4): a(f"v_mov_b32 v{vXD+8+i}, 0")
def only5(tag, fn):
    a(f"s_cmp_eq_u32 s{sWV}, 5\ns_cbranch_scc0 L_o5{tag}"); fn(); a(f"L_o5{tag}:")
def evchk(tag, cmp_, ld):
    a(f"s_waitcnt lgkmcnt(0)\n{cmp_}\ns_cbranch_scc0 L_er{tag}\nL_eg{tag}:")
    DEFER.append(f"L_er{tag}:\ns_sub_u32 s{sBUD}, s{sBUD}, 1\ns_cbranch_scc1 L_ex{tag}\n{ld}\ns_waitcnt lgkmcnt(0)\n{cmp_}\ns_cbranch_scc0 L_er{tag}\ns_branch L_eg{tag}\nL_ex{tag}:\ns_mov_b32 s{sBUD}, 0\ns_branch L_eg{tag}")
FR = [71, 73, 75, 77, 83, 85, 89, 91, 93, 95]
ldroot = f"s_lshl_b32 s0, s{sJ}, 5\nv_and_b32 v1, 16, v0\nbuffer_load_dword v{vSUM+4}, v1, {S(DBG)}, s0 offen sc1"
ldflag = "\n".join(f"s_buffer_load_dword s{r}, {S(WS)}, s{sPF} offset:{128*k} glc" for k, r in enumerate(FR))
for i in range(9):
    a("s_barrier")
    stamp(3 + i, 5)
    ex = 0
    if i == E1_ + 1:
        def f():
            evchk("a", f"v_cmp_ne_u32 vcc, 1, v{vSUM+4}\ns_cmp_eq_u64 vcc, 0", ldroot + "\ns_waitcnt vmcnt(0)")
            a(f"s_getreg_b32 s0, hwreg(HW_REG_XCC_ID, 0, 4)\nv_mov_b32 v1, s0\ns_mov_b64 exec, 1\nbuffer_store_dword v1, off, {S(WS)}, s{sFO} sc1\ns_mov_b64 exec, -1")
        only5("c", f)
    if i == E2_ + 2:
        for k in range(3):
            if k == 2: a("s_mov_b32 exec_hi, 0")
            if OPT["dbg"] & 16: a(f"s_mov_b32 s{sSPL}, {OOB:#x}")
            a(f"buffer_load_dwordx4 {V(vXD+4*k,4)}, v{aL16}, {S(WS)}, s{sSPL} offen offset:{1024*k} sc1")
        a("s_mov_b32 exec_hi, -1"); ex += 3
    if i == 0: part_stats(); ex += 1
    if i == 1 and OPT["wrl"]: ldWR(); ex += 4
    ex += early_touch(i)
    if OPT["pf0"] & 1 and OPT["pfp"] % 10 == i + 2:
        a(f"s_mul_i32 s3, s2, 3\ns_add_u32 s3, s3, s{sWV}\ns_sub_u32 s3, s3, 5\ns_mul_i32 s3, s3, {9*128}\nv_lshlrev_b32 v1, 7, v0\ns_mov_b64 exec, 0x1ff\nbuffer_load_dword v255, v1, {S(WO)}, s3 offen\ns_mov_b64 exec, -1"); ex += 1
    if i < 8: xstart(i + 2); xissue()
    if i:
        a(f"s_cmp_eq_u32 s{sXT}, {i}\ns_cbranch_scc0 L_xc{i}\ns_mov_b32 s0, {S0 + SLOT * (i % 4)}\ns_call_b64 s[100:101], L_xcap\nL_xc{i}:")
    if i == E2_ + 1:
        def f():
            evchk("b", f"s_max_u32 s0, s{FR[0]}, s{FR[1]}\n" + "\n".join(f"s_max_u32 s0, s0, s{r}" for r in FR[2:]) + "\ns_cmp_lg_u32 s0, -1", ldflag)
            a(f"s_min_u32 s1, s{FR[0]}, s{FR[1]}\n" + "\n".join(f"s_min_u32 s1, s1, s{r}" for r in FR[2:]) + f"\ns_cmp_eq_u32 s0, s1\ns_cselect_b32 s0, {OPT['fmode']}, 0")
            a(f"v_mov_b32 v1, {MODE}\nv_mov_b32 v2, s0\nds_write_b32 v1, v2")
        only5("d", f)
    if i == E2_ + 3:
        a(f"s_waitcnt vmcnt({8 + ex})")
        for k in (4, 8):
            for e in range(4): a(f"v_add_f32 v{vXD+e}, v{vXD+e}, v{vXD+k+e}")
        a(f"v_permlane32_swap_b32 v{vXD}, v{vXD+2}\nv_permlane32_swap_b32 v{vXD+1}, v{vXD+3}\nv_add_f32 v{vXD}, v{vXD}, v{vXD+2}\nv_add_f32 v{vXD+1}, v{vXD+1}, v{vXD+3}")
        a(f"v_mov_b32 v{vXD+2}, v{vXD}\nv_mov_b32 v{vXD+3}, v{vXD+1}\ns_mov_b32 s1, 0x3acccccd\nv_mov_b32 v1, 0x3727c5ac")
        a(f"v_permlane16_swap_b32 v{vXD}, v{vXD+2}\nv_permlane16_swap_b32 v{vXD+1}, v{vXD+3}\nv_add_f32 v{vXD}, v{vXD}, v{vXD+2}\nv_add_f32 v{vXD+1}, v{vXD+1}, v{vXD+3}")
        a(f"v_mul_f32 v{vXD}, 0xbacccccd, v{vXD}\nv_fma_f32 v2, v{vXD+1}, s1, v1\nv_fma_f32 v2, -v{vXD}, v{vXD}, v2\nv_max_f32 v2, v2, v1\nv_rsq_f32 v{vXD+1}, v2\nv_mov_b32 v{vXD+3}, v{vBIA}\nv_mov_b32 v{vXD+2}, v{vXD+1}")
        a(f"ds_write_b128 v{vSTW}, {V(vXD,4)} offset:{STATS}")
    if 1 <= i <= 6 and OPT["pg"]:
        a(f"s_cmp_eq_u32 s{sWV}, 7\ns_cbranch_scc0 L_wm{i}"); warm("h", i - 1, 6); a(f"L_wm{i}:")
    if i == 0: pagebreak("c0")
    if i == 7 and OPT["wsp"]: pagebreak("h")
    if i == 8: break
    if i == E1_ + 1: a(f"s_cmp_eq_u32 s{sWV}, 5\ns_cbranch_scc1 L_w5{i}\ns_waitcnt vmcnt({4 + ex})\nL_w5{i}:"); ex += 1
    a(f"s_waitcnt vmcnt({4 + ex}) lgkmcnt(0)")
    if i == E1_ - 1: only5("a", lambda: a(ldroot))
    if i == E2_: only5("b", lambda: a(ldflag))
    if OPT["wsp"] and i >= OPT["ws0"]:
        LQ = [(cp, q) for cp in range(5) for g in range(4) for q in wo_quads(cp, 1, g)]
        part = LQ[OPT["wsp"] * (i - OPT["ws0"]):OPT["wsp"] * (i - OPT["ws0"] + 1)]
        if part:
            if i == OPT["ws0"]: a(f"s_mul_i32 s3, s{sG}, 3\ns_add_u32 s3, s3, s{sWV}\ns_sub_u32 s3, s3, 5\ns_lshr_b32 s0, s3, 2\ns_mul_i32 s0, s0, 316\ns_add_u32 s3, s3, s0\ns_mul_i32 s3, s3, 1280\ns_lshl_b32 s0, s{sC}, 7\ns_add_u32 s{sRD}, s3, s0")
            for cp, q in part:
                for o in (0, 64): a(f"s_buffer_load_dword s79, {S(WO)}, s{sRD} offset:{(64*cp + 4*q)*1280 + o}")
    if i == 2 and OPT["ppr"]:
        a(f"s_lshl_b32 s3, s{sC}, 8\ns_add_u32 s3, s3, s{sSPL}")
        for k in range(4): a(f"s_buffer_load_dword s75, {S(WS)}, s3 offset:{64*k}")
a(f"L_h8:\ns_mul_i32 s{sPF}, s{sT}, 5120")
mtouch(4)
wo_run(0, N0, "a")
mtouch(5)
ksread(); rdmode()
if OPT['hp'] == 0: hinit(72); wrprep(64)
a(f"s_waitcnt vmcnt({N0 + (OPT['mt'] in (4, 5))})")
stamp(2)
a("s_barrier")
stamp(3); stamp(9, 2); stamp(0, 3)
if not OPT['clr']: gsync_h(1)
wo_run(N0, NA, "d")
touch(0)
mtouch(1)
if OPT['hp'] == 1: hinit(72); wrprep(64)
sO, sDW = 61, 65
a(f"s_and_b32 s3, s{sWV}, 1\ns_lshl_b32 s{sO}, s3, 7\ns_xor_b32 s{sO+1}, s{sO}, 128\ns_add_u32 s{sO+2}, s{sO+1}, s{sLT}\ns_add_u32 s{sO+3}, s{sO}, s{sLT}\ns_lshl_b32 s3, s3, 13\ns_sub_u32 s{sDW}, 4096, s3")
DEFER.append("L_xcap:\n" + "\n".join(capture(lambda: capt("s0", 72))) + "\ns_setpc_b64 s[100:101]")

def rdWO1(s, ct, e):
    t = ""
    if e == 0 and s in (5, 10, 15): t = {5: f"v_add_u32 v{aWO+ct}, s{sDW}, v{aWO+ct}", 10: f"v_add_u32 v{aWO+ct}, 40960, v{aWO+ct}", 15: f"v_subrev_u32 v{aWO+ct}, s{sDW}, v{aWO+ct}"}[s] + "\n"
    return t + f"ds_read_b64_tr_b16 {V(WOF + 16*(s % RING) + 4*ct + 2*e, 2)}, v{aWO+ct} offset:{8192*(s % 5) + 512*e}"
SF = 15 - OPT["sf"]
OL = [(s, w) for s in range(SF) for w in range(2 if s >= 5 else 1)] + [(s, 1) for s in range(SF, 15)] + [(s, 0) for s in range(SF, 20)]
def oreg(k): return OF + 4 * (k % (20 if not OPT["dbg"] & 2 else OPT["ou"]))
def ldO(k):
    s, w = OL[k]
    a(f"buffer_load_dwordx4 {V(oreg(k),4)}, v{aOl2 if w else aOl}, {S(OUT)}, s{sO + s // 5} offen offset:{256*(s % 5)} sc1")
def spin(tag, addr, cmp_, slp=0):
    a(f"{cmp_}\ns_cbranch_vccnz L_sp{tag}\nL_sb{tag}:")
    DEFER.append(f"L_sp{tag}:\n" + (f"s_sleep {slp}\n" if slp else "") + f"v_mov_b32 v1, {addr}\nds_read_b32 v1, v1\ns_waitcnt lgkmcnt(0)\n{cmp_}\ns_cbranch_vccnz L_sp{tag}\ns_branch L_sb{tag}")
def fold(A, B, F):
    for r in range(4): a(f"v_permlane16_swap_b32 v{A+r}, v{B+r}")
    for r in range(4): a(f"v_cndmask_b32 v{F[r]}, v{B+r}, v{A+r}, s[{sM+2*r}:{sM+2*r+1}]")
def softmax(F, P, mid=None, mid2=None):
    m, t = TM, TM + 1
    for r in range(4): a(f"v_fma_f32 v{F+r}, v{F+r}, v{KS+2*r}, v{KS+2*r+1}")
    a(f"v_max3_f32 v{m}, v{F}, v{F+1}, v{F+2}\nv_max_f32 v{m}, v{m}, v{F+3}\nv_mov_b32 v{t}, v{m}\nv_permlane32_swap_b32 v{m}, v{t}\nv_max_f32 v{m}, v{m}, v{t}\nv_mul_f32 v{m}, v{m}, v{CQ}")
    for r in range(4): a(f"v_fma_f32 v{F+r}, v{F+r}, v{CQ}, -v{m}")
    for r in range(4): a(f"v_exp_f32 v{F+r}, v{F+r}")
    if mid: mid()
    a(f"v_add_f32 v{m}, v{F}, v{F+1}\nv_add_f32 v{t}, v{F+2}, v{F+3}\nv_add_f32 v{m}, v{m}, v{t}\nv_mov_b32 v{t}, v{m}\nv_mul_f32 v{F}, v{F}, v{KS}\nv_mul_f32 v{F+1}, v{F+1}, v{KS+2}")
    a(f"v_permlane32_swap_b32 v{m}, v{t}\nv_mul_f32 v{F+2}, v{F+2}, v{KS+4}\nv_add_f32 v{m}, v{m}, v{t}\nv_rcp_f32 v{m}, v{m}\nv_mul_f32 v{F+3}, v{F+3}, v{KS+6}")
    for r in range(4): a(f"v_mul_f32 v{F+r}, v{F+r}, v{m}")
    a(f"v_cvt_pk_bf16_f32 v{F}, v{F}, v{F+1}\nv_cvt_pk_bf16_f32 v{F+1}, v{F+2}, v{F+3}")
    if mid2: mid2()
    for hh in range(2):
        a(f"s_mov_b64 exec, s[{sLO}:{sLO+1}]" if hh == 0 else "s_not_b64 exec, exec")
        for d in range(2): a(f"v_and_b32 v{P+2*hh+d}, v{vM+d}, v{F+d}\nv_bfi_b32 v{P+4+2*hh+d}, v{vM+d}, 0, v{F+d}")
    a("s_mov_b64 exec, -1")
    for d in range(4): a(f"v_permlane16_swap_b32 v{P+d}, v{P+4+d}")
def ymask():
    a(f"s_add_u32 s0, s{sC5}, 1\ns_sub_u32 s1, 5, s{sC5}\ns_min_u32 s0, s0, s1\ns_lshl_b32 s0, s0, 4\ns_sub_u32 s1, 64, s0\ns_cmp_le_u32 s{sC5}, 2\ns_cselect_b32 s1, s1, 16\ns_bfm_b64 s[100:101], s0, s1")
def attention(T):
    helper = T == "h"; doL = T != "e"; doE = T != "l"
    L.reset()
    rid = {}
    KR = ((aKx, 0), (aKy, 0), (aK4, 0), (aKe, 0), (aKe, 40))
    QR = ((aQx, 0, 0), (aQy, 0, 1), (aQ4, 0, 2), (aQe, 0, 3), (aQe, 40, 4), (aQ4 + 2, 0, 2), (aQ4 + 4, 0, 2))
    def rk(i):
        k, o = KR[i]; d = KQ + 4 * i
        L(f"ds_read_b64 {V(d,2)}, v{k} offset:{o}"); L(f"ds_read_b64 {V(d+2,2)}, v{k} offset:{o + 8*PITCH}")
    def rq(i):
        q, o, _ = QR[i]; d = QF + 4 * i
        L(f"ds_read_b64 {V(d,2)}, v{q} offset:{o}"); rid[i] = L(f"ds_read_b64 {V(d+2,2)}, v{q+1} offset:{o}")
    def lg(i):
        L.wait(rid[i]); mfma(SS + (0, 4, 0, 8, 12, 8, 12)[i], KQ + 4 * QR[i][2], QF + 4 * i, "0" if i in (0, 1, 3, 4) else None)
    vid = {}
    vc = [None]
    def vlook():
        if OPT["ord"]: a(f"v_mov_b32 v1, {VCN}"); vc[0] = L("ds_read_b32 v1, v1")
    def vreads():
        if OPT["ord"]: L.wait(vc[0]); spin("v" + T, VCN, "v_cmp_ne_u32 vcc, 4, v1")
        if helper: stamp(4, 3)
        for i, (r_, o) in enumerate(((aVe, 0), (aVe, 40), (aV1, 0), (aV2, 0))):
            if doE or i >= 2:
                L(f"ds_read_b64_tr_b16 {V(VF+4*i,2)}, v{r_} offset:{o}")
                vid[i] = L(f"ds_read_b64_tr_b16 {V(VF+4*i+2,2)}, v{r_} offset:{o + 8*PITCH}")
    def lfold(): fold(SS, SS + 4, [F01, F01 + 1, FL_ + 2, FL_ + 3])
    def lpack(): a(f"v_or_b32 v{FL_}, 0xffff, v{F01}\nv_perm_b32 v{FL_+1}, v{F01+1}, v{F01}, s{sP1}")
    cq = f"v_mul_f32 v{CQ}, {CEXP:#x}, v{CQ}"
    if helper:
        ymask(); a(cq)
        a("s_barrier")
        for i in range(5): rk(i)
        wo_run(NA, NB, "e")
        if OPT["bv"] >= 0: a("s_barrier"); vreads()
        wo_run(NB, N1, "b")
        touch(1)
        mtouch(2)
        a(f"s_setprio {OPT['aprio']}\ns_waitcnt vmcnt({NT + N1 - N0 if OPT['wc'] < 2 else NT})")
        stamp(1, 3)
        a("s_barrier")
        stamp(4); stamp(2, 3)
        if STAGE == "A": a("s_branch L_dumpA")
        rq(0); rq(1); rq(2); rq(3); rq(4); lg(0); rq(5); lg(1); rq(6); lg(2); lg(3); lg(4); lg(5); lg(6); lfold(); lpack()
    elif doL: rk(0); rq(0); rk(1); rq(1); rk(2); rq(2); ymask(); lg(0); lg(1); lg(2); ksread(L); lfold(); lpack()
    else: rk(3); rq(3); rk(4); rq(4); rk(2); rq(5); rq(6); pzero(0, 8); lg(3); lg(4); ksread(L); lg(5); lg(6)
    if doL: lst(f"buffer_store_dwordx4 {V(FL_,4)}, v{aH0s}, {S(OUT)}, s{sLT} offen{{F}}")
    stamp(5); stamp(3, 3)
    if helper: touch(3)
    if helper and OPT["wc"] == 0: wo_run(N1, 20, "c")
    hl = f"buffer_load_dwordx4 {V(HL,4)}, v{aH0l}, {S(OUT)}, s{sLT} offen sc1"
    prefill = lambda: [a(rdWO1(s_, ct, e)) for s_ in range(DEP) for ct in range(4) for e in range(2)] if helper else None
    early = lambda: [ldO(k) for k in range(OPT["ou"])] if helper else None
    late = f"buffer_store_dwordx4 {V(LT,4)}, v{aOs}, {S(OUT)}, s{sLT} offen{{F}}"
    if doE:
        fold(SS + 8, SS + 12, [FE + r for r in range(4)])
        if not helper: L.wait(L.n); a(cq)
        if OPT["vpos"] == 1 or not helper: vlook()
        def mid():
            if helper and OPT["vpos"] == 2: vlook()
            elif not helper or OPT["bv"] < 0: vreads()
            if helper and OPT["wc"] == 1: wo_run(N1, 20, "c")
            if helper and OPT["hlp"] == 0: a(hl)
        softmax(FE, PX, mid, vreads if helper and OPT["vpos"] == 2 else None)
        stamp(5, 3)
        if helper and OPT["hlp"] == 1: a(hl)
        if helper: touch(2)
        L.wait(vid[3])
        for i in range(4): mfma(DM + 4 * i, VF + 4 * i, PX + 4 * (i & 1), "0")
        for i in range(4): a(f"v_cvt_pk_bf16_f32 v{FE+i}, v{DM+2*i}, v{DM+2*i+1}")
        lst(f"buffer_store_dwordx4 {V(FE,4)}, v{aOs}, {S(OUT)}, 0 offen{{F}}")
        stamp(6); stamp(6, 3)
        if T == "e": a(f"s_lshl_b32 s0, s{sWV}, 2\ns_add_u32 s0, s0, {HRD}\nv_mov_b32 v1, s0\nds_read_b32 v1, v1")
        for i in range(4): a(f"v_cvt_pk_bf16_f32 v{LT+i}, v{DM+8+2*i}, v{DM+8+2*i+1}")
        if helper: mtouch(3)
        prefill()
    else:
        vlook(); pzero(8, 16); vreads(); L.wait(L.n); a(cq); a(hl)
        if OPT["wc"] == 2:
            a(f"s_cmp_eq_u32 s{sWV}, 3\ns_cbranch_scc1 L_wl3"); wo_late(N1, 0, 249); a("L_wlb:")
            DEFER.append("L_wl3:\n" + "\n".join(capture(lambda: wo_late(N1, 1, 249))) + "\ns_branch L_wlb")
    if T == "e":
        a("s_waitcnt lgkmcnt(0)"); spin("r", "s0", "v_cmp_eq_u32 vcc, 0, v1", 1)
        execset(0xffff); lst(late); execset(-1)
        stamp(7); stamp(10, 3)
        return
    stamp(7, 3)
    a(f"s_waitcnt vmcnt({1 + NT2 if doE else 2 * (20 - N1) if OPT['wc'] == 2 else 0})\nv_cmp_eq_u32 vcc, -1, v{HL}\ns_cbranch_vccnz L_h0r{T}\nL_h0g{T}:")
    stamp(8, 3)
    DEFER.append(f"L_h0r{T}:\ns_sub_u32 s{sBUD}, s{sBUD}, 1\ns_cbranch_scc1 L_h0x{T}\n{hl}\ns_waitcnt vmcnt(0)\n"
                 f"v_cmp_eq_u32 vcc, -1, v{HL}\ns_cbranch_vccnz L_h0r{T}\ns_branch L_h0g{T}\nL_h0x{T}:\ns_mov_b32 s{sBUD}, 0\ns_branch L_h0g{T}")
    wfl = f"v_mov_b32 v1, {WFL}\nv_mov_b32 v4, 1\ns_mov_b64 exec, 1\nds_add_u32 v1, v4\ns_mov_b64 exec, -1"
    if helper:
        if OPT["wc"] < 2: a(f"s_mov_b64 exec, 1\nds_add_u32 v{vWF}, v{vWF+1}\ns_mov_b64 exec, -1")
    else: a(f"s_lshl_b32 s0, s{sWV}, 2\ns_add_u32 s0, s0, {HRD - 8}\nv_mov_b32 v1, s0\nds_write_b32 v1, v1")
    a(f"v_perm_b32 v{HL}, v{HL}, v{HL+1}, s{sP2}")
    for r in (1, 2, 3, 0): a(f"v_add_f32 v{FL_+r}, v{F01+r if r < 2 else FL_+r}, v{HL+r}")
    if OPT["opos"] == 0: early()
    softmax(FL_, PX + 8, early if OPT["opos"] == 1 else None)
    if OPT["opos"] == 2: early()
    stamp(9, 3)
    mfma(DM, VF + 8, PX + 8, "0"); mfma(DM + 4, VF + 12, PX + 8, "0"); mfma(DM + 8, VF + 12, PX + 12, "0")
    if helper and OPT["wc"] < 2: a(f"ds_read_b32 v1, v{vWF}")
    a("s_mov_b32 exec_lo, 0xffff0000")
    for i in range(4): a(f"v_cvt_pk_bf16_f32 v{LT+i}, v{DM+2*i}, v{DM+2*i+1}")
    a("s_mov_b64 exec, s[100:101]")
    for i in range(2): a(f"v_cvt_pk_bf16_f32 v{LT+2+i}, v{DM+8+2*i}, v{DM+8+2*i+1}")
    execset(-1 if doE else 0xffffffffffff0000)
    lst(late)
    stamp(7); stamp(10, 3)
    if not helper and OPT["wc"] == 2: a("s_mov_b64 exec, -1\ns_waitcnt vmcnt(1)\n" + wfl + "\ns_waitcnt lgkmcnt(0)")
attention("h")
if STAGE == "B": a("s_waitcnt vmcnt(0)"); finish()
pagebreak("h")
SH = 200
U = OPT["ou"]; nO = [U]
def ldOn():
    if nO[0] < len(OL):
        if not OPT["dbg"] & 2: ldO(nO[0])
        nO[0] += 1
L.reset()
stamp(8); stamp(0, 4)
idx = {o: k for k, o in enumerate(OL)}
GR = [[0, 1], [2, 3], [4]] + [[k, k + 1] for k in range(5, 29, 2)] + [[29]]
gof = {k: G for G, g in enumerate(GR) for k in g}
issued = {}
def cmp_(G):
    r = [oreg(k) for k in GR[G]]
    if len(r) == 2: a(f"v_max_u16 v2, v{r[0]}, v{r[1]}\nv_cmp_eq_u16 vcc, -1, v2")
    else: a(f"v_cmp_eq_u16 vcc, -1, v{r[0]}")
def chk_a(G):
    last = GR[G][-1] + 1
    assert nO[0] >= last
    a(f"s_waitcnt vmcnt({nO[0] - last + (last <= U)})"); cmp_(G)
def chk_b(G):
    issued[G] = nO[0]
    a(f"s_cbranch_vccnz L_st{G}\nL_go{G}:")
a("s_waitcnt lgkmcnt(0)")
spin("w", WFL, "v_cmp_ne_u32 vcc, 4, v1")
RQ = [(s, ct, e) for s in range(DEP, 20) for ct in range(4) for e in range(2)]
wid = {(s, ct): 0 for s in range(DEP) for ct in range(4)}
left = {(s, ct): 2 if 5 <= s < 15 else 1 for s in range(20) for ct in range(4)}
def rdn(n):
    for _ in range(n):
        if not RQ: return
        s, ct, e = RQ[0]
        if s >= RING and left[s - RING, ct]: return
        RQ.pop(0); wid[s, ct] = L(rdWO1(s, ct, e))
MS = []
k = 0
while k < 30:
    if k + 1 < 30 and OL[k][0] == OL[k+1][0]: MS += [(kk, ct) for ct in range(4) for kk in (k, k + 1)]; k += 2
    else: MS += [(k, ct) for ct in range(4)]; k += 1
firstm = {}
for m, (k, ct) in enumerate(MS): firstm.setdefault(gof[k], m)
ca = {m - 2: G for G, m in firstm.items() if G}; cb = {m - 1: G for G, m in firstm.items() if G}
lasts = max(m for m, (k, ct) in enumerate(MS) if OL[k][1])
wr = {lasts + 2 + q + (q == 3) * 2: q for q in range(4)}
chk_a(0); chk_b(0)
for m, (k, ct) in enumerate(MS):
    s, w = OL[k]
    if m in ca: chk_a(ca[m])
    if m in cb: chk_b(cb[m])
    while RQ and RQ[0][:2] <= (s, ct): n = len(RQ); rdn(1); assert len(RQ) < n
    if ct == 0 and (not RQ or RQ[0][0] > s) and L.n - wid[s, 3] >= 6: L.wait(wid[s, 3])
    L.wait(wid[s, ct])
    mfma((SH if w else H) + 4 * ct, WOF + 16 * (s % RING) + 4 * ct, oreg(k), "0" if w and s == 5 else None)
    left[s, ct] -= 1
    if (m % 4 == 0 or (m < 20 and m % 4 == 1 and m // 4 >= (3, 0)[OPT["o2"]])) and nO[0] < len(OL): ldOn(); rdn(1)
    elif m in wr: L(f"ds_write_b128 v{vEX}, {V(SH + 4*wr[m], 4)} offset:{1024*wr[m]}")
    elif m == lasts + 8: a("s_mov_b64 exec, 1"); L(f"ds_add_u32 v{vXF}, v{vWF+1}"); a("s_mov_b64 exec, -1")
    else: rdn(1 if m + 1 in ca or m + 1 in cb or m in cb else 2)
    if m == 3: stamp(9); stamp(11, 3)
    if m == 59: stamp(12, 3)
    if m % 12 == 11: stamp(1 + m // 12, 4)
assert nO[0] == len(OL)
for G in range(len(GR)):
    t = f"L_st{G}:\ns_sub_u32 s{sBUD}, s{sBUD}, 1\ns_cbranch_scc1 L_sx{G}\n"
    def re():
        for G2 in range(G, min(G + OPT["rsp"], len(GR))):
            for k in GR[G2]:
                if k < issued[G]: ldO(k)
        a("s_waitcnt vmcnt(0)"); cmp_(G)
    t += "\n".join(capture(re))
    t += f"\ns_cbranch_vccnz L_st{G}\ns_branch L_go{G}\nL_sx{G}:\ns_mov_b32 s{sBUD}, 0\ns_branch L_go{G}"
    DEFER.append(t)
a("L_tail:")
stamp(10)
HB, DS1, DS2, E2D, T0, RS = 24, 32, 36, 40, 52, 2
EV1 = OPT['e1']
for i in range(8): a(f"v_cvt_pk_bf16_f32 v{HB+i}, v{H+2*i}, v{H+2*i+1}")
for k in range(2):
    mfma(DS2, HB + 4 * k, HB + 4 * k, "0" if k == 0 else None)
    mfma(DS1, WRF + 4 * k, HB + 4 * k, "0" if k == 0 else None)
a("s_mov_b32 s0, 0x22222222\ns_mov_b32 s1, s0\ns_mov_b32 s44, 0x44444444\ns_mov_b32 s45, s44\ns_mov_b32 vcc_lo, 0x88888888\ns_mov_b32 vcc_hi, 0x88888888")
a(f"s_lshl_b32 s3, s{sC}, 8\ns_add_u32 s3, s3, s{sE2L}\nv_and_b32 v1, 0xf0, v{aL16}")
a(f"v_cndmask_b32 v{DS2}, v{DS2}, v{DS2+1}, s[0:1]\nv_cndmask_b32 v{DS2+2}, v{DS2+2}, v{DS2+3}, vcc\ns_or_b64 vcc, vcc, s[44:45]")
a(f"v_cndmask_b32 v{DS1+2}, v{DS2}, v{DS2+2}, vcc\nv_mov_b32 v{DS1+3}, v{WSP+1}")
execset(0xF0000F0000F0000F)
lst(f"buffer_store_dwordx4 {V(DS1,4)}, v1, {S(WS)}, s3 offen{{F}}")
execset(-1)
for i in range(4): a(f"v_mov_b32 v{E2D+8+i}, 0")
a(f"v_mov_b32 v4, 1.0\ns_mov_b32 s0, 0xbacccccd\ns_mov_b32 s1, 0x3acccccd\nv_mov_b32 v5, 0x3727c5ac\ns_mov_b32 s44, 0xfffff800\nv_mov_b32 v1, {KMAX}")
a(f"v_cmp_le_i32 s[46:47], 0, v{aOUT}")
vL, vB, vK = 68, 69, 70
a(f"s_mul_i32 s48, s{sG}, 1280\ns_lshl_b32 s3, s{sC}, 7\ns_add_u32 s48, s48, s3\ns_lshl_b32 s49, s48, 1\ns_add_u32 s48, s48, s{sRJ}\ns_add_u32 s49, s49, s{sRJ}\ns_add_u32 s49, s49, {R_BASE}")
a(f"s_lshl_b32 s3, s{sG}, 7\ns_add_u32 s3, s3, s{sRJ}\ns_add_u32 s3, s3, {R_KEY}\ns_and_b32 s45, s{sC}, {OPT['kc']}\ns_lshl_b32 s45, s45, 3\ns_add_u32 s45, s45, s{sWV}\nv_mul_u32_u24 v{vK}, 384, v0")
a(f"v_and_b32 v{vB}, 48, v0\nv_lshlrev_b32 v{vL}, 1, v{vB}")
if OPT["kl"]: a(f"s_add_u32 s45, s{sC}, 5\nv_mov_b32 v71, 1")
a("L_e2:")
a(f"buffer_load_dwordx4 {V(E2D,4)}, v{aL16}, {S(WS)}, s{sE2L} offen sc1\nbuffer_load_dwordx4 {V(E2D+4,4)}, v{aL16}, {S(WS)}, s{sE2L} offen offset:1024 sc1")
a(f"s_mov_b32 exec_hi, 0\nbuffer_load_dwordx4 {V(E2D+8,4)}, v{aL16}, {S(WS)}, s{sE2L} offen offset:2048 sc1\ns_mov_b32 exec_hi, -1\ns_sub_u32 s{sBUD}, s{sBUD}, 1")
a("s_waitcnt vmcnt(1)")
for e in (0, 2): a(f"v_pk_add_f32 {V(E2D+e,2)}, {V(E2D+e,2)}, {V(E2D+4+e,2)}")
a("s_waitcnt vmcnt(0)")
for e in (0, 2): a(f"v_pk_add_f32 {V(E2D+e,2)}, {V(E2D+e,2)}, {V(E2D+8+e,2)}")
a(f"v_cmp_u_f32 vcc, v{E2D}, v{E2D}\ns_cbranch_scc1 L_e2go\ns_cbranch_vccnz L_e2\nL_e2go:")
stamp(11); stamp(11, 4)
for i in (0, 2, 3, 1): a(f"v_mfma_f32_16x16x4_f32 {V(T0+4*i,4)}, v4, v{E2D+i}, 0")
a(f"v_mul_f32 v6, s0, v{T0}\nv_fma_f32 v7, v{T0+8}, s1, v5\nv_fma_f32 v7, -v6, v6, v7\nv_max_f32 v7, v7, v5\nv_rsq_f32 v{RS}, v7")
a(f"v_fma_f32 v7, v6, v{T0+12}, v{T0+4}\nv_mul_f32 v7, v7, v{RS}\nv_mul_f32 v{RS+1}, v6, v{RS}")
a(f"v_ashrrev_i32 v6, 31, v7\nv_or_b32 v6, 0x80000000, v6\nv_xor_b32 v7, v7, v6\nv_and_or_b32 v7, v7, s44, v{vRK}\nv_cndmask_b32 v7, 0, v7, s[46:47]")
LN, LNB, OB = 72, 88, 96
lnops = [f"v_pk_fma_f32 {V(LN+2*i,2)}, {V(H+2*i,2)}, {V(RS,2)}, {V(RS,2)} op_sel:[0,0,1] op_sel_hi:[1,0,1]" for i in range(8)]
for k in (8, 4, 2, 1)[:OPT["dpn"]]:
    a(lnops.pop(0)); a(lnops.pop(0))
    a(f"v_max_u32_dpp v6, v{7 if k == 8 else 6}, v{7 if k == 8 else 6} row_ror:{k} {DPPM}")
a(f"s_mov_b64 exec, {(1 << (16 >> OPT['dpn'])) - 1}\nds_max_u32 v1, v{6 if OPT['dpn'] else 7}")
if OPT["kl"]: a(f"s_mov_b64 exec, 1\nds_add_rtn_u32 v71, v1, v71 offset:4\ns_mov_b64 exec, -1\nds_read_b32 v6, v1")
else: a("s_mov_b64 exec, -1")
for o in lnops: a(o)
for i in range(4): a(f"v_cvt_pk_bf16_f32 v{LNB+i}, v{LN+2*i}, v{LN+2*i+1}")
a("s_waitcnt lgkmcnt(0)")
if OPT["kl"]: a(f"v_readfirstlane_b32 s0, v71\ns_cmp_eq_u32 s0, s45\ns_cbranch_scc0 L_nk\ns_mov_b64 exec, 0xffff\nbuffer_store_dword v6, v{vK}, {S(WS)}, s3 offen sc1\ns_mov_b64 exec, -1\nL_nk:")
a("s_barrier\nds_read_b32 v1, v1")
for i in range(4, 8): a(f"v_cvt_pk_bf16_f32 v{LNB+i}, v{LN+2*i}, v{LN+2*i+1}")
for i in range(8): a(f"v_pk_add_f32 {V(LN+2*i,2)}, {V(LN+2*i,2)}, {V(H+2*i,2)}")
if OPT["kl"]: a("s_waitcnt lgkmcnt(0)\nv_cmp_eq_u32 s[46:47], v1, v7")
else: a(f"s_cmp_eq_u32 s45, 4\ns_waitcnt lgkmcnt(0)\nv_cmp_eq_u32 s[46:47], v1, v7\ns_cbranch_scc0 L_nk\ns_mov_b64 exec, 0xffff\nbuffer_store_dword v1, v{vK}, {S(WS)}, s3 offen sc1\nL_nk:")
a("s_and_b64 exec, s[46:47], -1\ns_cbranch_scc0 L_nc")
a(f"buffer_store_dwordx4 {V(LNB,4)}, v{vL}, {S(WS)}, s48 offen sc1\nbuffer_store_dwordx4 {V(LNB+4,4)}, v{vL}, {S(WS)}, s48 offen offset:16 sc1")
a("L_nc:\ns_mov_b64 exec, -1")
stamp(12); stamp(12, 4)
for i in range(8): a(f"v_cvt_pk_bf16_f32 v{OB+i}, v{LN+2*i}, v{LN+2*i+1}")
for hh in range(2):
    for d in range(2): a(f"v_permlane16_swap_b32 v{OB+4*hh+d}, v{OB+4*hh+2+d}")
osc = " " + OPT["osc"].replace("_", " ").replace("plain", "")
a("s_not_b64 exec, s[46:47]")
for hh in range(2): a(f"buffer_store_dwordx4 {V(OB+4*hh,4)}, v{aOUT}, {S(OUT)}, 0 offen offset:{64*hh}{osc}")
a("s_and_b64 exec, s[46:47], -1\ns_cbranch_scc0 L_fin")
for hh in range(2): a(f"buffer_store_dwordx4 {V(OB+4*hh,4)}, v{aOUT}, {S(OUT)}, 0 offen offset:{64*hh} sc1")
a("s_waitcnt vmcnt(0)")
for ct in range(4): a(f"buffer_store_dwordx4 {V(LN+4*ct,4)}, v{vB}, {S(WS)}, s49 offen offset:{64*ct} sc1")
a("L_fin:")
if OPT["dbg"] & 128:
    a(f"s_mov_b64 exec, -1\ns_lshl_b32 s3, s2, 3\ns_add_u32 s3, s3, s{sWV}\ns_lshl_b32 s3, s3, 13\ns_add_u32 s3, s3, {DUMP}")
    for i in range(8): a(f"buffer_store_dwordx4 {V(OB,4)}, v{aL16}, {S(WS)}, s3 offen\ns_add_u32 s3, s3, 1024")
finish()
pagebreak(None, False)
deferred("h")

pad("c0")
a("L_h0:")
if OPT["prio"]: a("s_setprio 2")
a(f"v_lshrrev_b32 v1, 3, v0\nv_and_b32 v2, 2, v1\nv_xor_b32 v2, v2, v0\nv_and_b32 v2, 7, v2\ns_lshl_b32 s3, s{sC}, 7\nv_lshl_add_u32 v2, v2, 4, s3")
a(f"v_mul_u32_u24 v3, 3840, v1\nv_add_u32 v{vW}, v3, v2\nv_xor_b32 v{vW+3}, 64, v{vW}\nv_add_u32 v{vW+3}, {8*3840}, v{vW+3}\nv_mov_b32 v{vEA}, 0")
for p in range(2):
    for s_ in (1, 2): a(f"v_add_u32 v{vW+3*p+s_}, {256*s_}, v{vW+3*p}")
def wpieces():
    P = []
    for pp in range(8):
        for s_ in range(3):
            t = f"buffer_load_dwordx4 v{vW+3*(pp&1)+s_}, {S(W)}, s{sXO} offen offset:{1024*s_} lds"
            if s_ == 2 and pp < 7: t += "\ns_addk_i32 m0, 3072"
            if s_ == 2 and pp & 1 and pp < 7: t += f"\ns_add_u32 s{sXO}, s{sXO}, 61440"
            P.append(t)
    return P
stamp(1, 5)
if not OPT["wrl"]: ldWR()
a(f"s_waitcnt vmcnt({0 if OPT['wrl'] else 4})")
stamp(2, 5)
a("s_barrier")
if OPT["wrl"]: ldWR()
early_touch(0)
a(f"s_mov_b32 s{sI}, 1\ns_mov_b32 s{sRD}, {S0 + SLOT}\nL_wl:")
nextslab(); advslot(sSL); a(f"s_mul_i32 s{sXO}, s{sSB}, 245760\ns_add_u32 m0, s{sSL}, 12288")
for p in wpieces(): a(p)
a(f"s_mov_b32 s0, s{sRD}\ns_mov_b32 s{sRD}, s{sSL}\ns_cmp_eq_u32 s{sXT}, s{sI}\ns_waitcnt vmcnt(24) lgkmcnt(0)\ns_barrier\ns_cbranch_scc0 L_wc\ns_call_b64 s[100:101], L_xcap\nL_wc:")
for i in range(1, 8):
    t = capture(lambda: early_touch(i))
    if t: a(f"s_cmp_eq_u32 s{sI}, {i}\ns_cbranch_scc0 L_wt{i}\n" + "\n".join(t) + f"\nL_wt{i}:")
a(f"s_add_u32 s{sI}, s{sI}, 1\ns_cmp_lt_u32 s{sI}, 9\ns_cbranch_scc1 L_wl")
a("s_branch L_h8")

ACC, XF, WF, ST, CS = 8, 80, 152, 180, 192
CLX = len(a.lines)
pagebreak(None, False)
a("L_cons:")
def clears(fl, n=4):
    a("v_mov_b32 v4, -1\nv_mov_b32 v5, -1\nv_mov_b32 v6, -1\nv_mov_b32 v7, -1")
    a(f"v_lshrrev_b32 v1, 3, v0\nv_mul_u32_u24 v1, 2560, v1\nv_and_b32 v2, 0x70, v{aL16}\ns_lshl_b32 s3, s{sC}, 7\ns_add_u32 s3, s3, s{sB0}\nv_add3_u32 v1, v1, v2, s3")
    a(f"s_mul_i32 s0, s{sT}, 20480\ns_add_u32 s1, s0, 81920\ns_add_u32 s3, s{sT}, 8\ns_cmp_lt_u32 s3, s{sNO}\ns_cselect_b32 s3, s1, {OOB:#x}\ns_add_u32 s66, s3, 81920")
    a(f"v_lshrrev_b32 v2, 4, v0\nv_mul_u32_u24 v2, {2560 - 256}, v2\nv_add_u32 v2, v2, v{aL16}")
    a(f"s_mul_i32 s67, s{sGID}, 15360\ns_lshl_b32 s3, s{sC}, 8\ns_add_u32 s67, s67, s3\ns_and_b32 s3, s{sT}, 1\ns_mul_i32 s3, s3, 7680\ns_add_u32 s67, s67, s3\ns_add_u32 s67, s67, {E2}")
    a(f"s_cmp_lt_u32 s{sT}, 2\ns_cselect_b32 s67, s67, {OOB:#x}")
    st = [f"buffer_store_dwordx4 v[4:7], v1, {S(OUT)}, s{r} offen{fl}" for r in (0, 1, 66)]
    st.append(f"s_mov_b32 exec_hi, 0xffff\nbuffer_store_dwordx4 v[4:7], v2, {S(WS)}, s67 offen{fl}\ns_mov_b64 exec, -1")
    for t in st[:n]: a(t)
    return st[n:]
def pf0(p):
    if OPT["pf0"] & 1 and p == OPT["pfp"] % 10:
        a(f"s_cmp_eq_u32 s{sWV}, 0\ns_cbranch_scc0 L_pa\ns_mul_i32 s3, s2, {27*128}\nv_lshlrev_b32 v1, 7, v0\ns_mov_b64 exec, {(1 << 27) - 1:#x}\nbuffer_load_dword v255, v1, {S(WO)}, s3 offen\ns_mov_b64 exec, -1\nL_pa:")
    if OPT["pf0"] & 2 and p == OPT["pfp"] // 10:
        a(f"s_cmp_eq_u32 s{sWV}, 1\ns_cbranch_scc0 L_pb\ns_lshl_b32 s3, s{sC}, 2\ns_add_u32 s3, s3, s{sJ}\ns_sub_u32 s0, s3, 40\ns_cselect_b32 s3, s3, s0\ns_mul_i32 s3, s3, {16*3840}")
        a(f"s_mul_i32 s0, s{sG}, 1280\ns_add_u32 s3, s3, s0\ns_lshl_b32 s0, s{sC}, 7\ns_add_u32 s3, s3, s0\nv_mul_u32_u24 v1, 3840, v0\ns_mov_b64 exec, 0xffff\nbuffer_load_dword v255, v1, {S(W)}, s3 offen\ns_mov_b64 exec, -1\nL_pb:")
pf0(0)
def w1():
    a(f"s_cmp_eq_u32 s{sSB}, 9\ns_cselect_b32 s3, {-10*245760}, 0\ns_add_u32 s3, s3, 245760\nv_add_u32 v254, s3, v254\ns_mul_i32 s3, s{sT}, 3072\ns_add_u32 m0, s3, {S0 + SLOT + 12288}\ns_mov_b32 s64, {32*3840}")
    for h in range(2):
        for k in range(3):
            a(f"buffer_load_dwordx4 v254, {S(W)}, {'s64' if h else 0} offen offset:{1280*k} lds")
            if (h, k) != (1, 2): a(f"s_addk_i32 m0, {-256 if k < 2 else 12288 + 512}")
def x1():
    if OPT["x1"] != 3: return
    a(f"s_mul_i32 s3, s{sT}, {-3*20480}\ns_add_u32 s3, s3, {20*20480}\nv_add_u32 v3, s3, v{vX}\ns_lshl_b32 s3, s{sT}, 6\ns_and_b32 s3, s3, 64\nv_xor_b32 v3, s3, v3")
    a(f"s_add_u32 s3, s{sSB}, 1\ns_cmp_eq_u32 s3, 10\ns_cselect_b32 s3, 0, s3\ns_lshl_b32 s61, s3, 7\ns_lshl_b32 s3, s{sT}, 10\ns_cselect_b32 exec_lo, -1, 0xffffff00\ns_add_u32 m0, s3, {S0 + SLOT}\ns_add_u32 s3, s{sT}, s{sG}")
    a(f"buffer_load_dwordx4 v3, {S(X)}, s61 offen lds\ns_mov_b32 exec_lo, -1\ns_addk_i32 m0, 4096\nv_add_u32 v3, 81920, v3")
    a(f"buffer_load_dwordx4 v3, {S(X)}, s61 offen lds\ns_addk_i32 m0, 4096\ns_cmp_eq_u32 s3, 5\ns_cselect_b32 s3, {OOB:#x}, 0\nv_add_u32 v3, 81920, v3\nv_or_b32 v3, s3, v3")
    a(f"buffer_load_dwordx4 v3, {S(X)}, s61 offen lds")
NX1 = 3 if OPT["x1"] == 3 else 0
suB(); suC()
if OPT["w1"] == 0: w1()
if OPT["wc"] == 2: wo_setup(249)
suD(0); suE(0)
a(f"s_lshl_b32 s3, s{sT}, 5\nv_xor_b32 v3, s3, v3\nv_mul_u32_u24 v4, 3072, v2\nv_add_u32 v3, v3, v4\nv_add_u32 v{vAW}, {S0 + 12288}, v3\ns_mov_b32 s{sI}, 0")
stamp(0, 5)
stamp(1, 5)
a(f"v_mov_b32 v3, 0\nv_lshlrev_b32 v2, 2, v0\ns_mov_b32 exec_hi, 0")
a(f"ds_write_b32 v2, v3 offset:{MODE}\nds_write_b32 v2, v3 offset:{MODE + 8*PITCH}\ns_mov_b64 exec, -1")
a("v_and_b32 v1, 15, v0\nv_lshrrev_b32 v2, 4, v0")
a(f"v_lshrrev_b32 v3, 1, v1\nv_xor_b32 v3, v3, v2\nv_lshlrev_b32 v3, 4, v3\nv_lshl_add_u32 v3, v1, 7, v3\nv_add_u32 v{vAX0}, {S0}, v3\nv_xor_b32 v{vAX1}, 64, v{vAX0}")
a(f"v_mul_u32_u24 v3, {PITCH}, v1\nv_lshl_add_u32 v3, v2, 3, v3\ns_lshl_b32 s3, s{sT}, 5\ns_add_u32 s3, s3, {QB}\nv_add_u32 v{vSW}, s3, v3")
a(f"v_lshlrev_b32 v{vSTR}, 4, v1")
assert STATS == 0
if OPT["pg"]:
    for k in range(4): a(f"s_cmp_eq_u32 s{sWV}, {k}\ns_cbranch_scc0 L_cw{k}"); warm("c0", k, 4); a(f"L_cw{k}:")
pf0(1)
ncl = OPT["ncp"]
CLR = clears(" sc1" if OPT["clr"] else "", 0)
if OPT["xw"] == 0: x1()
if OPT["w1"] == 1: w1()
if OPT["xw"] == 1: x1()
for t in CLR[:ncl]: a(t)
a(f"s_cmp_lt_u32 s{sWV}, 2\ns_cselect_b32 s{sXT}, s{sXT}, 99")
a(f"s_mov_b32 s{sRD}, {S0}\ns_min_u32 s{sEV}, s{sXT}, {E1_}\ns_waitcnt vmcnt({ncl + 6 + NX1}) lgkmcnt(0)")
def rdW(d, s_, ks):
    L(f"ds_read_b64_tr_b16 {V(d,2)}, v{vAW} offset:{12288*ks + 1024*s_}")
    return L(f"ds_read_b64_tr_b16 {V(d+2,2)}, v{vAW} offset:{12288*ks + 1024*s_ + 512}")
def rdX(d, t, ks): return L(f"ds_read_b128 {V(d+4*t,4)}, v{vAX0+ks} offset:{2048*t}")
def acc(s_, t): return ACC + 4 * (6 * s_ + t)
stamp(2); stamp(2, 5)
SEG = (1, 0, 2) if OPT['ord'] else (1, 2, 0)
PRE = OPT["pre"]
def rdlist(ph):
    o = []
    def w(s_):
        d = WV2 if (ph, s_) == (1, 1) else WF + 12 * ph + 4 * s_
        for e in range(2): o.append((("w", ph, s_), f"ds_read_b64_tr_b16 {V(WF+12*ph+4*s_+2*e,2)}, v{vAW} offset:{12288*ph + 1024*s_ + 512*e}"))
    w(SEG[0])
    for t in range(6): o.append((("x", ph, t), f"ds_read_b128 {V(XF+24*ph+4*t,4)}, v{vAX0+ph} offset:{2048*t}"))
    w(SEG[1]); w(SEG[2])
    return o
WV2 = WF + 24
def step(first):
    a("s_barrier")
    stampi(0)
    L.reset(); ids = {}
    M = [(s_, t) for s_ in SEG for t in range(6)]
    seq = ([] if first else [(1, "o") + m for m in M[PRE:]]) + [(0, "n") + m for m in M] + [(1, "n") + m for m in M[:PRE]]
    no = 0 if first else 18 - PRE
    pend = rdlist(0); p1 = rdlist(1)
    def rd(n=1):
        for _ in range(n):
            if pend: k, tx = pend.pop(0); ids[k] = L(tx)
    rd(12 if first else 2)
    fill = [f"s_add_u32 s3, s{sRD}, {SLOT}\ns_cmp_eq_u32 s3, {S0 + 4*SLOT}", f"s_cselect_b32 s3, {S0}, s3\ns_sub_u32 s{sDL}, s3, s{sRD}",
            f"s_mov_b32 s{sRD}, s3\nv_add_u32 v{vAX0}, s{sDL}, v{vAX0}", f"v_add_u32 v{vAW}, s{sDL}, v{vAW}\nv_add_u32 v{vAX1}, s{sDL}, v{vAX1}"]
    if not first: fill.append(f"s_cmp_eq_u32 s{sI}, s{sEV}\ns_cbranch_scc1 L_ev\nL_evb:")
    fill.append("STAMP"); fill.append(f"s_add_u32 s{sI}, s{sI}, 1\ns_cmp_lt_u32 s{sI}, 9"); fill.append("s_waitcnt lgkmcnt(0)")
    for n, (ph, kd, s_, t) in enumerate(seq):
        if n == no: pend += p1
        if kd == "n":
            need = max(ids["x", ph, t], ids["w", ph, s_])
            if s_ == SEG[0] and t == 0 and L.n - ids.get(("x", ph, 5), L.n) >= 4: need = ids["x", ph, 5]
            L.wait(need)
        if first or not (OPT["dbg"] & 256 and t & 1): mfma(acc(s_, t), WF + 12 * ph + 4 * s_, XF + 24 * ph + 4 * t, "0" if first and ph == 0 else None)
        if pend: rd()
        elif n >= no and fill and (len(fill) > 1 or n >= len(seq) - 2):
            f = fill.pop(0)
            if f == "STAMP": stampi(1)
            else: a(f)
    for f in fill: stampi(1) if f == "STAMP" else a(f)
step(1)
for t in CLR[ncl:]: a(t)
a("s_waitcnt vmcnt(4)")
CL0 = len(a.lines)
pagebreak("c0")
a("L_cloop:")
step(0)
a("s_cbranch_scc1 L_cloop")
L.reset(); ids = {}
def wreg(ks, s_): return WV2 if (ks, s_) == (1, 1) else WF + 12 * ks + 4 * s_
later = []
def lw(ks, s_):
    for e in range(2): later.append((("w", ks, s_), f"ds_read_b64_tr_b16 {V(wreg(ks,s_)+2*e,2)}, v{vAW} offset:{12288*ks + 1024*s_ + 512*e}"))
def lx(ks):
    for t in range(6): later.append((("x", ks, t), f"ds_read_b128 {V(XF+48*ks+4*t,4)}, v{vAX0+ks} offset:{2048*t}"))
lw(0, 1); lx(0); lw(1, 1); lx(1); lw(0, SEG[1]); lw(0, SEG[2])
def rd_later(n=1):
    for _ in range(n):
        if later: k, tx = later.pop(0); ids[k] = L(tx)
def old(s_, t): mfma(acc(s_, t), WF + 12 + 4 * s_, XF + 24 + 4 * t)
def new(s_, ks, t):
    L.wait(max(ids["w", ks, s_], ids["x", ks, t])); mfma(acc(s_, t), wreg(ks, s_), XF + 48 * ks + 4 * t)
def mlist(s_): return [(s_, "o", t) for t in range(6)] + [(s_, ks, t) for ks in range(2) for t in range(6)]
def mm(q):
    s_, k, t = q.pop(0)
    if k != "o" and ("w", k, s_) not in ids: rd_later(9)
    old(s_, t) if k == "o" else new(s_, k, t)
    if k == "o" and t == 5 and s_ != 1: lw(1, s_)
def fixup(s_, q, per):
    for r in range(4):
        a(f"v_mov_b32_dpp v{CS+r}, v{acc(s_,0)+r} row_newbcast:0 {DPPM}")
    wr = None
    for t in range(6):
        A = acc(s_, t); st = V(ST + 2 * t, 2)
        if per or not OPT["pk"]:
            ops = [f"v_fmac_f32 v{A+h}, v{CS+h}, v{ST+2*t}" for h in range(4)]
        else:
            ops = [f"v_pk_fma_f32 {V(A+h,2)}, {V(CS+h,2)}, {st}, {V(A+h,2)} op_sel_hi:[1,0,1]" for h in (0, 2)]
        ops += [f"v_cvt_pk_bf16_f32 v{A}, v{A}, v{A+1}", f"v_cvt_pk_bf16_f32 v{A+1}, v{A+2}, v{A+3}"]
        for i, o in enumerate(ops):
            if q and ((per >= 2 and i == 3) or (per >= 3 and i == 0)): mm(q)
            a(o)
        if q and per >= 1: mm(q)
        if (s_, t) in ((SEG[1], OPT["bk"]), (SEG[2], OPT["bv"])): L.wait(L.n - t); a("s_barrier")
        L(f"ds_write_b64 v{vSW}, {V(A,2)} offset:{TSTR*s_ + 16*PITCH*t}")
km, qm, vm = mlist(1), mlist(SEG[1]), mlist(SEG[2])
a(f"v_mov_b32 v1, {MODE}")
sr = ["ds_read_b32 v1, v1"] + [f"ds_read2_b64 {V(ST+2*t,4)}, v{vSTR} offset0:{32*t} offset1:{32*t + 32}" for t in range(0, 6, 2)]
for i in range(PRE):
    s_, _, t = (km if i < 6 else qm if i < 12 else vm).pop(0)
    if t == 5 and s_ != 1: lw(1, s_)
for o in sr: a(o)
a(f"s_waitcnt lgkmcnt(0)\nv_readfirstlane_b32 s{sMODE}, v1\ns_barrier")
stamp(3); stamp(9, 2); stamp(0, 3)
if not OPT["clr"]: a(f"s_cmp_eq_u32 s{sMODE}, 1\ns_cbranch_scc0 L_gs\nL_gsb:")
rd_later(2)
n = 0
for q in (km, qm, vm):
    while q[0][1] == "o" and (n < 6 or q is km): mm(q); rd_later(); n += 1
rd_later(2)
while km: mm(km); rd_later()
mm(qm); rd_later(9)
assert not later
fixup(1, qm, -(-len(qm) // 6))
while qm: mm(qm)
mm(vm)
fixup(SEG[1], vm, -(-len(vm) // 6) if not OPT["ord"] else OPT["vq"])
if not OPT["ord"]:
    while vm: mm(vm)
    fixup(0, [], 0)
else:
    for _ in range(2):
        if vm: mm(vm)
    a(f"s_setprio {OPT['vprio']}")
stamp(1, 3)
a("s_waitcnt lgkmcnt(0)\ns_barrier")
stamp(4); stamp(2, 3)
if OPT["ord"]:
    L.done = L.n
    a(f"v_mov_b32 v1, {VCN}\nv_mov_b32 v2, 1")
    while vm: mm(vm)
    fixup(2, [], 0)
    a("s_mov_b64 exec, 1\nds_add_u32 v1, v2\ns_mov_b64 exec, -1\ns_setprio 0")
    stamp(4, 3)
if STAGE == "A":
    a("L_dumpA:")
    a(f"s_lshl_b32 s3, s{sWV}, 10\nv_add_u32 v1, s3, v{aL16}\ns_mul_i32 s3, s2, 49152\ns_add_u32 s3, s3, {DUMP}")
    for i in range(6):
        a(f"ds_read_b128 v[16:19], v1 offset:{8192*i}\ns_waitcnt lgkmcnt(0)\nbuffer_store_dwordx4 v[16:19], v1, {S(WS)}, s3 offen\ns_waitcnt vmcnt(0)\ns_add_u32 s3, s3, 8192")
    finish()
a(f"s_cmp_lt_u32 s{sWV}, 2\ns_cbranch_scc0 L_c23")
attention("e")
if STAGE == "B": a("s_waitcnt vmcnt(0)"); finish()

ldWR(); hinit()
a(f"s_lshl_b32 s0, s{sWV}, 13\ns_add_u32 s0, s0, {EX}\nv_add_u32 v4, s0, v{aL16}\ns_lshl_b32 s0, s{sWV}, 2\ns_add_u32 s0, s0, {XFL}\ns_waitcnt vmcnt(0)")
wrprep(XR)
a("v_mov_b32 v2, s0\nL_fx:")
if OPT["fsl"]: a(f"s_sleep {OPT['fsl']}")
a("ds_read_b32 v1, v2\ns_waitcnt lgkmcnt(0)\nv_cmp_ne_u32 vcc, 2, v1\ns_cbranch_vccnz L_fx")
stamp(9); stamp(9, 4)
if OPT["lprio"]: a(f"s_setprio {OPT['lprio']}")
for q in range(8): a(f"ds_read_b128 {V(OF+4*q,4)}, v4 offset:{1024*q}")
for q in range(8):
    a(f"s_waitcnt lgkmcnt({7-q})")
    for e in range(4): a(f"v_add_f32 v{H+4*(q&3)+e}, v{H+4*(q&3)+e}, v{OF+4*q+e}")
stamp(10, 4)
a("s_branch L_tail")
deferred()
CL1 = len(a.lines)
pad("h")
a("L_c23:")
attention("l")
if STAGE == "B": a("s_waitcnt vmcnt(0)")
finish()
deferred("h")
CL2 = len(a.lines)
pad("h")
a(f"L_ev:\ns_cmp_eq_u32 s{sI}, {EV1}\ns_cbranch_scc0 L_ev1\ns_waitcnt vmcnt(0)\nL_ev1:\ns_max_u32 s{sEV}, s{sXT}, {EV1}")
a(f"s_cmp_eq_u32 s{sI}, s{sXT}\ns_cbranch_scc0 L_evb\ns_sub_u32 s0, s{sRD}, s{sDL}"); capt("s0"); a("s_branch L_evb")
if not OPT["clr"]:
    a("L_gs:")
    clears(" sc1")
    a("s_waitcnt vmcnt(0)\ns_barrier\ns_barrier\ns_branch L_gsb")

if OPT["pg"]:
    mv_ = a.lines[CL2:]; mw_ = a.lines[CL1:CL2]; del a.lines[CL1:]; a.lines[CL0+1:CL0+1] = mv_; a.lines[CLX:CLX] = mw_

GATE, UP, DOWN, SM = 4, 8, 12, 28
sMm = 36
GSL = 42240; NGS = 3; MISC = NGS * GSL
SSZ = 8448
ACTB, MZ, WINB, LNL = MISC, MISC + 192, MISC + 256, MISC + 512
GF, DF, GA, XS, IDX = 8, 168, 228, 236, 7
a("L_moe:")
a(f"s_cmp_ge_u32 s{sU}, 32\ns_cbranch_scc1 L_end")
a(f"s_lshr_b32 s{sWV}, s{sWV}, 6\nv_and_b32 v0, 63, v0\ns_lshl_b32 s{sMm}, s{sJ}, 1\ns_add_u32 s{sMm}, s{sMm}, s{sU}\ns_sub_u32 s{sMm}, s{sMm}, 30\ns_mov_b32 s{sBUD}, {BUDGET}")
a("v_lshlrev_b32 v6, 4, v0\nv_mov_b32 v132, 0\nv_mov_b32 v133, 0\nv_mov_b32 v144, 0\ns_waitcnt lgkmcnt(0)")
mksrd(WS, "ws", 1 << 28); mksrd(DBG, "dbg", 256); mksrd(GATE, "gate", 640 * 3072); mksrd(UP, "up", 640 * 3072); mksrd(DOWN, "down", 1536 * 1280); mksrd(OUT, "out", 2048 * 1280)
stamp(0)
a("v_mov_b32 v8, -1\nv_mov_b32 v9, -1\nv_mov_b32 v10, -1\nv_mov_b32 v11, -1")
a(f"s_lshl_b32 s0, s{sMm}, 14\ns_lshl_b32 s3, s{sWV}, 11\ns_add_u32 s0, s0, s3\ns_add_u32 s0, s0, {RJ}")
for i in range(2): a(f"buffer_store_dwordx4 v[8:11], v6, {S(WS)}, s0 offen offset:{1024*i} sc1")
def rootup(n):
    a(f"s_waitcnt vmcnt({n})\ns_barrier\ns_cmp_eq_u32 s{sWV}, 0\ns_cbranch_scc0 L_nroot")
    a(f"s_lshl_b32 s0, s{sMm}, 4\nv_mov_b32 v8, 1\ns_mov_b64 exec, 1\nbuffer_store_dword v8, off, {S(DBG)}, s0 sc1")
    if OPT["ddie"] >= 0: a(f"v_mov_b32 v9, s98\nbuffer_store_dword v9, off, {S(DBG)}, s0 offset:4 sc1")
    a("s_mov_b64 exec, -1\nL_nroot:")
if STAGE != "F": rootup(0); finish()
if OPT["mon"]:
    a(f"s_movk_i32 s{sBUD}, 40\ns_bitcmp1_b32 s{sMm}, 0\ns_cbranch_scc0 L_nm\ns_waitcnt vmcnt(0)\ns_barrier\ns_cmp_eq_u32 s{sWV}, 0\ns_cbranch_scc0 L_end")
    a(f"s_lshl_b32 s0, s{sMm}, 4\nv_mov_b32 v8, 1\ns_mov_b64 exec, 1\nbuffer_store_dword v8, off, {S(DBG)}, s0 sc1\ns_waitcnt vmcnt(0)")
    a(f"s_lshl_b32 s0, s{sMm}, 16\nv_mov_b32 v1, s0\nv_mov_b32 v20, 0\nv_mov_b32 v9, -1\ns_add_u32 s1, s0, {DUMP}\ns_mov_b32 m0, 0\ns_bitcmp1_b32 s{sMm}, 1")
    a(f"L_mo:\ns_cbranch_scc1 L_m1\nbuffer_atomic_umin v9, off, {S(WS)}, s1 sc0 sc1\ns_branch L_m2\nL_m1:\nglobal_load_dword v8, v1, s[50:51]\nv_add_u32 v1, 640, v1\nL_m2:")
    a(f"s_waitcnt vmcnt(0)\ns_memrealtime s[44:45]\ns_waitcnt lgkmcnt(0)\ns_sub_i32 s44, s44, s98\nv_writelane_b32 v20, s44, m0\ns_add_i32 m0, m0, 1\ns_cmp_eq_u32 m0, 58\ns_cbranch_scc1 L_m3\ns_bitcmp1_b32 s{sMm}, 1\ns_branch L_mo")
    a(f"L_m3:\nv_writelane_b32 v20, s98, 63\ns_mov_b64 exec, -1\ns_lshl_b32 s3, s2, 4\ns_add_u32 s3, s3, 8\ns_lshl_b32 s3, s3, 7\ns_add_u32 s3, s3, {STAMP}\nv_lshlrev_b32 v3, 2, v0\nbuffer_store_dword v20, v3, {S(WS)}, s3 offen\ns_endpgm\nL_nm:")
vGX, vGS, vRX, vRS = 4, XS + 13, XS + 14, XS + 15
sB5, sKO = 44, 45
a(f"s_and_b32 s{sB5}, s{sMm}, 1\ns_mul_i32 s0, s{sJ}, 384\ns_lshl_b32 s1, s{sB5}, 8\ns_add_u32 s1, s1, s0\ns_mul_i32 s3, s{sWV}, {8*3072}\ns_add_u32 s1, s1, s3")
a(f"v_lshrrev_b32 v1, 3, v0\nv_mul_u32_u24 v1, 3072, v1\ns_lshr_b32 s3, s{sWV}, 1\nv_xor_b32 v2, s3, v0\nv_and_b32 v2, 7, v2\nv_lshl_add_u32 v1, v2, 4, v1\nv_add_u32 v{vGX}, s1, v1\nv_xor_b32 v{vGX+1}, 64, v{vGX}")
a(f"s_lshl_b32 s1, s{sB5}, 6\ns_add_u32 s0, s0, s1\ns_and_b32 s3, s{sWV}, 3\ns_mul_i32 s1, s3, {16*3072}\ns_add_u32 s0, s0, s1\ns_add_u32 s0, s0, 128")
a(f"v_lshrrev_b32 v1, 2, v0\nv_mul_u32_u24 v1, 3072, v1\nv_xor_b32 v2, s3, v0\nv_and_b32 v2, 3, v2\nv_lshl_add_u32 v1, v2, 4, v1\nv_add_u32 v{vGS}, s0, v1")
a(f"s_cmp_lt_u32 s{sWV}, 4\ns_cselect_b64 s[{SM}:{SM+1}], s[{GATE}:{GATE+1}], s[{UP}:{UP+1}]\ns_cselect_b32 s62, 0, 128\ns_mov_b32 s{SM+2}, {640*3072:#x}\ns_mov_b32 s{SM+3}, 0x20000")
a(f"s_lshl_b32 s61, s{sWV}, 10\ns_add_u32 s62, s62, s61\ns_mul_i32 s{sB5}, s{sB5}, {5*64*3072}\ns_mul_i32 s46, s{sMm}, {96*1280}")
a(f"s_and_b32 s3, s{sMm}, 1\ns_cselect_b32 s65, 40960, 0\ns_cselect_b32 s66, 0, 81920\ns_add_u32 s65, s65, s46\ns_add_u32 s66, s66, s46\ns_add_u32 s67, s65, 40960")
def koff(i): a(f"s_add_u32 s{sKO}, s{sB5}, {i*64*3072}" if i < 5 else f"s_sub_u32 s{sKO}, {i*64*3072}, s{sB5}")
def dissue(hh, i, sl):
    a(f"s_lshl_b32 s3, s{sWV}, 6\ns_addk_i32 s3, {512*i}\nv_add_u32 v1, s3, v0\nv_mul_u32_u24 v2, 52429, v1\nv_lshrrev_b32 v2, 22, v2")
    a(f"v_and_b32 v3, 3, v2\nv_lshlrev_b32 v3, 1, v3\nv_and_or_b32 v3, v2, 8, v3\nv_xor_b32 v1, v1, v3\nv_lshlrev_b32 v1, 4, v1")
    a(f"s_add_u32 m0, s61, {sl + 8192*i}\ns_nop 0\nbuffer_load_dwordx4 v1, {S(DOWN)}, s{65 + hh} offen lds")
UN = [[("x", i), ("s", i)] for i in range(5)] + [[("x", 5), ("x", 6)], [("x", 7), ("x", 8)], [("x", 9)]]
SU, DU = [[("s", i) for i in range(5, 10)]], [[("d", h)] for h in range(3)]
UN = {0: UN + DU + SU, 1: UN + SU + DU, 2: UN[:6] + SU + UN[6:] + DU}[OPT["uord"]]
def place(u):
    o = (u % NGS) * GSL; r = []
    for kd, i in UN[u]: r.append((kd, i, o)); o += {"x": 16384, "s": SSZ, "d": 40960}[kd]
    return r
def uissue(u):
    n = 0
    for kd, i, o in place(u):
        if kd == "d":
            for k in range(5): dissue(i, k, o)
            n += 5; continue
        koff(i)
        if kd == "x":
            for m_, srd_ in ((0, GATE), (1, UP)): a(f"s_add_u32 m0, s61, {o + 8192*m_}\nbuffer_load_dwordx4 v{vGX+m_}, {S(srd_)}, s{sKO} offen lds")
            n += 2
        else: a(f"s_add_u32 m0, s62, {o}\nbuffer_load_dwordx4 v{vGS}, {S(SM)}, s{sKO} offen lds"); n += 1
    return n
a(f"s_cmp_lt_u32 s{sWV}, {OPT['rw']}\ns_cbranch_scc1 L_r0")
n0 = uissue(0)
a(f"s_waitcnt vmcnt({n0})\ns_barrier\ns_branch L_r1\nL_r0:")
rootup(0)
uissue(0)
a("L_r1:")
if OPT["mlate"]: a(f"L_ml:\ns_memrealtime s[0:1]\ns_waitcnt lgkmcnt(0)\ns_sub_u32 s0, s0, s98\ns_cmp_lt_u32 s0, {OPT['mlate']}\ns_cbranch_scc1 L_ml")
nI = {1: uissue(1)}
a("v_lshrrev_b32 v1, 5, v0\nv_bfe_u32 v2, v0, 2, 1\nv_lshl_add_u32 v1, v1, 2, v2\nv_bfe_u32 v2, v0, 4, 1\nv_bfe_u32 v3, v0, 3, 1\nv_lshl_add_u32 v3, v3, 1, v2\nv_lshl_add_u32 v1, v3, 4, v1")
a(f"v_xor_b32 v3, s{sWV}, v3\nv_and_b32 v2, 1, v0\nv_lshlrev_b32 v2, 3, v2\nv_lshl_add_u32 v2, v3, 4, v2\nv_bfe_u32 v3, v0, 1, 1")
a(f"v_lshl_add_u32 v{vRS}, v1, 6, v2\nv_mul_u32_u24 v8, 4224, v3\nv_add_u32 v{vRS}, v{vRS}, v8")
a(f"v_lshl_add_u32 v{vRX}, v1, 7, v2\nv_mul_u32_u24 v8, {8192 + 64}, v3\nv_xor_b32 v{vRX}, v{vRX}, v8")
vXS, vACT, vA1, vA2, vE4 = 252, 253, 254, 255, 5
for i in range(8): a(f"v_mov_b32 v{GA+i}, 0")
a(f"v_mov_b32 v1, 0x4444\nv_mov_b32 v2, 0xeeee\ns_mov_b32 vcc_lo, 0xaaaaaaaa\ns_mov_b32 vcc_hi, 0xaaaaaaaa\nv_cndmask_b32 v{IDX}, v1, v2, vcc")
a(f"v_and_b32 v1, 48, v0\nv_and_b32 v2, 1, v0\nv_lshlrev_b32 v2, 4, v2\nv_lshl_add_u32 v{vXS}, v1, 1, v2\nv_add_u32 v{vA1}, {ACTB}, v{vXS}\nv_add_u32 v{vXS}, {LNL}, v{vXS}")
a(f"v_add_u32 v1, {ACTB + 128}, v1\nv_mov_b32 v2, {MZ}\nv_cndmask_b32 v{vA2}, v1, v2, vcc\nv_mov_b32 v3, 0\nv_lshl_add_u32 v2, v0, 2, v2\ns_mov_b32 exec_hi, 0\nds_write_b32 v2, v3\ns_mov_b64 exec, -1")
a(f"s_and_b32 s0, s{sWV}, 4\ns_add_u32 s0, s0, s{sWV}\nv_bfe_u32 v1, v0, 4, 1\nv_lshl_add_u32 v1, v1, 2, s0")
a("v_lshrrev_b32 v2, 1, v1\nv_lshlrev_b32 v2, 2, v2\nv_and_or_b32 v2, v1, 1, v2\nv_and_or_b32 v2, v0, 2, v2\nv_bfe_u32 v3, v0, 2, 1\nv_lshl_add_u32 v2, v2, 1, v3")
a(f"v_and_b32 v3, 1, v0\nv_lshl_add_u32 v2, v2, 1, v3\nv_and_b32 v3, 7, v0\nv_lshl_add_u32 v3, v1, 3, v3\nv_cmp_gt_u32 vcc, 8, v1\nv_cndmask_b32 v2, v3, v2, vcc\nv_lshlrev_b32 v2, 1, v2\nv_add_u32 v{vACT}, {ACTB}, v2")
a(f"s_lshl_b32 s47, s{sWV}, 15\ns_lshl_b32 s3, s{sMm}, 6\ns_add_u32 s47, s47, s3\ns_add_u32 s47, s47, {RJ + R_E4}")
a(f"v_lshrrev_b32 v1, 2, v0\nv_and_b32 v2, 3, v0\nv_lshlrev_b32 v2, 4, v2\nv_lshl_add_u32 v2, v1, 10, v2\nv_lshlrev_b32 v1, 4, v1\nv_add_u32 v1, {4096 - 64}, v1\ns_mov_b64 vcc, 0xffff\nv_cndmask_b32 v{XS+10}, v1, v2, vcc")
a(f"s_cmp_lt_u32 s{sWV}, 4\ns_cselect_b32 s50, 0x00ff0000, 0\ns_or_b32 s50, s50, 0xff\ns_mov_b32 s51, 0")
sFT, sFE, sWIN, sXS = 52, 53, 54, 55
a(f"s_sub_u32 s3, s{sWV}, 4\ns_lshl_b32 s3, s3, 4\ns_add_u32 s{sFT}, s3, s{sMm}\ns_mul_i32 s3, s{sFT}, 52\ns_lshr_b32 s3, s3, 8\ns_mul_i32 s3, s3, {RJS - 5120}\ns_lshl_b32 s{sFE}, s{sFT}, 10\ns_add_u32 s{sFE}, s{sFE}, s3\ns_add_u32 s{sFE}, s{sFE}, {RJ + R_E4}")
vFC, vFB, vSG, FD = 128, 129, 130, 40
a(f"s_mov_b32 s49, {BUDGET >> 2}\ns_mov_b32 s63, 0")
a(f"s_mul_i32 s3, s{sFT}, 52\ns_lshr_b32 s3, s3, 8\ns_mul_i32 s0, s3, 5\ns_sub_u32 s0, s{sFT}, s0\ns_mul_i32 s3, s3, 80\ns_lshl_b32 s1, s0, 2\ns_cmp_eq_u32 s0, 4\ns_cselect_b32 s1, 64, s1\ns_cselect_b32 s0, 0, 4\ns_cselect_b32 s48, 2, 0\ns_add_u32 s3, s3, s1")
a(f"v_bfe_u32 v1, v0, 4, 1\nv_lshrrev_b32 v2, 5, v0\nv_lshl_add_u32 v1, v1, 1, v2\nv_lshlrev_b32 v1, s0, v1\nv_and_b32 v2, 3, v0\nv_lshlrev_b32 v2, s48, v2\nv_add3_u32 v1, v1, v2, s3\nv_lshlrev_b32 v{vFC}, 1, v1\nv_lshlrev_b32 v{vFB}, 2, v1")
a("v_lshrrev_b32 v1, 4, v0\nv_bfe_u32 v2, v0, 2, 2\nv_lshl_add_u32 v1, v1, 3, v2\nv_mul_u32_u24 v1, 1280, v1\nv_and_b32 v3, 1, v0\nv_lshl_add_u32 v1, v3, 3, v1")
a(f"v_bfe_u32 v2, v0, 2, 3\nv_lshlrev_b32 v2, 1, v2\nv_bfe_u32 v3, v0, 1, 1\ns_mul_i32 s0, s{sWV}, 10")
for i in range(5): a(f"s_add_u32 s3, s0, {2*i}\nv_add_u32 v{XS+i}, s3, v3\nv_xor_b32 v{XS+i}, v{XS+i}, v2\nv_lshl_add_u32 v{XS+i}, v{XS+i}, 4, v1")
for u in range(len(UN)):
    a(f"s_waitcnt vmcnt({nI.get(u + 1, 0) + (u == 6)}) lgkmcnt(0)\ns_barrier")
    if u + 2 < len(UN): nI[u + 2] = uissue(u + 2)
    sk = False
    for kd, i, o in place(u):
        if kd == "d":
            for k in range(5):
                a(f"v_add_u32 v1, {o}, v{XS+k}")
                for e in range(2): a(f"ds_read_b64_tr_b16 {V(DF+12*k+4*i+2*e,2)}, v1 offset:{1280*4*e}")
            continue
        if kd == "s" and not sk: a(f"s_cmp_lt_u32 s{sWV}, 4\ns_cbranch_scc0 L_g{u}"); sk = True
        a(f"v_add_u32 v1, {o}, v{vRX if kd == 'x' else vRS}")
        p = 128 if kd == "x" else 64
        for hh in range(2):
            for e in range(2): a(f"ds_read_b64_tr_b16 {V(GF+80*(kd == 's')+8*i+4*hh+2*e,2)}, v1 offset:{p*(8*hh + 2*e)}")
    if sk: a(f"L_g{u}:")
    if u == 5: a(f"v_and_b32 v{XS+12}, 0xf0, v6\nbuffer_load_dword v{XS+11}, v{XS+12}, {S(DBG)}, 0 offen sc1")
    if u == 7: stamp(1)
stamp(2)
pagebreak()
warm("m", 0, 1)
a(f"v_mov_b32 v{vE4}, v{XS+10}\nv_mov_b32 v4, {WINB}\ns_mov_b32 s61, 0\ns_cmp_lt_u32 s{sWV}, 7\ns_cbranch_scc1 L_np")
a(f"L_rt:\nv_cmp_ne_u32 vcc, 1, v{XS+11}\ns_cbranch_vccz L_rtg\nbuffer_load_dword v{XS+11}, v{XS+12}, {S(DBG)}, 0 offen sc1\ns_waitcnt vmcnt(0)\ns_sub_u32 s{sBUD}, s{sBUD}, 1\ns_cbranch_scc0 L_rt\ns_mov_b32 s{sBUD}, 0\nL_rtg:")
vKA, vKB, sKO_, sAG, sSP = 144, 146, 64, 60, 61
NFL = 16
a(f"v_bfe_u32 v1, v0, 2, 3\nv_lshlrev_b32 v1, 15, v1\nv_and_b32 v2, 3, v0\nv_min_u32 v2, 2, v2\nv_mul_u32_u24 v3, 1280, v2\ns_mov_b32 s0, {RJ}\nv_add3_u32 v{vKB+1}, v3, v1, s0\nv_lshl_add_u32 v{vKA}, v2, 7, v1\ns_mul_i32 s0, s{sMm}, 384\ns_add_u32 s{sKO_}, s0, {RJ + R_KEY}")
stamp(3)
vRW = 132
a(f"s_and_b32 s3, s{sMm}, 1\ns_mul_i32 s3, s3, 640\nv_add_u32 v{vRW}, s3, v6\nv_subrev_u32 v2, 1280, v{vRW}\nv_min_u32 v{vRW}, v{vRW}, v2\ns_sub_u32 s3, 1024, s3\nv_add_u32 v{vRW+1}, s3, v6")
row = f"s_mov_b32 m0, {LNL}\ns_mov_b64 exec, -1\nbuffer_load_dwordx4 v{vRW}, {S(WS)}, s{sXS} offen sc1 lds\ns_mov_b32 m0, {LNL + 1024}\ns_mov_b64 exec, 0xffff\nbuffer_load_dwordx4 v{vRW+1}, {S(WS)}, s{sXS} offen sc1 lds"
KP, KV = OPT["kp"], 140
KM = 0x77777777
a(f"s_mov_b32 s{sWIN}, 0\ns_mov_b32 s{sXS}, {OOB:#x}\ns_mov_b32 s{sAG}, {1 << 30}\ns_setprio 3")
def look(k):
    a(row); execset(KM)
    a(f"buffer_atomic_umin v{KV+k}, v{vKA}, {S(WS)}, s{sKO_} offen sc0 sc1")
for k in range(KP): a(f"v_mov_b32 v{KV+k}, -1")
for k in range(KP - 1):
    look(k)
    if OPT["ks"]: a(f"s_sleep {OPT['ks']}")
for k in range(KP):
    a(f"L_pl{k}:")
    look((k + KP - 1) % KP)
    if OPT["sp"]: a(f"s_mov_b32 s62, {k}\ns_cmp_eq_u32 s{sSP}, 2\ns_cbranch_scc1 L_ab\nL_pi{k}:")
    a(f"s_waitcnt vmcnt({3 * (KP - 1)})\nv_cmp_lt_u32 vcc, s{sWIN}, v{KV+k}\ns_sub_u32 s{sAG}, s{sAG}, 1\ns_cbranch_vccz L_pw")
    a(f"s_cselect_b32 s0, s{sSP}, 1\ns_max_i32 s{sAG}, s{sAG}, 0")
    a(f"v_cmp_eq_u32 s[58:59], -1, v{KV+k}\nv_mov_b32 v{vKB}, v{KV+k}\ns_andn2_b64 vcc, vcc, s[58:59]\ns_cbranch_scc0 L_pq{k}")
    if OPT["stamps"] == 1: l = a.label("fu"); a(f"s_cmp_eq_u32 s63, 0\ns_cbranch_scc0 {l}"); stamp(12); a(f"{l}:\ns_add_u32 s63, s63, 1")
    stamp(11)
    a(f"s_mov_b64 exec, -1\nv_cndmask_b32 v{vKB}, 0, v{vKB}, vcc\ns_lshl_b32 s{sSP}, s{sSP}, 1")
    a(f"v_max_u32_dpp v{XS}, v{vKB}, v{vKB} row_ror:8 {DPPM}")
    for r in (4, 2, 1): a(f"v_max_u32_dpp v{XS}, v{XS}, v{XS} row_ror:{r} {DPPM}")
    a(f"v_mov_b32 v{XS+1}, v{XS}\ns_mov_b32 s{sAG}, {KP - 1}\nv_permlane16_swap_b32 v{XS}, v{XS+1}\nv_max_u32 v{XS}, v{XS}, v{XS+1}\ns_mov_b32 exec_hi, 0\nv_cmpx_eq_u32 vcc, v{XS}, v{vKB}")
    a(f"ds_write_b64 v4, {V(vKB,2)}\nv_readfirstlane_b32 s{sXS}, v{vKB+1}\nv_readfirstlane_b32 s{sWIN}, v{vKB}\ns_branch L_pl{(k + 1) % KP}\nL_pq{k}:")
    if OPT["sp"]: a(f"s_cmp_eq_u32 s0, 0\ns_cselect_b32 s{sSP}, 1, s{sSP}\ns_cbranch_scc1 L_pg")
    if OPT["ks"]: a(f"s_sleep {OPT['ks']}")
a(f"s_sub_u32 s{sBUD}, s{sBUD}, 1\ns_cbranch_scc0 L_pl0\ns_mov_b32 s{sBUD}, 0\ns_waitcnt vmcnt(0)\ns_cmp_eq_u32 s0, s0")
a("L_pw:")
stamp(4)
a("s_cbranch_scc0 L_pv")
if OPT["sp"]: a(f"s_cmp_eq_u32 s{sSP}, 1\ns_mov_b32 s{sSP}, 0\ns_mov_b64 exec, -1\ns_cbranch_scc1 L_bb")
a("s_branch L_pg\nL_pv:")
for v in range(KP - 1):
    a(f"s_cmp_eq_u32 s{sAG}, {v}\ns_waitcnt vmcnt({1 + 3 * (KP - 2 - v)})\n" + ("s_cbranch_scc1 L_pg" if v < KP - 2 else "s_branch L_pg"))
if OPT["sp"]: a(f"L_ab:\ns_mov_b64 exec, -1\nds_write_b32 v4, v4 offset:{NFL}\ns_branch L_bb")
a(f"L_xf:\n{row}\ns_waitcnt vmcnt(0)\nL_pg:\ns_mov_b64 exec, -1")
def back(l, d):
    if not OPT["sp"]: return "s_branch L_xf"
    return "\n".join(f"s_cmp_eq_u32 s62, {k}\ns_cbranch_scc1 {l}{(k + d) % KP}" for k in range(KP - 1)) + f"\ns_branch {l}{(KP - 1 + d) % KP}"
def wback(p):
    if OPT["wb"] & p: a(f"s_and_b32 s3, s{sMm}, 1\ns_add_u32 s3, s3, s{sWV}\ns_cmp_eq_u32 s3, 8\ns_cbranch_scc0 L_wb{p}\nbuffer_wbl2 sc1\nL_wb{p}:")
a("L_np:\ns_waitcnt lgkmcnt(0)\ns_barrier")
stamp(5)
def smf(d, A, B): a(f"v_smfmac_f32_16x16x64_bf16 {V(d,4)}, {V(A,4)}, {V(B,8)}, v{IDX}")
a(f"s_cmp_lt_u32 s{sWV}, 4\ns_cbranch_scc1 L_xh")
XL = 88
wback(1)
a(f"ds_read_b64 v[2:3], v4")
for s in range(10): a(f"ds_read_b128 {V(XL+4*s,4)}, v{vXS} offset:{128*s}")
def slook(k):
    if OPT["sp"]: a(f"s_cmp_eq_u32 s{sSP}, 0\ns_cbranch_scc1 L_sl{k}"); look(k); a(f"s_mov_b64 exec, -1\nL_sl{k}:")
slook(0)
a(f"s_waitcnt lgkmcnt(10)\nv_readfirstlane_b32 s56, v2\nv_readfirstlane_b32 s57, v3")
fo = [f"s_and_b32 s0, s57, 0x7fff\ns_add_u32 s57, s57, s0\ns_add_u32 s57, s57, {R_BASE}\ns_and_b32 s1, s56, 0xfffff800",
      f"s_ashr_i32 s3, s1, 31\ns_not_b32 s3, s3\ns_or_b32 s3, s3, 0x80000000\ns_xor_b32 s1, s1, s3", f"s_andn2_b32 s56, 2047, s56\ns_mul_i32 s56, s56, 1280\nv_mov_b32 v{vSG}, s1",
      f"v_mul_f32 v{vSG}, 0xbfb8aa3b, v{vSG}", f"v_exp_f32 v{vSG}, v{vSG}", f"v_add_f32 v{vSG}, 1.0, v{vSG}", f"v_rcp_f32 v{vSG}, v{vSG}"]
for s in range(10):
    a(f"s_waitcnt lgkmcnt({9-s})"); smf(GA, XL + 4 * s, GF + 8 * s)
    if fo: a(fo.pop(0))
assert KP == 3
slook(1)
a("s_branch L_xj"); pad("m"); a("L_xh:")
for s in range(4): a(f"ds_read_b128 {V(XS+4*s,4)}, v{vXS} offset:{128*s}")
for s in range(10):
    a(f"s_waitcnt lgkmcnt({min(3, 9-s)})")
    smf(GA, XS + 4 * (s % 4), GF + 8 * s); smf(GA + 4, XS + 4 * (s % 4), GF + 80 + 8 * s)
    if s + 4 < 10: a(f"ds_read_b128 {V(XS+4*(s%4),4)}, v{vXS} offset:{128*(s+4)}")
a("L_xj:\ns_mov_b64 vcc, 0xffff")
a(f"v_add_f32 v1, v{GA}, v{GA+1}\nv_add_f32 v2, v{GA+4}, v{GA+5}\nv_cndmask_b32 v1, v2, v1, vcc")
a(f"v_mul_f32 v2, 0xbfb8aa3b, v1\nv_cmp_u_f32 vcc, v1, v1\nv_exp_f32 v2, v2\nv_mul_f32_dpp v3, v1, v1 row_ror:8 {DPPM}\nv_add_f32 v2, 1.0, v2\nv_rcp_f32 v2, v2\ns_mov_b64 exec, s[50:51]")
a(f"v_mul_f32 v1, v2, v3\nv_cvt_pk_bf16_f32 v1, v1, v1\nds_write_b16 v{vACT}, v1\ns_mov_b64 exec, -1\ns_cbranch_vccnz L_xn\nL_xnb:")
DEFER.append(f"L_xn:\nds_write_b32 v4, v4 offset:{NFL}\ns_branch L_xnb")
stamp(6)
DEFER.append(f"L_xsr:\ns_sub_u32 s49, s49, 1\ns_cbranch_scc1 L_xsgo\n" + "\n".join(f"v_mov_b32 v{GA+i}, 0" for i in (0, 1, 4, 5))
             + f"\ns_waitcnt lgkmcnt(0)\ns_barrier\ns_cmp_eq_u32 s{sWV}, 7\ns_cbranch_scc0 L_np\nds_write_b32 v4, v{GA} offset:{NFL}\ns_cmp_eq_u32 s{sSP}, 2\ns_cbranch_scc0 L_xf\ns_mov_b32 s{sSP}, 0\ns_mov_b64 exec, {KM:#x}\n" + back("L_pi", 0))
if OPT["sp"]: a(f"s_cmp_eq_u32 s{sSP}, 0\ns_cbranch_scc0 L_pl0")
a(f"L_bb:\ns_waitcnt lgkmcnt(0)\ns_barrier")
DD = 8
a(f"ds_read_b32 v1, v4 offset:{NFL}\nds_read_b128 {V(XS,4)}, v{vA2}\nds_read_b128 {V(XS+4,4)}, v{vA1}\ns_waitcnt lgkmcnt(2)\nv_cmp_ne_u32 vcc, 0, v1\ns_cbranch_vccnz L_xsr\nL_xsgo:")
a("s_waitcnt lgkmcnt(1)")
for i in (4, 0, 1, 2, 3): mfma(DD + 4 * i, XS, DF + 12 * i + 8, "0")
a("s_waitcnt lgkmcnt(0)")
for i in (4, 0, 1, 2, 3): smf(DD + 4 * i, XS + 4, DF + 12 * i)
PS = 32
a(f"v_add_f32 v1, v{DD+16}, v{DD+17}")
for i in range(4): a(f"v_add_f32 v{PS+i}, v{DD+4*i}, v{DD+4*i+1}")
for i in range(4): a(f"v_mov_b32_dpp v{PS+i}, v1 quad_perm:[{i},{i},{i},{i}] row_mask:0x2 bank_mask:0xf")
a(f"s_mov_b64 exec, 0x1111ffff\nbuffer_store_dwordx4 {V(PS,4)}, v{vE4}, {S(WS)}, s47 offen sc1\ns_mov_b64 exec, -1")
stamp(7)
if OPT["stamps"] == 1: a(f"s_sub_u32 s3, {(BUDGET >> 2) + 1}, s49\ns_add_u32 s88, s98, s3\ns_add_u32 s90, s98, s63")
wback(2)
a(f"s_cmp_lt_u32 s{sFT}, 40\ns_cbranch_scc0 L_mfin")
FP = OPT["fp"]
FA = OPT["fa"]; NF = 3 if FA else 2
def fld(k):
    d = FD + 8 * k
    a(f"buffer_load_dword v{d+4}, v{vFB}, {S(WS)}, s57 offen sc1")
    if FA:
        for e in (0, 2): a(f"v_mov_b64 {V(d+e,2)}, 0\nbuffer_atomic_or_x2 {V(d+e,2)}, v6, {S(WS)}, s{sFE} offen offset:{4*e} sc0 sc1")
    else: a(f"buffer_load_dwordx4 {V(d,4)}, v6, {S(WS)}, s{sFE} offen sc1")
if OPT["f0"] > 0: a(f"s_sleep {OPT['f0']}")
if OPT["f0"] < 0: a("s_waitcnt vmcnt(0)")
if OPT["f0"] < -1: a(f"s_sleep {-OPT['f0'] - 1}")
for k in range(FP - 1):
    fld(k)
    if OPT["fs"]: a(f"s_sleep {OPT['fs']}")
a("L_fd:")
if OPT["ftop"]: a(f"s_sleep {OPT['ftop']}")
for k in range(FP):
    fld((k + FP - 1) % FP)
    d = FD + 8 * k
    a(f"s_waitcnt vmcnt({NF*(FP-1)})\nv_max3_u32 v1, v{d}, v{d+2}, v{d+4}\nv_cmp_eq_u32 vcc, -1, v1\ns_cbranch_vccz L_fg{k}")
    if OPT["fs"]: a(f"s_sleep {OPT['fs']}")
a(f"s_sub_u32 s{sBUD}, s{sBUD}, 1\ns_cbranch_scc0 L_fd")
for k in reversed(range(FP)):
    d = FD + 8 * k
    a(f"L_fg{k}:\nv_permlane32_swap_b32 v{d}, v{d+1}\nv_permlane32_swap_b32 v{d+2}, v{d+3}\nv_add_f32 v{d}, v{d}, v{d+1}\nv_add_f32 v{d+2}, v{d+2}, v{d+3}")
    a(f"v_permlane16_swap_b32 v{d}, v{d+2}\nv_add_f32 v{d}, v{d}, v{d+2}")
    for r in (4, 8): a(f"v_add_f32_dpp v{d}, v{d}, v{d} row_ror:{r} {DPPM}")
    a(f"v_fma_f32 v8, v{d}, v{vSG}, v{d+4}\nv_cvt_pk_bf16_f32 v8, v8, v8")
    execset(0x000F000F000F000F)
    a(f"buffer_store_short v8, v{vFC}, {S(OUT)}, s56 offen")
    if k: stamp(8); finish(); pad("m")
stamp(8)
a("L_mfin:")
finish()
deferred("m")
if OPT["stamps"]:
    a("L_dump:\ns_mov_b64 exec, -1\nv_mbcnt_lo_u32_b32 v0, -1, 0\nv_mbcnt_hi_u32_b32 v0, -1, v0\ns_memtime s[0:1]\ns_memrealtime s[62:63]\ns_waitcnt lgkmcnt(0)\nv_mov_b32 v2, 0")
    a("v_writelane_b32 v2, s98, 0\nv_writelane_b32 v2, s62, 1\ns_sub_u32 s3, s0, s96\nv_writelane_b32 v2, s3, 2")
    for i in range(NST): a(f"s_sub_u32 s3, s{70+2*i}, s{98 if OPT['rt'] else 96}\ns_cmp_lt_u32 s3, {5000 if OPT['rt'] else 0x100000}\ns_cselect_b32 s3, s3, 0\nv_writelane_b32 v2, s3, {3+i}")
    a(f"s_lshl_b32 s3, s2, 4\ns_add_u32 s3, s3, s{sWV}\ns_lshl_b32 s3, s3, 7\ns_add_u32 s3, s3, {STAMP}\nv_lshlrev_b32 v3, 2, v0\ns_mov_b32 exec_hi, 0")
    if not OPT["dfix"]: a(f"buffer_store_dword v2, v3, {S(WS)}, s3 offen")
    if OPT["diag"] >= 0:
        a(f"s_sub_u32 s3, s2, {OPT['dwg']}\ns_cmp_lt_u32 s3, {OPT['dn']}\ns_cbranch_scc0 L_end\ns_cmp_eq_u32 s{sWV}, {OPT['dwv']}\ns_cbranch_scc0 L_end")
        a(f"s_sub_u32 s3, s{70+2*OPT['diag']}, s{98 if OPT['dib'] < 0 else 70+2*OPT['dib']}\ns_lshl_b32 s3, s3, {2 if OPT['dib'] < 0 else 4}\ns_add_u32 s3, s3, s62")
        if OPT["dfix"]: a(f"s_add_u32 s3, s98, {OPT['dfix']}")
        if OPT["ddie"] >= 0:
            a(f"s_mov_b64 exec, -1\nv_and_b32 v1, 7, v0\nv_lshlrev_b32 v1, 5, v1\nbuffer_load_dword v2, v1, {S(DBG)}, 0 offen offset:4 sc1\ns_waitcnt vmcnt(0)\nv_readlane_b32 s0, v2, 0")
            for k in range(1, 8): a(f"v_readlane_b32 s1, v2, {k}\ns_min_u32 s0, s0, s1")
            a(f"v_readlane_b32 s1, v2, {OPT['ddie']}\ns_sub_u32 s1, s1, s0\ns_and_b32 s1, s1, 0x3ff\ns_lshl_b32 s1, s1, 5\ns_add_u32 s3, s0, {OPT['dfix']}\ns_add_u32 s3, s3, s1")
        a("L_dg:\ns_memrealtime s[62:63]\ns_waitcnt lgkmcnt(0)\ns_sub_u32 s0, s62, s3\ns_cmp_lt_i32 s0, 0\ns_cbranch_scc1 L_dg")
a("L_end:\ns_endpgm")
for i, l in reversed(list(enumerate(a.lines))):
    if l.startswith(";WARM"):
        _, cat, k, n = l.split()
        a.lines[i:i+1] = [f"s_call_b64 s[100:101], {p}" for p in PADS.get(cat, [])[int(k)::int(n)]]
print({k: len(v) for k, v in PADS.items()})
body, nn = hazard.fix(a.lines[body0:], OPT["verbose"])
a.lines[body0:] = body
kernel_desc(a, K, 256)
open(sys.argv[1], "w").write(a.text())
print("nops inserted:", nn, "lines:", len(a.lines))
```

```python
import sys, struct, math
sys.path.insert(0, "gen")
from common import *
import hazard

OPT = dict(stage="F", stamps=0, verbose=0, nl=9, pg=1, kw=0, kr=3, kn=1, kc=15, e2p=0, fmode=1, n0=8, na=2, nb=10, n1=0, o2=0, hp=1, cdw=0, sf=2, dpn=1, hpr=1, fsl=1, bk=0, bv=-1, wc=1, tch=5, bud=1 << 19, rw=5, clr=0, pf0=1, uord=0, mt=1, mx=8, x1=2, xw=0, w1=1, ppr=0, sp=1, wb=0, pfp=3, te=1, tl=0, t2=0, wsp=0, ws0=2, ord=0, vpos=1, off="27945386", kl=1, ftop=0, mlate=0, rf=1, kp=3, ks=2, ka=1, fp=3, fs=1, fa=0, f0=0, hlp=1, r2=5, e1=1, e2=4, dep=3, dep2=6, opos=1, vq=2, spf=0, pk=1, rsp=1, osc="plain",
           diag=-1, dwg=77, dn=1, dib=-1, dfix=0, ddie=-1, mon=0, dpr=0, ncp=4, wrl=0, dwv=0, slpk=0, prio=1, ou=6, grp=0, rt=1, dbg=0, wri=5, pre=12, aprio=1, lprio=2, vprio=2, oul=5, xprio=1, cpos=1)
for kv in sys.argv[2:]:
    k, v = kv.split("=")
    assert k in OPT, k
    OPT[k] = int(v) if v.lstrip("-").isdigit() else v
STAGE = OPT["stage"]

E2, SP, RJ, STAMP, DUMP = 0x200000, 0x280000, 0x300000, 0x500000, 0x1000000
RJS = 32768
R_BASE, R_FL, R_E4, R_KEY = 4096, 12288, 16384, 21504
SLOT, S0 = 36864, 8192
PITCH = 144; TSTR = 96 * PITCH
VB = S0 + SLOT - TSTR; KB = VB - TSTR; QB = KB - TSTR
STATS, ZR = 0, 1792
MODE, KMAX, WFL, VCN, HRD, XFL = 1728, 1732, 1744, 1748, 1752, 1760
WOB = S0 + 2 * SLOT
EX = S0 + SLOT + 12288
assert ZR + 8 * PITCH + 64 <= QB
X, W, WO, WS, OUT, DBG, WR = 4, 8, 12, 16, 20, 24, 28
sWV, sJ, sU, sG, sC, sC5, sT, sB0, sBUD, sMODE, sI, sGID = range(32, 44)
KA = dict(x=44, w=46, wo=48, wr=52, gate=54, up=56, down=60, out=62, dbg=64, ws=66)
BUDGET = OPT['bud']
DPPM = "row_mask:0xf bank_mask:0xf"
ONES = 0x3F803F80
OOB = 0x80000000
def f32(x): return struct.unpack("<I", struct.pack("<f", x))[0]
CEXP = f32(20 ** -0.5 * math.log2(math.e))

a = Asm()
def S(d): return f"s[{d}:{d+3}]"
def V(d, n=1): return f"v{d}" if n == 1 else f"v[{d}:{d+n-1}]"
def mksrd(d, name, size): a(f"s_mov_b64 s[{d}:{d+1}], s[{KA[name]}:{KA[name]+1}]\ns_mov_b32 s{d+2}, {size:#x}\ns_mov_b32 s{d+3}, 0x20000")
def execset(m):
    if m == -1: a("s_mov_b64 exec, -1")
    elif m < (1 << 31): a(f"s_mov_b64 exec, {m:#x}")
    else: a(f"s_mov_b32 exec_lo, {m & 0xffffffff:#x}\ns_mov_b32 exec_hi, {m >> 32:#x}")
def smask(d, m): a(f"s_mov_b32 s{d}, {m & 0xffffffff:#x}\ns_mov_b32 s{d+1}, {m >> 32:#x}")
def lanes(f): return sum(1 << l for l in range(64) if f(l))
def mfma(d, A, B, C=None):
    c = V(d, 4) if C is None else (C if isinstance(C, str) else V(C, 4))
    a(f"v_mfma_f32_16x16x32_bf16 {V(d,4)}, {V(A,4)}, {V(B,4)}, {c}")
DEFER = []
def lst(text):
    l = a.label("gl")
    a(f"s_cmp_eq_u32 s{sMODE}, 1\ns_cbranch_scc0 {l}g")
    a(text.replace("{F}", "")); a(f"{l}b:")
    DEFER.append(f"{l}g:\n" + text.replace("{F}", " sc1") + f"\ns_branch {l}b")
PADS = {}
def pad(cat):
    if not OPT["pg"]: return
    l = a.label("pad"); PADS.setdefault(cat, []).append(l); a(f"{l}:\ns_setpc_b64 s[100:101]")
def pagebreak(cat=None, live=True):
    if not OPT["pg"]: return
    l = a.label("pb")
    if live: a(f"s_branch {l}")
    a(".p2align 12")
    if cat: pad(cat)
    a(f"{l}:")
def warm(cat, k, n): a(f";WARM {cat} {k} {n}")
def deferred(cat=None):
    n = 999
    for t in DEFER:
        if cat and n > 110: pad(cat); n = 0
        a(t); n += t.count("\n") + 1
    DEFER.clear()
def capture(fn):
    global a
    class C:
        def __init__(s): s.g = []
        def __call__(s, t=""): s.g.append(t)
        def label(s, b): return a0.label(b)
    a0 = a; a = C(); fn(); g = a.g; a = a0
    return g
class Cnt:
    def __init__(s, name, mx): s.n = 0; s.name = name; s.mx = mx; s.done = 0
    def __call__(s, text): a(text); s.n += 1; return s.n
    def wait(s, i):
        if i <= s.done: return
        k = min(s.mx, s.n - i); a(f"s_waitcnt {s.name}({k})"); s.done = s.n - k
    def reset(s): s.n = 0; s.done = 0
L = Cnt("lgkmcnt", 15)

NST = 13
CLK = "s_memrealtime" if OPT["rt"] else "s_memtime"
def stamp(i, lvl=1):
    if OPT["stamps"] == lvl: a(f"{CLK} s[{70+2*i}:{71+2*i}]")
def stampi(ph):
    if OPT["stamps"] == 2:
        if ph == 0: a(f"{CLK} s[94:95]")
        else: a(f"s_lshl_b32 m0, s{sI}, 1\ns_waitcnt lgkmcnt(0)\ns_movreld_b32 s70, s94")
def finish():
    a("s_branch L_dump" if OPT["stamps"] else "s_endpgm")

a(HEADER.rstrip())
a("; @launch grid=(256,1,1) block=(512,1,1) lds=163840")
if OPT["stamps"] and OPT["grp"]: a("; @groups g0:0-79:2-2 g1:80-159:2-2 g2:160-239:2-2 m7:240-255:7-7")
if OPT["stamps"] and OPT["rt"]: a("; @rt")
if OPT["stamps"] and not OPT["grp"]: a("; @groups c0:0-239:0-0 c2:0-239:2-2 h0:0-239:4-4 h1:0-239:5-5 h3:0-239:7-7 m0:240-255:0-0 m4:240-255:4-4 ma:240-247:7-7 mb:248-255:7-7")
a('.amdgcn_target "amdgcn-amd-amdhsa--gfx950"')
K = NAME + "_kernel"
kernel_begin(a, K, OPT.get("page", 1))
body0 = len(a.lines)
NL = OPT["nl"]
a("s_load_dwordx16 s[44:59], s[0:1], 0\ns_load_dwordx8 s[60:67], s[0:1], 56")
if OPT["stamps"]: a("s_memrealtime s[98:99]\ns_memtime s[96:97]")
a(f"s_lshr_b32 s{sU}, s2, 3\ns_and_b32 s{sJ}, s2, 7\nv_readfirstlane_b32 s{sWV}, v0\ns_getpc_b64 s[100:101]\nL_pc:")
if OPT['dbg'] & 32: a('s_load_dword s79, s[100:101], 0x7000')
a(f"s_mul_i32 s3, s{sU}, {NL}\nv_min_u32 v2, {NL-1}, v0\nv_add_lshl_u32 v2, v2, s3, 7\nv_min_u32 v2, L_end-L_pc, v2")
a(f"s_cmp_ge_u32 s{sU}, 30\ns_cbranch_scc1 L_moe")
a("global_load_dword v255, v2, s[100:101]")
a(f"s_mul_i32 s{sG}, s{sU}, 26\ns_lshr_b32 s{sG}, s{sG}, 8\ns_mul_i32 s3, s{sG}, 10\ns_sub_u32 s{sC}, s{sU}, s3\ns_lshr_b32 s{sWV}, s{sWV}, 6")
OFT = sum(int(ch) << (4 * i) for i, ch in enumerate(str(OPT["off"])))
a(f"s_lshl_b32 s3, s{sJ}, 2\ns_lshr_b32 s3, {OFT:#x}, s3\ns_and_b32 s{sMODE}, s3, 15\ns_add_u32 s3, s{sC}, s{sMODE}\ns_sub_u32 s68, s3, 10\ns_cselect_b32 s69, s3, s68")
a(f"s_mul_i32 s3, s69, 245760\ns_lshl_b32 s68, s{sC}, 7\ns_add_u32 s3, s3, s68")
a("v_lshrrev_b32 v1, 3, v0\nv_lshrrev_b32 v3, 4, v0\nv_and_b32 v2, 2, v1\nv_and_or_b32 v2, v3, 4, v2\nv_xor_b32 v2, v2, v0\nv_and_b32 v2, 7, v2")
a("v_mul_u32_u24 v4, 3840, v1\nv_lshl_add_u32 v4, v2, 4, v4\nv_add_u32 v4, s3, v4")
vX, vSUM, vXD, vSTW, vBIA, vEV, vEA = 24, 28, 36, 52, 53, 54, 55
sM, sLO, sLT, sP1, sP2 = 44, 52, 54, 55, 56
sXT, sE2L, sRJ, sNO, sSL, sXM, sXO, sLX, sRD, sPF, sSPL, sFO, sSB = range(57, 70)
sEV, sDL, sWO_ = sXM, sXO, sFO
a(f"s_mul_i32 s3, s{sWV}, 3072\ns_add_u32 m0, s3, {S0 + 12288}\nv_and_b32 v0, 63, v0\ns_and_b32 s{sT}, s{sWV}, 3")
a(f"s_lshr_b32 s3, s{sJ}, 1\ns_lshl_b32 s3, s3, 9\ns_mul_i32 s68, s{sG}, 176\ns_add_u32 s3, s3, s68\ns_and_b32 s68, s{sJ}, 1\ns_add_u32 s3, s3, s68\ns_mul_i32 s{sB0}, s3, 1280")
a(f"s_sub_u32 s{sI}, s{sWV}, 5\ns_mul_i32 s3, s{sI}, {32*2560}\ns_add_u32 s3, s3, s{sB0}\ns_sub_u32 s3, s3, {8*2560}")
a(f"v_lshrrev_b32 v1, 3, v0\nv_lshrrev_b32 v3, 4, v0\nv_xor_b32 v3, v3, v0\nv_and_b32 v3, 7, v3\nv_mul_u32_u24 v1, 2560, v1\nv_lshl_add_u32 v1, v3, 4, v1\nv_add_u32 v{vX}, s3, v1")
a(f"s_add_u32 s3, s{sI}, s{sG}\ns_cmp_eq_u32 s3, 4\ns_cselect_b32 s3, {OOB:#x}, 0")
a(f"v_xor_b32 v{vX+1}, 64, v{vX}\nv_add_u32 v{vX+1}, 20480, v{vX+1}\nv_add_u32 v{vX+2}, 40960, v{vX}\nv_add_u32 v{vX+3}, 40960, v{vX+1}\nv_or_b32 v{vX+3}, s3, v{vX+3}")
for d, sz in ((X, 2048 * 1280), (W, 640 * 3840), (WO, 640 * 1280), (WS, 1 << 28), (OUT, 2048 * 1280), (DBG, 256), (WR, 1280)): a(f"s_mov_b32 s{d+2}, {sz:#x}\ns_mov_b32 s{d+3}, 0x20000")
a("s_waitcnt lgkmcnt(0)")
stamp(0)
def mv(d, n): return f"s_mov_b64 s[{d}:{d+1}], s[{KA[n]}:{KA[n]+1}]"
a(f"global_load_lds_dwordx4 v4, s[46:47]\ns_addk_i32 m0, -256\n{mv(X, 'x')}")
a(f"global_load_lds_dwordx4 v4, s[46:47] offset:1280\ns_addk_i32 m0, -256\n{mv(OUT, 'out')}")
a(f"global_load_lds_dwordx4 v4, s[46:47] offset:2560")
for d, n in ((DBG, "dbg"), (WS, "ws"), (W, "w"), (WO, "wo"), (WR, "wr")): a(mv(d, n))
sMT = 96
if OPT["mt"]: a(f"s_cmp_eq_u32 s{sWV}, 4\ns_cselect_b64 s[{sMT}:{sMT+1}], s[54:55], s[{sMT if OPT['stamps'] else 58}:{sMT+1 if OPT['stamps'] else 59}]\ns_cmp_eq_u32 s{sWV}, 5\ns_cselect_b64 s[{sMT}:{sMT+1}], s[56:57], s[{sMT}:{sMT+1}]")
if OPT["mt"] and OPT["stamps"]: a(f"s_cmp_ge_u32 s{sWV}, 6\ns_cselect_b64 s[{sMT}:{sMT+1}], s[58:59], s[{sMT}:{sMT+1}]")
def nextslab(): a(f"s_add_u32 s{sSB}, s{sSB}, 1\ns_cmp_eq_u32 s{sSB}, 10\ns_cselect_b32 s{sSB}, 0, s{sSB}")
def advslot(d): a(f"s_add_u32 s{d}, s{d}, {SLOT}\ns_cmp_eq_u32 s{d}, {S0 + 4*SLOT}\ns_cselect_b32 s{d}, {S0}, s{d}")
def xissue():
    a(f"s_add_u32 m0, s{sSL}, s{sLX}\ns_mov_b32 exec_lo, s{sXM}")
    for i in range(4):
        a(f"buffer_load_dwordx4 v{vX+i}, {S(X)}, s{sXO} offen lds")
        if i < 3: a("s_addk_i32 m0, 1024")
        if i == 0: a("s_mov_b32 exec_lo, -1")
a(f"s_cmp_lt_u32 s{sWV}, 5\ns_cbranch_scc1 L_nx")
a(f"s_lshl_b32 s{sLX}, s{sI}, 12\ns_cselect_b32 s{sXM}, -1, 0xffffff00\ns_lshl_b32 s{sXO}, s69, 7\ns_mov_b32 s{sSL}, {S0}")
xissue()
a("L_nx:")
stamp(1)
aKe, aK4, aKx, aKy = range(200, 204)
aQe, aQx, aQy, aQ4 = 204, 206, 208, 210
aVe, aV1, aV2 = range(216, 219)
vM, aRK, aCQ, aH0s, aH0l, aOs, aOl, aWO, aOUT, aL16, vRK, aXC, XR = 220, 222, 223, 224, 225, 226, 227, 228, 232, 233, 234, 235, 236
vAW, vAX0, vAX1, vSW, vSTR = 244, 245, 246, 247, 248
WRF, WSP = 244, 252
MASK = [lanes(lambda l: 2 * r + (l >> 5) > (l & 7)) for r in range(4)]
LO = lanes(lambda l: (l & 15) < 8)
sTA, sTP, sTS = 44, 44, 45
aOl2 = XR
def suA():
    a(f"s_mov_b32 s{sBUD}, {BUDGET}\ns_mul_i32 s{sGID}, s{sJ}, 3\ns_add_u32 s{sGID}, s{sGID}, s{sG}\ns_sub_u32 s3, s{sC}, 5\ns_cselect_b32 s{sC5}, s{sC}, s3")
    a(f"s_lshl_b32 s3, s{sWV}, 2\ns_lshr_b32 s{sTA}, 0x32105454, s3\ns_and_b32 s{sTA}, s{sTA}, 7\ns_lshr_b32 s45, s{sT}, 1\ns_add_u32 s45, s45, 4")
    a(f"s_cmp_eq_u32 s{sG}, 2\ns_cselect_b32 s{sNO}, 10, 11")
    a(f"s_sub_u32 s{sXT}, 10, s{sMODE}\nv_lshlrev_b32 v{aL16}, 4, v0")
    a(f"s_mul_i32 s{sE2L}, s{sGID}, 6\ns_add_u32 s{sE2L}, s{sE2L}, s{sTP}\ns_mul_i32 s{sE2L}, s{sE2L}, 2560\ns_add_u32 s{sE2L}, s{sE2L}, {E2}")
    a(f"s_lshl_b32 s{sRJ}, s{sJ}, 15\ns_add_u32 s{sRJ}, s{sRJ}, {RJ}")
    a(f"s_sub_u32 s51, 5, s{sC5}\ns_add_u32 s1, s{sC5}, 1\ns_sub_u32 s3, 15, s{sC5}\ns_cmp_le_u32 s{sC5}, 2\n"
      "s_cselect_b32 s46, 0, s3\ns_cselect_b32 s47, s51, s1\ns_cselect_b32 s48, s3, 0\ns_cselect_b32 s49, s1, s51\ns_cselect_b32 s50, 1, 0")
    a("v_and_b32 v3, 15, v0\nv_add_u32 v3, 8, v3\nv_lshrrev_b32 v4, 1, v3\nv_lshrrev_b32 v5, 5, v0\nv_xor_b32 v4, v4, v5\nv_and_b32 v4, 7, v4")
    a(f"v_lshlrev_b32 v4, 4, v4\nv_lshl_add_u32 v4, v3, 7, v4\nv_bfe_u32 v5, v0, 4, 1\nv_lshl_add_u32 v4, v5, 3, v4\ns_lshl_b32 s3, s{sTP}, 11\nv_add_u32 v{aXC}, s3, v4")
def suB():
    a(f"v_and_b32 v1, 15, v0\nv_lshrrev_b32 v2, 4, v0\nv_mov_b32 v7, {ZR}\ns_mul_i32 s0, s{sTA}, {16*PITCH}\ns_movk_i32 s1, {PITCH}")
    a("v_bfe_u32 v3, v0, 2, 1\nv_and_b32 v4, 3, v0\nv_lshlrev_b32 v4, 1, v4"); a("v_lshl_add_u32 v3, v3, 3, v4\nv_bfe_u32 v4, v0, 3, 1\nv_add_u32 v3, v3, v4")
    a(f"s_add_u32 s3, s0, {KB}\nv_mov_b32 v4, s3\nv_mad_u32_u24 v3, v3, s1, v4")
    a(f"s_add_u32 s3, s0, {QB + 8*PITCH}\nv_mov_b32 v4, s3\nv_mad_u32_u24 v4, v1, s1, v4")
    smask(52, LO)
    def kq(dK, dQ, quad, cond):
        a(quad); a(f"v_lshl_add_u32 v{dK}, v5, 3, v3\nv_lshl_add_u32 v5, v5, 3, v4")
        if cond: a(cond); a("v_cndmask_b32 v5, v7, v5, vcc")
        a(f"v_cndmask_b32 v{dQ}, v7, v5, s[52:53]\nv_cndmask_b32 v{dQ+1}, v5, v7, s[52:53]")
    kq(aKe, aQe, "v_add_u32 v5, s51, v2", None)
    kq(aKx, aQx, "v_add_u32 v5, s46, v2", "v_cmp_gt_u32 vcc, s47, v2")
    kq(aKy, aQy, "v_add_u32 v5, s48, v2\nv_min_u32 v5, 15, v5", "v_cmp_gt_u32 vcc, s49, v2")
    a("s_sub_u32 s3, s51, 1\nv_mad_u32_u24 v5, v2, 5, s3\ns_add_u32 s3, s46, 4\nv_mov_b32 v6, s3\ns_mov_b64 vcc, 0xffff\nv_cndmask_b32 v5, v5, v6, vcc")
    a(f"v_min_u32 v5, 15, v5\nv_lshl_add_u32 v{aK4}, v5, 3, v3\nv_lshl_add_u32 v5, v5, 3, v4")
    a(f"s_cmp_eq_u32 s47, 5\ns_cselect_b64 vcc, 0xff, 0\nv_cndmask_b32 v{aQ4}, v7, v5, vcc\ns_lshl_b64 vcc, vcc, 8\nv_cndmask_b32 v{aQ4+1}, v7, v5, vcc")
    for i in range(2, 6): a(f"s_bfm_b64 vcc, 8, {8*i}\nv_cndmask_b32 v{aQ4+i}, v7, v5, vcc")
def suC():
    a(f"s_mul_i32 s0, s{sTA}, {16*PITCH}\ns_movk_i32 s1, {PITCH}")
    a("v_bfe_u32 v3, v0, 2, 3\nv_lshrrev_b32 v4, 5, v0\nv_lshl_add_u32 v3, v3, 1, v4")
    a(f"s_add_u32 s3, s0, {VB}\nv_mov_b32 v4, s3\nv_mad_u32_u24 v3, v3, s1, v4\nv_and_b32 v4, 3, v0")
    smask(54, lanes(lambda l: l & 3 == 0))
    a(f"v_add_u32 v5, s51, v4\nv_lshl_add_u32 v{aVe}, v5, 3, v3\nv_add_u32 v7, 32, v{aVe}")
    a(f"s_cmp_eq_u32 s50, 1\ns_cselect_b32 s3, -1, 12\ns_cselect_b32 s56, 2, -1")
    a(f"v_add_u32 v5, s3, v4\nv_lshl_add_u32 v5, v5, 3, v3\nv_cndmask_b32 v{aV1}, v5, v7, s[54:55]\nv_add_u32 v7, 40, v7")
    a(f"v_add_u32 v5, s56, v4\nv_add_u32 v6, 10, v5\nv_cmp_gt_i32 vcc, s51, v5"); a(f"v_cndmask_b32 v5, v6, v5, vcc\nv_lshl_add_u32 v5, v5, 3, v3\nv_cndmask_b32 v{aV2}, v5, v7, s[54:55]")
    a(f"s_lshl_b32 s0, s{sTA}, 8\nv_lshrrev_b32 v4, 5, v0\nv_and_or_b32 v3, v0, 8, v4\ns_add_u32 s3, s0, {STATS + 8}\nv_lshl_add_u32 v{aRK}, v3, 4, s3")
    a(f"v_and_b32 v1, 15, v0\ns_add_u32 s3, s0, {STATS + 128 + 4}\nv_lshl_add_u32 v{aCQ}, v1, 4, s3")
    a(f"s_lshr_b32 s3, s{sB0}, 8\ns_mul_i32 s3, s3, 52429\ns_lshr_b32 s3, s3, 18\ns_lshl_b32 s0, s{sTP}, 5\ns_add_u32 s3, s3, s0\ns_sub_u32 s3, 2047, s3\nv_mad_i32_i24 v{vRK}, v1, -2, s3")
def octaddr(d, tile, rowq, extra):
    a(f"s_lshl_b32 s3, s{tile}, 4\nv_add_u32 v5, s3, v{rowq}\ns_lshl_b32 s3, s{sNO}, 3\nv_cmp_gt_u32 vcc, s3, v5")
    a(f"v_mul_u32_u24 v5, 2560, v5\nv_add3_u32 v5, v5, v{extra}, s{sB0}\nv_cndmask_b32 v{d}, v6, v5, vcc")
def suD(helper=1):
    a(f"v_lshrrev_b32 v2, 4, v0\nv_and_or_b32 v3, v0, 8, v2\nv_and_b32 v4, 0x70, v{aL16}\nv_bfrev_b32 v6, 1")
    if helper: octaddr(aOl2, sTS, 3, 4)
    octaddr(aOl, sTA, 3, 4)
    a(f"s_lshl_b32 s3, s{sC}, 7\nv_add_u32 v{aOs}, s3, v{aOl}")
    a(f"v_bfe_u32 v3, v0, 4, 1\nv_cmp_eq_u32 s[54:55], s50, v3\ns_cmp_lg_u32 s{sC5}, 0\ns_cselect_b64 s[0:1], -1, s[54:55]\ns_and_b64 vcc, vcc, s[0:1]")
    a(f"s_cmp_lg_u32 s{sC5}, 4\ns_cselect_b64 s[0:1], 0, s[54:55]\ns_andn2_b64 vcc, vcc, s[0:1]")
    a(f"v_cndmask_b32 v{aH0l}, v6, v{aOs}, vcc")
    a(f"s_cmp_le_u32 s{sC5}, 3\ns_cselect_b32 s3, 2560, 0\ns_sub_u32 s3, s3, 128\nv_mov_b32 v4, s3"); a(f"s_cmp_ge_u32 s{sC5}, 2\ns_cselect_b32 s3, 2560, 0\ns_add_u32 s3, s3, 128\nv_mov_b32 v5, s3")
    a(f"v_cndmask_b32 v4, v4, v5, s[54:55]\nv_mul_u32_u24 v3, 2560, v3\nv_sub_u32 v4, v4, v3"); a(f"v_add_u32 v4, v4, v{aOs}\nv_cndmask_b32 v{aH0s}, v6, v4, vcc")
def wlane():
    a("v_bfe_u32 v3, v0, 3, 2\nv_lshlrev_b32 v3, 2, v3\nv_and_or_b32 v3, v0, 3, v3"); a("v_lshlrev_b32 v3, 3, v3\nv_bfe_u32 v4, v0, 2, 2\nv_lshl_add_u32 v3, v4, 7, v3")
def suE(helper=1):
    a("v_and_b32 v1, 15, v0\nv_bfrev_b32 v6, 1\nv_bfe_u32 v3, v0, 4, 1\nv_lshrrev_b32 v4, 5, v0"); a(f"v_lshl_add_u32 v3, v3, 1, v4\ns_lshl_b32 s3, s{sC}, 7\nv_lshl_add_u32 v4, v3, 4, s3")
    octaddr(aOUT, sTP, 1, 4)
    wlane()
    a("v_lshrrev_b32 v2, 4, v0")
    if helper:
        a(f"s_and_b32 s3, s{sWV}, 1\ns_lshl_b32 s3, s3, 12\ns_add_u32 s3, s3, {WOB}\nv_lshl_add_u32 v4, v2, 10, v3\nv_add_u32 v{aWO}, s3, v4")
        for ct in range(1, 4): a(f"v_xor_b32 v{aWO+ct}, {32*ct}, v{aWO}")
    for r in range(4): smask(sM + 2 * r, MASK[r])
    a(f"s_movk_i32 s{sLT}, 10240\ns_mov_b32 s{sP1}, 0x07060501\ns_mov_b32 s{sP2}, 0x0706000c")
    a("v_mov_b32 v5, 0xffff\nv_mov_b32 v6, 0xffff0000")
    for d in range(2): a(f"v_cndmask_b32 v1, 0, v5, s[{sM+4*d}:{sM+4*d+1}]\nv_cndmask_b32 v4, 0, v6, s[{sM+4*d+2}:{sM+4*d+3}]\nv_or_b32 v{vM+d}, v1, v4")
KQ, SS, KS, PX, FL_, FE, VF, HL, CQ, TM, F01 = 96, 152, 168, 176, 192, 196, 64, 92, 5, 6, 2
DM, LT, QF = SS, 80, KQ + 20
H, OF, WOF, RING = 8, 24, 104, 6
DEP = OPT["dep"]
def capt(slot, d=XR):
    a(f"v_add_u32 v1, {slot}, v{aXC}")
    for ct in range(4):
        if ct: a(f"v_xor_b32 v{1+ct}, {32*ct}, v1")
        a(f"ds_read_b64 {V(d+2*ct,2)}, v{1+ct}")
def hinit(d=XR):
    for i in range(8): a(f"v_lshlrev_b32 v{H+2*i}, 16, v{d+i}\nv_and_b32 v{H+2*i+1}, 0xffff0000, v{d+i}")
def ldWR():
    a(f"v_lshrrev_b32 v1, 4, v0\nv_lshlrev_b32 v1, 3, v1\ns_lshl_b32 s3, s{sC}, 7")
    for ct in range(4): a(f"buffer_load_dwordx2 {V(WRF+2*ct,2)}, v1, {S(WR)}, s3 offen offset:{32*ct}")
def wrprep(t):
    a(f"s_mov_b32 s3, {ONES:#x}")
    for i in range(4): a(f"v_mov_b32 v{t+i}, s3")
    execset(0x1111111111111111)
    for i in range(8): a(f"v_mov_b32 v{WRF+i}, s3")
    execset(-1)
    for k in range(2): mfma(WSP, WRF + 4 * k, t, "0" if k == 0 else None)
def pzero(lo=0, hi=16):
    for i in range(lo, hi): a(f"v_mov_b32 v{PX+i}, 0")
def ksread(e=None):
    e = e or a
    a(f"v_add_u32 v1, 128, v{aRK}")
    for r in range(4):
        e(f"v_cndmask_b32 v2, v1, v{aRK}, s[{sM+2*r}:{sM+2*r+1}]\nds_read_b64 {V(KS+2*r,2)}, v2 offset:{32*r}")
    e(f"ds_read_b32 v{CQ}, v{aCQ}")
def rdmode(): a(f"v_mov_b32 v1, {MODE}\nds_read_b32 v1, v1\ns_waitcnt lgkmcnt(0)\nv_readfirstlane_b32 s{sMODE}, v1")
def gsync_h(poll):
    l = a.label("gh")
    a(f"s_cmp_eq_u32 s{sMODE}, 1\ns_cbranch_scc0 {l}g\n{l}b:")
    t = f"{l}g:\ns_barrier\n"
    if poll:
        t += f"s_cmp_eq_u32 s{sWV}, 5\ns_cbranch_scc0 {l}e\nv_mov_b32 v1, 1\ns_mov_b64 exec, 1\nbuffer_store_dword v1, off, {S(WS)}, s{sFO} offset:64 sc1\ns_mov_b64 exec, -1\n"
        t += f"{l}p:\nbuffer_load_dword v1, v{vEA}, {S(WS)}, 0 offen offset:64 sc1\ns_waitcnt vmcnt(0)\nv_cmp_ne_u32 vcc, 1, v1\ns_cbranch_vccz {l}e\ns_sub_u32 s{sBUD}, s{sBUD}, 1\ns_cbranch_scc0 {l}p\ns_mov_b32 s{sBUD}, 0\n{l}e:\n"
    DEFER.append(t + f"s_barrier\ns_branch {l}b")
def weave(P, xs):
    xs = list(xs); per = -(-len(xs) // len(P))
    for p in P:
        a(p)
        for _ in range(per):
            if xs: a(xs.pop(0))
a("v_mov_b32 v254, v4")
suA()
a(f"s_cmp_lt_u32 s{sWV}, 4\ns_cbranch_scc1 L_cons")
vW, vT = 24, 56
STR = {5: 0, 3: 1, 13: 2, -3: 3, -13: 4}
def wo_setup(vT=vT):
    a(f"v_lshrrev_b32 v1, 3, v0\nv_and_b32 v2, 2, v1\nv_xor_b32 v2, v2, v0\ns_lshl_b32 s3, s{sWV}, 2\nv_xor_b32 v2, s3, v2")
    a(f"v_and_b32 v2, 7, v2\ns_lshl_b32 s3, s{sC}, 7\nv_lshl_add_u32 v2, v2, 4, s3")
    a(f"v_and_b32 v3, 3, v1\nv_mul_u32_u24 v3, 1280, v3\nv_add_u32 v2, v3, v2")
    a(f"v_lshrrev_b32 v3, 5, v0\nv_mul_u32_u24 v3, 5120, v3\nv_sub_u32 v4, 5120, v3")
    for d, i in STR.items(): a(f"v_mad_u32_u24 v{vT+i}, v{3 + (d < 0)}, {abs(d)}, v2")
def wo_quads(cp, h, g):
    c5 = cp % 5
    if h == 0: return 5 - c5 + g, 10 - c5 + g
    if g == 0: return 9 - c5, 14 - c5
    i = g - 1
    p = 3 + i if c5 <= 2 else i
    return (i if c5 <= 2 else 13 + i), (p if p < 5 - c5 else 10 + p)
def wo_piece(st, g):
    h, cp = st // 10, st % 10
    q0, q1 = wo_quads(cp, h, g or 0)
    t = f"s_lshl_b32 s3, s{sT}, 10\ns_add_u32 m0, s3, {WOB}" if st == 0 else "s_addk_i32 m0, 4096"
    o = (64*cp + 4*min(q0, q1)) * 1280
    t += f"\ns_add_u32 s3, s{sPF}, {o}" if g is None else f"\ns_mov_b32 s3, {o}"
    return t + f"\nbuffer_load_dwordx4 v{vT + STR[q1 - q0]}, {S(WO)}, s3 offen lds"
def wo_late(lo, w, vT):
    for st in range(lo, 20):
        for g in (w, w + 2):
            q0, q1 = wo_quads(st % 10, st // 10, g)
            a(f"s_mov_b32 m0, {WOB + 4096*st + 1024*g}" if (st, g) == (lo, w) else "s_addk_i32 m0, 2048")
            a(f"s_mov_b32 s3, {(64*(st % 10) + 4*min(q0, q1)) * 1280}\nbuffer_load_dwordx4 v{vT + STR[q1 - q0]}, {S(WO)}, s3 offen lds")
def wo_run(lo, hi, tag):
    for st in range(lo, min(hi, 10)): a(wo_piece(st, None))
    lo = max(lo, 10)
    if lo >= hi: return
    for g in range(1, 4):
        a(f"s_cmp_eq_u32 s{sT}, {g}\ns_cbranch_scc1 L_wo{tag}{g}")
        DEFER.append(f"L_wo{tag}{g}:\n" + "\n".join(wo_piece(st, g) for st in range(lo, hi)) + f"\ns_branch L_wo{tag}")
    for st in range(lo, hi): a(wo_piece(st, 0))
    a(f"L_wo{tag}:")
N0 = OPT["n0"]; NA = N0 + OPT["na"]; NB = NA + OPT["nb"]; N1 = NB + OPT["n1"]
assert 2 * DEP <= N0 <= N1 <= 20
vTC = 61
def touch_setup():
    a(f"s_mul_i32 s3, s{sT}, 3\nv_lshrrev_b32 v1, 2, v0\nv_add_u32 v1, s3, v1\ns_add_u32 s3, s3, 3\ns_min_u32 s3, s3, s{sNO}\nv_cmp_gt_u32 vcc, s3, v1\nv_and_b32 v2, 3, v0\nv_lshl_add_u32 v1, v1, 3, v2")
    a(f"v_mul_u32_u24 v1, 2560, v1\ns_lshl_b32 s0, s{sC}, 7\ns_add_u32 s3, s0, s{sB0}\nv_add_u32 v1, s3, v1\nv_bfrev_b32 v2, 1\nv_cndmask_b32 v{vTC}, v2, v1, vcc")
    a(f"s_mul_i32 s3, s{sT}, 3\nv_min_u32 v1, 2, v0\nv_add_u32 v1, s3, v1\nv_lshrrev_b32 v2, 1, v1\nv_mul_u32_u24 v2, {2560 - 256}, v2\nv_lshl_add_u32 v1, v1, 7, v2")
    a(f"s_mul_i32 s3, s{sGID}, 15360\ns_lshl_b32 s0, s{sC}, 8\ns_add_u32 s3, s3, s0\ns_add_u32 s3, s3, {E2}\nv_add_u32 v{vTC+2}, s3, v1")
    if OPT["mt"]:
        R = 64 * (10 - OPT["mx"]); per = -(-2 * R // 30)
        a(f"s_mul_i32 s3, s{sU}, {per}\nv_min_u32 v1, {per-1}, v0\nv_add_u32 v1, s3, v1\nv_min_u32 v1, {2*R-1}, v1\nv_cmp_le_u32 vcc, {R}, v1\nv_mul_u32_u24 v1, 3072, v1")
        a(f"s_mul_i32 s3, s{sJ}, 384\ns_add_u32 s3, s3, {64*OPT['mx']*3072}\nv_add_u32 v1, s3, v1\nv_subrev_u32 v2, {(R + 320)*3072 - 256}, v1\nv_cndmask_b32 v1, v1, v2, vcc")
        a(f"s_mul_i32 s3, s{sJ}, 60\ns_lshl_b32 s0, s{sU}, 1\ns_add_u32 s3, s3, s0\ns_and_b32 s0, s{sWV}, 1\ns_add_u32 s3, s3, s0\ns_lshl_b32 s3, s3, 12\nv_min_u32 v2, 31, v0\nv_lshl_add_u32 v2, v2, 7, s3")
        a(f"s_cmp_ge_u32 s{sWV}, 6\ns_cselect_b64 vcc, -1, 0\nv_cndmask_b32 v{vMT}, v1, v2, vcc")
vMT = 84
def mtouch(p):
    if OPT["mt"] == p: a(f"global_load_dword v{vMT}, v{vMT}, s[{sMT}:{sMT+1}]")
def touch(p):
    if p == OPT["tl"]: a(f"buffer_load_dword v{vTC+1}, v{vTC}, {S(OUT)}, s{sLT} offen")
    if p == OPT["te"]: a(f"buffer_load_dword v{vTC+1}, v{vTC}, {S(OUT)}, 0 offen")
    if p == OPT["t2"]: a(f"buffer_load_dword v{vTC+2}, v{vTC+2}, {S(WS)}, 0 offen")
def early_touch(i):
    n = sum(OPT[k] == 10 + i for k in ("te", "tl", "t2", "mt"))
    touch(10 + i); mtouch(10 + i)
    return n
NT = sum(OPT[k] in (0, 1) for k in ("te", "tl", "t2")) + (OPT["mt"] in (1, 2, 5))
NT2 = sum(OPT[k] == 2 for k in ("te", "tl", "t2")) + (OPT["mt"] == 3)
def xstart(i): nextslab(); a(f"s_lshl_b32 s{sXO}, s{sSB}, 7\ns_mov_b32 s{sSL}, {S0 + SLOT*(i % 4)}")
xstart(1)
if OPT["x1"] == 0: a(f"s_cmp_eq_u32 s{sWV}, 4\ns_cbranch_scc1 L_n1"); xissue(); a("L_n1:")
suB(); suC()
stamp(0, 5)
suD(); suE(); wo_setup(); touch_setup(); pzero()
vEX, vXF, vWF = XR + 1, XR + 2, XR + 3
a(f"s_lshl_b32 s0, s{sT}, 12\ns_add_u32 s0, s0, {EX}\nv_add_u32 v{vEX}, s0, v{aL16}\ns_and_b32 s0, s{sT}, 2\ns_lshl_b32 s0, s0, 1\ns_add_u32 s0, s0, {XFL}\nv_mov_b32 v{vXF}, s0\nv_mov_b32 v{vWF}, {WFL}\nv_cmp_eq_u32 vcc, 0, v0\nv_cndmask_b32 v{vWF+1}, 0, 1, vcc")
a(f"s_cmp_eq_u32 s{sWV}, 4\ns_cbranch_scc1 L_h0")
E1_, E2_ = OPT["e1"], OPT["e2"]
assert 1 <= E1_ and E1_ + 2 <= E2_ <= 4
vXA = vEV
a(f"v_mov_b32 v4, {ONES:#x}\nv_mov_b32 v5, v4\nv_lshrrev_b32 v1, 4, v0\nv_mul_u32_u24 v1, {SLOT - 128}, v1\nv_lshl_add_u32 v1, v0, 3, v1\nds_write_b64 v1, v[4:5] offset:{S0}")
a(f"s_sub_u32 s0, s{sWV}, 5\ns_mul_i32 s3, s{sGID}, 3\ns_add_u32 s3, s3, s0\ns_mul_i32 s3, s3, 2560\ns_add_u32 s{sSPL}, s3, {SP}")
a(f"s_mul_i32 s3, s{sG}, 1280\ns_add_u32 s3, s3, s{sRJ}\ns_add_u32 s{sPF}, s3, {R_FL}\nv_min_u32 v1, 9, v0\nv_lshl_add_u32 v{vEA}, v1, 7, s{sPF}\ns_lshl_b32 s{sFO}, s{sC}, 7\ns_add_u32 s{sFO}, s{sFO}, s{sPF}")
a(f"v_and_b32 v1, 15, v0\nv_lshrrev_b32 v2, 5, v0\nv_lshl_add_u32 v2, v2, 4, v1\ns_lshl_b32 s0, s0, 5\nv_add_lshl_u32 v{vSTW}, v2, s0, 4")
a(f"v_lshrrev_b32 v2, 4, v0\nv_lshrrev_b32 v3, 1, v1\nv_xor_b32 v3, v3, v2\nv_lshlrev_b32 v3, 4, v3\nv_lshl_add_u32 v3, v1, 7, v3\nv_add_u32 v{vXA}, s{sLX}, v3")
a(f"s_cmp_lt_u32 s{sB0}, 2560\ns_cselect_b32 s3, 128, 0\nv_mov_b32 v1, 0xf149f2ca\nv_cmp_gt_u32 vcc, s3, v{vSTW}\nv_cndmask_b32 v{vBIA}, 0, v1, vcc")
stamp(1, 5)
if OPT["xprio"]: a(f"s_setprio {OPT['xprio']}")
if OPT["x1"] == 2: xissue()
if not OPT["wrl"]: ldWR()
for k in range(4): a(f"v_mov_b32 v{64+k}, {ONES:#x}")
if OPT["dbg"] & 64: a(f"s_lshl_b32 s3, s{sC}, 8\ns_add_u32 s3, s3, s{sSPL}\ns_mov_b64 exec, 0xffff\nbuffer_store_dwordx4 v[64:67], v{aL16}, {S(WS)}, s3 offen sc1\ns_mov_b64 exec, -1")
a(f"s_waitcnt vmcnt({(0 if OPT['wrl'] else 4) + (0 if OPT['x1'] == 3 else 4)}) lgkmcnt(0)")
stamp(2, 5)
def part_stats():
    PD = 96
    a(f"v_xor_b32 v1, 64, v{vXA}")
    for t in range(2):
        for ks in range(2): a(f"ds_read_b128 {V(vXD+8*t+4*ks,4)}, v{1 if ks else vXA} offset:{S0 + 2048*t}")
    a(f"s_lshl_b32 s3, s{sC}, 8\ns_add_u32 s3, s3, s{sSPL}\nv_and_b32 v2, 0xf0, v{aL16}\ns_mov_b32 s0, 0xaaaaaaaa\ns_mov_b32 s1, s0\ns_mov_b32 vcc_lo, 0xcccccccc\ns_mov_b32 vcc_hi, 0xcccccccc")
    for t in range(2):
        for ks in range(2):
            a(f"s_waitcnt lgkmcnt({3 - 2*t - ks})")
            mfma(PD + 8 * t, vXD + 8 * t + 4 * ks, vXD + 8 * t + 4 * ks, None if ks else "0")
            mfma(PD + 8 * t + 4, 64, vXD + 8 * t + 4 * ks, None if ks else "0")
    for t in range(2):
        d = PD + 8 * t
        a(f"v_cndmask_b32 v{d}, v{d}, v{d+1}, s[0:1]\nv_cndmask_b32 v{d+2}, v{d+2}, v{d+3}, s[0:1]\nv_cndmask_b32 v{vSUM+2*t+1}, v{d}, v{d+2}, vcc\nv_mov_b32 v{vSUM+2*t}, v{d+4}")
    execset(0xF0000F0000F0000F)
    a(f"buffer_store_dwordx4 {V(vSUM,4)}, v2, {S(WS)}, s3 offen sc1")
    execset(-1)
    for i in range(4): a(f"v_mov_b32 v{vXD+8+i}, 0")
def only5(tag, fn):
    a(f"s_cmp_eq_u32 s{sWV}, 5\ns_cbranch_scc0 L_o5{tag}"); fn(); a(f"L_o5{tag}:")
def evchk(tag, cmp_, ld):
    a(f"s_waitcnt lgkmcnt(0)\n{cmp_}\ns_cbranch_scc0 L_er{tag}\nL_eg{tag}:")
    DEFER.append(f"L_er{tag}:\ns_sub_u32 s{sBUD}, s{sBUD}, 1\ns_cbranch_scc1 L_ex{tag}\n{ld}\ns_waitcnt lgkmcnt(0)\n{cmp_}\ns_cbranch_scc0 L_er{tag}\ns_branch L_eg{tag}\nL_ex{tag}:\ns_mov_b32 s{sBUD}, 0\ns_branch L_eg{tag}")
FR = [71, 73, 75, 77, 83, 85, 89, 91, 93, 95]
ldroot = f"s_lshl_b32 s0, s{sJ}, 5\nv_and_b32 v1, 16, v0\nbuffer_load_dword v{vSUM+4}, v1, {S(DBG)}, s0 offen sc1"
ldflag = "\n".join(f"s_buffer_load_dword s{r}, {S(WS)}, s{sPF} offset:{128*k} glc" for k, r in enumerate(FR))
for i in range(9):
    a("s_barrier")
    stamp(3 + i, 5)
    ex = 0
    if i == E1_ + 1:
        def f():
            evchk("a", f"v_cmp_ne_u32 vcc, 1, v{vSUM+4}\ns_cmp_eq_u64 vcc, 0", ldroot + "\ns_waitcnt vmcnt(0)")
            a(f"s_getreg_b32 s0, hwreg(HW_REG_XCC_ID, 0, 4)\nv_mov_b32 v1, s0\ns_mov_b64 exec, 1\nbuffer_store_dword v1, off, {S(WS)}, s{sFO} sc1\ns_mov_b64 exec, -1")
        only5("c", f)
    if i == E2_ + 2:
        for k in range(3):
            if k == 2: a("s_mov_b32 exec_hi, 0")
            if OPT["dbg"] & 16: a(f"s_mov_b32 s{sSPL}, {OOB:#x}")
            a(f"buffer_load_dwordx4 {V(vXD+4*k,4)}, v{aL16}, {S(WS)}, s{sSPL} offen offset:{1024*k} sc1")
        a("s_mov_b32 exec_hi, -1"); ex += 3
    if i == 0: part_stats(); ex += 1
    if i == 1 and OPT["wrl"]: ldWR(); ex += 4
    ex += early_touch(i)
    if OPT["pf0"] & 1 and OPT["pfp"] % 10 == i + 2:
        a(f"s_mul_i32 s3, s2, 3\ns_add_u32 s3, s3, s{sWV}\ns_sub_u32 s3, s3, 5\ns_mul_i32 s3, s3, {9*128}\nv_lshlrev_b32 v1, 7, v0\ns_mov_b64 exec, 0x1ff\nbuffer_load_dword v255, v1, {S(WO)}, s3 offen\ns_mov_b64 exec, -1"); ex += 1
    if i < 8: xstart(i + 2); xissue()
    if i:
        a(f"s_cmp_eq_u32 s{sXT}, {i}\ns_cbranch_scc0 L_xc{i}\ns_mov_b32 s0, {S0 + SLOT * (i % 4)}\ns_call_b64 s[100:101], L_xcap\nL_xc{i}:")
    if i == E2_ + 1:
        def f():
            evchk("b", f"s_max_u32 s0, s{FR[0]}, s{FR[1]}\n" + "\n".join(f"s_max_u32 s0, s0, s{r}" for r in FR[2:]) + "\ns_cmp_lg_u32 s0, -1", ldflag)
            a(f"s_min_u32 s1, s{FR[0]}, s{FR[1]}\n" + "\n".join(f"s_min_u32 s1, s1, s{r}" for r in FR[2:]) + f"\ns_cmp_eq_u32 s0, s1\ns_cselect_b32 s0, {OPT['fmode']}, 0")
            a(f"v_mov_b32 v1, {MODE}\nv_mov_b32 v2, s0\nds_write_b32 v1, v2")
        only5("d", f)
    if i == E2_ + 3:
        a(f"s_waitcnt vmcnt({8 + ex})")
        for k in (4, 8):
            for e in range(4): a(f"v_add_f32 v{vXD+e}, v{vXD+e}, v{vXD+k+e}")
        a(f"v_permlane32_swap_b32 v{vXD}, v{vXD+2}\nv_permlane32_swap_b32 v{vXD+1}, v{vXD+3}\nv_add_f32 v{vXD}, v{vXD}, v{vXD+2}\nv_add_f32 v{vXD+1}, v{vXD+1}, v{vXD+3}")
        a(f"v_mov_b32 v{vXD+2}, v{vXD}\nv_mov_b32 v{vXD+3}, v{vXD+1}\ns_mov_b32 s1, 0x3acccccd\nv_mov_b32 v1, 0x3727c5ac")
        a(f"v_permlane16_swap_b32 v{vXD}, v{vXD+2}\nv_permlane16_swap_b32 v{vXD+1}, v{vXD+3}\nv_add_f32 v{vXD}, v{vXD}, v{vXD+2}\nv_add_f32 v{vXD+1}, v{vXD+1}, v{vXD+3}")
        a(f"v_mul_f32 v{vXD}, 0xbacccccd, v{vXD}\nv_fma_f32 v2, v{vXD+1}, s1, v1\nv_fma_f32 v2, -v{vXD}, v{vXD}, v2\nv_max_f32 v2, v2, v1\nv_rsq_f32 v{vXD+1}, v2\nv_mov_b32 v{vXD+3}, v{vBIA}\nv_mov_b32 v{vXD+2}, v{vXD+1}")
        a(f"ds_write_b128 v{vSTW}, {V(vXD,4)} offset:{STATS}")
    if 1 <= i <= 6 and OPT["pg"]:
        a(f"s_cmp_eq_u32 s{sWV}, 7\ns_cbranch_scc0 L_wm{i}"); warm("h", i - 1, 6); a(f"L_wm{i}:")
    if i == 0: pagebreak("c0")
    if i == 7 and OPT["wsp"]: pagebreak("h")
    if i == 8: break
    if i == E1_ + 1: a(f"s_cmp_eq_u32 s{sWV}, 5\ns_cbranch_scc1 L_w5{i}\ns_waitcnt vmcnt({4 + ex})\nL_w5{i}:"); ex += 1
    a(f"s_waitcnt vmcnt({4 + ex}) lgkmcnt(0)")
    if i == E1_ - 1: only5("a", lambda: a(ldroot))
    if i == E2_: only5("b", lambda: a(ldflag))
    if OPT["wsp"] and i >= OPT["ws0"]:
        LQ = [(cp, q) for cp in range(5) for g in range(4) for q in wo_quads(cp, 1, g)]
        part = LQ[OPT["wsp"] * (i - OPT["ws0"]):OPT["wsp"] * (i - OPT["ws0"] + 1)]
        if part:
            if i == OPT["ws0"]: a(f"s_mul_i32 s3, s{sG}, 3\ns_add_u32 s3, s3, s{sWV}\ns_sub_u32 s3, s3, 5\ns_lshr_b32 s0, s3, 2\ns_mul_i32 s0, s0, 316\ns_add_u32 s3, s3, s0\ns_mul_i32 s3, s3, 1280\ns_lshl_b32 s0, s{sC}, 7\ns_add_u32 s{sRD}, s3, s0")
            for cp, q in part:
                for o in (0, 64): a(f"s_buffer_load_dword s79, {S(WO)}, s{sRD} offset:{(64*cp + 4*q)*1280 + o}")
    if i == 2 and OPT["ppr"]:
        a(f"s_lshl_b32 s3, s{sC}, 8\ns_add_u32 s3, s3, s{sSPL}")
        for k in range(4): a(f"s_buffer_load_dword s75, {S(WS)}, s3 offset:{64*k}")
a(f"L_h8:\ns_mul_i32 s{sPF}, s{sT}, 5120")
mtouch(4)
wo_run(0, N0, "a")
mtouch(5)
ksread(); rdmode()
if OPT['hp'] == 0: hinit(72); wrprep(64)
a(f"s_waitcnt vmcnt({N0 + (OPT['mt'] in (4, 5))})")
stamp(2)
a("s_barrier")
stamp(3); stamp(9, 2); stamp(0, 3)
if not OPT['clr']: gsync_h(1)
wo_run(N0, NA, "d")
touch(0)
mtouch(1)
if OPT['hp'] == 1: hinit(72); wrprep(64)
sO, sDW = 61, 65
a(f"s_and_b32 s3, s{sWV}, 1\ns_lshl_b32 s{sO}, s3, 7\ns_xor_b32 s{sO+1}, s{sO}, 128\ns_add_u32 s{sO+2}, s{sO+1}, s{sLT}\ns_add_u32 s{sO+3}, s{sO}, s{sLT}\ns_lshl_b32 s3, s3, 13\ns_sub_u32 s{sDW}, 4096, s3")
DEFER.append("L_xcap:\n" + "\n".join(capture(lambda: capt("s0", 72))) + "\ns_setpc_b64 s[100:101]")

def rdWO1(s, ct, e):
    t = ""
    if e == 0 and s in (5, 10, 15): t = {5: f"v_add_u32 v{aWO+ct}, s{sDW}, v{aWO+ct}", 10: f"v_add_u32 v{aWO+ct}, 40960, v{aWO+ct}", 15: f"v_subrev_u32 v{aWO+ct}, s{sDW}, v{aWO+ct}"}[s] + "\n"
    return t + f"ds_read_b64_tr_b16 {V(WOF + 16*(s % RING) + 4*ct + 2*e, 2)}, v{aWO+ct} offset:{8192*(s % 5) + 512*e}"
SF = 15 - OPT["sf"]
OL = [(s, w) for s in range(SF) for w in range(2 if s >= 5 else 1)] + [(s, 1) for s in range(SF, 15)] + [(s, 0) for s in range(SF, 20)]
def oreg(k): return OF + 4 * (k % (20 if not OPT["dbg"] & 2 else OPT["ou"]))
def ldO(k):
    s, w = OL[k]
    a(f"buffer_load_dwordx4 {V(oreg(k),4)}, v{aOl2 if w else aOl}, {S(OUT)}, s{sO + s // 5} offen offset:{256*(s % 5)} sc1")
def spin(tag, addr, cmp_, slp=0):
    a(f"{cmp_}\ns_cbranch_vccnz L_sp{tag}\nL_sb{tag}:")
    DEFER.append(f"L_sp{tag}:\n" + (f"s_sleep {slp}\n" if slp else "") + f"v_mov_b32 v1, {addr}\nds_read_b32 v1, v1\ns_waitcnt lgkmcnt(0)\n{cmp_}\ns_cbranch_vccnz L_sp{tag}\ns_branch L_sb{tag}")
def fold(A, B, F):
    for r in range(4): a(f"v_permlane16_swap_b32 v{A+r}, v{B+r}")
    for r in range(4): a(f"v_cndmask_b32 v{F[r]}, v{B+r}, v{A+r}, s[{sM+2*r}:{sM+2*r+1}]")
def softmax(F, P, mid=None, mid2=None):
    m, t = TM, TM + 1
    for r in range(4): a(f"v_fma_f32 v{F+r}, v{F+r}, v{KS+2*r}, v{KS+2*r+1}")
    a(f"v_max3_f32 v{m}, v{F}, v{F+1}, v{F+2}\nv_max_f32 v{m}, v{m}, v{F+3}\nv_mov_b32 v{t}, v{m}\nv_permlane32_swap_b32 v{m}, v{t}\nv_max_f32 v{m}, v{m}, v{t}\nv_mul_f32 v{m}, v{m}, v{CQ}")
    for r in range(4): a(f"v_fma_f32 v{F+r}, v{F+r}, v{CQ}, -v{m}")
    for r in range(4): a(f"v_exp_f32 v{F+r}, v{F+r}")
    if mid: mid()
    a(f"v_add_f32 v{m}, v{F}, v{F+1}\nv_add_f32 v{t}, v{F+2}, v{F+3}\nv_add_f32 v{m}, v{m}, v{t}\nv_mov_b32 v{t}, v{m}\nv_mul_f32 v{F}, v{F}, v{KS}\nv_mul_f32 v{F+1}, v{F+1}, v{KS+2}")
    a(f"v_permlane32_swap_b32 v{m}, v{t}\nv_mul_f32 v{F+2}, v{F+2}, v{KS+4}\nv_add_f32 v{m}, v{m}, v{t}\nv_rcp_f32 v{m}, v{m}\nv_mul_f32 v{F+3}, v{F+3}, v{KS+6}")
    for r in range(4): a(f"v_mul_f32 v{F+r}, v{F+r}, v{m}")
    a(f"v_cvt_pk_bf16_f32 v{F}, v{F}, v{F+1}\nv_cvt_pk_bf16_f32 v{F+1}, v{F+2}, v{F+3}")
    if mid2: mid2()
    for hh in range(2):
        a(f"s_mov_b64 exec, s[{sLO}:{sLO+1}]" if hh == 0 else "s_not_b64 exec, exec")
        for d in range(2): a(f"v_and_b32 v{P+2*hh+d}, v{vM+d}, v{F+d}\nv_bfi_b32 v{P+4+2*hh+d}, v{vM+d}, 0, v{F+d}")
    a("s_mov_b64 exec, -1")
    for d in range(4): a(f"v_permlane16_swap_b32 v{P+d}, v{P+4+d}")
def ymask():
    a(f"s_add_u32 s0, s{sC5}, 1\ns_sub_u32 s1, 5, s{sC5}\ns_min_u32 s0, s0, s1\ns_lshl_b32 s0, s0, 4\ns_sub_u32 s1, 64, s0\ns_cmp_le_u32 s{sC5}, 2\ns_cselect_b32 s1, s1, 16\ns_bfm_b64 s[100:101], s0, s1")
def attention(T):
    helper = T == "h"; doL = T != "e"; doE = T != "l"
    L.reset()
    rid = {}
    KR = ((aKx, 0), (aKy, 0), (aK4, 0), (aKe, 0), (aKe, 40))
    QR = ((aQx, 0, 0), (aQy, 0, 1), (aQ4, 0, 2), (aQe, 0, 3), (aQe, 40, 4), (aQ4 + 2, 0, 2), (aQ4 + 4, 0, 2))
    def rk(i):
        k, o = KR[i]; d = KQ + 4 * i
        L(f"ds_read_b64 {V(d,2)}, v{k} offset:{o}"); L(f"ds_read_b64 {V(d+2,2)}, v{k} offset:{o + 8*PITCH}")
    def rq(i):
        q, o, _ = QR[i]; d = QF + 4 * i
        L(f"ds_read_b64 {V(d,2)}, v{q} offset:{o}"); rid[i] = L(f"ds_read_b64 {V(d+2,2)}, v{q+1} offset:{o}")
    def lg(i):
        L.wait(rid[i]); mfma(SS + (0, 4, 0, 8, 12, 8, 12)[i], KQ + 4 * QR[i][2], QF + 4 * i, "0" if i in (0, 1, 3, 4) else None)
    vid = {}
    vc = [None]
    def vlook():
        if OPT["ord"]: a(f"v_mov_b32 v1, {VCN}"); vc[0] = L("ds_read_b32 v1, v1")
    def vreads():
        if OPT["ord"]: L.wait(vc[0]); spin("v" + T, VCN, "v_cmp_ne_u32 vcc, 4, v1")
        if helper: stamp(4, 3)
        for i, (r_, o) in enumerate(((aVe, 0), (aVe, 40), (aV1, 0), (aV2, 0))):
            if doE or i >= 2:
                L(f"ds_read_b64_tr_b16 {V(VF+4*i,2)}, v{r_} offset:{o}")
                vid[i] = L(f"ds_read_b64_tr_b16 {V(VF+4*i+2,2)}, v{r_} offset:{o + 8*PITCH}")
    def lfold(): fold(SS, SS + 4, [F01, F01 + 1, FL_ + 2, FL_ + 3])
    def lpack(): a(f"v_or_b32 v{FL_}, 0xffff, v{F01}\nv_perm_b32 v{FL_+1}, v{F01+1}, v{F01}, s{sP1}")
    cq = f"v_mul_f32 v{CQ}, {CEXP:#x}, v{CQ}"
    if helper:
        ymask(); a(cq)
        a("s_barrier")
        for i in range(5): rk(i)
        wo_run(NA, NB, "e")
        if OPT["bv"] >= 0: a("s_barrier"); vreads()
        wo_run(NB, N1, "b")
        touch(1)
        mtouch(2)
        a(f"s_setprio {OPT['aprio']}\ns_waitcnt vmcnt({NT + N1 - N0 if OPT['wc'] < 2 else NT})")
        stamp(1, 3)
        a("s_barrier")
        stamp(4); stamp(2, 3)
        if STAGE == "A": a("s_branch L_dumpA")
        rq(0); rq(1); rq(2); rq(3); rq(4); lg(0); rq(5); lg(1); rq(6); lg(2); lg(3); lg(4); lg(5); lg(6); lfold(); lpack()
    elif doL: rk(0); rq(0); rk(1); rq(1); rk(2); rq(2); ymask(); lg(0); lg(1); lg(2); ksread(L); lfold(); lpack()
    else: rk(3); rq(3); rk(4); rq(4); rk(2); rq(5); rq(6); pzero(0, 8); lg(3); lg(4); ksread(L); lg(5); lg(6)
    if doL: lst(f"buffer_store_dwordx4 {V(FL_,4)}, v{aH0s}, {S(OUT)}, s{sLT} offen{{F}}")
    stamp(5); stamp(3, 3)
    if helper: touch(3)
    if helper and OPT["wc"] == 0: wo_run(N1, 20, "c")
    hl = f"buffer_load_dwordx4 {V(HL,4)}, v{aH0l}, {S(OUT)}, s{sLT} offen sc1"
    prefill = lambda: [a(rdWO1(s_, ct, e)) for s_ in range(DEP) for ct in range(4) for e in range(2)] if helper else None
    early = lambda: [ldO(k) for k in range(OPT["ou"])] if helper else None
    late = f"buffer_store_dwordx4 {V(LT,4)}, v{aOs}, {S(OUT)}, s{sLT} offen{{F}}"
    if doE:
        fold(SS + 8, SS + 12, [FE + r for r in range(4)])
        if not helper: L.wait(L.n); a(cq)
        if OPT["vpos"] == 1 or not helper: vlook()
        def mid():
            if helper and OPT["vpos"] == 2: vlook()
            elif not helper or OPT["bv"] < 0: vreads()
            if helper and OPT["wc"] == 1: wo_run(N1, 20, "c")
            if helper and OPT["hlp"] == 0: a(hl)
        softmax(FE, PX, mid, vreads if helper and OPT["vpos"] == 2 else None)
        stamp(5, 3)
        if helper and OPT["hlp"] == 1: a(hl)
        if helper: touch(2)
        L.wait(vid[3])
        for i in range(4): mfma(DM + 4 * i, VF + 4 * i, PX + 4 * (i & 1), "0")
        for i in range(4): a(f"v_cvt_pk_bf16_f32 v{FE+i}, v{DM+2*i}, v{DM+2*i+1}")
        lst(f"buffer_store_dwordx4 {V(FE,4)}, v{aOs}, {S(OUT)}, 0 offen{{F}}")
        stamp(6); stamp(6, 3)
        if T == "e": a(f"s_lshl_b32 s0, s{sWV}, 2\ns_add_u32 s0, s0, {HRD}\nv_mov_b32 v1, s0\nds_read_b32 v1, v1")
        for i in range(4): a(f"v_cvt_pk_bf16_f32 v{LT+i}, v{DM+8+2*i}, v{DM+8+2*i+1}")
        if helper: mtouch(3)
        prefill()
    else:
        vlook(); pzero(8, 16); vreads(); L.wait(L.n); a(cq); a(hl)
        if OPT["wc"] == 2:
            a(f"s_cmp_eq_u32 s{sWV}, 3\ns_cbranch_scc1 L_wl3"); wo_late(N1, 0, 249); a("L_wlb:")
            DEFER.append("L_wl3:\n" + "\n".join(capture(lambda: wo_late(N1, 1, 249))) + "\ns_branch L_wlb")
    if T == "e":
        a("s_waitcnt lgkmcnt(0)"); spin("r", "s0", "v_cmp_eq_u32 vcc, 0, v1", 1)
        execset(0xffff); lst(late); execset(-1)
        stamp(7); stamp(10, 3)
        return
    stamp(7, 3)
    a(f"s_waitcnt vmcnt({1 + NT2 if doE else 2 * (20 - N1) if OPT['wc'] == 2 else 0})\nv_cmp_eq_u32 vcc, -1, v{HL}\ns_cbranch_vccnz L_h0r{T}\nL_h0g{T}:")
    stamp(8, 3)
    DEFER.append(f"L_h0r{T}:\ns_sub_u32 s{sBUD}, s{sBUD}, 1\ns_cbranch_scc1 L_h0x{T}\n{hl}\ns_waitcnt vmcnt(0)\n"
                 f"v_cmp_eq_u32 vcc, -1, v{HL}\ns_cbranch_vccnz L_h0r{T}\ns_branch L_h0g{T}\nL_h0x{T}:\ns_mov_b32 s{sBUD}, 0\ns_branch L_h0g{T}")
    wfl = f"v_mov_b32 v1, {WFL}\nv_mov_b32 v4, 1\ns_mov_b64 exec, 1\nds_add_u32 v1, v4\ns_mov_b64 exec, -1"
    if helper:
        if OPT["wc"] < 2: a(f"s_mov_b64 exec, 1\nds_add_u32 v{vWF}, v{vWF+1}\ns_mov_b64 exec, -1")
    else: a(f"s_lshl_b32 s0, s{sWV}, 2\ns_add_u32 s0, s0, {HRD - 8}\nv_mov_b32 v1, s0\nds_write_b32 v1, v1")
    a(f"v_perm_b32 v{HL}, v{HL}, v{HL+1}, s{sP2}")
    for r in (1, 2, 3, 0): a(f"v_add_f32 v{FL_+r}, v{F01+r if r < 2 else FL_+r}, v{HL+r}")
    if OPT["opos"] == 0: early()
    softmax(FL_, PX + 8, early if OPT["opos"] == 1 else None)
    if OPT["opos"] == 2: early()
    stamp(9, 3)
    mfma(DM, VF + 8, PX + 8, "0"); mfma(DM + 4, VF + 12, PX + 8, "0"); mfma(DM + 8, VF + 12, PX + 12, "0")
    if helper and OPT["wc"] < 2: a(f"ds_read_b32 v1, v{vWF}")
    a("s_mov_b32 exec_lo, 0xffff0000")
    for i in range(4): a(f"v_cvt_pk_bf16_f32 v{LT+i}, v{DM+2*i}, v{DM+2*i+1}")
    a("s_mov_b64 exec, s[100:101]")
    for i in range(2): a(f"v_cvt_pk_bf16_f32 v{LT+2+i}, v{DM+8+2*i}, v{DM+8+2*i+1}")
    execset(-1 if doE else 0xffffffffffff0000)
    lst(late)
    stamp(7); stamp(10, 3); stamp(12, 5)
    if not helper and OPT["wc"] == 2: a("s_mov_b64 exec, -1\ns_waitcnt vmcnt(1)\n" + wfl + "\ns_waitcnt lgkmcnt(0)")
attention("h")
if STAGE == "B": a("s_waitcnt vmcnt(0)"); finish()
pagebreak("h")
SH = 200
U = OPT["ou"]; nO = [U]
def ldOn():
    if nO[0] < len(OL):
        if not OPT["dbg"] & 2: ldO(nO[0])
        nO[0] += 1
L.reset()
stamp(8); stamp(0, 4)
idx = {o: k for k, o in enumerate(OL)}
GR = [[0, 1], [2, 3], [4]] + [[k, k + 1] for k in range(5, 29, 2)] + [[29]]
gof = {k: G for G, g in enumerate(GR) for k in g}
issued = {}
def cmp_(G):
    r = [oreg(k) for k in GR[G]]
    if len(r) == 2: a(f"v_max_u16 v2, v{r[0]}, v{r[1]}\nv_cmp_eq_u16 vcc, -1, v2")
    else: a(f"v_cmp_eq_u16 vcc, -1, v{r[0]}")
def chk_a(G):
    last = GR[G][-1] + 1
    assert nO[0] >= last
    a(f"s_waitcnt vmcnt({nO[0] - last + (last <= U)})"); cmp_(G)
def chk_b(G):
    issued[G] = nO[0]
    a(f"s_cbranch_vccnz L_st{G}\nL_go{G}:")
a("s_waitcnt lgkmcnt(0)")
spin("w", WFL, "v_cmp_ne_u32 vcc, 4, v1")
RQ = [(s, ct, e) for s in range(DEP, 20) for ct in range(4) for e in range(2)]
wid = {(s, ct): 0 for s in range(DEP) for ct in range(4)}
left = {(s, ct): 2 if 5 <= s < 15 else 1 for s in range(20) for ct in range(4)}
def rdn(n):
    for _ in range(n):
        if not RQ: return
        s, ct, e = RQ[0]
        if s >= RING and left[s - RING, ct]: return
        RQ.pop(0); wid[s, ct] = L(rdWO1(s, ct, e))
MS = []
k = 0
while k < 30:
    if k + 1 < 30 and OL[k][0] == OL[k+1][0]: MS += [(kk, ct) for ct in range(4) for kk in (k, k + 1)]; k += 2
    else: MS += [(k, ct) for ct in range(4)]; k += 1
firstm = {}
for m, (k, ct) in enumerate(MS): firstm.setdefault(gof[k], m)
ca = {m - 2: G for G, m in firstm.items() if G}; cb = {m - 1: G for G, m in firstm.items() if G}
lasts = max(m for m, (k, ct) in enumerate(MS) if OL[k][1])
wr = {lasts + 2 + q + (q == 3) * 2: q for q in range(4)}
chk_a(0); chk_b(0)
for m, (k, ct) in enumerate(MS):
    s, w = OL[k]
    if m in ca: chk_a(ca[m])
    if m in cb: chk_b(cb[m])
    while RQ and RQ[0][:2] <= (s, ct): n = len(RQ); rdn(1); assert len(RQ) < n
    if ct == 0 and (not RQ or RQ[0][0] > s) and L.n - wid[s, 3] >= 6: L.wait(wid[s, 3])
    L.wait(wid[s, ct])
    mfma((SH if w else H) + 4 * ct, WOF + 16 * (s % RING) + 4 * ct, oreg(k), "0" if w and s == 5 else None)
    left[s, ct] -= 1
    if (m % 4 == 0 or (m < 20 and m % 4 == 1 and m // 4 >= (3, 0)[OPT["o2"]])) and nO[0] < len(OL): ldOn(); rdn(1)
    elif m in wr: L(f"ds_write_b128 v{vEX}, {V(SH + 4*wr[m], 4)} offset:{1024*wr[m]}")
    elif m == lasts + 8: a("s_mov_b64 exec, 1"); L(f"ds_add_u32 v{vXF}, v{vWF+1}"); a("s_mov_b64 exec, -1")
    else: rdn(1 if m + 1 in ca or m + 1 in cb or m in cb else 2)
    if m == 3: stamp(9); stamp(11, 3)
    if m == 59: stamp(12, 3)
    if m % 12 == 11: stamp(1 + m // 12, 4)
assert nO[0] == len(OL)
for G in range(len(GR)):
    t = f"L_st{G}:\ns_sub_u32 s{sBUD}, s{sBUD}, 1\ns_cbranch_scc1 L_sx{G}\n"
    def re():
        for G2 in range(G, min(G + OPT["rsp"], len(GR))):
            for k in GR[G2]:
                if k < issued[G]: ldO(k)
        a("s_waitcnt vmcnt(0)"); cmp_(G)
    t += "\n".join(capture(re))
    t += f"\ns_cbranch_vccnz L_st{G}\ns_branch L_go{G}\nL_sx{G}:\ns_mov_b32 s{sBUD}, 0\ns_branch L_go{G}"
    DEFER.append(t)
a("L_tail:")
stamp(10)
HB, DS1, DS2, E2D, T0, RS = 24, 32, 36, 40, 52, 2
EV1 = OPT['e1']
for i in range(8): a(f"v_cvt_pk_bf16_f32 v{HB+i}, v{H+2*i}, v{H+2*i+1}")
for k in range(2):
    mfma(DS2, HB + 4 * k, HB + 4 * k, "0" if k == 0 else None)
    mfma(DS1, WRF + 4 * k, HB + 4 * k, "0" if k == 0 else None)
a("s_mov_b32 s0, 0x22222222\ns_mov_b32 s1, s0\ns_mov_b32 s44, 0x44444444\ns_mov_b32 s45, s44\ns_mov_b32 vcc_lo, 0x88888888\ns_mov_b32 vcc_hi, 0x88888888")
a(f"s_lshl_b32 s3, s{sC}, 8\ns_add_u32 s3, s3, s{sE2L}\nv_and_b32 v1, 0xf0, v{aL16}")
a(f"v_cndmask_b32 v{DS2}, v{DS2}, v{DS2+1}, s[0:1]\nv_cndmask_b32 v{DS2+2}, v{DS2+2}, v{DS2+3}, vcc\ns_or_b64 vcc, vcc, s[44:45]")
a(f"v_cndmask_b32 v{DS1+2}, v{DS2}, v{DS2+2}, vcc\nv_mov_b32 v{DS1+3}, v{WSP+1}")
execset(0xF0000F0000F0000F)
lst(f"buffer_store_dwordx4 {V(DS1,4)}, v1, {S(WS)}, s3 offen{{F}}")
execset(-1)
for i in range(4): a(f"v_mov_b32 v{E2D+8+i}, 0")
a(f"v_mov_b32 v4, 1.0\ns_mov_b32 s0, 0xbacccccd\ns_mov_b32 s1, 0x3acccccd\nv_mov_b32 v5, 0x3727c5ac\ns_mov_b32 s44, 0xfffff800\nv_mov_b32 v1, {KMAX}")
a(f"v_cmp_le_i32 s[46:47], 0, v{aOUT}")
vL, vB, vK = 68, 69, 70
a(f"s_mul_i32 s48, s{sG}, 1280\ns_lshl_b32 s3, s{sC}, 7\ns_add_u32 s48, s48, s3\ns_lshl_b32 s49, s48, 1\ns_add_u32 s48, s48, s{sRJ}\ns_add_u32 s49, s49, s{sRJ}\ns_add_u32 s49, s49, {R_BASE}")
a(f"s_lshl_b32 s3, s{sG}, 7\ns_add_u32 s3, s3, s{sRJ}\ns_add_u32 s3, s3, {R_KEY}\ns_and_b32 s45, s{sC}, {OPT['kc']}\ns_lshl_b32 s45, s45, 3\ns_add_u32 s45, s45, s{sWV}\nv_mul_u32_u24 v{vK}, 384, v0")
a(f"v_and_b32 v{vB}, 48, v0\nv_lshlrev_b32 v{vL}, 1, v{vB}")
if OPT["kl"]: a(f"s_add_u32 s45, s{sC}, 5\nv_mov_b32 v71, 1")
a("L_e2:")
a(f"buffer_load_dwordx4 {V(E2D,4)}, v{aL16}, {S(WS)}, s{sE2L} offen sc1\nbuffer_load_dwordx4 {V(E2D+4,4)}, v{aL16}, {S(WS)}, s{sE2L} offen offset:1024 sc1")
a(f"s_mov_b32 exec_hi, 0\nbuffer_load_dwordx4 {V(E2D+8,4)}, v{aL16}, {S(WS)}, s{sE2L} offen offset:2048 sc1\ns_mov_b32 exec_hi, -1\ns_sub_u32 s{sBUD}, s{sBUD}, 1")
a("s_waitcnt vmcnt(1)")
for e in (0, 2): a(f"v_pk_add_f32 {V(E2D+e,2)}, {V(E2D+e,2)}, {V(E2D+4+e,2)}")
a("s_waitcnt vmcnt(0)")
for e in (0, 2): a(f"v_pk_add_f32 {V(E2D+e,2)}, {V(E2D+e,2)}, {V(E2D+8+e,2)}")
a(f"v_cmp_u_f32 vcc, v{E2D}, v{E2D}\ns_cbranch_scc1 L_e2go\ns_cbranch_vccnz L_e2\nL_e2go:")
stamp(11); stamp(11, 4)
for i in (0, 2, 3, 1): a(f"v_mfma_f32_16x16x4_f32 {V(T0+4*i,4)}, v4, v{E2D+i}, 0")
a(f"v_mul_f32 v6, s0, v{T0}\nv_fma_f32 v7, v{T0+8}, s1, v5\nv_fma_f32 v7, -v6, v6, v7\nv_max_f32 v7, v7, v5\nv_rsq_f32 v{RS}, v7")
a(f"v_fma_f32 v7, v6, v{T0+12}, v{T0+4}\nv_mul_f32 v7, v7, v{RS}\nv_mul_f32 v{RS+1}, v6, v{RS}")
a(f"v_ashrrev_i32 v6, 31, v7\nv_or_b32 v6, 0x80000000, v6\nv_xor_b32 v7, v7, v6\nv_and_or_b32 v7, v7, s44, v{vRK}\nv_cndmask_b32 v7, 0, v7, s[46:47]")
LN, LNB, OB = 72, 88, 96
lnops = [f"v_pk_fma_f32 {V(LN+2*i,2)}, {V(H+2*i,2)}, {V(RS,2)}, {V(RS,2)} op_sel:[0,0,1] op_sel_hi:[1,0,1]" for i in range(8)]
for k in (8, 4, 2, 1)[:OPT["dpn"]]:
    a(lnops.pop(0)); a(lnops.pop(0))
    a(f"v_max_u32_dpp v6, v{7 if k == 8 else 6}, v{7 if k == 8 else 6} row_ror:{k} {DPPM}")
a(f"s_mov_b64 exec, {(1 << (16 >> OPT['dpn'])) - 1}\nds_max_u32 v1, v{6 if OPT['dpn'] else 7}")
if OPT["kl"]: a(f"s_mov_b64 exec, 1\nds_add_rtn_u32 v71, v1, v71 offset:4\ns_mov_b64 exec, -1\nds_read_b32 v6, v1")
else: a("s_mov_b64 exec, -1")
for o in lnops: a(o)
for i in range(4): a(f"v_cvt_pk_bf16_f32 v{LNB+i}, v{LN+2*i}, v{LN+2*i+1}")
a("s_waitcnt lgkmcnt(0)")
if OPT["kl"]: a(f"v_readfirstlane_b32 s0, v71\ns_cmp_eq_u32 s0, s45\ns_cbranch_scc0 L_nk\ns_mov_b64 exec, 0xffff\nbuffer_store_dword v6, v{vK}, {S(WS)}, s3 offen sc1\ns_mov_b64 exec, -1\nL_nk:")
a("s_barrier\nds_read_b32 v1, v1")
for i in range(4, 8): a(f"v_cvt_pk_bf16_f32 v{LNB+i}, v{LN+2*i}, v{LN+2*i+1}")
for i in range(8): a(f"v_pk_add_f32 {V(LN+2*i,2)}, {V(LN+2*i,2)}, {V(H+2*i,2)}")
if OPT["kl"]: a("s_waitcnt lgkmcnt(0)\nv_cmp_eq_u32 s[46:47], v1, v7")
else: a(f"s_cmp_eq_u32 s45, 4\ns_waitcnt lgkmcnt(0)\nv_cmp_eq_u32 s[46:47], v1, v7\ns_cbranch_scc0 L_nk\ns_mov_b64 exec, 0xffff\nbuffer_store_dword v1, v{vK}, {S(WS)}, s3 offen sc1\nL_nk:")
a("s_and_b64 exec, s[46:47], -1\ns_cbranch_scc0 L_nc")
a(f"buffer_store_dwordx4 {V(LNB,4)}, v{vL}, {S(WS)}, s48 offen sc1\nbuffer_store_dwordx4 {V(LNB+4,4)}, v{vL}, {S(WS)}, s48 offen offset:16 sc1")
a("L_nc:\ns_mov_b64 exec, -1")
stamp(12); stamp(12, 4)
for i in range(8): a(f"v_cvt_pk_bf16_f32 v{OB+i}, v{LN+2*i}, v{LN+2*i+1}")
for hh in range(2):
    for d in range(2): a(f"v_permlane16_swap_b32 v{OB+4*hh+d}, v{OB+4*hh+2+d}")
osc = " " + OPT["osc"].replace("_", " ").replace("plain", "")
a("s_not_b64 exec, s[46:47]")
for hh in range(2): a(f"buffer_store_dwordx4 {V(OB+4*hh,4)}, v{aOUT}, {S(OUT)}, 0 offen offset:{64*hh}{osc}")
a("s_and_b64 exec, s[46:47], -1\ns_cbranch_scc0 L_fin")
for hh in range(2): a(f"buffer_store_dwordx4 {V(OB+4*hh,4)}, v{aOUT}, {S(OUT)}, 0 offen offset:{64*hh} sc1")
a("s_waitcnt vmcnt(0)")
for ct in range(4): a(f"buffer_store_dwordx4 {V(LN+4*ct,4)}, v{vB}, {S(WS)}, s49 offen offset:{64*ct} sc1")
a("L_fin:")
if OPT["dbg"] & 128:
    a(f"s_mov_b64 exec, -1\ns_lshl_b32 s3, s2, 3\ns_add_u32 s3, s3, s{sWV}\ns_lshl_b32 s3, s3, 13\ns_add_u32 s3, s3, {DUMP}")
    for i in range(8): a(f"buffer_store_dwordx4 {V(OB,4)}, v{aL16}, {S(WS)}, s3 offen\ns_add_u32 s3, s3, 1024")
finish()
pagebreak(None, False)
deferred("h")

pad("c0")
a("L_h0:")
if OPT["prio"]: a("s_setprio 2")
a(f"v_lshrrev_b32 v1, 3, v0\nv_and_b32 v2, 2, v1\nv_xor_b32 v2, v2, v0\nv_and_b32 v2, 7, v2\ns_lshl_b32 s3, s{sC}, 7\nv_lshl_add_u32 v2, v2, 4, s3")
a(f"v_mul_u32_u24 v3, 3840, v1\nv_add_u32 v{vW}, v3, v2\nv_xor_b32 v{vW+3}, 64, v{vW}\nv_add_u32 v{vW+3}, {8*3840}, v{vW+3}\nv_mov_b32 v{vEA}, 0")
for p in range(2):
    for s_ in (1, 2): a(f"v_add_u32 v{vW+3*p+s_}, {256*s_}, v{vW+3*p}")
def wpieces():
    P = []
    for pp in range(8):
        for s_ in range(3):
            t = f"buffer_load_dwordx4 v{vW+3*(pp&1)+s_}, {S(W)}, s{sXO} offen offset:{1024*s_} lds"
            if s_ == 2 and pp < 7: t += "\ns_addk_i32 m0, 3072"
            if s_ == 2 and pp & 1 and pp < 7: t += f"\ns_add_u32 s{sXO}, s{sXO}, 61440"
            P.append(t)
    return P
stamp(1, 5)
if not OPT["wrl"]: ldWR()
a(f"s_waitcnt vmcnt({0 if OPT['wrl'] else 4})")
stamp(2, 5)
a("s_barrier")
if OPT["wrl"]: ldWR()
early_touch(0)
a(f"s_mov_b32 s{sI}, 1\ns_mov_b32 s{sRD}, {S0 + SLOT}\nL_wl:")
nextslab(); advslot(sSL); a(f"s_mul_i32 s{sXO}, s{sSB}, 245760\ns_add_u32 m0, s{sSL}, 12288")
for p in wpieces(): a(p)
a(f"s_mov_b32 s0, s{sRD}\ns_mov_b32 s{sRD}, s{sSL}\ns_cmp_eq_u32 s{sXT}, s{sI}\ns_waitcnt vmcnt(24) lgkmcnt(0)\ns_barrier\ns_cbranch_scc0 L_wc\ns_call_b64 s[100:101], L_xcap\nL_wc:")
for i in range(1, 8):
    t = capture(lambda: early_touch(i))
    if t: a(f"s_cmp_eq_u32 s{sI}, {i}\ns_cbranch_scc0 L_wt{i}\n" + "\n".join(t) + f"\nL_wt{i}:")
a(f"s_add_u32 s{sI}, s{sI}, 1\ns_cmp_lt_u32 s{sI}, 9\ns_cbranch_scc1 L_wl")
a("s_branch L_h8")

ACC, XF, WF, ST, CS = 8, 80, 152, 180, 192
CLX = len(a.lines)
pagebreak(None, False)
a("L_cons:")
def clears(fl, n=4):
    a("v_mov_b32 v4, -1\nv_mov_b32 v5, -1\nv_mov_b32 v6, -1\nv_mov_b32 v7, -1")
    a(f"v_lshrrev_b32 v1, 3, v0\nv_mul_u32_u24 v1, 2560, v1\nv_and_b32 v2, 0x70, v{aL16}\ns_lshl_b32 s3, s{sC}, 7\ns_add_u32 s3, s3, s{sB0}\nv_add3_u32 v1, v1, v2, s3")
    a(f"s_mul_i32 s0, s{sT}, 20480\ns_add_u32 s1, s0, 81920\ns_add_u32 s3, s{sT}, 8\ns_cmp_lt_u32 s3, s{sNO}\ns_cselect_b32 s3, s1, {OOB:#x}\ns_add_u32 s66, s3, 81920")
    a(f"v_lshrrev_b32 v2, 4, v0\nv_mul_u32_u24 v2, {2560 - 256}, v2\nv_add_u32 v2, v2, v{aL16}")
    a(f"s_mul_i32 s67, s{sGID}, 15360\ns_lshl_b32 s3, s{sC}, 8\ns_add_u32 s67, s67, s3\ns_and_b32 s3, s{sT}, 1\ns_mul_i32 s3, s3, 7680\ns_add_u32 s67, s67, s3\ns_add_u32 s67, s67, {E2}")
    a(f"s_cmp_lt_u32 s{sT}, 2\ns_cselect_b32 s67, s67, {OOB:#x}")
    st = [f"buffer_store_dwordx4 v[4:7], v1, {S(OUT)}, s{r} offen{fl}" for r in (0, 1, 66)]
    st.append(f"s_mov_b32 exec_hi, 0xffff\nbuffer_store_dwordx4 v[4:7], v2, {S(WS)}, s67 offen{fl}\ns_mov_b64 exec, -1")
    for t in st[:n]: a(t)
    return st[n:]
def pf0(p):
    if OPT["pf0"] & 1 and p == OPT["pfp"] % 10:
        a(f"s_cmp_eq_u32 s{sWV}, 0\ns_cbranch_scc0 L_pa\ns_mul_i32 s3, s2, {27*128}\nv_lshlrev_b32 v1, 7, v0\ns_mov_b64 exec, {(1 << 27) - 1:#x}\nbuffer_load_dword v255, v1, {S(WO)}, s3 offen\ns_mov_b64 exec, -1\nL_pa:")
    if OPT["pf0"] & 2 and p == OPT["pfp"] // 10:
        a(f"s_cmp_eq_u32 s{sWV}, 1\ns_cbranch_scc0 L_pb\ns_lshl_b32 s3, s{sC}, 2\ns_add_u32 s3, s3, s{sJ}\ns_sub_u32 s0, s3, 40\ns_cselect_b32 s3, s3, s0\ns_mul_i32 s3, s3, {16*3840}")
        a(f"s_mul_i32 s0, s{sG}, 1280\ns_add_u32 s3, s3, s0\ns_lshl_b32 s0, s{sC}, 7\ns_add_u32 s3, s3, s0\nv_mul_u32_u24 v1, 3840, v0\ns_mov_b64 exec, 0xffff\nbuffer_load_dword v255, v1, {S(W)}, s3 offen\ns_mov_b64 exec, -1\nL_pb:")
pf0(0)
def w1():
    a(f"s_cmp_eq_u32 s{sSB}, 9\ns_cselect_b32 s3, {-10*245760}, 0\ns_add_u32 s3, s3, 245760\nv_add_u32 v254, s3, v254\ns_mul_i32 s3, s{sT}, 3072\ns_add_u32 m0, s3, {S0 + SLOT + 12288}\ns_mov_b32 s64, {32*3840}")
    for h in range(2):
        for k in range(3):
            a(f"buffer_load_dwordx4 v254, {S(W)}, {'s64' if h else 0} offen offset:{1280*k} lds")
            if (h, k) != (1, 2): a(f"s_addk_i32 m0, {-256 if k < 2 else 12288 + 512}")
def x1():
    if OPT["x1"] != 3: return
    a(f"s_mul_i32 s3, s{sT}, {-3*20480}\ns_add_u32 s3, s3, {20*20480}\nv_add_u32 v3, s3, v{vX}\ns_lshl_b32 s3, s{sT}, 6\ns_and_b32 s3, s3, 64\nv_xor_b32 v3, s3, v3")
    a(f"s_add_u32 s3, s{sSB}, 1\ns_cmp_eq_u32 s3, 10\ns_cselect_b32 s3, 0, s3\ns_lshl_b32 s61, s3, 7\ns_lshl_b32 s3, s{sT}, 10\ns_cselect_b32 exec_lo, -1, 0xffffff00\ns_add_u32 m0, s3, {S0 + SLOT}\ns_add_u32 s3, s{sT}, s{sG}")
    a(f"buffer_load_dwordx4 v3, {S(X)}, s61 offen lds\ns_mov_b32 exec_lo, -1\ns_addk_i32 m0, 4096\nv_add_u32 v3, 81920, v3")
    a(f"buffer_load_dwordx4 v3, {S(X)}, s61 offen lds\ns_addk_i32 m0, 4096\ns_cmp_eq_u32 s3, 5\ns_cselect_b32 s3, {OOB:#x}, 0\nv_add_u32 v3, 81920, v3\nv_or_b32 v3, s3, v3")
    a(f"buffer_load_dwordx4 v3, {S(X)}, s61 offen lds")
NX1 = 3 if OPT["x1"] == 3 else 0
suB(); suC()
if OPT["w1"] == 0: w1()
if OPT["wc"] == 2: wo_setup(249)
suD(0); suE(0)
a(f"s_lshl_b32 s3, s{sT}, 5\nv_xor_b32 v3, s3, v3\nv_mul_u32_u24 v4, 3072, v2\nv_add_u32 v3, v3, v4\nv_add_u32 v{vAW}, {S0 + 12288}, v3\ns_mov_b32 s{sI}, 0")
stamp(0, 5)
stamp(1, 5)
a(f"v_mov_b32 v3, 0\nv_lshlrev_b32 v2, 2, v0\ns_mov_b32 exec_hi, 0")
a(f"ds_write_b32 v2, v3 offset:{MODE}\nds_write_b32 v2, v3 offset:{MODE + 8*PITCH}\ns_mov_b64 exec, -1")
a("v_and_b32 v1, 15, v0\nv_lshrrev_b32 v2, 4, v0")
a(f"v_lshrrev_b32 v3, 1, v1\nv_xor_b32 v3, v3, v2\nv_lshlrev_b32 v3, 4, v3\nv_lshl_add_u32 v3, v1, 7, v3\nv_add_u32 v{vAX0}, {S0}, v3\nv_xor_b32 v{vAX1}, 64, v{vAX0}")
a(f"v_mul_u32_u24 v3, {PITCH}, v1\nv_lshl_add_u32 v3, v2, 3, v3\ns_lshl_b32 s3, s{sT}, 5\ns_add_u32 s3, s3, {QB}\nv_add_u32 v{vSW}, s3, v3")
a(f"v_lshlrev_b32 v{vSTR}, 4, v1")
assert STATS == 0
if OPT["pg"]:
    for k in range(4): a(f"s_cmp_eq_u32 s{sWV}, {k}\ns_cbranch_scc0 L_cw{k}"); warm("c0", k, 4); a(f"L_cw{k}:")
pf0(1)
ncl = OPT["ncp"]
CLR = clears(" sc1" if OPT["clr"] else "", 0)
if OPT["xw"] == 0: x1()
if OPT["w1"] == 1: w1()
if OPT["xw"] == 1: x1()
for t in CLR[:ncl]: a(t)
a(f"s_cmp_lt_u32 s{sWV}, 2\ns_cselect_b32 s{sXT}, s{sXT}, 99")
a(f"s_mov_b32 s{sRD}, {S0}\ns_min_u32 s{sEV}, s{sXT}, {E1_}\ns_waitcnt vmcnt({ncl + 6 + NX1}) lgkmcnt(0)")
def rdW(d, s_, ks):
    L(f"ds_read_b64_tr_b16 {V(d,2)}, v{vAW} offset:{12288*ks + 1024*s_}")
    return L(f"ds_read_b64_tr_b16 {V(d+2,2)}, v{vAW} offset:{12288*ks + 1024*s_ + 512}")
def rdX(d, t, ks): return L(f"ds_read_b128 {V(d+4*t,4)}, v{vAX0+ks} offset:{2048*t}")
def acc(s_, t): return ACC + 4 * (6 * s_ + t)
stamp(2); stamp(2, 5)
SEG = (1, 0, 2) if OPT['ord'] else (1, 2, 0)
PRE = OPT["pre"]
def rdlist(ph):
    o = []
    def w(s_):
        d = WV2 if (ph, s_) == (1, 1) else WF + 12 * ph + 4 * s_
        for e in range(2): o.append((("w", ph, s_), f"ds_read_b64_tr_b16 {V(WF+12*ph+4*s_+2*e,2)}, v{vAW} offset:{12288*ph + 1024*s_ + 512*e}"))
    w(SEG[0])
    for t in range(6): o.append((("x", ph, t), f"ds_read_b128 {V(XF+24*ph+4*t,4)}, v{vAX0+ph} offset:{2048*t}"))
    w(SEG[1]); w(SEG[2])
    return o
WV2 = WF + 24
def step(first):
    a("s_barrier")
    stampi(0)
    L.reset(); ids = {}
    M = [(s_, t) for s_ in SEG for t in range(6)]
    seq = ([] if first else [(1, "o") + m for m in M[PRE:]]) + [(0, "n") + m for m in M] + [(1, "n") + m for m in M[:PRE]]
    no = 0 if first else 18 - PRE
    pend = rdlist(0); p1 = rdlist(1)
    def rd(n=1):
        for _ in range(n):
            if pend: k, tx = pend.pop(0); ids[k] = L(tx)
    rd(12 if first else 2)
    fill = [f"s_add_u32 s3, s{sRD}, {SLOT}\ns_cmp_eq_u32 s3, {S0 + 4*SLOT}", f"s_cselect_b32 s3, {S0}, s3\ns_sub_u32 s{sDL}, s3, s{sRD}",
            f"s_mov_b32 s{sRD}, s3\nv_add_u32 v{vAX0}, s{sDL}, v{vAX0}", f"v_add_u32 v{vAW}, s{sDL}, v{vAW}\nv_add_u32 v{vAX1}, s{sDL}, v{vAX1}"]
    if not first: fill.append(f"s_cmp_eq_u32 s{sI}, s{sEV}\ns_cbranch_scc1 L_ev\nL_evb:")
    fill.append("STAMP"); fill.append(f"s_add_u32 s{sI}, s{sI}, 1\ns_cmp_lt_u32 s{sI}, 9"); fill.append("s_waitcnt lgkmcnt(0)")
    for n, (ph, kd, s_, t) in enumerate(seq):
        if n == no: pend += p1
        if kd == "n":
            need = max(ids["x", ph, t], ids["w", ph, s_])
            if s_ == SEG[0] and t == 0 and L.n - ids.get(("x", ph, 5), L.n) >= 4: need = ids["x", ph, 5]
            L.wait(need)
        if first or not (OPT["dbg"] & 256 and t & 1): mfma(acc(s_, t), WF + 12 * ph + 4 * s_, XF + 24 * ph + 4 * t, "0" if first and ph == 0 else None)
        if pend: rd()
        elif n >= no and fill and (len(fill) > 1 or n >= len(seq) - 2):
            f = fill.pop(0)
            if f == "STAMP": stampi(1)
            else: a(f)
    for f in fill: stampi(1) if f == "STAMP" else a(f)
step(1)
for t in CLR[ncl:]: a(t)
a("s_waitcnt vmcnt(4)")
CL0 = len(a.lines)
pagebreak("c0")
a("L_cloop:")
step(0)
a("s_cbranch_scc1 L_cloop")
L.reset(); ids = {}
def wreg(ks, s_): return WV2 if (ks, s_) == (1, 1) else WF + 12 * ks + 4 * s_
later = []
def lw(ks, s_):
    for e in range(2): later.append((("w", ks, s_), f"ds_read_b64_tr_b16 {V(wreg(ks,s_)+2*e,2)}, v{vAW} offset:{12288*ks + 1024*s_ + 512*e}"))
def lx(ks):
    for t in range(6): later.append((("x", ks, t), f"ds_read_b128 {V(XF+48*ks+4*t,4)}, v{vAX0+ks} offset:{2048*t}"))
lw(0, 1); lx(0); lw(1, 1); lx(1); lw(0, SEG[1]); lw(0, SEG[2])
def rd_later(n=1):
    for _ in range(n):
        if later: k, tx = later.pop(0); ids[k] = L(tx)
def old(s_, t): mfma(acc(s_, t), WF + 12 + 4 * s_, XF + 24 + 4 * t)
def new(s_, ks, t):
    L.wait(max(ids["w", ks, s_], ids["x", ks, t])); mfma(acc(s_, t), wreg(ks, s_), XF + 48 * ks + 4 * t)
def mlist(s_): return [(s_, "o", t) for t in range(6)] + [(s_, ks, t) for ks in range(2) for t in range(6)]
def mm(q):
    s_, k, t = q.pop(0)
    if k != "o" and ("w", k, s_) not in ids: rd_later(9)
    old(s_, t) if k == "o" else new(s_, k, t)
    if k == "o" and t == 5 and s_ != 1: lw(1, s_)
def fixup(s_, q, per):
    for r in range(4):
        a(f"v_mov_b32_dpp v{CS+r}, v{acc(s_,0)+r} row_newbcast:0 {DPPM}")
    wr = None
    for t in range(6):
        A = acc(s_, t); st = V(ST + 2 * t, 2)
        if per or not OPT["pk"]:
            ops = [f"v_fmac_f32 v{A+h}, v{CS+h}, v{ST+2*t}" for h in range(4)]
        else:
            ops = [f"v_pk_fma_f32 {V(A+h,2)}, {V(CS+h,2)}, {st}, {V(A+h,2)} op_sel_hi:[1,0,1]" for h in (0, 2)]
        ops += [f"v_cvt_pk_bf16_f32 v{A}, v{A}, v{A+1}", f"v_cvt_pk_bf16_f32 v{A+1}, v{A+2}, v{A+3}"]
        for i, o in enumerate(ops):
            if q and ((per >= 2 and i == 3) or (per >= 3 and i == 0)): mm(q)
            a(o)
        if q and per >= 1: mm(q)
        if (s_, t) in ((SEG[1], OPT["bk"]), (SEG[2], OPT["bv"])): L.wait(L.n - t); a("s_barrier")
        L(f"ds_write_b64 v{vSW}, {V(A,2)} offset:{TSTR*s_ + 16*PITCH*t}")
km, qm, vm = mlist(1), mlist(SEG[1]), mlist(SEG[2])
a(f"v_mov_b32 v1, {MODE}")
sr = ["ds_read_b32 v1, v1"] + [f"ds_read2_b64 {V(ST+2*t,4)}, v{vSTR} offset0:{32*t} offset1:{32*t + 32}" for t in range(0, 6, 2)]
for i in range(PRE):
    s_, _, t = (km if i < 6 else qm if i < 12 else vm).pop(0)
    if t == 5 and s_ != 1: lw(1, s_)
for o in sr: a(o)
a(f"s_waitcnt lgkmcnt(0)\nv_readfirstlane_b32 s{sMODE}, v1\ns_barrier")
stamp(3); stamp(9, 2); stamp(0, 3)
if not OPT["clr"]: a(f"s_cmp_eq_u32 s{sMODE}, 1\ns_cbranch_scc0 L_gs\nL_gsb:")
rd_later(2)
n = 0
for q in (km, qm, vm):
    while q[0][1] == "o" and (n < 6 or q is km): mm(q); rd_later(); n += 1
rd_later(2)
while km: mm(km); rd_later()
mm(qm); rd_later(9)
assert not later
fixup(1, qm, -(-len(qm) // 6))
while qm: mm(qm)
mm(vm)
fixup(SEG[1], vm, -(-len(vm) // 6) if not OPT["ord"] else OPT["vq"])
if not OPT["ord"]:
    while vm: mm(vm)
    fixup(0, [], 0)
else:
    for _ in range(2):
        if vm: mm(vm)
    a(f"s_setprio {OPT['vprio']}")
stamp(1, 3)
a("s_waitcnt lgkmcnt(0)\ns_barrier")
stamp(4); stamp(2, 3)
if OPT["ord"]:
    L.done = L.n
    a(f"v_mov_b32 v1, {VCN}\nv_mov_b32 v2, 1")
    while vm: mm(vm)
    fixup(2, [], 0)
    a("s_mov_b64 exec, 1\nds_add_u32 v1, v2\ns_mov_b64 exec, -1\ns_setprio 0")
    stamp(4, 3)
if STAGE == "A":
    a("L_dumpA:")
    a(f"s_lshl_b32 s3, s{sWV}, 10\nv_add_u32 v1, s3, v{aL16}\ns_mul_i32 s3, s2, 49152\ns_add_u32 s3, s3, {DUMP}")
    for i in range(6):
        a(f"ds_read_b128 v[16:19], v1 offset:{8192*i}\ns_waitcnt lgkmcnt(0)\nbuffer_store_dwordx4 v[16:19], v1, {S(WS)}, s3 offen\ns_waitcnt vmcnt(0)\ns_add_u32 s3, s3, 8192")
    finish()
a(f"s_cmp_lt_u32 s{sWV}, 2\ns_cbranch_scc0 L_c23")
attention("e")
if STAGE == "B": a("s_waitcnt vmcnt(0)"); finish()

ldWR(); hinit()
a(f"s_lshl_b32 s0, s{sWV}, 13\ns_add_u32 s0, s0, {EX}\nv_add_u32 v4, s0, v{aL16}\ns_lshl_b32 s0, s{sWV}, 2\ns_add_u32 s0, s0, {XFL}\ns_waitcnt vmcnt(0)")
wrprep(XR)
a("v_mov_b32 v2, s0\nL_fx:")
if OPT["fsl"]: a(f"s_sleep {OPT['fsl']}")
a("ds_read_b32 v1, v2\ns_waitcnt lgkmcnt(0)\nv_cmp_ne_u32 vcc, 2, v1\ns_cbranch_vccnz L_fx")
stamp(9); stamp(9, 4)
if OPT["lprio"]: a(f"s_setprio {OPT['lprio']}")
for q in range(8): a(f"ds_read_b128 {V(OF+4*q,4)}, v4 offset:{1024*q}")
for q in range(8):
    a(f"s_waitcnt lgkmcnt({7-q})")
    for e in range(4): a(f"v_add_f32 v{H+4*(q&3)+e}, v{H+4*(q&3)+e}, v{OF+4*q+e}")
stamp(10, 4)
a("s_branch L_tail")
deferred()
CL1 = len(a.lines)
pad("h")
a("L_c23:")
attention("l")
if STAGE == "B": a("s_waitcnt vmcnt(0)")
finish()
deferred("h")
CL2 = len(a.lines)
pad("h")
a(f"L_ev:\ns_cmp_eq_u32 s{sI}, {EV1}\ns_cbranch_scc0 L_ev1\ns_waitcnt vmcnt(0)\nL_ev1:\ns_max_u32 s{sEV}, s{sXT}, {EV1}")
a(f"s_cmp_eq_u32 s{sI}, s{sXT}\ns_cbranch_scc0 L_evb\ns_sub_u32 s0, s{sRD}, s{sDL}"); capt("s0"); a("s_branch L_evb")
if not OPT["clr"]:
    a("L_gs:")
    clears(" sc1")
    a("s_waitcnt vmcnt(0)\ns_barrier\ns_barrier\ns_branch L_gsb")

if OPT["pg"]:
    mv_ = a.lines[CL2:]; mw_ = a.lines[CL1:CL2]; del a.lines[CL1:]; a.lines[CL0+1:CL0+1] = mv_; a.lines[CLX:CLX] = mw_

GATE, UP, DOWN, SM = 4, 8, 12, 28
sMm = 36
GSL = 42240; NGS = 3; MISC = NGS * GSL
SSZ = 8448
ACTB, MZ, WINB, LNL = MISC, MISC + 192, MISC + 256, MISC + 512
GF, DF, GA, XS, IDX = 8, 168, 228, 236, 7
a("L_moe:")
a(f"s_cmp_ge_u32 s{sU}, 32\ns_cbranch_scc1 L_end")
a(f"s_lshr_b32 s{sWV}, s{sWV}, 6\nv_and_b32 v0, 63, v0\ns_lshl_b32 s{sMm}, s{sJ}, 1\ns_add_u32 s{sMm}, s{sMm}, s{sU}\ns_sub_u32 s{sMm}, s{sMm}, 30\ns_mov_b32 s{sBUD}, {BUDGET}")
a("v_lshlrev_b32 v6, 4, v0\nv_mov_b32 v132, 0\nv_mov_b32 v133, 0\nv_mov_b32 v144, 0\ns_waitcnt lgkmcnt(0)")
mksrd(WS, "ws", 1 << 28); mksrd(DBG, "dbg", 256); mksrd(GATE, "gate", 640 * 3072); mksrd(UP, "up", 640 * 3072); mksrd(DOWN, "down", 1536 * 1280); mksrd(OUT, "out", 2048 * 1280)
stamp(0)
a("v_mov_b32 v8, -1\nv_mov_b32 v9, -1\nv_mov_b32 v10, -1\nv_mov_b32 v11, -1")
a(f"s_lshl_b32 s0, s{sMm}, 14\ns_lshl_b32 s3, s{sWV}, 11\ns_add_u32 s0, s0, s3\ns_add_u32 s0, s0, {RJ}")
for i in range(2): a(f"buffer_store_dwordx4 v[8:11], v6, {S(WS)}, s0 offen offset:{1024*i} sc1")
def rootup(n):
    a(f"s_waitcnt vmcnt({n})\ns_barrier\ns_cmp_eq_u32 s{sWV}, 0\ns_cbranch_scc0 L_nroot")
    a(f"s_lshl_b32 s0, s{sMm}, 4\nv_mov_b32 v8, 1\ns_mov_b64 exec, 1\nbuffer_store_dword v8, off, {S(DBG)}, s0 sc1")
    if OPT["ddie"] >= 0: a(f"v_mov_b32 v9, s98\nbuffer_store_dword v9, off, {S(DBG)}, s0 offset:4 sc1")
    a("s_mov_b64 exec, -1\nL_nroot:")
if STAGE != "F": rootup(0); finish()
if OPT["mon"]:
    a(f"s_movk_i32 s{sBUD}, 40\ns_bitcmp1_b32 s{sMm}, 0\ns_cbranch_scc0 L_nm\ns_waitcnt vmcnt(0)\ns_barrier\ns_cmp_eq_u32 s{sWV}, 0\ns_cbranch_scc0 L_end")
    a(f"s_lshl_b32 s0, s{sMm}, 4\nv_mov_b32 v8, 1\ns_mov_b64 exec, 1\nbuffer_store_dword v8, off, {S(DBG)}, s0 sc1\ns_waitcnt vmcnt(0)")
    a(f"s_lshl_b32 s0, s{sMm}, 16\nv_mov_b32 v1, s0\nv_mov_b32 v20, 0\nv_mov_b32 v9, -1\ns_add_u32 s1, s0, {DUMP}\ns_mov_b32 m0, 0\ns_bitcmp1_b32 s{sMm}, 1")
    a(f"L_mo:\ns_cbranch_scc1 L_m1\nbuffer_atomic_umin v9, off, {S(WS)}, s1 sc0 sc1\ns_branch L_m2\nL_m1:\nglobal_load_dword v8, v1, s[50:51]\nv_add_u32 v1, 640, v1\nL_m2:")
    a(f"s_waitcnt vmcnt(0)\ns_memrealtime s[44:45]\ns_waitcnt lgkmcnt(0)\ns_sub_i32 s44, s44, s98\nv_writelane_b32 v20, s44, m0\ns_add_i32 m0, m0, 1\ns_cmp_eq_u32 m0, 58\ns_cbranch_scc1 L_m3\ns_bitcmp1_b32 s{sMm}, 1\ns_branch L_mo")
    a(f"L_m3:\nv_writelane_b32 v20, s98, 63\ns_mov_b64 exec, -1\ns_lshl_b32 s3, s2, 4\ns_add_u32 s3, s3, 8\ns_lshl_b32 s3, s3, 7\ns_add_u32 s3, s3, {STAMP}\nv_lshlrev_b32 v3, 2, v0\nbuffer_store_dword v20, v3, {S(WS)}, s3 offen\ns_endpgm\nL_nm:")
vGX, vGS, vRX, vRS = 4, XS + 13, XS + 14, XS + 15
sB5, sKO = 44, 45
a(f"s_and_b32 s{sB5}, s{sMm}, 1\ns_mul_i32 s0, s{sJ}, 384\ns_lshl_b32 s1, s{sB5}, 8\ns_add_u32 s1, s1, s0\ns_mul_i32 s3, s{sWV}, {8*3072}\ns_add_u32 s1, s1, s3")
a(f"v_lshrrev_b32 v1, 3, v0\nv_mul_u32_u24 v1, 3072, v1\ns_lshr_b32 s3, s{sWV}, 1\nv_xor_b32 v2, s3, v0\nv_and_b32 v2, 7, v2\nv_lshl_add_u32 v1, v2, 4, v1\nv_add_u32 v{vGX}, s1, v1\nv_xor_b32 v{vGX+1}, 64, v{vGX}")
a(f"s_lshl_b32 s1, s{sB5}, 6\ns_add_u32 s0, s0, s1\ns_and_b32 s3, s{sWV}, 3\ns_mul_i32 s1, s3, {16*3072}\ns_add_u32 s0, s0, s1\ns_add_u32 s0, s0, 128")
a(f"v_lshrrev_b32 v1, 2, v0\nv_mul_u32_u24 v1, 3072, v1\nv_xor_b32 v2, s3, v0\nv_and_b32 v2, 3, v2\nv_lshl_add_u32 v1, v2, 4, v1\nv_add_u32 v{vGS}, s0, v1")
a(f"s_cmp_lt_u32 s{sWV}, 4\ns_cselect_b64 s[{SM}:{SM+1}], s[{GATE}:{GATE+1}], s[{UP}:{UP+1}]\ns_cselect_b32 s62, 0, 128\ns_mov_b32 s{SM+2}, {640*3072:#x}\ns_mov_b32 s{SM+3}, 0x20000")
a(f"s_lshl_b32 s61, s{sWV}, 10\ns_add_u32 s62, s62, s61\ns_mul_i32 s{sB5}, s{sB5}, {5*64*3072}\ns_mul_i32 s46, s{sMm}, {96*1280}")
a(f"s_and_b32 s3, s{sMm}, 1\ns_cselect_b32 s65, 40960, 0\ns_cselect_b32 s66, 0, 81920\ns_add_u32 s65, s65, s46\ns_add_u32 s66, s66, s46\ns_add_u32 s67, s65, 40960")
def koff(i): a(f"s_add_u32 s{sKO}, s{sB5}, {i*64*3072}" if i < 5 else f"s_sub_u32 s{sKO}, {i*64*3072}, s{sB5}")
def dissue(hh, i, sl):
    a(f"s_lshl_b32 s3, s{sWV}, 6\ns_addk_i32 s3, {512*i}\nv_add_u32 v1, s3, v0\nv_mul_u32_u24 v2, 52429, v1\nv_lshrrev_b32 v2, 22, v2")
    a(f"v_and_b32 v3, 3, v2\nv_lshlrev_b32 v3, 1, v3\nv_and_or_b32 v3, v2, 8, v3\nv_xor_b32 v1, v1, v3\nv_lshlrev_b32 v1, 4, v1")
    a(f"s_add_u32 m0, s61, {sl + 8192*i}\ns_nop 0\nbuffer_load_dwordx4 v1, {S(DOWN)}, s{65 + hh} offen lds")
UN = [[("x", i), ("s", i)] for i in range(5)] + [[("x", 5), ("x", 6)], [("x", 7), ("x", 8)], [("x", 9)]]
SU, DU = [[("s", i) for i in range(5, 10)]], [[("d", h)] for h in range(3)]
UN = {0: UN + DU + SU, 1: UN + SU + DU, 2: UN[:6] + SU + UN[6:] + DU}[OPT["uord"]]
def place(u):
    o = (u % NGS) * GSL; r = []
    for kd, i in UN[u]: r.append((kd, i, o)); o += {"x": 16384, "s": SSZ, "d": 40960}[kd]
    return r
def uissue(u):
    n = 0
    for kd, i, o in place(u):
        if kd == "d":
            for k in range(5): dissue(i, k, o)
            n += 5; continue
        koff(i)
        if kd == "x":
            for m_, srd_ in ((0, GATE), (1, UP)): a(f"s_add_u32 m0, s61, {o + 8192*m_}\nbuffer_load_dwordx4 v{vGX+m_}, {S(srd_)}, s{sKO} offen lds")
            n += 2
        else: a(f"s_add_u32 m0, s62, {o}\nbuffer_load_dwordx4 v{vGS}, {S(SM)}, s{sKO} offen lds"); n += 1
    return n
a(f"s_cmp_lt_u32 s{sWV}, {OPT['rw']}\ns_cbranch_scc1 L_r0")
n0 = uissue(0)
a(f"s_waitcnt vmcnt({n0})\ns_barrier\ns_branch L_r1\nL_r0:")
rootup(0)
uissue(0)
a("L_r1:")
if OPT["mlate"]: a(f"L_ml:\ns_memrealtime s[0:1]\ns_waitcnt lgkmcnt(0)\ns_sub_u32 s0, s0, s98\ns_cmp_lt_u32 s0, {OPT['mlate']}\ns_cbranch_scc1 L_ml")
nI = {1: uissue(1)}
a("v_lshrrev_b32 v1, 5, v0\nv_bfe_u32 v2, v0, 2, 1\nv_lshl_add_u32 v1, v1, 2, v2\nv_bfe_u32 v2, v0, 4, 1\nv_bfe_u32 v3, v0, 3, 1\nv_lshl_add_u32 v3, v3, 1, v2\nv_lshl_add_u32 v1, v3, 4, v1")
a(f"v_xor_b32 v3, s{sWV}, v3\nv_and_b32 v2, 1, v0\nv_lshlrev_b32 v2, 3, v2\nv_lshl_add_u32 v2, v3, 4, v2\nv_bfe_u32 v3, v0, 1, 1")
a(f"v_lshl_add_u32 v{vRS}, v1, 6, v2\nv_mul_u32_u24 v8, 4224, v3\nv_add_u32 v{vRS}, v{vRS}, v8")
a(f"v_lshl_add_u32 v{vRX}, v1, 7, v2\nv_mul_u32_u24 v8, {8192 + 64}, v3\nv_xor_b32 v{vRX}, v{vRX}, v8")
vXS, vACT, vA1, vA2, vE4 = 252, 253, 254, 255, 5
for i in range(8): a(f"v_mov_b32 v{GA+i}, 0")
a(f"v_mov_b32 v1, 0x4444\nv_mov_b32 v2, 0xeeee\ns_mov_b32 vcc_lo, 0xaaaaaaaa\ns_mov_b32 vcc_hi, 0xaaaaaaaa\nv_cndmask_b32 v{IDX}, v1, v2, vcc")
a(f"v_and_b32 v1, 48, v0\nv_and_b32 v2, 1, v0\nv_lshlrev_b32 v2, 4, v2\nv_lshl_add_u32 v{vXS}, v1, 1, v2\nv_add_u32 v{vA1}, {ACTB}, v{vXS}\nv_add_u32 v{vXS}, {LNL}, v{vXS}")
a(f"v_add_u32 v1, {ACTB + 128}, v1\nv_mov_b32 v2, {MZ}\nv_cndmask_b32 v{vA2}, v1, v2, vcc\nv_mov_b32 v3, 0\nv_lshl_add_u32 v2, v0, 2, v2\ns_mov_b32 exec_hi, 0\nds_write_b32 v2, v3\ns_mov_b64 exec, -1")
a(f"s_and_b32 s0, s{sWV}, 4\ns_add_u32 s0, s0, s{sWV}\nv_bfe_u32 v1, v0, 4, 1\nv_lshl_add_u32 v1, v1, 2, s0")
a("v_lshrrev_b32 v2, 1, v1\nv_lshlrev_b32 v2, 2, v2\nv_and_or_b32 v2, v1, 1, v2\nv_and_or_b32 v2, v0, 2, v2\nv_bfe_u32 v3, v0, 2, 1\nv_lshl_add_u32 v2, v2, 1, v3")
a(f"v_and_b32 v3, 1, v0\nv_lshl_add_u32 v2, v2, 1, v3\nv_and_b32 v3, 7, v0\nv_lshl_add_u32 v3, v1, 3, v3\nv_cmp_gt_u32 vcc, 8, v1\nv_cndmask_b32 v2, v3, v2, vcc\nv_lshlrev_b32 v2, 1, v2\nv_add_u32 v{vACT}, {ACTB}, v2")
a(f"s_lshl_b32 s47, s{sWV}, 15\ns_lshl_b32 s3, s{sMm}, 6\ns_add_u32 s47, s47, s3\ns_add_u32 s47, s47, {RJ + R_E4}")
a(f"v_lshrrev_b32 v1, 2, v0\nv_and_b32 v2, 3, v0\nv_lshlrev_b32 v2, 4, v2\nv_lshl_add_u32 v2, v1, 10, v2\nv_lshlrev_b32 v1, 4, v1\nv_add_u32 v1, {4096 - 64}, v1\ns_mov_b64 vcc, 0xffff\nv_cndmask_b32 v{XS+10}, v1, v2, vcc")
a(f"s_cmp_lt_u32 s{sWV}, 4\ns_cselect_b32 s50, 0x00ff0000, 0\ns_or_b32 s50, s50, 0xff\ns_mov_b32 s51, 0")
sFT, sFE, sWIN, sXS = 52, 53, 54, 55
a(f"s_sub_u32 s3, s{sWV}, 4\ns_lshl_b32 s3, s3, 4\ns_add_u32 s{sFT}, s3, s{sMm}\ns_mul_i32 s3, s{sFT}, 52\ns_lshr_b32 s3, s3, 8\ns_mul_i32 s3, s3, {RJS - 5120}\ns_lshl_b32 s{sFE}, s{sFT}, 10\ns_add_u32 s{sFE}, s{sFE}, s3\ns_add_u32 s{sFE}, s{sFE}, {RJ + R_E4}")
vFC, vFB, vSG, FD = 128, 129, 130, 40
a(f"s_mov_b32 s49, {BUDGET >> 2}\ns_mov_b32 s63, 0")
a(f"s_mul_i32 s3, s{sFT}, 52\ns_lshr_b32 s3, s3, 8\ns_mul_i32 s0, s3, 5\ns_sub_u32 s0, s{sFT}, s0\ns_mul_i32 s3, s3, 80\ns_lshl_b32 s1, s0, 2\ns_cmp_eq_u32 s0, 4\ns_cselect_b32 s1, 64, s1\ns_cselect_b32 s0, 0, 4\ns_cselect_b32 s48, 2, 0\ns_add_u32 s3, s3, s1")
a(f"v_bfe_u32 v1, v0, 4, 1\nv_lshrrev_b32 v2, 5, v0\nv_lshl_add_u32 v1, v1, 1, v2\nv_lshlrev_b32 v1, s0, v1\nv_and_b32 v2, 3, v0\nv_lshlrev_b32 v2, s48, v2\nv_add3_u32 v1, v1, v2, s3\nv_lshlrev_b32 v{vFC}, 1, v1\nv_lshlrev_b32 v{vFB}, 2, v1")
a("v_lshrrev_b32 v1, 4, v0\nv_bfe_u32 v2, v0, 2, 2\nv_lshl_add_u32 v1, v1, 3, v2\nv_mul_u32_u24 v1, 1280, v1\nv_and_b32 v3, 1, v0\nv_lshl_add_u32 v1, v3, 3, v1")
a(f"v_bfe_u32 v2, v0, 2, 3\nv_lshlrev_b32 v2, 1, v2\nv_bfe_u32 v3, v0, 1, 1\ns_mul_i32 s0, s{sWV}, 10")
for i in range(5): a(f"s_add_u32 s3, s0, {2*i}\nv_add_u32 v{XS+i}, s3, v3\nv_xor_b32 v{XS+i}, v{XS+i}, v2\nv_lshl_add_u32 v{XS+i}, v{XS+i}, 4, v1")
for u in range(len(UN)):
    a(f"s_waitcnt vmcnt({nI.get(u + 1, 0) + (u == 6)}) lgkmcnt(0)\ns_barrier")
    if u + 2 < len(UN): nI[u + 2] = uissue(u + 2)
    sk = False
    for kd, i, o in place(u):
        if kd == "d":
            for k in range(5):
                a(f"v_add_u32 v1, {o}, v{XS+k}")
                for e in range(2): a(f"ds_read_b64_tr_b16 {V(DF+12*k+4*i+2*e,2)}, v1 offset:{1280*4*e}")
            continue
        if kd == "s" and not sk: a(f"s_cmp_lt_u32 s{sWV}, 4\ns_cbranch_scc0 L_g{u}"); sk = True
        a(f"v_add_u32 v1, {o}, v{vRX if kd == 'x' else vRS}")
        p = 128 if kd == "x" else 64
        for hh in range(2):
            for e in range(2): a(f"ds_read_b64_tr_b16 {V(GF+80*(kd == 's')+8*i+4*hh+2*e,2)}, v1 offset:{p*(8*hh + 2*e)}")
    if sk: a(f"L_g{u}:")
    if u == 5: a(f"v_and_b32 v{XS+12}, 0xf0, v6\nbuffer_load_dword v{XS+11}, v{XS+12}, {S(DBG)}, 0 offen sc1")
    if u == 7: stamp(1)
stamp(2)
pagebreak()
warm("m", 0, 1)
a(f"v_mov_b32 v{vE4}, v{XS+10}\nv_mov_b32 v4, {WINB}\ns_mov_b32 s61, 0\ns_cmp_lt_u32 s{sWV}, 7\ns_cbranch_scc1 L_np")
a(f"L_rt:\nv_cmp_ne_u32 vcc, 1, v{XS+11}\ns_cbranch_vccz L_rtg\nbuffer_load_dword v{XS+11}, v{XS+12}, {S(DBG)}, 0 offen sc1\ns_waitcnt vmcnt(0)\ns_sub_u32 s{sBUD}, s{sBUD}, 1\ns_cbranch_scc0 L_rt\ns_mov_b32 s{sBUD}, 0\nL_rtg:")
vKA, vKB, sKO_, sAG, sSP = 144, 146, 64, 60, 61
NFL = 16
a(f"v_bfe_u32 v1, v0, 2, 3\nv_lshlrev_b32 v1, 15, v1\nv_and_b32 v2, 3, v0\nv_min_u32 v2, 2, v2\nv_mul_u32_u24 v3, 1280, v2\ns_mov_b32 s0, {RJ}\nv_add3_u32 v{vKB+1}, v3, v1, s0\nv_lshl_add_u32 v{vKA}, v2, 7, v1\ns_mul_i32 s0, s{sMm}, 384\ns_add_u32 s{sKO_}, s0, {RJ + R_KEY}")
stamp(3)
vRW = 132
a(f"s_and_b32 s3, s{sMm}, 1\ns_mul_i32 s3, s3, 640\nv_add_u32 v{vRW}, s3, v6\nv_subrev_u32 v2, 1280, v{vRW}\nv_min_u32 v{vRW}, v{vRW}, v2\ns_sub_u32 s3, 1024, s3\nv_add_u32 v{vRW+1}, s3, v6")
row = f"s_mov_b32 m0, {LNL}\ns_mov_b64 exec, -1\nbuffer_load_dwordx4 v{vRW}, {S(WS)}, s{sXS} offen sc1 lds\ns_mov_b32 m0, {LNL + 1024}\ns_mov_b64 exec, 0xffff\nbuffer_load_dwordx4 v{vRW+1}, {S(WS)}, s{sXS} offen sc1 lds"
KP, KV = OPT["kp"], 140
KM = 0x77777777
a(f"s_mov_b32 s{sWIN}, 0\ns_mov_b32 s{sXS}, {OOB:#x}\ns_mov_b32 s{sAG}, {1 << 30}\ns_setprio 3")
def look(k):
    a(row); execset(KM)
    a(f"buffer_atomic_umin v{KV+k}, v{vKA}, {S(WS)}, s{sKO_} offen sc0 sc1")
for k in range(KP): a(f"v_mov_b32 v{KV+k}, -1")
for k in range(KP - 1):
    look(k)
    if OPT["ks"]: a(f"s_sleep {OPT['ks']}")
for k in range(KP):
    a(f"L_pl{k}:")
    look((k + KP - 1) % KP)
    if OPT["sp"]: a(f"s_mov_b32 s62, {k}\ns_cmp_eq_u32 s{sSP}, 2\ns_cbranch_scc1 L_ab\nL_pi{k}:")
    a(f"s_waitcnt vmcnt({3 * (KP - 1)})\nv_cmp_lt_u32 vcc, s{sWIN}, v{KV+k}\ns_sub_u32 s{sAG}, s{sAG}, 1\ns_cbranch_vccz L_pw")
    a(f"s_cselect_b32 s0, s{sSP}, 1\ns_max_i32 s{sAG}, s{sAG}, 0")
    a(f"v_cmp_eq_u32 s[58:59], -1, v{KV+k}\nv_mov_b32 v{vKB}, v{KV+k}\ns_andn2_b64 vcc, vcc, s[58:59]\ns_cbranch_scc0 L_pq{k}")
    if OPT["stamps"] == 1: l = a.label("fu"); a(f"s_cmp_eq_u32 s63, 0\ns_cbranch_scc0 {l}"); stamp(12); a(f"{l}:\ns_add_u32 s63, s63, 1")
    stamp(11)
    a(f"s_mov_b64 exec, -1\nv_cndmask_b32 v{vKB}, 0, v{vKB}, vcc\ns_lshl_b32 s{sSP}, s{sSP}, 1")
    a(f"v_max_u32_dpp v{XS}, v{vKB}, v{vKB} row_ror:8 {DPPM}")
    for r in (4, 2, 1): a(f"v_max_u32_dpp v{XS}, v{XS}, v{XS} row_ror:{r} {DPPM}")
    a(f"v_mov_b32 v{XS+1}, v{XS}\ns_mov_b32 s{sAG}, {KP - 1}\nv_permlane16_swap_b32 v{XS}, v{XS+1}\nv_max_u32 v{XS}, v{XS}, v{XS+1}\ns_mov_b32 exec_hi, 0\nv_cmpx_eq_u32 vcc, v{XS}, v{vKB}")
    a(f"ds_write_b64 v4, {V(vKB,2)}\nv_readfirstlane_b32 s{sXS}, v{vKB+1}\nv_readfirstlane_b32 s{sWIN}, v{vKB}\ns_branch L_pl{(k + 1) % KP}\nL_pq{k}:")
    if OPT["sp"]: a(f"s_cmp_eq_u32 s0, 0\ns_cselect_b32 s{sSP}, 1, s{sSP}\ns_cbranch_scc1 L_pg")
    if OPT["ks"]: a(f"s_sleep {OPT['ks']}")
a(f"s_sub_u32 s{sBUD}, s{sBUD}, 1\ns_cbranch_scc0 L_pl0\ns_mov_b32 s{sBUD}, 0\ns_waitcnt vmcnt(0)\ns_cmp_eq_u32 s0, s0")
a("L_pw:")
stamp(4)
a("s_cbranch_scc0 L_pv")
if OPT["sp"]: a(f"s_cmp_eq_u32 s{sSP}, 1\ns_mov_b32 s{sSP}, 0\ns_mov_b64 exec, -1\ns_cbranch_scc1 L_bb")
a("s_branch L_pg\nL_pv:")
for v in range(KP - 1):
    a(f"s_cmp_eq_u32 s{sAG}, {v}\ns_waitcnt vmcnt({1 + 3 * (KP - 2 - v)})\n" + ("s_cbranch_scc1 L_pg" if v < KP - 2 else "s_branch L_pg"))
if OPT["sp"]: a(f"L_ab:\ns_mov_b64 exec, -1\nds_write_b32 v4, v4 offset:{NFL}\ns_branch L_bb")
a(f"L_xf:\n{row}\ns_waitcnt vmcnt(0)\nL_pg:\ns_mov_b64 exec, -1")
def back(l, d):
    if not OPT["sp"]: return "s_branch L_xf"
    return "\n".join(f"s_cmp_eq_u32 s62, {k}\ns_cbranch_scc1 {l}{(k + d) % KP}" for k in range(KP - 1)) + f"\ns_branch {l}{(KP - 1 + d) % KP}"
def wback(p):
    if OPT["wb"] & p: a(f"s_and_b32 s3, s{sMm}, 1\ns_add_u32 s3, s3, s{sWV}\ns_cmp_eq_u32 s3, 8\ns_cbranch_scc0 L_wb{p}\nbuffer_wbl2 sc1\nL_wb{p}:")
a("L_np:\ns_waitcnt lgkmcnt(0)\ns_barrier")
stamp(5)
def smf(d, A, B): a(f"v_smfmac_f32_16x16x64_bf16 {V(d,4)}, {V(A,4)}, {V(B,8)}, v{IDX}")
a(f"s_cmp_lt_u32 s{sWV}, 4\ns_cbranch_scc1 L_xh")
XL = 88
wback(1)
a(f"ds_read_b64 v[2:3], v4")
for s in range(10): a(f"ds_read_b128 {V(XL+4*s,4)}, v{vXS} offset:{128*s}")
def slook(k):
    if OPT["sp"]: a(f"s_cmp_eq_u32 s{sSP}, 0\ns_cbranch_scc1 L_sl{k}"); look(k); a(f"s_mov_b64 exec, -1\nL_sl{k}:")
slook(0)
a(f"s_waitcnt lgkmcnt(10)\nv_readfirstlane_b32 s56, v2\nv_readfirstlane_b32 s57, v3")
fo = [f"s_and_b32 s0, s57, 0x7fff\ns_add_u32 s57, s57, s0\ns_add_u32 s57, s57, {R_BASE}\ns_and_b32 s1, s56, 0xfffff800",
      f"s_ashr_i32 s3, s1, 31\ns_not_b32 s3, s3\ns_or_b32 s3, s3, 0x80000000\ns_xor_b32 s1, s1, s3", f"s_andn2_b32 s56, 2047, s56\ns_mul_i32 s56, s56, 1280\nv_mov_b32 v{vSG}, s1",
      f"v_mul_f32 v{vSG}, 0xbfb8aa3b, v{vSG}", f"v_exp_f32 v{vSG}, v{vSG}", f"v_add_f32 v{vSG}, 1.0, v{vSG}", f"v_rcp_f32 v{vSG}, v{vSG}"]
for s in range(10):
    a(f"s_waitcnt lgkmcnt({9-s})"); smf(GA, XL + 4 * s, GF + 8 * s)
    if fo: a(fo.pop(0))
assert KP == 3
slook(1)
a("s_branch L_xj"); pad("m"); a("L_xh:")
for s in range(4): a(f"ds_read_b128 {V(XS+4*s,4)}, v{vXS} offset:{128*s}")
for s in range(10):
    a(f"s_waitcnt lgkmcnt({min(3, 9-s)})")
    smf(GA, XS + 4 * (s % 4), GF + 8 * s); smf(GA + 4, XS + 4 * (s % 4), GF + 80 + 8 * s)
    if s + 4 < 10: a(f"ds_read_b128 {V(XS+4*(s%4),4)}, v{vXS} offset:{128*(s+4)}")
a("L_xj:\ns_mov_b64 vcc, 0xffff")
a(f"v_add_f32 v1, v{GA}, v{GA+1}\nv_add_f32 v2, v{GA+4}, v{GA+5}\nv_cndmask_b32 v1, v2, v1, vcc")
a(f"v_mul_f32 v2, 0xbfb8aa3b, v1\nv_cmp_u_f32 vcc, v1, v1\nv_exp_f32 v2, v2\nv_mul_f32_dpp v3, v1, v1 row_ror:8 {DPPM}\nv_add_f32 v2, 1.0, v2\nv_rcp_f32 v2, v2\ns_mov_b64 exec, s[50:51]")
a(f"v_mul_f32 v1, v2, v3\nv_cvt_pk_bf16_f32 v1, v1, v1\nds_write_b16 v{vACT}, v1\ns_mov_b64 exec, -1\ns_cbranch_vccnz L_xn\nL_xnb:")
DEFER.append(f"L_xn:\nds_write_b32 v4, v4 offset:{NFL}\ns_branch L_xnb")
stamp(6)
DEFER.append(f"L_xsr:\ns_sub_u32 s49, s49, 1\ns_cbranch_scc1 L_xsgo\n" + "\n".join(f"v_mov_b32 v{GA+i}, 0" for i in (0, 1, 4, 5))
             + f"\ns_waitcnt lgkmcnt(0)\ns_barrier\ns_cmp_eq_u32 s{sWV}, 7\ns_cbranch_scc0 L_np\nds_write_b32 v4, v{GA} offset:{NFL}\ns_cmp_eq_u32 s{sSP}, 2\ns_cbranch_scc0 L_xf\ns_mov_b32 s{sSP}, 0\ns_mov_b64 exec, {KM:#x}\n" + back("L_pi", 0))
if OPT["sp"]: a(f"s_cmp_eq_u32 s{sSP}, 0\ns_cbranch_scc0 L_pl0")
a(f"L_bb:\ns_waitcnt lgkmcnt(0)\ns_barrier")
DD = 8
a(f"ds_read_b32 v1, v4 offset:{NFL}\nds_read_b128 {V(XS,4)}, v{vA2}\nds_read_b128 {V(XS+4,4)}, v{vA1}\ns_waitcnt lgkmcnt(2)\nv_cmp_ne_u32 vcc, 0, v1\ns_cbranch_vccnz L_xsr\nL_xsgo:")
a("s_waitcnt lgkmcnt(1)")
for i in (4, 0, 1, 2, 3): mfma(DD + 4 * i, XS, DF + 12 * i + 8, "0")
a("s_waitcnt lgkmcnt(0)")
for i in (4, 0, 1, 2, 3): smf(DD + 4 * i, XS + 4, DF + 12 * i)
PS = 32
a(f"v_add_f32 v1, v{DD+16}, v{DD+17}")
for i in range(4): a(f"v_add_f32 v{PS+i}, v{DD+4*i}, v{DD+4*i+1}")
for i in range(4): a(f"v_mov_b32_dpp v{PS+i}, v1 quad_perm:[{i},{i},{i},{i}] row_mask:0x2 bank_mask:0xf")
a(f"s_mov_b64 exec, 0x1111ffff\nbuffer_store_dwordx4 {V(PS,4)}, v{vE4}, {S(WS)}, s47 offen sc1\ns_mov_b64 exec, -1")
stamp(7)
if OPT["stamps"] == 1: a(f"s_sub_u32 s3, {(BUDGET >> 2) + 1}, s49\ns_add_u32 s88, s98, s3\ns_add_u32 s90, s98, s63")
wback(2)
a(f"s_cmp_lt_u32 s{sFT}, 40\ns_cbranch_scc0 L_mfin")
FP = OPT["fp"]
FA = OPT["fa"]; NF = 3 if FA else 2
def fld(k):
    d = FD + 8 * k
    a(f"buffer_load_dword v{d+4}, v{vFB}, {S(WS)}, s57 offen sc1")
    if FA:
        for e in (0, 2): a(f"v_mov_b64 {V(d+e,2)}, 0\nbuffer_atomic_or_x2 {V(d+e,2)}, v6, {S(WS)}, s{sFE} offen offset:{4*e} sc0 sc1")
    else: a(f"buffer_load_dwordx4 {V(d,4)}, v6, {S(WS)}, s{sFE} offen sc1")
if OPT["f0"] > 0: a(f"s_sleep {OPT['f0']}")
if OPT["f0"] < 0: a("s_waitcnt vmcnt(0)")
if OPT["f0"] < -1: a(f"s_sleep {-OPT['f0'] - 1}")
for k in range(FP - 1):
    fld(k)
    if OPT["fs"]: a(f"s_sleep {OPT['fs']}")
a("L_fd:")
if OPT["ftop"]: a(f"s_sleep {OPT['ftop']}")
for k in range(FP):
    fld((k + FP - 1) % FP)
    d = FD + 8 * k
    a(f"s_waitcnt vmcnt({NF*(FP-1)})\nv_max3_u32 v1, v{d}, v{d+2}, v{d+4}\nv_cmp_eq_u32 vcc, -1, v1\ns_cbranch_vccz L_fg{k}")
    if OPT["fs"]: a(f"s_sleep {OPT['fs']}")
a(f"s_sub_u32 s{sBUD}, s{sBUD}, 1\ns_cbranch_scc0 L_fd")
for k in reversed(range(FP)):
    d = FD + 8 * k
    a(f"L_fg{k}:\nv_permlane32_swap_b32 v{d}, v{d+1}\nv_permlane32_swap_b32 v{d+2}, v{d+3}\nv_add_f32 v{d}, v{d}, v{d+1}\nv_add_f32 v{d+2}, v{d+2}, v{d+3}")
    a(f"v_permlane16_swap_b32 v{d}, v{d+2}\nv_add_f32 v{d}, v{d}, v{d+2}")
    for r in (4, 8): a(f"v_add_f32_dpp v{d}, v{d}, v{d} row_ror:{r} {DPPM}")
    a(f"v_fma_f32 v8, v{d}, v{vSG}, v{d+4}\nv_cvt_pk_bf16_f32 v8, v8, v8")
    execset(0x000F000F000F000F)
    a(f"buffer_store_short v8, v{vFC}, {S(OUT)}, s56 offen")
    if k: stamp(8); finish(); pad("m")
stamp(8)
a("L_mfin:")
finish()
deferred("m")
if OPT["stamps"]:
    a("L_dump:\ns_mov_b64 exec, -1\nv_mbcnt_lo_u32_b32 v0, -1, 0\nv_mbcnt_hi_u32_b32 v0, -1, v0\ns_memtime s[0:1]\ns_memrealtime s[62:63]\ns_waitcnt lgkmcnt(0)\nv_mov_b32 v2, 0")
    a("v_writelane_b32 v2, s98, 0\nv_writelane_b32 v2, s62, 1\ns_sub_u32 s3, s0, s96\nv_writelane_b32 v2, s3, 2")
    for i in range(NST): a(f"s_sub_u32 s3, s{70+2*i}, s{98 if OPT['rt'] else 96}\ns_cmp_lt_u32 s3, {5000 if OPT['rt'] else 0x100000}\ns_cselect_b32 s3, s3, 0\nv_writelane_b32 v2, s3, {3+i}")
    a(f"s_lshl_b32 s3, s2, 4\ns_add_u32 s3, s3, s{sWV}\ns_lshl_b32 s3, s3, 7\ns_add_u32 s3, s3, {STAMP}\nv_lshlrev_b32 v3, 2, v0\ns_mov_b32 exec_hi, 0")
    if not OPT["dfix"]: a(f"buffer_store_dword v2, v3, {S(WS)}, s3 offen")
    if OPT["diag"] >= 0:
        a(f"s_sub_u32 s3, s2, {OPT['dwg']}\ns_cmp_lt_u32 s3, {OPT['dn']}\ns_cbranch_scc0 L_end\ns_cmp_eq_u32 s{sWV}, {OPT['dwv']}\ns_cbranch_scc0 L_end")
        a(f"s_sub_u32 s3, s{70+2*OPT['diag']}, s{98 if OPT['dib'] < 0 else 70+2*OPT['dib']}\ns_lshl_b32 s3, s3, {2 if OPT['dib'] < 0 else 4}\ns_add_u32 s3, s3, s62")
        if OPT["dfix"]: a(f"s_add_u32 s3, s98, {OPT['dfix']}")
        if OPT["dpr"]:
            a(f"s_sub_u32 s0, s94, s86\ns_cmp_gt_u32 s0, {OPT['dpr']}\ns_cselect_b32 s0, 2048, 0\ns_add_u32 s3, s3, s0\ns_mul_i32 s0, s98, 40503\ns_bfe_u32 s0, s0, 0xb0005\ns_add_u32 s3, s3, s0")
        if OPT["ddie"] >= 0:
            a(f"s_mov_b64 exec, -1\nv_and_b32 v1, 7, v0\nv_lshlrev_b32 v1, 5, v1\nbuffer_load_dword v2, v1, {S(DBG)}, 0 offen offset:4 sc1\ns_waitcnt vmcnt(0)\nv_readlane_b32 s0, v2, 0")
            for k in range(1, 8): a(f"v_readlane_b32 s1, v2, {k}\ns_min_u32 s0, s0, s1")
            a(f"v_readlane_b32 s1, v2, {OPT['ddie']}\ns_sub_u32 s1, s1, s0\ns_and_b32 s1, s1, 0x3ff\ns_lshl_b32 s1, s1, 5\ns_add_u32 s3, s0, {OPT['dfix']}\ns_add_u32 s3, s3, s1")
        a("L_dg:\ns_memrealtime s[62:63]\ns_waitcnt lgkmcnt(0)\ns_sub_u32 s0, s62, s3\ns_cmp_lt_i32 s0, 0\ns_cbranch_scc1 L_dg")
a("L_end:\ns_endpgm")
for i, l in reversed(list(enumerate(a.lines))):
    if l.startswith(";WARM"):
        _, cat, k, n = l.split()
        a.lines[i:i+1] = [f"s_call_b64 s[100:101], {p}" for p in PADS.get(cat, [])[int(k)::int(n)]]
print({k: len(v) for k, v in PADS.items()})
body, nn = hazard.fix(a.lines[body0:], OPT["verbose"])
a.lines[body0:] = body
kernel_desc(a, K, 256)
open(sys.argv[1], "w").write(a.text())
print("nops inserted:", nn, "lines:", len(a.lines))
```

```python
import sys, struct, math
sys.path.insert(0, "gen")
from common import *
import hazard

OPT = dict(stage="F", stamps=0, verbose=0, nl=9, pg=1, kw=0, kr=3, kn=1, kc=15, e2p=0, fmode=1, n0=8, na=2, nb=10, n1=0, o2=0, hp=1, cdw=0, sf=2, dpn=1, hpr=1, fsl=1, bk=0, bv=-1, wc=1, tch=5, bud=1 << 19, rw=5, clr=0, pf0=1, uord=0, mt=1, mx=8, x1=2, xw=0, w1=1, ppr=0, sp=0, g2=1, gs=2, lag=3, dist=20, cprio=0, cp2=2, hp2=1, op2=4, wb=0, pfp=3, te=0, tl=1, t2=0, wsp=0, ws0=2, ord=0, vpos=1, off="27945386", kl=1, ftop=0, mlate=0, rf=1, kp=3, ks=2, ka=1, fp=3, fs=1, fa=0, f0=0, hlp=1, r2=5, e1=1, e2=4, dep=3, dep2=6, opos=1, vq=2, spf=0, pk=1, rsp=3, osc="plain",
           diag=-1, dwg=77, dn=1, dib=-1, dfix=0, ddie=-1, mon=0, dpr=0, ncp=4, wrl=0, dwv=0, slpk=0, prio=1, ou=5, grp=0, rt=1, dbg=0, wri=5, pre=12, aprio=1, lprio=2, vprio=2, oul=5, xprio=1, cpos=1)
for kv in sys.argv[2:]:
    k, v = kv.split("=")
    assert k in OPT, k
    OPT[k] = int(v) if v.lstrip("-").isdigit() else v
STAGE = OPT["stage"]

E2, SP, RJ, STAMP, DUMP = 0x200000, 0x280000, 0x300000, 0x500000, 0x1000000
RJS = 32768
R_BASE, R_FL, R_E4, R_KEY = 4096, 12288, 16384, 21504
SLOT, S0 = 36864, 8192
PITCH = 144; TSTR = 96 * PITCH
VB = S0 + SLOT - TSTR; KB = VB - TSTR; QB = KB - TSTR
STATS, ZR = 0, 1792
MODE, KMAX, WFL, VCN, HRD, XFL = 1728, 1732, 1744, 1748, 1752, 1760
WOB = S0 + 2 * SLOT
EX = S0 + SLOT + 12288
LTB, LFL = EX + 16384, 1768
G2 = OPT['g2']
if G2: OPT['dep'] = OPT['dep2']; OPT['sf'] = 5
assert ZR + 8 * PITCH + 64 <= QB
X, W, WO, WS, OUT, DBG, WR = 4, 8, 12, 16, 20, 24, 28
sWV, sJ, sU, sG, sC, sC5, sT, sB0, sBUD, sMODE, sI, sGID = range(32, 44)
KA = dict(x=44, w=46, wo=48, wr=52, gate=54, up=56, down=60, out=62, dbg=64, ws=66)
BUDGET = OPT['bud']
DPPM = "row_mask:0xf bank_mask:0xf"
ONES = 0x3F803F80
OOB = 0x80000000
def f32(x): return struct.unpack("<I", struct.pack("<f", x))[0]
CEXP = f32(20 ** -0.5 * math.log2(math.e))

a = Asm()
def S(d): return f"s[{d}:{d+3}]"
def V(d, n=1): return f"v{d}" if n == 1 else f"v[{d}:{d+n-1}]"
def mksrd(d, name, size): a(f"s_mov_b64 s[{d}:{d+1}], s[{KA[name]}:{KA[name]+1}]\ns_mov_b32 s{d+2}, {size:#x}\ns_mov_b32 s{d+3}, 0x20000")
def execset(m):
    if m == -1: a("s_mov_b64 exec, -1")
    elif m < (1 << 31): a(f"s_mov_b64 exec, {m:#x}")
    else: a(f"s_mov_b32 exec_lo, {m & 0xffffffff:#x}\ns_mov_b32 exec_hi, {m >> 32:#x}")
def smask(d, m): a(f"s_mov_b32 s{d}, {m & 0xffffffff:#x}\ns_mov_b32 s{d+1}, {m >> 32:#x}")
def lanes(f): return sum(1 << l for l in range(64) if f(l))
def mfma(d, A, B, C=None):
    c = V(d, 4) if C is None else (C if isinstance(C, str) else V(C, 4))
    a(f"v_mfma_f32_16x16x32_bf16 {V(d,4)}, {V(A,4)}, {V(B,4)}, {c}")
DEFER = []
def lst(text):
    l = a.label("gl")
    a(f"s_cmp_eq_u32 s{sMODE}, 1\ns_cbranch_scc0 {l}g")
    a(text.replace("{F}", "")); a(f"{l}b:")
    DEFER.append(f"{l}g:\n" + text.replace("{F}", " sc1") + f"\ns_branch {l}b")
PADS = {}
def pad(cat):
    if not OPT["pg"]: return
    l = a.label("pad"); PADS.setdefault(cat, []).append(l); a(f"{l}:\ns_setpc_b64 s[100:101]")
def pagebreak(cat=None, live=True, stubs=False):
    if not OPT["pg"]: return
    l = a.label("pb")
    if live: a(f"s_branch {l}")
    if stubs:
        keep = [t for t in DEFER if t.startswith("L_wo")]
        DEFER[:] = [t for t in DEFER if not t.startswith("L_wo")]
        deferred(cat); DEFER[:] = keep
    a(".p2align 12")
    if cat: pad(cat)
    a(f"{l}:")
def warm(cat, k, n): a(f";WARM {cat} {k} {n}")
def deferred(cat=None):
    n = 999
    for t in DEFER:
        if cat and n > 110: pad(cat); n = 0
        a(t); n += t.count("\n") + 1
    DEFER.clear()
def capture(fn):
    global a
    class C:
        def __init__(s): s.g = []
        def __call__(s, t=""): s.g.append(t)
        def label(s, b): return a0.label(b)
    a0 = a; a = C(); fn(); g = a.g; a = a0
    return g
class Cnt:
    def __init__(s, name, mx): s.n = 0; s.name = name; s.mx = mx; s.done = 0
    def __call__(s, text): a(text); s.n += 1; return s.n
    def wait(s, i):
        if i <= s.done: return
        k = min(s.mx, s.n - i); a(f"s_waitcnt {s.name}({k})"); s.done = s.n - k
    def reset(s): s.n = 0; s.done = 0
L = Cnt("lgkmcnt", 15)

NST = 13
CLK = "s_memrealtime" if OPT["rt"] else "s_memtime"
def stamp(i, lvl=1):
    if OPT["stamps"] == lvl: a(f"{CLK} s[{70+2*i}:{71+2*i}]")
def stampi(ph):
    if OPT["stamps"] == 2:
        if ph == 0: a(f"{CLK} s[94:95]")
        else: a(f"s_lshl_b32 m0, s{sI}, 1\ns_waitcnt lgkmcnt(0)\ns_movreld_b32 s70, s94")
def finish():
    a("s_branch L_dump" if OPT["stamps"] else "s_endpgm")

a(HEADER.rstrip())
a("; @launch grid=(256,1,1) block=(512,1,1) lds=163840")
if OPT["stamps"] and OPT["grp"]: a("; @groups g0:0-79:2-2 g1:80-159:2-2 g2:160-239:2-2 m7:240-255:7-7")
if OPT["stamps"] and OPT["rt"]: a("; @rt")
if OPT["stamps"] and not OPT["grp"]: a("; @groups c0:0-239:0-0 c2:0-239:2-2 h0:0-239:4-4 h1:0-239:5-5 h3:0-239:7-7 m0:240-255:0-0 m4:240-255:4-4 ma:240-247:7-7 mb:248-255:7-7")
a('.amdgcn_target "amdgcn-amd-amdhsa--gfx950"')
K = NAME + "_kernel"
kernel_begin(a, K, OPT.get("page", 1))
body0 = len(a.lines)
NL = OPT["nl"]
a("s_load_dwordx16 s[44:59], s[0:1], 0\ns_load_dwordx8 s[60:67], s[0:1], 56")
if OPT["stamps"]: a("s_memrealtime s[98:99]\ns_memtime s[96:97]")
a(f"s_lshr_b32 s{sU}, s2, 3\ns_and_b32 s{sJ}, s2, 7\nv_readfirstlane_b32 s{sWV}, v0\ns_getpc_b64 s[100:101]\nL_pc:")
if OPT['dbg'] & 32: a('s_load_dword s79, s[100:101], 0x7000')
a(f"s_mul_i32 s3, s{sU}, {NL}\nv_min_u32 v2, {NL-1}, v0\nv_add_lshl_u32 v2, v2, s3, 7\nv_min_u32 v2, L_end-L_pc, v2")
a(f"s_cmp_ge_u32 s{sU}, 30\ns_cbranch_scc1 L_moe")
a("global_load_dword v255, v2, s[100:101]")
a(f"s_mul_i32 s{sG}, s{sU}, 26\ns_lshr_b32 s{sG}, s{sG}, 8\ns_mul_i32 s3, s{sG}, 10\ns_sub_u32 s{sC}, s{sU}, s3\ns_lshr_b32 s{sWV}, s{sWV}, 6")
OFT = sum(int(ch) << (4 * i) for i, ch in enumerate(str(OPT["off"])))
a(f"s_lshl_b32 s3, s{sJ}, 2\ns_lshr_b32 s3, {OFT:#x}, s3\ns_and_b32 s{sMODE}, s3, 15\ns_add_u32 s3, s{sC}, s{sMODE}\ns_sub_u32 s68, s3, 10\ns_cselect_b32 s69, s3, s68")
a(f"s_mul_i32 s3, s69, 245760\ns_lshl_b32 s68, s{sC}, 7\ns_add_u32 s3, s3, s68")
a("v_lshrrev_b32 v1, 3, v0\nv_lshrrev_b32 v3, 4, v0\nv_and_b32 v2, 2, v1\nv_and_or_b32 v2, v3, 4, v2\nv_xor_b32 v2, v2, v0\nv_and_b32 v2, 7, v2")
a("v_mul_u32_u24 v4, 3840, v1\nv_lshl_add_u32 v4, v2, 4, v4\nv_add_u32 v4, s3, v4")
vX, vSUM, vXD, vSTW, vBIA, vEV, vEA = 24, 28, 36, 52, 53, 54, 55
sM, sLO, sLT, sP1, sP2 = 44, 52, 54, 55, 56
sXT, sE2L, sRJ, sNO, sSL, sXM, sXO, sLX, sRD, sPF, sSPL, sFO, sSB = range(57, 70)
sEV, sDL, sWO_ = sXM, sXO, sFO
a(f"s_mul_i32 s3, s{sWV}, 3072\ns_add_u32 m0, s3, {S0 + 12288}\nv_and_b32 v0, 63, v0\ns_and_b32 s{sT}, s{sWV}, 3")
a(f"s_lshr_b32 s3, s{sJ}, 1\ns_lshl_b32 s3, s3, 9\ns_mul_i32 s68, s{sG}, 176\ns_add_u32 s3, s3, s68\ns_and_b32 s68, s{sJ}, 1\ns_add_u32 s3, s3, s68\ns_mul_i32 s{sB0}, s3, 1280")
a(f"s_sub_u32 s{sI}, s{sWV}, 5\ns_mul_i32 s3, s{sI}, {32*2560}\ns_add_u32 s3, s3, s{sB0}\ns_sub_u32 s3, s3, {8*2560}")
a(f"v_lshrrev_b32 v1, 3, v0\nv_lshrrev_b32 v3, 4, v0\nv_xor_b32 v3, v3, v0\nv_and_b32 v3, 7, v3\nv_mul_u32_u24 v1, 2560, v1\nv_lshl_add_u32 v1, v3, 4, v1\nv_add_u32 v{vX}, s3, v1")
a(f"s_add_u32 s3, s{sI}, s{sG}\ns_cmp_eq_u32 s3, 4\ns_cselect_b32 s3, {OOB:#x}, 0")
a(f"v_xor_b32 v{vX+1}, 64, v{vX}\nv_add_u32 v{vX+1}, 20480, v{vX+1}\nv_add_u32 v{vX+2}, 40960, v{vX}\nv_add_u32 v{vX+3}, 40960, v{vX+1}\nv_or_b32 v{vX+3}, s3, v{vX+3}")
for d, sz in ((X, 2048 * 1280), (W, 640 * 3840), (WO, 640 * 1280), (WS, 1 << 28), (OUT, 2048 * 1280), (DBG, 256), (WR, 1280)): a(f"s_mov_b32 s{d+2}, {sz:#x}\ns_mov_b32 s{d+3}, 0x20000")
a("s_waitcnt lgkmcnt(0)")
stamp(0)
def mv(d, n): return f"s_mov_b64 s[{d}:{d+1}], s[{KA[n]}:{KA[n]+1}]"
a(f"global_load_lds_dwordx4 v4, s[46:47]\ns_addk_i32 m0, -256\n{mv(X, 'x')}")
a(f"global_load_lds_dwordx4 v4, s[46:47] offset:1280\ns_addk_i32 m0, -256\n{mv(OUT, 'out')}")
a(f"global_load_lds_dwordx4 v4, s[46:47] offset:2560")
for d, n in ((DBG, "dbg"), (WS, "ws"), (W, "w"), (WO, "wo"), (WR, "wr")): a(mv(d, n))
sMT = 96
if OPT["mt"]: a(f"s_cmp_eq_u32 s{sWV}, 4\ns_cselect_b64 s[{sMT}:{sMT+1}], s[54:55], s[{sMT if OPT['stamps'] else 58}:{sMT+1 if OPT['stamps'] else 59}]\ns_cmp_eq_u32 s{sWV}, 5\ns_cselect_b64 s[{sMT}:{sMT+1}], s[56:57], s[{sMT}:{sMT+1}]")
if OPT["mt"] and OPT["stamps"]: a(f"s_cmp_ge_u32 s{sWV}, 6\ns_cselect_b64 s[{sMT}:{sMT+1}], s[58:59], s[{sMT}:{sMT+1}]")
def nextslab(): a(f"s_add_u32 s{sSB}, s{sSB}, 1\ns_cmp_eq_u32 s{sSB}, 10\ns_cselect_b32 s{sSB}, 0, s{sSB}")
def advslot(d): a(f"s_add_u32 s{d}, s{d}, {SLOT}\ns_cmp_eq_u32 s{d}, {S0 + 4*SLOT}\ns_cselect_b32 s{d}, {S0}, s{d}")
def xissue():
    a(f"s_add_u32 m0, s{sSL}, s{sLX}\ns_mov_b32 exec_lo, s{sXM}")
    for i in range(4):
        a(f"buffer_load_dwordx4 v{vX+i}, {S(X)}, s{sXO} offen lds")
        if i < 3: a("s_addk_i32 m0, 1024")
        if i == 0: a("s_mov_b32 exec_lo, -1")
a(f"s_cmp_lt_u32 s{sWV}, 5\ns_cbranch_scc1 L_nx")
a(f"s_lshl_b32 s{sLX}, s{sI}, 12\ns_cselect_b32 s{sXM}, -1, 0xffffff00\ns_lshl_b32 s{sXO}, s69, 7\ns_mov_b32 s{sSL}, {S0}")
xissue()
a("L_nx:")
stamp(1)
aKe, aK4, aKx, aKy = range(200, 204)
aQe, aQx, aQy, aQ4 = 204, 206, 208, 210
aVe, aV1, aV2 = range(216, 219)
QLO, QUP = (aQx, aQy, aQ4), (aQe, aQ4 + 2, aQ4 + 4)
vM, aRK, aCQ, aH0s, aH0l, aOs, aOl, aWO, aOUT, aL16, vRK, aXC, XR = 220, 222, 223, 224, 225, 226, 227, 228, 232, 233, 234, 235, 236
vAW, vAX0, vAX1, vSW, vSTR = 244, 245, 246, 247, 248
WRF, WSP = 244, 252
MASK = [lanes(lambda l: 2 * r + (l >> 5) > (l & 7)) for r in range(4)]
LO = lanes(lambda l: (l & 15) < 8)
sTA, sTP, sTS = 44, 44, 45
aOl2 = XR
def suA():
    a(f"s_mov_b32 s{sBUD}, {BUDGET}\ns_mul_i32 s{sGID}, s{sJ}, 3\ns_add_u32 s{sGID}, s{sGID}, s{sG}\ns_sub_u32 s3, s{sC}, 5\ns_cselect_b32 s{sC5}, s{sC}, s3")
    a(f"s_lshl_b32 s3, s{sWV}, 2\ns_lshr_b32 s{sTA}, 0x32105454, s3\ns_and_b32 s{sTA}, s{sTA}, 7\ns_lshr_b32 s45, s{sT}, 1\ns_add_u32 s45, s45, 4")
    a(f"s_cmp_eq_u32 s{sG}, 2\ns_cselect_b32 s{sNO}, 10, 11")
    a(f"s_sub_u32 s{sXT}, 10, s{sMODE}\nv_lshlrev_b32 v{aL16}, 4, v0")
    a(f"s_mul_i32 s{sE2L}, s{sGID}, 6\ns_add_u32 s{sE2L}, s{sE2L}, s{sTP}\ns_mul_i32 s{sE2L}, s{sE2L}, 2560\ns_add_u32 s{sE2L}, s{sE2L}, {E2}")
    a(f"s_lshl_b32 s{sRJ}, s{sJ}, 15\ns_add_u32 s{sRJ}, s{sRJ}, {RJ}")
    a(f"s_sub_u32 s51, 5, s{sC5}\ns_add_u32 s1, s{sC5}, 1\ns_sub_u32 s3, 15, s{sC5}\ns_cmp_le_u32 s{sC5}, 2\n"
      "s_cselect_b32 s46, 0, s3\ns_cselect_b32 s47, s51, s1\ns_cselect_b32 s48, s3, 0\ns_cselect_b32 s49, s1, s51\ns_cselect_b32 s50, 1, 0")
    a("v_and_b32 v3, 15, v0\nv_add_u32 v3, 8, v3\nv_lshrrev_b32 v4, 1, v3\nv_lshrrev_b32 v5, 5, v0\nv_xor_b32 v4, v4, v5\nv_and_b32 v4, 7, v4")
    a(f"v_lshlrev_b32 v4, 4, v4\nv_lshl_add_u32 v4, v3, 7, v4\nv_bfe_u32 v5, v0, 4, 1\nv_lshl_add_u32 v4, v5, 3, v4\ns_lshl_b32 s3, s{sTP}, 11\nv_add_u32 v{aXC}, s3, v4")
def suB(helper=1):
    a(f"v_and_b32 v1, 15, v0\nv_lshrrev_b32 v2, 4, v0\nv_mov_b32 v7, {ZR}\ns_mul_i32 s0, s{sTA}, {16*PITCH}\ns_movk_i32 s1, {PITCH}")
    a("v_bfe_u32 v3, v0, 2, 1\nv_and_b32 v4, 3, v0\nv_lshlrev_b32 v4, 1, v4"); a("v_lshl_add_u32 v3, v3, 3, v4\nv_bfe_u32 v4, v0, 3, 1\nv_add_u32 v3, v3, v4")
    a(f"s_add_u32 s3, s0, {KB}\nv_mov_b32 v4, s3\nv_mad_u32_u24 v3, v3, s1, v4")
    a(f"s_add_u32 s3, s0, {QB + 8*PITCH}\nv_mov_b32 v4, s3\nv_mad_u32_u24 v4, v1, s1, v4")
    smask(52, LO)
    def kq(dK, dQ, quad, cond):
        a(quad); a(f"v_lshl_add_u32 v{dK}, v5, 3, v3\nv_lshl_add_u32 v5, v5, 3, v4")
        if cond: a(cond); a("v_cndmask_b32 v5, v7, v5, vcc")
        a(f"v_cndmask_b32 v{dQ}, v7, v5, s[52:53]\nv_cndmask_b32 v{dQ+1}, v5, v7, s[52:53]")
    kq(aKe, aQe, "v_add_u32 v5, s51, v2", None)
    if not (G2 and helper):
        kq(aKx, aQx, "v_add_u32 v5, s46, v2", "v_cmp_gt_u32 vcc, s47, v2")
        kq(aKy, aQy, "v_add_u32 v5, s48, v2\nv_min_u32 v5, 15, v5", "v_cmp_gt_u32 vcc, s49, v2")
    a("s_sub_u32 s3, s51, 1\nv_mad_u32_u24 v5, v2, 5, s3\ns_add_u32 s3, s46, 4\nv_mov_b32 v6, s3\ns_mov_b64 vcc, 0xffff\nv_cndmask_b32 v5, v5, v6, vcc")
    a(f"v_min_u32 v5, 15, v5\nv_lshl_add_u32 v{aK4}, v5, 3, v3\nv_lshl_add_u32 v5, v5, 3, v4")
    a(f"s_cmp_eq_u32 s47, 5\ns_cselect_b64 vcc, 0xff, 0\nv_cndmask_b32 v{aQ4}, v7, v5, vcc\ns_lshl_b64 vcc, vcc, 8\nv_cndmask_b32 v{aQ4+1}, v7, v5, vcc")
    for i in range(2, 6): a(f"s_bfm_b64 vcc, 8, {8*i}\nv_cndmask_b32 v{aQ4+i}, v7, v5, vcc")
def suC():
    a(f"s_mul_i32 s0, s{sTA}, {16*PITCH}\ns_movk_i32 s1, {PITCH}")
    a("v_bfe_u32 v3, v0, 2, 3\nv_lshrrev_b32 v4, 5, v0\nv_lshl_add_u32 v3, v3, 1, v4")
    a(f"s_add_u32 s3, s0, {VB}\nv_mov_b32 v4, s3\nv_mad_u32_u24 v3, v3, s1, v4\nv_and_b32 v4, 3, v0")
    smask(54, lanes(lambda l: l & 3 == 0))
    a(f"v_add_u32 v5, s51, v4\nv_lshl_add_u32 v{aVe}, v5, 3, v3\nv_add_u32 v7, 32, v{aVe}")
    a(f"s_cmp_eq_u32 s50, 1\ns_cselect_b32 s3, -1, 12\ns_cselect_b32 s56, 2, -1")
    a(f"v_add_u32 v5, s3, v4\nv_lshl_add_u32 v5, v5, 3, v3\nv_cndmask_b32 v{aV1}, v5, v7, s[54:55]\nv_add_u32 v7, 40, v7")
    a(f"v_add_u32 v5, s56, v4\nv_add_u32 v6, 10, v5\nv_cmp_gt_i32 vcc, s51, v5"); a(f"v_cndmask_b32 v5, v6, v5, vcc\nv_lshl_add_u32 v5, v5, 3, v3\nv_cndmask_b32 v{aV2}, v5, v7, s[54:55]")
    a(f"s_lshl_b32 s0, s{sTA}, 8\nv_lshrrev_b32 v4, 5, v0\nv_and_or_b32 v3, v0, 8, v4\ns_add_u32 s3, s0, {STATS + 8}\nv_lshl_add_u32 v{aRK}, v3, 4, s3")
    a(f"v_and_b32 v1, 15, v0\ns_add_u32 s3, s0, {STATS + 128 + 4}\nv_lshl_add_u32 v{aCQ}, v1, 4, s3")
    a(f"s_lshr_b32 s3, s{sB0}, 8\ns_mul_i32 s3, s3, 52429\ns_lshr_b32 s3, s3, 18\ns_lshl_b32 s0, s{sTP}, 5\ns_add_u32 s3, s3, s0\ns_sub_u32 s3, 2047, s3\nv_mad_i32_i24 v{vRK}, v1, -2, s3")
def octaddr(d, tile, rowq, extra):
    a(f"s_lshl_b32 s3, s{tile}, 4\nv_add_u32 v5, s3, v{rowq}\ns_lshl_b32 s3, s{sNO}, 3\nv_cmp_gt_u32 vcc, s3, v5")
    a(f"v_mul_u32_u24 v5, 2560, v5\nv_add3_u32 v5, v5, v{extra}, s{sB0}\nv_cndmask_b32 v{d}, v6, v5, vcc")
def suD(helper=1):
    a(f"v_lshrrev_b32 v2, 4, v0\nv_and_or_b32 v3, v0, 8, v2\nv_and_b32 v4, 0x70, v{aL16}\nv_bfrev_b32 v6, 1")
    if helper: octaddr(aOl2, sTS, 3, 4)
    octaddr(aOl, sTA, 3, 4)
    if G2 and not helper: a("v_cndmask_b32 v7, v6, 0, vcc"); octaddr(aOl, sT, 3, 4)
    a(f"s_lshl_b32 s3, s{sC}, 7\nv_add_u32 v{aOs}, s3, v{aOl}")
    if G2 and helper: return
    a(f"v_bfe_u32 v3, v0, 4, 1\nv_cmp_eq_u32 s[54:55], s50, v3\ns_cmp_lg_u32 s{sC5}, 0\ns_cselect_b64 s[0:1], -1, s[54:55]\ns_and_b64 vcc, vcc, s[0:1]")
    a(f"s_cmp_lg_u32 s{sC5}, 4\ns_cselect_b64 s[0:1], 0, s[54:55]\ns_andn2_b64 vcc, vcc, s[0:1]")
    a(f"v_cndmask_b32 v{aH0l}, v6, v{aOs}, vcc")
    a(f"s_cmp_le_u32 s{sC5}, 3\ns_cselect_b32 s3, 2560, 0\ns_sub_u32 s3, s3, 128\nv_mov_b32 v4, s3"); a(f"s_cmp_ge_u32 s{sC5}, 2\ns_cselect_b32 s3, 2560, 0\ns_add_u32 s3, s3, 128\nv_mov_b32 v5, s3")
    a(f"v_cndmask_b32 v4, v4, v5, s[54:55]\nv_mul_u32_u24 v3, 2560, v3\nv_sub_u32 v4, v4, v3"); a(f"v_add_u32 v4, v4, v{aOs}\nv_cndmask_b32 v{aH0s}, v6, v4, vcc")
    if G2:
        for k, r in enumerate((aOs, aH0l, aH0s)): a(f"v_or_b32 v{aWO+k}, v7, v{r}")
        a(f"s_sub_u32 s3, s{sTA}, s{sT}\ns_mul_i32 s61, s3, 40960\ns_add_u32 s68, s61, 10240\ns_mul_i32 s0, s3, {16*PITCH}\ns_lshl_b32 s1, s3, 8")
        for r in (aKx, aKy, aK4, aV1, aV2): a(f"v_subrev_u32 v{r}, s0, v{r}")
        for r in (aRK, aCQ): a(f"v_subrev_u32 v{r}, s1, v{r}")
        a(f"s_cmp_lt_u32 s{sWV}, 2\ns_cbranch_scc1 L_q2")
        for d, r in zip(QUP, QLO): a(f"v_mov_b32 v{d}, v{r}\nv_mov_b32 v{d+1}, v{r+1}")
        a("L_q2:")
        for r in QLO:
            for e in range(2): a(f"v_subrev_u32 v{r+e}, s0, v{r+e}\nv_max_i32 v{r+e}, {ZR}, v{r+e}")
def wlane():
    a("v_bfe_u32 v3, v0, 3, 2\nv_lshlrev_b32 v3, 2, v3\nv_and_or_b32 v3, v0, 3, v3"); a("v_lshlrev_b32 v3, 3, v3\nv_bfe_u32 v4, v0, 2, 2\nv_lshl_add_u32 v3, v4, 7, v3")
def suE(helper=1):
    a("v_and_b32 v1, 15, v0\nv_bfrev_b32 v6, 1\nv_bfe_u32 v3, v0, 4, 1\nv_lshrrev_b32 v4, 5, v0"); a(f"v_lshl_add_u32 v3, v3, 1, v4\ns_lshl_b32 s3, s{sC}, 7\nv_lshl_add_u32 v4, v3, 4, s3")
    octaddr(aOUT, sTP, 1, 4)
    wlane()
    a("v_lshrrev_b32 v2, 4, v0")
    if helper:
        a(f"s_and_b32 s3, s{sWV}, 1\ns_lshl_b32 s3, s3, 12\ns_add_u32 s3, s3, {WOB}\nv_lshl_add_u32 v4, v2, 10, v3\nv_add_u32 v{aWO}, s3, v4")
        for ct in range(1, 4): a(f"v_xor_b32 v{aWO+ct}, {32*ct}, v{aWO}")
    for r in range(4): smask(sM + 2 * r, MASK[r])
    a(f"s_movk_i32 s{sLT}, 10240\ns_mov_b32 s{sP1}, 0x07060501\ns_mov_b32 s{sP2}, 0x0706000c")
    a("v_mov_b32 v5, 0xffff\nv_mov_b32 v6, 0xffff0000")
    for d in range(2): a(f"v_cndmask_b32 v1, 0, v5, s[{sM+4*d}:{sM+4*d+1}]\nv_cndmask_b32 v4, 0, v6, s[{sM+4*d+2}:{sM+4*d+3}]\nv_or_b32 v{vM+d}, v1, v4")
KQ, SS, KS, PX, FL_, FE, VF, HL, CQ, TM, F01 = 96, 152, 168, 176, 192, 196, 64, 92, 5, 6, 2
DM, LT, QF = SS, 80, KQ + 20
H, OF, WOF, RING = 8, 24, 104, 6
DEP = OPT["dep"]
def capt(slot, d=XR):
    a(f"v_add_u32 v1, {slot}, v{aXC}")
    for ct in range(4):
        if ct: a(f"v_xor_b32 v{1+ct}, {32*ct}, v1")
        a(f"ds_read_b64 {V(d+2*ct,2)}, v{1+ct}")
def hinit(d=XR):
    for i in range(8): a(f"v_lshlrev_b32 v{H+2*i}, 16, v{d+i}\nv_and_b32 v{H+2*i+1}, 0xffff0000, v{d+i}")
def ldWR():
    a(f"v_lshrrev_b32 v1, 4, v0\nv_lshlrev_b32 v1, 3, v1\ns_lshl_b32 s3, s{sC}, 7")
    for ct in range(4): a(f"buffer_load_dwordx2 {V(WRF+2*ct,2)}, v1, {S(WR)}, s3 offen offset:{32*ct}")
def wrprep(t):
    a(f"s_mov_b32 s3, {ONES:#x}")
    for i in range(4): a(f"v_mov_b32 v{t+i}, s3")
    execset(0x1111111111111111)
    for i in range(8): a(f"v_mov_b32 v{WRF+i}, s3")
    execset(-1)
    for k in range(2): mfma(WSP, WRF + 4 * k, t, "0" if k == 0 else None)
def pzero(lo=0, hi=16):
    for i in range(lo, hi): a(f"v_mov_b32 v{PX+i}, 0")
def ksread(e=None, dt=0):
    e = e or a
    a(f"v_add_u32 v1, 128, v{aRK}")
    for r in range(4):
        e(f"v_cndmask_b32 v4, v1, v{aRK}, s[{sM+2*r}:{sM+2*r+1}]\nds_read_b64 {V(KS+2*r,2)}, v4 offset:{32*r + 256*dt}")
    e(f"ds_read_b32 v{CQ}, v{aCQ} offset:{256*dt}")
def rdmode(): a(f"v_mov_b32 v1, {MODE}\nds_read_b32 v1, v1\ns_waitcnt lgkmcnt(0)\nv_readfirstlane_b32 s{sMODE}, v1")
def gsync_h(poll):
    l = a.label("gh")
    a(f"s_cmp_eq_u32 s{sMODE}, 1\ns_cbranch_scc0 {l}g\n{l}b:")
    t = f"{l}g:\ns_barrier\n"
    if poll:
        t += f"s_cmp_eq_u32 s{sWV}, 5\ns_cbranch_scc0 {l}e\nv_mov_b32 v1, 1\ns_mov_b64 exec, 1\nbuffer_store_dword v1, off, {S(WS)}, s{sFO} offset:64 sc1\ns_mov_b64 exec, -1\n"
        t += f"{l}p:\nbuffer_load_dword v1, v{vEA}, {S(WS)}, 0 offen offset:64 sc1\ns_waitcnt vmcnt(0)\nv_cmp_ne_u32 vcc, 1, v1\ns_cbranch_vccz {l}e\ns_sub_u32 s{sBUD}, s{sBUD}, 1\ns_cbranch_scc0 {l}p\ns_mov_b32 s{sBUD}, 0\n{l}e:\n"
    DEFER.append(t + f"s_barrier\ns_branch {l}b")
def weave(P, xs):
    xs = list(xs); per = -(-len(xs) // len(P))
    for p in P:
        a(p)
        for _ in range(per):
            if xs: a(xs.pop(0))
a("v_mov_b32 v254, v4")
suA()
a(f"s_cmp_lt_u32 s{sWV}, 4\ns_cbranch_scc1 L_cons")
vW, vT = 24, 56
STR = {5: 0, 3: 1, 13: 2, -3: 3, -13: 4}
def wo_setup(vT=vT):
    a(f"v_lshrrev_b32 v1, 3, v0\nv_and_b32 v2, 2, v1\nv_xor_b32 v2, v2, v0\ns_lshl_b32 s3, s{sWV}, 2\nv_xor_b32 v2, s3, v2")
    a(f"v_and_b32 v2, 7, v2\ns_lshl_b32 s3, s{sC}, 7\nv_lshl_add_u32 v2, v2, 4, s3")
    a(f"v_and_b32 v3, 3, v1\nv_mul_u32_u24 v3, 1280, v3\nv_add_u32 v2, v3, v2")
    a(f"v_lshrrev_b32 v3, 5, v0\nv_mul_u32_u24 v3, 5120, v3\nv_sub_u32 v4, 5120, v3")
    for d, i in STR.items(): a(f"v_mad_u32_u24 v{vT+i}, v{3 + (d < 0)}, {abs(d)}, v2")
def wo_quads(cp, h, g):
    c5 = cp % 5
    if h == 0: return 5 - c5 + g, 10 - c5 + g
    if g == 0: return 9 - c5, 14 - c5
    i = g - 1
    p = 3 + i if c5 <= 2 else i
    return (i if c5 <= 2 else 13 + i), (p if p < 5 - c5 else 10 + p)
def wo_piece(st, g):
    h, cp = st // 10, st % 10
    q0, q1 = wo_quads(cp, h, g or 0)
    t = f"s_lshl_b32 s3, s{sT}, 10\ns_add_u32 m0, s3, {WOB}" if st == 0 else "s_addk_i32 m0, 4096"
    o = (64*cp + 4*min(q0, q1)) * 1280
    t += f"\ns_add_u32 s3, s{sPF}, {o}" if g is None else f"\ns_mov_b32 s3, {o}"
    return t + f"\nbuffer_load_dwordx4 v{vT + STR[q1 - q0]}, {S(WO)}, s3 offen lds"
def wo_late(lo, w, vT):
    for st in range(lo, 20):
        for g in (w, w + 2):
            q0, q1 = wo_quads(st % 10, st // 10, g)
            a(f"s_mov_b32 m0, {WOB + 4096*st + 1024*g}" if (st, g) == (lo, w) else "s_addk_i32 m0, 2048")
            a(f"s_mov_b32 s3, {(64*(st % 10) + 4*min(q0, q1)) * 1280}\nbuffer_load_dwordx4 v{vT + STR[q1 - q0]}, {S(WO)}, s3 offen lds")
def wo_run(lo, hi, tag):
    for st in range(lo, min(hi, 10)): a(wo_piece(st, None))
    lo = max(lo, 10)
    if lo >= hi: return
    for g in range(1, 4):
        a(f"s_cmp_eq_u32 s{sT}, {g}\ns_cbranch_scc1 L_wo{tag}{g}")
        DEFER.append(f"L_wo{tag}{g}:\n" + "\n".join(wo_piece(st, g) for st in range(lo, hi)) + f"\ns_branch L_wo{tag}")
    for st in range(lo, hi): a(wo_piece(st, 0))
    a(f"L_wo{tag}:")
N0 = OPT["n0"]; NA = N0 + OPT["na"]; NB = NA + OPT["nb"]; N1 = NB + OPT["n1"]
assert (NA == 10 and N1 == 20 if G2 else 2 * DEP <= N0 <= N1 <= 20)
vTC = 61
def touch_setup():
    a(f"s_mul_i32 s3, s{sT}, 3\nv_lshrrev_b32 v1, 2, v0\nv_add_u32 v1, s3, v1\ns_add_u32 s3, s3, 3\ns_min_u32 s3, s3, s{sNO}\nv_cmp_gt_u32 vcc, s3, v1\nv_and_b32 v2, 3, v0\nv_lshl_add_u32 v1, v1, 3, v2")
    a(f"v_mul_u32_u24 v1, 2560, v1\ns_lshl_b32 s0, s{sC}, 7\ns_add_u32 s3, s0, s{sB0}\nv_add_u32 v1, s3, v1\nv_bfrev_b32 v2, 1\nv_cndmask_b32 v{vTC}, v2, v1, vcc")
    a(f"s_mul_i32 s3, s{sT}, 3\nv_min_u32 v1, 2, v0\nv_add_u32 v1, s3, v1\nv_lshrrev_b32 v2, 1, v1\nv_mul_u32_u24 v2, {2560 - 256}, v2\nv_lshl_add_u32 v1, v1, 7, v2")
    a(f"s_mul_i32 s3, s{sGID}, 15360\ns_lshl_b32 s0, s{sC}, 8\ns_add_u32 s3, s3, s0\ns_add_u32 s3, s3, {E2}\nv_add_u32 v{vTC+2}, s3, v1")
    if OPT["mt"]:
        R = 64 * (10 - OPT["mx"]); per = -(-2 * R // 30)
        a(f"s_mul_i32 s3, s{sU}, {per}\nv_min_u32 v1, {per-1}, v0\nv_add_u32 v1, s3, v1\nv_min_u32 v1, {2*R-1}, v1\nv_cmp_le_u32 vcc, {R}, v1\nv_mul_u32_u24 v1, 3072, v1")
        a(f"s_mul_i32 s3, s{sJ}, 384\ns_add_u32 s3, s3, {64*OPT['mx']*3072}\nv_add_u32 v1, s3, v1\nv_subrev_u32 v2, {(R + 320)*3072 - 256}, v1\nv_cndmask_b32 v1, v1, v2, vcc")
        a(f"s_mul_i32 s3, s{sJ}, 60\ns_lshl_b32 s0, s{sU}, 1\ns_add_u32 s3, s3, s0\ns_and_b32 s0, s{sWV}, 1\ns_add_u32 s3, s3, s0\ns_lshl_b32 s3, s3, 12\nv_min_u32 v2, 31, v0\nv_lshl_add_u32 v2, v2, 7, s3")
        a(f"s_cmp_ge_u32 s{sWV}, 6\ns_cselect_b64 vcc, -1, 0\nv_cndmask_b32 v{vMT}, v1, v2, vcc")
vMT = 84
def mtouch(p):
    if OPT["mt"] == p: a(f"global_load_dword v{vMT}, v{vMT}, s[{sMT}:{sMT+1}]")
def touch(p):
    if p == OPT["tl"]: a(f"buffer_load_dword v{vTC+1}, v{vTC}, {S(OUT)}, s{sLT} offen")
    if p == OPT["te"]: a(f"buffer_load_dword v{vTC+1}, v{vTC}, {S(OUT)}, 0 offen")
    if p == OPT["t2"]: a(f"buffer_load_dword v{vTC+2}, v{vTC+2}, {S(WS)}, 0 offen")
def early_touch(i):
    n = sum(OPT[k] == 10 + i for k in ("te", "tl", "t2", "mt"))
    touch(10 + i); mtouch(10 + i)
    return n
NT = sum(OPT[k] in (0, 1) for k in ("te", "tl", "t2")) + (OPT["mt"] in (1, 2, 5))
NT2 = sum(OPT[k] == 2 for k in ("te", "tl", "t2")) + (OPT["mt"] == 3)
def xstart(i): nextslab(); a(f"s_lshl_b32 s{sXO}, s{sSB}, 7\ns_mov_b32 s{sSL}, {S0 + SLOT*(i % 4)}")
xstart(1)
if OPT["x1"] == 0: a(f"s_cmp_eq_u32 s{sWV}, 4\ns_cbranch_scc1 L_n1"); xissue(); a("L_n1:")
suB(); suC()
stamp(0, 5)
suD(); suE(); wo_setup(); touch_setup(); pzero(0, 8 if G2 else 16)
vEX, vXF, vWF, vLA = XR + 1, XR + 2, XR + 3, XR + 5
def ltaddr(d): a(f"s_lshl_b32 s0, s{sT}, 8\ns_add_u32 s0, s0, {LTB}\nv_add_u32 v{d}, s0, v{aL16}\ns_lshl_b32 s0, s{sT}, 2\ns_add_u32 s0, s0, {LFL}\nv_mov_b32 v{d+1}, s0")
if G2: ltaddr(vLA)
a(f"s_lshl_b32 s0, s{sT}, 12\ns_add_u32 s0, s0, {EX}\nv_add_u32 v{vEX}, s0, v{aL16}\ns_and_b32 s0, s{sT}, 2\ns_lshl_b32 s0, s0, 1\ns_add_u32 s0, s0, {XFL}\nv_mov_b32 v{vXF}, s0\nv_mov_b32 v{vWF}, {WFL}\nv_cmp_eq_u32 vcc, 0, v0\nv_cndmask_b32 v{vWF+1}, 0, 1, vcc")
a(f"s_cmp_eq_u32 s{sWV}, 4\ns_cbranch_scc1 L_h0")
E1_, E2_ = OPT["e1"], OPT["e2"]
assert 1 <= E1_ and E1_ + 2 <= E2_ <= 4
vXA = vEV
a(f"v_mov_b32 v4, {ONES:#x}\nv_mov_b32 v5, v4\nv_lshrrev_b32 v1, 4, v0\nv_mul_u32_u24 v1, {SLOT - 128}, v1\nv_lshl_add_u32 v1, v0, 3, v1\nds_write_b64 v1, v[4:5] offset:{S0}")
a(f"s_sub_u32 s0, s{sWV}, 5\ns_mul_i32 s3, s{sGID}, 3\ns_add_u32 s3, s3, s0\ns_mul_i32 s3, s3, 2560\ns_add_u32 s{sSPL}, s3, {SP}")
a(f"s_mul_i32 s3, s{sG}, 1280\ns_add_u32 s3, s3, s{sRJ}\ns_add_u32 s{sPF}, s3, {R_FL}\nv_min_u32 v1, 9, v0\nv_lshl_add_u32 v{vEA}, v1, 7, s{sPF}\ns_lshl_b32 s{sFO}, s{sC}, 7\ns_add_u32 s{sFO}, s{sFO}, s{sPF}")
a(f"v_and_b32 v1, 15, v0\nv_lshrrev_b32 v2, 5, v0\nv_lshl_add_u32 v2, v2, 4, v1\ns_lshl_b32 s0, s0, 5\nv_add_lshl_u32 v{vSTW}, v2, s0, 4")
a(f"v_lshrrev_b32 v2, 4, v0\nv_lshrrev_b32 v3, 1, v1\nv_xor_b32 v3, v3, v2\nv_lshlrev_b32 v3, 4, v3\nv_lshl_add_u32 v3, v1, 7, v3\nv_add_u32 v{vXA}, s{sLX}, v3")
a(f"s_cmp_lt_u32 s{sB0}, 2560\ns_cselect_b32 s3, 128, 0\nv_mov_b32 v1, 0xf149f2ca\nv_cmp_gt_u32 vcc, s3, v{vSTW}\nv_cndmask_b32 v{vBIA}, 0, v1, vcc")
stamp(1, 5)
if OPT["xprio"]: a(f"s_setprio {OPT['xprio']}")
if OPT["x1"] == 2: xissue()
if not OPT["wrl"]: ldWR()
for k in range(4): a(f"v_mov_b32 v{64+k}, {ONES:#x}")
if OPT["dbg"] & 64: a(f"s_lshl_b32 s3, s{sC}, 8\ns_add_u32 s3, s3, s{sSPL}\ns_mov_b64 exec, 0xffff\nbuffer_store_dwordx4 v[64:67], v{aL16}, {S(WS)}, s3 offen sc1\ns_mov_b64 exec, -1")
a(f"s_waitcnt vmcnt({(0 if OPT['wrl'] else 4) + (0 if OPT['x1'] == 3 else 4)}) lgkmcnt(0)")
stamp(2, 5)
def part_stats():
    PD = 96
    a(f"v_xor_b32 v1, 64, v{vXA}")
    for t in range(2):
        for ks in range(2): a(f"ds_read_b128 {V(vXD+8*t+4*ks,4)}, v{1 if ks else vXA} offset:{S0 + 2048*t}")
    a(f"s_lshl_b32 s3, s{sC}, 8\ns_add_u32 s3, s3, s{sSPL}\nv_and_b32 v2, 0xf0, v{aL16}\ns_mov_b32 s0, 0xaaaaaaaa\ns_mov_b32 s1, s0\ns_mov_b32 vcc_lo, 0xcccccccc\ns_mov_b32 vcc_hi, 0xcccccccc")
    for t in range(2):
        for ks in range(2):
            a(f"s_waitcnt lgkmcnt({3 - 2*t - ks})")
            mfma(PD + 8 * t, vXD + 8 * t + 4 * ks, vXD + 8 * t + 4 * ks, None if ks else "0")
            mfma(PD + 8 * t + 4, 64, vXD + 8 * t + 4 * ks, None if ks else "0")
    for t in range(2):
        d = PD + 8 * t
        a(f"v_cndmask_b32 v{d}, v{d}, v{d+1}, s[0:1]\nv_cndmask_b32 v{d+2}, v{d+2}, v{d+3}, s[0:1]\nv_cndmask_b32 v{vSUM+2*t+1}, v{d}, v{d+2}, vcc\nv_mov_b32 v{vSUM+2*t}, v{d+4}")
    execset(0xF0000F0000F0000F)
    a(f"buffer_store_dwordx4 {V(vSUM,4)}, v2, {S(WS)}, s3 offen sc1")
    execset(-1)
    for i in range(4): a(f"v_mov_b32 v{vXD+8+i}, 0")
def only5(tag, fn):
    a(f"s_cmp_eq_u32 s{sWV}, 5\ns_cbranch_scc0 L_o5{tag}"); fn(); a(f"L_o5{tag}:")
def evchk(tag, cmp_, ld):
    a(f"s_waitcnt lgkmcnt(0)\n{cmp_}\ns_cbranch_scc0 L_er{tag}\nL_eg{tag}:")
    DEFER.append(f"L_er{tag}:\ns_sub_u32 s{sBUD}, s{sBUD}, 1\ns_cbranch_scc1 L_ex{tag}\n{ld}\ns_waitcnt lgkmcnt(0)\n{cmp_}\ns_cbranch_scc0 L_er{tag}\ns_branch L_eg{tag}\nL_ex{tag}:\ns_mov_b32 s{sBUD}, 0\ns_branch L_eg{tag}")
FR = [71, 73, 75, 77, 83, 85, 89, 91, 93, 95]
ldroot = f"s_lshl_b32 s0, s{sJ}, 5\nv_and_b32 v1, 16, v0\nbuffer_load_dword v{vSUM+4}, v1, {S(DBG)}, s0 offen sc1"
ldflag = "\n".join(f"s_buffer_load_dword s{r}, {S(WS)}, s{sPF} offset:{128*k} glc" for k, r in enumerate(FR))
for i in range(9):
    a("s_barrier")
    stamp(3 + i, 5)
    ex = 0
    if i == E1_ + 1:
        def f():
            evchk("a", f"v_cmp_ne_u32 vcc, 1, v{vSUM+4}\ns_cmp_eq_u64 vcc, 0", ldroot + "\ns_waitcnt vmcnt(0)")
            a(f"s_getreg_b32 s0, hwreg(HW_REG_XCC_ID, 0, 4)\nv_mov_b32 v1, s0\ns_mov_b64 exec, 1\nbuffer_store_dword v1, off, {S(WS)}, s{sFO} sc1\ns_mov_b64 exec, -1")
        only5("c", f)
    if i == E2_ + 2:
        for k in range(3):
            if k == 2: a("s_mov_b32 exec_hi, 0")
            if OPT["dbg"] & 16: a(f"s_mov_b32 s{sSPL}, {OOB:#x}")
            a(f"buffer_load_dwordx4 {V(vXD+4*k,4)}, v{aL16}, {S(WS)}, s{sSPL} offen offset:{1024*k} sc1")
        a("s_mov_b32 exec_hi, -1"); ex += 3
    if i == 0: part_stats(); ex += 1
    if i == 1 and OPT["wrl"]: ldWR(); ex += 4
    ex += early_touch(i)
    if OPT["pf0"] & 1 and OPT["pfp"] % 10 == i + 2:
        a(f"s_mul_i32 s3, s2, 3\ns_add_u32 s3, s3, s{sWV}\ns_sub_u32 s3, s3, 5\ns_mul_i32 s3, s3, {9*128}\nv_lshlrev_b32 v1, 7, v0\ns_mov_b64 exec, 0x1ff\nbuffer_load_dword v255, v1, {S(WO)}, s3 offen\ns_mov_b64 exec, -1"); ex += 1
    if i < 8: xstart(i + 2); xissue()
    if i:
        a(f"s_cmp_eq_u32 s{sXT}, {i}\ns_cbranch_scc0 L_xc{i}\ns_mov_b32 s0, {S0 + SLOT * (i % 4)}\ns_call_b64 s[100:101], L_xcap\nL_xc{i}:")
    if i == E2_ + 1:
        def f():
            evchk("b", f"s_max_u32 s0, s{FR[0]}, s{FR[1]}\n" + "\n".join(f"s_max_u32 s0, s0, s{r}" for r in FR[2:]) + "\ns_cmp_lg_u32 s0, -1", ldflag)
            a(f"s_min_u32 s1, s{FR[0]}, s{FR[1]}\n" + "\n".join(f"s_min_u32 s1, s1, s{r}" for r in FR[2:]) + f"\ns_cmp_eq_u32 s0, s1\ns_cselect_b32 s0, {OPT['fmode']}, 0")
            a(f"v_mov_b32 v1, {MODE}\nv_mov_b32 v2, s0\nds_write_b32 v1, v2")
        only5("d", f)
    if i == E2_ + 3:
        a(f"s_waitcnt vmcnt({8 + ex})")
        for k in (4, 8):
            for e in range(4): a(f"v_add_f32 v{vXD+e}, v{vXD+e}, v{vXD+k+e}")
        a(f"v_permlane32_swap_b32 v{vXD}, v{vXD+2}\nv_permlane32_swap_b32 v{vXD+1}, v{vXD+3}\nv_add_f32 v{vXD}, v{vXD}, v{vXD+2}\nv_add_f32 v{vXD+1}, v{vXD+1}, v{vXD+3}")
        a(f"v_mov_b32 v{vXD+2}, v{vXD}\nv_mov_b32 v{vXD+3}, v{vXD+1}\ns_mov_b32 s1, 0x3acccccd\nv_mov_b32 v1, 0x3727c5ac")
        a(f"v_permlane16_swap_b32 v{vXD}, v{vXD+2}\nv_permlane16_swap_b32 v{vXD+1}, v{vXD+3}\nv_add_f32 v{vXD}, v{vXD}, v{vXD+2}\nv_add_f32 v{vXD+1}, v{vXD+1}, v{vXD+3}")
        a(f"v_mul_f32 v{vXD}, 0xbacccccd, v{vXD}\nv_fma_f32 v2, v{vXD+1}, s1, v1\nv_fma_f32 v2, -v{vXD}, v{vXD}, v2\nv_max_f32 v2, v2, v1\nv_rsq_f32 v{vXD+1}, v2\nv_mov_b32 v{vXD+3}, v{vBIA}\nv_mov_b32 v{vXD+2}, v{vXD+1}")
        a(f"ds_write_b128 v{vSTW}, {V(vXD,4)} offset:{STATS}")
    if 1 <= i <= 6 and OPT["pg"]:
        a(f"s_cmp_eq_u32 s{sWV}, 7\ns_cbranch_scc0 L_wm{i}"); warm("h", i - 1, 6); a(f"L_wm{i}:")
    if i == 0: pagebreak("c0")
    if i == 7 and OPT["wsp"]: pagebreak("h")
    if i == 8: break
    if i == E1_ + 1: a(f"s_cmp_eq_u32 s{sWV}, 5\ns_cbranch_scc1 L_w5{i}\ns_waitcnt vmcnt({4 + ex})\nL_w5{i}:"); ex += 1
    a(f"s_waitcnt vmcnt({4 + ex}) lgkmcnt(0)")
    if i == E1_ - 1: only5("a", lambda: a(ldroot))
    if i == E2_: only5("b", lambda: a(ldflag))
    if OPT["wsp"] and i >= OPT["ws0"]:
        LQ = [(cp, q) for cp in range(5) for g in range(4) for q in wo_quads(cp, 1, g)]
        part = LQ[OPT["wsp"] * (i - OPT["ws0"]):OPT["wsp"] * (i - OPT["ws0"] + 1)]
        if part:
            if i == OPT["ws0"]: a(f"s_mul_i32 s3, s{sG}, 3\ns_add_u32 s3, s3, s{sWV}\ns_sub_u32 s3, s3, 5\ns_lshr_b32 s0, s3, 2\ns_mul_i32 s0, s0, 316\ns_add_u32 s3, s3, s0\ns_mul_i32 s3, s3, 1280\ns_lshl_b32 s0, s{sC}, 7\ns_add_u32 s{sRD}, s3, s0")
            for cp, q in part:
                for o in (0, 64): a(f"s_buffer_load_dword s79, {S(WO)}, s{sRD} offset:{(64*cp + 4*q)*1280 + o}")
    if i == 2 and OPT["ppr"]:
        a(f"s_lshl_b32 s3, s{sC}, 8\ns_add_u32 s3, s3, s{sSPL}")
        for k in range(4): a(f"s_buffer_load_dword s75, {S(WS)}, s3 offset:{64*k}")
a(f"L_h8:\ns_mul_i32 s{sPF}, s{sT}, 5120")
mtouch(4)
wo_run(0, N0, "a")
mtouch(5)
ksread(); rdmode()
if OPT['hp'] == 0: hinit(72); wrprep(64)
a(f"s_waitcnt vmcnt({N0 + (OPT['mt'] in (4, 5))})")
stamp(2)
a("s_barrier")
stamp(3); stamp(9, 2); stamp(0, 3)
if not OPT['clr']: gsync_h(1)
wo_run(N0, NA, "d")
touch(0)
mtouch(1)
if OPT['hp'] == 1: hinit(72); wrprep(64)
sO, sDW = 61, 65
a(f"s_and_b32 s3, s{sWV}, 1\ns_lshl_b32 s{sO}, s3, 7\ns_xor_b32 s{sO+1}, s{sO}, 128\ns_add_u32 s{sO+2}, s{sO+1}, s{sLT}\ns_add_u32 s{sO+3}, s{sO}, s{sLT}\ns_lshl_b32 s3, s3, 13\ns_sub_u32 s{sDW}, 4096, s3")
DEFER.append("L_xcap:\n" + "\n".join(capture(lambda: capt("s0", 72))) + "\ns_setpc_b64 s[100:101]")

def rdWO1(s, ct, e):
    t = ""
    if e == 0 and s in (5, 10, 15): t = {5: f"v_add_u32 v{aWO+ct}, s{sDW}, v{aWO+ct}", 10: f"v_add_u32 v{aWO+ct}, 40960, v{aWO+ct}", 15: f"v_subrev_u32 v{aWO+ct}, s{sDW}, v{aWO+ct}"}[s] + "\n"
    return t + f"ds_read_b64_tr_b16 {V(WOF + 16*(s % RING) + 4*ct + 2*e, 2)}, v{aWO+ct} offset:{8192*(s % 5) + 512*e}"
SF = 15 - OPT["sf"]
OL = [(s, w) for s in range(SF) for w in range(2 if s >= 5 else 1)] + [(s, 1) for s in range(SF, 15)] + [(s, 0) for s in range(SF, 20)]
if G2:
    LG = OPT["lag"]
    OL = [(s, 0) for s in range(5 + LG)] + [o for s in range(5, 10) for o in [(s, 1)] + ([(s + LG, 0)] if s + LG < 10 else [])] + [(s, 1) for s in range(10, 15)] + [(s, 0) for s in range(10, 20)]
def oreg(k): return OF + 4 * (k % (20 if not OPT["dbg"] & 2 else OPT["ou"]))
def ldO(k):
    s, w = OL[k]
    a(f"buffer_load_dwordx4 {V(oreg(k),4)}, v{aOl2 if w else aOl}, {S(OUT)}, s{sO + s // 5} offen offset:{256*(s % 5)} sc1")
def spin(tag, addr, cmp_, slp=0):
    a(f"{cmp_}\ns_cbranch_vccnz L_sp{tag}\nL_sb{tag}:")
    DEFER.append(f"L_sp{tag}:\n" + (f"s_sleep {slp}\n" if slp else "") + f"v_mov_b32 v1, {addr}\nds_read_b32 v1, v1\ns_waitcnt lgkmcnt(0)\n{cmp_}\ns_cbranch_vccnz L_sp{tag}\ns_branch L_sb{tag}")
def fold(A, B, F):
    for r in range(4): a(f"v_permlane16_swap_b32 v{A+r}, v{B+r}")
    for r in range(4): a(f"v_cndmask_b32 v{F[r]}, v{B+r}, v{A+r}, s[{sM+2*r}:{sM+2*r+1}]")
def softmax(F, P, mid=None, mid2=None):
    m, t = TM, TM + 1
    for r in range(4): a(f"v_fma_f32 v{F+r}, v{F+r}, v{KS+2*r}, v{KS+2*r+1}")
    a(f"v_max3_f32 v{m}, v{F}, v{F+1}, v{F+2}\nv_max_f32 v{m}, v{m}, v{F+3}\nv_mov_b32 v{t}, v{m}\nv_permlane32_swap_b32 v{m}, v{t}\nv_max_f32 v{m}, v{m}, v{t}\nv_mul_f32 v{m}, v{m}, v{CQ}")
    for r in range(4): a(f"v_fma_f32 v{F+r}, v{F+r}, v{CQ}, -v{m}")
    for r in range(4): a(f"v_exp_f32 v{F+r}, v{F+r}")
    if mid: mid()
    a(f"v_add_f32 v{m}, v{F}, v{F+1}\nv_add_f32 v{t}, v{F+2}, v{F+3}\nv_add_f32 v{m}, v{m}, v{t}\nv_mov_b32 v{t}, v{m}\nv_mul_f32 v{F}, v{F}, v{KS}\nv_mul_f32 v{F+1}, v{F+1}, v{KS+2}")
    a(f"v_permlane32_swap_b32 v{m}, v{t}\nv_mul_f32 v{F+2}, v{F+2}, v{KS+4}\nv_add_f32 v{m}, v{m}, v{t}\nv_rcp_f32 v{m}, v{m}\nv_mul_f32 v{F+3}, v{F+3}, v{KS+6}")
    for r in range(4): a(f"v_mul_f32 v{F+r}, v{F+r}, v{m}")
    a(f"v_cvt_pk_bf16_f32 v{F}, v{F}, v{F+1}\nv_cvt_pk_bf16_f32 v{F+1}, v{F+2}, v{F+3}")
    if mid2: mid2()
    for hh in range(2):
        a(f"s_mov_b64 exec, s[{sLO}:{sLO+1}]" if hh == 0 else "s_not_b64 exec, exec")
        for d in range(2): a(f"v_and_b32 v{P+2*hh+d}, v{vM+d}, v{F+d}\nv_bfi_b32 v{P+4+2*hh+d}, v{vM+d}, 0, v{F+d}")
    a("s_mov_b64 exec, -1")
    for d in range(4): a(f"v_permlane16_swap_b32 v{P+d}, v{P+4+d}")
def ymask():
    a(f"s_add_u32 s0, s{sC5}, 1\ns_sub_u32 s1, 5, s{sC5}\ns_min_u32 s0, s0, s1\ns_lshl_b32 s0, s0, 4\ns_sub_u32 s1, 64, s0\ns_cmp_le_u32 s{sC5}, 2\ns_cselect_b32 s1, s1, 16\ns_bfm_b64 s[100:101], s0, s1")
def attention(T):
    helper = T == "h"; doL = T != "e"; doE = T != "l"
    L.reset()
    rid = {}
    KR = ((aKx, 0), (aKy, 0), (aK4, 0), (aKe, 0), (aKe, 40))
    QR = ((aQx, 0, 0), (aQy, 0, 1), (aQ4, 0, 2), (aQe, 0, 3), (aQe, 40, 4), (aQ4 + 2, 0, 2), (aQ4 + 4, 0, 2))
    def rk(i):
        k, o = KR[i]; d = KQ + 4 * i
        L(f"ds_read_b64 {V(d,2)}, v{k} offset:{o}"); L(f"ds_read_b64 {V(d+2,2)}, v{k} offset:{o + 8*PITCH}")
    def rq(i):
        q, o, _ = QR[i]; d = QF + 4 * i
        L(f"ds_read_b64 {V(d,2)}, v{q} offset:{o}"); rid[i] = L(f"ds_read_b64 {V(d+2,2)}, v{q+1} offset:{o}")
    def lg(i):
        L.wait(rid[i]); mfma(SS + (0, 4, 0, 8, 12, 8, 12)[i], KQ + 4 * QR[i][2], QF + 4 * i, "0" if i in (0, 1, 3, 4) else None)
    vid = {}
    vc = [None]
    def vlook():
        if OPT["ord"]: a(f"v_mov_b32 v1, {VCN}"); vc[0] = L("ds_read_b32 v1, v1")
    def vreads():
        if OPT["ord"]: L.wait(vc[0]); spin("v" + T, VCN, "v_cmp_ne_u32 vcc, 4, v1")
        if helper: stamp(4, 3)
        for i, (r_, o) in enumerate(((aVe, 0), (aVe, 40), (aV1, 0), (aV2, 0))):
            if doE or i >= 2:
                L(f"ds_read_b64_tr_b16 {V(VF+4*i,2)}, v{r_} offset:{o}")
                vid[i] = L(f"ds_read_b64_tr_b16 {V(VF+4*i+2,2)}, v{r_} offset:{o + 8*PITCH}")
    def lfold(): fold(SS, SS + 4, [F01, F01 + 1, FL_ + 2, FL_ + 3])
    def lpack(): a(f"v_or_b32 v{FL_}, 0xffff, v{F01}\nv_perm_b32 v{FL_+1}, v{F01+1}, v{F01}, s{sP1}")
    cq = f"v_mul_f32 v{CQ}, {CEXP:#x}, v{CQ}"
    if helper:
        ymask(); a(cq)
        a("s_barrier")
        for i in range(5): rk(i)
        wo_run(NA, NB, "e")
        if OPT["bv"] >= 0: a("s_barrier"); vreads()
        wo_run(NB, N1, "b")
        touch(1)
        mtouch(2)
        a(f"s_setprio {OPT['aprio']}\ns_waitcnt vmcnt({NT + N1 - N0 if OPT['wc'] < 2 else NT})")
        stamp(1, 3)
        a("s_barrier")
        stamp(4); stamp(2, 3)
        if STAGE == "A": a("s_branch L_dumpA")
        rq(0); rq(1); rq(2); rq(3); rq(4); lg(0); rq(5); lg(1); rq(6); lg(2); lg(3); lg(4); lg(5); lg(6); lfold(); lpack()
    elif doL: rk(0); rq(0); rk(1); rq(1); rk(2); rq(2); ymask(); lg(0); lg(1); lg(2); ksread(L); lfold(); lpack()
    else: rk(3); rq(3); rk(4); rq(4); rk(2); rq(5); rq(6); pzero(0, 8); lg(3); lg(4); ksread(L); lg(5); lg(6)
    if doL: lst(f"buffer_store_dwordx4 {V(FL_,4)}, v{aH0s}, {S(OUT)}, s{sLT} offen{{F}}")
    stamp(5); stamp(3, 3)
    if helper: touch(3)
    if helper and OPT["wc"] == 0: wo_run(N1, 20, "c")
    hl = f"buffer_load_dwordx4 {V(HL,4)}, v{aH0l}, {S(OUT)}, s{sLT} offen sc1"
    prefill = lambda: [a(rdWO1(s_, ct, e)) for s_ in range(DEP) for ct in range(4) for e in range(2)] if helper else None
    early = lambda: [ldO(k) for k in range(OPT["ou"])] if helper else None
    late = f"buffer_store_dwordx4 {V(LT,4)}, v{aOs}, {S(OUT)}, s{sLT} offen{{F}}"
    if doE:
        fold(SS + 8, SS + 12, [FE + r for r in range(4)])
        if not helper: L.wait(L.n); a(cq)
        if OPT["vpos"] == 1 or not helper: vlook()
        def mid():
            if helper and OPT["vpos"] == 2: vlook()
            elif not helper or OPT["bv"] < 0: vreads()
            if helper and OPT["wc"] == 1: wo_run(N1, 20, "c")
            if helper and OPT["hlp"] == 0: a(hl)
        softmax(FE, PX, mid, vreads if helper and OPT["vpos"] == 2 else None)
        stamp(5, 3)
        if helper and OPT["hlp"] == 1: a(hl)
        if helper: touch(2)
        L.wait(vid[3])
        for i in range(4): mfma(DM + 4 * i, VF + 4 * i, PX + 4 * (i & 1), "0")
        for i in range(4): a(f"v_cvt_pk_bf16_f32 v{FE+i}, v{DM+2*i}, v{DM+2*i+1}")
        lst(f"buffer_store_dwordx4 {V(FE,4)}, v{aOs}, {S(OUT)}, 0 offen{{F}}")
        stamp(6); stamp(6, 3)
        if T == "e": a(f"s_lshl_b32 s0, s{sWV}, 2\ns_add_u32 s0, s0, {HRD}\nv_mov_b32 v1, s0\nds_read_b32 v1, v1")
        for i in range(4): a(f"v_cvt_pk_bf16_f32 v{LT+i}, v{DM+8+2*i}, v{DM+8+2*i+1}")
        if helper: mtouch(3)
        prefill()
    else:
        vlook(); pzero(8, 16); vreads(); L.wait(L.n); a(cq); a(hl)
        if OPT["wc"] == 2:
            a(f"s_cmp_eq_u32 s{sWV}, 3\ns_cbranch_scc1 L_wl3"); wo_late(N1, 0, 249); a("L_wlb:")
            DEFER.append("L_wl3:\n" + "\n".join(capture(lambda: wo_late(N1, 1, 249))) + "\ns_branch L_wlb")
    if T == "e":
        a("s_waitcnt lgkmcnt(0)"); spin("r", "s0", "v_cmp_eq_u32 vcc, 0, v1", 1)
        execset(0xffff); lst(late); execset(-1)
        stamp(7); stamp(10, 3)
        return
    stamp(7, 3)
    a(f"s_waitcnt vmcnt({1 + NT2 if doE else 2 * (20 - N1) if OPT['wc'] == 2 else 0})\nv_cmp_eq_u32 vcc, -1, v{HL}\ns_cbranch_vccnz L_h0r{T}\nL_h0g{T}:")
    stamp(8, 3)
    DEFER.append(f"L_h0r{T}:\ns_sub_u32 s{sBUD}, s{sBUD}, 1\ns_cbranch_scc1 L_h0x{T}\n{hl}\ns_waitcnt vmcnt(0)\n"
                 f"v_cmp_eq_u32 vcc, -1, v{HL}\ns_cbranch_vccnz L_h0r{T}\ns_branch L_h0g{T}\nL_h0x{T}:\ns_mov_b32 s{sBUD}, 0\ns_branch L_h0g{T}")
    wfl = f"v_mov_b32 v1, {WFL}\nv_mov_b32 v4, 1\ns_mov_b64 exec, 1\nds_add_u32 v1, v4\ns_mov_b64 exec, -1"
    if helper:
        if OPT["wc"] < 2: a(f"s_mov_b64 exec, 1\nds_add_u32 v{vWF}, v{vWF+1}\ns_mov_b64 exec, -1")
    else: a(f"s_lshl_b32 s0, s{sWV}, 2\ns_add_u32 s0, s0, {HRD - 8}\nv_mov_b32 v1, s0\nds_write_b32 v1, v1")
    a(f"v_perm_b32 v{HL}, v{HL}, v{HL+1}, s{sP2}")
    for r in (1, 2, 3, 0): a(f"v_add_f32 v{FL_+r}, v{F01+r if r < 2 else FL_+r}, v{HL+r}")
    if OPT["opos"] == 0: early()
    softmax(FL_, PX + 8, early if OPT["opos"] == 1 else None)
    if OPT["opos"] == 2: early()
    stamp(9, 3)
    mfma(DM, VF + 8, PX + 8, "0"); mfma(DM + 4, VF + 12, PX + 8, "0"); mfma(DM + 8, VF + 12, PX + 12, "0")
    if helper and OPT["wc"] < 2: a(f"ds_read_b32 v1, v{vWF}")
    a("s_mov_b32 exec_lo, 0xffff0000")
    for i in range(4): a(f"v_cvt_pk_bf16_f32 v{LT+i}, v{DM+2*i}, v{DM+2*i+1}")
    a("s_mov_b64 exec, s[100:101]")
    for i in range(2): a(f"v_cvt_pk_bf16_f32 v{LT+2+i}, v{DM+8+2*i}, v{DM+8+2*i+1}")
    execset(-1 if doE else 0xffffffffffff0000)
    lst(late)
    stamp(7); stamp(10, 3); stamp(12, 5)
    if not helper and OPT["wc"] == 2: a("s_mov_b64 exec, -1\ns_waitcnt vmcnt(1)\n" + wfl + "\ns_waitcnt lgkmcnt(0)")
def attention2(T):
    helper = T == "h"; DT = {"h": 0, "e": 4, "l": 2}[T]; RO = 16 * PITCH
    vL = vLA if helper else 249
    cq = f"v_mul_f32 v{CQ}, {CEXP:#x}, v{CQ}"
    L.reset()
    def rk(d, k, o): L(f"ds_read_b64 {V(d,2)}, v{k} offset:{o}"); L(f"ds_read_b64 {V(d+2,2)}, v{k} offset:{o + 8*PITCH}")
    def rq(d, q, o=0): L(f"ds_read_b64 {V(d,2)}, v{q} offset:{o}"); return L(f"ds_read_b64 {V(d+2,2)}, v{q+1} offset:{o}")
    def rv(i, r_, o): L(f"ds_read_b64_tr_b16 {V(VF+4*i,2)}, v{r_} offset:{o}"); return L(f"ds_read_b64_tr_b16 {V(VF+4*i+2,2)}, v{r_} offset:{o + 8*PITCH}")
    def lreads(b, up):
        ids = []
        for i, k in enumerate((aKx, aKy, aK4)): rk(b + 8 * i, k, RO * DT * up); ids.append(rq(b + 8 * i + 4, (QUP if up else QLO)[i]))
        return ids
    def lmm(b, ids, d):
        for i in range(3): L.wait(ids[i]); mfma(d + (0, 4, 0)[i], b + 8 * i, b + 8 * i + 4, "0" if i < 2 else None)
    FS = ((F01, FL_), (84, 88))
    def lsend(d, up):
        f, p = FS[up]
        fold(d, d + 4, [f, f + 1, p + 2, p + 3])
        a(f"v_or_b32 v{p}, 0xffff, v{f}\nv_perm_b32 v{p+1}, v{f+1}, v{f}, s{sP1}")
        lst(f"buffer_store_dwordx4 {V(p,4)}, v{aWO+2 if up else aH0s}, {S(OUT)}, s{68 if up else sLT} offen{{F}}")
    def ekeys(b): rk(b, aKe, 0); rk(b + 4, aKe, 40); rk(b + 8, aK4, RO * DT)
    def equeries(b): return [rq(b + 12, aQe), rq(b + 16, aQe, 40), rq(b + 20, aQ4 + 2), rq(b + 24, aQ4 + 4)]
    def emm(b, ids):
        for i in range(4): L.wait(ids[i]); mfma(SS + 8 + 4 * (i & 1), b + (0, 4, 8, 8)[i], b + 12 + 4 * i, "0" if i < 2 else None)
    def efin(mid=None):
        fold(SS + 8, SS + 12, [FE + r for r in range(4)])
        if not helper: L.wait(L.n); a(cq)
        v = []
        softmax(FE, PX, lambda: v.extend([rv(0, aVe, 0), rv(1, aVe, 40), rv(2, aV1, RO * DT), rv(3, aV2, RO * DT)]))
        stamp(5, 3)
        if mid: mid()
        L.wait(v[3])
        for i in range(4): mfma(DM + 4 * i, VF + 4 * i, PX + 4 * (i & 1), "0")
        for i in range(4): a(f"v_cvt_pk_bf16_f32 v{FE+i}, v{DM+2*i}, v{DM+2*i+1}")
        lst(f"buffer_store_dwordx4 {V(FE,4)}, v{aOs if helper else aWO}, {S(OUT)}, {0 if helper else 's61'} offen{{F}}")
        stamp(6); stamp(6, 3)
        execset(0xffff)
        for i in range(4): a(f"v_cvt_pk_bf16_f32 v{LT+i}, v{DM+8+2*i}, v{DM+8+2*i+1}")
        L(f"ds_write_b128 v{vL}, {V(LT,4)} offset:{256*DT}"); L(f"ds_write_b32 v{vL+1}, v{vL+1} offset:{4*DT}")
        execset(-1)
    def hl(up): return f"buffer_load_dwordx4 {V(HL + 8*up,4)}, v{aWO+1 if up else aH0l}, {S(OUT)}, s{68 if up else sLT} offen sc1"
    def lfin(up, nv, nxt=None):
        f, p = FS[up]; h = HL + 8 * up; tag = T + str(up)
        ksread(L, DT * up); rv(2, aV1, RO * DT * up); rv(3, aV2, RO * DT * up)
        a(f"s_waitcnt vmcnt({nv})\nv_cmp_eq_u32 vcc, -1, v{h}\ns_cbranch_vccnz L_h0r{tag}\nL_h0g{tag}:")
        if not up: stamp(8, 3)
        DEFER.append(f"L_h0r{tag}:\ns_sub_u32 s{sBUD}, s{sBUD}, 1\ns_cbranch_scc1 L_h0x{tag}\n{hl(up)}\ns_waitcnt vmcnt(0)\n"
                     f"v_cmp_eq_u32 vcc, -1, v{h}\ns_cbranch_vccnz L_h0r{tag}\ns_branch L_h0g{tag}\nL_h0x{tag}:\ns_mov_b32 s{sBUD}, 0\ns_branch L_h0g{tag}")
        a(f"v_perm_b32 v{h}, v{h}, v{h+1}, s{sP2}")
        for r in (1, 2, 3, 0): a(f"v_add_f32 v{p+r}, v{f+r if r < 2 else p+r}, v{h+r}")
        L.wait(L.n); a(cq)
        rd = f"ds_read_b32 v1, v{vL+1} offset:{4*DT*up}\nds_read_b128 {V(LT,4)}, v{vL} offset:{256*DT*up}"
        softmax(p, PX + 8, nxt, lambda: a(rd))
        mfma(DM, VF + 8, PX + 8, "0"); mfma(DM + 4, VF + 12, PX + 8, "0"); mfma(DM + 8, VF + 12, PX + 12, "0")
        a(f"s_waitcnt lgkmcnt(0)\nv_cmp_eq_u32 vcc, 0, v1\ns_cbranch_vccnz L_lr{tag}\nL_lg{tag}:\ns_mov_b32 exec_lo, 0xffff0000")
        DEFER.append(f"L_lr{tag}:\n{rd}\ns_waitcnt lgkmcnt(0)\nv_cmp_eq_u32 vcc, 0, v1\ns_cbranch_vccnz L_lr{tag}\ns_branch L_lg{tag}")
        for i in range(4): a(f"v_cvt_pk_bf16_f32 v{LT+i}, v{DM+2*i}, v{DM+2*i+1}")
        a("s_mov_b64 exec, s[100:101]")
        for i in range(2): a(f"v_cvt_pk_bf16_f32 v{LT+2+i}, v{DM+8+2*i}, v{DM+8+2*i+1}")
        execset(-1)
        lst(f"buffer_store_dwordx4 {V(LT,4)}, v{aWO if up else aOs}, {S(OUT)}, s{68 if up else sLT} offen{{F}}")
        stamp(9 if up else 10, 3)
    if helper:
        a(cq + "\ns_barrier")
        ekeys(KQ)
        wo_run(NA, NB, "e")
        touch(1); mtouch(2)
        a(f"s_setprio {OPT['aprio']}\ns_waitcnt vmcnt({NT + 10})")
        stamp(1, 3)
        a("s_barrier")
        stamp(4); stamp(2, 3)
        if STAGE == "A": a("s_branch L_dumpA")
        emm(KQ, equeries(KQ))
        stamp(5); stamp(3, 3)
        efin()
        a(f"s_setprio {OPT['hp2']}")
        for s_ in range(DEP):
            if s_ == OPT["op2"]:
                for k in range(OPT["ou"]): ldO(k)
            for ct in range(4):
                for e in range(2): a(rdWO1(s_, ct, e))
        if OPT["op2"] >= DEP:
            for k in range(OPT["ou"]): ldO(k)
        stamp(7); stamp(10, 3); stamp(12, 5)
        return
    if OPT["cprio"]: a(f"s_setprio {OPT['cprio']}")
    B2 = 24
    if T == "e":
        i0 = lreads(B2, 0); ekeys(KQ); ymask(); lmm(B2, i0, SS); i1 = equeries(KQ); pzero(); lsend(SS, 0); ksread(L, DT); emm(KQ, i1)
        stamp(5); stamp(3, 3)
        a(f"s_setprio {OPT['cp2']}")
        efin(lambda: a(hl(0)))
        lfin(0, 1)
    else:
        i1 = lreads(B2, 1); i0 = lreads(B2 + 24, 0); ymask(); lmm(B2, i1, SS + 8); lmm(B2 + 24, i0, SS); lsend(SS + 8, 1); lsend(SS, 0); pzero(8, 16)
        stamp(5); stamp(3, 3)
        a(f"s_setprio {OPT['cp2']}")
        a(hl(1)); lfin(1, 0, lambda: a(hl(0)))
        lfin(0, 1)
    stamp(7)
if G2: attention = attention2
attention("h")
if STAGE == "B": a("s_waitcnt vmcnt(0)"); finish()
pagebreak("h", True, G2)
SH = 200
U = OPT["ou"]; nO = [U]
def ldOn():
    if nO[0] < len(OL):
        if not OPT["dbg"] & 2: ldO(nO[0])
        nO[0] += 1
L.reset()
stamp(8); stamp(0, 4)
idx = {o: k for k, o in enumerate(OL)}
GR = [[0, 1], [2, 3], [4]] + [[k, k + 1] for k in range(5, 29, 2)] + [[29]]
if OPT["gs"] == 3: GR = [[0, 1]] + [[k, k + 1, k + 2] for k in range(2, 29, 3)] + [[29]]
if OPT["gs"] == 4: GR = [[0, 1], [2, 3, 4]] + [list(range(k, k + 4)) for k in range(5, 25, 4)] + [[25, 26, 27], [28, 29]]
gof = {k: G for G, g in enumerate(GR) for k in g}
issued = {}
def cmp_(G):
    r = [oreg(k) for k in GR[G]]
    if len(r) == 2: a(f"v_max_u16 v2, v{r[0]}, v{r[1]}\nv_cmp_eq_u16 vcc, -1, v2")
    elif len(r) >= 3: a(f"v_max3_u16 v2, v{r[0]}, v{r[1]}, v{r[2]}\n" + (f"v_max_u16 v2, v2, v{r[3]}\n" if len(r) == 4 else "") + "v_cmp_eq_u16 vcc, -1, v2")
    else: a(f"v_cmp_eq_u16 vcc, -1, v{r[0]}")
def chk_a(G):
    last = GR[G][-1] + 1
    assert nO[0] >= last
    a(f"s_waitcnt vmcnt({nO[0] - last + (last <= U and not G2)})"); cmp_(G)
def chk_b(G):
    issued[G] = nO[0]
    a(f"s_cbranch_vccnz L_st{G}\nL_go{G}:")
a("s_waitcnt lgkmcnt(0)")
if not G2: spin("w", WFL, "v_cmp_ne_u32 vcc, 4, v1")
fid = [None]; busy = [0]
RQ = [(s, ct, e) for s in range(DEP, 20) for ct in range(4) for e in range(2)]
wid = {(s, ct): 0 for s in range(DEP) for ct in range(4)}
left = {(s, ct): 2 if 5 <= s < 15 else 1 for s in range(20) for ct in range(4)}
def rdn(n):
    for _ in range(n):
        if not RQ: return
        s, ct, e = RQ[0]
        if s >= RING and left[s - RING, ct]: return
        if G2 and (s, ct, e) == (9, 0, 0): fid[0] = L(f"ds_read_b32 v1, v{vWF}")
        if G2 and (s, ct, e) == (10, 0, 0):
            if busy[0]: return
            L.wait(fid[0]); spin("w", WFL, "v_cmp_ne_u32 vcc, 4, v1")
        RQ.pop(0); wid[s, ct] = L(rdWO1(s, ct, e))
MS = []
k = 0
while k < 30:
    if k + 1 < 30 and OL[k][0] == OL[k+1][0]: MS += [(kk, ct) for ct in range(4) for kk in (k, k + 1)]; k += 2
    else: MS += [(k, ct) for ct in range(4)]; k += 1
firstm = {}
for m, (k, ct) in enumerate(MS): firstm.setdefault(gof[k], m)
ca = {m - 2: G for G, m in firstm.items() if G}; cb = {m - 1: G for G, m in firstm.items() if G}
lasts = max(m for m, (k, ct) in enumerate(MS) if OL[k][1])
wr = {lasts + 2 + q + (q == 3) * 2: q for q in range(4)}
chk_a(0); chk_b(0)
if G2: a("s_mov_b64 exec, 1"); L(f"ds_add_u32 v{vWF}, v{vWF+1}"); a("s_mov_b64 exec, -1")
fm = {}
for m, (k, ct) in enumerate(MS): fm.setdefault(k, m)
for m, (k, ct) in enumerate(MS):
    s, w = OL[k]
    if m in ca: chk_a(ca[m]); busy[0] = 1
    if m in cb: chk_b(cb[m]); busy[0] = 0
    while RQ and RQ[0][:2] <= (s, ct): n = len(RQ); rdn(1); assert len(RQ) < n
    if ct == 0 and (not RQ or RQ[0][0] > s) and L.n - wid[s, 3] >= 6: L.wait(wid[s, 3])
    L.wait(wid[s, ct])
    mfma((SH if w else H) + 4 * ct, WOF + 16 * (s % RING) + 4 * ct, oreg(k), "0" if w and s == 5 else None)
    left[s, ct] -= 1
    if nO[0] < len(OL) and m not in wr and m != lasts + 8 and (m >= fm[nO[0]] - OPT["dist"] if G2 else (m % 4 == 0 or (m < 20 and m % 4 == 1 and m // 4 >= (3, 0)[OPT["o2"]]))): ldOn(); rdn(1)
    elif m in wr: L(f"ds_write_b128 v{vEX}, {V(SH + 4*wr[m], 4)} offset:{1024*wr[m]}")
    elif m == lasts + 8: a("s_mov_b64 exec, 1"); L(f"ds_add_u32 v{vXF}, v{vWF+1}"); a("s_mov_b64 exec, -1")
    else: rdn(1 if m + 1 in ca or m + 1 in cb or m in cb else 2)
    if m == 3: stamp(9); stamp(11, 3)
    if m == 59: stamp(12, 3)
    if m % 12 == 11: stamp(1 + m // 12, 4)
assert nO[0] == len(OL)
for G in range(len(GR)):
    t = f"L_st{G}:\ns_sub_u32 s{sBUD}, s{sBUD}, 1\ns_cbranch_scc1 L_sx{G}\n"
    def re():
        for G2 in range(G, min(G + OPT["rsp"], len(GR))):
            for k in GR[G2]:
                if k < issued[G]: ldO(k)
        a("s_waitcnt vmcnt(0)"); cmp_(G)
    t += "\n".join(capture(re))
    t += f"\ns_cbranch_vccnz L_st{G}\ns_branch L_go{G}\nL_sx{G}:\ns_mov_b32 s{sBUD}, 0\ns_branch L_go{G}"
    DEFER.append(t)
a("L_tail:")
stamp(10)
HB, DS1, DS2, E2D, T0, RS = 24, 32, 36, 40, 52, 2
EV1 = OPT['e1']
for i in range(8): a(f"v_cvt_pk_bf16_f32 v{HB+i}, v{H+2*i}, v{H+2*i+1}")
for k in range(2):
    mfma(DS2, HB + 4 * k, HB + 4 * k, "0" if k == 0 else None)
    mfma(DS1, WRF + 4 * k, HB + 4 * k, "0" if k == 0 else None)
a("s_mov_b32 s0, 0x22222222\ns_mov_b32 s1, s0\ns_mov_b32 s44, 0x44444444\ns_mov_b32 s45, s44\ns_mov_b32 vcc_lo, 0x88888888\ns_mov_b32 vcc_hi, 0x88888888")
a(f"s_lshl_b32 s3, s{sC}, 8\ns_add_u32 s3, s3, s{sE2L}\nv_and_b32 v1, 0xf0, v{aL16}")
a(f"v_cndmask_b32 v{DS2}, v{DS2}, v{DS2+1}, s[0:1]\nv_cndmask_b32 v{DS2+2}, v{DS2+2}, v{DS2+3}, vcc\ns_or_b64 vcc, vcc, s[44:45]")
a(f"v_cndmask_b32 v{DS1+2}, v{DS2}, v{DS2+2}, vcc\nv_mov_b32 v{DS1+3}, v{WSP+1}")
execset(0xF0000F0000F0000F)
lst(f"buffer_store_dwordx4 {V(DS1,4)}, v1, {S(WS)}, s3 offen{{F}}")
execset(-1)
for i in range(4): a(f"v_mov_b32 v{E2D+8+i}, 0")
a(f"v_mov_b32 v4, 1.0\ns_mov_b32 s0, 0xbacccccd\ns_mov_b32 s1, 0x3acccccd\nv_mov_b32 v5, 0x3727c5ac\ns_mov_b32 s44, 0xfffff800\nv_mov_b32 v1, {KMAX}")
a(f"v_cmp_le_i32 s[46:47], 0, v{aOUT}")
vL, vB, vK = 68, 69, 70
a(f"s_mul_i32 s48, s{sG}, 1280\ns_lshl_b32 s3, s{sC}, 7\ns_add_u32 s48, s48, s3\ns_lshl_b32 s49, s48, 1\ns_add_u32 s48, s48, s{sRJ}\ns_add_u32 s49, s49, s{sRJ}\ns_add_u32 s49, s49, {R_BASE}")
a(f"s_lshl_b32 s3, s{sG}, 7\ns_add_u32 s3, s3, s{sRJ}\ns_add_u32 s3, s3, {R_KEY}\ns_and_b32 s45, s{sC}, {OPT['kc']}\ns_lshl_b32 s45, s45, 3\ns_add_u32 s45, s45, s{sWV}\nv_mul_u32_u24 v{vK}, 384, v0")
a(f"v_and_b32 v{vB}, 48, v0\nv_lshlrev_b32 v{vL}, 1, v{vB}")
if OPT["kl"]: a(f"s_add_u32 s45, s{sC}, 5\nv_mov_b32 v71, 1")
if OPT["e2p"]:
    a(f"v_bfrev_b32 v6, 1\nv_cmp_gt_u32 vcc, 32, v0\nv_cndmask_b32 v6, v6, v{aL16}, vcc")
    a("L_e2:")
    for k in range(3): a(f"buffer_load_dwordx4 {V(E2D+4*k,4)}, v{6 if k == 2 else aL16}, {S(WS)}, s{sE2L} offen offset:{1024*k} sc1")
    a(f"s_sub_u32 s{sBUD}, s{sBUD}, 1\ns_waitcnt vmcnt(1)")
    for e in (0, 2): a(f"v_pk_add_f32 {V(E2D+e,2)}, {V(E2D+e,2)}, {V(E2D+4+e,2)}")
    a("s_waitcnt vmcnt(0)")
    for e in (0, 2): a(f"v_pk_add_f32 {V(E2D+e,2)}, {V(E2D+e,2)}, {V(E2D+8+e,2)}")
    a(f"v_cmpx_u_f32 vcc, v{E2D}, v{E2D}\ns_cbranch_scc1 L_e2go\ns_cbranch_execnz L_e2\nL_e2go:\ns_mov_b64 exec, -1")
else:
    a("L_e2:")
    a(f"buffer_load_dwordx4 {V(E2D,4)}, v{aL16}, {S(WS)}, s{sE2L} offen sc1\nbuffer_load_dwordx4 {V(E2D+4,4)}, v{aL16}, {S(WS)}, s{sE2L} offen offset:1024 sc1")
    a(f"s_mov_b32 exec_hi, 0\nbuffer_load_dwordx4 {V(E2D+8,4)}, v{aL16}, {S(WS)}, s{sE2L} offen offset:2048 sc1\ns_mov_b32 exec_hi, -1\ns_sub_u32 s{sBUD}, s{sBUD}, 1")
    a("s_waitcnt vmcnt(1)")
    for e in (0, 2): a(f"v_pk_add_f32 {V(E2D+e,2)}, {V(E2D+e,2)}, {V(E2D+4+e,2)}")
    a("s_waitcnt vmcnt(0)")
    for e in (0, 2): a(f"v_pk_add_f32 {V(E2D+e,2)}, {V(E2D+e,2)}, {V(E2D+8+e,2)}")
    a(f"v_cmp_u_f32 vcc, v{E2D}, v{E2D}\ns_cbranch_scc1 L_e2go\ns_cbranch_vccnz L_e2\nL_e2go:")
stamp(11); stamp(11, 4)
for i in (0, 2, 3, 1): a(f"v_mfma_f32_16x16x4_f32 {V(T0+4*i,4)}, v4, v{E2D+i}, 0")
a(f"v_mul_f32 v6, s0, v{T0}\nv_fma_f32 v7, v{T0+8}, s1, v5\nv_fma_f32 v7, -v6, v6, v7\nv_max_f32 v7, v7, v5\nv_rsq_f32 v{RS}, v7")
a(f"v_fma_f32 v7, v6, v{T0+12}, v{T0+4}\nv_mul_f32 v7, v7, v{RS}\nv_mul_f32 v{RS+1}, v6, v{RS}")
a(f"v_ashrrev_i32 v6, 31, v7\nv_or_b32 v6, 0x80000000, v6\nv_xor_b32 v7, v7, v6\nv_and_or_b32 v7, v7, s44, v{vRK}\nv_cndmask_b32 v7, 0, v7, s[46:47]")
LN, LNB, OB = 72, 88, 96
lnops = [f"v_pk_fma_f32 {V(LN+2*i,2)}, {V(H+2*i,2)}, {V(RS,2)}, {V(RS,2)} op_sel:[0,0,1] op_sel_hi:[1,0,1]" for i in range(8)]
for k in (8, 4, 2, 1)[:OPT["dpn"]]:
    a(lnops.pop(0)); a(lnops.pop(0))
    a(f"v_max_u32_dpp v6, v{7 if k == 8 else 6}, v{7 if k == 8 else 6} row_ror:{k} {DPPM}")
a(f"s_mov_b64 exec, {(1 << (16 >> OPT['dpn'])) - 1}\nds_max_u32 v1, v{6 if OPT['dpn'] else 7}")
if OPT["kl"]: a(f"s_mov_b64 exec, 1\nds_add_rtn_u32 v71, v1, v71 offset:4\ns_mov_b64 exec, -1\nds_read_b32 v6, v1")
else: a("s_mov_b64 exec, -1")
for o in lnops: a(o)
for i in range(4): a(f"v_cvt_pk_bf16_f32 v{LNB+i}, v{LN+2*i}, v{LN+2*i+1}")
a("s_waitcnt lgkmcnt(0)")
if OPT["kl"]: a(f"v_readfirstlane_b32 s0, v71\ns_cmp_eq_u32 s0, s45\ns_cbranch_scc0 L_nk\ns_mov_b64 exec, 0xffff\nbuffer_store_dword v6, v{vK}, {S(WS)}, s3 offen sc1\ns_mov_b64 exec, -1\nL_nk:")
a("s_barrier\nds_read_b32 v1, v1")
for i in range(4, 8): a(f"v_cvt_pk_bf16_f32 v{LNB+i}, v{LN+2*i}, v{LN+2*i+1}")
for i in range(8): a(f"v_pk_add_f32 {V(LN+2*i,2)}, {V(LN+2*i,2)}, {V(H+2*i,2)}")
if OPT["kl"]: a("s_waitcnt lgkmcnt(0)\nv_cmp_eq_u32 s[46:47], v1, v7")
else: a(f"s_cmp_eq_u32 s45, 4\ns_waitcnt lgkmcnt(0)\nv_cmp_eq_u32 s[46:47], v1, v7\ns_cbranch_scc0 L_nk\ns_mov_b64 exec, 0xffff\nbuffer_store_dword v1, v{vK}, {S(WS)}, s3 offen sc1\nL_nk:")
a("s_and_b64 exec, s[46:47], -1\ns_cbranch_scc0 L_nc")
a(f"buffer_store_dwordx4 {V(LNB,4)}, v{vL}, {S(WS)}, s48 offen sc1\nbuffer_store_dwordx4 {V(LNB+4,4)}, v{vL}, {S(WS)}, s48 offen offset:16 sc1")
a("L_nc:\ns_mov_b64 exec, -1")
stamp(12); stamp(12, 4)
for i in range(8): a(f"v_cvt_pk_bf16_f32 v{OB+i}, v{LN+2*i}, v{LN+2*i+1}")
for hh in range(2):
    for d in range(2): a(f"v_permlane16_swap_b32 v{OB+4*hh+d}, v{OB+4*hh+2+d}")
osc = " " + OPT["osc"].replace("_", " ").replace("plain", "")
a("s_not_b64 exec, s[46:47]")
for hh in range(2): a(f"buffer_store_dwordx4 {V(OB+4*hh,4)}, v{aOUT}, {S(OUT)}, 0 offen offset:{64*hh}{osc}")
a("s_and_b64 exec, s[46:47], -1\ns_cbranch_scc0 L_fin")
for hh in range(2): a(f"buffer_store_dwordx4 {V(OB+4*hh,4)}, v{aOUT}, {S(OUT)}, 0 offen offset:{64*hh} sc1")
a("s_waitcnt vmcnt(0)")
for ct in range(4): a(f"buffer_store_dwordx4 {V(LN+4*ct,4)}, v{vB}, {S(WS)}, s49 offen offset:{64*ct} sc1")
a("L_fin:")
if OPT["dbg"] & 128:
    a(f"s_mov_b64 exec, -1\ns_lshl_b32 s3, s2, 3\ns_add_u32 s3, s3, s{sWV}\ns_lshl_b32 s3, s3, 13\ns_add_u32 s3, s3, {DUMP}")
    for i in range(8): a(f"buffer_store_dwordx4 {V(OB,4)}, v{aL16}, {S(WS)}, s3 offen\ns_add_u32 s3, s3, 1024")
finish()
pagebreak(None, False)
deferred("h")

pad("c0")
a("L_h0:")
if OPT["prio"]: a("s_setprio 2")
a(f"v_lshrrev_b32 v1, 3, v0\nv_and_b32 v2, 2, v1\nv_xor_b32 v2, v2, v0\nv_and_b32 v2, 7, v2\ns_lshl_b32 s3, s{sC}, 7\nv_lshl_add_u32 v2, v2, 4, s3")
a(f"v_mul_u32_u24 v3, 3840, v1\nv_add_u32 v{vW}, v3, v2\nv_xor_b32 v{vW+3}, 64, v{vW}\nv_add_u32 v{vW+3}, {8*3840}, v{vW+3}\nv_mov_b32 v{vEA}, 0")
for p in range(2):
    for s_ in (1, 2): a(f"v_add_u32 v{vW+3*p+s_}, {256*s_}, v{vW+3*p}")
def wpieces():
    P = []
    for pp in range(8):
        for s_ in range(3):
            t = f"buffer_load_dwordx4 v{vW+3*(pp&1)+s_}, {S(W)}, s{sXO} offen offset:{1024*s_} lds"
            if s_ == 2 and pp < 7: t += "\ns_addk_i32 m0, 3072"
            if s_ == 2 and pp & 1 and pp < 7: t += f"\ns_add_u32 s{sXO}, s{sXO}, 61440"
            P.append(t)
    return P
stamp(1, 5)
if not OPT["wrl"]: ldWR()
a(f"s_waitcnt vmcnt({0 if OPT['wrl'] else 4})")
stamp(2, 5)
a("s_barrier")
if OPT["wrl"]: ldWR()
early_touch(0)
a(f"s_mov_b32 s{sI}, 1\ns_mov_b32 s{sRD}, {S0 + SLOT}\nL_wl:")
nextslab(); advslot(sSL); a(f"s_mul_i32 s{sXO}, s{sSB}, 245760\ns_add_u32 m0, s{sSL}, 12288")
for p in wpieces(): a(p)
a(f"s_mov_b32 s0, s{sRD}\ns_mov_b32 s{sRD}, s{sSL}\ns_cmp_eq_u32 s{sXT}, s{sI}\ns_waitcnt vmcnt(24) lgkmcnt(0)\ns_barrier\ns_cbranch_scc0 L_wc\ns_call_b64 s[100:101], L_xcap\nL_wc:")
for i in range(1, 8):
    t = capture(lambda: early_touch(i))
    if t: a(f"s_cmp_eq_u32 s{sI}, {i}\ns_cbranch_scc0 L_wt{i}\n" + "\n".join(t) + f"\nL_wt{i}:")
a(f"s_add_u32 s{sI}, s{sI}, 1\ns_cmp_lt_u32 s{sI}, 9\ns_cbranch_scc1 L_wl")
a("s_branch L_h8")

ACC, XF, WF, ST, CS = 8, 80, 152, 180, 192
CLX = len(a.lines)
pagebreak(None, False)
a("L_cons:")
def clears(fl, n=4):
    a("v_mov_b32 v4, -1\nv_mov_b32 v5, -1\nv_mov_b32 v6, -1\nv_mov_b32 v7, -1")
    a(f"v_lshrrev_b32 v1, 3, v0\nv_mul_u32_u24 v1, 2560, v1\nv_and_b32 v2, 0x70, v{aL16}\ns_lshl_b32 s3, s{sC}, 7\ns_add_u32 s3, s3, s{sB0}\nv_add3_u32 v1, v1, v2, s3")
    a(f"s_mul_i32 s0, s{sT}, 20480\ns_add_u32 s1, s0, 81920\ns_add_u32 s3, s{sT}, 8\ns_cmp_lt_u32 s3, s{sNO}\ns_cselect_b32 s3, s1, {OOB:#x}\ns_add_u32 s66, s3, 81920")
    a(f"v_lshrrev_b32 v2, 4, v0\nv_mul_u32_u24 v2, {2560 - 256}, v2\nv_add_u32 v2, v2, v{aL16}")
    a(f"s_mul_i32 s67, s{sGID}, 15360\ns_lshl_b32 s3, s{sC}, 8\ns_add_u32 s67, s67, s3\ns_and_b32 s3, s{sT}, 1\ns_mul_i32 s3, s3, 7680\ns_add_u32 s67, s67, s3\ns_add_u32 s67, s67, {E2}")
    a(f"s_cmp_lt_u32 s{sT}, 2\ns_cselect_b32 s67, s67, {OOB:#x}")
    st = [f"buffer_store_dwordx4 v[4:7], v1, {S(OUT)}, s{r} offen{fl}" for r in (0, 1, 66)]
    st.append(f"s_mov_b32 exec_hi, 0xffff\nbuffer_store_dwordx4 v[4:7], v2, {S(WS)}, s67 offen{fl}\ns_mov_b64 exec, -1")
    for t in st[:n]: a(t)
    return st[n:]
def pf0(p):
    if OPT["pf0"] & 1 and p == OPT["pfp"] % 10:
        a(f"s_cmp_eq_u32 s{sWV}, 0\ns_cbranch_scc0 L_pa\ns_mul_i32 s3, s2, {27*128}\nv_lshlrev_b32 v1, 7, v0\ns_mov_b64 exec, {(1 << 27) - 1:#x}\nbuffer_load_dword v255, v1, {S(WO)}, s3 offen\ns_mov_b64 exec, -1\nL_pa:")
    if OPT["pf0"] & 2 and p == OPT["pfp"] // 10:
        a(f"s_cmp_eq_u32 s{sWV}, 1\ns_cbranch_scc0 L_pb\ns_lshl_b32 s3, s{sC}, 2\ns_add_u32 s3, s3, s{sJ}\ns_sub_u32 s0, s3, 40\ns_cselect_b32 s3, s3, s0\ns_mul_i32 s3, s3, {16*3840}")
        a(f"s_mul_i32 s0, s{sG}, 1280\ns_add_u32 s3, s3, s0\ns_lshl_b32 s0, s{sC}, 7\ns_add_u32 s3, s3, s0\nv_mul_u32_u24 v1, 3840, v0\ns_mov_b64 exec, 0xffff\nbuffer_load_dword v255, v1, {S(W)}, s3 offen\ns_mov_b64 exec, -1\nL_pb:")
pf0(0)
def w1():
    a(f"s_cmp_eq_u32 s{sSB}, 9\ns_cselect_b32 s3, {-10*245760}, 0\ns_add_u32 s3, s3, 245760\nv_add_u32 v254, s3, v254\ns_mul_i32 s3, s{sT}, 3072\ns_add_u32 m0, s3, {S0 + SLOT + 12288}\ns_mov_b32 s64, {32*3840}")
    for h in range(2):
        for k in range(3):
            a(f"buffer_load_dwordx4 v254, {S(W)}, {'s64' if h else 0} offen offset:{1280*k} lds")
            if (h, k) != (1, 2): a(f"s_addk_i32 m0, {-256 if k < 2 else 12288 + 512}")
def x1():
    if OPT["x1"] != 3: return
    a(f"s_mul_i32 s3, s{sT}, {-3*20480}\ns_add_u32 s3, s3, {20*20480}\nv_add_u32 v3, s3, v{vX}\ns_lshl_b32 s3, s{sT}, 6\ns_and_b32 s3, s3, 64\nv_xor_b32 v3, s3, v3")
    a(f"s_add_u32 s3, s{sSB}, 1\ns_cmp_eq_u32 s3, 10\ns_cselect_b32 s3, 0, s3\ns_lshl_b32 s61, s3, 7\ns_lshl_b32 s3, s{sT}, 10\ns_cselect_b32 exec_lo, -1, 0xffffff00\ns_add_u32 m0, s3, {S0 + SLOT}\ns_add_u32 s3, s{sT}, s{sG}")
    a(f"buffer_load_dwordx4 v3, {S(X)}, s61 offen lds\ns_mov_b32 exec_lo, -1\ns_addk_i32 m0, 4096\nv_add_u32 v3, 81920, v3")
    a(f"buffer_load_dwordx4 v3, {S(X)}, s61 offen lds\ns_addk_i32 m0, 4096\ns_cmp_eq_u32 s3, 5\ns_cselect_b32 s3, {OOB:#x}, 0\nv_add_u32 v3, 81920, v3\nv_or_b32 v3, s3, v3")
    a(f"buffer_load_dwordx4 v3, {S(X)}, s61 offen lds")
NX1 = 3 if OPT["x1"] == 3 else 0
suB(0); suC()
if OPT["w1"] == 0: w1()
if OPT["wc"] == 2: wo_setup(249)
suD(0); suE(0)
a(f"s_lshl_b32 s3, s{sT}, 5\nv_xor_b32 v3, s3, v3\nv_mul_u32_u24 v4, 3072, v2\nv_add_u32 v3, v3, v4\nv_add_u32 v{vAW}, {S0 + 12288}, v3\ns_mov_b32 s{sI}, 0")
stamp(0, 5)
stamp(1, 5)
a(f"v_mov_b32 v3, 0\nv_lshlrev_b32 v2, 2, v0\ns_mov_b32 exec_hi, 0")
a(f"ds_write_b32 v2, v3 offset:{MODE}\nds_write_b32 v2, v3 offset:{MODE + 8*PITCH}\ns_mov_b64 exec, -1")
a("v_and_b32 v1, 15, v0\nv_lshrrev_b32 v2, 4, v0")
a(f"v_lshrrev_b32 v3, 1, v1\nv_xor_b32 v3, v3, v2\nv_lshlrev_b32 v3, 4, v3\nv_lshl_add_u32 v3, v1, 7, v3\nv_add_u32 v{vAX0}, {S0}, v3\nv_xor_b32 v{vAX1}, 64, v{vAX0}")
a(f"v_mul_u32_u24 v3, {PITCH}, v1\nv_lshl_add_u32 v3, v2, 3, v3\ns_lshl_b32 s3, s{sT}, 5\ns_add_u32 s3, s3, {QB}\nv_add_u32 v{vSW}, s3, v3")
a(f"v_lshlrev_b32 v{vSTR}, 4, v1")
if G2: ltaddr(249)
assert STATS == 0
if OPT["pg"]:
    for k in range(4): a(f"s_cmp_eq_u32 s{sWV}, {k}\ns_cbranch_scc0 L_cw{k}"); warm("c0", k, 4); a(f"L_cw{k}:")
pf0(1)
ncl = OPT["ncp"]
CLR = clears(" sc1" if OPT["clr"] else "", 0)
if OPT["xw"] == 0: x1()
if OPT["w1"] == 1: w1()
if OPT["xw"] == 1: x1()
for t in CLR[:ncl]: a(t)
a(f"s_cmp_lt_u32 s{sWV}, 2\ns_cselect_b32 s{sXT}, s{sXT}, 99")
a(f"s_mov_b32 s{sRD}, {S0}\ns_min_u32 s{sEV}, s{sXT}, {E1_}\ns_waitcnt vmcnt({ncl + 6 + NX1}) lgkmcnt(0)")
def rdW(d, s_, ks):
    L(f"ds_read_b64_tr_b16 {V(d,2)}, v{vAW} offset:{12288*ks + 1024*s_}")
    return L(f"ds_read_b64_tr_b16 {V(d+2,2)}, v{vAW} offset:{12288*ks + 1024*s_ + 512}")
def rdX(d, t, ks): return L(f"ds_read_b128 {V(d+4*t,4)}, v{vAX0+ks} offset:{2048*t}")
def acc(s_, t): return ACC + 4 * (6 * s_ + t)
stamp(2); stamp(2, 5)
SEG = (1, 0, 2) if OPT['ord'] else (1, 2, 0)
PRE = OPT["pre"]
def rdlist(ph):
    o = []
    def w(s_):
        d = WV2 if (ph, s_) == (1, 1) else WF + 12 * ph + 4 * s_
        for e in range(2): o.append((("w", ph, s_), f"ds_read_b64_tr_b16 {V(WF+12*ph+4*s_+2*e,2)}, v{vAW} offset:{12288*ph + 1024*s_ + 512*e}"))
    w(SEG[0])
    for t in range(6): o.append((("x", ph, t), f"ds_read_b128 {V(XF+24*ph+4*t,4)}, v{vAX0+ph} offset:{2048*t}"))
    w(SEG[1]); w(SEG[2])
    return o
WV2 = WF + 24
def step(first):
    a("s_barrier")
    stampi(0)
    L.reset(); ids = {}
    M = [(s_, t) for s_ in SEG for t in range(6)]
    seq = ([] if first else [(1, "o") + m for m in M[PRE:]]) + [(0, "n") + m for m in M] + [(1, "n") + m for m in M[:PRE]]
    no = 0 if first else 18 - PRE
    pend = rdlist(0); p1 = rdlist(1)
    def rd(n=1):
        for _ in range(n):
            if pend: k, tx = pend.pop(0); ids[k] = L(tx)
    rd(12 if first else 2)
    fill = [f"s_add_u32 s3, s{sRD}, {SLOT}\ns_cmp_eq_u32 s3, {S0 + 4*SLOT}", f"s_cselect_b32 s3, {S0}, s3\ns_sub_u32 s{sDL}, s3, s{sRD}",
            f"s_mov_b32 s{sRD}, s3\nv_add_u32 v{vAX0}, s{sDL}, v{vAX0}", f"v_add_u32 v{vAW}, s{sDL}, v{vAW}\nv_add_u32 v{vAX1}, s{sDL}, v{vAX1}"]
    if not first: fill.append(f"s_cmp_eq_u32 s{sI}, s{sEV}\ns_cbranch_scc1 L_ev\nL_evb:")
    fill.append("STAMP"); fill.append(f"s_add_u32 s{sI}, s{sI}, 1\ns_cmp_lt_u32 s{sI}, 9"); fill.append("s_waitcnt lgkmcnt(0)")
    for n, (ph, kd, s_, t) in enumerate(seq):
        if n == no: pend += p1
        if kd == "n":
            need = max(ids["x", ph, t], ids["w", ph, s_])
            if s_ == SEG[0] and t == 0 and L.n - ids.get(("x", ph, 5), L.n) >= 4: need = ids["x", ph, 5]
            L.wait(need)
        if first or not (OPT["dbg"] & 256 and t & 1): mfma(acc(s_, t), WF + 12 * ph + 4 * s_, XF + 24 * ph + 4 * t, "0" if first and ph == 0 else None)
        if pend: rd()
        elif n >= no and fill and (len(fill) > 1 or n >= len(seq) - 2):
            f = fill.pop(0)
            if f == "STAMP": stampi(1)
            else: a(f)
    for f in fill: stampi(1) if f == "STAMP" else a(f)
step(1)
for t in CLR[ncl:]: a(t)
a("s_waitcnt vmcnt(4)")
CL0 = len(a.lines)
pagebreak("c0")
a("L_cloop:")
step(0)
a("s_cbranch_scc1 L_cloop")
L.reset(); ids = {}
def wreg(ks, s_): return WV2 if (ks, s_) == (1, 1) else WF + 12 * ks + 4 * s_
later = []
def lw(ks, s_):
    for e in range(2): later.append((("w", ks, s_), f"ds_read_b64_tr_b16 {V(wreg(ks,s_)+2*e,2)}, v{vAW} offset:{12288*ks + 1024*s_ + 512*e}"))
def lx(ks):
    for t in range(6): later.append((("x", ks, t), f"ds_read_b128 {V(XF+48*ks+4*t,4)}, v{vAX0+ks} offset:{2048*t}"))
lw(0, 1); lx(0); lw(1, 1); lx(1); lw(0, SEG[1]); lw(0, SEG[2])
def rd_later(n=1):
    for _ in range(n):
        if later: k, tx = later.pop(0); ids[k] = L(tx)
def old(s_, t): mfma(acc(s_, t), WF + 12 + 4 * s_, XF + 24 + 4 * t)
def new(s_, ks, t):
    L.wait(max(ids["w", ks, s_], ids["x", ks, t])); mfma(acc(s_, t), wreg(ks, s_), XF + 48 * ks + 4 * t)
def mlist(s_): return [(s_, "o", t) for t in range(6)] + [(s_, ks, t) for ks in range(2) for t in range(6)]
def mm(q):
    s_, k, t = q.pop(0)
    if k != "o" and ("w", k, s_) not in ids: rd_later(9)
    old(s_, t) if k == "o" else new(s_, k, t)
    if k == "o" and t == 5 and s_ != 1: lw(1, s_)
def fixup(s_, q, per):
    for r in range(4):
        a(f"v_mov_b32_dpp v{CS+r}, v{acc(s_,0)+r} row_newbcast:0 {DPPM}")
    wr = None
    for t in range(6):
        A = acc(s_, t); st = V(ST + 2 * t, 2)
        if per or not OPT["pk"]:
            ops = [f"v_fmac_f32 v{A+h}, v{CS+h}, v{ST+2*t}" for h in range(4)]
        else:
            ops = [f"v_pk_fma_f32 {V(A+h,2)}, {V(CS+h,2)}, {st}, {V(A+h,2)} op_sel_hi:[1,0,1]" for h in (0, 2)]
        ops += [f"v_cvt_pk_bf16_f32 v{A}, v{A}, v{A+1}", f"v_cvt_pk_bf16_f32 v{A+1}, v{A+2}, v{A+3}"]
        for i, o in enumerate(ops):
            if q and ((per >= 2 and i == 3) or (per >= 3 and i == 0)): mm(q)
            a(o)
        if q and per >= 1: mm(q)
        if (s_, t) in ((SEG[1], OPT["bk"]), (SEG[2], OPT["bv"])): L.wait(L.n - t); a("s_barrier")
        L(f"ds_write_b64 v{vSW}, {V(A,2)} offset:{TSTR*s_ + 16*PITCH*t}")
km, qm, vm = mlist(1), mlist(SEG[1]), mlist(SEG[2])
a(f"v_mov_b32 v1, {MODE}")
sr = ["ds_read_b32 v1, v1"] + [f"ds_read2_b64 {V(ST+2*t,4)}, v{vSTR} offset0:{32*t} offset1:{32*t + 32}" for t in range(0, 6, 2)]
for i in range(PRE):
    s_, _, t = (km if i < 6 else qm if i < 12 else vm).pop(0)
    if t == 5 and s_ != 1: lw(1, s_)
for o in sr: a(o)
a(f"s_waitcnt lgkmcnt(0)\nv_readfirstlane_b32 s{sMODE}, v1\ns_barrier")
stamp(3); stamp(9, 2); stamp(0, 3)
if not OPT["clr"]: a(f"s_cmp_eq_u32 s{sMODE}, 1\ns_cbranch_scc0 L_gs\nL_gsb:")
rd_later(2)
n = 0
for q in (km, qm, vm):
    while q[0][1] == "o" and (n < 6 or q is km): mm(q); rd_later(); n += 1
rd_later(2)
while km: mm(km); rd_later()
mm(qm); rd_later(9)
assert not later
fixup(1, qm, -(-len(qm) // 6))
while qm: mm(qm)
mm(vm)
fixup(SEG[1], vm, -(-len(vm) // 6) if not OPT["ord"] else OPT["vq"])
if not OPT["ord"]:
    while vm: mm(vm)
    fixup(0, [], 0)
else:
    for _ in range(2):
        if vm: mm(vm)
    a(f"s_setprio {OPT['vprio']}")
stamp(1, 3)
a("s_waitcnt lgkmcnt(0)\ns_barrier")
stamp(4); stamp(2, 3)
if OPT["ord"]:
    L.done = L.n
    a(f"v_mov_b32 v1, {VCN}\nv_mov_b32 v2, 1")
    while vm: mm(vm)
    fixup(2, [], 0)
    a("s_mov_b64 exec, 1\nds_add_u32 v1, v2\ns_mov_b64 exec, -1\ns_setprio 0")
    stamp(4, 3)
if STAGE == "A":
    a("L_dumpA:")
    a(f"s_lshl_b32 s3, s{sWV}, 10\nv_add_u32 v1, s3, v{aL16}\ns_mul_i32 s3, s2, 49152\ns_add_u32 s3, s3, {DUMP}")
    for i in range(6):
        a(f"ds_read_b128 v[16:19], v1 offset:{8192*i}\ns_waitcnt lgkmcnt(0)\nbuffer_store_dwordx4 v[16:19], v1, {S(WS)}, s3 offen\ns_waitcnt vmcnt(0)\ns_add_u32 s3, s3, 8192")
    finish()
a(f"s_cmp_lt_u32 s{sWV}, 2\ns_cbranch_scc0 L_c23")
attention("e")
if STAGE == "B": a("s_waitcnt vmcnt(0)"); finish()

if G2: a("s_branch L_fsh"); deferred()
CL3 = len(a.lines)
if G2: pad("h"); a("L_fsh:\ns_setprio 0")
ldWR(); hinit()
a(f"s_lshl_b32 s0, s{sWV}, 13\ns_add_u32 s0, s0, {EX}\nv_add_u32 v4, s0, v{aL16}\ns_lshl_b32 s0, s{sWV}, 2\ns_add_u32 s0, s0, {XFL}\ns_waitcnt vmcnt(0)")
wrprep(XR)
a("v_mov_b32 v2, s0\nL_fx:")
if OPT["fsl"]: a(f"s_sleep {OPT['fsl']}")
a("ds_read_b32 v1, v2\ns_waitcnt lgkmcnt(0)\nv_cmp_ne_u32 vcc, 2, v1\ns_cbranch_vccnz L_fx")
stamp(9); stamp(9, 4)
if OPT["lprio"]: a(f"s_setprio {OPT['lprio']}")
for q in range(8): a(f"ds_read_b128 {V(OF+4*q,4)}, v4 offset:{1024*q}")
for q in range(8):
    a(f"s_waitcnt lgkmcnt({7-q})")
    for e in range(4): a(f"v_add_f32 v{H+4*(q&3)+e}, v{H+4*(q&3)+e}, v{OF+4*q+e}")
stamp(10, 4)
a("s_branch L_tail")
deferred()
CL1 = len(a.lines)
pad("h")
a("L_c23:")
attention("l")
if STAGE == "B": a("s_waitcnt vmcnt(0)")
finish()
deferred("h")
CL2 = len(a.lines)
pad("h")
a(f"L_ev:\ns_cmp_eq_u32 s{sI}, {EV1}\ns_cbranch_scc0 L_ev1\ns_waitcnt vmcnt(0)\nL_ev1:\ns_max_u32 s{sEV}, s{sXT}, {EV1}")
a(f"s_cmp_eq_u32 s{sI}, s{sXT}\ns_cbranch_scc0 L_evb\ns_sub_u32 s0, s{sRD}, s{sDL}"); capt("s0"); a("s_branch L_evb")
if not OPT["clr"]:
    a("L_gs:")
    clears(" sc1")
    a("s_waitcnt vmcnt(0)\ns_barrier\ns_barrier\ns_branch L_gsb")

if OPT["pg"]:
    mv_ = a.lines[CL2:]; mw_ = a.lines[CL1:CL2]; del a.lines[CL1:]
    if G2: mv_ += a.lines[CL3:]; del a.lines[CL3:]
    a.lines[CL0+1:CL0+1] = mv_ + [";MOEHEAD"]; a.lines[CLX:CLX] = mw_

GATE, UP, DOWN, SM = 4, 8, 12, 28
sMm = 36
GSL = 42240; NGS = 3; MISC = NGS * GSL
SSZ = 8448
ACTB, MZ, WINB, LNL = MISC, MISC + 192, MISC + 256, MISC + 512
GF, DF, GA, XS, IDX = 8, 168, 228, 236, 7
MH0 = len(a.lines)
a("L_moe:")
a(f"s_cmp_ge_u32 s{sU}, 32\ns_cbranch_scc1 L_end")
a(f"s_lshr_b32 s{sWV}, s{sWV}, 6\nv_and_b32 v0, 63, v0\ns_lshl_b32 s{sMm}, s{sJ}, 1\ns_add_u32 s{sMm}, s{sMm}, s{sU}\ns_sub_u32 s{sMm}, s{sMm}, 30\ns_mov_b32 s{sBUD}, {BUDGET}")
a("v_lshlrev_b32 v6, 4, v0\nv_mov_b32 v132, 0\nv_mov_b32 v133, 0\nv_mov_b32 v144, 0\ns_waitcnt lgkmcnt(0)")
mksrd(WS, "ws", 1 << 28); mksrd(DBG, "dbg", 256); mksrd(GATE, "gate", 640 * 3072); mksrd(UP, "up", 640 * 3072); mksrd(DOWN, "down", 1536 * 1280); mksrd(OUT, "out", 2048 * 1280)
stamp(0)
a("v_mov_b32 v8, -1\nv_mov_b32 v9, -1\nv_mov_b32 v10, -1\nv_mov_b32 v11, -1")
a(f"s_lshl_b32 s0, s{sMm}, 14\ns_lshl_b32 s3, s{sWV}, 11\ns_add_u32 s0, s0, s3\ns_add_u32 s0, s0, {RJ}")
for i in range(2): a(f"buffer_store_dwordx4 v[8:11], v6, {S(WS)}, s0 offen offset:{1024*i} sc1")
def rootup(n):
    nr = a.label("nroot")
    a(f"s_waitcnt vmcnt({n})\ns_barrier\ns_cmp_eq_u32 s{sWV}, 0\ns_cbranch_scc0 {nr}")
    a(f"s_lshl_b32 s0, s{sMm}, 4\nv_mov_b32 v8, 1\ns_mov_b64 exec, 1\nbuffer_store_dword v8, off, {S(DBG)}, s0 sc1")
    if OPT["ddie"] >= 0: a(f"v_mov_b32 v9, s98\nbuffer_store_dword v9, off, {S(DBG)}, s0 offset:4 sc1")
    a(f"s_mov_b64 exec, -1\n{nr}:")
if STAGE != "F": rootup(0); finish()
if OPT["mon"]:
    a(f"s_movk_i32 s{sBUD}, 40\ns_bitcmp1_b32 s{sMm}, 0\ns_cbranch_scc0 L_nm\ns_waitcnt vmcnt(0)\ns_barrier\ns_cmp_eq_u32 s{sWV}, 0\ns_cbranch_scc0 L_end")
    a(f"s_lshl_b32 s0, s{sMm}, 4\nv_mov_b32 v8, 1\ns_mov_b64 exec, 1\nbuffer_store_dword v8, off, {S(DBG)}, s0 sc1\ns_waitcnt vmcnt(0)")
    a(f"s_lshl_b32 s0, s{sMm}, 16\nv_mov_b32 v1, s0\nv_mov_b32 v20, 0\nv_mov_b32 v9, -1\ns_add_u32 s1, s0, {DUMP}\ns_mov_b32 m0, 0\ns_bitcmp1_b32 s{sMm}, 1")
    a(f"L_mo:\ns_cbranch_scc1 L_m1\nbuffer_atomic_umin v9, off, {S(WS)}, s1 sc0 sc1\ns_branch L_m2\nL_m1:\nglobal_load_dword v8, v1, s[50:51]\nv_add_u32 v1, 640, v1\nL_m2:")
    a(f"s_waitcnt vmcnt(0)\ns_memrealtime s[44:45]\ns_waitcnt lgkmcnt(0)\ns_sub_i32 s44, s44, s98\nv_writelane_b32 v20, s44, m0\ns_add_i32 m0, m0, 1\ns_cmp_eq_u32 m0, 58\ns_cbranch_scc1 L_m3\ns_bitcmp1_b32 s{sMm}, 1\ns_branch L_mo")
    a(f"L_m3:\nv_writelane_b32 v20, s98, 63\ns_mov_b64 exec, -1\ns_lshl_b32 s3, s2, 4\ns_add_u32 s3, s3, 8\ns_lshl_b32 s3, s3, 7\ns_add_u32 s3, s3, {STAMP}\nv_lshlrev_b32 v3, 2, v0\nbuffer_store_dword v20, v3, {S(WS)}, s3 offen\ns_endpgm\nL_nm:")
vGX, vGS, vRX, vRS = 4, XS + 13, XS + 14, XS + 15
sB5, sKO = 44, 45
a(f"s_and_b32 s{sB5}, s{sMm}, 1\ns_mul_i32 s0, s{sJ}, 384\ns_lshl_b32 s1, s{sB5}, 8\ns_add_u32 s1, s1, s0\ns_mul_i32 s3, s{sWV}, {8*3072}\ns_add_u32 s1, s1, s3")
a(f"v_lshrrev_b32 v1, 3, v0\nv_mul_u32_u24 v1, 3072, v1\ns_lshr_b32 s3, s{sWV}, 1\nv_xor_b32 v2, s3, v0\nv_and_b32 v2, 7, v2\nv_lshl_add_u32 v1, v2, 4, v1\nv_add_u32 v{vGX}, s1, v1\nv_xor_b32 v{vGX+1}, 64, v{vGX}")
a(f"s_lshl_b32 s1, s{sB5}, 6\ns_add_u32 s0, s0, s1\ns_and_b32 s3, s{sWV}, 3\ns_mul_i32 s1, s3, {16*3072}\ns_add_u32 s0, s0, s1\ns_add_u32 s0, s0, 128")
a(f"v_lshrrev_b32 v1, 2, v0\nv_mul_u32_u24 v1, 3072, v1\nv_xor_b32 v2, s3, v0\nv_and_b32 v2, 3, v2\nv_lshl_add_u32 v1, v2, 4, v1\nv_add_u32 v{vGS}, s0, v1")
if OPT["pg"] and G2 and not OPT["mon"]:
    a("s_branch L_moe2"); hd = a.lines[MH0:]; del a.lines[MH0:]
    k = a.lines.index(";MOEHEAD"); a.lines[k:k+1] = hd; a("L_moe2:")
a(f"s_cmp_lt_u32 s{sWV}, 4\ns_cselect_b64 s[{SM}:{SM+1}], s[{GATE}:{GATE+1}], s[{UP}:{UP+1}]\ns_cselect_b32 s62, 0, 128\ns_mov_b32 s{SM+2}, {640*3072:#x}\ns_mov_b32 s{SM+3}, 0x20000")
a(f"s_lshl_b32 s61, s{sWV}, 10\ns_add_u32 s62, s62, s61\ns_mul_i32 s{sB5}, s{sB5}, {5*64*3072}\ns_mul_i32 s46, s{sMm}, {96*1280}")
a(f"s_and_b32 s3, s{sMm}, 1\ns_cselect_b32 s65, 40960, 0\ns_cselect_b32 s66, 0, 81920\ns_add_u32 s65, s65, s46\ns_add_u32 s66, s66, s46\ns_add_u32 s67, s65, 40960")
def koff(i): a(f"s_add_u32 s{sKO}, s{sB5}, {i*64*3072}" if i < 5 else f"s_sub_u32 s{sKO}, {i*64*3072}, s{sB5}")
def dissue(hh, i, sl):
    a(f"s_lshl_b32 s3, s{sWV}, 6\ns_addk_i32 s3, {512*i}\nv_add_u32 v1, s3, v0\nv_mul_u32_u24 v2, 52429, v1\nv_lshrrev_b32 v2, 22, v2")
    a(f"v_and_b32 v3, 3, v2\nv_lshlrev_b32 v3, 1, v3\nv_and_or_b32 v3, v2, 8, v3\nv_xor_b32 v1, v1, v3\nv_lshlrev_b32 v1, 4, v1")
    a(f"s_add_u32 m0, s61, {sl + 8192*i}\ns_nop 0\nbuffer_load_dwordx4 v1, {S(DOWN)}, s{65 + hh} offen lds")
UN = [[("x", i), ("s", i)] for i in range(5)] + [[("x", 5), ("x", 6)], [("x", 7), ("x", 8)], [("x", 9)]]
SU, DU = [[("s", i) for i in range(5, 10)]], [[("d", h)] for h in range(3)]
UN = {0: UN + DU + SU, 1: UN + SU + DU, 2: UN[:6] + SU + UN[6:] + DU}[OPT["uord"]]
def place(u):
    o = (u % NGS) * GSL; r = []
    for kd, i in UN[u]: r.append((kd, i, o)); o += {"x": 16384, "s": SSZ, "d": 40960}[kd]
    return r
def uissue(u):
    n = 0
    for kd, i, o in place(u):
        if kd == "d":
            for k in range(5): dissue(i, k, o)
            n += 5; continue
        koff(i)
        if kd == "x":
            for m_, srd_ in ((0, GATE), (1, UP)): a(f"s_add_u32 m0, s61, {o + 8192*m_}\nbuffer_load_dwordx4 v{vGX+m_}, {S(srd_)}, s{sKO} offen lds")
            n += 2
        else: a(f"s_add_u32 m0, s62, {o}\nbuffer_load_dwordx4 v{vGS}, {S(SM)}, s{sKO} offen lds"); n += 1
    return n
a(f"s_cmp_lt_u32 s{sWV}, {OPT['rw']}\ns_cbranch_scc1 L_r0")
n0 = uissue(0)
a(f"s_waitcnt vmcnt({n0})\ns_barrier\ns_branch L_r1\nL_r0:")
rootup(0)
uissue(0)
a("L_r1:")
if OPT["mlate"]: a(f"L_ml:\ns_memrealtime s[0:1]\ns_waitcnt lgkmcnt(0)\ns_sub_u32 s0, s0, s98\ns_cmp_lt_u32 s0, {OPT['mlate']}\ns_cbranch_scc1 L_ml")
nI = {1: uissue(1)}
a("v_lshrrev_b32 v1, 5, v0\nv_bfe_u32 v2, v0, 2, 1\nv_lshl_add_u32 v1, v1, 2, v2\nv_bfe_u32 v2, v0, 4, 1\nv_bfe_u32 v3, v0, 3, 1\nv_lshl_add_u32 v3, v3, 1, v2\nv_lshl_add_u32 v1, v3, 4, v1")
a(f"v_xor_b32 v3, s{sWV}, v3\nv_and_b32 v2, 1, v0\nv_lshlrev_b32 v2, 3, v2\nv_lshl_add_u32 v2, v3, 4, v2\nv_bfe_u32 v3, v0, 1, 1")
a(f"v_lshl_add_u32 v{vRS}, v1, 6, v2\nv_mul_u32_u24 v8, 4224, v3\nv_add_u32 v{vRS}, v{vRS}, v8")
a(f"v_lshl_add_u32 v{vRX}, v1, 7, v2\nv_mul_u32_u24 v8, {8192 + 64}, v3\nv_xor_b32 v{vRX}, v{vRX}, v8")
vXS, vACT, vA1, vA2, vE4 = 252, 253, 254, 255, 5
for i in range(8): a(f"v_mov_b32 v{GA+i}, 0")
a(f"v_mov_b32 v1, 0x4444\nv_mov_b32 v2, 0xeeee\ns_mov_b32 vcc_lo, 0xaaaaaaaa\ns_mov_b32 vcc_hi, 0xaaaaaaaa\nv_cndmask_b32 v{IDX}, v1, v2, vcc")
a(f"v_and_b32 v1, 48, v0\nv_and_b32 v2, 1, v0\nv_lshlrev_b32 v2, 4, v2\nv_lshl_add_u32 v{vXS}, v1, 1, v2\nv_add_u32 v{vA1}, {ACTB}, v{vXS}\nv_add_u32 v{vXS}, {LNL}, v{vXS}")
a(f"v_add_u32 v1, {ACTB + 128}, v1\nv_mov_b32 v2, {MZ}\nv_cndmask_b32 v{vA2}, v1, v2, vcc\nv_mov_b32 v3, 0\nv_lshl_add_u32 v2, v0, 2, v2\ns_mov_b32 exec_hi, 0\nds_write_b32 v2, v3\ns_mov_b64 exec, -1")
a(f"s_and_b32 s0, s{sWV}, 4\ns_add_u32 s0, s0, s{sWV}\nv_bfe_u32 v1, v0, 4, 1\nv_lshl_add_u32 v1, v1, 2, s0")
a("v_lshrrev_b32 v2, 1, v1\nv_lshlrev_b32 v2, 2, v2\nv_and_or_b32 v2, v1, 1, v2\nv_and_or_b32 v2, v0, 2, v2\nv_bfe_u32 v3, v0, 2, 1\nv_lshl_add_u32 v2, v2, 1, v3")
a(f"v_and_b32 v3, 1, v0\nv_lshl_add_u32 v2, v2, 1, v3\nv_and_b32 v3, 7, v0\nv_lshl_add_u32 v3, v1, 3, v3\nv_cmp_gt_u32 vcc, 8, v1\nv_cndmask_b32 v2, v3, v2, vcc\nv_lshlrev_b32 v2, 1, v2\nv_add_u32 v{vACT}, {ACTB}, v2")
a(f"s_lshl_b32 s47, s{sWV}, 15\ns_lshl_b32 s3, s{sMm}, 6\ns_add_u32 s47, s47, s3\ns_add_u32 s47, s47, {RJ + R_E4}")
a(f"v_lshrrev_b32 v1, 2, v0\nv_and_b32 v2, 3, v0\nv_lshlrev_b32 v2, 4, v2\nv_lshl_add_u32 v2, v1, 10, v2\nv_lshlrev_b32 v1, 4, v1\nv_add_u32 v1, {4096 - 64}, v1\ns_mov_b64 vcc, 0xffff\nv_cndmask_b32 v{XS+10}, v1, v2, vcc")
a(f"s_cmp_lt_u32 s{sWV}, 4\ns_cselect_b32 s50, 0x00ff0000, 0\ns_or_b32 s50, s50, 0xff\ns_mov_b32 s51, 0")
sFT, sFE, sWIN, sXS = 52, 53, 54, 55
a(f"s_sub_u32 s3, s{sWV}, 4\ns_lshl_b32 s3, s3, 4\ns_add_u32 s{sFT}, s3, s{sMm}\ns_mul_i32 s3, s{sFT}, 52\ns_lshr_b32 s3, s3, 8\ns_mul_i32 s3, s3, {RJS - 5120}\ns_lshl_b32 s{sFE}, s{sFT}, 10\ns_add_u32 s{sFE}, s{sFE}, s3\ns_add_u32 s{sFE}, s{sFE}, {RJ + R_E4}")
vFC, vFB, vSG, FD = 128, 129, 130, 40
a(f"s_mov_b32 s49, {BUDGET >> 2}\ns_mov_b32 s63, 0")
a(f"s_mul_i32 s3, s{sFT}, 52\ns_lshr_b32 s3, s3, 8\ns_mul_i32 s0, s3, 5\ns_sub_u32 s0, s{sFT}, s0\ns_mul_i32 s3, s3, 80\ns_lshl_b32 s1, s0, 2\ns_cmp_eq_u32 s0, 4\ns_cselect_b32 s1, 64, s1\ns_cselect_b32 s0, 0, 4\ns_cselect_b32 s48, 2, 0\ns_add_u32 s3, s3, s1")
a(f"v_bfe_u32 v1, v0, 4, 1\nv_lshrrev_b32 v2, 5, v0\nv_lshl_add_u32 v1, v1, 1, v2\nv_lshlrev_b32 v1, s0, v1\nv_and_b32 v2, 3, v0\nv_lshlrev_b32 v2, s48, v2\nv_add3_u32 v1, v1, v2, s3\nv_lshlrev_b32 v{vFC}, 1, v1\nv_lshlrev_b32 v{vFB}, 2, v1")
a("v_lshrrev_b32 v1, 4, v0\nv_bfe_u32 v2, v0, 2, 2\nv_lshl_add_u32 v1, v1, 3, v2\nv_mul_u32_u24 v1, 1280, v1\nv_and_b32 v3, 1, v0\nv_lshl_add_u32 v1, v3, 3, v1")
a(f"v_bfe_u32 v2, v0, 2, 3\nv_lshlrev_b32 v2, 1, v2\nv_bfe_u32 v3, v0, 1, 1\ns_mul_i32 s0, s{sWV}, 10")
for i in range(5): a(f"s_add_u32 s3, s0, {2*i}\nv_add_u32 v{XS+i}, s3, v3\nv_xor_b32 v{XS+i}, v{XS+i}, v2\nv_lshl_add_u32 v{XS+i}, v{XS+i}, 4, v1")
for u in range(len(UN)):
    a(f"s_waitcnt vmcnt({nI.get(u + 1, 0) + (u == 6)}) lgkmcnt(0)\ns_barrier")
    if u + 2 < len(UN): nI[u + 2] = uissue(u + 2)
    sk = False
    for kd, i, o in place(u):
        if kd == "d":
            for k in range(5):
                a(f"v_add_u32 v1, {o}, v{XS+k}")
                for e in range(2): a(f"ds_read_b64_tr_b16 {V(DF+12*k+4*i+2*e,2)}, v1 offset:{1280*4*e}")
            continue
        if kd == "s" and not sk: a(f"s_cmp_lt_u32 s{sWV}, 4\ns_cbranch_scc0 L_g{u}"); sk = True
        a(f"v_add_u32 v1, {o}, v{vRX if kd == 'x' else vRS}")
        p = 128 if kd == "x" else 64
        for hh in range(2):
            for e in range(2): a(f"ds_read_b64_tr_b16 {V(GF+80*(kd == 's')+8*i+4*hh+2*e,2)}, v1 offset:{p*(8*hh + 2*e)}")
    if sk: a(f"L_g{u}:")
    if u == 5: a(f"v_and_b32 v{XS+12}, 0xf0, v6\nbuffer_load_dword v{XS+11}, v{XS+12}, {S(DBG)}, 0 offen sc1")
    if u == 7: stamp(1)
stamp(2)
pagebreak()
warm("m", 0, 1)
a(f"v_mov_b32 v{vE4}, v{XS+10}\nv_mov_b32 v4, {WINB}\ns_mov_b32 s61, 0\ns_cmp_lt_u32 s{sWV}, 7\ns_cbranch_scc1 L_np")
a(f"L_rt:\nv_cmp_ne_u32 vcc, 1, v{XS+11}\ns_cbranch_vccz L_rtg\nbuffer_load_dword v{XS+11}, v{XS+12}, {S(DBG)}, 0 offen sc1\ns_waitcnt vmcnt(0)\ns_sub_u32 s{sBUD}, s{sBUD}, 1\ns_cbranch_scc0 L_rt\ns_mov_b32 s{sBUD}, 0\nL_rtg:")
vKA, vKB, sKO_, sAG, sSP = 144, 146, 64, 60, 61
NFL = 16
a(f"v_bfe_u32 v1, v0, 2, 3\nv_lshlrev_b32 v1, 15, v1\nv_and_b32 v2, 3, v0\nv_min_u32 v2, 2, v2\nv_mul_u32_u24 v3, 1280, v2\ns_mov_b32 s0, {RJ}\nv_add3_u32 v{vKB+1}, v3, v1, s0\nv_lshl_add_u32 v{vKA}, v2, 7, v1\ns_mul_i32 s0, s{sMm}, 384\ns_add_u32 s{sKO_}, s0, {RJ + R_KEY}")
stamp(3)
vRW = 132
a(f"s_and_b32 s3, s{sMm}, 1\ns_mul_i32 s3, s3, 640\nv_add_u32 v{vRW}, s3, v6\nv_subrev_u32 v2, 1280, v{vRW}\nv_min_u32 v{vRW}, v{vRW}, v2\ns_sub_u32 s3, 1024, s3\nv_add_u32 v{vRW+1}, s3, v6")
row = f"s_mov_b32 m0, {LNL}\ns_mov_b64 exec, -1\nbuffer_load_dwordx4 v{vRW}, {S(WS)}, s{sXS} offen sc1 lds\ns_mov_b32 m0, {LNL + 1024}\ns_mov_b64 exec, 0xffff\nbuffer_load_dwordx4 v{vRW+1}, {S(WS)}, s{sXS} offen sc1 lds"
KP, KV = OPT["kp"], 140
KM = 0x77777777
a(f"s_mov_b32 s{sWIN}, 0\ns_mov_b32 s{sXS}, {OOB:#x}\ns_mov_b32 s{sAG}, {1 << 30}\ns_setprio 3")
def look(k):
    a(row); execset(KM)
    a(f"buffer_atomic_umin v{KV+k}, v{vKA}, {S(WS)}, s{sKO_} offen sc0 sc1")
for k in range(KP): a(f"v_mov_b32 v{KV+k}, -1")
for k in range(KP - 1):
    look(k)
    if OPT["ks"]: a(f"s_sleep {OPT['ks']}")
for k in range(KP):
    a(f"L_pl{k}:")
    look((k + KP - 1) % KP)
    if OPT["sp"]: a(f"s_mov_b32 s62, {k}\ns_cmp_eq_u32 s{sSP}, 2\ns_cbranch_scc1 L_ab\nL_pi{k}:")
    a(f"s_waitcnt vmcnt({3 * (KP - 1)})\nv_cmp_lt_u32 vcc, s{sWIN}, v{KV+k}\ns_sub_u32 s{sAG}, s{sAG}, 1\ns_cbranch_vccz L_pw")
    a(f"s_cselect_b32 s0, s{sSP}, 1\ns_max_i32 s{sAG}, s{sAG}, 0")
    a(f"v_cmp_eq_u32 s[58:59], -1, v{KV+k}\nv_mov_b32 v{vKB}, v{KV+k}\ns_andn2_b64 vcc, vcc, s[58:59]\ns_cbranch_scc0 L_pq{k}")
    if OPT["stamps"] == 1: l = a.label("fu"); a(f"s_cmp_eq_u32 s63, 0\ns_cbranch_scc0 {l}"); stamp(12); a(f"{l}:\ns_add_u32 s63, s63, 1")
    stamp(11)
    a(f"s_mov_b64 exec, -1\nv_cndmask_b32 v{vKB}, 0, v{vKB}, vcc\ns_lshl_b32 s{sSP}, s{sSP}, 1")
    a(f"v_max_u32_dpp v{XS}, v{vKB}, v{vKB} row_ror:8 {DPPM}")
    for r in (4, 2, 1): a(f"v_max_u32_dpp v{XS}, v{XS}, v{XS} row_ror:{r} {DPPM}")
    a(f"v_mov_b32 v{XS+1}, v{XS}\ns_mov_b32 s{sAG}, {KP - 1}\nv_permlane16_swap_b32 v{XS}, v{XS+1}\nv_max_u32 v{XS}, v{XS}, v{XS+1}\ns_mov_b32 exec_hi, 0\nv_cmpx_eq_u32 vcc, v{XS}, v{vKB}")
    a(f"ds_write_b64 v4, {V(vKB,2)}\nv_readfirstlane_b32 s{sXS}, v{vKB+1}\nv_readfirstlane_b32 s{sWIN}, v{vKB}\ns_branch L_pl{(k + 1) % KP}\nL_pq{k}:")
    if OPT["sp"]: a(f"s_cmp_eq_u32 s0, 0\ns_cselect_b32 s{sSP}, 1, s{sSP}\ns_cbranch_scc1 L_pg")
    if OPT["ks"]: a(f"s_sleep {OPT['ks']}")
a(f"s_sub_u32 s{sBUD}, s{sBUD}, 1\ns_cbranch_scc0 L_pl0\ns_mov_b32 s{sBUD}, 0\ns_waitcnt vmcnt(0)\ns_cmp_eq_u32 s0, s0")
a("L_pw:")
stamp(4)
a("s_cbranch_scc0 L_pv")
if OPT["sp"]: a(f"s_cmp_eq_u32 s{sSP}, 1\ns_mov_b32 s{sSP}, 0\ns_mov_b64 exec, -1\ns_cbranch_scc1 L_bb")
a("s_branch L_pg\nL_pv:")
for v in range(KP - 1):
    a(f"s_cmp_eq_u32 s{sAG}, {v}\ns_waitcnt vmcnt({1 + 3 * (KP - 2 - v)})\n" + ("s_cbranch_scc1 L_pg" if v < KP - 2 else "s_branch L_pg"))
if OPT["sp"]: a(f"L_ab:\ns_mov_b64 exec, -1\nds_write_b32 v4, v4 offset:{NFL}\ns_branch L_bb")
a(f"L_xf:\n{row}\ns_waitcnt vmcnt(0)\nL_pg:\ns_mov_b64 exec, -1")
def back(l, d):
    if not OPT["sp"]: return "s_branch L_xf"
    return "\n".join(f"s_cmp_eq_u32 s62, {k}\ns_cbranch_scc1 {l}{(k + d) % KP}" for k in range(KP - 1)) + f"\ns_branch {l}{(KP - 1 + d) % KP}"
def wback(p):
    if OPT["wb"] & p: a(f"s_and_b32 s3, s{sMm}, 1\ns_add_u32 s3, s3, s{sWV}\ns_cmp_eq_u32 s3, 8\ns_cbranch_scc0 L_wb{p}\nbuffer_wbl2 sc1\nL_wb{p}:")
a("L_np:\ns_waitcnt lgkmcnt(0)\ns_barrier")
stamp(5)
def smf(d, A, B): a(f"v_smfmac_f32_16x16x64_bf16 {V(d,4)}, {V(A,4)}, {V(B,8)}, v{IDX}")
a(f"s_cmp_lt_u32 s{sWV}, 4\ns_cbranch_scc1 L_xh")
XL = 88
wback(1)
a(f"ds_read_b64 v[2:3], v4")
for s in range(10): a(f"ds_read_b128 {V(XL+4*s,4)}, v{vXS} offset:{128*s}")
def slook(k):
    if OPT["sp"]: a(f"s_cmp_eq_u32 s{sSP}, 0\ns_cbranch_scc1 L_sl{k}"); look(k); a(f"s_mov_b64 exec, -1\nL_sl{k}:")
slook(0)
a(f"s_waitcnt lgkmcnt(10)\nv_readfirstlane_b32 s56, v2\nv_readfirstlane_b32 s57, v3")
fo = [f"s_and_b32 s0, s57, 0x7fff\ns_add_u32 s57, s57, s0\ns_add_u32 s57, s57, {R_BASE}\ns_and_b32 s1, s56, 0xfffff800",
      f"s_ashr_i32 s3, s1, 31\ns_not_b32 s3, s3\ns_or_b32 s3, s3, 0x80000000\ns_xor_b32 s1, s1, s3", f"s_andn2_b32 s56, 2047, s56\ns_mul_i32 s56, s56, 1280\nv_mov_b32 v{vSG}, s1",
      f"v_mul_f32 v{vSG}, 0xbfb8aa3b, v{vSG}", f"v_exp_f32 v{vSG}, v{vSG}", f"v_add_f32 v{vSG}, 1.0, v{vSG}", f"v_rcp_f32 v{vSG}, v{vSG}"]
for s in range(10):
    a(f"s_waitcnt lgkmcnt({9-s})"); smf(GA, XL + 4 * s, GF + 8 * s)
    if fo: a(fo.pop(0))
assert KP == 3
slook(1)
a("s_branch L_xj"); pad("m"); a("L_xh:")
for s in range(4): a(f"ds_read_b128 {V(XS+4*s,4)}, v{vXS} offset:{128*s}")
for s in range(10):
    a(f"s_waitcnt lgkmcnt({min(3, 9-s)})")
    smf(GA, XS + 4 * (s % 4), GF + 8 * s); smf(GA + 4, XS + 4 * (s % 4), GF + 80 + 8 * s)
    if s + 4 < 10: a(f"ds_read_b128 {V(XS+4*(s%4),4)}, v{vXS} offset:{128*(s+4)}")
a("L_xj:\ns_mov_b64 vcc, 0xffff")
a(f"v_add_f32 v1, v{GA}, v{GA+1}\nv_add_f32 v2, v{GA+4}, v{GA+5}\nv_cndmask_b32 v1, v2, v1, vcc")
a(f"v_mul_f32 v2, 0xbfb8aa3b, v1\nv_cmp_u_f32 vcc, v1, v1\nv_exp_f32 v2, v2\nv_mul_f32_dpp v3, v1, v1 row_ror:8 {DPPM}\nv_add_f32 v2, 1.0, v2\nv_rcp_f32 v2, v2\ns_mov_b64 exec, s[50:51]")
a(f"v_mul_f32 v1, v2, v3\nv_cvt_pk_bf16_f32 v1, v1, v1\nds_write_b16 v{vACT}, v1\ns_mov_b64 exec, -1\ns_cbranch_vccnz L_xn\nL_xnb:")
DEFER.append(f"L_xn:\nds_write_b32 v4, v4 offset:{NFL}\ns_branch L_xnb")
stamp(6)
DEFER.append(f"L_xsr:\ns_sub_u32 s49, s49, 1\ns_cbranch_scc1 L_xsgo\n" + "\n".join(f"v_mov_b32 v{GA+i}, 0" for i in (0, 1, 4, 5))
             + f"\ns_waitcnt lgkmcnt(0)\ns_barrier\ns_cmp_eq_u32 s{sWV}, 7\ns_cbranch_scc0 L_np\nds_write_b32 v4, v{GA} offset:{NFL}\ns_cmp_eq_u32 s{sSP}, 2\ns_cbranch_scc0 L_xf\ns_mov_b32 s{sSP}, 0\ns_mov_b64 exec, {KM:#x}\n" + back("L_pi", 0))
if OPT["sp"]: a(f"s_cmp_eq_u32 s{sSP}, 0\ns_cbranch_scc0 L_pl0")
a(f"L_bb:\ns_waitcnt lgkmcnt(0)\ns_barrier")
DD = 8
a(f"ds_read_b32 v1, v4 offset:{NFL}\nds_read_b128 {V(XS,4)}, v{vA2}\nds_read_b128 {V(XS+4,4)}, v{vA1}\ns_waitcnt lgkmcnt(2)\nv_cmp_ne_u32 vcc, 0, v1\ns_cbranch_vccnz L_xsr\nL_xsgo:")
a("s_waitcnt lgkmcnt(1)")
for i in (4, 0, 1, 2, 3): mfma(DD + 4 * i, XS, DF + 12 * i + 8, "0")
a("s_waitcnt lgkmcnt(0)")
for i in (4, 0, 1, 2, 3): smf(DD + 4 * i, XS + 4, DF + 12 * i)
PS = 32
a(f"v_add_f32 v1, v{DD+16}, v{DD+17}")
for i in range(4): a(f"v_add_f32 v{PS+i}, v{DD+4*i}, v{DD+4*i+1}")
for i in range(4): a(f"v_mov_b32_dpp v{PS+i}, v1 quad_perm:[{i},{i},{i},{i}] row_mask:0x2 bank_mask:0xf")
a(f"s_mov_b64 exec, 0x1111ffff\nbuffer_store_dwordx4 {V(PS,4)}, v{vE4}, {S(WS)}, s47 offen sc1\ns_mov_b64 exec, -1")
stamp(7)
if OPT["stamps"] == 1: a(f"s_sub_u32 s3, {(BUDGET >> 2) + 1}, s49\ns_add_u32 s88, s98, s3\ns_add_u32 s90, s98, s63")
wback(2)
a(f"s_cmp_lt_u32 s{sFT}, 40\ns_cbranch_scc0 L_mfin")
FP = OPT["fp"]
FA = OPT["fa"]; NF = 3 if FA else 2
def fld(k):
    d = FD + 8 * k
    a(f"buffer_load_dword v{d+4}, v{vFB}, {S(WS)}, s57 offen sc1")
    if FA:
        for e in (0, 2): a(f"v_mov_b64 {V(d+e,2)}, 0\nbuffer_atomic_or_x2 {V(d+e,2)}, v6, {S(WS)}, s{sFE} offen offset:{4*e} sc0 sc1")
    else: a(f"buffer_load_dwordx4 {V(d,4)}, v6, {S(WS)}, s{sFE} offen sc1")
if OPT["f0"] > 0: a(f"s_sleep {OPT['f0']}")
if OPT["f0"] < 0: a("s_waitcnt vmcnt(0)")
if OPT["f0"] < -1: a(f"s_sleep {-OPT['f0'] - 1}")
for k in range(FP - 1):
    fld(k)
    if OPT["fs"]: a(f"s_sleep {OPT['fs']}")
a("L_fd:")
if OPT["ftop"]: a(f"s_sleep {OPT['ftop']}")
for k in range(FP):
    fld((k + FP - 1) % FP)
    d = FD + 8 * k
    a(f"s_waitcnt vmcnt({NF*(FP-1)})\nv_max3_u32 v1, v{d}, v{d+2}, v{d+4}\nv_cmp_eq_u32 vcc, -1, v1\ns_cbranch_vccz L_fg{k}")
    if OPT["fs"]: a(f"s_sleep {OPT['fs']}")
a(f"s_sub_u32 s{sBUD}, s{sBUD}, 1\ns_cbranch_scc0 L_fd")
for k in reversed(range(FP)):
    d = FD + 8 * k
    a(f"L_fg{k}:\nv_permlane32_swap_b32 v{d}, v{d+1}\nv_permlane32_swap_b32 v{d+2}, v{d+3}\nv_add_f32 v{d}, v{d}, v{d+1}\nv_add_f32 v{d+2}, v{d+2}, v{d+3}")
    a(f"v_permlane16_swap_b32 v{d}, v{d+2}\nv_add_f32 v{d}, v{d}, v{d+2}")
    for r in (4, 8): a(f"v_add_f32_dpp v{d}, v{d}, v{d} row_ror:{r} {DPPM}")
    a(f"v_fma_f32 v8, v{d}, v{vSG}, v{d+4}\nv_cvt_pk_bf16_f32 v8, v8, v8")
    execset(0x000F000F000F000F)
    a(f"buffer_store_short v8, v{vFC}, {S(OUT)}, s56 offen")
    if k: stamp(8); finish(); pad("m")
stamp(8)
a("L_mfin:")
finish()
deferred("m")
if OPT["stamps"]:
    a("L_dump:\ns_mov_b64 exec, -1\nv_mbcnt_lo_u32_b32 v0, -1, 0\nv_mbcnt_hi_u32_b32 v0, -1, v0\ns_memtime s[0:1]\ns_memrealtime s[62:63]\ns_waitcnt lgkmcnt(0)\nv_mov_b32 v2, 0")
    a("v_writelane_b32 v2, s98, 0\nv_writelane_b32 v2, s62, 1\ns_sub_u32 s3, s0, s96\nv_writelane_b32 v2, s3, 2")
    for i in range(NST): a(f"s_sub_u32 s3, s{70+2*i}, s{98 if OPT['rt'] else 96}\ns_cmp_lt_u32 s3, {5000 if OPT['rt'] else 0x100000}\ns_cselect_b32 s3, s3, 0\nv_writelane_b32 v2, s3, {3+i}")
    a(f"s_lshl_b32 s3, s2, 4\ns_add_u32 s3, s3, s{sWV}\ns_lshl_b32 s3, s3, 7\ns_add_u32 s3, s3, {STAMP}\nv_lshlrev_b32 v3, 2, v0\ns_mov_b32 exec_hi, 0")
    if not OPT["dfix"]: a(f"buffer_store_dword v2, v3, {S(WS)}, s3 offen")
    if OPT["diag"] >= 0:
        a(f"s_sub_u32 s3, s2, {OPT['dwg']}\ns_cmp_lt_u32 s3, {OPT['dn']}\ns_cbranch_scc0 L_end\ns_cmp_eq_u32 s{sWV}, {OPT['dwv']}\ns_cbranch_scc0 L_end")
        a(f"s_sub_u32 s3, s{70+2*OPT['diag']}, s{98 if OPT['dib'] < 0 else 70+2*OPT['dib']}\ns_lshl_b32 s3, s3, {2 if OPT['dib'] < 0 else 4}\ns_add_u32 s3, s3, s62")
        if OPT["dfix"]: a(f"s_add_u32 s3, s98, {OPT['dfix']}")
        if OPT["dpr"]:
            a(f"s_sub_u32 s0, s94, s86\ns_cmp_gt_u32 s0, {OPT['dpr']}\ns_cselect_b32 s0, 2048, 0\ns_add_u32 s3, s3, s0\ns_mul_i32 s0, s98, 40503\ns_bfe_u32 s0, s0, 0xb0005\ns_add_u32 s3, s3, s0")
        if OPT["ddie"] >= 0:
            a(f"s_mov_b64 exec, -1\nv_and_b32 v1, 7, v0\nv_lshlrev_b32 v1, 5, v1\nbuffer_load_dword v2, v1, {S(DBG)}, 0 offen offset:4 sc1\ns_waitcnt vmcnt(0)\nv_readlane_b32 s0, v2, 0")
            for k in range(1, 8): a(f"v_readlane_b32 s1, v2, {k}\ns_min_u32 s0, s0, s1")
            a(f"v_readlane_b32 s1, v2, {OPT['ddie']}\ns_sub_u32 s1, s1, s0\ns_and_b32 s1, s1, 0x3ff\ns_lshl_b32 s1, s1, 5\ns_add_u32 s3, s0, {OPT['dfix']}\ns_add_u32 s3, s3, s1")
        a("L_dg:\ns_memrealtime s[62:63]\ns_waitcnt lgkmcnt(0)\ns_sub_u32 s0, s62, s3\ns_cmp_lt_i32 s0, 0\ns_cbranch_scc1 L_dg")
a("L_end:\ns_endpgm")
for i, l in reversed(list(enumerate(a.lines))):
    if l.startswith(";WARM"):
        _, cat, k, n = l.split()
        a.lines[i:i+1] = [f"s_call_b64 s[100:101], {p}" for p in PADS.get(cat, [])[int(k)::int(n)]]
print({k: len(v) for k, v in PADS.items()})
body, nn = hazard.fix(a.lines[body0:], OPT["verbose"])
a.lines[body0:] = body
kernel_desc(a, K, 256)
open(sys.argv[1], "w").write(a.text())
print("nops inserted:", nn, "lines:", len(a.lines))
```

```python
import sys, struct, math
sys.path.insert(0, "gen")
from common import *
import hazard

OPT = dict(stage="F", stamps=0, verbose=0, nl=9, pg=1, kw=0, kr=3, kn=1, kc=15, e2p=0, fmode=1, n0=8, na=2, nb=10, n1=0, o2=0, hp=1, cdw=0, sf=2, dpn=1, hpr=1, fsl=1, bk=0, bv=-1, wc=1, tch=5, bud=1 << 19, rw=5, clr=0, pf0=1, uord=0, mt=1, mx=8, x1=2, xw=0, w1=1, ppr=0, sp=0, g2=1, gs=2, lag=5, dist=20, cprio=0, cp2=2, hp2=1, op2=6, wb=0, pfp=3, te=0, tl=1, t2=0, wsp=0, ws0=2, ord=0, vpos=1, off="27945386", kl=1, ftop=0, mlate=0, rf=1, kp=3, ks=2, ka=1, fp=3, fs=1, fa=0, f0=0, hlp=1, r2=5, e1=1, e2=4, dep=3, dep2=6, opos=1, vq=2, spf=0, pk=1, rsp=3, osc="plain",
           diag=-1, dwg=77, dn=1, dib=-1, dfix=0, ddie=-1, mon=0, ev=3, fs7=1, cm0=1, dpr=0, ncp=4, wrl=0, dwv=0, slpk=0, prio=1, ou=5, grp=0, rt=1, dbg=0, wri=5, pre=12, aprio=1, lprio=2, vprio=2, oul=5, xprio=1, cpos=1)
for kv in sys.argv[2:]:
    k, v = kv.split("=")
    assert k in OPT, k
    OPT[k] = int(v) if v.lstrip("-").isdigit() else v
STAGE = OPT["stage"]

E2, SP, RJ, STAMP, DUMP = 0x200000, 0x280000, 0x300000, 0x500000, 0x1000000
RJS = 32768
R_BASE, R_FL, R_E4, R_KEY = 4096, 12288, 16384, 21504
SLOT, S0 = 36864, 8192
PITCH = 144; TSTR = 96 * PITCH
VB = S0 + SLOT - TSTR; KB = VB - TSTR; QB = KB - TSTR
STATS, ZR = 0, 1792
MODE, KMAX, WFL, VCN, HRD, XFL = 1728, 1732, 1744, 1748, 1752, 1760
WOB = S0 + 2 * SLOT
EX = S0 + SLOT + 12288
LTB, LFL = EX + 16384, 1768
G2 = OPT['g2']
if G2: OPT['dep'] = OPT['dep2']; OPT['sf'] = 5
assert ZR + 8 * PITCH + 64 <= QB
X, W, WO, WS, OUT, DBG, WR = 4, 8, 12, 16, 20, 24, 28
sWV, sJ, sU, sG, sC, sC5, sT, sB0, sBUD, sMODE, sI, sGID = range(32, 44)
KA = dict(x=44, w=46, wo=48, wr=52, gate=54, up=56, down=60, out=62, dbg=64, ws=66)
BUDGET = OPT['bud']
DPPM = "row_mask:0xf bank_mask:0xf"
ONES = 0x3F803F80
OOB = 0x80000000
def f32(x): return struct.unpack("<I", struct.pack("<f", x))[0]
CEXP = f32(20 ** -0.5 * math.log2(math.e))

a = Asm()
def S(d): return f"s[{d}:{d+3}]"
def V(d, n=1): return f"v{d}" if n == 1 else f"v[{d}:{d+n-1}]"
def mksrd(d, name, size): a(f"s_mov_b64 s[{d}:{d+1}], s[{KA[name]}:{KA[name]+1}]\ns_mov_b32 s{d+2}, {size:#x}\ns_mov_b32 s{d+3}, 0x20000")
def execset(m):
    if m == -1: a("s_mov_b64 exec, -1")
    elif m < (1 << 31): a(f"s_mov_b64 exec, {m:#x}")
    else: a(f"s_mov_b32 exec_lo, {m & 0xffffffff:#x}\ns_mov_b32 exec_hi, {m >> 32:#x}")
def smask(d, m): a(f"s_mov_b32 s{d}, {m & 0xffffffff:#x}\ns_mov_b32 s{d+1}, {m >> 32:#x}")
def lanes(f): return sum(1 << l for l in range(64) if f(l))
def mfma(d, A, B, C=None):
    c = V(d, 4) if C is None else (C if isinstance(C, str) else V(C, 4))
    a(f"v_mfma_f32_16x16x32_bf16 {V(d,4)}, {V(A,4)}, {V(B,4)}, {c}")
DEFER = []
def lst(text):
    l = a.label("gl")
    a(f"s_cmp_eq_u32 s{sMODE}, 1\ns_cbranch_scc0 {l}g")
    a(text.replace("{F}", "")); a(f"{l}b:")
    DEFER.append(f"{l}g:\n" + text.replace("{F}", " sc1") + f"\ns_branch {l}b")
PADS = {}
def pad(cat):
    if not OPT["pg"]: return
    l = a.label("pad"); PADS.setdefault(cat, []).append(l); a(f"{l}:\ns_setpc_b64 s[100:101]")
def pagebreak(cat=None, live=True, stubs=False):
    if not OPT["pg"]: return
    l = a.label("pb")
    if live: a(f"s_branch {l}")
    if stubs:
        keep = [t for t in DEFER if t.startswith("L_wo")]
        DEFER[:] = [t for t in DEFER if not t.startswith("L_wo")]
        deferred(cat); DEFER[:] = keep
    a(".p2align 12")
    if cat: pad(cat)
    a(f"{l}:")
def warm(cat, k, n): a(f";WARM {cat} {k} {n}")
def deferred(cat=None):
    n = 999
    for t in DEFER:
        if cat and n > 110: pad(cat); n = 0
        a(t); n += t.count("\n") + 1
    DEFER.clear()
def capture(fn):
    global a
    class C:
        def __init__(s): s.g = []
        def __call__(s, t=""): s.g.append(t)
        def label(s, b): return a0.label(b)
    a0 = a; a = C(); fn(); g = a.g; a = a0
    return g
class Cnt:
    def __init__(s, name, mx): s.n = 0; s.name = name; s.mx = mx; s.done = 0
    def __call__(s, text): a(text); s.n += 1; return s.n
    def wait(s, i):
        if i <= s.done: return
        k = min(s.mx, s.n - i); a(f"s_waitcnt {s.name}({k})"); s.done = s.n - k
    def reset(s): s.n = 0; s.done = 0
L = Cnt("lgkmcnt", 15)

NST = 13
CLK = "s_memrealtime" if OPT["rt"] else "s_memtime"
def stamp(i, lvl=1):
    if OPT["stamps"] == lvl: a(f"{CLK} s[{70+2*i}:{71+2*i}]")
def stampi(ph):
    if OPT["stamps"] == 2:
        if ph == 0: a(f"{CLK} s[94:95]")
        else: a(f"s_lshl_b32 m0, s{sI}, 1\ns_waitcnt lgkmcnt(0)\ns_movreld_b32 s70, s94")
def finish():
    a("s_branch L_dump" if OPT["stamps"] else "s_endpgm")

a(HEADER.rstrip())
a("; @launch grid=(256,1,1) block=(512,1,1) lds=163840")
if OPT["stamps"] and OPT["grp"]: a("; @groups g0:0-79:2-2 g1:80-159:2-2 g2:160-239:2-2 m7:240-255:7-7")
if OPT["stamps"] and OPT["rt"]: a("; @rt")
if OPT["stamps"] and not OPT["grp"]: a("; @groups c0:0-239:0-0 c2:0-239:2-2 h0:0-239:4-4 h1:0-239:5-5 h3:0-239:7-7 m0:240-255:0-0 m4:240-255:4-4 ma:240-247:7-7 mb:248-255:7-7")
a('.amdgcn_target "amdgcn-amd-amdhsa--gfx950"')
K = NAME + "_kernel"
kernel_begin(a, K, OPT.get("page", 1))
body0 = len(a.lines)
NL = OPT["nl"]
a("s_load_dwordx16 s[44:59], s[0:1], 0\ns_load_dwordx8 s[60:67], s[0:1], 56")
if OPT["stamps"]: a("s_memrealtime s[98:99]\ns_memtime s[96:97]")
a(f"s_lshr_b32 s{sU}, s2, 3\ns_and_b32 s{sJ}, s2, 7\nv_readfirstlane_b32 s{sWV}, v0\ns_getpc_b64 s[100:101]\nL_pc:")
if OPT['dbg'] & 32: a('s_load_dword s79, s[100:101], 0x7000')
a(f"s_mul_i32 s3, s{sU}, {NL}\nv_min_u32 v2, {NL-1}, v0\nv_add_lshl_u32 v2, v2, s3, 7\nv_min_u32 v2, L_end-L_pc, v2")
a(f"s_cmp_ge_u32 s{sU}, 30\ns_cbranch_scc1 L_moe")
a("global_load_dword v255, v2, s[100:101]")
a(f"s_mul_i32 s{sG}, s{sU}, 26\ns_lshr_b32 s{sG}, s{sG}, 8\ns_mul_i32 s3, s{sG}, 10\ns_sub_u32 s{sC}, s{sU}, s3\ns_lshr_b32 s{sWV}, s{sWV}, 6")
OFT = sum(int(ch) << (4 * i) for i, ch in enumerate(str(OPT["off"])))
a(f"s_lshl_b32 s3, s{sJ}, 2\ns_lshr_b32 s3, {OFT:#x}, s3\ns_and_b32 s{sMODE}, s3, 15\ns_add_u32 s3, s{sC}, s{sMODE}\ns_sub_u32 s68, s3, 10\ns_cselect_b32 s69, s3, s68")
a(f"s_mul_i32 s3, s69, 245760\ns_lshl_b32 s68, s{sC}, 7\ns_add_u32 s3, s3, s68")
a("v_lshrrev_b32 v1, 3, v0\nv_lshrrev_b32 v3, 4, v0\nv_and_b32 v2, 2, v1\nv_and_or_b32 v2, v3, 4, v2\nv_xor_b32 v2, v2, v0\nv_and_b32 v2, 7, v2")
a("v_mul_u32_u24 v4, 3840, v1\nv_lshl_add_u32 v4, v2, 4, v4\nv_add_u32 v4, s3, v4")
vX, vSUM, vXD, vSTW, vBIA, vEV, vEA = 24, 28, 36, 52, 53, 54, 55
sM, sLO, sLT, sP1, sP2 = 44, 52, 54, 55, 56
sXT, sE2L, sRJ, sNO, sSL, sXM, sXO, sLX, sRD, sPF, sSPL, sFO, sSB = range(57, 70)
sEV, sDL, sWO_ = sXM, sXO, sFO
a(f"s_mul_i32 s3, s{sWV}, 3072\ns_add_u32 m0, s3, {S0 + 12288}\nv_and_b32 v0, 63, v0\ns_and_b32 s{sT}, s{sWV}, 3")
a(f"s_lshr_b32 s3, s{sJ}, 1\ns_lshl_b32 s3, s3, 9\ns_mul_i32 s68, s{sG}, 176\ns_add_u32 s3, s3, s68\ns_and_b32 s68, s{sJ}, 1\ns_add_u32 s3, s3, s68\ns_mul_i32 s{sB0}, s3, 1280")
a(f"s_sub_u32 s{sI}, s{sWV}, 5\ns_mul_i32 s3, s{sI}, {32*2560}\ns_add_u32 s3, s3, s{sB0}\ns_sub_u32 s3, s3, {8*2560}")
a(f"v_lshrrev_b32 v1, 3, v0\nv_lshrrev_b32 v3, 4, v0\nv_xor_b32 v3, v3, v0\nv_and_b32 v3, 7, v3\nv_mul_u32_u24 v1, 2560, v1\nv_lshl_add_u32 v1, v3, 4, v1\nv_add_u32 v{vX}, s3, v1")
a(f"s_add_u32 s3, s{sI}, s{sG}\ns_cmp_eq_u32 s3, 4\ns_cselect_b32 s3, {OOB:#x}, 0")
a(f"v_xor_b32 v{vX+1}, 64, v{vX}\nv_add_u32 v{vX+1}, 20480, v{vX+1}\nv_add_u32 v{vX+2}, 40960, v{vX}\nv_add_u32 v{vX+3}, 40960, v{vX+1}\nv_or_b32 v{vX+3}, s3, v{vX+3}")
for d, sz in ((X, 2048 * 1280), (W, 640 * 3840), (WO, 640 * 1280), (WS, 1 << 28), (OUT, 2048 * 1280), (DBG, 256), (WR, 1280)): a(f"s_mov_b32 s{d+2}, {sz:#x}\ns_mov_b32 s{d+3}, 0x20000")
a("s_waitcnt lgkmcnt(0)")
stamp(0)
def mv(d, n): return f"s_mov_b64 s[{d}:{d+1}], s[{KA[n]}:{KA[n]+1}]"
a(f"global_load_lds_dwordx4 v4, s[46:47]\ns_addk_i32 m0, -256\n{mv(X, 'x')}")
a(f"global_load_lds_dwordx4 v4, s[46:47] offset:1280\ns_addk_i32 m0, -256\n{mv(OUT, 'out')}")
a(f"global_load_lds_dwordx4 v4, s[46:47] offset:2560")
for d, n in ((DBG, "dbg"), (WS, "ws"), (W, "w"), (WO, "wo"), (WR, "wr")): a(mv(d, n))
sMT = 96
if OPT["mt"]: a(f"s_cmp_eq_u32 s{sWV}, 4\ns_cselect_b64 s[{sMT}:{sMT+1}], s[54:55], s[{sMT if OPT['stamps'] else 58}:{sMT+1 if OPT['stamps'] else 59}]\ns_cmp_eq_u32 s{sWV}, 5\ns_cselect_b64 s[{sMT}:{sMT+1}], s[56:57], s[{sMT}:{sMT+1}]")
if OPT["mt"] and OPT["stamps"]: a(f"s_cmp_ge_u32 s{sWV}, 6\ns_cselect_b64 s[{sMT}:{sMT+1}], s[58:59], s[{sMT}:{sMT+1}]")
def nextslab(): a(f"s_add_u32 s{sSB}, s{sSB}, 1\ns_cmp_eq_u32 s{sSB}, 10\ns_cselect_b32 s{sSB}, 0, s{sSB}")
def advslot(d): a(f"s_add_u32 s{d}, s{d}, {SLOT}\ns_cmp_eq_u32 s{d}, {S0 + 4*SLOT}\ns_cselect_b32 s{d}, {S0}, s{d}")
def xissue():
    a(f"s_add_u32 m0, s{sSL}, s{sLX}\ns_mov_b32 exec_lo, s{sXM}")
    for i in range(4):
        a(f"buffer_load_dwordx4 v{vX+i}, {S(X)}, s{sXO} offen lds")
        if i < 3: a("s_addk_i32 m0, 1024")
        if i == 0: a("s_mov_b32 exec_lo, -1")
a(f"s_cmp_lt_u32 s{sWV}, 5\ns_cbranch_scc1 L_nx")
a(f"s_lshl_b32 s{sLX}, s{sI}, 12\ns_cselect_b32 s{sXM}, -1, 0xffffff00\ns_lshl_b32 s{sXO}, s69, 7\ns_mov_b32 s{sSL}, {S0}")
xissue()
a("L_nx:")
stamp(1)
aKe, aK4, aKx, aKy = range(200, 204)
aQe, aQx, aQy, aQ4 = 204, 206, 208, 210
aVe, aV1, aV2 = range(216, 219)
QLO, QUP = (aQx, aQy, aQ4), (aQe, aQ4 + 2, aQ4 + 4)
vM, aRK, aCQ, aH0s, aH0l, aOs, aOl, aWO, aOUT, aL16, vRK, aXC, XR = 220, 222, 223, 224, 225, 226, 227, 228, 232, 233, 234, 235, 236
vAW, vAX0, vAX1, vSW, vSTR = 244, 245, 246, 247, 248
WRF, WSP = 244, 252
MASK = [lanes(lambda l: 2 * r + (l >> 5) > (l & 7)) for r in range(4)]
LO = lanes(lambda l: (l & 15) < 8)
sTA, sTP, sTS = 44, 44, 45
aOl2 = XR
def suA():
    a(f"s_mov_b32 s{sBUD}, {BUDGET}\ns_mul_i32 s{sGID}, s{sJ}, 3\ns_add_u32 s{sGID}, s{sGID}, s{sG}\ns_sub_u32 s3, s{sC}, 5\ns_cselect_b32 s{sC5}, s{sC}, s3")
    a(f"s_lshl_b32 s3, s{sWV}, 2\ns_lshr_b32 s{sTA}, 0x32105454, s3\ns_and_b32 s{sTA}, s{sTA}, 7\ns_lshr_b32 s45, s{sT}, 1\ns_add_u32 s45, s45, 4")
    a(f"s_cmp_eq_u32 s{sG}, 2\ns_cselect_b32 s{sNO}, 10, 11")
    a(f"s_sub_u32 s{sXT}, 10, s{sMODE}\nv_lshlrev_b32 v{aL16}, 4, v0")
    a(f"s_mul_i32 s{sE2L}, s{sGID}, 6\ns_add_u32 s{sE2L}, s{sE2L}, s{sTP}\ns_mul_i32 s{sE2L}, s{sE2L}, 2560\ns_add_u32 s{sE2L}, s{sE2L}, {E2}")
    a(f"s_lshl_b32 s{sRJ}, s{sJ}, 15\ns_add_u32 s{sRJ}, s{sRJ}, {RJ}")
    a(f"s_sub_u32 s51, 5, s{sC5}\ns_add_u32 s1, s{sC5}, 1\ns_sub_u32 s3, 15, s{sC5}\ns_cmp_le_u32 s{sC5}, 2\n"
      "s_cselect_b32 s46, 0, s3\ns_cselect_b32 s47, s51, s1\ns_cselect_b32 s48, s3, 0\ns_cselect_b32 s49, s1, s51\ns_cselect_b32 s50, 1, 0")
    a("v_and_b32 v3, 15, v0\nv_add_u32 v3, 8, v3\nv_lshrrev_b32 v4, 1, v3\nv_lshrrev_b32 v5, 5, v0\nv_xor_b32 v4, v4, v5\nv_and_b32 v4, 7, v4")
    a(f"v_lshlrev_b32 v4, 4, v4\nv_lshl_add_u32 v4, v3, 7, v4\nv_bfe_u32 v5, v0, 4, 1\nv_lshl_add_u32 v4, v5, 3, v4\ns_lshl_b32 s3, s{sTP}, 11\nv_add_u32 v{aXC}, s3, v4")
def suB(helper=1):
    a(f"v_and_b32 v1, 15, v0\nv_lshrrev_b32 v2, 4, v0\nv_mov_b32 v7, {ZR}\ns_mul_i32 s0, s{sTA}, {16*PITCH}\ns_movk_i32 s1, {PITCH}")
    a("v_bfe_u32 v3, v0, 2, 1\nv_and_b32 v4, 3, v0\nv_lshlrev_b32 v4, 1, v4"); a("v_lshl_add_u32 v3, v3, 3, v4\nv_bfe_u32 v4, v0, 3, 1\nv_add_u32 v3, v3, v4")
    a(f"s_add_u32 s3, s0, {KB}\nv_mov_b32 v4, s3\nv_mad_u32_u24 v3, v3, s1, v4")
    a(f"s_add_u32 s3, s0, {QB + 8*PITCH}\nv_mov_b32 v4, s3\nv_mad_u32_u24 v4, v1, s1, v4")
    smask(52, LO)
    def kq(dK, dQ, quad, cond):
        a(quad); a(f"v_lshl_add_u32 v{dK}, v5, 3, v3\nv_lshl_add_u32 v5, v5, 3, v4")
        if cond: a(cond); a("v_cndmask_b32 v5, v7, v5, vcc")
        a(f"v_cndmask_b32 v{dQ}, v7, v5, s[52:53]\nv_cndmask_b32 v{dQ+1}, v5, v7, s[52:53]")
    kq(aKe, aQe, "v_add_u32 v5, s51, v2", None)
    if not (G2 and helper):
        kq(aKx, aQx, "v_add_u32 v5, s46, v2", "v_cmp_gt_u32 vcc, s47, v2")
        kq(aKy, aQy, "v_add_u32 v5, s48, v2\nv_min_u32 v5, 15, v5", "v_cmp_gt_u32 vcc, s49, v2")
    a("s_sub_u32 s3, s51, 1\nv_mad_u32_u24 v5, v2, 5, s3\ns_add_u32 s3, s46, 4\nv_mov_b32 v6, s3\ns_mov_b64 vcc, 0xffff\nv_cndmask_b32 v5, v5, v6, vcc")
    a(f"v_min_u32 v5, 15, v5\nv_lshl_add_u32 v{aK4}, v5, 3, v3\nv_lshl_add_u32 v5, v5, 3, v4")
    a(f"s_cmp_eq_u32 s47, 5\ns_cselect_b64 vcc, 0xff, 0\nv_cndmask_b32 v{aQ4}, v7, v5, vcc\ns_lshl_b64 vcc, vcc, 8\nv_cndmask_b32 v{aQ4+1}, v7, v5, vcc")
    for i in range(2, 6): a(f"s_bfm_b64 vcc, 8, {8*i}\nv_cndmask_b32 v{aQ4+i}, v7, v5, vcc")
def suC():
    a(f"s_mul_i32 s0, s{sTA}, {16*PITCH}\ns_movk_i32 s1, {PITCH}")
    a("v_bfe_u32 v3, v0, 2, 3\nv_lshrrev_b32 v4, 5, v0\nv_lshl_add_u32 v3, v3, 1, v4")
    a(f"s_add_u32 s3, s0, {VB}\nv_mov_b32 v4, s3\nv_mad_u32_u24 v3, v3, s1, v4\nv_and_b32 v4, 3, v0")
    smask(54, lanes(lambda l: l & 3 == 0))
    a(f"v_add_u32 v5, s51, v4\nv_lshl_add_u32 v{aVe}, v5, 3, v3\nv_add_u32 v7, 32, v{aVe}")
    a(f"s_cmp_eq_u32 s50, 1\ns_cselect_b32 s3, -1, 12\ns_cselect_b32 s56, 2, -1")
    a(f"v_add_u32 v5, s3, v4\nv_lshl_add_u32 v5, v5, 3, v3\nv_cndmask_b32 v{aV1}, v5, v7, s[54:55]\nv_add_u32 v7, 40, v7")
    a(f"v_add_u32 v5, s56, v4\nv_add_u32 v6, 10, v5\nv_cmp_gt_i32 vcc, s51, v5"); a(f"v_cndmask_b32 v5, v6, v5, vcc\nv_lshl_add_u32 v5, v5, 3, v3\nv_cndmask_b32 v{aV2}, v5, v7, s[54:55]")
    a(f"s_lshl_b32 s0, s{sTA}, 8\nv_lshrrev_b32 v4, 5, v0\nv_and_or_b32 v3, v0, 8, v4\ns_add_u32 s3, s0, {STATS + 8}\nv_lshl_add_u32 v{aRK}, v3, 4, s3")
    a(f"v_and_b32 v1, 15, v0\ns_add_u32 s3, s0, {STATS + 128 + 4}\nv_lshl_add_u32 v{aCQ}, v1, 4, s3")
    a(f"s_lshr_b32 s3, s{sB0}, 8\ns_mul_i32 s3, s3, 52429\ns_lshr_b32 s3, s3, 18\ns_lshl_b32 s0, s{sTP}, 5\ns_add_u32 s3, s3, s0\ns_sub_u32 s3, 2047, s3\nv_mad_i32_i24 v{vRK}, v1, -2, s3")
def octaddr(d, tile, rowq, extra):
    a(f"s_lshl_b32 s3, s{tile}, 4\nv_add_u32 v5, s3, v{rowq}\ns_lshl_b32 s3, s{sNO}, 3\nv_cmp_gt_u32 vcc, s3, v5")
    a(f"v_mul_u32_u24 v5, 2560, v5\nv_add3_u32 v5, v5, v{extra}, s{sB0}\nv_cndmask_b32 v{d}, v6, v5, vcc")
def suD(helper=1):
    a(f"v_lshrrev_b32 v2, 4, v0\nv_and_or_b32 v3, v0, 8, v2\nv_and_b32 v4, 0x70, v{aL16}\nv_bfrev_b32 v6, 1")
    if helper: octaddr(aOl2, sTS, 3, 4)
    octaddr(aOl, sTA, 3, 4)
    if G2 and not helper: a("v_cndmask_b32 v7, v6, 0, vcc"); octaddr(aOl, sT, 3, 4)
    a(f"s_lshl_b32 s3, s{sC}, 7\nv_add_u32 v{aOs}, s3, v{aOl}")
    if G2 and helper: return
    a(f"v_bfe_u32 v3, v0, 4, 1\nv_cmp_eq_u32 s[54:55], s50, v3\ns_cmp_lg_u32 s{sC5}, 0\ns_cselect_b64 s[0:1], -1, s[54:55]\ns_and_b64 vcc, vcc, s[0:1]")
    a(f"s_cmp_lg_u32 s{sC5}, 4\ns_cselect_b64 s[0:1], 0, s[54:55]\ns_andn2_b64 vcc, vcc, s[0:1]")
    a(f"v_cndmask_b32 v{aH0l}, v6, v{aOs}, vcc")
    a(f"s_cmp_le_u32 s{sC5}, 3\ns_cselect_b32 s3, 2560, 0\ns_sub_u32 s3, s3, 128\nv_mov_b32 v4, s3"); a(f"s_cmp_ge_u32 s{sC5}, 2\ns_cselect_b32 s3, 2560, 0\ns_add_u32 s3, s3, 128\nv_mov_b32 v5, s3")
    a(f"v_cndmask_b32 v4, v4, v5, s[54:55]\nv_mul_u32_u24 v3, 2560, v3\nv_sub_u32 v4, v4, v3"); a(f"v_add_u32 v4, v4, v{aOs}\nv_cndmask_b32 v{aH0s}, v6, v4, vcc")
    if G2:
        for k, r in enumerate((aOs, aH0l, aH0s)): a(f"v_or_b32 v{aWO+k}, v7, v{r}")
        a(f"s_sub_u32 s3, s{sTA}, s{sT}\ns_mul_i32 s61, s3, 40960\ns_add_u32 s68, s61, 10240\ns_mul_i32 s0, s3, {16*PITCH}\ns_lshl_b32 s1, s3, 8")
        for r in (aKx, aKy, aK4, aV1, aV2): a(f"v_subrev_u32 v{r}, s0, v{r}")
        for r in (aRK, aCQ): a(f"v_subrev_u32 v{r}, s1, v{r}")
        a(f"s_cmp_lt_u32 s{sWV}, 2\ns_cbranch_scc1 L_q2")
        for d, r in zip(QUP, QLO): a(f"v_mov_b32 v{d}, v{r}\nv_mov_b32 v{d+1}, v{r+1}")
        a("L_q2:")
        for r in QLO:
            for e in range(2): a(f"v_subrev_u32 v{r+e}, s0, v{r+e}\nv_max_i32 v{r+e}, {ZR}, v{r+e}")
def wlane():
    a("v_bfe_u32 v3, v0, 3, 2\nv_lshlrev_b32 v3, 2, v3\nv_and_or_b32 v3, v0, 3, v3"); a("v_lshlrev_b32 v3, 3, v3\nv_bfe_u32 v4, v0, 2, 2\nv_lshl_add_u32 v3, v4, 7, v3")
def suE(helper=1):
    a("v_and_b32 v1, 15, v0\nv_bfrev_b32 v6, 1\nv_bfe_u32 v3, v0, 4, 1\nv_lshrrev_b32 v4, 5, v0"); a(f"v_lshl_add_u32 v3, v3, 1, v4\ns_lshl_b32 s3, s{sC}, 7\nv_lshl_add_u32 v4, v3, 4, s3")
    octaddr(aOUT, sTP, 1, 4)
    wlane()
    a("v_lshrrev_b32 v2, 4, v0")
    if helper:
        a(f"s_and_b32 s3, s{sWV}, 1\ns_lshl_b32 s3, s3, 12\ns_add_u32 s3, s3, {WOB}\nv_lshl_add_u32 v4, v2, 10, v3\nv_add_u32 v{aWO}, s3, v4")
        for ct in range(1, 4): a(f"v_xor_b32 v{aWO+ct}, {32*ct}, v{aWO}")
    for r in range(4): smask(sM + 2 * r, MASK[r])
    a(f"s_movk_i32 s{sLT}, 10240\ns_mov_b32 s{sP1}, 0x07060501\ns_mov_b32 s{sP2}, 0x0706000c")
    a("v_mov_b32 v5, 0xffff\nv_mov_b32 v6, 0xffff0000")
    for d in range(2): a(f"v_cndmask_b32 v1, 0, v5, s[{sM+4*d}:{sM+4*d+1}]\nv_cndmask_b32 v4, 0, v6, s[{sM+4*d+2}:{sM+4*d+3}]\nv_or_b32 v{vM+d}, v1, v4")
KQ, SS, KS, PX, FL_, FE, VF, HL, CQ, TM, F01 = 96, 152, 168, 176, 192, 196, 64, 92, 5, 6, 2
DM, LT, QF = SS, 80, KQ + 20
H, OF, WOF, RING = 8, 24, 104, 6
DEP = OPT["dep"]
def capt(slot, d=XR):
    a(f"v_add_u32 v1, {slot}, v{aXC}")
    for ct in range(4):
        if ct: a(f"v_xor_b32 v{1+ct}, {32*ct}, v1")
        a(f"ds_read_b64 {V(d+2*ct,2)}, v{1+ct}")
def hinit(d=XR):
    for i in range(8): a(f"v_lshlrev_b32 v{H+2*i}, 16, v{d+i}\nv_and_b32 v{H+2*i+1}, 0xffff0000, v{d+i}")
def ldWR():
    a(f"v_lshrrev_b32 v1, 4, v0\nv_lshlrev_b32 v1, 3, v1\ns_lshl_b32 s3, s{sC}, 7")
    for ct in range(4): a(f"buffer_load_dwordx2 {V(WRF+2*ct,2)}, v1, {S(WR)}, s3 offen offset:{32*ct}")
def wrprep(t):
    a(f"s_mov_b32 s3, {ONES:#x}")
    for i in range(4): a(f"v_mov_b32 v{t+i}, s3")
    execset(0x1111111111111111)
    for i in range(8): a(f"v_mov_b32 v{WRF+i}, s3")
    execset(-1)
    for k in range(2): mfma(WSP, WRF + 4 * k, t, "0" if k == 0 else None)
def pzero(lo=0, hi=16):
    for i in range(lo, hi): a(f"v_mov_b32 v{PX+i}, 0")
def ksread(e=None, dt=0):
    e = e or a
    a(f"v_add_u32 v1, 128, v{aRK}")
    for r in range(4):
        e(f"v_cndmask_b32 v4, v1, v{aRK}, s[{sM+2*r}:{sM+2*r+1}]\nds_read_b64 {V(KS+2*r,2)}, v4 offset:{32*r + 256*dt}")
    e(f"ds_read_b32 v{CQ}, v{aCQ} offset:{256*dt}")
def rdmode(): a(f"v_mov_b32 v1, {MODE}\nds_read_b32 v1, v1\ns_waitcnt lgkmcnt(0)\nv_readfirstlane_b32 s{sMODE}, v1")
def gsync_h(poll):
    l = a.label("gh")
    a(f"s_cmp_eq_u32 s{sMODE}, 1\ns_cbranch_scc0 {l}g\n{l}b:")
    t = f"{l}g:\ns_barrier\n"
    if poll:
        t += f"s_cmp_eq_u32 s{sWV}, 5\ns_cbranch_scc0 {l}e\nv_mov_b32 v1, 1\ns_mov_b64 exec, 1\nbuffer_store_dword v1, off, {S(WS)}, s{sFO} offset:64 sc1\ns_mov_b64 exec, -1\n"
        t += f"{l}p:\nbuffer_load_dword v1, v{vEA}, {S(WS)}, 0 offen offset:64 sc1\ns_waitcnt vmcnt(0)\nv_cmp_ne_u32 vcc, 1, v1\ns_cbranch_vccz {l}e\ns_sub_u32 s{sBUD}, s{sBUD}, 1\ns_cbranch_scc0 {l}p\ns_mov_b32 s{sBUD}, 0\n{l}e:\n"
    DEFER.append(t + f"s_barrier\ns_branch {l}b")
def weave(P, xs):
    xs = list(xs); per = -(-len(xs) // len(P))
    for p in P:
        a(p)
        for _ in range(per):
            if xs: a(xs.pop(0))
a("v_mov_b32 v254, v4")
suA()
a(f"s_cmp_lt_u32 s{sWV}, 4\ns_cbranch_scc1 L_cons")
vW, vT = 24, 56
STR = {5: 0, 3: 1, 13: 2, -3: 3, -13: 4}
def wo_setup(vT=vT):
    a(f"v_lshrrev_b32 v1, 3, v0\nv_and_b32 v2, 2, v1\nv_xor_b32 v2, v2, v0\ns_lshl_b32 s3, s{sWV}, 2\nv_xor_b32 v2, s3, v2")
    a(f"v_and_b32 v2, 7, v2\ns_lshl_b32 s3, s{sC}, 7\nv_lshl_add_u32 v2, v2, 4, s3")
    a(f"v_and_b32 v3, 3, v1\nv_mul_u32_u24 v3, 1280, v3\nv_add_u32 v2, v3, v2")
    a(f"v_lshrrev_b32 v3, 5, v0\nv_mul_u32_u24 v3, 5120, v3\nv_sub_u32 v4, 5120, v3")
    for d, i in STR.items(): a(f"v_mad_u32_u24 v{vT+i}, v{3 + (d < 0)}, {abs(d)}, v2")
def wo_quads(cp, h, g):
    c5 = cp % 5
    if h == 0: return 5 - c5 + g, 10 - c5 + g
    if g == 0: return 9 - c5, 14 - c5
    i = g - 1
    p = 3 + i if c5 <= 2 else i
    return (i if c5 <= 2 else 13 + i), (p if p < 5 - c5 else 10 + p)
def wo_piece(st, g):
    h, cp = st // 10, st % 10
    q0, q1 = wo_quads(cp, h, g or 0)
    t = f"s_lshl_b32 s3, s{sT}, 10\ns_add_u32 m0, s3, {WOB}" if st == 0 else "s_addk_i32 m0, 4096"
    o = (64*cp + 4*min(q0, q1)) * 1280
    t += f"\ns_add_u32 s3, s{sPF}, {o}" if g is None else f"\ns_mov_b32 s3, {o}"
    return t + f"\nbuffer_load_dwordx4 v{vT + STR[q1 - q0]}, {S(WO)}, s3 offen lds"
def wo_late(lo, w, vT):
    for st in range(lo, 20):
        for g in (w, w + 2):
            q0, q1 = wo_quads(st % 10, st // 10, g)
            a(f"s_mov_b32 m0, {WOB + 4096*st + 1024*g}" if (st, g) == (lo, w) else "s_addk_i32 m0, 2048")
            a(f"s_mov_b32 s3, {(64*(st % 10) + 4*min(q0, q1)) * 1280}\nbuffer_load_dwordx4 v{vT + STR[q1 - q0]}, {S(WO)}, s3 offen lds")
def wo_run(lo, hi, tag):
    for st in range(lo, min(hi, 10)): a(wo_piece(st, None))
    lo = max(lo, 10)
    if lo >= hi: return
    for g in range(1, 4):
        a(f"s_cmp_eq_u32 s{sT}, {g}\ns_cbranch_scc1 L_wo{tag}{g}")
        DEFER.append(f"L_wo{tag}{g}:\n" + "\n".join(wo_piece(st, g) for st in range(lo, hi)) + f"\ns_branch L_wo{tag}")
    for st in range(lo, hi): a(wo_piece(st, 0))
    a(f"L_wo{tag}:")
N0 = OPT["n0"]; NA = N0 + OPT["na"]; NB = NA + OPT["nb"]; N1 = NB + OPT["n1"]
assert (NA == 10 and N1 == 20 if G2 else 2 * DEP <= N0 <= N1 <= 20)
vTC = 61
EVN = OPT["ev"]
def slow(): return f"s_lshr_b32 s3, s{W}, 7\ns_add_u32 s3, s3, s{sC}\ns_bitcmp1_b32 s3, 0"
def touch_setup():
    if EVN & 1:
        a(f"{slow()}\ns_cselect_b32 s1, 0, s{sNO}\ns_cselect_b32 s100, {OOB:#x}, 0")
        a(f"s_mul_i32 s3, s{sT}, 3\nv_lshrrev_b32 v1, 3, v0\nv_add_u32 v1, s3, v1\ns_add_u32 s3, s3, 3\ns_min_u32 s3, s3, s1\nv_cmp_gt_u32 vcc, s3, v1\nv_bfe_u32 v2, v0, 1, 2\nv_lshl_add_u32 v1, v1, 3, v2")
        a(f"v_mul_u32_u24 v1, 2560, v1\nv_and_b32 v2, 1, v0\nv_lshl_add_u32 v1, v2, 7, v1\ns_and_b32 s0, s{sC}, 14\ns_lshl_b32 s0, s0, 7\ns_add_u32 s3, s0, s{sB0}\nv_add_u32 v1, s3, v1\nv_bfrev_b32 v2, 1\nv_cndmask_b32 v{vTC}, v2, v1, vcc")
        a(f"s_mul_i32 s3, s{sT}, 6\nv_min_u32 v1, 5, v0\nv_add_u32 v1, s3, v1\nv_lshrrev_b32 v2, 2, v1\nv_mul_u32_u24 v2, {2560 - 512}, v2\nv_lshl_add_u32 v1, v1, 7, v2")
        a(f"s_mul_i32 s3, s{sGID}, 15360\ns_lshl_b32 s0, s0, 1\ns_add_u32 s3, s3, s0\ns_add_u32 s3, s3, {E2}\ns_or_b32 s3, s3, s100\nv_add_u32 v{vTC+2}, s3, v1")
    else:
        a(f"s_mul_i32 s3, s{sT}, 3\nv_lshrrev_b32 v1, 2, v0\nv_add_u32 v1, s3, v1\ns_add_u32 s3, s3, 3\ns_min_u32 s3, s3, s{sNO}\nv_cmp_gt_u32 vcc, s3, v1\nv_and_b32 v2, 3, v0\nv_lshl_add_u32 v1, v1, 3, v2")
        a(f"v_mul_u32_u24 v1, 2560, v1\ns_lshl_b32 s0, s{sC}, 7\ns_add_u32 s3, s0, s{sB0}\nv_add_u32 v1, s3, v1\nv_bfrev_b32 v2, 1\nv_cndmask_b32 v{vTC}, v2, v1, vcc")
        a(f"s_mul_i32 s3, s{sT}, 3\nv_min_u32 v1, 2, v0\nv_add_u32 v1, s3, v1\nv_lshrrev_b32 v2, 1, v1\nv_mul_u32_u24 v2, {2560 - 256}, v2\nv_lshl_add_u32 v1, v1, 7, v2")
        a(f"s_mul_i32 s3, s{sGID}, 15360\ns_lshl_b32 s0, s{sC}, 8\ns_add_u32 s3, s3, s0\ns_add_u32 s3, s3, {E2}\nv_add_u32 v{vTC+2}, s3, v1")
    if OPT["mt"]:
        e = EVN >> 1 & 1
        R = 64 * (10 - OPT["mx"]); per = -(-2 * R // (30 >> e))
        a(f"s_lshr_b32 s1, s{sU}, {e}\ns_mul_i32 s3, s1, {per}\nv_min_u32 v1, {per-1}, v0\nv_add_u32 v1, s3, v1\nv_min_u32 v1, {2*R-1}, v1\nv_cmp_le_u32 vcc, {R}, v1\nv_mul_u32_u24 v1, 3072, v1")
        a(f"s_mul_i32 s3, s{sJ}, 384\ns_add_u32 s3, s3, {64*OPT['mx']*3072}\nv_add_u32 v1, s3, v1\nv_subrev_u32 v2, {(R + 320)*3072 - 256}, v1\nv_cndmask_b32 v1, v1, v2, vcc")
        a(f"s_mul_i32 s3, s{sJ}, {60 >> e}\ns_lshl_b32 s0, s1, 1\ns_add_u32 s3, s3, s0\ns_and_b32 s0, s{sWV}, 1\ns_add_u32 s3, s3, s0\ns_lshl_b32 s3, s3, {12 + e}\nv_min_u32 v2, {(32 << e) - 1}, v0\nv_lshl_add_u32 v2, v2, 7, s3")
        a(f"s_cmp_ge_u32 s{sWV}, 6\ns_cselect_b64 vcc, -1, 0\nv_cndmask_b32 v{vMT}, v1, v2, vcc")
vMT = 84
def mtouch(p):
    if OPT["mt"] != p: return
    if EVN & 2: assert p in (1, 2); a(f"{slow()}\ns_cbranch_scc1 L_mt")
    a(f"global_load_dword v{vMT}, v{vMT}, s[{sMT}:{sMT+1}]")
    if EVN & 2: a("L_mt:")
def touch(p):
    if p == OPT["tl"]: a(f"buffer_load_dword v{vTC+1}, v{vTC}, {S(OUT)}, s{sLT} offen")
    if p == OPT["te"]: a(f"buffer_load_dword v{vTC+1}, v{vTC}, {S(OUT)}, 0 offen")
    if p == OPT["t2"]: a(f"buffer_load_dword v{vTC+2}, v{vTC+2}, {S(WS)}, 0 offen")
def early_touch(i):
    n = sum(OPT[k] == 10 + i for k in ("te", "tl", "t2", "mt"))
    touch(10 + i); mtouch(10 + i)
    return n
NT = sum(OPT[k] in (0, 1) for k in ("te", "tl", "t2")) + (OPT["mt"] in (1, 2, 5) and not EVN & 2)
NT2 = sum(OPT[k] == 2 for k in ("te", "tl", "t2")) + (OPT["mt"] == 3)
def xstart(i): nextslab(); a(f"s_lshl_b32 s{sXO}, s{sSB}, 7\ns_mov_b32 s{sSL}, {S0 + SLOT*(i % 4)}")
xstart(1)
if OPT["x1"] == 0: a(f"s_cmp_eq_u32 s{sWV}, 4\ns_cbranch_scc1 L_n1"); xissue(); a("L_n1:")
suB(); suC()
stamp(0, 5)
suD(); suE(); wo_setup(); touch_setup(); pzero(0, 8 if G2 else 16)
vEX, vXF, vWF, vLA = XR + 1, XR + 2, XR + 3, XR + 5
def ltaddr(d): a(f"s_lshl_b32 s0, s{sT}, 8\ns_add_u32 s0, s0, {LTB}\nv_add_u32 v{d}, s0, v{aL16}\ns_lshl_b32 s0, s{sT}, 2\ns_add_u32 s0, s0, {LFL}\nv_mov_b32 v{d+1}, s0")
if G2: ltaddr(vLA)
a(f"s_lshl_b32 s0, s{sT}, 12\ns_add_u32 s0, s0, {EX}\nv_add_u32 v{vEX}, s0, v{aL16}\ns_and_b32 s0, s{sT}, 2\ns_lshl_b32 s0, s0, 1\ns_add_u32 s0, s0, {XFL}\nv_mov_b32 v{vXF}, s0\nv_mov_b32 v{vWF}, {WFL}\nv_cmp_eq_u32 vcc, 0, v0\nv_cndmask_b32 v{vWF+1}, 0, 1, vcc")
a(f"s_cmp_eq_u32 s{sWV}, 4\ns_cbranch_scc1 L_h0")
E1_, E2_ = OPT["e1"], OPT["e2"]
assert 1 <= E1_ and E1_ + 2 <= E2_ <= 4
vXA = vEV
a(f"v_mov_b32 v4, {ONES:#x}\nv_mov_b32 v5, v4\nv_lshrrev_b32 v1, 4, v0\nv_mul_u32_u24 v1, {SLOT - 128}, v1\nv_lshl_add_u32 v1, v0, 3, v1\nds_write_b64 v1, v[4:5] offset:{S0}")
a(f"s_sub_u32 s0, s{sWV}, 5\ns_mul_i32 s3, s{sGID}, 3\ns_add_u32 s3, s3, s0\ns_mul_i32 s3, s3, 2560\ns_add_u32 s{sSPL}, s3, {SP}")
a(f"s_mul_i32 s3, s{sG}, 1280\ns_add_u32 s3, s3, s{sRJ}\ns_add_u32 s{sPF}, s3, {R_FL}\nv_min_u32 v1, 9, v0\nv_lshl_add_u32 v{vEA}, v1, 7, s{sPF}\ns_lshl_b32 s{sFO}, s{sC}, 7\ns_add_u32 s{sFO}, s{sFO}, s{sPF}")
a(f"v_and_b32 v1, 15, v0\nv_lshrrev_b32 v2, 5, v0\nv_lshl_add_u32 v2, v2, 4, v1\ns_lshl_b32 s0, s0, 5\nv_add_lshl_u32 v{vSTW}, v2, s0, 4")
a(f"v_lshrrev_b32 v2, 4, v0\nv_lshrrev_b32 v3, 1, v1\nv_xor_b32 v3, v3, v2\nv_lshlrev_b32 v3, 4, v3\nv_lshl_add_u32 v3, v1, 7, v3\nv_add_u32 v{vXA}, s{sLX}, v3")
a(f"s_cmp_lt_u32 s{sB0}, 2560\ns_cselect_b32 s3, 128, 0\nv_mov_b32 v1, 0xf149f2ca\nv_cmp_gt_u32 vcc, s3, v{vSTW}\nv_cndmask_b32 v{vBIA}, 0, v1, vcc")
stamp(1, 5)
if OPT["xprio"]: a(f"s_setprio {OPT['xprio']}")
if OPT["x1"] == 2: xissue()
if not OPT["wrl"]: ldWR()
for k in range(4): a(f"v_mov_b32 v{64+k}, {ONES:#x}")
if OPT["dbg"] & 64: a(f"s_lshl_b32 s3, s{sC}, 8\ns_add_u32 s3, s3, s{sSPL}\ns_mov_b64 exec, 0xffff\nbuffer_store_dwordx4 v[64:67], v{aL16}, {S(WS)}, s3 offen sc1\ns_mov_b64 exec, -1")
a(f"s_waitcnt vmcnt({(0 if OPT['wrl'] else 4) + (0 if OPT['x1'] == 3 else 4)}) lgkmcnt(0)")
stamp(2, 5)
def part_stats():
    PD = 96
    a(f"v_xor_b32 v1, 64, v{vXA}")
    for t in range(2):
        for ks in range(2): a(f"ds_read_b128 {V(vXD+8*t+4*ks,4)}, v{1 if ks else vXA} offset:{S0 + 2048*t}")
    a(f"s_lshl_b32 s3, s{sC}, 8\ns_add_u32 s3, s3, s{sSPL}\nv_and_b32 v2, 0xf0, v{aL16}\ns_mov_b32 s0, 0xaaaaaaaa\ns_mov_b32 s1, s0\ns_mov_b32 vcc_lo, 0xcccccccc\ns_mov_b32 vcc_hi, 0xcccccccc")
    for t in range(2):
        for ks in range(2):
            a(f"s_waitcnt lgkmcnt({3 - 2*t - ks})")
            mfma(PD + 8 * t, vXD + 8 * t + 4 * ks, vXD + 8 * t + 4 * ks, None if ks else "0")
            mfma(PD + 8 * t + 4, 64, vXD + 8 * t + 4 * ks, None if ks else "0")
    for t in range(2):
        d = PD + 8 * t
        a(f"v_cndmask_b32 v{d}, v{d}, v{d+1}, s[0:1]\nv_cndmask_b32 v{d+2}, v{d+2}, v{d+3}, s[0:1]\nv_cndmask_b32 v{vSUM+2*t+1}, v{d}, v{d+2}, vcc\nv_mov_b32 v{vSUM+2*t}, v{d+4}")
    execset(0xF0000F0000F0000F)
    a(f"buffer_store_dwordx4 {V(vSUM,4)}, v2, {S(WS)}, s3 offen sc1")
    execset(-1)
    for i in range(4): a(f"v_mov_b32 v{vXD+8+i}, 0")
def final_stats():
    for k in (4, 8):
        for e in range(4): a(f"v_add_f32 v{vXD+e}, v{vXD+e}, v{vXD+k+e}")
    a(f"v_permlane32_swap_b32 v{vXD}, v{vXD+2}\nv_permlane32_swap_b32 v{vXD+1}, v{vXD+3}\nv_add_f32 v{vXD}, v{vXD}, v{vXD+2}\nv_add_f32 v{vXD+1}, v{vXD+1}, v{vXD+3}")
    a(f"v_mov_b32 v{vXD+2}, v{vXD}\nv_mov_b32 v{vXD+3}, v{vXD+1}\ns_mov_b32 s1, 0x3acccccd\nv_mov_b32 v1, 0x3727c5ac")
    a(f"v_permlane16_swap_b32 v{vXD}, v{vXD+2}\nv_permlane16_swap_b32 v{vXD+1}, v{vXD+3}\nv_add_f32 v{vXD}, v{vXD}, v{vXD+2}\nv_add_f32 v{vXD+1}, v{vXD+1}, v{vXD+3}")
    a(f"v_mul_f32 v{vXD}, 0xbacccccd, v{vXD}\nv_fma_f32 v2, v{vXD+1}, s1, v1\nv_fma_f32 v2, -v{vXD}, v{vXD}, v2\nv_max_f32 v2, v2, v1\nv_rsq_f32 v{vXD+1}, v2\nv_mov_b32 v{vXD+3}, v{vBIA}\nv_mov_b32 v{vXD+2}, v{vXD+1}")
    a(f"ds_write_b128 v{vSTW}, {V(vXD,4)} offset:{STATS}")
def only5(tag, fn):
    a(f"s_cmp_eq_u32 s{sWV}, 5\ns_cbranch_scc0 L_o5{tag}"); fn(); a(f"L_o5{tag}:")
def evchk(tag, cmp_, ld):
    a(f"s_waitcnt lgkmcnt(0)\n{cmp_}\ns_cbranch_scc0 L_er{tag}\nL_eg{tag}:")
    DEFER.append(f"L_er{tag}:\ns_sub_u32 s{sBUD}, s{sBUD}, 1\ns_cbranch_scc1 L_ex{tag}\n{ld}\ns_waitcnt lgkmcnt(0)\n{cmp_}\ns_cbranch_scc0 L_er{tag}\ns_branch L_eg{tag}\nL_ex{tag}:\ns_mov_b32 s{sBUD}, 0\ns_branch L_eg{tag}")
FR = [71, 73, 75, 77, 83, 85, 89, 91, 93, 95]
ldroot = f"s_lshl_b32 s0, s{sJ}, 5\nv_and_b32 v1, 16, v0\nbuffer_load_dword v{vSUM+4}, v1, {S(DBG)}, s0 offen sc1"
ldflag = "\n".join(f"s_buffer_load_dword s{r}, {S(WS)}, s{sPF} offset:{128*k} glc" for k, r in enumerate(FR))
for i in range(9):
    a("s_barrier")
    stamp(3 + i, 5)
    ex = 0
    if i == E1_ + 1:
        def f():
            evchk("a", f"v_cmp_ne_u32 vcc, 1, v{vSUM+4}\ns_cmp_eq_u64 vcc, 0", ldroot + "\ns_waitcnt vmcnt(0)")
            a(f"s_getreg_b32 s0, hwreg(HW_REG_XCC_ID, 0, 4)\nv_mov_b32 v1, s0\ns_mov_b64 exec, 1\nbuffer_store_dword v1, off, {S(WS)}, s{sFO} sc1\ns_mov_b64 exec, -1")
        only5("c", f)
    if i == E2_ + 2:
        for k in range(3):
            if k == 2: a("s_mov_b32 exec_hi, 0")
            if OPT["dbg"] & 16: a(f"s_mov_b32 s{sSPL}, {OOB:#x}")
            a(f"buffer_load_dwordx4 {V(vXD+4*k,4)}, v{aL16}, {S(WS)}, s{sSPL} offen offset:{1024*k} sc1")
        a("s_mov_b32 exec_hi, -1"); ex += 3
    if i == 0: part_stats(); ex += 1
    if i == 1 and OPT["wrl"]: ldWR(); ex += 4
    ex += early_touch(i)
    if OPT["pf0"] & 1 and OPT["pfp"] % 10 == i + 2:
        if EVN & 4: a(f"{slow()}\ns_cselect_b32 s0, {OOB:#x}, 0\ns_lshr_b32 s3, s{sU}, 1\ns_lshl_b32 s3, s3, 3\ns_add_u32 s3, s3, s{sJ}\ns_mul_i32 s3, s3, 3\ns_add_u32 s3, s3, s{sWV}\ns_sub_u32 s3, s3, 5\ns_mul_i32 s3, s3, {18*128}\ns_or_b32 s3, s3, s0\nv_lshlrev_b32 v1, 7, v0\ns_mov_b64 exec, 0x3ffff\nbuffer_load_dword v255, v1, {S(WO)}, s3 offen\ns_mov_b64 exec, -1"); ex += 1
        else: a(f"s_mul_i32 s3, s2, 3\ns_add_u32 s3, s3, s{sWV}\ns_sub_u32 s3, s3, 5\ns_mul_i32 s3, s3, {9*128}\nv_lshlrev_b32 v1, 7, v0\ns_mov_b64 exec, 0x1ff\nbuffer_load_dword v255, v1, {S(WO)}, s3 offen\ns_mov_b64 exec, -1"); ex += 1
    if i == E2_ + 3 and OPT["fs7"]: a(f"s_waitcnt vmcnt({4 + ex})"); final_stats()
    if i < 8: xstart(i + 2); xissue()
    if i:
        a(f"s_cmp_eq_u32 s{sXT}, {i}\ns_cbranch_scc0 L_xc{i}\ns_mov_b32 s0, {S0 + SLOT * (i % 4)}\ns_call_b64 s[100:101], L_xcap\nL_xc{i}:")
    if i == E2_ + 1:
        def f():
            evchk("b", f"s_max_u32 s0, s{FR[0]}, s{FR[1]}\n" + "\n".join(f"s_max_u32 s0, s0, s{r}" for r in FR[2:]) + "\ns_cmp_lg_u32 s0, -1", ldflag)
            a(f"s_min_u32 s1, s{FR[0]}, s{FR[1]}\n" + "\n".join(f"s_min_u32 s1, s1, s{r}" for r in FR[2:]) + f"\ns_cmp_eq_u32 s0, s1\ns_cselect_b32 s0, {OPT['fmode']}, 0")
            a(f"v_mov_b32 v1, {MODE}\nv_mov_b32 v2, s0\nds_write_b32 v1, v2")
        only5("d", f)
    if i == E2_ + 3 and not OPT['fs7']: a(f"s_waitcnt vmcnt({8 + ex})"); final_stats()
    if 1 <= i <= 6 and OPT["pg"]:
        a(f"s_cmp_eq_u32 s{sWV}, 7\ns_cbranch_scc0 L_wm{i}"); warm("h", i - 1, 6); a(f"L_wm{i}:")
    if i == 0: pagebreak("c0")
    if i == 7 and OPT["wsp"]: pagebreak("h")
    if i == 8: break
    if i == E1_ + 1: a(f"s_cmp_eq_u32 s{sWV}, 5\ns_cbranch_scc1 L_w5{i}\ns_waitcnt vmcnt({4 + ex})\nL_w5{i}:"); ex += 1
    a(f"s_waitcnt vmcnt({4 + ex}) lgkmcnt(0)")
    if i == E1_ - 1: only5("a", lambda: a(ldroot))
    if i == E2_: only5("b", lambda: a(ldflag))
    if OPT["wsp"] and i >= OPT["ws0"]:
        LQ = [(cp, q) for cp in range(5) for g in range(4) for q in wo_quads(cp, 1, g)]
        part = LQ[OPT["wsp"] * (i - OPT["ws0"]):OPT["wsp"] * (i - OPT["ws0"] + 1)]
        if part:
            if i == OPT["ws0"]: a(f"s_mul_i32 s3, s{sG}, 3\ns_add_u32 s3, s3, s{sWV}\ns_sub_u32 s3, s3, 5\ns_lshr_b32 s0, s3, 2\ns_mul_i32 s0, s0, 316\ns_add_u32 s3, s3, s0\ns_mul_i32 s3, s3, 1280\ns_lshl_b32 s0, s{sC}, 7\ns_add_u32 s{sRD}, s3, s0")
            for cp, q in part:
                for o in (0, 64): a(f"s_buffer_load_dword s79, {S(WO)}, s{sRD} offset:{(64*cp + 4*q)*1280 + o}")
    if i == 2 and OPT["ppr"]:
        a(f"s_lshl_b32 s3, s{sC}, 8\ns_add_u32 s3, s3, s{sSPL}")
        for k in range(4): a(f"s_buffer_load_dword s75, {S(WS)}, s3 offset:{64*k}")
a(f"L_h8:\ns_mul_i32 s{sPF}, s{sT}, 5120")
mtouch(4)
wo_run(0, N0, "a")
mtouch(5)
ksread(); rdmode()
if OPT['hp'] == 0: hinit(72); wrprep(64)
a(f"s_waitcnt vmcnt({N0 + (OPT['mt'] in (4, 5))})")
stamp(2)
a("s_barrier")
stamp(3); stamp(9, 2); stamp(0, 3)
if not OPT['clr']: gsync_h(1)
wo_run(N0, NA, "d")
touch(0)
mtouch(1)
if OPT['hp'] == 1: hinit(72); wrprep(64)
sO, sDW = 61, 65
a(f"s_and_b32 s3, s{sWV}, 1\ns_lshl_b32 s{sO}, s3, 7\ns_xor_b32 s{sO+1}, s{sO}, 128\ns_add_u32 s{sO+2}, s{sO+1}, s{sLT}\ns_add_u32 s{sO+3}, s{sO}, s{sLT}\ns_lshl_b32 s3, s3, 13\ns_sub_u32 s{sDW}, 4096, s3")
DEFER.append("L_xcap:\n" + "\n".join(capture(lambda: capt("s0", 72))) + "\ns_setpc_b64 s[100:101]")

def rdWO1(s, ct, e):
    t = ""
    if e == 0 and s in (5, 10, 15): t = {5: f"v_add_u32 v{aWO+ct}, s{sDW}, v{aWO+ct}", 10: f"v_add_u32 v{aWO+ct}, 40960, v{aWO+ct}", 15: f"v_subrev_u32 v{aWO+ct}, s{sDW}, v{aWO+ct}"}[s] + "\n"
    return t + f"ds_read_b64_tr_b16 {V(WOF + 16*(s % RING) + 4*ct + 2*e, 2)}, v{aWO+ct} offset:{8192*(s % 5) + 512*e}"
SF = 15 - OPT["sf"]
OL = [(s, w) for s in range(SF) for w in range(2 if s >= 5 else 1)] + [(s, 1) for s in range(SF, 15)] + [(s, 0) for s in range(SF, 20)]
if G2:
    LG = OPT["lag"]
    OL = [(s, 0) for s in range(5 + LG)] + [o for s in range(5, 10) for o in [(s, 1)] + ([(s + LG, 0)] if s + LG < 10 else [])] + [(s, 1) for s in range(10, 15)] + [(s, 0) for s in range(10, 20)]
def oreg(k): return OF + 4 * (k % (20 if not OPT["dbg"] & 2 else OPT["ou"]))
def ldO(k):
    s, w = OL[k]
    a(f"buffer_load_dwordx4 {V(oreg(k),4)}, v{aOl2 if w else aOl}, {S(OUT)}, s{sO + s // 5} offen offset:{256*(s % 5)} sc1")
def spin(tag, addr, cmp_, slp=0):
    a(f"{cmp_}\ns_cbranch_vccnz L_sp{tag}\nL_sb{tag}:")
    DEFER.append(f"L_sp{tag}:\n" + (f"s_sleep {slp}\n" if slp else "") + f"v_mov_b32 v1, {addr}\nds_read_b32 v1, v1\ns_waitcnt lgkmcnt(0)\n{cmp_}\ns_cbranch_vccnz L_sp{tag}\ns_branch L_sb{tag}")
def fold(A, B, F):
    for r in range(4): a(f"v_permlane16_swap_b32 v{A+r}, v{B+r}")
    for r in range(4): a(f"v_cndmask_b32 v{F[r]}, v{B+r}, v{A+r}, s[{sM+2*r}:{sM+2*r+1}]")
def softmax(F, P, mid=None, mid2=None):
    m, t = TM, TM + 1
    for r in range(4): a(f"v_fma_f32 v{F+r}, v{F+r}, v{KS+2*r}, v{KS+2*r+1}")
    a(f"v_max3_f32 v{m}, v{F}, v{F+1}, v{F+2}\nv_max_f32 v{m}, v{m}, v{F+3}\nv_mov_b32 v{t}, v{m}\nv_permlane32_swap_b32 v{m}, v{t}\nv_max_f32 v{m}, v{m}, v{t}\nv_mul_f32 v{m}, v{m}, v{CQ}")
    for r in range(4): a(f"v_fma_f32 v{F+r}, v{F+r}, v{CQ}, -v{m}")
    for r in range(4): a(f"v_exp_f32 v{F+r}, v{F+r}")
    if mid: mid()
    a(f"v_add_f32 v{m}, v{F}, v{F+1}\nv_add_f32 v{t}, v{F+2}, v{F+3}\nv_add_f32 v{m}, v{m}, v{t}\nv_mov_b32 v{t}, v{m}\nv_mul_f32 v{F}, v{F}, v{KS}\nv_mul_f32 v{F+1}, v{F+1}, v{KS+2}")
    a(f"v_permlane32_swap_b32 v{m}, v{t}\nv_mul_f32 v{F+2}, v{F+2}, v{KS+4}\nv_add_f32 v{m}, v{m}, v{t}\nv_rcp_f32 v{m}, v{m}\nv_mul_f32 v{F+3}, v{F+3}, v{KS+6}")
    for r in range(4): a(f"v_mul_f32 v{F+r}, v{F+r}, v{m}")
    a(f"v_cvt_pk_bf16_f32 v{F}, v{F}, v{F+1}\nv_cvt_pk_bf16_f32 v{F+1}, v{F+2}, v{F+3}")
    if mid2: mid2()
    for hh in range(2):
        a(f"s_mov_b64 exec, s[{sLO}:{sLO+1}]" if hh == 0 else "s_not_b64 exec, exec")
        for d in range(2): a(f"v_and_b32 v{P+2*hh+d}, v{vM+d}, v{F+d}\nv_bfi_b32 v{P+4+2*hh+d}, v{vM+d}, 0, v{F+d}")
    a("s_mov_b64 exec, -1")
    for d in range(4): a(f"v_permlane16_swap_b32 v{P+d}, v{P+4+d}")
def ymask():
    a(f"s_add_u32 s0, s{sC5}, 1\ns_sub_u32 s1, 5, s{sC5}\ns_min_u32 s0, s0, s1\ns_lshl_b32 s0, s0, 4\ns_sub_u32 s1, 64, s0\ns_cmp_le_u32 s{sC5}, 2\ns_cselect_b32 s1, s1, 16\ns_bfm_b64 s[100:101], s0, s1")
def attention(T):
    helper = T == "h"; doL = T != "e"; doE = T != "l"
    L.reset()
    rid = {}
    KR = ((aKx, 0), (aKy, 0), (aK4, 0), (aKe, 0), (aKe, 40))
    QR = ((aQx, 0, 0), (aQy, 0, 1), (aQ4, 0, 2), (aQe, 0, 3), (aQe, 40, 4), (aQ4 + 2, 0, 2), (aQ4 + 4, 0, 2))
    def rk(i):
        k, o = KR[i]; d = KQ + 4 * i
        L(f"ds_read_b64 {V(d,2)}, v{k} offset:{o}"); L(f"ds_read_b64 {V(d+2,2)}, v{k} offset:{o + 8*PITCH}")
    def rq(i):
        q, o, _ = QR[i]; d = QF + 4 * i
        L(f"ds_read_b64 {V(d,2)}, v{q} offset:{o}"); rid[i] = L(f"ds_read_b64 {V(d+2,2)}, v{q+1} offset:{o}")
    def lg(i):
        L.wait(rid[i]); mfma(SS + (0, 4, 0, 8, 12, 8, 12)[i], KQ + 4 * QR[i][2], QF + 4 * i, "0" if i in (0, 1, 3, 4) else None)
    vid = {}
    vc = [None]
    def vlook():
        if OPT["ord"]: a(f"v_mov_b32 v1, {VCN}"); vc[0] = L("ds_read_b32 v1, v1")
    def vreads():
        if OPT["ord"]: L.wait(vc[0]); spin("v" + T, VCN, "v_cmp_ne_u32 vcc, 4, v1")
        if helper: stamp(4, 3)
        for i, (r_, o) in enumerate(((aVe, 0), (aVe, 40), (aV1, 0), (aV2, 0))):
            if doE or i >= 2:
                L(f"ds_read_b64_tr_b16 {V(VF+4*i,2)}, v{r_} offset:{o}")
                vid[i] = L(f"ds_read_b64_tr_b16 {V(VF+4*i+2,2)}, v{r_} offset:{o + 8*PITCH}")
    def lfold(): fold(SS, SS + 4, [F01, F01 + 1, FL_ + 2, FL_ + 3])
    def lpack(): a(f"v_or_b32 v{FL_}, 0xffff, v{F01}\nv_perm_b32 v{FL_+1}, v{F01+1}, v{F01}, s{sP1}")
    cq = f"v_mul_f32 v{CQ}, {CEXP:#x}, v{CQ}"
    if helper:
        ymask(); a(cq)
        a("s_barrier")
        for i in range(5): rk(i)
        wo_run(NA, NB, "e")
        if OPT["bv"] >= 0: a("s_barrier"); vreads()
        wo_run(NB, N1, "b")
        touch(1)
        mtouch(2)
        a(f"s_setprio {OPT['aprio']}\ns_waitcnt vmcnt({NT + N1 - N0 if OPT['wc'] < 2 else NT})")
        stamp(1, 3)
        a("s_barrier")
        stamp(4); stamp(2, 3)
        if STAGE == "A": a("s_branch L_dumpA")
        rq(0); rq(1); rq(2); rq(3); rq(4); lg(0); rq(5); lg(1); rq(6); lg(2); lg(3); lg(4); lg(5); lg(6); lfold(); lpack()
    elif doL: rk(0); rq(0); rk(1); rq(1); rk(2); rq(2); ymask(); lg(0); lg(1); lg(2); ksread(L); lfold(); lpack()
    else: rk(3); rq(3); rk(4); rq(4); rk(2); rq(5); rq(6); pzero(0, 8); lg(3); lg(4); ksread(L); lg(5); lg(6)
    if doL: lst(f"buffer_store_dwordx4 {V(FL_,4)}, v{aH0s}, {S(OUT)}, s{sLT} offen{{F}}")
    stamp(5); stamp(3, 3)
    if helper: touch(3)
    if helper and OPT["wc"] == 0: wo_run(N1, 20, "c")
    hl = f"buffer_load_dwordx4 {V(HL,4)}, v{aH0l}, {S(OUT)}, s{sLT} offen sc1"
    prefill = lambda: [a(rdWO1(s_, ct, e)) for s_ in range(DEP) for ct in range(4) for e in range(2)] if helper else None
    early = lambda: [ldO(k) for k in range(OPT["ou"])] if helper else None
    late = f"buffer_store_dwordx4 {V(LT,4)}, v{aOs}, {S(OUT)}, s{sLT} offen{{F}}"
    if doE:
        fold(SS + 8, SS + 12, [FE + r for r in range(4)])
        if not helper: L.wait(L.n); a(cq)
        if OPT["vpos"] == 1 or not helper: vlook()
        def mid():
            if helper and OPT["vpos"] == 2: vlook()
            elif not helper or OPT["bv"] < 0: vreads()
            if helper and OPT["wc"] == 1: wo_run(N1, 20, "c")
            if helper and OPT["hlp"] == 0: a(hl)
        softmax(FE, PX, mid, vreads if helper and OPT["vpos"] == 2 else None)
        stamp(5, 3)
        if helper and OPT["hlp"] == 1: a(hl)
        if helper: touch(2)
        L.wait(vid[3])
        for i in range(4): mfma(DM + 4 * i, VF + 4 * i, PX + 4 * (i & 1), "0")
        for i in range(4): a(f"v_cvt_pk_bf16_f32 v{FE+i}, v{DM+2*i}, v{DM+2*i+1}")
        lst(f"buffer_store_dwordx4 {V(FE,4)}, v{aOs}, {S(OUT)}, 0 offen{{F}}")
        stamp(6); stamp(6, 3)
        if T == "e": a(f"s_lshl_b32 s0, s{sWV}, 2\ns_add_u32 s0, s0, {HRD}\nv_mov_b32 v1, s0\nds_read_b32 v1, v1")
        for i in range(4): a(f"v_cvt_pk_bf16_f32 v{LT+i}, v{DM+8+2*i}, v{DM+8+2*i+1}")
        if helper: mtouch(3)
        prefill()
    else:
        vlook(); pzero(8, 16); vreads(); L.wait(L.n); a(cq); a(hl)
        if OPT["wc"] == 2:
            a(f"s_cmp_eq_u32 s{sWV}, 3\ns_cbranch_scc1 L_wl3"); wo_late(N1, 0, 249); a("L_wlb:")
            DEFER.append("L_wl3:\n" + "\n".join(capture(lambda: wo_late(N1, 1, 249))) + "\ns_branch L_wlb")
    if T == "e":
        a("s_waitcnt lgkmcnt(0)"); spin("r", "s0", "v_cmp_eq_u32 vcc, 0, v1", 1)
        execset(0xffff); lst(late); execset(-1)
        stamp(7); stamp(10, 3)
        return
    stamp(7, 3)
    a(f"s_waitcnt vmcnt({1 + NT2 if doE else 2 * (20 - N1) if OPT['wc'] == 2 else 0})\nv_cmp_eq_u32 vcc, -1, v{HL}\ns_cbranch_vccnz L_h0r{T}\nL_h0g{T}:")
    stamp(8, 3)
    DEFER.append(f"L_h0r{T}:\ns_sub_u32 s{sBUD}, s{sBUD}, 1\ns_cbranch_scc1 L_h0x{T}\n{hl}\ns_waitcnt vmcnt(0)\n"
                 f"v_cmp_eq_u32 vcc, -1, v{HL}\ns_cbranch_vccnz L_h0r{T}\ns_branch L_h0g{T}\nL_h0x{T}:\ns_mov_b32 s{sBUD}, 0\ns_branch L_h0g{T}")
    wfl = f"v_mov_b32 v1, {WFL}\nv_mov_b32 v4, 1\ns_mov_b64 exec, 1\nds_add_u32 v1, v4\ns_mov_b64 exec, -1"
    if helper:
        if OPT["wc"] < 2: a(f"s_mov_b64 exec, 1\nds_add_u32 v{vWF}, v{vWF+1}\ns_mov_b64 exec, -1")
    else: a(f"s_lshl_b32 s0, s{sWV}, 2\ns_add_u32 s0, s0, {HRD - 8}\nv_mov_b32 v1, s0\nds_write_b32 v1, v1")
    a(f"v_perm_b32 v{HL}, v{HL}, v{HL+1}, s{sP2}")
    for r in (1, 2, 3, 0): a(f"v_add_f32 v{FL_+r}, v{F01+r if r < 2 else FL_+r}, v{HL+r}")
    if OPT["opos"] == 0: early()
    softmax(FL_, PX + 8, early if OPT["opos"] == 1 else None)
    if OPT["opos"] == 2: early()
    stamp(9, 3)
    mfma(DM, VF + 8, PX + 8, "0"); mfma(DM + 4, VF + 12, PX + 8, "0"); mfma(DM + 8, VF + 12, PX + 12, "0")
    if helper and OPT["wc"] < 2: a(f"ds_read_b32 v1, v{vWF}")
    a("s_mov_b32 exec_lo, 0xffff0000")
    for i in range(4): a(f"v_cvt_pk_bf16_f32 v{LT+i}, v{DM+2*i}, v{DM+2*i+1}")
    a("s_mov_b64 exec, s[100:101]")
    for i in range(2): a(f"v_cvt_pk_bf16_f32 v{LT+2+i}, v{DM+8+2*i}, v{DM+8+2*i+1}")
    execset(-1 if doE else 0xffffffffffff0000)
    lst(late)
    stamp(7); stamp(10, 3); stamp(12, 5)
    if not helper and OPT["wc"] == 2: a("s_mov_b64 exec, -1\ns_waitcnt vmcnt(1)\n" + wfl + "\ns_waitcnt lgkmcnt(0)")
def attention2(T):
    helper = T == "h"; DT = {"h": 0, "e": 4, "l": 2}[T]; RO = 16 * PITCH
    vL = vLA if helper else 249
    cq = f"v_mul_f32 v{CQ}, {CEXP:#x}, v{CQ}"
    L.reset()
    def rk(d, k, o): L(f"ds_read_b64 {V(d,2)}, v{k} offset:{o}"); L(f"ds_read_b64 {V(d+2,2)}, v{k} offset:{o + 8*PITCH}")
    def rq(d, q, o=0): L(f"ds_read_b64 {V(d,2)}, v{q} offset:{o}"); return L(f"ds_read_b64 {V(d+2,2)}, v{q+1} offset:{o}")
    def rv(i, r_, o): L(f"ds_read_b64_tr_b16 {V(VF+4*i,2)}, v{r_} offset:{o}"); return L(f"ds_read_b64_tr_b16 {V(VF+4*i+2,2)}, v{r_} offset:{o + 8*PITCH}")
    def lreads(b, up):
        ids = []
        for i, k in enumerate((aKx, aKy, aK4)): rk(b + 8 * i, k, RO * DT * up); ids.append(rq(b + 8 * i + 4, (QUP if up else QLO)[i]))
        return ids
    def lmm(b, ids, d):
        for i in range(3): L.wait(ids[i]); mfma(d + (0, 4, 0)[i], b + 8 * i, b + 8 * i + 4, "0" if i < 2 else None)
    FS = ((F01, FL_), (84, 88))
    def lsend(d, up):
        f, p = FS[up]
        fold(d, d + 4, [f, f + 1, p + 2, p + 3])
        a(f"v_or_b32 v{p}, 0xffff, v{f}\nv_perm_b32 v{p+1}, v{f+1}, v{f}, s{sP1}")
        lst(f"buffer_store_dwordx4 {V(p,4)}, v{aWO+2 if up else aH0s}, {S(OUT)}, s{68 if up else sLT} offen{{F}}")
    def ekeys(b): rk(b, aKe, 0); rk(b + 4, aKe, 40); rk(b + 8, aK4, RO * DT)
    def equeries(b): return [rq(b + 12, aQe), rq(b + 16, aQe, 40), rq(b + 20, aQ4 + 2), rq(b + 24, aQ4 + 4)]
    def emm(b, ids):
        for i in range(4): L.wait(ids[i]); mfma(SS + 8 + 4 * (i & 1), b + (0, 4, 8, 8)[i], b + 12 + 4 * i, "0" if i < 2 else None)
    def efin(mid=None):
        fold(SS + 8, SS + 12, [FE + r for r in range(4)])
        if not helper: L.wait(L.n); a(cq)
        v = []
        softmax(FE, PX, lambda: v.extend([rv(0, aVe, 0), rv(1, aVe, 40), rv(2, aV1, RO * DT), rv(3, aV2, RO * DT)]))
        stamp(5, 3)
        if mid: mid()
        L.wait(v[3])
        for i in range(4): mfma(DM + 4 * i, VF + 4 * i, PX + 4 * (i & 1), "0")
        for i in range(4): a(f"v_cvt_pk_bf16_f32 v{FE+i}, v{DM+2*i}, v{DM+2*i+1}")
        lst(f"buffer_store_dwordx4 {V(FE,4)}, v{aOs if helper else aWO}, {S(OUT)}, {0 if helper else 's61'} offen{{F}}")
        stamp(6); stamp(6, 3)
        execset(0xffff)
        for i in range(4): a(f"v_cvt_pk_bf16_f32 v{LT+i}, v{DM+8+2*i}, v{DM+8+2*i+1}")
        L(f"ds_write_b128 v{vL}, {V(LT,4)} offset:{256*DT}"); L(f"ds_write_b32 v{vL+1}, v{vL+1} offset:{4*DT}")
        execset(-1)
    def hl(up): return f"buffer_load_dwordx4 {V(HL + 8*up,4)}, v{aWO+1 if up else aH0l}, {S(OUT)}, s{68 if up else sLT} offen sc1"
    def lfin(up, nv, nxt=None):
        f, p = FS[up]; h = HL + 8 * up; tag = T + str(up)
        ksread(L, DT * up); rv(2, aV1, RO * DT * up); rv(3, aV2, RO * DT * up)
        a(f"s_waitcnt vmcnt({nv})\nv_cmp_eq_u32 vcc, -1, v{h}\ns_cbranch_vccnz L_h0r{tag}\nL_h0g{tag}:")
        if not up: stamp(8, 3)
        DEFER.append(f"L_h0r{tag}:\ns_sub_u32 s{sBUD}, s{sBUD}, 1\ns_cbranch_scc1 L_h0x{tag}\n{hl(up)}\ns_waitcnt vmcnt(0)\n"
                     f"v_cmp_eq_u32 vcc, -1, v{h}\ns_cbranch_vccnz L_h0r{tag}\ns_branch L_h0g{tag}\nL_h0x{tag}:\ns_mov_b32 s{sBUD}, 0\ns_branch L_h0g{tag}")
        a(f"v_perm_b32 v{h}, v{h}, v{h+1}, s{sP2}")
        for r in (1, 2, 3, 0): a(f"v_add_f32 v{p+r}, v{f+r if r < 2 else p+r}, v{h+r}")
        L.wait(L.n); a(cq)
        rd = f"ds_read_b32 v1, v{vL+1} offset:{4*DT*up}\nds_read_b128 {V(LT,4)}, v{vL} offset:{256*DT*up}"
        softmax(p, PX + 8, nxt, lambda: a(rd))
        mfma(DM, VF + 8, PX + 8, "0"); mfma(DM + 4, VF + 12, PX + 8, "0"); mfma(DM + 8, VF + 12, PX + 12, "0")
        a(f"s_waitcnt lgkmcnt(0)\nv_cmp_eq_u32 vcc, 0, v1\ns_cbranch_vccnz L_lr{tag}\nL_lg{tag}:\ns_mov_b32 exec_lo, 0xffff0000")
        DEFER.append(f"L_lr{tag}:\n{rd}\ns_waitcnt lgkmcnt(0)\nv_cmp_eq_u32 vcc, 0, v1\ns_cbranch_vccnz L_lr{tag}\ns_branch L_lg{tag}")
        for i in range(4): a(f"v_cvt_pk_bf16_f32 v{LT+i}, v{DM+2*i}, v{DM+2*i+1}")
        a("s_mov_b64 exec, s[100:101]")
        for i in range(2): a(f"v_cvt_pk_bf16_f32 v{LT+2+i}, v{DM+8+2*i}, v{DM+8+2*i+1}")
        execset(-1)
        lst(f"buffer_store_dwordx4 {V(LT,4)}, v{aWO if up else aOs}, {S(OUT)}, s{68 if up else sLT} offen{{F}}")
        stamp(9 if up else 10, 3)
    if helper:
        a(cq + "\ns_barrier")
        ekeys(KQ)
        wo_run(NA, NB, "e")
        touch(1); mtouch(2)
        a(f"s_setprio {OPT['aprio']}\ns_waitcnt vmcnt({NT + 10})")
        stamp(1, 3)
        a("s_barrier")
        stamp(4); stamp(2, 3)
        if STAGE == "A": a("s_branch L_dumpA")
        emm(KQ, equeries(KQ))
        stamp(5); stamp(3, 3)
        efin()
        a(f"s_setprio {OPT['hp2']}")
        for s_ in range(DEP):
            if s_ == OPT["op2"]:
                for k in range(OPT["ou"]): ldO(k)
            for ct in range(4):
                for e in range(2): a(rdWO1(s_, ct, e))
        if OPT["op2"] >= DEP:
            for k in range(OPT["ou"]): ldO(k)
        stamp(7); stamp(10, 3); stamp(12, 5)
        return
    if OPT["cprio"]: a(f"s_setprio {OPT['cprio']}")
    B2 = 24
    if T == "e":
        i0 = lreads(B2, 0); ekeys(KQ); ymask(); lmm(B2, i0, SS); i1 = equeries(KQ); pzero(); lsend(SS, 0); ksread(L, DT); emm(KQ, i1)
        stamp(5); stamp(3, 3)
        a(f"s_setprio {OPT['cp2']}")
        efin(lambda: a(hl(0)))
        lfin(0, 1)
    else:
        i1 = lreads(B2, 1); i0 = lreads(B2 + 24, 0); ymask(); lmm(B2, i1, SS + 8); lmm(B2 + 24, i0, SS); lsend(SS + 8, 1); lsend(SS, 0); pzero(8, 16)
        stamp(5); stamp(3, 3)
        a(f"s_setprio {OPT['cp2']}")
        a(hl(1)); lfin(1, 0, lambda: a(hl(0)))
        lfin(0, 1)
    stamp(7)
if G2: attention = attention2
attention("h")
if STAGE == "B": a("s_waitcnt vmcnt(0)"); finish()
pagebreak("h", True, G2)
SH = 200
U = OPT["ou"]; nO = [U]
def ldOn():
    if nO[0] < len(OL):
        if not OPT["dbg"] & 2: ldO(nO[0])
        nO[0] += 1
L.reset()
stamp(8); stamp(0, 4)
idx = {o: k for k, o in enumerate(OL)}
GR = [[0, 1], [2, 3], [4]] + [[k, k + 1] for k in range(5, 29, 2)] + [[29]]
if OPT["gs"] == 3: GR = [[0, 1]] + [[k, k + 1, k + 2] for k in range(2, 29, 3)] + [[29]]
if OPT["gs"] == 4: GR = [[0, 1], [2, 3, 4]] + [list(range(k, k + 4)) for k in range(5, 25, 4)] + [[25, 26, 27], [28, 29]]
gof = {k: G for G, g in enumerate(GR) for k in g}
issued = {}
def cmp_(G):
    r = [oreg(k) for k in GR[G]]
    if len(r) == 2: a(f"v_max_u16 v2, v{r[0]}, v{r[1]}\nv_cmp_eq_u16 vcc, -1, v2")
    elif len(r) >= 3: a(f"v_max3_u16 v2, v{r[0]}, v{r[1]}, v{r[2]}\n" + (f"v_max_u16 v2, v2, v{r[3]}\n" if len(r) == 4 else "") + "v_cmp_eq_u16 vcc, -1, v2")
    else: a(f"v_cmp_eq_u16 vcc, -1, v{r[0]}")
def chk_a(G):
    last = GR[G][-1] + 1
    assert nO[0] >= last
    a(f"s_waitcnt vmcnt({nO[0] - last + (last <= U and not G2)})"); cmp_(G)
def chk_b(G):
    issued[G] = nO[0]
    a(f"s_cbranch_vccnz L_st{G}\nL_go{G}:")
a("s_waitcnt lgkmcnt(0)")
if not G2: spin("w", WFL, "v_cmp_ne_u32 vcc, 4, v1")
fid = [None]; busy = [0]
RQ = [(s, ct, e) for s in range(DEP, 20) for ct in range(4) for e in range(2)]
wid = {(s, ct): 0 for s in range(DEP) for ct in range(4)}
left = {(s, ct): 2 if 5 <= s < 15 else 1 for s in range(20) for ct in range(4)}
def rdn(n):
    for _ in range(n):
        if not RQ: return
        s, ct, e = RQ[0]
        if s >= RING and left[s - RING, ct]: return
        if G2 and (s, ct, e) == (9, 0, 0): fid[0] = L(f"ds_read_b32 v1, v{vWF}")
        if G2 and (s, ct, e) == (10, 0, 0):
            if busy[0]: return
            L.wait(fid[0]); spin("w", WFL, "v_cmp_ne_u32 vcc, 4, v1")
        RQ.pop(0); wid[s, ct] = L(rdWO1(s, ct, e))
MS = []
k = 0
while k < 30:
    if k + 1 < 30 and OL[k][0] == OL[k+1][0]: MS += [(kk, ct) for ct in range(4) for kk in (k, k + 1)]; k += 2
    else: MS += [(k, ct) for ct in range(4)]; k += 1
firstm = {}
for m, (k, ct) in enumerate(MS): firstm.setdefault(gof[k], m)
ca = {m - 2: G for G, m in firstm.items() if G}; cb = {m - 1: G for G, m in firstm.items() if G}
lasts = max(m for m, (k, ct) in enumerate(MS) if OL[k][1])
wr = {lasts + 2 + q + (q == 3) * 2: q for q in range(4)}
chk_a(0); chk_b(0)
if G2: a("s_mov_b64 exec, 1"); L(f"ds_add_u32 v{vWF}, v{vWF+1}"); a("s_mov_b64 exec, -1")
fm = {}
for m, (k, ct) in enumerate(MS): fm.setdefault(k, m)
for m, (k, ct) in enumerate(MS):
    s, w = OL[k]
    if m in ca: chk_a(ca[m]); busy[0] = 1
    if m in cb: chk_b(cb[m]); busy[0] = 0
    while RQ and RQ[0][:2] <= (s, ct): n = len(RQ); rdn(1); assert len(RQ) < n
    if ct == 0 and (not RQ or RQ[0][0] > s) and L.n - wid[s, 3] >= 6: L.wait(wid[s, 3])
    L.wait(wid[s, ct])
    mfma((SH if w else H) + 4 * ct, WOF + 16 * (s % RING) + 4 * ct, oreg(k), "0" if w and s == 5 else None)
    left[s, ct] -= 1
    if nO[0] < len(OL) and m not in wr and m != lasts + 8 and (m >= fm[nO[0]] - OPT["dist"] if G2 else (m % 4 == 0 or (m < 20 and m % 4 == 1 and m // 4 >= (3, 0)[OPT["o2"]]))): ldOn(); rdn(1)
    elif m in wr: L(f"ds_write_b128 v{vEX}, {V(SH + 4*wr[m], 4)} offset:{1024*wr[m]}")
    elif m == lasts + 8: a("s_mov_b64 exec, 1"); L(f"ds_add_u32 v{vXF}, v{vWF+1}"); a("s_mov_b64 exec, -1")
    else: rdn(1 if m + 1 in ca or m + 1 in cb or m in cb else 2)
    if m == 3: stamp(9); stamp(11, 3)
    if m == 59: stamp(12, 3)
    if m % 12 == 11: stamp(1 + m // 12, 4)
assert nO[0] == len(OL)
for G in range(len(GR)):
    t = f"L_st{G}:\ns_sub_u32 s{sBUD}, s{sBUD}, 1\ns_cbranch_scc1 L_sx{G}\n"
    def re():
        for G2 in range(G, min(G + OPT["rsp"], len(GR))):
            for k in GR[G2]:
                if k < issued[G]: ldO(k)
        a("s_waitcnt vmcnt(0)"); cmp_(G)
    t += "\n".join(capture(re))
    t += f"\ns_cbranch_vccnz L_st{G}\ns_branch L_go{G}\nL_sx{G}:\ns_mov_b32 s{sBUD}, 0\ns_branch L_go{G}"
    DEFER.append(t)
a("L_tail:")
stamp(10)
HB, DS1, DS2, E2D, T0, RS = 24, 32, 36, 40, 52, 2
EV1 = OPT['e1']
for i in range(8): a(f"v_cvt_pk_bf16_f32 v{HB+i}, v{H+2*i}, v{H+2*i+1}")
for k in range(2):
    mfma(DS2, HB + 4 * k, HB + 4 * k, "0" if k == 0 else None)
    mfma(DS1, WRF + 4 * k, HB + 4 * k, "0" if k == 0 else None)
a("s_mov_b32 s0, 0x22222222\ns_mov_b32 s1, s0\ns_mov_b32 s44, 0x44444444\ns_mov_b32 s45, s44\ns_mov_b32 vcc_lo, 0x88888888\ns_mov_b32 vcc_hi, 0x88888888")
a(f"s_lshl_b32 s3, s{sC}, 8\ns_add_u32 s3, s3, s{sE2L}\nv_and_b32 v1, 0xf0, v{aL16}")
a(f"v_cndmask_b32 v{DS2}, v{DS2}, v{DS2+1}, s[0:1]\nv_cndmask_b32 v{DS2+2}, v{DS2+2}, v{DS2+3}, vcc\ns_or_b64 vcc, vcc, s[44:45]")
a(f"v_cndmask_b32 v{DS1+2}, v{DS2}, v{DS2+2}, vcc\nv_mov_b32 v{DS1+3}, v{WSP+1}")
execset(0xF0000F0000F0000F)
lst(f"buffer_store_dwordx4 {V(DS1,4)}, v1, {S(WS)}, s3 offen{{F}}")
execset(-1)
for i in range(4): a(f"v_mov_b32 v{E2D+8+i}, 0")
a(f"v_mov_b32 v4, 1.0\ns_mov_b32 s0, 0xbacccccd\ns_mov_b32 s1, 0x3acccccd\nv_mov_b32 v5, 0x3727c5ac\ns_mov_b32 s44, 0xfffff800\nv_mov_b32 v1, {KMAX}")
a(f"v_cmp_le_i32 s[46:47], 0, v{aOUT}")
vL, vB, vK = 68, 69, 70
a(f"s_mul_i32 s48, s{sG}, 1280\ns_lshl_b32 s3, s{sC}, 7\ns_add_u32 s48, s48, s3\ns_lshl_b32 s49, s48, 1\ns_add_u32 s48, s48, s{sRJ}\ns_add_u32 s49, s49, s{sRJ}\ns_add_u32 s49, s49, {R_BASE}")
a(f"s_lshl_b32 s3, s{sG}, 7\ns_add_u32 s3, s3, s{sRJ}\ns_add_u32 s3, s3, {R_KEY}\ns_and_b32 s45, s{sC}, {OPT['kc']}\ns_lshl_b32 s45, s45, 3\ns_add_u32 s45, s45, s{sWV}\nv_mul_u32_u24 v{vK}, 384, v0")
a(f"v_and_b32 v{vB}, 48, v0\nv_lshlrev_b32 v{vL}, 1, v{vB}")
if OPT["kl"]: a(f"s_add_u32 s45, s{sC}, 5\nv_mov_b32 v71, 1")
if OPT["e2p"]:
    a(f"v_bfrev_b32 v6, 1\nv_cmp_gt_u32 vcc, 32, v0\nv_cndmask_b32 v6, v6, v{aL16}, vcc")
    a("L_e2:")
    for k in range(3): a(f"buffer_load_dwordx4 {V(E2D+4*k,4)}, v{6 if k == 2 else aL16}, {S(WS)}, s{sE2L} offen offset:{1024*k} sc1")
    a(f"s_sub_u32 s{sBUD}, s{sBUD}, 1\ns_waitcnt vmcnt(1)")
    for e in (0, 2): a(f"v_pk_add_f32 {V(E2D+e,2)}, {V(E2D+e,2)}, {V(E2D+4+e,2)}")
    a("s_waitcnt vmcnt(0)")
    for e in (0, 2): a(f"v_pk_add_f32 {V(E2D+e,2)}, {V(E2D+e,2)}, {V(E2D+8+e,2)}")
    a(f"v_cmpx_u_f32 vcc, v{E2D}, v{E2D}\ns_cbranch_scc1 L_e2go\ns_cbranch_execnz L_e2\nL_e2go:\ns_mov_b64 exec, -1")
else:
    a("L_e2:")
    a(f"buffer_load_dwordx4 {V(E2D,4)}, v{aL16}, {S(WS)}, s{sE2L} offen sc1\nbuffer_load_dwordx4 {V(E2D+4,4)}, v{aL16}, {S(WS)}, s{sE2L} offen offset:1024 sc1")
    a(f"s_mov_b32 exec_hi, 0\nbuffer_load_dwordx4 {V(E2D+8,4)}, v{aL16}, {S(WS)}, s{sE2L} offen offset:2048 sc1\ns_mov_b32 exec_hi, -1\ns_sub_u32 s{sBUD}, s{sBUD}, 1")
    a("s_waitcnt vmcnt(1)")
    for e in (0, 2): a(f"v_pk_add_f32 {V(E2D+e,2)}, {V(E2D+e,2)}, {V(E2D+4+e,2)}")
    a("s_waitcnt vmcnt(0)")
    for e in (0, 2): a(f"v_pk_add_f32 {V(E2D+e,2)}, {V(E2D+e,2)}, {V(E2D+8+e,2)}")
    a(f"v_cmp_u_f32 vcc, v{E2D}, v{E2D}\ns_cbranch_scc1 L_e2go\ns_cbranch_vccnz L_e2\nL_e2go:")
stamp(11); stamp(11, 4)
for i in (0, 2, 3, 1): a(f"v_mfma_f32_16x16x4_f32 {V(T0+4*i,4)}, v4, v{E2D+i}, 0")
a(f"v_mul_f32 v6, s0, v{T0}\nv_fma_f32 v7, v{T0+8}, s1, v5\nv_fma_f32 v7, -v6, v6, v7\nv_max_f32 v7, v7, v5\nv_rsq_f32 v{RS}, v7")
a(f"v_fma_f32 v7, v6, v{T0+12}, v{T0+4}\nv_mul_f32 v7, v7, v{RS}\nv_mul_f32 v{RS+1}, v6, v{RS}")
a(f"v_ashrrev_i32 v6, 31, v7\nv_or_b32 v6, 0x80000000, v6\nv_xor_b32 v7, v7, v6\nv_and_or_b32 v7, v7, s44, v{vRK}\nv_cndmask_b32 v7, 0, v7, s[46:47]")
LN, LNB, OB = 72, 88, 96
lnops = [f"v_pk_fma_f32 {V(LN+2*i,2)}, {V(H+2*i,2)}, {V(RS,2)}, {V(RS,2)} op_sel:[0,0,1] op_sel_hi:[1,0,1]" for i in range(8)]
for k in (8, 4, 2, 1)[:OPT["dpn"]]:
    a(lnops.pop(0)); a(lnops.pop(0))
    a(f"v_max_u32_dpp v6, v{7 if k == 8 else 6}, v{7 if k == 8 else 6} row_ror:{k} {DPPM}")
a(f"s_mov_b64 exec, {(1 << (16 >> OPT['dpn'])) - 1}\nds_max_u32 v1, v{6 if OPT['dpn'] else 7}")
if OPT["kl"]: a(f"s_mov_b64 exec, 1\nds_add_rtn_u32 v71, v1, v71 offset:4\ns_mov_b64 exec, -1\nds_read_b32 v6, v1")
else: a("s_mov_b64 exec, -1")
for o in lnops: a(o)
for i in range(4): a(f"v_cvt_pk_bf16_f32 v{LNB+i}, v{LN+2*i}, v{LN+2*i+1}")
a("s_waitcnt lgkmcnt(0)")
if OPT["kl"]: a(f"v_readfirstlane_b32 s0, v71\ns_cmp_eq_u32 s0, s45\ns_cbranch_scc0 L_nk\ns_mov_b64 exec, 0xffff\nbuffer_store_dword v6, v{vK}, {S(WS)}, s3 offen sc1\ns_mov_b64 exec, -1\nL_nk:")
a("s_barrier\nds_read_b32 v1, v1")
for i in range(4, 8): a(f"v_cvt_pk_bf16_f32 v{LNB+i}, v{LN+2*i}, v{LN+2*i+1}")
for i in range(8): a(f"v_pk_add_f32 {V(LN+2*i,2)}, {V(LN+2*i,2)}, {V(H+2*i,2)}")
if OPT["kl"]: a("s_waitcnt lgkmcnt(0)\nv_cmp_eq_u32 s[46:47], v1, v7")
else: a(f"s_cmp_eq_u32 s45, 4\ns_waitcnt lgkmcnt(0)\nv_cmp_eq_u32 s[46:47], v1, v7\ns_cbranch_scc0 L_nk\ns_mov_b64 exec, 0xffff\nbuffer_store_dword v1, v{vK}, {S(WS)}, s3 offen sc1\nL_nk:")
a("s_and_b64 exec, s[46:47], -1\ns_cbranch_scc0 L_nc")
a(f"buffer_store_dwordx4 {V(LNB,4)}, v{vL}, {S(WS)}, s48 offen sc1\nbuffer_store_dwordx4 {V(LNB+4,4)}, v{vL}, {S(WS)}, s48 offen offset:16 sc1")
a("L_nc:\ns_mov_b64 exec, -1")
stamp(12); stamp(12, 4)
for i in range(8): a(f"v_cvt_pk_bf16_f32 v{OB+i}, v{LN+2*i}, v{LN+2*i+1}")
for hh in range(2):
    for d in range(2): a(f"v_permlane16_swap_b32 v{OB+4*hh+d}, v{OB+4*hh+2+d}")
osc = " " + OPT["osc"].replace("_", " ").replace("plain", "")
a("s_not_b64 exec, s[46:47]")
for hh in range(2): a(f"buffer_store_dwordx4 {V(OB+4*hh,4)}, v{aOUT}, {S(OUT)}, 0 offen offset:{64*hh}{osc}")
a("s_and_b64 exec, s[46:47], -1\ns_cbranch_scc0 L_fin")
for hh in range(2): a(f"buffer_store_dwordx4 {V(OB+4*hh,4)}, v{aOUT}, {S(OUT)}, 0 offen offset:{64*hh} sc1")
a("s_waitcnt vmcnt(0)")
for ct in range(4): a(f"buffer_store_dwordx4 {V(LN+4*ct,4)}, v{vB}, {S(WS)}, s49 offen offset:{64*ct} sc1")
a("L_fin:")
if OPT["dbg"] & 128:
    a(f"s_mov_b64 exec, -1\ns_lshl_b32 s3, s2, 3\ns_add_u32 s3, s3, s{sWV}\ns_lshl_b32 s3, s3, 13\ns_add_u32 s3, s3, {DUMP}")
    for i in range(8): a(f"buffer_store_dwordx4 {V(OB,4)}, v{aL16}, {S(WS)}, s3 offen\ns_add_u32 s3, s3, 1024")
finish()
pagebreak(None, False)
deferred("h")

pad("c0")
a("L_h0:")
if OPT["prio"]: a("s_setprio 2")
a(f"v_lshrrev_b32 v1, 3, v0\nv_and_b32 v2, 2, v1\nv_xor_b32 v2, v2, v0\nv_and_b32 v2, 7, v2\ns_lshl_b32 s3, s{sC}, 7\nv_lshl_add_u32 v2, v2, 4, s3")
a(f"v_mul_u32_u24 v3, 3840, v1\nv_add_u32 v{vW}, v3, v2\nv_xor_b32 v{vW+3}, 64, v{vW}\nv_add_u32 v{vW+3}, {8*3840}, v{vW+3}\nv_mov_b32 v{vEA}, 0")
for p in range(2):
    for s_ in (1, 2): a(f"v_add_u32 v{vW+3*p+s_}, {256*s_}, v{vW+3*p}")
def wpieces():
    P = []
    for pp in range(8):
        for s_ in range(3):
            t = f"buffer_load_dwordx4 v{vW+3*(pp&1)+s_}, {S(W)}, s{sXO} offen offset:{1024*s_} lds"
            if s_ == 2 and pp < 7: t += "\ns_addk_i32 m0, 3072"
            if s_ == 2 and pp & 1 and pp < 7: t += f"\ns_add_u32 s{sXO}, s{sXO}, 61440"
            P.append(t)
    return P
stamp(1, 5)
if not OPT["wrl"]: ldWR()
a(f"s_waitcnt vmcnt({0 if OPT['wrl'] else 4})")
stamp(2, 5)
a("s_barrier")
if OPT["wrl"]: ldWR()
early_touch(0)
a(f"s_mov_b32 s{sI}, 1\ns_mov_b32 s{sRD}, {S0 + SLOT}\ns_add_u32 s1, s{sXT}, 1\nL_wl:")
nextslab(); advslot(sSL); a(f"s_mul_i32 s{sXO}, s{sSB}, 245760\ns_add_u32 m0, s{sSL}, 12288")
for k, p in enumerate(wpieces()):
    a(p)
    if k == 13 and OPT["cm0"]: a(f"s_cmp_eq_u32 s1, s{sI}\ns_cbranch_scc0 L_wm\ns_call_b64 s[100:101], L_xcap\nL_wm:")
if OPT["cm0"]: a(f"s_mov_b32 s0, s{sRD}\ns_mov_b32 s{sRD}, s{sSL}\ns_waitcnt vmcnt(24) lgkmcnt(0)\ns_barrier")
else: a(f"s_mov_b32 s0, s{sRD}\ns_mov_b32 s{sRD}, s{sSL}\ns_cmp_eq_u32 s{sXT}, s{sI}\ns_waitcnt vmcnt(24) lgkmcnt(0)\ns_barrier\ns_cbranch_scc0 L_wc\ns_call_b64 s[100:101], L_xcap\nL_wc:")
for i in range(1, 8):
    t = capture(lambda: early_touch(i))
    if t: a(f"s_cmp_eq_u32 s{sI}, {i}\ns_cbranch_scc0 L_wt{i}\n" + "\n".join(t) + f"\nL_wt{i}:")
a(f"s_add_u32 s{sI}, s{sI}, 1\ns_cmp_lt_u32 s{sI}, 9\ns_cbranch_scc1 L_wl")
if OPT["cm0"]: a(f"s_cmp_eq_u32 s{sXT}, 8\ns_cbranch_scc0 L_h8\ns_call_b64 s[100:101], L_xcap")
a("s_branch L_h8")

ACC, XF, WF, ST, CS = 8, 80, 152, 180, 192
CLX = len(a.lines)
pagebreak(None, False)
a("L_cons:")
def clears(fl, n=4):
    a("v_mov_b32 v4, -1\nv_mov_b32 v5, -1\nv_mov_b32 v6, -1\nv_mov_b32 v7, -1")
    a(f"v_lshrrev_b32 v1, 3, v0\nv_mul_u32_u24 v1, 2560, v1\nv_and_b32 v2, 0x70, v{aL16}\ns_lshl_b32 s3, s{sC}, 7\ns_add_u32 s3, s3, s{sB0}\nv_add3_u32 v1, v1, v2, s3")
    a(f"s_mul_i32 s0, s{sT}, 20480\ns_add_u32 s1, s0, 81920\ns_add_u32 s3, s{sT}, 8\ns_cmp_lt_u32 s3, s{sNO}\ns_cselect_b32 s3, s1, {OOB:#x}\ns_add_u32 s66, s3, 81920")
    a(f"v_lshrrev_b32 v2, 4, v0\nv_mul_u32_u24 v2, {2560 - 256}, v2\nv_add_u32 v2, v2, v{aL16}")
    a(f"s_mul_i32 s67, s{sGID}, 15360\ns_lshl_b32 s3, s{sC}, 8\ns_add_u32 s67, s67, s3\ns_and_b32 s3, s{sT}, 1\ns_mul_i32 s3, s3, 7680\ns_add_u32 s67, s67, s3\ns_add_u32 s67, s67, {E2}")
    a(f"s_cmp_lt_u32 s{sT}, 2\ns_cselect_b32 s67, s67, {OOB:#x}")
    st = [f"buffer_store_dwordx4 v[4:7], v1, {S(OUT)}, s{r} offen{fl}" for r in (0, 1, 66)]
    if EVN & 8:
        a(f"{slow()}\ns_cselect_b32 s3, {OOB:#x}, 0\nv_or_b32 v1, s3, v1\nv_xor_b32 v3, 0x80, v1")
        st = [t + "\n" + t.replace(" v1,", " v3,") for t in st]
    st.append(f"s_mov_b32 exec_hi, 0xffff\nbuffer_store_dwordx4 v[4:7], v2, {S(WS)}, s67 offen{fl}\ns_mov_b64 exec, -1")
    for t in st[:n]: a(t)
    return st[n:]
def pf0(p):
    if OPT["pf0"] & 1 and p == OPT["pfp"] % 10:
        a(f"s_cmp_eq_u32 s{sWV}, 0\ns_cbranch_scc0 L_pa\ns_mul_i32 s3, s2, {27*128}\nv_lshlrev_b32 v1, 7, v0\ns_mov_b64 exec, {(1 << 27) - 1:#x}\nbuffer_load_dword v255, v1, {S(WO)}, s3 offen\ns_mov_b64 exec, -1\nL_pa:")
    if OPT["pf0"] & 2 and p == OPT["pfp"] // 10:
        a(f"s_cmp_eq_u32 s{sWV}, 1\ns_cbranch_scc0 L_pb\ns_lshl_b32 s3, s{sC}, 2\ns_add_u32 s3, s3, s{sJ}\ns_sub_u32 s0, s3, 40\ns_cselect_b32 s3, s3, s0\ns_mul_i32 s3, s3, {16*3840}")
        a(f"s_mul_i32 s0, s{sG}, 1280\ns_add_u32 s3, s3, s0\ns_lshl_b32 s0, s{sC}, 7\ns_add_u32 s3, s3, s0\nv_mul_u32_u24 v1, 3840, v0\ns_mov_b64 exec, 0xffff\nbuffer_load_dword v255, v1, {S(W)}, s3 offen\ns_mov_b64 exec, -1\nL_pb:")
pf0(0)
def w1():
    a(f"s_cmp_eq_u32 s{sSB}, 9\ns_cselect_b32 s3, {-10*245760}, 0\ns_add_u32 s3, s3, 245760\nv_add_u32 v254, s3, v254\ns_mul_i32 s3, s{sT}, 3072\ns_add_u32 m0, s3, {S0 + SLOT + 12288}\ns_mov_b32 s64, {32*3840}")
    for h in range(2):
        for k in range(3):
            a(f"buffer_load_dwordx4 v254, {S(W)}, {'s64' if h else 0} offen offset:{1280*k} lds")
            if (h, k) != (1, 2): a(f"s_addk_i32 m0, {-256 if k < 2 else 12288 + 512}")
def x1():
    if OPT["x1"] != 3: return
    a(f"s_mul_i32 s3, s{sT}, {-3*20480}\ns_add_u32 s3, s3, {20*20480}\nv_add_u32 v3, s3, v{vX}\ns_lshl_b32 s3, s{sT}, 6\ns_and_b32 s3, s3, 64\nv_xor_b32 v3, s3, v3")
    a(f"s_add_u32 s3, s{sSB}, 1\ns_cmp_eq_u32 s3, 10\ns_cselect_b32 s3, 0, s3\ns_lshl_b32 s61, s3, 7\ns_lshl_b32 s3, s{sT}, 10\ns_cselect_b32 exec_lo, -1, 0xffffff00\ns_add_u32 m0, s3, {S0 + SLOT}\ns_add_u32 s3, s{sT}, s{sG}")
    a(f"buffer_load_dwordx4 v3, {S(X)}, s61 offen lds\ns_mov_b32 exec_lo, -1\ns_addk_i32 m0, 4096\nv_add_u32 v3, 81920, v3")
    a(f"buffer_load_dwordx4 v3, {S(X)}, s61 offen lds\ns_addk_i32 m0, 4096\ns_cmp_eq_u32 s3, 5\ns_cselect_b32 s3, {OOB:#x}, 0\nv_add_u32 v3, 81920, v3\nv_or_b32 v3, s3, v3")
    a(f"buffer_load_dwordx4 v3, {S(X)}, s61 offen lds")
NX1 = 3 if OPT["x1"] == 3 else 0
suB(0); suC()
if OPT["w1"] == 0: w1()
if OPT["wc"] == 2: wo_setup(249)
suD(0); suE(0)
a(f"s_lshl_b32 s3, s{sT}, 5\nv_xor_b32 v3, s3, v3\nv_mul_u32_u24 v4, 3072, v2\nv_add_u32 v3, v3, v4\nv_add_u32 v{vAW}, {S0 + 12288}, v3\ns_mov_b32 s{sI}, 0")
stamp(0, 5)
stamp(1, 5)
a(f"v_mov_b32 v3, 0\nv_lshlrev_b32 v2, 2, v0\ns_mov_b32 exec_hi, 0")
a(f"ds_write_b32 v2, v3 offset:{MODE}\nds_write_b32 v2, v3 offset:{MODE + 8*PITCH}\ns_mov_b64 exec, -1")
a("v_and_b32 v1, 15, v0\nv_lshrrev_b32 v2, 4, v0")
a(f"v_lshrrev_b32 v3, 1, v1\nv_xor_b32 v3, v3, v2\nv_lshlrev_b32 v3, 4, v3\nv_lshl_add_u32 v3, v1, 7, v3\nv_add_u32 v{vAX0}, {S0}, v3\nv_xor_b32 v{vAX1}, 64, v{vAX0}")
a(f"v_mul_u32_u24 v3, {PITCH}, v1\nv_lshl_add_u32 v3, v2, 3, v3\ns_lshl_b32 s3, s{sT}, 5\ns_add_u32 s3, s3, {QB}\nv_add_u32 v{vSW}, s3, v3")
a(f"v_lshlrev_b32 v{vSTR}, 4, v1")
if G2: ltaddr(249)
assert STATS == 0
if OPT["pg"]:
    for k in range(4): a(f"s_cmp_eq_u32 s{sWV}, {k}\ns_cbranch_scc0 L_cw{k}"); warm("c0", k, 4); a(f"L_cw{k}:")
pf0(1)
ncl = OPT["ncp"]
CLR = clears(" sc1" if OPT["clr"] else "", 0)
if OPT["xw"] == 0: x1()
if OPT["w1"] == 1: w1()
if OPT["xw"] == 1: x1()
for t in CLR[:ncl]: a(t)
a(f"s_cmp_lt_u32 s{sWV}, 2\ns_cselect_b32 s{sXT}, s{sXT}, 99")
a(f"s_mov_b32 s{sRD}, {S0}\ns_min_u32 s{sEV}, s{sXT}, {E1_}\ns_waitcnt vmcnt({ncl + 6 + NX1 + (3 if EVN & 8 else 0)}) lgkmcnt(0)")
def rdW(d, s_, ks):
    L(f"ds_read_b64_tr_b16 {V(d,2)}, v{vAW} offset:{12288*ks + 1024*s_}")
    return L(f"ds_read_b64_tr_b16 {V(d+2,2)}, v{vAW} offset:{12288*ks + 1024*s_ + 512}")
def rdX(d, t, ks): return L(f"ds_read_b128 {V(d+4*t,4)}, v{vAX0+ks} offset:{2048*t}")
def acc(s_, t): return ACC + 4 * (6 * s_ + t)
stamp(2); stamp(2, 5)
SEG = (1, 0, 2) if OPT['ord'] else (1, 2, 0)
PRE = OPT["pre"]
def rdlist(ph):
    o = []
    def w(s_):
        d = WV2 if (ph, s_) == (1, 1) else WF + 12 * ph + 4 * s_
        for e in range(2): o.append((("w", ph, s_), f"ds_read_b64_tr_b16 {V(WF+12*ph+4*s_+2*e,2)}, v{vAW} offset:{12288*ph + 1024*s_ + 512*e}"))
    w(SEG[0])
    for t in range(6): o.append((("x", ph, t), f"ds_read_b128 {V(XF+24*ph+4*t,4)}, v{vAX0+ph} offset:{2048*t}"))
    w(SEG[1]); w(SEG[2])
    return o
WV2 = WF + 24
def step(first):
    a("s_barrier")
    stampi(0)
    L.reset(); ids = {}
    M = [(s_, t) for s_ in SEG for t in range(6)]
    seq = ([] if first else [(1, "o") + m for m in M[PRE:]]) + [(0, "n") + m for m in M] + [(1, "n") + m for m in M[:PRE]]
    no = 0 if first else 18 - PRE
    pend = rdlist(0); p1 = rdlist(1)
    def rd(n=1):
        for _ in range(n):
            if pend: k, tx = pend.pop(0); ids[k] = L(tx)
    rd(12 if first else 2)
    fill = [f"s_add_u32 s3, s{sRD}, {SLOT}\ns_cmp_eq_u32 s3, {S0 + 4*SLOT}", f"s_cselect_b32 s3, {S0}, s3\ns_sub_u32 s{sDL}, s3, s{sRD}",
            f"s_mov_b32 s{sRD}, s3\nv_add_u32 v{vAX0}, s{sDL}, v{vAX0}", f"v_add_u32 v{vAW}, s{sDL}, v{vAW}\nv_add_u32 v{vAX1}, s{sDL}, v{vAX1}"]
    if not first: fill.append(f"s_cmp_eq_u32 s{sI}, s{sEV}\ns_cbranch_scc1 L_ev\nL_evb:")
    fill.append("STAMP"); fill.append(f"s_add_u32 s{sI}, s{sI}, 1\ns_cmp_lt_u32 s{sI}, 9"); fill.append("s_waitcnt lgkmcnt(0)")
    for n, (ph, kd, s_, t) in enumerate(seq):
        if n == no: pend += p1
        if kd == "n":
            need = max(ids["x", ph, t], ids["w", ph, s_])
            if s_ == SEG[0] and t == 0 and L.n - ids.get(("x", ph, 5), L.n) >= 4: need = ids["x", ph, 5]
            L.wait(need)
        if first or not (OPT["dbg"] & 256 and t & 1): mfma(acc(s_, t), WF + 12 * ph + 4 * s_, XF + 24 * ph + 4 * t, "0" if first and ph == 0 else None)
        if pend: rd()
        elif n >= no and fill and (len(fill) > 1 or n >= len(seq) - 2):
            f = fill.pop(0)
            if f == "STAMP": stampi(1)
            else: a(f)
    for f in fill: stampi(1) if f == "STAMP" else a(f)
step(1)
for t in CLR[ncl:]: a(t)
a(f"s_waitcnt vmcnt({7 if EVN & 8 else 4})")
assert not (EVN & 8 and (ncl != 4 or NX1))
CL0 = len(a.lines)
pagebreak("c0")
a("L_cloop:")
step(0)
a("s_cbranch_scc1 L_cloop")
L.reset(); ids = {}
def wreg(ks, s_): return WV2 if (ks, s_) == (1, 1) else WF + 12 * ks + 4 * s_
later = []
def lw(ks, s_):
    for e in range(2): later.append((("w", ks, s_), f"ds_read_b64_tr_b16 {V(wreg(ks,s_)+2*e,2)}, v{vAW} offset:{12288*ks + 1024*s_ + 512*e}"))
def lx(ks):
    for t in range(6): later.append((("x", ks, t), f"ds_read_b128 {V(XF+48*ks+4*t,4)}, v{vAX0+ks} offset:{2048*t}"))
lw(0, 1); lx(0); lw(1, 1); lx(1); lw(0, SEG[1]); lw(0, SEG[2])
def rd_later(n=1):
    for _ in range(n):
        if later: k, tx = later.pop(0); ids[k] = L(tx)
def old(s_, t): mfma(acc(s_, t), WF + 12 + 4 * s_, XF + 24 + 4 * t)
def new(s_, ks, t):
    L.wait(max(ids["w", ks, s_], ids["x", ks, t])); mfma(acc(s_, t), wreg(ks, s_), XF + 48 * ks + 4 * t)
def mlist(s_): return [(s_, "o", t) for t in range(6)] + [(s_, ks, t) for ks in range(2) for t in range(6)]
def mm(q):
    s_, k, t = q.pop(0)
    if k != "o" and ("w", k, s_) not in ids: rd_later(9)
    old(s_, t) if k == "o" else new(s_, k, t)
    if k == "o" and t == 5 and s_ != 1: lw(1, s_)
def fixup(s_, q, per):
    for r in range(4):
        a(f"v_mov_b32_dpp v{CS+r}, v{acc(s_,0)+r} row_newbcast:0 {DPPM}")
    wr = None
    for t in range(6):
        A = acc(s_, t); st = V(ST + 2 * t, 2)
        if per or not OPT["pk"]:
            ops = [f"v_fmac_f32 v{A+h}, v{CS+h}, v{ST+2*t}" for h in range(4)]
        else:
            ops = [f"v_pk_fma_f32 {V(A+h,2)}, {V(CS+h,2)}, {st}, {V(A+h,2)} op_sel_hi:[1,0,1]" for h in (0, 2)]
        ops += [f"v_cvt_pk_bf16_f32 v{A}, v{A}, v{A+1}", f"v_cvt_pk_bf16_f32 v{A+1}, v{A+2}, v{A+3}"]
        for i, o in enumerate(ops):
            if q and ((per >= 2 and i == 3) or (per >= 3 and i == 0)): mm(q)
            a(o)
        if q and per >= 1: mm(q)
        if (s_, t) in ((SEG[1], OPT["bk"]), (SEG[2], OPT["bv"])): L.wait(L.n - t); a("s_barrier")
        L(f"ds_write_b64 v{vSW}, {V(A,2)} offset:{TSTR*s_ + 16*PITCH*t}")
km, qm, vm = mlist(1), mlist(SEG[1]), mlist(SEG[2])
a(f"v_mov_b32 v1, {MODE}")
sr = ["ds_read_b32 v1, v1"] + [f"ds_read2_b64 {V(ST+2*t,4)}, v{vSTR} offset0:{32*t} offset1:{32*t + 32}" for t in range(0, 6, 2)]
for i in range(PRE):
    s_, _, t = (km if i < 6 else qm if i < 12 else vm).pop(0)
    if t == 5 and s_ != 1: lw(1, s_)
for o in sr: a(o)
a(f"s_waitcnt lgkmcnt(0)\nv_readfirstlane_b32 s{sMODE}, v1\ns_barrier")
stamp(3); stamp(9, 2); stamp(0, 3)
if not OPT["clr"]: a(f"s_cmp_eq_u32 s{sMODE}, 1\ns_cbranch_scc0 L_gs\nL_gsb:")
rd_later(2)
n = 0
for q in (km, qm, vm):
    while q[0][1] == "o" and (n < 6 or q is km): mm(q); rd_later(); n += 1
rd_later(2)
while km: mm(km); rd_later()
mm(qm); rd_later(9)
assert not later
fixup(1, qm, -(-len(qm) // 6))
while qm: mm(qm)
mm(vm)
fixup(SEG[1], vm, -(-len(vm) // 6) if not OPT["ord"] else OPT["vq"])
if not OPT["ord"]:
    while vm: mm(vm)
    fixup(0, [], 0)
else:
    for _ in range(2):
        if vm: mm(vm)
    a(f"s_setprio {OPT['vprio']}")
stamp(1, 3)
a("s_waitcnt lgkmcnt(0)\ns_barrier")
stamp(4); stamp(2, 3)
if OPT["ord"]:
    L.done = L.n
    a(f"v_mov_b32 v1, {VCN}\nv_mov_b32 v2, 1")
    while vm: mm(vm)
    fixup(2, [], 0)
    a("s_mov_b64 exec, 1\nds_add_u32 v1, v2\ns_mov_b64 exec, -1\ns_setprio 0")
    stamp(4, 3)
if STAGE == "A":
    a("L_dumpA:")
    a(f"s_lshl_b32 s3, s{sWV}, 10\nv_add_u32 v1, s3, v{aL16}\ns_mul_i32 s3, s2, 49152\ns_add_u32 s3, s3, {DUMP}")
    for i in range(6):
        a(f"ds_read_b128 v[16:19], v1 offset:{8192*i}\ns_waitcnt lgkmcnt(0)\nbuffer_store_dwordx4 v[16:19], v1, {S(WS)}, s3 offen\ns_waitcnt vmcnt(0)\ns_add_u32 s3, s3, 8192")
    finish()
a(f"s_cmp_lt_u32 s{sWV}, 2\ns_cbranch_scc0 L_c23")
attention("e")
if STAGE == "B": a("s_waitcnt vmcnt(0)"); finish()

if G2: a("s_branch L_fsh"); deferred()
CL3 = len(a.lines)
if G2: pad("h"); a("L_fsh:\ns_setprio 0")
ldWR(); hinit()
a(f"s_lshl_b32 s0, s{sWV}, 13\ns_add_u32 s0, s0, {EX}\nv_add_u32 v4, s0, v{aL16}\ns_lshl_b32 s0, s{sWV}, 2\ns_add_u32 s0, s0, {XFL}\ns_waitcnt vmcnt(0)")
wrprep(XR)
a("v_mov_b32 v2, s0\nL_fx:")
if OPT["fsl"]: a(f"s_sleep {OPT['fsl']}")
a("ds_read_b32 v1, v2\ns_waitcnt lgkmcnt(0)\nv_cmp_ne_u32 vcc, 2, v1\ns_cbranch_vccnz L_fx")
stamp(9); stamp(9, 4)
if OPT["lprio"]: a(f"s_setprio {OPT['lprio']}")
for q in range(8): a(f"ds_read_b128 {V(OF+4*q,4)}, v4 offset:{1024*q}")
for q in range(8):
    a(f"s_waitcnt lgkmcnt({7-q})")
    for e in range(4): a(f"v_add_f32 v{H+4*(q&3)+e}, v{H+4*(q&3)+e}, v{OF+4*q+e}")
stamp(10, 4)
a("s_branch L_tail")
deferred()
CL1 = len(a.lines)
pad("h")
a("L_c23:")
attention("l")
if STAGE == "B": a("s_waitcnt vmcnt(0)")
finish()
deferred("h")
CL2 = len(a.lines)
pad("h")
a(f"L_ev:\ns_cmp_eq_u32 s{sI}, {EV1}\ns_cbranch_scc0 L_ev1\ns_waitcnt vmcnt(0)\nL_ev1:\ns_max_u32 s{sEV}, s{sXT}, {EV1}")
a(f"s_cmp_eq_u32 s{sI}, s{sXT}\ns_cbranch_scc0 L_evb\ns_sub_u32 s0, s{sRD}, s{sDL}"); capt("s0"); a("s_branch L_evb")
if not OPT["clr"]:
    a("L_gs:")
    clears(" sc1")
    a("s_waitcnt vmcnt(0)\ns_barrier\ns_barrier\ns_branch L_gsb")

if OPT["pg"]:
    mv_ = a.lines[CL2:]; mw_ = a.lines[CL1:CL2]; del a.lines[CL1:]
    if G2: mv_ += a.lines[CL3:]; del a.lines[CL3:]
    a.lines[CL0+1:CL0+1] = mv_ + [";MOEHEAD"]; a.lines[CLX:CLX] = mw_

GATE, UP, DOWN, SM = 4, 8, 12, 28
sMm = 36
GSL = 42240; NGS = 3; MISC = NGS * GSL
SSZ = 8448
ACTB, MZ, WINB, LNL = MISC, MISC + 192, MISC + 256, MISC + 512
GF, DF, GA, XS, IDX = 8, 168, 228, 236, 7
MH0 = len(a.lines)
a("L_moe:")
a(f"s_cmp_ge_u32 s{sU}, 32\ns_cbranch_scc1 L_end")
a(f"s_lshr_b32 s{sWV}, s{sWV}, 6\nv_and_b32 v0, 63, v0\ns_lshl_b32 s{sMm}, s{sJ}, 1\ns_add_u32 s{sMm}, s{sMm}, s{sU}\ns_sub_u32 s{sMm}, s{sMm}, 30\ns_mov_b32 s{sBUD}, {BUDGET}")
a("v_lshlrev_b32 v6, 4, v0\nv_mov_b32 v132, 0\nv_mov_b32 v133, 0\nv_mov_b32 v144, 0\ns_waitcnt lgkmcnt(0)")
mksrd(WS, "ws", 1 << 28); mksrd(DBG, "dbg", 256); mksrd(GATE, "gate", 640 * 3072); mksrd(UP, "up", 640 * 3072); mksrd(DOWN, "down", 1536 * 1280); mksrd(OUT, "out", 2048 * 1280)
stamp(0)
a("v_mov_b32 v8, -1\nv_mov_b32 v9, -1\nv_mov_b32 v10, -1\nv_mov_b32 v11, -1")
a(f"s_lshl_b32 s0, s{sMm}, 14\ns_lshl_b32 s3, s{sWV}, 11\ns_add_u32 s0, s0, s3\ns_add_u32 s0, s0, {RJ}")
for i in range(2): a(f"buffer_store_dwordx4 v[8:11], v6, {S(WS)}, s0 offen offset:{1024*i} sc1")
def rootup(n):
    nr = a.label("nroot")
    a(f"s_waitcnt vmcnt({n})\ns_barrier\ns_cmp_eq_u32 s{sWV}, 0\ns_cbranch_scc0 {nr}")
    a(f"s_lshl_b32 s0, s{sMm}, 4\nv_mov_b32 v8, 1\ns_mov_b64 exec, 1\nbuffer_store_dword v8, off, {S(DBG)}, s0 sc1")
    if OPT["ddie"] >= 0: a(f"v_mov_b32 v9, s98\nbuffer_store_dword v9, off, {S(DBG)}, s0 offset:4 sc1")
    a(f"s_mov_b64 exec, -1\n{nr}:")
if STAGE != "F": rootup(0); finish()
if OPT["mon"]:
    a(f"s_movk_i32 s{sBUD}, 40\ns_bitcmp1_b32 s{sMm}, 0\ns_cbranch_scc0 L_nm\ns_waitcnt vmcnt(0)\ns_barrier\ns_cmp_eq_u32 s{sWV}, 0\ns_cbranch_scc0 L_end")
    a(f"s_lshl_b32 s0, s{sMm}, 4\nv_mov_b32 v8, 1\ns_mov_b64 exec, 1\nbuffer_store_dword v8, off, {S(DBG)}, s0 sc1\ns_waitcnt vmcnt(0)")
    a(f"s_lshl_b32 s0, s{sMm}, 16\nv_mov_b32 v1, s0\nv_mov_b32 v20, 0\nv_mov_b32 v9, -1\ns_add_u32 s1, s0, {DUMP}\ns_mov_b32 m0, 0\ns_bitcmp1_b32 s{sMm}, 1")
    a(f"L_mo:\ns_cbranch_scc1 L_m1\nbuffer_atomic_umin v9, off, {S(WS)}, s1 sc0 sc1\ns_branch L_m2\nL_m1:\nglobal_load_dword v8, v1, s[50:51]\nv_add_u32 v1, 640, v1\nL_m2:")
    a(f"s_waitcnt vmcnt(0)\ns_memrealtime s[44:45]\ns_waitcnt lgkmcnt(0)\ns_sub_i32 s44, s44, s98\nv_writelane_b32 v20, s44, m0\ns_add_i32 m0, m0, 1\ns_cmp_eq_u32 m0, 58\ns_cbranch_scc1 L_m3\ns_bitcmp1_b32 s{sMm}, 1\ns_branch L_mo")
    a(f"L_m3:\nv_writelane_b32 v20, s98, 63\ns_mov_b64 exec, -1\ns_lshl_b32 s3, s2, 4\ns_add_u32 s3, s3, 8\ns_lshl_b32 s3, s3, 7\ns_add_u32 s3, s3, {STAMP}\nv_lshlrev_b32 v3, 2, v0\nbuffer_store_dword v20, v3, {S(WS)}, s3 offen\ns_endpgm\nL_nm:")
vGX, vGS, vRX, vRS = 4, XS + 13, XS + 14, XS + 15
sB5, sKO = 44, 45
a(f"s_and_b32 s{sB5}, s{sMm}, 1\ns_mul_i32 s0, s{sJ}, 384\ns_lshl_b32 s1, s{sB5}, 8\ns_add_u32 s1, s1, s0\ns_mul_i32 s3, s{sWV}, {8*3072}\ns_add_u32 s1, s1, s3")
a(f"v_lshrrev_b32 v1, 3, v0\nv_mul_u32_u24 v1, 3072, v1\ns_lshr_b32 s3, s{sWV}, 1\nv_xor_b32 v2, s3, v0\nv_and_b32 v2, 7, v2\nv_lshl_add_u32 v1, v2, 4, v1\nv_add_u32 v{vGX}, s1, v1\nv_xor_b32 v{vGX+1}, 64, v{vGX}")
a(f"s_lshl_b32 s1, s{sB5}, 6\ns_add_u32 s0, s0, s1\ns_and_b32 s3, s{sWV}, 3\ns_mul_i32 s1, s3, {16*3072}\ns_add_u32 s0, s0, s1\ns_add_u32 s0, s0, 128")
a(f"v_lshrrev_b32 v1, 2, v0\nv_mul_u32_u24 v1, 3072, v1\nv_xor_b32 v2, s3, v0\nv_and_b32 v2, 3, v2\nv_lshl_add_u32 v1, v2, 4, v1\nv_add_u32 v{vGS}, s0, v1")
if OPT["pg"] and G2 and not OPT["mon"]:
    a("s_branch L_moe2"); hd = a.lines[MH0:]; del a.lines[MH0:]
    k = a.lines.index(";MOEHEAD"); a.lines[k:k+1] = hd; a("L_moe2:")
a(f"s_cmp_lt_u32 s{sWV}, 4\ns_cselect_b64 s[{SM}:{SM+1}], s[{GATE}:{GATE+1}], s[{UP}:{UP+1}]\ns_cselect_b32 s62, 0, 128\ns_mov_b32 s{SM+2}, {640*3072:#x}\ns_mov_b32 s{SM+3}, 0x20000")
a(f"s_lshl_b32 s61, s{sWV}, 10\ns_add_u32 s62, s62, s61\ns_mul_i32 s{sB5}, s{sB5}, {5*64*3072}\ns_mul_i32 s46, s{sMm}, {96*1280}")
a(f"s_and_b32 s3, s{sMm}, 1\ns_cselect_b32 s65, 40960, 0\ns_cselect_b32 s66, 0, 81920\ns_add_u32 s65, s65, s46\ns_add_u32 s66, s66, s46\ns_add_u32 s67, s65, 40960")
def koff(i): a(f"s_add_u32 s{sKO}, s{sB5}, {i*64*3072}" if i < 5 else f"s_sub_u32 s{sKO}, {i*64*3072}, s{sB5}")
def dissue(hh, i, sl):
    a(f"s_lshl_b32 s3, s{sWV}, 6\ns_addk_i32 s3, {512*i}\nv_add_u32 v1, s3, v0\nv_mul_u32_u24 v2, 52429, v1\nv_lshrrev_b32 v2, 22, v2")
    a(f"v_and_b32 v3, 3, v2\nv_lshlrev_b32 v3, 1, v3\nv_and_or_b32 v3, v2, 8, v3\nv_xor_b32 v1, v1, v3\nv_lshlrev_b32 v1, 4, v1")
    a(f"s_add_u32 m0, s61, {sl + 8192*i}\ns_nop 0\nbuffer_load_dwordx4 v1, {S(DOWN)}, s{65 + hh} offen lds")
UN = [[("x", i), ("s", i)] for i in range(5)] + [[("x", 5), ("x", 6)], [("x", 7), ("x", 8)], [("x", 9)]]
SU, DU = [[("s", i) for i in range(5, 10)]], [[("d", h)] for h in range(3)]
UN = {0: UN + DU + SU, 1: UN + SU + DU, 2: UN[:6] + SU + UN[6:] + DU}[OPT["uord"]]
def place(u):
    o = (u % NGS) * GSL; r = []
    for kd, i in UN[u]: r.append((kd, i, o)); o += {"x": 16384, "s": SSZ, "d": 40960}[kd]
    return r
def uissue(u):
    n = 0
    for kd, i, o in place(u):
        if kd == "d":
            for k in range(5): dissue(i, k, o)
            n += 5; continue
        koff(i)
        if kd == "x":
            for m_, srd_ in ((0, GATE), (1, UP)): a(f"s_add_u32 m0, s61, {o + 8192*m_}\nbuffer_load_dwordx4 v{vGX+m_}, {S(srd_)}, s{sKO} offen lds")
            n += 2
        else: a(f"s_add_u32 m0, s62, {o}\nbuffer_load_dwordx4 v{vGS}, {S(SM)}, s{sKO} offen lds"); n += 1
    return n
a(f"s_cmp_lt_u32 s{sWV}, {OPT['rw']}\ns_cbranch_scc1 L_r0")
n0 = uissue(0)
a(f"s_waitcnt vmcnt({n0})\ns_barrier\ns_branch L_r1\nL_r0:")
rootup(0)
uissue(0)
a("L_r1:")
if OPT["mlate"]: a(f"L_ml:\ns_memrealtime s[0:1]\ns_waitcnt lgkmcnt(0)\ns_sub_u32 s0, s0, s98\ns_cmp_lt_u32 s0, {OPT['mlate']}\ns_cbranch_scc1 L_ml")
nI = {1: uissue(1)}
a("v_lshrrev_b32 v1, 5, v0\nv_bfe_u32 v2, v0, 2, 1\nv_lshl_add_u32 v1, v1, 2, v2\nv_bfe_u32 v2, v0, 4, 1\nv_bfe_u32 v3, v0, 3, 1\nv_lshl_add_u32 v3, v3, 1, v2\nv_lshl_add_u32 v1, v3, 4, v1")
a(f"v_xor_b32 v3, s{sWV}, v3\nv_and_b32 v2, 1, v0\nv_lshlrev_b32 v2, 3, v2\nv_lshl_add_u32 v2, v3, 4, v2\nv_bfe_u32 v3, v0, 1, 1")
a(f"v_lshl_add_u32 v{vRS}, v1, 6, v2\nv_mul_u32_u24 v8, 4224, v3\nv_add_u32 v{vRS}, v{vRS}, v8")
a(f"v_lshl_add_u32 v{vRX}, v1, 7, v2\nv_mul_u32_u24 v8, {8192 + 64}, v3\nv_xor_b32 v{vRX}, v{vRX}, v8")
vXS, vACT, vA1, vA2, vE4 = 252, 253, 254, 255, 5
for i in range(8): a(f"v_mov_b32 v{GA+i}, 0")
a(f"v_mov_b32 v1, 0x4444\nv_mov_b32 v2, 0xeeee\ns_mov_b32 vcc_lo, 0xaaaaaaaa\ns_mov_b32 vcc_hi, 0xaaaaaaaa\nv_cndmask_b32 v{IDX}, v1, v2, vcc")
a(f"v_and_b32 v1, 48, v0\nv_and_b32 v2, 1, v0\nv_lshlrev_b32 v2, 4, v2\nv_lshl_add_u32 v{vXS}, v1, 1, v2\nv_add_u32 v{vA1}, {ACTB}, v{vXS}\nv_add_u32 v{vXS}, {LNL}, v{vXS}")
a(f"v_add_u32 v1, {ACTB + 128}, v1\nv_mov_b32 v2, {MZ}\nv_cndmask_b32 v{vA2}, v1, v2, vcc\nv_mov_b32 v3, 0\nv_lshl_add_u32 v2, v0, 2, v2\ns_mov_b32 exec_hi, 0\nds_write_b32 v2, v3\ns_mov_b64 exec, -1")
a(f"s_and_b32 s0, s{sWV}, 4\ns_add_u32 s0, s0, s{sWV}\nv_bfe_u32 v1, v0, 4, 1\nv_lshl_add_u32 v1, v1, 2, s0")
a("v_lshrrev_b32 v2, 1, v1\nv_lshlrev_b32 v2, 2, v2\nv_and_or_b32 v2, v1, 1, v2\nv_and_or_b32 v2, v0, 2, v2\nv_bfe_u32 v3, v0, 2, 1\nv_lshl_add_u32 v2, v2, 1, v3")
a(f"v_and_b32 v3, 1, v0\nv_lshl_add_u32 v2, v2, 1, v3\nv_and_b32 v3, 7, v0\nv_lshl_add_u32 v3, v1, 3, v3\nv_cmp_gt_u32 vcc, 8, v1\nv_cndmask_b32 v2, v3, v2, vcc\nv_lshlrev_b32 v2, 1, v2\nv_add_u32 v{vACT}, {ACTB}, v2")
a(f"s_lshl_b32 s47, s{sWV}, 15\ns_lshl_b32 s3, s{sMm}, 6\ns_add_u32 s47, s47, s3\ns_add_u32 s47, s47, {RJ + R_E4}")
a(f"v_lshrrev_b32 v1, 2, v0\nv_and_b32 v2, 3, v0\nv_lshlrev_b32 v2, 4, v2\nv_lshl_add_u32 v2, v1, 10, v2\nv_lshlrev_b32 v1, 4, v1\nv_add_u32 v1, {4096 - 64}, v1\ns_mov_b64 vcc, 0xffff\nv_cndmask_b32 v{XS+10}, v1, v2, vcc")
a(f"s_cmp_lt_u32 s{sWV}, 4\ns_cselect_b32 s50, 0x00ff0000, 0\ns_or_b32 s50, s50, 0xff\ns_mov_b32 s51, 0")
sFT, sFE, sWIN, sXS = 52, 53, 54, 55
a(f"s_sub_u32 s3, s{sWV}, 4\ns_lshl_b32 s3, s3, 4\ns_add_u32 s{sFT}, s3, s{sMm}\ns_mul_i32 s3, s{sFT}, 52\ns_lshr_b32 s3, s3, 8\ns_mul_i32 s3, s3, {RJS - 5120}\ns_lshl_b32 s{sFE}, s{sFT}, 10\ns_add_u32 s{sFE}, s{sFE}, s3\ns_add_u32 s{sFE}, s{sFE}, {RJ + R_E4}")
vFC, vFB, vSG, FD = 128, 129, 130, 40
a(f"s_mov_b32 s49, {BUDGET >> 2}\ns_mov_b32 s63, 0")
a(f"s_mul_i32 s3, s{sFT}, 52\ns_lshr_b32 s3, s3, 8\ns_mul_i32 s0, s3, 5\ns_sub_u32 s0, s{sFT}, s0\ns_mul_i32 s3, s3, 80\ns_lshl_b32 s1, s0, 2\ns_cmp_eq_u32 s0, 4\ns_cselect_b32 s1, 64, s1\ns_cselect_b32 s0, 0, 4\ns_cselect_b32 s48, 2, 0\ns_add_u32 s3, s3, s1")
a(f"v_bfe_u32 v1, v0, 4, 1\nv_lshrrev_b32 v2, 5, v0\nv_lshl_add_u32 v1, v1, 1, v2\nv_lshlrev_b32 v1, s0, v1\nv_and_b32 v2, 3, v0\nv_lshlrev_b32 v2, s48, v2\nv_add3_u32 v1, v1, v2, s3\nv_lshlrev_b32 v{vFC}, 1, v1\nv_lshlrev_b32 v{vFB}, 2, v1")
a("v_lshrrev_b32 v1, 4, v0\nv_bfe_u32 v2, v0, 2, 2\nv_lshl_add_u32 v1, v1, 3, v2\nv_mul_u32_u24 v1, 1280, v1\nv_and_b32 v3, 1, v0\nv_lshl_add_u32 v1, v3, 3, v1")
a(f"v_bfe_u32 v2, v0, 2, 3\nv_lshlrev_b32 v2, 1, v2\nv_bfe_u32 v3, v0, 1, 1\ns_mul_i32 s0, s{sWV}, 10")
for i in range(5): a(f"s_add_u32 s3, s0, {2*i}\nv_add_u32 v{XS+i}, s3, v3\nv_xor_b32 v{XS+i}, v{XS+i}, v2\nv_lshl_add_u32 v{XS+i}, v{XS+i}, 4, v1")
for u in range(len(UN)):
    a(f"s_waitcnt vmcnt({nI.get(u + 1, 0) + (u == 6)}) lgkmcnt(0)\ns_barrier")
    if u + 2 < len(UN): nI[u + 2] = uissue(u + 2)
    sk = False
    for kd, i, o in place(u):
        if kd == "d":
            for k in range(5):
                a(f"v_add_u32 v1, {o}, v{XS+k}")
                for e in range(2): a(f"ds_read_b64_tr_b16 {V(DF+12*k+4*i+2*e,2)}, v1 offset:{1280*4*e}")
            continue
        if kd == "s" and not sk: a(f"s_cmp_lt_u32 s{sWV}, 4\ns_cbranch_scc0 L_g{u}"); sk = True
        a(f"v_add_u32 v1, {o}, v{vRX if kd == 'x' else vRS}")
        p = 128 if kd == "x" else 64
        for hh in range(2):
            for e in range(2): a(f"ds_read_b64_tr_b16 {V(GF+80*(kd == 's')+8*i+4*hh+2*e,2)}, v1 offset:{p*(8*hh + 2*e)}")
    if sk: a(f"L_g{u}:")
    if u == 5: a(f"v_and_b32 v{XS+12}, 0xf0, v6\nbuffer_load_dword v{XS+11}, v{XS+12}, {S(DBG)}, 0 offen sc1")
    if u == 7: stamp(1)
stamp(2)
pagebreak()
warm("m", 0, 1)
a(f"v_mov_b32 v{vE4}, v{XS+10}\nv_mov_b32 v4, {WINB}\ns_mov_b32 s61, 0\ns_cmp_lt_u32 s{sWV}, 7\ns_cbranch_scc1 L_np")
a(f"L_rt:\nv_cmp_ne_u32 vcc, 1, v{XS+11}\ns_cbranch_vccz L_rtg\nbuffer_load_dword v{XS+11}, v{XS+12}, {S(DBG)}, 0 offen sc1\ns_waitcnt vmcnt(0)\ns_sub_u32 s{sBUD}, s{sBUD}, 1\ns_cbranch_scc0 L_rt\ns_mov_b32 s{sBUD}, 0\nL_rtg:")
vKA, vKB, sKO_, sAG, sSP = 144, 146, 64, 60, 61
NFL = 16
a(f"v_bfe_u32 v1, v0, 2, 3\nv_lshlrev_b32 v1, 15, v1\nv_and_b32 v2, 3, v0\nv_min_u32 v2, 2, v2\nv_mul_u32_u24 v3, 1280, v2\ns_mov_b32 s0, {RJ}\nv_add3_u32 v{vKB+1}, v3, v1, s0\nv_lshl_add_u32 v{vKA}, v2, 7, v1\ns_mul_i32 s0, s{sMm}, 384\ns_add_u32 s{sKO_}, s0, {RJ + R_KEY}")
stamp(3)
vRW = 132
a(f"s_and_b32 s3, s{sMm}, 1\ns_mul_i32 s3, s3, 640\nv_add_u32 v{vRW}, s3, v6\nv_subrev_u32 v2, 1280, v{vRW}\nv_min_u32 v{vRW}, v{vRW}, v2\ns_sub_u32 s3, 1024, s3\nv_add_u32 v{vRW+1}, s3, v6")
row = f"s_mov_b32 m0, {LNL}\ns_mov_b64 exec, -1\nbuffer_load_dwordx4 v{vRW}, {S(WS)}, s{sXS} offen sc1 lds\ns_mov_b32 m0, {LNL + 1024}\ns_mov_b64 exec, 0xffff\nbuffer_load_dwordx4 v{vRW+1}, {S(WS)}, s{sXS} offen sc1 lds"
KP, KV = OPT["kp"], 140
KM = 0x77777777
a(f"s_mov_b32 s{sWIN}, 0\ns_mov_b32 s{sXS}, {OOB:#x}\ns_mov_b32 s{sAG}, {1 << 30}\ns_setprio 3")
def look(k):
    a(row); execset(KM)
    a(f"buffer_atomic_umin v{KV+k}, v{vKA}, {S(WS)}, s{sKO_} offen sc0 sc1")
for k in range(KP): a(f"v_mov_b32 v{KV+k}, -1")
for k in range(KP - 1):
    look(k)
    if OPT["ks"]: a(f"s_sleep {OPT['ks']}")
for k in range(KP):
    a(f"L_pl{k}:")
    look((k + KP - 1) % KP)
    if OPT["sp"]: a(f"s_mov_b32 s62, {k}\ns_cmp_eq_u32 s{sSP}, 2\ns_cbranch_scc1 L_ab\nL_pi{k}:")
    a(f"s_waitcnt vmcnt({3 * (KP - 1)})\nv_cmp_lt_u32 vcc, s{sWIN}, v{KV+k}\ns_sub_u32 s{sAG}, s{sAG}, 1\ns_cbranch_vccz L_pw")
    a(f"s_cselect_b32 s0, s{sSP}, 1\ns_max_i32 s{sAG}, s{sAG}, 0")
    a(f"v_cmp_eq_u32 s[58:59], -1, v{KV+k}\nv_mov_b32 v{vKB}, v{KV+k}\ns_andn2_b64 vcc, vcc, s[58:59]\ns_cbranch_scc0 L_pq{k}")
    if OPT["stamps"] == 1: l = a.label("fu"); a(f"s_cmp_eq_u32 s63, 0\ns_cbranch_scc0 {l}"); stamp(12); a(f"{l}:\ns_add_u32 s63, s63, 1")
    stamp(11)
    a(f"s_mov_b64 exec, -1\nv_cndmask_b32 v{vKB}, 0, v{vKB}, vcc\ns_lshl_b32 s{sSP}, s{sSP}, 1")
    a(f"v_max_u32_dpp v{XS}, v{vKB}, v{vKB} row_ror:8 {DPPM}")
    for r in (4, 2, 1): a(f"v_max_u32_dpp v{XS}, v{XS}, v{XS} row_ror:{r} {DPPM}")
    a(f"v_mov_b32 v{XS+1}, v{XS}\ns_mov_b32 s{sAG}, {KP - 1}\nv_permlane16_swap_b32 v{XS}, v{XS+1}\nv_max_u32 v{XS}, v{XS}, v{XS+1}\ns_mov_b32 exec_hi, 0\nv_cmpx_eq_u32 vcc, v{XS}, v{vKB}")
    a(f"ds_write_b64 v4, {V(vKB,2)}\nv_readfirstlane_b32 s{sXS}, v{vKB+1}\nv_readfirstlane_b32 s{sWIN}, v{vKB}\ns_branch L_pl{(k + 1) % KP}\nL_pq{k}:")
    if OPT["sp"]: a(f"s_cmp_eq_u32 s0, 0\ns_cselect_b32 s{sSP}, 1, s{sSP}\ns_cbranch_scc1 L_pg")
    if OPT["ks"]: a(f"s_sleep {OPT['ks']}")
a(f"s_sub_u32 s{sBUD}, s{sBUD}, 1\ns_cbranch_scc0 L_pl0\ns_mov_b32 s{sBUD}, 0\ns_waitcnt vmcnt(0)\ns_cmp_eq_u32 s0, s0")
a("L_pw:")
stamp(4)
a("s_cbranch_scc0 L_pv")
if OPT["sp"]: a(f"s_cmp_eq_u32 s{sSP}, 1\ns_mov_b32 s{sSP}, 0\ns_mov_b64 exec, -1\ns_cbranch_scc1 L_bb")
a("s_branch L_pg\nL_pv:")
for v in range(KP - 1):
    a(f"s_cmp_eq_u32 s{sAG}, {v}\ns_waitcnt vmcnt({1 + 3 * (KP - 2 - v)})\n" + ("s_cbranch_scc1 L_pg" if v < KP - 2 else "s_branch L_pg"))
if OPT["sp"]: a(f"L_ab:\ns_mov_b64 exec, -1\nds_write_b32 v4, v4 offset:{NFL}\ns_branch L_bb")
a(f"L_xf:\n{row}\ns_waitcnt vmcnt(0)\nL_pg:\ns_mov_b64 exec, -1")
def back(l, d):
    if not OPT["sp"]: return "s_branch L_xf"
    return "\n".join(f"s_cmp_eq_u32 s62, {k}\ns_cbranch_scc1 {l}{(k + d) % KP}" for k in range(KP - 1)) + f"\ns_branch {l}{(KP - 1 + d) % KP}"
def wback(p):
    if OPT["wb"] & p: a(f"s_and_b32 s3, s{sMm}, 1\ns_add_u32 s3, s3, s{sWV}\ns_cmp_eq_u32 s3, 8\ns_cbranch_scc0 L_wb{p}\nbuffer_wbl2 sc1\nL_wb{p}:")
a("L_np:\ns_waitcnt lgkmcnt(0)\ns_barrier")
stamp(5)
def smf(d, A, B): a(f"v_smfmac_f32_16x16x64_bf16 {V(d,4)}, {V(A,4)}, {V(B,8)}, v{IDX}")
a(f"s_cmp_lt_u32 s{sWV}, 4\ns_cbranch_scc1 L_xh")
XL = 88
wback(1)
a(f"ds_read_b64 v[2:3], v4")
for s in range(10): a(f"ds_read_b128 {V(XL+4*s,4)}, v{vXS} offset:{128*s}")
def slook(k):
    if OPT["sp"]: a(f"s_cmp_eq_u32 s{sSP}, 0\ns_cbranch_scc1 L_sl{k}"); look(k); a(f"s_mov_b64 exec, -1\nL_sl{k}:")
slook(0)
a(f"s_waitcnt lgkmcnt(10)\nv_readfirstlane_b32 s56, v2\nv_readfirstlane_b32 s57, v3")
fo = [f"s_and_b32 s0, s57, 0x7fff\ns_add_u32 s57, s57, s0\ns_add_u32 s57, s57, {R_BASE}\ns_and_b32 s1, s56, 0xfffff800",
      f"s_ashr_i32 s3, s1, 31\ns_not_b32 s3, s3\ns_or_b32 s3, s3, 0x80000000\ns_xor_b32 s1, s1, s3", f"s_andn2_b32 s56, 2047, s56\ns_mul_i32 s56, s56, 1280\nv_mov_b32 v{vSG}, s1",
      f"v_mul_f32 v{vSG}, 0xbfb8aa3b, v{vSG}", f"v_exp_f32 v{vSG}, v{vSG}", f"v_add_f32 v{vSG}, 1.0, v{vSG}", f"v_rcp_f32 v{vSG}, v{vSG}"]
for s in range(10):
    a(f"s_waitcnt lgkmcnt({9-s})"); smf(GA, XL + 4 * s, GF + 8 * s)
    if fo: a(fo.pop(0))
assert KP == 3
slook(1)
a("s_branch L_xj"); pad("m"); a("L_xh:")
for s in range(4): a(f"ds_read_b128 {V(XS+4*s,4)}, v{vXS} offset:{128*s}")
for s in range(10):
    a(f"s_waitcnt lgkmcnt({min(3, 9-s)})")
    smf(GA, XS + 4 * (s % 4), GF + 8 * s); smf(GA + 4, XS + 4 * (s % 4), GF + 80 + 8 * s)
    if s + 4 < 10: a(f"ds_read_b128 {V(XS+4*(s%4),4)}, v{vXS} offset:{128*(s+4)}")
a("L_xj:\ns_mov_b64 vcc, 0xffff")
a(f"v_add_f32 v1, v{GA}, v{GA+1}\nv_add_f32 v2, v{GA+4}, v{GA+5}\nv_cndmask_b32 v1, v2, v1, vcc")
a(f"v_mul_f32 v2, 0xbfb8aa3b, v1\nv_cmp_u_f32 vcc, v1, v1\nv_exp_f32 v2, v2\nv_mul_f32_dpp v3, v1, v1 row_ror:8 {DPPM}\nv_add_f32 v2, 1.0, v2\nv_rcp_f32 v2, v2\ns_mov_b64 exec, s[50:51]")
a(f"v_mul_f32 v1, v2, v3\nv_cvt_pk_bf16_f32 v1, v1, v1\nds_write_b16 v{vACT}, v1\ns_mov_b64 exec, -1\ns_cbranch_vccnz L_xn\nL_xnb:")
DEFER.append(f"L_xn:\nds_write_b32 v4, v4 offset:{NFL}\ns_branch L_xnb")
stamp(6)
DEFER.append(f"L_xsr:\ns_sub_u32 s49, s49, 1\ns_cbranch_scc1 L_xsgo\n" + "\n".join(f"v_mov_b32 v{GA+i}, 0" for i in (0, 1, 4, 5))
             + f"\ns_waitcnt lgkmcnt(0)\ns_barrier\ns_cmp_eq_u32 s{sWV}, 7\ns_cbranch_scc0 L_np\nds_write_b32 v4, v{GA} offset:{NFL}\ns_cmp_eq_u32 s{sSP}, 2\ns_cbranch_scc0 L_xf\ns_mov_b32 s{sSP}, 0\ns_mov_b64 exec, {KM:#x}\n" + back("L_pi", 0))
if OPT["sp"]: a(f"s_cmp_eq_u32 s{sSP}, 0\ns_cbranch_scc0 L_pl0")
a(f"L_bb:\ns_waitcnt lgkmcnt(0)\ns_barrier")
DD = 8
a(f"ds_read_b32 v1, v4 offset:{NFL}\nds_read_b128 {V(XS,4)}, v{vA2}\nds_read_b128 {V(XS+4,4)}, v{vA1}\ns_waitcnt lgkmcnt(2)\nv_cmp_ne_u32 vcc, 0, v1\ns_cbranch_vccnz L_xsr\nL_xsgo:")
a("s_waitcnt lgkmcnt(1)")
for i in (4, 0, 1, 2, 3): mfma(DD + 4 * i, XS, DF + 12 * i + 8, "0")
a("s_waitcnt lgkmcnt(0)")
for i in (4, 0, 1, 2, 3): smf(DD + 4 * i, XS + 4, DF + 12 * i)
PS = 32
a(f"v_add_f32 v1, v{DD+16}, v{DD+17}")
for i in range(4): a(f"v_add_f32 v{PS+i}, v{DD+4*i}, v{DD+4*i+1}")
for i in range(4): a(f"v_mov_b32_dpp v{PS+i}, v1 quad_perm:[{i},{i},{i},{i}] row_mask:0x2 bank_mask:0xf")
a(f"s_mov_b64 exec, 0x1111ffff\nbuffer_store_dwordx4 {V(PS,4)}, v{vE4}, {S(WS)}, s47 offen sc1\ns_mov_b64 exec, -1")
stamp(7)
if OPT["stamps"] == 1: a(f"s_sub_u32 s3, {(BUDGET >> 2) + 1}, s49\ns_add_u32 s88, s98, s3\ns_add_u32 s90, s98, s63")
wback(2)
a(f"s_cmp_lt_u32 s{sFT}, 40\ns_cbranch_scc0 L_mfin")
FP = OPT["fp"]
FA = OPT["fa"]; NF = 3 if FA else 2
def fld(k):
    d = FD + 8 * k
    a(f"buffer_load_dword v{d+4}, v{vFB}, {S(WS)}, s57 offen sc1")
    if FA:
        for e in (0, 2): a(f"v_mov_b64 {V(d+e,2)}, 0\nbuffer_atomic_or_x2 {V(d+e,2)}, v6, {S(WS)}, s{sFE} offen offset:{4*e} sc0 sc1")
    else: a(f"buffer_load_dwordx4 {V(d,4)}, v6, {S(WS)}, s{sFE} offen sc1")
if OPT["f0"] > 0: a(f"s_sleep {OPT['f0']}")
if OPT["f0"] < 0: a("s_waitcnt vmcnt(0)")
if OPT["f0"] < -1: a(f"s_sleep {-OPT['f0'] - 1}")
for k in range(FP - 1):
    fld(k)
    if OPT["fs"]: a(f"s_sleep {OPT['fs']}")
a("L_fd:")
if OPT["ftop"]: a(f"s_sleep {OPT['ftop']}")
for k in range(FP):
    fld((k + FP - 1) % FP)
    d = FD + 8 * k
    a(f"s_waitcnt vmcnt({NF*(FP-1)})\nv_max3_u32 v1, v{d}, v{d+2}, v{d+4}\nv_cmp_eq_u32 vcc, -1, v1\ns_cbranch_vccz L_fg{k}")
    if OPT["fs"]: a(f"s_sleep {OPT['fs']}")
a(f"s_sub_u32 s{sBUD}, s{sBUD}, 1\ns_cbranch_scc0 L_fd")
for k in reversed(range(FP)):
    d = FD + 8 * k
    a(f"L_fg{k}:\nv_permlane32_swap_b32 v{d}, v{d+1}\nv_permlane32_swap_b32 v{d+2}, v{d+3}\nv_add_f32 v{d}, v{d}, v{d+1}\nv_add_f32 v{d+2}, v{d+2}, v{d+3}")
    a(f"v_permlane16_swap_b32 v{d}, v{d+2}\nv_add_f32 v{d}, v{d}, v{d+2}")
    for r in (4, 8): a(f"v_add_f32_dpp v{d}, v{d}, v{d} row_ror:{r} {DPPM}")
    a(f"v_fma_f32 v8, v{d}, v{vSG}, v{d+4}\nv_cvt_pk_bf16_f32 v8, v8, v8")
    execset(0x000F000F000F000F)
    a(f"buffer_store_short v8, v{vFC}, {S(OUT)}, s56 offen")
    if k: stamp(8); finish(); pad("m")
stamp(8)
a("L_mfin:")
finish()
deferred("m")
if OPT["stamps"]:
    a("L_dump:\ns_mov_b64 exec, -1\nv_mbcnt_lo_u32_b32 v0, -1, 0\nv_mbcnt_hi_u32_b32 v0, -1, v0\ns_memtime s[0:1]\ns_memrealtime s[62:63]\ns_waitcnt lgkmcnt(0)\nv_mov_b32 v2, 0")
    a("v_writelane_b32 v2, s98, 0\nv_writelane_b32 v2, s62, 1\ns_sub_u32 s3, s0, s96\nv_writelane_b32 v2, s3, 2")
    for i in range(NST): a(f"s_sub_u32 s3, s{70+2*i}, s{98 if OPT['rt'] else 96}\ns_cmp_lt_u32 s3, {5000 if OPT['rt'] else 0x100000}\ns_cselect_b32 s3, s3, 0\nv_writelane_b32 v2, s3, {3+i}")
    a(f"s_lshl_b32 s3, s2, 4\ns_add_u32 s3, s3, s{sWV}\ns_lshl_b32 s3, s3, 7\ns_add_u32 s3, s3, {STAMP}\nv_lshlrev_b32 v3, 2, v0\ns_mov_b32 exec_hi, 0")
    if not OPT["dfix"]: a(f"buffer_store_dword v2, v3, {S(WS)}, s3 offen")
    if OPT["diag"] >= 0:
        a(f"s_sub_u32 s3, s2, {OPT['dwg']}\ns_cmp_lt_u32 s3, {OPT['dn']}\ns_cbranch_scc0 L_end\ns_cmp_eq_u32 s{sWV}, {OPT['dwv']}\ns_cbranch_scc0 L_end")
        a(f"s_sub_u32 s3, s{70+2*OPT['diag']}, s{98 if OPT['dib'] < 0 else 70+2*OPT['dib']}\ns_lshl_b32 s3, s3, {2 if OPT['dib'] < 0 else 4}\ns_add_u32 s3, s3, s62")
        if OPT["dfix"] and OPT["dib"] >= 0: a(f"s_sub_u32 s3, s3, s62\ns_add_u32 s3, s3, s98\ns_add_u32 s3, s3, {OPT['dfix']}")
        elif OPT["dfix"]: a(f"s_add_u32 s3, s98, {OPT['dfix']}")
        if OPT["dpr"]:
            a(f"s_sub_u32 s0, s94, s86\ns_cmp_gt_u32 s0, {OPT['dpr']}\ns_cselect_b32 s0, 2048, 0\ns_add_u32 s3, s3, s0\ns_mul_i32 s0, s98, 40503\ns_bfe_u32 s0, s0, 0xb0005\ns_add_u32 s3, s3, s0")
        if OPT["ddie"] >= 0:
            a(f"s_mov_b64 exec, -1\nv_and_b32 v1, 7, v0\nv_lshlrev_b32 v1, 5, v1\nbuffer_load_dword v2, v1, {S(DBG)}, 0 offen offset:4 sc1\ns_waitcnt vmcnt(0)\nv_readlane_b32 s0, v2, 0")
            for k in range(1, 8): a(f"v_readlane_b32 s1, v2, {k}\ns_min_u32 s0, s0, s1")
            a(f"v_readlane_b32 s1, v2, {OPT['ddie']}\ns_sub_u32 s1, s1, s0\ns_and_b32 s1, s1, 0x3ff\ns_lshl_b32 s1, s1, 5\ns_add_u32 s3, s0, {OPT['dfix']}\ns_add_u32 s3, s3, s1")
        a("L_dg:\ns_memrealtime s[62:63]\ns_waitcnt lgkmcnt(0)\ns_sub_u32 s0, s62, s3\ns_cmp_lt_i32 s0, 0\ns_cbranch_scc1 L_dg")
a("L_end:\ns_endpgm")
for i, l in reversed(list(enumerate(a.lines))):
    if l.startswith(";WARM"):
        _, cat, k, n = l.split()
        a.lines[i:i+1] = [f"s_call_b64 s[100:101], {p}" for p in PADS.get(cat, [])[int(k)::int(n)]]
print({k: len(v) for k, v in PADS.items()})
body, nn = hazard.fix(a.lines[body0:], OPT["verbose"])
a.lines[body0:] = body
kernel_desc(a, K, 256)
open(sys.argv[1], "w").write(a.text())
print("nops inserted:", nn, "lines:", len(a.lines))
```
